```python
import torch

def _softmax(x, axis=-1):
    return torch.softmax(x, dim=axis)
def _gelu(x):
    return torch.nn.functional.gelu(x, approximate="tanh")
def _silu(x):
    return torch.nn.functional.silu(x)
def _sigmoid(x):
    return torch.sigmoid(x)
def _layernorm(x, axis=-1, eps=1e-5):
    m = x.mean(dim=axis, keepdim=True)
    v = x.var(dim=axis, keepdim=True, unbiased=False)
    return (x - m) / torch.sqrt(v + eps)
def _scatter_add(tgt, idx, src, axis=0):
    return tgt.clone().index_add_(axis, idx, src)
def _segment_sum(src, seg, n):
    out = torch.zeros((n,) + src.shape[1:], dtype=src.dtype)
    return out.index_add_(0, seg, src)
def _pad(x, pw):
    flat = tuple(v for pair in reversed(pw) for v in pair)
    return torch.nn.functional.pad(x, flat)

kernel_name = 'interleave_layers__ssm_conv_s5__ssm_conv_h3__prompt'

def setup_inputs():

    _w = (lambda a: (lambda t: t.to(torch.bfloat16) if t.is_floating_point() else t)(torch.as_tensor(a)))
    def _A_setup():
        B, S, D = 1, 2048, 576
        P = D
        Lambda_re = -0.5 * (lambda _x: torch.exp(torch.as_tensor(_x)))((lambda *s: torch.randn(*s, dtype=torch.bfloat16) * 0.2)(P))
        Lambda_im = (lambda *s: torch.randn(*s, dtype=torch.bfloat16) * 0.4)(P) * 1.0
        B_re = (lambda *s: torch.randn(*s, dtype=torch.bfloat16) * 0.2)(P, D) * (D ** -0.5)
        B_im = (lambda *s: torch.randn(*s, dtype=torch.bfloat16) * 0.2)(P, D) * (D ** -0.5)
        C_re = (lambda *s: torch.randn(*s, dtype=torch.bfloat16) * 0.2)(D, P) * (P ** -0.5)
        C_im = (lambda *s: torch.randn(*s, dtype=torch.bfloat16) * 0.2)(D, P) * (P ** -0.5)
        log_dt = (lambda *s: torch.randn(*s, dtype=torch.bfloat16) * 0.2)(P) * 0.3 - 2.0
        Dskip = (lambda *s: torch.randn(*s, dtype=torch.bfloat16) * 0.05)(D)
        return {
            "x": _w((lambda *s: torch.randn(*s, dtype=torch.bfloat16) * 0.05)(B, S, D)),
            "Lambda_re": _w(Lambda_re),
            "Lambda_im": _w(Lambda_im),
            "B_re": _w(B_re),
            "B_im": _w(B_im),
            "C_re": _w(C_re),
            "C_im": _w(C_im),
            "log_dt": _w(log_dt),
            "Dskip": _w(Dskip),
        }
    _A_in = _A_setup()

    def _B_setup():
        B, S, D = 1, 2048, 576
        ks = 4
        return {
            "q": _w((lambda *s: torch.randn(*s, dtype=torch.bfloat16) * 0.05)(B, S, D)),
            "k": _w((lambda *s: torch.randn(*s, dtype=torch.bfloat16) * 0.4)(B, S, D)),
            "v": _w((lambda *s: torch.randn(*s, dtype=torch.bfloat16) * 0.4)(B, S, D)),
            "shift_k": _w((lambda *s: torch.randn(*s, dtype=torch.bfloat16) * 0.4)(D, ks) * 0.5),
            "ssm_k": _w((lambda *s: torch.randn(*s, dtype=torch.bfloat16) * 0.4)(D, S) * (1.0 / S ** 0.5)),
            "ssm_D": _w((lambda *s: torch.randn(*s, dtype=torch.bfloat16) * 0.4)(D)),
        }
    _B_in = _B_setup()

    return {
        "A_x": _A_in["x"],
        "A_Lambda_re": _A_in["Lambda_re"],
        "A_Lambda_im": _A_in["Lambda_im"],
        "A_B_re": _A_in["B_re"],
        "A_B_im": _A_in["B_im"],
        "A_C_re": _A_in["C_re"],
        "A_C_im": _A_in["C_im"],
        "A_log_dt": _A_in["log_dt"],
        "A_Dskip": _A_in["Dskip"],
        "B_q": _B_in["q"],
        "B_k": _B_in["k"],
        "B_v": _B_in["v"],
        "B_shift_k": _B_in["shift_k"],
        "B_ssm_k": _B_in["ssm_k"],
        "B_ssm_D": _B_in["ssm_D"],
    }

def reference(A_x, A_Lambda_re, A_Lambda_im, A_B_re, A_B_im, A_C_re, A_C_im, A_log_dt, A_Dskip, B_q, B_k, B_v, B_shift_k, B_ssm_k, B_ssm_D):
    def _A_ref(x, Lambda_re, Lambda_im, B_re, B_im, C_re, C_im, log_dt, Dskip):
        Bsz, L, H = x.shape
        Lam = Lambda_re + 1j * Lambda_im
        Bmat = B_re + 1j * B_im
        Cmat = C_re + 1j * C_im
        dt = torch.exp(log_dt)
        Lam_bar = torch.exp(dt * Lam)
        B_bar = ((Lam_bar - 1.0) / Lam)[:, None] * Bmat
        Bu = torch.einsum("bld,pd->blp", x + 0j, B_bar)
        h = torch.zeros_like(Bu[:, 0, :])
        hs = []
        for t in range(L):
            h = Lam_bar[None, :] * h + Bu[:, t, :]
            hs.append(h)
        hseq = torch.stack(hs, 1)
        y = 2.0 * torch.einsum("blp,dp->bld", hseq, Cmat).real + x * Dskip[None, None, :]
        return y

    def _B_ref(q, k, v, shift_k, ssm_k, ssm_D):
        B, S, D = q.shape
        ks = shift_k.shape[-1]
        k_pad = _pad(k, ((0, 0), (ks - 1, 0), (0, 0)))
        k_shift = torch.zeros_like(k)
        for t in range(ks):
            k_shift = k_shift + k_pad[:, t:t + S, :] * shift_k[:, ks - 1 - t][None, None, :]
        kv = k_shift * v
        L = 2 * S
        kv_pad = _pad(kv, ((0, 0), (0, S), (0, 0)))
        kf_pad = _pad(ssm_k, ((0, 0), (0, S)))
        kv_f = (lambda x, axes=(-2,-1): torch.fft.rfft2(x.float(), dim=axes))(kv_pad[:, None, :, :], axes=(1, 2))
        kf_f = (lambda x, axes=(-2,-1): torch.fft.rfft2(x.float(), dim=axes))(kf_pad[:, None, :], axes=(1, 2))
        kf_f = (lambda x, *d: x.permute(*d))(kf_f, 1, 2, 0)
        y_f = kv_f * kf_f[None, :, :, :]
        y = (lambda x, s, axes=(-2,-1): torch.fft.irfft2(x, s=s, dim=axes).to(torch.bfloat16))(y_f, (1, L), axes=(1, 2))[:, 0, :S, :]
        y = y + kv * ssm_D[None, None, :]
        return q * y

    x = A_x
    x = x + _A_ref(_layernorm(x, axis=-1), A_Lambda_re, A_Lambda_im, A_B_re, A_B_im, A_C_re, A_C_im, A_log_dt, A_Dskip)
    x = x + _B_ref(_layernorm(x, axis=-1), B_k, B_v, B_shift_k, B_ssm_k, B_ssm_D)
    x = x + _A_ref(_layernorm(x, axis=-1), A_Lambda_re, A_Lambda_im, A_B_re, A_B_im, A_C_re, A_C_im, A_log_dt, A_Dskip)
    x = x + _B_ref(_layernorm(x, axis=-1), B_k, B_v, B_shift_k, B_ssm_k, B_ssm_D)
    return x
```

```python
import re

TRANS = ('v_exp_f32', 'v_log_f32', 'v_rcp_f32', 'v_rsq_f32', 'v_sqrt_f32', 'v_sin_f32', 'v_cos_f32')


def regs_of(op):
    op = op.strip()
    op = op.lstrip('-')
    if op.startswith('abs(') or op.startswith('|'):
        op = op.replace('abs(', '').replace(')', '').replace('|', '')
    m = re.fullmatch(r'([vas])(\d+)', op)
    if m:
        return [(m.group(1), int(m.group(2)))]
    m = re.fullmatch(r'([vas])\[(\d+):(\d+)\]', op)
    if m:
        return [(m.group(1), i) for i in range(int(m.group(2)), int(m.group(3)) + 1)]
    if op == 'vcc':
        return [('s', 106), ('s', 107)]
    if op == 'vcc_lo':
        return [('s', 106)]
    if op == 'vcc_hi':
        return [('s', 107)]
    if op == 'exec':
        return [('s', 126), ('s', 127)]
    if op == 'm0':
        return [('s', 124)]
    return []


class Ins:
    __slots__ = ('text', 'mn', 'ops', 'mods', 'dst', 'src', 'kind', 'tok', 'srcc', 'srcab', 'cmt')

    def __init__(self, text, tok=None):
        self.text = text
        self.tok = tok
        t = text.split(';')[0].strip()
        parts = t.split(None, 1)
        self.mn = parts[0]
        rest = parts[1] if len(parts) > 1 else ''
        ops, cur, depth = [], '', 0
        for ch in rest:
            if ch in '[(':
                depth += 1
            if ch in '])':
                depth -= 1
            if ch == ',' and depth == 0:
                ops.append(cur.strip())
                cur = ''
            else:
                cur += ch
        if cur.strip():
            ops.append(cur.strip())
        mods = ''
        if ops:
            last = ops[-1].split(None, 1)
            ops[-1] = last[0]
            if len(last) > 1:
                mods = last[1]
        self.ops = ops
        self.mods = mods
        self.srcc = []
        self.srcab = []
        self.classify()

    def classify(self):
        mn, ops = self.mn, self.ops
        R = regs_of
        dst, src = [], []
        if mn.endswith(':') or mn.startswith('.'):
            kind = 'label'
        elif mn.startswith('v_mfma'):
            kind = 'mfma'
            dst = R(ops[0])
            self.srcab = R(ops[1]) + R(ops[2])
            self.srcc = R(ops[3])
            src = self.srcab + self.srcc
        elif mn.startswith('v_'):
            kind = 'valu'
            base = mn.replace('_e32', '').replace('_e64', '').replace('_dpp', '').replace('_sdwa', '')
            if base.startswith('v_permlane') and 'swap' in base:
                dst = R(ops[0]) + R(ops[1])
                src = R(ops[0]) + R(ops[1])
            elif base in ('v_add_co_u32', 'v_sub_co_u32', 'v_addc_co_u32', 'v_subb_co_u32', 'v_subrev_co_u32',
                          'v_mad_u64_u32', 'v_div_scale_f32'):
                dst = R(ops[0]) + R(ops[1])
                for o in ops[2:]:
                    src += R(o)
            elif base == 'v_nop':
                pass
            else:
                dst = R(ops[0])
                for o in ops[1:]:
                    src += R(o)
                if base in ('v_fmac_f32', 'v_dot2c_f32_bf16', 'v_pk_fmac_f16', 'v_writelane_b32') or \
                        ('_dpp' in mn) or ('_sdwa' in mn):
                    src += R(ops[0])
                if base in ('v_div_fmas_f32',):
                    src += R('vcc')
        elif mn.startswith('ds_'):
            kind = 'ds'
            if mn.startswith('ds_read') or mn.startswith('ds_bpermute') or mn.startswith('ds_permute') or \
                    mn.startswith('ds_swizzle'):
                dst = R(ops[0])
                for o in ops[1:]:
                    src += R(o)
                if 'd16' in mn:
                    src += R(ops[0])
            else:
                for o in ops:
                    src += R(o)
        elif mn.startswith('buffer_') or mn.startswith('global_'):
            kind = 'vmem'
            lds = re.search(r'\blds\b', self.mods) is not None or '_lds_' in mn
            if mn in ('buffer_inv', 'buffer_wbl2'):
                pass
            elif lds:
                for o in ops:
                    src += R(o)
                src += R('m0')
            elif '_load' in mn:
                dst = R(ops[0])
                for o in ops[1:]:
                    src += R(o)
                if 'd16' in mn:
                    src += R(ops[0])
            elif '_atomic' in mn:
                for o in ops:
                    src += R(o)
                if 'sc0' in self.mods:
                    dst = R(ops[0])
            else:
                for o in ops:
                    src += R(o)
        elif mn.startswith('s_load') or mn.startswith('s_memtime') or mn.startswith('s_memrealtime') or \
                mn.startswith('s_buffer_load'):
            kind = 'smem'
            dst = R(ops[0])
            for o in ops[1:]:
                src += R(o)
        elif mn.startswith('s_'):
            kind = 'salu'
            if mn in ('s_waitcnt', 's_nop', 's_barrier', 's_endpgm', 's_sleep', 's_setprio', 's_branch') or \
                    mn.startswith('s_cbranch'):
                if mn.startswith('s_cbranch_vcc'):
                    src = R('vcc')
            elif mn.startswith('s_cmp') or mn.startswith('s_bitcmp'):
                for o in ops:
                    src += R(o)
            else:
                dst = R(ops[0])
                for o in ops[1:]:
                    src += R(o)
                if 'saveexec' in mn:
                    dst += R('exec')
                    src += R('exec')
                if mn in ('s_addk_i32', 's_mulk_i32'):
                    src += R(ops[0])
        else:
            raise ValueError('unknown instruction: ' + self.text)
        self.kind, self.dst, self.src = kind, dst, src


class Tok:
    __slots__ = ('seq', 'cls')

    def __init__(self):
        self.seq = None
        self.cls = None


class Stream:
    def __init__(self):
        self.groups = []

    def __call__(self, *texts, tok=None):
        g = []
        for i, t in enumerate(texts):
            g.append(Ins(t, tok if i == len(texts) - 1 else None))
        self.groups.append(g)
        return self

    def mem(self, *texts):
        t = Tok()
        self(*texts, tok=t)
        return t

    def wait(self, *toks):
        self.groups.append([('wait', toks)])

    def label(self, name):
        self.groups.append([Ins(name + ':')])

    def fence(self):
        self.groups.append([('fence',)])

    def comment(self, s):
        self.groups.append([('cmt', s)])

    def extend(self, other):
        self.groups.extend(other.groups)

    def weave(self, main, side, start=0.0, end=1.0):
        n, m = len(main.groups), len(side.groups)
        if m == 0:
            self.extend(main)
            return
        lo, hi = int(n * start), int(n * end)
        span = max(hi - lo, 1)
        k = 0
        for i, g in enumerate(main.groups):
            while k < m and i >= lo and (i - lo) * m >= k * span:
                self.groups.append(side.groups[k])
                k += 1
            self.groups.append(g)
        while k < m:
            self.groups.append(side.groups[k])
            k += 1


def mfma_passes(mn):
    if '32x32' in mn:
        return 8
    return 4


def finalize(stream):
    out = []
    hist = []
    pos = 0
    vm_seq = 0
    lg_seq = 0
    vm_done = 0
    lg_done = 0
    smem_pending = False
    pend_vm = {}
    pend_lg = {}

    def emit(ins):
        nonlocal pos
        out.append(ins)
        if ins.kind == 'label':
            return
        if ins.mn == 's_nop':
            pos += int(ins.ops[0], 0) + 1
        else:
            hist.append((ins, pos))
            pos += 1
        while hist and pos - hist[0][1] > 24:
            hist.pop(0)

    def do_wait(vm=None, lg=None):
        nonlocal vm_done, lg_done, smem_pending
        parts = []
        if vm is not None and vm > vm_done:
            n = min(vm_seq - vm, 63)
            parts.append('vmcnt(%d)' % n)
            vm_done = vm_seq - n
        if lg is not None:
            if lg == 'smem' or smem_pending:
                if smem_pending or lg_done < lg_seq:
                    parts.append('lgkmcnt(0)')
                    lg_done = lg_seq
                    smem_pending = False
                    for r in [r for r, s in pend_lg.items() if s == 'smem']:
                        del pend_lg[r]
            elif lg > lg_done:
                n = min(lg_seq - lg, 15)
                parts.append('lgkmcnt(%d)' % n)
                lg_done = lg_seq - n
        if parts:
            emit(Ins('s_waitcnt ' + ' '.join(parts)))

    def need_nops(ins):
        need = 0
        srcs = set(ins.src)
        dsts = set(ins.dst)
        is_dpp = '_dpp' in ins.mn
        is_perm = ins.mn.startswith('v_permlane')
        is_rl = ins.mn.startswith('v_readlane') or ins.mn.startswith('v_readfirstlane')
        is_lds_dma = ins.kind == 'vmem' and ('s', 124) in srcs
        for p, ppos in hist:
            dist = pos - ppos - 1
            req = 0
            pd = set(p.dst)
            if p.kind == 'valu':
                vd = {r for r in pd if r[0] in 'va'}
                sd = {r for r in pd if r[0] == 's'}
                isdot = p.mn.startswith('v_dot')
                if isdot:
                    if vd & (srcs | dsts):
                        same = ins.mn.startswith(p.mn.replace('_e32', ''))
                        if same and p.mn.startswith('v_dot2c') and not (vd & set(sum([regs_of(o) for o in ins.ops[1:]], []))):
                            req = max(req, 0)
                        elif same and not p.mn.startswith('v_dot2c') and \
                                not (vd & set(regs_of(ins.ops[1]) + regs_of(ins.ops[2]))):
                            req = max(req, 0)
                        else:
                            req = max(req, 3)
                if ins.kind == 'mfma' and vd & srcs:
                    req = max(req, 2)
                if ins.kind == 'valu':
                    if is_dpp and vd & srcs:
                        req = max(req, 2)
                    if is_perm and vd & srcs:
                        req = max(req, 2)
                    if is_rl and vd & srcs:
                        req = max(req, 1)
                    if sd & srcs:
                        req = max(req, 4 if (ins.mn.startswith('v_readlane') or ins.mn.startswith('v_writelane') or
                                             ins.mn.startswith('v_div_fmas')) else 2)
                    if p.mn.replace('_e32', '').replace('_e64', '') in TRANS and vd & srcs:
                        req = max(req, 1)
                    if '_sdwa' in p.mn and vd & (srcs | dsts):
                        req = max(req, 1)
                    if ('s', 126) in sd and is_dpp:
                        req = max(req, 5)
                if ins.kind == 'vmem' and sd & srcs:
                    req = max(req, 5)
                if ins.kind == 'mfma' and ('s', 126) in sd:
                    req = max(req, 4)
            elif p.kind == 'mfma':
                ps = mfma_passes(p.mn)
                big = {4: 8, 8: 12}[ps]
                if ins.kind == 'mfma':
                    if pd & set(ins.srcab):
                        req = max(req, big)
                    if pd & set(ins.srcc):
                        if p.dst == ins.srcc and mfma_passes(ins.mn) == ps:
                            req = max(req, 0)
                        else:
                            req = max(req, big - 2)
                    if pd & dsts and not (p.dst == ins.srcc):
                        req = max(req, big)
                else:
                    if pd & (srcs | dsts):
                        req = max(req, big)
                    if ins.kind == 'valu' and set(p.srcc) & dsts:
                        req = max(req, {4: 3, 8: 7}[ps])
                    if ins.kind in ('ds', 'vmem') and set(p.srcc) & dsts:
                        req = max(req, {4: 3, 8: 7}[ps])
            elif p.kind == 'salu':
                if ('s', 124) in pd and is_lds_dma:
                    req = max(req, 1)
            elif p.kind in ('vmem', 'ds'):
                wide = ('store_dwordx4' in p.mn or 'store_dwordx3' in p.mn or 'write_b128' in p.mn or 'write_b96' in p.mn)
                if wide:
                    data = set(regs_of(p.ops[0])) if p.kind == 'vmem' and p.mn.startswith('buffer') else set(regs_of(p.ops[1]))
                    if data & dsts:
                        req = max(req, 2 if ins.kind in ('valu', 'mfma') else 1)
            need = max(need, req - dist)
        return need

    for g in stream.groups:
        for it in g:
            if isinstance(it, tuple):
                if it[0] == 'cmt':
                    out.append('; ' + it[1])
                elif it[0] == 'wait':
                    vm = max([t.seq for t in it[1] if t.cls == 'vm'], default=None)
                    lg = max([t.seq for t in it[1] if t.cls == 'lg'], default=None)
                    for t in it[1]:
                        assert t.seq is not None, 'wait on token not yet emitted'
                    do_wait(vm, lg)
                elif it[0] == 'fence':
                    emit(Ins('s_waitcnt vmcnt(0) lgkmcnt(0)'))
                    vm_done, lg_done, smem_pending = vm_seq, lg_seq, False
                    pend_vm.clear()
                    pend_lg.clear()
                    emit(Ins('s_nop 7'))
                    emit(Ins('s_nop 3'))
                continue
            ins = it
            if ins.kind == 'label':
                out.append(ins)
                continue
            if ins.mn == 's_waitcnt':
                m = re.search(r'vmcnt\((\d+)\)', ins.text)
                if m:
                    vm_done = max(vm_done, vm_seq - int(m.group(1)))
                m = re.search(r'lgkmcnt\((\d+)\)', ins.text)
                if m:
                    if int(m.group(1)) == 0:
                        smem_pending = False
                        lg_done = lg_seq
                        for r in [r for r, s in pend_lg.items() if s == 'smem']:
                            del pend_lg[r]
                    elif not smem_pending:
                        lg_done = max(lg_done, lg_seq - int(m.group(1)))
                emit(ins)
                continue
            touched = set(ins.src) | set(ins.dst)
            vm = max([pend_vm[r] for r in touched if r in pend_vm], default=None)
            lgs = [pend_lg[r] for r in touched if r in pend_lg]
            lg = None
            if lgs:
                lg = 'smem' if 'smem' in lgs else max(lgs)
            do_wait(vm, lg)
            n = need_nops(ins)
            while n > 0:
                k = min(n, 16)
                emit(Ins('s_nop %d' % (k - 1)))
                n -= k
            emit(ins)
            for r in touched:
                if r in pend_vm and pend_vm[r] <= vm_done:
                    del pend_vm[r]
                if r in pend_lg and pend_lg[r] != 'smem' and pend_lg[r] <= lg_done:
                    del pend_lg[r]
            if ins.kind == 'vmem':
                vm_seq += 1
                for r in ins.dst:
                    pend_vm[r] = vm_seq
                if ins.tok is not None:
                    ins.tok.seq, ins.tok.cls = vm_seq, 'vm'
            elif ins.kind == 'ds':
                lg_seq += 1
                for r in ins.dst:
                    pend_lg[r] = lg_seq
                if ins.tok is not None:
                    ins.tok.seq, ins.tok.cls = lg_seq, 'lg'
            elif ins.kind == 'smem':
                smem_pending = True
                for r in ins.dst:
                    pend_lg[r] = 'smem'
    lines = []
    for o in out:
        if isinstance(o, str):
            lines.append('  ' + o)
        elif o.kind == 'label':
            lines.append(o.text)
        else:
            lines.append('  ' + o.text)
    return lines


class Alloc:
    def __init__(self, kind, lo, hi):
        self.kind = kind
        self.free = set(range(lo, hi))
        self.hw = lo

    def get(self, n=1, align=None):
        if align is None:
            align = 1 if n == 1 else (2 if n in (2, 3) else 4)
        cands = sorted(self.free)
        for c in cands:
            if c % align:
                continue
            if all((c + i) in self.free for i in range(n)):
                for i in range(n):
                    self.free.discard(c + i)
                self.hw = max(self.hw, c + n)
                return c
        raise RuntimeError('out of %s registers (need %d)' % (self.kind, n))

    def put(self, base, n=1):
        for i in range(n):
            assert (base + i) not in self.free
            self.free.add(base + i)


def vr(b, n=1):
    return 'v%d' % b if n == 1 else 'v[%d:%d]' % (b, b + n - 1)


def ar(b, n=1):
    return 'a%d' % b if n == 1 else 'a[%d:%d]' % (b, b + n - 1)


def sr(b, n=1):
    return 's%d' % b if n == 1 else 's[%d:%d]' % (b, b + n - 1)
```

```python
import sys, os
sys.path.insert(0, os.path.dirname(os.path.abspath(__file__)))
from asmlib import *

NAME = 'interleave_layers__ssm_conv_s5__ssm_conv_h3__prompt'
KN = NAME + '_kernel'

OPT = dict(stamps=0, stop=99)
for a in sys.argv[2:]:
    k, v = a.split('=')
    OPT[k] = int(v)

WS_KVF = 0x1000
WS_CPF = 0x3000
WS_HF = 0x4000
WS_WF = 0x8000
WS_GF = 0xA000
WS_E = 0x10000
WS_ST = 0x100000
WS_KVT = 0x400000
KVT_STR = 4352
WS_CP = 0x700000
WS_H = 0x900000
WS_W = 0x1300000
WS_G = 0x1600000
G_STR = 8448
WS_DBG = 0x2000000
WS_SIZE = 0x10000000
OOB = 0x7FFF0000

L_IMG = 0
L_RING = 92160
L_PRIV = 141312
L_MISC = 161792
LDS_SIZE = 163840
L_TAB = L_MISC
L_KC = L_RING
KC_CH = 16656
L_UC = L_IMG
UC_CH = 9280
L_CO = L_IMG + 20480
PART_ROW = 272
PART_W = 16 * PART_ROW
SPIN = 20000

S_WG = 2
P_X, P_LRE, P_LIM, P_BRE, P_BIM, P_CRE, P_CIM, P_LDT = [8 + 2 * i for i in range(8)]
P_DSK, P_Q, P_K, P_V, P_SHK, P_SSK, P_SSD, P_OUT = [24 + 2 * i for i in range(8)]
P_DBG, P_WS = 40, 42
R_WS, R_X, R_BRE, R_BIM, R_K, R_V, R_OUT, R_SK = [44 + 4 * i for i in range(8)]
S_RB, S_CG, S_ROT, S_WAVE, S_TAG, S_L, S_PAIR, S_SPIN = range(76, 84)
S_KP = 84
S_T0, S_T1, S_T2, S_T3 = 93, 94, 95, 96
S_ROUND = 97
S_M1, S_M2 = 98, 100
S_A, S_B, S_C = 3, 4, 5
S_PC = 6

V = Alloc('v', 1, 256)
top = Stream()
lblc = [0]


def newlabel(p):
    lblc[0] += 1
    return 'L_%s_%d' % (p, lblc[0])


def srd(a, r, p, size):
    a('s_mov_b32 %s, %s' % (sr(r), sr(p)))
    a('s_and_b32 %s, %s, 0xffff' % (sr(r + 1), sr(p + 1)))
    a('s_mov_b32 %s, 0x%x' % (sr(r + 2), size))
    a('s_mov_b32 %s, 0x20000' % sr(r + 3))


def cmul(a, d, x, y):
    a('v_pk_mul_f32 %s, %s, %s op_sel:[0,0] op_sel_hi:[1,0]' % (vr(d, 2), vr(x, 2), vr(y, 2)))
    a('v_pk_fma_f32 %s, %s, %s, %s op_sel:[1,1,0] op_sel_hi:[0,1,1] neg_lo:[1,0,0]' % (vr(d, 2), vr(x, 2), vr(y, 2), vr(d, 2)))


def cfma(a, d, x, y, c):
    a('v_pk_fma_f32 %s, %s, %s, %s op_sel:[0,0,0] op_sel_hi:[1,0,1]' % (vr(d, 2), vr(x, 2), vr(y, 2), vr(c, 2)))
    a('v_pk_fma_f32 %s, %s, %s, %s op_sel:[1,1,0] op_sel_hi:[0,1,1] neg_lo:[1,0,0]' % (vr(d, 2), vr(x, 2), vr(y, 2), vr(d, 2)))


stamp_n = [0]


def stamp(a, name):
    if not OPT['stamps']:
        return
    i = stamp_n[0]
    stamp_n[0] += 1
    a.comment('stamp %d %s' % (i, name))
    a('s_memrealtime %s' % sr(S_M2, 2))
    a('s_waitcnt lgkmcnt(0)')
    a('v_writelane_b32 %s, %s, %d' % (vr(V_STAMP), sr(S_M2), i))
    STAMPS.append(name)


STAMPS = []


def poll(a, loads, checks):
    L = newlabel('poll')
    Ld = newlabel('polld')
    a('s_mov_b32 %s, %d' % (sr(S_SPIN), SPIN))
    a.label(L)
    for t in loads:
        a(t)
    a('s_waitcnt vmcnt(0)')
    first = True
    for (x, e) in checks:
        if first:
            a('v_cmp_ne_u32 vcc, %s, %s' % (vr(x), vr(e)))
            first = False
        else:
            a('v_cmp_ne_u32 %s, %s, %s' % (sr(S_M1, 2), vr(x), vr(e)))
            a('s_or_b64 vcc, vcc, %s' % sr(S_M1, 2))
    a('s_sub_u32 %s, %s, 1' % (sr(S_SPIN), sr(S_SPIN)))
    a('s_cselect_b64 vcc, 0, vcc')
    a('s_cmp_lg_u64 vcc, 0')
    a('s_cbranch_scc1 %s' % L)


def flag_store(a, vaddr, soff, toks):
    a.wait(*toks)
    a('s_mov_b64 exec, 1',
      'buffer_store_dword %s, %s, %s, %s offen sc1' % (vr(V_TAG), vr(vaddr), sr(R_WS, 4), soff),
      's_mov_b64 exec, -1')


def row_allreduce(a, regs):
    for sh in (8, 4, 2, 1):
        for r in regs:
            a('v_add_f32_dpp %s, %s, %s row_ror:%d row_mask:0xf bank_mask:0xf' % (vr(r), vr(r), vr(r), sh))


def lam_params(a, vp2, want_coef):
    t = V.get(4)
    a('global_load_ushort %s, %s, %s' % (vr(t), vr(vp2), sr(P_LRE, 2)))
    a('global_load_ushort %s, %s, %s' % (vr(t + 1), vr(vp2), sr(P_LIM, 2)))
    a('global_load_ushort %s, %s, %s' % (vr(t + 2), vr(vp2), sr(P_LDT, 2)))
    return t


def lam_compute(a, t, want_coef, lam=None):
    if lam is None:
        lam = V.get(2)
    u = V.get(4)
    for i in range(3):
        a('v_lshlrev_b32 %s, 16, %s' % (vr(t + i), vr(t + i)))
    a('v_mul_f32 %s, 0x3fb8aa3b, %s' % (vr(t + 2), vr(t + 2)))
    a('v_exp_f32 %s, %s' % (vr(t + 2), vr(t + 2)))
    a('v_cvt_pk_bf16_f32 %s, %s, %s' % (vr(t + 2), vr(t + 2), vr(t + 2)))
    a('v_lshlrev_b32 %s, 16, %s' % (vr(t + 2), vr(t + 2)))
    a('v_mul_f32 %s, %s, %s' % (vr(u), vr(t + 2), vr(t)))
    a('v_mul_f32 %s, %s, %s' % (vr(u + 1), vr(t + 2), vr(t + 1)))
    a('v_mul_f32 %s, 0x3fb8aa3b, %s' % (vr(u), vr(u)))
    a('v_exp_f32 %s, %s' % (vr(u), vr(u)))
    a('v_mul_f32 %s, 0.15915494, %s' % (vr(u + 1), vr(u + 1)))
    a('v_rndne_f32 %s, %s' % (vr(u + 2), vr(u + 1)))
    a('v_sub_f32 %s, %s, %s' % (vr(u + 1), vr(u + 1), vr(u + 2)))
    a('v_cos_f32 %s, %s' % (vr(u + 2), vr(u + 1)))
    a('v_sin_f32 %s, %s' % (vr(u + 3), vr(u + 1)))
    a('v_mul_f32 %s, %s, %s' % (vr(lam), vr(u), vr(u + 2)))
    a('v_mul_f32 %s, %s, %s' % (vr(lam + 1), vr(u), vr(u + 3)))
    coef = None
    if want_coef:
        coef = V.get(2)
        a('v_add_f32 %s, -1.0, %s' % (vr(u), vr(lam)))
        a('v_mov_b32 %s, %s' % (vr(u + 1), vr(lam + 1)))
        a('v_mul_f32 %s, %s, %s' % (vr(u + 2), vr(t), vr(t)))
        a('v_fmac_f32 %s, %s, %s' % (vr(u + 2), vr(t + 1), vr(t + 1)))
        a('v_rcp_f32 %s, %s' % (vr(u + 2), vr(u + 2)))
        a('v_sub_f32 %s, 0, %s' % (vr(t + 1), vr(t + 1)))
        cmul(a, coef, u, t)
        a('v_mul_f32 %s, %s, %s' % (vr(coef), vr(coef), vr(u + 2)))
        a('v_mul_f32 %s, %s, %s' % (vr(coef + 1), vr(coef + 1), vr(u + 2)))
    V.put(u, 4)
    V.put(t, 4)
    return lam, coef


a = top
V_LANE = V.get()
V_TAG = V.get()
V_STAMP = V.get()
V_L16 = V.get()
V_N = V.get()
V_Q = V.get()
V_ZERO = V.get(4)
V_DUMMY = V.get(4)
BASE = V.get(20)
V_DSK = V.get(4)
V_FA = V.get(4)
LAM, L10, L20, L320, LQ80, LQ20, RB = [V.get(2) for _ in range(7)]
(V_TAU, V_ROWX, V_STW, V_STR, V_EXP9, V_TABW, V_DW, V_EW, V_ER, V_HW, V_HR, V_FX, V_TABR) = [V.get() for _ in range(13)]

a('s_cmp_ge_u32 s2, 256')
a('s_cbranch_scc1 L_end')
a('s_load_dwordx16 s[8:23], s[0:1], 0')
a('s_load_dwordx16 s[24:39], s[0:1], 64')
a('s_load_dwordx4 s[40:43], s[0:1], 128')
a('s_getpc_b64 %s' % sr(S_PC, 2))
a.label('L_pc')
a('v_and_b32 %s, 63, v0' % vr(V_LANE))
a('v_lshrrev_b32 %s, 6, v0' % vr(V_Q))
a('v_lshlrev_b32 %s, 4, %s' % (vr(V_L16), vr(V_LANE)))
a('v_readfirstlane_b32 %s, %s' % (sr(S_WAVE), vr(V_Q)))
a('s_lshr_b32 %s, s2, 3' % sr(S_T0))
a('s_lshl_b32 %s, %s, 12' % (sr(S_T1), sr(S_T0)))
a('v_lshl_add_u32 %s, v0, 4, %s' % (vr(V_DUMMY), sr(S_T1)))
a('s_mov_b32 %s, L_end-L_pc-16' % sr(S_T1))
a('v_min_u32 %s, %s, %s' % (vr(V_DUMMY), sr(S_T1), vr(V_DUMMY)))
a('global_load_dwordx4 %s, %s, %s' % (vr(V_DUMMY, 4), vr(V_DUMMY), sr(S_PC, 2)))
if OPT['stamps']:
    a('v_mov_b32 %s, 0' % vr(V_STAMP))
stamp(a, 'start')
a('v_and_b32 %s, 15, %s' % (vr(V_N), vr(V_LANE)))
a('v_lshrrev_b32 %s, 4, %s' % (vr(V_Q), vr(V_LANE)))
for i in range(4):
    a('v_mov_b32 %s, 0' % vr(V_ZERO + i))
a('s_and_b32 %s, s2, 7' % sr(S_T1))
a('s_mul_i32 %s, %s, 27' % (sr(S_T2), sr(S_T1)))
a('s_add_u32 %s, %s, %s' % (sr(S_T2), sr(S_T2), sr(S_T0)))
a('s_mul_i32 %s, %s, 5' % (sr(S_T3), sr(S_T1)))
a('s_add_u32 %s, %s, %s' % (sr(S_T3), sr(S_T3), sr(S_T0)))
a('s_add_u32 %s, %s, %d' % (sr(S_T3), sr(S_T3), 216 - 27))
a('s_cmp_lt_u32 %s, 27' % sr(S_T0))
a('s_cselect_b32 %s, %s, %s' % (sr(S_L), sr(S_T2), sr(S_T3)))
a('s_mul_i32 %s, %s, 57' % (sr(S_RB), sr(S_L)))
a('s_lshr_b32 %s, %s, 9' % (sr(S_RB), sr(S_RB)))
a('s_mul_i32 %s, %s, 9' % (sr(S_T0), sr(S_RB)))
a('s_sub_u32 %s, %s, %s' % (sr(S_CG), sr(S_L), sr(S_T0)))
a('s_mul_i32 %s, %s, 43' % (sr(S_T0), sr(S_RB)))
a('s_lshr_b32 %s, %s, 7' % (sr(S_T0), sr(S_T0)))
a('s_mul_i32 %s, %s, 3' % (sr(S_T0), sr(S_T0)))
a('s_sub_u32 %s, %s, %s' % (sr(S_T0), sr(S_RB), sr(S_T0)))
a('s_mul_i32 %s, %s, 3' % (sr(S_T0), sr(S_T0)))
a('s_add_u32 %s, %s, %s' % (sr(S_ROT), sr(S_CG), sr(S_T0)))
a('s_sub_u32 %s, %s, 9' % (sr(S_T0), sr(S_ROT)))
a('s_cmp_ge_u32 %s, 9' % sr(S_ROT))
a('s_cselect_b32 %s, %s, %s' % (sr(S_ROT), sr(S_T0), sr(S_ROT)))
for i in range(9):
    a('s_add_u32 %s, %s, %d' % (sr(S_KP + i), sr(S_ROT), i))
    a('s_sub_u32 %s, %s, 9' % (sr(S_T0), sr(S_KP + i)))
    a('s_cmp_ge_u32 %s, 9' % sr(S_KP + i))
    a('s_cselect_b32 %s, %s, %s' % (sr(S_KP + i), sr(S_T0), sr(S_KP + i)))
a('s_mov_b32 %s, %s' % (sr(S_PAIR), sr(S_L)))
a('s_mov_b32 %s, 0' % sr(S_ROUND))
a('s_waitcnt lgkmcnt(0)')
a('s_load_dword %s, %s, 0' % (sr(S_TAG), sr(P_WS, 2)))
srd(a, R_WS, P_WS, WS_SIZE)
srd(a, R_X, P_X, 2048 * 1152)
srd(a, R_K, P_K, 2048 * 1152)
srd(a, R_V, P_V, 2048 * 1152)
srd(a, R_OUT, P_OUT, 2048 * 2304)
a('s_cmp_ge_u32 %s, 234' % sr(S_L))
a('s_cbranch_scc1 L_aux')
srd(a, R_BRE, P_BRE, 576 * 1152)
srd(a, R_BIM, P_BIM, 576 * 1152)


def tag_ready(a):
    a('s_mul_i32 %s, %s, 0x9E3779B1' % (sr(S_TAG), sr(S_TAG)))
    a('s_add_u32 %s, %s, 0x7F4A7C15' % (sr(S_TAG), sr(S_TAG)))
    a('v_mov_b32 %s, %s' % (vr(V_TAG), sr(S_TAG)))


t = V.get()
a('v_and_b32 %s, 1, %s' % (vr(t), vr(V_Q)))
a('v_mul_u32_u24 %s, 10, %s' % (vr(V_TAU), vr(t)))
a('v_lshrrev_b32 %s, 1, %s' % (vr(t), vr(V_Q)))
a('v_add_u32 %s, %s, %s' % (vr(V_TAU), vr(V_TAU), vr(t)))
a('s_mul_i32 %s, %s, 20' % (sr(S_T0), sr(S_WAVE)))
a('v_add_u32 %s, %s, %s' % (vr(V_TAU), sr(S_T0), vr(V_TAU)))
a('s_mul_i32 %s, %s, 80' % (sr(S_T0), sr(S_RB)))
a('v_add_u32 %s, %s, %s' % (vr(t), sr(S_T0), vr(V_TAU)))
a('v_mul_u32_u24 %s, 1152, %s' % (vr(V_ROWX), vr(t)))
a('s_lshl_b32 %s, %s, 7' % (sr(S_T0), sr(S_CG)))
a('v_lshl_add_u32 %s, %s, 3, %s' % (vr(t), vr(V_N), sr(S_T0)))
a('v_add_u32 %s, %s, %s' % (vr(V_ROWX), vr(V_ROWX), vr(t)))
V_XS = V.get(10, 2)
for i in range(5):
    a('s_movk_i32 %s, %d' % (sr(S_T0), 2304 * i),
      'buffer_load_dwordx2 %s, %s, %s, %s offen' % (vr(V_XS + 2 * i, 2), vr(V_ROWX), sr(R_X, 4), sr(S_T0)))
a('global_load_dwordx2 %s, %s, %s' % (vr(V_DSK, 2), vr(t), sr(P_DSK, 2)))

V_KV = V.get()
V_KH = V.get()
t2 = V.get()
a('v_lshrrev_b32 %s, 3, %s' % (vr(t), vr(V_LANE)))
a('v_mul_u32_u24 %s, %d, %s' % (vr(V_KV), 10 * 1152, vr(t)))
a('v_and_b32 %s, 7, %s' % (vr(t), vr(V_LANE)))
a('s_lshl_b32 %s, %s, 7' % (sr(S_T0), sr(S_CG)))
a('s_lshl_b32 %s, %s, 5' % (sr(S_T1), sr(S_WAVE)))
a('s_add_u32 %s, %s, %s' % (sr(S_T0), sr(S_T0), sr(S_T1)))
a('v_lshl_add_u32 %s, %s, 2, %s' % (vr(t2), vr(t), sr(S_T0)))
a('s_mul_i32 %s, %s, %d' % (sr(S_T1), sr(S_RB), 80 * 1152))
a('v_add3_u32 %s, %s, %s, %s' % (vr(V_KV), vr(V_KV), vr(t2), sr(S_T1)))
a('v_subrev_u32 %s, %d, %s' % (vr(V_KH), 3 * 1152, vr(V_KV)))
KR = V.get(13, 1)
VR = V.get(10, 1)
SHK = V.get(4)
a('v_lshlrev_b32 %s, 2, %s' % (vr(t2), vr(t2)))
a('global_load_dwordx4 %s, %s, %s' % (vr(SHK, 4), vr(t2), sr(P_SHK, 2)))
for j in range(3):
    a('buffer_load_dword %s, %s, %s, 0 offen offset:%d' % (vr(KR + j), vr(V_KH), sr(R_K, 4), 1152 * j))
for j in range(10):
    a('s_movk_i32 %s, %d' % (sr(S_T0), 1152 * j),
      'buffer_load_dword %s, %s, %s, %s offen' % (vr(KR + 3 + j), vr(V_KV), sr(R_K, 4), sr(S_T0)),
      'buffer_load_dword %s, %s, %s, %s offen' % (vr(VR + j), vr(V_KV), sr(R_V, 4), sr(S_T0)))
V.put(V_KV)
V.put(V_KH)
a('s_lshl_b32 %s, %s, 7' % (sr(S_T0), sr(S_CG)))
a('s_lshl_b32 %s, %s, 5' % (sr(S_T1), sr(S_WAVE)))
a('s_add_u32 %s, %s, %s' % (sr(S_T0), sr(S_T0), sr(S_T1)))
a('v_lshl_add_u32 %s, %s, 1, %s' % (vr(t2), vr(V_N), sr(S_T0)))
LAMT = lam_params(a, t2, False)

V_DX = V.get()
V_DB = V.get(2)
c0 = V.get()
a('v_and_b32 %s, 7, %s' % (vr(t), vr(V_LANE)))
a('v_xor_b32 %s, %s, %s' % (vr(c0), vr(t), vr(V_Q)))
a('v_lshlrev_b32 %s, 4, %s' % (vr(c0), vr(c0)))
a('v_lshrrev_b32 %s, 3, %s' % (vr(t), vr(V_LANE)))
a('s_lshl_b32 %s, %s, 6' % (sr(S_T0), sr(S_CG)))
a('s_lshl_b32 %s, %s, 4' % (sr(S_T1), sr(S_WAVE)))
a('s_add_u32 %s, %s, %s' % (sr(S_T0), sr(S_T0), sr(S_T1)))
a('v_add_u32 %s, %s, %s' % (vr(t2), sr(S_T0), vr(t)))
a('v_mul_u32_u24 %s, 1152, %s' % (vr(t2), vr(t2)))
a('v_add_u32 %s, %s, %s' % (vr(V_DB), vr(t2), vr(c0)))
a('v_xor_b32 %s, 64, %s' % (vr(V_DB + 1), vr(c0)))
a('v_add_u32 %s, %s, %s' % (vr(V_DB + 1), vr(V_DB + 1), vr(t2)))
a('v_add_u32 %s, %d, %s' % (vr(V_DB + 1), 8 * 1152, vr(V_DB + 1)))
a('v_lshrrev_b32 %s, 5, %s' % (vr(t2), vr(V_LANE)))
a('v_mul_u32_u24 %s, 20, %s' % (vr(t2), vr(t2)))
a('v_and_b32 %s, 1, %s' % (vr(t), vr(t)))
a('v_mad_u32_u24 %s, %s, 10, %s' % (vr(t2), vr(t), vr(t2)))
a('v_and_b32 %s, 1, %s' % (vr(t), vr(V_Q)))
a('v_add_u32 %s, %s, %s' % (vr(t2), vr(t2), vr(t)))
a('s_and_b32 %s, %s, 1' % (sr(S_A), sr(S_WAVE)))
a('s_lshr_b32 %s, %s, 1' % (sr(S_B), sr(S_WAVE)))
a('s_mul_i32 %s, %s, 40' % (sr(S_T0), sr(S_A)))
a('s_mul_i32 %s, %s, 80' % (sr(S_T1), sr(S_RB)))
a('s_add_u32 %s, %s, %s' % (sr(S_T0), sr(S_T0), sr(S_T1)))
a('v_add_u32 %s, %s, %s' % (vr(t2), sr(S_T0), vr(t2)))
a('v_mul_u32_u24 %s, 1152, %s' % (vr(t2), vr(t2)))
a('s_lshl_b32 %s, %s, 6' % (sr(S_T0), sr(S_A)))
a('v_xor_b32 %s, %s, %s' % (vr(V_DX), sr(S_T0), vr(c0)))
a('v_add_u32 %s, %s, %s' % (vr(V_DX), vr(V_DX), vr(t2)))
V.put(c0)
V_FB = V.get(2)
a('v_lshrrev_b32 %s, 1, %s' % (vr(t), vr(V_N)))
a('v_xor_b32 %s, %s, %s' % (vr(t), vr(t), vr(V_Q)))
a('v_lshlrev_b32 %s, 4, %s' % (vr(t), vr(t)))
a('v_lshl_add_u32 %s, %s, 7, %s' % (vr(V_FA), vr(V_N), vr(t)))
a('v_xor_b32 %s, 64, %s' % (vr(V_FA + 1), vr(V_FA)))
a('v_add_u32 %s, 40960, %s' % (vr(V_FA + 2), vr(V_FA)))
a('v_add_u32 %s, 40960, %s' % (vr(V_FA + 3), vr(V_FA + 1)))
a('s_mul_i32 %s, %s, 12288' % (sr(S_T0), sr(S_WAVE)))
a('s_add_u32 %s, %s, %d' % (sr(S_T0), sr(S_T0), L_RING))
a('v_add_u32 %s, %s, %s' % (vr(V_FB), sr(S_T0), vr(V_FA)))
a('v_add_u32 %s, %s, %s' % (vr(V_FB + 1), sr(S_T0), vr(V_FA + 1)))
V.put(t)
V.put(t2)
V_PRIV = V.get()
V.put(V_PRIV)

WB = lambda kp, h, mat: ((kp * 2 + h) * 2 + mat) * 4


def img_dma_stream(layer):
    stages = []
    toks = []
    for k in range(5):
        s = Stream()
        tk = None
        nj = 5 if k < 4 else 3
        for j in range(nj):
            g = []
            if k < 4:
                g.append('s_cmp_eq_u32 %s, 0' % sr(S_B))
                g.append('s_cselect_b32 %s, %s, %s' % (sr(S_T2), sr(S_KP + 2 * k), sr(S_KP + 2 * k + 1)))
                g.append('s_mul_i32 %s, %s, 10240' % (sr(S_T3), sr(S_B)))
                lds_c = k * 20480 + j * 2048
                j2s = None
            else:
                g.append('s_mov_b32 %s, %s' % (sr(S_T2), sr(S_KP + 8)))
                g.append('s_lshl_b32 %s, %s, 12' % (sr(S_T3), sr(S_B)))
                lds_c = 8 * 10240 + j * 2048
            g.append('s_lshl_b32 %s, %s, 10' % (sr(S_C), sr(S_A)))
            g.append('s_add_u32 %s, %s, %s' % (sr(S_T3), sr(S_T3), sr(S_C)))
            g.append('s_add_u32 m0, %s, %d' % (sr(S_T3), L_IMG + lds_c))
            if layer == 0:
                g.append('s_lshl_b32 %s, %s, 7' % (sr(S_T2), sr(S_T2)))
                if k == 4:
                    g.append('s_mul_i32 %s, %s, 4608' % (sr(S_C), sr(S_B)))
                    g.append('s_add_u32 %s, %s, %s' % (sr(S_T2), sr(S_T2), sr(S_C)))
                g.append('s_add_u32 %s, %s, %d' % (sr(S_T2), sr(S_T2), j * 2304))
                g.append('buffer_load_dwordx4 %s, %s, %s offen lds' % (vr(V_DX), sr(R_X, 4), sr(S_T2)))
            else:
                g.append('s_mul_i32 %s, %s, 10240' % (sr(S_T2), sr(S_T2)))
                g.append('s_add_u32 %s, %s, %s' % (sr(S_T2), sr(S_T2), sr(S_C)))
                if k == 4:
                    g.append('s_lshl_b32 %s, %s, 12' % (sr(S_C), sr(S_B)))
                    g.append('s_add_u32 %s, %s, %s' % (sr(S_T2), sr(S_T2), sr(S_C)))
                g.append('s_add_u32 %s, %s, %d' % (sr(S_T2), sr(S_T2), j * 2048))
                g.append('buffer_load_dwordx4 %s, %s, %s offen sc1 lds' % (vr(V_DW), sr(R_WS, 4), sr(S_T2)))
            tk = s.mem(*g)
        stages.append(s)
        toks.append(tk)
    return stages, toks


def b_dma(s, kp):
    tk = None
    for b in range(4):
        tk = s.mem('s_mul_i32 %s, %s, 12288' % (sr(S_T3), sr(S_WAVE)),
                   's_add_u32 m0, %s, %d' % (sr(S_T3), L_RING + (kp % 3) * 4096 + b * 1024),
                   's_lshl_b32 %s, %s, 7' % (sr(S_T2), sr(S_KP + kp)),
                   'buffer_load_dwordx4 %s, %s, %s offen lds' % (vr(V_DB + (b & 1)), sr(R_BRE if b < 2 else R_BIM, 4), sr(S_T2)))
    return tk


def b_read(s, kp, tok):
    s.wait(tok)
    tk = None
    for h in range(2):
        for mat in range(2):
            tk = s.mem('ds_read_b128 %s, %s offset:%d' % (ar(WB(kp, h, mat), 4), vr(V_FB + h), (kp % 3) * 4096 + mat * 2048))
    return tk


def gemm_b_block(s, kp, ACC, AF, ONES, RBA, first):
    for h in range(2):
        base = V_FA + h + (2 if kp >= 4 else 0)
        off = kp * 10240 - (40960 if kp >= 4 else 0)
        for i in range(5):
            s('ds_read_b128 %s, %s offset:%d' % (vr(AF + h * 20 + i * 4, 4), vr(base), off + i * 2048))
    for h in range(2):
        z = first and h == 0
        if ONES is not None:
            for mat in range(2):
                s('v_mfma_f32_16x16x32_bf16 %s, %s, %s, %s' % (vr(RBA + mat * 4, 4), vr(ONES, 4), ar(WB(kp, h, mat), 4),
                                                              '0' if z else vr(RBA + mat * 4, 4)))
        for i in range(5):
            for mat in range(2):
                d = ACC + (mat * 5 + i) * 4
                s('v_mfma_f32_16x16x32_bf16 %s, %s, %s, %s' % (vr(d, 4), vr(AF + h * 20 + i * 4, 4), ar(WB(kp, h, mat), 4),
                                                              '0' if z else vr(d, 4)))


def kv_compute(s):
    W = V.get(8, 1)
    for j in range(4):
        src0 = SHK + (j >> 1)
        src1 = SHK + 2 + (j >> 1)
        if j & 1:
            s('v_lshrrev_b32 %s, 16, %s' % (vr(W + 2 * j), vr(src0)))
            s('v_and_b32 %s, 0xffff0000, %s' % (vr(W + 2 * j + 1), vr(src1)))
        else:
            s('v_and_b32 %s, 0xffff, %s' % (vr(W + 2 * j), vr(src0)))
            s('v_lshlrev_b32 %s, 16, %s' % (vr(W + 2 * j + 1), vr(src1)))
    ONE2 = V.get()
    s('v_mov_b32 %s, 0x3f803f80' % vr(ONE2))
    P = V.get(16, 1)
    KVv = V.get(4, 1)
    OUTP = V.get(10, 1)
    M = V.get(4, 1)
    for tp in range(5):
        idx = [(tt, ch) for tt in range(2) for ch in range(2)]
        for u, (tt, ch) in enumerate(idx):
            tq = 2 * tp + tt
            for j in range(4):
                s('v_dot2_f32_bf16 %s, %s, %s, 0' % (vr(P + u * 4 + j), vr(KR + 3 + tq - j), vr(W + 2 * j + ch)))
        for step in range(3):
            for u in range(4):
                s('v_cvt_pk_bf16_f32 %s, %s, %s' % (vr(P + u * 4 + 3), vr(P + u * 4 + 3), vr(P + u * 4 + 2 - step)))
            for u in range(4):
                s('v_dot2_f32_bf16 %s, %s, %s, 0' % (vr(P + u * 4 + 3), vr(P + u * 4 + 3), vr(ONE2)))
        for tt in range(2):
            tq = 2 * tp + tt
            s('v_and_b32 %s, 0xffff, %s' % (vr(M + 2 * tt), vr(VR + tq)))
            s('v_and_b32 %s, 0xffff0000, %s' % (vr(M + 2 * tt + 1), vr(VR + tq)))
        for tt in range(2):
            s('v_cvt_pk_bf16_f32 %s, %s, %s' % (vr(P + tt * 8), vr(P + tt * 8 + 3), vr(P + tt * 8 + 7)))
        for u, (tt, ch) in enumerate(idx):
            s('v_dot2_f32_bf16 %s, %s, %s, 0' % (vr(KVv + u), vr(P + tt * 8), vr(M + 2 * tt + ch)))
        for ch in range(2):
            s('v_cvt_pk_bf16_f32 %s, %s, %s' % (vr(OUTP + ch * 5 + tp), vr(KVv + 2 + ch), vr(KVv + ch)))
    for r, n in ((W, 8), (ONE2, 1), (P, 16), (KVv, 4), (M, 4), (KR, 13), (VR, 10), (SHK, 4)):
        V.put(r, n)
    ad = V.get()
    t = V.get()
    s('v_and_b32 %s, 7, %s' % (vr(t), vr(V_LANE)))
    s('v_mul_u32_u24 %s, 320, %s' % (vr(ad), vr(t)))
    s('v_lshrrev_b32 %s, 3, %s' % (vr(t), vr(V_LANE)))
    s('v_sub_u32 %s, 7, %s' % (vr(t), vr(t)))
    s('v_mad_u32_u24 %s, %s, 20, %s' % (vr(ad), vr(t), vr(ad)))
    s('s_mul_i32 %s, %s, 5120' % (sr(S_T0), sr(S_WAVE)),
      's_add_u32 %s, %s, %d' % (sr(S_T0), sr(S_T0), L_PRIV),
      'v_add_u32 %s, %s, %s' % (vr(ad), sr(S_T0), vr(ad)),
      'v_add_u32 %s, %s, %s' % (vr(t), sr(S_T0), vr(V_L16)))
    tk = None
    for ch in range(2):
        for tp in range(5):
            tk = s.mem('ds_write_b32 %s, %s offset:%d' % (vr(ad), vr(OUTP + ch * 5 + tp), ch * 160 + 4 * (4 - tp)))
    s.wait(tk)
    D = V.get(12)
    for i in range(3):
        s('ds_read_b128 %s, %s offset:%d' % (vr(D + 4 * i, 4), vr(t), i * 1024))
    toks = []
    u = V.get()
    q = V.get()
    for i in range(3):
        s('v_add_u32 %s, %d, %s' % (vr(u), 64 * i, vr(V_LANE)))
        s('v_mul_u32_u24 %s, 205, %s' % (vr(q), vr(u)))
        s('v_lshrrev_b32 %s, 11, %s' % (vr(q), vr(q)))
        s('v_mul_u32_u24 %s, %d, %s' % (vr(ad), KVT_STR - 160, vr(q)))
        s('v_lshl_add_u32 %s, %s, 4, %s' % (vr(ad), vr(u), vr(ad)))
        if i == 2:
            s('v_cmp_gt_u32 vcc, 32, %s' % vr(V_LANE),
              'v_mov_b32 %s, 0x%x' % (vr(q), OOB),
              'v_cndmask_b32 %s, %s, %s, vcc' % (vr(ad), vr(q), vr(ad)))
        toks.append(s.mem('s_lshl_b32 %s, %s, 2' % (sr(S_T0), sr(S_CG)),
                          's_add_u32 %s, %s, %s' % (sr(S_T0), sr(S_T0), sr(S_WAVE)),
                          's_mul_i32 %s, %s, %d' % (sr(S_T0), sr(S_T0), 16 * KVT_STR),
                          's_mul_i32 %s, %s, 160' % (sr(S_T1), sr(S_RB)),
                          's_sub_u32 %s, %s, %s' % (sr(S_T0), sr(S_T0), sr(S_T1)),
                          's_add_u32 %s, %s, %d' % (sr(S_T0), sr(S_T0), WS_KVT + 128 + 3936),
                          'buffer_store_dwordx4 %s, %s, %s, %s offen sc1' % (vr(D + 4 * i, 4), vr(ad), sr(R_WS, 4), sr(S_T0))))
    s.wait(*toks)
    s('s_lshl_b32 %s, %s, 2' % (sr(S_T0), sr(S_CG)),
      's_add_u32 %s, %s, %s' % (sr(S_T0), sr(S_T0), sr(S_WAVE)),
      's_lshl_b32 %s, %s, 5' % (sr(S_T0), sr(S_T0)),
      's_add_u32 %s, %s, %s' % (sr(S_T0), sr(S_T0), sr(S_RB)),
      's_lshl_b32 %s, %s, 2' % (sr(S_T0), sr(S_T0)),
      's_add_u32 %s, %s, %d' % (sr(S_T0), sr(S_T0), WS_KVF),
      's_mov_b64 exec, 1',
      'buffer_store_dword %s, %s, %s, %s offen sc1' % (vr(V_TAG), vr(V_ZERO), sr(R_WS, 4), sr(S_T0)),
      's_mov_b64 exec, -1')
    for r, n in ((OUTP, 10), (ad, 1), (t, 1), (D, 12), (u, 1), (q, 1)):
        V.put(r, n)


def stats_publish(s, X, which):
    m = V.get(5, 1)
    q = V.get(5, 1)
    d = V.get(4)
    for i in range(5):
        s('v_pk_add_f32 %s, %s, %s' % (vr(d, 2), vr(X + 4 * i, 2), vr(X + 4 * i + 2, 2)),
          'v_add_f32 %s, %s, %s' % (vr(m + i), vr(d), vr(d + 1)))
    row_allreduce(s, [m + i for i in range(5)])
    for i in range(5):
        s('v_mul_f32 %s, 0x3c800000, %s' % (vr(m + i), vr(m + i)))
    for i in range(5):
        s('v_sub_f32 %s, %s, %s' % (vr(d), vr(X + 4 * i), vr(m + i)),
          'v_sub_f32 %s, %s, %s' % (vr(d + 1), vr(X + 4 * i + 1), vr(m + i)),
          'v_sub_f32 %s, %s, %s' % (vr(d + 2), vr(X + 4 * i + 2), vr(m + i)),
          'v_sub_f32 %s, %s, %s' % (vr(d + 3), vr(X + 4 * i + 3), vr(m + i)),
          'v_pk_mul_f32 %s, %s, %s' % (vr(d, 2), vr(d, 2), vr(d, 2)),
          'v_pk_fma_f32 %s, %s, %s, %s' % (vr(d, 2), vr(d + 2, 2), vr(d + 2, 2), vr(d, 2)),
          'v_add_f32 %s, %s, %s' % (vr(q + i), vr(d), vr(d + 1)))
    row_allreduce(s, [q + i for i in range(5)])
    s('v_mov_b32 %s, %s' % (vr(d), vr(m)), 'v_mov_b32 %s, %s' % (vr(d + 2), vr(q)))
    for i in range(1, 5):
        s('v_cmp_eq_u32 vcc, %d, %s' % (i, vr(V_N)),
          'v_cndmask_b32 %s, %s, %s, vcc' % (vr(d), vr(d), vr(m + i)),
          'v_cndmask_b32 %s, %s, %s, vcc' % (vr(d + 2), vr(d + 2), vr(q + i)))
    s('v_mov_b32 %s, %s' % (vr(d + 1), vr(V_TAG)), 'v_mov_b32 %s, %s' % (vr(d + 3), vr(V_TAG)))
    tk = s.mem('s_mov_b32 %s, %d' % (sr(S_T0), WS_ST + which * 26 * 20480),
               'buffer_store_dwordx4 %s, %s, %s, %s offen sc1' % (vr(d, 4), vr(V_STW), sr(R_WS, 4), sr(S_T0)))
    s('s_nop 1')
    V.put(m, 5)
    V.put(q, 5)
    V.put(d, 4)
    return tk


def stats_gather(s, which):
    G = V.get(20)
    loads, checks = [], []
    s('s_mov_b32 %s, %d' % (sr(S_T0), WS_ST + which * 26 * 20480))
    s('s_mov_b32 %s, %d' % (sr(S_T1), WS_ST + which * 26 * 20480 + 8192))
    s('s_mov_b32 %s, %d' % (sr(S_T2), WS_ST + which * 26 * 20480 + 16384))
    s('s_mov_b32 %s, %d' % (sr(S_T3), WS_ST + which * 26 * 20480 + 4096))
    s('s_mov_b32 %s, %d' % (sr(S_C), WS_ST + which * 26 * 20480 + 12288))
    so = [S_T0, S_T3, S_T1, S_C, S_T2]
    for i in range(5):
        loads.append('buffer_load_dwordx4 %s, %s, %s, %s offen sc1' % (vr(G + 4 * i, 4), vr(V_STR), sr(R_WS, 4), sr(so[i])))
        checks += [(G + 4 * i + 1, V_EXP9), (G + 4 * i + 3, V_EXP9)]
    poll(s, loads, checks)
    MU = V.get(5, 1)
    VA = V.get(5, 1)
    for i in range(5):
        s('v_mov_b32 %s, %s' % (vr(MU + i), vr(G + 4 * i)))
    row_allreduce(s, [MU + i for i in range(5)])
    s('v_cmp_gt_u32 vcc, 9, %s' % vr(V_N))
    for i in range(5):
        s('v_mul_f32 %s, 0x3de38e39, %s' % (vr(MU + i), vr(MU + i)))
    for i in range(5):
        s('v_sub_f32 %s, %s, %s' % (vr(G + 4 * i), vr(G + 4 * i), vr(MU + i)))
    for i in range(5):
        s('v_cndmask_b32 %s, 0, %s, vcc' % (vr(G + 4 * i), vr(G + 4 * i)))
    for i in range(5):
        s('v_mul_f32 %s, 0x42800000, %s' % (vr(G + 4 * i + 1), vr(G + 4 * i)))
    for i in range(5):
        s('v_fma_f32 %s, %s, %s, %s' % (vr(VA + i), vr(G + 4 * i + 1), vr(G + 4 * i), vr(G + 4 * i + 2)))
    row_allreduce(s, [VA + i for i in range(5)])
    for i in range(5):
        s('v_mul_f32 %s, 0x3ae38e39, %s' % (vr(VA + i), vr(VA + i)))
    V.put(G, 20)
    return MU, VA


def rbf(s, regs):
    for r in regs:
        s('v_cvt_pk_bf16_f32 %s, %s, %s' % (vr(r), vr(r), vr(r)))
    for r in regs:
        s('v_lshlrev_b32 %s, 16, %s' % (vr(r), vr(r)))


def table_write(s, RS, MR):
    d = V.get(2)
    s('v_mov_b32 %s, %s' % (vr(d), vr(RS)), 'v_mov_b32 %s, %s' % (vr(d + 1), vr(MR)))
    for i in range(1, 5):
        s('v_cmp_eq_u32 vcc, %d, %s' % (i, vr(V_N)),
          'v_cndmask_b32 %s, %s, %s, vcc' % (vr(d), vr(d), vr(RS + i)),
          'v_cndmask_b32 %s, %s, %s, vcc' % (vr(d + 1), vr(d + 1), vr(MR + i)))
    tk = s.mem('v_cmp_gt_u32 vcc, 5, %s' % vr(V_N),
               's_mov_b64 exec, vcc',
               'ds_write2_b32 %s, %s, %s offset0:0 offset1:2' % (vr(V_TABW), vr(d), vr(d + 1)))
    s('s_mov_b64 exec, -1')
    V.put(d, 2)
    return tk


def addr_setup(s):
    t = V.get()
    o = V.get()
    s('v_mov_b32 %s, 0x%x' % (vr(o), OOB))
    s('s_mul_i32 %s, %s, 80' % (sr(S_T0), sr(S_RB)),
      's_lshl_b32 %s, %s, 2' % (sr(S_T1), sr(S_WAVE)),
      's_add_u32 %s, %s, %s' % (sr(S_T0), sr(S_T0), sr(S_T1)),
      'v_add_u32 %s, %s, %s' % (vr(t), sr(S_T0), vr(V_Q)))
    s('v_lshlrev_b32 %s, 8, %s' % (vr(t), vr(t)))
    s('v_lshl_add_u32 %s, %s, 4, %s' % (vr(V_STR), vr(V_N), vr(t)))
    s('v_cmp_gt_u32 vcc, 9, %s' % vr(V_N),
      'v_cndmask_b32 %s, %s, %s, vcc' % (vr(V_STR), vr(o), vr(V_STR)),
      'v_cndmask_b32 %s, 0, %s, vcc' % (vr(V_EXP9), vr(V_TAG)))
    s('v_lshl_add_u32 %s, %s, 12, %s' % (vr(V_STW), vr(V_N), vr(t)))
    s('s_lshl_b32 %s, %s, 4' % (sr(S_T0), sr(S_CG)),
      'v_add_u32 %s, %s, %s' % (vr(V_STW), sr(S_T0), vr(V_STW)))
    s('v_cmp_gt_u32 vcc, 5, %s' % vr(V_N),
      'v_cndmask_b32 %s, %s, %s, vcc' % (vr(V_STW), vr(o), vr(V_STW)))
    s('v_lshrrev_b32 %s, 1, %s' % (vr(t), vr(V_Q)))
    s('v_lshl_add_u32 %s, %s, 1, %s' % (vr(t), vr(V_N), vr(t)))
    s('v_lshlrev_b32 %s, 4, %s' % (vr(t), vr(t)))
    s('v_and_b32 %s, 1, %s' % (vr(V_TABW), vr(V_Q)))
    s('v_lshl_add_u32 %s, %s, 2, %s' % (vr(V_TABW), vr(V_TABW), vr(t)))
    s('s_mul_i32 %s, %s, 160' % (sr(S_T0), sr(S_WAVE)),
      's_add_u32 %s, %s, %d' % (sr(S_T0), sr(S_T0), L_TAB),
      'v_add_u32 %s, %s, %s' % (vr(V_TABW), sr(S_T0), vr(V_TABW)))
    s('s_mul_i32 %s, %s, 92160' % (sr(S_T0), sr(S_RB)),
      's_add_u32 %s, %s, %d' % (sr(S_T0), sr(S_T0), WS_W),
      'v_add_u32 %s, %s, %s' % (vr(V_DW), sr(S_T0), vr(V_L16)))
    V.put(t)
    V.put(o)


ACC = V.get(40)
RBA = V.get(8)
AF = V.get(40)
ONES = V.get(4)

xst, xtk = img_dma_stream(0)
btk = {}
a.extend(xst[0])
btk[0] = b_dma(a, 0)
btk[1] = b_dma(a, 1)
a.extend(xst[1])
btk[2] = b_dma(a, 2)
stamp(a, 'issued')

side = Stream()
tag_ready(side)
addr_setup(side)
for i in range(5):
    for k in range(2):
        side('v_lshlrev_b32 %s, 16, %s' % (vr(BASE + 4 * i + 2 * k), vr(V_XS + 2 * i + k)))
        side('v_and_b32 %s, 0xffff0000, %s' % (vr(BASE + 4 * i + 2 * k + 1), vr(V_XS + 2 * i + k)))
V.put(V_XS, 10)
stats_publish(side, BASE, 0)
kv_compute(side)
lam_compute(side, LAMT, False, LAM)
L2, L4, L8, L40, L80, L160, L240, L60 = [V.get(2) for _ in range(8)]
cmul(side, L2, LAM, LAM)
cmul(side, L4, L2, L2)
cmul(side, L8, L4, L4)
cmul(side, L10, L8, L2)
cmul(side, L20, L10, L10)
cmul(side, L40, L20, L20)
cmul(side, L60, L40, L20)
cmul(side, L80, L40, L40)
cmul(side, L160, L80, L80)
cmul(side, L240, L160, L80)
cmul(side, L320, L160, L160)
for (dst, opts) in ((LQ80, (L80, L160, L240)), (LQ20, (L20, L40, L60))):
    side('v_mov_b32 %s, 1.0' % vr(dst), 'v_mov_b32 %s, 0' % vr(dst + 1))
    for qi, o in enumerate(opts):
        side('v_cmp_eq_u32 vcc, %d, %s' % (qi + 1, vr(V_Q)),
             'v_cndmask_b32 %s, %s, %s, vcc' % (vr(dst), vr(dst), vr(o)),
             'v_cndmask_b32 %s, %s, %s, vcc' % (vr(dst + 1), vr(dst + 1), vr(o + 1)))
for r in (L2, L4, L8, L40, L60, L80, L160, L240):
    V.put(r, 2)
side('v_and_b32 %s, 0xffff0000, %s' % (vr(V_DSK + 3), vr(V_DSK + 1)))
side('v_lshlrev_b32 %s, 16, %s' % (vr(V_DSK + 2), vr(V_DSK + 1)))
side('v_and_b32 %s, 0xffff0000, %s' % (vr(V_DSK + 1), vr(V_DSK)))
side('v_lshlrev_b32 %s, 16, %s' % (vr(V_DSK), vr(V_DSK)))

for i in range(4):
    a('v_mov_b32 %s, 0x3f803f80' % vr(ONES + i))
a.extend(side)
stamp(a, 'side')


def ln_table(s, layer):
    MU, VA = stats_gather(s, 0 if layer == 0 else 2)
    RS = V.get(5, 1)
    MR = V.get(5, 1)
    tmp = V.get(4)
    if layer == 0:
        rbf(s, [MU + i for i in range(5)] + [VA + i for i in range(5)])
        for i in range(5):
            s('v_add_f32 %s, 0x3727c5ac, %s' % (vr(VA + i), vr(VA + i)))
        rbf(s, [VA + i for i in range(5)])
        for i in range(5):
            s('v_sqrt_f32 %s, %s' % (vr(VA + i), vr(VA + i)))
        rbf(s, [VA + i for i in range(5)])
        for i in range(5):
            s('v_rcp_f32 %s, %s' % (vr(RS + i), vr(VA + i)))
    else:
        for i in range(5):
            s('v_add_f32 %s, 0x3727c5ac, %s' % (vr(VA + i), vr(VA + i)))
        for i in range(5):
            s('v_rsq_f32 %s, %s' % (vr(RS + i), vr(VA + i)))
    for i in range(5):
        s('v_mul_f32 %s, %s, %s' % (vr(MR + i), vr(MU + i), vr(RS + i)))
    tk = table_write(s, RS, MR)
    for i in range(5):
        for k in range(4):
            s('v_sub_f32 %s, %s, %s' % (vr(tmp + k), vr(BASE + 4 * i + k), vr(MU + i)))
        if layer == 0:
            rbf(s, [tmp + k for k in range(4)])
        for k in range(4):
            s('v_mul_f32 %s, %s, %s' % (vr(tmp + k), vr(tmp + k), vr(RS + i)))
        if layer == 0:
            rbf(s, [tmp + k for k in range(4)])
            for k in range(2):
                s('v_pk_mul_f32 %s, %s, %s' % (vr(tmp + 2 * k, 2), vr(tmp + 2 * k, 2), vr(V_DSK + 2 * k, 2)))
            rbf(s, [tmp + k for k in range(4)])
            for k in range(2):
                s('v_pk_add_f32 %s, %s, %s' % (vr(BASE + 4 * i + 2 * k, 2), vr(BASE + 4 * i + 2 * k, 2), vr(tmp + 2 * k, 2)))
        else:
            for k in range(2):
                s('v_pk_fma_f32 %s, %s, %s, %s' % (vr(BASE + 4 * i + 2 * k, 2), vr(tmp + 2 * k, 2), vr(V_DSK + 2 * k, 2),
                                                   vr(BASE + 4 * i + 2 * k, 2)))
            for k in range(4):
                s('v_add_f32 %s, %s, %s' % (vr(BASE + 4 * i + k), vr(BASE + 4 * i + k), vr(MU1 + i)))
    for r, n in ((MU, 5), (VA, 5), (RS, 5), (MR, 5), (tmp, 4)):
        V.put(r, n)
    return tk


for k in range(5):
    blocks = [2 * k, 2 * k + 1] if k < 4 else [8]
    for kp in blocks:
        rt = b_read(a, kp, btk[kp])
        if kp + 3 < 9:
            a.wait(rt)
            btk[kp + 3] = b_dma(a, kp + 3)
    if k + 2 < 5:
        a.extend(xst[k + 2])
    if k == 4:
        ttk = ln_table(a, 0)
        a.wait(ttk)
    a.wait(xtk[k])
    a('s_barrier')
    for kp in blocks:
        gemm_b_block(a, kp, ACC, AF, ONES, RBA, kp == 0)
stamp(a, 'gemmB1')
V.put(ONES, 4)
a('v_mov_b32 %s, %s' % (vr(RB), vr(RBA)))
a('v_mov_b32 %s, %s' % (vr(RB + 1), vr(RBA + 4)))
V.put(RBA, 8)
V.put(V_DB, 2)
V.put(V_FB, 2)
V.put(V_DX)

t = V.get()
a('s_lshl_b32 %s, %s, 8' % (sr(S_T0), sr(S_RB)))
a('v_lshl_add_u32 %s, %s, 4, %s' % (vr(V_EW), vr(V_N), sr(S_T0)))
a('v_lshlrev_b32 %s, 8, %s' % (vr(t), vr(V_Q)))
a('v_sub_u32 %s, %s, %s' % (vr(V_ER), vr(V_EW), vr(t)))
a('v_subrev_u32 %s, 256, %s' % (vr(V_ER), vr(V_ER)))
a('v_mov_b32 %s, 0x%x' % (vr(t), OOB))
a('v_cmp_gt_u32 vcc, 16, %s' % vr(V_LANE))
a('v_cndmask_b32 %s, %s, %s, vcc' % (vr(V_EW), vr(t), vr(V_EW)))
a('s_mul_i32 %s, %s, 5120' % (sr(S_T0), sr(S_WAVE)))
a('s_add_u32 %s, %s, %d' % (sr(S_T0), sr(S_T0), L_PRIV))
a('v_lshlrev_b32 %s, 8, %s' % (vr(t), vr(V_Q)))
a('v_lshl_add_u32 %s, %s, 2, %s' % (vr(t), vr(V_N), vr(t)))
a('v_add_u32 %s, %s, %s' % (vr(V_HW), sr(S_T0), vr(t)))
a('v_lshlrev_b32 %s, 4, %s' % (vr(t), vr(V_Q)))
a('v_lshl_add_u32 %s, %s, 6, %s' % (vr(t), vr(V_N), vr(t)))
a('v_add_u32 %s, %s, %s' % (vr(V_HR), sr(S_T0), vr(t)))
a('v_lshlrev_b32 %s, 5, %s' % (vr(t), vr(V_N)))
a('v_add_u32 %s, %s, %s' % (vr(V_FX), sr(S_T0), vr(t)))
V.put(t)


def scan_phase(a, layer, mid=None):
    re = lambda j: ACC + (j >> 1) * 4 + (j & 1) * 2
    im = lambda j: ACC + 20 + (j >> 1) * 4 + (j & 1) * 2
    TB = AF
    for j in range(10):
        a('ds_read_b128 %s, %s offset:%d' % (vr(TB + 4 * j, 4), vr(V_TABR), 16 * j))
    for j in range(10):
        a('v_pk_mul_f32 %s, %s, %s' % (vr(re(j), 2), vr(re(j), 2), vr(TB + 4 * j, 2)))
        a('v_pk_mul_f32 %s, %s, %s' % (vr(im(j), 2), vr(im(j), 2), vr(TB + 4 * j, 2)))
        a('v_pk_fma_f32 %s, %s, %s, %s op_sel:[0,0,0] op_sel_hi:[1,0,1] neg_lo:[1,0,0] neg_hi:[1,0,0]' %
          (vr(re(j), 2), vr(TB + 4 * j + 2, 2), vr(RB, 2), vr(re(j), 2)))
        a('v_pk_fma_f32 %s, %s, %s, %s op_sel:[0,1,0] op_sel_hi:[1,1,1] neg_lo:[1,0,0] neg_hi:[1,0,0]' %
          (vr(im(j), 2), vr(TB + 4 * j + 2, 2), vr(RB, 2), vr(im(j), 2)))

    def step(dr, di, pr, pi, br, bi):
        a('v_pk_fma_f32 %s, %s, %s, %s op_sel:[0,0,0] op_sel_hi:[1,0,1]' % (vr(dr, 2), vr(pr, 2), vr(LAM, 2), vr(br, 2)))
        a('v_pk_fma_f32 %s, %s, %s, %s op_sel:[0,0,0] op_sel_hi:[1,0,1]' % (vr(di, 2), vr(pi, 2), vr(LAM, 2), vr(bi, 2)))
        a('v_pk_fma_f32 %s, %s, %s, %s op_sel:[0,1,0] op_sel_hi:[1,1,1] neg_lo:[1,0,0] neg_hi:[1,0,0]' %
          (vr(dr, 2), vr(pi, 2), vr(LAM, 2), vr(dr, 2)))
        a('v_pk_fma_f32 %s, %s, %s, %s op_sel:[0,1,0] op_sel_hi:[1,1,1]' % (vr(di, 2), vr(pr, 2), vr(LAM, 2), vr(di, 2)))

    E = V.get(8)
    pr, pi = re(0), im(0)
    for j in range(1, 10):
        dr, di = E + (j & 1) * 4, E + (j & 1) * 4 + 2
        step(dr, di, pr, pi, re(j), im(j))
        pr, pi = dr, di
    EA = V.get(2)
    F = V.get(2)
    a('v_mov_b32 %s, %s' % (vr(EA), vr(pr)))
    a('v_mov_b32 %s, %s' % (vr(EA + 1), vr(pi)))
    a('v_mov_b32 %s, %s' % (vr(F), vr(pr + 1)))
    a('v_mov_b32 %s, %s' % (vr(F + 1), vr(pi + 1)))
    cfma(a, F, EA, L10, F)
    t = V.get()
    a('v_lshl_add_u32 %s, %s, 3, %s' % (vr(t), vr(V_Q), vr(V_FX)))
    tk = a.mem('ds_write_b64 %s, %s' % (vr(t), vr(F, 2)))
    V.put(t)
    a.wait(tk)
    FA = E
    a('ds_read_b128 %s, %s' % (vr(FA, 4), vr(V_FX)))
    a('ds_read_b128 %s, %s offset:16' % (vr(FA + 4, 4), vr(V_FX)))
    cfma(a, FA + 2, FA, L20, FA + 2)
    cfma(a, FA + 4, FA + 2, L20, FA + 4)
    cfma(a, FA + 6, FA + 4, L20, FA + 6)
    pub = V.get(4)
    a('v_mov_b32 %s, %s' % (vr(pub), vr(FA + 6)))
    a('v_mov_b32 %s, %s' % (vr(pub + 1), vr(V_TAG)))
    a('v_mov_b32 %s, %s' % (vr(pub + 2), vr(FA + 7)))
    a('v_mov_b32 %s, %s' % (vr(pub + 3), vr(V_TAG)))
    a('s_lshl_b32 %s, %s, 2' % (sr(S_T0), sr(S_CG)))
    a('s_add_u32 %s, %s, %s' % (sr(S_T0), sr(S_T0), sr(S_WAVE)))
    a('s_lshl_b32 %s, %s, 13' % (sr(S_T0), sr(S_T0)))
    a('s_add_u32 %s, %s, %d' % (sr(S_T0), sr(S_T0), WS_E + layer * 36 * 8192))
    a('buffer_store_dwordx4 %s, %s, %s, %s offen sc1' % (vr(pub, 4), vr(V_EW), sr(R_WS, 4), sr(S_T0)))
    stamp(a, 'e_pub%d' % layer)
    PQ = F
    a('v_mov_b32 %s, 0' % vr(PQ))
    a('v_mov_b32 %s, 0' % vr(PQ + 1))
    for qi in range(1, 4):
        a('v_cmp_eq_u32 vcc, %d, %s' % (qi, vr(V_Q)),
          'v_cndmask_b32 %s, %s, %s, vcc' % (vr(PQ), vr(PQ), vr(FA + 2 * qi - 2)),
          'v_cndmask_b32 %s, %s, %s, vcc' % (vr(PQ + 1), vr(PQ + 1), vr(FA + 2 * qi - 1)))
    V.put(pub, 4)
    if mid is not None:
        mid(a)
        a('s_lshl_b32 %s, %s, 2' % (sr(S_T0), sr(S_CG)))
        a('s_add_u32 %s, %s, %s' % (sr(S_T0), sr(S_T0), sr(S_WAVE)))
        a('s_lshl_b32 %s, %s, 13' % (sr(S_T0), sr(S_T0)))
        a('s_add_u32 %s, %s, %d' % (sr(S_T0), sr(S_T0), WS_E + layer * 36 * 8192))
    CG_ = TB
    AD = V.get(7, 1)
    EX = V.get(7, 1)
    o = V.get()
    a('v_mov_b32 %s, 0x%x' % (vr(o), OOB))
    for j in range(7):
        a('v_subrev_u32 %s, %d, %s' % (vr(AD + j), 1024 * j, vr(V_ER)))
        a('v_cmp_le_i32 vcc, 0, %s' % vr(AD + j),
          'v_cndmask_b32 %s, %s, %s, vcc' % (vr(AD + j), vr(o), vr(AD + j)),
          'v_cndmask_b32 %s, 0, %s, vcc' % (vr(EX + j), vr(V_TAG)))
    V.put(o)
    loads, checks = [], []
    for j in range(7):
        loads.append('buffer_load_dwordx4 %s, %s, %s, %s offen sc1' % (vr(CG_ + 4 * j, 4), vr(AD + j), sr(R_WS, 4), sr(S_T0)))
        checks += [(CG_ + 4 * j + 1, EX + j), (CG_ + 4 * j + 3, EX + j)]
    poll(a, loads, checks)
    stamp(a, 'carry%d' % layer)
    V.put(AD, 7)
    V.put(EX, 7)
    for j in range(7):
        a('v_mov_b32 %s, %s' % (vr(CG_ + 4 * j + 1), vr(CG_ + 4 * j + 2)))
    for j in range(5, -1, -1):
        cfma(a, CG_ + 4 * j, CG_ + 4 * j + 4, L320, CG_ + 4 * j)
    H = V.get(2)
    Y = V.get(2)
    cmul(a, H, CG_, LQ80)
    for sw in ('v_permlane32_swap_b32', 'v_permlane16_swap_b32'):
        a('v_mov_b32 %s, %s' % (vr(Y), vr(H)))
        a('v_mov_b32 %s, %s' % (vr(Y + 1), vr(H + 1)))
        a('%s %s, %s' % (sw, vr(H), vr(Y)))
        a('%s %s, %s' % (sw, vr(H + 1), vr(Y + 1)))
        a('v_pk_add_f32 %s, %s, %s' % (vr(H, 2), vr(H, 2), vr(Y, 2)))
    cfma(a, PQ, H, LQ20, PQ)
    cfma(a, EA, PQ, L10, EA)
    a('v_mov_b32 %s, %s' % (vr(H), vr(PQ)))
    a('v_mov_b32 %s, %s' % (vr(H + 1), vr(EA)))
    a('v_mov_b32 %s, %s' % (vr(Y), vr(PQ + 1)))
    a('v_mov_b32 %s, %s' % (vr(Y + 1), vr(EA + 1)))
    pr, pi = H, Y
    PK = TB
    tk = None
    for j in range(10):
        step(re(j), im(j), pr, pi, re(j), im(j))
        pr, pi = re(j), im(j)
        for hf in range(2):
            r = (j & 1) * 2 + hf
            a('v_cvt_pk_bf16_f32 %s, %s, %s' % (vr(PK + 2 * j + hf), vr(re(j) + hf), vr(im(j) + hf)))
            tk = a.mem('ds_write_b32 %s, %s offset:%d' % (vr(V_HW), vr(PK + 2 * j + hf), (j >> 1) * 1024 + r * 64))
    a.wait(tk)
    HO = TB + 20
    for i in range(5):
        a('ds_read_b128 %s, %s offset:%d' % (vr(HO + 4 * i, 4), vr(V_HR), i * 1024))
    a('s_mul_i32 %s, %s, 36' % (sr(S_T0), sr(S_RB)))
    a('s_lshl_b32 %s, %s, 2' % (sr(S_T1), sr(S_CG)))
    a('s_add_u32 %s, %s, %s' % (sr(S_T0), sr(S_T0), sr(S_T1)))
    a('s_add_u32 %s, %s, %s' % (sr(S_T0), sr(S_T0), sr(S_WAVE)))
    a('s_mul_i32 %s, %s, 5120' % (sr(S_T0), sr(S_T0)))
    a('s_add_u32 %s, %s, %d' % (sr(S_T0), sr(S_T0), WS_H + layer * 26 * 184320))
    a('s_add_u32 %s, %s, 4096' % (sr(S_T1), sr(S_T0)))
    toks = []
    for i in range(5):
        toks.append(a.mem('buffer_store_dwordx4 %s, %s, %s, %s offen offset:%d sc1' %
                          (vr(HO + 4 * i, 4), vr(V_L16), sr(R_WS, 4), sr(S_T0 if i < 4 else S_T1), (i & 3) * 1024)))
    a('s_lshl_b32 %s, %s, 2' % (sr(S_T0), sr(S_RB)))
    a('s_add_u32 %s, %s, %s' % (sr(S_T0), sr(S_T0), sr(S_WAVE)))
    a('s_lshl_b32 %s, %s, 4' % (sr(S_T0), sr(S_T0)))
    a('s_add_u32 %s, %s, %s' % (sr(S_T0), sr(S_T0), sr(S_CG)))
    a('s_lshl_b32 %s, %s, 2' % (sr(S_T0), sr(S_T0)))
    a('s_add_u32 %s, %s, %d' % (sr(S_T0), sr(S_T0), WS_HF + layer * 26 * 256))
    flag_store(a, V_ZERO, sr(S_T0), toks)
    stamp(a, 'h_pub%d' % layer)
    for r, n in ((E, 8), (EA, 2), (F, 2), (H, 2), (Y, 2)):
        V.put(r, n)


a('v_mul_u32_u24 %s, 160, %s' % (vr(V_TABR), vr(V_Q)))
a('v_add_u32 %s, %d, %s' % (vr(V_TABR), L_TAB, vr(V_TABR)))
scan_phase(a, 0)

if OPT['stop'] <= 1:
    a('s_branch L_fin')

V.put(ACC, 40)
V.put(AF, 40)
a.fence()
a.label('L_conv')


def conv_routine(a):
    a('s_barrier')
    a('s_lshl_b32 %s, %s, 1' % (sr(S_T0), sr(S_PAIR)))
    a('s_add_u32 %s, %s, %s' % (sr(S_T0), sr(S_T0), sr(S_B)))
    a('s_lshl_b32 %s, %s, 12' % (sr(S_T1), sr(S_T0)))
    a('s_add_u32 %s, %s, %s' % (sr(R_SK), sr(P_SSK), sr(S_T1)))
    a('s_addc_u32 %s, %s, 0' % (sr(R_SK + 1), sr(P_SSK + 1)))
    a('s_and_b32 %s, %s, 0xffff' % (sr(R_SK + 1), sr(R_SK + 1)))
    a('s_mov_b32 %s, 4096' % sr(R_SK + 2))
    a('s_mov_b32 %s, 0x20000' % sr(R_SK + 3))
    SD = V.get(2)
    t = V.get()
    a('s_lshl_b32 %s, %s, 2' % (sr(S_T1), sr(S_PAIR)))
    a('v_mov_b32 %s, %s' % (vr(t), sr(S_T1)))
    a('global_load_dword %s, %s, %s' % (vr(SD), vr(t), sr(P_SSD, 2)))
    HD = V.get()
    a('v_add_u32 %s, %s, %s' % (vr(t), vr(V_N), vr(V_Q)))
    a('v_subrev_u32 %s, 16, %s' % (vr(t), vr(t)))
    a('v_lshlrev_b32 %s, 2, %s' % (vr(t), vr(t)))
    a('buffer_load_dword %s, %s, %s, 0 offen' % (vr(HD), vr(t), sr(R_SK, 4)))
    ktk = None
    a('s_mul_i32 %s, %s, %d' % (sr(S_T2), sr(S_B), KC_CH))
    for c in range(2):
        if c == 0:
            a('s_mul_i32 %s, %s, %d' % (sr(S_T3), sr(S_A), 16 + 8320))
            a('s_add_u32 %s, %s, %s' % (sr(S_T3), sr(S_T3), sr(S_T2)))
            a('s_add_u32 m0, %s, %d' % (sr(S_T3), L_KC + 64))
            a('s_lshl_b32 %s, %s, 3' % (sr(S_T1), sr(S_A)))
        else:
            a('s_mul_i32 %s, %s, 8320' % (sr(S_T3), sr(S_A)))
            a('s_add_u32 %s, %s, %s' % (sr(S_T3), sr(S_T3), sr(S_T2)))
            a('s_add_u32 m0, %s, %d' % (sr(S_T3), L_KC + 64 + 16 + 4160))
            a('s_add_u32 %s, %s, 4' % (sr(S_T1), sr(S_T1)))
        for part in range(4):
            ktk = a.mem('buffer_load_dwordx4 %s, %s, %s offen offset:%d lds' % (vr(V_L16), sr(R_SK, 4), sr(S_T1), part * 1024))
    fa = V.get()
    fe = V.get()
    fv = V.get()
    a('v_lshlrev_b32 %s, 2, %s' % (vr(fa), vr(V_LANE)))
    a('v_mov_b32 %s, 0x%x' % (vr(t), OOB))
    a('v_cmp_gt_u32 vcc, 26, %s' % vr(V_LANE),
      'v_cndmask_b32 %s, %s, %s, vcc' % (vr(fa), vr(t), vr(fa)),
      'v_cndmask_b32 %s, 0, %s, vcc' % (vr(fe), vr(V_TAG)))
    a('s_lshr_b32 %s, %s, 3' % (sr(S_T1), sr(S_PAIR)))
    a('s_lshl_b32 %s, %s, 7' % (sr(S_T1), sr(S_T1)))
    a('s_add_u32 %s, %s, %d' % (sr(S_T1), sr(S_T1), WS_KVF))
    poll(a, ['buffer_load_dword %s, %s, %s, %s offen sc1' % (vr(fv), vr(fa), sr(R_WS, 4), sr(S_T1))], [(fv, fe)])
    U = V.get(10)
    a('s_mul_i32 %s, %s, %d' % (sr(S_T1), sr(S_T0), KVT_STR))
    a('s_lshl_b32 %s, %s, 11' % (sr(S_T3), sr(S_A)))
    a('s_add_u32 %s, %s, %s' % (sr(S_T1), sr(S_T1), sr(S_T3)))
    a('s_add_u32 %s, %s, %d' % (sr(S_T1), sr(S_T1), WS_KVT + 128))
    a('s_lshl_b32 %s, %s, 6' % (sr(S_T3), sr(S_A)))
    a('v_add_u32 %s, %s, %s' % (vr(fa), sr(S_T3), vr(V_LANE)))
    a('v_cmp_ne_u32 vcc, 127, %s' % vr(fa),
      'v_cndmask_b32 %s, %s, %s, vcc' % (vr(fa), vr(t), vr(V_L16)))
    a('buffer_load_dwordx4 %s, %s, %s, %s offen sc1' % (vr(U, 4), vr(V_L16), sr(R_WS, 4), sr(S_T1)))
    a('buffer_load_dword %s, %s, %s, %s offen offset:16 sc1' % (vr(U + 8), vr(V_L16), sr(R_WS, 4), sr(S_T1)))
    a('buffer_load_dwordx4 %s, %s, %s, %s offen offset:1024 sc1' % (vr(U + 4, 4), vr(V_L16), sr(R_WS, 4), sr(S_T1)))
    a('buffer_load_dword %s, %s, %s, %s offen offset:1040 sc1' % (vr(U + 9), vr(fa), sr(R_WS, 4), sr(S_T1)))
    a('v_mul_u32_u24 %s, 4160, %s' % (vr(fa), vr(V_Q)))
    a('v_min_u32 %s, 1, %s' % (vr(fe), vr(V_Q)))
    a('v_lshl_add_u32 %s, %s, 4, %s' % (vr(fa), vr(fe), vr(fa)))
    a('v_lshl_add_u32 %s, %s, 2, %s' % (vr(fa), vr(V_N), vr(fa)))
    a('s_add_u32 %s, %s, %d' % (sr(S_T3), sr(S_T2), L_KC))
    a('v_add_u32 %s, %s, %s' % (vr(fa), sr(S_T3), vr(fa)))
    a('ds_write_b32 %s, %s' % (vr(fa), vr(HD)))
    a('s_mul_i32 %s, %s, %d' % (sr(S_T2), sr(S_B), UC_CH))
    a('s_mul_i32 %s, %s, 4640' % (sr(S_T3), sr(S_A)))
    a('s_add_u32 %s, %s, %s' % (sr(S_T3), sr(S_T3), sr(S_T2)))
    a('v_lshl_add_u32 %s, %s, 3, %s' % (vr(fa), vr(V_LANE), sr(S_T3)))
    a('ds_write_b64 %s, %s offset:%d' % (vr(fa), vr(V_ZERO, 2), L_UC + 4096))
    a('s_lshl_b32 %s, %s, 11' % (sr(S_T3), sr(S_A)))
    a('s_add_u32 %s, %s, %s' % (sr(S_T3), sr(S_T3), sr(S_T2)))
    a('v_add_u32 %s, %s, %s' % (vr(fa), sr(S_T3), vr(V_L16)))
    U1 = V.get(8)
    for part in range(2):
        a('ds_write_b128 %s, %s offset:%d' % (vr(fa), vr(U + 4 * part, 4), L_UC + part * 1024))
        for k in range(4):
            hi = U + 4 * part + k + 1 if k < 3 else U + 8 + part
            a('v_alignbit_b32 %s, %s, %s, 16' % (vr(U1 + 4 * part + k), vr(hi), vr(U + 4 * part + k)))
        tk = a.mem('ds_write_b128 %s, %s offset:%d' % (vr(fa), vr(U1 + 4 * part, 4), L_UC + 4640 + part * 1024))
    vN = V.get()
    vM = V.get()
    a('v_add_u32 %s, 1, %s' % (vr(t), vr(V_N)))
    a('v_and_b32 %s, 3, %s' % (vr(fe), vr(t)))
    a('v_mul_u32_u24 %s, 4160, %s' % (vr(vN), vr(fe)))
    a('v_min_u32 %s, 1, %s' % (vr(fe), vr(fe)))
    a('v_lshrrev_b32 %s, 2, %s' % (vr(t), vr(t)))
    a('v_add3_u32 %s, %s, %s, %s' % (vr(t), vr(t), vr(fe), vr(V_Q)))
    a('v_lshl_add_u32 %s, %s, 4, %s' % (vr(vN), vr(t), vr(vN)))
    a('s_mul_i32 %s, %s, %d' % (sr(S_T3), sr(S_B), KC_CH))
    a('s_lshl_b32 %s, %s, 8' % (sr(S_T1), sr(S_A)))
    a('s_add_u32 %s, %s, %s' % (sr(S_T3), sr(S_T3), sr(S_T1)))
    a('s_add_u32 %s, %s, %d' % (sr(S_T3), sr(S_T3), L_KC))
    a('v_add_u32 %s, %s, %s' % (vr(vN), sr(S_T3), vr(vN)))
    a('v_and_b32 %s, 1, %s' % (vr(t), vr(V_N)))
    a('v_sub_u32 %s, 1, %s' % (vr(t), vr(t)))
    a('v_mul_u32_u24 %s, 4640, %s' % (vr(vM), vr(t)))
    a('v_lshrrev_b32 %s, 1, %s' % (vr(t), vr(V_N)))
    a('v_lshlrev_b32 %s, 6, %s' % (vr(t), vr(t)))
    a('v_sub_u32 %s, %s, %s' % (vr(vM), vr(vM), vr(t)))
    a('v_lshl_add_u32 %s, %s, 4, %s' % (vr(vM), vr(V_Q), vr(vM)))
    a('s_add_u32 %s, %s, %s' % (sr(S_T3), sr(S_T2), sr(S_T1)))
    a('s_add_u32 %s, %s, %d' % (sr(S_T3), sr(S_T3), L_UC + 448))
    a('v_add_u32 %s, %s, %s' % (vr(vM), sr(S_T3), vr(vM)))
    a.wait(tk, ktk)
    a('s_barrier')
    for r, n in ((U, 10), (U1, 8), (HD, 1), (fv, 1)):
        V.put(r, n)
    stamp(a, 'conv_ld')
    CA = V.get(32)
    FN = V.get(32)
    FM = V.get(32)
    for cc in range(4):
        for x in range(8):
            a('ds_read_b128 %s, %s offset:%d' % (vr(FN + 4 * x, 4), vr(vN), 512 * x + 64 * cc))
            a('ds_read_b128 %s, %s offset:%d' % (vr(FM + 4 * x, 4), vr(vM), 512 * (7 - x) + 64 * cc))
        for i in range(8):
            for aa in range(i + 1):
                z = cc == 0 and aa == 0
                a('v_mfma_f32_16x16x32_bf16 %s, %s, %s, %s' % (vr(CA + 4 * i, 4), vr(FM + 4 * (i - aa), 4), vr(FN + 4 * aa, 4),
                                                              '0' if z else vr(CA + 4 * i, 4)))
    V.put(FN, 32)
    V.put(FM, 32)
    a('v_lshlrev_b32 %s, 8, %s' % (vr(t), vr(V_Q)))
    a('v_lshl_add_u32 %s, %s, 3, %s' % (vr(t), vr(V_N), vr(t)))
    a('s_lshl_b32 %s, %s, 13' % (sr(S_T3), sr(S_WAVE)))
    a('v_add_u32 %s, %s, %s' % (vr(t), sr(S_T3), vr(t)))
    for i in range(8):
        for hf in range(2):
            tk = a.mem('ds_write_b64 %s, %s offset:%d' % (vr(t), vr(CA + 4 * i + 2 * hf, 2), L_CO + 1024 * i + 128 * hf))
    a.wait(tk)
    a('s_barrier')
    V.put(CA, 32)
    stamp(a, 'conv_mm')
    Y = V.get(32)
    KV = V.get(8)
    ONE2 = fe
    a('v_mov_b32 %s, 0x3f803f80' % vr(ONE2))
    a('v_lshlrev_b32 %s, 4, v0' % vr(t))
    a('v_lshlrev_b32 %s, 3, v0' % vr(fa))
    a('v_sub_u32 %s, %d, %s' % (vr(fa), 2040, vr(fa)))
    for part in range(2):
        for w in range(4):
            a('ds_read_b128 %s, %s offset:%d' % (vr(Y + part * 16 + 4 * w, 4), vr(t), L_CO + w * 8192 + part * 4096))
        for ch in range(2):
            a('ds_read_b64 %s, %s offset:%d' % (vr(KV + part * 4 + 2 * ch, 2), vr(fa), L_UC + ch * UC_CH + (1 - part) * 2048))
    a('v_and_b32 %s, 0xffff0000, %s' % (vr(SD + 1), vr(SD)))
    a('v_lshlrev_b32 %s, 16, %s' % (vr(SD), vr(SD)))
    T4 = V.get(8)
    GO = V.get(8)
    toks = []
    a('s_mul_i32 %s, %s, %d' % (sr(S_T1), sr(S_PAIR), G_STR))
    a('s_add_u32 %s, %s, %d' % (sr(S_T1), sr(S_T1), WS_G))
    a('s_add_u32 %s, %s, 4096' % (sr(S_T3), sr(S_T1)))
    for part in range(2):
        for ch in range(2):
            y = Y + part * 16 + ch * 8
            for k in range(2):
                a('v_pk_add_f32 %s, %s, %s' % (vr(y + 2 * k, 2), vr(y + 2 * k, 2), vr(y + 4 + 2 * k, 2)))
            kvr = KV + part * 4 + 2 * ch
            d = T4 + ch * 4
            a('v_and_b32 %s, 0xffff0000, %s' % (vr(d), vr(kvr + 1)))
            a('v_lshlrev_b32 %s, 16, %s' % (vr(d + 1), vr(kvr + 1)))
            a('v_and_b32 %s, 0xffff0000, %s' % (vr(d + 2), vr(kvr)))
            a('v_lshlrev_b32 %s, 16, %s' % (vr(d + 3), vr(kvr)))
            for k in range(2):
                a('v_pk_mul_f32 %s, %s, %s op_sel:[0,%d] op_sel_hi:[1,%d]' % (vr(d + 2 * k, 2), vr(d + 2 * k, 2), vr(SD, 2), ch, ch))
            for k in range(4):
                a('v_cvt_pk_bf16_f32 %s, %s, %s' % (vr(d + k), vr(y + k), vr(d + k)))
            for k in range(4):
                a('v_dot2_f32_bf16 %s, %s, %s, 0' % (vr(d + k), vr(d + k), vr(ONE2)))
        for k in range(4):
            a('v_cvt_pk_bf16_f32 %s, %s, %s' % (vr(GO + part * 4 + k), vr(T4 + k), vr(T4 + 4 + k)))
        toks.append(a.mem('buffer_store_dwordx4 %s, %s, %s, %s offen sc1' %
                          (vr(GO + part * 4, 4), vr(t), sr(R_WS, 4), sr(S_T1 if part == 0 else S_T3))))
    a('s_lshl_b32 %s, %s, 2' % (sr(S_T1), sr(S_PAIR)))
    a('s_add_u32 %s, %s, %s' % (sr(S_T1), sr(S_T1), sr(S_WAVE)))
    a('s_lshl_b32 %s, %s, 2' % (sr(S_T1), sr(S_T1)))
    a('s_add_u32 %s, %s, %d' % (sr(S_T1), sr(S_T1), WS_GF))
    flag_store(a, V_ZERO, sr(S_T1), toks)
    for r, n in ((Y, 32), (KV, 8), (T4, 8), (GO, 8), (SD, 2), (t, 1), (fa, 1), (fe, 1), (vN, 1), (vM, 1)):
        V.put(r, n)
    stamp(a, 'conv_out')


conv_routine(a)
a.fence()
a('s_cmp_eq_u32 %s, 0' % sr(S_ROUND))
a('s_cbranch_scc1 L_main2')
a('s_add_u32 %s, %s, 22' % (sr(S_PAIR), sr(S_PAIR)))
a('s_cmp_lt_u32 %s, 288' % sr(S_PAIR))
a('s_cbranch_scc1 L_conv')
a('s_branch L_fin')
a.label('L_main2')
if OPT['stop'] <= 2:
    a('s_branch L_fin')

WCV = V.get(32)


def WC(s, j):
    idx = s * 4 + j
    if idx < 28:
        return ar(144 + idx * 4, 4)
    return vr(WCV + (idx - 28) * 4, 4)


fa = V.get()
fe = V.get()
fv = V.get(2)
t = V.get()
a('v_lshlrev_b32 %s, 3, %s' % (vr(fa), vr(V_LANE)))
a('v_mov_b32 %s, 0x%x' % (vr(t), OOB))
a('v_cmp_gt_u32 vcc, 36, %s' % vr(V_LANE),
  'v_cndmask_b32 %s, %s, %s, vcc' % (vr(fa), vr(t), vr(fa)),
  'v_cndmask_b32 %s, 0, %s, vcc' % (vr(fe), vr(V_TAG)))
a('s_mov_b32 %s, %d' % (sr(S_T1), WS_CPF))
poll(a, ['buffer_load_dwordx2 %s, %s, %s, %s offen sc1' % (vr(fv, 2), vr(fa), sr(R_WS, 4), sr(S_T1))], [(fv, fe), (fv + 1, fe)])
for r, n in ((fa, 1), (fe, 1), (fv, 2), (t, 1)):
    V.put(r, n)
a('s_mul_i32 %s, %s, 144' % (sr(S_T0), sr(S_CG)))
a('s_add_u32 %s, %s, %s' % (sr(S_T0), sr(S_T0), sr(S_WAVE)))
a('s_lshl_b32 %s, %s, 10' % (sr(S_T0), sr(S_T0)))
a('s_add_u32 %s, %s, %d' % (sr(S_T0), sr(S_T0), WS_CP))
for s in range(9):
    a('s_lshl_b32 %s, %s, 12' % (sr(S_T1), sr(S_KP + s)))
    a('s_add_u32 %s, %s, %s' % (sr(S_T1), sr(S_T1), sr(S_T0)))
    for j in range(4):
        a('s_add_u32 %s, %s, %d' % (sr(S_T2), sr(S_T1), j * 36 * 1024),
          'buffer_load_dwordx4 %s, %s, %s, %s offen sc1' % (WC(s, j), vr(V_L16), sr(R_WS, 4), sr(S_T2)))
stamp(a, 'cp_ld')

GP = V.get(10, 1)
MU1 = V.get(5, 1)
V_PW = V.get()
V_PR = V.get()
t = V.get()
a('v_mul_u32_u24 %s, %d, %s' % (vr(V_PW), PART_ROW, vr(V_N)))
a('v_lshl_add_u32 %s, %s, 4, %s' % (vr(V_PW), vr(V_Q), vr(V_PW)))
a('s_mul_i32 %s, %s, %d' % (sr(S_T0), sr(S_WAVE), PART_W))
a('v_add_u32 %s, %s, %s' % (vr(V_PW), sr(S_T0), vr(V_PW)))
a('s_lshl_b32 %s, %s, 2' % (sr(S_T0), sr(S_WAVE)))
a('v_add_u32 %s, %s, %s' % (vr(t), sr(S_T0), vr(V_Q)))
a('v_mul_u32_u24 %s, %d, %s' % (vr(V_PR), PART_ROW, vr(t)))
a('v_lshl_add_u32 %s, %s, 4, %s' % (vr(V_PR), vr(V_N), vr(V_PR)))
V.put(t)


def g_fetch(a):
    fa = V.get()
    fv = V.get(2)
    t = V.get()
    a('v_lshlrev_b32 %s, 3, %s' % (vr(fa), vr(V_LANE)))
    a('s_lshl_b32 %s, %s, 9' % (sr(S_T1), sr(S_CG)))
    a('s_add_u32 %s, %s, %d' % (sr(S_T1), sr(S_T1), WS_GF))
    poll(a, ['buffer_load_dwordx2 %s, %s, %s, %s offen sc1' % (vr(fv, 2), vr(fa), sr(R_WS, 4), sr(S_T1))],
         [(fv, V_TAG), (fv + 1, V_TAG)])
    D = V.get(12)
    LA = V.get(3, 1)
    u = V.get()
    q = V.get()
    a('s_mul_i32 %s, %s, %d' % (sr(S_T1), sr(S_CG), 32 * G_STR))
    a('s_mul_i32 %s, %s, 320' % (sr(S_T2), sr(S_RB)))
    a('s_add_u32 %s, %s, %s' % (sr(S_T1), sr(S_T1), sr(S_T2)))
    a('s_mul_i32 %s, %s, 80' % (sr(S_T2), sr(S_WAVE)))
    a('s_add_u32 %s, %s, %s' % (sr(S_T1), sr(S_T1), sr(S_T2)))
    a('s_add_u32 %s, %s, %d' % (sr(S_T1), sr(S_T1), WS_G))
    a('s_mul_i32 %s, %s, 5120' % (sr(S_T2), sr(S_WAVE)))
    a('s_add_u32 %s, %s, %d' % (sr(S_T2), sr(S_T2), L_PRIV))
    for i in range(3):
        a('v_add_u32 %s, %d, %s' % (vr(u), 64 * i, vr(V_LANE)))
        a('v_mul_u32_u24 %s, 205, %s' % (vr(q), vr(u)))
        a('v_lshrrev_b32 %s, 10, %s' % (vr(q), vr(q)))
        a('v_mul_u32_u24 %s, %d, %s' % (vr(fa), G_STR - 80, vr(q)))
        a('v_lshl_add_u32 %s, %s, 4, %s' % (vr(fa), vr(u), vr(fa)))
        if i == 2:
            a('v_cmp_gt_u32 vcc, 32, %s' % vr(V_LANE),
              'v_mov_b32 %s, 0x%x' % (vr(t), OOB),
              'v_cndmask_b32 %s, %s, %s, vcc' % (vr(fa), vr(t), vr(fa)))
        a('buffer_load_dwordx4 %s, %s, %s, %s offen sc1' % (vr(D + 4 * i, 4), vr(fa), sr(R_WS, 4), sr(S_T1)))
    a('v_add_u32 %s, %s, %s' % (vr(t), sr(S_T2), vr(V_L16)))
    tk = None
    for i in range(3):
        tk = a.mem('ds_write_b128 %s, %s offset:%d' % (vr(t), vr(D + 4 * i, 4), 1024 * i))
    a('s_mul_i32 %s, %s, 20' % (sr(S_T1), sr(S_WAVE)))
    a('v_subrev_u32 %s, %s, %s' % (vr(u), sr(S_T1), vr(V_TAU)))
    a('v_mul_u32_u24 %s, 160, %s' % (vr(q), vr(V_N)))
    a('v_lshl_add_u32 %s, %s, 2, %s' % (vr(u), vr(u), vr(q)))
    a('v_add_u32 %s, %s, %s' % (vr(u), sr(S_T2), vr(u)))
    a.wait(tk)
    for i in range(5):
        for j in range(2):
            a('ds_read_b32 %s, %s offset:%d' % (vr(GP + 2 * i + j), vr(u), j * 80 + 8 * i))
    for r, n in ((fa, 1), (fv, 2), (t, 1), (D, 12), (LA, 3), (u, 1), (q, 1)):
        V.put(r, n)


def gemm_c(a, layer):
    fa = V.get()
    fv = V.get()
    t = V.get()
    a('v_lshlrev_b32 %s, 2, %s' % (vr(fa), vr(V_N)))
    a('v_mov_b32 %s, 0x%x' % (vr(t), OOB))
    a('v_cmp_gt_u32 vcc, 9, %s' % vr(V_N),
      'v_cndmask_b32 %s, %s, %s, vcc' % (vr(fa), vr(t), vr(fa)))
    a('s_lshl_b32 %s, %s, 2' % (sr(S_T1), sr(S_RB)))
    a('s_add_u32 %s, %s, %s' % (sr(S_T1), sr(S_T1), sr(S_WAVE)))
    a('s_lshl_b32 %s, %s, 6' % (sr(S_T1), sr(S_T1)))
    a('s_add_u32 %s, %s, %d' % (sr(S_T1), sr(S_T1), WS_HF + layer * 26 * 256))
    poll(a, ['buffer_load_dword %s, %s, %s, %s offen sc1' % (vr(fv), vr(fa), sr(R_WS, 4), sr(S_T1))], [(fv, V_EXP9)])
    stamp(a, 'h_flag%d' % layer)
    for r in (fa, fv, t):
        V.put(r)
    NF = 24
    HB = V.get(4 * NF)
    hb = lambda i, s: HB + ((i * 9 + s) % NF) * 4
    CA = V.get(32)
    def pwrite(i):
        ca = CA + (i & 1) * 16
        for j in range(4):
            off = L_IMG + i * 4 * PART_W + j * 64
            if off < 65536:
                tk = a.mem('ds_write_b128 %s, %s offset:%d' % (vr(V_PW), vr(ca + 4 * j, 4), off))
            else:
                tk = a.mem('ds_write_b128 %s, %s offset:%d' % (vr(V_PW2), vr(ca + 4 * j, 4), off - 32768))
        return tk
    a('s_mul_i32 %s, %s, 36' % (sr(S_T0), sr(S_RB)))
    a('s_add_u32 %s, %s, %s' % (sr(S_T0), sr(S_T0), sr(S_WAVE)))
    a('s_mul_i32 %s, %s, 5120' % (sr(S_T0), sr(S_T0)))
    a('s_add_u32 %s, %s, %d' % (sr(S_T0), sr(S_T0), WS_H + layer * 26 * 184320))

    def hload(s_, f):
        i, s = f // 9, f % 9
        s_('s_mul_i32 %s, %s, 20480' % (sr(S_T1), sr(S_KP + s)),
           's_add_u32 %s, %s, %s' % (sr(S_T1), sr(S_T1), sr(S_T0)),
           's_add_u32 %s, %s, %d' % (sr(S_T1), sr(S_T1), (i >> 2) * 4096),
           'buffer_load_dwordx4 %s, %s, %s, %s offen offset:%d sc1' %
           (vr(hb(i, s), 4), vr(V_L16), sr(R_WS, 4), sr(S_T1), (i & 3) * 1024))

    for f in range(NF):
        hload(a, f)
    a('s_barrier')
    tk = None
    for i in range(5):
        ca = CA + (i & 1) * 16
        for s in range(9):
            for j in range(4):
                a('v_mfma_f32_16x16x32_bf16 %s, %s, %s, %s' % (vr(ca + 4 * j, 4), WC(s, j), vr(hb(i, s), 4),
                                                              '0' if s == 0 else vr(ca + 4 * j, 4)))
            if i * 9 + s + NF < 45:
                hload(a, i * 9 + s + NF)
            if s == 2 and i > 0:
                tk = pwrite(i - 1)
    tk = pwrite(4)
    a.wait(tk)
    a('s_barrier')
    stamp(a, 'gemmC%d' % layer)
    P = HB
    for i in range(5):
        for w in range(4):
            off = L_IMG + (i * 4 + w) * PART_W
            if off < 65536:
                a('ds_read_b128 %s, %s offset:%d' % (vr(P + i * 16 + w * 4, 4), vr(V_PR), off))
            else:
                a('ds_read_b128 %s, %s offset:%d' % (vr(P + i * 16 + w * 4, 4), vr(V_PR2), off - 32768))
    for i in range(5):
        p = P + i * 16
        for k in range(2):
            a('v_pk_add_f32 %s, %s, %s' % (vr(p + 2 * k, 2), vr(p + 2 * k, 2), vr(p + 4 + 2 * k, 2)))
            a('v_pk_add_f32 %s, %s, %s' % (vr(p + 8 + 2 * k, 2), vr(p + 8 + 2 * k, 2), vr(p + 12 + 2 * k, 2)))
            a('v_pk_add_f32 %s, %s, %s' % (vr(p + 2 * k, 2), vr(p + 2 * k, 2), vr(p + 8 + 2 * k, 2)))
            a('v_pk_add_f32 %s, %s, %s' % (vr(BASE + 4 * i + 2 * k, 2), vr(BASE + 4 * i + 2 * k, 2), vr(p + 2 * k, 2)))
    V.put(HB, 4 * NF)
    V.put(CA, 32)


V_PW2 = V.get()
V_PR2 = V.get()
a('v_add_u32 %s, 32768, %s' % (vr(V_PW2), vr(V_PW)))
a('v_add_u32 %s, 32768, %s' % (vr(V_PR2), vr(V_PR)))


def gate(a, which, final):
    stats_publish(a, BASE, which)
    stamp(a, 'st_pub%d' % which)
    if not final:
        g_fetch(a)
    MU, VA = stats_gather(a, which)
    stamp(a, 'st_got%d' % which)
    for i in range(5):
        a('v_add_f32 %s, 0x3727c5ac, %s' % (vr(VA + i), vr(VA + i)))
    for i in range(5):
        a('v_rsq_f32 %s, %s' % (vr(VA + i), vr(VA + i)))
    g = V.get(4)
    z = V.get(4)
    for i in range(5):
        for j in range(2):
            a('v_lshlrev_b32 %s, 16, %s' % (vr(g + 2 * j), vr(GP + 2 * i + j)))
            a('v_and_b32 %s, 0xffff0000, %s' % (vr(g + 2 * j + 1), vr(GP + 2 * i + j)))
        for k in range(4):
            a('v_sub_f32 %s, %s, %s' % (vr(z + k), vr(BASE + 4 * i + k), vr(MU + i)))
        for k in range(4):
            a('v_mul_f32 %s, %s, %s' % (vr(g + k), vr(g + k), vr(VA + i)))
        for k in range(2):
            a('v_pk_fma_f32 %s, %s, %s, %s' % (vr(BASE + 4 * i + 2 * k, 2), vr(z + 2 * k, 2), vr(g + 2 * k, 2),
                                               vr((BASE + 4 * i if final else z) + 2 * k, 2)))
        if not final:
            a('v_mov_b32 %s, %s' % (vr(MU1 + i), vr(MU + i)))
    for r, n in ((g, 4), (z, 4), (MU, 5), (VA, 5)):
        V.put(r, n)


gemm_c(a, 0)
gate(a, 1, False)
WP = V.get(10, 2)
ad = V.get()
t = V.get()
for i in range(5):
    for k in range(2):
        a('v_cvt_pk_bf16_f32 %s, %s, %s' % (vr(WP + 2 * i + k), vr(BASE + 4 * i + 2 * k), vr(BASE + 4 * i + 2 * k + 1)))
a('s_lshl_b32 %s, %s, 2' % (sr(S_T0), sr(S_WAVE)))
a('v_add_u32 %s, %s, %s' % (vr(ad), sr(S_T0), vr(V_Q)))
a('v_xor_b32 %s, %s, %s' % (vr(t), vr(ad), vr(V_N)))
a('v_lshrrev_b32 %s, 1, %s' % (vr(t), vr(t)))
a('v_lshlrev_b32 %s, 4, %s' % (vr(t), vr(t)))
a('v_lshl_add_u32 %s, %s, 7, %s' % (vr(ad), vr(ad), vr(t)))
a('v_and_b32 %s, 1, %s' % (vr(t), vr(V_N)))
a('v_lshl_add_u32 %s, %s, 3, %s' % (vr(ad), vr(t), vr(ad)))
a('s_mul_i32 %s, %s, 9' % (sr(S_T0), sr(S_RB)))
a('s_add_u32 %s, %s, %s' % (sr(S_T0), sr(S_T0), sr(S_CG)))
a('s_mul_i32 %s, %s, 10240' % (sr(S_T0), sr(S_T0)))
a('s_add_u32 %s, %s, %d' % (sr(S_T0), sr(S_T0), WS_W))
toks = []
for i in range(5):
    toks.append(a.mem('s_add_u32 %s, %s, %d' % (sr(S_T1), sr(S_T0), 2048 * i),
                      'buffer_store_dwordx2 %s, %s, %s, %s offen sc1' % (vr(WP + 2 * i, 2), vr(ad), sr(R_WS, 4), sr(S_T1))))
stats_publish(a, BASE, 2)
a('s_lshl_b32 %s, %s, 6' % (sr(S_T0), sr(S_RB)))
a('s_lshl_b32 %s, %s, 2' % (sr(S_T1), sr(S_CG)))
a('s_add_u32 %s, %s, %s' % (sr(S_T0), sr(S_T0), sr(S_T1)))
a('s_add_u32 %s, %s, %s' % (sr(S_T0), sr(S_T0), sr(S_WAVE)))
a('s_lshl_b32 %s, %s, 2' % (sr(S_T0), sr(S_T0)))
a('s_add_u32 %s, %s, %d' % (sr(S_T0), sr(S_T0), WS_WF))
flag_store(a, V_ZERO, sr(S_T0), toks)
stamp(a, 'w_pub')
V.put(WP, 10)
V.put(ad)
V.put(t)
if OPT['stop'] <= 3:
    a('s_branch L_fin')

ACC = V.get(40)
AF = V.get(40)
fa = V.get()
fe = V.get()
fv = V.get()
t = V.get()
a('v_lshlrev_b32 %s, 2, %s' % (vr(fa), vr(V_LANE)))
a('v_mov_b32 %s, 0x%x' % (vr(t), OOB))
a('v_cmp_gt_u32 vcc, 36, %s' % vr(V_LANE),
  'v_cndmask_b32 %s, %s, %s, vcc' % (vr(fa), vr(t), vr(fa)),
  'v_cndmask_b32 %s, 0, %s, vcc' % (vr(fe), vr(V_TAG)))
a('s_lshl_b32 %s, %s, 8' % (sr(S_T1), sr(S_RB)))
a('s_add_u32 %s, %s, %d' % (sr(S_T1), sr(S_T1), WS_WF))
poll(a, ['buffer_load_dword %s, %s, %s, %s offen sc1' % (vr(fv), vr(fa), sr(R_WS, 4), sr(S_T1))], [(fv, fe)])
stamp(a, 'w_flag')
for r in (fa, fe, fv, t):
    V.put(r)
wst, wtk = img_dma_stream(1)
for k in range(5):
    a.extend(wst[k])
for k in range(5):
    blocks = [2 * k, 2 * k + 1] if k < 4 else [8]
    if k == 4:
        ttk = ln_table(a, 1)
        a.wait(ttk)
    a.wait(wtk[k])
    a('s_barrier')
    for kp in blocks:
        gemm_b_block(a, kp, ACC, AF, None, None, kp == 0)
stamp(a, 'gemmB2')


scan_phase(a, 1)
Lk = newlabel('noep')
a('s_lshl_b32 %s, %s, 2' % (sr(S_T0), sr(S_L)))
a('s_add_u32 %s, %s, %s' % (sr(S_T0), sr(S_T0), sr(S_WAVE)))
a('s_cmp_lg_u32 %s, %d' % (sr(S_T0), 225 * 4))
a('s_cselect_b64 exec, 0, 1')
a('buffer_store_dword %s, %s, %s, 0 offen sc1' % (vr(V_TAG), vr(V_ZERO), sr(R_WS, 4)))
a('s_mov_b64 exec, -1')
V.put(ACC, 40)
V.put(AF, 40)
gemm_c(a, 1)
gate(a, 3, True)
ad = V.get()
a('v_lshlrev_b32 %s, 1, %s' % (vr(ad), vr(V_ROWX)))
for i in range(5):
    a('s_movk_i32 %s, %d' % (sr(S_T0), 4608 * i),
      'buffer_store_dwordx4 %s, %s, %s, %s offen' % (vr(BASE + 4 * i, 4), vr(ad), sr(R_OUT, 4), sr(S_T0)))
stamp(a, 'out')
a('s_branch L_fin')
V.put(ad)

a.fence()
a.label('L_aux')
saved_free = set(V.free)
V.free = set(range(16, 256))
a('s_mov_b32 %s, 1' % sr(S_ROUND))
srd(a, R_BRE, P_CRE, 576 * 1152)
srd(a, R_BIM, P_CIM, 576 * 1152)
a('s_and_b32 %s, %s, 1' % (sr(S_A), sr(S_WAVE)))
a('s_lshr_b32 %s, %s, 1' % (sr(S_B), sr(S_WAVE)))
a('s_sub_u32 %s, %s, 234' % (sr(S_T0), sr(S_L)))
a('s_lshl_b32 %s, %s, 2' % (sr(S_T0), sr(S_T0)))
a('s_add_u32 %s, %s, %s' % (sr(S_RB), sr(S_T0), sr(S_WAVE)))
a('s_mul_i32 %s, %s, 57' % (sr(S_CG), sr(S_RB)))
a('s_lshr_b32 %s, %s, 10' % (sr(S_CG), sr(S_CG)))
a('s_mul_i32 %s, %s, 18' % (sr(S_T0), sr(S_CG)))
a('s_sub_u32 %s, %s, %s' % (sr(S_ROT), sr(S_RB), sr(S_T0)))
a('s_waitcnt lgkmcnt(0)')
tag_ready(a)
a('s_cmp_ge_u32 %s, 72' % sr(S_RB))
a('s_cbranch_scc1 L_conv')
t = V.get()
t2 = V.get()
a('v_and_b32 %s, 31, %s' % (vr(t), vr(V_LANE)))
a('s_lshl_b32 %s, %s, 6' % (sr(S_T0), sr(S_ROT)))
a('v_lshl_add_u32 %s, %s, 1, %s' % (vr(t2), vr(t), sr(S_T0)))
LT = lam_params(a, t2, True)
CL = V.get(72)
vc = V.get()
a('v_lshrrev_b32 %s, 2, %s' % (vr(vc), vr(V_LANE)))
a('v_mul_u32_u24 %s, 1152, %s' % (vr(vc), vr(vc)))
a('v_and_b32 %s, 3, %s' % (vr(t2), vr(V_LANE)))
a('v_lshl_add_u32 %s, %s, 4, %s' % (vr(vc), vr(t2), vr(vc)))
a('s_mul_i32 %s, %s, %d' % (sr(S_T1), sr(S_CG), 9 * 16 * 1152))
a('s_add_u32 %s, %s, %s' % (sr(S_T1), sr(S_T1), sr(S_T0)))
for u in range(9):
    a('s_add_u32 %s, %s, %d' % (sr(S_T2), sr(S_T1), u * 16 * 1152),
      'buffer_load_dwordx4 %s, %s, %s, %s offen' % (vr(CL + 8 * u, 4), vr(vc), sr(R_BRE, 4), sr(S_T2)),
      'buffer_load_dwordx4 %s, %s, %s, %s offen' % (vr(CL + 8 * u + 4, 4), vr(vc), sr(R_BIM, 4), sr(S_T2)))
_, COEF = lam_compute(a, LT, True)
a('v_add_f32 %s, %s, %s' % (vr(COEF), vr(COEF), vr(COEF)))
a('v_add_f32 %s, %s, %s' % (vr(COEF + 1), vr(COEF + 1), vr(COEF + 1)))
a('s_mul_i32 %s, %s, 5120' % (sr(S_T3), sr(S_WAVE)))
a('s_add_u32 %s, %s, %d' % (sr(S_T3), sr(S_T3), L_PRIV))
a('v_lshl_add_u32 %s, %s, 3, %s' % (vr(t), vr(t), sr(S_T3)))
tk = a.mem('ds_write_b64 %s, %s offset:4096' % (vr(t), vr(COEF, 2)))
a('v_lshl_add_u32 %s, %s, 6, %s' % (vr(t), vr(t2), sr(S_T3)))
a.wait(tk)
CF = V.get(16)
for k in range(4):
    a('ds_read_b128 %s, %s offset:%d' % (vr(CF + 4 * k, 4), vr(t), 4096 + 16 * k))
wa = V.get()
a('v_lshrrev_b32 %s, 2, %s' % (vr(t), vr(V_LANE)))
a('v_lshlrev_b32 %s, 4, %s' % (vr(t), vr(t)))
a('v_lshl_add_u32 %s, %s, 9, %s' % (vr(wa), vr(t2), vr(t)))
a('v_add_u32 %s, %s, %s' % (vr(wa), sr(S_T3), vr(wa)))
ra = V.get()
a('v_add_u32 %s, %s, %s' % (vr(ra), sr(S_T3), vr(V_L16)))
X = V.get(4)
O = V.get(16)
RD = V.get(16)
toks = []
a('s_mul_i32 %s, %s, %d' % (sr(S_T1), sr(S_CG), 9 * 36))
a('s_lshl_b32 %s, %s, 1' % (sr(S_T0), sr(S_ROT)))
a('s_add_u32 %s, %s, %s' % (sr(S_T1), sr(S_T1), sr(S_T0)))
a('s_lshl_b32 %s, %s, 10' % (sr(S_T1), sr(S_T1)))
a('s_add_u32 %s, %s, %d' % (sr(S_T1), sr(S_T1), WS_CP))
for u in range(9):
    o = O + (u & 1) * 8
    for e in range(8):
        src = CL + 8 * u + (e >> 1)
        if e & 1:
            a('v_and_b32 %s, 0xffff0000, %s' % (vr(X), vr(src)))
            a('v_and_b32 %s, 0xffff0000, %s' % (vr(X + 1), vr(src + 4)))
        else:
            a('v_lshlrev_b32 %s, 16, %s' % (vr(X), vr(src)))
            a('v_lshlrev_b32 %s, 16, %s' % (vr(X + 1), vr(src + 4)))
        cmul(a, X + 2, X, CF + 2 * e)
        a('v_cvt_pk_bf16_f32 %s, %s, -%s' % (vr(o + e), vr(X + 2), vr(X + 3)))
    bo = (u & 1) * 2048
    a('ds_write_b128 %s, %s offset:%d' % (vr(wa), vr(o, 4), bo))
    tk = a.mem('ds_write_b128 %s, %s offset:%d' % (vr(wa), vr(o + 4, 4), bo + 256))
    a.wait(tk)
    rd = RD + (u & 1) * 8
    a('ds_read_b128 %s, %s offset:%d' % (vr(rd, 4), vr(ra), bo))
    a('ds_read_b128 %s, %s offset:%d' % (vr(rd + 4, 4), vr(ra), bo + 1024))
    a('s_add_u32 %s, %s, %d' % (sr(S_T2), sr(S_T1), u * 36 * 1024))
    toks.append(a.mem('buffer_store_dwordx4 %s, %s, %s, %s offen sc1' % (vr(rd, 4), vr(V_L16), sr(R_WS, 4), sr(S_T2))))
    toks.append(a.mem('buffer_store_dwordx4 %s, %s, %s, %s offen offset:1024 sc1' % (vr(rd + 4, 4), vr(V_L16), sr(R_WS, 4), sr(S_T2))))
a('s_lshl_b32 %s, %s, 2' % (sr(S_T0), sr(S_RB)))
a('s_add_u32 %s, %s, %d' % (sr(S_T0), sr(S_T0), WS_CPF))
flag_store(a, V_ZERO, sr(S_T0), toks)
a.fence()
a('s_branch L_conv')

a.label('L_fin')
if OPT['stamps']:
    a('s_waitcnt vmcnt(0) lgkmcnt(0)')
    a('s_memrealtime %s' % sr(S_M2, 2))
    a('s_waitcnt lgkmcnt(0)')
    a('v_writelane_b32 %s, %s, 63' % (vr(V_STAMP), sr(S_M2)))
    a('s_lshl_b32 %s, %s, 10' % (sr(S_T0), sr(S_L)))
    a('s_add_u32 %s, %s, %d' % (sr(S_T0), sr(S_T0), WS_DBG))
    a('v_lshlrev_b32 %s, 2, v0' % vr(V_DUMMY))
    a('buffer_store_dword %s, %s, %s, %s offen' % (vr(V_STAMP), vr(V_DUMMY), sr(R_WS, 4), sr(S_T0)))
a.label('L_end')
a('s_endpgm')

hdr = open(os.path.join(os.path.dirname(os.path.abspath(__file__)), '..', 'cdna_kernels', NAME + '.s.ref')).read().split('\n')
head = []
for ln in hdr:
    if ln.startswith('; @launch'):
        break
    head.append(ln)
lines = head + ['; @launch grid=(256,1,1) block=(256,1,1) lds=%d' % LDS_SIZE,
                '.amdgcn_target "amdgcn-amd-amdhsa--gfx950"', '.text', '.globl ' + KN, '.p2align 8',
                '.type %s,@function' % KN, KN + ':']
lines += finalize(top)
lines += ['.section .rodata,"a"', '.p2align 6', '.amdhsa_kernel ' + KN,
          '  .amdhsa_next_free_vgpr 512', '  .amdhsa_next_free_sgpr 102', '  .amdhsa_accum_offset 256',
          '  .amdhsa_group_segment_fixed_size 0', '  .amdhsa_kernarg_size 144', '  .amdhsa_user_sgpr_count 2',
          '  .amdhsa_user_sgpr_kernarg_segment_ptr 1', '  .amdhsa_system_sgpr_workgroup_id_x 1', '.end_amdhsa_kernel']
open(sys.argv[1], 'w').write('\n'.join(lines) + '\n')
open(sys.argv[1] + '.stamps', 'w').write('\n'.join(STAMPS) + '\n')
print('vgpr high water', V.hw, 'lines', len(lines))
```

```python
import sys, os
sys.path.insert(0, os.path.dirname(os.path.abspath(__file__)))
from asmlib import *

NAME = 'interleave_layers__ssm_conv_s5__ssm_conv_h3__prompt'
KN = NAME + '_kernel'

OPT = dict(stamps=0, stop=99, bias=0)
for a in sys.argv[2:]:
    k, v = a.split('=')
    OPT[k] = int(v)

WS_KVF = 0x1000
WS_CPF = 0x3000
WS_HF = 0x4000
WS_WF = 0x8000
WS_GF = 0xA000
WS_E = 0x10000
WS_ST = 0x100000
WS_KVT = 0x400000
KVT_STR = 4352
WS_CP = 0x700000
WS_H = 0x900000
WS_W = 0x1300000
WS_G = 0x1600000
G_STR = 8448
WS_DBG = 0x2000000
WS_SIZE = 0x10000000
OOB = 0x7FFF0000

L_IMG = 0
L_RING = 92160
L_PRIV = 141312
L_MISC = 161792
LDS_SIZE = 163840
L_TAB = L_MISC
L_KC = L_RING
KC_CH = 16656
L_UC = L_IMG
UC_CH = 9280
L_CO = L_IMG + 20480
PART_ROW = 272
PART_W = 16 * PART_ROW
SPIN = 20000

S_WG = 2
P_X, P_LRE, P_LIM, P_BRE, P_BIM, P_CRE, P_CIM, P_LDT = [8 + 2 * i for i in range(8)]
P_DSK, P_Q, P_K, P_V, P_SHK, P_SSK, P_SSD, P_OUT = [24 + 2 * i for i in range(8)]
P_DBG, P_WS = 40, 42
R_WS, R_X, R_BRE, R_BIM, R_K, R_V, R_OUT, R_SK = [44 + 4 * i for i in range(8)]
S_RB, S_CG, S_ROT, S_WAVE, S_TAG, S_L, S_PAIR, S_SPIN = range(76, 84)
S_KP = 84
S_T0, S_T1, S_T2, S_T3 = 93, 94, 95, 96
S_ROUND = 97
S_M1, S_M2 = 98, 100
S_A, S_B, S_C = 3, 4, 5
S_PC = 6

V = Alloc('v', 1, 256)
top = Stream()
lblc = [0]


def newlabel(p):
    lblc[0] += 1
    return 'L_%s_%d' % (p, lblc[0])


def srd(a, r, p, size):
    a('s_mov_b32 %s, %s' % (sr(r), sr(p)))
    a('s_and_b32 %s, %s, 0xffff' % (sr(r + 1), sr(p + 1)))
    a('s_mov_b32 %s, 0x%x' % (sr(r + 2), size))
    a('s_mov_b32 %s, 0x20000' % sr(r + 3))


def cmul(a, d, x, y):
    a('v_pk_mul_f32 %s, %s, %s op_sel:[0,0] op_sel_hi:[1,0]' % (vr(d, 2), vr(x, 2), vr(y, 2)))
    a('v_pk_fma_f32 %s, %s, %s, %s op_sel:[1,1,0] op_sel_hi:[0,1,1] neg_lo:[1,0,0]' % (vr(d, 2), vr(x, 2), vr(y, 2), vr(d, 2)))


def cfma(a, d, x, y, c):
    a('v_pk_fma_f32 %s, %s, %s, %s op_sel:[0,0,0] op_sel_hi:[1,0,1]' % (vr(d, 2), vr(x, 2), vr(y, 2), vr(c, 2)))
    a('v_pk_fma_f32 %s, %s, %s, %s op_sel:[1,1,0] op_sel_hi:[0,1,1] neg_lo:[1,0,0]' % (vr(d, 2), vr(x, 2), vr(y, 2), vr(d, 2)))


stamp_n = [0]


def stamp(a, name):
    if not OPT['stamps']:
        return
    i = stamp_n[0]
    stamp_n[0] += 1
    a.comment('stamp %d %s' % (i, name))
    a('s_memrealtime %s' % sr(S_M2, 2))
    a('s_waitcnt lgkmcnt(0)')
    a('v_writelane_b32 %s, %s, %d' % (vr(V_STAMP), sr(S_M2), i))
    STAMPS.append(name)


STAMPS = []


def poll(a, loads, checks):
    L = newlabel('poll')
    Ld = newlabel('polld')
    a('s_mov_b32 %s, %d' % (sr(S_SPIN), SPIN))
    a.label(L)
    for t in loads:
        a(t)
    a('s_waitcnt vmcnt(0)')
    first = True
    for (x, e) in checks:
        if first:
            a('v_cmp_ne_u32 vcc, %s, %s' % (vr(x), vr(e)))
            first = False
        else:
            a('v_cmp_ne_u32 %s, %s, %s' % (sr(S_M1, 2), vr(x), vr(e)))
            a('s_or_b64 vcc, vcc, %s' % sr(S_M1, 2))
    a('s_sub_u32 %s, %s, 1' % (sr(S_SPIN), sr(S_SPIN)))
    a('s_cselect_b64 vcc, 0, vcc')
    a('s_cmp_lg_u64 vcc, 0')
    a('s_cbranch_scc1 %s' % L)


def flag_store(a, vaddr, soff, toks):
    a.wait(*toks)
    a('s_mov_b64 exec, 1',
      'buffer_store_dword %s, %s, %s, %s offen sc1' % (vr(V_TAG), vr(vaddr), sr(R_WS, 4), soff),
      's_mov_b64 exec, -1')


def row_allreduce(a, regs):
    for sh in (8, 4, 2, 1):
        for r in regs:
            a('v_add_f32_dpp %s, %s, %s row_ror:%d row_mask:0xf bank_mask:0xf' % (vr(r), vr(r), vr(r), sh))


def lam_params(a, vp2, want_coef):
    t = V.get(4)
    a('global_load_ushort %s, %s, %s' % (vr(t), vr(vp2), sr(P_LRE, 2)))
    a('global_load_ushort %s, %s, %s' % (vr(t + 1), vr(vp2), sr(P_LIM, 2)))
    a('global_load_ushort %s, %s, %s' % (vr(t + 2), vr(vp2), sr(P_LDT, 2)))
    return t


def lam_compute(a, t, want_coef, lam=None):
    if lam is None:
        lam = V.get(2)
    u = V.get(4)
    for i in range(3):
        a('v_lshlrev_b32 %s, 16, %s' % (vr(t + i), vr(t + i)))
    a('v_mul_f32 %s, 0x3fb8aa3b, %s' % (vr(t + 2), vr(t + 2)))
    a('v_exp_f32 %s, %s' % (vr(t + 2), vr(t + 2)))
    a('v_cvt_pk_bf16_f32 %s, %s, %s' % (vr(t + 2), vr(t + 2), vr(t + 2)))
    a('v_lshlrev_b32 %s, 16, %s' % (vr(t + 2), vr(t + 2)))
    a('v_mul_f32 %s, %s, %s' % (vr(u), vr(t + 2), vr(t)))
    a('v_mul_f32 %s, %s, %s' % (vr(u + 1), vr(t + 2), vr(t + 1)))
    a('v_mul_f32 %s, 0x3fb8aa3b, %s' % (vr(u), vr(u)))
    a('v_exp_f32 %s, %s' % (vr(u), vr(u)))
    a('v_mul_f32 %s, 0.15915494, %s' % (vr(u + 1), vr(u + 1)))
    a('v_rndne_f32 %s, %s' % (vr(u + 2), vr(u + 1)))
    a('v_sub_f32 %s, %s, %s' % (vr(u + 1), vr(u + 1), vr(u + 2)))
    a('v_cos_f32 %s, %s' % (vr(u + 2), vr(u + 1)))
    a('v_sin_f32 %s, %s' % (vr(u + 3), vr(u + 1)))
    a('v_mul_f32 %s, %s, %s' % (vr(lam), vr(u), vr(u + 2)))
    a('v_mul_f32 %s, %s, %s' % (vr(lam + 1), vr(u), vr(u + 3)))
    coef = None
    if want_coef:
        coef = V.get(2)
        a('v_add_f32 %s, -1.0, %s' % (vr(u), vr(lam)))
        a('v_mov_b32 %s, %s' % (vr(u + 1), vr(lam + 1)))
        a('v_mul_f32 %s, %s, %s' % (vr(u + 2), vr(t), vr(t)))
        a('v_fmac_f32 %s, %s, %s' % (vr(u + 2), vr(t + 1), vr(t + 1)))
        a('v_rcp_f32 %s, %s' % (vr(u + 2), vr(u + 2)))
        a('v_sub_f32 %s, 0, %s' % (vr(t + 1), vr(t + 1)))
        cmul(a, coef, u, t)
        a('v_mul_f32 %s, %s, %s' % (vr(coef), vr(coef), vr(u + 2)))
        a('v_mul_f32 %s, %s, %s' % (vr(coef + 1), vr(coef + 1), vr(u + 2)))
    V.put(u, 4)
    V.put(t, 4)
    return lam, coef


a = top
V_LANE = V.get()
V_TAG = V.get()
V_STAMP = V.get()
V_L16 = V.get()
V_N = V.get()
V_Q = V.get()
V_ZERO = V.get(4)
V_DUMMY = V.get(4)
BASE = V.get(20)
V_DSK = V.get(4)
V_FA = V.get(4)
LAM, L10, L20, L320, LQ80, LQ20, RB = [V.get(2) for _ in range(7)]
(V_TAU, V_ROWX, V_STW, V_STR, V_EXP9, V_TABW, V_DW, V_EW, V_ER, V_HW, V_HR, V_FX, V_TABR) = [V.get() for _ in range(13)]

a('s_cmp_ge_u32 s2, 256')
a('s_cbranch_scc1 L_end')
a('s_load_dwordx16 s[8:23], s[0:1], 0')
a('s_load_dwordx16 s[24:39], s[0:1], 64')
a('s_load_dwordx4 s[40:43], s[0:1], 128')
a('s_getpc_b64 %s' % sr(S_PC, 2))
a.label('L_pc')
a('v_and_b32 %s, 63, v0' % vr(V_LANE))
a('v_lshrrev_b32 %s, 6, v0' % vr(V_Q))
a('v_lshlrev_b32 %s, 4, %s' % (vr(V_L16), vr(V_LANE)))
a('v_readfirstlane_b32 %s, %s' % (sr(S_WAVE), vr(V_Q)))
a('s_lshr_b32 %s, s2, 3' % sr(S_T0))
a('s_lshl_b32 %s, %s, 12' % (sr(S_T1), sr(S_T0)))
a('v_lshl_add_u32 %s, v0, 4, %s' % (vr(V_DUMMY), sr(S_T1)))
a('s_mov_b32 %s, L_end-L_pc-16' % sr(S_T1))
a('v_min_u32 %s, %s, %s' % (vr(V_DUMMY), sr(S_T1), vr(V_DUMMY)))
a('global_load_dwordx4 %s, %s, %s' % (vr(V_DUMMY, 4), vr(V_DUMMY), sr(S_PC, 2)))
if OPT['stamps']:
    a('v_mov_b32 %s, 0' % vr(V_STAMP))
stamp(a, 'start')
a('v_and_b32 %s, 15, %s' % (vr(V_N), vr(V_LANE)))
a('v_lshrrev_b32 %s, 4, %s' % (vr(V_Q), vr(V_LANE)))
for i in range(4):
    a('v_mov_b32 %s, 0' % vr(V_ZERO + i))
a('s_and_b32 %s, s2, 7' % sr(S_T1))
a('s_mul_i32 %s, %s, 27' % (sr(S_T2), sr(S_T1)))
a('s_add_u32 %s, %s, %s' % (sr(S_T2), sr(S_T2), sr(S_T0)))
a('s_mul_i32 %s, %s, 5' % (sr(S_T3), sr(S_T1)))
a('s_add_u32 %s, %s, %s' % (sr(S_T3), sr(S_T3), sr(S_T0)))
a('s_add_u32 %s, %s, %d' % (sr(S_T3), sr(S_T3), 216 - 27))
a('s_cmp_lt_u32 %s, 27' % sr(S_T0))
a('s_cselect_b32 %s, %s, %s' % (sr(S_L), sr(S_T2), sr(S_T3)))
a('s_mul_i32 %s, %s, 57' % (sr(S_RB), sr(S_L)))
a('s_lshr_b32 %s, %s, 9' % (sr(S_RB), sr(S_RB)))
a('s_mul_i32 %s, %s, 9' % (sr(S_T0), sr(S_RB)))
a('s_sub_u32 %s, %s, %s' % (sr(S_CG), sr(S_L), sr(S_T0)))
a('s_mul_i32 %s, %s, 43' % (sr(S_T0), sr(S_RB)))
a('s_lshr_b32 %s, %s, 7' % (sr(S_T0), sr(S_T0)))
a('s_mul_i32 %s, %s, 3' % (sr(S_T0), sr(S_T0)))
a('s_sub_u32 %s, %s, %s' % (sr(S_T0), sr(S_RB), sr(S_T0)))
a('s_mul_i32 %s, %s, 3' % (sr(S_T0), sr(S_T0)))
a('s_add_u32 %s, %s, %s' % (sr(S_ROT), sr(S_CG), sr(S_T0)))
a('s_sub_u32 %s, %s, 9' % (sr(S_T0), sr(S_ROT)))
a('s_cmp_ge_u32 %s, 9' % sr(S_ROT))
a('s_cselect_b32 %s, %s, %s' % (sr(S_ROT), sr(S_T0), sr(S_ROT)))
for i in range(9):
    a('s_add_u32 %s, %s, %d' % (sr(S_KP + i), sr(S_ROT), i))
    a('s_sub_u32 %s, %s, 9' % (sr(S_T0), sr(S_KP + i)))
    a('s_cmp_ge_u32 %s, 9' % sr(S_KP + i))
    a('s_cselect_b32 %s, %s, %s' % (sr(S_KP + i), sr(S_T0), sr(S_KP + i)))
a('s_mov_b32 %s, %s' % (sr(S_PAIR), sr(S_L)))
a('s_mov_b32 %s, 0' % sr(S_ROUND))
a('s_waitcnt lgkmcnt(0)')
a('s_load_dword %s, %s, 0' % (sr(S_TAG), sr(P_WS, 2)))
srd(a, R_WS, P_WS, WS_SIZE)
srd(a, R_X, P_X, 2048 * 1152)
srd(a, R_K, P_K, 2048 * 1152)
srd(a, R_V, P_V, 2048 * 1152)
srd(a, R_OUT, P_OUT, 2048 * 2304)
a('s_cmp_ge_u32 %s, 234' % sr(S_L))
a('s_cbranch_scc1 L_aux')
srd(a, R_BRE, P_BRE, 576 * 1152)
srd(a, R_BIM, P_BIM, 576 * 1152)


def tag_ready(a):
    a('s_mul_i32 %s, %s, 0x9E3779B1' % (sr(S_TAG), sr(S_TAG)))
    a('s_add_u32 %s, %s, 0x7F4A7C15' % (sr(S_TAG), sr(S_TAG)))
    a('v_mov_b32 %s, %s' % (vr(V_TAG), sr(S_TAG)))


t = V.get()
a('v_and_b32 %s, 1, %s' % (vr(t), vr(V_Q)))
a('v_mul_u32_u24 %s, 10, %s' % (vr(V_TAU), vr(t)))
a('v_lshrrev_b32 %s, 1, %s' % (vr(t), vr(V_Q)))
a('v_add_u32 %s, %s, %s' % (vr(V_TAU), vr(V_TAU), vr(t)))
a('s_mul_i32 %s, %s, 20' % (sr(S_T0), sr(S_WAVE)))
a('v_add_u32 %s, %s, %s' % (vr(V_TAU), sr(S_T0), vr(V_TAU)))
a('s_mul_i32 %s, %s, 80' % (sr(S_T0), sr(S_RB)))
a('v_add_u32 %s, %s, %s' % (vr(t), sr(S_T0), vr(V_TAU)))
a('v_mul_u32_u24 %s, 1152, %s' % (vr(V_ROWX), vr(t)))
a('s_lshl_b32 %s, %s, 7' % (sr(S_T0), sr(S_CG)))
a('v_lshl_add_u32 %s, %s, 3, %s' % (vr(t), vr(V_N), sr(S_T0)))
a('v_add_u32 %s, %s, %s' % (vr(V_ROWX), vr(V_ROWX), vr(t)))
V_XS = V.get(10, 2)
for i in range(5):
    a('s_movk_i32 %s, %d' % (sr(S_T0), 2304 * i),
      'buffer_load_dwordx2 %s, %s, %s, %s offen' % (vr(V_XS + 2 * i, 2), vr(V_ROWX), sr(R_X, 4), sr(S_T0)))
a('global_load_dwordx2 %s, %s, %s' % (vr(V_DSK, 2), vr(t), sr(P_DSK, 2)))

V_KV = V.get()
V_KH = V.get()
t2 = V.get()
a('v_lshrrev_b32 %s, 3, %s' % (vr(t), vr(V_LANE)))
a('v_mul_u32_u24 %s, %d, %s' % (vr(V_KV), 10 * 1152, vr(t)))
a('v_and_b32 %s, 7, %s' % (vr(t), vr(V_LANE)))
a('s_lshl_b32 %s, %s, 7' % (sr(S_T0), sr(S_CG)))
a('s_lshl_b32 %s, %s, 5' % (sr(S_T1), sr(S_WAVE)))
a('s_add_u32 %s, %s, %s' % (sr(S_T0), sr(S_T0), sr(S_T1)))
a('v_lshl_add_u32 %s, %s, 2, %s' % (vr(t2), vr(t), sr(S_T0)))
a('s_mul_i32 %s, %s, %d' % (sr(S_T1), sr(S_RB), 80 * 1152))
a('v_add3_u32 %s, %s, %s, %s' % (vr(V_KV), vr(V_KV), vr(t2), sr(S_T1)))
a('v_subrev_u32 %s, %d, %s' % (vr(V_KH), 3 * 1152, vr(V_KV)))
KR = V.get(13, 1)
VR = V.get(10, 1)
SHK = V.get(4)
a('v_lshlrev_b32 %s, 2, %s' % (vr(t2), vr(t2)))
a('global_load_dwordx4 %s, %s, %s' % (vr(SHK, 4), vr(t2), sr(P_SHK, 2)))
for j in range(3):
    a('buffer_load_dword %s, %s, %s, 0 offen offset:%d' % (vr(KR + j), vr(V_KH), sr(R_K, 4), 1152 * j))
for j in range(10):
    a('s_movk_i32 %s, %d' % (sr(S_T0), 1152 * j),
      'buffer_load_dword %s, %s, %s, %s offen' % (vr(KR + 3 + j), vr(V_KV), sr(R_K, 4), sr(S_T0)),
      'buffer_load_dword %s, %s, %s, %s offen' % (vr(VR + j), vr(V_KV), sr(R_V, 4), sr(S_T0)))
V.put(V_KV)
V.put(V_KH)
a('s_lshl_b32 %s, %s, 7' % (sr(S_T0), sr(S_CG)))
a('s_lshl_b32 %s, %s, 5' % (sr(S_T1), sr(S_WAVE)))
a('s_add_u32 %s, %s, %s' % (sr(S_T0), sr(S_T0), sr(S_T1)))
a('v_lshl_add_u32 %s, %s, 1, %s' % (vr(t2), vr(V_N), sr(S_T0)))
LAMT = lam_params(a, t2, False)

V_DX = V.get()
V_DB = V.get(2)
c0 = V.get()
a('v_and_b32 %s, 7, %s' % (vr(t), vr(V_LANE)))
a('v_xor_b32 %s, %s, %s' % (vr(c0), vr(t), vr(V_Q)))
a('v_lshlrev_b32 %s, 4, %s' % (vr(c0), vr(c0)))
a('v_lshrrev_b32 %s, 3, %s' % (vr(t), vr(V_LANE)))
a('s_lshl_b32 %s, %s, 6' % (sr(S_T0), sr(S_CG)))
a('s_lshl_b32 %s, %s, 4' % (sr(S_T1), sr(S_WAVE)))
a('s_add_u32 %s, %s, %s' % (sr(S_T0), sr(S_T0), sr(S_T1)))
a('v_add_u32 %s, %s, %s' % (vr(t2), sr(S_T0), vr(t)))
a('v_mul_u32_u24 %s, 1152, %s' % (vr(t2), vr(t2)))
a('v_add_u32 %s, %s, %s' % (vr(V_DB), vr(t2), vr(c0)))
a('v_xor_b32 %s, 64, %s' % (vr(V_DB + 1), vr(c0)))
a('v_add_u32 %s, %s, %s' % (vr(V_DB + 1), vr(V_DB + 1), vr(t2)))
a('v_add_u32 %s, %d, %s' % (vr(V_DB + 1), 8 * 1152, vr(V_DB + 1)))
a('v_lshrrev_b32 %s, 5, %s' % (vr(t2), vr(V_LANE)))
a('v_mul_u32_u24 %s, 20, %s' % (vr(t2), vr(t2)))
a('v_and_b32 %s, 1, %s' % (vr(t), vr(t)))
a('v_mad_u32_u24 %s, %s, 10, %s' % (vr(t2), vr(t), vr(t2)))
a('v_and_b32 %s, 1, %s' % (vr(t), vr(V_Q)))
a('v_add_u32 %s, %s, %s' % (vr(t2), vr(t2), vr(t)))
a('s_and_b32 %s, %s, 1' % (sr(S_A), sr(S_WAVE)))
a('s_lshr_b32 %s, %s, 1' % (sr(S_B), sr(S_WAVE)))
a('s_mul_i32 %s, %s, 40' % (sr(S_T0), sr(S_A)))
a('s_mul_i32 %s, %s, 80' % (sr(S_T1), sr(S_RB)))
a('s_add_u32 %s, %s, %s' % (sr(S_T0), sr(S_T0), sr(S_T1)))
a('v_add_u32 %s, %s, %s' % (vr(t2), sr(S_T0), vr(t2)))
a('v_mul_u32_u24 %s, 1152, %s' % (vr(t2), vr(t2)))
a('s_lshl_b32 %s, %s, 6' % (sr(S_T0), sr(S_A)))
a('v_xor_b32 %s, %s, %s' % (vr(V_DX), sr(S_T0), vr(c0)))
a('v_add_u32 %s, %s, %s' % (vr(V_DX), vr(V_DX), vr(t2)))
V.put(c0)
V_FB = V.get(2)
a('v_lshrrev_b32 %s, 1, %s' % (vr(t), vr(V_N)))
a('v_xor_b32 %s, %s, %s' % (vr(t), vr(t), vr(V_Q)))
a('v_lshlrev_b32 %s, 4, %s' % (vr(t), vr(t)))
a('v_lshl_add_u32 %s, %s, 7, %s' % (vr(V_FA), vr(V_N), vr(t)))
a('v_xor_b32 %s, 64, %s' % (vr(V_FA + 1), vr(V_FA)))
a('v_add_u32 %s, 40960, %s' % (vr(V_FA + 2), vr(V_FA)))
a('v_add_u32 %s, 40960, %s' % (vr(V_FA + 3), vr(V_FA + 1)))
a('s_mul_i32 %s, %s, 12288' % (sr(S_T0), sr(S_WAVE)))
a('s_add_u32 %s, %s, %d' % (sr(S_T0), sr(S_T0), L_RING))
a('v_add_u32 %s, %s, %s' % (vr(V_FB), sr(S_T0), vr(V_FA)))
a('v_add_u32 %s, %s, %s' % (vr(V_FB + 1), sr(S_T0), vr(V_FA + 1)))
V.put(t)
V.put(t2)
V_PRIV = V.get()
V.put(V_PRIV)

WB = lambda kp, h, mat: ((kp * 2 + h) * 2 + mat) * 4


def img_dma_stream(layer):
    stages = []
    toks = []
    for k in range(5):
        s = Stream()
        tk = None
        nj = 5 if k < 4 else 3
        for j in range(nj):
            g = []
            if k < 4:
                g.append('s_cmp_eq_u32 %s, 0' % sr(S_B))
                g.append('s_cselect_b32 %s, %s, %s' % (sr(S_T2), sr(S_KP + 2 * k), sr(S_KP + 2 * k + 1)))
                g.append('s_mul_i32 %s, %s, 10240' % (sr(S_T3), sr(S_B)))
                lds_c = k * 20480 + j * 2048
                j2s = None
            else:
                g.append('s_mov_b32 %s, %s' % (sr(S_T2), sr(S_KP + 8)))
                g.append('s_lshl_b32 %s, %s, 12' % (sr(S_T3), sr(S_B)))
                lds_c = 8 * 10240 + j * 2048
            g.append('s_lshl_b32 %s, %s, 10' % (sr(S_C), sr(S_A)))
            g.append('s_add_u32 %s, %s, %s' % (sr(S_T3), sr(S_T3), sr(S_C)))
            g.append('s_add_u32 m0, %s, %d' % (sr(S_T3), L_IMG + lds_c))
            if layer == 0:
                g.append('s_lshl_b32 %s, %s, 7' % (sr(S_T2), sr(S_T2)))
                if k == 4:
                    g.append('s_mul_i32 %s, %s, 4608' % (sr(S_C), sr(S_B)))
                    g.append('s_add_u32 %s, %s, %s' % (sr(S_T2), sr(S_T2), sr(S_C)))
                g.append('s_add_u32 %s, %s, %d' % (sr(S_T2), sr(S_T2), j * 2304))
                g.append('buffer_load_dwordx4 %s, %s, %s offen lds' % (vr(V_DX), sr(R_X, 4), sr(S_T2)))
            else:
                g.append('s_mul_i32 %s, %s, 10240' % (sr(S_T2), sr(S_T2)))
                g.append('s_add_u32 %s, %s, %s' % (sr(S_T2), sr(S_T2), sr(S_C)))
                if k == 4:
                    g.append('s_lshl_b32 %s, %s, 12' % (sr(S_C), sr(S_B)))
                    g.append('s_add_u32 %s, %s, %s' % (sr(S_T2), sr(S_T2), sr(S_C)))
                g.append('s_add_u32 %s, %s, %d' % (sr(S_T2), sr(S_T2), j * 2048))
                g.append('buffer_load_dwordx4 %s, %s, %s offen sc1 lds' % (vr(V_DW), sr(R_WS, 4), sr(S_T2)))
            tk = s.mem(*g)
        stages.append(s)
        toks.append(tk)
    return stages, toks


def b_dma(s, kp):
    tk = None
    for b in range(4):
        tk = s.mem('s_mul_i32 %s, %s, 12288' % (sr(S_T3), sr(S_WAVE)),
                   's_add_u32 m0, %s, %d' % (sr(S_T3), L_RING + (kp % 3) * 4096 + b * 1024),
                   's_lshl_b32 %s, %s, 7' % (sr(S_T2), sr(S_KP + kp)),
                   'buffer_load_dwordx4 %s, %s, %s offen lds' % (vr(V_DB + (b & 1)), sr(R_BRE if b < 2 else R_BIM, 4), sr(S_T2)))
    return tk


def b_read(s, kp, tok):
    s.wait(tok)
    tk = None
    for h in range(2):
        for mat in range(2):
            tk = s.mem('ds_read_b128 %s, %s offset:%d' % (ar(WB(kp, h, mat), 4), vr(V_FB + h), (kp % 3) * 4096 + mat * 2048))
    return tk


def gemm_b_block(s, kp, ACC, AF, ONES, RBA, first):
    for h in range(2):
        base = V_FA + h + (2 if kp >= 4 else 0)
        off = kp * 10240 - (40960 if kp >= 4 else 0)
        for i in range(5):
            s('ds_read_b128 %s, %s offset:%d' % (vr(AF + h * 20 + i * 4, 4), vr(base), off + i * 2048))
    for h in range(2):
        z = first and h == 0
        if ONES is not None:
            for mat in range(2):
                s('v_mfma_f32_16x16x32_bf16 %s, %s, %s, %s' % (vr(RBA + mat * 4, 4), vr(ONES, 4), ar(WB(kp, h, mat), 4),
                                                              '0' if z else vr(RBA + mat * 4, 4)))
        for i in range(5):
            for mat in range(2):
                d = ACC + (mat * 5 + i) * 4
                s('v_mfma_f32_16x16x32_bf16 %s, %s, %s, %s' % (vr(d, 4), vr(AF + h * 20 + i * 4, 4), ar(WB(kp, h, mat), 4),
                                                              '0' if z else vr(d, 4)))


def kv_compute(s):
    W = V.get(8, 1)
    for j in range(4):
        src0 = SHK + (j >> 1)
        src1 = SHK + 2 + (j >> 1)
        if j & 1:
            s('v_lshrrev_b32 %s, 16, %s' % (vr(W + 2 * j), vr(src0)))
            s('v_and_b32 %s, 0xffff0000, %s' % (vr(W + 2 * j + 1), vr(src1)))
        else:
            s('v_and_b32 %s, 0xffff, %s' % (vr(W + 2 * j), vr(src0)))
            s('v_lshlrev_b32 %s, 16, %s' % (vr(W + 2 * j + 1), vr(src1)))
    ONE2 = V.get()
    s('v_mov_b32 %s, 0x3f803f80' % vr(ONE2))
    P = V.get(16, 1)
    KVv = V.get(4, 1)
    OUTP = V.get(10, 1)
    M = V.get(4, 1)
    for tp in range(5):
        idx = [(tt, ch) for tt in range(2) for ch in range(2)]
        for u, (tt, ch) in enumerate(idx):
            tq = 2 * tp + tt
            for j in range(4):
                s('v_dot2_f32_bf16 %s, %s, %s, 0' % (vr(P + u * 4 + j), vr(KR + 3 + tq - j), vr(W + 2 * j + ch)))
        for step in range(3):
            for u in range(4):
                s('v_cvt_pk_bf16_f32 %s, %s, %s' % (vr(P + u * 4 + 3), vr(P + u * 4 + 3), vr(P + u * 4 + 2 - step)))
            for u in range(4):
                s('v_dot2_f32_bf16 %s, %s, %s, 0' % (vr(P + u * 4 + 3), vr(P + u * 4 + 3), vr(ONE2)))
        for tt in range(2):
            tq = 2 * tp + tt
            s('v_and_b32 %s, 0xffff, %s' % (vr(M + 2 * tt), vr(VR + tq)))
            s('v_and_b32 %s, 0xffff0000, %s' % (vr(M + 2 * tt + 1), vr(VR + tq)))
        for tt in range(2):
            s('v_cvt_pk_bf16_f32 %s, %s, %s' % (vr(P + tt * 8), vr(P + tt * 8 + 3), vr(P + tt * 8 + 7)))
        for u, (tt, ch) in enumerate(idx):
            s('v_dot2_f32_bf16 %s, %s, %s, 0' % (vr(KVv + u), vr(P + tt * 8), vr(M + 2 * tt + ch)))
        for ch in range(2):
            s('v_cvt_pk_bf16_f32 %s, %s, %s' % (vr(OUTP + ch * 5 + tp), vr(KVv + 2 + ch), vr(KVv + ch)))
    for r, n in ((W, 8), (ONE2, 1), (P, 16), (KVv, 4), (M, 4), (KR, 13), (VR, 10), (SHK, 4)):
        V.put(r, n)
    ad = V.get()
    t = V.get()
    s('v_and_b32 %s, 7, %s' % (vr(t), vr(V_LANE)))
    s('v_mul_u32_u24 %s, 320, %s' % (vr(ad), vr(t)))
    s('v_lshrrev_b32 %s, 3, %s' % (vr(t), vr(V_LANE)))
    s('v_sub_u32 %s, 7, %s' % (vr(t), vr(t)))
    s('v_mad_u32_u24 %s, %s, 20, %s' % (vr(ad), vr(t), vr(ad)))
    s('s_mul_i32 %s, %s, 5120' % (sr(S_T0), sr(S_WAVE)),
      's_add_u32 %s, %s, %d' % (sr(S_T0), sr(S_T0), L_PRIV),
      'v_add_u32 %s, %s, %s' % (vr(ad), sr(S_T0), vr(ad)),
      'v_add_u32 %s, %s, %s' % (vr(t), sr(S_T0), vr(V_L16)))
    tk = None
    for ch in range(2):
        for tp in range(5):
            tk = s.mem('ds_write_b32 %s, %s offset:%d' % (vr(ad), vr(OUTP + ch * 5 + tp), ch * 160 + 4 * (4 - tp)))
    s.wait(tk)
    D = V.get(12)
    for i in range(3):
        s('ds_read_b128 %s, %s offset:%d' % (vr(D + 4 * i, 4), vr(t), i * 1024))
    toks = []
    u = V.get()
    q = V.get()
    for i in range(3):
        s('v_add_u32 %s, %d, %s' % (vr(u), 64 * i, vr(V_LANE)))
        s('v_mul_u32_u24 %s, 205, %s' % (vr(q), vr(u)))
        s('v_lshrrev_b32 %s, 11, %s' % (vr(q), vr(q)))
        s('v_mul_u32_u24 %s, %d, %s' % (vr(ad), KVT_STR - 160, vr(q)))
        s('v_lshl_add_u32 %s, %s, 4, %s' % (vr(ad), vr(u), vr(ad)))
        if i == 2:
            s('v_cmp_gt_u32 vcc, 32, %s' % vr(V_LANE),
              'v_mov_b32 %s, 0x%x' % (vr(q), OOB),
              'v_cndmask_b32 %s, %s, %s, vcc' % (vr(ad), vr(q), vr(ad)))
        toks.append(s.mem('s_lshl_b32 %s, %s, 2' % (sr(S_T0), sr(S_CG)),
                          's_add_u32 %s, %s, %s' % (sr(S_T0), sr(S_T0), sr(S_WAVE)),
                          's_mul_i32 %s, %s, %d' % (sr(S_T0), sr(S_T0), 16 * KVT_STR),
                          's_mul_i32 %s, %s, 160' % (sr(S_T1), sr(S_RB)),
                          's_sub_u32 %s, %s, %s' % (sr(S_T0), sr(S_T0), sr(S_T1)),
                          's_add_u32 %s, %s, %d' % (sr(S_T0), sr(S_T0), WS_KVT + 128 + 3936),
                          'buffer_store_dwordx4 %s, %s, %s, %s offen sc1' % (vr(D + 4 * i, 4), vr(ad), sr(R_WS, 4), sr(S_T0))))
    s.wait(*toks)
    s('s_lshl_b32 %s, %s, 2' % (sr(S_T0), sr(S_CG)),
      's_add_u32 %s, %s, %s' % (sr(S_T0), sr(S_T0), sr(S_WAVE)),
      's_lshl_b32 %s, %s, 5' % (sr(S_T0), sr(S_T0)),
      's_add_u32 %s, %s, %s' % (sr(S_T0), sr(S_T0), sr(S_RB)),
      's_lshl_b32 %s, %s, 2' % (sr(S_T0), sr(S_T0)),
      's_add_u32 %s, %s, %d' % (sr(S_T0), sr(S_T0), WS_KVF),
      's_mov_b64 exec, 1',
      'buffer_store_dword %s, %s, %s, %s offen sc1' % (vr(V_TAG), vr(V_ZERO), sr(R_WS, 4), sr(S_T0)),
      's_mov_b64 exec, -1')
    for r, n in ((OUTP, 10), (ad, 1), (t, 1), (D, 12), (u, 1), (q, 1)):
        V.put(r, n)


def stats_publish(s, X, which):
    m = V.get(5, 1)
    q = V.get(5, 1)
    d = V.get(4)
    for i in range(5):
        s('v_pk_add_f32 %s, %s, %s' % (vr(d, 2), vr(X + 4 * i, 2), vr(X + 4 * i + 2, 2)),
          'v_add_f32 %s, %s, %s' % (vr(m + i), vr(d), vr(d + 1)))
    row_allreduce(s, [m + i for i in range(5)])
    for i in range(5):
        s('v_mul_f32 %s, 0x3c800000, %s' % (vr(m + i), vr(m + i)))
    for i in range(5):
        s('v_sub_f32 %s, %s, %s' % (vr(d), vr(X + 4 * i), vr(m + i)),
          'v_sub_f32 %s, %s, %s' % (vr(d + 1), vr(X + 4 * i + 1), vr(m + i)),
          'v_sub_f32 %s, %s, %s' % (vr(d + 2), vr(X + 4 * i + 2), vr(m + i)),
          'v_sub_f32 %s, %s, %s' % (vr(d + 3), vr(X + 4 * i + 3), vr(m + i)),
          'v_pk_mul_f32 %s, %s, %s' % (vr(d, 2), vr(d, 2), vr(d, 2)),
          'v_pk_fma_f32 %s, %s, %s, %s' % (vr(d, 2), vr(d + 2, 2), vr(d + 2, 2), vr(d, 2)),
          'v_add_f32 %s, %s, %s' % (vr(q + i), vr(d), vr(d + 1)))
    row_allreduce(s, [q + i for i in range(5)])
    s('v_mov_b32 %s, %s' % (vr(d), vr(m)), 'v_mov_b32 %s, %s' % (vr(d + 2), vr(q)))
    for i in range(1, 5):
        s('v_cmp_eq_u32 vcc, %d, %s' % (i, vr(V_N)),
          'v_cndmask_b32 %s, %s, %s, vcc' % (vr(d), vr(d), vr(m + i)),
          'v_cndmask_b32 %s, %s, %s, vcc' % (vr(d + 2), vr(d + 2), vr(q + i)))
    s('v_mov_b32 %s, %s' % (vr(d + 1), vr(V_TAG)), 'v_mov_b32 %s, %s' % (vr(d + 3), vr(V_TAG)))
    tk = s.mem('s_mov_b32 %s, %d' % (sr(S_T0), WS_ST + which * 26 * 20480),
               'buffer_store_dwordx4 %s, %s, %s, %s offen sc1' % (vr(d, 4), vr(V_STW), sr(R_WS, 4), sr(S_T0)))
    s('s_nop 1')
    V.put(m, 5)
    V.put(q, 5)
    V.put(d, 4)
    return tk


def stats_gather(s, which):
    G = V.get(20)
    loads, checks = [], []
    s('s_mov_b32 %s, %d' % (sr(S_T0), WS_ST + which * 26 * 20480))
    s('s_mov_b32 %s, %d' % (sr(S_T1), WS_ST + which * 26 * 20480 + 8192))
    s('s_mov_b32 %s, %d' % (sr(S_T2), WS_ST + which * 26 * 20480 + 16384))
    s('s_mov_b32 %s, %d' % (sr(S_T3), WS_ST + which * 26 * 20480 + 4096))
    s('s_mov_b32 %s, %d' % (sr(S_C), WS_ST + which * 26 * 20480 + 12288))
    so = [S_T0, S_T3, S_T1, S_C, S_T2]
    for i in range(5):
        loads.append('buffer_load_dwordx4 %s, %s, %s, %s offen sc1' % (vr(G + 4 * i, 4), vr(V_STR), sr(R_WS, 4), sr(so[i])))
        checks += [(G + 4 * i + 1, V_EXP9), (G + 4 * i + 3, V_EXP9)]
    poll(s, loads, checks)
    MU = V.get(5, 1)
    VA = V.get(5, 1)
    for i in range(5):
        s('v_mov_b32 %s, %s' % (vr(MU + i), vr(G + 4 * i)))
    row_allreduce(s, [MU + i for i in range(5)])
    s('v_cmp_gt_u32 vcc, 9, %s' % vr(V_N))
    for i in range(5):
        s('v_mul_f32 %s, 0x3de38e39, %s' % (vr(MU + i), vr(MU + i)))
    for i in range(5):
        s('v_sub_f32 %s, %s, %s' % (vr(G + 4 * i), vr(G + 4 * i), vr(MU + i)))
    for i in range(5):
        s('v_cndmask_b32 %s, 0, %s, vcc' % (vr(G + 4 * i), vr(G + 4 * i)))
    for i in range(5):
        s('v_mul_f32 %s, 0x42800000, %s' % (vr(G + 4 * i + 1), vr(G + 4 * i)))
    for i in range(5):
        s('v_fma_f32 %s, %s, %s, %s' % (vr(VA + i), vr(G + 4 * i + 1), vr(G + 4 * i), vr(G + 4 * i + 2)))
    row_allreduce(s, [VA + i for i in range(5)])
    for i in range(5):
        s('v_mul_f32 %s, 0x3ae38e39, %s' % (vr(VA + i), vr(VA + i)))
    V.put(G, 20)
    return MU, VA


def rbf(s, regs):
    for r in regs:
        s('v_cvt_pk_bf16_f32 %s, %s, %s' % (vr(r), vr(r), vr(r)))
    for r in regs:
        s('v_lshlrev_b32 %s, 16, %s' % (vr(r), vr(r)))


def table_write(s, RS, MR):
    d = V.get(2)
    s('v_mov_b32 %s, %s' % (vr(d), vr(RS)), 'v_mov_b32 %s, %s' % (vr(d + 1), vr(MR)))
    for i in range(1, 5):
        s('v_cmp_eq_u32 vcc, %d, %s' % (i, vr(V_N)),
          'v_cndmask_b32 %s, %s, %s, vcc' % (vr(d), vr(d), vr(RS + i)),
          'v_cndmask_b32 %s, %s, %s, vcc' % (vr(d + 1), vr(d + 1), vr(MR + i)))
    tk = s.mem('v_cmp_gt_u32 vcc, 5, %s' % vr(V_N),
               's_mov_b64 exec, vcc',
               'ds_write2_b32 %s, %s, %s offset0:0 offset1:2' % (vr(V_TABW), vr(d), vr(d + 1)))
    s('s_mov_b64 exec, -1')
    V.put(d, 2)
    return tk


def addr_setup(s):
    t = V.get()
    o = V.get()
    s('v_mov_b32 %s, 0x%x' % (vr(o), OOB))
    s('s_mul_i32 %s, %s, 80' % (sr(S_T0), sr(S_RB)),
      's_lshl_b32 %s, %s, 2' % (sr(S_T1), sr(S_WAVE)),
      's_add_u32 %s, %s, %s' % (sr(S_T0), sr(S_T0), sr(S_T1)),
      'v_add_u32 %s, %s, %s' % (vr(t), sr(S_T0), vr(V_Q)))
    s('v_lshlrev_b32 %s, 8, %s' % (vr(t), vr(t)))
    s('v_lshl_add_u32 %s, %s, 4, %s' % (vr(V_STR), vr(V_N), vr(t)))
    s('v_cmp_gt_u32 vcc, 9, %s' % vr(V_N),
      'v_cndmask_b32 %s, %s, %s, vcc' % (vr(V_STR), vr(o), vr(V_STR)),
      'v_cndmask_b32 %s, 0, %s, vcc' % (vr(V_EXP9), vr(V_TAG)))
    s('v_lshl_add_u32 %s, %s, 12, %s' % (vr(V_STW), vr(V_N), vr(t)))
    s('s_lshl_b32 %s, %s, 4' % (sr(S_T0), sr(S_CG)),
      'v_add_u32 %s, %s, %s' % (vr(V_STW), sr(S_T0), vr(V_STW)))
    s('v_cmp_gt_u32 vcc, 5, %s' % vr(V_N),
      'v_cndmask_b32 %s, %s, %s, vcc' % (vr(V_STW), vr(o), vr(V_STW)))
    s('v_lshrrev_b32 %s, 1, %s' % (vr(t), vr(V_Q)))
    s('v_lshl_add_u32 %s, %s, 1, %s' % (vr(t), vr(V_N), vr(t)))
    s('v_lshlrev_b32 %s, 4, %s' % (vr(t), vr(t)))
    s('v_and_b32 %s, 1, %s' % (vr(V_TABW), vr(V_Q)))
    s('v_lshl_add_u32 %s, %s, 2, %s' % (vr(V_TABW), vr(V_TABW), vr(t)))
    s('s_mul_i32 %s, %s, 160' % (sr(S_T0), sr(S_WAVE)),
      's_add_u32 %s, %s, %d' % (sr(S_T0), sr(S_T0), L_TAB),
      'v_add_u32 %s, %s, %s' % (vr(V_TABW), sr(S_T0), vr(V_TABW)))
    s('s_mul_i32 %s, %s, 92160' % (sr(S_T0), sr(S_RB)),
      's_add_u32 %s, %s, %d' % (sr(S_T0), sr(S_T0), WS_W),
      'v_add_u32 %s, %s, %s' % (vr(V_DW), sr(S_T0), vr(V_L16)))
    V.put(t)
    V.put(o)


ACC = V.get(40)
RBA = V.get(8)
AF = V.get(40)
ONES = V.get(4)

xst, xtk = img_dma_stream(0)
btk = {}
a.extend(xst[0])
btk[0] = b_dma(a, 0)
btk[1] = b_dma(a, 1)
a.extend(xst[1])
btk[2] = b_dma(a, 2)
stamp(a, 'issued')

side = Stream()
tag_ready(side)
addr_setup(side)
for i in range(5):
    for k in range(2):
        side('v_lshlrev_b32 %s, 16, %s' % (vr(BASE + 4 * i + 2 * k), vr(V_XS + 2 * i + k)))
        side('v_and_b32 %s, 0xffff0000, %s' % (vr(BASE + 4 * i + 2 * k + 1), vr(V_XS + 2 * i + k)))
V.put(V_XS, 10)
stats_publish(side, BASE, 0)
kv_compute(side)
lam_compute(side, LAMT, False, LAM)
L2, L4, L8, L40, L80, L160, L240, L60 = [V.get(2) for _ in range(8)]
cmul(side, L2, LAM, LAM)
cmul(side, L4, L2, L2)
cmul(side, L8, L4, L4)
cmul(side, L10, L8, L2)
cmul(side, L20, L10, L10)
cmul(side, L40, L20, L20)
cmul(side, L60, L40, L20)
cmul(side, L80, L40, L40)
cmul(side, L160, L80, L80)
cmul(side, L240, L160, L80)
cmul(side, L320, L160, L160)
for (dst, opts) in ((LQ80, (L80, L160, L240)), (LQ20, (L20, L40, L60))):
    side('v_mov_b32 %s, 1.0' % vr(dst), 'v_mov_b32 %s, 0' % vr(dst + 1))
    for qi, o in enumerate(opts):
        side('v_cmp_eq_u32 vcc, %d, %s' % (qi + 1, vr(V_Q)),
             'v_cndmask_b32 %s, %s, %s, vcc' % (vr(dst), vr(dst), vr(o)),
             'v_cndmask_b32 %s, %s, %s, vcc' % (vr(dst + 1), vr(dst + 1), vr(o + 1)))
for r in (L2, L4, L8, L40, L60, L80, L160, L240):
    V.put(r, 2)
side('v_and_b32 %s, 0xffff0000, %s' % (vr(V_DSK + 3), vr(V_DSK + 1)))
side('v_lshlrev_b32 %s, 16, %s' % (vr(V_DSK + 2), vr(V_DSK + 1)))
side('v_and_b32 %s, 0xffff0000, %s' % (vr(V_DSK + 1), vr(V_DSK)))
side('v_lshlrev_b32 %s, 16, %s' % (vr(V_DSK), vr(V_DSK)))

for i in range(4):
    a('v_mov_b32 %s, 0x3f803f80' % vr(ONES + i))
a.extend(side)
stamp(a, 'side')


def ln_table(s, layer):
    MU, VA = stats_gather(s, 0 if layer == 0 else 2)
    RS = V.get(5, 1)
    MR = V.get(5, 1)
    tmp = V.get(4)
    if layer == 0:
        rbf(s, [MU + i for i in range(5)] + [VA + i for i in range(5)])
        for i in range(5):
            s('v_add_f32 %s, 0x3727c5ac, %s' % (vr(VA + i), vr(VA + i)))
        rbf(s, [VA + i for i in range(5)])
        for i in range(5):
            s('v_sqrt_f32 %s, %s' % (vr(VA + i), vr(VA + i)))
        rbf(s, [VA + i for i in range(5)])
        for i in range(5):
            s('v_rcp_f32 %s, %s' % (vr(RS + i), vr(VA + i)))
    else:
        for i in range(5):
            s('v_add_f32 %s, 0x3727c5ac, %s' % (vr(VA + i), vr(VA + i)))
        for i in range(5):
            s('v_rsq_f32 %s, %s' % (vr(RS + i), vr(VA + i)))
    for i in range(5):
        s('v_mul_f32 %s, %s, %s' % (vr(MR + i), vr(MU + i), vr(RS + i)))
    tk = table_write(s, RS, MR)
    for i in range(5):
        for k in range(4):
            s('v_sub_f32 %s, %s, %s' % (vr(tmp + k), vr(BASE + 4 * i + k), vr(MU + i)))
        if layer == 0:
            rbf(s, [tmp + k for k in range(4)])
        for k in range(4):
            s('v_mul_f32 %s, %s, %s' % (vr(tmp + k), vr(tmp + k), vr(RS + i)))
        if layer == 0:
            rbf(s, [tmp + k for k in range(4)])
            for k in range(2):
                s('v_pk_mul_f32 %s, %s, %s' % (vr(tmp + 2 * k, 2), vr(tmp + 2 * k, 2), vr(V_DSK + 2 * k, 2)))
            rbf(s, [tmp + k for k in range(4)])
            for k in range(2):
                s('v_pk_add_f32 %s, %s, %s' % (vr(BASE + 4 * i + 2 * k, 2), vr(BASE + 4 * i + 2 * k, 2), vr(tmp + 2 * k, 2)))
        else:
            for k in range(2):
                s('v_pk_fma_f32 %s, %s, %s, %s' % (vr(BASE + 4 * i + 2 * k, 2), vr(tmp + 2 * k, 2), vr(V_DSK + 2 * k, 2),
                                                   vr(BASE + 4 * i + 2 * k, 2)))
            for k in range(4):
                s('v_add_f32 %s, %s, %s' % (vr(BASE + 4 * i + k), vr(BASE + 4 * i + k), vr(MU1 + i)))
    for r, n in ((MU, 5), (VA, 5), (RS, 5), (MR, 5), (tmp, 4)):
        V.put(r, n)
    return tk


for k in range(5):
    blocks = [2 * k, 2 * k + 1] if k < 4 else [8]
    for kp in blocks:
        rt = b_read(a, kp, btk[kp])
        if kp + 3 < 9:
            a.wait(rt)
            btk[kp + 3] = b_dma(a, kp + 3)
    if k + 2 < 5:
        a.extend(xst[k + 2])
    if k == 4:
        ttk = ln_table(a, 0)
        a.wait(ttk)
    a.wait(xtk[k])
    a('s_barrier')
    for kp in blocks:
        gemm_b_block(a, kp, ACC, AF, ONES, RBA, kp == 0)
stamp(a, 'gemmB1')
V.put(ONES, 4)
a('v_mov_b32 %s, %s' % (vr(RB), vr(RBA)))
a('v_mov_b32 %s, %s' % (vr(RB + 1), vr(RBA + 4)))
V.put(RBA, 8)
V.put(V_DB, 2)
V.put(V_FB, 2)
V.put(V_DX)

t = V.get()
a('s_lshl_b32 %s, %s, 8' % (sr(S_T0), sr(S_RB)))
a('v_lshl_add_u32 %s, %s, 4, %s' % (vr(V_EW), vr(V_N), sr(S_T0)))
a('v_lshlrev_b32 %s, 8, %s' % (vr(t), vr(V_Q)))
a('v_sub_u32 %s, %s, %s' % (vr(V_ER), vr(V_EW), vr(t)))
a('v_subrev_u32 %s, 256, %s' % (vr(V_ER), vr(V_ER)))
a('v_mov_b32 %s, 0x%x' % (vr(t), OOB))
a('v_cmp_gt_u32 vcc, 16, %s' % vr(V_LANE))
a('v_cndmask_b32 %s, %s, %s, vcc' % (vr(V_EW), vr(t), vr(V_EW)))
a('s_mul_i32 %s, %s, 5120' % (sr(S_T0), sr(S_WAVE)))
a('s_add_u32 %s, %s, %d' % (sr(S_T0), sr(S_T0), L_PRIV))
a('v_lshlrev_b32 %s, 8, %s' % (vr(t), vr(V_Q)))
a('v_lshl_add_u32 %s, %s, 2, %s' % (vr(t), vr(V_N), vr(t)))
a('v_add_u32 %s, %s, %s' % (vr(V_HW), sr(S_T0), vr(t)))
a('v_lshlrev_b32 %s, 4, %s' % (vr(t), vr(V_Q)))
a('v_lshl_add_u32 %s, %s, 6, %s' % (vr(t), vr(V_N), vr(t)))
a('v_add_u32 %s, %s, %s' % (vr(V_HR), sr(S_T0), vr(t)))
a('v_lshlrev_b32 %s, 5, %s' % (vr(t), vr(V_N)))
a('v_add_u32 %s, %s, %s' % (vr(V_FX), sr(S_T0), vr(t)))
V.put(t)


def scan_phase(a, layer, mid=None):
    re = lambda j: ACC + (j >> 1) * 4 + (j & 1) * 2
    im = lambda j: ACC + 20 + (j >> 1) * 4 + (j & 1) * 2
    TB = AF
    for j in range(10):
        a('ds_read_b128 %s, %s offset:%d' % (vr(TB + 4 * j, 4), vr(V_TABR), 16 * j))
    for j in range(10):
        a('v_pk_mul_f32 %s, %s, %s' % (vr(re(j), 2), vr(re(j), 2), vr(TB + 4 * j, 2)))
        a('v_pk_mul_f32 %s, %s, %s' % (vr(im(j), 2), vr(im(j), 2), vr(TB + 4 * j, 2)))
        a('v_pk_fma_f32 %s, %s, %s, %s op_sel:[0,0,0] op_sel_hi:[1,0,1] neg_lo:[1,0,0] neg_hi:[1,0,0]' %
          (vr(re(j), 2), vr(TB + 4 * j + 2, 2), vr(RB, 2), vr(re(j), 2)))
        a('v_pk_fma_f32 %s, %s, %s, %s op_sel:[0,1,0] op_sel_hi:[1,1,1] neg_lo:[1,0,0] neg_hi:[1,0,0]' %
          (vr(im(j), 2), vr(TB + 4 * j + 2, 2), vr(RB, 2), vr(im(j), 2)))

    def step(dr, di, pr, pi, br, bi):
        a('v_pk_fma_f32 %s, %s, %s, %s op_sel:[0,0,0] op_sel_hi:[1,0,1]' % (vr(dr, 2), vr(pr, 2), vr(LAM, 2), vr(br, 2)))
        a('v_pk_fma_f32 %s, %s, %s, %s op_sel:[0,0,0] op_sel_hi:[1,0,1]' % (vr(di, 2), vr(pi, 2), vr(LAM, 2), vr(bi, 2)))
        a('v_pk_fma_f32 %s, %s, %s, %s op_sel:[0,1,0] op_sel_hi:[1,1,1] neg_lo:[1,0,0] neg_hi:[1,0,0]' %
          (vr(dr, 2), vr(pi, 2), vr(LAM, 2), vr(dr, 2)))
        a('v_pk_fma_f32 %s, %s, %s, %s op_sel:[0,1,0] op_sel_hi:[1,1,1]' % (vr(di, 2), vr(pr, 2), vr(LAM, 2), vr(di, 2)))

    E = V.get(8)
    pr, pi = re(0), im(0)
    for j in range(1, 10):
        dr, di = E + (j & 1) * 4, E + (j & 1) * 4 + 2
        step(dr, di, pr, pi, re(j), im(j))
        pr, pi = dr, di
    EA = V.get(2)
    F = V.get(2)
    a('v_mov_b32 %s, %s' % (vr(EA), vr(pr)))
    a('v_mov_b32 %s, %s' % (vr(EA + 1), vr(pi)))
    a('v_mov_b32 %s, %s' % (vr(F), vr(pr + 1)))
    a('v_mov_b32 %s, %s' % (vr(F + 1), vr(pi + 1)))
    cfma(a, F, EA, L10, F)
    t = V.get()
    a('v_lshl_add_u32 %s, %s, 3, %s' % (vr(t), vr(V_Q), vr(V_FX)))
    tk = a.mem('ds_write_b64 %s, %s' % (vr(t), vr(F, 2)))
    V.put(t)
    a.wait(tk)
    FA = E
    a('ds_read_b128 %s, %s' % (vr(FA, 4), vr(V_FX)))
    a('ds_read_b128 %s, %s offset:16' % (vr(FA + 4, 4), vr(V_FX)))
    cfma(a, FA + 2, FA, L20, FA + 2)
    cfma(a, FA + 4, FA + 2, L20, FA + 4)
    cfma(a, FA + 6, FA + 4, L20, FA + 6)
    pub = V.get(4)
    a('v_mov_b32 %s, %s' % (vr(pub), vr(FA + 6)))
    a('v_mov_b32 %s, %s' % (vr(pub + 1), vr(V_TAG)))
    a('v_mov_b32 %s, %s' % (vr(pub + 2), vr(FA + 7)))
    a('v_mov_b32 %s, %s' % (vr(pub + 3), vr(V_TAG)))
    a('s_lshl_b32 %s, %s, 2' % (sr(S_T0), sr(S_CG)))
    a('s_add_u32 %s, %s, %s' % (sr(S_T0), sr(S_T0), sr(S_WAVE)))
    a('s_lshl_b32 %s, %s, 13' % (sr(S_T0), sr(S_T0)))
    a('s_add_u32 %s, %s, %d' % (sr(S_T0), sr(S_T0), WS_E + layer * 36 * 8192))
    a('buffer_store_dwordx4 %s, %s, %s, %s offen sc1' % (vr(pub, 4), vr(V_EW), sr(R_WS, 4), sr(S_T0)))
    stamp(a, 'e_pub%d' % layer)
    PQ = F
    a('v_mov_b32 %s, 0' % vr(PQ))
    a('v_mov_b32 %s, 0' % vr(PQ + 1))
    for qi in range(1, 4):
        a('v_cmp_eq_u32 vcc, %d, %s' % (qi, vr(V_Q)),
          'v_cndmask_b32 %s, %s, %s, vcc' % (vr(PQ), vr(PQ), vr(FA + 2 * qi - 2)),
          'v_cndmask_b32 %s, %s, %s, vcc' % (vr(PQ + 1), vr(PQ + 1), vr(FA + 2 * qi - 1)))
    V.put(pub, 4)
    if mid is not None:
        mid(a)
        a('s_lshl_b32 %s, %s, 2' % (sr(S_T0), sr(S_CG)))
        a('s_add_u32 %s, %s, %s' % (sr(S_T0), sr(S_T0), sr(S_WAVE)))
        a('s_lshl_b32 %s, %s, 13' % (sr(S_T0), sr(S_T0)))
        a('s_add_u32 %s, %s, %d' % (sr(S_T0), sr(S_T0), WS_E + layer * 36 * 8192))
    CG_ = TB
    AD = V.get(7, 1)
    EX = V.get(7, 1)
    o = V.get()
    a('v_mov_b32 %s, 0x%x' % (vr(o), OOB))
    for j in range(7):
        a('v_subrev_u32 %s, %d, %s' % (vr(AD + j), 1024 * j, vr(V_ER)))
        a('v_cmp_le_i32 vcc, 0, %s' % vr(AD + j),
          'v_cndmask_b32 %s, %s, %s, vcc' % (vr(AD + j), vr(o), vr(AD + j)),
          'v_cndmask_b32 %s, 0, %s, vcc' % (vr(EX + j), vr(V_TAG)))
    V.put(o)
    loads, checks = [], []
    for j in range(7):
        loads.append('buffer_load_dwordx4 %s, %s, %s, %s offen sc1' % (vr(CG_ + 4 * j, 4), vr(AD + j), sr(R_WS, 4), sr(S_T0)))
        checks += [(CG_ + 4 * j + 1, EX + j), (CG_ + 4 * j + 3, EX + j)]
    poll(a, loads, checks)
    stamp(a, 'carry%d' % layer)
    V.put(AD, 7)
    V.put(EX, 7)
    for j in range(7):
        a('v_mov_b32 %s, %s' % (vr(CG_ + 4 * j + 1), vr(CG_ + 4 * j + 2)))
    for j in range(5, -1, -1):
        cfma(a, CG_ + 4 * j, CG_ + 4 * j + 4, L320, CG_ + 4 * j)
    H = V.get(2)
    Y = V.get(2)
    cmul(a, H, CG_, LQ80)
    for sw in ('v_permlane32_swap_b32', 'v_permlane16_swap_b32'):
        a('v_mov_b32 %s, %s' % (vr(Y), vr(H)))
        a('v_mov_b32 %s, %s' % (vr(Y + 1), vr(H + 1)))
        a('%s %s, %s' % (sw, vr(H), vr(Y)))
        a('%s %s, %s' % (sw, vr(H + 1), vr(Y + 1)))
        a('v_pk_add_f32 %s, %s, %s' % (vr(H, 2), vr(H, 2), vr(Y, 2)))
    cfma(a, PQ, H, LQ20, PQ)
    cfma(a, EA, PQ, L10, EA)
    a('v_mov_b32 %s, %s' % (vr(H), vr(PQ)))
    a('v_mov_b32 %s, %s' % (vr(H + 1), vr(EA)))
    a('v_mov_b32 %s, %s' % (vr(Y), vr(PQ + 1)))
    a('v_mov_b32 %s, %s' % (vr(Y + 1), vr(EA + 1)))
    pr, pi = H, Y
    PK = TB
    tk = None
    for j in range(10):
        step(re(j), im(j), pr, pi, re(j), im(j))
        pr, pi = re(j), im(j)
        for hf in range(2):
            r = (j & 1) * 2 + hf
            a('v_cvt_pk_bf16_f32 %s, %s, %s' % (vr(PK + 2 * j + hf), vr(re(j) + hf), vr(im(j) + hf)))
            tk = a.mem('ds_write_b32 %s, %s offset:%d' % (vr(V_HW), vr(PK + 2 * j + hf), (j >> 1) * 1024 + r * 64))
    a.wait(tk)
    HO = TB + 20
    for i in range(5):
        a('ds_read_b128 %s, %s offset:%d' % (vr(HO + 4 * i, 4), vr(V_HR), i * 1024))
    a('s_mul_i32 %s, %s, 36' % (sr(S_T0), sr(S_RB)))
    a('s_lshl_b32 %s, %s, 2' % (sr(S_T1), sr(S_CG)))
    a('s_add_u32 %s, %s, %s' % (sr(S_T0), sr(S_T0), sr(S_T1)))
    a('s_add_u32 %s, %s, %s' % (sr(S_T0), sr(S_T0), sr(S_WAVE)))
    a('s_mul_i32 %s, %s, 5120' % (sr(S_T0), sr(S_T0)))
    a('s_add_u32 %s, %s, %d' % (sr(S_T0), sr(S_T0), WS_H + layer * 26 * 184320))
    a('s_add_u32 %s, %s, 4096' % (sr(S_T1), sr(S_T0)))
    toks = []
    for i in range(5):
        toks.append(a.mem('buffer_store_dwordx4 %s, %s, %s, %s offen offset:%d sc1' %
                          (vr(HO + 4 * i, 4), vr(V_L16), sr(R_WS, 4), sr(S_T0 if i < 4 else S_T1), (i & 3) * 1024)))
    a('s_lshl_b32 %s, %s, 2' % (sr(S_T0), sr(S_RB)))
    a('s_add_u32 %s, %s, %s' % (sr(S_T0), sr(S_T0), sr(S_WAVE)))
    a('s_lshl_b32 %s, %s, 4' % (sr(S_T0), sr(S_T0)))
    a('s_add_u32 %s, %s, %s' % (sr(S_T0), sr(S_T0), sr(S_CG)))
    a('s_lshl_b32 %s, %s, 2' % (sr(S_T0), sr(S_T0)))
    a('s_add_u32 %s, %s, %d' % (sr(S_T0), sr(S_T0), WS_HF + layer * 26 * 256))
    flag_store(a, V_ZERO, sr(S_T0), toks)
    stamp(a, 'h_pub%d' % layer)
    for r, n in ((E, 8), (EA, 2), (F, 2), (H, 2), (Y, 2)):
        V.put(r, n)


a('v_mul_u32_u24 %s, 160, %s' % (vr(V_TABR), vr(V_Q)))
a('v_add_u32 %s, %d, %s' % (vr(V_TABR), L_TAB, vr(V_TABR)))
scan_phase(a, 0)

if OPT['stop'] <= 1:
    a('s_branch L_fin')

V.put(ACC, 40)
V.put(AF, 40)
a.fence()
a.label('L_conv')


def conv_routine(a):
    a('s_barrier')
    a('s_lshl_b32 %s, %s, 1' % (sr(S_T0), sr(S_PAIR)))
    a('s_add_u32 %s, %s, %s' % (sr(S_T0), sr(S_T0), sr(S_B)))
    a('s_lshl_b32 %s, %s, 12' % (sr(S_T1), sr(S_T0)))
    a('s_add_u32 %s, %s, %s' % (sr(R_SK), sr(P_SSK), sr(S_T1)))
    a('s_addc_u32 %s, %s, 0' % (sr(R_SK + 1), sr(P_SSK + 1)))
    a('s_and_b32 %s, %s, 0xffff' % (sr(R_SK + 1), sr(R_SK + 1)))
    a('s_mov_b32 %s, 4096' % sr(R_SK + 2))
    a('s_mov_b32 %s, 0x20000' % sr(R_SK + 3))
    SD = V.get(2)
    t = V.get()
    a('s_lshl_b32 %s, %s, 2' % (sr(S_T1), sr(S_PAIR)))
    a('v_mov_b32 %s, %s' % (vr(t), sr(S_T1)))
    a('global_load_dword %s, %s, %s' % (vr(SD), vr(t), sr(P_SSD, 2)))
    HD = V.get()
    a('v_add_u32 %s, %s, %s' % (vr(t), vr(V_N), vr(V_Q)))
    a('v_subrev_u32 %s, 16, %s' % (vr(t), vr(t)))
    a('v_lshlrev_b32 %s, 2, %s' % (vr(t), vr(t)))
    a('buffer_load_dword %s, %s, %s, 0 offen' % (vr(HD), vr(t), sr(R_SK, 4)))
    ktk = None
    a('s_mul_i32 %s, %s, %d' % (sr(S_T2), sr(S_B), KC_CH))
    for c in range(2):
        if c == 0:
            a('s_mul_i32 %s, %s, %d' % (sr(S_T3), sr(S_A), 16 + 8320))
            a('s_add_u32 %s, %s, %s' % (sr(S_T3), sr(S_T3), sr(S_T2)))
            a('s_add_u32 m0, %s, %d' % (sr(S_T3), L_KC + 64))
            a('s_lshl_b32 %s, %s, 3' % (sr(S_T1), sr(S_A)))
        else:
            a('s_mul_i32 %s, %s, 8320' % (sr(S_T3), sr(S_A)))
            a('s_add_u32 %s, %s, %s' % (sr(S_T3), sr(S_T3), sr(S_T2)))
            a('s_add_u32 m0, %s, %d' % (sr(S_T3), L_KC + 64 + 16 + 4160))
            a('s_add_u32 %s, %s, 4' % (sr(S_T1), sr(S_T1)))
        for part in range(4):
            ktk = a.mem('buffer_load_dwordx4 %s, %s, %s offen offset:%d lds' % (vr(V_L16), sr(R_SK, 4), sr(S_T1), part * 1024))
    fa = V.get()
    fe = V.get()
    fv = V.get()
    a('v_lshlrev_b32 %s, 2, %s' % (vr(fa), vr(V_LANE)))
    a('v_mov_b32 %s, 0x%x' % (vr(t), OOB))
    a('v_cmp_gt_u32 vcc, 26, %s' % vr(V_LANE),
      'v_cndmask_b32 %s, %s, %s, vcc' % (vr(fa), vr(t), vr(fa)),
      'v_cndmask_b32 %s, 0, %s, vcc' % (vr(fe), vr(V_TAG)))
    a('s_lshr_b32 %s, %s, 3' % (sr(S_T1), sr(S_PAIR)))
    a('s_lshl_b32 %s, %s, 7' % (sr(S_T1), sr(S_T1)))
    a('s_add_u32 %s, %s, %d' % (sr(S_T1), sr(S_T1), WS_KVF))
    poll(a, ['buffer_load_dword %s, %s, %s, %s offen sc1' % (vr(fv), vr(fa), sr(R_WS, 4), sr(S_T1))], [(fv, fe)])
    U = V.get(10)
    a('s_mul_i32 %s, %s, %d' % (sr(S_T1), sr(S_T0), KVT_STR))
    a('s_lshl_b32 %s, %s, 11' % (sr(S_T3), sr(S_A)))
    a('s_add_u32 %s, %s, %s' % (sr(S_T1), sr(S_T1), sr(S_T3)))
    a('s_add_u32 %s, %s, %d' % (sr(S_T1), sr(S_T1), WS_KVT + 128))
    a('s_lshl_b32 %s, %s, 6' % (sr(S_T3), sr(S_A)))
    a('v_add_u32 %s, %s, %s' % (vr(fa), sr(S_T3), vr(V_LANE)))
    a('v_cmp_ne_u32 vcc, 127, %s' % vr(fa),
      'v_cndmask_b32 %s, %s, %s, vcc' % (vr(fa), vr(t), vr(V_L16)))
    a('buffer_load_dwordx4 %s, %s, %s, %s offen sc1' % (vr(U, 4), vr(V_L16), sr(R_WS, 4), sr(S_T1)))
    a('buffer_load_dword %s, %s, %s, %s offen offset:16 sc1' % (vr(U + 8), vr(V_L16), sr(R_WS, 4), sr(S_T1)))
    a('buffer_load_dwordx4 %s, %s, %s, %s offen offset:1024 sc1' % (vr(U + 4, 4), vr(V_L16), sr(R_WS, 4), sr(S_T1)))
    a('buffer_load_dword %s, %s, %s, %s offen offset:1040 sc1' % (vr(U + 9), vr(fa), sr(R_WS, 4), sr(S_T1)))
    a('v_mul_u32_u24 %s, 4160, %s' % (vr(fa), vr(V_Q)))
    a('v_min_u32 %s, 1, %s' % (vr(fe), vr(V_Q)))
    a('v_lshl_add_u32 %s, %s, 4, %s' % (vr(fa), vr(fe), vr(fa)))
    a('v_lshl_add_u32 %s, %s, 2, %s' % (vr(fa), vr(V_N), vr(fa)))
    a('s_add_u32 %s, %s, %d' % (sr(S_T3), sr(S_T2), L_KC))
    a('v_add_u32 %s, %s, %s' % (vr(fa), sr(S_T3), vr(fa)))
    a('ds_write_b32 %s, %s' % (vr(fa), vr(HD)))
    a('s_mul_i32 %s, %s, %d' % (sr(S_T2), sr(S_B), UC_CH))
    a('s_mul_i32 %s, %s, 4640' % (sr(S_T3), sr(S_A)))
    a('s_add_u32 %s, %s, %s' % (sr(S_T3), sr(S_T3), sr(S_T2)))
    a('v_lshl_add_u32 %s, %s, 3, %s' % (vr(fa), vr(V_LANE), sr(S_T3)))
    a('ds_write_b64 %s, %s offset:%d' % (vr(fa), vr(V_ZERO, 2), L_UC + 4096))
    a('s_lshl_b32 %s, %s, 11' % (sr(S_T3), sr(S_A)))
    a('s_add_u32 %s, %s, %s' % (sr(S_T3), sr(S_T3), sr(S_T2)))
    a('v_add_u32 %s, %s, %s' % (vr(fa), sr(S_T3), vr(V_L16)))
    U1 = V.get(8)
    for part in range(2):
        a('ds_write_b128 %s, %s offset:%d' % (vr(fa), vr(U + 4 * part, 4), L_UC + part * 1024))
        for k in range(4):
            hi = U + 4 * part + k + 1 if k < 3 else U + 8 + part
            a('v_alignbit_b32 %s, %s, %s, 16' % (vr(U1 + 4 * part + k), vr(hi), vr(U + 4 * part + k)))
        tk = a.mem('ds_write_b128 %s, %s offset:%d' % (vr(fa), vr(U1 + 4 * part, 4), L_UC + 4640 + part * 1024))
    vN = V.get()
    vM = V.get()
    a('v_add_u32 %s, 1, %s' % (vr(t), vr(V_N)))
    a('v_and_b32 %s, 3, %s' % (vr(fe), vr(t)))
    a('v_mul_u32_u24 %s, 4160, %s' % (vr(vN), vr(fe)))
    a('v_min_u32 %s, 1, %s' % (vr(fe), vr(fe)))
    a('v_lshrrev_b32 %s, 2, %s' % (vr(t), vr(t)))
    a('v_add3_u32 %s, %s, %s, %s' % (vr(t), vr(t), vr(fe), vr(V_Q)))
    a('v_lshl_add_u32 %s, %s, 4, %s' % (vr(vN), vr(t), vr(vN)))
    a('s_mul_i32 %s, %s, %d' % (sr(S_T3), sr(S_B), KC_CH))
    a('s_lshl_b32 %s, %s, 8' % (sr(S_T1), sr(S_A)))
    a('s_add_u32 %s, %s, %s' % (sr(S_T3), sr(S_T3), sr(S_T1)))
    a('s_add_u32 %s, %s, %d' % (sr(S_T3), sr(S_T3), L_KC))
    a('v_add_u32 %s, %s, %s' % (vr(vN), sr(S_T3), vr(vN)))
    a('v_and_b32 %s, 1, %s' % (vr(t), vr(V_N)))
    a('v_sub_u32 %s, 1, %s' % (vr(t), vr(t)))
    a('v_mul_u32_u24 %s, 4640, %s' % (vr(vM), vr(t)))
    a('v_lshrrev_b32 %s, 1, %s' % (vr(t), vr(V_N)))
    a('v_lshlrev_b32 %s, 6, %s' % (vr(t), vr(t)))
    a('v_sub_u32 %s, %s, %s' % (vr(vM), vr(vM), vr(t)))
    a('v_lshl_add_u32 %s, %s, 4, %s' % (vr(vM), vr(V_Q), vr(vM)))
    a('s_add_u32 %s, %s, %s' % (sr(S_T3), sr(S_T2), sr(S_T1)))
    a('s_add_u32 %s, %s, %d' % (sr(S_T3), sr(S_T3), L_UC + 448))
    a('v_add_u32 %s, %s, %s' % (vr(vM), sr(S_T3), vr(vM)))
    a.wait(tk, ktk)
    a('s_barrier')
    for r, n in ((U, 10), (U1, 8), (HD, 1), (fv, 1)):
        V.put(r, n)
    stamp(a, 'conv_ld')
    CA = V.get(32)
    FN = V.get(32)
    FM = V.get(32)
    for cc in range(4):
        for x in range(8):
            a('ds_read_b128 %s, %s offset:%d' % (vr(FN + 4 * x, 4), vr(vN), 512 * x + 64 * cc))
            a('ds_read_b128 %s, %s offset:%d' % (vr(FM + 4 * x, 4), vr(vM), 512 * (7 - x) + 64 * cc))
        for i in range(8):
            for aa in range(i + 1):
                z = cc == 0 and aa == 0
                a('v_mfma_f32_16x16x32_bf16 %s, %s, %s, %s' % (vr(CA + 4 * i, 4), vr(FM + 4 * (i - aa), 4), vr(FN + 4 * aa, 4),
                                                              '0' if z else vr(CA + 4 * i, 4)))
    V.put(FN, 32)
    V.put(FM, 32)
    a('v_lshlrev_b32 %s, 8, %s' % (vr(t), vr(V_Q)))
    a('v_lshl_add_u32 %s, %s, 3, %s' % (vr(t), vr(V_N), vr(t)))
    a('s_lshl_b32 %s, %s, 13' % (sr(S_T3), sr(S_WAVE)))
    a('v_add_u32 %s, %s, %s' % (vr(t), sr(S_T3), vr(t)))
    for i in range(8):
        for hf in range(2):
            tk = a.mem('ds_write_b64 %s, %s offset:%d' % (vr(t), vr(CA + 4 * i + 2 * hf, 2), L_CO + 1024 * i + 128 * hf))
    a.wait(tk)
    a('s_barrier')
    V.put(CA, 32)
    stamp(a, 'conv_mm')
    Y = V.get(32)
    KV = V.get(8)
    ONE2 = fe
    a('v_mov_b32 %s, 0x3f803f80' % vr(ONE2))
    a('v_lshlrev_b32 %s, 4, v0' % vr(t))
    a('v_lshlrev_b32 %s, 3, v0' % vr(fa))
    a('v_sub_u32 %s, %d, %s' % (vr(fa), 2040, vr(fa)))
    for part in range(2):
        for w in range(4):
            a('ds_read_b128 %s, %s offset:%d' % (vr(Y + part * 16 + 4 * w, 4), vr(t), L_CO + w * 8192 + part * 4096))
        for ch in range(2):
            a('ds_read_b64 %s, %s offset:%d' % (vr(KV + part * 4 + 2 * ch, 2), vr(fa), L_UC + ch * UC_CH + (1 - part) * 2048))
    a('v_and_b32 %s, 0xffff0000, %s' % (vr(SD + 1), vr(SD)))
    a('v_lshlrev_b32 %s, 16, %s' % (vr(SD), vr(SD)))
    T4 = V.get(8)
    GO = V.get(8)
    toks = []
    a('s_mul_i32 %s, %s, %d' % (sr(S_T1), sr(S_PAIR), G_STR))
    a('s_add_u32 %s, %s, %d' % (sr(S_T1), sr(S_T1), WS_G))
    a('s_add_u32 %s, %s, 4096' % (sr(S_T3), sr(S_T1)))
    for part in range(2):
        for ch in range(2):
            y = Y + part * 16 + ch * 8
            for k in range(2):
                a('v_pk_add_f32 %s, %s, %s' % (vr(y + 2 * k, 2), vr(y + 2 * k, 2), vr(y + 4 + 2 * k, 2)))
            kvr = KV + part * 4 + 2 * ch
            d = T4 + ch * 4
            a('v_and_b32 %s, 0xffff0000, %s' % (vr(d), vr(kvr + 1)))
            a('v_lshlrev_b32 %s, 16, %s' % (vr(d + 1), vr(kvr + 1)))
            a('v_and_b32 %s, 0xffff0000, %s' % (vr(d + 2), vr(kvr)))
            a('v_lshlrev_b32 %s, 16, %s' % (vr(d + 3), vr(kvr)))
            for k in range(2):
                a('v_pk_mul_f32 %s, %s, %s op_sel:[0,%d] op_sel_hi:[1,%d]' % (vr(d + 2 * k, 2), vr(d + 2 * k, 2), vr(SD, 2), ch, ch))
            for k in range(4):
                a('v_cvt_pk_bf16_f32 %s, %s, %s' % (vr(d + k), vr(y + k), vr(d + k)))
            for k in range(4):
                a('v_dot2_f32_bf16 %s, %s, %s, 0' % (vr(d + k), vr(d + k), vr(ONE2)))
        for k in range(4):
            a('v_cvt_pk_bf16_f32 %s, %s, %s' % (vr(GO + part * 4 + k), vr(T4 + k), vr(T4 + 4 + k)))
        toks.append(a.mem('buffer_store_dwordx4 %s, %s, %s, %s offen sc1' %
                          (vr(GO + part * 4, 4), vr(t), sr(R_WS, 4), sr(S_T1 if part == 0 else S_T3))))
    a('s_lshl_b32 %s, %s, 2' % (sr(S_T1), sr(S_PAIR)))
    a('s_add_u32 %s, %s, %s' % (sr(S_T1), sr(S_T1), sr(S_WAVE)))
    a('s_lshl_b32 %s, %s, 2' % (sr(S_T1), sr(S_T1)))
    a('s_add_u32 %s, %s, %d' % (sr(S_T1), sr(S_T1), WS_GF))
    flag_store(a, V_ZERO, sr(S_T1), toks)
    for r, n in ((Y, 32), (KV, 8), (T4, 8), (GO, 8), (SD, 2), (t, 1), (fa, 1), (fe, 1), (vN, 1), (vM, 1)):
        V.put(r, n)
    stamp(a, 'conv_out')


conv_routine(a)
a.fence()
a('s_cmp_eq_u32 %s, 0' % sr(S_ROUND))
a('s_cbranch_scc1 L_main2')
a('s_add_u32 %s, %s, 22' % (sr(S_PAIR), sr(S_PAIR)))
a('s_cmp_lt_u32 %s, 288' % sr(S_PAIR))
a('s_cbranch_scc1 L_conv')
a('s_branch L_fin')
a.label('L_main2')
if OPT['stop'] <= 2:
    a('s_branch L_fin')

WCV = V.get(32)


def WC(s, j):
    idx = s * 4 + j
    if idx < 28:
        return ar(144 + idx * 4, 4)
    return vr(WCV + (idx - 28) * 4, 4)


fa = V.get()
fe = V.get()
fv = V.get(2)
t = V.get()
a('v_lshlrev_b32 %s, 3, %s' % (vr(fa), vr(V_LANE)))
a('v_mov_b32 %s, 0x%x' % (vr(t), OOB))
a('v_cmp_gt_u32 vcc, 36, %s' % vr(V_LANE),
  'v_cndmask_b32 %s, %s, %s, vcc' % (vr(fa), vr(t), vr(fa)),
  'v_cndmask_b32 %s, 0, %s, vcc' % (vr(fe), vr(V_TAG)))
a('s_mov_b32 %s, %d' % (sr(S_T1), WS_CPF))
poll(a, ['buffer_load_dwordx2 %s, %s, %s, %s offen sc1' % (vr(fv, 2), vr(fa), sr(R_WS, 4), sr(S_T1))], [(fv, fe), (fv + 1, fe)])
for r, n in ((fa, 1), (fe, 1), (fv, 2), (t, 1)):
    V.put(r, n)
a('s_mul_i32 %s, %s, 144' % (sr(S_T0), sr(S_CG)))
a('s_add_u32 %s, %s, %s' % (sr(S_T0), sr(S_T0), sr(S_WAVE)))
a('s_lshl_b32 %s, %s, 10' % (sr(S_T0), sr(S_T0)))
a('s_add_u32 %s, %s, %d' % (sr(S_T0), sr(S_T0), WS_CP))
for s in range(9):
    a('s_lshl_b32 %s, %s, 12' % (sr(S_T1), sr(S_KP + s)))
    a('s_add_u32 %s, %s, %s' % (sr(S_T1), sr(S_T1), sr(S_T0)))
    for j in range(4):
        a('s_add_u32 %s, %s, %d' % (sr(S_T2), sr(S_T1), j * 36 * 1024),
          'buffer_load_dwordx4 %s, %s, %s, %s offen sc1' % (WC(s, j), vr(V_L16), sr(R_WS, 4), sr(S_T2)))
stamp(a, 'cp_ld')

GP = V.get(10, 1)
MU1 = V.get(5, 1)
V_PW = V.get()
V_PR = V.get()
t = V.get()
a('v_mul_u32_u24 %s, %d, %s' % (vr(V_PW), PART_ROW, vr(V_N)))
a('v_lshl_add_u32 %s, %s, 4, %s' % (vr(V_PW), vr(V_Q), vr(V_PW)))
a('s_mul_i32 %s, %s, %d' % (sr(S_T0), sr(S_WAVE), PART_W))
a('v_add_u32 %s, %s, %s' % (vr(V_PW), sr(S_T0), vr(V_PW)))
a('s_lshl_b32 %s, %s, 2' % (sr(S_T0), sr(S_WAVE)))
a('v_add_u32 %s, %s, %s' % (vr(t), sr(S_T0), vr(V_Q)))
a('v_mul_u32_u24 %s, %d, %s' % (vr(V_PR), PART_ROW, vr(t)))
a('v_lshl_add_u32 %s, %s, 4, %s' % (vr(V_PR), vr(V_N), vr(V_PR)))
V.put(t)


def g_fetch(a):
    fa = V.get()
    fv = V.get(2)
    t = V.get()
    a('v_lshlrev_b32 %s, 3, %s' % (vr(fa), vr(V_LANE)))
    a('s_lshl_b32 %s, %s, 9' % (sr(S_T1), sr(S_CG)))
    a('s_add_u32 %s, %s, %d' % (sr(S_T1), sr(S_T1), WS_GF))
    poll(a, ['buffer_load_dwordx2 %s, %s, %s, %s offen sc1' % (vr(fv, 2), vr(fa), sr(R_WS, 4), sr(S_T1))],
         [(fv, V_TAG), (fv + 1, V_TAG)])
    D = V.get(12)
    LA = V.get(3, 1)
    u = V.get()
    q = V.get()
    a('s_mul_i32 %s, %s, %d' % (sr(S_T1), sr(S_CG), 32 * G_STR))
    a('s_mul_i32 %s, %s, 320' % (sr(S_T2), sr(S_RB)))
    a('s_add_u32 %s, %s, %s' % (sr(S_T1), sr(S_T1), sr(S_T2)))
    a('s_mul_i32 %s, %s, 80' % (sr(S_T2), sr(S_WAVE)))
    a('s_add_u32 %s, %s, %s' % (sr(S_T1), sr(S_T1), sr(S_T2)))
    a('s_add_u32 %s, %s, %d' % (sr(S_T1), sr(S_T1), WS_G))
    a('s_mul_i32 %s, %s, 5120' % (sr(S_T2), sr(S_WAVE)))
    a('s_add_u32 %s, %s, %d' % (sr(S_T2), sr(S_T2), L_PRIV))
    for i in range(3):
        a('v_add_u32 %s, %d, %s' % (vr(u), 64 * i, vr(V_LANE)))
        a('v_mul_u32_u24 %s, 205, %s' % (vr(q), vr(u)))
        a('v_lshrrev_b32 %s, 10, %s' % (vr(q), vr(q)))
        a('v_mul_u32_u24 %s, %d, %s' % (vr(fa), G_STR - 80, vr(q)))
        a('v_lshl_add_u32 %s, %s, 4, %s' % (vr(fa), vr(u), vr(fa)))
        if i == 2:
            a('v_cmp_gt_u32 vcc, 32, %s' % vr(V_LANE),
              'v_mov_b32 %s, 0x%x' % (vr(t), OOB),
              'v_cndmask_b32 %s, %s, %s, vcc' % (vr(fa), vr(t), vr(fa)))
        a('buffer_load_dwordx4 %s, %s, %s, %s offen sc1' % (vr(D + 4 * i, 4), vr(fa), sr(R_WS, 4), sr(S_T1)))
    a('v_add_u32 %s, %s, %s' % (vr(t), sr(S_T2), vr(V_L16)))
    tk = None
    for i in range(3):
        tk = a.mem('ds_write_b128 %s, %s offset:%d' % (vr(t), vr(D + 4 * i, 4), 1024 * i))
    a('s_mul_i32 %s, %s, 20' % (sr(S_T1), sr(S_WAVE)))
    a('v_subrev_u32 %s, %s, %s' % (vr(u), sr(S_T1), vr(V_TAU)))
    a('v_mul_u32_u24 %s, 160, %s' % (vr(q), vr(V_N)))
    a('v_lshl_add_u32 %s, %s, 2, %s' % (vr(u), vr(u), vr(q)))
    a('v_add_u32 %s, %s, %s' % (vr(u), sr(S_T2), vr(u)))
    a.wait(tk)
    for i in range(5):
        for j in range(2):
            a('ds_read_b32 %s, %s offset:%d' % (vr(GP + 2 * i + j), vr(u), j * 80 + 8 * i))
    for r, n in ((fa, 1), (fv, 2), (t, 1), (D, 12), (LA, 3), (u, 1), (q, 1)):
        V.put(r, n)


def gemm_c(a, layer):
    fa = V.get()
    fv = V.get()
    t = V.get()
    a('v_lshlrev_b32 %s, 2, %s' % (vr(fa), vr(V_N)))
    a('v_mov_b32 %s, 0x%x' % (vr(t), OOB))
    a('v_cmp_gt_u32 vcc, 9, %s' % vr(V_N),
      'v_cndmask_b32 %s, %s, %s, vcc' % (vr(fa), vr(t), vr(fa)))
    a('s_lshl_b32 %s, %s, 2' % (sr(S_T1), sr(S_RB)))
    a('s_add_u32 %s, %s, %s' % (sr(S_T1), sr(S_T1), sr(S_WAVE)))
    a('s_lshl_b32 %s, %s, 6' % (sr(S_T1), sr(S_T1)))
    a('s_add_u32 %s, %s, %d' % (sr(S_T1), sr(S_T1), WS_HF + layer * 26 * 256))
    poll(a, ['buffer_load_dword %s, %s, %s, %s offen sc1' % (vr(fv), vr(fa), sr(R_WS, 4), sr(S_T1))], [(fv, V_EXP9)])
    stamp(a, 'h_flag%d' % layer)
    for r in (fa, fv, t):
        V.put(r)
    NF = 24
    HB = V.get(4 * NF)
    hb = lambda i, s: HB + ((i * 9 + s) % NF) * 4
    CA = V.get(32)
    def pwrite(i):
        ca = CA + (i & 1) * 16
        for j in range(4):
            off = L_IMG + i * 4 * PART_W + j * 64
            if off < 65536:
                tk = a.mem('ds_write_b128 %s, %s offset:%d' % (vr(V_PW), vr(ca + 4 * j, 4), off))
            else:
                tk = a.mem('ds_write_b128 %s, %s offset:%d' % (vr(V_PW2), vr(ca + 4 * j, 4), off - 32768))
        return tk
    a('s_mul_i32 %s, %s, 36' % (sr(S_T0), sr(S_RB)))
    a('s_add_u32 %s, %s, %s' % (sr(S_T0), sr(S_T0), sr(S_WAVE)))
    a('s_mul_i32 %s, %s, 5120' % (sr(S_T0), sr(S_T0)))
    a('s_add_u32 %s, %s, %d' % (sr(S_T0), sr(S_T0), WS_H + layer * 26 * 184320))

    def hload(s_, f):
        i, s = f // 9, f % 9
        s_('s_mul_i32 %s, %s, 20480' % (sr(S_T1), sr(S_KP + s)),
           's_add_u32 %s, %s, %s' % (sr(S_T1), sr(S_T1), sr(S_T0)),
           's_add_u32 %s, %s, %d' % (sr(S_T1), sr(S_T1), (i >> 2) * 4096),
           'buffer_load_dwordx4 %s, %s, %s, %s offen offset:%d sc1' %
           (vr(hb(i, s), 4), vr(V_L16), sr(R_WS, 4), sr(S_T1), (i & 3) * 1024))

    for f in range(NF):
        hload(a, f)
    a('s_barrier')
    tk = None
    for i in range(5):
        ca = CA + (i & 1) * 16
        for s in range(9):
            for j in range(4):
                a('v_mfma_f32_16x16x32_bf16 %s, %s, %s, %s' % (vr(ca + 4 * j, 4), WC(s, j), vr(hb(i, s), 4),
                                                              '0' if s == 0 else vr(ca + 4 * j, 4)))
            if i * 9 + s + NF < 45:
                hload(a, i * 9 + s + NF)
            if s == 2 and i > 0:
                tk = pwrite(i - 1)
    tk = pwrite(4)
    a.wait(tk)
    a('s_barrier')
    stamp(a, 'gemmC%d' % layer)
    P = HB
    for i in range(5):
        for w in range(4):
            off = L_IMG + (i * 4 + w) * PART_W
            if off < 65536:
                a('ds_read_b128 %s, %s offset:%d' % (vr(P + i * 16 + w * 4, 4), vr(V_PR), off))
            else:
                a('ds_read_b128 %s, %s offset:%d' % (vr(P + i * 16 + w * 4, 4), vr(V_PR2), off - 32768))
    for i in range(5):
        p = P + i * 16
        for k in range(2):
            a('v_pk_add_f32 %s, %s, %s' % (vr(p + 2 * k, 2), vr(p + 2 * k, 2), vr(p + 4 + 2 * k, 2)))
            a('v_pk_add_f32 %s, %s, %s' % (vr(p + 8 + 2 * k, 2), vr(p + 8 + 2 * k, 2), vr(p + 12 + 2 * k, 2)))
            a('v_pk_add_f32 %s, %s, %s' % (vr(p + 2 * k, 2), vr(p + 2 * k, 2), vr(p + 8 + 2 * k, 2)))
            a('v_pk_add_f32 %s, %s, %s' % (vr(BASE + 4 * i + 2 * k, 2), vr(BASE + 4 * i + 2 * k, 2), vr(p + 2 * k, 2)))
    V.put(HB, 4 * NF)
    V.put(CA, 32)


V_PW2 = V.get()
V_PR2 = V.get()
a('v_add_u32 %s, 32768, %s' % (vr(V_PW2), vr(V_PW)))
a('v_add_u32 %s, 32768, %s' % (vr(V_PR2), vr(V_PR)))


def gate(a, which, final):
    stats_publish(a, BASE, which)
    stamp(a, 'st_pub%d' % which)
    if not final:
        g_fetch(a)
    MU, VA = stats_gather(a, which)
    stamp(a, 'st_got%d' % which)
    for i in range(5):
        a('v_add_f32 %s, 0x3727c5ac, %s' % (vr(VA + i), vr(VA + i)))
    for i in range(5):
        a('v_rsq_f32 %s, %s' % (vr(VA + i), vr(VA + i)))
    g = V.get(4)
    z = V.get(4)
    for i in range(5):
        for j in range(2):
            a('v_lshlrev_b32 %s, 16, %s' % (vr(g + 2 * j), vr(GP + 2 * i + j)))
            a('v_and_b32 %s, 0xffff0000, %s' % (vr(g + 2 * j + 1), vr(GP + 2 * i + j)))
        for k in range(4):
            a('v_sub_f32 %s, %s, %s' % (vr(z + k), vr(BASE + 4 * i + k), vr(MU + i)))
        for k in range(4):
            a('v_mul_f32 %s, %s, %s' % (vr(g + k), vr(g + k), vr(VA + i)))
        for k in range(2):
            a('v_pk_fma_f32 %s, %s, %s, %s' % (vr(BASE + 4 * i + 2 * k, 2), vr(z + 2 * k, 2), vr(g + 2 * k, 2),
                                               vr((BASE + 4 * i if final else z) + 2 * k, 2)))
        if not final:
            a('v_mov_b32 %s, %s' % (vr(MU1 + i), vr(MU + i)))
    for r, n in ((g, 4), (z, 4), (MU, 5), (VA, 5)):
        V.put(r, n)


gemm_c(a, 0)
gate(a, 1, False)
WP = V.get(10, 2)
ad = V.get()
t = V.get()
for i in range(5):
    for k in range(2):
        a('v_cvt_pk_bf16_f32 %s, %s, %s' % (vr(WP + 2 * i + k), vr(BASE + 4 * i + 2 * k), vr(BASE + 4 * i + 2 * k + 1)))
a('s_lshl_b32 %s, %s, 2' % (sr(S_T0), sr(S_WAVE)))
a('v_add_u32 %s, %s, %s' % (vr(ad), sr(S_T0), vr(V_Q)))
a('v_xor_b32 %s, %s, %s' % (vr(t), vr(ad), vr(V_N)))
a('v_lshrrev_b32 %s, 1, %s' % (vr(t), vr(t)))
a('v_lshlrev_b32 %s, 4, %s' % (vr(t), vr(t)))
a('v_lshl_add_u32 %s, %s, 7, %s' % (vr(ad), vr(ad), vr(t)))
a('v_and_b32 %s, 1, %s' % (vr(t), vr(V_N)))
a('v_lshl_add_u32 %s, %s, 3, %s' % (vr(ad), vr(t), vr(ad)))
a('s_mul_i32 %s, %s, 9' % (sr(S_T0), sr(S_RB)))
a('s_add_u32 %s, %s, %s' % (sr(S_T0), sr(S_T0), sr(S_CG)))
a('s_mul_i32 %s, %s, 10240' % (sr(S_T0), sr(S_T0)))
a('s_add_u32 %s, %s, %d' % (sr(S_T0), sr(S_T0), WS_W))
toks = []
for i in range(5):
    toks.append(a.mem('s_add_u32 %s, %s, %d' % (sr(S_T1), sr(S_T0), 2048 * i),
                      'buffer_store_dwordx2 %s, %s, %s, %s offen sc1' % (vr(WP + 2 * i, 2), vr(ad), sr(R_WS, 4), sr(S_T1))))
stats_publish(a, BASE, 2)
a('s_lshl_b32 %s, %s, 6' % (sr(S_T0), sr(S_RB)))
a('s_lshl_b32 %s, %s, 2' % (sr(S_T1), sr(S_CG)))
a('s_add_u32 %s, %s, %s' % (sr(S_T0), sr(S_T0), sr(S_T1)))
a('s_add_u32 %s, %s, %s' % (sr(S_T0), sr(S_T0), sr(S_WAVE)))
a('s_lshl_b32 %s, %s, 2' % (sr(S_T0), sr(S_T0)))
a('s_add_u32 %s, %s, %d' % (sr(S_T0), sr(S_T0), WS_WF))
flag_store(a, V_ZERO, sr(S_T0), toks)
stamp(a, 'w_pub')
V.put(WP, 10)
V.put(ad)
V.put(t)
if OPT['stop'] <= 3:
    a('s_branch L_fin')

ACC = V.get(40)
AF = V.get(40)
fa = V.get()
fe = V.get()
fv = V.get()
t = V.get()
a('v_lshlrev_b32 %s, 2, %s' % (vr(fa), vr(V_LANE)))
a('v_mov_b32 %s, 0x%x' % (vr(t), OOB))
a('v_cmp_gt_u32 vcc, 36, %s' % vr(V_LANE),
  'v_cndmask_b32 %s, %s, %s, vcc' % (vr(fa), vr(t), vr(fa)),
  'v_cndmask_b32 %s, 0, %s, vcc' % (vr(fe), vr(V_TAG)))
a('s_lshl_b32 %s, %s, 8' % (sr(S_T1), sr(S_RB)))
a('s_add_u32 %s, %s, %d' % (sr(S_T1), sr(S_T1), WS_WF))
poll(a, ['buffer_load_dword %s, %s, %s, %s offen sc1' % (vr(fv), vr(fa), sr(R_WS, 4), sr(S_T1))], [(fv, fe)])
stamp(a, 'w_flag')
for r in (fa, fe, fv, t):
    V.put(r)
wst, wtk = img_dma_stream(1)
for k in range(5):
    a.extend(wst[k])
for k in range(5):
    blocks = [2 * k, 2 * k + 1] if k < 4 else [8]
    if k == 4:
        ttk = ln_table(a, 1)
        a.wait(ttk)
    a.wait(wtk[k])
    a('s_barrier')
    for kp in blocks:
        gemm_b_block(a, kp, ACC, AF, None, None, kp == 0)
stamp(a, 'gemmB2')


scan_phase(a, 1)
Lk = newlabel('noep')
a('s_lshl_b32 %s, %s, 2' % (sr(S_T0), sr(S_L)))
a('s_add_u32 %s, %s, %s' % (sr(S_T0), sr(S_T0), sr(S_WAVE)))
a('s_cmp_lg_u32 %s, %d' % (sr(S_T0), 225 * 4))
a('s_cselect_b64 exec, 0, 1')
a('buffer_store_dword %s, %s, %s, 0 offen sc1' % (vr(V_TAG), vr(V_ZERO), sr(R_WS, 4)))
a('s_mov_b64 exec, -1')
V.put(ACC, 40)
V.put(AF, 40)
gemm_c(a, 1)
gate(a, 3, True)
ad = V.get()
if OPT['bias']:
    import struct
    for i in range(20):
        a('v_add_f32 %s, 0x%x, %s' % (vr(BASE + i), struct.unpack('<I', struct.pack('<f', OPT['bias'] * 1e-4))[0], vr(BASE + i)))
a('v_lshlrev_b32 %s, 1, %s' % (vr(ad), vr(V_ROWX)))
for i in range(5):
    a('s_movk_i32 %s, %d' % (sr(S_T0), 4608 * i),
      'buffer_store_dwordx4 %s, %s, %s, %s offen' % (vr(BASE + 4 * i, 4), vr(ad), sr(R_OUT, 4), sr(S_T0)))
stamp(a, 'out')
a('s_branch L_fin')
V.put(ad)

a.fence()
a.label('L_aux')
saved_free = set(V.free)
V.free = set(range(16, 256))
a('s_mov_b32 %s, 1' % sr(S_ROUND))
srd(a, R_BRE, P_CRE, 576 * 1152)
srd(a, R_BIM, P_CIM, 576 * 1152)
a('s_and_b32 %s, %s, 1' % (sr(S_A), sr(S_WAVE)))
a('s_lshr_b32 %s, %s, 1' % (sr(S_B), sr(S_WAVE)))
a('s_sub_u32 %s, %s, 234' % (sr(S_T0), sr(S_L)))
a('s_lshl_b32 %s, %s, 2' % (sr(S_T0), sr(S_T0)))
a('s_add_u32 %s, %s, %s' % (sr(S_RB), sr(S_T0), sr(S_WAVE)))
a('s_mul_i32 %s, %s, 57' % (sr(S_CG), sr(S_RB)))
a('s_lshr_b32 %s, %s, 10' % (sr(S_CG), sr(S_CG)))
a('s_mul_i32 %s, %s, 18' % (sr(S_T0), sr(S_CG)))
a('s_sub_u32 %s, %s, %s' % (sr(S_ROT), sr(S_RB), sr(S_T0)))
a('s_waitcnt lgkmcnt(0)')
tag_ready(a)
a('s_cmp_ge_u32 %s, 72' % sr(S_RB))
a('s_cbranch_scc1 L_conv')
t = V.get()
t2 = V.get()
a('v_and_b32 %s, 31, %s' % (vr(t), vr(V_LANE)))
a('s_lshl_b32 %s, %s, 6' % (sr(S_T0), sr(S_ROT)))
a('v_lshl_add_u32 %s, %s, 1, %s' % (vr(t2), vr(t), sr(S_T0)))
LT = lam_params(a, t2, True)
CL = V.get(72)
vc = V.get()
a('v_lshrrev_b32 %s, 2, %s' % (vr(vc), vr(V_LANE)))
a('v_mul_u32_u24 %s, 1152, %s' % (vr(vc), vr(vc)))
a('v_and_b32 %s, 3, %s' % (vr(t2), vr(V_LANE)))
a('v_lshl_add_u32 %s, %s, 4, %s' % (vr(vc), vr(t2), vr(vc)))
a('s_mul_i32 %s, %s, %d' % (sr(S_T1), sr(S_CG), 9 * 16 * 1152))
a('s_add_u32 %s, %s, %s' % (sr(S_T1), sr(S_T1), sr(S_T0)))
for u in range(9):
    a('s_add_u32 %s, %s, %d' % (sr(S_T2), sr(S_T1), u * 16 * 1152),
      'buffer_load_dwordx4 %s, %s, %s, %s offen' % (vr(CL + 8 * u, 4), vr(vc), sr(R_BRE, 4), sr(S_T2)),
      'buffer_load_dwordx4 %s, %s, %s, %s offen' % (vr(CL + 8 * u + 4, 4), vr(vc), sr(R_BIM, 4), sr(S_T2)))
_, COEF = lam_compute(a, LT, True)
a('v_add_f32 %s, %s, %s' % (vr(COEF), vr(COEF), vr(COEF)))
a('v_add_f32 %s, %s, %s' % (vr(COEF + 1), vr(COEF + 1), vr(COEF + 1)))
a('s_mul_i32 %s, %s, 5120' % (sr(S_T3), sr(S_WAVE)))
a('s_add_u32 %s, %s, %d' % (sr(S_T3), sr(S_T3), L_PRIV))
a('v_lshl_add_u32 %s, %s, 3, %s' % (vr(t), vr(t), sr(S_T3)))
tk = a.mem('ds_write_b64 %s, %s offset:4096' % (vr(t), vr(COEF, 2)))
a('v_lshl_add_u32 %s, %s, 6, %s' % (vr(t), vr(t2), sr(S_T3)))
a.wait(tk)
CF = V.get(16)
for k in range(4):
    a('ds_read_b128 %s, %s offset:%d' % (vr(CF + 4 * k, 4), vr(t), 4096 + 16 * k))
wa = V.get()
a('v_lshrrev_b32 %s, 2, %s' % (vr(t), vr(V_LANE)))
a('v_lshlrev_b32 %s, 4, %s' % (vr(t), vr(t)))
a('v_lshl_add_u32 %s, %s, 9, %s' % (vr(wa), vr(t2), vr(t)))
a('v_add_u32 %s, %s, %s' % (vr(wa), sr(S_T3), vr(wa)))
ra = V.get()
a('v_add_u32 %s, %s, %s' % (vr(ra), sr(S_T3), vr(V_L16)))
X = V.get(4)
O = V.get(16)
RD = V.get(16)
toks = []
a('s_mul_i32 %s, %s, %d' % (sr(S_T1), sr(S_CG), 9 * 36))
a('s_lshl_b32 %s, %s, 1' % (sr(S_T0), sr(S_ROT)))
a('s_add_u32 %s, %s, %s' % (sr(S_T1), sr(S_T1), sr(S_T0)))
a('s_lshl_b32 %s, %s, 10' % (sr(S_T1), sr(S_T1)))
a('s_add_u32 %s, %s, %d' % (sr(S_T1), sr(S_T1), WS_CP))
for u in range(9):
    o = O + (u & 1) * 8
    for e in range(8):
        src = CL + 8 * u + (e >> 1)
        if e & 1:
            a('v_and_b32 %s, 0xffff0000, %s' % (vr(X), vr(src)))
            a('v_and_b32 %s, 0xffff0000, %s' % (vr(X + 1), vr(src + 4)))
        else:
            a('v_lshlrev_b32 %s, 16, %s' % (vr(X), vr(src)))
            a('v_lshlrev_b32 %s, 16, %s' % (vr(X + 1), vr(src + 4)))
        cmul(a, X + 2, X, CF + 2 * e)
        a('v_cvt_pk_bf16_f32 %s, %s, -%s' % (vr(o + e), vr(X + 2), vr(X + 3)))
    bo = (u & 1) * 2048
    a('ds_write_b128 %s, %s offset:%d' % (vr(wa), vr(o, 4), bo))
    tk = a.mem('ds_write_b128 %s, %s offset:%d' % (vr(wa), vr(o + 4, 4), bo + 256))
    a.wait(tk)
    rd = RD + (u & 1) * 8
    a('ds_read_b128 %s, %s offset:%d' % (vr(rd, 4), vr(ra), bo))
    a('ds_read_b128 %s, %s offset:%d' % (vr(rd + 4, 4), vr(ra), bo + 1024))
    a('s_add_u32 %s, %s, %d' % (sr(S_T2), sr(S_T1), u * 36 * 1024))
    toks.append(a.mem('buffer_store_dwordx4 %s, %s, %s, %s offen sc1' % (vr(rd, 4), vr(V_L16), sr(R_WS, 4), sr(S_T2))))
    toks.append(a.mem('buffer_store_dwordx4 %s, %s, %s, %s offen offset:1024 sc1' % (vr(rd + 4, 4), vr(V_L16), sr(R_WS, 4), sr(S_T2))))
a('s_lshl_b32 %s, %s, 2' % (sr(S_T0), sr(S_RB)))
a('s_add_u32 %s, %s, %d' % (sr(S_T0), sr(S_T0), WS_CPF))
flag_store(a, V_ZERO, sr(S_T0), toks)
a.fence()
a('s_branch L_conv')

a.label('L_fin')
if OPT['stamps']:
    a('s_waitcnt vmcnt(0) lgkmcnt(0)')
    a('s_memrealtime %s' % sr(S_M2, 2))
    a('s_waitcnt lgkmcnt(0)')
    a('v_writelane_b32 %s, %s, 63' % (vr(V_STAMP), sr(S_M2)))
    a('s_lshl_b32 %s, %s, 10' % (sr(S_T0), sr(S_L)))
    a('s_add_u32 %s, %s, %d' % (sr(S_T0), sr(S_T0), WS_DBG))
    a('v_lshlrev_b32 %s, 2, v0' % vr(V_DUMMY))
    a('buffer_store_dword %s, %s, %s, %s offen' % (vr(V_STAMP), vr(V_DUMMY), sr(R_WS, 4), sr(S_T0)))
a.label('L_end')
a('s_endpgm')

hdr = open(os.path.join(os.path.dirname(os.path.abspath(__file__)), '..', 'cdna_kernels', NAME + '.s.ref')).read().split('\n')
head = []
for ln in hdr:
    if ln.startswith('; @launch'):
        break
    head.append(ln)
lines = head + ['; @launch grid=(256,1,1) block=(256,1,1) lds=%d' % LDS_SIZE,
                '.amdgcn_target "amdgcn-amd-amdhsa--gfx950"', '.text', '.globl ' + KN, '.p2align 8',
                '.type %s,@function' % KN, KN + ':']
lines += finalize(top)
lines += ['.section .rodata,"a"', '.p2align 6', '.amdhsa_kernel ' + KN,
          '  .amdhsa_next_free_vgpr 512', '  .amdhsa_next_free_sgpr 102', '  .amdhsa_accum_offset 256',
          '  .amdhsa_group_segment_fixed_size 0', '  .amdhsa_kernarg_size 144', '  .amdhsa_user_sgpr_count 2',
          '  .amdhsa_user_sgpr_kernarg_segment_ptr 1', '  .amdhsa_system_sgpr_workgroup_id_x 1', '.end_amdhsa_kernel']
open(sys.argv[1], 'w').write('\n'.join(lines) + '\n')
open(sys.argv[1] + '.stamps', 'w').write('\n'.join(STAMPS) + '\n')
print('vgpr high water', V.hw, 'lines', len(lines))
```

```python
import re

TRANS = ('v_exp_f32', 'v_log_f32', 'v_rcp_f32', 'v_rsq_f32', 'v_sqrt_f32', 'v_sin_f32', 'v_cos_f32')


def regs_of(op):
    op = op.strip()
    op = op.lstrip('-')
    if op.startswith('abs(') or op.startswith('|'):
        op = op.replace('abs(', '').replace(')', '').replace('|', '')
    m = re.fullmatch(r'([vas])(\d+)', op)
    if m:
        return [(m.group(1), int(m.group(2)))]
    m = re.fullmatch(r'([vas])\[(\d+):(\d+)\]', op)
    if m:
        return [(m.group(1), i) for i in range(int(m.group(2)), int(m.group(3)) + 1)]
    if op == 'vcc':
        return [('s', 106), ('s', 107)]
    if op == 'vcc_lo':
        return [('s', 106)]
    if op == 'vcc_hi':
        return [('s', 107)]
    if op == 'exec':
        return [('s', 126), ('s', 127)]
    if op == 'm0':
        return [('s', 124)]
    return []


class Ins:
    __slots__ = ('text', 'mn', 'ops', 'mods', 'dst', 'src', 'kind', 'tok', 'srcc', 'srcab', 'cmt')

    def __init__(self, text, tok=None):
        self.text = text
        self.tok = tok
        t = text.split(';')[0].strip()
        parts = t.split(None, 1)
        self.mn = parts[0]
        rest = parts[1] if len(parts) > 1 else ''
        ops, cur, depth = [], '', 0
        for ch in rest:
            if ch in '[(':
                depth += 1
            if ch in '])':
                depth -= 1
            if ch == ',' and depth == 0:
                ops.append(cur.strip())
                cur = ''
            else:
                cur += ch
        if cur.strip():
            ops.append(cur.strip())
        mods = ''
        if ops:
            last = ops[-1].split(None, 1)
            ops[-1] = last[0]
            if len(last) > 1:
                mods = last[1]
        self.ops = ops
        self.mods = mods
        self.srcc = []
        self.srcab = []
        self.classify()

    def classify(self):
        mn, ops = self.mn, self.ops
        R = regs_of
        dst, src = [], []
        if mn.endswith(':') or mn.startswith('.'):
            kind = 'label'
        elif mn.startswith('v_mfma'):
            kind = 'mfma'
            dst = R(ops[0])
            self.srcab = R(ops[1]) + R(ops[2])
            self.srcc = R(ops[3])
            src = self.srcab + self.srcc
        elif mn.startswith('v_'):
            kind = 'valu'
            base = mn.replace('_e32', '').replace('_e64', '').replace('_dpp', '').replace('_sdwa', '')
            if base.startswith('v_permlane') and 'swap' in base:
                dst = R(ops[0]) + R(ops[1])
                src = R(ops[0]) + R(ops[1])
            elif base in ('v_add_co_u32', 'v_sub_co_u32', 'v_addc_co_u32', 'v_subb_co_u32', 'v_subrev_co_u32',
                          'v_mad_u64_u32', 'v_div_scale_f32'):
                dst = R(ops[0]) + R(ops[1])
                for o in ops[2:]:
                    src += R(o)
            elif base == 'v_nop':
                pass
            else:
                dst = R(ops[0])
                for o in ops[1:]:
                    src += R(o)
                if base in ('v_fmac_f32', 'v_dot2c_f32_bf16', 'v_pk_fmac_f16', 'v_writelane_b32') or \
                        ('_dpp' in mn) or ('_sdwa' in mn):
                    src += R(ops[0])
                if base in ('v_div_fmas_f32',):
                    src += R('vcc')
        elif mn.startswith('ds_'):
            kind = 'ds'
            if mn.startswith('ds_read') or mn.startswith('ds_bpermute') or mn.startswith('ds_permute') or \
                    mn.startswith('ds_swizzle'):
                dst = R(ops[0])
                for o in ops[1:]:
                    src += R(o)
                if 'd16' in mn:
                    src += R(ops[0])
            else:
                for o in ops:
                    src += R(o)
        elif mn.startswith('buffer_') or mn.startswith('global_'):
            kind = 'vmem'
            lds = re.search(r'\blds\b', self.mods) is not None or '_lds_' in mn
            if mn in ('buffer_inv', 'buffer_wbl2'):
                pass
            elif lds:
                for o in ops:
                    src += R(o)
                src += R('m0')
            elif '_load' in mn:
                dst = R(ops[0]) if ';junk' not in self.text else []
                for o in ops[1:]:
                    src += R(o)
                if 'd16' in mn:
                    src += R(ops[0])
            elif '_atomic' in mn:
                for o in ops:
                    src += R(o)
                if 'sc0' in self.mods:
                    dst = R(ops[0])
            else:
                for o in ops:
                    src += R(o)
        elif mn.startswith('s_load') or mn.startswith('s_memtime') or mn.startswith('s_memrealtime') or \
                mn.startswith('s_buffer_load'):
            kind = 'smem'
            dst = R(ops[0])
            for o in ops[1:]:
                src += R(o)
        elif mn.startswith('s_'):
            kind = 'salu'
            if mn in ('s_waitcnt', 's_nop', 's_barrier', 's_endpgm', 's_sleep', 's_setprio', 's_branch') or \
                    mn.startswith('s_cbranch'):
                if mn.startswith('s_cbranch_vcc'):
                    src = R('vcc')
            elif mn.startswith('s_cmp') or mn.startswith('s_bitcmp'):
                for o in ops:
                    src += R(o)
            else:
                dst = R(ops[0])
                for o in ops[1:]:
                    src += R(o)
                if 'saveexec' in mn:
                    dst += R('exec')
                    src += R('exec')
                if mn in ('s_addk_i32', 's_mulk_i32'):
                    src += R(ops[0])
        else:
            raise ValueError('unknown instruction: ' + self.text)
        self.kind, self.dst, self.src = kind, dst, src


class Tok:
    __slots__ = ('seq', 'cls')

    def __init__(self):
        self.seq = None
        self.cls = None


class Stream:
    def __init__(self):
        self.groups = []

    def __call__(self, *texts, tok=None):
        g = []
        for i, t in enumerate(texts):
            g.append(Ins(t, tok if i == len(texts) - 1 else None))
        self.groups.append(g)
        return self

    def mem(self, *texts):
        t = Tok()
        g = [Ins(x) for x in texts]
        for i in reversed(g):
            if i.kind in ('vmem', 'ds'):
                i.tok = t
                break
        else:
            raise ValueError('no memory op in group')
        self.groups.append(g)
        return t

    def touch(self, *ops):
        regs = []
        for o in ops:
            regs += regs_of(o)
        self.groups.append([('touch', regs)])

    def join(self, other):
        g = []
        for x in other.groups:
            g += x
        self.groups.append(g)

    def wait(self, *toks):
        self.groups.append([('wait', toks)])

    def label(self, name):
        self.groups.append([Ins(name + ':')])

    def fence(self):
        self.groups.append([('fence',)])

    def comment(self, s):
        self.groups.append([('cmt', s)])

    def extend(self, other):
        self.groups.extend(other.groups)

    def weave(self, main, side, start=0.0, end=1.0):
        n, m = len(main.groups), len(side.groups)
        if m == 0:
            self.extend(main)
            return
        lo, hi = int(n * start), int(n * end)
        span = max(hi - lo, 1)
        k = 0
        for i, g in enumerate(main.groups):
            while k < m and i >= lo and (i - lo) * m >= k * span:
                self.groups.append(side.groups[k])
                k += 1
            self.groups.append(g)
        while k < m:
            self.groups.append(side.groups[k])
            k += 1


def weave(main, side, start=0.0, end=1.0):
    o = Stream()
    o.weave(main, side, start, end)
    return o


def mfma_passes(mn):
    if '32x32' in mn:
        return 8
    return 4


def finalize(stream):
    out = []
    hist = []
    pos = 0
    vm_seq = 0
    lg_seq = 0
    vm_done = 0
    lg_done = 0
    smem_pending = False
    pend_vm = {}
    pend_lg = {}

    def emit(ins):
        nonlocal pos
        out.append(ins)
        if ins.kind == 'label':
            return
        if ins.mn == 's_nop':
            pos += int(ins.ops[0], 0) + 1
        else:
            hist.append((ins, pos))
            pos += 1
        while hist and pos - hist[0][1] > 24:
            hist.pop(0)

    def do_wait(vm=None, lg=None):
        nonlocal vm_done, lg_done, smem_pending
        parts = []
        if vm is not None and vm > vm_done:
            n = min(vm_seq - vm, 63)
            parts.append('vmcnt(%d)' % n)
            vm_done = vm_seq - n
        if lg is not None:
            if lg == 'smem' or smem_pending:
                if smem_pending or lg_done < lg_seq:
                    parts.append('lgkmcnt(0)')
                    lg_done = lg_seq
                    smem_pending = False
                    for r in [r for r, s in pend_lg.items() if s == 'smem']:
                        del pend_lg[r]
            elif lg > lg_done:
                n = min(lg_seq - lg, 15)
                parts.append('lgkmcnt(%d)' % n)
                lg_done = lg_seq - n
        if parts:
            emit(Ins('s_waitcnt ' + ' '.join(parts)))

    def need_nops(ins):
        need = 0
        srcs = set(ins.src)
        dsts = set(ins.dst)
        is_dpp = '_dpp' in ins.mn
        is_perm = ins.mn.startswith('v_permlane')
        is_rl = ins.mn.startswith('v_readlane') or ins.mn.startswith('v_readfirstlane')
        is_lds_dma = ins.kind == 'vmem' and ('s', 124) in srcs
        for p, ppos in hist:
            dist = pos - ppos - 1
            req = 0
            pd = set(p.dst)
            if p.kind == 'valu':
                vd = {r for r in pd if r[0] in 'va'}
                sd = {r for r in pd if r[0] == 's'}
                isdot = p.mn.startswith('v_dot')
                if isdot:
                    if vd & (srcs | dsts):
                        same = ins.mn.startswith(p.mn.replace('_e32', ''))
                        if same and p.mn.startswith('v_dot2c') and not (vd & set(sum([regs_of(o) for o in ins.ops[1:]], []))):
                            req = max(req, 0)
                        elif same and not p.mn.startswith('v_dot2c') and \
                                not (vd & set(regs_of(ins.ops[1]) + regs_of(ins.ops[2]))):
                            req = max(req, 0)
                        else:
                            req = max(req, 3)
                if ins.kind == 'mfma' and vd & srcs:
                    req = max(req, 2)
                if ins.kind == 'mfma' and p.mn.startswith('v_pk_') and re.search(r'op_sel:\[[01,]*1', p.mods):
                    req = max(req, 1)
                if ins.kind == 'valu':
                    if is_dpp and vd & srcs:
                        req = max(req, 2)
                    if is_perm and vd & srcs:
                        req = max(req, 2)
                    if is_rl and vd & srcs:
                        req = max(req, 1)
                    if sd & srcs:
                        req = max(req, 4 if (ins.mn.startswith('v_readlane') or ins.mn.startswith('v_writelane') or
                                             ins.mn.startswith('v_div_fmas')) else 2)
                    if p.mn.replace('_e32', '').replace('_e64', '') in TRANS and vd & srcs:
                        req = max(req, 1)
                    if '_sdwa' in p.mn and vd & (srcs | dsts):
                        req = max(req, 1)
                    if ('s', 126) in sd and is_dpp:
                        req = max(req, 5)
                if ins.kind == 'vmem' and sd & srcs:
                    req = max(req, 5)
                if ins.kind == 'mfma' and ('s', 126) in sd:
                    req = max(req, 4)
            elif p.kind == 'mfma':
                ps = mfma_passes(p.mn)
                big = {4: 8, 8: 12}[ps]
                if ins.kind == 'mfma':
                    if pd & set(ins.srcab):
                        req = max(req, big)
                    if pd & set(ins.srcc):
                        if p.dst == ins.srcc and mfma_passes(ins.mn) == ps:
                            req = max(req, 0)
                        else:
                            req = max(req, big - 2)
                    if pd & dsts and not (p.dst == ins.srcc):
                        req = max(req, big)
                else:
                    if pd & (srcs | dsts):
                        req = max(req, big)
                    if ins.kind == 'valu' and set(p.srcc) & dsts:
                        req = max(req, {4: 3, 8: 7}[ps])
                    if ins.kind in ('ds', 'vmem') and set(p.srcc) & dsts:
                        req = max(req, {4: 3, 8: 7}[ps])
            elif p.kind == 'salu':
                if ('s', 124) in pd and is_lds_dma:
                    req = max(req, 1)
            elif p.kind in ('vmem', 'ds'):
                wide = ('store_dwordx4' in p.mn or 'store_dwordx3' in p.mn or 'write_b128' in p.mn or 'write_b96' in p.mn)
                if wide:
                    data = set(regs_of(p.ops[0])) if p.kind == 'vmem' and p.mn.startswith('buffer') else set(regs_of(p.ops[1]))
                    if data & dsts:
                        req = max(req, 2 if ins.kind in ('valu', 'mfma') else 1)
            need = max(need, req - dist)
        return need

    for g in stream.groups:
        for it in g:
            if isinstance(it, tuple):
                if it[0] == 'cmt':
                    out.append('; ' + it[1])
                elif it[0] == 'wait':
                    vm = max([t.seq for t in it[1] if t.cls == 'vm'], default=None)
                    lg = max([t.seq for t in it[1] if t.cls == 'lg'], default=None)
                    for t in it[1]:
                        assert t.seq is not None, 'wait on token not yet emitted'
                    do_wait(vm, lg)
                elif it[0] == 'touch':
                    vm = max([pend_vm[r] for r in it[1] if r in pend_vm], default=None)
                    lgs = [pend_lg[r] for r in it[1] if r in pend_lg]
                    lg = None
                    if lgs:
                        lg = 'smem' if 'smem' in lgs else max(lgs)
                    do_wait(vm, lg)
                elif it[0] == 'fence':
                    emit(Ins('s_waitcnt vmcnt(0) lgkmcnt(0)'))
                    vm_done, lg_done, smem_pending = vm_seq, lg_seq, False
                    pend_vm.clear()
                    pend_lg.clear()
                    emit(Ins('s_nop 7'))
                    emit(Ins('s_nop 3'))
                continue
            ins = it
            if ins.kind == 'label':
                out.append(ins)
                continue
            if ins.mn == 's_waitcnt':
                m = re.search(r'vmcnt\((\d+)\)', ins.text)
                if m:
                    vm_done = max(vm_done, vm_seq - int(m.group(1)))
                m = re.search(r'lgkmcnt\((\d+)\)', ins.text)
                if m:
                    if int(m.group(1)) == 0:
                        smem_pending = False
                        lg_done = lg_seq
                        for r in [r for r, s in pend_lg.items() if s == 'smem']:
                            del pend_lg[r]
                    elif not smem_pending:
                        lg_done = max(lg_done, lg_seq - int(m.group(1)))
                emit(ins)
                continue
            touched = set(ins.src) | set(ins.dst)
            vm = max([pend_vm[r] for r in touched if r in pend_vm], default=None)
            lgs = [pend_lg[r] for r in touched if r in pend_lg]
            lg = None
            if lgs:
                lg = 'smem' if 'smem' in lgs else max(lgs)
            do_wait(vm, lg)
            n = need_nops(ins)
            while n > 0:
                k = min(n, 16)
                emit(Ins('s_nop %d' % (k - 1)))
                n -= k
            emit(ins)
            for r in touched:
                if r in pend_vm and pend_vm[r] <= vm_done:
                    del pend_vm[r]
                if r in pend_lg and pend_lg[r] != 'smem' and pend_lg[r] <= lg_done:
                    del pend_lg[r]
            if ins.kind == 'vmem':
                vm_seq += 1
                for r in ins.dst:
                    pend_vm[r] = vm_seq
                if ins.tok is not None:
                    ins.tok.seq, ins.tok.cls = vm_seq, 'vm'
            elif ins.kind == 'ds':
                lg_seq += 1
                for r in ins.dst:
                    pend_lg[r] = lg_seq
                if ins.tok is not None:
                    ins.tok.seq, ins.tok.cls = lg_seq, 'lg'
            elif ins.kind == 'smem':
                smem_pending = True
                for r in ins.dst:
                    pend_lg[r] = 'smem'
    lines = []
    for o in out:
        if isinstance(o, str):
            lines.append('  ' + o)
        elif o.kind == 'label':
            lines.append(o.text)
        else:
            lines.append('  ' + o.text)
    return lines


class Alloc:
    def __init__(self, kind, lo, hi):
        self.kind = kind
        self.free = set(range(lo, hi))
        self.hw = lo

    def get(self, n=1, align=None, top=False):
        if align is None:
            align = 1 if n == 1 else (2 if n in (2, 3) else 4)
        cands = sorted(self.free, reverse=top)
        for c in cands:
            if c % align:
                continue
            if all((c + i) in self.free for i in range(n)):
                for i in range(n):
                    self.free.discard(c + i)
                self.hw = max(self.hw, c + n)
                return c
        raise RuntimeError('out of %s registers (need %d)' % (self.kind, n))

    def put(self, base, n=1):
        for i in range(n):
            assert (base + i) not in self.free
            self.free.add(base + i)


def vr(b, n=1):
    return 'v%d' % b if n == 1 else 'v[%d:%d]' % (b, b + n - 1)


def ar(b, n=1):
    return 'a%d' % b if n == 1 else 'a[%d:%d]' % (b, b + n - 1)


def sr(b, n=1):
    return 's%d' % b if n == 1 else 's[%d:%d]' % (b, b + n - 1)
```

```python
import sys, os
sys.path.insert(0, os.path.dirname(os.path.abspath(__file__)))
from asmlib import *

NAME = 'interleave_layers__ssm_conv_s5__ssm_conv_h3__prompt'
KN = NAME + '_kernel'

OPT = dict(stamps=0, slow=0, hbuf2=1)
for a_ in sys.argv[2:]:
    k_, v_ = a_.split('=')
    OPT[k_] = int(v_)

MT = 6
NRB = 22
NMAIN = 198
NAUX = 58
WS_KVF = 0x1000
WS_CPF = 0x3000
WS_HF = 0x4000
WS_WF = 0x8000
WS_GF = 0xA000
WS_RBG = 0xC000
WS_E = 0x10000
WS_ST = 0xA0000
ST_SZ = 22 * 24576
WS_KVT = 0x2C0000
KVT_STR = 4352
WS_CP = 0x540000
WS_H = 0x6C0000
H_SZ = 22 * 221184 * OPT['hbuf2']
WS_W = 0x1040000
WS_G = 0x12C0000
G_STR = 8448
WS_DBG = 0x2000000
WS_SIZE = 0x10000000
OOB = 0x7FFF0000

BLK = 12288
L_IMG = 0
L_RING = 9 * BLK
L_MISC = L_RING + 49152
LDS_SIZE = 163840
L_TAB = L_MISC
L_FX = L_MISC + 768
L_HALO = L_MISC + 3072
L_KRAW = 6 * BLK
L_VRAW = 7 * BLK
L_KVO = 8 * BLK
L_KC = L_RING
KC_CH = 16656
L_UC = L_IMG
UC_CH = 9280
L_CO = L_IMG + 2 * BLK
PART_ROW = 272
PART_W = 16 * PART_ROW
SPIN = 20000

P_X, P_LRE, P_LIM, P_BRE, P_BIM, P_CRE, P_CIM, P_LDT = [8 + 2 * i for i in range(8)]
P_DSK, P_Q, P_K, P_V, P_SHK, P_SSK, P_SSD, P_OUT = [24 + 2 * i for i in range(8)]
P_DBG, P_WS = 40, 42
R_WS, R_X, R_BRE, R_BIM, R_K, R_V, R_OUT, R_SK = [44 + 4 * i for i in range(8)]
S_RB, S_CG, S_FAST, S_WAVE, S_TAG, S_L, S_PAIR, S_SPIN = range(76, 84)
S_KP = 84
S_T0, S_T1, S_T2, S_T3 = 93, 94, 95, 96
S_ROLE = 97
S_M1, S_M2 = 98, 100
S_A, S_B, S_C = 3, 4, 5
S_PC = 6
S_TT = 8
S_TU = 17
S_MSEL = 26
S_MACT = 40
S_W1K = 17
S_RINGW = 18
S_PT = 19
S_XCC = 20

V = Alloc('v', 1, 256)
top = Stream()
tail = Stream()
lblc = [0]
STAMPS = []


def newlabel(p):
    lblc[0] += 1
    return 'L_%s_%d' % (p, lblc[0])


def put(*items):
    for it in items:
        if isinstance(it, tuple):
            V.put(*it)
        else:
            V.put(it)


def srd(a, r, p, size):
    a('s_mov_b32 %s, %s' % (sr(r), sr(p)))
    a('s_and_b32 %s, %s, 0xffff' % (sr(r + 1), sr(p + 1)))
    a('s_mov_b32 %s, 0x%x' % (sr(r + 2), size))
    a('s_mov_b32 %s, 0x20000' % sr(r + 3))


def cmul(a, d, x, y):
    a('v_pk_mul_f32 %s, %s, %s op_sel:[0,0] op_sel_hi:[1,0]' % (vr(d, 2), vr(x, 2), vr(y, 2)))
    a('v_pk_fma_f32 %s, %s, %s, %s op_sel:[1,1,0] op_sel_hi:[0,1,1] neg_lo:[1,0,0]' % (vr(d, 2), vr(x, 2), vr(y, 2), vr(d, 2)))


def cfma(a, d, x, y, c):
    a('v_pk_fma_f32 %s, %s, %s, %s op_sel:[0,0,0] op_sel_hi:[1,0,1]' % (vr(d, 2), vr(x, 2), vr(y, 2), vr(c, 2)))
    a('v_pk_fma_f32 %s, %s, %s, %s op_sel:[1,1,0] op_sel_hi:[0,1,1] neg_lo:[1,0,0]' % (vr(d, 2), vr(x, 2), vr(y, 2), vr(d, 2)))


def stamp(a, name):
    if not OPT['stamps']:
        return
    i = len(STAMPS)
    a('s_memrealtime %s' % sr(S_M2, 2), 's_waitcnt lgkmcnt(0)', 'v_writelane_b32 %s, %s, %d' % (vr(V_STAMP), sr(S_M2), i))
    STAMPS.append(name)


def poll(a, loads, checks, pre_issued=False):
    p = Stream()
    L = newlabel('poll')
    Lc = newlabel('pollc')
    acc = V.get(2, 1)
    p('s_mov_b32 %s, %d' % (sr(S_SPIN), SPIN))
    if pre_issued:
        regs = []
        for c in checks:
            regs += [vr(c[0])] + ([vr(c[1])] if c[1] is not None else [])
        p.touch(*regs)
        p.label(Lc)
    else:
        p.label(L)
        for t in loads:
            p(t)
        p('s_waitcnt vmcnt(0)')
    if len(checks) == 1 and checks[0][1] is None:
        p('v_cmp_ne_u32 vcc, %s, %s' % (vr(checks[0][0]), vr(checks[0][2])))
    else:
        first = True
        for (x, y, e) in checks:
            d = acc if first else acc + 1
            if y is None:
                p('v_xor_b32 %s, %s, %s' % (vr(d), vr(x), vr(e)))
            else:
                p('v_bitop3_b32 %s, %s, %s, %s bitop3:0x7e' % (vr(d), vr(x), vr(y), vr(e)))
            if not first:
                p('v_or_b32 %s, %s, %s' % (vr(acc), vr(acc), vr(acc + 1)))
            first = False
        p('v_cmp_ne_u32 vcc, 0, %s' % vr(acc))
    p('s_sub_u32 %s, %s, 1' % (sr(S_SPIN), sr(S_SPIN)))
    p('s_cselect_b64 vcc, 0, vcc')
    p('s_cmp_lg_u64 vcc, 0')
    p('s_cbranch_scc1 %s' % L)
    if pre_issued:
        tail.label(L)
        for t in loads:
            tail(t)
        tail('s_waitcnt vmcnt(0)')
        tail('s_branch %s' % Lc)
    a.join(p)
    V.put(acc, 2)


def dual(a, texts, touch=()):
    Ls, Lb = newlabel('slow'), newlabel('back')
    p = Stream()
    if touch:
        p.touch(*touch)
    p('s_cmp_eq_u32 %s, 0' % sr(S_FAST), 's_cbranch_scc1 %s' % Ls)
    tk = p.mem(*[t.replace(' {P}', '') for t in texts])
    p.label(Lb)
    a.join(p)
    tail.label(Ls)
    tail('s_nop 1')
    tail(*[t.replace('{P}', 'sc1') for t in texts])
    tail('s_branch %s' % Lb)
    return tk


def flag_texts(soff, pol):
    return ['s_mov_b64 exec, 1',
            'buffer_store_dword %s, %s, %s, %s offen %s' % (vr(V_TAG), vr(V_ZERO), sr(R_WS, 4), soff, pol),
            's_mov_b64 exec, -1']


def lam_loads(a, vp2):
    t = V.get(4)
    a('global_load_ushort %s, %s, %s' % (vr(t), vr(vp2), sr(P_LRE, 2)))
    a('global_load_ushort %s, %s, %s' % (vr(t + 1), vr(vp2), sr(P_LIM, 2)))
    a('global_load_ushort %s, %s, %s' % (vr(t + 2), vr(vp2), sr(P_LDT, 2)))
    return t


def lam_compute(a, t, want_coef, lam=None):
    if lam is None:
        lam = V.get(2)
    u = V.get(4)
    for i in range(3):
        a('v_lshlrev_b32 %s, 16, %s' % (vr(t + i), vr(t + i)))
    a('v_mul_f32 %s, 0x3fb8aa3b, %s' % (vr(t + 2), vr(t + 2)))
    a('v_exp_f32 %s, %s' % (vr(t + 2), vr(t + 2)))
    a('v_cvt_pk_bf16_f32 %s, %s, %s' % (vr(t + 2), vr(t + 2), vr(t + 2)))
    a('v_lshlrev_b32 %s, 16, %s' % (vr(t + 2), vr(t + 2)))
    a('v_mul_f32 %s, %s, %s' % (vr(u), vr(t + 2), vr(t)))
    a('v_mul_f32 %s, %s, %s' % (vr(u + 1), vr(t + 2), vr(t + 1)))
    a('v_mul_f32 %s, 0x3fb8aa3b, %s' % (vr(u), vr(u)))
    a('v_exp_f32 %s, %s' % (vr(u), vr(u)))
    a('v_mul_f32 %s, 0.15915494, %s' % (vr(u + 1), vr(u + 1)))
    a('v_rndne_f32 %s, %s' % (vr(u + 2), vr(u + 1)))
    a('v_sub_f32 %s, %s, %s' % (vr(u + 1), vr(u + 1), vr(u + 2)))
    a('v_cos_f32 %s, %s' % (vr(u + 2), vr(u + 1)))
    a('v_sin_f32 %s, %s' % (vr(u + 3), vr(u + 1)))
    a('v_mul_f32 %s, %s, %s' % (vr(lam), vr(u), vr(u + 2)))
    a('v_mul_f32 %s, %s, %s' % (vr(lam + 1), vr(u), vr(u + 3)))
    coef = None
    if want_coef:
        coef = V.get(2)
        a('v_add_f32 %s, -1.0, %s' % (vr(u), vr(lam)))
        a('v_mov_b32 %s, %s' % (vr(u + 1), vr(lam + 1)))
        a('v_mul_f32 %s, %s, %s' % (vr(u + 2), vr(t), vr(t)))
        a('v_fmac_f32 %s, %s, %s' % (vr(u + 2), vr(t + 1), vr(t + 1)))
        a('v_rcp_f32 %s, %s' % (vr(u + 2), vr(u + 2)))
        a('v_sub_f32 %s, 0, %s' % (vr(t + 1), vr(t + 1)))
        cmul(a, coef, u, t)
        a('v_mul_f32 %s, %s, %s' % (vr(coef), vr(coef), vr(u + 2)))
        a('v_mul_f32 %s, %s, %s' % (vr(coef + 1), vr(coef + 1), vr(u + 2)))
    put((u, 4), (t, 4))
    return lam, coef


def tag_ready(a):
    a('s_mul_i32 %s, %s, 0x9E3779B1' % (sr(S_TAG), sr(S_TAG)),
      's_add_u32 %s, %s, 0x7F4A7C15' % (sr(S_TAG), sr(S_TAG)),
      'v_mov_b32 %s, %s' % (vr(V_TAG), sr(S_TAG)))


def rbf(s, regs):
    for r in regs:
        s('v_cvt_pk_bf16_f32 %s, %s, %s' % (vr(r), vr(r), vr(r)))
    for r in regs:
        s('v_lshlrev_b32 %s, 16, %s' % (vr(r), vr(r)))


def rs12(s, S, Q):
    dp = 'v_add_f32_dpp %s, %s, %s %s row_mask:0xf bank_mask:0x%x'
    for X in (S, Q):
        for j in range(3):
            s(dp % (vr(X[j]), vr(X[j]), vr(X[j]), 'row_ror:8', 0x3))
    for X in (S, Q):
        for j in range(3):
            s(dp % (vr(X[j]), vr(X[j + 3]), vr(X[j + 3]), 'row_ror:8', 0xc))
    for X in (S, Q):
        s(dp % (vr(X[0]), vr(X[0]), vr(X[0]), 'row_half_mirror', 0x5))
        s(dp % (vr(X[2]), vr(X[2]), vr(X[2]), 'row_half_mirror', 0xf))
    for X in (S, Q):
        s(dp % (vr(X[0]), vr(X[1]), vr(X[1]), 'row_half_mirror', 0xa))
    for qp in ('quad_perm:[1,0,3,2]', 'quad_perm:[2,3,0,1]'):
        for r in (S[2], Q[2], S[0], Q[0]):
            s(dp % (vr(r), vr(r), vr(r), qp, 0xf))


def tile_src(i):
    hf, j = divmod(i, 3)
    if j == 2:
        return 1, 8 * hf
    return 0, 8 * hf + 4 * j


a = top
V_LANE, V_TAG, V_STAMP, V_L16, V_N, V_Q = [V.get() for _ in range(6)]
V_OOB = V.get()
V_ZERO = V.get(2)
V_DUMMY = V.get(4)
NCOMMON = V.hw
BASE = V.get(24)
V_DSK = V.get(4)
V_FA = V.get(4)
LAM, L12, L24, L384, LQ96, LQ24, RB, OFF = [V.get(2) for _ in range(8)]
(V_TAU, V_OROW, V_STW, V_STR, V_EXP9, V_TABW, V_EW, V_ER, V_HW, V_HR, V_FX, V_TABR, V_WA) = [V.get() for _ in range(13)]
V_DX = V.get(3, 1)

a('s_cmp_ge_u32 s2, 256')
a('s_cbranch_scc1 L_end')
a('s_load_dwordx16 s[8:23], s[0:1], 0')
a('s_load_dwordx16 s[24:39], s[0:1], 64')
a('s_load_dwordx4 s[40:43], s[0:1], 128')
a('s_getpc_b64 %s' % sr(S_PC, 2))
a.label('L_pc')
a('s_lshr_b32 %s, s2, 3' % sr(S_T0))
a('s_lshl_b32 %s, %s, 12' % (sr(S_T1), sr(S_T0)))
a('v_lshl_add_u32 %s, v0, 4, %s' % (vr(V_DUMMY), sr(S_T1)))
a('s_mov_b32 %s, L_end-L_pc-16' % sr(S_T1))
a('v_min_u32 %s, %s, %s' % (vr(V_DUMMY), sr(S_T1), vr(V_DUMMY)))
a('global_load_dwordx4 %s, %s, %s' % (vr(V_DUMMY, 4), vr(V_DUMMY), sr(S_PC, 2)))
a('v_and_b32 %s, 63, v0' % vr(V_LANE))
a('v_lshrrev_b32 %s, 6, v0' % vr(V_Q))
a('v_lshlrev_b32 %s, 4, %s' % (vr(V_L16), vr(V_LANE)))
a('v_readfirstlane_b32 %s, %s' % (sr(S_WAVE), vr(V_Q)))
if OPT['stamps']:
    a('v_mov_b32 %s, 0' % vr(V_STAMP))
stamp(a, 'start')
a('v_and_b32 %s, 15, %s' % (vr(V_N), vr(V_LANE)))
a('v_lshrrev_b32 %s, 4, %s' % (vr(V_Q), vr(V_LANE)))
a('v_mov_b32 %s, 0' % vr(V_ZERO))
a('v_mov_b32 %s, 0' % vr(V_ZERO + 1))
a('v_mov_b32 %s, 0x%x' % (vr(V_OOB), OOB))
a('s_and_b32 %s, s2, 7' % sr(S_T1))
a('s_mul_i32 %s, %s, 27' % (sr(S_T2), sr(S_T1)))
a('s_add_u32 %s, %s, %s' % (sr(S_T2), sr(S_T2), sr(S_T0)))
a('s_mul_i32 %s, %s, 5' % (sr(S_T3), sr(S_T1)))
a('s_add_u32 %s, %s, %s' % (sr(S_T3), sr(S_T3), sr(S_T0)))
a('s_add_u32 %s, %s, %d' % (sr(S_T3), sr(S_T3), 216 - 27))
a('s_cmp_lt_u32 %s, 27' % sr(S_T0))
a('s_cselect_b32 %s, %s, %s' % (sr(S_L), sr(S_T2), sr(S_T3)))
a('s_mul_i32 %s, %s, 57' % (sr(S_RB), sr(S_L)))
a('s_lshr_b32 %s, %s, 9' % (sr(S_RB), sr(S_RB)))
a('s_mul_i32 %s, %s, 9' % (sr(S_T0), sr(S_RB)))
a('s_sub_u32 %s, %s, %s' % (sr(S_CG), sr(S_L), sr(S_T0)))
a('s_mul_i32 %s, %s, 43' % (sr(S_T0), sr(S_RB)))
a('s_lshr_b32 %s, %s, 7' % (sr(S_T0), sr(S_T0)))
a('s_mul_i32 %s, %s, 3' % (sr(S_T0), sr(S_T0)))
a('s_sub_u32 %s, %s, %s' % (sr(S_T0), sr(S_RB), sr(S_T0)))
a('s_lshl_b32 %s, 1, %s' % (sr(S_T0), sr(S_T0)))
a('s_mov_b32 %s, %s' % (sr(S_KP), sr(S_CG)))
for i in range(1, 9):
    a('s_add_u32 %s, %s, %s' % (sr(S_KP + i), sr(S_KP + i - 1), sr(S_T0)))
    a('s_sub_u32 %s, %s, 9' % (sr(S_T1), sr(S_KP + i)))
    a('s_cselect_b32 %s, %s, %s' % (sr(S_KP + i), sr(S_KP + i), sr(S_T1)))
a('s_mov_b32 %s, %s' % (sr(S_PAIR), sr(S_L)))
a('s_mov_b32 %s, 0' % sr(S_ROLE))
a('s_and_b32 %s, %s, 1' % (sr(S_A), sr(S_WAVE)))
a('s_lshr_b32 %s, %s, 1' % (sr(S_B), sr(S_WAVE)))
a('s_waitcnt lgkmcnt(0)')
a('s_load_dword %s, %s, 0' % (sr(S_TAG), sr(P_WS, 2)))
srd(a, R_WS, P_WS, WS_SIZE)
a('s_cmp_ge_u32 %s, %d' % (sr(S_L), NMAIN))
a('s_cbranch_scc1 L_aux')
srd(a, R_K, P_K, 2048 * 1152)
srd(a, R_V, P_V, 2048 * 1152)

t, t2, t3 = V.get(), V.get(), V.get()
a('v_lshrrev_b32 %s, 3, %s' % (vr(t), vr(V_LANE)))
a('v_mul_u32_u24 %s, 1152, %s' % (vr(t2), vr(t)))
a('v_and_b32 %s, 7, %s' % (vr(t3), vr(V_LANE)))
a('v_lshl_add_u32 %s, %s, 4, %s' % (vr(t2), vr(t3), vr(t2)))
a('s_mul_i32 %s, %s, %d' % (sr(S_T0), sr(S_RB), 96 * 1152))
a('s_lshl_b32 %s, %s, 7' % (sr(S_T1), sr(S_CG)))
a('s_add_u32 %s, %s, %s' % (sr(S_T0), sr(S_T0), sr(S_T1)))
a('s_mul_i32 %s, %s, %d' % (sr(S_T1), sr(S_WAVE), 8 * 1152))
a('s_add_u32 %s, %s, %s' % (sr(S_T1), sr(S_T1), sr(S_T0)))
a('s_lshl_b32 %s, %s, 10' % (sr(S_T3), sr(S_WAVE)))
V_KH = V.get()
a('s_sub_u32 %s, %s, %d' % (sr(S_T0), sr(S_T0), 8 * 1152))
a('v_add_u32 %s, %s, %s' % (vr(V_KH), sr(S_T0), vr(t2)))
kvtok = None
for u in range(3):
    a('s_add_u32 %s, %s, %d' % (sr(S_T2), sr(S_T1), u * 32 * 1152),
      's_add_u32 m0, %s, %d' % (sr(S_T3), L_KRAW + u * 4096),
      'buffer_load_dwordx4 %s, %s, %s offen lds' % (vr(t2), sr(R_K, 4), sr(S_T2)),
      's_add_u32 m0, %s, %d' % (sr(S_T3), L_VRAW + u * 4096),
      'buffer_load_dwordx4 %s, %s, %s offen lds' % (vr(t2), sr(R_V, 4), sr(S_T2)))
kvtok = a.mem('s_mov_b32 m0, %d' % L_HALO,
              'buffer_load_dwordx4 %s, %s, 0 offen lds' % (vr(V_KH), sr(R_K, 4)))
put(V_KH)
srd(a, R_X, P_X, 2048 * 1152)
srd(a, R_BRE, P_BRE, 576 * 1152)
srd(a, R_BIM, P_BIM, 576 * 1152)
SHK = V.get(4)
a('s_lshl_b32 %s, %s, 2' % (sr(S_T0), sr(S_CG)))
a('s_add_u32 %s, %s, %s' % (sr(S_T0), sr(S_T0), sr(S_WAVE)))
a('s_lshl_b32 %s, %s, 7' % (sr(S_T1), sr(S_T0)))
a('v_lshl_add_u32 %s, %s, 4, %s' % (vr(t2), vr(t3), sr(S_T1)))
a('global_load_dwordx4 %s, %s, %s' % (vr(SHK, 4), vr(t2), sr(P_SHK, 2)))
a('s_lshl_b32 %s, %s, 7' % (sr(S_T1), sr(S_CG)))
a('v_lshl_add_u32 %s, %s, 3, %s' % (vr(t2), vr(V_N), sr(S_T1)))
a('global_load_dwordx2 %s, %s, %s' % (vr(V_DSK, 2), vr(t2), sr(P_DSK, 2)))
a('s_lshl_b32 %s, %s, 5' % (sr(S_T1), sr(S_T0)))
a('v_lshl_add_u32 %s, %s, 1, %s' % (vr(t2), vr(V_N), sr(S_T1)))
LAMT = lam_loads(a, t2)
a('s_mov_b32 %s, %s' % (sr(S_PT), sr(S_T0)))
a('s_mov_b32 %s, %s' % (sr(S_W1K), sr(S_T3)))
a('s_mul_i32 %s, %s, 12288' % (sr(S_RINGW), sr(S_WAVE)))
a('s_add_u32 %s, %s, %d' % (sr(S_RINGW), sr(S_RINGW), L_RING))
for i in range(9):
    a('s_lshl_b32 %s, %s, 7' % (sr(S_TT + i), sr(S_KP + i)))
V_DB = V.get(2)
c0 = V.get()
a('v_xor_b32 %s, %s, %s' % (vr(c0), vr(t3), vr(V_Q)))
a('v_lshlrev_b32 %s, 4, %s' % (vr(c0), vr(c0)))
a('v_lshrrev_b32 %s, 5, %s' % (vr(t2), vr(V_LANE)))
a('v_mul_u32_u24 %s, 24, %s' % (vr(t2), vr(t2)))
a('v_and_b32 %s, 1, %s' % (vr(t3), vr(t)))
a('v_mad_u32_u24 %s, %s, 12, %s' % (vr(t2), vr(t3), vr(t2)))
a('v_and_b32 %s, 1, %s' % (vr(t3), vr(V_Q)))
a('s_mul_i32 %s, %s, 48' % (sr(S_T0), sr(S_A)))
a('s_mul_i32 %s, %s, 96' % (sr(S_T1), sr(S_RB)))
a('s_add_u32 %s, %s, %s' % (sr(S_T0), sr(S_T0), sr(S_T1)))
a('s_lshl1_add_u32 %s, %s, %s' % (sr(S_T0), sr(S_B), sr(S_T0)))
a('v_add3_u32 %s, %s, %s, %s' % (vr(t2), vr(t2), vr(t3), sr(S_T0)))
a('v_mul_u32_u24 %s, 1152, %s' % (vr(t2), vr(t2)))
a('s_lshl_b32 %s, %s, 6' % (sr(S_T0), sr(S_A)))
a('v_xor_b32 %s, %s, %s' % (vr(V_DX), sr(S_T0), vr(c0)))
a('v_add_u32 %s, %s, %s' % (vr(V_DX), vr(V_DX), vr(t2)))
a('v_add_u32 %s, 4608, %s' % (vr(V_DX + 1), vr(V_DX)))
a('v_add_u32 %s, 9216, %s' % (vr(V_DX + 2), vr(V_DX)))


def x_dma(s, blk, layer):
    tk = None
    for u in range(3):
        tk = s.mem('s_add_u32 m0, %s, %d' % (sr(S_W1K), L_IMG + blk * BLK + u * 4096),
                   'buffer_load_dwordx4 %s, %s, %s offen%s lds' % (vr(V_DX + u), sr(R_X if layer == 0 else R_WS, 4),
                                                                   sr(S_TT + blk), '' if layer == 0 else ' sc1'))
    return tk


xtk = {}
xtk[0] = x_dma(a, 0, 0)
a('s_lshl_b32 %s, %s, 4' % (sr(S_T0), sr(S_PT)))
a('v_add_u32 %s, %s, %s' % (vr(t2), sr(S_T0), vr(t)))
a('v_mul_u32_u24 %s, 1152, %s' % (vr(t2), vr(t2)))
a('v_add_u32 %s, %s, %s' % (vr(V_DB), vr(t2), vr(c0)))
a('v_xor_b32 %s, 64, %s' % (vr(V_DB + 1), vr(c0)))
a('v_add_u32 %s, %s, %s' % (vr(V_DB + 1), vr(V_DB + 1), vr(t2)))
a('v_add_u32 %s, %d, %s' % (vr(V_DB + 1), 8 * 1152, vr(V_DB + 1)))
put(c0)

WB = lambda kp, h, mat: ((kp * 2 + h) * 2 + mat) * 4


def b_dma(s, kp):
    tk = None
    for b in range(4):
        tk = s.mem('s_add_u32 m0, %s, %d' % (sr(S_RINGW), (kp % 3) * 4096 + b * 1024),
                   'buffer_load_dwordx4 %s, %s, %s offen lds' % (vr(V_DB + (b & 1)), sr(R_BRE if b < 2 else R_BIM, 4), sr(S_TT + kp)))
    return tk


btk = {}
btk[0] = b_dma(a, 0)
iss = Stream()
xtk[1] = x_dma(iss, 1, 0)
btk[1] = b_dma(iss, 1)
xtk[2] = x_dma(iss, 2, 0)
btk[2] = b_dma(iss, 2)

su = Stream()
V_FB = V.get(2)
su('v_lshrrev_b32 %s, 1, %s' % (vr(t), vr(V_N)))
su('v_xor_b32 %s, %s, %s' % (vr(t), vr(t), vr(V_Q)))
su('v_lshlrev_b32 %s, 4, %s' % (vr(t), vr(t)))
su('v_lshl_add_u32 %s, %s, 7, %s' % (vr(V_FA), vr(V_N), vr(t)))
su('v_xor_b32 %s, 64, %s' % (vr(V_FA + 1), vr(V_FA)))
su('v_add_u32 %s, %d, %s' % (vr(V_FA + 2), 4 * BLK, vr(V_FA)))
su('v_add_u32 %s, %d, %s' % (vr(V_FA + 3), 4 * BLK, vr(V_FA + 1)))
su('v_add_u32 %s, %s, %s' % (vr(V_FB), sr(S_RINGW), vr(V_FA)))
su('v_add_u32 %s, %s, %s' % (vr(V_FB + 1), sr(S_RINGW), vr(V_FA + 1)))
srd(su, R_OUT, P_OUT, 2048 * 2304)
su('s_mov_b32 %s, 0x02020202' % sr(S_MSEL), 's_mov_b32 %s, 0x02020202' % sr(S_MSEL + 1))
su('s_mov_b32 %s, 0x13131313' % sr(S_MACT), 's_mov_b32 %s, 0x13131313' % sr(S_MACT + 1))
su('s_getreg_b32 %s, hwreg(HW_REG_XCC_ID, 0, 4)' % sr(S_XCC))
tag_ready(su)
su('v_and_b32 %s, 1, %s' % (vr(t), vr(V_Q)))
su('v_mul_u32_u24 %s, 12, %s' % (vr(V_TAU), vr(t)))
su('v_lshrrev_b32 %s, 1, %s' % (vr(t2), vr(V_Q)))
su('v_add_u32 %s, %s, %s' % (vr(V_TAU), vr(V_TAU), vr(t2)))
su('s_mul_i32 %s, %s, 96' % (sr(S_T0), sr(S_RB)),
   's_mul_i32 %s, %s, 24' % (sr(S_T1), sr(S_WAVE)),
   's_add_u32 %s, %s, %s' % (sr(S_T0), sr(S_T0), sr(S_T1)),
   'v_add_u32 %s, %s, %s' % (vr(t3), sr(S_T0), vr(V_TAU)))
su('v_mul_u32_u24 %s, 2304, %s' % (vr(V_OROW), vr(t3)))
su('s_lshl_b32 %s, %s, 8' % (sr(S_T0), sr(S_CG)),
   'v_lshl_add_u32 %s, %s, 4, %s' % (vr(t3), vr(V_N), sr(S_T0)))
su('v_add_u32 %s, %s, %s' % (vr(V_OROW), vr(V_OROW), vr(t3)))
TI = V.get()
su('v_lshrrev_b32 %s, 3, %s' % (vr(TI), vr(V_N)))
su('v_mul_u32_u24 %s, 3, %s' % (vr(TI), vr(TI)))
su('v_bfe_u32 %s, %s, 2, 1' % (vr(t3), vr(V_N)))
su('v_cndmask_b32 %s, %s, 2, %s' % (vr(t3), vr(t3), sr(S_MSEL, 2)))
su('v_add_u32 %s, %s, %s' % (vr(TI), vr(TI), vr(t3)))
su('v_lshl_add_u32 %s, %s, 1, %s' % (vr(t3), vr(TI), vr(t2)))
su('v_lshlrev_b32 %s, 4, %s' % (vr(t3), vr(t3)))
su('v_lshl_add_u32 %s, %s, 2, %s' % (vr(V_TABW), vr(t), vr(t3)))
su('s_mul_i32 %s, %s, 192' % (sr(S_T0), sr(S_WAVE)),
   's_add_u32 %s, %s, %d' % (sr(S_T0), sr(S_T0), L_TAB),
   'v_add_u32 %s, %s, %s' % (vr(V_TABW), sr(S_T0), vr(V_TABW)))
su('v_mul_u32_u24 %s, 192, %s' % (vr(V_TABR), vr(V_Q)))
su('v_add_u32 %s, %d, %s' % (vr(V_TABR), L_TAB, vr(V_TABR)))
su('s_mul_i32 %s, %s, 96' % (sr(S_T0), sr(S_RB)),
   's_lshl2_add_u32 %s, %s, %s' % (sr(S_T0), sr(S_WAVE), sr(S_T0)),
   'v_add_u32 %s, %s, %s' % (vr(t), sr(S_T0), vr(V_Q)))
su('v_lshlrev_b32 %s, 8, %s' % (vr(t), vr(t)))
su('v_lshl_add_u32 %s, %s, 4, %s' % (vr(V_STR), vr(V_N), vr(t)))
su('v_cmp_gt_u32 vcc, 9, %s' % vr(V_N),
   'v_cndmask_b32 %s, %s, %s, vcc' % (vr(V_STR), vr(V_OOB), vr(V_STR)),
   'v_cndmask_b32 %s, 0, %s, vcc' % (vr(V_EXP9), vr(V_TAG)))
su('v_lshl_add_u32 %s, %s, 12, %s' % (vr(V_STW), vr(TI), vr(t)))
su('s_lshl_b32 %s, %s, 4' % (sr(S_T0), sr(S_CG)),
   'v_add_u32 %s, %s, %s' % (vr(V_STW), sr(S_T0), vr(V_STW)))
su('v_cndmask_b32 %s, %s, %s, %s' % (vr(V_STW), vr(V_OOB), vr(V_STW), sr(S_MACT, 2)))
put(TI)
su('s_lshl_b32 %s, %s, 2' % (sr(S_T0), sr(S_WAVE)),
   'v_add_u32 %s, %s, %s' % (vr(V_WA), sr(S_T0), vr(V_Q)))
su('v_xor_b32 %s, %s, %s' % (vr(t), vr(V_WA), vr(V_N)))
su('v_lshrrev_b32 %s, 1, %s' % (vr(t), vr(t)))
su('v_lshlrev_b32 %s, 4, %s' % (vr(t), vr(t)))
su('v_lshl_add_u32 %s, %s, 7, %s' % (vr(V_WA), vr(V_WA), vr(t)))
su('v_and_b32 %s, 1, %s' % (vr(t), vr(V_N)))
su('v_lshl_add_u32 %s, %s, 3, %s' % (vr(V_WA), vr(t), vr(V_WA)))
su('s_lshl_b32 %s, %s, 8' % (sr(S_T0), sr(S_RB)),
   'v_lshl_add_u32 %s, %s, 4, %s' % (vr(V_EW), vr(V_N), sr(S_T0)))
su('v_lshlrev_b32 %s, 8, %s' % (vr(t), vr(V_Q)))
su('v_sub_u32 %s, %s, %s' % (vr(V_ER), vr(V_EW), vr(t)))
su('v_subrev_u32 %s, 256, %s' % (vr(V_ER), vr(V_ER)))
su('v_cmp_gt_u32 vcc, 16, %s' % vr(V_LANE),
   'v_cndmask_b32 %s, %s, %s, vcc' % (vr(V_EW), vr(V_OOB), vr(V_EW)))
su('v_lshl_add_u32 %s, %s, 2, %s' % (vr(t), vr(V_N), vr(t)))
su('v_add_u32 %s, %s, %s' % (vr(V_HW), sr(S_RINGW), vr(t)))
su('v_lshlrev_b32 %s, 4, %s' % (vr(t), vr(V_Q)))
su('v_lshl_add_u32 %s, %s, 6, %s' % (vr(t), vr(V_N), vr(t)))
su('v_add_u32 %s, %s, %s' % (vr(V_HR), sr(S_RINGW), vr(t)))
su('s_lshl_b32 %s, %s, 9' % (sr(S_T0), sr(S_WAVE)),
   's_add_u32 %s, %s, %d' % (sr(S_T0), sr(S_T0), L_FX),
   'v_lshl_add_u32 %s, %s, 5, %s' % (vr(V_FX), vr(V_N), sr(S_T0)))
put(t, t2, t3)
a.weave(su, iss)
stamp(a, 'issued')


def b_read(s, kp):
    s.wait(btk[kp])
    tk = None
    for h in range(2):
        for mat in range(2):
            tk = s.mem('ds_read_b128 %s, %s offset:%d' % (ar(WB(kp, h, mat), 4), vr(V_FB + h), (kp % 3) * 4096 + mat * 2048))
    return tk


def kv_stream():
    s = Stream()
    W = V.get(8, 1)
    ka, kb, kh, t, t2 = [V.get() for _ in range(5)]
    s('v_lshrrev_b32 %s, 3, %s' % (vr(t), vr(V_LANE)))
    s('v_and_b32 %s, 7, %s' % (vr(t2), vr(V_LANE)))
    s('s_lshl_b32 %s, %s, 5' % (sr(S_T0), sr(S_WAVE)),
      'v_lshl_add_u32 %s, %s, 2, %s' % (vr(kh), vr(t2), sr(S_T0)))
    s('v_mul_u32_u24 %s, 1536, %s' % (vr(ka), vr(t)))
    s('v_add_u32 %s, %s, %s' % (vr(ka), vr(ka), vr(kh)))
    s('v_add_u32 %s, %d, %s' % (vr(ka), L_KRAW, vr(ka)))
    s('v_add_u32 %s, 128, %s' % (vr(kb), vr(ka)))
    s('v_add_u32 %s, %d, %s' % (vr(kh), L_HALO + 5 * 128, vr(kh)))
    s('v_subrev_u32 %s, 384, %s' % (vr(t2), vr(ka)))
    s('v_cmp_eq_u32 vcc, 0, %s' % vr(t), 'v_cndmask_b32 %s, %s, %s, vcc' % (vr(kh), vr(t2), vr(kh)))
    KR = V.get(16, 2)
    VR = V.get(12, 2)
    ridx = lambda r: (r >> 2) * 4 + (r & 1) * 2 + ((r >> 1) & 1)
    krow = lambda r: KR + 3 + r if r < 0 else KR + 4 + ridx(r)
    vrow = lambda r: VR + ridx(r)
    s.wait(kvtok)
    s('s_barrier')
    s('ds_read2_b32 %s, %s offset0:0 offset1:32' % (vr(KR, 2), vr(kh)))
    s('ds_read_b32 %s, %s offset:256' % (vr(KR + 2), vr(kh)))
    for g in range(3):
        for par in range(2):
            s('ds_read2st64_b32 %s, %s offset0:%d offset1:%d' % (vr(KR + 4 + g * 4 + par * 2, 2), vr(kb if par else ka), 2 * g, 2 * g + 1))
        for par in range(2):
            s('ds_read2st64_b32 %s, %s offset0:%d offset1:%d' % (vr(VR + g * 4 + par * 2, 2), vr(kb if par else ka), 48 + 2 * g, 48 + 2 * g + 1))
    for j in range(4):
        src0 = SHK + (j >> 1)
        src1 = SHK + 2 + (j >> 1)
        if j & 1:
            s('v_lshrrev_b32 %s, 16, %s' % (vr(W + 2 * j), vr(src0)))
            s('v_and_b32 %s, 0xffff0000, %s' % (vr(W + 2 * j + 1), vr(src1)))
        else:
            s('v_and_b32 %s, 0xffff, %s' % (vr(W + 2 * j), vr(src0)))
            s('v_lshlrev_b32 %s, 16, %s' % (vr(W + 2 * j + 1), vr(src1)))
    ONE2 = V.get()
    s('v_mov_b32 %s, 0x3f803f80' % vr(ONE2))
    P = V.get(16, 1)
    KVv = V.get(4, 1)
    OUTP = V.get(12, 2)
    M = V.get(4, 1)
    for tp in range(6):
        idx = [(tt, ch) for tt in range(2) for ch in range(2)]
        for u, (tt, ch) in enumerate(idx):
            tq = 2 * tp + tt
            for j in range(4):
                s('v_dot2_f32_bf16 %s, %s, %s, 0' % (vr(P + u * 4 + j), vr(krow(tq - j)), vr(W + 2 * j + ch)))
        for step in range(3):
            for u in range(4):
                s('v_cvt_pk_bf16_f32 %s, %s, %s' % (vr(P + u * 4 + 3), vr(P + u * 4 + 3), vr(P + u * 4 + 2 - step)))
            for u in range(4):
                s('v_dot2_f32_bf16 %s, %s, %s, 0' % (vr(P + u * 4 + 3), vr(P + u * 4 + 3), vr(ONE2)))
        for tt in range(2):
            tq = 2 * tp + tt
            s('v_and_b32 %s, 0xffff, %s' % (vr(M + 2 * tt), vr(vrow(tq))))
            s('v_and_b32 %s, 0xffff0000, %s' % (vr(M + 2 * tt + 1), vr(vrow(tq))))
        for tt in range(2):
            s('v_cvt_pk_bf16_f32 %s, %s, %s' % (vr(P + tt * 8), vr(P + tt * 8 + 3), vr(P + tt * 8 + 7)))
        for u, (tt, ch) in enumerate(idx):
            s('v_dot2_f32_bf16 %s, %s, %s, 0' % (vr(KVv + u), vr(P + tt * 8), vr(M + 2 * tt + ch)))
        for ch in range(2):
            s('v_cvt_pk_bf16_f32 %s, %s, %s' % (vr(OUTP + ch * 6 + 5 - tp), vr(KVv + 2 + ch), vr(KVv + ch)))
    put((W, 8), ONE2, (P, 16), (KVv, 4), (M, 4), (KR, 16), (VR, 12), (SHK, 4))
    s('v_and_b32 %s, 7, %s' % (vr(t2), vr(V_LANE)))
    s('v_mul_u32_u24 %s, 384, %s' % (vr(ka), vr(t2)))
    s('v_sub_u32 %s, 7, %s' % (vr(t), vr(t)))
    s('v_mad_u32_u24 %s, %s, 24, %s' % (vr(ka), vr(t), vr(ka)))
    s('s_mul_i32 %s, %s, 3072' % (sr(S_T0), sr(S_WAVE)),
      's_add_u32 %s, %s, %d' % (sr(S_T0), sr(S_T0), L_KVO),
      'v_add_u32 %s, %s, %s' % (vr(ka), sr(S_T0), vr(ka)),
      'v_add_u32 %s, %s, %s' % (vr(kb), sr(S_T0), vr(V_L16)))
    tk = None
    for ch in range(2):
        for k in range(3):
            tk = s.mem('ds_write_b64 %s, %s offset:%d' % (vr(ka), vr(OUTP + ch * 6 + 2 * k, 2), ch * 192 + 8 * k))
    D = V.get(12)
    AD = V.get(3, 1)
    for i in range(3):
        s('v_add_u32 %s, %d, %s' % (vr(t), 64 * i, vr(V_LANE)))
        s('v_mul_u32_u24 %s, 171, %s' % (vr(t2), vr(t)))
        s('v_lshrrev_b32 %s, 11, %s' % (vr(t2), vr(t2)))
        s('v_mul_u32_u24 %s, %d, %s' % (vr(t2), KVT_STR - 192, vr(t2)))
        s('v_lshl_add_u32 %s, %s, 4, %s' % (vr(AD + i), vr(t), vr(t2)))
    s.wait(tk)
    for i in range(3):
        s('ds_read_b128 %s, %s offset:%d' % (vr(D + 4 * i, 4), vr(kb), i * 1024))
    toks = []
    for i in range(3):
        toks.append(s.mem('s_mul_i32 %s, %s, %d' % (sr(S_T0), sr(S_PT), 16 * KVT_STR),
                          's_mul_i32 %s, %s, 192' % (sr(S_T1), sr(S_RB)),
                          's_sub_u32 %s, %s, %s' % (sr(S_T0), sr(S_T0), sr(S_T1)),
                          's_add_u32 %s, %s, %d' % (sr(S_T0), sr(S_T0), WS_KVT + 128 + 3904),
                          'buffer_store_dwordx4 %s, %s, %s, %s offen sc1' % (vr(D + 4 * i, 4), vr(AD + i), sr(R_WS, 4), sr(S_T0))))
    f = Stream()
    f.wait(*toks)
    f('s_lshl_b32 %s, %s, 5' % (sr(S_T0), sr(S_PT)),
      's_add_u32 %s, %s, %s' % (sr(S_T0), sr(S_T0), sr(S_RB)),
      's_lshl_b32 %s, %s, 2' % (sr(S_T0), sr(S_T0)),
      's_add_u32 %s, %s, %d' % (sr(S_T0), sr(S_T0), WS_KVF),
      *flag_texts(sr(S_T0), 'sc1'))
    rel = [(OUTP, 12), ka, kb, kh, t, t2, (D, 12), (AD, 3)]
    return s, f, rel


def stats_publish(s, X, which, fast):
    S = V.get(6, 1)
    Q = V.get(6, 1)
    d = V.get(4)
    e = V.get(2)
    for i in range(MT):
        s('v_pk_add_f32 %s, %s, %s' % (vr(d, 2), vr(X + 4 * i, 2), vr(X + 4 * i + 2, 2)),
          'v_pk_mul_f32 %s, %s, %s' % (vr(e, 2), vr(X + 4 * i, 2), vr(X + 4 * i, 2)),
          'v_add_f32 %s, %s, %s' % (vr(S + i), vr(d), vr(d + 1)),
          'v_pk_fma_f32 %s, %s, %s, %s' % (vr(e, 2), vr(X + 4 * i + 2, 2), vr(X + 4 * i + 2, 2), vr(e, 2)),
          'v_add_f32 %s, %s, %s' % (vr(Q + i), vr(e), vr(e + 1)))
    s('v_mov_b32 %s, %s' % (vr(d + 1), vr(V_TAG)))
    if which == 0:
        s('v_add_u32 %s, %s, %s' % (vr(d + 3), sr(S_XCC), vr(V_TAG)))
    else:
        s('v_mov_b32 %s, %s' % (vr(d + 3), vr(V_TAG)))
    rs12(s, [S + i for i in range(6)], [Q + i for i in range(6)])
    s('v_cndmask_b32 %s, %s, %s, %s' % (vr(d), vr(S), vr(S + 2), sr(S_MSEL, 2)))
    s('v_cndmask_b32 %s, %s, %s, %s' % (vr(d + 2), vr(Q), vr(Q + 2), sr(S_MSEL, 2)))
    txt = ['s_mov_b32 %s, %d' % (sr(S_T0), WS_ST + which * ST_SZ),
           'buffer_store_dwordx4 %s, %s, %s, %s offen {P}' % (vr(d, 4), vr(V_STW), sr(R_WS, 4), sr(S_T0)), 's_nop 1']
    if fast:
        dual(s, txt)
    else:
        s(*[x.replace('{P}', 'sc1') for x in txt])
    put((S, 6), (Q, 6), (d, 4), (e, 2))


def stats_loads(which, G):
    L = []
    for i in range(MT):
        L.append('s_mov_b32 %s, %d' % (sr(S_T0), WS_ST + which * ST_SZ + 4096 * i))
        L.append('buffer_load_dwordx4 %s, %s, %s, %s offen sc1' % (vr(G + 4 * i, 4), vr(V_STR), sr(R_WS, 4), sr(S_T0)))
    return L


def stats_finish(s, G):
    rs12(s, [G + 4 * i for i in range(6)], [G + 4 * i + 2 for i in range(6)])
    P = V.get(4)
    for k, src in ((0, G), (1, G + 8)):
        s('v_mul_f32 %s, 0x3ae38e39, %s' % (vr(P + 2 * k), vr(src)))
        s('v_mul_f32 %s, 0x3ae38e39, %s' % (vr(P + 2 * k + 1), vr(src + 2)))
    for k in range(2):
        s('v_fma_f32 %s, -%s, %s, %s' % (vr(P + 2 * k + 1), vr(P + 2 * k), vr(P + 2 * k), vr(P + 2 * k + 1)))
    for k in range(2):
        s('v_max_f32 %s, 0, %s' % (vr(P + 2 * k + 1), vr(P + 2 * k + 1)))
    return P


def bcast(s, dst, P, i):
    k, lane = tile_src(i)
    s('v_mov_b64_dpp %s, %s row_newbcast:%d row_mask:0xf bank_mask:0xf' % (vr(dst, 2), vr(P + 2 * k, 2), lane))


def ln_table(s, layer, G, RBG):
    P = stats_finish(s, G)
    put((G, 24))
    mu = [P, P + 2]
    va = [P + 1, P + 3]
    if layer == 0:
        rbf(s, mu + va)
        for r in va:
            s('v_add_f32 %s, 0x3727c5ac, %s' % (vr(r), vr(r)))
        rbf(s, va)
        for r in va:
            s('v_sqrt_f32 %s, %s' % (vr(r), vr(r)))
        rbf(s, va)
        for r in va:
            s('v_rcp_f32 %s, %s' % (vr(r), vr(r)))
        s('v_mov_b32 %s, %s' % (vr(OFF), vr(mu[0])), 'v_mov_b32 %s, %s' % (vr(OFF + 1), vr(mu[1])))
        s('v_mov_b32 %s, %s' % (vr(RB), vr(RBG)), 'v_mov_b32 %s, %s' % (vr(RB + 1), vr(RBG + 2)))
    else:
        for r in va:
            s('v_add_f32 %s, 0x3727c5ac, %s' % (vr(r), vr(r)))
        for r in va:
            s('v_rsq_f32 %s, %s' % (vr(r), vr(r)))
        s('v_add_f32 %s, %s, %s' % (vr(OFF), vr(OFF), vr(mu[0])), 'v_add_f32 %s, %s, %s' % (vr(OFF + 1), vr(OFF + 1), vr(mu[1])))
    d = V.get(2)
    s('v_cndmask_b32 %s, %s, %s, %s' % (vr(d), vr(va[0]), vr(va[1]), sr(S_MSEL, 2)))
    s('v_cndmask_b32 %s, %s, %s, %s' % (vr(d + 1), vr(mu[0]), vr(mu[1]), sr(S_MSEL, 2)))
    s('v_mul_f32 %s, %s, %s' % (vr(d + 1), vr(d + 1), vr(d)))
    tk = s.mem('s_mov_b64 exec, %s' % sr(S_MACT, 2),
               'ds_write2_b32 %s, %s, %s offset0:0 offset1:2' % (vr(V_TABW), vr(d), vr(d + 1)),
               's_mov_b64 exec, -1')
    r = Stream()
    b = V.get(2)
    tmp = V.get(4)
    for i in range(MT):
        x = BASE + 4 * i
        bcast(r, b, P, i)
        for k in range(2):
            r('v_pk_add_f32 %s, %s, %s op_sel:[0,0] op_sel_hi:[1,0] neg_lo:[0,1] neg_hi:[0,1]' % (vr(x + 2 * k, 2), vr(x + 2 * k, 2), vr(b, 2)))
        if layer == 0:
            for k in range(2):
                r('v_cvt_pk_bf16_f32 %s, %s, %s' % (vr(tmp + 2 * k), vr(x + 2 * k), vr(x + 2 * k + 1)))
            for rep in range(3):
                for k in range(2):
                    r('v_and_b32 %s, 0xffff0000, %s' % (vr(tmp + 2 * k + 1), vr(tmp + 2 * k)),
                      'v_lshlrev_b32 %s, 16, %s' % (vr(tmp + 2 * k), vr(tmp + 2 * k)))
                for k in range(2):
                    if rep == 0:
                        r('v_pk_mul_f32 %s, %s, %s op_sel:[0,1] op_sel_hi:[1,1]' % (vr(tmp + 2 * k, 2), vr(tmp + 2 * k, 2), vr(b, 2)))
                    elif rep == 1:
                        r('v_pk_mul_f32 %s, %s, %s' % (vr(tmp + 2 * k, 2), vr(tmp + 2 * k, 2), vr(V_DSK + 2 * k, 2)))
                    else:
                        r('v_pk_add_f32 %s, %s, %s' % (vr(x + 2 * k, 2), vr(x + 2 * k, 2), vr(tmp + 2 * k, 2)))
                if rep < 2:
                    for k in range(2):
                        r('v_cvt_pk_bf16_f32 %s, %s, %s' % (vr(tmp + 2 * k), vr(tmp + 2 * k), vr(tmp + 2 * k + 1)))
        else:
            for k in range(2):
                r('v_pk_fma_f32 %s, %s, %s, 1.0 op_sel:[0,1,0] op_sel_hi:[1,1,0]' % (vr(tmp + 2 * k, 2), vr(V_DSK + 2 * k, 2), vr(b, 2)))
            for k in range(2):
                r('v_pk_mul_f32 %s, %s, %s' % (vr(x + 2 * k, 2), vr(x + 2 * k, 2), vr(tmp + 2 * k, 2)))
    rel = [(P, 4), (d, 2), (b, 2), (tmp, 4)]
    return tk, r, rel


def a_reads(k, AF):
    s = Stream()
    kp, h = k >> 1, k & 1
    base = V_FA + h + (2 if kp >= 4 else 0)
    off = (kp - (4 if kp >= 4 else 0)) * BLK
    for i in range(MT):
        s('ds_read_b128 %s, %s offset:%d' % (vr(AF + (k & 1) * 24 + i * 4, 4), vr(base), off + i * 2048))
    return s


def b_mfmas(k, ACC, AF):
    s = Stream()
    kp, h = k >> 1, k & 1
    for i in range(MT):
        for mat in range(2):
            d = ACC + (mat * MT + i) * 4
            s('v_mfma_f32_16x16x32_bf16 %s, %s, %s, %s' % (vr(d, 4), vr(AF + (k & 1) * 24 + i * 4, 4), ar(WB(kp, h, mat), 4),
                                                          '0' if k == 0 else vr(d, 4)))
    return s


def split(stream, n):
    g = stream.groups
    parts = []
    for i in range(n):
        p = Stream()
        p.groups = g[len(g) * i // n: len(g) * (i + 1) // n]
        parts.append(p)
    return parts


def gemm_b(a, ACC, AF, xtok, pre, side, lastwait=None):
    a.wait(xtok(0))
    a('s_barrier')
    a.extend(a_reads(0, AF))
    for k in range(18):
        if k in pre:
            a.extend(pre[k])
        if k & 1 and k < 17:
            a.wait(xtok((k + 1) >> 1))
            if k == 15 and lastwait is not None:
                a.wait(lastwait())
            a('s_barrier')
        m = b_mfmas(k, ACC, AF)
        if k < 17:
            m = weave(m, a_reads(k + 1, AF), 0.0, 0.6)
        if k in side:
            m = weave(m, side[k])
        a.extend(m)


class Conv:
    pass


def conv_setup_k(s, cv):
    s('s_lshl1_add_u32 %s, %s, %s' % (sr(S_T0), sr(S_PAIR), sr(S_B)),
      's_lshl_b32 %s, %s, 12' % (sr(S_T1), sr(S_T0)),
      's_add_u32 %s, %s, %s' % (sr(R_SK), sr(P_SSK), sr(S_T1)),
      's_addc_u32 %s, %s, 0' % (sr(R_SK + 1), sr(P_SSK + 1)),
      's_and_b32 %s, %s, 0xffff' % (sr(R_SK + 1), sr(R_SK + 1)),
      's_mov_b32 %s, 4096' % sr(R_SK + 2),
      's_mov_b32 %s, 0x20000' % sr(R_SK + 3))
    cv.SD = V.get(2)
    cv.HD = V.get()
    t = V.get()
    s('s_lshl_b32 %s, %s, 2' % (sr(S_T1), sr(S_PAIR)),
      'v_mov_b32 %s, %s' % (vr(t), sr(S_T1)),
      'global_load_dword %s, %s, %s' % (vr(cv.SD), vr(t), sr(P_SSD, 2)))
    s('v_add_u32 %s, %s, %s' % (vr(t), vr(V_N), vr(V_Q)),
      'v_subrev_u32 %s, 16, %s' % (vr(t), vr(t)),
      'v_lshlrev_b32 %s, 2, %s' % (vr(t), vr(t)),
      'buffer_load_dword %s, %s, %s, 0 offen' % (vr(cv.HD), vr(t), sr(R_SK, 4)))
    put(t)
    for c in range(2):
        g = ['s_mul_i32 %s, %s, %d' % (sr(S_T2), sr(S_B), KC_CH),
             's_mul_i32 %s, %s, %d' % (sr(S_T3), sr(S_A), (16 + 8320) if c == 0 else 8320),
             's_add_u32 %s, %s, %s' % (sr(S_T3), sr(S_T3), sr(S_T2)),
             's_add_u32 m0, %s, %d' % (sr(S_T3), L_KC + 64 + (0 if c == 0 else 16 + 4160)),
             's_lshl_b32 %s, %s, 3' % (sr(S_T1), sr(S_A)),
             's_add_u32 %s, %s, %d' % (sr(S_T1), sr(S_T1), 4 * c)]
        for part in range(4):
            g.append('buffer_load_dwordx4 %s, %s, %s offen offset:%d lds' % (vr(V_L16), sr(R_SK, 4), sr(S_T1), part * 1024))
        cv.ktk = s.mem(*g)


def conv_flag_prep(s, cv):
    cv.fa, cv.fe, cv.fv = V.get(), V.get(), V.get()
    s('s_lshr_b32 %s, %s, 3' % (sr(S_T1), sr(S_PAIR)),
      's_lshl_b32 %s, %s, 7' % (sr(S_T1), sr(S_T1)),
      's_add_u32 %s, %s, %d' % (sr(S_T1), sr(S_T1), WS_KVF),
      'v_lshl_add_u32 %s, %s, 2, %s' % (vr(cv.fa), vr(V_LANE), sr(S_T1)))
    s('v_cmp_gt_u32 vcc, %d, %s' % (NRB, vr(V_LANE)),
      'v_cndmask_b32 %s, %s, %s, vcc' % (vr(cv.fa), vr(V_OOB), vr(cv.fa)),
      'v_cndmask_b32 %s, 0, %s, vcc' % (vr(cv.fe), vr(V_TAG)))
    cv.fload = 'buffer_load_dword %s, %s, %s, 0 offen sc1' % (vr(cv.fv), vr(cv.fa), sr(R_WS, 4))


def conv_u_loads(s, cv):
    cv.U = V.get(10)
    U, fa = cv.U, cv.fa
    s('s_lshl_b32 %s, %s, 6' % (sr(S_T3), sr(S_A)),
      'v_add_u32 %s, %s, %s' % (vr(fa), sr(S_T3), vr(V_LANE)),
      'v_cmp_ne_u32 vcc, 127, %s' % vr(fa),
      'v_cndmask_b32 %s, %s, %s, vcc' % (vr(fa), vr(V_OOB), vr(V_L16)))
    s('s_lshl1_add_u32 %s, %s, %s' % (sr(S_T0), sr(S_PAIR), sr(S_B)),
      's_mul_i32 %s, %s, %d' % (sr(S_T1), sr(S_T0), KVT_STR),
      's_lshl_b32 %s, %s, 11' % (sr(S_T3), sr(S_A)),
      's_add_u32 %s, %s, %s' % (sr(S_T1), sr(S_T1), sr(S_T3)),
      's_add_u32 %s, %s, %d' % (sr(S_T1), sr(S_T1), WS_KVT + 128),
      'buffer_load_dwordx4 %s, %s, %s, %s offen sc1' % (vr(U, 4), vr(V_L16), sr(R_WS, 4), sr(S_T1)),
      'buffer_load_dword %s, %s, %s, %s offen offset:16 sc1' % (vr(U + 8), vr(V_L16), sr(R_WS, 4), sr(S_T1)),
      'buffer_load_dwordx4 %s, %s, %s, %s offen offset:1024 sc1' % (vr(U + 4, 4), vr(V_L16), sr(R_WS, 4), sr(S_T1)),
      'buffer_load_dword %s, %s, %s, %s offen offset:1040 sc1' % (vr(U + 9), vr(fa), sr(R_WS, 4), sr(S_T1)))


def conv_body(a, cv, side=None):
    fa, fe, U, HD, SD = cv.fa, cv.fe, cv.U, cv.HD, cv.SD
    t = V.get()
    a('s_mul_i32 %s, %s, %d' % (sr(S_T2), sr(S_B), KC_CH))
    a('v_mul_u32_u24 %s, 4160, %s' % (vr(fa), vr(V_Q)))
    a('v_min_u32 %s, 1, %s' % (vr(fe), vr(V_Q)))
    a('v_lshl_add_u32 %s, %s, 4, %s' % (vr(fa), vr(fe), vr(fa)))
    a('v_lshl_add_u32 %s, %s, 2, %s' % (vr(fa), vr(V_N), vr(fa)))
    a('s_add_u32 %s, %s, %d' % (sr(S_T3), sr(S_T2), L_KC))
    a('v_add_u32 %s, %s, %s' % (vr(fa), sr(S_T3), vr(fa)))
    a('ds_write_b32 %s, %s' % (vr(fa), vr(HD)))
    a('s_mul_i32 %s, %s, %d' % (sr(S_T2), sr(S_B), UC_CH))
    a('s_mul_i32 %s, %s, 4640' % (sr(S_T3), sr(S_A)))
    a('s_add_u32 %s, %s, %s' % (sr(S_T3), sr(S_T3), sr(S_T2)))
    a('v_lshl_add_u32 %s, %s, 3, %s' % (vr(fa), vr(V_LANE), sr(S_T3)))
    a('ds_write_b64 %s, %s offset:%d' % (vr(fa), vr(V_ZERO, 2), L_UC + 4096))
    a('s_lshl_b32 %s, %s, 11' % (sr(S_T3), sr(S_A)))
    a('s_add_u32 %s, %s, %s' % (sr(S_T3), sr(S_T3), sr(S_T2)))
    a('v_add_u32 %s, %s, %s' % (vr(fa), sr(S_T3), vr(V_L16)))
    vN, vM = V.get(), V.get()
    a('v_add_u32 %s, 1, %s' % (vr(t), vr(V_N)))
    a('v_and_b32 %s, 3, %s' % (vr(fe), vr(t)))
    a('v_mul_u32_u24 %s, 4160, %s' % (vr(vN), vr(fe)))
    a('v_min_u32 %s, 1, %s' % (vr(fe), vr(fe)))
    a('v_lshrrev_b32 %s, 2, %s' % (vr(t), vr(t)))
    a('v_add3_u32 %s, %s, %s, %s' % (vr(t), vr(t), vr(fe), vr(V_Q)))
    a('v_lshl_add_u32 %s, %s, 4, %s' % (vr(vN), vr(t), vr(vN)))
    a('s_mul_i32 %s, %s, %d' % (sr(S_T3), sr(S_B), KC_CH))
    a('s_lshl_b32 %s, %s, 8' % (sr(S_T1), sr(S_A)))
    a('s_add_u32 %s, %s, %s' % (sr(S_T3), sr(S_T3), sr(S_T1)))
    a('s_add_u32 %s, %s, %d' % (sr(S_T3), sr(S_T3), L_KC))
    a('v_add_u32 %s, %s, %s' % (vr(vN), sr(S_T3), vr(vN)))
    a('v_and_b32 %s, 1, %s' % (vr(t), vr(V_N)))
    a('v_sub_u32 %s, 1, %s' % (vr(t), vr(t)))
    a('v_mul_u32_u24 %s, 4640, %s' % (vr(vM), vr(t)))
    a('v_lshrrev_b32 %s, 1, %s' % (vr(t), vr(V_N)))
    a('v_lshlrev_b32 %s, 6, %s' % (vr(t), vr(t)))
    a('v_sub_u32 %s, %s, %s' % (vr(vM), vr(vM), vr(t)))
    a('v_lshl_add_u32 %s, %s, 4, %s' % (vr(vM), vr(V_Q), vr(vM)))
    a('s_add_u32 %s, %s, %s' % (sr(S_T3), sr(S_T2), sr(S_T1)))
    a('s_add_u32 %s, %s, %d' % (sr(S_T3), sr(S_T3), L_UC + 448))
    a('v_add_u32 %s, %s, %s' % (vr(vM), sr(S_T3), vr(vM)))
    U1 = V.get(8)
    for part in range(2):
        a('ds_write_b128 %s, %s offset:%d' % (vr(fa), vr(U + 4 * part, 4), L_UC + part * 1024))
        for k in range(4):
            hi = U + 4 * part + k + 1 if k < 3 else U + 8 + part
            a('v_alignbit_b32 %s, %s, %s, 16' % (vr(U1 + 4 * part + k), vr(hi), vr(U + 4 * part + k)))
        tk = a.mem('ds_write_b128 %s, %s offset:%d' % (vr(fa), vr(U1 + 4 * part, 4), L_UC + 4640 + part * 1024))
    a.wait(tk, cv.ktk)
    a('s_barrier')
    put((U, 10), (U1, 8), HD, cv.fv)
    stamp(a, 'conv_ld')
    CA, FN, FM = V.get(32), V.get(32), V.get(32)
    rdN = lambda x, cc: 'ds_read_b128 %s, %s offset:%d' % (vr(FN + 4 * x, 4), vr(vN), 512 * x + 64 * cc)
    rdM = lambda x, cc: 'ds_read_b128 %s, %s offset:%d' % (vr(FM + 4 * x, 4), vr(vM), 512 * (7 - x) + 64 * cc)
    m = Stream()
    m(rdN(0, 0))
    for x in range(7, -1, -1):
        m(rdM(x, 0))
    for x in range(1, 8):
        m(rdN(x, 0))
    for cc in range(4):
        for aa in range(8):
            for dl in range(7 - aa, -1, -1):
                i = aa + dl
                z = cc == 0 and aa == 0
                m('v_mfma_f32_16x16x32_bf16 %s, %s, %s, %s' % (vr(CA + 4 * i, 4), vr(FM + 4 * dl, 4), vr(FN + 4 * aa, 4),
                                                              '0' if z else vr(CA + 4 * i, 4)))
                if dl == 7 - aa and cc < 3:
                    m(rdM(dl, cc + 1))
            if cc < 3:
                m(rdN(aa, cc + 1))
    if side is not None:
        m = weave(m, side, 0.1, 0.95)
    a.extend(m)
    put((FN, 32), (FM, 32))
    a('v_lshlrev_b32 %s, 8, %s' % (vr(t), vr(V_Q)))
    a('v_lshl_add_u32 %s, %s, 3, %s' % (vr(t), vr(V_N), vr(t)))
    a('s_lshl_b32 %s, %s, 13' % (sr(S_T3), sr(S_WAVE)))
    a('v_add_u32 %s, %s, %s' % (vr(t), sr(S_T3), vr(t)))
    for i in range(8):
        for hf in range(2):
            tk = a.mem('ds_write_b64 %s, %s offset:%d' % (vr(t), vr(CA + 4 * i + 2 * hf, 2), L_CO + 1024 * i + 128 * hf))
    ONE2 = fe
    a('v_mov_b32 %s, 0x3f803f80' % vr(ONE2))
    a('v_lshlrev_b32 %s, 4, v0' % vr(t))
    a('v_lshlrev_b32 %s, 3, v0' % vr(fa))
    a('v_sub_u32 %s, %d, %s' % (vr(fa), 2040, vr(fa)))
    a('v_and_b32 %s, 0xffff0000, %s' % (vr(SD + 1), vr(SD)))
    a('v_lshlrev_b32 %s, 16, %s' % (vr(SD), vr(SD)))
    a.wait(tk)
    a('s_barrier')
    put((CA, 32))
    stamp(a, 'conv_mm')
    Y, KV = V.get(32), V.get(8)
    for part in range(2):
        for ch in range(2):
            a('ds_read_b64 %s, %s offset:%d' % (vr(KV + part * 4 + 2 * ch, 2), vr(fa), L_UC + ch * UC_CH + (1 - part) * 2048))
        for w in range(4):
            a('ds_read_b128 %s, %s offset:%d' % (vr(Y + part * 16 + 4 * w, 4), vr(t), L_CO + w * 8192 + part * 4096))
    T4, GO = V.get(8), V.get(8)
    toks = []
    a('s_mul_i32 %s, %s, %d' % (sr(S_T1), sr(S_PAIR), G_STR))
    a('s_add_u32 %s, %s, %d' % (sr(S_T1), sr(S_T1), WS_G))
    a('s_add_u32 %s, %s, 4096' % (sr(S_T3), sr(S_T1)))
    for part in range(2):
        for ch in range(2):
            y = Y + part * 16 + ch * 8
            kvr = KV + part * 4 + 2 * ch
            d = T4 + ch * 4
            a('v_and_b32 %s, 0xffff0000, %s' % (vr(d), vr(kvr + 1)))
            a('v_lshlrev_b32 %s, 16, %s' % (vr(d + 1), vr(kvr + 1)))
            a('v_and_b32 %s, 0xffff0000, %s' % (vr(d + 2), vr(kvr)))
            a('v_lshlrev_b32 %s, 16, %s' % (vr(d + 3), vr(kvr)))
            for k in range(2):
                a('v_pk_mul_f32 %s, %s, %s op_sel:[0,%d] op_sel_hi:[1,%d]' % (vr(d + 2 * k, 2), vr(d + 2 * k, 2), vr(SD, 2), ch, ch))
            for k in range(2):
                a('v_pk_add_f32 %s, %s, %s' % (vr(y + 2 * k, 2), vr(y + 2 * k, 2), vr(y + 4 + 2 * k, 2)))
            for k in range(4):
                a('v_cvt_pk_bf16_f32 %s, %s, %s' % (vr(d + k), vr(y + k), vr(d + k)))
            for k in range(4):
                a('v_dot2_f32_bf16 %s, %s, %s, 0' % (vr(d + k), vr(d + k), vr(ONE2)))
        for k in range(4):
            a('v_cvt_pk_bf16_f32 %s, %s, %s' % (vr(GO + part * 4 + k), vr(T4 + k), vr(T4 + 4 + k)))
        toks.append(a.mem('buffer_store_dwordx4 %s, %s, %s, %s offen sc1' %
                          (vr(GO + part * 4, 4), vr(t), sr(R_WS, 4), sr(S_T1 if part == 0 else S_T3))))
    f = Stream()
    f.wait(*toks)
    f('s_lshl2_add_u32 %s, %s, %s' % (sr(S_T1), sr(S_PAIR), sr(S_WAVE)),
      's_lshl_b32 %s, %s, 2' % (sr(S_T1), sr(S_T1)),
      's_add_u32 %s, %s, %d' % (sr(S_T1), sr(S_T1), WS_GF),
      *flag_texts(sr(S_T1), 'sc1'))
    a('s_nop 1')
    put((Y, 32), (KV, 8), (T4, 8), (GO, 8), (SD, 2), t, fa, fe, vN, vM)
    stamp(a, 'conv_out')
    return f


ACC = V.get(48, top=True)
AF = V.get(48, top=True)
put((BASE, 24))
kvs, kvflag, kvrel = kv_stream()
kvp = split(kvs, 8)
pre = {k: Stream() for k in range(18)}
side = {k: Stream() for k in range(18)}
first = weave(kvp[0], Stream())
a.extend(kvp[0])
rt = b_read(a, 0)
xtk[3] = x_dma(a, 3, 0)
a.extend(kvp[1])
a.wait(rt)
btk[3] = b_dma(a, 3)
for k in range(6):
    side[k].extend(kvp[2 + k])
put(*kvrel)
for r_ in range(BASE, BASE + 24):
    V.free.remove(r_)
xtk[4] = x_dma(pre[0], 4, 0)
xtk[5] = x_dma(pre[2], 5, 0)
for kp in range(1, 9):
    k = 2 * kp - 2
    rt = b_read(pre[k], kp)
    if kp + 3 < 9:
        pre[k + 1].wait(rt)
        btk[kp + 3] = b_dma(pre[k + 1], kp + 3)
    lastb = rt
xtk[6] = x_dma(side[7], 6, 0)
xtk[7] = x_dma(side[7], 7, 0)
xtk[8] = x_dma(side[8], 8, 0)
side[8].extend(kvflag)
XS = V.get(12, 2)
s0 = Stream()
for i in range(MT):
    s0('ds_read_b64 %s, %s offset:%d' % (vr(XS + 2 * i, 2), vr(V_WA), 2048 * i))
for i in range(MT):
    for k in range(2):
        s0('v_lshlrev_b32 %s, 16, %s' % (vr(BASE + 4 * i + 2 * k), vr(XS + 2 * i + k)))
        s0('v_and_b32 %s, 0xffff0000, %s' % (vr(BASE + 4 * i + 2 * k + 1), vr(XS + 2 * i + k)))
stats_publish(s0, BASE, 0, False)
put((XS, 12))
p_ = split(s0, 2)
side[6].extend(p_[0])
side[7].extend(p_[1])
lp = Stream()
lam_compute(lp, LAMT, False, LAM)
L2, L4, L8, L48, L72, L96, L192, L288 = [V.get(2) for _ in range(8)]
cmul(lp, L2, LAM, LAM)
cmul(lp, L4, L2, L2)
cmul(lp, L8, L4, L4)
cmul(lp, L12, L8, L4)
cmul(lp, L24, L12, L12)
cmul(lp, L48, L24, L24)
cmul(lp, L72, L48, L24)
cmul(lp, L96, L48, L48)
cmul(lp, L192, L96, L96)
cmul(lp, L288, L192, L96)
cmul(lp, L384, L192, L192)
for (dst, opts) in ((LQ96, (L96, L192, L288)), (LQ24, (L24, L48, L72))):
    lp('v_mov_b32 %s, 1.0' % vr(dst), 'v_mov_b32 %s, 0' % vr(dst + 1))
    for qi, o in enumerate(opts):
        lp('v_cmp_eq_u32 vcc, %d, %s' % (qi + 1, vr(V_Q)),
           'v_cndmask_b32 %s, %s, %s, vcc' % (vr(dst), vr(dst), vr(o)),
           'v_cndmask_b32 %s, %s, %s, vcc' % (vr(dst + 1), vr(dst + 1), vr(o + 1)))
lp('v_and_b32 %s, 0xffff0000, %s' % (vr(V_DSK + 3), vr(V_DSK + 1)))
lp('v_lshlrev_b32 %s, 16, %s' % (vr(V_DSK + 2), vr(V_DSK + 1)))
lp('v_and_b32 %s, 0xffff0000, %s' % (vr(V_DSK + 1), vr(V_DSK)))
lp('v_lshlrev_b32 %s, 16, %s' % (vr(V_DSK), vr(V_DSK)))
for r in (L2, L4, L8, L48, L72, L96, L192, L288):
    put((r, 2))
p_ = split(lp, 3)
for i in range(3):
    side[9 + i].extend(p_[i])
G0 = V.get(24)
RBG = V.get(4)
rba = V.get()
xe = V.get()
gl = stats_loads(0, G0)
gl.append('buffer_load_dwordx4 %s, %s, %s, 0 offen sc1' % (vr(RBG, 4), vr(rba), sr(R_WS, 4)))
side[11]('s_lshl_b32 %s, %s, 8' % (sr(S_T0), sr(S_PT)),
         's_add_u32 %s, %s, %d' % (sr(S_T0), sr(S_T0), WS_RBG),
         'v_lshl_add_u32 %s, %s, 4, %s' % (vr(rba), vr(V_N), sr(S_T0)))
for i in range(0, 12, 2):
    side[12](gl[i], gl[i + 1])
side[12](gl[12])
cv = Conv()
conv_flag_prep(side[12], cv)
side[13](cv.fload)


def s0_poll(s):
    p = Stream()
    L, Lc = newlabel('poll'), newlabel('pollc')
    acc = V.get(2, 1)
    p('s_mov_b32 %s, %d' % (sr(S_SPIN), SPIN))
    p.touch(vr(G0, 24), vr(RBG, 4))
    p.label(Lc)
    p('v_bitop3_b32 %s, %s, %s, %s bitop3:0x7e' % (vr(acc), vr(RBG + 1), vr(RBG + 3), vr(V_TAG)))
    for i in range(MT):
        p('v_sub_u32 %s, %s, %s' % (vr(acc + 1), vr(G0 + 4 * i + 3), vr(V_EXP9)))
        p('v_lshrrev_b32 %s, 4, %s' % (vr(acc + 1), vr(acc + 1)))
        p('v_or_b32 %s, %s, %s' % (vr(acc), vr(acc), vr(acc + 1)))
        p('v_xor_b32 %s, %s, %s' % (vr(acc + 1), vr(G0 + 4 * i + 1), vr(V_EXP9)))
        p('v_or_b32 %s, %s, %s' % (vr(acc), vr(acc), vr(acc + 1)))
    p('v_cmp_ne_u32 vcc, 0, %s' % vr(acc))
    p('s_sub_u32 %s, %s, 1' % (sr(S_SPIN), sr(S_SPIN)))
    p('s_cselect_b64 vcc, 0, vcc')
    p('s_cmp_lg_u64 vcc, 0')
    p('s_cbranch_scc1 %s' % L)
    tail.label(L)
    for t in gl:
        tail(t)
    tail('s_waitcnt vmcnt(0)')
    tail('s_branch %s' % Lc)
    p('v_add_u32 %s, %s, %s' % (vr(xe), sr(S_XCC), vr(V_TAG)))
    p('v_cmp_gt_u32 vcc, 9, %s' % vr(V_N))
    p('v_cndmask_b32 %s, 0, %s, vcc' % (vr(xe), vr(xe)))
    p('v_cmp_ne_u32 vcc, %s, %s' % (vr(G0 + 3), vr(xe)))
    p('s_cmp_eq_u64 vcc, 0')
    p('s_cselect_b32 %s, %d, 0' % (sr(S_FAST), 0 if OPT['slow'] else 1))
    s.join(p)
    put((acc, 2))


s0_poll(pre[14])
ttk, lnrest, lnrel = ln_table(side[14], 0, G0, RBG)
put((RBG, 4), rba, xe)
p_ = split(lnrest, 3)
for i in range(3):
    side[15 + i].extend(p_[i])
pre[15].wait(lastb)
conv_setup_k(side[15], cv)
poll(pre[16], [cv.fload], [(cv.fv, None, cv.fe)], pre_issued=True)
conv_u_loads(pre[16], cv)
gemm_b(a, ACC, AF, lambda s: xtk[s], pre, side, lastwait=lambda: ttk)
put(*lnrel)
put((V_DB, 2), (V_FB, 2))
stamp(a, 'gemmB1')


def scan_phase(a, layer, ACC, AF, mid=None):
    NJ = 2 * MT
    re = lambda j: ACC + (j >> 1) * 4 + (j & 1) * 2
    im = lambda j: ACC + 4 * MT + (j >> 1) * 4 + (j & 1) * 2
    TB = AF
    for j in range(NJ):
        a('ds_read_b128 %s, %s offset:%d' % (vr(TB + 4 * j, 4), vr(V_TABR), 16 * j))

    def prescale(j):
        a('v_pk_mul_f32 %s, %s, %s' % (vr(re(j), 2), vr(re(j), 2), vr(TB + 4 * j, 2)))
        a('v_pk_mul_f32 %s, %s, %s' % (vr(im(j), 2), vr(im(j), 2), vr(TB + 4 * j, 2)))
        a('v_pk_fma_f32 %s, %s, %s, %s op_sel:[0,0,0] op_sel_hi:[1,0,1] neg_lo:[1,0,0] neg_hi:[1,0,0]' %
          (vr(re(j), 2), vr(TB + 4 * j + 2, 2), vr(RB, 2), vr(re(j), 2)))
        a('v_pk_fma_f32 %s, %s, %s, %s op_sel:[0,1,0] op_sel_hi:[1,1,1] neg_lo:[1,0,0] neg_hi:[1,0,0]' %
          (vr(im(j), 2), vr(TB + 4 * j + 2, 2), vr(RB, 2), vr(im(j), 2)))

    def step(dr, di, pr, pi, br, bi):
        a('v_pk_fma_f32 %s, %s, %s, %s op_sel:[0,0,0] op_sel_hi:[1,0,1]' % (vr(dr, 2), vr(pr, 2), vr(LAM, 2), vr(br, 2)))
        a('v_pk_fma_f32 %s, %s, %s, %s op_sel:[0,0,0] op_sel_hi:[1,0,1]' % (vr(di, 2), vr(pi, 2), vr(LAM, 2), vr(bi, 2)))
        a('v_pk_fma_f32 %s, %s, %s, %s op_sel:[0,1,0] op_sel_hi:[1,1,1] neg_lo:[1,0,0] neg_hi:[1,0,0]' %
          (vr(dr, 2), vr(pi, 2), vr(LAM, 2), vr(dr, 2)))
        a('v_pk_fma_f32 %s, %s, %s, %s op_sel:[0,1,0] op_sel_hi:[1,1,1]' % (vr(di, 2), vr(pr, 2), vr(LAM, 2), vr(di, 2)))

    E = V.get(8)
    prescale(0)
    pr, pi = re(0), im(0)
    for j in range(1, NJ):
        prescale(j)
        dr, di = E + (j & 1) * 4, E + (j & 1) * 4 + 2
        step(dr, di, pr, pi, re(j), im(j))
        pr, pi = dr, di
    EA, F = V.get(2), V.get(2)
    a('v_mov_b32 %s, %s' % (vr(EA), vr(pr)))
    a('v_mov_b32 %s, %s' % (vr(EA + 1), vr(pi)))
    a('v_mov_b32 %s, %s' % (vr(F), vr(pr + 1)))
    a('v_mov_b32 %s, %s' % (vr(F + 1), vr(pi + 1)))
    t = V.get()
    a('v_lshl_add_u32 %s, %s, 3, %s' % (vr(t), vr(V_Q), vr(V_FX)))
    cfma(a, F, EA, L12, F)
    tk = a.mem('ds_write_b64 %s, %s' % (vr(t), vr(F, 2)))
    put(t)
    pub = V.get(4)
    a('v_mov_b32 %s, %s' % (vr(pub + 1), vr(V_TAG)))
    a('v_mov_b32 %s, %s' % (vr(pub + 3), vr(V_TAG)))
    a('s_lshl_b32 %s, %s, 13' % (sr(S_T0), sr(S_PT)))
    a('s_add_u32 %s, %s, %d' % (sr(S_T0), sr(S_T0), WS_E + layer * 36 * 8192))
    a.wait(tk)
    FA = E
    a('ds_read_b128 %s, %s' % (vr(FA, 4), vr(V_FX)))
    a('ds_read_b128 %s, %s offset:16' % (vr(FA + 4, 4), vr(V_FX)))
    cfma(a, FA + 2, FA, L24, FA + 2)
    cfma(a, FA + 4, FA + 2, L24, FA + 4)
    cfma(a, FA + 6, FA + 4, L24, FA + 6)
    a('v_mov_b32 %s, %s' % (vr(pub), vr(FA + 6)))
    a('v_mov_b32 %s, %s' % (vr(pub + 2), vr(FA + 7)))
    a('buffer_store_dwordx4 %s, %s, %s, %s offen sc1' % (vr(pub, 4), vr(V_EW), sr(R_WS, 4), sr(S_T0)))
    stamp(a, 'e_pub%d' % layer)
    PQ = F
    a('v_mov_b32 %s, 0' % vr(PQ))
    a('v_mov_b32 %s, 0' % vr(PQ + 1))
    for qi in range(1, 4):
        a('v_cmp_eq_u32 vcc, %d, %s' % (qi, vr(V_Q)),
          'v_cndmask_b32 %s, %s, %s, vcc' % (vr(PQ), vr(PQ), vr(FA + 2 * qi - 2)),
          'v_cndmask_b32 %s, %s, %s, vcc' % (vr(PQ + 1), vr(PQ + 1), vr(FA + 2 * qi - 1)))
    put((pub, 4), (E, 8), (AF, 48))
    post = None
    if mid is not None:
        post = mid(a)
    NL = 6
    CG_ = V.get(4 * NL)
    AD, EX = V.get(NL, 1), V.get(NL, 1)
    for j in range(NL):
        a('v_subrev_u32 %s, %d, %s' % (vr(AD + j), 1024 * j, vr(V_ER)))
        a('v_cmp_le_i32 vcc, 0, %s' % vr(AD + j),
          'v_cndmask_b32 %s, %s, %s, vcc' % (vr(AD + j), vr(V_OOB), vr(AD + j)),
          'v_cndmask_b32 %s, 0, %s, vcc' % (vr(EX + j), vr(V_TAG)))
    a('s_lshl_b32 %s, %s, 13' % (sr(S_T0), sr(S_PT)))
    a('s_add_u32 %s, %s, %d' % (sr(S_T0), sr(S_T0), WS_E + layer * 36 * 8192))
    loads, checks = [], []
    for j in range(NL):
        loads.append('buffer_load_dwordx4 %s, %s, %s, %s offen sc1' % (vr(CG_ + 4 * j, 4), vr(AD + j), sr(R_WS, 4), sr(S_T0)))
        checks.append((CG_ + 4 * j + 1, CG_ + 4 * j + 3, EX + j))
    poll(a, loads, checks)
    stamp(a, 'carry%d' % layer)
    if post is not None:
        a.extend(post)
    put((AD, NL), (EX, NL))
    for j in range(NL):
        a('v_mov_b32 %s, %s' % (vr(CG_ + 4 * j + 1), vr(CG_ + 4 * j + 2)))
    for j in range(NL - 2, -1, -1):
        cfma(a, CG_ + 4 * j, CG_ + 4 * j + 4, L384, CG_ + 4 * j)
    H, Y = V.get(2), V.get(2)
    cmul(a, H, CG_, LQ96)
    for sw in ('v_permlane32_swap_b32', 'v_permlane16_swap_b32'):
        a('v_mov_b64 %s, %s' % (vr(Y, 2), vr(H, 2)))
        a('%s %s, %s' % (sw, vr(H), vr(Y)))
        a('%s %s, %s' % (sw, vr(H + 1), vr(Y + 1)))
        a('v_pk_add_f32 %s, %s, %s' % (vr(H, 2), vr(H, 2), vr(Y, 2)))
    cfma(a, PQ, H, LQ24, PQ)
    cfma(a, EA, PQ, L12, EA)
    a('v_mov_b32 %s, %s' % (vr(H), vr(PQ)))
    a('v_mov_b32 %s, %s' % (vr(H + 1), vr(EA)))
    a('v_mov_b32 %s, %s' % (vr(Y), vr(PQ + 1)))
    a('v_mov_b32 %s, %s' % (vr(Y + 1), vr(EA + 1)))
    pr, pi = H, Y
    PK = V.get(4)
    HO = CG_
    tk = None
    for j in range(NJ):
        step(re(j), im(j), pr, pi, re(j), im(j))
        pr, pi = re(j), im(j)
        pk = PK + (j & 1) * 2
        for hf in range(2):
            a('v_cvt_pk_bf16_f32 %s, %s, %s' % (vr(pk + hf), vr(re(j) + hf), vr(im(j) + hf)))
        tk = a.mem('ds_write_b32 %s, %s offset:%d' % (vr(V_HW), vr(pk), (j >> 1) * 1024 + (j & 1) * 128),
                   'ds_write_b32 %s, %s offset:%d' % (vr(V_HW), vr(pk + 1), (j >> 1) * 1024 + (j & 1) * 128 + 64))
        if j & 1:
            a('ds_read_b128 %s, %s offset:%d' % (vr(HO + 4 * (j >> 1), 4), vr(V_HR), (j >> 1) * 1024))
    a('s_mul_i32 %s, %s, 36' % (sr(S_T0), sr(S_RB)))
    a('s_add_u32 %s, %s, %s' % (sr(S_T0), sr(S_T0), sr(S_PT)))
    a('s_mul_i32 %s, %s, 6144' % (sr(S_T0), sr(S_T0)))
    a('s_add_u32 %s, %s, %d' % (sr(S_T0), sr(S_T0), WS_H + layer * H_SZ))
    a('s_add_u32 %s, %s, 4096' % (sr(S_T1), sr(S_T0)))
    tk = dual(a, ['buffer_store_dwordx4 %s, %s, %s, %s offen offset:%d {P}' %
                  (vr(HO + 4 * i, 4), vr(V_L16), sr(R_WS, 4), sr(S_T0 if i < 4 else S_T1), (i & 3) * 1024) for i in range(MT)],
              touch=[vr(HO, 24)])
    a('s_lshl2_add_u32 %s, %s, %s' % (sr(S_T0), sr(S_RB), sr(S_WAVE)))
    a('s_lshl4_add_u32 %s, %s, %s' % (sr(S_T0), sr(S_T0), sr(S_CG)))
    a('s_lshl_b32 %s, %s, 2' % (sr(S_T0), sr(S_T0)))
    a('s_add_u32 %s, %s, %d' % (sr(S_T0), sr(S_T0), WS_HF + layer * NRB * 256))
    return tk, [(EA, 2), (F, 2), (H, 2), (Y, 2), (PK, 4), (CG_, 4 * NL), (ACC, 48)]


WCV = None


def WC(s, j):
    idx = s * 4 + j
    if idx < 28:
        return ar(144 + idx * 4, 4)
    return vr(WCV + (idx - 28) * 4, 4)


def cp_load(s_, s, j):
    s_('s_add_u32 %s, %s, %d' % (sr(S_T2), sr(S_TT + s), j * 36 * 1024),
       'buffer_load_dwordx4 %s, %s, %s, %s offen sc1' % (WC(s, j), vr(V_L16), sr(R_WS, 4), sr(S_T2)))


def mid0(a):
    fa, fe, fv = V.get(), V.get(), V.get()
    a('s_lshl_b32 %s, %s, 7' % (sr(S_T1), sr(S_CG)))
    a('s_add_u32 %s, %s, %d' % (sr(S_T1), sr(S_T1), WS_CPF))
    a('v_lshl_add_u32 %s, %s, 2, %s' % (vr(fa), vr(V_LANE), sr(S_T1)))
    a('v_cmp_gt_u32 vcc, 18, %s' % vr(V_LANE),
      'v_cndmask_b32 %s, %s, %s, vcc' % (vr(fa), vr(V_OOB), vr(fa)),
      'v_cndmask_b32 %s, 0, %s, vcc' % (vr(fe), vr(V_TAG)))
    fl = 'buffer_load_dword %s, %s, %s, 0 offen sc1' % (vr(fv), vr(fa), sr(R_WS, 4))
    a(fl)
    a('s_mul_i32 %s, %s, 144' % (sr(S_T0), sr(S_CG)))
    a('s_add_u32 %s, %s, %s' % (sr(S_T0), sr(S_T0), sr(S_WAVE)))
    a('s_lshl_b32 %s, %s, 10' % (sr(S_T0), sr(S_T0)))
    a('s_add_u32 %s, %s, %d' % (sr(S_T0), sr(S_T0), WS_CP))
    for s in range(9):
        a('s_lshl_b32 %s, %s, 12' % (sr(S_T1), sr(S_KP + s)))
        a('s_add_u32 %s, %s, %s' % (sr(S_TT + s), sr(S_T1), sr(S_T0)))
    sd = Stream()
    poll(sd, [fl], [(fv, None, fe)], pre_issued=True)
    for idx in range(28):
        cp_load(sd, idx // 4, idx % 4)
    f = conv_body(a, cv, sd)
    put(fa, fe, fv)
    return f


htk, hrel = scan_phase(a, 0, ACC, AF, mid0)
put(*hrel)
WCV = V.get(32)
tmp_s = Stream()
for idx in range(28, 36):
    cp_load(a, idx // 4, idx % 4)
a.wait(htk)
dual(a, flag_texts(sr(S_T0), '{P}'))
stamp(a, 'h_pub0')

GP = V.get(12, 2)
V_PW, V_PR, V_PW2, V_PR2, V_L16B = [V.get() for _ in range(5)]
t = V.get()
a('v_mul_u32_u24 %s, %d, %s' % (vr(V_PW), PART_ROW, vr(V_N)))
a('v_lshl_add_u32 %s, %s, 4, %s' % (vr(V_PW), vr(V_Q), vr(V_PW)))
a('s_mul_i32 %s, %s, %d' % (sr(S_T0), sr(S_WAVE), PART_W))
a('v_add_u32 %s, %s, %s' % (vr(V_PW), sr(S_T0), vr(V_PW)))
a('s_lshl_b32 %s, %s, 2' % (sr(S_T0), sr(S_WAVE)))
a('v_add_u32 %s, %s, %s' % (vr(t), sr(S_T0), vr(V_Q)))
a('v_mul_u32_u24 %s, %d, %s' % (vr(V_PR), PART_ROW, vr(t)))
a('v_lshl_add_u32 %s, %s, 4, %s' % (vr(V_PR), vr(V_N), vr(V_PR)))
PH = 12 * PART_W
a('v_add_u32 %s, %d, %s' % (vr(V_PW2), PH, vr(V_PW)))
a('v_add_u32 %s, %d, %s' % (vr(V_PR2), PH, vr(V_PR)))
a('v_add_u32 %s, 4096, %s' % (vr(V_L16B), vr(V_L16)))
put(t)


def g_fetch(a):
    fa, t, u, q = V.get(), V.get(), V.get(), V.get()
    fv = V.get(2)
    a('s_lshl_b32 %s, %s, 9' % (sr(S_T1), sr(S_CG)))
    a('s_add_u32 %s, %s, %d' % (sr(S_T1), sr(S_T1), WS_GF))
    a('v_lshl_add_u32 %s, %s, 3, %s' % (vr(fa), vr(V_LANE), sr(S_T1)))
    poll(a, ['buffer_load_dwordx2 %s, %s, %s, 0 offen sc1' % (vr(fv, 2), vr(fa), sr(R_WS, 4))], [(fv, fv + 1, V_TAG)])
    D = V.get(12)
    a('s_mul_i32 %s, %s, %d' % (sr(S_T1), sr(S_CG), 32 * G_STR))
    a('s_mul_i32 %s, %s, 384' % (sr(S_T2), sr(S_RB)))
    a('s_add_u32 %s, %s, %s' % (sr(S_T1), sr(S_T1), sr(S_T2)))
    a('s_mul_i32 %s, %s, 96' % (sr(S_T2), sr(S_WAVE)))
    a('s_add_u32 %s, %s, %s' % (sr(S_T1), sr(S_T1), sr(S_T2)))
    a('s_add_u32 %s, %s, %d' % (sr(S_T1), sr(S_T1), WS_G))
    for i in range(3):
        a('v_add_u32 %s, %d, %s' % (vr(u), 64 * i, vr(V_LANE)))
        a('v_mul_u32_u24 %s, 171, %s' % (vr(q), vr(u)))
        a('v_lshrrev_b32 %s, 10, %s' % (vr(q), vr(q)))
        a('v_mul_u32_u24 %s, %d, %s' % (vr(fa), G_STR - 96, vr(q)))
        a('v_lshl_add_u32 %s, %s, 4, %s' % (vr(fa), vr(u), vr(fa)))
        a('buffer_load_dwordx4 %s, %s, %s, %s offen sc1' % (vr(D + 4 * i, 4), vr(fa), sr(R_WS, 4), sr(S_T1)))
    a('v_add_u32 %s, %s, %s' % (vr(t), sr(S_RINGW), vr(V_L16)))
    tk = None
    for i in range(3):
        tk = a.mem('ds_write_b128 %s, %s offset:%d' % (vr(t), vr(D + 4 * i, 4), 1024 * i))
    a('v_mul_u32_u24 %s, 192, %s' % (vr(q), vr(V_N)))
    a('v_lshl_add_u32 %s, %s, 2, %s' % (vr(u), vr(V_TAU), vr(q)))
    a('v_add_u32 %s, %s, %s' % (vr(u), sr(S_RINGW), vr(u)))
    a.wait(tk)
    for i in range(MT):
        a('ds_read2_b32 %s, %s offset0:%d offset1:%d' % (vr(GP + 2 * i, 2), vr(u), 2 * i, 24 + 2 * i))
    put(fa, (fv, 2), t, (D, 12), u, q)


def gemm_c(a, layer):
    fa, fv = V.get(), V.get()
    a('s_lshl2_add_u32 %s, %s, %s' % (sr(S_T1), sr(S_RB), sr(S_WAVE)))
    a('s_lshl_b32 %s, %s, 6' % (sr(S_T1), sr(S_T1)))
    a('s_add_u32 %s, %s, %d' % (sr(S_T1), sr(S_T1), WS_HF + layer * NRB * 256))
    a('v_lshl_add_u32 %s, %s, 2, %s' % (vr(fa), vr(V_N), sr(S_T1)))
    a('v_cmp_gt_u32 vcc, 9, %s' % vr(V_N),
      'v_cndmask_b32 %s, %s, %s, vcc' % (vr(fa), vr(V_OOB), vr(fa)))
    a('s_mul_i32 %s, %s, 36' % (sr(S_T0), sr(S_RB)))
    a('s_add_u32 %s, %s, %s' % (sr(S_T0), sr(S_T0), sr(S_WAVE)))
    a('s_mul_i32 %s, %s, 6144' % (sr(S_T0), sr(S_T0)))
    a('s_add_u32 %s, %s, %d' % (sr(S_T0), sr(S_T0), WS_H + layer * H_SZ))
    for s in range(9):
        a('s_mul_i32 %s, %s, 24576' % (sr(S_T1), sr(S_KP + s)))
        a('s_add_u32 %s, %s, %s' % (sr(S_TT + s), sr(S_T1), sr(S_T0)))
    poll(a, ['buffer_load_dword %s, %s, %s, 0 offen sc1' % (vr(fv), vr(fa), sr(R_WS, 4))], [(fv, None, V_EXP9)])
    stamp(a, 'h_flag%d' % layer)
    put(fa, fv)
    NF = 18
    HB = V.get(4 * NF)
    CA = V.get(32)
    hb = lambda i, s: HB + ((i * 9 + s) % NF) * 4

    def hload(f):
        i, s = f // 9, f % 9
        a('buffer_load_dwordx4 %s, %s, %s, %s offen offset:%d sc1' %
          (vr(hb(i, s), 4), vr(V_L16 if i < 4 else V_L16B), sr(R_WS, 4), sr(S_TT + s), (i & 3) * 1024))

    def pwrite(i):
        ca = CA + (i & 1) * 16
        for j in range(4):
            tk = a.mem('ds_write_b128 %s, %s offset:%d' % (vr(V_PW if i < 3 else V_PW2), vr(ca + 4 * j, 4),
                                                           L_IMG + (i % 3) * 4 * PART_W + j * 64))
        return tk

    for f in range(NF):
        hload(f)
    a('s_barrier')
    tk = None
    for i in range(MT):
        ca = CA + (i & 1) * 16
        for s in range(9):
            for j in range(4):
                a('v_mfma_f32_16x16x32_bf16 %s, %s, %s, %s' % (vr(ca + 4 * j, 4), WC(s, j), vr(hb(i, s), 4),
                                                              '0' if s == 0 else vr(ca + 4 * j, 4)))
            if i * 9 + s + NF < 9 * MT:
                hload(i * 9 + s + NF)
            if s == 2 and i > 0:
                tk = pwrite(i - 1)
    tk = pwrite(MT - 1)
    a.wait(tk)
    a('s_barrier')
    stamp(a, 'gemmC%d' % layer)
    put((CA, 32), (HB, 4 * NF))
    P = V.get(96)
    for i in range(MT):
        for w in range(4):
            a('ds_read_b128 %s, %s offset:%d' % (vr(P + i * 16 + w * 4, 4), vr(V_PR if i < 3 else V_PR2),
                                                 L_IMG + ((i % 3) * 4 + w) * PART_W))
    for i in range(MT):
        p = P + i * 16
        for k in range(2):
            a('v_pk_add_f32 %s, %s, %s' % (vr(p + 2 * k, 2), vr(p + 2 * k, 2), vr(p + 4 + 2 * k, 2)))
            a('v_pk_add_f32 %s, %s, %s' % (vr(p + 8 + 2 * k, 2), vr(p + 8 + 2 * k, 2), vr(p + 12 + 2 * k, 2)))
            a('v_pk_add_f32 %s, %s, %s' % (vr(BASE + 4 * i + 2 * k, 2), vr(BASE + 4 * i + 2 * k, 2), vr(p + 2 * k, 2)))
            a('v_pk_add_f32 %s, %s, %s' % (vr(BASE + 4 * i + 2 * k, 2), vr(BASE + 4 * i + 2 * k, 2), vr(p + 8 + 2 * k, 2)))
    put((P, 96))


def gate(a, which, final):
    stats_publish(a, BASE, which, True)
    stamp(a, 'st_pub%d' % which)
    if not final:
        g_fetch(a)
    GU = V.get(24)
    for i in range(MT):
        for j in range(2):
            a('v_lshlrev_b32 %s, 16, %s' % (vr(GU + 4 * i + 2 * j), vr(GP + 2 * i + j)))
            a('v_and_b32 %s, 0xffff0000, %s' % (vr(GU + 4 * i + 2 * j + 1), vr(GP + 2 * i + j)))
    G = V.get(24)
    poll(a, stats_loads(which, G), [(G + 4 * i + 1, G + 4 * i + 3, V_EXP9) for i in range(MT)])
    stamp(a, 'st_got%d' % which)
    P = stats_finish(a, G)
    for k in range(2):
        a('v_add_f32 %s, 0x3727c5ac, %s' % (vr(P + 2 * k + 1), vr(P + 2 * k + 1)))
    for k in range(2):
        a('v_rsq_f32 %s, %s' % (vr(P + 2 * k + 1), vr(P + 2 * k + 1)))
    for k in range(2):
        a('v_add_f32 %s, %s, %s' % (vr(OFF + k), vr(OFF + k), vr(P + 2 * k)))
    B = G
    for i in range(MT):
        bcast(a, B + 4 * i, P, i)
        if final:
            k_, lane = tile_src(i)
            a('v_mov_b32_dpp %s, %s row_newbcast:%d row_mask:0xf bank_mask:0xf' % (vr(B + 4 * i + 2), vr(OFF + k_), lane))
    for i in range(MT):
        x, g, b = BASE + 4 * i, GU + 4 * i, B + 4 * i
        for k in range(2):
            a('v_pk_add_f32 %s, %s, %s op_sel:[0,0] op_sel_hi:[1,0] neg_lo:[0,1] neg_hi:[0,1]' % (vr(x + 2 * k, 2), vr(x + 2 * k, 2), vr(b, 2)))
            a('v_pk_fma_f32 %s, %s, %s, 1.0 op_sel:[0,1,0] op_sel_hi:[1,1,0]' % (vr(g + 2 * k, 2), vr(g + 2 * k, 2), vr(b, 2)))
        for k in range(2):
            if final:
                a('v_pk_fma_f32 %s, %s, %s, %s op_sel:[0,0,0] op_sel_hi:[1,1,0]' % (vr(x + 2 * k, 2), vr(x + 2 * k, 2), vr(g + 2 * k, 2), vr(b + 2, 2)))
            else:
                a('v_pk_mul_f32 %s, %s, %s' % (vr(x + 2 * k, 2), vr(x + 2 * k, 2), vr(g + 2 * k, 2)))
        if final:
            a('s_movk_i32 %s, %d' % (sr(S_T0), 4608 * i),
              'buffer_store_dwordx4 %s, %s, %s, %s offen' % (vr(x, 4), vr(V_OROW), sr(R_OUT, 4), sr(S_T0)))
    put((GU, 24), (G, 24), (P, 4))


gemm_c(a, 0)
gate(a, 1, False)
WP = V.get(12, 2)
for i in range(MT):
    for k in range(2):
        a('v_cvt_pk_bf16_f32 %s, %s, %s' % (vr(WP + 2 * i + k), vr(BASE + 4 * i + 2 * k), vr(BASE + 4 * i + 2 * k + 1)))
a('s_mul_i32 %s, %s, 9' % (sr(S_T0), sr(S_RB)))
a('s_add_u32 %s, %s, %s' % (sr(S_T0), sr(S_T0), sr(S_CG)))
a('s_mul_i32 %s, %s, %d' % (sr(S_T0), sr(S_T0), BLK))
a('s_add_u32 %s, %s, %d' % (sr(S_T0), sr(S_T0), WS_W))
a('s_add_u32 %s, %s, 4096' % (sr(S_T1), sr(S_T0)))
a('s_add_u32 %s, %s, 8192' % (sr(S_T2), sr(S_T0)))
wtk_ = dual(a, ['buffer_store_dwordx2 %s, %s, %s, %s offen offset:%d {P}' %
                (vr(WP + 2 * i, 2), vr(V_WA), sr(R_WS, 4), sr((S_T0, S_T1, S_T2)[i >> 1]), (i & 1) * 2048) for i in range(MT)])
stats_publish(a, BASE, 2, True)
a('s_mul_i32 %s, %s, %d' % (sr(S_T0), sr(S_RB), 9 * BLK))
a('s_add_u32 %s, %s, %d' % (sr(S_T0), sr(S_T0), WS_W))
a('s_add_u32 %s, %s, %s' % (sr(S_T0), sr(S_T0), sr(S_W1K)))
a('v_add_u32 %s, %s, %s' % (vr(V_DX), sr(S_T0), vr(V_L16)))
a('v_add_u32 %s, 4096, %s' % (vr(V_DX + 1), vr(V_DX)))
a('v_add_u32 %s, 8192, %s' % (vr(V_DX + 2), vr(V_DX)))
for s in range(9):
    a('s_mul_i32 %s, %s, %d' % (sr(S_TT + s), sr(S_KP + s), BLK))
fa, fe, fv = V.get(), V.get(), V.get()
a('s_lshl_b32 %s, %s, 8' % (sr(S_T1), sr(S_RB)))
a('s_add_u32 %s, %s, %d' % (sr(S_T1), sr(S_T1), WS_WF))
a('v_lshl_add_u32 %s, %s, 2, %s' % (vr(fa), vr(V_LANE), sr(S_T1)))
a('v_cmp_gt_u32 vcc, 36, %s' % vr(V_LANE),
  'v_cndmask_b32 %s, %s, %s, vcc' % (vr(fa), vr(V_OOB), vr(fa)),
  'v_cndmask_b32 %s, 0, %s, vcc' % (vr(fe), vr(V_TAG)))
a('s_lshl2_add_u32 %s, %s, %s' % (sr(S_T0), sr(S_PT), sr(S_T1)))
a.wait(wtk_)
dual(a, flag_texts(sr(S_T0), '{P}'))
stamp(a, 'w_pub')
put((WP, 12))

ACC = V.get(48, top=True)
AF = V.get(48, top=True)
poll(a, ['buffer_load_dword %s, %s, %s, 0 offen sc1' % (vr(fv), vr(fa), sr(R_WS, 4))], [(fv, None, fe)])
stamp(a, 'w_flag')
put(fa, fe, fv)
pre = {k: Stream() for k in range(18)}
side = {k: Stream() for k in range(18)}
wtk = {}
for blk in range(4):
    wtk[blk] = x_dma(a, blk, 1)
for blk in range(4, 9):
    wtk[blk] = x_dma(side[blk - 4], blk, 1)
G2 = V.get(24)
gl2 = stats_loads(2, G2)
for i in range(0, 12, 2):
    side[6](gl2[i], gl2[i + 1])
poll(pre[9], gl2, [(G2 + 4 * i + 1, G2 + 4 * i + 3, V_EXP9) for i in range(MT)], pre_issued=True)
lt = Stream()
ttk2, lnrest, lnrel = ln_table(lt, 1, G2, None)
p_ = split(lt, 2)
side[9].extend(p_[0])
side[10].extend(p_[1])
p_ = split(lnrest, 3)
for i in range(3):
    side[11 + i].extend(p_[i])
gemm_b(a, ACC, AF, lambda s: wtk[s], pre, side, lastwait=lambda: ttk2)
put(*lnrel)
stamp(a, 'gemmB2')
htk, hrel = scan_phase(a, 1, ACC, AF)
put(*hrel)
a.wait(htk)
dual(a, flag_texts(sr(S_T0), '{P}'))
stamp(a, 'h_pub1')
a('s_lshl2_add_u32 %s, %s, %s' % (sr(S_T0), sr(S_L), sr(S_WAVE)))
a('s_cmp_lg_u32 %s, %d' % (sr(S_T0), (NRB - 1) * 9 * 4))
a('s_cselect_b64 exec, 0, 1',
  'buffer_store_dword %s, %s, %s, 0 offen sc1' % (vr(V_TAG), vr(V_ZERO), sr(R_WS, 4)),
  's_mov_b64 exec, -1')
gemm_c(a, 1)
gate(a, 3, True)
stamp(a, 'out')
a('s_branch L_fin')

a.fence()
a.label('L_aux')
V.free = set(range(NCOMMON, 256))
a('s_mov_b32 %s, 1' % sr(S_ROLE))
a('s_sub_u32 %s, %s, %d' % (sr(S_RB), sr(S_L), NMAIN))
a('s_mul_i32 %s, %s, 12288' % (sr(S_T3), sr(S_WAVE)))
a('s_add_u32 %s, %s, %d' % (sr(S_T3), sr(S_T3), 4 * BLK + 16384))
a('s_cmp_eq_u32 %s, 3' % sr(S_WAVE))
a('s_cbranch_scc1 L_auxrb')
a('s_cmp_ge_u32 %s, 54' % sr(S_RB))
a('s_cbranch_scc1 L_auxconv')
srd(a, R_BRE, P_CRE, 576 * 1152)
srd(a, R_BIM, P_CIM, 576 * 1152)
a('s_mul_i32 %s, %s, 3' % (sr(S_T0), sr(S_RB)))
a('s_add_u32 %s, %s, %s' % (sr(S_T0), sr(S_T0), sr(S_WAVE)))
a('s_mul_i32 %s, %s, 57' % (sr(S_CG), sr(S_T0)))
a('s_lshr_b32 %s, %s, 10' % (sr(S_CG), sr(S_CG)))
a('s_mul_i32 %s, %s, 18' % (sr(S_T1), sr(S_CG)))
a('s_sub_u32 %s, %s, %s' % (sr(S_KP), sr(S_T0), sr(S_T1)))
t, t2 = V.get(), V.get()
a('v_and_b32 %s, 31, %s' % (vr(t), vr(V_LANE)))
a('s_lshl_b32 %s, %s, 6' % (sr(S_T0), sr(S_KP)))
a('v_lshl_add_u32 %s, %s, 1, %s' % (vr(t2), vr(t), sr(S_T0)))
LT = lam_loads(a, t2)
CL = V.get(32)
vc = V.get()
a('v_lshrrev_b32 %s, 2, %s' % (vr(vc), vr(V_LANE)))
a('v_mul_u32_u24 %s, 1152, %s' % (vr(vc), vr(vc)))
a('v_and_b32 %s, 3, %s' % (vr(t2), vr(V_LANE)))
a('v_lshl_add_u32 %s, %s, 4, %s' % (vr(vc), vr(t2), vr(vc)))
a('s_mul_i32 %s, %s, %d' % (sr(S_T1), sr(S_CG), 64 * 1152))
a('s_add_u32 %s, %s, %s' % (sr(S_T1), sr(S_T1), sr(S_T0)))
for u in range(4):
    a('s_add_u32 %s, %s, %d' % (sr(S_T2), sr(S_T1), u * 16 * 1152),
      'buffer_load_dwordx4 %s, %s, %s, %s offen' % (vr(CL + 8 * u, 4), vr(vc), sr(R_BRE, 4), sr(S_T2)),
      'buffer_load_dwordx4 %s, %s, %s, %s offen' % (vr(CL + 8 * u + 4, 4), vr(vc), sr(R_BIM, 4), sr(S_T2)))
a('s_waitcnt lgkmcnt(0)')
tag_ready(a)
_, COEF = lam_compute(a, LT, True)
a('v_add_f32 %s, %s, %s' % (vr(COEF), vr(COEF), vr(COEF)))
a('v_add_f32 %s, %s, %s' % (vr(COEF + 1), vr(COEF + 1), vr(COEF + 1)))
a('v_lshl_add_u32 %s, %s, 3, %s' % (vr(t), vr(t), sr(S_T3)))
tk = a.mem('ds_write_b64 %s, %s offset:8192' % (vr(t), vr(COEF, 2)))
a('v_lshl_add_u32 %s, %s, 6, %s' % (vr(t), vr(t2), sr(S_T3)))
a.wait(tk)
CF = V.get(16)
for k in range(4):
    a('ds_read_b128 %s, %s offset:%d' % (vr(CF + 4 * k, 4), vr(t), 8192 + 16 * k))
wa, ra = V.get(), V.get()
a('v_lshrrev_b32 %s, 2, %s' % (vr(t), vr(V_LANE)))
a('v_lshlrev_b32 %s, 4, %s' % (vr(t), vr(t)))
a('v_lshl_add_u32 %s, %s, 9, %s' % (vr(wa), vr(t2), vr(t)))
a('v_add_u32 %s, %s, %s' % (vr(wa), sr(S_T3), vr(wa)))
a('v_add_u32 %s, %s, %s' % (vr(ra), sr(S_T3), vr(V_L16)))
X = V.get(4)
O = V.get(32)
RD = V.get(32)
toks = []
a('s_mul_i32 %s, %s, %d' % (sr(S_T1), sr(S_CG), 4 * 36))
a('s_lshl1_add_u32 %s, %s, %s' % (sr(S_T1), sr(S_KP), sr(S_T1)))
a('s_lshl_b32 %s, %s, 10' % (sr(S_T1), sr(S_T1)))
a('s_add_u32 %s, %s, %d' % (sr(S_T1), sr(S_T1), WS_CP))
for u in range(4):
    o = O + u * 8
    for e in range(8):
        src = CL + 8 * u + (e >> 1)
        if e & 1:
            a('v_and_b32 %s, 0xffff0000, %s' % (vr(X), vr(src)))
            a('v_and_b32 %s, 0xffff0000, %s' % (vr(X + 1), vr(src + 4)))
        else:
            a('v_lshlrev_b32 %s, 16, %s' % (vr(X), vr(src)))
            a('v_lshlrev_b32 %s, 16, %s' % (vr(X + 1), vr(src + 4)))
        cmul(a, X + 2, X, CF + 2 * e)
        a('v_cvt_pk_bf16_f32 %s, %s, -%s' % (vr(o + e), vr(X + 2), vr(X + 3)))
    bo = u * 2048
    a('ds_write_b128 %s, %s offset:%d' % (vr(wa), vr(o, 4), bo))
    a('ds_write_b128 %s, %s offset:%d' % (vr(wa), vr(o + 4, 4), bo + 256))
    rd = RD + u * 8
    a('ds_read_b128 %s, %s offset:%d' % (vr(rd, 4), vr(ra), bo))
    a('ds_read_b128 %s, %s offset:%d' % (vr(rd + 4, 4), vr(ra), bo + 1024))
for u in range(4):
    rd = RD + u * 8
    a('s_add_u32 %s, %s, %d' % (sr(S_T2), sr(S_T1), u * 36 * 1024))
    toks.append(a.mem('buffer_store_dwordx4 %s, %s, %s, %s offen sc1' % (vr(rd, 4), vr(V_L16), sr(R_WS, 4), sr(S_T2))))
    toks.append(a.mem('buffer_store_dwordx4 %s, %s, %s, %s offen offset:1024 sc1' % (vr(rd + 4, 4), vr(V_L16), sr(R_WS, 4), sr(S_T2))))
a('s_lshl_b32 %s, %s, 5' % (sr(S_T0), sr(S_CG)))
a('s_add_u32 %s, %s, %s' % (sr(S_T0), sr(S_T0), sr(S_KP)))
a('s_lshl_b32 %s, %s, 2' % (sr(S_T0), sr(S_T0)))
a('s_add_u32 %s, %s, %d' % (sr(S_T0), sr(S_T0), WS_CPF))
a.wait(*toks)
a(*flag_texts(sr(S_T0), 'sc1'))
a.fence()
a('s_branch L_auxconv2')

a.label('L_auxrb')
V.free = set(range(NCOMMON, 256))
a('s_cmp_ge_u32 %s, 36' % sr(S_RB))
a('s_cbranch_scc1 L_auxconv')
srd(a, R_BRE, P_BRE, 576 * 1152)
srd(a, R_BIM, P_BIM, 576 * 1152)
vc, t2 = V.get(), V.get()
a('v_lshrrev_b32 %s, 2, %s' % (vr(vc), vr(V_LANE)))
a('v_mul_u32_u24 %s, 1152, %s' % (vr(vc), vr(vc)))
a('v_and_b32 %s, 3, %s' % (vr(t2), vr(V_LANE)))
a('v_lshl_add_u32 %s, %s, 4, %s' % (vr(vc), vr(t2), vr(vc)))
a('s_mul_i32 %s, %s, %d' % (sr(S_T1), sr(S_RB), 16 * 1152))
BL = V.get(144)
for k in range(18):
    a('buffer_load_dwordx4 %s, %s, %s, %s offen offset:%d' % (vr(BL + 8 * k, 4), vr(vc), sr(R_BRE, 4), sr(S_T1), 64 * k))
    a('buffer_load_dwordx4 %s, %s, %s, %s offen offset:%d' % (vr(BL + 8 * k + 4, 4), vr(vc), sr(R_BIM, 4), sr(S_T1), 64 * k))
a('s_waitcnt lgkmcnt(0)')
tag_ready(a)
ONE2 = V.get()
SM = V.get(4)
a('v_mov_b32 %s, 0x3f803f80' % vr(ONE2))
a('v_mov_b32 %s, 0' % vr(SM))
a('v_mov_b32 %s, 0' % vr(SM + 2))
for k in range(18):
    for e in range(4):
        for mat in range(2):
            a('v_dot2_f32_bf16 %s, %s, %s, %s' % (vr(SM + 2 * mat), vr(BL + 8 * k + 4 * mat + e), vr(ONE2), vr(SM + 2 * mat)))
a('v_mov_b32 %s, %s' % (vr(SM + 1), vr(V_TAG)))
a('v_mov_b32 %s, %s' % (vr(SM + 3), vr(V_TAG)))
for qp in ('quad_perm:[1,0,3,2]', 'quad_perm:[2,3,0,1]'):
    for r in (SM, SM + 2):
        a('v_add_f32_dpp %s, %s, %s %s row_mask:0xf bank_mask:0xf' % (vr(r), vr(r), vr(r), qp))
a('v_lshlrev_b32 %s, 2, %s' % (vr(vc), vr(V_LANE)))
a('v_cmp_eq_u32 vcc, 0, %s' % vr(t2), 'v_cndmask_b32 %s, %s, %s, vcc' % (vr(vc), vr(V_OOB), vr(vc)))
a('s_lshl_b32 %s, %s, 8' % (sr(S_T0), sr(S_RB)))
a('s_add_u32 %s, %s, %d' % (sr(S_T0), sr(S_T0), WS_RBG))
a('buffer_store_dwordx4 %s, %s, %s, %s offen sc1' % (vr(SM, 4), vr(vc), sr(R_WS, 4), sr(S_T0)))
a.fence()
a('s_branch L_auxconv2')

a.label('L_auxconv')
a('s_waitcnt lgkmcnt(0)')
tag_ready(a)
a.label('L_auxconv2')
V.free = set(range(NCOMMON, 256))
nst = len(STAMPS)
sv = OPT['stamps']
OPT['stamps'] = 0
cv = Conv()
a('s_barrier')
conv_setup_k(a, cv)
conv_flag_prep(a, cv)
poll(a, [cv.fload], [(cv.fv, None, cv.fe)])
conv_u_loads(a, cv)
f = conv_body(a, cv)
a.extend(f)
OPT['stamps'] = sv
a.fence()
a('s_add_u32 %s, %s, %d' % (sr(S_PAIR), sr(S_PAIR), NAUX))
a('s_cmp_lt_u32 %s, 288' % sr(S_PAIR))
a('s_cbranch_scc1 L_auxconv2')
a('s_branch L_fin')

a.fence()
a.extend(tail)

a.label('L_fin')
if OPT['stamps']:
    a('s_waitcnt vmcnt(0) lgkmcnt(0)')
    a('s_memrealtime %s' % sr(S_M2, 2))
    a('s_waitcnt lgkmcnt(0)')
    a('v_writelane_b32 %s, %s, 63' % (vr(V_STAMP), sr(S_M2)))
    a('v_writelane_b32 %s, %s, 62' % (vr(V_STAMP), sr(S_FAST)))
    a('s_lshl_b32 %s, %s, 10' % (sr(S_T0), sr(S_L)))
    a('s_add_u32 %s, %s, %d' % (sr(S_T0), sr(S_T0), WS_DBG))
    a('v_lshlrev_b32 %s, 2, v0' % vr(V_DUMMY))
    a('buffer_store_dword %s, %s, %s, %s offen' % (vr(V_STAMP), vr(V_DUMMY), sr(R_WS, 4), sr(S_T0)))
a.label('L_end')
a('s_endpgm')

hdr = open(os.path.join(os.path.dirname(os.path.abspath(__file__)), '..', 'cdna_kernels', NAME + '.s.ref')).read().split('\n')
head = []
for ln in hdr:
    if ln.startswith('; @launch'):
        break
    head.append(ln)
lines = head + ['; @launch grid=(256,1,1) block=(256,1,1) lds=%d' % LDS_SIZE,
                '.amdgcn_target "amdgcn-amd-amdhsa--gfx950"', '.text', '.globl ' + KN, '.p2align 8',
                '.type %s,@function' % KN, KN + ':']
lines += finalize(top)
lines += ['.section .rodata,"a"', '.p2align 6', '.amdhsa_kernel ' + KN,
          '  .amdhsa_next_free_vgpr 512', '  .amdhsa_next_free_sgpr 102', '  .amdhsa_accum_offset 256',
          '  .amdhsa_group_segment_fixed_size 0', '  .amdhsa_kernarg_size 144', '  .amdhsa_user_sgpr_count 2',
          '  .amdhsa_user_sgpr_kernarg_segment_ptr 1', '  .amdhsa_system_sgpr_workgroup_id_x 1', '.end_amdhsa_kernel']
open(sys.argv[1], 'w').write('\n'.join(lines) + '\n')
if OPT['stamps']:
    open(sys.argv[1] + '.stamps', 'w').write('\n'.join(STAMPS) + '\n')
print('vgpr high water', V.hw, 'lines', len(lines))
```

```python
import sys, os
sys.path.insert(0, os.path.dirname(os.path.abspath(__file__)))
from asmlib import *

NAME = 'interleave_layers__ssm_conv_s5__ssm_conv_h3__prompt'
KN = NAME + '_kernel'

OPT = dict(stamps=0, slow=0, hbuf2=0, crot=0, pf=1, x_nomfma=0, x_noload=0, fine=0, cyc=0)
for a_ in sys.argv[2:]:
    k_, v_ = a_.split('=')
    OPT[k_] = int(v_)

MT = 6
NRB = 22
NMAIN = 198
NAUX = 58
WS_KVF = 0x1000
WS_CPF = 0x3000
WS_HF = 0x4000
WS_WF = 0x8000
WS_GF = 0xA000
WS_RBG = 0xC000
WS_E = 0x10000
WS_ST = 0xA0000
ST_SZ = 22 * 24576
WS_KVT = 0x2C0000
KVT_STR = 4352
WS_CP = 0x540000
WS_H = 0x6C0000
H_SZ = 22 * 221184 * OPT['hbuf2']
WS_W = 0x1040000
WS_G = 0x12C0000
G_STR = 8448
WS_DBG = 0x2000000
WS_SIZE = 0x10000000
OOB = 0x7FFF0000

BLK = 12288
L_IMG = 0
L_RING = 9 * BLK
L_MISC = L_RING + 49152
LDS_SIZE = 163840
L_TAB = L_MISC
L_FX = L_MISC + 768
L_HALO = L_MISC + 3072
L_KRAW = 6 * BLK
L_VRAW = 7 * BLK
L_KVO = 8 * BLK
L_KC = L_RING
KC_CH = 16656
L_UC = L_IMG
UC_CH = 9280
L_CO = L_IMG + 2 * BLK
PART_ROW = 272
PART_W = 16 * PART_ROW
SPIN = 20000

P_X, P_LRE, P_LIM, P_BRE, P_BIM, P_CRE, P_CIM, P_LDT = [8 + 2 * i for i in range(8)]
P_DSK, P_Q, P_K, P_V, P_SHK, P_SSK, P_SSD, P_OUT = [24 + 2 * i for i in range(8)]
P_DBG, P_WS = 40, 42
R_WS, R_X, R_BRE, R_BIM, R_K, R_V, R_OUT, R_SK = [44 + 4 * i for i in range(8)]
S_RB, S_CG, S_FAST, S_WAVE, S_TAG, S_L, S_PAIR, S_SPIN = range(76, 84)
S_KP = 84
S_T0, S_T1, S_T2, S_T3 = 93, 94, 95, 96
S_ROLE = 97
S_M1, S_M2 = 98, 100
S_A, S_B, S_C = 3, 4, 5
S_PC = 6
S_TT = 8
S_TU = 17
S_MSEL = 26
S_MACT = 40
S_W1K = 17
S_RINGW = 18
S_PT = 19
S_XCC = 20

V = Alloc('v', 1, 256)
top = Stream()
tail = Stream()
lblc = [0]
STAMPS = []


def newlabel(p):
    lblc[0] += 1
    return 'L_%s_%d' % (p, lblc[0])


def put(*items):
    for it in items:
        if isinstance(it, tuple):
            V.put(*it)
        else:
            V.put(it)


def srd(a, r, p, size):
    a('s_mov_b32 %s, %s' % (sr(r), sr(p)))
    a('s_and_b32 %s, %s, 0xffff' % (sr(r + 1), sr(p + 1)))
    a('s_mov_b32 %s, 0x%x' % (sr(r + 2), size))
    a('s_mov_b32 %s, 0x20000' % sr(r + 3))


def cmul(a, d, x, y):
    a('v_pk_mul_f32 %s, %s, %s op_sel:[0,0] op_sel_hi:[1,0]' % (vr(d, 2), vr(x, 2), vr(y, 2)))
    a('v_pk_fma_f32 %s, %s, %s, %s op_sel:[1,1,0] op_sel_hi:[0,1,1] neg_lo:[1,0,0]' % (vr(d, 2), vr(x, 2), vr(y, 2), vr(d, 2)))


def cfma(a, d, x, y, c):
    a('v_pk_fma_f32 %s, %s, %s, %s op_sel:[0,0,0] op_sel_hi:[1,0,1]' % (vr(d, 2), vr(x, 2), vr(y, 2), vr(c, 2)))
    a('v_pk_fma_f32 %s, %s, %s, %s op_sel:[1,1,0] op_sel_hi:[0,1,1] neg_lo:[1,0,0]' % (vr(d, 2), vr(x, 2), vr(y, 2), vr(d, 2)))


def stamp(a, name):
    if not OPT['stamps']:
        return
    i = len(STAMPS)
    a('%s %s' % ('s_memtime' if OPT['cyc'] else 's_memrealtime', sr(S_M2, 2)), 's_waitcnt lgkmcnt(0)', 'v_writelane_b32 %s, %s, %d' % (vr(V_STAMP), sr(S_M2), i))
    STAMPS.append(name)


def poll(a, loads, checks, pre_issued=False):
    p = Stream()
    L = newlabel('poll')
    Lc = newlabel('pollc')
    acc = V.get(2, 1)
    p('s_mov_b32 %s, %d' % (sr(S_SPIN), SPIN))
    if pre_issued:
        regs = []
        for c in checks:
            regs += [vr(c[0])] + ([vr(c[1])] if c[1] is not None else [])
        p.touch(*regs)
        p.label(Lc)
    else:
        p.label(L)
        for t in loads:
            p(t)
        p('s_waitcnt vmcnt(0)')
    if len(checks) == 1 and checks[0][1] is None:
        p('v_cmp_ne_u32 vcc, %s, %s' % (vr(checks[0][0]), vr(checks[0][2])))
    else:
        first = True
        for (x, y, e) in checks:
            d = acc if first else acc + 1
            if y is None:
                p('v_xor_b32 %s, %s, %s' % (vr(d), vr(x), vr(e)))
            else:
                p('v_bitop3_b32 %s, %s, %s, %s bitop3:0x7e' % (vr(d), vr(x), vr(y), vr(e)))
            if not first:
                p('v_or_b32 %s, %s, %s' % (vr(acc), vr(acc), vr(acc + 1)))
            first = False
        p('v_cmp_ne_u32 vcc, 0, %s' % vr(acc))
    p('s_sub_u32 %s, %s, 1' % (sr(S_SPIN), sr(S_SPIN)))
    p('s_cselect_b64 vcc, 0, vcc')
    p('s_cmp_lg_u64 vcc, 0')
    p('s_cbranch_scc1 %s' % L)
    if pre_issued:
        tail.label(L)
        for t in loads:
            tail(t)
        tail('s_waitcnt vmcnt(0)')
        tail('s_branch %s' % Lc)
    a.join(p)
    V.put(acc, 2)


def dual(a, texts, touch=()):
    Ls, Lb = newlabel('slow'), newlabel('back')
    p = Stream()
    if touch:
        p.touch(*touch)
    p('s_cmp_eq_u32 %s, 0' % sr(S_FAST), 's_cbranch_scc1 %s' % Ls)
    tk = p.mem(*[t.replace(' {P}', '') for t in texts])
    p.label(Lb)
    a.join(p)
    tail.label(Ls)
    tail('s_nop 1')
    tail(*[t.replace('{P}', 'sc1') for t in texts])
    tail('s_branch %s' % Lb)
    return tk


def flag_texts(soff, pol):
    return ['s_mov_b64 exec, 1',
            'buffer_store_dword %s, %s, %s, %s offen %s' % (vr(V_TAG), vr(V_ZERO), sr(R_WS, 4), soff, pol),
            's_mov_b64 exec, -1']


def lam_loads(a, vp2):
    t = V.get(4)
    a('global_load_ushort %s, %s, %s' % (vr(t), vr(vp2), sr(P_LRE, 2)))
    a('global_load_ushort %s, %s, %s' % (vr(t + 1), vr(vp2), sr(P_LIM, 2)))
    a('global_load_ushort %s, %s, %s' % (vr(t + 2), vr(vp2), sr(P_LDT, 2)))
    return t


def lam_compute(a, t, want_coef, lam=None):
    if lam is None:
        lam = V.get(2)
    u = V.get(4)
    for i in range(3):
        a('v_lshlrev_b32 %s, 16, %s' % (vr(t + i), vr(t + i)))
    a('v_mul_f32 %s, 0x3fb8aa3b, %s' % (vr(t + 2), vr(t + 2)))
    a('v_exp_f32 %s, %s' % (vr(t + 2), vr(t + 2)))
    a('v_cvt_pk_bf16_f32 %s, %s, %s' % (vr(t + 2), vr(t + 2), vr(t + 2)))
    a('v_lshlrev_b32 %s, 16, %s' % (vr(t + 2), vr(t + 2)))
    a('v_mul_f32 %s, %s, %s' % (vr(u), vr(t + 2), vr(t)))
    a('v_mul_f32 %s, %s, %s' % (vr(u + 1), vr(t + 2), vr(t + 1)))
    a('v_mul_f32 %s, 0x3fb8aa3b, %s' % (vr(u), vr(u)))
    a('v_exp_f32 %s, %s' % (vr(u), vr(u)))
    a('v_mul_f32 %s, 0.15915494, %s' % (vr(u + 1), vr(u + 1)))
    a('v_rndne_f32 %s, %s' % (vr(u + 2), vr(u + 1)))
    a('v_sub_f32 %s, %s, %s' % (vr(u + 1), vr(u + 1), vr(u + 2)))
    a('v_cos_f32 %s, %s' % (vr(u + 2), vr(u + 1)))
    a('v_sin_f32 %s, %s' % (vr(u + 3), vr(u + 1)))
    a('v_mul_f32 %s, %s, %s' % (vr(lam), vr(u), vr(u + 2)))
    a('v_mul_f32 %s, %s, %s' % (vr(lam + 1), vr(u), vr(u + 3)))
    coef = None
    if want_coef:
        coef = V.get(2)
        a('v_add_f32 %s, -1.0, %s' % (vr(u), vr(lam)))
        a('v_mov_b32 %s, %s' % (vr(u + 1), vr(lam + 1)))
        a('v_mul_f32 %s, %s, %s' % (vr(u + 2), vr(t), vr(t)))
        a('v_fmac_f32 %s, %s, %s' % (vr(u + 2), vr(t + 1), vr(t + 1)))
        a('v_rcp_f32 %s, %s' % (vr(u + 2), vr(u + 2)))
        a('v_sub_f32 %s, 0, %s' % (vr(t + 1), vr(t + 1)))
        cmul(a, coef, u, t)
        a('v_mul_f32 %s, %s, %s' % (vr(coef), vr(coef), vr(u + 2)))
        a('v_mul_f32 %s, %s, %s' % (vr(coef + 1), vr(coef + 1), vr(u + 2)))
    put((u, 4), (t, 4))
    return lam, coef


def tag_ready(a):
    a('s_mul_i32 %s, %s, 0x9E3779B1' % (sr(S_TAG), sr(S_TAG)),
      's_add_u32 %s, %s, 0x7F4A7C15' % (sr(S_TAG), sr(S_TAG)),
      'v_mov_b32 %s, %s' % (vr(V_TAG), sr(S_TAG)))


def rbf(s, regs):
    for r in regs:
        s('v_cvt_pk_bf16_f32 %s, %s, %s' % (vr(r), vr(r), vr(r)))
    for r in regs:
        s('v_lshlrev_b32 %s, 16, %s' % (vr(r), vr(r)))


def rs12(s, S, Q):
    dp = 'v_add_f32_dpp %s, %s, %s %s row_mask:0xf bank_mask:0x%x'
    for X in (S, Q):
        for j in range(3):
            s(dp % (vr(X[j]), vr(X[j]), vr(X[j]), 'row_ror:8', 0x3))
    for X in (S, Q):
        for j in range(3):
            s(dp % (vr(X[j]), vr(X[j + 3]), vr(X[j + 3]), 'row_ror:8', 0xc))
    for X in (S, Q):
        s(dp % (vr(X[0]), vr(X[0]), vr(X[0]), 'row_half_mirror', 0x5))
        s(dp % (vr(X[2]), vr(X[2]), vr(X[2]), 'row_half_mirror', 0xf))
    for X in (S, Q):
        s(dp % (vr(X[0]), vr(X[1]), vr(X[1]), 'row_half_mirror', 0xa))
    for qp in ('quad_perm:[1,0,3,2]', 'quad_perm:[2,3,0,1]'):
        for r in (S[2], Q[2], S[0], Q[0]):
            s(dp % (vr(r), vr(r), vr(r), qp, 0xf))


def tile_src(i):
    hf, j = divmod(i, 3)
    if j == 2:
        return 1, 8 * hf
    return 0, 8 * hf + 4 * j


a = top
V_LANE, V_TAG, V_STAMP, V_L16, V_N, V_Q = [V.get() for _ in range(6)]
V_OOB = V.get()
V_JUNK = V.get()
V_ZERO = V.get(2)
V_DUMMY = V.get(4)
NCOMMON = V.hw
BASE = V.get(24)
V_DSK = V.get(4)
V_FA = V.get(4)
LAM, L12, L24, L384, LQ96, LQ24, RB, OFF = [V.get(2) for _ in range(8)]
(V_TAU, V_OROW, V_STW, V_STR, V_EXP9, V_TABW, V_EW, V_ER, V_HW, V_HR, V_TABR, V_WA) = [V.get() for _ in range(12)]
V_DX = V.get(3, 1)

a('s_cmp_ge_u32 s2, 256')
a('s_cbranch_scc1 L_end')
a('s_load_dwordx16 s[8:23], s[0:1], 0')
a('s_load_dwordx16 s[24:39], s[0:1], 64')
a('s_load_dwordx4 s[40:43], s[0:1], 128')
a('s_getpc_b64 %s' % sr(S_PC, 2))
a.label('L_pc')
a('s_lshr_b32 %s, s2, 3' % sr(S_T0))
a('s_lshl_b32 %s, %s, 12' % (sr(S_T1), sr(S_T0)))
a('v_lshl_add_u32 %s, v0, 4, %s' % (vr(V_DUMMY), sr(S_T1)))
a('s_mov_b32 %s, L_end-L_pc-16' % sr(S_T1))
a('v_min_u32 %s, %s, %s' % (vr(V_DUMMY), sr(S_T1), vr(V_DUMMY)))
a('global_load_dwordx4 %s, %s, %s' % (vr(V_DUMMY, 4), vr(V_DUMMY), sr(S_PC, 2)))
a('v_and_b32 %s, 63, v0' % vr(V_LANE))
a('v_lshrrev_b32 %s, 6, v0' % vr(V_Q))
a('v_lshlrev_b32 %s, 4, %s' % (vr(V_L16), vr(V_LANE)))
a('v_readfirstlane_b32 %s, %s' % (sr(S_WAVE), vr(V_Q)))
if OPT['stamps']:
    a('v_mov_b32 %s, 0' % vr(V_STAMP))
stamp(a, 'start')
a('v_and_b32 %s, 15, %s' % (vr(V_N), vr(V_LANE)))
a('v_lshrrev_b32 %s, 4, %s' % (vr(V_Q), vr(V_LANE)))
a('v_mov_b32 %s, 0' % vr(V_ZERO))
a('v_mov_b32 %s, 0' % vr(V_ZERO + 1))
a('v_mov_b32 %s, 0x%x' % (vr(V_OOB), OOB))
a('s_lshl2_add_u32 %s, s2, %s' % (sr(S_T1), sr(S_WAVE)))
a('s_mul_i32 %s, %s, 648' % (sr(S_T1), sr(S_T1)))
a('v_min_u32 %s, 10, %s' % (vr(V_TAG), vr(V_LANE)))
a('v_lshl_add_u32 %s, %s, 6, %s' % (vr(V_TAG), vr(V_TAG), sr(S_T1)))
a('s_and_b32 %s, s2, 7' % sr(S_T1))
a('s_mul_i32 %s, %s, 27' % (sr(S_T2), sr(S_T1)))
a('s_add_u32 %s, %s, %s' % (sr(S_T2), sr(S_T2), sr(S_T0)))
a('s_mul_i32 %s, %s, 5' % (sr(S_T3), sr(S_T1)))
a('s_add_u32 %s, %s, %s' % (sr(S_T3), sr(S_T3), sr(S_T0)))
a('s_add_u32 %s, %s, %d' % (sr(S_T3), sr(S_T3), 216 - 27))
a('s_cmp_lt_u32 %s, 27' % sr(S_T0))
a('s_cselect_b32 %s, %s, %s' % (sr(S_L), sr(S_T2), sr(S_T3)))
a('s_mul_i32 %s, %s, 57' % (sr(S_RB), sr(S_L)))
a('s_lshr_b32 %s, %s, 9' % (sr(S_RB), sr(S_RB)))
a('s_mul_i32 %s, %s, 9' % (sr(S_T0), sr(S_RB)))
a('s_sub_u32 %s, %s, %s' % (sr(S_CG), sr(S_L), sr(S_T0)))
a('s_mul_i32 %s, %s, 43' % (sr(S_T0), sr(S_RB)))
a('s_lshr_b32 %s, %s, 7' % (sr(S_T0), sr(S_T0)))
a('s_mul_i32 %s, %s, 3' % (sr(S_T0), sr(S_T0)))
a('s_sub_u32 %s, %s, %s' % (sr(S_T0), sr(S_RB), sr(S_T0)))
a('s_lshl_b32 %s, 1, %s' % (sr(S_T0), sr(S_T0)))
a('s_mov_b32 %s, %s' % (sr(S_KP), sr(S_CG)))
for i in range(1, 9):
    a('s_add_u32 %s, %s, %s' % (sr(S_KP + i), sr(S_KP + i - 1), sr(S_T0)))
    a('s_sub_u32 %s, %s, 9' % (sr(S_T1), sr(S_KP + i)))
    a('s_cselect_b32 %s, %s, %s' % (sr(S_KP + i), sr(S_KP + i), sr(S_T1)))
a('s_mov_b32 %s, %s' % (sr(S_PAIR), sr(S_L)))
a('s_mov_b32 %s, 0' % sr(S_ROLE))
a('s_and_b32 %s, %s, 1' % (sr(S_A), sr(S_WAVE)))
a('s_lshr_b32 %s, %s, 1' % (sr(S_B), sr(S_WAVE)))
a('s_waitcnt lgkmcnt(0)')
a('s_load_dword %s, %s, 0' % (sr(S_TAG), sr(P_WS, 2)))
if OPT['pf']:
    a('global_load_dword %s, %s, %s ;junk' % (vr(V_JUNK), vr(V_TAG), sr(P_BRE, 2)))
    a('global_load_dword %s, %s, %s ;junk' % (vr(V_JUNK), vr(V_TAG), sr(P_BIM, 2)))
srd(a, R_WS, P_WS, WS_SIZE)
a('s_cmp_ge_u32 %s, %d' % (sr(S_L), NMAIN))
a('s_cbranch_scc1 L_aux')
stamp(a, 'karg')
srd(a, R_K, P_K, 2048 * 1152)
srd(a, R_V, P_V, 2048 * 1152)

t, t2, t3 = V.get(), V.get(), V.get()
SHK = V.get(4)
a('v_lshrrev_b32 %s, 3, %s' % (vr(t), vr(V_LANE)))
a('v_and_b32 %s, 7, %s' % (vr(t3), vr(V_LANE)))
a('s_lshl2_add_u32 %s, %s, %s' % (sr(S_C), sr(S_CG), sr(S_WAVE)))
a('s_lshl_b32 %s, %s, 5' % (sr(S_T1), sr(S_C)))
a('v_lshl_add_u32 %s, %s, 1, %s' % (vr(t2), vr(V_N), sr(S_T1)))
LAMT = lam_loads(a, t2)
a('v_mul_u32_u24 %s, 1152, %s' % (vr(t2), vr(t)))
a('v_lshl_add_u32 %s, %s, 4, %s' % (vr(t2), vr(t3), vr(t2)))
a('s_mul_i32 %s, %s, %d' % (sr(S_T0), sr(S_RB), 96 * 1152))
a('s_lshl_b32 %s, %s, 7' % (sr(S_T1), sr(S_CG)))
a('s_add_u32 %s, %s, %s' % (sr(S_T0), sr(S_T0), sr(S_T1)))
a('s_mul_i32 %s, %s, %d' % (sr(S_T1), sr(S_WAVE), 8 * 1152))
a('s_add_u32 %s, %s, %s' % (sr(S_T1), sr(S_T1), sr(S_T0)))
a('s_lshl_b32 %s, %s, 10' % (sr(S_T3), sr(S_WAVE)))
V_KH = V.get()
a('s_sub_u32 %s, %s, %d' % (sr(S_T0), sr(S_T0), 8 * 1152))
a('s_mov_b32 m0, %d' % L_HALO)
a('v_add_u32 %s, %s, %s' % (vr(V_KH), sr(S_T0), vr(t2)))
a('buffer_load_dwordx4 %s, %s, 0 offen lds' % (vr(V_KH), sr(R_K, 4)))
for u in range(3):
    a('s_add_u32 m0, %s, %d' % (sr(S_T3), L_KRAW + u * 4096),
      's_add_u32 %s, %s, %d' % (sr(S_T2), sr(S_T1), u * 32 * 1152),
      'buffer_load_dwordx4 %s, %s, %s offen lds' % (vr(t2), sr(R_K, 4), sr(S_T2)),
      's_add_u32 m0, %s, %d' % (sr(S_T3), L_VRAW + u * 4096))
    srd(a, (R_X, R_BRE, R_BIM)[u], (P_X, P_BRE, P_BIM)[u], (2048 * 1152, 576 * 1152, 576 * 1152)[u])
    kvtok = a.mem('buffer_load_dwordx4 %s, %s, %s offen lds' % (vr(t2), sr(R_V, 4), sr(S_T2)))
put(V_KH)
a('s_lshl_b32 %s, %s, 7' % (sr(S_T1), sr(S_C)))
a('v_lshl_add_u32 %s, %s, 4, %s' % (vr(t2), vr(t3), sr(S_T1)))
a('global_load_dwordx4 %s, %s, %s' % (vr(SHK, 4), vr(t2), sr(P_SHK, 2)))
a('s_lshl_b32 %s, %s, 7' % (sr(S_T1), sr(S_CG)))
a('v_lshl_add_u32 %s, %s, 3, %s' % (vr(t2), vr(V_N), sr(S_T1)))
a('global_load_dwordx2 %s, %s, %s' % (vr(V_DSK, 2), vr(t2), sr(P_DSK, 2)))
a('s_mov_b32 %s, %s' % (sr(S_T0), sr(S_C)))
stamp(a, 'kvdma')
a('s_mov_b32 %s, %s' % (sr(S_PT), sr(S_T0)))
a('s_mov_b32 %s, %s' % (sr(S_W1K), sr(S_T3)))
a('s_mul_i32 %s, %s, 12288' % (sr(S_RINGW), sr(S_WAVE)))
a('s_add_u32 %s, %s, %d' % (sr(S_RINGW), sr(S_RINGW), L_RING))
for i in range(9):
    a('s_lshl_b32 %s, %s, 7' % (sr(S_TT + i), sr(S_KP + i)))
V_DB = V.get(2)
c0 = V.get()
a('v_xor_b32 %s, %s, %s' % (vr(c0), vr(t3), vr(V_Q)))
a('v_lshlrev_b32 %s, 4, %s' % (vr(c0), vr(c0)))
a('v_lshrrev_b32 %s, 5, %s' % (vr(t2), vr(V_LANE)))
a('v_mul_u32_u24 %s, 24, %s' % (vr(t2), vr(t2)))
a('v_and_b32 %s, 1, %s' % (vr(t3), vr(t)))
a('v_mad_u32_u24 %s, %s, 12, %s' % (vr(t2), vr(t3), vr(t2)))
a('v_and_b32 %s, 1, %s' % (vr(t3), vr(V_Q)))
a('s_mul_i32 %s, %s, 48' % (sr(S_T0), sr(S_A)))
a('s_mul_i32 %s, %s, 96' % (sr(S_T1), sr(S_RB)))
a('s_add_u32 %s, %s, %s' % (sr(S_T0), sr(S_T0), sr(S_T1)))
a('s_lshl1_add_u32 %s, %s, %s' % (sr(S_T0), sr(S_B), sr(S_T0)))
a('v_add3_u32 %s, %s, %s, %s' % (vr(t2), vr(t2), vr(t3), sr(S_T0)))
a('v_mul_u32_u24 %s, 1152, %s' % (vr(t2), vr(t2)))
a('s_lshl_b32 %s, %s, 6' % (sr(S_T0), sr(S_A)))
a('v_xor_b32 %s, %s, %s' % (vr(V_DX), sr(S_T0), vr(c0)))
a('v_add_u32 %s, %s, %s' % (vr(V_DX), vr(V_DX), vr(t2)))
a('v_add_u32 %s, 4608, %s' % (vr(V_DX + 1), vr(V_DX)))
a('v_add_u32 %s, 9216, %s' % (vr(V_DX + 2), vr(V_DX)))


def x_dma(s, blk, layer):
    tk = None
    for u in range(3):
        s('s_add_u32 m0, %s, %d' % (sr(S_W1K), L_IMG + blk * BLK + u * 4096))
        tk = s.mem('buffer_load_dwordx4 %s, %s, %s offen%s lds' % (vr(V_DX + u), sr(R_X if layer == 0 else R_WS, 4),
                                                                   sr(S_TT + blk), '' if layer == 0 else ' sc1'))
    return tk


xtk = {}
xtk[0] = x_dma(a, 0, 0)
a('s_lshl_b32 %s, %s, 4' % (sr(S_T0), sr(S_PT)))
a('v_add_u32 %s, %s, %s' % (vr(t2), sr(S_T0), vr(t)))
a('v_mul_u32_u24 %s, 1152, %s' % (vr(t2), vr(t2)))
a('v_add_u32 %s, %s, %s' % (vr(V_DB), vr(t2), vr(c0)))
a('v_xor_b32 %s, 64, %s' % (vr(V_DB + 1), vr(c0)))
a('v_add_u32 %s, %s, %s' % (vr(V_DB + 1), vr(V_DB + 1), vr(t2)))
a('v_add_u32 %s, %d, %s' % (vr(V_DB + 1), 8 * 1152, vr(V_DB + 1)))
put(c0)

WB = lambda kp, h, mat: ((kp * 2 + h) * 2 + mat) * 4


def b_dma(s, kp):
    tk = None
    for b in range(4):
        s('s_add_u32 m0, %s, %d' % (sr(S_RINGW), (kp % 3) * 4096 + b * 1024))
        tk = s.mem('buffer_load_dwordx4 %s, %s, %s offen lds' % (vr(V_DB + (b & 1)), sr(R_BRE if b < 2 else R_BIM, 4), sr(S_TT + kp)))
    return tk


btk = {}
btk[0] = b_dma(a, 0)
stamp(a, 'x0b0')
iss = Stream()
xtk[1] = x_dma(iss, 1, 0)
btk[1] = b_dma(iss, 1)
xtk[2] = x_dma(iss, 2, 0)
btk[2] = b_dma(iss, 2)

su = Stream()
V_FB = V.get(2)
su('v_lshrrev_b32 %s, 1, %s' % (vr(t), vr(V_N)))
su('v_xor_b32 %s, %s, %s' % (vr(t), vr(t), vr(V_Q)))
su('v_lshlrev_b32 %s, 4, %s' % (vr(t), vr(t)))
su('v_lshl_add_u32 %s, %s, 7, %s' % (vr(V_FA), vr(V_N), vr(t)))
su('v_xor_b32 %s, 64, %s' % (vr(V_FA + 1), vr(V_FA)))
su('v_add_u32 %s, %d, %s' % (vr(V_FA + 2), 4 * BLK, vr(V_FA)))
su('v_add_u32 %s, %d, %s' % (vr(V_FA + 3), 4 * BLK, vr(V_FA + 1)))
su('v_add_u32 %s, %s, %s' % (vr(V_FB), sr(S_RINGW), vr(V_FA)))
su('v_add_u32 %s, %s, %s' % (vr(V_FB + 1), sr(S_RINGW), vr(V_FA + 1)))
srd(su, R_OUT, P_OUT, 2048 * 2304)
su('s_mov_b32 %s, 0x02020202' % sr(S_MSEL), 's_mov_b32 %s, 0x02020202' % sr(S_MSEL + 1))
su('s_mov_b32 %s, 0x13131313' % sr(S_MACT), 's_mov_b32 %s, 0x13131313' % sr(S_MACT + 1))
su('s_getreg_b32 %s, hwreg(HW_REG_XCC_ID, 0, 4)' % sr(S_XCC))
su('v_and_b32 %s, 1, %s' % (vr(t), vr(V_Q)))
su('v_mul_u32_u24 %s, 12, %s' % (vr(V_TAU), vr(t)))
su('v_lshrrev_b32 %s, 1, %s' % (vr(t2), vr(V_Q)))
su('v_add_u32 %s, %s, %s' % (vr(V_TAU), vr(V_TAU), vr(t2)))
su('s_mul_i32 %s, %s, 96' % (sr(S_T0), sr(S_RB)),
   's_mul_i32 %s, %s, 24' % (sr(S_T1), sr(S_WAVE)),
   's_add_u32 %s, %s, %s' % (sr(S_T0), sr(S_T0), sr(S_T1)),
   'v_add_u32 %s, %s, %s' % (vr(t3), sr(S_T0), vr(V_TAU)))
su('v_mul_u32_u24 %s, 2304, %s' % (vr(V_OROW), vr(t3)))
su('s_lshl_b32 %s, %s, 8' % (sr(S_T0), sr(S_CG)),
   'v_lshl_add_u32 %s, %s, 4, %s' % (vr(t3), vr(V_N), sr(S_T0)))
su('v_add_u32 %s, %s, %s' % (vr(V_OROW), vr(V_OROW), vr(t3)))
TI = V.get()
su('v_lshrrev_b32 %s, 3, %s' % (vr(TI), vr(V_N)))
su('v_mul_u32_u24 %s, 3, %s' % (vr(TI), vr(TI)))
su('v_bfe_u32 %s, %s, 2, 1' % (vr(t3), vr(V_N)))
su('v_cndmask_b32 %s, %s, 2, %s' % (vr(t3), vr(t3), sr(S_MSEL, 2)))
su('v_add_u32 %s, %s, %s' % (vr(TI), vr(TI), vr(t3)))
su('v_lshl_add_u32 %s, %s, 1, %s' % (vr(t3), vr(TI), vr(t2)))
su('v_lshlrev_b32 %s, 4, %s' % (vr(t3), vr(t3)))
su('v_lshl_add_u32 %s, %s, 2, %s' % (vr(V_TABW), vr(t), vr(t3)))
su('s_mul_i32 %s, %s, 192' % (sr(S_T0), sr(S_WAVE)),
   's_add_u32 %s, %s, %d' % (sr(S_T0), sr(S_T0), L_TAB),
   'v_add_u32 %s, %s, %s' % (vr(V_TABW), sr(S_T0), vr(V_TABW)))
su('v_mul_u32_u24 %s, 192, %s' % (vr(V_TABR), vr(V_Q)))
su('v_add_u32 %s, %d, %s' % (vr(V_TABR), L_TAB, vr(V_TABR)))
su('s_mul_i32 %s, %s, 96' % (sr(S_T0), sr(S_RB)),
   's_lshl2_add_u32 %s, %s, %s' % (sr(S_T0), sr(S_WAVE), sr(S_T0)),
   'v_add_u32 %s, %s, %s' % (vr(t), sr(S_T0), vr(V_Q)))
su('v_lshlrev_b32 %s, 8, %s' % (vr(t), vr(t)))
su('v_lshl_add_u32 %s, %s, 4, %s' % (vr(V_STR), vr(V_N), vr(t)))
su('v_cmp_gt_u32 vcc, 9, %s' % vr(V_N),
   'v_cndmask_b32 %s, %s, %s, vcc' % (vr(V_STR), vr(V_OOB), vr(V_STR)))
su('v_lshl_add_u32 %s, %s, 12, %s' % (vr(V_STW), vr(TI), vr(t)))
su('s_lshl_b32 %s, %s, 4' % (sr(S_T0), sr(S_CG)),
   'v_add_u32 %s, %s, %s' % (vr(V_STW), sr(S_T0), vr(V_STW)))
su('v_cndmask_b32 %s, %s, %s, %s' % (vr(V_STW), vr(V_OOB), vr(V_STW), sr(S_MACT, 2)))
put(TI)
su('s_lshl_b32 %s, %s, 2' % (sr(S_T0), sr(S_WAVE)),
   'v_add_u32 %s, %s, %s' % (vr(V_WA), sr(S_T0), vr(V_Q)))
su('v_xor_b32 %s, %s, %s' % (vr(t), vr(V_WA), vr(V_N)))
su('v_lshrrev_b32 %s, 1, %s' % (vr(t), vr(t)))
su('v_lshlrev_b32 %s, 4, %s' % (vr(t), vr(t)))
su('v_lshl_add_u32 %s, %s, 7, %s' % (vr(V_WA), vr(V_WA), vr(t)))
su('v_and_b32 %s, 1, %s' % (vr(t), vr(V_N)))
su('v_lshl_add_u32 %s, %s, 3, %s' % (vr(V_WA), vr(t), vr(V_WA)))
su('s_lshl_b32 %s, %s, 8' % (sr(S_T0), sr(S_RB)),
   'v_lshl_add_u32 %s, %s, 4, %s' % (vr(V_EW), vr(V_N), sr(S_T0)))
su('v_lshlrev_b32 %s, 8, %s' % (vr(t), vr(V_Q)))
su('v_sub_u32 %s, %s, %s' % (vr(V_ER), vr(V_EW), vr(t)))
su('v_subrev_u32 %s, 256, %s' % (vr(V_ER), vr(V_ER)))
su('v_cmp_gt_u32 vcc, 16, %s' % vr(V_LANE),
   'v_cndmask_b32 %s, %s, %s, vcc' % (vr(V_EW), vr(V_OOB), vr(V_EW)))
su('v_lshl_add_u32 %s, %s, 2, %s' % (vr(t), vr(V_N), vr(t)))
su('v_add_u32 %s, %s, %s' % (vr(V_HW), sr(S_RINGW), vr(t)))
su('v_lshlrev_b32 %s, 4, %s' % (vr(t), vr(V_Q)))
su('v_lshl_add_u32 %s, %s, 6, %s' % (vr(t), vr(V_N), vr(t)))
su('v_add_u32 %s, %s, %s' % (vr(V_HR), sr(S_RINGW), vr(t)))
put(t, t2, t3)
a.weave(su, iss)
stamp(a, 'issued')


def b_read(s, kp):
    s.wait(btk[kp])
    tk = None
    for h in range(2):
        for mat in range(2):
            tk = s.mem('ds_read_b128 %s, %s offset:%d' % (ar(WB(kp, h, mat), 4), vr(V_FB + h), (kp % 3) * 4096 + mat * 2048))
    return tk


def kv_stream():
    s = Stream()
    W = V.get(8, 1)
    ka, kb, kh, t, t2 = [V.get() for _ in range(5)]
    s('v_lshrrev_b32 %s, 3, %s' % (vr(t), vr(V_LANE)))
    s('v_and_b32 %s, 7, %s' % (vr(t2), vr(V_LANE)))
    s('s_lshl_b32 %s, %s, 5' % (sr(S_T0), sr(S_WAVE)),
      'v_lshl_add_u32 %s, %s, 2, %s' % (vr(kh), vr(t2), sr(S_T0)))
    s('v_mul_u32_u24 %s, 1536, %s' % (vr(ka), vr(t)))
    s('v_add_u32 %s, %s, %s' % (vr(ka), vr(ka), vr(kh)))
    s('v_add_u32 %s, %d, %s' % (vr(ka), L_KRAW, vr(ka)))
    s('v_add_u32 %s, 128, %s' % (vr(kb), vr(ka)))
    s('v_add_u32 %s, %d, %s' % (vr(kh), L_HALO + 5 * 128, vr(kh)))
    s('v_subrev_u32 %s, 384, %s' % (vr(t2), vr(ka)))
    s('v_cmp_eq_u32 vcc, 0, %s' % vr(t), 'v_cndmask_b32 %s, %s, %s, vcc' % (vr(kh), vr(t2), vr(kh)))
    KR = V.get(16, 2)
    VR = V.get(12, 2)
    ridx = lambda r: (r >> 2) * 4 + (r & 1) * 2 + ((r >> 1) & 1)
    krow = lambda r: KR + 3 + r if r < 0 else KR + 4 + ridx(r)
    vrow = lambda r: VR + ridx(r)
    s('ds_read2_b32 %s, %s offset0:0 offset1:32' % (vr(KR, 2), vr(kh)))
    s('ds_read_b32 %s, %s offset:256' % (vr(KR + 2), vr(kh)))
    for g in range(3):
        for par in range(2):
            s('ds_read2st64_b32 %s, %s offset0:%d offset1:%d' % (vr(KR + 4 + g * 4 + par * 2, 2), vr(kb if par else ka), 2 * g, 2 * g + 1))
        for par in range(2):
            s('ds_read2st64_b32 %s, %s offset0:%d offset1:%d' % (vr(VR + g * 4 + par * 2, 2), vr(kb if par else ka), 48 + 2 * g, 48 + 2 * g + 1))
    for j in range(4):
        src0 = SHK + (j >> 1)
        src1 = SHK + 2 + (j >> 1)
        if j & 1:
            s('v_lshrrev_b32 %s, 16, %s' % (vr(W + 2 * j), vr(src0)))
            s('v_and_b32 %s, 0xffff0000, %s' % (vr(W + 2 * j + 1), vr(src1)))
        else:
            s('v_and_b32 %s, 0xffff, %s' % (vr(W + 2 * j), vr(src0)))
            s('v_lshlrev_b32 %s, 16, %s' % (vr(W + 2 * j + 1), vr(src1)))
    ONE2 = V.get()
    s('v_mov_b32 %s, 0x3f803f80' % vr(ONE2))
    P = V.get(16, 1)
    KVv = V.get(4, 1)
    OUTP = V.get(12, 2)
    M = V.get(4, 1)
    for tp in range(6):
        idx = [(tt, ch) for tt in range(2) for ch in range(2)]
        for u, (tt, ch) in enumerate(idx):
            tq = 2 * tp + tt
            for j in range(4):
                s('v_dot2_f32_bf16 %s, %s, %s, 0' % (vr(P + u * 4 + j), vr(krow(tq - j)), vr(W + 2 * j + ch)))
        for step in range(3):
            for u in range(4):
                s('v_cvt_pk_bf16_f32 %s, %s, %s' % (vr(P + u * 4 + 3), vr(P + u * 4 + 3), vr(P + u * 4 + 2 - step)))
            for u in range(4):
                s('v_dot2_f32_bf16 %s, %s, %s, 0' % (vr(P + u * 4 + 3), vr(P + u * 4 + 3), vr(ONE2)))
        for tt in range(2):
            tq = 2 * tp + tt
            s('v_and_b32 %s, 0xffff, %s' % (vr(M + 2 * tt), vr(vrow(tq))))
            s('v_and_b32 %s, 0xffff0000, %s' % (vr(M + 2 * tt + 1), vr(vrow(tq))))
        for tt in range(2):
            s('v_cvt_pk_bf16_f32 %s, %s, %s' % (vr(P + tt * 8), vr(P + tt * 8 + 3), vr(P + tt * 8 + 7)))
        for u, (tt, ch) in enumerate(idx):
            s('v_dot2_f32_bf16 %s, %s, %s, 0' % (vr(KVv + u), vr(P + tt * 8), vr(M + 2 * tt + ch)))
        for ch in range(2):
            s('v_cvt_pk_bf16_f32 %s, %s, %s' % (vr(OUTP + ch * 6 + 5 - tp), vr(KVv + 2 + ch), vr(KVv + ch)))
    put((W, 8), ONE2, (P, 16), (KVv, 4), (M, 4), (KR, 16), (VR, 12), (SHK, 4))
    s('v_and_b32 %s, 7, %s' % (vr(t2), vr(V_LANE)))
    s('v_mul_u32_u24 %s, 384, %s' % (vr(ka), vr(t2)))
    s('v_sub_u32 %s, 7, %s' % (vr(t), vr(t)))
    s('v_mad_u32_u24 %s, %s, 24, %s' % (vr(ka), vr(t), vr(ka)))
    s('s_mul_i32 %s, %s, 3072' % (sr(S_T0), sr(S_WAVE)),
      's_add_u32 %s, %s, %d' % (sr(S_T0), sr(S_T0), L_KVO),
      'v_add_u32 %s, %s, %s' % (vr(ka), sr(S_T0), vr(ka)),
      'v_add_u32 %s, %s, %s' % (vr(kb), sr(S_T0), vr(V_L16)))
    tk = None
    for ch in range(2):
        for k in range(3):
            tk = s.mem('ds_write_b64 %s, %s offset:%d' % (vr(ka), vr(OUTP + ch * 6 + 2 * k, 2), ch * 192 + 8 * k))
    D = V.get(12)
    AD = V.get(3, 1)
    for i in range(3):
        s('v_add_u32 %s, %d, %s' % (vr(t), 64 * i, vr(V_LANE)))
        s('v_mul_u32_u24 %s, 171, %s' % (vr(t2), vr(t)))
        s('v_lshrrev_b32 %s, 11, %s' % (vr(t2), vr(t2)))
        s('v_mul_u32_u24 %s, %d, %s' % (vr(t2), KVT_STR - 192, vr(t2)))
        s('v_lshl_add_u32 %s, %s, 4, %s' % (vr(AD + i), vr(t), vr(t2)))
    s.wait(tk)
    for i in range(3):
        s('ds_read_b128 %s, %s offset:%d' % (vr(D + 4 * i, 4), vr(kb), i * 1024))
    toks = []
    for i in range(3):
        toks.append(s.mem('s_mul_i32 %s, %s, %d' % (sr(S_T0), sr(S_PT), 16 * KVT_STR),
                          's_mul_i32 %s, %s, 192' % (sr(S_T1), sr(S_RB)),
                          's_sub_u32 %s, %s, %s' % (sr(S_T0), sr(S_T0), sr(S_T1)),
                          's_add_u32 %s, %s, %d' % (sr(S_T0), sr(S_T0), WS_KVT + 128 + 3904),
                          'buffer_store_dwordx4 %s, %s, %s, %s offen sc1' % (vr(D + 4 * i, 4), vr(AD + i), sr(R_WS, 4), sr(S_T0))))
    f = Stream()
    f.wait(*toks)
    f('s_lshl_b32 %s, %s, 5' % (sr(S_T0), sr(S_PT)),
      's_add_u32 %s, %s, %s' % (sr(S_T0), sr(S_T0), sr(S_RB)),
      's_lshl_b32 %s, %s, 2' % (sr(S_T0), sr(S_T0)),
      's_add_u32 %s, %s, %d' % (sr(S_T0), sr(S_T0), WS_KVF),
      *flag_texts(sr(S_T0), 'sc1'))
    rel = [(OUTP, 12), ka, kb, kh, t, t2, (D, 12), (AD, 3)]
    return s, f, rel


def stats_partial(s, X, S, Q, i, d, pk):
    x = X + 4 * i
    if pk:
        s('v_pk_add_f32 %s, %s, %s' % (vr(d, 2), vr(x, 2), vr(x + 2, 2)),
          'v_pk_mul_f32 %s, %s, %s' % (vr(d + 2, 2), vr(x, 2), vr(x, 2)),
          'v_add_f32 %s, %s, %s' % (vr(S + i), vr(d), vr(d + 1)),
          'v_pk_fma_f32 %s, %s, %s, %s' % (vr(d + 2, 2), vr(x + 2, 2), vr(x + 2, 2), vr(d + 2, 2)),
          'v_add_f32 %s, %s, %s' % (vr(Q + i), vr(d + 2), vr(d + 3)))
    else:
        s('v_add_f32 %s, %s, %s' % (vr(S + i), vr(x), vr(x + 1)))
        s('v_mul_f32 %s, %s, %s' % (vr(Q + i), vr(x), vr(x)))
        s('v_add_f32 %s, %s, %s' % (vr(S + i), vr(S + i), vr(x + 2)))
        s('v_fmac_f32 %s, %s, %s' % (vr(Q + i), vr(x + 1), vr(x + 1)))
        s('v_add_f32 %s, %s, %s' % (vr(S + i), vr(S + i), vr(x + 3)))
        s('v_fmac_f32 %s, %s, %s' % (vr(Q + i), vr(x + 2), vr(x + 2)))
        s('v_fmac_f32 %s, %s, %s' % (vr(Q + i), vr(x + 3), vr(x + 3)))


def stats_publish(s, X, which, fast, pk=True, SQ=None, tiles=range(MT)):
    if SQ is None:
        S, Q = V.get(6, 1), V.get(6, 1)
    else:
        S, Q = SQ
    d = V.get(4)
    for i in tiles:
        stats_partial(s, X, S, Q, i, d, pk)
    s('v_mov_b32 %s, %s' % (vr(d + 1), vr(V_TAG)))
    if which == 0:
        s('v_add_u32 %s, %s, %s' % (vr(d + 3), sr(S_XCC), vr(V_TAG)))
    else:
        s('v_mov_b32 %s, %s' % (vr(d + 3), vr(V_TAG)))
    rs12(s, [S + i for i in range(6)], [Q + i for i in range(6)])
    s('v_cndmask_b32 %s, %s, %s, %s' % (vr(d), vr(S), vr(S + 2), sr(S_MSEL, 2)))
    s('v_cndmask_b32 %s, %s, %s, %s' % (vr(d + 2), vr(Q), vr(Q + 2), sr(S_MSEL, 2)))
    txt = ['s_mov_b32 %s, %d' % (sr(S_T0), WS_ST + which * ST_SZ),
           'buffer_store_dwordx4 %s, %s, %s, %s offen {P}' % (vr(d, 4), vr(V_STW), sr(R_WS, 4), sr(S_T0)), 's_nop 1']
    if fast:
        dual(s, txt)
    else:
        s(*[x.replace('{P}', 'sc1') for x in txt])
    put((S, 6), (Q, 6), (d, 4))


def stats_loads(which, G):
    L = []
    for i in range(MT):
        L.append('s_mov_b32 %s, %d' % (sr(S_T0), WS_ST + which * ST_SZ + 4096 * i))
        L.append('buffer_load_dwordx4 %s, %s, %s, %s offen sc1' % (vr(G + 4 * i, 4), vr(V_STR), sr(R_WS, 4), sr(S_T0)))
    return L


def stats_finish(s, G):
    rs12(s, [G + 4 * i for i in range(6)], [G + 4 * i + 2 for i in range(6)])
    P = V.get(4)
    for k, src in ((0, G), (1, G + 8)):
        s('v_mul_f32 %s, 0x3ae38e39, %s' % (vr(P + 2 * k), vr(src)))
        s('v_mul_f32 %s, 0x3ae38e39, %s' % (vr(P + 2 * k + 1), vr(src + 2)))
    for k in range(2):
        s('v_fma_f32 %s, -%s, %s, %s' % (vr(P + 2 * k + 1), vr(P + 2 * k), vr(P + 2 * k), vr(P + 2 * k + 1)))
    for k in range(2):
        s('v_max_f32 %s, 0, %s' % (vr(P + 2 * k + 1), vr(P + 2 * k + 1)))
    return P


def bcast(s, dst, P, i):
    k, lane = tile_src(i)
    s('v_mov_b64_dpp %s, %s row_newbcast:%d row_mask:0xf bank_mask:0xf' % (vr(dst, 2), vr(P + 2 * k, 2), lane))


def ln_table(s, layer, G, RBG):
    P = stats_finish(s, G)
    put((G, 24))
    mu = [P, P + 2]
    va = [P + 1, P + 3]
    if layer == 0:
        rbf(s, mu + va)
        for r in va:
            s('v_add_f32 %s, 0x3727c5ac, %s' % (vr(r), vr(r)))
        rbf(s, va)
        for r in va:
            s('v_sqrt_f32 %s, %s' % (vr(r), vr(r)))
        rbf(s, va)
        for r in va:
            s('v_rcp_f32 %s, %s' % (vr(r), vr(r)))
        s('v_mov_b32 %s, %s' % (vr(OFF), vr(mu[0])), 'v_mov_b32 %s, %s' % (vr(OFF + 1), vr(mu[1])))
        s('v_mov_b32 %s, %s' % (vr(RB), vr(RBG)), 'v_mov_b32 %s, %s' % (vr(RB + 1), vr(RBG + 2)))
    else:
        for r in va:
            s('v_add_f32 %s, 0x3727c5ac, %s' % (vr(r), vr(r)))
        for r in va:
            s('v_rsq_f32 %s, %s' % (vr(r), vr(r)))
        s('v_add_f32 %s, %s, %s' % (vr(OFF), vr(OFF), vr(mu[0])), 'v_add_f32 %s, %s, %s' % (vr(OFF + 1), vr(OFF + 1), vr(mu[1])))
    d = V.get(2)
    s('v_cndmask_b32 %s, %s, %s, %s' % (vr(d), vr(va[0]), vr(va[1]), sr(S_MSEL, 2)))
    s('v_cndmask_b32 %s, %s, %s, %s' % (vr(d + 1), vr(mu[0]), vr(mu[1]), sr(S_MSEL, 2)))
    s('v_mul_f32 %s, %s, %s' % (vr(d + 1), vr(d + 1), vr(d)))
    tk = s.mem('s_mov_b64 exec, %s' % sr(S_MACT, 2),
               'ds_write2_b32 %s, %s, %s offset0:0 offset1:2' % (vr(V_TABW), vr(d), vr(d + 1)),
               's_mov_b64 exec, -1')
    put((d, 2))
    return tk, P


def ln_rest(r, layer, P):
    b = V.get(2)
    tmp = V.get(4)
    for i in range(MT):
        x = BASE + 4 * i
        bcast(r, b, P, i)
        for k in range(2):
            r('v_pk_add_f32 %s, %s, %s op_sel:[0,0] op_sel_hi:[1,0] neg_lo:[0,1] neg_hi:[0,1]' % (vr(x + 2 * k, 2), vr(x + 2 * k, 2), vr(b, 2)))
        if layer == 0:
            for k in range(2):
                r('v_cvt_pk_bf16_f32 %s, %s, %s' % (vr(tmp + 2 * k), vr(x + 2 * k), vr(x + 2 * k + 1)))
            for rep in range(3):
                for k in range(2):
                    r('v_and_b32 %s, 0xffff0000, %s' % (vr(tmp + 2 * k + 1), vr(tmp + 2 * k)),
                      'v_lshlrev_b32 %s, 16, %s' % (vr(tmp + 2 * k), vr(tmp + 2 * k)))
                for k in range(2):
                    if rep == 0:
                        r('v_pk_mul_f32 %s, %s, %s op_sel:[0,1] op_sel_hi:[1,1]' % (vr(tmp + 2 * k, 2), vr(tmp + 2 * k, 2), vr(b, 2)))
                    elif rep == 1:
                        r('v_pk_mul_f32 %s, %s, %s' % (vr(tmp + 2 * k, 2), vr(tmp + 2 * k, 2), vr(V_DSK + 2 * k, 2)))
                    else:
                        r('v_pk_add_f32 %s, %s, %s' % (vr(x + 2 * k, 2), vr(x + 2 * k, 2), vr(tmp + 2 * k, 2)))
                if rep < 2:
                    for k in range(2):
                        r('v_cvt_pk_bf16_f32 %s, %s, %s' % (vr(tmp + 2 * k), vr(tmp + 2 * k), vr(tmp + 2 * k + 1)))
        else:
            for k in range(2):
                r('v_pk_fma_f32 %s, %s, %s, 1.0 op_sel:[0,1,0] op_sel_hi:[1,1,0]' % (vr(tmp + 2 * k, 2), vr(V_DSK + 2 * k, 2), vr(b, 2)))
            for k in range(2):
                r('v_pk_mul_f32 %s, %s, %s' % (vr(x + 2 * k, 2), vr(x + 2 * k, 2), vr(tmp + 2 * k, 2)))
    put((P, 4), (b, 2), (tmp, 4))


def a_reads(k, AF):
    s = Stream()
    kp, h = k >> 1, k & 1
    base = V_FA + h + (2 if kp >= 4 else 0)
    off = (kp - (4 if kp >= 4 else 0)) * BLK
    for i in range(MT):
        s('ds_read_b128 %s, %s offset:%d' % (vr(AF + (k & 1) * 24 + i * 4, 4), vr(base), off + i * 2048))
    return s


def b_mfmas(k, ACC, AF):
    s = Stream()
    kp, h = k >> 1, k & 1
    for i in range(MT):
        if i % 3 == 0:
            s.touch(vr(AF + (k & 1) * 24 + i * 4, 12))
        for mat in range(2):
            d = ACC + (mat * MT + i) * 4
            s('v_mfma_f32_16x16x32_bf16 %s, %s, %s, %s' % (vr(d, 4), vr(AF + (k & 1) * 24 + i * 4, 4), ar(WB(kp, h, mat), 4),
                                                          '0' if k == 0 else vr(d, 4)))
    return s


def split(stream, n):
    g = stream.groups
    parts = []
    for i in range(n):
        p = Stream()
        p.groups = g[len(g) * i // n: len(g) * (i + 1) // n]
        parts.append(p)
    return parts


def gemm_b(a, ACC, AF, xtok, pre, side, lastwait=None):
    a.wait(xtok(0))
    a('s_barrier')
    a.extend(a_reads(0, AF))
    for k in range(18):
        if k in pre:
            a.extend(pre[k])
        if k & 1 and k < 17:
            a.wait(xtok((k + 1) >> 1))
            if k == 15 and lastwait is not None:
                a.wait(lastwait())
            a('s_barrier')
        m = b_mfmas(k, ACC, AF)
        if k < 17:
            m = weave(m, a_reads(k + 1, AF), 0.0, 0.5)
        if k in side:
            m = weave(m, side[k])
        a.extend(m)
        if OPT['fine'] and k % 3 == 2:
            stamp(a, 'k%d' % k)


class Conv:
    pass


def conv_setup_k(s, cv):
    s('s_lshl1_add_u32 %s, %s, %s' % (sr(S_T0), sr(S_PAIR), sr(S_B)),
      's_lshl_b32 %s, %s, 12' % (sr(S_T1), sr(S_T0)),
      's_add_u32 %s, %s, %s' % (sr(R_SK), sr(P_SSK), sr(S_T1)),
      's_addc_u32 %s, %s, 0' % (sr(R_SK + 1), sr(P_SSK + 1)),
      's_and_b32 %s, %s, 0xffff' % (sr(R_SK + 1), sr(R_SK + 1)),
      's_mov_b32 %s, 4096' % sr(R_SK + 2),
      's_mov_b32 %s, 0x20000' % sr(R_SK + 3))
    cv.SD = V.get(2)
    cv.HD = V.get()
    t = V.get()
    s('s_lshl_b32 %s, %s, 2' % (sr(S_T1), sr(S_PAIR)),
      'v_mov_b32 %s, %s' % (vr(t), sr(S_T1)),
      'global_load_dword %s, %s, %s' % (vr(cv.SD), vr(t), sr(P_SSD, 2)))
    s('v_add_u32 %s, %s, %s' % (vr(t), vr(V_N), vr(V_Q)),
      'v_subrev_u32 %s, 16, %s' % (vr(t), vr(t)),
      'v_lshlrev_b32 %s, 2, %s' % (vr(t), vr(t)),
      'buffer_load_dword %s, %s, %s, 0 offen' % (vr(cv.HD), vr(t), sr(R_SK, 4)))
    put(t)
    for c in range(2):
        g = ['s_mul_i32 %s, %s, %d' % (sr(S_T2), sr(S_B), KC_CH),
             's_mul_i32 %s, %s, %d' % (sr(S_T3), sr(S_A), (16 + 8320) if c == 0 else 8320),
             's_add_u32 %s, %s, %s' % (sr(S_T3), sr(S_T3), sr(S_T2)),
             's_add_u32 m0, %s, %d' % (sr(S_T3), L_KC + 64 + (0 if c == 0 else 16 + 4160)),
             's_lshl_b32 %s, %s, 3' % (sr(S_T1), sr(S_A)),
             's_add_u32 %s, %s, %d' % (sr(S_T1), sr(S_T1), 4 * c)]
        for part in range(4):
            g.append('buffer_load_dwordx4 %s, %s, %s offen offset:%d lds' % (vr(V_L16), sr(R_SK, 4), sr(S_T1), part * 1024))
        cv.ktk = s.mem(*g)


def conv_flag_prep(s, cv):
    cv.fa, cv.fe, cv.fv = V.get(), V.get(), V.get()
    s('s_lshr_b32 %s, %s, 3' % (sr(S_T1), sr(S_PAIR)),
      's_lshl_b32 %s, %s, 7' % (sr(S_T1), sr(S_T1)),
      's_add_u32 %s, %s, %d' % (sr(S_T1), sr(S_T1), WS_KVF),
      'v_lshl_add_u32 %s, %s, 2, %s' % (vr(cv.fa), vr(V_LANE), sr(S_T1)))
    s('v_cmp_gt_u32 vcc, %d, %s' % (NRB, vr(V_LANE)),
      'v_cndmask_b32 %s, %s, %s, vcc' % (vr(cv.fa), vr(V_OOB), vr(cv.fa)),
      'v_cndmask_b32 %s, 0, %s, vcc' % (vr(cv.fe), vr(V_TAG)))
    cv.fload = 'buffer_load_dword %s, %s, %s, 0 offen sc1' % (vr(cv.fv), vr(cv.fa), sr(R_WS, 4))


def conv_u_loads(s, cv):
    cv.U = V.get(10)
    U, fa = cv.U, cv.fa
    s('s_lshl_b32 %s, %s, 6' % (sr(S_T3), sr(S_A)),
      'v_add_u32 %s, %s, %s' % (vr(fa), sr(S_T3), vr(V_LANE)),
      'v_cmp_ne_u32 vcc, 127, %s' % vr(fa),
      'v_cndmask_b32 %s, %s, %s, vcc' % (vr(fa), vr(V_OOB), vr(V_L16)))
    s('s_lshl1_add_u32 %s, %s, %s' % (sr(S_T0), sr(S_PAIR), sr(S_B)),
      's_mul_i32 %s, %s, %d' % (sr(S_T1), sr(S_T0), KVT_STR),
      's_lshl_b32 %s, %s, 11' % (sr(S_T3), sr(S_A)),
      's_add_u32 %s, %s, %s' % (sr(S_T1), sr(S_T1), sr(S_T3)),
      's_add_u32 %s, %s, %d' % (sr(S_T1), sr(S_T1), WS_KVT + 128),
      'buffer_load_dwordx4 %s, %s, %s, %s offen sc1' % (vr(U, 4), vr(V_L16), sr(R_WS, 4), sr(S_T1)),
      'buffer_load_dword %s, %s, %s, %s offen offset:16 sc1' % (vr(U + 8), vr(V_L16), sr(R_WS, 4), sr(S_T1)),
      'buffer_load_dwordx4 %s, %s, %s, %s offen offset:1024 sc1' % (vr(U + 4, 4), vr(V_L16), sr(R_WS, 4), sr(S_T1)),
      'buffer_load_dword %s, %s, %s, %s offen offset:1040 sc1' % (vr(U + 9), vr(fa), sr(R_WS, 4), sr(S_T1)))


def conv_body(a, cv, side=None, after_mm=None):
    fa, fe, U, HD, SD = cv.fa, cv.fe, cv.U, cv.HD, cv.SD
    t = V.get()
    a('s_mul_i32 %s, %s, %d' % (sr(S_T2), sr(S_B), KC_CH))
    a('v_mul_u32_u24 %s, 4160, %s' % (vr(fa), vr(V_Q)))
    a('v_min_u32 %s, 1, %s' % (vr(fe), vr(V_Q)))
    a('v_lshl_add_u32 %s, %s, 4, %s' % (vr(fa), vr(fe), vr(fa)))
    a('v_lshl_add_u32 %s, %s, 2, %s' % (vr(fa), vr(V_N), vr(fa)))
    a('s_add_u32 %s, %s, %d' % (sr(S_T3), sr(S_T2), L_KC))
    a('v_add_u32 %s, %s, %s' % (vr(fa), sr(S_T3), vr(fa)))
    a('ds_write_b32 %s, %s' % (vr(fa), vr(HD)))
    a('s_mul_i32 %s, %s, %d' % (sr(S_T2), sr(S_B), UC_CH))
    a('s_mul_i32 %s, %s, 4640' % (sr(S_T3), sr(S_A)))
    a('s_add_u32 %s, %s, %s' % (sr(S_T3), sr(S_T3), sr(S_T2)))
    a('v_lshl_add_u32 %s, %s, 3, %s' % (vr(fa), vr(V_LANE), sr(S_T3)))
    a('ds_write_b64 %s, %s offset:%d' % (vr(fa), vr(V_ZERO, 2), L_UC + 4096))
    a('s_lshl_b32 %s, %s, 11' % (sr(S_T3), sr(S_A)))
    a('s_add_u32 %s, %s, %s' % (sr(S_T3), sr(S_T3), sr(S_T2)))
    a('v_add_u32 %s, %s, %s' % (vr(fa), sr(S_T3), vr(V_L16)))
    vN, vM = V.get(), V.get()
    a('v_add_u32 %s, 1, %s' % (vr(t), vr(V_N)))
    a('v_and_b32 %s, 3, %s' % (vr(fe), vr(t)))
    a('v_mul_u32_u24 %s, 4160, %s' % (vr(vN), vr(fe)))
    a('v_min_u32 %s, 1, %s' % (vr(fe), vr(fe)))
    a('v_lshrrev_b32 %s, 2, %s' % (vr(t), vr(t)))
    a('v_add3_u32 %s, %s, %s, %s' % (vr(t), vr(t), vr(fe), vr(V_Q)))
    a('v_lshl_add_u32 %s, %s, 4, %s' % (vr(vN), vr(t), vr(vN)))
    a('s_mul_i32 %s, %s, %d' % (sr(S_T3), sr(S_B), KC_CH))
    a('s_lshl_b32 %s, %s, 8' % (sr(S_T1), sr(S_A)))
    a('s_add_u32 %s, %s, %s' % (sr(S_T3), sr(S_T3), sr(S_T1)))
    a('s_add_u32 %s, %s, %d' % (sr(S_T3), sr(S_T3), L_KC))
    a('v_add_u32 %s, %s, %s' % (vr(vN), sr(S_T3), vr(vN)))
    a('v_and_b32 %s, 1, %s' % (vr(t), vr(V_N)))
    a('v_sub_u32 %s, 1, %s' % (vr(t), vr(t)))
    a('v_mul_u32_u24 %s, 4640, %s' % (vr(vM), vr(t)))
    a('v_lshrrev_b32 %s, 1, %s' % (vr(t), vr(V_N)))
    a('v_lshlrev_b32 %s, 6, %s' % (vr(t), vr(t)))
    a('v_sub_u32 %s, %s, %s' % (vr(vM), vr(vM), vr(t)))
    a('v_lshl_add_u32 %s, %s, 4, %s' % (vr(vM), vr(V_Q), vr(vM)))
    a('s_add_u32 %s, %s, %s' % (sr(S_T3), sr(S_T2), sr(S_T1)))
    a('s_add_u32 %s, %s, %d' % (sr(S_T3), sr(S_T3), L_UC + 448))
    a('v_add_u32 %s, %s, %s' % (vr(vM), sr(S_T3), vr(vM)))
    U1 = V.get(8)
    for part in range(2):
        a('ds_write_b128 %s, %s offset:%d' % (vr(fa), vr(U + 4 * part, 4), L_UC + part * 1024))
        for k in range(4):
            hi = U + 4 * part + k + 1 if k < 3 else U + 8 + part
            a('v_alignbit_b32 %s, %s, %s, 16' % (vr(U1 + 4 * part + k), vr(hi), vr(U + 4 * part + k)))
        tk = a.mem('ds_write_b128 %s, %s offset:%d' % (vr(fa), vr(U1 + 4 * part, 4), L_UC + 4640 + part * 1024))
    a.wait(tk, cv.ktk)
    a('s_barrier')
    put((U, 10), (U1, 8), HD, cv.fv)
    stamp(a, 'conv_ld')
    CA, FN, FM = [[V.get(4) for _ in range(8)] for _ in range(3)]
    rdN = lambda x, cc: 'ds_read_b128 %s, %s offset:%d' % (vr(FN[x], 4), vr(vN), 512 * x + 64 * cc)
    rdM = lambda x, cc: 'ds_read_b128 %s, %s offset:%d' % (vr(FM[x], 4), vr(vM), 512 * (7 - x) + 64 * cc)
    m = Stream()
    m(rdN(0, 0))
    for x in range(7, -1, -1):
        m(rdM(x, 0))
    for x in range(1, 8):
        m(rdN(x, 0))
    for cc in range(4):
        for aa in range(8):
            for dl in range(7 - aa, -1, -1):
                i = aa + dl
                z = cc == 0 and aa == 0
                m('v_mfma_f32_16x16x32_bf16 %s, %s, %s, %s' % (vr(CA[i], 4), vr(FM[dl], 4), vr(FN[aa], 4),
                                                              '0' if z else vr(CA[i], 4)))
                if dl == 7 - aa and cc < 3:
                    m(rdM(dl, cc + 1))
            if cc < 3:
                m(rdN(aa, cc + 1))
    if side is not None:
        m = weave(m, side, 0.1, 0.95)
    a.extend(m)
    put(*[(r, 4) for r in FN + FM])
    if after_mm is not None:
        after_mm(a)
    a('v_lshlrev_b32 %s, 8, %s' % (vr(t), vr(V_Q)))
    a('v_lshl_add_u32 %s, %s, 3, %s' % (vr(t), vr(V_N), vr(t)))
    a('s_lshl_b32 %s, %s, 13' % (sr(S_T3), sr(S_WAVE)))
    a('v_add_u32 %s, %s, %s' % (vr(t), sr(S_T3), vr(t)))
    for i in range(8):
        for hf in range(2):
            tk = a.mem('ds_write_b64 %s, %s offset:%d' % (vr(t), vr(CA[i] + 2 * hf, 2), L_CO + 1024 * i + 128 * hf))
    ONE2 = fe
    a('v_mov_b32 %s, 0x3f803f80' % vr(ONE2))
    a('v_lshlrev_b32 %s, 4, v0' % vr(t))
    a('v_lshlrev_b32 %s, 3, v0' % vr(fa))
    a('v_sub_u32 %s, %d, %s' % (vr(fa), 2040, vr(fa)))
    a('v_and_b32 %s, 0xffff0000, %s' % (vr(SD + 1), vr(SD)))
    a('v_lshlrev_b32 %s, 16, %s' % (vr(SD), vr(SD)))
    a.wait(tk)
    a('s_barrier')
    put(*[(r, 4) for r in CA])
    stamp(a, 'conv_mm')
    Y, KV = V.get(32), V.get(8)
    for part in range(2):
        for ch in range(2):
            a('ds_read_b64 %s, %s offset:%d' % (vr(KV + part * 4 + 2 * ch, 2), vr(fa), L_UC + ch * UC_CH + (1 - part) * 2048))
        for w in range(4):
            a('ds_read_b128 %s, %s offset:%d' % (vr(Y + part * 16 + 4 * w, 4), vr(t), L_CO + w * 8192 + part * 4096))
    T4, GO = V.get(8), V.get(8)
    toks = []
    a('s_mul_i32 %s, %s, %d' % (sr(S_T1), sr(S_PAIR), G_STR))
    a('s_add_u32 %s, %s, %d' % (sr(S_T1), sr(S_T1), WS_G))
    a('s_add_u32 %s, %s, 4096' % (sr(S_T3), sr(S_T1)))
    for part in range(2):
        for ch in range(2):
            y = Y + part * 16 + ch * 8
            kvr = KV + part * 4 + 2 * ch
            d = T4 + ch * 4
            a('v_and_b32 %s, 0xffff0000, %s' % (vr(d), vr(kvr + 1)))
            a('v_lshlrev_b32 %s, 16, %s' % (vr(d + 1), vr(kvr + 1)))
            a('v_and_b32 %s, 0xffff0000, %s' % (vr(d + 2), vr(kvr)))
            a('v_lshlrev_b32 %s, 16, %s' % (vr(d + 3), vr(kvr)))
            for k in range(2):
                a('v_pk_mul_f32 %s, %s, %s op_sel:[0,%d] op_sel_hi:[1,%d]' % (vr(d + 2 * k, 2), vr(d + 2 * k, 2), vr(SD, 2), ch, ch))
            for k in range(2):
                a('v_pk_add_f32 %s, %s, %s' % (vr(y + 2 * k, 2), vr(y + 2 * k, 2), vr(y + 4 + 2 * k, 2)))
            for k in range(4):
                a('v_cvt_pk_bf16_f32 %s, %s, %s' % (vr(d + k), vr(y + k), vr(d + k)))
            for k in range(4):
                a('v_dot2_f32_bf16 %s, %s, %s, 0' % (vr(d + k), vr(d + k), vr(ONE2)))
        for k in range(4):
            a('v_cvt_pk_bf16_f32 %s, %s, %s' % (vr(GO + part * 4 + k), vr(T4 + k), vr(T4 + 4 + k)))
        toks.append(a.mem('buffer_store_dwordx4 %s, %s, %s, %s offen sc1' %
                          (vr(GO + part * 4, 4), vr(t), sr(R_WS, 4), sr(S_T1 if part == 0 else S_T3))))
    f = Stream()
    f.wait(*toks)
    f('s_lshl2_add_u32 %s, %s, %s' % (sr(S_T1), sr(S_PAIR), sr(S_WAVE)),
      's_lshl_b32 %s, %s, 2' % (sr(S_T1), sr(S_T1)),
      's_add_u32 %s, %s, %d' % (sr(S_T1), sr(S_T1), WS_GF),
      *flag_texts(sr(S_T1), 'sc1'))
    a('s_nop 1')
    put((Y, 32), (KV, 8), (T4, 8), (GO, 8), (SD, 2), t, fa, fe, vN, vM)
    stamp(a, 'conv_out')
    return f


ACC = V.get(48, top=True)
AF = V.get(48, top=True)
lp = a
lam_compute(lp, LAMT, False, LAM)
L2, L4, L8, L48, L72, L96, L192, L288 = [V.get(2) for _ in range(8)]
cmul(lp, L2, LAM, LAM)
cmul(lp, L4, L2, L2)
cmul(lp, L8, L4, L4)
cmul(lp, L12, L8, L4)
cmul(lp, L24, L12, L12)
cmul(lp, L48, L24, L24)
cmul(lp, L72, L48, L24)
cmul(lp, L96, L48, L48)
cmul(lp, L192, L96, L96)
cmul(lp, L288, L192, L96)
cmul(lp, L384, L192, L192)
for (dst, opts) in ((LQ96, (L96, L192, L288)), (LQ24, (L24, L48, L72))):
    lp('v_mov_b32 %s, 1.0' % vr(dst), 'v_mov_b32 %s, 0' % vr(dst + 1))
    for qi, o in enumerate(opts):
        lp('v_cmp_eq_u32 vcc, %d, %s' % (qi + 1, vr(V_Q)),
           'v_cndmask_b32 %s, %s, %s, vcc' % (vr(dst), vr(dst), vr(o)),
           'v_cndmask_b32 %s, %s, %s, vcc' % (vr(dst + 1), vr(dst + 1), vr(o + 1)))
for r in (L2, L4, L8, L48, L72, L96, L192, L288):
    put((r, 2))
tag_ready(a)
a('v_cmp_gt_u32 vcc, 9, %s' % vr(V_N), 'v_cndmask_b32 %s, 0, %s, vcc' % (vr(V_EXP9), vr(V_TAG)))
stamp(a, 'lam')
a.wait(kvtok, xtk[0])
stamp(a, 'kvraw')
a('s_barrier')
XS = V.get(12, 2)
s0 = Stream()
for i in range(MT):
    s0('ds_read_b64 %s, %s offset:%d' % (vr(XS + 2 * i, 2), vr(V_WA), 2048 * i))
for i in range(MT):
    for k in range(2):
        s0('v_lshlrev_b32 %s, 16, %s' % (vr(BASE + 4 * i + 2 * k), vr(XS + 2 * i + k)))
        s0('v_and_b32 %s, 0xffff0000, %s' % (vr(BASE + 4 * i + 2 * k + 1), vr(XS + 2 * i + k)))
stats_publish(s0, BASE, 0, False)
put((XS, 12))
put((ACC, 48))
kvs, kvflag, kvrel = kv_stream()
s0.extend(kvs)
d1 = Stream()
for kp in range(3):
    xtk[3 + kp] = x_dma(d1, 3 + kp, 0)
    rt = b_read(d1, kp)
    d1.wait(rt)
    btk[3 + kp] = b_dma(d1, 3 + kp)
a.weave(s0, d1, 0.0, 0.95)
put(*kvrel)
for r_ in range(ACC, ACC + 48):
    V.free.remove(r_)
a('v_and_b32 %s, 0xffff0000, %s' % (vr(V_DSK + 3), vr(V_DSK + 1)))
a('v_lshlrev_b32 %s, 16, %s' % (vr(V_DSK + 2), vr(V_DSK + 1)))
a('v_and_b32 %s, 0xffff0000, %s' % (vr(V_DSK + 1), vr(V_DSK)))
a('v_lshlrev_b32 %s, 16, %s' % (vr(V_DSK), vr(V_DSK)))
stamp(a, 'kv')
pre = {k: Stream() for k in range(18)}
side = {k: Stream() for k in range(18)}
xtk[6] = x_dma(side[0], 6, 0)
xtk[7] = x_dma(side[1], 7, 0)
xtk[8] = x_dma(side[2], 8, 0)
for kp, k in ((3, 0), (4, 2), (5, 4), (6, 8), (7, 10), (8, 12)):
    rt = b_read(side[k], kp)
    if kp + 3 < 9:
        side[k + 1].wait(rt)
        btk[kp + 3] = b_dma(side[k + 1], kp + 3)
    lastb = rt
side[3].extend(kvflag)
G0 = V.get(24)
RBG = V.get(4)
rba = V.get()
xe = V.get()
gl = stats_loads(0, G0)
gl.append('buffer_load_dwordx4 %s, %s, %s, 0 offen sc1' % (vr(RBG, 4), vr(rba), sr(R_WS, 4)))
side[9]('s_lshl_b32 %s, %s, 8' % (sr(S_T0), sr(S_PT)),
        's_add_u32 %s, %s, %d' % (sr(S_T0), sr(S_T0), WS_RBG),
        'v_lshl_add_u32 %s, %s, 4, %s' % (vr(rba), vr(V_N), sr(S_T0)))
for i in range(0, 12, 2):
    side[9](gl[i], gl[i + 1])
side[9](gl[12])
cv = Conv()
conv_flag_prep(side[10], cv)
side[11](cv.fload)


def s0_poll(s):
    p = Stream()
    L, Lc = newlabel('poll'), newlabel('pollc')
    acc = V.get(2, 1)
    p('s_mov_b32 %s, %d' % (sr(S_SPIN), SPIN))
    p.touch(vr(G0, 24), vr(RBG, 4))
    p.label(Lc)
    p('v_bitop3_b32 %s, %s, %s, %s bitop3:0x7e' % (vr(acc), vr(RBG + 1), vr(RBG + 3), vr(V_TAG)))
    for i in range(MT):
        p('v_sub_u32 %s, %s, %s' % (vr(acc + 1), vr(G0 + 4 * i + 3), vr(V_EXP9)))
        p('v_lshrrev_b32 %s, 4, %s' % (vr(acc + 1), vr(acc + 1)))
        p('v_or_b32 %s, %s, %s' % (vr(acc), vr(acc), vr(acc + 1)))
        p('v_xor_b32 %s, %s, %s' % (vr(acc + 1), vr(G0 + 4 * i + 1), vr(V_EXP9)))
        p('v_or_b32 %s, %s, %s' % (vr(acc), vr(acc), vr(acc + 1)))
    p('v_cmp_ne_u32 vcc, 0, %s' % vr(acc))
    p('s_sub_u32 %s, %s, 1' % (sr(S_SPIN), sr(S_SPIN)))
    p('s_cselect_b64 vcc, 0, vcc')
    p('s_cmp_lg_u64 vcc, 0')
    p('s_cbranch_scc1 %s' % L)
    tail.label(L)
    for t in gl:
        tail(t)
    tail('s_waitcnt vmcnt(0)')
    tail('s_branch %s' % Lc)
    p('v_add_u32 %s, %s, %s' % (vr(xe), sr(S_XCC), vr(V_TAG)))
    p('v_cmp_gt_u32 vcc, 9, %s' % vr(V_N))
    p('v_cndmask_b32 %s, 0, %s, vcc' % (vr(xe), vr(xe)))
    p('v_cmp_ne_u32 vcc, %s, %s' % (vr(G0 + 3), vr(xe)))
    p('s_cmp_eq_u64 vcc, 0')
    p('s_cselect_b32 %s, %d, 0' % (sr(S_FAST), 0 if OPT['slow'] else 1))
    s.join(p)
    put((acc, 2))


s0_poll(pre[13])
lt = Stream()
ttk, LNP0 = ln_table(lt, 0, G0, RBG)
put((RBG, 4), rba, xe)
p_ = split(lt, 2)
side[13].extend(p_[0])
side[14].extend(p_[1])
pre[13].wait(lastb)
conv_setup_k(side[15], cv)
poll(pre[16], [cv.fload], [(cv.fv, None, cv.fe)], pre_issued=True)
conv_u_loads(side[16], cv)
cfa, cfe, cfv = V.get(), V.get(), V.get()
side[16]('s_lshl_b32 %s, %s, 7' % (sr(S_T1), sr(S_CG)),
         's_add_u32 %s, %s, %d' % (sr(S_T1), sr(S_T1), WS_CPF),
         'v_lshl_add_u32 %s, %s, 2, %s' % (vr(cfa), vr(V_LANE), sr(S_T1)))
side[16]('v_cmp_gt_u32 vcc, 18, %s' % vr(V_LANE),
         'v_cndmask_b32 %s, %s, %s, vcc' % (vr(cfa), vr(V_OOB), vr(cfa)),
         'v_cndmask_b32 %s, 0, %s, vcc' % (vr(cfe), vr(V_TAG)))
cfl = 'buffer_load_dword %s, %s, %s, 0 offen sc1' % (vr(cfv), vr(cfa), sr(R_WS, 4))
side[16](cfl)
side[17]('s_mul_i32 %s, %s, %d' % (sr(S_T0), sr(S_PT), 37 * 1024),
         's_add_u32 %s, %s, %d' % (sr(S_C), sr(S_T0), WS_CP))
for s_ in range(9):
    side[17]('s_add_u32 %s, %s, %d' % (sr(S_TT + s_), sr(S_C), s_ * 4096))
gemm_b(a, ACC, AF, lambda s: xtk[s], pre, side, lastwait=lambda: ttk)
put((V_DB, 2), (V_FB, 2), (V_DX, 3), (V_DUMMY, 4))
stamp(a, 'gemmB1')


def scan_phase(a, layer, ACC, AF, mid=None):
    NJ = 2 * MT
    re = lambda j: ACC + (j >> 1) * 4 + (j & 1) * 2
    im = lambda j: ACC + 4 * MT + (j >> 1) * 4 + (j & 1) * 2
    TB = AF
    for j in range(NJ):
        a('ds_read_b128 %s, %s offset:%d' % (vr(TB + 4 * j, 4), vr(V_TABR), 16 * j))

    def prescale(j):
        a('v_pk_mul_f32 %s, %s, %s' % (vr(re(j), 2), vr(re(j), 2), vr(TB + 4 * j, 2)))
        a('v_pk_mul_f32 %s, %s, %s' % (vr(im(j), 2), vr(im(j), 2), vr(TB + 4 * j, 2)))
        a('v_pk_fma_f32 %s, %s, %s, %s op_sel:[0,0,0] op_sel_hi:[1,0,1] neg_lo:[1,0,0] neg_hi:[1,0,0]' %
          (vr(re(j), 2), vr(TB + 4 * j + 2, 2), vr(RB, 2), vr(re(j), 2)))
        a('v_pk_fma_f32 %s, %s, %s, %s op_sel:[0,1,0] op_sel_hi:[1,1,1] neg_lo:[1,0,0] neg_hi:[1,0,0]' %
          (vr(im(j), 2), vr(TB + 4 * j + 2, 2), vr(RB, 2), vr(im(j), 2)))

    def step(dr, di, pr, pi, br, bi):
        a('v_pk_fma_f32 %s, %s, %s, %s op_sel:[0,0,0] op_sel_hi:[1,0,1]' % (vr(dr, 2), vr(pr, 2), vr(LAM, 2), vr(br, 2)))
        a('v_pk_fma_f32 %s, %s, %s, %s op_sel:[0,0,0] op_sel_hi:[1,0,1]' % (vr(di, 2), vr(pi, 2), vr(LAM, 2), vr(bi, 2)))
        a('v_pk_fma_f32 %s, %s, %s, %s op_sel:[0,1,0] op_sel_hi:[1,1,1] neg_lo:[1,0,0] neg_hi:[1,0,0]' %
          (vr(dr, 2), vr(pi, 2), vr(LAM, 2), vr(dr, 2)))
        a('v_pk_fma_f32 %s, %s, %s, %s op_sel:[0,1,0] op_sel_hi:[1,1,1]' % (vr(di, 2), vr(pr, 2), vr(LAM, 2), vr(di, 2)))

    E = V.get(8)
    prescale(0)
    pr, pi = re(0), im(0)
    for j in range(1, NJ):
        prescale(j)
        dr, di = E + (j & 1) * 4, E + (j & 1) * 4 + 2
        step(dr, di, pr, pi, re(j), im(j))
        pr, pi = dr, di
    EA, F = V.get(2), V.get(2)
    a('v_mov_b32 %s, %s' % (vr(EA), vr(pr)))
    a('v_mov_b32 %s, %s' % (vr(EA + 1), vr(pi)))
    a('v_mov_b32 %s, %s' % (vr(F), vr(pr + 1)))
    a('v_mov_b32 %s, %s' % (vr(F + 1), vr(pi + 1)))
    FA = E
    cfma(a, FA, EA, L12, F)
    pub = V.get(4)
    a('v_mov_b64 %s, %s' % (vr(FA + 2, 2), vr(FA, 2)))
    a('v_mov_b32 %s, %s' % (vr(pub + 1), vr(V_TAG)))
    a('v_mov_b32 %s, %s' % (vr(pub + 3), vr(V_TAG)))
    a('v_permlane16_swap_b32 %s, %s' % (vr(FA), vr(FA + 2)))
    a('v_permlane16_swap_b32 %s, %s' % (vr(FA + 1), vr(FA + 3)))
    a('s_lshl_b32 %s, %s, 13' % (sr(S_T0), sr(S_PT)))
    a('v_mov_b64 %s, %s' % (vr(FA + 4, 2), vr(FA, 2)))
    a('v_mov_b64 %s, %s' % (vr(FA + 6, 2), vr(FA + 2, 2)))
    a('s_add_u32 %s, %s, %d' % (sr(S_T0), sr(S_T0), WS_E + layer * 36 * 8192))
    for k in range(4):
        a('v_permlane32_swap_b32 %s, %s' % (vr(FA + k), vr(FA + 4 + k)))
    cfma(a, FA + 2, FA, L24, FA + 2)
    cfma(a, FA + 4, FA + 2, L24, FA + 4)
    cfma(a, FA + 6, FA + 4, L24, FA + 6)
    a('v_mov_b32 %s, %s' % (vr(pub), vr(FA + 6)))
    a('v_mov_b32 %s, %s' % (vr(pub + 2), vr(FA + 7)))
    a('buffer_store_dwordx4 %s, %s, %s, %s offen sc1' % (vr(pub, 4), vr(V_EW), sr(R_WS, 4), sr(S_T0)))
    stamp(a, 'e_pub%d' % layer)
    PQ = F
    a('v_mov_b32 %s, 0' % vr(PQ))
    a('v_mov_b32 %s, 0' % vr(PQ + 1))
    for qi in range(1, 4):
        a('v_cmp_eq_u32 vcc, %d, %s' % (qi, vr(V_Q)),
          'v_cndmask_b32 %s, %s, %s, vcc' % (vr(PQ), vr(PQ), vr(FA + 2 * qi - 2)),
          'v_cndmask_b32 %s, %s, %s, vcc' % (vr(PQ + 1), vr(PQ + 1), vr(FA + 2 * qi - 1)))
    put((pub, 4), (E, 8), (AF, 48))
    NL = 6
    loads, checks, box = [], [], []

    def mk(cs):
        CG_ = V.get(4 * NL)
        AD, EX = V.get(NL, 1), V.get(NL, 1)
        box.extend([CG_, AD, EX])
        cs('s_lshl_b32 %s, %s, 13' % (sr(S_T0), sr(S_PT)),
           's_add_u32 %s, %s, %d' % (sr(S_T0), sr(S_T0), WS_E + layer * 36 * 8192),
           'v_add_u32 %s, %s, %s' % (vr(EX), sr(S_T0), vr(V_ER)))
        for j in range(NL - 1, -1, -1):
            cs('v_subrev_u32 %s, %d, %s' % (vr(AD + j), 1024 * j, vr(EX)),
               'v_cmp_le_i32 vcc, %d, %s' % (1024 * j, vr(V_ER)),
               'v_cndmask_b32 %s, %s, %s, vcc' % (vr(AD + j), vr(V_OOB), vr(AD + j)),
               'v_cndmask_b32 %s, 0, %s, vcc' % (vr(EX + j), vr(V_TAG)))
        for j in range(NL):
            loads.append('buffer_load_dwordx4 %s, %s, %s, 0 offen sc1' % (vr(CG_ + 4 * j, 4), vr(AD + j), sr(R_WS, 4)))
            checks.append((CG_ + 4 * j + 1, CG_ + 4 * j + 3, EX + j))
        for l_ in loads:
            cs(l_)

    post = mid(a, mk)
    CG_, AD, EX = box
    poll(a, loads, checks, pre_issued=True)
    stamp(a, 'carry%d' % layer)
    if post is not None:
        a.extend(post)
    put((AD, NL), (EX, NL))
    for j in range(NL):
        a('v_mov_b32 %s, %s' % (vr(CG_ + 4 * j + 1), vr(CG_ + 4 * j + 2)))
    for j in range(NL - 2, -1, -1):
        cfma(a, CG_ + 4 * j, CG_ + 4 * j + 4, L384, CG_ + 4 * j)
    H, Y = V.get(2), V.get(2)
    cmul(a, H, CG_, LQ96)
    for sw in ('v_permlane32_swap_b32', 'v_permlane16_swap_b32'):
        a('v_mov_b64 %s, %s' % (vr(Y, 2), vr(H, 2)))
        a('%s %s, %s' % (sw, vr(H), vr(Y)))
        a('%s %s, %s' % (sw, vr(H + 1), vr(Y + 1)))
        a('v_pk_add_f32 %s, %s, %s' % (vr(H, 2), vr(H, 2), vr(Y, 2)))
    cfma(a, PQ, H, LQ24, PQ)
    cfma(a, EA, PQ, L12, EA)
    a('v_mov_b32 %s, %s' % (vr(H), vr(PQ)))
    a('v_mov_b32 %s, %s' % (vr(H + 1), vr(EA)))
    a('v_mov_b32 %s, %s' % (vr(Y), vr(PQ + 1)))
    a('v_mov_b32 %s, %s' % (vr(Y + 1), vr(EA + 1)))
    pr, pi = H, Y
    PK = V.get(4)
    HO = CG_
    tk = None
    for j in range(NJ):
        step(re(j), im(j), pr, pi, re(j), im(j))
        pr, pi = re(j), im(j)
        pk = PK + (j & 1) * 2
        for hf in range(2):
            a('v_cvt_pk_bf16_f32 %s, %s, %s' % (vr(pk + hf), vr(re(j) + hf), vr(im(j) + hf)))
        tk = a.mem('ds_write_b32 %s, %s offset:%d' % (vr(V_HW), vr(pk), (j >> 1) * 1024 + (j & 1) * 128),
                   'ds_write_b32 %s, %s offset:%d' % (vr(V_HW), vr(pk + 1), (j >> 1) * 1024 + (j & 1) * 128 + 64))
        if j & 1:
            a('ds_read_b128 %s, %s offset:%d' % (vr(HO + 4 * (j >> 1), 4), vr(V_HR), (j >> 1) * 1024))
    a('s_mul_i32 %s, %s, 216' % (sr(S_T0), sr(S_RB)))
    a('s_add_u32 %s, %s, %s' % (sr(S_T0), sr(S_T0), sr(S_PT)))
    a('s_lshl_b32 %s, %s, 10' % (sr(S_T0), sr(S_T0)))
    txt = []
    for i in range(MT):
        txt.append('s_add_u32 %s, %s, %d' % (sr(S_T1), sr(S_T0), WS_H + layer * H_SZ + i * 36864))
        txt.append('buffer_store_dwordx4 %s, %s, %s, %s offen {P}' % (vr(HO + 4 * i, 4), vr(V_L16), sr(R_WS, 4), sr(S_T1)))
    tk = dual(a, txt, touch=[vr(HO, 24)])
    a('s_lshl2_add_u32 %s, %s, %s' % (sr(S_T0), sr(S_RB), sr(S_WAVE)))
    a('s_lshl4_add_u32 %s, %s, %s' % (sr(S_T0), sr(S_T0), sr(S_CG)))
    a('s_lshl_b32 %s, %s, 2' % (sr(S_T0), sr(S_T0)))
    a('s_add_u32 %s, %s, %d' % (sr(S_T0), sr(S_T0), WS_HF + layer * NRB * 256))
    return tk, [(EA, 2), (F, 2), (H, 2), (Y, 2), (PK, 4), (CG_, 4 * NL), (ACC, 48)]


WCV = None


def WC(s, j):
    idx = s * 4 + j
    if idx < 28:
        return ar(144 + idx * 4, 4)
    return vr(WCV + (idx - 28) * 4, 4)


def cp_load(s_, s, j):
    s_('buffer_load_dwordx4 %s, %s, %s, %s offen offset:%d sc1' % (WC(s, j), vr(V_L16), sr(R_WS, 4), sr(S_TT + s), j * 1024))


def mid0(a, mk):
    sd = Stream()
    poll(sd, [cfl], [(cfv, None, cfe)], pre_issued=True)
    if OPT['pf']:
        ta = V.get()
        jl = 'buffer_load_dword %s, %s, %s, %s offen sc1 ;junk' % (vr(V_JUNK), vr(ta), sr(R_WS, 4), sr(S_T2))
        if OPT['pf'] & 2:
          sd('v_lshrrev_b32 %s, 3, %s' % (vr(ta), vr(V_LANE)),
           'v_mul_u32_u24 %s, %d, %s' % (vr(ta), 36864 - 1024, vr(ta)),
           'v_lshl_add_u32 %s, %s, 7, %s' % (vr(ta), vr(V_LANE), vr(ta)),
           'v_cmp_gt_u32 vcc, 48, %s' % vr(V_LANE),
           'v_cndmask_b32 %s, %s, %s, vcc' % (vr(ta), vr(V_OOB), vr(ta)),
           's_mul_i32 %s, %s, 216' % (sr(S_T2), sr(S_RB)),
           's_add_u32 %s, %s, %s' % (sr(S_T2), sr(S_T2), sr(S_PT)),
           's_lshl_b32 %s, %s, 10' % (sr(S_T2), sr(S_T2)),
           's_add_u32 %s, %s, %d' % (sr(S_T2), sr(S_T2), WS_H), jl)
        if OPT['pf'] & 4:
          sd('v_lshlrev_b32 %s, 7, %s' % (vr(ta), vr(V_LANE)),
           'v_cmp_gt_u32 vcc, 24, %s' % vr(V_LANE),
           'v_cndmask_b32 %s, %s, %s, vcc' % (vr(ta), vr(V_OOB), vr(ta)),
           's_mul_i32 %s, %s, 36' % (sr(S_T2), sr(S_RB)),
           's_add_u32 %s, %s, %s' % (sr(S_T2), sr(S_T2), sr(S_PT)),
           's_mul_i32 %s, %s, 3072' % (sr(S_T2), sr(S_T2)),
           's_add_u32 %s, %s, %d' % (sr(S_T2), sr(S_T2), WS_W), jl)
        for wh in ((1, 2, 3) if OPT['pf'] & 8 else ()):
            sd('s_mov_b32 %s, %d' % (sr(S_T2), WS_ST + wh * ST_SZ),
               'buffer_load_dword %s, %s, %s, %s offen sc1 ;junk' % (vr(V_JUNK), vr(V_STW), sr(R_WS, 4), sr(S_T2)))
        if OPT['pf'] & 16:
          sd('v_and_b32 %s, 1, %s' % (vr(ta), vr(V_LANE)),
           'v_lshlrev_b32 %s, 7, %s' % (vr(ta), vr(ta)),
           's_lshl_b32 %s, %s, 8' % (sr(S_T3), sr(S_RB)),
           's_add_u32 %s, %s, %d' % (sr(S_T2), sr(S_T3), WS_HF), jl,
           's_add_u32 %s, %s, %d' % (sr(S_T2), sr(S_T3), WS_HF + NRB * 256), jl,
           's_add_u32 %s, %s, %d' % (sr(S_T2), sr(S_T3), WS_WF), jl)
    for idx in range(28):
        cp_load(sd, idx // 4, idx % 4)
    f = conv_body(a, cv, sd, mk)
    put(cfa, cfe, cfv)
    if OPT['pf']:
        put(ta)
    return f


htk, hrel = scan_phase(a, 0, ACC, AF, mid0)
put(*hrel)
WCV = V.get(32)
for idx in range(28, 36):
    cp_load(a, idx // 4, idx % 4)
ln_rest(a, 0, LNP0)
a.wait(htk)
dual(a, flag_texts(sr(S_T0), '{P}'))
stamp(a, 'h_pub0')

GP = V.get(12, 4)
V_PW, V_PR, V_PW2, V_PR2 = [V.get() for _ in range(4)]
t = V.get()
a('v_mul_u32_u24 %s, %d, %s' % (vr(V_PW), PART_ROW, vr(V_N)))
a('v_lshl_add_u32 %s, %s, 4, %s' % (vr(V_PW), vr(V_Q), vr(V_PW)))
a('s_mul_i32 %s, %s, %d' % (sr(S_T0), sr(S_WAVE), PART_W))
a('v_add_u32 %s, %s, %s' % (vr(V_PW), sr(S_T0), vr(V_PW)))
a('s_lshl_b32 %s, %s, 2' % (sr(S_T0), sr(S_WAVE)))
a('v_add_u32 %s, %s, %s' % (vr(t), sr(S_T0), vr(V_Q)))
a('v_mul_u32_u24 %s, %d, %s' % (vr(V_PR), PART_ROW, vr(t)))
a('v_lshl_add_u32 %s, %s, 4, %s' % (vr(V_PR), vr(V_N), vr(V_PR)))
PH = 12 * PART_W
a('v_add_u32 %s, %d, %s' % (vr(V_PW2), PH, vr(V_PW)))
a('v_add_u32 %s, %d, %s' % (vr(V_PR2), PH, vr(V_PR)))
put(t)


def g_fetch_streams():
    s1, s2, s3 = Stream(), Stream(), Stream()
    fa, u, q = V.get(), V.get(), V.get()
    fv = V.get(2)
    s1('s_lshl_b32 %s, %s, 9' % (sr(S_T1), sr(S_CG)),
       's_add_u32 %s, %s, %d' % (sr(S_T1), sr(S_T1), WS_GF),
       'v_lshl_add_u32 %s, %s, 3, %s' % (vr(fa), vr(V_LANE), sr(S_T1)))
    fl = 'buffer_load_dwordx2 %s, %s, %s, 0 offen sc1' % (vr(fv, 2), vr(fa), sr(R_WS, 4))
    s1(fl)
    acc_keep = V.get(2, 1)
    put((acc_keep, 2))
    poll(s2, [fl], [(fv, fv + 1, V_TAG)], pre_issued=True)
    acc_keep = V.get(2, 1)
    D = GP
    s2('s_mul_i32 %s, %s, %d' % (sr(S_T1), sr(S_CG), 32 * G_STR),
       's_mul_i32 %s, %s, 384' % (sr(S_T2), sr(S_RB)),
       's_add_u32 %s, %s, %s' % (sr(S_T1), sr(S_T1), sr(S_T2)),
       's_mul_i32 %s, %s, 96' % (sr(S_T2), sr(S_WAVE)),
       's_add_u32 %s, %s, %s' % (sr(S_T1), sr(S_T1), sr(S_T2)),
       's_add_u32 %s, %s, %d' % (sr(S_C), sr(S_T1), WS_G))
    for i in range(3):
        s2('v_add_u32 %s, %d, %s' % (vr(u), 64 * i, vr(V_LANE)))
        s2('v_mul_u32_u24 %s, 171, %s' % (vr(q), vr(u)))
        s2('v_lshrrev_b32 %s, 10, %s' % (vr(q), vr(q)))
        s2('v_mul_u32_u24 %s, %d, %s' % (vr(fa), G_STR - 96, vr(q)))
        s2('v_lshl_add_u32 %s, %s, 4, %s' % (vr(fa), vr(u), vr(fa)))
        s2('buffer_load_dwordx4 %s, %s, %s, %s offen sc1' % (vr(D + 4 * i, 4), vr(fa), sr(R_WS, 4), sr(S_C)))
    s3('v_add_u32 %s, %s, %s' % (vr(fa), sr(S_RINGW), vr(V_L16)))
    s3('v_mul_u32_u24 %s, 192, %s' % (vr(q), vr(V_N)))
    s3('v_lshl_add_u32 %s, %s, 2, %s' % (vr(u), vr(V_TAU), vr(q)))
    s3('v_add_u32 %s, %s, %s' % (vr(u), sr(S_RINGW), vr(u)))
    for i in range(3):
        s3('ds_write_b128 %s, %s offset:%d' % (vr(fa), vr(D + 4 * i, 4), 1024 * i))
    for i in range(MT):
        s3('ds_read2_b32 %s, %s offset0:%d offset1:%d' % (vr(GP + 2 * i, 2), vr(u), 2 * i, 24 + 2 * i))
    return s1, s2, s3, [fa, (fv, 2), u, q, (acc_keep, 2)]


def gemm_c(a, layer):
    fa, fv = V.get(), V.get()
    a('s_lshl2_add_u32 %s, %s, %s' % (sr(S_T1), sr(S_RB), sr(S_WAVE)))
    a('s_lshl_b32 %s, %s, 6' % (sr(S_T1), sr(S_T1)))
    a('s_add_u32 %s, %s, %d' % (sr(S_T1), sr(S_T1), WS_HF + layer * NRB * 256))
    a('v_lshl_add_u32 %s, %s, 2, %s' % (vr(fa), vr(V_N), sr(S_T1)))
    a('v_cmp_gt_u32 vcc, 9, %s' % vr(V_N),
      'v_cndmask_b32 %s, %s, %s, vcc' % (vr(fa), vr(V_OOB), vr(fa)))
    fl = 'buffer_load_dword %s, %s, %s, 0 offen sc1' % (vr(fv), vr(fa), sr(R_WS, 4))
    a(fl)
    a('s_mul_i32 %s, %s, 216' % (sr(S_T0), sr(S_RB)))
    a('s_add_u32 %s, %s, %s' % (sr(S_T0), sr(S_T0), sr(S_WAVE)))
    a('s_lshl_b32 %s, %s, 10' % (sr(S_T0), sr(S_T0)))
    a('s_add_u32 %s, %s, %d' % (sr(S_T0), sr(S_T0), WS_H + layer * H_SZ))
    for s in range(9):
        if OPT['crot']:
            a('s_lshl_b32 %s, %s, 12' % (sr(S_T1), sr(S_KP + s)))
            a('s_add_u32 %s, %s, %s' % (sr(S_TT + s), sr(S_T1), sr(S_T0)))
        else:
            a('s_add_u32 %s, %s, %d' % (sr(S_TT + s), sr(S_T0), s * 4096))
    VH = V.get()
    a('v_mov_b32 %s, %s' % (vr(VH), vr(V_L16)))
    poll(a, [fl], [(fv, None, V_EXP9)], pre_issued=True)
    stamp(a, 'h_flag%d' % layer)
    put(fa, fv)
    NF = 16
    HB = V.get(4 * NF, top=True)
    CA = V.get(32, top=True)
    S, Q = V.get(6, 1), V.get(6, 1)
    PT = V.get(16)
    hb = lambda i, s: HB + ((i * 9 + s) % NF) * 4

    def hload(st, f):
        i, s = f // 9, f % 9
        if OPT['x_noload']:
            return
        if s == 0 and i > 0:
            st('v_add_u32 %s, 36864, %s' % (vr(VH), vr(VH)))
        st('buffer_load_dwordx4 %s, %s, %s, %s offen sc1' % (vr(hb(i, s), 4), vr(VH), sr(R_WS, 4), sr(S_TT + s)))

    def pwrite(st, i, js=range(4)):
        ca = CA + (i & 1) * 16
        for j in js:
            tk = st.mem('ds_write_b128 %s, %s offset:%d' % (vr(V_PW if i < 3 else V_PW2), vr(ca + 4 * j, 4),
                                                            L_IMG + (i % 3) * 4 * PART_W + j * 64))
        return tk

    def preduce(st, i, P, pk):
        for w in range(4):
            st('ds_read_b128 %s, %s offset:%d' % (vr(P + w * 4, 4), vr(V_PR if i < 3 else V_PR2), L_IMG + ((i % 3) * 4 + w) * PART_W))

    def padd(st, i, P, pk):
        x = BASE + 4 * i
        if pk:
            for k in range(2):
                st('v_pk_add_f32 %s, %s, %s' % (vr(P + 2 * k, 2), vr(P + 2 * k, 2), vr(P + 4 + 2 * k, 2)))
                st('v_pk_add_f32 %s, %s, %s' % (vr(P + 8 + 2 * k, 2), vr(P + 8 + 2 * k, 2), vr(P + 12 + 2 * k, 2)))
                st('v_pk_add_f32 %s, %s, %s' % (vr(x + 2 * k, 2), vr(x + 2 * k, 2), vr(P + 2 * k, 2)))
                st('v_pk_add_f32 %s, %s, %s' % (vr(x + 2 * k, 2), vr(x + 2 * k, 2), vr(P + 8 + 2 * k, 2)))
        else:
            for w in range(4):
                for k in range(4):
                    st('v_add_f32 %s, %s, %s' % (vr(x + k), vr(x + k), vr(P + 4 * w + k)))

    gs = None
    if layer == 0:
        gs = g_fetch_streams()
    for f in range(NF):
        hload(a, f)
    a('s_barrier')
    tk = None
    for i in range(MT):
        ca = CA + (i & 1) * 16
        m = Stream()
        for s in range(9):
            for j in range(4):
                if OPT['x_nomfma'] and j > 0:
                    continue
                m('v_mfma_f32_16x16x32_bf16 %s, %s, %s, %s' % (vr(ca + 4 * j, 4), WC(s, j), vr(hb(i, s), 4),
                                                              '0' if s == 0 else vr(ca + 4 * j, 4)))
            if i * 9 + s + NF < 9 * MT:
                hload(m, i * 9 + s + NF)
            if 2 <= s < 6 and i > 0:
                tk = pwrite(m, i - 1, [s - 2])
        sd = Stream()
        if i in (3, 5):
            a.wait(tkb)
            a('s_barrier')
            for ti in (i - 3, i - 2):
                preduce(sd, ti, PT, False)
                padd(sd, ti, PT, False)
                stats_partial(sd, BASE, S, Q, ti, None, False)
        if gs is not None:
            if i == 1:
                sd.extend(gs[0])
            if i == 4:
                sd.extend(gs[1])
        a.weave(m, sd, 0.05, 1.0)
        tkb = tk
        if OPT['fine']:
            stamp(a, 'c%d_t%d' % (layer, i))
    tk = pwrite(a, MT - 1)
    if gs is not None:
        a.extend(gs[2])
        put(*gs[3])
    a.wait(tk)
    a('s_barrier')
    stamp(a, 'gemmC%d' % layer)
    for ti in (4, 5):
        preduce(a, ti, HB + (ti - 4) * 16, True)
    for ti in (4, 5):
        padd(a, ti, HB + (ti - 4) * 16, True)
    put((CA, 32), (HB, 4 * NF), (PT, 16), VH)
    return S, Q


def gate(a, which, final, SQ):
    stats_publish(a, BASE, which, True, SQ=SQ, tiles=(4, 5))
    stamp(a, 'st_pub%d' % which)
    GU = V.get(24)
    for i in range(MT):
        for j in range(2):
            a('v_lshlrev_b32 %s, 16, %s' % (vr(GU + 4 * i + 2 * j), vr(GP + 2 * i + j)))
            a('v_and_b32 %s, 0xffff0000, %s' % (vr(GU + 4 * i + 2 * j + 1), vr(GP + 2 * i + j)))
    G = V.get(24)
    poll(a, stats_loads(which, G), [(G + 4 * i + 1, G + 4 * i + 3, V_EXP9) for i in range(MT)])
    stamp(a, 'st_got%d' % which)
    P = stats_finish(a, G)
    for k in range(2):
        a('v_add_f32 %s, 0x3727c5ac, %s' % (vr(P + 2 * k + 1), vr(P + 2 * k + 1)))
    for k in range(2):
        a('v_rsq_f32 %s, %s' % (vr(P + 2 * k + 1), vr(P + 2 * k + 1)))
    for k in range(2):
        a('v_add_f32 %s, %s, %s' % (vr(OFF + k), vr(OFF + k), vr(P + 2 * k)))
    B = G
    for i in range(MT):
        bcast(a, B + 4 * i, P, i)
        if final:
            k_, lane = tile_src(i)
            a('v_mov_b32_dpp %s, %s row_newbcast:%d row_mask:0xf bank_mask:0xf' % (vr(B + 4 * i + 2), vr(OFF + k_), lane))
    for i in range(MT):
        x, g, b = BASE + 4 * i, GU + 4 * i, B + 4 * i
        for k in range(2):
            a('v_pk_add_f32 %s, %s, %s op_sel:[0,0] op_sel_hi:[1,0] neg_lo:[0,1] neg_hi:[0,1]' % (vr(x + 2 * k, 2), vr(x + 2 * k, 2), vr(b, 2)))
            a('v_pk_fma_f32 %s, %s, %s, 1.0 op_sel:[0,1,0] op_sel_hi:[1,1,0]' % (vr(g + 2 * k, 2), vr(g + 2 * k, 2), vr(b, 2)))
        for k in range(2):
            if final:
                a('v_pk_fma_f32 %s, %s, %s, %s op_sel:[0,0,0] op_sel_hi:[1,1,0]' % (vr(x + 2 * k, 2), vr(x + 2 * k, 2), vr(g + 2 * k, 2), vr(b + 2, 2)))
            else:
                a('v_pk_mul_f32 %s, %s, %s' % (vr(x + 2 * k, 2), vr(x + 2 * k, 2), vr(g + 2 * k, 2)))
        if final:
            a('s_movk_i32 %s, %d' % (sr(S_T0), 4608 * i),
              'buffer_store_dwordx4 %s, %s, %s, %s offen' % (vr(x, 4), vr(V_OROW), sr(R_OUT, 4), sr(S_T0)))
    put((GU, 24), (G, 24), (P, 4))


SQ_ = gemm_c(a, 0)
gate(a, 1, False, SQ_)
WP = V.get(12, 2)
for i in range(MT):
    for k in range(2):
        a('v_cvt_pk_bf16_f32 %s, %s, %s' % (vr(WP + 2 * i + k), vr(BASE + 4 * i + 2 * k), vr(BASE + 4 * i + 2 * k + 1)))
a('s_mul_i32 %s, %s, 9' % (sr(S_T0), sr(S_RB)))
a('s_add_u32 %s, %s, %s' % (sr(S_T0), sr(S_T0), sr(S_CG)))
a('s_mul_i32 %s, %s, %d' % (sr(S_T0), sr(S_T0), BLK))
a('s_add_u32 %s, %s, %d' % (sr(S_T0), sr(S_T0), WS_W))
a('s_add_u32 %s, %s, 4096' % (sr(S_T1), sr(S_T0)))
a('s_add_u32 %s, %s, 8192' % (sr(S_T2), sr(S_T0)))
wtk_ = dual(a, ['buffer_store_dwordx2 %s, %s, %s, %s offen offset:%d {P}' %
                (vr(WP + 2 * i, 2), vr(V_WA), sr(R_WS, 4), sr((S_T0, S_T1, S_T2)[i >> 1]), (i & 1) * 2048) for i in range(MT)])
stats_publish(a, BASE, 2, True)
V_DX = V.get(3, 1)
a('s_mul_i32 %s, %s, %d' % (sr(S_T0), sr(S_RB), 9 * BLK))
a('s_add_u32 %s, %s, %d' % (sr(S_T0), sr(S_T0), WS_W))
a('s_add_u32 %s, %s, %s' % (sr(S_T0), sr(S_T0), sr(S_W1K)))
a('v_add_u32 %s, %s, %s' % (vr(V_DX), sr(S_T0), vr(V_L16)))
a('v_add_u32 %s, 4096, %s' % (vr(V_DX + 1), vr(V_DX)))
a('v_add_u32 %s, 8192, %s' % (vr(V_DX + 2), vr(V_DX)))
for s in range(9):
    a('s_mul_i32 %s, %s, %d' % (sr(S_TT + s), sr(S_KP + s), BLK))
fa, fe, fv = V.get(), V.get(), V.get()
a('s_lshl_b32 %s, %s, 8' % (sr(S_T1), sr(S_RB)))
a('s_add_u32 %s, %s, %d' % (sr(S_T1), sr(S_T1), WS_WF))
a('v_lshl_add_u32 %s, %s, 2, %s' % (vr(fa), vr(V_LANE), sr(S_T1)))
a('v_cmp_gt_u32 vcc, 36, %s' % vr(V_LANE),
  'v_cndmask_b32 %s, %s, %s, vcc' % (vr(fa), vr(V_OOB), vr(fa)),
  'v_cndmask_b32 %s, 0, %s, vcc' % (vr(fe), vr(V_TAG)))
a('s_lshl2_add_u32 %s, %s, %s' % (sr(S_T0), sr(S_PT), sr(S_T1)))
a.wait(wtk_)
dual(a, flag_texts(sr(S_T0), '{P}'))
stamp(a, 'w_pub')
put((WP, 12))

ACC = V.get(48, top=True)
AF = V.get(48, top=True)
poll(a, ['buffer_load_dword %s, %s, %s, 0 offen sc1' % (vr(fv), vr(fa), sr(R_WS, 4))], [(fv, None, fe)])
stamp(a, 'w_flag')
put(fa, fe, fv)
pre = {k: Stream() for k in range(18)}
side = {k: Stream() for k in range(18)}
wtk = {}
for blk in range(4):
    wtk[blk] = x_dma(a, blk, 1)
for blk in range(4, 9):
    wtk[blk] = x_dma(side[blk - 4], blk, 1)
G2 = V.get(24)
gl2 = stats_loads(2, G2)
for i in range(0, 12, 2):
    side[5](gl2[i], gl2[i + 1])
poll(pre[10], gl2, [(G2 + 4 * i + 1, G2 + 4 * i + 3, V_EXP9) for i in range(MT)], pre_issued=True)
lt = Stream()
ttk2, LNP1 = ln_table(lt, 1, G2, None)
p_ = split(lt, 3)
for i in range(3):
    side[10 + i].extend(p_[i])
gemm_b(a, ACC, AF, lambda s: wtk[s], pre, side, lastwait=lambda: ttk2)
put((V_DX, 3))
stamp(a, 'gemmB2')


def mid1(a, mk):
    ln_rest(a, 1, LNP1)
    mk(a)
    return None


htk, hrel = scan_phase(a, 1, ACC, AF, mid1)
put(*hrel)
a.wait(htk)
dual(a, flag_texts(sr(S_T0), '{P}'))
stamp(a, 'h_pub1')
a('s_lshl2_add_u32 %s, %s, %s' % (sr(S_T0), sr(S_L), sr(S_WAVE)))
a('s_cmp_lg_u32 %s, %d' % (sr(S_T0), (NRB - 1) * 9 * 4))
a('s_cselect_b64 exec, 0, 1',
  'buffer_store_dword %s, %s, %s, 0 offen sc1' % (vr(V_TAG), vr(V_ZERO), sr(R_WS, 4)),
  's_mov_b64 exec, -1')
SQ_ = gemm_c(a, 1)
gate(a, 3, True, SQ_)
stamp(a, 'out')
a('s_branch L_fin')

a.fence()
a.label('L_aux')
V.free = set(range(NCOMMON, 256))
a('s_mov_b32 %s, 1' % sr(S_ROLE))
a('s_sub_u32 %s, %s, %d' % (sr(S_RB), sr(S_L), NMAIN))
a('s_mul_i32 %s, %s, 12288' % (sr(S_T3), sr(S_WAVE)))
a('s_add_u32 %s, %s, %d' % (sr(S_T3), sr(S_T3), 4 * BLK + 16384))
a('s_cmp_eq_u32 %s, 3' % sr(S_WAVE))
a('s_cbranch_scc1 L_auxrb')
a('s_cmp_ge_u32 %s, 54' % sr(S_RB))
a('s_cbranch_scc1 L_auxconv')
srd(a, R_BRE, P_CRE, 576 * 1152)
srd(a, R_BIM, P_CIM, 576 * 1152)
a('s_mul_i32 %s, %s, 3' % (sr(S_T0), sr(S_RB)))
a('s_add_u32 %s, %s, %s' % (sr(S_T0), sr(S_T0), sr(S_WAVE)))
a('s_mul_i32 %s, %s, 57' % (sr(S_CG), sr(S_T0)))
a('s_lshr_b32 %s, %s, 10' % (sr(S_CG), sr(S_CG)))
a('s_mul_i32 %s, %s, 18' % (sr(S_T1), sr(S_CG)))
a('s_sub_u32 %s, %s, %s' % (sr(S_KP), sr(S_T0), sr(S_T1)))
t, t2 = V.get(), V.get()
a('v_and_b32 %s, 31, %s' % (vr(t), vr(V_LANE)))
a('s_lshl_b32 %s, %s, 6' % (sr(S_T0), sr(S_KP)))
a('v_lshl_add_u32 %s, %s, 1, %s' % (vr(t2), vr(t), sr(S_T0)))
LT = lam_loads(a, t2)
CL = V.get(32)
vc = V.get()
a('v_lshrrev_b32 %s, 2, %s' % (vr(vc), vr(V_LANE)))
a('v_mul_u32_u24 %s, 1152, %s' % (vr(vc), vr(vc)))
a('v_and_b32 %s, 3, %s' % (vr(t2), vr(V_LANE)))
a('v_lshl_add_u32 %s, %s, 4, %s' % (vr(vc), vr(t2), vr(vc)))
a('s_mul_i32 %s, %s, %d' % (sr(S_T1), sr(S_CG), 64 * 1152))
a('s_add_u32 %s, %s, %s' % (sr(S_T1), sr(S_T1), sr(S_T0)))
for u in range(4):
    a('s_add_u32 %s, %s, %d' % (sr(S_T2), sr(S_T1), u * 16 * 1152),
      'buffer_load_dwordx4 %s, %s, %s, %s offen' % (vr(CL + 8 * u, 4), vr(vc), sr(R_BRE, 4), sr(S_T2)),
      'buffer_load_dwordx4 %s, %s, %s, %s offen' % (vr(CL + 8 * u + 4, 4), vr(vc), sr(R_BIM, 4), sr(S_T2)))
a('s_waitcnt lgkmcnt(0)')
tag_ready(a)
_, COEF = lam_compute(a, LT, True)
a('v_add_f32 %s, %s, %s' % (vr(COEF), vr(COEF), vr(COEF)))
a('v_add_f32 %s, %s, %s' % (vr(COEF + 1), vr(COEF + 1), vr(COEF + 1)))
a('v_lshl_add_u32 %s, %s, 3, %s' % (vr(t), vr(t), sr(S_T3)))
tk = a.mem('ds_write_b64 %s, %s offset:8192' % (vr(t), vr(COEF, 2)))
a('v_lshl_add_u32 %s, %s, 6, %s' % (vr(t), vr(t2), sr(S_T3)))
a.wait(tk)
CF = V.get(16)
for k in range(4):
    a('ds_read_b128 %s, %s offset:%d' % (vr(CF + 4 * k, 4), vr(t), 8192 + 16 * k))
wa, ra = V.get(), V.get()
a('v_lshrrev_b32 %s, 2, %s' % (vr(t), vr(V_LANE)))
a('v_lshlrev_b32 %s, 4, %s' % (vr(t), vr(t)))
a('v_lshl_add_u32 %s, %s, 9, %s' % (vr(wa), vr(t2), vr(t)))
a('v_add_u32 %s, %s, %s' % (vr(wa), sr(S_T3), vr(wa)))
a('v_add_u32 %s, %s, %s' % (vr(ra), sr(S_T3), vr(V_L16)))
X = V.get(4)
O = V.get(32)
RD = V.get(32)
toks = []
a('s_and_b32 %s, %s, 1' % (sr(S_T0), sr(S_KP)))
a('s_lshl1_add_u32 %s, %s, %s' % (sr(S_T0), sr(S_CG), sr(S_T0)))
a('s_mul_i32 %s, %s, %d' % (sr(S_T1), sr(S_T0), 2 * 37 * 1024))
a('s_lshr_b32 %s, %s, 1' % (sr(S_T0), sr(S_KP)))
a('s_lshl_b32 %s, %s, 12' % (sr(S_T0), sr(S_T0)))
a('s_add_u32 %s, %s, %s' % (sr(S_T1), sr(S_T1), sr(S_T0)))
a('s_add_u32 %s, %s, %d' % (sr(S_T1), sr(S_T1), WS_CP))
a('s_add_u32 %s, %s, %d' % (sr(S_T2), sr(S_T1), 37 * 1024))
for u in range(4):
    o = O + u * 8
    for e in range(8):
        src = CL + 8 * u + (e >> 1)
        if e & 1:
            a('v_and_b32 %s, 0xffff0000, %s' % (vr(X), vr(src)))
            a('v_and_b32 %s, 0xffff0000, %s' % (vr(X + 1), vr(src + 4)))
        else:
            a('v_lshlrev_b32 %s, 16, %s' % (vr(X), vr(src)))
            a('v_lshlrev_b32 %s, 16, %s' % (vr(X + 1), vr(src + 4)))
        cmul(a, X + 2, X, CF + 2 * e)
        a('v_cvt_pk_bf16_f32 %s, %s, -%s' % (vr(o + e), vr(X + 2), vr(X + 3)))
    bo = u * 2048
    a('ds_write_b128 %s, %s offset:%d' % (vr(wa), vr(o, 4), bo))
    a('ds_write_b128 %s, %s offset:%d' % (vr(wa), vr(o + 4, 4), bo + 256))
    rd = RD + u * 8
    a('ds_read_b128 %s, %s offset:%d' % (vr(rd, 4), vr(ra), bo))
    a('ds_read_b128 %s, %s offset:%d' % (vr(rd + 4, 4), vr(ra), bo + 1024))
for u in range(4):
    rd = RD + u * 8
    toks.append(a.mem('buffer_store_dwordx4 %s, %s, %s, %s offen offset:%d sc1' % (vr(rd, 4), vr(V_L16), sr(R_WS, 4), sr(S_T1), u * 1024)))
    toks.append(a.mem('buffer_store_dwordx4 %s, %s, %s, %s offen offset:%d sc1' % (vr(rd + 4, 4), vr(V_L16), sr(R_WS, 4), sr(S_T2), u * 1024)))
a('s_lshl_b32 %s, %s, 5' % (sr(S_T0), sr(S_CG)))
a('s_add_u32 %s, %s, %s' % (sr(S_T0), sr(S_T0), sr(S_KP)))
a('s_lshl_b32 %s, %s, 2' % (sr(S_T0), sr(S_T0)))
a('s_add_u32 %s, %s, %d' % (sr(S_T0), sr(S_T0), WS_CPF))
a.wait(*toks)
a(*flag_texts(sr(S_T0), 'sc1'))
a.fence()
a('s_branch L_auxconv2')

a.label('L_auxrb')
V.free = set(range(NCOMMON, 256))
a('s_cmp_ge_u32 %s, 36' % sr(S_RB))
a('s_cbranch_scc1 L_auxconv')
srd(a, R_BRE, P_BRE, 576 * 1152)
srd(a, R_BIM, P_BIM, 576 * 1152)
vc, t2 = V.get(), V.get()
a('v_lshrrev_b32 %s, 2, %s' % (vr(vc), vr(V_LANE)))
a('v_mul_u32_u24 %s, 1152, %s' % (vr(vc), vr(vc)))
a('v_and_b32 %s, 3, %s' % (vr(t2), vr(V_LANE)))
a('v_lshl_add_u32 %s, %s, 4, %s' % (vr(vc), vr(t2), vr(vc)))
a('s_mul_i32 %s, %s, %d' % (sr(S_T1), sr(S_RB), 16 * 1152))
BL = V.get(144)
for k in range(18):
    a('buffer_load_dwordx4 %s, %s, %s, %s offen offset:%d' % (vr(BL + 8 * k, 4), vr(vc), sr(R_BRE, 4), sr(S_T1), 64 * k))
    a('buffer_load_dwordx4 %s, %s, %s, %s offen offset:%d' % (vr(BL + 8 * k + 4, 4), vr(vc), sr(R_BIM, 4), sr(S_T1), 64 * k))
a('s_waitcnt lgkmcnt(0)')
tag_ready(a)
ONE2 = V.get()
SM = V.get(4)
a('v_mov_b32 %s, 0x3f803f80' % vr(ONE2))
a('v_mov_b32 %s, 0' % vr(SM))
a('v_mov_b32 %s, 0' % vr(SM + 2))
for k in range(18):
    for e in range(4):
        for mat in range(2):
            a('v_dot2_f32_bf16 %s, %s, %s, %s' % (vr(SM + 2 * mat), vr(BL + 8 * k + 4 * mat + e), vr(ONE2), vr(SM + 2 * mat)))
a('v_mov_b32 %s, %s' % (vr(SM + 1), vr(V_TAG)))
a('v_mov_b32 %s, %s' % (vr(SM + 3), vr(V_TAG)))
for qp in ('quad_perm:[1,0,3,2]', 'quad_perm:[2,3,0,1]'):
    for r in (SM, SM + 2):
        a('v_add_f32_dpp %s, %s, %s %s row_mask:0xf bank_mask:0xf' % (vr(r), vr(r), vr(r), qp))
a('v_lshlrev_b32 %s, 2, %s' % (vr(vc), vr(V_LANE)))
a('v_cmp_eq_u32 vcc, 0, %s' % vr(t2), 'v_cndmask_b32 %s, %s, %s, vcc' % (vr(vc), vr(V_OOB), vr(vc)))
a('s_lshl_b32 %s, %s, 8' % (sr(S_T0), sr(S_RB)))
a('s_add_u32 %s, %s, %d' % (sr(S_T0), sr(S_T0), WS_RBG))
a('buffer_store_dwordx4 %s, %s, %s, %s offen sc1' % (vr(SM, 4), vr(vc), sr(R_WS, 4), sr(S_T0)))
a.fence()
a('s_branch L_auxconv2')

a.label('L_auxconv')
a('s_waitcnt lgkmcnt(0)')
tag_ready(a)
a.label('L_auxconv2')
V.free = set(range(NCOMMON, 256))
nst = len(STAMPS)
sv = OPT['stamps']
OPT['stamps'] = 0
cv = Conv()
a('s_barrier')
conv_setup_k(a, cv)
conv_flag_prep(a, cv)
poll(a, [cv.fload], [(cv.fv, None, cv.fe)])
conv_u_loads(a, cv)
f = conv_body(a, cv)
a.extend(f)
OPT['stamps'] = sv
a.fence()
a('s_add_u32 %s, %s, %d' % (sr(S_PAIR), sr(S_PAIR), NAUX))
a('s_cmp_lt_u32 %s, 288' % sr(S_PAIR))
a('s_cbranch_scc1 L_auxconv2')
a('s_branch L_fin')

a.fence()
a.extend(tail)

a.label('L_fin')
if OPT['stamps']:
    a('s_waitcnt vmcnt(0) lgkmcnt(0)')
    a('%s %s' % ('s_memtime' if OPT['cyc'] else 's_memrealtime', sr(S_M2, 2)))
    a('s_waitcnt lgkmcnt(0)')
    a('v_writelane_b32 %s, %s, 63' % (vr(V_STAMP), sr(S_M2)))
    a('v_writelane_b32 %s, %s, 62' % (vr(V_STAMP), sr(S_FAST)))
    a('s_lshl_b32 %s, %s, 10' % (sr(S_T0), sr(S_L)))
    a('s_add_u32 %s, %s, %d' % (sr(S_T0), sr(S_T0), WS_DBG))
    a('v_lshlrev_b32 %s, 2, v0' % vr(V_DUMMY))
    a('buffer_store_dword %s, %s, %s, %s offen' % (vr(V_STAMP), vr(V_DUMMY), sr(R_WS, 4), sr(S_T0)))
a.label('L_end')
a('s_endpgm')

hdr = open(os.path.join(os.path.dirname(os.path.abspath(__file__)), '..', 'cdna_kernels', NAME + '.s.ref')).read().split('\n')
head = []
for ln in hdr:
    if ln.startswith('; @launch'):
        break
    head.append(ln)
lines = head + ['; @launch grid=(256,1,1) block=(256,1,1) lds=%d' % LDS_SIZE,
                '.amdgcn_target "amdgcn-amd-amdhsa--gfx950"', '.text', '.globl ' + KN, '.p2align 8',
                '.type %s,@function' % KN, KN + ':']
lines += finalize(top)
lines += ['.section .rodata,"a"', '.p2align 6', '.amdhsa_kernel ' + KN,
          '  .amdhsa_next_free_vgpr 512', '  .amdhsa_next_free_sgpr 102', '  .amdhsa_accum_offset 256',
          '  .amdhsa_group_segment_fixed_size 0', '  .amdhsa_kernarg_size 144', '  .amdhsa_user_sgpr_count 2',
          '  .amdhsa_user_sgpr_kernarg_segment_ptr 1', '  .amdhsa_system_sgpr_workgroup_id_x 1', '.end_amdhsa_kernel']
open(sys.argv[1], 'w').write('\n'.join(lines) + '\n')
if OPT['stamps']:
    open(sys.argv[1] + '.stamps', 'w').write('\n'.join(STAMPS) + '\n')
print('vgpr high water', V.hw, 'lines', len(lines))
```

```python
import re

TRANS = ('v_exp_f32', 'v_log_f32', 'v_rcp_f32', 'v_rsq_f32', 'v_sqrt_f32', 'v_sin_f32', 'v_cos_f32')


def regs_of(op):
    op = op.strip()
    op = op.lstrip('-')
    if op.startswith('abs(') or op.startswith('|'):
        op = op.replace('abs(', '').replace(')', '').replace('|', '')
    m = re.fullmatch(r'([vas])(\d+)', op)
    if m:
        return [(m.group(1), int(m.group(2)))]
    m = re.fullmatch(r'([vas])\[(\d+):(\d+)\]', op)
    if m:
        return [(m.group(1), i) for i in range(int(m.group(2)), int(m.group(3)) + 1)]
    if op == 'vcc':
        return [('s', 106), ('s', 107)]
    if op == 'vcc_lo':
        return [('s', 106)]
    if op == 'vcc_hi':
        return [('s', 107)]
    if op == 'exec':
        return [('s', 126), ('s', 127)]
    if op == 'm0':
        return [('s', 124)]
    return []


class Ins:
    __slots__ = ('text', 'mn', 'ops', 'mods', 'dst', 'src', 'kind', 'tok', 'srcc', 'srcab', 'cmt')

    def __init__(self, text, tok=None):
        self.text = text
        self.tok = tok
        t = text.split(';')[0].strip()
        parts = t.split(None, 1)
        self.mn = parts[0]
        rest = parts[1] if len(parts) > 1 else ''
        ops, cur, depth = [], '', 0
        for ch in rest:
            if ch in '[(':
                depth += 1
            if ch in '])':
                depth -= 1
            if ch == ',' and depth == 0:
                ops.append(cur.strip())
                cur = ''
            else:
                cur += ch
        if cur.strip():
            ops.append(cur.strip())
        mods = ''
        if ops:
            last = ops[-1].split(None, 1)
            ops[-1] = last[0]
            if len(last) > 1:
                mods = last[1]
        self.ops = ops
        self.mods = mods
        self.srcc = []
        self.srcab = []
        self.classify()

    def classify(self):
        mn, ops = self.mn, self.ops
        R = regs_of
        dst, src = [], []
        if mn.endswith(':') or mn.startswith('.'):
            kind = 'label'
        elif mn.startswith('v_mfma'):
            kind = 'mfma'
            dst = R(ops[0])
            self.srcab = R(ops[1]) + R(ops[2])
            self.srcc = R(ops[3])
            src = self.srcab + self.srcc
        elif mn.startswith('v_'):
            kind = 'valu'
            base = mn.replace('_e32', '').replace('_e64', '').replace('_dpp', '').replace('_sdwa', '')
            if base.startswith('v_permlane') and 'swap' in base:
                dst = R(ops[0]) + R(ops[1])
                src = R(ops[0]) + R(ops[1])
            elif base in ('v_add_co_u32', 'v_sub_co_u32', 'v_addc_co_u32', 'v_subb_co_u32', 'v_subrev_co_u32',
                          'v_mad_u64_u32', 'v_div_scale_f32'):
                dst = R(ops[0]) + R(ops[1])
                for o in ops[2:]:
                    src += R(o)
            elif base == 'v_nop':
                pass
            else:
                dst = R(ops[0])
                for o in ops[1:]:
                    src += R(o)
                if base in ('v_fmac_f32', 'v_dot2c_f32_bf16', 'v_pk_fmac_f16', 'v_writelane_b32') or \
                        ('_dpp' in mn) or ('_sdwa' in mn):
                    src += R(ops[0])
                if base in ('v_div_fmas_f32',):
                    src += R('vcc')
        elif mn.startswith('ds_'):
            kind = 'ds'
            if mn.startswith('ds_read') or mn.startswith('ds_bpermute') or mn.startswith('ds_permute') or \
                    mn.startswith('ds_swizzle'):
                dst = R(ops[0])
                for o in ops[1:]:
                    src += R(o)
                if 'd16' in mn:
                    src += R(ops[0])
            else:
                for o in ops:
                    src += R(o)
        elif mn.startswith('buffer_') or mn.startswith('global_'):
            kind = 'vmem'
            lds = re.search(r'\blds\b', self.mods) is not None or '_lds_' in mn
            if mn in ('buffer_inv', 'buffer_wbl2'):
                pass
            elif lds:
                for o in ops:
                    src += R(o)
                src += R('m0')
            elif '_load' in mn:
                dst = R(ops[0]) if ';junk' not in self.text else []
                for o in ops[1:]:
                    src += R(o)
                if 'd16' in mn:
                    src += R(ops[0])
            elif '_atomic' in mn:
                for o in ops:
                    src += R(o)
                if 'sc0' in self.mods:
                    dst = R(ops[0])
            else:
                for o in ops:
                    src += R(o)
        elif mn.startswith('s_load') or mn.startswith('s_memtime') or mn.startswith('s_memrealtime') or \
                mn.startswith('s_buffer_load'):
            kind = 'smem'
            dst = R(ops[0])
            for o in ops[1:]:
                src += R(o)
        elif mn.startswith('s_'):
            kind = 'salu'
            if mn in ('s_waitcnt', 's_nop', 's_barrier', 's_endpgm', 's_sleep', 's_setprio', 's_branch') or \
                    mn.startswith('s_cbranch'):
                if mn.startswith('s_cbranch_vcc'):
                    src = R('vcc')
            elif mn.startswith('s_cmp') or mn.startswith('s_bitcmp'):
                for o in ops:
                    src += R(o)
            else:
                dst = R(ops[0])
                for o in ops[1:]:
                    src += R(o)
                if 'saveexec' in mn:
                    dst += R('exec')
                    src += R('exec')
                if mn in ('s_addk_i32', 's_mulk_i32'):
                    src += R(ops[0])
        else:
            raise ValueError('unknown instruction: ' + self.text)
        self.kind, self.dst, self.src = kind, dst, src


class Tok:
    __slots__ = ('seq', 'cls')

    def __init__(self):
        self.seq = None
        self.cls = None


class Stream:
    def __init__(self):
        self.groups = []

    def __call__(self, *texts, tok=None):
        g = []
        for i, t in enumerate(texts):
            g.append(Ins(t, tok if i == len(texts) - 1 else None))
        self.groups.append(g)
        return self

    def mem(self, *texts):
        t = Tok()
        g = [Ins(x) for x in texts]
        for i in reversed(g):
            if i.kind in ('vmem', 'ds'):
                i.tok = t
                break
        else:
            raise ValueError('no memory op in group')
        self.groups.append(g)
        return t

    def touch(self, *ops):
        regs = []
        for o in ops:
            regs += regs_of(o)
        self.groups.append([('touch', regs)])

    def join(self, other):
        g = []
        for x in other.groups:
            g += x
        self.groups.append(g)

    def wait(self, *toks):
        self.groups.append([('wait', toks)])

    def label(self, name):
        self.groups.append([Ins(name + ':')])

    def fence(self):
        self.groups.append([('fence',)])

    def comment(self, s):
        self.groups.append([('cmt', s)])

    def extend(self, other):
        self.groups.extend(other.groups)

    def weave(self, main, side, start=0.0, end=1.0):
        n, m = len(main.groups), len(side.groups)
        if m == 0:
            self.extend(main)
            return
        lo, hi = int(n * start), int(n * end)
        span = max(hi - lo, 1)
        k = 0
        for i, g in enumerate(main.groups):
            while k < m and i >= lo and (i - lo) * m >= k * span:
                self.groups.append(side.groups[k])
                k += 1
            self.groups.append(g)
        while k < m:
            self.groups.append(side.groups[k])
            k += 1


def weave(main, side, start=0.0, end=1.0):
    o = Stream()
    o.weave(main, side, start, end)
    return o


def mfma_passes(mn):
    if '32x32' in mn:
        return 8
    return 4


def finalize(stream):
    out = []
    hist = []
    pos = 0
    vm_seq = 0
    lg_seq = 0
    vm_done = 0
    lg_done = 0
    smem_pending = False
    pend_vm = {}
    pend_lg = {}

    def emit(ins):
        nonlocal pos
        out.append(ins)
        if ins.kind == 'label':
            return
        if ins.mn == 's_nop':
            pos += int(ins.ops[0], 0) + 1
        else:
            hist.append((ins, pos))
            pos += 1
        while hist and pos - hist[0][1] > 24:
            hist.pop(0)

    def do_wait(vm=None, lg=None):
        nonlocal vm_done, lg_done, smem_pending
        parts = []
        if vm is not None and vm > vm_done:
            n = min(vm_seq - vm, 63)
            parts.append('vmcnt(%d)' % n)
            vm_done = vm_seq - n
        if lg is not None:
            if lg == 'smem' or smem_pending:
                if smem_pending or lg_done < lg_seq:
                    parts.append('lgkmcnt(0)')
                    lg_done = lg_seq
                    smem_pending = False
                    for r in [r for r, s in pend_lg.items() if s == 'smem']:
                        del pend_lg[r]
            elif lg > lg_done:
                n = min(lg_seq - lg, 15)
                parts.append('lgkmcnt(%d)' % n)
                lg_done = lg_seq - n
        if parts:
            emit(Ins('s_waitcnt ' + ' '.join(parts)))

    def need_nops(ins):
        need = 0
        srcs = set(ins.src)
        dsts = set(ins.dst)
        is_dpp = '_dpp' in ins.mn
        is_perm = ins.mn.startswith('v_permlane')
        is_rl = ins.mn.startswith('v_readlane') or ins.mn.startswith('v_readfirstlane')
        is_lds_dma = ins.kind == 'vmem' and ('s', 124) in srcs
        for p, ppos in hist:
            dist = pos - ppos - 1
            req = 0
            pd = set(p.dst)
            if p.kind == 'valu':
                vd = {r for r in pd if r[0] in 'va'}
                sd = {r for r in pd if r[0] == 's'}
                isdot = p.mn.startswith('v_dot')
                if isdot:
                    if vd & (srcs | dsts):
                        same = ins.mn.startswith(p.mn.replace('_e32', ''))
                        if same and p.mn.startswith('v_dot2c') and not (vd & set(sum([regs_of(o) for o in ins.ops[1:]], []))):
                            req = max(req, 0)
                        elif same and not p.mn.startswith('v_dot2c') and \
                                not (vd & set(regs_of(ins.ops[1]) + regs_of(ins.ops[2]))):
                            req = max(req, 0)
                        else:
                            req = max(req, 3)
                if ins.kind == 'mfma' and vd & srcs:
                    req = max(req, 2)
                if ins.kind == 'mfma' and p.mn.startswith('v_pk_') and re.search(r'op_sel:\[[01,]*1', p.mods):
                    req = max(req, 1)
                if ins.kind == 'valu':
                    if is_dpp and vd & srcs:
                        req = max(req, 2)
                    if is_perm and vd & srcs:
                        req = max(req, 2)
                    if is_rl and vd & srcs:
                        req = max(req, 1)
                    if sd & srcs:
                        req = max(req, 4 if (ins.mn.startswith('v_readlane') or ins.mn.startswith('v_writelane') or
                                             ins.mn.startswith('v_div_fmas')) else 2)
                    if p.mn.replace('_e32', '').replace('_e64', '') in TRANS and vd & srcs:
                        req = max(req, 1)
                    if '_sdwa' in p.mn and vd & (srcs | dsts):
                        req = max(req, 1)
                    if ('s', 126) in sd and is_dpp:
                        req = max(req, 5)
                if ins.kind == 'vmem' and sd & srcs:
                    req = max(req, 5)
                if ins.kind == 'mfma' and ('s', 126) in sd:
                    req = max(req, 4)
            elif p.kind == 'mfma':
                ps = mfma_passes(p.mn)
                big = {4: 8, 8: 12}[ps]
                if ins.kind == 'mfma':
                    if pd & set(ins.srcab):
                        req = max(req, big)
                    if pd & set(ins.srcc):
                        if p.dst == ins.srcc and mfma_passes(ins.mn) == ps:
                            req = max(req, 0)
                        else:
                            req = max(req, big - 2)
                    if pd & dsts and not (p.dst == ins.srcc):
                        req = max(req, big)
                else:
                    if pd & (srcs | dsts):
                        req = max(req, big)
                    if ins.kind == 'valu' and set(p.srcc) & dsts:
                        req = max(req, {4: 3, 8: 7}[ps])
                    if ins.kind in ('ds', 'vmem') and set(p.srcc) & dsts:
                        req = max(req, {4: 3, 8: 7}[ps])
            elif p.kind == 'salu':
                if ('s', 124) in pd and is_lds_dma:
                    req = max(req, 1)
            elif p.kind in ('vmem', 'ds'):
                wide = ('store_dwordx4' in p.mn or 'store_dwordx3' in p.mn or 'write_b128' in p.mn or 'write_b96' in p.mn)
                if wide:
                    data = set(regs_of(p.ops[0])) if p.kind == 'vmem' and p.mn.startswith('buffer') else set(regs_of(p.ops[1]))
                    if data & dsts:
                        req = max(req, 2 if ins.kind in ('valu', 'mfma') else 1)
            need = max(need, req - dist)
        return need

    written = {('v', 0)}
    for g in stream.groups:
        for it in g:
            if not isinstance(it, tuple) and it.kind != 'label':
                for r in it.src:
                    if r[0] in 'va' and r not in written and r not in it.dst:
                        print('WARNING use before def:', r, it.text)
                        written.add(r)
                written.update(it.dst)
            if isinstance(it, tuple):
                if it[0] == 'cmt':
                    out.append('; ' + it[1])
                elif it[0] == 'wait':
                    vm = max([t.seq for t in it[1] if t.cls == 'vm'], default=None)
                    lg = max([t.seq for t in it[1] if t.cls == 'lg'], default=None)
                    for t in it[1]:
                        assert t.seq is not None, 'wait on token not yet emitted'
                    do_wait(vm, lg)
                elif it[0] == 'touch':
                    vm = max([pend_vm[r] for r in it[1] if r in pend_vm], default=None)
                    lgs = [pend_lg[r] for r in it[1] if r in pend_lg]
                    lg = None
                    if lgs:
                        lg = 'smem' if 'smem' in lgs else max(lgs)
                    do_wait(vm, lg)
                elif it[0] == 'fence':
                    emit(Ins('s_waitcnt vmcnt(0) lgkmcnt(0)'))
                    vm_done, lg_done, smem_pending = vm_seq, lg_seq, False
                    pend_vm.clear()
                    pend_lg.clear()
                    emit(Ins('s_nop 7'))
                    emit(Ins('s_nop 3'))
                continue
            ins = it
            if ins.kind == 'label':
                out.append(ins)
                continue
            if ins.mn == 's_waitcnt':
                m = re.search(r'vmcnt\((\d+)\)', ins.text)
                if m:
                    vm_done = max(vm_done, vm_seq - int(m.group(1)))
                m = re.search(r'lgkmcnt\((\d+)\)', ins.text)
                if m:
                    if int(m.group(1)) == 0:
                        smem_pending = False
                        lg_done = lg_seq
                        for r in [r for r, s in pend_lg.items() if s == 'smem']:
                            del pend_lg[r]
                    elif not smem_pending:
                        lg_done = max(lg_done, lg_seq - int(m.group(1)))
                emit(ins)
                continue
            touched = set(ins.src) | set(ins.dst)
            vm = max([pend_vm[r] for r in touched if r in pend_vm], default=None)
            lgs = [pend_lg[r] for r in touched if r in pend_lg]
            lg = None
            if lgs:
                lg = 'smem' if 'smem' in lgs else max(lgs)
            do_wait(vm, lg)
            n = need_nops(ins)
            while n > 0:
                k = min(n, 16)
                emit(Ins('s_nop %d' % (k - 1)))
                n -= k
            emit(ins)
            for r in touched:
                if r in pend_vm and pend_vm[r] <= vm_done:
                    del pend_vm[r]
                if r in pend_lg and pend_lg[r] != 'smem' and pend_lg[r] <= lg_done:
                    del pend_lg[r]
            if ins.kind == 'vmem':
                vm_seq += 1
                for r in ins.dst:
                    pend_vm[r] = vm_seq
                if ins.tok is not None:
                    ins.tok.seq, ins.tok.cls = vm_seq, 'vm'
            elif ins.kind == 'ds':
                lg_seq += 1
                for r in ins.dst:
                    pend_lg[r] = lg_seq
                if ins.tok is not None:
                    ins.tok.seq, ins.tok.cls = lg_seq, 'lg'
            elif ins.kind == 'smem':
                smem_pending = True
                for r in ins.dst:
                    pend_lg[r] = 'smem'
    lines = []
    for o in out:
        if isinstance(o, str):
            lines.append('  ' + o)
        elif o.kind == 'label':
            lines.append(o.text)
        else:
            lines.append('  ' + o.text)
    return lines


class Alloc:
    def __init__(self, kind, lo, hi):
        self.kind = kind
        self.free = set(range(lo, hi))
        self.hw = lo
        self.locked = set()

    def home(self, n, align=None):
        b = self.get(n, align)
        self.put(b, n)
        self.locked |= set(range(b, b + n))
        return b

    def claim(self, b, n):
        for r in range(b, b + n):
            assert r in self.free, 'home register %d still in use' % r
            self.free.discard(r)
            self.locked.discard(r)

    def borrow(self, *homes):
        al = self

        class C:
            def __enter__(s_):
                s_.r = set()
                for b, n in homes:
                    s_.r |= set(range(b, b + n)) & al.locked
                al.locked -= s_.r

            def __exit__(s_, *a):
                al.locked |= s_.r
        return C()

    def get(self, n=1, align=None, top=False):
        if align is None:
            align = 1 if n == 1 else (2 if n in (2, 3) else 4)
        cands = sorted(self.free, reverse=top)
        for c in cands:
            if c % align:
                continue
            if all((c + i) in self.free and (c + i) not in self.locked for i in range(n)):
                for i in range(n):
                    self.free.discard(c + i)
                self.hw = max(self.hw, c + n)
                return c
        raise RuntimeError('out of %s registers (need %d)' % (self.kind, n))

    def put(self, base, n=1):
        for i in range(n):
            assert (base + i) not in self.free
            self.free.add(base + i)


def vr(b, n=1):
    return 'v%d' % b if n == 1 else 'v[%d:%d]' % (b, b + n - 1)


def ar(b, n=1):
    return 'a%d' % b if n == 1 else 'a[%d:%d]' % (b, b + n - 1)


def sr(b, n=1):
    return 's%d' % b if n == 1 else 's[%d:%d]' % (b, b + n - 1)


class Sched:
    LAT_DS = 140
    LAT_VM = 900
    VM_GAP = 60

    def __init__(self, out):
        self.out = out
        self.t = 0
        self.pipe = 0
        self.valu = 0
        self.lastvm = -1000
        self.dsfree = 0
        self.ready = {}
        self.tokready = {}
        self.sides = []

    def add(self, stream):
        q = list(stream.groups)
        self.sides.append(q)
        return q

    def _start(self, g, t):
        st = t
        for it in g:
            if isinstance(it, tuple):
                if it[0] == 'touch':
                    for r in it[1]:
                        st = max(st, self.ready.get(r, 0))
                elif it[0] == 'wait':
                    for tk in it[1]:
                        st = max(st, self.tokready.get(id(tk), 0))
                continue
            if it.kind == 'label':
                continue
            for r in list(it.src) + list(it.dst):
                if it.kind == 'mfma' and r in it.srcc and it.dst == it.srcc:
                    continue
                st = max(st, self.ready.get(r, 0))
            if it.kind == 'vmem':
                st = max(st, self.lastvm + self.VM_GAP)
            if it.kind == 'ds':
                st = max(st, self.dsfree)
        first = next((it for it in g if not isinstance(it, tuple) and it.kind != 'label'), None)
        if first is not None:
            if first.kind == 'mfma':
                st = max(st, self.pipe)
            elif first.kind == 'valu':
                st = max(st, self.valu)
        return st

    @staticmethod
    def _len(g):
        return 4 * sum(1 for it in g if isinstance(it, tuple) or it.kind != 'label')

    def _emit(self, g):
        t = self.t
        for it in g:
            if isinstance(it, tuple):
                if it[0] in ('touch', 'wait'):
                    t = max(t, self._start([it], t)) + 4
                continue
            if it.kind == 'label':
                continue
            t = self._start([it], t)
            if it.kind == 'mfma':
                self.pipe = t + 16
                self.valu = t + 8
                for r in it.dst:
                    self.ready[r] = t + 40
            elif it.kind == 'valu':
                if it.mn.startswith('v_pk') or it.mn.startswith('v_dot'):
                    t = max(t, self.pipe + 12)
                self.valu = t + 4
                for r in it.dst:
                    self.ready[r] = t + 4
            elif it.kind == 'ds':
                for r in it.dst:
                    self.ready[r] = t + self.LAT_DS
                if it.tok is not None:
                    self.tokready[id(it.tok)] = t + self.LAT_DS
                self.dsfree = t + (56 if 'write_b128' in it.mn else 16)
            elif it.kind == 'vmem':
                self.lastvm = t
                for r in it.dst:
                    self.ready[r] = t + self.LAT_VM
                if it.tok is not None:
                    self.tokready[id(it.tok)] = t + self.LAT_VM
                t += 8
            elif it.mn == 's_nop':
                t += 4 * int(it.ops[0], 0)
            else:
                for r in it.dst:
                    self.ready[r] = t + 4
            t += 4
        self.t = t
        self.out.groups.append(g)

    def _try_side(self, limit):
        for q in self.sides:
            if not q:
                continue
            g = q[0]
            st = self._start(g, self.t)
            ln = self._len(g)
            if st + min(ln, 12) <= limit and st <= self.t + 4:
                q.pop(0)
                self._emit(g)
                return True
        return False

    def run(self, backbone, trust_vm=True):
        for g in backbone.groups:
            if trust_vm:
                for it in g:
                    if not isinstance(it, tuple) and it.kind == 'mfma':
                        for r in it.srcab:
                            if self.ready.get(r, 0) > self.t + self.LAT_DS:
                                self.ready[r] = self.t
                    if isinstance(it, tuple) and it[0] == 'touch':
                        for r in it[1]:
                            if self.ready.get(r, 0) > self.t + self.LAT_DS:
                                self.ready[r] = self.t
                    if isinstance(it, tuple) and it[0] == 'wait':
                        for tk in it[1]:
                            if self.tokready.get(id(tk), 0) > self.t + self.LAT_DS:
                                self.tokready[id(tk)] = self.t
            while True:
                st = self._start(g, self.t)
                if st <= self.t or not self._try_side(st):
                    break
            self._emit(g)

    def flush(self, q=None):
        qs = [q] if q is not None else self.sides
        while any(qs):
            best = min((x for x in qs if x), key=lambda x: self._start(x[0], self.t))
            self._emit(best.pop(0))

    def pending(self):
        return sum(len(q) for q in self.sides)
```

```python
import sys, os
sys.path.insert(0, os.path.dirname(os.path.abspath(__file__)))
from asmlib import *

NAME = 'interleave_layers__ssm_conv_s5__ssm_conv_h3__prompt'
KN = NAME + '_kernel'

OPT = dict(stamps=0, slow=0, hbuf2=0, crot=0, pf=3, slp=8, slp2=6, ncp0=4, ncp=16, ncp2=21, per=4, x_nod1=0, x_s0late=0, x_nomfma=0, x_noload=0, fine=0, cyc=0)
for a_ in sys.argv[2:]:
    k_, v_ = a_.split('=')
    OPT[k_] = int(v_)

MT = 6
NRB = 22
NMAIN = 198
NAUX = 58
WS_KVF = 0x1000
WS_CPF = 0xC000
WS_HF = 0x4000
WS_WF = 0x4000 + 2 * 22 * 256
WS_GF = 0xA000
WS_RBG = 0xC000
WS_E = 0x10000
WS_ST = 0xA0000
ST_SZ = 22 * 24576
WS_KVT = 0x1600000
KVT_STR = 5632
WS_CP = 0x540000
WS_H = 0x6C0000
H_SZ = 22 * 221184 * OPT['hbuf2']
WS_W = 0x1040000
WS_G = 0x12C0000
G_STR = 11264
WS_DBG = 0x2000000
WS_SIZE = 0x10000000
OOB = 0x7FFF0000

BLK = 12288
L_IMG = 0
L_RING = 9 * BLK
L_MISC = L_RING + 49152
LDS_SIZE = 163840
L_TAB = L_MISC
L_FX = L_MISC + 768
L_HALO = L_MISC + 3072
L_KRAW = 0
L_VRAW = BLK
L_KVO = 2 * BLK
L_KC = L_RING
KC_CH = 16656
L_UC = L_IMG + 16
UC_CH = 9280
L_CO = 20480
CO_W = 10944
PART_ROW = 272
PART_W = 16 * PART_ROW
SPIN = 20000

P_X, P_LRE, P_LIM, P_BRE, P_BIM, P_CRE, P_CIM, P_LDT = [8 + 2 * i for i in range(8)]
P_DSK, P_Q, P_K, P_V, P_SHK, P_SSK, P_SSD, P_OUT = [24 + 2 * i for i in range(8)]
P_DBG, P_WS = 40, 42
R_WS, R_X, R_BRE, R_BIM, R_K, R_V, R_OUT, R_SK = [44 + 4 * i for i in range(8)]
S_RB, S_CG, S_FAST, S_WAVE, S_TAG, S_L, S_PAIR, S_SPIN = range(76, 84)
S_KP = 84
S_T0, S_T1, S_T2, S_T3 = 93, 94, 95, 96
S_ROLE = 97
S_M1, S_M2 = 98, 100
S_A, S_B, S_C = 3, 4, 5
S_PC = 6
S_TT = 8
S_TU = 17
S_MSEL = 26
S_MACT = 40
S_W1K = 97
S_RINGW = 98
S_PT = 99
S_XCC = 20
S_CPB = 21
S_HB = 22

V = Alloc('v', 1, 256)
top = Stream()
tail = Stream()
lblc = [0]
STAMPS = []


def newlabel(p):
    lblc[0] += 1
    return 'L_%s_%d' % (p, lblc[0])


def put(*items):
    for it in items:
        if isinstance(it, tuple):
            V.put(*it)
        else:
            V.put(it)


def srd(a, r, p, size):
    a('s_mov_b64 %s, %s' % (sr(r, 2), sr(p, 2)))
    a('s_mov_b32 %s, 0x%x' % (sr(r + 2), size))
    a('s_mov_b32 %s, 0x20000' % sr(r + 3))


def cmul(a, d, x, y):
    a('v_pk_mul_f32 %s, %s, %s op_sel:[0,0] op_sel_hi:[1,0]' % (vr(d, 2), vr(x, 2), vr(y, 2)))
    a('v_pk_fma_f32 %s, %s, %s, %s op_sel:[1,1,0] op_sel_hi:[0,1,1] neg_lo:[1,0,0]' % (vr(d, 2), vr(x, 2), vr(y, 2), vr(d, 2)))


def cfma(a, d, x, y, c):
    a('v_pk_fma_f32 %s, %s, %s, %s op_sel:[0,0,0] op_sel_hi:[1,0,1]' % (vr(d, 2), vr(x, 2), vr(y, 2), vr(c, 2)))
    a('v_pk_fma_f32 %s, %s, %s, %s op_sel:[1,1,0] op_sel_hi:[0,1,1] neg_lo:[1,0,0]' % (vr(d, 2), vr(x, 2), vr(y, 2), vr(d, 2)))


def stamp(a, name):
    if not OPT['stamps']:
        return
    i = len(STAMPS)
    a('%s %s' % ('s_memtime' if OPT['cyc'] else 's_memrealtime', sr(S_M2, 2)), 's_waitcnt lgkmcnt(0)', 'v_writelane_b32 %s, %s, %d' % (vr(V_STAMP), sr(S_M2), i))
    STAMPS.append(name)


def astamp(a, i):
    if OPT['stamps'] or OPT.get('_sv'):
        a('s_memtime %s' % sr(S_M2, 2), 's_waitcnt lgkmcnt(0)', 'v_writelane_b32 %s, %s, %d' % (vr(V_STAMP), sr(S_M2), i))


def poll(a, loads, checks, pre_issued=False, sleep=0):
    p = Stream()
    L = newlabel('poll')
    Lc = newlabel('pollc')
    simple = len(checks) == 1 and checks[0][1] is None
    acc = None if simple else V.get(2, 1)
    p('s_mov_b32 %s, %d' % (sr(S_SPIN), SPIN))
    if pre_issued:
        regs = []
        for c in checks:
            regs += [vr(c[0])] + ([vr(c[1])] if c[1] is not None else [])
        p.touch(*regs)
        p.label(Lc)
    else:
        p.label(L)
        if sleep:
            p('s_sleep %d' % sleep)
        for t in loads:
            p(t)
        p('s_waitcnt vmcnt(0)')
    if len(checks) == 1 and checks[0][1] is None:
        p('v_cmp_ne_u32 vcc, %s, %s' % (vr(checks[0][0]), vr(checks[0][2])))
    else:
        first = True
        for (x, y, e) in checks:
            d = acc if first else acc + 1
            if y is None:
                p('v_xor_b32 %s, %s, %s' % (vr(d), vr(x), vr(e)))
            else:
                p('v_bitop3_b32 %s, %s, %s, %s bitop3:0x7e' % (vr(d), vr(x), vr(y), vr(e)))
            if not first:
                p('v_or_b32 %s, %s, %s' % (vr(acc), vr(acc), vr(acc + 1)))
            first = False
        p('v_cmp_ne_u32 vcc, 0, %s' % vr(acc))
    p('s_sub_u32 %s, %s, 1' % (sr(S_SPIN), sr(S_SPIN)))
    p('s_cselect_b64 vcc, 0, vcc')
    p('s_cmp_lg_u64 vcc, 0')
    p('s_cbranch_scc1 %s' % L)
    if pre_issued:
        tail.label(L)
        if sleep:
            tail('s_sleep %d' % sleep)
        for t in loads:
            tail(t)
        tail('s_waitcnt vmcnt(0)')
        tail('s_branch %s' % Lc)
    a.join(p)
    if acc is not None:
        V.put(acc, 2)


def dual(a, texts, touch=()):
    Ls, Lb = newlabel('slow'), newlabel('back')
    p = Stream()
    if touch:
        p.touch(*touch)
    p('s_cmp_eq_u32 %s, 0' % sr(S_FAST), 's_cbranch_scc1 %s' % Ls)
    tk = p.mem(*[t.replace(' {P}', '') for t in texts])
    p.label(Lb)
    a.join(p)
    tail.label(Ls)
    tail('s_nop 1')
    tail(*[t.replace('{P}', 'sc1') for t in texts])
    tail('s_branch %s' % Lb)
    return tk


def flag_texts(soff, pol):
    return ['s_mov_b64 exec, 1',
            'buffer_store_dword %s, %s, %s, %s offen %s' % (vr(V_TAG), vr(V_ZERO), sr(R_WS, 4), soff, pol),
            's_mov_b64 exec, -1']


def lam_loads(a, vp2):
    t = V.get(4)
    a('global_load_ushort %s, %s, %s' % (vr(t), vr(vp2), sr(P_LRE, 2)))
    a('global_load_ushort %s, %s, %s' % (vr(t + 1), vr(vp2), sr(P_LIM, 2)))
    a('global_load_ushort %s, %s, %s' % (vr(t + 2), vr(vp2), sr(P_LDT, 2)))
    return t


def lam_compute(a, t, want_coef, lam=None):
    if lam is None:
        lam = V.get(2)
    u = V.get(4)
    for i in range(3):
        a('v_lshlrev_b32 %s, 16, %s' % (vr(t + i), vr(t + i)))
    a('v_mul_f32 %s, 0x3fb8aa3b, %s' % (vr(t + 2), vr(t + 2)))
    a('v_exp_f32 %s, %s' % (vr(t + 2), vr(t + 2)))
    a('v_cvt_pk_bf16_f32 %s, %s, %s' % (vr(t + 2), vr(t + 2), vr(t + 2)))
    a('v_lshlrev_b32 %s, 16, %s' % (vr(t + 2), vr(t + 2)))
    a('v_mul_f32 %s, %s, %s' % (vr(u), vr(t + 2), vr(t)))
    a('v_mul_f32 %s, %s, %s' % (vr(u + 1), vr(t + 2), vr(t + 1)))
    a('v_mul_f32 %s, 0x3fb8aa3b, %s' % (vr(u), vr(u)))
    a('v_exp_f32 %s, %s' % (vr(u), vr(u)))
    a('v_mul_f32 %s, 0.15915494, %s' % (vr(u + 1), vr(u + 1)))
    a('v_rndne_f32 %s, %s' % (vr(u + 2), vr(u + 1)))
    a('v_sub_f32 %s, %s, %s' % (vr(u + 1), vr(u + 1), vr(u + 2)))
    a('v_cos_f32 %s, %s' % (vr(u + 2), vr(u + 1)))
    a('v_sin_f32 %s, %s' % (vr(u + 3), vr(u + 1)))
    a('v_mul_f32 %s, %s, %s' % (vr(lam), vr(u), vr(u + 2)))
    a('v_mul_f32 %s, %s, %s' % (vr(lam + 1), vr(u), vr(u + 3)))
    coef = None
    if want_coef:
        coef = V.get(2)
        a('v_add_f32 %s, -1.0, %s' % (vr(u), vr(lam)))
        a('v_mov_b32 %s, %s' % (vr(u + 1), vr(lam + 1)))
        a('v_mul_f32 %s, %s, %s' % (vr(u + 2), vr(t), vr(t)))
        a('v_fmac_f32 %s, %s, %s' % (vr(u + 2), vr(t + 1), vr(t + 1)))
        a('v_rcp_f32 %s, %s' % (vr(u + 2), vr(u + 2)))
        a('v_sub_f32 %s, 0, %s' % (vr(t + 1), vr(t + 1)))
        cmul(a, coef, u, t)
        a('v_mul_f32 %s, %s, %s' % (vr(coef), vr(coef), vr(u + 2)))
        a('v_mul_f32 %s, %s, %s' % (vr(coef + 1), vr(coef + 1), vr(u + 2)))
    put((u, 4), (t, 4))
    return lam, coef


def tag_ready(a):
    a('s_mul_i32 %s, %s, 0x9E3779B1' % (sr(S_TAG), sr(S_TAG)),
      's_add_u32 %s, %s, 0x7F4A7C15' % (sr(S_TAG), sr(S_TAG)),
      'v_mov_b32 %s, %s' % (vr(V_TAG), sr(S_TAG)))


def rbf(s, regs):
    for r in regs:
        s('v_cvt_pk_bf16_f32 %s, %s, %s' % (vr(r), vr(r), vr(r)))
    for r in regs:
        s('v_lshlrev_b32 %s, 16, %s' % (vr(r), vr(r)))


def rs12(s, S, Q):
    dp = 'v_add_f32_dpp %s, %s, %s %s row_mask:0xf bank_mask:0x%x'
    for X in (S, Q):
        for j in range(3):
            s(dp % (vr(X[j]), vr(X[j]), vr(X[j]), 'row_ror:8', 0x3))
    for X in (S, Q):
        for j in range(3):
            s(dp % (vr(X[j]), vr(X[j + 3]), vr(X[j + 3]), 'row_ror:8', 0xc))
    for X in (S, Q):
        s(dp % (vr(X[0]), vr(X[0]), vr(X[0]), 'row_half_mirror', 0x5))
        s(dp % (vr(X[2]), vr(X[2]), vr(X[2]), 'row_half_mirror', 0xf))
    for X in (S, Q):
        s(dp % (vr(X[0]), vr(X[1]), vr(X[1]), 'row_half_mirror', 0xa))
    for qp in ('quad_perm:[1,0,3,2]', 'quad_perm:[2,3,0,1]'):
        for r in (S[2], Q[2], S[0], Q[0]):
            s(dp % (vr(r), vr(r), vr(r), qp, 0xf))


def tile_src(i):
    hf, j = divmod(i, 3)
    if j == 2:
        return 1, 8 * hf
    return 0, 8 * hf + 4 * j


a = top
V_LANE, V_TAG, V_STAMP, V_L16, V_N, V_Q = [V.get() for _ in range(6)]
V_OOB = V.get()
V_JUNK = V.get()
V_ZERO = V.get(2)
V_DUMMY = V.get(4)
NCOMMON = V.hw
BASE = V.get(24)
V_DSK = V.get(4)
V_FA = V.get(4)
LAM, L12, L24, L384, LQ96, LQ24, RB, OFF = [V.get(2) for _ in range(8)]
(V_TAU, V_OROW, V_STW, V_STR, V_EXP9, V_TABW, V_EW, V_ER, V_HW, V_HR, V_TABR, V_WA) = [V.get() for _ in range(12)]
WCV = V.home(32)
GP = V.home(12)
V_PW = V.home(4)
V_PR, V_PW2, V_PR2 = V_PW + 1, V_PW + 2, V_PW + 3
HOMES = ((WCV, 32), (GP, 12), (V_PW, 4))
V_DX = V.get(3, 1)

a('s_cmp_ge_u32 s2, 256')
a('s_cbranch_scc1 L_end')
a('s_load_dwordx16 s[8:23], s[0:1], 0')
a('s_load_dwordx16 s[24:39], s[0:1], 64')
a('s_load_dwordx4 s[40:43], s[0:1], 128')
a('s_getpc_b64 %s' % sr(S_PC, 2))
a.label('L_pc')
a('s_lshr_b32 %s, s2, 3' % sr(S_T0))
a('s_lshl_b32 %s, %s, 12' % (sr(S_T1), sr(S_T0)))
a('v_lshl_add_u32 %s, v0, 4, %s' % (vr(V_TAG), sr(S_T1)))
a('s_mov_b32 %s, L_end-L_pc-16' % sr(S_T1))
a('v_min_u32 %s, %s, %s' % (vr(V_TAG), sr(S_T1), vr(V_TAG)))
a('global_load_dwordx4 %s, %s, %s ;junk' % (vr(V_DUMMY, 4), vr(V_TAG), sr(S_PC, 2)))
a('v_and_b32 %s, 63, v0' % vr(V_LANE))
a('v_lshrrev_b32 %s, 6, v0' % vr(V_Q))
a('v_lshlrev_b32 %s, 4, %s' % (vr(V_L16), vr(V_LANE)))
a('v_readfirstlane_b32 %s, %s' % (sr(S_WAVE), vr(V_Q)))
if OPT['stamps']:
    a('v_mov_b32 %s, 0' % vr(V_STAMP))
stamp(a, 'start')
a('v_and_b32 %s, 15, %s' % (vr(V_N), vr(V_LANE)))
a('v_lshrrev_b32 %s, 4, %s' % (vr(V_Q), vr(V_LANE)))
a('v_mov_b32 %s, 0' % vr(V_ZERO))
a('v_mov_b32 %s, 0' % vr(V_ZERO + 1))
a('v_mov_b32 %s, 0x%x' % (vr(V_OOB), OOB))
a('s_and_b32 %s, s2, 7' % sr(S_T1))
a('s_mul_i32 %s, %s, 27' % (sr(S_T2), sr(S_T1)))
a('s_add_u32 %s, %s, %s' % (sr(S_T2), sr(S_T2), sr(S_T0)))
a('s_mul_i32 %s, %s, 5' % (sr(S_T3), sr(S_T1)))
a('s_add_u32 %s, %s, %s' % (sr(S_T3), sr(S_T3), sr(S_T0)))
a('s_add_u32 %s, %s, %d' % (sr(S_T3), sr(S_T3), 216 - 27))
a('s_cmp_lt_u32 %s, 27' % sr(S_T0))
a('s_cselect_b32 %s, %s, %s' % (sr(S_L), sr(S_T2), sr(S_T3)))
a('s_mul_i32 %s, %s, 57' % (sr(S_RB), sr(S_L)))
a('s_lshr_b32 %s, %s, 9' % (sr(S_RB), sr(S_RB)))
a('s_mul_i32 %s, %s, 9' % (sr(S_T0), sr(S_RB)))
a('s_sub_u32 %s, %s, %s' % (sr(S_CG), sr(S_L), sr(S_T0)))
a('s_mov_b32 %s, %s' % (sr(S_PAIR), sr(S_L)))
a('s_and_b32 %s, %s, 1' % (sr(S_A), sr(S_WAVE)))
a('s_lshr_b32 %s, %s, 1' % (sr(S_B), sr(S_WAVE)))
a('s_cmp_ge_u32 %s, %d' % (sr(S_L), NMAIN))
a('s_cbranch_scc1 L_aux')

t, t2, t3 = V.get(), V.get(), V.get()
LAMT = V.get(4)
lad, dad = V.get(), V.get()
V_DB = V.get(2)
c0 = V.get()
a('v_lshrrev_b32 %s, 3, %s' % (vr(t), vr(V_LANE)))
a('v_and_b32 %s, 7, %s' % (vr(t3), vr(V_LANE)))
a('s_lshl2_add_u32 %s, %s, %s' % (sr(S_PT), sr(S_CG), sr(S_WAVE)))
a('s_lshl_b32 %s, %s, 10' % (sr(S_W1K), sr(S_WAVE)))
a('s_mul_i32 %s, %s, 12288' % (sr(S_RINGW), sr(S_WAVE)))
a('s_add_u32 %s, %s, %d' % (sr(S_RINGW), sr(S_RINGW), L_RING))
a('s_lshl_b32 %s, %s, 7' % (sr(S_KP), sr(S_CG)))
a('v_xor_b32 %s, %s, %s' % (vr(c0), vr(t3), vr(V_Q)))
a('v_lshlrev_b32 %s, 4, %s' % (vr(c0), vr(c0)))
a('v_lshrrev_b32 %s, 5, %s' % (vr(t2), vr(V_LANE)))
a('v_mul_u32_u24 %s, 24, %s' % (vr(t2), vr(t2)))
a('v_and_b32 %s, 1, %s' % (vr(t3), vr(t)))
a('v_mad_u32_u24 %s, %s, 12, %s' % (vr(t2), vr(t3), vr(t2)))
a('v_and_b32 %s, 1, %s' % (vr(t3), vr(V_Q)))
a('s_mul_i32 %s, %s, 48' % (sr(S_T0), sr(S_A)))
a('s_mul_i32 %s, %s, 96' % (sr(S_T1), sr(S_RB)))
a('s_add_u32 %s, %s, %s' % (sr(S_T0), sr(S_T0), sr(S_T1)))
a('s_lshl1_add_u32 %s, %s, %s' % (sr(S_T0), sr(S_B), sr(S_T0)))
a('v_add3_u32 %s, %s, %s, %s' % (vr(t2), vr(t2), vr(t3), sr(S_T0)))
a('v_mul_u32_u24 %s, 1152, %s' % (vr(t2), vr(t2)))
a('s_lshl_b32 %s, %s, 6' % (sr(S_T0), sr(S_A)))
a('v_xor_b32 %s, %s, %s' % (vr(V_DX), sr(S_T0), vr(c0)))
a('v_add_u32 %s, %s, %s' % (vr(V_DX), vr(V_DX), vr(t2)))
a('v_add_u32 %s, 4608, %s' % (vr(V_DX + 1), vr(V_DX)))
a('v_add_u32 %s, 9216, %s' % (vr(V_DX + 2), vr(V_DX)))
a('s_lshl_b32 %s, %s, 4' % (sr(S_T0), sr(S_PT)))
a('v_add_u32 %s, %s, %s' % (vr(t2), sr(S_T0), vr(t)))
a('v_mul_u32_u24 %s, 1152, %s' % (vr(t2), vr(t2)))
a('v_add_u32 %s, %s, %s' % (vr(V_DB), vr(t2), vr(c0)))
a('v_xor_b32 %s, 64, %s' % (vr(V_DB + 1), vr(c0)))
a('v_add_u32 %s, %s, %s' % (vr(V_DB + 1), vr(V_DB + 1), vr(t2)))
a('v_add_u32 %s, %d, %s' % (vr(V_DB + 1), 8 * 1152, vr(V_DB + 1)))
put(c0)
a('s_mov_b32 %s, 0x%x' % (sr(R_X + 2), 2048 * 1152))
a('s_mov_b32 %s, 0x20000' % sr(R_X + 3))
for r_ in (R_BRE, R_BIM):
    a('s_mov_b32 %s, 0x%x' % (sr(r_ + 2), 576 * 1152))
    a('s_mov_b32 %s, 0x20000' % sr(r_ + 3))
a('s_waitcnt lgkmcnt(0)')
a('s_mov_b64 %s, %s' % (sr(R_X, 2), sr(P_X, 2)))
a('s_mov_b64 %s, %s' % (sr(R_BRE, 2), sr(P_BRE, 2)))
a('s_mov_b64 %s, %s' % (sr(R_BIM, 2), sr(P_BIM, 2)))


def x_dma(s, blk, layer):
    tk = None
    for u in range(3):
        s('s_add_u32 m0, %s, %d' % (sr(S_W1K), L_IMG + blk * BLK + u * 4096))
        tk = s.mem('buffer_load_dwordx4 %s, %s, %s offen%s lds' % (vr(V_DX + u), sr(R_X if layer == 0 else R_WS, 4),
                                                                   sr((S_KP if layer == 0 else S_TT) + blk), ' nt' if layer == 0 else ' sc1'))
    return tk


WB = lambda kp, h, mat: ((kp * 2 + h) * 2 + mat) * 4


def b_dma(s, kp):
    tk = None
    for b in range(4):
        s('s_add_u32 m0, %s, %d' % (sr(S_RINGW), (kp % 3) * 4096 + b * 1024))
        tk = s.mem('buffer_load_dwordx4 %s, %s, %s offen lds' % (vr(V_DB + (b & 1)), sr(R_BRE if b < 2 else R_BIM, 4), sr(S_KP + kp)))
    return tk


xtk, btk = {}, {}
i0, kt = Stream(), Stream()
xtk[0] = x_dma(i0, 0, 0)
btk[0] = b_dma(i0, 0)
kt('s_load_dword %s, %s, 0' % (sr(S_TAG), sr(P_WS, 2)))
kt('s_mul_i32 %s, %s, 43' % (sr(S_T0), sr(S_RB)))
kt('s_lshr_b32 %s, %s, 7' % (sr(S_T0), sr(S_T0)))
kt('s_mul_i32 %s, %s, 3' % (sr(S_T0), sr(S_T0)))
kt('s_sub_u32 %s, %s, %s' % (sr(S_T0), sr(S_RB), sr(S_T0)))
kt('s_lshl_b32 %s, 128, %s' % (sr(S_T0), sr(S_T0)))
for i in range(1, 9):
    kt('s_add_u32 %s, %s, %s' % (sr(S_KP + i), sr(S_KP + i - 1), sr(S_T0)),
       's_sub_u32 %s, %s, 1152' % (sr(S_T1), sr(S_KP + i)),
       's_cselect_b32 %s, %s, %s' % (sr(S_KP + i), sr(S_KP + i), sr(S_T1)))
a.weave(i0, kt)
a('s_lshl_b32 %s, %s, 5' % (sr(S_T1), sr(S_PT)))
a('v_lshl_add_u32 %s, %s, 1, %s' % (vr(lad), vr(V_N), sr(S_T1)))
btk[1] = b_dma(a, 1)
a('global_load_ushort %s, %s, %s' % (vr(LAMT), vr(lad), sr(P_LRE, 2)))
a('global_load_ushort %s, %s, %s' % (vr(LAMT + 1), vr(lad), sr(P_LIM, 2)))
a('global_load_ushort %s, %s, %s' % (vr(LAMT + 2), vr(lad), sr(P_LDT, 2)))
srd(a, R_WS, P_WS, WS_SIZE)
su = Stream()
V_FB = V.get(2)
su('v_lshrrev_b32 %s, 1, %s' % (vr(t), vr(V_N)))
su('v_xor_b32 %s, %s, %s' % (vr(t), vr(t), vr(V_Q)))
su('v_lshlrev_b32 %s, 4, %s' % (vr(t), vr(t)))
su('v_lshl_add_u32 %s, %s, 7, %s' % (vr(V_FA), vr(V_N), vr(t)))
su('v_xor_b32 %s, 64, %s' % (vr(V_FA + 1), vr(V_FA)))
su('v_add_u32 %s, %d, %s' % (vr(V_FA + 2), 4 * BLK, vr(V_FA)))
su('v_add_u32 %s, %d, %s' % (vr(V_FA + 3), 4 * BLK, vr(V_FA + 1)))
su('v_add_u32 %s, %s, %s' % (vr(V_FB), sr(S_RINGW), vr(V_FA)))
su('v_add_u32 %s, %s, %s' % (vr(V_FB + 1), sr(S_RINGW), vr(V_FA + 1)))
srd(su, R_OUT, P_OUT, 2048 * 2304)
su('s_mov_b32 %s, 0x02020202' % sr(S_MSEL), 's_mov_b32 %s, 0x02020202' % sr(S_MSEL + 1))
su('s_mov_b32 %s, 0x13131313' % sr(S_MACT), 's_mov_b32 %s, 0x13131313' % sr(S_MACT + 1))
su('s_getreg_b32 %s, hwreg(HW_REG_XCC_ID, 0, 4)' % sr(S_XCC))
su('v_and_b32 %s, 1, %s' % (vr(t), vr(V_Q)))
su('v_mul_u32_u24 %s, 12, %s' % (vr(V_TAU), vr(t)))
su('v_lshrrev_b32 %s, 1, %s' % (vr(t2), vr(V_Q)))
su('v_add_u32 %s, %s, %s' % (vr(V_TAU), vr(V_TAU), vr(t2)))
su('s_mul_i32 %s, %s, 96' % (sr(S_T0), sr(S_RB)),
   's_mul_i32 %s, %s, 24' % (sr(S_T1), sr(S_WAVE)),
   's_add_u32 %s, %s, %s' % (sr(S_T0), sr(S_T0), sr(S_T1)),
   'v_add_u32 %s, %s, %s' % (vr(t3), sr(S_T0), vr(V_TAU)))
su('v_mul_u32_u24 %s, 2304, %s' % (vr(V_OROW), vr(t3)))
su('s_lshl_b32 %s, %s, 8' % (sr(S_T0), sr(S_CG)),
   'v_lshl_add_u32 %s, %s, 4, %s' % (vr(t3), vr(V_N), sr(S_T0)))
su('v_add_u32 %s, %s, %s' % (vr(V_OROW), vr(V_OROW), vr(t3)))
TI = V.get()
su('v_lshrrev_b32 %s, 3, %s' % (vr(TI), vr(V_N)))
su('v_mul_u32_u24 %s, 3, %s' % (vr(TI), vr(TI)))
su('v_bfe_u32 %s, %s, 2, 1' % (vr(t3), vr(V_N)))
su('v_cndmask_b32 %s, %s, 2, %s' % (vr(t3), vr(t3), sr(S_MSEL, 2)))
su('v_add_u32 %s, %s, %s' % (vr(TI), vr(TI), vr(t3)))
su('v_lshl_add_u32 %s, %s, 1, %s' % (vr(t3), vr(TI), vr(t2)))
su('v_lshlrev_b32 %s, 4, %s' % (vr(t3), vr(t3)))
su('v_lshl_add_u32 %s, %s, 2, %s' % (vr(V_TABW), vr(t), vr(t3)))
su('s_mul_i32 %s, %s, 192' % (sr(S_T0), sr(S_WAVE)),
   's_add_u32 %s, %s, %d' % (sr(S_T0), sr(S_T0), L_TAB),
   'v_add_u32 %s, %s, %s' % (vr(V_TABW), sr(S_T0), vr(V_TABW)))
su('v_mul_u32_u24 %s, 192, %s' % (vr(V_TABR), vr(V_Q)))
su('v_add_u32 %s, %d, %s' % (vr(V_TABR), L_TAB, vr(V_TABR)))
su('s_mul_i32 %s, %s, 96' % (sr(S_T0), sr(S_RB)),
   's_lshl2_add_u32 %s, %s, %s' % (sr(S_T0), sr(S_WAVE), sr(S_T0)),
   'v_add_u32 %s, %s, %s' % (vr(t), sr(S_T0), vr(V_Q)))
su('v_lshlrev_b32 %s, 8, %s' % (vr(t), vr(t)))
su('v_lshl_add_u32 %s, %s, 4, %s' % (vr(V_STR), vr(V_N), vr(t)))
su('v_cmp_gt_u32 vcc, 9, %s' % vr(V_N),
   'v_cndmask_b32 %s, %s, %s, vcc' % (vr(V_STR), vr(V_OOB), vr(V_STR)))
su('v_lshl_add_u32 %s, %s, 12, %s' % (vr(V_STW), vr(TI), vr(t)))
su('s_lshl_b32 %s, %s, 4' % (sr(S_T0), sr(S_CG)),
   'v_add_u32 %s, %s, %s' % (vr(V_STW), sr(S_T0), vr(V_STW)))
su('v_cndmask_b32 %s, %s, %s, %s' % (vr(V_STW), vr(V_OOB), vr(V_STW), sr(S_MACT, 2)))
put(TI)
su('s_lshl_b32 %s, %s, 2' % (sr(S_T0), sr(S_WAVE)),
   'v_add_u32 %s, %s, %s' % (vr(V_WA), sr(S_T0), vr(V_Q)))
su('v_xor_b32 %s, %s, %s' % (vr(t), vr(V_WA), vr(V_N)))
su('v_lshrrev_b32 %s, 1, %s' % (vr(t), vr(t)))
su('v_lshlrev_b32 %s, 4, %s' % (vr(t), vr(t)))
su('v_lshl_add_u32 %s, %s, 7, %s' % (vr(V_WA), vr(V_WA), vr(t)))
su('v_and_b32 %s, 1, %s' % (vr(t), vr(V_N)))
su('v_lshl_add_u32 %s, %s, 3, %s' % (vr(V_WA), vr(t), vr(V_WA)))
su('s_lshl_b32 %s, %s, 8' % (sr(S_T0), sr(S_RB)),
   'v_lshl_add_u32 %s, %s, 4, %s' % (vr(V_EW), vr(V_N), sr(S_T0)))
su('v_lshlrev_b32 %s, 8, %s' % (vr(t), vr(V_Q)))
su('v_sub_u32 %s, %s, %s' % (vr(V_ER), vr(V_EW), vr(t)))
su('v_subrev_u32 %s, 256, %s' % (vr(V_ER), vr(V_ER)))
su('v_cmp_gt_u32 vcc, 16, %s' % vr(V_LANE),
   'v_cndmask_b32 %s, %s, %s, vcc' % (vr(V_EW), vr(V_OOB), vr(V_EW)))
su('v_lshl_add_u32 %s, %s, 2, %s' % (vr(t), vr(V_N), vr(t)))
su('s_mul_i32 %s, %s, 6144' % (sr(S_T0), sr(S_WAVE)), 's_add_u32 %s, %s, %d' % (sr(S_T0), sr(S_T0), 5 * BLK),
   'v_add_u32 %s, %s, %s' % (vr(V_HW), sr(S_T0), vr(t)))
su('v_lshlrev_b32 %s, 4, %s' % (vr(t), vr(V_Q)))
su('v_lshl_add_u32 %s, %s, 6, %s' % (vr(t), vr(V_N), vr(t)))
su('s_mul_i32 %s, %s, 6144' % (sr(S_T0), sr(S_WAVE)), 's_add_u32 %s, %s, %d' % (sr(S_T0), sr(S_T0), 5 * BLK),
   'v_add_u32 %s, %s, %s' % (vr(V_HR), sr(S_T0), vr(t)))
a.extend(su)
put(t, t2, t3)
a('s_lshl_b32 %s, %s, 7' % (sr(S_T1), sr(S_CG)))
a('v_lshl_add_u32 %s, %s, 3, %s' % (vr(dad), vr(V_N), sr(S_T1)))
stamp(a, 'setup')


def b_read(s, kp):
    s.wait(btk[kp])
    tk = None
    for h in range(2):
        for mat in range(2):
            tk = s.mem('ds_read_b128 %s, %s offset:%d' % (ar(WB(kp, h, mat), 4), vr(V_FB + h), (kp % 3) * 4096 + mat * 2048))
    return tk


class KVm:
    pass


def kv_dma(s, kv):
    kv.SHK = V.get(4, top=True)
    t, t2, kh = V.get(), V.get(), V.get()
    s('s_cmp_lt_u32 %s, 6' % sr(S_CG),
      's_cselect_b32 %s, %d, 0' % (sr(R_K + 2), 2048 * 1152),
      's_mov_b32 %s, %s' % (sr(R_V + 2), sr(R_K + 2)),
      's_mov_b32 %s, %s' % (sr(R_K), sr(P_K)), 's_and_b32 %s, %s, 0xffff' % (sr(R_K + 1), sr(P_K + 1)),
      's_mov_b32 %s, 0x20000' % sr(R_K + 3))
    s('s_mov_b32 %s, %s' % (sr(R_V), sr(P_V)), 's_and_b32 %s, %s, 0xffff' % (sr(R_V + 1), sr(P_V + 1)),
      's_mov_b32 %s, 0x20000' % sr(R_V + 3))
    s('v_lshrrev_b32 %s, 3, %s' % (vr(t), vr(V_LANE)))
    s('v_mul_u32_u24 %s, 1152, %s' % (vr(t2), vr(t)))
    s('v_and_b32 %s, 7, %s' % (vr(t), vr(V_LANE)))
    s('v_lshl_add_u32 %s, %s, 4, %s' % (vr(t2), vr(t), vr(t2)))
    s('s_lshl_b32 %s, %s, 7' % (sr(S_T1), sr(S_PT)),
      'v_lshl_add_u32 %s, %s, 4, %s' % (vr(t), vr(t), sr(S_T1)),
      'global_load_dwordx4 %s, %s, %s' % (vr(kv.SHK, 4), vr(t), sr(P_SHK, 2)))
    s('s_mul_i32 %s, %s, %d' % (sr(S_T0), sr(S_RB), 96 * 1152),
      's_lshl_b32 %s, %s, 7' % (sr(S_T1), sr(S_CG)),
      's_add_u32 %s, %s, %s' % (sr(S_T0), sr(S_T0), sr(S_T1)),
      's_sub_u32 %s, %s, %d' % (sr(S_T1), sr(S_T0), 8 * 1152),
      'v_add_u32 %s, %s, %s' % (vr(kh), sr(S_T1), vr(t2)),
      's_mul_i32 %s, %s, %d' % (sr(S_T1), sr(S_WAVE), 8 * 1152),
      's_add_u32 %s, %s, %s' % (sr(S_T0), sr(S_T0), sr(S_T1)),
      'v_add_u32 %s, %s, %s' % (vr(t2), sr(S_T0), vr(t2)))
    s('s_mov_b32 m0, %d' % L_HALO)
    s('buffer_load_dwordx4 %s, %s, 0 offen nt lds' % (vr(kh), sr(R_K, 4)))
    for u in range(3):
        for base, rr in ((L_KRAW, R_K), (L_VRAW, R_V)):
            s('s_add_u32 m0, %s, %d' % (sr(S_W1K), base + u * 4096))
            kv.tok = s.mem('s_mov_b32 %s, %d' % (sr(S_T2), u * 32 * 1152),
                           'buffer_load_dwordx4 %s, %s, %s offen nt lds' % (vr(t2), sr(rr, 4), sr(S_T2)))
    kv.rel = [t, t2, kh]


def kv_core(kc, ntp, krow, vrow, SHK, emit_unit, touch=None):
    W, KU, P = V.get(8), V.get(16), V.get(16)
    S4 = V.get(4, 1)
    OU = V.get(8)
    ONE2 = V.get()
    kc('v_mov_b32 %s, 0x3f803f80' % vr(ONE2))
    kc('v_mov_b32 %s, %s' % (vr(OU + 3), vr(V_TAG)))
    kc('v_mov_b32 %s, %s' % (vr(OU + 7), vr(V_TAG)))
    for j in range(4):
        for ch in range(2):
            src = SHK + 2 * ch + (j >> 1)
            kc(('v_and_b32 %s, 0xffff0000, %s' if j & 1 else 'v_lshlrev_b32 %s, 16, %s') % (vr(W + 2 * j + ch), vr(src)))
    ku = lambda r: KU + 2 * ((r + 3) % 8)

    def unpack_k(r):
        kc('v_lshlrev_b32 %s, 16, %s' % (vr(ku(r)), vr(krow(r))))
        kc('v_and_b32 %s, 0xffff0000, %s' % (vr(ku(r) + 1), vr(krow(r))))

    for r in (-3, -2, -1):
        unpack_k(r)
    for tp in range(ntp):
        if touch is not None:
            touch(tp)
        for tt in range(2):
            unpack_k(2 * tp + tt)
        for tt in range(2):
            for j in range(4):
                kc('v_pk_mul_f32 %s, %s, %s' % (vr(P + tt * 8 + 2 * j, 2), vr(ku(2 * tp + tt - j), 2), vr(W + 2 * j, 2)))
        idx = [(tt, ch) for tt in range(2) for ch in range(2)]
        for step in range(3):
            for u, (tt, ch) in enumerate(idx):
                first = vr(P + tt * 8 + 6 + ch) if step == 0 else vr(S4 + u)
                kc('v_cvt_pk_bf16_f32 %s, %s, %s' % (vr(S4 + u), first, vr(P + tt * 8 + 2 * (2 - step) + ch)))
            for u in range(4):
                kc('v_dot2_f32_bf16 %s, %s, %s, 0' % (vr(S4 + u), vr(S4 + u), vr(ONE2)))
        for u, (tt, ch) in enumerate(idx):
            kc('v_cvt_pk_bf16_f32 %s, %s, %s' % (vr(S4 + u), vr(S4 + u) if ch == 0 else '0', '0' if ch == 0 else vr(S4 + u)))
        for u, (tt, ch) in enumerate(idx):
            kc('v_dot2_f32_bf16 %s, %s, %s, 0' % (vr(S4 + u), vr(S4 + u), vr(vrow(2 * tp + tt))))
        pos = ntp - 1 - tp
        for ch in range(2):
            kc('v_cvt_pk_bf16_f32 %s, %s, %s' % (vr(OU + 4 * ch + pos % 3), vr(S4 + 2 + ch), vr(S4 + ch)))
        if pos % 3 == 0:
            for ch in range(2):
                emit_unit(ch, pos // 3, OU + 4 * ch)
    put((W, 8), (KU, 16), (P, 16), (S4, 4), (OU, 8), ONE2)


def kv_main(s, kv, ks):
    ka, kb, kh, t, t2 = [V.get() for _ in range(5)]
    s('v_lshrrev_b32 %s, 3, %s' % (vr(t), vr(V_LANE)))
    s('v_and_b32 %s, 7, %s' % (vr(t2), vr(V_LANE)))
    s('s_lshl_b32 %s, %s, 5' % (sr(S_T0), sr(S_WAVE)),
      'v_lshl_add_u32 %s, %s, 2, %s' % (vr(kh), vr(t2), sr(S_T0)))
    s('v_mul_u32_u24 %s, 1536, %s' % (vr(ka), vr(t)))
    s('v_add_u32 %s, %s, %s' % (vr(ka), vr(ka), vr(kh)))
    s('v_add_u32 %s, 128, %s' % (vr(kb), vr(ka)))
    s('v_add_u32 %s, %d, %s' % (vr(kh), L_HALO + 5 * 128, vr(kh)))
    s('v_subrev_u32 %s, 384, %s' % (vr(t2), vr(ka)))
    s('v_cmp_eq_u32 vcc, 0, %s' % vr(t), 'v_cndmask_b32 %s, %s, %s, vcc' % (vr(kh), vr(t2), vr(kh)))
    KR, VR = V.get(16, 2), V.get(12, 2)
    ridx = lambda r: (r >> 2) * 4 + (r & 1) * 2 + ((r >> 1) & 1)
    krow = lambda r: KR + 3 + r if r < 0 else KR + 4 + ridx(r)
    vrow = lambda r: VR + ridx(r)
    s.wait(kv.tok)
    s('s_barrier')
    s('ds_read2_b32 %s, %s offset0:0 offset1:32' % (vr(KR, 2), vr(kh)))
    s('ds_read_b32 %s, %s offset:256' % (vr(KR + 2), vr(kh)))
    for g in range(3):
        for par in range(2):
            s('ds_read2st64_b32 %s, %s offset0:%d offset1:%d' % (vr(KR + 4 + g * 4 + par * 2, 2), vr(kb if par else ka), 2 * g, 2 * g + 1))
        for par in range(2):
            s('ds_read2st64_b32 %s, %s offset0:%d offset1:%d' % (vr(VR + g * 4 + par * 2, 2), vr(kb if par else ka), 48 + 2 * g, 48 + 2 * g + 1))
    s('v_and_b32 %s, 7, %s' % (vr(t2), vr(V_LANE)))
    s('v_sub_u32 %s, 7, %s' % (vr(t), vr(t)))
    s('v_lshlrev_b32 %s, 5, %s' % (vr(t), vr(t)))
    s('v_mul_u32_u24 %s, 528, %s' % (vr(t2), vr(t2)))
    s('s_mul_i32 %s, %s, 4224' % (sr(S_T0), sr(S_WAVE)),
      'v_add3_u32 %s, %s, %s, %s' % (vr(t), vr(t), vr(t2), sr(S_T0)),
      'v_lshrrev_b32 %s, 5, %s' % (vr(t2), vr(V_LANE)),
      'v_lshlrev_b32 %s, 4, %s' % (vr(t2), vr(t2)),
      'v_add3_u32 %s, %s, %s, %s' % (vr(t2), vr(t2), vr(V_L16), sr(S_T0)))
    kv_core(s, 6, krow, vrow, kv.SHK,
            lambda ch, un, reg: s('ds_write_b128 %s, %s offset:%d' % (vr(t), vr(reg, 4), L_KVO + ch * 256 + un * 16)))
    put((KR, 16), (VR, 12), (kv.SHK, 4))
    D = V.get(16)
    for i in range(4):
        s('ds_read_b128 %s, %s offset:%d' % (vr(D + 4 * i, 4), vr(t2), L_KVO + i * 1056))
    s('v_mul_u32_u24 %s, %d, %s' % (vr(ka), KVT_STR, vr(V_Q)))
    s('v_lshl_add_u32 %s, %s, 4, %s' % (vr(ka), vr(V_N), vr(ka)))
    s('s_mul_i32 %s, %s, %d' % (sr(S_T0), sr(S_PT), 16 * KVT_STR),
      's_lshl_b32 %s, %s, 8' % (sr(S_T1), sr(S_RB)),
      's_sub_u32 %s, %s, %s' % (sr(S_T0), sr(S_T0), sr(S_T1)),
      's_add_u32 %s, %s, %d' % (sr(S_T0), sr(S_T0), WS_KVT + 21 * 256),
      's_cmp_lt_u32 %s, 6' % sr(S_CG),
      's_cselect_b32 %s, %s, 0x40000000' % (sr(S_T0), sr(S_T0)),
      'v_add_u32 %s, %s, %s' % (vr(ka), sr(S_T0), vr(ka)))
    for i in range(4):
        ks('s_mov_b32 %s, %d' % (sr(S_T1), 4 * i * KVT_STR),
           'buffer_store_dwordx4 %s, %s, %s, %s offen sc1' % (vr(D + 4 * i, 4), vr(ka), sr(R_WS, 4), sr(S_T1)))
    ks('s_nop 1')
    put((D, 16), ka, kb, kh, t, t2)


def stats_partial(s, X, S, Q, i, d, pk):
    x = X + 4 * i
    if pk:
        s('v_pk_add_f32 %s, %s, %s' % (vr(d, 2), vr(x, 2), vr(x + 2, 2)),
          'v_pk_mul_f32 %s, %s, %s' % (vr(d + 2, 2), vr(x, 2), vr(x, 2)),
          'v_add_f32 %s, %s, %s' % (vr(S + i), vr(d), vr(d + 1)),
          'v_pk_fma_f32 %s, %s, %s, %s' % (vr(d + 2, 2), vr(x + 2, 2), vr(x + 2, 2), vr(d + 2, 2)),
          'v_add_f32 %s, %s, %s' % (vr(Q + i), vr(d + 2), vr(d + 3)))
    else:
        s('v_add_f32 %s, %s, %s' % (vr(S + i), vr(x), vr(x + 1)))
        s('v_mul_f32 %s, %s, %s' % (vr(Q + i), vr(x), vr(x)))
        s('v_add_f32 %s, %s, %s' % (vr(S + i), vr(S + i), vr(x + 2)))
        s('v_fmac_f32 %s, %s, %s' % (vr(Q + i), vr(x + 1), vr(x + 1)))
        s('v_add_f32 %s, %s, %s' % (vr(S + i), vr(S + i), vr(x + 3)))
        s('v_fmac_f32 %s, %s, %s' % (vr(Q + i), vr(x + 2), vr(x + 2)))
        s('v_fmac_f32 %s, %s, %s' % (vr(Q + i), vr(x + 3), vr(x + 3)))


def stats_publish(s, X, which, fast, pk=True, SQ=None, tiles=range(MT)):
    if SQ is None:
        S, Q = V.get(6, 1), V.get(6, 1)
    else:
        S, Q = SQ
    d = V.get(4)
    for i in tiles:
        stats_partial(s, X, S, Q, i, d, pk)
    s('v_add_u32 %s, %d, %s' % (vr(d + 1), 16 * which, vr(V_TAG)))
    if which == 0:
        s('v_add_u32 %s, %s, %s' % (vr(d + 3), sr(S_XCC), vr(V_TAG)))
    else:
        s('v_add_u32 %s, %d, %s' % (vr(d + 3), 16 * which, vr(V_TAG)))
    rs12(s, [S + i for i in range(6)], [Q + i for i in range(6)])
    s('v_cndmask_b32 %s, %s, %s, %s' % (vr(d), vr(S), vr(S + 2), sr(S_MSEL, 2)))
    s('v_cndmask_b32 %s, %s, %s, %s' % (vr(d + 2), vr(Q), vr(Q + 2), sr(S_MSEL, 2)))
    txt = ['s_mov_b32 %s, %d' % (sr(S_T0), WS_ST + (which == 2) * ST_SZ),
           'buffer_store_dwordx4 %s, %s, %s, %s offen {P}' % (vr(d, 4), vr(V_STW), sr(R_WS, 4), sr(S_T0)), 's_nop 1']
    if fast:
        dual(s, txt)
    else:
        s(*[x.replace('{P}', 'sc1') for x in txt])
    put((S, 6), (Q, 6), (d, 4))


def stats_loads(which, G):
    L = []
    for i in range(MT):
        L.append('s_mov_b32 %s, %d' % (sr(S_T0), WS_ST + (which == 2) * ST_SZ + 4096 * i))
        L.append('buffer_load_dwordx4 %s, %s, %s, %s offen sc1' % (vr(G + 4 * i, 4), vr(V_STR), sr(R_WS, 4), sr(S_T0)))
    return L


def stats_exp(s, which):
    e = V.get()
    s('v_add_u32 %s, %d, %s' % (vr(e), 16 * which, vr(V_TAG)),
      'v_cmp_gt_u32 vcc, 9, %s' % vr(V_N),
      'v_cndmask_b32 %s, 0, %s, vcc' % (vr(e), vr(e)))
    return e


def stats_finish(s, G):
    rs12(s, [G + 4 * i for i in range(6)], [G + 4 * i + 2 for i in range(6)])
    P = V.get(4, top=True)
    for k, src in ((0, G), (1, G + 8)):
        s('v_mul_f32 %s, 0x3ae38e39, %s' % (vr(P + 2 * k), vr(src)))
        s('v_mul_f32 %s, 0x3ae38e39, %s' % (vr(P + 2 * k + 1), vr(src + 2)))
    for k in range(2):
        s('v_fma_f32 %s, -%s, %s, %s' % (vr(P + 2 * k + 1), vr(P + 2 * k), vr(P + 2 * k), vr(P + 2 * k + 1)))
    for k in range(2):
        s('v_max_f32 %s, 0, %s' % (vr(P + 2 * k + 1), vr(P + 2 * k + 1)))
    return P


def bcast(s, dst, P, i):
    k, lane = tile_src(i)
    s('v_mov_b64_dpp %s, %s row_newbcast:%d row_mask:0xf bank_mask:0xf' % (vr(dst, 2), vr(P + 2 * k, 2), lane))


def ln_table(s, layer, G, RBG):
    P = stats_finish(s, G)
    put((G, 24))
    mu = [P, P + 2]
    va = [P + 1, P + 3]
    if layer == 0:
        rbf(s, mu + va)
        for r in va:
            s('v_add_f32 %s, 0x3727c5ac, %s' % (vr(r), vr(r)))
        rbf(s, va)
        for r in va:
            s('v_sqrt_f32 %s, %s' % (vr(r), vr(r)))
        rbf(s, va)
        for r in va:
            s('v_rcp_f32 %s, %s' % (vr(r), vr(r)))
        s('v_mov_b32 %s, %s' % (vr(OFF), vr(mu[0])), 'v_mov_b32 %s, %s' % (vr(OFF + 1), vr(mu[1])))
    else:
        for r in va:
            s('v_add_f32 %s, 0x3727c5ac, %s' % (vr(r), vr(r)))
        for r in va:
            s('v_rsq_f32 %s, %s' % (vr(r), vr(r)))
        s('v_add_f32 %s, %s, %s' % (vr(OFF), vr(OFF), vr(mu[0])), 'v_add_f32 %s, %s, %s' % (vr(OFF + 1), vr(OFF + 1), vr(mu[1])))
    with V.borrow(*HOMES):
        d = V.get(2)
    s('v_cndmask_b32 %s, %s, %s, %s' % (vr(d), vr(va[0]), vr(va[1]), sr(S_MSEL, 2)))
    s('v_cndmask_b32 %s, %s, %s, %s' % (vr(d + 1), vr(mu[0]), vr(mu[1]), sr(S_MSEL, 2)))
    s('v_mul_f32 %s, %s, %s' % (vr(d + 1), vr(d + 1), vr(d)))
    tk = s.mem('s_mov_b64 exec, %s' % sr(S_MACT, 2),
               'ds_write2_b32 %s, %s, %s offset0:0 offset1:2' % (vr(V_TABW), vr(d), vr(d + 1)),
               's_mov_b64 exec, -1')
    put((d, 2))
    return tk, P


def ln_rest(r, layer, P):
    b = V.get(2)
    tmp = V.get(4)
    for i in range(MT):
        x = BASE + 4 * i
        bcast(r, b, P, i)
        for k in range(2):
            r('v_pk_add_f32 %s, %s, %s op_sel:[0,0] op_sel_hi:[1,0] neg_lo:[0,1] neg_hi:[0,1]' % (vr(x + 2 * k, 2), vr(x + 2 * k, 2), vr(b, 2)))
        if layer == 0:
            for k in range(2):
                r('v_cvt_pk_bf16_f32 %s, %s, %s' % (vr(tmp + 2 * k), vr(x + 2 * k), vr(x + 2 * k + 1)))
            for rep in range(3):
                for k in range(2):
                    r('v_and_b32 %s, 0xffff0000, %s' % (vr(tmp + 2 * k + 1), vr(tmp + 2 * k)),
                      'v_lshlrev_b32 %s, 16, %s' % (vr(tmp + 2 * k), vr(tmp + 2 * k)))
                for k in range(2):
                    if rep == 0:
                        r('v_pk_mul_f32 %s, %s, %s op_sel:[0,1] op_sel_hi:[1,1]' % (vr(tmp + 2 * k, 2), vr(tmp + 2 * k, 2), vr(b, 2)))
                    elif rep == 1:
                        r('v_pk_mul_f32 %s, %s, %s' % (vr(tmp + 2 * k, 2), vr(tmp + 2 * k, 2), vr(V_DSK + 2 * k, 2)))
                    else:
                        r('v_pk_add_f32 %s, %s, %s' % (vr(x + 2 * k, 2), vr(x + 2 * k, 2), vr(tmp + 2 * k, 2)))
                if rep < 2:
                    for k in range(2):
                        r('v_cvt_pk_bf16_f32 %s, %s, %s' % (vr(tmp + 2 * k), vr(tmp + 2 * k), vr(tmp + 2 * k + 1)))
        else:
            for k in range(2):
                r('v_pk_fma_f32 %s, %s, %s, 1.0 op_sel:[0,1,0] op_sel_hi:[1,1,0]' % (vr(tmp + 2 * k, 2), vr(V_DSK + 2 * k, 2), vr(b, 2)))
            for k in range(2):
                r('v_pk_mul_f32 %s, %s, %s' % (vr(x + 2 * k, 2), vr(x + 2 * k, 2), vr(tmp + 2 * k, 2)))
    put((P, 4), (b, 2), (tmp, 4))


def a_reads(k, AF):
    s = Stream()
    kp, h = k >> 1, k & 1
    base = V_FA + h + (2 if kp >= 4 else 0)
    off = (kp - (4 if kp >= 4 else 0)) * BLK
    for i in range(MT):
        s('ds_read_b128 %s, %s offset:%d' % (vr(AF + (k & 1) * 24 + i * 4, 4), vr(base), off + i * 2048))
    return s


def b_mfmas(k, ACC, AF, ones=None):
    s = Stream()
    kp, h = k >> 1, k & 1
    if ones is not None:
        for mat in range(2):
            s('v_mfma_f32_16x16x32_bf16 %s, %s, %s, %s' % (vr(ones[1] + mat * 4, 4), vr(ones[0], 4), ar(WB(kp, h, mat), 4),
                                                          '0' if k == 0 else vr(ones[1] + mat * 4, 4)))
    for i in range(MT):
        if i % 3 == 0:
            s.touch(vr(AF + (k & 1) * 24 + i * 4, 12))
        for mat in range(2):
            d = ACC + (mat * MT + i) * 4
            s('v_mfma_f32_16x16x32_bf16 %s, %s, %s, %s' % (vr(d, 4), vr(AF + (k & 1) * 24 + i * 4, 4), ar(WB(kp, h, mat), 4),
                                                          '0' if k == 0 else vr(d, 4)))
    return s


def split(stream, n):
    g = stream.groups
    parts = []
    for i in range(n):
        p = Stream()
        p.groups = g[len(g) * i // n: len(g) * (i + 1) // n]
        parts.append(p)
    return parts


def ensure(sc, tok):
    for q in sc.sides:
        idx = [i for i, g in enumerate(q) if any((not isinstance(it, tuple)) and it.tok is tok for it in g)]
        if idx:
            for _ in range(idx[0] + 1):
                sc._emit(q.pop(0))


def gemm_b(a, ACC, AF, xtok, pre, side, ones=None, vm=None, need=None):
    sc = Sched(a)
    qr, qv, qs = sc.add(Stream()), sc.add(Stream()), sc.add(Stream())
    b = Stream()
    b.wait(xtok(0))
    b('s_barrier')
    b.extend(a_reads(0, AF))
    sc.run(b)
    for k in range(18):
        sc.flush(qr)
        if k == 7:
            print('side leftover at k', k, len(qs))
            sc.flush(qs)
        if need is not None:
            for tk in need.get(k, []):
                ensure(sc, tk)
        if pre[k].groups:
            sc.flush()
            sc.run(pre[k])
        b = Stream()
        if k & 1 and k < 17:
            ensure(sc, xtok((k + 1) >> 1))
            b.wait(xtok((k + 1) >> 1))
            b('s_barrier')
            sides, sc.sides = sc.sides, []
            sc.run(b)
            sc.sides = sides
        if k < 17:
            qr.extend(a_reads(k + 1, AF).groups)
        if vm is not None:
            qv.extend(vm[k].groups)
        qs.extend(side[k].groups)
        sc.run(b_mfmas(k, ACC, AF, ones))
        if OPT['fine'] and k % 3 == 2:
            stamp(a, 'k%d' % k)
    print('gemm_b leftover', sc.pending(), 'model time', sc.t)
    sc.flush()


class Conv:
    pass


def conv_setup_k(s, cv, keep=False):
    s('s_lshl1_add_u32 %s, %s, %s' % (sr(S_T0), sr(S_PAIR), sr(S_B)),
      's_lshl_b32 %s, %s, 12' % (sr(S_T1), sr(S_T0)),
      's_add_u32 %s, %s, %s' % (sr(R_SK), sr(P_SSK), sr(S_T1)),
      's_addc_u32 %s, %s, 0' % (sr(R_SK + 1), sr(P_SSK + 1)),
      's_and_b32 %s, %s, 0xffff' % (sr(R_SK + 1), sr(R_SK + 1)),
      's_mov_b32 %s, 4096' % sr(R_SK + 2),
      's_mov_b32 %s, 0x20000' % sr(R_SK + 3))
    cv.SD = V.get(2, top=True)
    cv.HD = V.get(top=True)
    s('s_lshl_b32 %s, %s, 2' % (sr(S_T1), sr(S_PAIR)),
      'v_mov_b32 %s, %s' % (vr(cv.SD), sr(S_T1)),
      'global_load_dword %s, %s, %s' % (vr(cv.SD), vr(cv.SD), sr(P_SSD, 2)))
    s('v_add_u32 %s, %s, %s' % (vr(cv.HD), vr(V_N), vr(V_Q)),
      'v_subrev_u32 %s, 16, %s' % (vr(cv.HD), vr(cv.HD)),
      'v_lshlrev_b32 %s, 2, %s' % (vr(cv.HD), vr(cv.HD)),
      'buffer_load_dword %s, %s, %s, 0 offen' % (vr(cv.HD), vr(cv.HD), sr(R_SK, 4)))
    for c in range(2):
        g = ['s_mul_i32 %s, %s, %d' % (sr(S_T2), sr(S_B), KC_CH),
             's_mul_i32 %s, %s, %d' % (sr(S_T3), sr(S_A), (16 + 8320) if c == 0 else 8320),
             's_add_u32 %s, %s, %s' % (sr(S_T3), sr(S_T3), sr(S_T2)),
             's_add_u32 m0, %s, %d' % (sr(S_T3), L_KC + 64 + (0 if c == 0 else 16 + 4160)),
             's_lshl_b32 %s, %s, 3' % (sr(S_T1), sr(S_A)),
             's_add_u32 %s, %s, %d' % (sr(S_T1), sr(S_T1), 4 * c)]
        for part in range(4):
            g.append('buffer_load_dwordx4 %s, %s, %s offen offset:%d nt lds' % (vr(V_L16), sr(R_SK, 4), sr(S_T1), part * 1024))
        cv.ktk = s.mem(*g)


def conv_u_prep(s, cv):
    cv.UA = V.get(2, 1, top=True)
    cv.UE = V.get(top=True)
    cv.UN = V.get(top=True)
    cv.U = V.get(16, top=True)
    U, UA, UE = cv.U, cv.UA, cv.UE
    s('s_lshl1_add_u32 %s, %s, %s' % (sr(S_T0), sr(S_PAIR), sr(S_B)),
      's_mul_i32 %s, %s, %d' % (sr(S_T1), sr(S_T0), KVT_STR),
      's_mul_i32 %s, %s, %d' % (sr(S_T3), sr(S_A), 171 * 16),
      's_add_u32 %s, %s, %s' % (sr(S_T1), sr(S_T1), sr(S_T3)),
      's_add_u32 %s, %s, %d' % (sr(S_T1), sr(S_T1), WS_KVT + 10 * 16),
      'v_add_u32 %s, %s, %s' % (vr(UA), sr(S_T1), vr(V_L16)))
    s('s_sub_u32 %s, 44, %s' % (sr(S_T0), sr(S_A)),
      'v_cmp_gt_u32 vcc, %s, %s' % (sr(S_T0), vr(V_LANE)),
      'v_cndmask_b32 %s, %s, %s, vcc' % (vr(UA + 1), vr(V_OOB), vr(UA)),
      'v_cndmask_b32 %s, 0, %s, vcc' % (vr(UE), vr(V_TAG)))
    s('s_sub_u32 %s, 43, %s' % (sr(S_T0), sr(S_A)),
      'v_cmp_gt_u32 vcc, %s, %s' % (sr(S_T0), vr(V_LANE)),
      'v_cndmask_b32 %s, %s, %s, vcc' % (vr(cv.UN), vr(V_OOB), vr(UA)))
    cv.uloads = []
    for i in range(3):
        cv.uloads.append('buffer_load_dwordx4 %s, %s, %s, 0 offen offset:%d sc1' % (vr(U + 4 * i, 4), vr(UA + (i >> 1)), sr(R_WS, 4), 1024 * i))
    for i in range(3):
        cv.uloads.append('buffer_load_dword %s, %s, %s, 0 offen offset:%d sc1' % (vr(U + 12 + i), vr(UA if i < 2 else cv.UN), sr(R_WS, 4), 1024 * i + 16))
    cv.uchecks = [(U + 3, U + 7, V_TAG), (U + 11, None, UE)]


def conv_addr(s, cv):
    cv.ah, cv.az, cv.au, cv.vN, cv.vM = [V.get(top=True) for _ in range(5)]
    t, e = V.get(), V.get()
    ah, az, au, vN, vM = cv.ah, cv.az, cv.au, cv.vN, cv.vM
    s('v_mul_u32_u24 %s, 4160, %s' % (vr(ah), vr(V_Q)))
    s('v_min_u32 %s, 1, %s' % (vr(e), vr(V_Q)))
    s('v_lshl_add_u32 %s, %s, 4, %s' % (vr(ah), vr(e), vr(ah)))
    s('v_lshl_add_u32 %s, %s, 2, %s' % (vr(ah), vr(V_N), vr(ah)))
    s('s_mul_i32 %s, %s, %d' % (sr(S_T2), sr(S_B), KC_CH),
      's_add_u32 %s, %s, %d' % (sr(S_T3), sr(S_T2), L_KC),
      'v_add_u32 %s, %s, %s' % (vr(ah), sr(S_T3), vr(ah)))
    s('s_mul_i32 %s, %s, %d' % (sr(S_T2), sr(S_B), UC_CH),
      's_mul_i32 %s, %s, 4640' % (sr(S_T3), sr(S_A)),
      's_add_u32 %s, %s, %s' % (sr(S_T3), sr(S_T3), sr(S_T2)),
      'v_lshl_add_u32 %s, %s, 3, %s' % (vr(az), vr(V_LANE), sr(S_T3)))
    s('v_mul_u32_u24 %s, 12, %s' % (vr(au), vr(V_LANE)))
    s('s_mul_i32 %s, %s, %d' % (sr(S_T2), sr(S_B), UC_CH),
      's_mul_i32 %s, %s, %d' % (sr(S_T3), sr(S_A), 171 * 12),
      's_add_u32 %s, %s, %s' % (sr(S_T3), sr(S_T3), sr(S_T2)),
      'v_add_u32 %s, %s, %s' % (vr(au), sr(S_T3), vr(au)))
    s('v_add_u32 %s, 1, %s' % (vr(t), vr(V_N)))
    s('v_and_b32 %s, 3, %s' % (vr(e), vr(t)))
    s('v_mul_u32_u24 %s, 4160, %s' % (vr(vN), vr(e)))
    s('v_min_u32 %s, 1, %s' % (vr(e), vr(e)))
    s('v_lshrrev_b32 %s, 2, %s' % (vr(t), vr(t)))
    s('v_add3_u32 %s, %s, %s, %s' % (vr(t), vr(t), vr(e), vr(V_Q)))
    s('v_lshl_add_u32 %s, %s, 4, %s' % (vr(vN), vr(t), vr(vN)))
    s('s_mul_i32 %s, %s, %d' % (sr(S_T3), sr(S_B), KC_CH),
      's_lshl_b32 %s, %s, 8' % (sr(S_T1), sr(S_A)),
      's_add_u32 %s, %s, %s' % (sr(S_T3), sr(S_T3), sr(S_T1)),
      's_add_u32 %s, %s, %d' % (sr(S_T3), sr(S_T3), L_KC),
      'v_add_u32 %s, %s, %s' % (vr(vN), sr(S_T3), vr(vN)))
    s('v_and_b32 %s, 1, %s' % (vr(t), vr(V_N)))
    s('v_sub_u32 %s, 1, %s' % (vr(t), vr(t)))
    s('v_mul_u32_u24 %s, 4640, %s' % (vr(vM), vr(t)))
    s('v_lshrrev_b32 %s, 1, %s' % (vr(t), vr(V_N)))
    s('v_lshlrev_b32 %s, 6, %s' % (vr(t), vr(t)))
    s('v_sub_u32 %s, %s, %s' % (vr(vM), vr(vM), vr(t)))
    s('v_lshl_add_u32 %s, %s, 4, %s' % (vr(vM), vr(V_Q), vr(vM)))
    s('s_mul_i32 %s, %s, %d' % (sr(S_T2), sr(S_B), UC_CH),
      's_lshl_b32 %s, %s, 8' % (sr(S_T1), sr(S_A)),
      's_add_u32 %s, %s, %s' % (sr(S_T3), sr(S_T2), sr(S_T1)),
      's_add_u32 %s, %s, %d' % (sr(S_T3), sr(S_T3), L_UC + 448),
      'v_add_u32 %s, %s, %s' % (vr(vM), sr(S_T3), vr(vM)))
    return [t, e]


def conv_body(a, cv, side=None, pre_issued=True, early=None, release=True, last=None):
    U, HD = cv.U, cv.HD
    vN, vM = cv.vN, cv.vM
    a('ds_write_b32 %s, %s' % (vr(cv.ah), vr(HD)))
    a('ds_write_b64 %s, %s offset:%d' % (vr(cv.az), vr(V_ZERO, 2), L_UC + 4096))
    if early is not None:
        a.extend(early)
    poll(a, cv.uloads, cv.uchecks, pre_issued=pre_issued, sleep=OPT['slp2'] if pre_issued else OPT['slp'])
    a.touch(vr(U, 15))
    U1 = V.get(9, 1)
    for i in range(3):
        if i == 2:
            a('v_cmp_gt_u32 vcc, 43, %s' % vr(V_LANE), 's_mov_b64 exec, vcc')
        for k in range(3):
            a('ds_write_b32 %s, %s offset:%d' % (vr(cv.au), vr(U + 4 * i + k), L_UC - 8 + 768 * i + 4 * k))
            hi = U + 4 * i + k + 1 if k < 2 else U + 12 + i
            a('v_alignbit_b32 %s, %s, %s, 16' % (vr(U1 + 3 * i + k), vr(hi), vr(U + 4 * i + k)))
        for k in range(3):
            tk = a.mem('ds_write_b32 %s, %s offset:%d' % (vr(cv.au), vr(U1 + 3 * i + k), L_UC - 8 + 4640 + 768 * i + 4 * k))
    a('s_mov_b64 exec, -1')
    a.wait(tk, cv.ktk)
    a('s_barrier')
    put((U, 16), (U1, 9), HD, (cv.UA, 2), cv.UE, cv.UN)
    if release:
        put(cv.ah, cv.az, cv.au)
    stamp(a, 'conv_ld')
    if not pre_issued:
        astamp(a, 11)
    with V.borrow((GP, 12)):
        CA = [V.get(4) for _ in range(8)]
    FN, FM = [[V.get(4) for _ in range(8)] for _ in range(2)]
    AW = V.get(3, 1)
    t = V.get()
    rdN = lambda x, cc: 'ds_read_b128 %s, %s offset:%d' % (vr(FN[x], 4), vr(vN), 512 * x + 64 * cc)
    rdM = lambda x, cc: 'ds_read_b128 %s, %s offset:%d' % (vr(FM[x], 4), vr(vM), 512 * (7 - x) + 64 * cc)
    m = Stream()
    m(rdN(0, 0))
    for x in range(7, -1, -1):
        m(rdM(x, 0))
    m('v_lshlrev_b32 %s, 1, %s' % (vr(t), vr(V_N)))
    m('v_lshl_add_u32 %s, %s, 6, %s' % (vr(t), vr(V_Q), vr(t)))
    for j in range(3):
        m('v_add_u32 %s, %d, %s' % (vr(AW + j), j, vr(t)))
        m('v_mul_u32_u24 %s, 171, %s' % (vr(AW + j), vr(AW + j)))
        m('v_lshrrev_b32 %s, 9, %s' % (vr(AW + j), vr(AW + j)))
        m('v_add_u32 %s, %s, %s' % (vr(AW + j), vr(AW + j), vr(t)))
        m('s_mul_i32 %s, %s, %d' % (sr(S_T3), sr(S_WAVE), CO_W),
          'v_lshl_add_u32 %s, %s, 2, %s' % (vr(AW + j), vr(AW + j), sr(S_T3)))

    def stage(m, i):
        tk = None
        for r in range(4):
            c = 256 * i + 32 * (r >> 1) + (r & 1)
            tk = m.mem('ds_write_b32 %s, %s offset:%d' % (vr(AW + c % 3), vr(CA[i] + r), L_CO + 4 * (c + c // 3)))
        return tk

    for cc in range(4):
        if cc == 3:
            sc = Sched(a)
            sc.VM_GAP = 110
            if side is not None:
                qs_ = [sc.add(x) for x in side]
            sc.run(m)
            if side is not None:
                sc.flush(qs_[0])
            sc.VM_GAP = 30
            m = Stream()
            if last is not None:
                last(m, None)
        for aa in range(8):
            for dl in range(7 - aa, -1, -1):
                i = aa + dl
                z = cc == 0 and aa == 0
                m('v_mfma_f32_16x16x32_bf16 %s, %s, %s, %s' % (vr(CA[i], 4), vr(FM[dl], 4), vr(FN[aa], 4),
                                                              '0' if z else vr(CA[i], 4)))
                if cc == 0 and aa == 0 and dl > 0:
                    m(rdN(8 - dl, 0))
                if dl == 7 - aa:
                    if cc < 3:
                        m(rdM(dl, cc + 1))
                    elif last is not None:
                        last(m, FM[dl])
            if cc < 3:
                m(rdN(aa, cc + 1))
            else:
                if last is not None:
                    last(m, FN[aa])
                if 2 <= aa:
                    stage(m, aa - 2)
    stage(m, 6)
    cv.stk = stage(m, 7)
    sc.run(m)
    print('conv leftover', sc.pending(), 'model time', sc.t)
    sc.flush()
    put(*[(r, 4) for r in CA])
    if last is None:
        put(*[(r, 4) for r in FN + FM])
    put((AW, 3), t)
    if release:
        put(vN, vM)
    stamp(a, 'conv_mm')
    if not pre_issued:
        astamp(a, 12)


def conv_final(s, cv):
    SD = cv.SD
    ay, ak, ag = V.get(), V.get(), V.get()
    Y, KV, D = V.get(16), V.get(4), V.get(6, 1)
    GO = V.get(4)
    t = V.get()
    s('v_and_b32 %s, 0xffff0000, %s' % (vr(SD + 1), vr(SD)))
    s('v_lshlrev_b32 %s, 16, %s' % (vr(SD), vr(SD)))
    s('v_lshlrev_b32 %s, 4, v0' % vr(ay))
    s('v_mul_u32_u24 %s, 6, v0' % vr(ak))
    s('v_sub_u32 %s, %d, %s' % (vr(ak), 4090, vr(ak)))
    s('v_and_b32 %s, -4, %s' % (vr(ak), vr(ak)))
    s('v_and_b32 %s, 1, v0' % vr(t))
    s('v_sub_u32 %s, 1, %s' % (vr(t), vr(t)))
    s('v_mul_u32_u24 %s, 4640, %s' % (vr(t), vr(t)))
    s('v_add_u32 %s, %s, %s' % (vr(ak), vr(ak), vr(t)))
    s('s_mul_i32 %s, %s, %d' % (sr(S_T1), sr(S_PAIR), G_STR),
      's_add_u32 %s, %s, %d' % (sr(S_T1), sr(S_T1), WS_G),
      'v_add_u32 %s, %s, %s' % (vr(ag), sr(S_T1), vr(ay)))
    s('v_mov_b32 %s, %s' % (vr(GO + 3), vr(V_TAG)))
    for j in range(3):
        if j > 0:
            s('v_subrev_u32 %s, 1536, %s' % (vr(ak), vr(ak)))
            s('v_add_u32 %s, 4096, %s' % (vr(ag), vr(ag)))
        if j == 2:
            s('v_max_i32 %s, 0, %s' % (vr(ak), vr(ak)))
            s('v_cmp_gt_u32 vcc, 192, v0', 'v_cndmask_b32 %s, %s, %s, vcc' % (vr(ag), vr(V_OOB), vr(ag)))
        for ch in range(2):
            for k in range(2):
                s('ds_read_b32 %s, %s offset:%d' % (vr(KV + 2 * ch + k), vr(ak), L_UC + ch * UC_CH + 4 * k))
        for w in range(4):
            s('ds_read_b128 %s, %s offset:%d' % (vr(Y + 4 * w, 4), vr(ay), L_CO + w * CO_W + j * 4096))
        for ch in range(2):
            d = D + 3 * ch
            s('v_lshlrev_b32 %s, 16, %s' % (vr(d), vr(KV + 2 * ch + 1)))
            s('v_and_b32 %s, 0xffff0000, %s' % (vr(d + 1), vr(KV + 2 * ch)))
            s('v_lshlrev_b32 %s, 16, %s' % (vr(d + 2), vr(KV + 2 * ch)))
            for e in range(3):
                s('v_mul_f32 %s, %s, %s' % (vr(d + e), vr(d + e), vr(SD + ch)))
        for ch in range(2):
            d, y = D + 3 * ch, Y + 8 * ch
            for e in range(3):
                s('v_add_f32 %s, %s, %s' % (vr(y + e), vr(y + e), vr(y + 4 + e)))
            for e in range(3):
                s('v_cvt_pk_bf16_f32 %s, %s, %s' % (vr(d + e), vr(y + e), vr(d + e)))
            for e in range(3):
                s('v_lshlrev_b32 %s, 16, %s' % (vr(y + e), vr(d + e)))
                s('v_and_b32 %s, 0xffff0000, %s' % (vr(d + e), vr(d + e)))
                s('v_add_f32 %s, %s, %s' % (vr(d + e), vr(d + e), vr(y + e)))
        for e in range(3):
            s('v_cvt_pk_bf16_f32 %s, %s, %s' % (vr(GO + e), vr(D + e), vr(D + 3 + e)))
        s('buffer_store_dwordx4 %s, %s, %s, 0 offen sc1' % (vr(GO, 4), vr(ag), sr(R_WS, 4)))
    s('s_nop 1')
    return [ay, ak, ag, (Y, 16), (KV, 4), (D, 6), (GO, 4), t, (SD, 2)]


ACC = V.get(48, top=True)
AF = V.get(48, top=True)
with V.borrow((GP, 12)):
    ONES = V.get(4)
    RBA = V.get(8)
xtk[1] = x_dma(a, 1, 0)
a('global_load_dwordx2 %s, %s, %s' % (vr(V_DSK, 2), vr(dad), sr(P_DSK, 2)))
put(lad, dad)
tag_ready(a)
a('v_cmp_gt_u32 vcc, 9, %s' % vr(V_N), 'v_cndmask_b32 %s, 0, %s, vcc' % (vr(V_EXP9), vr(V_TAG)))
for i in range(4):
    a('v_mov_b32 %s, 0x3f803f80' % vr(ONES + i))
XS = V.get(12, 2, top=True)
lp = Stream()
lam_compute(lp, LAMT, False, LAM)
L2, L4, L8, L48, L72, L96, L192, L288 = [V.get(2) for _ in range(8)]
cmul(lp, L2, LAM, LAM)
cmul(lp, L4, L2, L2)
cmul(lp, L8, L4, L4)
cmul(lp, L12, L8, L4)
cmul(lp, L24, L12, L12)
cmul(lp, L48, L24, L24)
cmul(lp, L72, L48, L24)
cmul(lp, L96, L48, L48)
cmul(lp, L192, L96, L96)
cmul(lp, L288, L192, L96)
cmul(lp, L384, L192, L192)
for (dst, opts) in ((LQ96, (L96, L192, L288)), (LQ24, (L24, L48, L72))):
    lp('v_mov_b32 %s, 1.0' % vr(dst), 'v_mov_b32 %s, 0' % vr(dst + 1))
    for qi, o in enumerate(opts):
        lp('v_cmp_eq_u32 vcc, %d, %s' % (qi + 1, vr(V_Q)),
           'v_cndmask_b32 %s, %s, %s, vcc' % (vr(dst), vr(dst), vr(o)),
           'v_cndmask_b32 %s, %s, %s, vcc' % (vr(dst + 1), vr(dst + 1), vr(o + 1)))
for r in (L2, L4, L8, L48, L72, L96, L192, L288):
    put((r, 2))
V.free -= set(range(LAMT, LAMT + 4))
s0 = Stream()
s0.wait(xtk[0])
s0('s_barrier')
for i in range(MT):
    s0('ds_read_b64 %s, %s offset:%d' % (vr(XS + 2 * i, 2), vr(V_WA), 2048 * i))
for i in range(MT):
    for k in range(2):
        s0('v_lshlrev_b32 %s, 16, %s' % (vr(BASE + 4 * i + 2 * k), vr(XS + 2 * i + k)))
        s0('v_and_b32 %s, 0xffff0000, %s' % (vr(BASE + 4 * i + 2 * k + 1), vr(XS + 2 * i + k)))
with V.borrow(*HOMES):
    stats_publish(s0, BASE, 0, False)
s0.extend(lp)
s0('v_and_b32 %s, 0xffff0000, %s' % (vr(V_DSK + 3), vr(V_DSK + 1)))
s0('v_lshlrev_b32 %s, 16, %s' % (vr(V_DSK + 2), vr(V_DSK + 1)))
s0('v_and_b32 %s, 0xffff0000, %s' % (vr(V_DSK + 1), vr(V_DSK)))
s0('v_lshlrev_b32 %s, 16, %s' % (vr(V_DSK), vr(V_DSK)))
d1 = Stream()
xtk[2] = x_dma(d1, 2, 0)
btk[2] = b_dma(d1, 2)
xtk[3] = x_dma(d1, 3, 0)
rt = b_read(d1, 0)
xtk[4] = x_dma(d1, 4, 0)
d1.wait(rt)
btk[3] = b_dma(d1, 3)
rt = b_read(d1, 1)
xtk[5] = x_dma(d1, 5, 0)
d1.wait(rt)
btk[4] = b_dma(d1, 4)
a.weave(s0, d1)
stamp(a, 'lam')
put((V_DUMMY, 4), (LAMT, 4))
pre = {k: Stream() for k in range(18)}
side = {k: Stream() for k in range(18)}


class Pace:
    def __init__(self, per=3):
        self.vm = {k: Stream() for k in range(18)}
        self.k, self.n, self.per = 0, 0, per

    def add(self, st, earliest=0):
        if self.k < earliest:
            self.k, self.n = earliest, 0
        for g in st.groups:
            if self.n >= self.per:
                self.k, self.n = self.k + 1, 0
            self.vm[self.k].groups.append(g)
            self.n += sum(1 for it in g if not isinstance(it, tuple) and it.kind == 'vmem')
        return self.k


pc = Pace(OPT['per'])
need = {}
for blk in range(5, 9):
    st = Stream()
    rt = b_read(st, blk - 3)
    need[2 * (blk - 3)] = [rt]
    if blk < 8:
        xtk[blk + 1] = x_dma(st, blk + 1, 0)
    st.wait(rt)
    btk[blk] = b_dma(st, blk)
    kk = pc.add(st)
    print('block', blk, 'issued by k', kk)
cv = Conv()
cfa, cfe, cfv = V.get(top=True), V.get(top=True), V.get(top=True)
side[0]('s_mul_i32 %s, %s, 43' % (sr(S_T1), sr(S_CG)),
         's_lshr_b32 %s, %s, 5' % (sr(S_T1), sr(S_T1)),
         's_mul_i32 %s, %s, %d' % (sr(S_T1), sr(S_T1), 18 * 64),
         's_add_u32 %s, %s, %d' % (sr(S_T1), sr(S_T1), WS_CPF),
         'v_lshl_add_u32 %s, %s, 6, %s' % (vr(cfa), vr(V_LANE), sr(S_T1)))
side[0]('v_cmp_gt_u32 vcc, 36, %s' % vr(V_LANE),
         'v_cndmask_b32 %s, %s, %s, vcc' % (vr(cfa), vr(V_OOB), vr(cfa)),
         'v_cndmask_b32 %s, 0, %s, vcc' % (vr(cfe), vr(V_TAG)))
cfl = 'buffer_load_dword %s, %s, %s, 0 offen sc1' % (vr(cfv), vr(cfa), sr(R_WS, 4))
side[0]('s_mul_i32 %s, %s, %d' % (sr(S_T0), sr(S_PT), 37 * 1024),
        's_add_u32 %s, %s, %d' % (sr(S_CPB), sr(S_T0), WS_CP))
ca_ = Stream()
carel = conv_addr(ca_, cv)
side[0].extend(ca_)
stt = Stream()
stt(cfl)
ta = carel[0]
stt('v_lshrrev_b32 %s, 3, %s' % (vr(ta), vr(V_LANE)),
    'v_mul_u32_u24 %s, %d, %s' % (vr(ta), 36864 - 1024, vr(ta)),
    'v_lshl_add_u32 %s, %s, 7, %s' % (vr(ta), vr(V_LANE), vr(ta)),
    'v_cmp_gt_u32 vcc, 48, %s' % vr(V_LANE),
    'v_cndmask_b32 %s, %s, %s, vcc' % (vr(ta), vr(V_OOB), vr(ta)))
stt('s_mul_i32 %s, %s, 216' % (sr(S_T2), sr(S_RB)),
    's_add_u32 %s, %s, %s' % (sr(S_T2), sr(S_T2), sr(S_PT)),
    's_lshl_b32 %s, %s, 10' % (sr(S_T2), sr(S_T2)),
    's_add_u32 %s, %s, %d' % (sr(S_T2), sr(S_T2), WS_H),
    'buffer_load_dword %s, %s, %s, %s offen sc1 ;junk' % (vr(V_JUNK), vr(ta), sr(R_WS, 4), sr(S_T2)))
stt('s_mov_b32 %s, %d' % (sr(S_T2), WS_ST + ST_SZ),
    'buffer_load_dword %s, %s, %s, %s offen sc1 ;junk' % (vr(V_JUNK), vr(V_STW), sr(R_WS, 4), sr(S_T2)))
stt('v_lshrrev_b32 %s, 1, %s' % (vr(ta), vr(V_LANE)),
    'v_min_u32 %s, 2, %s' % (vr(ta), vr(ta)),
    'v_mul_u32_u24 %s, %d, %s' % (vr(ta), NRB * 256, vr(ta)),
    'v_and_b32 %s, 1, %s' % (vr(carel[1]), vr(V_LANE)),
    'v_lshl_add_u32 %s, %s, 7, %s' % (vr(ta), vr(carel[1]), vr(ta)),
    's_lshl_b32 %s, %s, 8' % (sr(S_T2), sr(S_RB)),
    's_add_u32 %s, %s, %d' % (sr(S_T2), sr(S_T2), WS_HF),
    'buffer_load_dword %s, %s, %s, %s offen sc1 ;junk' % (vr(V_JUNK), vr(ta), sr(R_WS, 4), sr(S_T2)))
with V.borrow(*HOMES):
    G0 = V.get(24)
xe = V.get()
side[0]('v_add_u32 %s, %s, %s' % (vr(xe), sr(S_XCC), vr(V_TAG)),
        'v_cmp_gt_u32 vcc, 9, %s' % vr(V_N),
        'v_cndmask_b32 %s, 0, %s, vcc' % (vr(xe), vr(xe)))
gl = stats_loads(0, G0)
st = Stream()
for i in range(0, 12, 2):
    st(gl[i], gl[i + 1])
print('gather by k', pc.add(st, 7))
kvm = KVm()
st = Stream()
with V.borrow(*HOMES):
    kv_dma(st, kvm)
print('kv dma by k', pc.add(st, 7))
print('touch by k', pc.add(stt))
for kp, k in ((6, 8), (7, 10), (8, 12)):
    need[2 * kp] = [b_read(side[k], kp)]
lastb = need[16][0]


def s0_poll(s):
    p = Stream()
    L, Lc, Lr = newlabel('poll'), newlabel('pollc'), newlabel('pollr')
    acc = V.get(2, 1)
    p.touch(vr(G0, 24))
    p('v_xor_b32 %s, %s, %s' % (vr(acc), vr(G0 + 1), vr(V_EXP9)))
    for i in range(MT):
        if i:
            p('v_bitop3_b32 %s, %s, %s, %s bitop3:0xf6' % (vr(acc), vr(acc), vr(G0 + 4 * i + 1), vr(V_EXP9)))
        p('v_bitop3_b32 %s, %s, %s, %s bitop3:0xf6' % (vr(acc), vr(acc), vr(G0 + 4 * i + 3), vr(xe)))
    p('v_cmp_ne_u32 vcc, 0, %s' % vr(acc))
    p('s_mov_b32 %s, %d' % (sr(S_FAST), 0 if OPT['slow'] else 1))
    p('s_cmp_lg_u64 vcc, 0')
    p('s_cbranch_scc1 %s' % L)
    p.label(Lc)
    s.join(p)
    tail.label(L)
    tail('s_mov_b32 %s, %d' % (sr(S_SPIN), SPIN))
    tail.label(Lr)
    for t in gl:
        tail(t)
    tail('s_waitcnt vmcnt(0)')
    tail('v_mov_b32 %s, 0' % vr(acc))
    for i in range(MT):
        tail('v_sub_u32 %s, %s, %s' % (vr(acc + 1), vr(G0 + 4 * i + 3), vr(V_EXP9)))
        tail('v_lshrrev_b32 %s, 4, %s' % (vr(acc + 1), vr(acc + 1)))
        tail('v_or_b32 %s, %s, %s' % (vr(acc), vr(acc), vr(acc + 1)))
        tail('v_bitop3_b32 %s, %s, %s, %s bitop3:0xf6' % (vr(acc), vr(acc), vr(G0 + 4 * i + 1), vr(V_EXP9)))
    tail('v_cmp_ne_u32 vcc, 0, %s' % vr(acc))
    tail('s_sub_u32 %s, %s, 1' % (sr(S_SPIN), sr(S_SPIN)))
    tail('s_cselect_b64 vcc, 0, vcc')
    tail('s_cmp_lg_u64 vcc, 0')
    tail('s_cbranch_scc1 %s' % Lr)
    tail('v_cmp_ne_u32 vcc, %s, %s' % (vr(G0 + 3), vr(xe)))
    tail('s_cmp_eq_u64 vcc, 0')
    tail('s_cselect_b32 %s, %d, 0' % (sr(S_FAST), 0 if OPT['slow'] else 1))
    tail('s_branch %s' % Lc)
    put((acc, 2))


s0_poll(side[12])
ttk, LNP0 = ln_table(side[12], 0, G0, None)
put(xe)
pre[15].wait(ttk, lastb)
NCP0 = OPT['ncp0']


def WC(s, j):
    idx = s * 4 + j
    if idx < 28:
        return ar(144 + idx * 4, 4)
    return vr(WCV + (idx - 28) * 4, 4)


def cp_load(s_, s, j):
    ld = 'buffer_load_dwordx4 %s, %s, %s, %s offen offset:%d sc1' % (WC(s, j), vr(V_L16), sr(R_WS, 4), sr(S_CPB), j * 1024)
    if j == 3:
        s_(ld, 's_add_u32 %s, %s, 4096' % (sr(S_CPB), sr(S_CPB)))
    else:
        s_(ld)


put((V_DB, 2), (V_DX, 3))
st = Stream()
conv_setup_k(st, cv)
print('K by k', pc.add(st, 15))
gemm_b(a, ACC, AF, lambda s: xtk[s], pre, side, ones=(ONES, RBA), vm=pc.vm, need=need)
poll(a, [cfl], [(cfv, None, cfe)], pre_issued=True, sleep=6)
put(cfa, cfe, cfv)
a('v_mov_b32 %s, %s' % (vr(RB), vr(RBA)))
a('v_mov_b32 %s, %s' % (vr(RB + 1), vr(RBA + 4)))
put((ONES, 4), (RBA, 8))
put(*kvm.rel)
put(*carel)
put((V_FB, 2))
stamp(a, 'gemmB1')


def scan_phase(a, layer, ACC, AF, mid=None, x1=None, x2=None):
    NJ = 2 * MT
    re = lambda j: ACC + (j >> 1) * 4 + (j & 1) * 2
    im = lambda j: ACC + 4 * MT + (j >> 1) * 4 + (j & 1) * 2
    TB = AF
    for j in range(NJ):
        a('ds_read_b128 %s, %s offset:%d' % (vr(TB + 4 * j, 4), vr(V_TABR), 16 * j))

    def prescale(j):
        a('v_pk_mul_f32 %s, %s, %s' % (vr(re(j), 2), vr(re(j), 2), vr(TB + 4 * j, 2)))
        a('v_pk_mul_f32 %s, %s, %s' % (vr(im(j), 2), vr(im(j), 2), vr(TB + 4 * j, 2)))
        a('v_pk_fma_f32 %s, %s, %s, %s op_sel:[0,0,0] op_sel_hi:[1,0,1] neg_lo:[1,0,0] neg_hi:[1,0,0]' %
          (vr(re(j), 2), vr(TB + 4 * j + 2, 2), vr(RB, 2), vr(re(j), 2)))
        a('v_pk_fma_f32 %s, %s, %s, %s op_sel:[0,1,0] op_sel_hi:[1,1,1] neg_lo:[1,0,0] neg_hi:[1,0,0]' %
          (vr(im(j), 2), vr(TB + 4 * j + 2, 2), vr(RB, 2), vr(im(j), 2)))

    def step(dr, di, pr, pi, br, bi):
        a('v_pk_fma_f32 %s, %s, %s, %s op_sel:[0,0,0] op_sel_hi:[1,0,1]' % (vr(dr, 2), vr(pr, 2), vr(LAM, 2), vr(br, 2)))
        a('v_pk_fma_f32 %s, %s, %s, %s op_sel:[0,0,0] op_sel_hi:[1,0,1]' % (vr(di, 2), vr(pi, 2), vr(LAM, 2), vr(bi, 2)))
        a('v_pk_fma_f32 %s, %s, %s, %s op_sel:[0,1,0] op_sel_hi:[1,1,1] neg_lo:[1,0,0] neg_hi:[1,0,0]' %
          (vr(dr, 2), vr(pi, 2), vr(LAM, 2), vr(dr, 2)))
        a('v_pk_fma_f32 %s, %s, %s, %s op_sel:[0,1,0] op_sel_hi:[1,1,1]' % (vr(di, 2), vr(pr, 2), vr(LAM, 2), vr(di, 2)))

    with V.borrow(*HOMES):
        E = V.get(8)
        pub = V.get(4)
    prescale(0)
    pr, pi = re(0), im(0)
    for j in range(1, NJ):
        prescale(j)
        dr, di = E + (j & 1) * 4, E + (j & 1) * 4 + 2
        step(dr, di, pr, pi, re(j), im(j))
        pr, pi = dr, di
        if x1 is not None and j % 3 == 1:
            x1(a)
    EA, F = V.get(2), V.get(2)
    a('v_mov_b32 %s, %s' % (vr(EA), vr(pr)))
    a('v_mov_b32 %s, %s' % (vr(EA + 1), vr(pi)))
    a('v_mov_b32 %s, %s' % (vr(F), vr(pr + 1)))
    a('v_mov_b32 %s, %s' % (vr(F + 1), vr(pi + 1)))
    FA = E
    cfma(a, FA, EA, L12, F)
    a('v_mov_b64 %s, %s' % (vr(FA + 2, 2), vr(FA, 2)))
    a('v_mov_b32 %s, %s' % (vr(pub + 1), vr(V_TAG)))
    a('v_mov_b32 %s, %s' % (vr(pub + 3), vr(V_TAG)))
    a('v_permlane16_swap_b32 %s, %s' % (vr(FA), vr(FA + 2)))
    a('v_permlane16_swap_b32 %s, %s' % (vr(FA + 1), vr(FA + 3)))
    a('s_lshl_b32 %s, %s, 13' % (sr(S_T0), sr(S_PT)))
    a('v_mov_b64 %s, %s' % (vr(FA + 4, 2), vr(FA, 2)))
    a('v_mov_b64 %s, %s' % (vr(FA + 6, 2), vr(FA + 2, 2)))
    a('s_add_u32 %s, %s, %d' % (sr(S_T0), sr(S_T0), WS_E + layer * 36 * 8192))
    for k in range(4):
        a('v_permlane32_swap_b32 %s, %s' % (vr(FA + k), vr(FA + 4 + k)))
    cfma(a, FA + 2, FA, L24, FA + 2)
    cfma(a, FA + 4, FA + 2, L24, FA + 4)
    cfma(a, FA + 6, FA + 4, L24, FA + 6)
    a('v_mov_b32 %s, %s' % (vr(pub), vr(FA + 6)))
    a('v_mov_b32 %s, %s' % (vr(pub + 2), vr(FA + 7)))
    a('buffer_store_dwordx4 %s, %s, %s, %s offen sc1' % (vr(pub, 4), vr(V_EW), sr(R_WS, 4), sr(S_T0)))
    stamp(a, 'e_pub%d' % layer)
    PQ = F
    a('v_mov_b32 %s, 0' % vr(PQ))
    a('v_mov_b32 %s, 0' % vr(PQ + 1))
    for qi in range(1, 4):
        a('v_cmp_eq_u32 vcc, %d, %s' % (qi, vr(V_Q)),
          'v_cndmask_b32 %s, %s, %s, vcc' % (vr(PQ), vr(PQ), vr(FA + 2 * qi - 2)),
          'v_cndmask_b32 %s, %s, %s, vcc' % (vr(PQ + 1), vr(PQ + 1), vr(FA + 2 * qi - 1)))
    put((pub, 4), (E, 8), (AF, 48))
    NL = 6
    loads, checks, box = [], [], []

    def mk(cs):
        CG_ = V.get(4 * NL)
        AD, EX = V.get(NL, 1), V.get(NL, 1)
        box.extend([CG_, AD, EX])
        cs('s_lshl_b32 %s, %s, 13' % (sr(S_T0), sr(S_PT)),
           's_add_u32 %s, %s, %d' % (sr(S_T0), sr(S_T0), WS_E + layer * 36 * 8192),
           'v_add_u32 %s, %s, %s' % (vr(EX), sr(S_T0), vr(V_ER)))
        for j in range(NL - 1, -1, -1):
            cs('v_subrev_u32 %s, %d, %s' % (vr(AD + j), 1024 * j, vr(EX)),
               'v_cmp_le_i32 vcc, %d, %s' % (1024 * j, vr(V_ER)),
               'v_cndmask_b32 %s, %s, %s, vcc' % (vr(AD + j), vr(V_OOB), vr(AD + j)),
               'v_cndmask_b32 %s, 0, %s, vcc' % (vr(EX + j), vr(V_TAG)))
        for j in range(NL):
            loads.append('buffer_load_dwordx4 %s, %s, %s, 0 offen sc1' % (vr(CG_ + 4 * j, 4), vr(AD + j), sr(R_WS, 4)))
            checks.append((CG_ + 4 * j + 1, CG_ + 4 * j + 3, EX + j))
        for l_ in loads:
            cs(l_)

    post = mid(a, mk)
    CG_, AD, EX = box
    poll(a, loads, checks, pre_issued=True)
    stamp(a, 'carry%d' % layer)
    if post is not None:
        a.extend(post)
    put((AD, NL), (EX, NL))
    for j in range(NL):
        a('v_mov_b32 %s, %s' % (vr(CG_ + 4 * j + 1), vr(CG_ + 4 * j + 2)))
    for j in range(NL - 2, -1, -1):
        cfma(a, CG_ + 4 * j, CG_ + 4 * j + 4, L384, CG_ + 4 * j)
    H, Y = V.get(2), V.get(2)
    cmul(a, H, CG_, LQ96)
    for sw in ('v_permlane32_swap_b32', 'v_permlane16_swap_b32'):
        a('v_mov_b64 %s, %s' % (vr(Y, 2), vr(H, 2)))
        a('%s %s, %s' % (sw, vr(H), vr(Y)))
        a('%s %s, %s' % (sw, vr(H + 1), vr(Y + 1)))
        a('v_pk_add_f32 %s, %s, %s' % (vr(H, 2), vr(H, 2), vr(Y, 2)))
    cfma(a, PQ, H, LQ24, PQ)
    cfma(a, EA, PQ, L12, EA)
    a('v_mov_b32 %s, %s' % (vr(H), vr(PQ)))
    a('v_mov_b32 %s, %s' % (vr(H + 1), vr(EA)))
    a('v_mov_b32 %s, %s' % (vr(Y), vr(PQ + 1)))
    a('v_mov_b32 %s, %s' % (vr(Y + 1), vr(EA + 1)))
    pr, pi = H, Y
    PK = V.get(4)
    HO = CG_
    tk = None
    for j in range(NJ):
        step(re(j), im(j), pr, pi, re(j), im(j))
        pr, pi = re(j), im(j)
        pk = PK + (j & 1) * 2
        for hf in range(2):
            a('v_cvt_pk_bf16_f32 %s, %s, %s' % (vr(pk + hf), vr(re(j) + hf), vr(im(j) + hf)))
        tk = a.mem('ds_write_b32 %s, %s offset:%d' % (vr(V_HW), vr(pk), (j >> 1) * 1024 + (j & 1) * 128),
                   'ds_write_b32 %s, %s offset:%d' % (vr(V_HW), vr(pk + 1), (j >> 1) * 1024 + (j & 1) * 128 + 64))
        if j & 1:
            a('ds_read_b128 %s, %s offset:%d' % (vr(HO + 4 * (j >> 1), 4), vr(V_HR), (j >> 1) * 1024))
        elif x2 is not None and j < 10:
            x2(a)
    a('s_mul_i32 %s, %s, 216' % (sr(S_T0), sr(S_RB)))
    a('s_add_u32 %s, %s, %s' % (sr(S_T0), sr(S_T0), sr(S_PT)))
    a('s_lshl_b32 %s, %s, 10' % (sr(S_T0), sr(S_T0)))
    txt = []
    for i in range(MT):
        txt.append('s_add_u32 %s, %s, %d' % (sr(S_T1), sr(S_T0), WS_H + layer * H_SZ + i * 36864))
        txt.append('buffer_store_dwordx4 %s, %s, %s, %s offen {P}' % (vr(HO + 4 * i, 4), vr(V_L16), sr(R_WS, 4), sr(S_T1)))
    if OPT['fine']:
        stamp(a, 'pass2')
    tk = dual(a, txt, touch=[vr(HO, 24)])
    a('s_lshl2_add_u32 %s, %s, %s' % (sr(S_T0), sr(S_RB), sr(S_WAVE)))
    a('s_lshl4_add_u32 %s, %s, %s' % (sr(S_T0), sr(S_T0), sr(S_CG)))
    a('s_lshl_b32 %s, %s, 2' % (sr(S_T0), sr(S_T0)))
    a('s_add_u32 %s, %s, %d' % (sr(S_T0), sr(S_T0), WS_HF + layer * NRB * 256))
    return tk, [(EA, 2), (F, 2), (H, 2), (Y, 2), (PK, 4), (CG_, 4 * NL), (ACC, 48)]


def mid0(a, mk):
    put((BASE, 24))
    sd, s2, lr, ks = Stream(), Stream(), Stream(), Stream()
    for idx in range(NCP0, OPT['ncp']):
        cp_load(sd, idx // 4, idx % 4)
    mk(s2)
    with V.borrow(*HOMES):
        kv_main(lr, kvm, ks)
    lr = weave(lr, sd, 0.0, 1.0)
    lr = weave(lr, s2, 0.55, 0.75)
    for i_, p_ in enumerate(split(lr, 8)):
        a.extend(p_)
        if OPT['fine'] > 1:
            stamp(a, 'kq%d' % i_)
    if OPT['fine']:
        stamp(a, 'kvcore')
    a.extend(ks)
    V.claim(WCV, 32)
    conv_u_prep(a, cv)
    stamp(a, 'kv')
    return None


def ln_rest0_plain(r, P):
    b, tmp = V.get(2), V.get(4)
    for i in range(MT):
        x = BASE + 4 * i
        k_, lane = tile_src(i)
        for e in range(2):
            r('v_mov_b32_dpp %s, %s row_newbcast:%d row_mask:0xf bank_mask:0xf' % (vr(b + e), vr(P + 2 * k_ + e), lane))
        for k in range(2):
            r('v_lshlrev_b32 %s, 16, %s' % (vr(x + 2 * k), vr(XS + 2 * i + k)))
            r('v_and_b32 %s, 0xffff0000, %s' % (vr(x + 2 * k + 1), vr(XS + 2 * i + k)))
        for k in range(4):
            r('v_sub_f32 %s, %s, %s' % (vr(x + k), vr(x + k), vr(b)))
        for k in range(2):
            r('v_cvt_pk_bf16_f32 %s, %s, %s' % (vr(tmp + 2 * k), vr(x + 2 * k), vr(x + 2 * k + 1)))
        for rep in range(3):
            for k in range(2):
                r('v_and_b32 %s, 0xffff0000, %s' % (vr(tmp + 2 * k + 1), vr(tmp + 2 * k)))
                r('v_lshlrev_b32 %s, 16, %s' % (vr(tmp + 2 * k), vr(tmp + 2 * k)))
            for k in range(4):
                if rep == 0:
                    r('v_mul_f32 %s, %s, %s' % (vr(tmp + k), vr(tmp + k), vr(b + 1)))
                elif rep == 1:
                    r('v_mul_f32 %s, %s, %s' % (vr(tmp + k), vr(tmp + k), vr(V_DSK + k)))
                else:
                    r('v_add_f32 %s, %s, %s' % (vr(x + k), vr(x + k), vr(tmp + k)))
            if rep < 2:
                for k in range(2):
                    r('v_cvt_pk_bf16_f32 %s, %s, %s' % (vr(tmp + 2 * k), vr(tmp + 2 * k), vr(tmp + 2 * k + 1)))
    return [(b, 2), (tmp, 4), (P, 4), (XS, 12)]


def hflag_prep(s, layer):
    fa, fv = V.get(), V.get()
    s('s_lshl2_add_u32 %s, %s, %s' % (sr(S_T1), sr(S_RB), sr(S_WAVE)),
      's_lshl_b32 %s, %s, 6' % (sr(S_T1), sr(S_T1)),
      's_add_u32 %s, %s, %d' % (sr(S_T1), sr(S_T1), WS_HF + layer * NRB * 256),
      'v_lshl_add_u32 %s, %s, 2, %s' % (vr(fa), vr(V_N), sr(S_T1)))
    s('v_cmp_gt_u32 vcc, 9, %s' % vr(V_N),
      'v_cndmask_b32 %s, %s, %s, vcc' % (vr(fa), vr(V_OOB), vr(fa)))
    s('s_mul_i32 %s, %s, 216' % (sr(S_T1), sr(S_RB)),
      's_add_u32 %s, %s, %s' % (sr(S_T1), sr(S_T1), sr(S_WAVE)),
      's_lshl_b32 %s, %s, 10' % (sr(S_T1), sr(S_T1)),
      's_add_u32 %s, %s, %d' % (sr(S_HB), sr(S_T1), WS_H + layer * H_SZ))
    fl = 'buffer_load_dword %s, %s, %s, 0 offen sc1' % (vr(fv), vr(fa), sr(R_WS, 4))
    return fa, fv, fl


def hload_next(st, reg):
    st('buffer_load_dwordx4 %s, %s, %s, %s offen sc1' % (vr(reg, 4), vr(V_L16), sr(R_WS, 4), sr(S_HB)),
       's_add_u32 %s, %s, 4096' % (sr(S_HB), sr(S_HB)))


cpn = [0, OPT['ncp']]


def cpx(which, lim):
    def f(st):
        if cpn[which] < lim:
            cp_load(st, cpn[which] // 4, cpn[which] % 4)
            cpn[which] += 1
    return f


htk, hrel = scan_phase(a, 0, ACC, AF, mid0, cpx(0, NCP0), cpx(1, OPT['ncp2']))
assert cpn == [NCP0, OPT['ncp2']]
put(*hrel)
a('s_mov_b32 %s, %s' % (sr(S_C), sr(S_T0)))
for l_ in cv.uloads:
    a(l_)
for r_ in range(BASE, BASE + 24):
    V.free.remove(r_)
V.claim(V_PW, 4)
t = V.get()
a('v_mul_u32_u24 %s, %d, %s' % (vr(V_PW), PART_ROW, vr(V_N)))
a('v_lshl_add_u32 %s, %s, 4, %s' % (vr(V_PW), vr(V_Q), vr(V_PW)))
a('s_mul_i32 %s, %s, %d' % (sr(S_T0), sr(S_WAVE), PART_W))
a('v_add_u32 %s, %s, %s' % (vr(V_PW), sr(S_T0), vr(V_PW)))
a('s_lshl_b32 %s, %s, 2' % (sr(S_T0), sr(S_WAVE)))
a('v_add_u32 %s, %s, %s' % (vr(t), sr(S_T0), vr(V_Q)))
a('v_mul_u32_u24 %s, %d, %s' % (vr(V_PR), PART_ROW, vr(t)))
a('v_lshl_add_u32 %s, %s, 4, %s' % (vr(V_PR), vr(V_N), vr(V_PR)))
PH = 12 * PART_W
a('v_add_u32 %s, %d, %s' % (vr(V_PW2), PH, vr(V_PW)))
a('v_add_u32 %s, %d, %s' % (vr(V_PR2), PH, vr(V_PR)))
put(t)
a('s_barrier')
if OPT['fine']:
    stamp(a, 'ubar')
hf = Stream()
hf.wait(htk)
dual(hf, flag_texts(sr(S_C), '{P}'))
stamp(hf, 'h_pub0')
sd, lr = Stream(), Stream()
for idx in range(OPT['ncp2'], 36):
    cp_load(sd, idx // 4, idx % 4)
hfa, hfv, hfl = hflag_prep(sd, 0)
sd(hfl)
lrel = ln_rest0_plain(lr, LNP0)
HB0 = []


def last0(m, reg):
    if reg is None:
        poll(m, [hfl], [(hfv, None, V_EXP9)], pre_issued=True)
    else:
        HB0.append(reg)
        hload_next(m, reg)


conv_body(a, cv, [sd, lr], True, hf, True, last0)
put(*lrel)
put(hfa, hfv)


def g_fetch_streams():
    s1, s2 = Stream(), Stream()
    fa, u, u2 = V.get(), V.get(), V.get()
    D = V.get(16)
    s1('v_lshrrev_b32 %s, 3, %s' % (vr(fa), vr(V_LANE)))
    s1('v_mul_u32_u24 %s, %d, %s' % (vr(fa), G_STR - 128, vr(fa)))
    s1('s_mul_i32 %s, %s, %d' % (sr(S_T1), sr(S_CG), 32 * G_STR),
       's_lshl2_add_u32 %s, %s, %s' % (sr(S_T2), sr(S_RB), sr(S_WAVE)),
       's_lshl_b32 %s, %s, 7' % (sr(S_T2), sr(S_T2)),
       's_add_u32 %s, %s, %s' % (sr(S_T1), sr(S_T1), sr(S_T2)),
       's_add_u32 %s, %s, %d' % (sr(S_T1), sr(S_T1), WS_G),
       'v_add3_u32 %s, %s, %s, %s' % (vr(fa), vr(fa), vr(V_L16), sr(S_T1)))
    loads = []
    for i in range(4):
        loads.append('s_mov_b32 %s, %d' % (sr(S_T1), 8 * i * G_STR))
        loads.append('buffer_load_dwordx4 %s, %s, %s, %s offen sc1' % (vr(D + 4 * i, 4), vr(fa), sr(R_WS, 4), sr(S_T1)))
    for i in range(4):
        s1(loads[2 * i], loads[2 * i + 1])
    s1('v_and_b32 %s, 1, %s' % (vr(u), vr(V_Q)))
    s1('v_lshlrev_b32 %s, 6, %s' % (vr(u), vr(u)))
    s1('v_mul_u32_u24 %s, 272, %s' % (vr(u2), vr(V_N)))
    s1('v_add3_u32 %s, %s, %s, %s' % (vr(u), vr(u), vr(u2), sr(S_RINGW)))
    s1('v_lshrrev_b32 %s, 1, %s' % (vr(u2), vr(V_Q)))
    s1('v_lshl_add_u32 %s, %s, 2, %s' % (vr(u), vr(u2), vr(u)))
    s1('v_lshl_add_u32 %s, %s, 2, %s' % (vr(u2), vr(u2), vr(u)))
    poll(s2, loads, [(D + 3, D + 7, V_TAG), (D + 11, D + 15, V_TAG)], pre_issued=True, sleep=4)
    s2('v_lshlrev_b32 %s, 4, %s' % (vr(fa), vr(V_Q)))
    s2('v_add3_u32 %s, %s, %s, %s' % (vr(fa), vr(fa), vr(V_L16), sr(S_RINGW)))
    for i in range(4):
        s2('ds_write_b128 %s, %s offset:%d' % (vr(fa), vr(D + 4 * i, 4), 1088 * i))
    for i, o in enumerate((0, 2, 5, 8, 10, 13)):
        s2('ds_read2_b32 %s, %s offset0:%d offset1:%d' % (vr(GP + 2 * i, 2), vr(u2 if i in (1, 4) else u), o, 32 + o))
    return s1, s2, [fa, u, u2, (D, 16)]


def gemm_c(a, layer, HB=None):
    NF = 16
    if HB is None:
        a.extend(hq)
        poll(a, [hfl], [(hfv, None, V_EXP9)], pre_issued=True)
        stamp(a, 'h_flag%d' % layer)
        put(hfa, hfv)
        HB = [V.get(4, top=True) for _ in range(NF)]
        for f in range(NF):
            hload_next(a, HB[f])
    CA = [V.get(4, top=True) for _ in range(8)]
    hb = lambda i, s: HB[(i * 9 + s) % NF]
    slot = lambda i: (i + 4) % 6

    def pwrite(st, i, js=range(4)):
        for j in js:
            tk = st.mem('ds_write_b128 %s, %s offset:%d' % (vr(V_PW if slot(i) < 3 else V_PW2), vr(CA[(i & 1) * 4 + j], 4),
                                                            L_IMG + (slot(i) % 3) * 4 * PART_W + j * 64))
        return tk

    def preduce(st, i, P):
        for w in range(4):
            st('ds_read_b128 %s, %s offset:%d' % (vr(P[w], 4), vr(V_PR if slot(i) < 3 else V_PR2), L_IMG + ((slot(i) % 3) * 4 + w) * PART_W))

    def padd(st, i, P, pk):
        x = BASE + 4 * i
        if pk:
            for k in range(2):
                st('v_pk_add_f32 %s, %s, %s' % (vr(P[0] + 2 * k, 2), vr(P[0] + 2 * k, 2), vr(P[1] + 2 * k, 2)))
                st('v_pk_add_f32 %s, %s, %s' % (vr(P[2] + 2 * k, 2), vr(P[2] + 2 * k, 2), vr(P[3] + 2 * k, 2)))
                st('v_pk_add_f32 %s, %s, %s' % (vr(x + 2 * k, 2), vr(x + 2 * k, 2), vr(P[0] + 2 * k, 2)))
                st('v_pk_add_f32 %s, %s, %s' % (vr(x + 2 * k, 2), vr(x + 2 * k, 2), vr(P[2] + 2 * k, 2)))
        else:
            for w in range(4):
                for k in range(4):
                    st('v_add_f32 %s, %s, %s' % (vr(x + k), vr(x + k), vr(P[w] + k)))

    sc = Sched(a)
    qp, qs = sc.add(Stream()), sc.add(Stream())
    if layer == 0:
        a.wait(cv.stk)
        cf_ = Stream()
        with V.borrow((GP, 12)):
            frel = conv_final(cf_, cv)
        qs.extend(cf_.groups)
        put(*frel)
    a('s_barrier')
    S, Q = V.get(6, 1), V.get(6, 1)
    PT = [V.get(4) for _ in range(4)]
    tk = None
    for i in range(MT):
        m = Stream()
        for s in range(9):
            for j in range(4):
                ca = CA[(i & 1) * 4 + j]
                m('v_mfma_f32_16x16x32_bf16 %s, %s, %s, %s' % (vr(ca, 4), WC(s, j), vr(hb(i, s), 4), '0' if s == 0 else vr(ca, 4)))
                if j == 0 and s < 8:
                    m.touch(vr(hb(i, s + 1), 4))
            if i * 9 + s + NF < 9 * MT:
                hload_next(m, hb(i, s))
        if i in (3, 5):
            print('gemm_c leftover before barrier', sc.pending())
            sc.flush()
            a.wait(tk)
            a('s_barrier')
            sd = Stream()
            for ti in (i - 3, i - 2):
                preduce(sd, ti, PT)
                padd(sd, ti, PT, False)
                stats_partial(sd, BASE, S, Q, ti, None, False)
            qs.extend(sd.groups)
        if i > 0:
            pw = Stream()
            tk = pwrite(pw, i - 1)
            qp.extend(pw.groups)
        sc.run(m)
        sc.flush(qp)
        if OPT['fine']:
            stamp(a, 'c%d_t%d' % (layer, i))
    print('gemm_c leftover', sc.pending(), 'model time', sc.t)
    sc.flush()
    put(*[(r, 4) for r in PT + HB[8:]])
    gs = None
    if layer == 0:
        V.claim(GP, 12)
        gs = g_fetch_streams()
        a.extend(gs[0])
    tk = pwrite(a, MT - 1)
    a.wait(tk)
    a('s_barrier')
    stamp(a, 'gemmC%d' % layer)
    for ti in (4, 5):
        preduce(a, ti, HB[(ti - 4) * 4:(ti - 4) * 4 + 4])
    for ti in (4, 5):
        padd(a, ti, HB[(ti - 4) * 4:(ti - 4) * 4 + 4], True)
    put(*[(r, 4) for r in CA + HB[:8]])
    return S, Q, gs


def gate(a, which, final, SQ):
    stats_publish(a, BASE, which, True, SQ=SQ[:2], tiles=(4, 5))
    stamp(a, 'st_pub%d' % which)
    if SQ[2] is not None:
        a.extend(SQ[2][1])
        put(*SQ[2][2])
    GU = V.get(24)
    for i in range(MT):
        for j in range(2):
            a('v_lshlrev_b32 %s, 16, %s' % (vr(GU + 4 * i + 2 * j), vr(GP + 2 * i + j)))
            a('v_and_b32 %s, 0xffff0000, %s' % (vr(GU + 4 * i + 2 * j + 1), vr(GP + 2 * i + j)))
    G = V.get(24)
    ex = stats_exp(a, which)
    poll(a, stats_loads(which, G), [(G + 4 * i + 1, G + 4 * i + 3, ex) for i in range(MT)])
    put(ex)
    stamp(a, 'st_got%d' % which)
    P = stats_finish(a, G)
    for k in range(2):
        a('v_add_f32 %s, 0x3727c5ac, %s' % (vr(P + 2 * k + 1), vr(P + 2 * k + 1)))
    for k in range(2):
        a('v_rsq_f32 %s, %s' % (vr(P + 2 * k + 1), vr(P + 2 * k + 1)))
    for k in range(2):
        a('v_add_f32 %s, %s, %s' % (vr(OFF + k), vr(OFF + k), vr(P + 2 * k)))
    B = G
    for i in range(MT):
        bcast(a, B + 4 * i, P, i)
        if final:
            k_, lane = tile_src(i)
            a('v_mov_b32_dpp %s, %s row_newbcast:%d row_mask:0xf bank_mask:0xf' % (vr(B + 4 * i + 2), vr(OFF + k_), lane))
    for i in range(MT):
        x, g, b = BASE + 4 * i, GU + 4 * i, B + 4 * i
        for k in range(2):
            a('v_pk_add_f32 %s, %s, %s op_sel:[0,0] op_sel_hi:[1,0] neg_lo:[0,1] neg_hi:[0,1]' % (vr(x + 2 * k, 2), vr(x + 2 * k, 2), vr(b, 2)))
            a('v_pk_fma_f32 %s, %s, %s, 1.0 op_sel:[0,1,0] op_sel_hi:[1,1,0]' % (vr(g + 2 * k, 2), vr(g + 2 * k, 2), vr(b, 2)))
        for k in range(2):
            if final:
                a('v_pk_fma_f32 %s, %s, %s, %s op_sel:[0,0,0] op_sel_hi:[1,1,0]' % (vr(x + 2 * k, 2), vr(x + 2 * k, 2), vr(g + 2 * k, 2), vr(b + 2, 2)))
            else:
                a('v_pk_mul_f32 %s, %s, %s' % (vr(x + 2 * k, 2), vr(x + 2 * k, 2), vr(g + 2 * k, 2)))
        if final:
            a('s_movk_i32 %s, %d' % (sr(S_T0), 4608 * i),
              'buffer_store_dwordx4 %s, %s, %s, %s offen' % (vr(x, 4), vr(V_OROW), sr(R_OUT, 4), sr(S_T0)))
    put((GU, 24), (G, 24), (P, 4))


SQ_ = gemm_c(a, 0, HB0)
gate(a, 1, False, SQ_)
WP = V.get(12, 2)
for i in range(MT):
    for k in range(2):
        a('v_cvt_pk_bf16_f32 %s, %s, %s' % (vr(WP + 2 * i + k), vr(BASE + 4 * i + 2 * k), vr(BASE + 4 * i + 2 * k + 1)))
a('s_mul_i32 %s, %s, 18' % (sr(S_T0), sr(S_RB)))
a('s_add_u32 %s, %s, %s' % (sr(S_T0), sr(S_T0), sr(S_CG)))
a('s_mul_i32 %s, %s, %d' % (sr(S_T0), sr(S_T0), BLK))
a('s_add_u32 %s, %s, %d' % (sr(S_T0), sr(S_T0), WS_H))
a('s_add_u32 %s, %s, 4096' % (sr(S_T1), sr(S_T0)))
a('s_add_u32 %s, %s, 8192' % (sr(S_T2), sr(S_T0)))
wtk_ = dual(a, ['buffer_store_dwordx2 %s, %s, %s, %s offen offset:%d {P}' %
                (vr(WP + 2 * i, 2), vr(V_WA), sr(R_WS, 4), sr((S_T0, S_T1, S_T2)[i >> 1]), (i & 1) * 2048) for i in range(MT)])
stats_publish(a, BASE, 2, True)
V_DX = V.get(3, 1)
a('s_mul_i32 %s, %s, %d' % (sr(S_T0), sr(S_RB), 18 * BLK))
a('s_add_u32 %s, %s, %d' % (sr(S_T0), sr(S_T0), WS_H))
a('s_add_u32 %s, %s, %s' % (sr(S_T0), sr(S_T0), sr(S_W1K)))
a('v_add_u32 %s, %s, %s' % (vr(V_DX), sr(S_T0), vr(V_L16)))
a('v_add_u32 %s, 4096, %s' % (vr(V_DX + 1), vr(V_DX)))
a('v_add_u32 %s, 8192, %s' % (vr(V_DX + 2), vr(V_DX)))
for s in range(9):
    a('s_mul_i32 %s, %s, 96' % (sr(S_TT + s), sr(S_KP + s)))
fa, fe, fv = V.get(), V.get(), V.get()
a('s_lshl_b32 %s, %s, 8' % (sr(S_T1), sr(S_RB)))
a('s_add_u32 %s, %s, %d' % (sr(S_T1), sr(S_T1), WS_WF))
a('v_lshl_add_u32 %s, %s, 2, %s' % (vr(fa), vr(V_LANE), sr(S_T1)))
a('v_cmp_gt_u32 vcc, 36, %s' % vr(V_LANE),
  'v_cndmask_b32 %s, %s, %s, vcc' % (vr(fa), vr(V_OOB), vr(fa)),
  'v_cndmask_b32 %s, 0, %s, vcc' % (vr(fe), vr(V_TAG)))
a('s_lshl2_add_u32 %s, %s, %s' % (sr(S_T0), sr(S_PT), sr(S_T1)))
a.wait(wtk_)
dual(a, flag_texts(sr(S_T0), '{P}'))
stamp(a, 'w_pub')
put((WP, 12))

ACC = V.get(48, top=True)
AF = V.get(48, top=True)
poll(a, ['buffer_load_dword %s, %s, %s, 0 offen sc1' % (vr(fv), vr(fa), sr(R_WS, 4))], [(fv, None, fe)])
stamp(a, 'w_flag')
put(fa, fe, fv)
pre = {k: Stream() for k in range(18)}
side = {k: Stream() for k in range(18)}
wtk = {}
for blk in range(4):
    wtk[blk] = x_dma(a, blk, 1)
vm2 = {k: Stream() for k in range(18)}
for blk in range(4, 9):
    wtk[blk] = x_dma(vm2[0], blk, 1)
G2 = V.get(24)
gl2 = stats_loads(2, G2)
for i in range(0, 12, 2):
    vm2[0](gl2[i], gl2[i + 1])
ex2 = stats_exp(side[0], 2)
poll(pre[10], gl2, [(G2 + 4 * i + 1, G2 + 4 * i + 3, ex2) for i in range(MT)], pre_issued=True)
put(ex2)
ttk2, LNP1 = ln_table(side[10], 1, G2, None)
pre[15].wait(ttk2)
dual(vm2[12], ['s_lshl_b32 %s, %s, 6' % (sr(S_T0), sr(S_RB)),
               's_add_u32 %s, %s, %s' % (sr(S_T0), sr(S_T0), sr(S_CG)),
               's_lshl_b32 %s, %s, 2' % (sr(S_T0), sr(S_T0)),
               's_add_u32 %s, %s, %d' % (sr(S_T0), sr(S_T0), WS_WF + 160)] + flag_texts(sr(S_T0), '{P}'))
gemm_b(a, ACC, AF, lambda s: wtk[s], pre, side, vm=vm2)
put((V_DX, 3))
stamp(a, 'gemmB2')


def mid1(a, mk):
    da, dv = V.get(), V.get()
    a('s_lshl_b32 %s, %s, 8' % (sr(S_T1), sr(S_RB)))
    a('s_add_u32 %s, %s, %d' % (sr(S_T1), sr(S_T1), WS_WF + 160))
    a('v_lshl_add_u32 %s, %s, 2, %s' % (vr(da), vr(V_N), sr(S_T1)))
    a('v_cmp_gt_u32 vcc, 9, %s' % vr(V_N), 'v_cndmask_b32 %s, %s, %s, vcc' % (vr(da), vr(V_OOB), vr(da)))
    dl = 'buffer_load_dword %s, %s, %s, 0 offen sc1' % (vr(dv), vr(da), sr(R_WS, 4))
    a(dl)
    ln_rest(a, 1, LNP1)
    mk(a)
    poll(a, [dl], [(dv, None, V_EXP9)], pre_issued=True)
    put(da, dv)
    return None


htk, hrel = scan_phase(a, 1, ACC, AF, mid1)
put(*hrel)
hfa, hfv, hfl = hflag_prep(a, 1)
hq = Stream()
hq(hfl)
a.wait(htk)
dual(a, flag_texts(sr(S_T0), '{P}'))
stamp(a, 'h_pub1')
a('s_lshl2_add_u32 %s, %s, %s' % (sr(S_T0), sr(S_L), sr(S_WAVE)))
a('s_cmp_lg_u32 %s, %d' % (sr(S_T0), (NRB - 1) * 9 * 4))
a('s_cselect_b64 exec, 0, 1',
  'buffer_store_dword %s, %s, %s, 0 offen sc1' % (vr(V_TAG), vr(V_ZERO), sr(R_WS, 4)),
  's_mov_b64 exec, -1')
SQ_ = gemm_c(a, 1)
gate(a, 3, True, SQ_)
stamp(a, 'out')
a('s_branch L_fin')

a.fence()
a.label('L_aux')
V.free = set(range(NCOMMON, 256))
V.locked = set()
a('s_waitcnt lgkmcnt(0)')
a('s_load_dword %s, %s, 0' % (sr(S_TAG), sr(P_WS, 2)))
srd(a, R_WS, P_WS, WS_SIZE)
a('s_sub_u32 %s, %s, %d' % (sr(S_RB), sr(S_L), NMAIN))
S_AW, S_KC_, S_CGK, S_KP2, S_DG, S_SCR, S_AW2 = [S_KP + i for i in range(7)]
a('s_mul_i32 %s, %s, 58' % (sr(S_AW2), sr(S_WAVE)))
a('s_add_u32 %s, %s, %s' % (sr(S_AW2), sr(S_AW2), sr(S_RB)))
a('s_lshl2_add_u32 %s, %s, %s' % (sr(S_AW), sr(S_RB), sr(S_WAVE)))
a('s_mul_i32 %s, %s, 57' % (sr(S_T0), sr(S_AW)))
a('s_lshr_b32 %s, %s, 10' % (sr(S_DG), sr(S_T0)))
a('s_mul_i32 %s, %s, 171' % (sr(S_KC_), sr(S_AW2)))
a('s_lshr_b32 %s, %s, 9' % (sr(S_KC_), sr(S_KC_)))
a('s_mul_i32 %s, %s, 18' % (sr(S_T1), sr(S_DG)))
a('s_sub_u32 %s, %s, %s' % (sr(S_KP2), sr(S_AW), sr(S_T1)))
a('s_mul_i32 %s, %s, 3' % (sr(S_T1), sr(S_KC_)))
a('s_sub_u32 %s, %s, %s' % (sr(S_CGK), sr(S_AW2), sr(S_T1)))
a('s_add_u32 %s, %s, 6' % (sr(S_CGK), sr(S_CGK)))
srd(a, R_BRE, P_CRE, 576 * 1152)
srd(a, R_BIM, P_CIM, 576 * 1152)
dp, gm, vc, t, t2 = [V.get() for _ in range(5)]
a('v_and_b32 %s, 31, %s' % (vr(dp), vr(V_LANE)))
a('s_lshl_b32 %s, %s, 6' % (sr(S_T0), sr(S_KP2)))
a('v_lshl_add_u32 %s, %s, 1, %s' % (vr(t2), vr(dp), sr(S_T0)))
LT = lam_loads(a, t2)
CL = V.get(24)
a('v_lshrrev_b32 %s, 2, %s' % (vr(vc), vr(V_LANE)))
a('v_mul_u32_u24 %s, 1152, %s' % (vr(vc), vr(vc)))
a('v_and_b32 %s, 3, %s' % (vr(gm), vr(V_LANE)))
a('v_lshl_add_u32 %s, %s, 4, %s' % (vr(vc), vr(gm), vr(vc)))
a('s_mul_i32 %s, %s, %d' % (sr(S_T1), sr(S_DG), 48 * 1152))
a('s_add_u32 %s, %s, %s' % (sr(S_T1), sr(S_T1), sr(S_T0)))
for u in range(3):
    a('s_add_u32 %s, %s, %d' % (sr(S_T2), sr(S_T1), u * 16 * 1152),
      'buffer_load_dwordx4 %s, %s, %s, %s offen nt' % (vr(CL + 8 * u, 4), vr(vc), sr(R_BRE, 4), sr(S_T2)),
      'buffer_load_dwordx4 %s, %s, %s, %s offen nt' % (vr(CL + 8 * u + 4, 4), vr(vc), sr(R_BIM, 4), sr(S_T2)))
a('s_lshl2_add_u32 %s, %s, %s' % (sr(S_T1), sr(S_RB), sr(S_WAVE)))
a('s_mul_i32 %s, %s, 2880' % (sr(S_T1), sr(S_T1)))
a('v_min_u32 %s, 22, %s' % (vr(V_TAG), vr(V_LANE)))
a('v_lshl_add_u32 %s, %s, 7, %s' % (vr(V_TAG), vr(V_TAG), sr(S_T1)))
a('v_min_u32 %s, %d, %s' % (vr(V_TAG), 576 * 1152 - 4, vr(V_TAG)))
a('global_load_dword %s, %s, %s ;junk' % (vr(V_JUNK), vr(V_TAG), sr(P_BRE, 2)))
a('global_load_dword %s, %s, %s ;junk' % (vr(V_JUNK), vr(V_TAG), sr(P_BIM, 2)))
srd(a, R_K, P_K, 2048 * 1152)
srd(a, R_V, P_V, 2048 * 1152)
sg, vk, vh, ka = [V.get() for _ in range(4)]
a('v_lshrrev_b32 %s, 5, %s' % (vr(sg), vr(V_LANE)))
a('s_mul_i32 %s, %s, %d' % (sr(S_T0), sr(S_KC_), 48 * 1152))
a('s_lshl_b32 %s, %s, 7' % (sr(S_T1), sr(S_CGK)))
a('s_add_u32 %s, %s, %s' % (sr(S_T0), sr(S_T0), sr(S_T1)))
a('v_mul_u32_u24 %s, %d, %s' % (vr(vk), 24 * 1152, vr(sg)))
a('v_lshl_add_u32 %s, %s, 2, %s' % (vr(vk), vr(dp), vr(vk)))
a('v_add_u32 %s, %s, %s' % (vr(vk), sr(S_T0), vr(vk)))
a('v_subrev_u32 %s, %d, %s' % (vr(vh), 3 * 1152, vr(vk)))
SHK = V.get(4)
a('s_lshl_b32 %s, %s, 9' % (sr(S_T1), sr(S_CGK)))
a('v_lshl_add_u32 %s, %s, 4, %s' % (vr(t), vr(dp), sr(S_T1)))
a('global_load_dwordx4 %s, %s, %s' % (vr(SHK, 4), vr(t), sr(P_SHK, 2)))
KR, VR = V.get(27, 1), V.get(24, 1)
ld = Stream()
for j in range(3):
    ld('buffer_load_dword %s, %s, %s, 0 offen offset:%d nt' % (vr(KR + j), vr(vh), sr(R_K, 4), 1152 * j))
for j3 in range(8):
    ld('s_mov_b32 %s, %d' % (sr(S_C), 3456 * j3),
       *['buffer_load_dword %s, %s, %s, %s offen offset:%d nt' % (vr(base + 3 * j3 + jj), vr(vk), sr(rr, 4), sr(S_C), 1152 * jj)
         for jj in range(3) for (base, rr) in ((KR + 3, R_K), (VR, R_V))])
ldp = split(ld, 2)
astamp(a, 4)
a('s_waitcnt lgkmcnt(0)')
astamp(a, 5)
tag_ready(a)
cs = Stream()
cs('s_mul_i32 %s, %s, 8192' % (sr(S_SCR), sr(S_WAVE)), 's_add_u32 %s, %s, %d' % (sr(S_SCR), sr(S_SCR), 65536))
_, COEF = lam_compute(cs, LT, True)
cs('v_add_f32 %s, %s, %s' % (vr(COEF), vr(COEF), vr(COEF)))
cs('v_add_f32 %s, %s, %s' % (vr(COEF + 1), vr(COEF + 1), vr(COEF + 1)))
cs('v_lshl_add_u32 %s, %s, 3, %s' % (vr(t), vr(dp), sr(S_SCR)))
cs('ds_write_b64 %s, %s offset:6144' % (vr(t), vr(COEF, 2)))
cs('v_lshl_add_u32 %s, %s, 6, %s' % (vr(t), vr(gm), sr(S_SCR)))
CF = V.get(16)
for k in range(4):
    cs('ds_read_b128 %s, %s offset:%d' % (vr(CF + 4 * k, 4), vr(t), 6144 + 16 * k))
wa, ra = V.get(), V.get()
cs('v_lshrrev_b32 %s, 2, %s' % (vr(t), vr(V_LANE)))
cs('v_lshlrev_b32 %s, 4, %s' % (vr(t), vr(t)))
cs('v_lshl_add_u32 %s, %s, 9, %s' % (vr(wa), vr(gm), vr(t)))
cs('v_add_u32 %s, %s, %s' % (vr(wa), sr(S_SCR), vr(wa)))
cs('v_add_u32 %s, %s, %s' % (vr(ra), sr(S_SCR), vr(V_L16)))
X = V.get(4)
O = V.get(8)
RD = V.get(24)
for u in range(3):
    for e in range(8):
        src = CL + 8 * u + (e >> 1)
        op = 'v_and_b32 %s, 0xffff0000, %s' if e & 1 else 'v_lshlrev_b32 %s, 16, %s'
        cs(op % (vr(X), vr(src)))
        cs(op % (vr(X + 1), vr(src + 4)))
        cmul(cs, X + 2, X, CF + 2 * e)
        cs('v_cvt_pk_bf16_f32 %s, %s, -%s' % (vr(O + e), vr(X + 2), vr(X + 3)))
    bo = u * 2048
    cs('ds_write_b128 %s, %s offset:%d' % (vr(wa), vr(O, 4), bo))
    cs('ds_write_b128 %s, %s offset:%d' % (vr(wa), vr(O + 4, 4), bo + 256))
    cs('ds_read_b128 %s, %s offset:%d' % (vr(RD + u * 8, 4), vr(ra), bo))
    cs('ds_read_b128 %s, %s offset:%d' % (vr(RD + u * 8 + 4, 4), vr(ra), bo + 1024))
a.weave(cs, ldp[0], 0.3, 0.95)
astamp(a, 6)
a('s_and_b32 %s, %s, 1' % (sr(S_T0), sr(S_KP2)))
a('s_mul_i32 %s, %s, %d' % (sr(S_T0), sr(S_T0), 2 * 37 * 1024))
a('s_lshr_b32 %s, %s, 1' % (sr(S_T1), sr(S_KP2)))
a('s_lshl_b32 %s, %s, 12' % (sr(S_T1), sr(S_T1)))
a('s_add_u32 %s, %s, %s' % (sr(S_T0), sr(S_T0), sr(S_T1)))
a('s_add_u32 %s, %s, %d' % (sr(S_T0), sr(S_T0), WS_CP))
a('s_cmp_lt_u32 %s, 216' % sr(S_AW))
a('s_cselect_b32 %s, %s, 0x%x' % (sr(S_T0), sr(S_T0), 0x40000000))
toks = []
for u in range(3):
    a('s_mul_i32 %s, %s, 3' % (sr(S_T1), sr(S_DG)))
    a('s_add_u32 %s, %s, %d' % (sr(S_T1), sr(S_T1), u))
    a('s_lshr_b32 %s, %s, 2' % (sr(S_T2), sr(S_T1)))
    a('s_mul_i32 %s, %s, %d' % (sr(S_T2), sr(S_T2), 4 * 37 * 1024))
    a('s_and_b32 %s, %s, 3' % (sr(S_T1), sr(S_T1)))
    a('s_lshl_b32 %s, %s, 10' % (sr(S_T1), sr(S_T1)))
    a('s_add_u32 %s, %s, %s' % (sr(S_T1), sr(S_T1), sr(S_T2)))
    a('s_add_u32 %s, %s, %s' % (sr(S_T1), sr(S_T1), sr(S_T0)))
    a('s_add_u32 %s, %s, %d' % (sr(S_T2), sr(S_T1), 37 * 1024))
    toks.append(a.mem('buffer_store_dwordx4 %s, %s, %s, %s offen sc1' % (vr(RD + u * 8, 4), vr(V_L16), sr(R_WS, 4), sr(S_T1))))
    toks.append(a.mem('buffer_store_dwordx4 %s, %s, %s, %s offen sc1' % (vr(RD + u * 8 + 4, 4), vr(V_L16), sr(R_WS, 4), sr(S_T2))))
a('s_nop 1')
put((CL, 24), (CF, 16), (X, 4), (O, 8), (RD, 24), wa, ra, (COEF, 2))
a.extend(ldp[1])
astamp(a, 7)
cf = Stream()
astamp(cf, 8)
cf.wait(*toks)
astamp(cf, 9)
cf('s_lshl_b32 %s, %s, 6' % (sr(S_T0), sr(S_AW)),
   's_add_u32 %s, %s, %d' % (sr(S_T0), sr(S_T0), WS_CPF), *flag_texts(sr(S_T0), 'sc1'))
a('v_sub_u32 %s, 1, %s' % (vr(sg), vr(sg)))
a('v_lshlrev_b32 %s, 6, %s' % (vr(sg), vr(sg)))
a('v_mul_u32_u24 %s, 272, %s' % (vr(ka), vr(dp)))
a('s_mul_i32 %s, %s, 8704' % (sr(S_SCR), sr(S_WAVE)))
a('v_add3_u32 %s, %s, %s, %s' % (vr(ka), vr(ka), vr(sg), sr(S_SCR)))
kc = Stream()
kv_core(kc, 12, lambda r: KR + 3 + r, lambda r: VR + r, SHK,
        lambda ch, un, reg: kc('ds_write_b128 %s, %s offset:%d' % (vr(ka), vr(reg, 4), ch * 128 + un * 16)),
        touch=lambda tp: kc.touch(vr(KR + 3 + 2 * tp, 6), vr(VR + 2 * tp, 6)) if tp % 3 == 0 else None)
cv = Conv()
conv_setup_k(cf, cv)
a.weave(kc, cf, 0.0, 0.5)
astamp(a, 10)
put((KR, 27), (VR, 24))
RD = V.get(32)
ra, ga = V.get(), V.get()
a('v_lshlrev_b32 %s, 4, %s' % (vr(ra), vr(V_Q)))
a('v_add3_u32 %s, %s, %s, %s' % (vr(ra), vr(ra), vr(V_L16), sr(S_SCR)))
for i in range(8):
    a('ds_read_b128 %s, %s offset:%d' % (vr(RD + 4 * i, 4), vr(ra), 1088 * i))
a('v_lshrrev_b32 %s, 3, %s' % (vr(ga), vr(V_LANE)))
a('v_mul_u32_u24 %s, %d, %s' % (vr(ga), KVT_STR - 128, vr(ga)))
a('v_add_u32 %s, %s, %s' % (vr(ga), vr(ga), vr(V_L16)))
a('s_mul_i32 %s, %s, %d' % (sr(S_T0), sr(S_CGK), 64 * KVT_STR))
a('s_sub_u32 %s, 43, %s' % (sr(S_T1), sr(S_KC_)))
a('s_lshl_b32 %s, %s, 7' % (sr(S_T1), sr(S_T1)))
a('s_add_u32 %s, %s, %s' % (sr(S_T0), sr(S_T0), sr(S_T1)))
a('s_cmp_lt_u32 %s, 132' % sr(S_AW2))
a('s_cselect_b32 %s, %s, 0x%x' % (sr(S_T2), sr(S_T0), 0x40000000))
for i in range(8):
    a('s_add_u32 %s, %s, %d' % (sr(S_T1), sr(S_T2), WS_KVT + 8 * i * KVT_STR),
      'buffer_store_dwordx4 %s, %s, %s, %s offen sc1' % (vr(RD + 4 * i, 4), vr(ga), sr(R_WS, 4), sr(S_T1)))
a('s_nop 1')
if OPT['stamps']:
    a('s_memtime %s' % sr(S_M2, 2), 's_waitcnt lgkmcnt(0)', 'v_writelane_b32 %s, %s, 1' % (vr(V_STAMP), sr(S_M2)))
keep_cv = cv
a('s_branch L_auxconv3')
a.fence()
a.label('L_auxconv2')
V.free = set(range(NCOMMON, 256))
V.locked = set()
sv = OPT['stamps']
OPT['stamps'] = 0
OPT['_sv'] = sv
cv = Conv()
a('s_barrier')
conv_setup_k(a, cv)
assert (cv.SD, cv.HD) == (keep_cv.SD, keep_cv.HD)
a.label('L_auxconv3')
a('s_barrier')
conv_u_prep(a, cv)
put(*conv_addr(a, cv))
conv_body(a, cv, pre_issued=False)
a.wait(cv.stk)
a('s_barrier')
conv_final(a, cv)
astamp(a, 13)
OPT['stamps'] = sv
if OPT['stamps']:
    a('s_memtime %s' % sr(S_M2, 2), 's_waitcnt lgkmcnt(0)', 's_cmp_eq_u32 %s, %s' % (sr(S_PAIR), sr(S_L)),
      's_cselect_b32 m0, 2, 3', 's_nop 3', 'v_writelane_b32 %s, %s, m0' % (vr(V_STAMP), sr(S_M2)))
a('s_add_u32 %s, %s, %d' % (sr(S_PAIR), sr(S_PAIR), NAUX))
a('s_cmp_lt_u32 %s, 288' % sr(S_PAIR))
a('s_cbranch_scc1 L_auxconv2')
a('s_branch L_fin')

a.fence()
a.extend(tail)

a.label('L_fin')
if OPT['stamps']:
    a('s_waitcnt vmcnt(0) lgkmcnt(0)')
    a('%s %s' % ('s_memtime' if OPT['cyc'] else 's_memrealtime', sr(S_M2, 2)))
    a('s_waitcnt lgkmcnt(0)')
    a('v_writelane_b32 %s, %s, 63' % (vr(V_STAMP), sr(S_M2)))
    a('v_writelane_b32 %s, %s, 62' % (vr(V_STAMP), sr(S_FAST)))
    a('s_lshl_b32 %s, %s, 10' % (sr(S_T0), sr(S_L)))
    a('s_add_u32 %s, %s, %d' % (sr(S_T0), sr(S_T0), WS_DBG))
    a('v_lshlrev_b32 %s, 2, v0' % vr(V_DUMMY))
    a('buffer_store_dword %s, %s, %s, %s offen' % (vr(V_STAMP), vr(V_DUMMY), sr(R_WS, 4), sr(S_T0)))
a.label('L_end')
a('s_endpgm')

hdr = open(os.path.join(os.path.dirname(os.path.abspath(__file__)), '..', 'cdna_kernels', NAME + '.s.ref')).read().split('\n')
head = []
for ln in hdr:
    if ln.startswith('; @launch'):
        break
    head.append(ln)
lines = head + ['; @launch grid=(256,1,1) block=(256,1,1) lds=%d' % LDS_SIZE,
                '.amdgcn_target "amdgcn-amd-amdhsa--gfx950"', '.text', '.globl ' + KN, '.p2align 8',
                '.type %s,@function' % KN, KN + ':']
lines += finalize(top)
lines += ['.section .rodata,"a"', '.p2align 6', '.amdhsa_kernel ' + KN,
          '  .amdhsa_next_free_vgpr 512', '  .amdhsa_next_free_sgpr 102', '  .amdhsa_accum_offset 256',
          '  .amdhsa_group_segment_fixed_size 0', '  .amdhsa_kernarg_size 144', '  .amdhsa_user_sgpr_count 2',
          '  .amdhsa_user_sgpr_kernarg_segment_ptr 1', '  .amdhsa_system_sgpr_workgroup_id_x 1', '.end_amdhsa_kernel']
open(sys.argv[1], 'w').write('\n'.join(lines) + '\n')
if OPT['stamps']:
    open(sys.argv[1] + '.stamps', 'w').write('\n'.join(STAMPS) + '\n')
print('vgpr high water', V.hw, 'lines', len(lines))
```

```python
import sys, os
sys.path.insert(0, os.path.dirname(os.path.abspath(__file__)))
from asmlib import *

NAME = 'interleave_layers__ssm_conv_s5__ssm_conv_h3__prompt'
KN = NAME + '_kernel'

OPT = dict(dbgout=-1, stamps=0, slow=0, hbuf2=0, crot=0, pf=3, slp=8, slp2=6, ncp0=4, ncp=16, ncp2=21, per=4, x_nod1=0, x_s0late=0, x_nomfma=0, x_noload=0, fine=0, cyc=0)
for a_ in sys.argv[2:]:
    k_, v_ = a_.split('=')
    OPT[k_] = int(v_)

MT = 6
NRB = 22
NMAIN = 198
NAUX = 58
WS_KVF = 0x1000
WS_CPF = 0xC000
WS_HF = 0x4000
WS_WF = 0x4000 + 2 * 22 * 256
WS_GF = 0xA000
WS_RBG = 0xC000
WS_E = 0x10000
WS_ST = 0xA0000
ST_SZ = 22 * 24576
WS_KVT = 0x1600000
KVT_STR = 5632
WS_CP = 0x540000
WS_H = 0x6C0000
H_SZ = 22 * 221184 * OPT['hbuf2']
WS_W = 0x1040000
WS_G = 0x12C0000
G_STR = 11264
WS_DBG = 0x2000000
WS_SIZE = 0x10000000
OOB = 0x7FFF0000

BLK = 12288
L_IMG = 0
L_RING = 9 * BLK
L_MISC = L_RING + 49152
LDS_SIZE = 163840
L_TAB = L_MISC
L_FX = L_MISC + 768
L_HALO = L_MISC + 3072
L_KRAW = 0
L_VRAW = BLK
L_KVO = 2 * BLK
L_KC = L_RING
KC_CH = 16656
L_UC = L_IMG + 16
UC_CH = 9280
L_CO = 20480
CO_W = 10944
PART_ROW = 272
PART_W = 16 * PART_ROW
SPIN = 20000

P_X, P_LRE, P_LIM, P_BRE, P_BIM, P_CRE, P_CIM, P_LDT = [8 + 2 * i for i in range(8)]
P_DSK, P_Q, P_K, P_V, P_SHK, P_SSK, P_SSD, P_OUT = [24 + 2 * i for i in range(8)]
P_DBG, P_WS = 40, 42
R_WS, R_X, R_BRE, R_BIM, R_K, R_V, R_OUT, R_SK = [44 + 4 * i for i in range(8)]
S_RB, S_CG, S_FAST, S_WAVE, S_TAG, S_L, S_PAIR, S_SPIN = range(76, 84)
S_KP = 84
S_T0, S_T1, S_T2, S_T3 = 93, 94, 95, 96
S_ROLE = 97
S_M1, S_M2 = 98, 100
S_A, S_B, S_C = 3, 4, 5
S_PC = 6
S_TT = 8
S_TU = 17
S_MSEL = 26
S_MACT = 40
S_W1K = 97
S_RINGW = 98
S_PT = 99
S_XCC = 20
S_CPB = 21
S_HB = 22

V = Alloc('v', 1, 256)
top = Stream()
tail = Stream()
lblc = [0]
STAMPS = []


def newlabel(p):
    lblc[0] += 1
    return 'L_%s_%d' % (p, lblc[0])


def put(*items):
    for it in items:
        if isinstance(it, tuple):
            V.put(*it)
        else:
            V.put(it)


def srd(a, r, p, size):
    a('s_mov_b64 %s, %s' % (sr(r, 2), sr(p, 2)))
    a('s_mov_b32 %s, 0x%x' % (sr(r + 2), size))
    a('s_mov_b32 %s, 0x20000' % sr(r + 3))


def cmul(a, d, x, y):
    a('v_pk_mul_f32 %s, %s, %s op_sel:[0,0] op_sel_hi:[1,0]' % (vr(d, 2), vr(x, 2), vr(y, 2)))
    a('v_pk_fma_f32 %s, %s, %s, %s op_sel:[1,1,0] op_sel_hi:[0,1,1] neg_lo:[1,0,0]' % (vr(d, 2), vr(x, 2), vr(y, 2), vr(d, 2)))


def cfma(a, d, x, y, c):
    a('v_pk_fma_f32 %s, %s, %s, %s op_sel:[0,0,0] op_sel_hi:[1,0,1]' % (vr(d, 2), vr(x, 2), vr(y, 2), vr(c, 2)))
    a('v_pk_fma_f32 %s, %s, %s, %s op_sel:[1,1,0] op_sel_hi:[0,1,1] neg_lo:[1,0,0]' % (vr(d, 2), vr(x, 2), vr(y, 2), vr(d, 2)))


def stamp(a, name):
    if not OPT['stamps']:
        return
    i = len(STAMPS)
    a('%s %s' % ('s_memtime' if OPT['cyc'] else 's_memrealtime', sr(S_M2, 2)), 's_waitcnt lgkmcnt(0)', 'v_writelane_b32 %s, %s, %d' % (vr(V_STAMP), sr(S_M2), i))
    STAMPS.append(name)


def astamp(a, i):
    if OPT['stamps'] or OPT.get('_sv'):
        a('s_memtime %s' % sr(S_M2, 2), 's_waitcnt lgkmcnt(0)', 'v_writelane_b32 %s, %s, %d' % (vr(V_STAMP), sr(S_M2), i))


def poll(a, loads, checks, pre_issued=False, sleep=0):
    p = Stream()
    L = newlabel('poll')
    Lc = newlabel('pollc')
    simple = len(checks) == 1 and checks[0][1] is None
    acc = None if simple else V.get(2, 1)
    p('s_mov_b32 %s, %d' % (sr(S_SPIN), SPIN))
    if pre_issued:
        regs = []
        for c in checks:
            regs += [vr(c[0])] + ([vr(c[1])] if c[1] is not None else [])
        p.touch(*regs)
        p.label(Lc)
    else:
        p.label(L)
        if sleep:
            p('s_sleep %d' % sleep)
        for t in loads:
            p(t)
        p('s_waitcnt vmcnt(0)')
    if len(checks) == 1 and checks[0][1] is None:
        p('v_cmp_ne_u32 vcc, %s, %s' % (vr(checks[0][0]), vr(checks[0][2])))
    else:
        first = True
        for (x, y, e) in checks:
            d = acc if first else acc + 1
            if y is None:
                p('v_xor_b32 %s, %s, %s' % (vr(d), vr(x), vr(e)))
            else:
                p('v_bitop3_b32 %s, %s, %s, %s bitop3:0x7e' % (vr(d), vr(x), vr(y), vr(e)))
            if not first:
                p('v_or_b32 %s, %s, %s' % (vr(acc), vr(acc), vr(acc + 1)))
            first = False
        p('v_cmp_ne_u32 vcc, 0, %s' % vr(acc))
    p('s_sub_u32 %s, %s, 1' % (sr(S_SPIN), sr(S_SPIN)))
    p('s_cselect_b64 vcc, 0, vcc')
    p('s_cmp_lg_u64 vcc, 0')
    p('s_cbranch_scc1 %s' % L)
    if pre_issued:
        tail.label(L)
        if sleep:
            tail('s_sleep %d' % sleep)
        for t in loads:
            tail(t)
        tail('s_waitcnt vmcnt(0)')
        tail('s_branch %s' % Lc)
    a.join(p)
    if acc is not None:
        V.put(acc, 2)


def dual(a, texts, touch=()):
    Ls, Lb = newlabel('slow'), newlabel('back')
    p = Stream()
    if touch:
        p.touch(*touch)
    p('s_cmp_eq_u32 %s, 0' % sr(S_FAST), 's_cbranch_scc1 %s' % Ls)
    tk = p.mem(*[t.replace(' {P}', '') for t in texts])
    p.label(Lb)
    a.join(p)
    tail.label(Ls)
    tail('s_nop 1')
    tail(*[t.replace('{P}', 'sc1') for t in texts])
    tail('s_branch %s' % Lb)
    return tk


def flag_texts(soff, pol):
    return ['s_mov_b64 exec, 1',
            'buffer_store_dword %s, %s, %s, %s offen %s' % (vr(V_TAG), vr(V_ZERO), sr(R_WS, 4), soff, pol),
            's_mov_b64 exec, -1']


def lam_loads(a, vp2):
    t = V.get(4)
    a('global_load_ushort %s, %s, %s' % (vr(t), vr(vp2), sr(P_LRE, 2)))
    a('global_load_ushort %s, %s, %s' % (vr(t + 1), vr(vp2), sr(P_LIM, 2)))
    a('global_load_ushort %s, %s, %s' % (vr(t + 2), vr(vp2), sr(P_LDT, 2)))
    return t


def lam_compute(a, t, want_coef, lam=None):
    if lam is None:
        lam = V.get(2)
    u = V.get(4)
    for i in range(3):
        a('v_lshlrev_b32 %s, 16, %s' % (vr(t + i), vr(t + i)))
    a('v_mul_f32 %s, 0x3fb8aa3b, %s' % (vr(t + 2), vr(t + 2)))
    a('v_exp_f32 %s, %s' % (vr(t + 2), vr(t + 2)))
    a('v_cvt_pk_bf16_f32 %s, %s, %s' % (vr(t + 2), vr(t + 2), vr(t + 2)))
    a('v_lshlrev_b32 %s, 16, %s' % (vr(t + 2), vr(t + 2)))
    a('v_mul_f32 %s, %s, %s' % (vr(u), vr(t + 2), vr(t)))
    a('v_mul_f32 %s, %s, %s' % (vr(u + 1), vr(t + 2), vr(t + 1)))
    a('v_mul_f32 %s, 0x3fb8aa3b, %s' % (vr(u), vr(u)))
    a('v_exp_f32 %s, %s' % (vr(u), vr(u)))
    a('v_mul_f32 %s, 0.15915494, %s' % (vr(u + 1), vr(u + 1)))
    a('v_rndne_f32 %s, %s' % (vr(u + 2), vr(u + 1)))
    a('v_sub_f32 %s, %s, %s' % (vr(u + 1), vr(u + 1), vr(u + 2)))
    a('v_cos_f32 %s, %s' % (vr(u + 2), vr(u + 1)))
    a('v_sin_f32 %s, %s' % (vr(u + 3), vr(u + 1)))
    a('v_mul_f32 %s, %s, %s' % (vr(lam), vr(u), vr(u + 2)))
    a('v_mul_f32 %s, %s, %s' % (vr(lam + 1), vr(u), vr(u + 3)))
    coef = None
    if want_coef:
        coef = V.get(2)
        a('v_add_f32 %s, -1.0, %s' % (vr(u), vr(lam)))
        a('v_mov_b32 %s, %s' % (vr(u + 1), vr(lam + 1)))
        a('v_mul_f32 %s, %s, %s' % (vr(u + 2), vr(t), vr(t)))
        a('v_fmac_f32 %s, %s, %s' % (vr(u + 2), vr(t + 1), vr(t + 1)))
        a('v_rcp_f32 %s, %s' % (vr(u + 2), vr(u + 2)))
        a('v_sub_f32 %s, 0, %s' % (vr(t + 1), vr(t + 1)))
        cmul(a, coef, u, t)
        a('v_mul_f32 %s, %s, %s' % (vr(coef), vr(coef), vr(u + 2)))
        a('v_mul_f32 %s, %s, %s' % (vr(coef + 1), vr(coef + 1), vr(u + 2)))
    put((u, 4), (t, 4))
    return lam, coef


def tag_ready(a):
    a('s_mul_i32 %s, %s, 0x9E3779B1' % (sr(S_TAG), sr(S_TAG)),
      's_add_u32 %s, %s, 0x7F4A7C15' % (sr(S_TAG), sr(S_TAG)),
      'v_mov_b32 %s, %s' % (vr(V_TAG), sr(S_TAG)))


def rbf(s, regs):
    for r in regs:
        s('v_cvt_pk_bf16_f32 %s, %s, %s' % (vr(r), vr(r), vr(r)))
    for r in regs:
        s('v_lshlrev_b32 %s, 16, %s' % (vr(r), vr(r)))


def rs12(s, S, Q):
    dp = 'v_add_f32_dpp %s, %s, %s %s row_mask:0xf bank_mask:0x%x'
    for X in (S, Q):
        for j in range(3):
            s(dp % (vr(X[j]), vr(X[j]), vr(X[j]), 'row_ror:8', 0x3))
    for X in (S, Q):
        for j in range(3):
            s(dp % (vr(X[j]), vr(X[j + 3]), vr(X[j + 3]), 'row_ror:8', 0xc))
    for X in (S, Q):
        s(dp % (vr(X[0]), vr(X[0]), vr(X[0]), 'row_half_mirror', 0x5))
        s(dp % (vr(X[2]), vr(X[2]), vr(X[2]), 'row_half_mirror', 0xf))
    for X in (S, Q):
        s(dp % (vr(X[0]), vr(X[1]), vr(X[1]), 'row_half_mirror', 0xa))
    for qp in ('quad_perm:[1,0,3,2]', 'quad_perm:[2,3,0,1]'):
        for r in (S[2], Q[2], S[0], Q[0]):
            s(dp % (vr(r), vr(r), vr(r), qp, 0xf))


def tile_src(i):
    hf, j = divmod(i, 3)
    if j == 2:
        return 1, 8 * hf
    return 0, 8 * hf + 4 * j


a = top
V_LANE, V_TAG, V_STAMP, V_L16, V_N, V_Q = [V.get() for _ in range(6)]
V_OOB = V.get()
V_JUNK = V.get()
V_ZERO = V.get(2)
V_DUMMY = V.get(4)
NCOMMON = V.hw
BASE = V.get(24)
V_DSK = V.get(4)
V_FA = V.get(4)
LAM, L12, L24, L384, LQ96, LQ24, RB, OFF = [V.get(2) for _ in range(8)]
(V_TAU, V_OROW, V_STW, V_STR, V_EXP9, V_TABW, V_EW, V_ER, V_HW, V_HR, V_TABR, V_WA) = [V.get() for _ in range(12)]
WCV = V.home(32)
GP = V.home(12)
V_PW = V.home(4)
V_PR, V_PW2, V_PR2 = V_PW + 1, V_PW + 2, V_PW + 3
HOMES = ((WCV, 32), (GP, 12), (V_PW, 4))
V_DX = V.get(3, 1)

a('s_cmp_ge_u32 s2, 256')
a('s_cbranch_scc1 L_end')
a('s_load_dwordx16 s[8:23], s[0:1], 0')
a('s_load_dwordx16 s[24:39], s[0:1], 64')
a('s_load_dwordx4 s[40:43], s[0:1], 128')
a('s_getpc_b64 %s' % sr(S_PC, 2))
a.label('L_pc')
a('s_lshr_b32 %s, s2, 3' % sr(S_T0))
a('s_lshl_b32 %s, %s, 12' % (sr(S_T1), sr(S_T0)))
a('v_lshl_add_u32 %s, v0, 4, %s' % (vr(V_TAG), sr(S_T1)))
a('s_mov_b32 %s, L_end-L_pc-16' % sr(S_T1))
a('v_min_u32 %s, %s, %s' % (vr(V_TAG), sr(S_T1), vr(V_TAG)))
a('global_load_dwordx4 %s, %s, %s ;junk' % (vr(V_DUMMY, 4), vr(V_TAG), sr(S_PC, 2)))
a('v_and_b32 %s, 63, v0' % vr(V_LANE))
a('v_lshrrev_b32 %s, 6, v0' % vr(V_Q))
a('v_lshlrev_b32 %s, 4, %s' % (vr(V_L16), vr(V_LANE)))
a('v_readfirstlane_b32 %s, %s' % (sr(S_WAVE), vr(V_Q)))
if OPT['stamps']:
    a('v_mov_b32 %s, 0' % vr(V_STAMP))
stamp(a, 'start')
a('v_and_b32 %s, 15, %s' % (vr(V_N), vr(V_LANE)))
a('v_lshrrev_b32 %s, 4, %s' % (vr(V_Q), vr(V_LANE)))
a('v_mov_b32 %s, 0' % vr(V_ZERO))
a('v_mov_b32 %s, 0' % vr(V_ZERO + 1))
a('v_mov_b32 %s, 0x%x' % (vr(V_OOB), OOB))
a('s_and_b32 %s, s2, 7' % sr(S_T1))
a('s_mul_i32 %s, %s, 27' % (sr(S_T2), sr(S_T1)))
a('s_add_u32 %s, %s, %s' % (sr(S_T2), sr(S_T2), sr(S_T0)))
a('s_mul_i32 %s, %s, 5' % (sr(S_T3), sr(S_T1)))
a('s_add_u32 %s, %s, %s' % (sr(S_T3), sr(S_T3), sr(S_T0)))
a('s_add_u32 %s, %s, %d' % (sr(S_T3), sr(S_T3), 216 - 27))
a('s_cmp_lt_u32 %s, 27' % sr(S_T0))
a('s_cselect_b32 %s, %s, %s' % (sr(S_L), sr(S_T2), sr(S_T3)))
a('s_mul_i32 %s, %s, 57' % (sr(S_RB), sr(S_L)))
a('s_lshr_b32 %s, %s, 9' % (sr(S_RB), sr(S_RB)))
a('s_mul_i32 %s, %s, 9' % (sr(S_T0), sr(S_RB)))
a('s_sub_u32 %s, %s, %s' % (sr(S_CG), sr(S_L), sr(S_T0)))
a('s_mov_b32 %s, %s' % (sr(S_PAIR), sr(S_L)))
a('s_and_b32 %s, %s, 1' % (sr(S_A), sr(S_WAVE)))
a('s_lshr_b32 %s, %s, 1' % (sr(S_B), sr(S_WAVE)))
a('s_cmp_ge_u32 %s, %d' % (sr(S_L), NMAIN))
a('s_cbranch_scc1 L_aux')

t, t2, t3 = V.get(), V.get(), V.get()
LAMT = V.get(4)
lad, dad = V.get(), V.get()
V_DB = V.get(2)
c0 = V.get()
a('v_lshrrev_b32 %s, 3, %s' % (vr(t), vr(V_LANE)))
a('v_and_b32 %s, 7, %s' % (vr(t3), vr(V_LANE)))
a('s_lshl2_add_u32 %s, %s, %s' % (sr(S_PT), sr(S_CG), sr(S_WAVE)))
a('s_lshl_b32 %s, %s, 10' % (sr(S_W1K), sr(S_WAVE)))
a('s_mul_i32 %s, %s, 12288' % (sr(S_RINGW), sr(S_WAVE)))
a('s_add_u32 %s, %s, %d' % (sr(S_RINGW), sr(S_RINGW), L_RING))
a('s_lshl_b32 %s, %s, 7' % (sr(S_KP), sr(S_CG)))
a('v_xor_b32 %s, %s, %s' % (vr(c0), vr(t3), vr(V_Q)))
a('v_lshlrev_b32 %s, 4, %s' % (vr(c0), vr(c0)))
a('v_lshrrev_b32 %s, 5, %s' % (vr(t2), vr(V_LANE)))
a('v_mul_u32_u24 %s, 24, %s' % (vr(t2), vr(t2)))
a('v_and_b32 %s, 1, %s' % (vr(t3), vr(t)))
a('v_mad_u32_u24 %s, %s, 12, %s' % (vr(t2), vr(t3), vr(t2)))
a('v_and_b32 %s, 1, %s' % (vr(t3), vr(V_Q)))
a('s_mul_i32 %s, %s, 48' % (sr(S_T0), sr(S_A)))
a('s_mul_i32 %s, %s, 96' % (sr(S_T1), sr(S_RB)))
a('s_add_u32 %s, %s, %s' % (sr(S_T0), sr(S_T0), sr(S_T1)))
a('s_lshl1_add_u32 %s, %s, %s' % (sr(S_T0), sr(S_B), sr(S_T0)))
a('v_add3_u32 %s, %s, %s, %s' % (vr(t2), vr(t2), vr(t3), sr(S_T0)))
a('v_mul_u32_u24 %s, 1152, %s' % (vr(t2), vr(t2)))
a('s_lshl_b32 %s, %s, 6' % (sr(S_T0), sr(S_A)))
a('v_xor_b32 %s, %s, %s' % (vr(V_DX), sr(S_T0), vr(c0)))
a('v_add_u32 %s, %s, %s' % (vr(V_DX), vr(V_DX), vr(t2)))
a('v_add_u32 %s, 4608, %s' % (vr(V_DX + 1), vr(V_DX)))
a('v_add_u32 %s, 9216, %s' % (vr(V_DX + 2), vr(V_DX)))
a('s_lshl_b32 %s, %s, 4' % (sr(S_T0), sr(S_PT)))
a('v_add_u32 %s, %s, %s' % (vr(t2), sr(S_T0), vr(t)))
a('v_mul_u32_u24 %s, 1152, %s' % (vr(t2), vr(t2)))
a('v_add_u32 %s, %s, %s' % (vr(V_DB), vr(t2), vr(c0)))
a('v_xor_b32 %s, 64, %s' % (vr(V_DB + 1), vr(c0)))
a('v_add_u32 %s, %s, %s' % (vr(V_DB + 1), vr(V_DB + 1), vr(t2)))
a('v_add_u32 %s, %d, %s' % (vr(V_DB + 1), 8 * 1152, vr(V_DB + 1)))
put(c0)
a('s_mov_b32 %s, 0x%x' % (sr(R_X + 2), 2048 * 1152))
a('s_mov_b32 %s, 0x20000' % sr(R_X + 3))
for r_ in (R_BRE, R_BIM):
    a('s_mov_b32 %s, 0x%x' % (sr(r_ + 2), 576 * 1152))
    a('s_mov_b32 %s, 0x20000' % sr(r_ + 3))
a('s_waitcnt lgkmcnt(0)')
a('s_mov_b64 %s, %s' % (sr(R_X, 2), sr(P_X, 2)))
a('s_mov_b64 %s, %s' % (sr(R_BRE, 2), sr(P_BRE, 2)))
a('s_mov_b64 %s, %s' % (sr(R_BIM, 2), sr(P_BIM, 2)))


def x_dma(s, blk, layer):
    tk = None
    for u in range(3):
        s('s_add_u32 m0, %s, %d' % (sr(S_W1K), L_IMG + blk * BLK + u * 4096))
        tk = s.mem('buffer_load_dwordx4 %s, %s, %s offen%s lds' % (vr(V_DX + u), sr(R_X if layer == 0 else R_WS, 4),
                                                                   sr((S_KP if layer == 0 else S_TT) + blk), ' nt' if layer == 0 else ' sc1'))
    return tk


WB = lambda kp, h, mat: ((kp * 2 + h) * 2 + mat) * 4


def b_dma(s, kp):
    tk = None
    for b in range(4):
        s('s_add_u32 m0, %s, %d' % (sr(S_RINGW), (kp % 3) * 4096 + b * 1024))
        tk = s.mem('buffer_load_dwordx4 %s, %s, %s offen lds' % (vr(V_DB + (b & 1)), sr(R_BRE if b < 2 else R_BIM, 4), sr(S_KP + kp)))
    return tk


xtk, btk = {}, {}
i0, kt = Stream(), Stream()
xtk[0] = x_dma(i0, 0, 0)
btk[0] = b_dma(i0, 0)
kt('s_load_dword %s, %s, 0' % (sr(S_TAG), sr(P_WS, 2)))
kt('s_mul_i32 %s, %s, 43' % (sr(S_T0), sr(S_RB)))
kt('s_lshr_b32 %s, %s, 7' % (sr(S_T0), sr(S_T0)))
kt('s_mul_i32 %s, %s, 3' % (sr(S_T0), sr(S_T0)))
kt('s_sub_u32 %s, %s, %s' % (sr(S_T0), sr(S_RB), sr(S_T0)))
kt('s_lshl_b32 %s, 128, %s' % (sr(S_T0), sr(S_T0)))
for i in range(1, 9):
    kt('s_add_u32 %s, %s, %s' % (sr(S_KP + i), sr(S_KP + i - 1), sr(S_T0)),
       's_sub_u32 %s, %s, 1152' % (sr(S_T1), sr(S_KP + i)),
       's_cselect_b32 %s, %s, %s' % (sr(S_KP + i), sr(S_KP + i), sr(S_T1)))
a.weave(i0, kt)
a('s_lshl_b32 %s, %s, 5' % (sr(S_T1), sr(S_PT)))
a('v_lshl_add_u32 %s, %s, 1, %s' % (vr(lad), vr(V_N), sr(S_T1)))
btk[1] = b_dma(a, 1)
a('global_load_ushort %s, %s, %s' % (vr(LAMT), vr(lad), sr(P_LRE, 2)))
a('global_load_ushort %s, %s, %s' % (vr(LAMT + 1), vr(lad), sr(P_LIM, 2)))
a('global_load_ushort %s, %s, %s' % (vr(LAMT + 2), vr(lad), sr(P_LDT, 2)))
srd(a, R_WS, P_WS, WS_SIZE)
su = Stream()
V_FB = V.get(2)
su('v_lshrrev_b32 %s, 1, %s' % (vr(t), vr(V_N)))
su('v_xor_b32 %s, %s, %s' % (vr(t), vr(t), vr(V_Q)))
su('v_lshlrev_b32 %s, 4, %s' % (vr(t), vr(t)))
su('v_lshl_add_u32 %s, %s, 7, %s' % (vr(V_FA), vr(V_N), vr(t)))
su('v_xor_b32 %s, 64, %s' % (vr(V_FA + 1), vr(V_FA)))
su('v_add_u32 %s, %d, %s' % (vr(V_FA + 2), 4 * BLK, vr(V_FA)))
su('v_add_u32 %s, %d, %s' % (vr(V_FA + 3), 4 * BLK, vr(V_FA + 1)))
su('v_add_u32 %s, %s, %s' % (vr(V_FB), sr(S_RINGW), vr(V_FA)))
su('v_add_u32 %s, %s, %s' % (vr(V_FB + 1), sr(S_RINGW), vr(V_FA + 1)))
srd(su, R_OUT, P_OUT, 2048 * 2304)
su('s_mov_b32 %s, 0x02020202' % sr(S_MSEL), 's_mov_b32 %s, 0x02020202' % sr(S_MSEL + 1))
su('s_mov_b32 %s, 0x13131313' % sr(S_MACT), 's_mov_b32 %s, 0x13131313' % sr(S_MACT + 1))
su('s_getreg_b32 %s, hwreg(HW_REG_XCC_ID, 0, 4)' % sr(S_XCC))
su('v_and_b32 %s, 1, %s' % (vr(t), vr(V_Q)))
su('v_mul_u32_u24 %s, 12, %s' % (vr(V_TAU), vr(t)))
su('v_lshrrev_b32 %s, 1, %s' % (vr(t2), vr(V_Q)))
su('v_add_u32 %s, %s, %s' % (vr(V_TAU), vr(V_TAU), vr(t2)))
su('s_mul_i32 %s, %s, 96' % (sr(S_T0), sr(S_RB)),
   's_mul_i32 %s, %s, 24' % (sr(S_T1), sr(S_WAVE)),
   's_add_u32 %s, %s, %s' % (sr(S_T0), sr(S_T0), sr(S_T1)),
   'v_add_u32 %s, %s, %s' % (vr(t3), sr(S_T0), vr(V_TAU)))
su('v_mul_u32_u24 %s, 2304, %s' % (vr(V_OROW), vr(t3)))
su('s_lshl_b32 %s, %s, 8' % (sr(S_T0), sr(S_CG)),
   'v_lshl_add_u32 %s, %s, 4, %s' % (vr(t3), vr(V_N), sr(S_T0)))
su('v_add_u32 %s, %s, %s' % (vr(V_OROW), vr(V_OROW), vr(t3)))
TI = V.get()
su('v_lshrrev_b32 %s, 3, %s' % (vr(TI), vr(V_N)))
su('v_mul_u32_u24 %s, 3, %s' % (vr(TI), vr(TI)))
su('v_bfe_u32 %s, %s, 2, 1' % (vr(t3), vr(V_N)))
su('v_cndmask_b32 %s, %s, 2, %s' % (vr(t3), vr(t3), sr(S_MSEL, 2)))
su('v_add_u32 %s, %s, %s' % (vr(TI), vr(TI), vr(t3)))
su('v_lshl_add_u32 %s, %s, 1, %s' % (vr(t3), vr(TI), vr(t2)))
su('v_lshlrev_b32 %s, 4, %s' % (vr(t3), vr(t3)))
su('v_lshl_add_u32 %s, %s, 2, %s' % (vr(V_TABW), vr(t), vr(t3)))
su('s_mul_i32 %s, %s, 192' % (sr(S_T0), sr(S_WAVE)),
   's_add_u32 %s, %s, %d' % (sr(S_T0), sr(S_T0), L_TAB),
   'v_add_u32 %s, %s, %s' % (vr(V_TABW), sr(S_T0), vr(V_TABW)))
su('v_mul_u32_u24 %s, 192, %s' % (vr(V_TABR), vr(V_Q)))
su('v_add_u32 %s, %d, %s' % (vr(V_TABR), L_TAB, vr(V_TABR)))
su('s_mul_i32 %s, %s, 96' % (sr(S_T0), sr(S_RB)),
   's_lshl2_add_u32 %s, %s, %s' % (sr(S_T0), sr(S_WAVE), sr(S_T0)),
   'v_add_u32 %s, %s, %s' % (vr(t), sr(S_T0), vr(V_Q)))
su('v_lshlrev_b32 %s, 8, %s' % (vr(t), vr(t)))
su('v_lshl_add_u32 %s, %s, 4, %s' % (vr(V_STR), vr(V_N), vr(t)))
su('v_cmp_gt_u32 vcc, 9, %s' % vr(V_N),
   'v_cndmask_b32 %s, %s, %s, vcc' % (vr(V_STR), vr(V_OOB), vr(V_STR)))
su('v_lshl_add_u32 %s, %s, 12, %s' % (vr(V_STW), vr(TI), vr(t)))
su('s_lshl_b32 %s, %s, 4' % (sr(S_T0), sr(S_CG)),
   'v_add_u32 %s, %s, %s' % (vr(V_STW), sr(S_T0), vr(V_STW)))
su('v_cndmask_b32 %s, %s, %s, %s' % (vr(V_STW), vr(V_OOB), vr(V_STW), sr(S_MACT, 2)))
put(TI)
su('s_lshl_b32 %s, %s, 2' % (sr(S_T0), sr(S_WAVE)),
   'v_add_u32 %s, %s, %s' % (vr(V_WA), sr(S_T0), vr(V_Q)))
su('v_xor_b32 %s, %s, %s' % (vr(t), vr(V_WA), vr(V_N)))
su('v_lshrrev_b32 %s, 1, %s' % (vr(t), vr(t)))
su('v_lshlrev_b32 %s, 4, %s' % (vr(t), vr(t)))
su('v_lshl_add_u32 %s, %s, 7, %s' % (vr(V_WA), vr(V_WA), vr(t)))
su('v_and_b32 %s, 1, %s' % (vr(t), vr(V_N)))
su('v_lshl_add_u32 %s, %s, 3, %s' % (vr(V_WA), vr(t), vr(V_WA)))
su('s_lshl_b32 %s, %s, 8' % (sr(S_T0), sr(S_RB)),
   'v_lshl_add_u32 %s, %s, 4, %s' % (vr(V_EW), vr(V_N), sr(S_T0)))
su('v_lshlrev_b32 %s, 8, %s' % (vr(t), vr(V_Q)))
su('v_sub_u32 %s, %s, %s' % (vr(V_ER), vr(V_EW), vr(t)))
su('v_subrev_u32 %s, 256, %s' % (vr(V_ER), vr(V_ER)))
su('v_cmp_gt_u32 vcc, 16, %s' % vr(V_LANE),
   'v_cndmask_b32 %s, %s, %s, vcc' % (vr(V_EW), vr(V_OOB), vr(V_EW)))
su('v_lshl_add_u32 %s, %s, 2, %s' % (vr(t), vr(V_N), vr(t)))
su('s_mul_i32 %s, %s, 6144' % (sr(S_T0), sr(S_WAVE)), 's_add_u32 %s, %s, %d' % (sr(S_T0), sr(S_T0), 5 * BLK),
   'v_add_u32 %s, %s, %s' % (vr(V_HW), sr(S_T0), vr(t)))
su('v_lshlrev_b32 %s, 4, %s' % (vr(t), vr(V_Q)))
su('v_lshl_add_u32 %s, %s, 6, %s' % (vr(t), vr(V_N), vr(t)))
su('s_mul_i32 %s, %s, 6144' % (sr(S_T0), sr(S_WAVE)), 's_add_u32 %s, %s, %d' % (sr(S_T0), sr(S_T0), 5 * BLK),
   'v_add_u32 %s, %s, %s' % (vr(V_HR), sr(S_T0), vr(t)))
a.extend(su)
put(t, t2, t3)
a('s_lshl_b32 %s, %s, 7' % (sr(S_T1), sr(S_CG)))
a('v_lshl_add_u32 %s, %s, 3, %s' % (vr(dad), vr(V_N), sr(S_T1)))
stamp(a, 'setup')


def b_read(s, kp):
    s.wait(btk[kp])
    tk = None
    for h in range(2):
        for mat in range(2):
            tk = s.mem('ds_read_b128 %s, %s offset:%d' % (ar(WB(kp, h, mat), 4), vr(V_FB + h), (kp % 3) * 4096 + mat * 2048))
    return tk


class KVm:
    pass


def kv_dma(s, kv):
    kv.SHK = V.get(4, top=True)
    t, t2, kh = V.get(), V.get(), V.get()
    s('s_cmp_lt_u32 %s, 6' % sr(S_CG),
      's_cselect_b32 %s, %d, 0' % (sr(R_K + 2), 2048 * 1152),
      's_mov_b32 %s, %s' % (sr(R_V + 2), sr(R_K + 2)),
      's_mov_b32 %s, %s' % (sr(R_K), sr(P_K)), 's_and_b32 %s, %s, 0xffff' % (sr(R_K + 1), sr(P_K + 1)),
      's_mov_b32 %s, 0x20000' % sr(R_K + 3))
    s('s_mov_b32 %s, %s' % (sr(R_V), sr(P_V)), 's_and_b32 %s, %s, 0xffff' % (sr(R_V + 1), sr(P_V + 1)),
      's_mov_b32 %s, 0x20000' % sr(R_V + 3))
    s('v_lshrrev_b32 %s, 3, %s' % (vr(t), vr(V_LANE)))
    s('v_mul_u32_u24 %s, 1152, %s' % (vr(t2), vr(t)))
    s('v_and_b32 %s, 7, %s' % (vr(t), vr(V_LANE)))
    s('v_lshl_add_u32 %s, %s, 4, %s' % (vr(t2), vr(t), vr(t2)))
    s('s_lshl_b32 %s, %s, 7' % (sr(S_T1), sr(S_PT)),
      'v_lshl_add_u32 %s, %s, 4, %s' % (vr(t), vr(t), sr(S_T1)),
      'global_load_dwordx4 %s, %s, %s' % (vr(kv.SHK, 4), vr(t), sr(P_SHK, 2)))
    s('s_mul_i32 %s, %s, %d' % (sr(S_T0), sr(S_RB), 96 * 1152),
      's_lshl_b32 %s, %s, 7' % (sr(S_T1), sr(S_CG)),
      's_add_u32 %s, %s, %s' % (sr(S_T0), sr(S_T0), sr(S_T1)),
      's_sub_u32 %s, %s, %d' % (sr(S_T1), sr(S_T0), 8 * 1152),
      'v_add_u32 %s, %s, %s' % (vr(kh), sr(S_T1), vr(t2)),
      's_mul_i32 %s, %s, %d' % (sr(S_T1), sr(S_WAVE), 8 * 1152),
      's_add_u32 %s, %s, %s' % (sr(S_T0), sr(S_T0), sr(S_T1)),
      'v_add_u32 %s, %s, %s' % (vr(t2), sr(S_T0), vr(t2)))
    s('s_mov_b32 m0, %d' % L_HALO)
    s('buffer_load_dwordx4 %s, %s, 0 offen nt lds' % (vr(kh), sr(R_K, 4)))
    for u in range(3):
        for base, rr in ((L_KRAW, R_K), (L_VRAW, R_V)):
            s('s_add_u32 m0, %s, %d' % (sr(S_W1K), base + u * 4096))
            kv.tok = s.mem('s_mov_b32 %s, %d' % (sr(S_T2), u * 32 * 1152),
                           'buffer_load_dwordx4 %s, %s, %s offen nt lds' % (vr(t2), sr(rr, 4), sr(S_T2)))
    kv.rel = [t, t2, kh]


def kv_core(kc, ntp, krow, vrow, SHK, emit_unit, touch=None):
    W, KU, P = V.get(8), V.get(16), V.get(16)
    S4 = V.get(4, 1)
    OU = V.get(8)
    ONE2 = V.get()
    kc('v_mov_b32 %s, 0x3f803f80' % vr(ONE2))
    kc('v_mov_b32 %s, %s' % (vr(OU + 3), vr(V_TAG)))
    kc('v_mov_b32 %s, %s' % (vr(OU + 7), vr(V_TAG)))
    for j in range(4):
        for ch in range(2):
            src = SHK + 2 * ch + (j >> 1)
            kc(('v_and_b32 %s, 0xffff0000, %s' if j & 1 else 'v_lshlrev_b32 %s, 16, %s') % (vr(W + 2 * j + ch), vr(src)))
    ku = lambda r: KU + 2 * ((r + 3) % 8)

    def unpack_k(r):
        kc('v_lshlrev_b32 %s, 16, %s' % (vr(ku(r)), vr(krow(r))))
        kc('v_and_b32 %s, 0xffff0000, %s' % (vr(ku(r) + 1), vr(krow(r))))

    for r in (-3, -2, -1):
        unpack_k(r)
    for tp in range(ntp):
        if touch is not None:
            touch(tp)
        for tt in range(2):
            unpack_k(2 * tp + tt)
        for tt in range(2):
            for j in range(4):
                kc('v_pk_mul_f32 %s, %s, %s' % (vr(P + tt * 8 + 2 * j, 2), vr(ku(2 * tp + tt - j), 2), vr(W + 2 * j, 2)))
        idx = [(tt, ch) for tt in range(2) for ch in range(2)]
        for step in range(3):
            for u, (tt, ch) in enumerate(idx):
                first = vr(P + tt * 8 + 6 + ch) if step == 0 else vr(S4 + u)
                kc('v_cvt_pk_bf16_f32 %s, %s, %s' % (vr(S4 + u), first, vr(P + tt * 8 + 2 * (2 - step) + ch)))
            for u in range(4):
                kc('v_dot2_f32_bf16 %s, %s, %s, 0' % (vr(S4 + u), vr(S4 + u), vr(ONE2)))
        for u, (tt, ch) in enumerate(idx):
            kc('v_cvt_pk_bf16_f32 %s, %s, %s' % (vr(S4 + u), vr(S4 + u) if ch == 0 else '0', '0' if ch == 0 else vr(S4 + u)))
        for u, (tt, ch) in enumerate(idx):
            kc('v_dot2_f32_bf16 %s, %s, %s, 0' % (vr(S4 + u), vr(S4 + u), vr(vrow(2 * tp + tt))))
        pos = ntp - 1 - tp
        for ch in range(2):
            kc('v_cvt_pk_bf16_f32 %s, %s, %s' % (vr(OU + 4 * ch + pos % 3), vr(S4 + 2 + ch), vr(S4 + ch)))
        if pos % 3 == 0:
            for ch in range(2):
                emit_unit(ch, pos // 3, OU + 4 * ch)
    put((W, 8), (KU, 16), (P, 16), (S4, 4), (OU, 8), ONE2)


def kv_main(s, kv, ks):
    ka, kb, kh, t, t2 = [V.get() for _ in range(5)]
    s('v_lshrrev_b32 %s, 3, %s' % (vr(t), vr(V_LANE)))
    s('v_and_b32 %s, 7, %s' % (vr(t2), vr(V_LANE)))
    s('s_lshl_b32 %s, %s, 5' % (sr(S_T0), sr(S_WAVE)),
      'v_lshl_add_u32 %s, %s, 2, %s' % (vr(kh), vr(t2), sr(S_T0)))
    s('v_mul_u32_u24 %s, 1536, %s' % (vr(ka), vr(t)))
    s('v_add_u32 %s, %s, %s' % (vr(ka), vr(ka), vr(kh)))
    s('v_add_u32 %s, 128, %s' % (vr(kb), vr(ka)))
    s('v_add_u32 %s, %d, %s' % (vr(kh), L_HALO + 5 * 128, vr(kh)))
    s('v_subrev_u32 %s, 384, %s' % (vr(t2), vr(ka)))
    s('v_cmp_eq_u32 vcc, 0, %s' % vr(t), 'v_cndmask_b32 %s, %s, %s, vcc' % (vr(kh), vr(t2), vr(kh)))
    KR, VR = V.get(16, 2), V.get(12, 2)
    ridx = lambda r: (r >> 2) * 4 + (r & 1) * 2 + ((r >> 1) & 1)
    krow = lambda r: KR + 3 + r if r < 0 else KR + 4 + ridx(r)
    vrow = lambda r: VR + ridx(r)
    s.wait(kv.tok)
    s('s_barrier')
    s('ds_read2_b32 %s, %s offset0:0 offset1:32' % (vr(KR, 2), vr(kh)))
    s('ds_read_b32 %s, %s offset:256' % (vr(KR + 2), vr(kh)))
    for g in range(3):
        for par in range(2):
            s('ds_read2st64_b32 %s, %s offset0:%d offset1:%d' % (vr(KR + 4 + g * 4 + par * 2, 2), vr(kb if par else ka), 2 * g, 2 * g + 1))
        for par in range(2):
            s('ds_read2st64_b32 %s, %s offset0:%d offset1:%d' % (vr(VR + g * 4 + par * 2, 2), vr(kb if par else ka), 48 + 2 * g, 48 + 2 * g + 1))
    s('v_and_b32 %s, 7, %s' % (vr(t2), vr(V_LANE)))
    s('v_sub_u32 %s, 7, %s' % (vr(t), vr(t)))
    s('v_lshlrev_b32 %s, 5, %s' % (vr(t), vr(t)))
    s('v_mul_u32_u24 %s, 528, %s' % (vr(t2), vr(t2)))
    s('s_mul_i32 %s, %s, 4224' % (sr(S_T0), sr(S_WAVE)),
      'v_add3_u32 %s, %s, %s, %s' % (vr(t), vr(t), vr(t2), sr(S_T0)),
      'v_lshrrev_b32 %s, 5, %s' % (vr(t2), vr(V_LANE)),
      'v_lshlrev_b32 %s, 4, %s' % (vr(t2), vr(t2)),
      'v_add3_u32 %s, %s, %s, %s' % (vr(t2), vr(t2), vr(V_L16), sr(S_T0)))
    kv_core(s, 6, krow, vrow, kv.SHK,
            lambda ch, un, reg: s('ds_write_b128 %s, %s offset:%d' % (vr(t), vr(reg, 4), L_KVO + ch * 256 + un * 16)))
    put((KR, 16), (VR, 12), (kv.SHK, 4))
    D = V.get(16)
    for i in range(4):
        s('ds_read_b128 %s, %s offset:%d' % (vr(D + 4 * i, 4), vr(t2), L_KVO + i * 1056))
    s('v_mul_u32_u24 %s, %d, %s' % (vr(ka), KVT_STR, vr(V_Q)))
    s('v_lshl_add_u32 %s, %s, 4, %s' % (vr(ka), vr(V_N), vr(ka)))
    s('s_mul_i32 %s, %s, %d' % (sr(S_T0), sr(S_PT), 16 * KVT_STR),
      's_lshl_b32 %s, %s, 8' % (sr(S_T1), sr(S_RB)),
      's_sub_u32 %s, %s, %s' % (sr(S_T0), sr(S_T0), sr(S_T1)),
      's_add_u32 %s, %s, %d' % (sr(S_T0), sr(S_T0), WS_KVT + 21 * 256),
      's_cmp_lt_u32 %s, 6' % sr(S_CG),
      's_cselect_b32 %s, %s, 0x40000000' % (sr(S_T0), sr(S_T0)),
      'v_add_u32 %s, %s, %s' % (vr(ka), sr(S_T0), vr(ka)))
    for i in range(4):
        ks('s_mov_b32 %s, %d' % (sr(S_T1), 4 * i * KVT_STR),
           'buffer_store_dwordx4 %s, %s, %s, %s offen sc1' % (vr(D + 4 * i, 4), vr(ka), sr(R_WS, 4), sr(S_T1)))
    ks('s_nop 1')
    put((D, 16), ka, kb, kh, t, t2)


def stats_partial(s, X, S, Q, i, d, pk):
    x = X + 4 * i
    if pk:
        s('v_pk_add_f32 %s, %s, %s' % (vr(d, 2), vr(x, 2), vr(x + 2, 2)),
          'v_pk_mul_f32 %s, %s, %s' % (vr(d + 2, 2), vr(x, 2), vr(x, 2)),
          'v_add_f32 %s, %s, %s' % (vr(S + i), vr(d), vr(d + 1)),
          'v_pk_fma_f32 %s, %s, %s, %s' % (vr(d + 2, 2), vr(x + 2, 2), vr(x + 2, 2), vr(d + 2, 2)),
          'v_add_f32 %s, %s, %s' % (vr(Q + i), vr(d + 2), vr(d + 3)))
    else:
        s('v_add_f32 %s, %s, %s' % (vr(S + i), vr(x), vr(x + 1)))
        s('v_mul_f32 %s, %s, %s' % (vr(Q + i), vr(x), vr(x)))
        s('v_add_f32 %s, %s, %s' % (vr(S + i), vr(S + i), vr(x + 2)))
        s('v_fmac_f32 %s, %s, %s' % (vr(Q + i), vr(x + 1), vr(x + 1)))
        s('v_add_f32 %s, %s, %s' % (vr(S + i), vr(S + i), vr(x + 3)))
        s('v_fmac_f32 %s, %s, %s' % (vr(Q + i), vr(x + 2), vr(x + 2)))
        s('v_fmac_f32 %s, %s, %s' % (vr(Q + i), vr(x + 3), vr(x + 3)))


def stats_publish(s, X, which, fast, pk=True, SQ=None, tiles=range(MT)):
    if SQ is None:
        S, Q = V.get(6, 1), V.get(6, 1)
    else:
        S, Q = SQ
    d = V.get(4)
    for i in tiles:
        stats_partial(s, X, S, Q, i, d, pk)
    s('v_add_u32 %s, %d, %s' % (vr(d + 1), 16 * which, vr(V_TAG)))
    if which == 0:
        s('v_add_u32 %s, %s, %s' % (vr(d + 3), sr(S_XCC), vr(V_TAG)))
    else:
        s('v_add_u32 %s, %d, %s' % (vr(d + 3), 16 * which, vr(V_TAG)))
    rs12(s, [S + i for i in range(6)], [Q + i for i in range(6)])
    s('v_cndmask_b32 %s, %s, %s, %s' % (vr(d), vr(S), vr(S + 2), sr(S_MSEL, 2)))
    s('v_cndmask_b32 %s, %s, %s, %s' % (vr(d + 2), vr(Q), vr(Q + 2), sr(S_MSEL, 2)))
    txt = ['s_mov_b32 %s, %d' % (sr(S_T0), WS_ST + (which == 2) * ST_SZ),
           'buffer_store_dwordx4 %s, %s, %s, %s offen {P}' % (vr(d, 4), vr(V_STW), sr(R_WS, 4), sr(S_T0)), 's_nop 1']
    if fast:
        dual(s, txt)
    else:
        s(*[x.replace('{P}', 'sc1') for x in txt])
    put((S, 6), (Q, 6), (d, 4))


def stats_loads(which, G):
    L = []
    for i in range(MT):
        L.append('s_mov_b32 %s, %d' % (sr(S_T0), WS_ST + (which == 2) * ST_SZ + 4096 * i))
        L.append('buffer_load_dwordx4 %s, %s, %s, %s offen sc1' % (vr(G + 4 * i, 4), vr(V_STR), sr(R_WS, 4), sr(S_T0)))
    return L


def stats_exp(s, which):
    e = V.get()
    s('v_add_u32 %s, %d, %s' % (vr(e), 16 * which, vr(V_TAG)),
      'v_cmp_gt_u32 vcc, 9, %s' % vr(V_N),
      'v_cndmask_b32 %s, 0, %s, vcc' % (vr(e), vr(e)))
    return e


def stats_finish(s, G):
    rs12(s, [G + 4 * i for i in range(6)], [G + 4 * i + 2 for i in range(6)])
    P = V.get(4, top=True)
    for k, src in ((0, G), (1, G + 8)):
        s('v_mul_f32 %s, 0x3ae38e39, %s' % (vr(P + 2 * k), vr(src)))
        s('v_mul_f32 %s, 0x3ae38e39, %s' % (vr(P + 2 * k + 1), vr(src + 2)))
    for k in range(2):
        s('v_fma_f32 %s, -%s, %s, %s' % (vr(P + 2 * k + 1), vr(P + 2 * k), vr(P + 2 * k), vr(P + 2 * k + 1)))
    for k in range(2):
        s('v_max_f32 %s, 0, %s' % (vr(P + 2 * k + 1), vr(P + 2 * k + 1)))
    return P


def bcast(s, dst, P, i):
    k, lane = tile_src(i)
    s('v_mov_b64_dpp %s, %s row_newbcast:%d row_mask:0xf bank_mask:0xf' % (vr(dst, 2), vr(P + 2 * k, 2), lane))


def ln_table(s, layer, G, RBG):
    P = stats_finish(s, G)
    put((G, 24))
    mu = [P, P + 2]
    va = [P + 1, P + 3]
    if layer == 0:
        rbf(s, mu + va)
        for r in va:
            s('v_add_f32 %s, 0x3727c5ac, %s' % (vr(r), vr(r)))
        rbf(s, va)
        for r in va:
            s('v_sqrt_f32 %s, %s' % (vr(r), vr(r)))
        rbf(s, va)
        for r in va:
            s('v_rcp_f32 %s, %s' % (vr(r), vr(r)))
        s('v_mov_b32 %s, %s' % (vr(OFF), vr(mu[0])), 'v_mov_b32 %s, %s' % (vr(OFF + 1), vr(mu[1])))
    else:
        for r in va:
            s('v_add_f32 %s, 0x3727c5ac, %s' % (vr(r), vr(r)))
        for r in va:
            s('v_rsq_f32 %s, %s' % (vr(r), vr(r)))
        s('v_add_f32 %s, %s, %s' % (vr(OFF), vr(OFF), vr(mu[0])), 'v_add_f32 %s, %s, %s' % (vr(OFF + 1), vr(OFF + 1), vr(mu[1])))
    with V.borrow(*HOMES):
        d = V.get(2)
    s('v_cndmask_b32 %s, %s, %s, %s' % (vr(d), vr(va[0]), vr(va[1]), sr(S_MSEL, 2)))
    s('v_cndmask_b32 %s, %s, %s, %s' % (vr(d + 1), vr(mu[0]), vr(mu[1]), sr(S_MSEL, 2)))
    s('v_mul_f32 %s, %s, %s' % (vr(d + 1), vr(d + 1), vr(d)))
    tk = s.mem('s_mov_b64 exec, %s' % sr(S_MACT, 2),
               'ds_write2_b32 %s, %s, %s offset0:0 offset1:2' % (vr(V_TABW), vr(d), vr(d + 1)),
               's_mov_b64 exec, -1')
    put((d, 2))
    return tk, P


def ln_rest(r, layer, P):
    b = V.get(2)
    tmp = V.get(4)
    for i in range(MT):
        x = BASE + 4 * i
        bcast(r, b, P, i)
        for k in range(2):
            r('v_pk_add_f32 %s, %s, %s op_sel:[0,0] op_sel_hi:[1,0] neg_lo:[0,1] neg_hi:[0,1]' % (vr(x + 2 * k, 2), vr(x + 2 * k, 2), vr(b, 2)))
        if layer == 0:
            for k in range(2):
                r('v_cvt_pk_bf16_f32 %s, %s, %s' % (vr(tmp + 2 * k), vr(x + 2 * k), vr(x + 2 * k + 1)))
            for rep in range(3):
                for k in range(2):
                    r('v_and_b32 %s, 0xffff0000, %s' % (vr(tmp + 2 * k + 1), vr(tmp + 2 * k)),
                      'v_lshlrev_b32 %s, 16, %s' % (vr(tmp + 2 * k), vr(tmp + 2 * k)))
                for k in range(2):
                    if rep == 0:
                        r('v_pk_mul_f32 %s, %s, %s op_sel:[0,1] op_sel_hi:[1,1]' % (vr(tmp + 2 * k, 2), vr(tmp + 2 * k, 2), vr(b, 2)))
                    elif rep == 1:
                        r('v_pk_mul_f32 %s, %s, %s' % (vr(tmp + 2 * k, 2), vr(tmp + 2 * k, 2), vr(V_DSK + 2 * k, 2)))
                    else:
                        r('v_pk_add_f32 %s, %s, %s' % (vr(x + 2 * k, 2), vr(x + 2 * k, 2), vr(tmp + 2 * k, 2)))
                if rep < 2:
                    for k in range(2):
                        r('v_cvt_pk_bf16_f32 %s, %s, %s' % (vr(tmp + 2 * k), vr(tmp + 2 * k), vr(tmp + 2 * k + 1)))
        else:
            for k in range(2):
                r('v_pk_fma_f32 %s, %s, %s, 1.0 op_sel:[0,1,0] op_sel_hi:[1,1,0]' % (vr(tmp + 2 * k, 2), vr(V_DSK + 2 * k, 2), vr(b, 2)))
            for k in range(2):
                r('v_pk_mul_f32 %s, %s, %s' % (vr(x + 2 * k, 2), vr(x + 2 * k, 2), vr(tmp + 2 * k, 2)))
    put((P, 4), (b, 2), (tmp, 4))


def a_reads(k, AF):
    s = Stream()
    kp, h = k >> 1, k & 1
    base = V_FA + h + (2 if kp >= 4 else 0)
    off = (kp - (4 if kp >= 4 else 0)) * BLK
    for i in range(MT):
        s('ds_read_b128 %s, %s offset:%d' % (vr(AF + (k & 1) * 24 + i * 4, 4), vr(base), off + i * 2048))
    return s


def b_mfmas(k, ACC, AF, ones=None):
    s = Stream()
    kp, h = k >> 1, k & 1
    if ones is not None:
        for mat in range(2):
            s('v_mfma_f32_16x16x32_bf16 %s, %s, %s, %s' % (vr(ones[1] + mat * 4, 4), vr(ones[0], 4), ar(WB(kp, h, mat), 4),
                                                          '0' if k == 0 else vr(ones[1] + mat * 4, 4)))
    for i in range(MT):
        if i % 3 == 0:
            s.touch(vr(AF + (k & 1) * 24 + i * 4, 12))
        for mat in range(2):
            d = ACC + (mat * MT + i) * 4
            s('v_mfma_f32_16x16x32_bf16 %s, %s, %s, %s' % (vr(d, 4), vr(AF + (k & 1) * 24 + i * 4, 4), ar(WB(kp, h, mat), 4),
                                                          '0' if k == 0 else vr(d, 4)))
    return s


def split(stream, n):
    g = stream.groups
    parts = []
    for i in range(n):
        p = Stream()
        p.groups = g[len(g) * i // n: len(g) * (i + 1) // n]
        parts.append(p)
    return parts


def ensure(sc, tok):
    for q in sc.sides:
        idx = [i for i, g in enumerate(q) if any((not isinstance(it, tuple)) and it.tok is tok for it in g)]
        if idx:
            for _ in range(idx[0] + 1):
                sc._emit(q.pop(0))


def gemm_b(a, ACC, AF, xtok, pre, side, ones=None, vm=None, need=None):
    sc = Sched(a)
    qr, qv, qs = sc.add(Stream()), sc.add(Stream()), sc.add(Stream())
    b = Stream()
    b.wait(xtok(0))
    b('s_barrier')
    b.extend(a_reads(0, AF))
    sc.run(b)
    for k in range(18):
        sc.flush(qr)
        if k == 7:
            print('side leftover at k', k, len(qs))
            sc.flush(qs)
        if need is not None:
            for tk in need.get(k, []):
                ensure(sc, tk)
        if pre[k].groups:
            sc.flush()
            sc.run(pre[k])
        b = Stream()
        if k & 1 and k < 17:
            ensure(sc, xtok((k + 1) >> 1))
            b.wait(xtok((k + 1) >> 1))
            b('s_barrier')
            sides, sc.sides = sc.sides, []
            sc.run(b)
            sc.sides = sides
        if k < 17:
            qr.extend(a_reads(k + 1, AF).groups)
        if vm is not None:
            qv.extend(vm[k].groups)
        qs.extend(side[k].groups)
        sc.run(b_mfmas(k, ACC, AF, ones))
        if OPT['fine'] and k % 3 == 2:
            stamp(a, 'k%d' % k)
    print('gemm_b leftover', sc.pending(), 'model time', sc.t)
    sc.flush()


class Conv:
    pass


def conv_setup_k(s, cv, keep=False):
    s('s_lshl1_add_u32 %s, %s, %s' % (sr(S_T0), sr(S_PAIR), sr(S_B)),
      's_lshl_b32 %s, %s, 12' % (sr(S_T1), sr(S_T0)),
      's_add_u32 %s, %s, %s' % (sr(R_SK), sr(P_SSK), sr(S_T1)),
      's_addc_u32 %s, %s, 0' % (sr(R_SK + 1), sr(P_SSK + 1)),
      's_and_b32 %s, %s, 0xffff' % (sr(R_SK + 1), sr(R_SK + 1)),
      's_mov_b32 %s, 4096' % sr(R_SK + 2),
      's_mov_b32 %s, 0x20000' % sr(R_SK + 3))
    cv.SD = V.get(2, top=True)
    cv.HD = V.get(top=True)
    s('s_lshl_b32 %s, %s, 2' % (sr(S_T1), sr(S_PAIR)),
      'v_mov_b32 %s, %s' % (vr(cv.SD), sr(S_T1)),
      'global_load_dword %s, %s, %s' % (vr(cv.SD), vr(cv.SD), sr(P_SSD, 2)))
    s('v_add_u32 %s, %s, %s' % (vr(cv.HD), vr(V_N), vr(V_Q)),
      'v_subrev_u32 %s, 16, %s' % (vr(cv.HD), vr(cv.HD)),
      'v_lshlrev_b32 %s, 2, %s' % (vr(cv.HD), vr(cv.HD)),
      'buffer_load_dword %s, %s, %s, 0 offen' % (vr(cv.HD), vr(cv.HD), sr(R_SK, 4)))
    for c in range(2):
        g = ['s_mul_i32 %s, %s, %d' % (sr(S_T2), sr(S_B), KC_CH),
             's_mul_i32 %s, %s, %d' % (sr(S_T3), sr(S_A), (16 + 8320) if c == 0 else 8320),
             's_add_u32 %s, %s, %s' % (sr(S_T3), sr(S_T3), sr(S_T2)),
             's_add_u32 m0, %s, %d' % (sr(S_T3), L_KC + 64 + (0 if c == 0 else 16 + 4160)),
             's_lshl_b32 %s, %s, 3' % (sr(S_T1), sr(S_A)),
             's_add_u32 %s, %s, %d' % (sr(S_T1), sr(S_T1), 4 * c)]
        for part in range(4):
            g.append('buffer_load_dwordx4 %s, %s, %s offen offset:%d nt lds' % (vr(V_L16), sr(R_SK, 4), sr(S_T1), part * 1024))
        cv.ktk = s.mem(*g)


def conv_u_prep(s, cv):
    cv.UA = V.get(2, 1, top=True)
    cv.UE = V.get(top=True)
    cv.UN = V.get(top=True)
    cv.U = V.get(16, top=True)
    U, UA, UE = cv.U, cv.UA, cv.UE
    s('s_lshl1_add_u32 %s, %s, %s' % (sr(S_T0), sr(S_PAIR), sr(S_B)),
      's_mul_i32 %s, %s, %d' % (sr(S_T1), sr(S_T0), KVT_STR),
      's_mul_i32 %s, %s, %d' % (sr(S_T3), sr(S_A), 171 * 16),
      's_add_u32 %s, %s, %s' % (sr(S_T1), sr(S_T1), sr(S_T3)),
      's_add_u32 %s, %s, %d' % (sr(S_T1), sr(S_T1), WS_KVT + 10 * 16),
      'v_add_u32 %s, %s, %s' % (vr(UA), sr(S_T1), vr(V_L16)))
    s('s_sub_u32 %s, 44, %s' % (sr(S_T0), sr(S_A)),
      'v_cmp_gt_u32 vcc, %s, %s' % (sr(S_T0), vr(V_LANE)),
      'v_cndmask_b32 %s, %s, %s, vcc' % (vr(UA + 1), vr(V_OOB), vr(UA)),
      'v_cndmask_b32 %s, 0, %s, vcc' % (vr(UE), vr(V_TAG)))
    s('s_sub_u32 %s, 43, %s' % (sr(S_T0), sr(S_A)),
      'v_cmp_gt_u32 vcc, %s, %s' % (sr(S_T0), vr(V_LANE)),
      'v_cndmask_b32 %s, %s, %s, vcc' % (vr(cv.UN), vr(V_OOB), vr(UA)))
    cv.uloads = []
    for i in range(3):
        cv.uloads.append('buffer_load_dwordx4 %s, %s, %s, 0 offen offset:%d sc1' % (vr(U + 4 * i, 4), vr(UA + (i >> 1)), sr(R_WS, 4), 1024 * i))
    for i in range(3):
        cv.uloads.append('buffer_load_dword %s, %s, %s, 0 offen offset:%d sc1' % (vr(U + 12 + i), vr(UA if i < 2 else cv.UN), sr(R_WS, 4), 1024 * i + 16))
    cv.uchecks = [(U + 3, U + 7, V_TAG), (U + 11, None, UE)]


def conv_addr(s, cv):
    cv.ah, cv.az, cv.au, cv.vN, cv.vM = [V.get(top=True) for _ in range(5)]
    t, e = V.get(), V.get()
    ah, az, au, vN, vM = cv.ah, cv.az, cv.au, cv.vN, cv.vM
    s('v_mul_u32_u24 %s, 4160, %s' % (vr(ah), vr(V_Q)))
    s('v_min_u32 %s, 1, %s' % (vr(e), vr(V_Q)))
    s('v_lshl_add_u32 %s, %s, 4, %s' % (vr(ah), vr(e), vr(ah)))
    s('v_lshl_add_u32 %s, %s, 2, %s' % (vr(ah), vr(V_N), vr(ah)))
    s('s_mul_i32 %s, %s, %d' % (sr(S_T2), sr(S_B), KC_CH),
      's_add_u32 %s, %s, %d' % (sr(S_T3), sr(S_T2), L_KC),
      'v_add_u32 %s, %s, %s' % (vr(ah), sr(S_T3), vr(ah)))
    s('s_mul_i32 %s, %s, %d' % (sr(S_T2), sr(S_B), UC_CH),
      's_mul_i32 %s, %s, 4640' % (sr(S_T3), sr(S_A)),
      's_add_u32 %s, %s, %s' % (sr(S_T3), sr(S_T3), sr(S_T2)),
      'v_lshl_add_u32 %s, %s, 3, %s' % (vr(az), vr(V_LANE), sr(S_T3)))
    s('v_mul_u32_u24 %s, 12, %s' % (vr(au), vr(V_LANE)))
    s('s_mul_i32 %s, %s, %d' % (sr(S_T2), sr(S_B), UC_CH),
      's_mul_i32 %s, %s, %d' % (sr(S_T3), sr(S_A), 171 * 12),
      's_add_u32 %s, %s, %s' % (sr(S_T3), sr(S_T3), sr(S_T2)),
      'v_add_u32 %s, %s, %s' % (vr(au), sr(S_T3), vr(au)))
    s('v_add_u32 %s, 1, %s' % (vr(t), vr(V_N)))
    s('v_and_b32 %s, 3, %s' % (vr(e), vr(t)))
    s('v_mul_u32_u24 %s, 4160, %s' % (vr(vN), vr(e)))
    s('v_min_u32 %s, 1, %s' % (vr(e), vr(e)))
    s('v_lshrrev_b32 %s, 2, %s' % (vr(t), vr(t)))
    s('v_add3_u32 %s, %s, %s, %s' % (vr(t), vr(t), vr(e), vr(V_Q)))
    s('v_lshl_add_u32 %s, %s, 4, %s' % (vr(vN), vr(t), vr(vN)))
    s('s_mul_i32 %s, %s, %d' % (sr(S_T3), sr(S_B), KC_CH),
      's_lshl_b32 %s, %s, 8' % (sr(S_T1), sr(S_A)),
      's_add_u32 %s, %s, %s' % (sr(S_T3), sr(S_T3), sr(S_T1)),
      's_add_u32 %s, %s, %d' % (sr(S_T3), sr(S_T3), L_KC),
      'v_add_u32 %s, %s, %s' % (vr(vN), sr(S_T3), vr(vN)))
    s('v_and_b32 %s, 1, %s' % (vr(t), vr(V_N)))
    s('v_sub_u32 %s, 1, %s' % (vr(t), vr(t)))
    s('v_mul_u32_u24 %s, 4640, %s' % (vr(vM), vr(t)))
    s('v_lshrrev_b32 %s, 1, %s' % (vr(t), vr(V_N)))
    s('v_lshlrev_b32 %s, 6, %s' % (vr(t), vr(t)))
    s('v_sub_u32 %s, %s, %s' % (vr(vM), vr(vM), vr(t)))
    s('v_lshl_add_u32 %s, %s, 4, %s' % (vr(vM), vr(V_Q), vr(vM)))
    s('s_mul_i32 %s, %s, %d' % (sr(S_T2), sr(S_B), UC_CH),
      's_lshl_b32 %s, %s, 8' % (sr(S_T1), sr(S_A)),
      's_add_u32 %s, %s, %s' % (sr(S_T3), sr(S_T2), sr(S_T1)),
      's_add_u32 %s, %s, %d' % (sr(S_T3), sr(S_T3), L_UC + 448),
      'v_add_u32 %s, %s, %s' % (vr(vM), sr(S_T3), vr(vM)))
    return [t, e]


def conv_body(a, cv, side=None, pre_issued=True, early=None, release=True, last=None):
    U, HD = cv.U, cv.HD
    vN, vM = cv.vN, cv.vM
    a('ds_write_b32 %s, %s' % (vr(cv.ah), vr(HD)))
    a('ds_write_b64 %s, %s offset:%d' % (vr(cv.az), vr(V_ZERO, 2), L_UC + 4096))
    if early is not None:
        a.extend(early)
    poll(a, cv.uloads, cv.uchecks, pre_issued=pre_issued, sleep=OPT['slp2'] if pre_issued else OPT['slp'])
    a.touch(vr(U, 15))
    U1 = V.get(9, 1)
    for i in range(3):
        if i == 2:
            a('v_cmp_gt_u32 vcc, 43, %s' % vr(V_LANE), 's_mov_b64 exec, vcc')
        for k in range(3):
            a('ds_write_b32 %s, %s offset:%d' % (vr(cv.au), vr(U + 4 * i + k), L_UC - 8 + 768 * i + 4 * k))
            hi = U + 4 * i + k + 1 if k < 2 else U + 12 + i
            a('v_alignbit_b32 %s, %s, %s, 16' % (vr(U1 + 3 * i + k), vr(hi), vr(U + 4 * i + k)))
        for k in range(3):
            tk = a.mem('ds_write_b32 %s, %s offset:%d' % (vr(cv.au), vr(U1 + 3 * i + k), L_UC - 8 + 4640 + 768 * i + 4 * k))
    a('s_mov_b64 exec, -1')
    a.wait(tk, cv.ktk)
    a('s_barrier')
    put((U, 16), (U1, 9), HD, (cv.UA, 2), cv.UE, cv.UN)
    if release:
        put(cv.ah, cv.az, cv.au)
    stamp(a, 'conv_ld')
    if not pre_issued:
        astamp(a, 11)
    with V.borrow((GP, 12)):
        CA = [V.get(4) for _ in range(8)]
    FN, FM = [[V.get(4) for _ in range(8)] for _ in range(2)]
    AW = V.get(3, 1)
    t = V.get()
    rdN = lambda x, cc: 'ds_read_b128 %s, %s offset:%d' % (vr(FN[x], 4), vr(vN), 512 * x + 64 * cc)
    rdM = lambda x, cc: 'ds_read_b128 %s, %s offset:%d' % (vr(FM[x], 4), vr(vM), 512 * (7 - x) + 64 * cc)
    m = Stream()
    m(rdN(0, 0))
    for x in range(7, -1, -1):
        m(rdM(x, 0))
    m('v_lshlrev_b32 %s, 1, %s' % (vr(t), vr(V_N)))
    m('v_lshl_add_u32 %s, %s, 6, %s' % (vr(t), vr(V_Q), vr(t)))
    for j in range(3):
        m('v_add_u32 %s, %d, %s' % (vr(AW + j), j, vr(t)))
        m('v_mul_u32_u24 %s, 171, %s' % (vr(AW + j), vr(AW + j)))
        m('v_lshrrev_b32 %s, 9, %s' % (vr(AW + j), vr(AW + j)))
        m('v_add_u32 %s, %s, %s' % (vr(AW + j), vr(AW + j), vr(t)))
        m('s_mul_i32 %s, %s, %d' % (sr(S_T3), sr(S_WAVE), CO_W),
          'v_lshl_add_u32 %s, %s, 2, %s' % (vr(AW + j), vr(AW + j), sr(S_T3)))

    def stage(m, i):
        tk = None
        for r in range(4):
            c = 256 * i + 32 * (r >> 1) + (r & 1)
            tk = m.mem('ds_write_b32 %s, %s offset:%d' % (vr(AW + c % 3), vr(CA[i] + r), L_CO + 4 * (c + c // 3)))
        return tk

    for cc in range(4):
        if cc == 3:
            sc = Sched(a)
            sc.VM_GAP = 110
            if side is not None:
                qs_ = [sc.add(x) for x in side]
            sc.run(m)
            if side is not None:
                sc.flush(qs_[0])
            sc.VM_GAP = 30
            m = Stream()
            if last is not None:
                last(m, None)
        for aa in range(8):
            for dl in range(7 - aa, -1, -1):
                i = aa + dl
                z = cc == 0 and aa == 0
                m('v_mfma_f32_16x16x32_bf16 %s, %s, %s, %s' % (vr(CA[i], 4), vr(FM[dl], 4), vr(FN[aa], 4),
                                                              '0' if z else vr(CA[i], 4)))
                if cc == 0 and aa == 0 and dl > 0:
                    m(rdN(8 - dl, 0))
                if dl == 7 - aa:
                    if cc < 3:
                        m(rdM(dl, cc + 1))
                    elif last is not None:
                        last(m, FM[dl])
            if cc < 3:
                m(rdN(aa, cc + 1))
            else:
                if last is not None:
                    last(m, FN[aa])
                if 2 <= aa:
                    stage(m, aa - 2)
    stage(m, 6)
    cv.stk = stage(m, 7)
    sc.run(m)
    print('conv leftover', sc.pending(), 'model time', sc.t)
    sc.flush()
    put(*[(r, 4) for r in CA])
    if last is None:
        put(*[(r, 4) for r in FN + FM])
    put((AW, 3), t)
    if release:
        put(vN, vM)
    stamp(a, 'conv_mm')
    if not pre_issued:
        astamp(a, 12)


def conv_final(s, cv):
    SD = cv.SD
    ay, ak, ag = V.get(), V.get(), V.get()
    Y, KV, D = V.get(16), V.get(4), V.get(6, 1)
    GO = V.get(4)
    t = V.get()
    s('v_and_b32 %s, 0xffff0000, %s' % (vr(SD + 1), vr(SD)))
    s('v_lshlrev_b32 %s, 16, %s' % (vr(SD), vr(SD)))
    s('v_lshlrev_b32 %s, 4, v0' % vr(ay))
    s('v_mul_u32_u24 %s, 6, v0' % vr(ak))
    s('v_sub_u32 %s, %d, %s' % (vr(ak), 4090, vr(ak)))
    s('v_and_b32 %s, -4, %s' % (vr(ak), vr(ak)))
    s('v_and_b32 %s, 1, v0' % vr(t))
    s('v_sub_u32 %s, 1, %s' % (vr(t), vr(t)))
    s('v_mul_u32_u24 %s, 4640, %s' % (vr(t), vr(t)))
    s('v_add_u32 %s, %s, %s' % (vr(ak), vr(ak), vr(t)))
    s('s_mul_i32 %s, %s, %d' % (sr(S_T1), sr(S_PAIR), G_STR),
      's_add_u32 %s, %s, %d' % (sr(S_T1), sr(S_T1), WS_G),
      'v_add_u32 %s, %s, %s' % (vr(ag), sr(S_T1), vr(ay)))
    s('v_mov_b32 %s, %s' % (vr(GO + 3), vr(V_TAG)))
    for j in range(3):
        if j > 0:
            s('v_subrev_u32 %s, 1536, %s' % (vr(ak), vr(ak)))
            s('v_add_u32 %s, 4096, %s' % (vr(ag), vr(ag)))
        if j == 2:
            s('v_max_i32 %s, 0, %s' % (vr(ak), vr(ak)))
            s('v_cmp_gt_u32 vcc, 192, v0', 'v_cndmask_b32 %s, %s, %s, vcc' % (vr(ag), vr(V_OOB), vr(ag)))
        for ch in range(2):
            for k in range(2):
                s('ds_read_b32 %s, %s offset:%d' % (vr(KV + 2 * ch + k), vr(ak), L_UC + ch * UC_CH + 4 * k))
        for w in range(4):
            s('ds_read_b128 %s, %s offset:%d' % (vr(Y + 4 * w, 4), vr(ay), L_CO + w * CO_W + j * 4096))
        for ch in range(2):
            d = D + 3 * ch
            s('v_lshlrev_b32 %s, 16, %s' % (vr(d), vr(KV + 2 * ch + 1)))
            s('v_and_b32 %s, 0xffff0000, %s' % (vr(d + 1), vr(KV + 2 * ch)))
            s('v_lshlrev_b32 %s, 16, %s' % (vr(d + 2), vr(KV + 2 * ch)))
            for e in range(3):
                s('v_mul_f32 %s, %s, %s' % (vr(d + e), vr(d + e), vr(SD + ch)))
        for ch in range(2):
            d, y = D + 3 * ch, Y + 8 * ch
            for e in range(3):
                s('v_add_f32 %s, %s, %s' % (vr(y + e), vr(y + e), vr(y + 4 + e)))
            for e in range(3):
                s('v_cvt_pk_bf16_f32 %s, %s, %s' % (vr(d + e), vr(y + e), vr(d + e)))
            for e in range(3):
                s('v_lshlrev_b32 %s, 16, %s' % (vr(y + e), vr(d + e)))
                s('v_and_b32 %s, 0xffff0000, %s' % (vr(d + e), vr(d + e)))
                s('v_add_f32 %s, %s, %s' % (vr(d + e), vr(d + e), vr(y + e)))
        for e in range(3):
            s('v_cvt_pk_bf16_f32 %s, %s, %s' % (vr(GO + e), vr(D + e), vr(D + 3 + e)))
        s('buffer_store_dwordx4 %s, %s, %s, 0 offen sc1' % (vr(GO, 4), vr(ag), sr(R_WS, 4)))
    s('s_nop 1')
    return [ay, ak, ag, (Y, 16), (KV, 4), (D, 6), (GO, 4), t, (SD, 2)]


ACC = V.get(48, top=True)
AF = V.get(48, top=True)
with V.borrow((GP, 12)):
    ONES = V.get(4)
    RBA = V.get(8)
xtk[1] = x_dma(a, 1, 0)
a('global_load_dwordx2 %s, %s, %s' % (vr(V_DSK, 2), vr(dad), sr(P_DSK, 2)))
put(lad, dad)
tag_ready(a)
a('v_cmp_gt_u32 vcc, 9, %s' % vr(V_N), 'v_cndmask_b32 %s, 0, %s, vcc' % (vr(V_EXP9), vr(V_TAG)))
for i in range(4):
    a('v_mov_b32 %s, 0x3f803f80' % vr(ONES + i))
XS = V.get(12, 2, top=True)
lp = Stream()
lam_compute(lp, LAMT, False, LAM)
L2, L4, L8, L48, L72, L96, L192, L288 = [V.get(2) for _ in range(8)]
cmul(lp, L2, LAM, LAM)
cmul(lp, L4, L2, L2)
cmul(lp, L8, L4, L4)
cmul(lp, L12, L8, L4)
cmul(lp, L24, L12, L12)
cmul(lp, L48, L24, L24)
cmul(lp, L72, L48, L24)
cmul(lp, L96, L48, L48)
cmul(lp, L192, L96, L96)
cmul(lp, L288, L192, L96)
cmul(lp, L384, L192, L192)
for (dst, opts) in ((LQ96, (L96, L192, L288)), (LQ24, (L24, L48, L72))):
    lp('v_mov_b32 %s, 1.0' % vr(dst), 'v_mov_b32 %s, 0' % vr(dst + 1))
    for qi, o in enumerate(opts):
        lp('v_cmp_eq_u32 vcc, %d, %s' % (qi + 1, vr(V_Q)),
           'v_cndmask_b32 %s, %s, %s, vcc' % (vr(dst), vr(dst), vr(o)),
           'v_cndmask_b32 %s, %s, %s, vcc' % (vr(dst + 1), vr(dst + 1), vr(o + 1)))
for r in (L2, L4, L8, L48, L72, L96, L192, L288):
    put((r, 2))
V.free -= set(range(LAMT, LAMT + 4))
s0 = Stream()
s0.wait(xtk[0])
s0('s_barrier')
for i in range(MT):
    s0('ds_read_b64 %s, %s offset:%d' % (vr(XS + 2 * i, 2), vr(V_WA), 2048 * i))
for i in range(MT):
    for k in range(2):
        s0('v_lshlrev_b32 %s, 16, %s' % (vr(BASE + 4 * i + 2 * k), vr(XS + 2 * i + k)))
        s0('v_and_b32 %s, 0xffff0000, %s' % (vr(BASE + 4 * i + 2 * k + 1), vr(XS + 2 * i + k)))
with V.borrow(*HOMES):
    stats_publish(s0, BASE, 0, False)
s0.extend(lp)
s0('v_and_b32 %s, 0xffff0000, %s' % (vr(V_DSK + 3), vr(V_DSK + 1)))
s0('v_lshlrev_b32 %s, 16, %s' % (vr(V_DSK + 2), vr(V_DSK + 1)))
s0('v_and_b32 %s, 0xffff0000, %s' % (vr(V_DSK + 1), vr(V_DSK)))
s0('v_lshlrev_b32 %s, 16, %s' % (vr(V_DSK), vr(V_DSK)))
d1 = Stream()
xtk[2] = x_dma(d1, 2, 0)
btk[2] = b_dma(d1, 2)
xtk[3] = x_dma(d1, 3, 0)
rt = b_read(d1, 0)
xtk[4] = x_dma(d1, 4, 0)
d1.wait(rt)
btk[3] = b_dma(d1, 3)
rt = b_read(d1, 1)
xtk[5] = x_dma(d1, 5, 0)
d1.wait(rt)
btk[4] = b_dma(d1, 4)
a.weave(s0, d1)
stamp(a, 'lam')
put((V_DUMMY, 4), (LAMT, 4))
pre = {k: Stream() for k in range(18)}
side = {k: Stream() for k in range(18)}


class Pace:
    def __init__(self, per=3):
        self.vm = {k: Stream() for k in range(18)}
        self.k, self.n, self.per = 0, 0, per

    def add(self, st, earliest=0):
        if self.k < earliest:
            self.k, self.n = earliest, 0
        for g in st.groups:
            if self.n >= self.per:
                self.k, self.n = self.k + 1, 0
            self.vm[self.k].groups.append(g)
            self.n += sum(1 for it in g if not isinstance(it, tuple) and it.kind == 'vmem')
        return self.k


pc = Pace(OPT['per'])
need = {}
for blk in range(5, 9):
    st = Stream()
    rt = b_read(st, blk - 3)
    need[2 * (blk - 3)] = [rt]
    if blk < 8:
        xtk[blk + 1] = x_dma(st, blk + 1, 0)
    st.wait(rt)
    btk[blk] = b_dma(st, blk)
    kk = pc.add(st)
    print('block', blk, 'issued by k', kk)
cv = Conv()
cfa, cfe, cfv = V.get(top=True), V.get(top=True), V.get(top=True)
side[0]('s_mul_i32 %s, %s, 43' % (sr(S_T1), sr(S_CG)),
         's_lshr_b32 %s, %s, 5' % (sr(S_T1), sr(S_T1)),
         's_mul_i32 %s, %s, %d' % (sr(S_T1), sr(S_T1), 18 * 64),
         's_add_u32 %s, %s, %d' % (sr(S_T1), sr(S_T1), WS_CPF),
         'v_lshl_add_u32 %s, %s, 6, %s' % (vr(cfa), vr(V_LANE), sr(S_T1)))
side[0]('v_cmp_gt_u32 vcc, 36, %s' % vr(V_LANE),
         'v_cndmask_b32 %s, %s, %s, vcc' % (vr(cfa), vr(V_OOB), vr(cfa)),
         'v_cndmask_b32 %s, 0, %s, vcc' % (vr(cfe), vr(V_TAG)))
cfl = 'buffer_load_dword %s, %s, %s, 0 offen sc1' % (vr(cfv), vr(cfa), sr(R_WS, 4))
side[0]('s_mul_i32 %s, %s, %d' % (sr(S_T0), sr(S_PT), 37 * 1024),
        's_add_u32 %s, %s, %d' % (sr(S_CPB), sr(S_T0), WS_CP))
ca_ = Stream()
carel = conv_addr(ca_, cv)
side[0].extend(ca_)
stt = Stream()
stt(cfl)
ta = carel[0]
stt('v_lshrrev_b32 %s, 3, %s' % (vr(ta), vr(V_LANE)),
    'v_mul_u32_u24 %s, %d, %s' % (vr(ta), 36864 - 1024, vr(ta)),
    'v_lshl_add_u32 %s, %s, 7, %s' % (vr(ta), vr(V_LANE), vr(ta)),
    'v_cmp_gt_u32 vcc, 48, %s' % vr(V_LANE),
    'v_cndmask_b32 %s, %s, %s, vcc' % (vr(ta), vr(V_OOB), vr(ta)))
stt('s_mul_i32 %s, %s, 216' % (sr(S_T2), sr(S_RB)),
    's_add_u32 %s, %s, %s' % (sr(S_T2), sr(S_T2), sr(S_PT)),
    's_lshl_b32 %s, %s, 10' % (sr(S_T2), sr(S_T2)),
    's_add_u32 %s, %s, %d' % (sr(S_T2), sr(S_T2), WS_H),
    'buffer_load_dword %s, %s, %s, %s offen sc1 ;junk' % (vr(V_JUNK), vr(ta), sr(R_WS, 4), sr(S_T2)))
stt('s_mov_b32 %s, %d' % (sr(S_T2), WS_ST + ST_SZ),
    'buffer_load_dword %s, %s, %s, %s offen sc1 ;junk' % (vr(V_JUNK), vr(V_STW), sr(R_WS, 4), sr(S_T2)))
stt('v_lshrrev_b32 %s, 1, %s' % (vr(ta), vr(V_LANE)),
    'v_min_u32 %s, 2, %s' % (vr(ta), vr(ta)),
    'v_mul_u32_u24 %s, %d, %s' % (vr(ta), NRB * 256, vr(ta)),
    'v_and_b32 %s, 1, %s' % (vr(carel[1]), vr(V_LANE)),
    'v_lshl_add_u32 %s, %s, 7, %s' % (vr(ta), vr(carel[1]), vr(ta)),
    's_lshl_b32 %s, %s, 8' % (sr(S_T2), sr(S_RB)),
    's_add_u32 %s, %s, %d' % (sr(S_T2), sr(S_T2), WS_HF),
    'buffer_load_dword %s, %s, %s, %s offen sc1 ;junk' % (vr(V_JUNK), vr(ta), sr(R_WS, 4), sr(S_T2)))
with V.borrow(*HOMES):
    G0 = V.get(24)
xe = V.get()
side[0]('v_add_u32 %s, %s, %s' % (vr(xe), sr(S_XCC), vr(V_TAG)),
        'v_cmp_gt_u32 vcc, 9, %s' % vr(V_N),
        'v_cndmask_b32 %s, 0, %s, vcc' % (vr(xe), vr(xe)))
gl = stats_loads(0, G0)
st = Stream()
for i in range(0, 12, 2):
    st(gl[i], gl[i + 1])
print('gather by k', pc.add(st, 7))
kvm = KVm()
st = Stream()
with V.borrow(*HOMES):
    kv_dma(st, kvm)
print('kv dma by k', pc.add(st, 7))
print('touch by k', pc.add(stt))
for kp, k in ((6, 8), (7, 10), (8, 12)):
    need[2 * kp] = [b_read(side[k], kp)]
lastb = need[16][0]


def s0_poll(s):
    p = Stream()
    L, Lc, Lr = newlabel('poll'), newlabel('pollc'), newlabel('pollr')
    acc = V.get(2, 1)
    p.touch(vr(G0, 24))
    p('v_xor_b32 %s, %s, %s' % (vr(acc), vr(G0 + 1), vr(V_EXP9)))
    for i in range(MT):
        if i:
            p('v_bitop3_b32 %s, %s, %s, %s bitop3:0xf6' % (vr(acc), vr(acc), vr(G0 + 4 * i + 1), vr(V_EXP9)))
        p('v_bitop3_b32 %s, %s, %s, %s bitop3:0xf6' % (vr(acc), vr(acc), vr(G0 + 4 * i + 3), vr(xe)))
    p('v_cmp_ne_u32 vcc, 0, %s' % vr(acc))
    p('s_mov_b32 %s, %d' % (sr(S_FAST), 0 if OPT['slow'] else 1))
    p('s_cmp_lg_u64 vcc, 0')
    p('s_cbranch_scc1 %s' % L)
    p.label(Lc)
    s.join(p)
    tail.label(L)
    tail('s_mov_b32 %s, %d' % (sr(S_SPIN), SPIN))
    tail.label(Lr)
    for t in gl:
        tail(t)
    tail('s_waitcnt vmcnt(0)')
    tail('v_mov_b32 %s, 0' % vr(acc))
    for i in range(MT):
        tail('v_sub_u32 %s, %s, %s' % (vr(acc + 1), vr(G0 + 4 * i + 3), vr(V_EXP9)))
        tail('v_lshrrev_b32 %s, 4, %s' % (vr(acc + 1), vr(acc + 1)))
        tail('v_or_b32 %s, %s, %s' % (vr(acc), vr(acc), vr(acc + 1)))
        tail('v_bitop3_b32 %s, %s, %s, %s bitop3:0xf6' % (vr(acc), vr(acc), vr(G0 + 4 * i + 1), vr(V_EXP9)))
    tail('v_cmp_ne_u32 vcc, 0, %s' % vr(acc))
    tail('s_sub_u32 %s, %s, 1' % (sr(S_SPIN), sr(S_SPIN)))
    tail('s_cselect_b64 vcc, 0, vcc')
    tail('s_cmp_lg_u64 vcc, 0')
    tail('s_cbranch_scc1 %s' % Lr)
    tail('v_cmp_ne_u32 vcc, %s, %s' % (vr(G0 + 3), vr(xe)))
    tail('s_cmp_eq_u64 vcc, 0')
    tail('s_cselect_b32 %s, %d, 0' % (sr(S_FAST), 0 if OPT['slow'] else 1))
    tail('s_branch %s' % Lc)
    put((acc, 2))


s0_poll(side[12])
ttk, LNP0 = ln_table(side[12], 0, G0, None)
put(xe)
pre[15].wait(ttk, lastb)
NCP0 = OPT['ncp0']


def WC(s, j):
    idx = s * 4 + j
    if idx < 28:
        return ar(144 + idx * 4, 4)
    return vr(WCV + (idx - 28) * 4, 4)


def cp_load(s_, s, j):
    ld = 'buffer_load_dwordx4 %s, %s, %s, %s offen offset:%d sc1' % (WC(s, j), vr(V_L16), sr(R_WS, 4), sr(S_CPB), j * 1024)
    if j == 3:
        s_(ld, 's_add_u32 %s, %s, 4096' % (sr(S_CPB), sr(S_CPB)))
    else:
        s_(ld)


put((V_DB, 2), (V_DX, 3))
st = Stream()
conv_setup_k(st, cv)
print('K by k', pc.add(st, 15))
gemm_b(a, ACC, AF, lambda s: xtk[s], pre, side, ones=(ONES, RBA), vm=pc.vm, need=need)
poll(a, [cfl], [(cfv, None, cfe)], pre_issued=True, sleep=6)
put(cfa, cfe, cfv)
a('v_mov_b32 %s, %s' % (vr(RB), vr(RBA)))
a('v_mov_b32 %s, %s' % (vr(RB + 1), vr(RBA + 4)))
put((ONES, 4), (RBA, 8))
put(*kvm.rel)
put(*carel)
put((V_FB, 2))
stamp(a, 'gemmB1')


def scan_phase(a, layer, ACC, AF, mid=None, x1=None, x2=None):
    NJ = 2 * MT
    re = lambda j: ACC + (j >> 1) * 4 + (j & 1) * 2
    im = lambda j: ACC + 4 * MT + (j >> 1) * 4 + (j & 1) * 2
    TB = AF
    for j in range(NJ):
        a('ds_read_b128 %s, %s offset:%d' % (vr(TB + 4 * j, 4), vr(V_TABR), 16 * j))

    def prescale(j):
        a('v_pk_mul_f32 %s, %s, %s' % (vr(re(j), 2), vr(re(j), 2), vr(TB + 4 * j, 2)))
        a('v_pk_mul_f32 %s, %s, %s' % (vr(im(j), 2), vr(im(j), 2), vr(TB + 4 * j, 2)))
        a('v_pk_fma_f32 %s, %s, %s, %s op_sel:[0,0,0] op_sel_hi:[1,0,1] neg_lo:[1,0,0] neg_hi:[1,0,0]' %
          (vr(re(j), 2), vr(TB + 4 * j + 2, 2), vr(RB, 2), vr(re(j), 2)))
        a('v_pk_fma_f32 %s, %s, %s, %s op_sel:[0,1,0] op_sel_hi:[1,1,1] neg_lo:[1,0,0] neg_hi:[1,0,0]' %
          (vr(im(j), 2), vr(TB + 4 * j + 2, 2), vr(RB, 2), vr(im(j), 2)))

    def step(dr, di, pr, pi, br, bi):
        a('v_pk_fma_f32 %s, %s, %s, %s op_sel:[0,0,0] op_sel_hi:[1,0,1]' % (vr(dr, 2), vr(pr, 2), vr(LAM, 2), vr(br, 2)))
        a('v_pk_fma_f32 %s, %s, %s, %s op_sel:[0,0,0] op_sel_hi:[1,0,1]' % (vr(di, 2), vr(pi, 2), vr(LAM, 2), vr(bi, 2)))
        a('v_pk_fma_f32 %s, %s, %s, %s op_sel:[0,1,0] op_sel_hi:[1,1,1] neg_lo:[1,0,0] neg_hi:[1,0,0]' %
          (vr(dr, 2), vr(pi, 2), vr(LAM, 2), vr(dr, 2)))
        a('v_pk_fma_f32 %s, %s, %s, %s op_sel:[0,1,0] op_sel_hi:[1,1,1]' % (vr(di, 2), vr(pr, 2), vr(LAM, 2), vr(di, 2)))

    with V.borrow(*HOMES):
        E = V.get(8)
        pub = V.get(4)
    prescale(0)
    pr, pi = re(0), im(0)
    for j in range(1, NJ):
        prescale(j)
        dr, di = E + (j & 1) * 4, E + (j & 1) * 4 + 2
        step(dr, di, pr, pi, re(j), im(j))
        pr, pi = dr, di
        if x1 is not None and j % 3 == 1:
            x1(a)
    EA, F = V.get(2), V.get(2)
    a('v_mov_b32 %s, %s' % (vr(EA), vr(pr)))
    a('v_mov_b32 %s, %s' % (vr(EA + 1), vr(pi)))
    a('v_mov_b32 %s, %s' % (vr(F), vr(pr + 1)))
    a('v_mov_b32 %s, %s' % (vr(F + 1), vr(pi + 1)))
    FA = E
    cfma(a, FA, EA, L12, F)
    a('v_mov_b64 %s, %s' % (vr(FA + 2, 2), vr(FA, 2)))
    a('v_mov_b32 %s, %s' % (vr(pub + 1), vr(V_TAG)))
    a('v_mov_b32 %s, %s' % (vr(pub + 3), vr(V_TAG)))
    a('v_permlane16_swap_b32 %s, %s' % (vr(FA), vr(FA + 2)))
    a('v_permlane16_swap_b32 %s, %s' % (vr(FA + 1), vr(FA + 3)))
    a('s_lshl_b32 %s, %s, 13' % (sr(S_T0), sr(S_PT)))
    a('v_mov_b64 %s, %s' % (vr(FA + 4, 2), vr(FA, 2)))
    a('v_mov_b64 %s, %s' % (vr(FA + 6, 2), vr(FA + 2, 2)))
    a('s_add_u32 %s, %s, %d' % (sr(S_T0), sr(S_T0), WS_E + layer * 36 * 8192))
    for k in range(4):
        a('v_permlane32_swap_b32 %s, %s' % (vr(FA + k), vr(FA + 4 + k)))
    cfma(a, FA + 2, FA, L24, FA + 2)
    cfma(a, FA + 4, FA + 2, L24, FA + 4)
    cfma(a, FA + 6, FA + 4, L24, FA + 6)
    a('v_mov_b32 %s, %s' % (vr(pub), vr(FA + 6)))
    a('v_mov_b32 %s, %s' % (vr(pub + 2), vr(FA + 7)))
    a('buffer_store_dwordx4 %s, %s, %s, %s offen sc1' % (vr(pub, 4), vr(V_EW), sr(R_WS, 4), sr(S_T0)))
    stamp(a, 'e_pub%d' % layer)
    PQ = F
    a('v_mov_b32 %s, 0' % vr(PQ))
    a('v_mov_b32 %s, 0' % vr(PQ + 1))
    for qi in range(1, 4):
        a('v_cmp_eq_u32 vcc, %d, %s' % (qi, vr(V_Q)),
          'v_cndmask_b32 %s, %s, %s, vcc' % (vr(PQ), vr(PQ), vr(FA + 2 * qi - 2)),
          'v_cndmask_b32 %s, %s, %s, vcc' % (vr(PQ + 1), vr(PQ + 1), vr(FA + 2 * qi - 1)))
    put((pub, 4), (E, 8), (AF, 48))
    NL = 6
    loads, checks, box = [], [], []

    def mk(cs):
        CG_ = V.get(4 * NL)
        AD, EX = V.get(NL, 1), V.get(NL, 1)
        box.extend([CG_, AD, EX])
        cs('s_lshl_b32 %s, %s, 13' % (sr(S_T0), sr(S_PT)),
           's_add_u32 %s, %s, %d' % (sr(S_T0), sr(S_T0), WS_E + layer * 36 * 8192),
           'v_add_u32 %s, %s, %s' % (vr(EX), sr(S_T0), vr(V_ER)))
        for j in range(NL - 1, -1, -1):
            cs('v_subrev_u32 %s, %d, %s' % (vr(AD + j), 1024 * j, vr(EX)),
               'v_cmp_le_i32 vcc, %d, %s' % (1024 * j, vr(V_ER)),
               'v_cndmask_b32 %s, %s, %s, vcc' % (vr(AD + j), vr(V_OOB), vr(AD + j)),
               'v_cndmask_b32 %s, 0, %s, vcc' % (vr(EX + j), vr(V_TAG)))
        for j in range(NL):
            loads.append('buffer_load_dwordx4 %s, %s, %s, 0 offen sc1' % (vr(CG_ + 4 * j, 4), vr(AD + j), sr(R_WS, 4)))
            checks.append((CG_ + 4 * j + 1, CG_ + 4 * j + 3, EX + j))
        for l_ in loads:
            cs(l_)

    post = mid(a, mk)
    CG_, AD, EX = box
    poll(a, loads, checks, pre_issued=True)
    stamp(a, 'carry%d' % layer)
    if post is not None:
        a.extend(post)
    put((AD, NL), (EX, NL))
    for j in range(NL):
        a('v_mov_b32 %s, %s' % (vr(CG_ + 4 * j + 1), vr(CG_ + 4 * j + 2)))
    for j in range(NL - 2, -1, -1):
        cfma(a, CG_ + 4 * j, CG_ + 4 * j + 4, L384, CG_ + 4 * j)
    H, Y = V.get(2), V.get(2)
    cmul(a, H, CG_, LQ96)
    for sw in ('v_permlane32_swap_b32', 'v_permlane16_swap_b32'):
        a('v_mov_b64 %s, %s' % (vr(Y, 2), vr(H, 2)))
        a('%s %s, %s' % (sw, vr(H), vr(Y)))
        a('%s %s, %s' % (sw, vr(H + 1), vr(Y + 1)))
        a('v_pk_add_f32 %s, %s, %s' % (vr(H, 2), vr(H, 2), vr(Y, 2)))
    cfma(a, PQ, H, LQ24, PQ)
    cfma(a, EA, PQ, L12, EA)
    a('v_mov_b32 %s, %s' % (vr(H), vr(PQ)))
    a('v_mov_b32 %s, %s' % (vr(H + 1), vr(EA)))
    a('v_mov_b32 %s, %s' % (vr(Y), vr(PQ + 1)))
    a('v_mov_b32 %s, %s' % (vr(Y + 1), vr(EA + 1)))
    pr, pi = H, Y
    PK = V.get(4)
    HO = CG_
    tk = None
    for j in range(NJ):
        step(re(j), im(j), pr, pi, re(j), im(j))
        pr, pi = re(j), im(j)
        pk = PK + (j & 1) * 2
        for hf in range(2):
            a('v_cvt_pk_bf16_f32 %s, %s, %s' % (vr(pk + hf), vr(re(j) + hf), vr(im(j) + hf)))
        tk = a.mem('ds_write_b32 %s, %s offset:%d' % (vr(V_HW), vr(pk), (j >> 1) * 1024 + (j & 1) * 128),
                   'ds_write_b32 %s, %s offset:%d' % (vr(V_HW), vr(pk + 1), (j >> 1) * 1024 + (j & 1) * 128 + 64))
        if j & 1:
            a('ds_read_b128 %s, %s offset:%d' % (vr(HO + 4 * (j >> 1), 4), vr(V_HR), (j >> 1) * 1024))
        elif x2 is not None and j < 10:
            x2(a)
    a('s_mul_i32 %s, %s, 216' % (sr(S_T0), sr(S_RB)))
    a('s_add_u32 %s, %s, %s' % (sr(S_T0), sr(S_T0), sr(S_PT)))
    a('s_lshl_b32 %s, %s, 10' % (sr(S_T0), sr(S_T0)))
    txt = []
    for i in range(MT):
        txt.append('s_add_u32 %s, %s, %d' % (sr(S_T1), sr(S_T0), WS_H + layer * H_SZ + i * 36864))
        txt.append('buffer_store_dwordx4 %s, %s, %s, %s offen {P}' % (vr(HO + 4 * i, 4), vr(V_L16), sr(R_WS, 4), sr(S_T1)))
    if OPT['fine']:
        stamp(a, 'pass2')
    tk = dual(a, txt, touch=[vr(HO, 24)])
    a('s_lshl2_add_u32 %s, %s, %s' % (sr(S_T0), sr(S_RB), sr(S_WAVE)))
    a('s_lshl4_add_u32 %s, %s, %s' % (sr(S_T0), sr(S_T0), sr(S_CG)))
    a('s_lshl_b32 %s, %s, 2' % (sr(S_T0), sr(S_T0)))
    a('s_add_u32 %s, %s, %d' % (sr(S_T0), sr(S_T0), WS_HF + layer * NRB * 256))
    return tk, [(EA, 2), (F, 2), (H, 2), (Y, 2), (PK, 4), (CG_, 4 * NL), (ACC, 48)]


def mid0(a, mk):
    put((BASE, 24))
    sd, s2, lr, ks = Stream(), Stream(), Stream(), Stream()
    for idx in range(NCP0, OPT['ncp']):
        cp_load(sd, idx // 4, idx % 4)
    mk(s2)
    with V.borrow(*HOMES):
        kv_main(lr, kvm, ks)
    lr = weave(lr, sd, 0.0, 1.0)
    lr = weave(lr, s2, 0.55, 0.75)
    for i_, p_ in enumerate(split(lr, 8)):
        a.extend(p_)
        if OPT['fine'] > 1:
            stamp(a, 'kq%d' % i_)
    if OPT['fine']:
        stamp(a, 'kvcore')
    a.extend(ks)
    V.claim(WCV, 32)
    conv_u_prep(a, cv)
    stamp(a, 'kv')
    return None


def ln_rest0_plain(r, P):
    b, tmp = V.get(2), V.get(4)
    for i in range(MT):
        x = BASE + 4 * i
        k_, lane = tile_src(i)
        for e in range(2):
            r('v_mov_b32_dpp %s, %s row_newbcast:%d row_mask:0xf bank_mask:0xf' % (vr(b + e), vr(P + 2 * k_ + e), lane))
        for k in range(2):
            r('v_lshlrev_b32 %s, 16, %s' % (vr(x + 2 * k), vr(XS + 2 * i + k)))
            r('v_and_b32 %s, 0xffff0000, %s' % (vr(x + 2 * k + 1), vr(XS + 2 * i + k)))
        for k in range(4):
            r('v_sub_f32 %s, %s, %s' % (vr(x + k), vr(x + k), vr(b)))
        for k in range(2):
            r('v_cvt_pk_bf16_f32 %s, %s, %s' % (vr(tmp + 2 * k), vr(x + 2 * k), vr(x + 2 * k + 1)))
        for rep in range(3):
            for k in range(2):
                r('v_and_b32 %s, 0xffff0000, %s' % (vr(tmp + 2 * k + 1), vr(tmp + 2 * k)))
                r('v_lshlrev_b32 %s, 16, %s' % (vr(tmp + 2 * k), vr(tmp + 2 * k)))
            for k in range(4):
                if rep == 0:
                    r('v_mul_f32 %s, %s, %s' % (vr(tmp + k), vr(tmp + k), vr(b + 1)))
                elif rep == 1:
                    r('v_mul_f32 %s, %s, %s' % (vr(tmp + k), vr(tmp + k), vr(V_DSK + k)))
                else:
                    r('v_add_f32 %s, %s, %s' % (vr(x + k), vr(x + k), vr(tmp + k)))
            if rep < 2:
                for k in range(2):
                    r('v_cvt_pk_bf16_f32 %s, %s, %s' % (vr(tmp + 2 * k), vr(tmp + 2 * k), vr(tmp + 2 * k + 1)))
    return [(b, 2), (tmp, 4), (P, 4), (XS, 12)]


def hflag_prep(s, layer):
    fa, fv = V.get(), V.get()
    s('s_lshl2_add_u32 %s, %s, %s' % (sr(S_T1), sr(S_RB), sr(S_WAVE)),
      's_lshl_b32 %s, %s, 6' % (sr(S_T1), sr(S_T1)),
      's_add_u32 %s, %s, %d' % (sr(S_T1), sr(S_T1), WS_HF + layer * NRB * 256),
      'v_lshl_add_u32 %s, %s, 2, %s' % (vr(fa), vr(V_N), sr(S_T1)))
    s('v_cmp_gt_u32 vcc, 9, %s' % vr(V_N),
      'v_cndmask_b32 %s, %s, %s, vcc' % (vr(fa), vr(V_OOB), vr(fa)))
    s('s_mul_i32 %s, %s, 216' % (sr(S_T1), sr(S_RB)),
      's_add_u32 %s, %s, %s' % (sr(S_T1), sr(S_T1), sr(S_WAVE)),
      's_lshl_b32 %s, %s, 10' % (sr(S_T1), sr(S_T1)),
      's_add_u32 %s, %s, %d' % (sr(S_HB), sr(S_T1), WS_H + layer * H_SZ))
    fl = 'buffer_load_dword %s, %s, %s, 0 offen sc1' % (vr(fv), vr(fa), sr(R_WS, 4))
    return fa, fv, fl


def hload_next(st, reg):
    st('buffer_load_dwordx4 %s, %s, %s, %s offen sc1' % (vr(reg, 4), vr(V_L16), sr(R_WS, 4), sr(S_HB)),
       's_add_u32 %s, %s, 4096' % (sr(S_HB), sr(S_HB)))


cpn = [0, OPT['ncp']]


def cpx(which, lim):
    def f(st):
        if cpn[which] < lim:
            cp_load(st, cpn[which] // 4, cpn[which] % 4)
            cpn[which] += 1
    return f


htk, hrel = scan_phase(a, 0, ACC, AF, mid0, cpx(0, NCP0), cpx(1, OPT['ncp2']))
assert cpn == [NCP0, OPT['ncp2']]
put(*hrel)
a('s_mov_b32 %s, %s' % (sr(S_C), sr(S_T0)))
for l_ in cv.uloads:
    a(l_)
for r_ in range(BASE, BASE + 24):
    V.free.remove(r_)
V.claim(V_PW, 4)
t = V.get()
a('v_mul_u32_u24 %s, %d, %s' % (vr(V_PW), PART_ROW, vr(V_N)))
a('v_lshl_add_u32 %s, %s, 4, %s' % (vr(V_PW), vr(V_Q), vr(V_PW)))
a('s_mul_i32 %s, %s, %d' % (sr(S_T0), sr(S_WAVE), PART_W))
a('v_add_u32 %s, %s, %s' % (vr(V_PW), sr(S_T0), vr(V_PW)))
a('s_lshl_b32 %s, %s, 2' % (sr(S_T0), sr(S_WAVE)))
a('v_add_u32 %s, %s, %s' % (vr(t), sr(S_T0), vr(V_Q)))
a('v_mul_u32_u24 %s, %d, %s' % (vr(V_PR), PART_ROW, vr(t)))
a('v_lshl_add_u32 %s, %s, 4, %s' % (vr(V_PR), vr(V_N), vr(V_PR)))
PH = 12 * PART_W
a('v_add_u32 %s, %d, %s' % (vr(V_PW2), PH, vr(V_PW)))
a('v_add_u32 %s, %d, %s' % (vr(V_PR2), PH, vr(V_PR)))
put(t)
a('s_barrier')
if OPT['fine']:
    stamp(a, 'ubar')
hf = Stream()
hf.wait(htk)
dual(hf, flag_texts(sr(S_C), '{P}'))
stamp(hf, 'h_pub0')
sd, lr = Stream(), Stream()
for idx in range(OPT['ncp2'], 36):
    cp_load(sd, idx // 4, idx % 4)
hfa, hfv, hfl = hflag_prep(sd, 0)
sd(hfl)
lrel = ln_rest0_plain(lr, LNP0)
HB0 = []


def last0(m, reg):
    if reg is None:
        poll(m, [hfl], [(hfv, None, V_EXP9)], pre_issued=True)
    else:
        HB0.append(reg)
        hload_next(m, reg)


conv_body(a, cv, [sd, lr], True, hf, True, last0)
put(*lrel)
put(hfa, hfv)


def g_fetch_streams():
    s1, s2 = Stream(), Stream()
    fa, u, u2 = V.get(), V.get(), V.get()
    D = V.get(16)
    s1('v_lshrrev_b32 %s, 3, %s' % (vr(fa), vr(V_LANE)))
    s1('v_mul_u32_u24 %s, %d, %s' % (vr(fa), G_STR - 128, vr(fa)))
    s1('s_mul_i32 %s, %s, %d' % (sr(S_T1), sr(S_CG), 32 * G_STR),
       's_lshl2_add_u32 %s, %s, %s' % (sr(S_T2), sr(S_RB), sr(S_WAVE)),
       's_lshl_b32 %s, %s, 7' % (sr(S_T2), sr(S_T2)),
       's_add_u32 %s, %s, %s' % (sr(S_T1), sr(S_T1), sr(S_T2)),
       's_add_u32 %s, %s, %d' % (sr(S_T1), sr(S_T1), WS_G),
       'v_add3_u32 %s, %s, %s, %s' % (vr(fa), vr(fa), vr(V_L16), sr(S_T1)))
    loads = []
    for i in range(4):
        loads.append('s_mov_b32 %s, %d' % (sr(S_T1), 8 * i * G_STR))
        loads.append('buffer_load_dwordx4 %s, %s, %s, %s offen sc1' % (vr(D + 4 * i, 4), vr(fa), sr(R_WS, 4), sr(S_T1)))
    for i in range(4):
        s1(loads[2 * i], loads[2 * i + 1])
    s1('v_and_b32 %s, 1, %s' % (vr(u), vr(V_Q)))
    s1('v_lshlrev_b32 %s, 6, %s' % (vr(u), vr(u)))
    s1('v_mul_u32_u24 %s, 272, %s' % (vr(u2), vr(V_N)))
    s1('v_add3_u32 %s, %s, %s, %s' % (vr(u), vr(u), vr(u2), sr(S_RINGW)))
    s1('v_lshrrev_b32 %s, 1, %s' % (vr(u2), vr(V_Q)))
    s1('v_lshl_add_u32 %s, %s, 2, %s' % (vr(u), vr(u2), vr(u)))
    s1('v_lshl_add_u32 %s, %s, 2, %s' % (vr(u2), vr(u2), vr(u)))
    poll(s2, loads, [(D + 3, D + 7, V_TAG), (D + 11, D + 15, V_TAG)], pre_issued=True, sleep=4)
    s2('v_lshlrev_b32 %s, 4, %s' % (vr(fa), vr(V_Q)))
    s2('v_add3_u32 %s, %s, %s, %s' % (vr(fa), vr(fa), vr(V_L16), sr(S_RINGW)))
    for i in range(4):
        s2('ds_write_b128 %s, %s offset:%d' % (vr(fa), vr(D + 4 * i, 4), 1088 * i))
    for i, o in enumerate((0, 2, 5, 8, 10, 13)):
        s2('ds_read2_b32 %s, %s offset0:%d offset1:%d' % (vr(GP + 2 * i, 2), vr(u2 if i in (1, 4) else u), o, 32 + o))
    return s1, s2, [fa, u, u2, (D, 16)]


def gemm_c(a, layer, HB=None):
    NF = 16
    if HB is None:
        a.extend(hq)
        poll(a, [hfl], [(hfv, None, V_EXP9)], pre_issued=True)
        stamp(a, 'h_flag%d' % layer)
        put(hfa, hfv)
        HB = [V.get(4, top=True) for _ in range(NF)]
        for f in range(NF):
            hload_next(a, HB[f])
    CA = [V.get(4, top=True) for _ in range(8)]
    hb = lambda i, s: HB[(i * 9 + s) % NF]
    slot = lambda i: (i + 4) % 6

    def pwrite(st, i, js=range(4)):
        for j in js:
            tk = st.mem('ds_write_b128 %s, %s offset:%d' % (vr(V_PW if slot(i) < 3 else V_PW2), vr(CA[(i & 1) * 4 + j], 4),
                                                            L_IMG + (slot(i) % 3) * 4 * PART_W + j * 64))
        return tk

    def preduce(st, i, P):
        for w in range(4):
            st('ds_read_b128 %s, %s offset:%d' % (vr(P[w], 4), vr(V_PR if slot(i) < 3 else V_PR2), L_IMG + ((slot(i) % 3) * 4 + w) * PART_W))

    def padd(st, i, P, pk):
        x = BASE + 4 * i
        if pk:
            for k in range(2):
                st('v_pk_add_f32 %s, %s, %s' % (vr(P[0] + 2 * k, 2), vr(P[0] + 2 * k, 2), vr(P[1] + 2 * k, 2)))
                st('v_pk_add_f32 %s, %s, %s' % (vr(P[2] + 2 * k, 2), vr(P[2] + 2 * k, 2), vr(P[3] + 2 * k, 2)))
                st('v_pk_add_f32 %s, %s, %s' % (vr(x + 2 * k, 2), vr(x + 2 * k, 2), vr(P[0] + 2 * k, 2)))
                st('v_pk_add_f32 %s, %s, %s' % (vr(x + 2 * k, 2), vr(x + 2 * k, 2), vr(P[2] + 2 * k, 2)))
        else:
            for w in range(4):
                for k in range(4):
                    st('v_add_f32 %s, %s, %s' % (vr(x + k), vr(x + k), vr(P[w] + k)))

    sc = Sched(a)
    qp, qs = sc.add(Stream()), sc.add(Stream())
    if layer == 0:
        a.wait(cv.stk)
        cf_ = Stream()
        with V.borrow((GP, 12)):
            frel = conv_final(cf_, cv)
        qs.extend(cf_.groups)
        put(*frel)
    a('s_barrier')
    S, Q = V.get(6, 1), V.get(6, 1)
    PT = [V.get(4) for _ in range(4)]
    tk = None
    for i in range(MT):
        m = Stream()
        for s in range(9):
            for j in range(4):
                ca = CA[(i & 1) * 4 + j]
                m('v_mfma_f32_16x16x32_bf16 %s, %s, %s, %s' % (vr(ca, 4), WC(s, j), vr(hb(i, s), 4), '0' if s == 0 else vr(ca, 4)))
                if j == 0 and s < 8:
                    m.touch(vr(hb(i, s + 1), 4))
            if i * 9 + s + NF < 9 * MT:
                hload_next(m, hb(i, s))
        if i in (3, 5):
            print('gemm_c leftover before barrier', sc.pending())
            sc.flush()
            a.wait(tk)
            a('s_barrier')
            sd = Stream()
            for ti in (i - 3, i - 2):
                preduce(sd, ti, PT)
                padd(sd, ti, PT, False)
                stats_partial(sd, BASE, S, Q, ti, None, False)
            qs.extend(sd.groups)
        if i > 0:
            pw = Stream()
            tk = pwrite(pw, i - 1)
            qp.extend(pw.groups)
        sc.run(m)
        sc.flush(qp)
        if OPT['fine']:
            stamp(a, 'c%d_t%d' % (layer, i))
    print('gemm_c leftover', sc.pending(), 'model time', sc.t)
    sc.flush()
    put(*[(r, 4) for r in PT + HB[8:]])
    gs = None
    if layer == 0:
        V.claim(GP, 12)
        gs = g_fetch_streams()
        a.extend(gs[0])
    tk = pwrite(a, MT - 1)
    a.wait(tk)
    a('s_barrier')
    stamp(a, 'gemmC%d' % layer)
    for ti in (4, 5):
        preduce(a, ti, HB[(ti - 4) * 4:(ti - 4) * 4 + 4])
    for ti in (4, 5):
        padd(a, ti, HB[(ti - 4) * 4:(ti - 4) * 4 + 4], True)
    put(*[(r, 4) for r in CA + HB[:8]])
    return S, Q, gs


def gate(a, which, final, SQ):
    stats_publish(a, BASE, which, True, SQ=SQ[:2], tiles=(4, 5))
    stamp(a, 'st_pub%d' % which)
    if SQ[2] is not None:
        a.extend(SQ[2][1])
        put(*SQ[2][2])
    GU = V.get(24)
    for i in range(MT):
        for j in range(2):
            a('v_lshlrev_b32 %s, 16, %s' % (vr(GU + 4 * i + 2 * j), vr(GP + 2 * i + j)))
            a('v_and_b32 %s, 0xffff0000, %s' % (vr(GU + 4 * i + 2 * j + 1), vr(GP + 2 * i + j)))
    G = V.get(24)
    ex = stats_exp(a, which)
    poll(a, stats_loads(which, G), [(G + 4 * i + 1, G + 4 * i + 3, ex) for i in range(MT)])
    put(ex)
    stamp(a, 'st_got%d' % which)
    P = stats_finish(a, G)
    for k in range(2):
        a('v_add_f32 %s, 0x3727c5ac, %s' % (vr(P + 2 * k + 1), vr(P + 2 * k + 1)))
    for k in range(2):
        a('v_rsq_f32 %s, %s' % (vr(P + 2 * k + 1), vr(P + 2 * k + 1)))
    for k in range(2):
        a('v_add_f32 %s, %s, %s' % (vr(OFF + k), vr(OFF + k), vr(P + 2 * k)))
    B = G
    for i in range(MT):
        bcast(a, B + 4 * i, P, i)
        if final:
            k_, lane = tile_src(i)
            a('v_mov_b32_dpp %s, %s row_newbcast:%d row_mask:0xf bank_mask:0xf' % (vr(B + 4 * i + 2), vr(OFF + k_), lane))
    for i in range(MT):
        x, g, b = BASE + 4 * i, GU + 4 * i, B + 4 * i
        for k in range(2):
            a('v_pk_add_f32 %s, %s, %s op_sel:[0,0] op_sel_hi:[1,0] neg_lo:[0,1] neg_hi:[0,1]' % (vr(x + 2 * k, 2), vr(x + 2 * k, 2), vr(b, 2)))
            a('v_pk_fma_f32 %s, %s, %s, 1.0 op_sel:[0,1,0] op_sel_hi:[1,1,0]' % (vr(g + 2 * k, 2), vr(g + 2 * k, 2), vr(b, 2)))
        for k in range(2):
            if final:
                a('v_pk_fma_f32 %s, %s, %s, %s op_sel:[0,0,0] op_sel_hi:[1,1,0]' % (vr(x + 2 * k, 2), vr(x + 2 * k, 2), vr(g + 2 * k, 2), vr(b + 2, 2)))
            else:
                a('v_pk_mul_f32 %s, %s, %s' % (vr(x + 2 * k, 2), vr(x + 2 * k, 2), vr(g + 2 * k, 2)))
        if final:
            a('s_movk_i32 %s, %d' % (sr(S_T0), 4608 * i),
              'buffer_store_dwordx4 %s, %s, %s, %s offen' % (vr(x, 4), vr(V_OROW), sr(R_OUT, 4), sr(S_T0)))
    put((GU, 24), (G, 24), (P, 4))


SQ_ = gemm_c(a, 0, HB0)
gate(a, 1, False, SQ_)
WP = V.get(12, 2)
for i in range(MT):
    for k in range(2):
        a('v_cvt_pk_bf16_f32 %s, %s, %s' % (vr(WP + 2 * i + k), vr(BASE + 4 * i + 2 * k), vr(BASE + 4 * i + 2 * k + 1)))
a('s_mul_i32 %s, %s, 18' % (sr(S_T0), sr(S_RB)))
a('s_add_u32 %s, %s, %s' % (sr(S_T0), sr(S_T0), sr(S_CG)))
a('s_mul_i32 %s, %s, %d' % (sr(S_T0), sr(S_T0), BLK))
a('s_add_u32 %s, %s, %d' % (sr(S_T0), sr(S_T0), WS_H))
a('s_add_u32 %s, %s, 4096' % (sr(S_T1), sr(S_T0)))
a('s_add_u32 %s, %s, 8192' % (sr(S_T2), sr(S_T0)))
wtk_ = dual(a, ['buffer_store_dwordx2 %s, %s, %s, %s offen offset:%d {P}' %
                (vr(WP + 2 * i, 2), vr(V_WA), sr(R_WS, 4), sr((S_T0, S_T1, S_T2)[i >> 1]), (i & 1) * 2048) for i in range(MT)])
stats_publish(a, BASE, 2, True)
V_DX = V.get(3, 1)
a('s_mul_i32 %s, %s, %d' % (sr(S_T0), sr(S_RB), 18 * BLK))
a('s_add_u32 %s, %s, %d' % (sr(S_T0), sr(S_T0), WS_H))
a('s_add_u32 %s, %s, %s' % (sr(S_T0), sr(S_T0), sr(S_W1K)))
a('v_add_u32 %s, %s, %s' % (vr(V_DX), sr(S_T0), vr(V_L16)))
a('v_add_u32 %s, 4096, %s' % (vr(V_DX + 1), vr(V_DX)))
a('v_add_u32 %s, 8192, %s' % (vr(V_DX + 2), vr(V_DX)))
for s in range(9):
    a('s_mul_i32 %s, %s, 96' % (sr(S_TT + s), sr(S_KP + s)))
fa, fe, fv = V.get(), V.get(), V.get()
a('s_lshl_b32 %s, %s, 8' % (sr(S_T1), sr(S_RB)))
a('s_add_u32 %s, %s, %d' % (sr(S_T1), sr(S_T1), WS_WF))
a('v_lshl_add_u32 %s, %s, 2, %s' % (vr(fa), vr(V_LANE), sr(S_T1)))
a('v_cmp_gt_u32 vcc, 36, %s' % vr(V_LANE),
  'v_cndmask_b32 %s, %s, %s, vcc' % (vr(fa), vr(V_OOB), vr(fa)),
  'v_cndmask_b32 %s, 0, %s, vcc' % (vr(fe), vr(V_TAG)))
a('s_lshl2_add_u32 %s, %s, %s' % (sr(S_T0), sr(S_PT), sr(S_T1)))
a.wait(wtk_)
dual(a, flag_texts(sr(S_T0), '{P}'))
stamp(a, 'w_pub')
put((WP, 12))

ACC = V.get(48, top=True)
AF = V.get(48, top=True)
poll(a, ['buffer_load_dword %s, %s, %s, 0 offen sc1' % (vr(fv), vr(fa), sr(R_WS, 4))], [(fv, None, fe)])
stamp(a, 'w_flag')
put(fa, fe, fv)
pre = {k: Stream() for k in range(18)}
side = {k: Stream() for k in range(18)}
wtk = {}
for blk in range(4):
    wtk[blk] = x_dma(a, blk, 1)
vm2 = {k: Stream() for k in range(18)}
for blk in range(4, 9):
    wtk[blk] = x_dma(vm2[0], blk, 1)
G2 = V.get(24)
gl2 = stats_loads(2, G2)
for i in range(0, 12, 2):
    vm2[0](gl2[i], gl2[i + 1])
ex2 = stats_exp(side[0], 2)
poll(pre[10], gl2, [(G2 + 4 * i + 1, G2 + 4 * i + 3, ex2) for i in range(MT)], pre_issued=True)
put(ex2)
ttk2, LNP1 = ln_table(side[10], 1, G2, None)
pre[15].wait(ttk2)
dual(vm2[12], ['s_lshl_b32 %s, %s, 6' % (sr(S_T0), sr(S_RB)),
               's_add_u32 %s, %s, %s' % (sr(S_T0), sr(S_T0), sr(S_CG)),
               's_lshl_b32 %s, %s, 2' % (sr(S_T0), sr(S_T0)),
               's_add_u32 %s, %s, %d' % (sr(S_T0), sr(S_T0), WS_WF + 160)] + flag_texts(sr(S_T0), '{P}'))
gemm_b(a, ACC, AF, lambda s: wtk[s], pre, side, vm=vm2)
put((V_DX, 3))
stamp(a, 'gemmB2')


def mid1(a, mk):
    da, dv = V.get(), V.get()
    a('s_lshl_b32 %s, %s, 8' % (sr(S_T1), sr(S_RB)))
    a('s_add_u32 %s, %s, %d' % (sr(S_T1), sr(S_T1), WS_WF + 160))
    a('v_lshl_add_u32 %s, %s, 2, %s' % (vr(da), vr(V_N), sr(S_T1)))
    a('v_cmp_gt_u32 vcc, 9, %s' % vr(V_N), 'v_cndmask_b32 %s, %s, %s, vcc' % (vr(da), vr(V_OOB), vr(da)))
    dl = 'buffer_load_dword %s, %s, %s, 0 offen sc1' % (vr(dv), vr(da), sr(R_WS, 4))
    a(dl)
    ln_rest(a, 1, LNP1)
    mk(a)
    poll(a, [dl], [(dv, None, V_EXP9)], pre_issued=True)
    put(da, dv)
    return None


htk, hrel = scan_phase(a, 1, ACC, AF, mid1)
put(*hrel)
hfa, hfv, hfl = hflag_prep(a, 1)
hq = Stream()
hq(hfl)
a.wait(htk)
dual(a, flag_texts(sr(S_T0), '{P}'))
stamp(a, 'h_pub1')
a('s_lshl2_add_u32 %s, %s, %s' % (sr(S_T0), sr(S_L), sr(S_WAVE)))
a('s_cmp_lg_u32 %s, %d' % (sr(S_T0), (NRB - 1) * 9 * 4))
a('s_cselect_b64 exec, 0, 1',
  'buffer_store_dword %s, %s, %s, 0 offen sc1' % (vr(V_TAG), vr(V_ZERO), sr(R_WS, 4)),
  's_mov_b64 exec, -1')
SQ_ = gemm_c(a, 1)
gate(a, 3, True, SQ_)
stamp(a, 'out')
a('s_branch L_fin')

a.fence()
a.label('L_aux')
V.free = set(range(NCOMMON, 256))
V.locked = set()
a('s_waitcnt lgkmcnt(0)')
a('s_load_dword %s, %s, 0' % (sr(S_TAG), sr(P_WS, 2)))
srd(a, R_WS, P_WS, WS_SIZE)
a('s_sub_u32 %s, %s, %d' % (sr(S_RB), sr(S_L), NMAIN))
S_AW, S_KC_, S_CGK, S_KP2, S_DG, S_SCR, S_AW2 = [S_KP + i for i in range(7)]
a('s_mul_i32 %s, %s, 58' % (sr(S_AW2), sr(S_WAVE)))
a('s_add_u32 %s, %s, %s' % (sr(S_AW2), sr(S_AW2), sr(S_RB)))
a('s_lshl2_add_u32 %s, %s, %s' % (sr(S_AW), sr(S_RB), sr(S_WAVE)))
a('s_mul_i32 %s, %s, 57' % (sr(S_T0), sr(S_AW)))
a('s_lshr_b32 %s, %s, 10' % (sr(S_DG), sr(S_T0)))
a('s_mul_i32 %s, %s, 171' % (sr(S_KC_), sr(S_AW2)))
a('s_lshr_b32 %s, %s, 9' % (sr(S_KC_), sr(S_KC_)))
a('s_mul_i32 %s, %s, 18' % (sr(S_T1), sr(S_DG)))
a('s_sub_u32 %s, %s, %s' % (sr(S_KP2), sr(S_AW), sr(S_T1)))
a('s_mul_i32 %s, %s, 3' % (sr(S_T1), sr(S_KC_)))
a('s_sub_u32 %s, %s, %s' % (sr(S_CGK), sr(S_AW2), sr(S_T1)))
a('s_add_u32 %s, %s, 6' % (sr(S_CGK), sr(S_CGK)))
srd(a, R_BRE, P_CRE, 576 * 1152)
srd(a, R_BIM, P_CIM, 576 * 1152)
dp, gm, vc, t, t2 = [V.get() for _ in range(5)]
a('v_and_b32 %s, 31, %s' % (vr(dp), vr(V_LANE)))
a('s_lshl_b32 %s, %s, 6' % (sr(S_T0), sr(S_KP2)))
a('v_lshl_add_u32 %s, %s, 1, %s' % (vr(t2), vr(dp), sr(S_T0)))
LT = lam_loads(a, t2)
CL = V.get(24)
a('v_lshrrev_b32 %s, 2, %s' % (vr(vc), vr(V_LANE)))
a('v_mul_u32_u24 %s, 1152, %s' % (vr(vc), vr(vc)))
a('v_and_b32 %s, 3, %s' % (vr(gm), vr(V_LANE)))
a('v_lshl_add_u32 %s, %s, 4, %s' % (vr(vc), vr(gm), vr(vc)))
a('s_mul_i32 %s, %s, %d' % (sr(S_T1), sr(S_DG), 48 * 1152))
a('s_add_u32 %s, %s, %s' % (sr(S_T1), sr(S_T1), sr(S_T0)))
for u in range(3):
    a('s_add_u32 %s, %s, %d' % (sr(S_T2), sr(S_T1), u * 16 * 1152),
      'buffer_load_dwordx4 %s, %s, %s, %s offen nt' % (vr(CL + 8 * u, 4), vr(vc), sr(R_BRE, 4), sr(S_T2)),
      'buffer_load_dwordx4 %s, %s, %s, %s offen nt' % (vr(CL + 8 * u + 4, 4), vr(vc), sr(R_BIM, 4), sr(S_T2)))
a('s_lshl2_add_u32 %s, %s, %s' % (sr(S_T1), sr(S_RB), sr(S_WAVE)))
a('s_mul_i32 %s, %s, 2880' % (sr(S_T1), sr(S_T1)))
a('v_min_u32 %s, 22, %s' % (vr(V_TAG), vr(V_LANE)))
a('v_lshl_add_u32 %s, %s, 7, %s' % (vr(V_TAG), vr(V_TAG), sr(S_T1)))
a('v_min_u32 %s, %d, %s' % (vr(V_TAG), 576 * 1152 - 4, vr(V_TAG)))
a('global_load_dword %s, %s, %s ;junk' % (vr(V_JUNK), vr(V_TAG), sr(P_BRE, 2)))
a('global_load_dword %s, %s, %s ;junk' % (vr(V_JUNK), vr(V_TAG), sr(P_BIM, 2)))
srd(a, R_K, P_K, 2048 * 1152)
srd(a, R_V, P_V, 2048 * 1152)
sg, vk, vh, ka = [V.get() for _ in range(4)]
a('v_lshrrev_b32 %s, 5, %s' % (vr(sg), vr(V_LANE)))
a('s_mul_i32 %s, %s, %d' % (sr(S_T0), sr(S_KC_), 48 * 1152))
a('s_lshl_b32 %s, %s, 7' % (sr(S_T1), sr(S_CGK)))
a('s_add_u32 %s, %s, %s' % (sr(S_T0), sr(S_T0), sr(S_T1)))
a('v_mul_u32_u24 %s, %d, %s' % (vr(vk), 24 * 1152, vr(sg)))
a('v_lshl_add_u32 %s, %s, 2, %s' % (vr(vk), vr(dp), vr(vk)))
a('v_add_u32 %s, %s, %s' % (vr(vk), sr(S_T0), vr(vk)))
a('v_subrev_u32 %s, %d, %s' % (vr(vh), 3 * 1152, vr(vk)))
SHK = V.get(4)
a('s_lshl_b32 %s, %s, 9' % (sr(S_T1), sr(S_CGK)))
a('v_lshl_add_u32 %s, %s, 4, %s' % (vr(t), vr(dp), sr(S_T1)))
a('global_load_dwordx4 %s, %s, %s' % (vr(SHK, 4), vr(t), sr(P_SHK, 2)))
KR, VR = V.get(27, 1), V.get(24, 1)
ld = Stream()
for j in range(3):
    ld('buffer_load_dword %s, %s, %s, 0 offen offset:%d nt' % (vr(KR + j), vr(vh), sr(R_K, 4), 1152 * j))
for j3 in range(8):
    ld('s_mov_b32 %s, %d' % (sr(S_C), 3456 * j3),
       *['buffer_load_dword %s, %s, %s, %s offen offset:%d nt' % (vr(base + 3 * j3 + jj), vr(vk), sr(rr, 4), sr(S_C), 1152 * jj)
         for jj in range(3) for (base, rr) in ((KR + 3, R_K), (VR, R_V))])
ldp = split(ld, 2)
astamp(a, 4)
a('s_waitcnt lgkmcnt(0)')
astamp(a, 5)
tag_ready(a)
cs = Stream()
cs('s_mul_i32 %s, %s, 8192' % (sr(S_SCR), sr(S_WAVE)), 's_add_u32 %s, %s, %d' % (sr(S_SCR), sr(S_SCR), 65536))
_, COEF = lam_compute(cs, LT, True)
cs('v_add_f32 %s, %s, %s' % (vr(COEF), vr(COEF), vr(COEF)))
cs('v_add_f32 %s, %s, %s' % (vr(COEF + 1), vr(COEF + 1), vr(COEF + 1)))
cs('v_lshl_add_u32 %s, %s, 3, %s' % (vr(t), vr(dp), sr(S_SCR)))
cs('ds_write_b64 %s, %s offset:6144' % (vr(t), vr(COEF, 2)))
cs('v_lshl_add_u32 %s, %s, 6, %s' % (vr(t), vr(gm), sr(S_SCR)))
CF = V.get(16)
for k in range(4):
    cs('ds_read_b128 %s, %s offset:%d' % (vr(CF + 4 * k, 4), vr(t), 6144 + 16 * k))
wa, ra = V.get(), V.get()
cs('v_lshrrev_b32 %s, 2, %s' % (vr(t), vr(V_LANE)))
cs('v_lshlrev_b32 %s, 4, %s' % (vr(t), vr(t)))
cs('v_lshl_add_u32 %s, %s, 9, %s' % (vr(wa), vr(gm), vr(t)))
cs('v_add_u32 %s, %s, %s' % (vr(wa), sr(S_SCR), vr(wa)))
cs('v_add_u32 %s, %s, %s' % (vr(ra), sr(S_SCR), vr(V_L16)))
X = V.get(4)
O = V.get(8)
RD = V.get(24)
for u in range(3):
    for e in range(8):
        src = CL + 8 * u + (e >> 1)
        op = 'v_and_b32 %s, 0xffff0000, %s' if e & 1 else 'v_lshlrev_b32 %s, 16, %s'
        cs(op % (vr(X), vr(src)))
        cs(op % (vr(X + 1), vr(src + 4)))
        cmul(cs, X + 2, X, CF + 2 * e)
        cs('v_cvt_pk_bf16_f32 %s, %s, -%s' % (vr(O + e), vr(X + 2), vr(X + 3)))
    bo = u * 2048
    cs('ds_write_b128 %s, %s offset:%d' % (vr(wa), vr(O, 4), bo))
    cs('ds_write_b128 %s, %s offset:%d' % (vr(wa), vr(O + 4, 4), bo + 256))
    cs('ds_read_b128 %s, %s offset:%d' % (vr(RD + u * 8, 4), vr(ra), bo))
    cs('ds_read_b128 %s, %s offset:%d' % (vr(RD + u * 8 + 4, 4), vr(ra), bo + 1024))
a.weave(cs, ldp[0], 0.3, 0.95)
astamp(a, 6)
a('s_and_b32 %s, %s, 1' % (sr(S_T0), sr(S_KP2)))
a('s_mul_i32 %s, %s, %d' % (sr(S_T0), sr(S_T0), 2 * 37 * 1024))
a('s_lshr_b32 %s, %s, 1' % (sr(S_T1), sr(S_KP2)))
a('s_lshl_b32 %s, %s, 12' % (sr(S_T1), sr(S_T1)))
a('s_add_u32 %s, %s, %s' % (sr(S_T0), sr(S_T0), sr(S_T1)))
a('s_add_u32 %s, %s, %d' % (sr(S_T0), sr(S_T0), WS_CP))
a('s_cmp_lt_u32 %s, 216' % sr(S_AW))
a('s_cselect_b32 %s, %s, 0x%x' % (sr(S_T0), sr(S_T0), 0x40000000))
toks = []
for u in range(3):
    a('s_mul_i32 %s, %s, 3' % (sr(S_T1), sr(S_DG)))
    a('s_add_u32 %s, %s, %d' % (sr(S_T1), sr(S_T1), u))
    a('s_lshr_b32 %s, %s, 2' % (sr(S_T2), sr(S_T1)))
    a('s_mul_i32 %s, %s, %d' % (sr(S_T2), sr(S_T2), 4 * 37 * 1024))
    a('s_and_b32 %s, %s, 3' % (sr(S_T1), sr(S_T1)))
    a('s_lshl_b32 %s, %s, 10' % (sr(S_T1), sr(S_T1)))
    a('s_add_u32 %s, %s, %s' % (sr(S_T1), sr(S_T1), sr(S_T2)))
    a('s_add_u32 %s, %s, %s' % (sr(S_T1), sr(S_T1), sr(S_T0)))
    a('s_add_u32 %s, %s, %d' % (sr(S_T2), sr(S_T1), 37 * 1024))
    toks.append(a.mem('buffer_store_dwordx4 %s, %s, %s, %s offen sc1' % (vr(RD + u * 8, 4), vr(V_L16), sr(R_WS, 4), sr(S_T1))))
    toks.append(a.mem('buffer_store_dwordx4 %s, %s, %s, %s offen sc1' % (vr(RD + u * 8 + 4, 4), vr(V_L16), sr(R_WS, 4), sr(S_T2))))
a('s_nop 1')
put((CL, 24), (CF, 16), (X, 4), (O, 8), (RD, 24), wa, ra, (COEF, 2))
a.extend(ldp[1])
astamp(a, 7)
cf = Stream()
astamp(cf, 8)
cf.wait(*toks)
astamp(cf, 9)
cf('s_lshl_b32 %s, %s, 6' % (sr(S_T0), sr(S_AW)),
   's_add_u32 %s, %s, %d' % (sr(S_T0), sr(S_T0), WS_CPF), *flag_texts(sr(S_T0), 'sc1'))
a('v_sub_u32 %s, 1, %s' % (vr(sg), vr(sg)))
a('v_lshlrev_b32 %s, 6, %s' % (vr(sg), vr(sg)))
a('v_mul_u32_u24 %s, 272, %s' % (vr(ka), vr(dp)))
a('s_mul_i32 %s, %s, 8704' % (sr(S_SCR), sr(S_WAVE)))
a('v_add3_u32 %s, %s, %s, %s' % (vr(ka), vr(ka), vr(sg), sr(S_SCR)))
kc = Stream()
kv_core(kc, 12, lambda r: KR + 3 + r, lambda r: VR + r, SHK,
        lambda ch, un, reg: kc('ds_write_b128 %s, %s offset:%d' % (vr(ka), vr(reg, 4), ch * 128 + un * 16)),
        touch=lambda tp: kc.touch(vr(KR + 3 + 2 * tp, 6), vr(VR + 2 * tp, 6)) if tp % 3 == 0 else None)
cv = Conv()
conv_setup_k(cf, cv)
a.weave(kc, cf, 0.0, 0.5)
astamp(a, 10)
put((KR, 27), (VR, 24))
RD = V.get(32)
ra, ga = V.get(), V.get()
a('v_lshlrev_b32 %s, 4, %s' % (vr(ra), vr(V_Q)))
a('v_add3_u32 %s, %s, %s, %s' % (vr(ra), vr(ra), vr(V_L16), sr(S_SCR)))
for i in range(8):
    a('ds_read_b128 %s, %s offset:%d' % (vr(RD + 4 * i, 4), vr(ra), 1088 * i))
a('v_lshrrev_b32 %s, 3, %s' % (vr(ga), vr(V_LANE)))
a('v_mul_u32_u24 %s, %d, %s' % (vr(ga), KVT_STR - 128, vr(ga)))
a('v_add_u32 %s, %s, %s' % (vr(ga), vr(ga), vr(V_L16)))
a('s_mul_i32 %s, %s, %d' % (sr(S_T0), sr(S_CGK), 64 * KVT_STR))
a('s_sub_u32 %s, 43, %s' % (sr(S_T1), sr(S_KC_)))
a('s_lshl_b32 %s, %s, 7' % (sr(S_T1), sr(S_T1)))
a('s_add_u32 %s, %s, %s' % (sr(S_T0), sr(S_T0), sr(S_T1)))
a('s_cmp_lt_u32 %s, 132' % sr(S_AW2))
a('s_cselect_b32 %s, %s, 0x%x' % (sr(S_T2), sr(S_T0), 0x40000000))
for i in range(8):
    a('s_add_u32 %s, %s, %d' % (sr(S_T1), sr(S_T2), WS_KVT + 8 * i * KVT_STR),
      'buffer_store_dwordx4 %s, %s, %s, %s offen sc1' % (vr(RD + 4 * i, 4), vr(ga), sr(R_WS, 4), sr(S_T1)))
a('s_nop 1')
if OPT['stamps']:
    a('s_memtime %s' % sr(S_M2, 2), 's_waitcnt lgkmcnt(0)', 'v_writelane_b32 %s, %s, 1' % (vr(V_STAMP), sr(S_M2)))
keep_cv = cv
a('s_branch L_auxconv3')
a.fence()
a.label('L_auxconv2')
V.free = set(range(NCOMMON, 256))
V.locked = set()
sv = OPT['stamps']
OPT['stamps'] = 0
OPT['_sv'] = sv
cv = Conv()
a('s_barrier')
conv_setup_k(a, cv)
assert (cv.SD, cv.HD) == (keep_cv.SD, keep_cv.HD)
a.label('L_auxconv3')
a('s_barrier')
conv_u_prep(a, cv)
put(*conv_addr(a, cv))
conv_body(a, cv, pre_issued=False)
a.wait(cv.stk)
a('s_barrier')
conv_final(a, cv)
astamp(a, 13)
OPT['stamps'] = sv
if OPT['stamps']:
    a('s_memtime %s' % sr(S_M2, 2), 's_waitcnt lgkmcnt(0)', 's_cmp_eq_u32 %s, %s' % (sr(S_PAIR), sr(S_L)),
      's_cselect_b32 m0, 2, 3', 's_nop 3', 'v_writelane_b32 %s, %s, m0' % (vr(V_STAMP), sr(S_M2)))
a('s_add_u32 %s, %s, %d' % (sr(S_PAIR), sr(S_PAIR), NAUX))
a('s_cmp_lt_u32 %s, 288' % sr(S_PAIR))
a('s_cbranch_scc1 L_auxconv2')
a('s_branch L_fin')

a.fence()
a.extend(tail)

a.label('L_fin')
want = ['setup', 'lam', 'gemmB1', 'e_pub0', 'kv', 'carry0', 'h_pub0', 'conv_ld', 'conv_mm', 'gemmC0', 'st_got1', 'w_flag', 'gemmB2', 'carry1', 'gemmC1']
DBGSEL = [STAMPS.index(w_) for w_ in want if w_ in STAMPS] + [63]
if OPT['stamps']:
    a('s_waitcnt vmcnt(0) lgkmcnt(0)')
    a('%s %s' % ('s_memtime' if OPT['cyc'] else 's_memrealtime', sr(S_M2, 2)))
    a('s_waitcnt lgkmcnt(0)')
    a('v_writelane_b32 %s, %s, 63' % (vr(V_STAMP), sr(S_M2)))
    a('v_writelane_b32 %s, %s, 62' % (vr(V_STAMP), sr(S_FAST)))
    a('s_lshl_b32 %s, %s, 10' % (sr(S_T0), sr(S_L)))
    a('s_add_u32 %s, %s, %d' % (sr(S_T0), sr(S_T0), WS_DBG))
    a('v_lshlrev_b32 %s, 2, v0' % vr(V_DUMMY))
    a('buffer_store_dword %s, %s, %s, %s offen' % (vr(V_STAMP), vr(V_DUMMY), sr(R_WS, 4), sr(S_T0)))
if OPT['dbgout'] >= 0:
    a('s_load_dwordx2 s[8:9], s[0:1], 128')
    a('s_lshl2_add_u32 %s, %s, %s' % (sr(S_T0), sr(S_L), sr(S_WAVE)))
    a('s_cmp_lg_u32 %s, %d' % (sr(S_T0), OPT['dbgout'] * 4))
    a('s_cbranch_scc1 L_end')
    a('s_waitcnt lgkmcnt(0)')
    a('s_mov_b32 s10, 256')
    a('s_mov_b32 s11, 0x20000')
    a('v_readlane_b32 s12, %s, 0' % vr(V_STAMP))
    a('s_nop 3')
    a('v_subrev_u32 %s, s12, %s' % (vr(V_STAMP), vr(V_STAMP)))
    sel = DBGSEL
    a('v_mov_b32 v20, 0')
    for i_, k_ in enumerate(sel):
        a('v_readlane_b32 s12, %s, %d' % (vr(V_STAMP), k_))
        a('s_nop 3')
        a('v_writelane_b32 v20, s12, %d' % i_)
    a('v_lshlrev_b32 v21, 2, %s' % vr(V_LANE))
    a('buffer_store_dword v20, v21, s[8:11], 0 offen')
a.label('L_end')
a('s_endpgm')

hdr = open(os.path.join(os.path.dirname(os.path.abspath(__file__)), '..', 'cdna_kernels', NAME + '.s.ref')).read().split('\n')
head = []
for ln in hdr:
    if ln.startswith('; @launch'):
        break
    head.append(ln)
lines = head + ['; @launch grid=(256,1,1) block=(256,1,1) lds=%d' % LDS_SIZE,
                '.amdgcn_target "amdgcn-amd-amdhsa--gfx950"', '.text', '.globl ' + KN, '.p2align 8',
                '.type %s,@function' % KN, KN + ':']
lines += finalize(top)
lines += ['.section .rodata,"a"', '.p2align 6', '.amdhsa_kernel ' + KN,
          '  .amdhsa_next_free_vgpr 512', '  .amdhsa_next_free_sgpr 102', '  .amdhsa_accum_offset 256',
          '  .amdhsa_group_segment_fixed_size 0', '  .amdhsa_kernarg_size 144', '  .amdhsa_user_sgpr_count 2',
          '  .amdhsa_user_sgpr_kernarg_segment_ptr 1', '  .amdhsa_system_sgpr_workgroup_id_x 1', '.end_amdhsa_kernel']
open(sys.argv[1], 'w').write('\n'.join(lines) + '\n')
if OPT['stamps']:
    open(sys.argv[1] + '.stamps', 'w').write('\n'.join(STAMPS) + '\n')
print('vgpr high water', V.hw, 'lines', len(lines))
```

```python
import sys, os
sys.path.insert(0, os.path.dirname(os.path.abspath(__file__)))
from asmlib import *

NAME = 'interleave_layers__ssm_conv_s5__ssm_conv_h3__prompt'
KN = NAME + '_kernel'

OPT = dict(holdto=0, dbgout=-1, stamps=0, slow=0, hbuf2=0, crot=0, pf=3, slp=8, slp2=6, ncp0=4, ncp=16, ncp2=21, per=4, x_nod1=0, x_s0late=0, x_nomfma=0, x_noload=0, fine=0, cyc=0)
for a_ in sys.argv[2:]:
    k_, v_ = a_.split('=')
    OPT[k_] = int(v_)

MT = 6
NRB = 22
NMAIN = 198
NAUX = 58
WS_KVF = 0x1000
WS_CPF = 0xC000
WS_HF = 0x4000
WS_WF = 0x4000 + 2 * 22 * 256
WS_GF = 0xA000
WS_RBG = 0xC000
WS_E = 0x10000
WS_ST = 0xA0000
ST_SZ = 22 * 24576
WS_KVT = 0x1600000
KVT_STR = 5632
WS_CP = 0x540000
WS_H = 0x6C0000
H_SZ = 22 * 221184 * OPT['hbuf2']
WS_W = 0x1040000
WS_G = 0x12C0000
G_STR = 11264
WS_DBG = 0x2000000
WS_SIZE = 0x10000000
OOB = 0x7FFF0000

BLK = 12288
L_IMG = 0
L_RING = 9 * BLK
L_MISC = L_RING + 49152
LDS_SIZE = 163840
L_TAB = L_MISC
L_FX = L_MISC + 768
L_HALO = L_MISC + 3072
L_KRAW = 0
L_VRAW = BLK
L_KVO = 2 * BLK
L_KC = L_RING
KC_CH = 16656
L_UC = L_IMG + 16
UC_CH = 9280
L_CO = 20480
CO_W = 10944
PART_ROW = 272
PART_W = 16 * PART_ROW
SPIN = 20000

P_X, P_LRE, P_LIM, P_BRE, P_BIM, P_CRE, P_CIM, P_LDT = [8 + 2 * i for i in range(8)]
P_DSK, P_Q, P_K, P_V, P_SHK, P_SSK, P_SSD, P_OUT = [24 + 2 * i for i in range(8)]
P_DBG, P_WS = 40, 42
R_WS, R_X, R_BRE, R_BIM, R_K, R_V, R_OUT, R_SK = [44 + 4 * i for i in range(8)]
S_RB, S_CG, S_FAST, S_WAVE, S_TAG, S_L, S_PAIR, S_SPIN = range(76, 84)
S_KP = 84
S_T0, S_T1, S_T2, S_T3 = 93, 94, 95, 96
S_ROLE = 97
S_M1, S_M2 = 98, 100
S_A, S_B, S_C = 3, 4, 5
S_PC = 6
S_TT = 8
S_TU = 17
S_MSEL = 26
S_MACT = 40
S_W1K = 97
S_RINGW = 98
S_PT = 99
S_XCC = 20
S_CPB = 21
S_HB = 22

V = Alloc('v', 1, 256)
top = Stream()
tail = Stream()
lblc = [0]
STAMPS = []


def newlabel(p):
    lblc[0] += 1
    return 'L_%s_%d' % (p, lblc[0])


def put(*items):
    for it in items:
        if isinstance(it, tuple):
            V.put(*it)
        else:
            V.put(it)


def srd(a, r, p, size):
    a('s_mov_b64 %s, %s' % (sr(r, 2), sr(p, 2)))
    a('s_mov_b32 %s, 0x%x' % (sr(r + 2), size))
    a('s_mov_b32 %s, 0x20000' % sr(r + 3))


def cmul(a, d, x, y):
    a('v_pk_mul_f32 %s, %s, %s op_sel:[0,0] op_sel_hi:[1,0]' % (vr(d, 2), vr(x, 2), vr(y, 2)))
    a('v_pk_fma_f32 %s, %s, %s, %s op_sel:[1,1,0] op_sel_hi:[0,1,1] neg_lo:[1,0,0]' % (vr(d, 2), vr(x, 2), vr(y, 2), vr(d, 2)))


def cfma(a, d, x, y, c):
    a('v_pk_fma_f32 %s, %s, %s, %s op_sel:[0,0,0] op_sel_hi:[1,0,1]' % (vr(d, 2), vr(x, 2), vr(y, 2), vr(c, 2)))
    a('v_pk_fma_f32 %s, %s, %s, %s op_sel:[1,1,0] op_sel_hi:[0,1,1] neg_lo:[1,0,0]' % (vr(d, 2), vr(x, 2), vr(y, 2), vr(d, 2)))


def stamp(a, name):
    if not OPT['stamps']:
        return
    i = len(STAMPS)
    a('%s %s' % ('s_memtime' if OPT['cyc'] else 's_memrealtime', sr(S_M2, 2)), 's_waitcnt lgkmcnt(0)', 'v_writelane_b32 %s, %s, %d' % (vr(V_STAMP), sr(S_M2), i))
    STAMPS.append(name)


def astamp(a, i):
    if OPT['stamps'] or OPT.get('_sv'):
        a('s_memtime %s' % sr(S_M2, 2), 's_waitcnt lgkmcnt(0)', 'v_writelane_b32 %s, %s, %d' % (vr(V_STAMP), sr(S_M2), i))


def poll(a, loads, checks, pre_issued=False, sleep=0):
    p = Stream()
    L = newlabel('poll')
    Lc = newlabel('pollc')
    simple = len(checks) == 1 and checks[0][1] is None
    acc = None if simple else V.get(2, 1)
    p('s_mov_b32 %s, %d' % (sr(S_SPIN), SPIN))
    if pre_issued:
        regs = []
        for c in checks:
            regs += [vr(c[0])] + ([vr(c[1])] if c[1] is not None else [])
        p.touch(*regs)
        p.label(Lc)
    else:
        p.label(L)
        if sleep:
            p('s_sleep %d' % sleep)
        for t in loads:
            p(t)
        p('s_waitcnt vmcnt(0)')
    if len(checks) == 1 and checks[0][1] is None:
        p('v_cmp_ne_u32 vcc, %s, %s' % (vr(checks[0][0]), vr(checks[0][2])))
    else:
        first = True
        for (x, y, e) in checks:
            d = acc if first else acc + 1
            if y is None:
                p('v_xor_b32 %s, %s, %s' % (vr(d), vr(x), vr(e)))
            else:
                p('v_bitop3_b32 %s, %s, %s, %s bitop3:0x7e' % (vr(d), vr(x), vr(y), vr(e)))
            if not first:
                p('v_or_b32 %s, %s, %s' % (vr(acc), vr(acc), vr(acc + 1)))
            first = False
        p('v_cmp_ne_u32 vcc, 0, %s' % vr(acc))
    p('s_sub_u32 %s, %s, 1' % (sr(S_SPIN), sr(S_SPIN)))
    p('s_cselect_b64 vcc, 0, vcc')
    p('s_cmp_lg_u64 vcc, 0')
    p('s_cbranch_scc1 %s' % L)
    if pre_issued:
        tail.label(L)
        if sleep:
            tail('s_sleep %d' % sleep)
        for t in loads:
            tail(t)
        tail('s_waitcnt vmcnt(0)')
        tail('s_branch %s' % Lc)
    a.join(p)
    if acc is not None:
        V.put(acc, 2)


def dual(a, texts, touch=()):
    Ls, Lb = newlabel('slow'), newlabel('back')
    p = Stream()
    if touch:
        p.touch(*touch)
    p('s_cmp_eq_u32 %s, 0' % sr(S_FAST), 's_cbranch_scc1 %s' % Ls)
    tk = p.mem(*[t.replace(' {P}', '') for t in texts])
    p.label(Lb)
    a.join(p)
    tail.label(Ls)
    tail('s_nop 1')
    tail(*[t.replace('{P}', 'sc1') for t in texts])
    tail('s_branch %s' % Lb)
    return tk


def flag_texts(soff, pol):
    return ['s_mov_b64 exec, 1',
            'buffer_store_dword %s, %s, %s, %s offen %s' % (vr(V_TAG), vr(V_ZERO), sr(R_WS, 4), soff, pol),
            's_mov_b64 exec, -1']


def lam_loads(a, vp2):
    t = V.get(4)
    a('global_load_ushort %s, %s, %s' % (vr(t), vr(vp2), sr(P_LRE, 2)))
    a('global_load_ushort %s, %s, %s' % (vr(t + 1), vr(vp2), sr(P_LIM, 2)))
    a('global_load_ushort %s, %s, %s' % (vr(t + 2), vr(vp2), sr(P_LDT, 2)))
    return t


def lam_compute(a, t, want_coef, lam=None):
    if lam is None:
        lam = V.get(2)
    u = V.get(4)
    for i in range(3):
        a('v_lshlrev_b32 %s, 16, %s' % (vr(t + i), vr(t + i)))
    a('v_mul_f32 %s, 0x3fb8aa3b, %s' % (vr(t + 2), vr(t + 2)))
    a('v_exp_f32 %s, %s' % (vr(t + 2), vr(t + 2)))
    a('v_cvt_pk_bf16_f32 %s, %s, %s' % (vr(t + 2), vr(t + 2), vr(t + 2)))
    a('v_lshlrev_b32 %s, 16, %s' % (vr(t + 2), vr(t + 2)))
    a('v_mul_f32 %s, %s, %s' % (vr(u), vr(t + 2), vr(t)))
    a('v_mul_f32 %s, %s, %s' % (vr(u + 1), vr(t + 2), vr(t + 1)))
    a('v_mul_f32 %s, 0x3fb8aa3b, %s' % (vr(u), vr(u)))
    a('v_exp_f32 %s, %s' % (vr(u), vr(u)))
    a('v_mul_f32 %s, 0.15915494, %s' % (vr(u + 1), vr(u + 1)))
    a('v_rndne_f32 %s, %s' % (vr(u + 2), vr(u + 1)))
    a('v_sub_f32 %s, %s, %s' % (vr(u + 1), vr(u + 1), vr(u + 2)))
    a('v_cos_f32 %s, %s' % (vr(u + 2), vr(u + 1)))
    a('v_sin_f32 %s, %s' % (vr(u + 3), vr(u + 1)))
    a('v_mul_f32 %s, %s, %s' % (vr(lam), vr(u), vr(u + 2)))
    a('v_mul_f32 %s, %s, %s' % (vr(lam + 1), vr(u), vr(u + 3)))
    coef = None
    if want_coef:
        coef = V.get(2)
        a('v_add_f32 %s, -1.0, %s' % (vr(u), vr(lam)))
        a('v_mov_b32 %s, %s' % (vr(u + 1), vr(lam + 1)))
        a('v_mul_f32 %s, %s, %s' % (vr(u + 2), vr(t), vr(t)))
        a('v_fmac_f32 %s, %s, %s' % (vr(u + 2), vr(t + 1), vr(t + 1)))
        a('v_rcp_f32 %s, %s' % (vr(u + 2), vr(u + 2)))
        a('v_sub_f32 %s, 0, %s' % (vr(t + 1), vr(t + 1)))
        cmul(a, coef, u, t)
        a('v_mul_f32 %s, %s, %s' % (vr(coef), vr(coef), vr(u + 2)))
        a('v_mul_f32 %s, %s, %s' % (vr(coef + 1), vr(coef + 1), vr(u + 2)))
    put((u, 4), (t, 4))
    return lam, coef


def tag_ready(a):
    a('s_mul_i32 %s, %s, 0x9E3779B1' % (sr(S_TAG), sr(S_TAG)),
      's_add_u32 %s, %s, 0x7F4A7C15' % (sr(S_TAG), sr(S_TAG)),
      'v_mov_b32 %s, %s' % (vr(V_TAG), sr(S_TAG)))


def rbf(s, regs):
    for r in regs:
        s('v_cvt_pk_bf16_f32 %s, %s, %s' % (vr(r), vr(r), vr(r)))
    for r in regs:
        s('v_lshlrev_b32 %s, 16, %s' % (vr(r), vr(r)))


def rs12(s, S, Q):
    dp = 'v_add_f32_dpp %s, %s, %s %s row_mask:0xf bank_mask:0x%x'
    for X in (S, Q):
        for j in range(3):
            s(dp % (vr(X[j]), vr(X[j]), vr(X[j]), 'row_ror:8', 0x3))
    for X in (S, Q):
        for j in range(3):
            s(dp % (vr(X[j]), vr(X[j + 3]), vr(X[j + 3]), 'row_ror:8', 0xc))
    for X in (S, Q):
        s(dp % (vr(X[0]), vr(X[0]), vr(X[0]), 'row_half_mirror', 0x5))
        s(dp % (vr(X[2]), vr(X[2]), vr(X[2]), 'row_half_mirror', 0xf))
    for X in (S, Q):
        s(dp % (vr(X[0]), vr(X[1]), vr(X[1]), 'row_half_mirror', 0xa))
    for qp in ('quad_perm:[1,0,3,2]', 'quad_perm:[2,3,0,1]'):
        for r in (S[2], Q[2], S[0], Q[0]):
            s(dp % (vr(r), vr(r), vr(r), qp, 0xf))


def tile_src(i):
    hf, j = divmod(i, 3)
    if j == 2:
        return 1, 8 * hf
    return 0, 8 * hf + 4 * j


a = top
V_LANE, V_TAG, V_STAMP, V_L16, V_N, V_Q = [V.get() for _ in range(6)]
V_OOB = V.get()
V_JUNK = V.get()
V_ZERO = V.get(2)
V_DUMMY = V.get(4)
NCOMMON = V.hw
BASE = V.get(24)
V_DSK = V.get(4)
V_FA = V.get(4)
LAM, L12, L24, L384, LQ96, LQ24, RB, OFF = [V.get(2) for _ in range(8)]
(V_TAU, V_OROW, V_STW, V_STR, V_EXP9, V_TABW, V_EW, V_ER, V_HW, V_HR, V_TABR, V_WA) = [V.get() for _ in range(12)]
WCV = V.home(32)
GP = V.home(12)
V_PW = V.home(4)
V_PR, V_PW2, V_PR2 = V_PW + 1, V_PW + 2, V_PW + 3
HOMES = ((WCV, 32), (GP, 12), (V_PW, 4))
V_DX = V.get(3, 1)

a('s_cmp_ge_u32 s2, 256')
a('s_cbranch_scc1 L_end')
a('s_load_dwordx16 s[8:23], s[0:1], 0')
a('s_load_dwordx16 s[24:39], s[0:1], 64')
a('s_load_dwordx4 s[40:43], s[0:1], 128')
a('s_getpc_b64 %s' % sr(S_PC, 2))
a.label('L_pc')
a('s_lshr_b32 %s, s2, 3' % sr(S_T0))
a('s_lshl_b32 %s, %s, 12' % (sr(S_T1), sr(S_T0)))
a('v_lshl_add_u32 %s, v0, 4, %s' % (vr(V_TAG), sr(S_T1)))
a('s_mov_b32 %s, L_end-L_pc-16' % sr(S_T1))
a('v_min_u32 %s, %s, %s' % (vr(V_TAG), sr(S_T1), vr(V_TAG)))
a('global_load_dwordx4 %s, %s, %s ;junk' % (vr(V_DUMMY, 4), vr(V_TAG), sr(S_PC, 2)))
a('v_and_b32 %s, 63, v0' % vr(V_LANE))
a('v_lshrrev_b32 %s, 6, v0' % vr(V_Q))
a('v_lshlrev_b32 %s, 4, %s' % (vr(V_L16), vr(V_LANE)))
a('v_readfirstlane_b32 %s, %s' % (sr(S_WAVE), vr(V_Q)))
if OPT['stamps']:
    a('v_mov_b32 %s, 0' % vr(V_STAMP))
stamp(a, 'start')
a('v_and_b32 %s, 15, %s' % (vr(V_N), vr(V_LANE)))
a('v_lshrrev_b32 %s, 4, %s' % (vr(V_Q), vr(V_LANE)))
a('v_mov_b32 %s, 0' % vr(V_ZERO))
a('v_mov_b32 %s, 0' % vr(V_ZERO + 1))
a('v_mov_b32 %s, 0x%x' % (vr(V_OOB), OOB))
a('s_and_b32 %s, s2, 7' % sr(S_T1))
a('s_mul_i32 %s, %s, 27' % (sr(S_T2), sr(S_T1)))
a('s_add_u32 %s, %s, %s' % (sr(S_T2), sr(S_T2), sr(S_T0)))
a('s_mul_i32 %s, %s, 5' % (sr(S_T3), sr(S_T1)))
a('s_add_u32 %s, %s, %s' % (sr(S_T3), sr(S_T3), sr(S_T0)))
a('s_add_u32 %s, %s, %d' % (sr(S_T3), sr(S_T3), 216 - 27))
a('s_cmp_lt_u32 %s, 27' % sr(S_T0))
a('s_cselect_b32 %s, %s, %s' % (sr(S_L), sr(S_T2), sr(S_T3)))
a('s_mul_i32 %s, %s, 57' % (sr(S_RB), sr(S_L)))
a('s_lshr_b32 %s, %s, 9' % (sr(S_RB), sr(S_RB)))
a('s_mul_i32 %s, %s, 9' % (sr(S_T0), sr(S_RB)))
a('s_sub_u32 %s, %s, %s' % (sr(S_CG), sr(S_L), sr(S_T0)))
a('s_mov_b32 %s, %s' % (sr(S_PAIR), sr(S_L)))
a('s_and_b32 %s, %s, 1' % (sr(S_A), sr(S_WAVE)))
a('s_lshr_b32 %s, %s, 1' % (sr(S_B), sr(S_WAVE)))
a('s_cmp_ge_u32 %s, %d' % (sr(S_L), NMAIN))
a('s_cbranch_scc1 L_aux')

t, t2, t3 = V.get(), V.get(), V.get()
LAMT = V.get(4)
lad, dad = V.get(), V.get()
V_DB = V.get(2)
c0 = V.get()
a('v_lshrrev_b32 %s, 3, %s' % (vr(t), vr(V_LANE)))
a('v_and_b32 %s, 7, %s' % (vr(t3), vr(V_LANE)))
a('s_lshl2_add_u32 %s, %s, %s' % (sr(S_PT), sr(S_CG), sr(S_WAVE)))
a('s_lshl_b32 %s, %s, 10' % (sr(S_W1K), sr(S_WAVE)))
a('s_mul_i32 %s, %s, 12288' % (sr(S_RINGW), sr(S_WAVE)))
a('s_add_u32 %s, %s, %d' % (sr(S_RINGW), sr(S_RINGW), L_RING))
a('s_lshl_b32 %s, %s, 7' % (sr(S_KP), sr(S_CG)))
a('v_xor_b32 %s, %s, %s' % (vr(c0), vr(t3), vr(V_Q)))
a('v_lshlrev_b32 %s, 4, %s' % (vr(c0), vr(c0)))
a('v_lshrrev_b32 %s, 5, %s' % (vr(t2), vr(V_LANE)))
a('v_mul_u32_u24 %s, 24, %s' % (vr(t2), vr(t2)))
a('v_and_b32 %s, 1, %s' % (vr(t3), vr(t)))
a('v_mad_u32_u24 %s, %s, 12, %s' % (vr(t2), vr(t3), vr(t2)))
a('v_and_b32 %s, 1, %s' % (vr(t3), vr(V_Q)))
a('s_mul_i32 %s, %s, 48' % (sr(S_T0), sr(S_A)))
a('s_mul_i32 %s, %s, 96' % (sr(S_T1), sr(S_RB)))
a('s_add_u32 %s, %s, %s' % (sr(S_T0), sr(S_T0), sr(S_T1)))
a('s_lshl1_add_u32 %s, %s, %s' % (sr(S_T0), sr(S_B), sr(S_T0)))
a('v_add3_u32 %s, %s, %s, %s' % (vr(t2), vr(t2), vr(t3), sr(S_T0)))
a('v_mul_u32_u24 %s, 1152, %s' % (vr(t2), vr(t2)))
a('s_lshl_b32 %s, %s, 6' % (sr(S_T0), sr(S_A)))
a('v_xor_b32 %s, %s, %s' % (vr(V_DX), sr(S_T0), vr(c0)))
a('v_add_u32 %s, %s, %s' % (vr(V_DX), vr(V_DX), vr(t2)))
a('v_add_u32 %s, 4608, %s' % (vr(V_DX + 1), vr(V_DX)))
a('v_add_u32 %s, 9216, %s' % (vr(V_DX + 2), vr(V_DX)))
a('s_lshl_b32 %s, %s, 4' % (sr(S_T0), sr(S_PT)))
a('v_add_u32 %s, %s, %s' % (vr(t2), sr(S_T0), vr(t)))
a('v_mul_u32_u24 %s, 1152, %s' % (vr(t2), vr(t2)))
a('v_add_u32 %s, %s, %s' % (vr(V_DB), vr(t2), vr(c0)))
a('v_xor_b32 %s, 64, %s' % (vr(V_DB + 1), vr(c0)))
a('v_add_u32 %s, %s, %s' % (vr(V_DB + 1), vr(V_DB + 1), vr(t2)))
a('v_add_u32 %s, %d, %s' % (vr(V_DB + 1), 8 * 1152, vr(V_DB + 1)))
put(c0)
a('s_mov_b32 %s, 0x%x' % (sr(R_X + 2), 2048 * 1152))
a('s_mov_b32 %s, 0x20000' % sr(R_X + 3))
for r_ in (R_BRE, R_BIM):
    a('s_mov_b32 %s, 0x%x' % (sr(r_ + 2), 576 * 1152))
    a('s_mov_b32 %s, 0x20000' % sr(r_ + 3))
a('s_waitcnt lgkmcnt(0)')
a('s_mov_b64 %s, %s' % (sr(R_X, 2), sr(P_X, 2)))
a('s_mov_b64 %s, %s' % (sr(R_BRE, 2), sr(P_BRE, 2)))
a('s_mov_b64 %s, %s' % (sr(R_BIM, 2), sr(P_BIM, 2)))


def x_dma(s, blk, layer):
    tk = None
    for u in range(3):
        s('s_add_u32 m0, %s, %d' % (sr(S_W1K), L_IMG + blk * BLK + u * 4096))
        tk = s.mem('buffer_load_dwordx4 %s, %s, %s offen%s lds' % (vr(V_DX + u), sr(R_X if layer == 0 else R_WS, 4),
                                                                   sr((S_KP if layer == 0 else S_TT) + blk), ' nt' if layer == 0 else ' sc1'))
    return tk


WB = lambda kp, h, mat: ((kp * 2 + h) * 2 + mat) * 4


def b_dma(s, kp):
    tk = None
    for b in range(4):
        s('s_add_u32 m0, %s, %d' % (sr(S_RINGW), (kp % 3) * 4096 + b * 1024))
        tk = s.mem('buffer_load_dwordx4 %s, %s, %s offen lds' % (vr(V_DB + (b & 1)), sr(R_BRE if b < 2 else R_BIM, 4), sr(S_KP + kp)))
    return tk


xtk, btk = {}, {}
i0, kt = Stream(), Stream()
xtk[0] = x_dma(i0, 0, 0)
btk[0] = b_dma(i0, 0)
kt('s_load_dword %s, %s, 0' % (sr(S_TAG), sr(P_WS, 2)))
kt('s_mul_i32 %s, %s, 43' % (sr(S_T0), sr(S_RB)))
kt('s_lshr_b32 %s, %s, 7' % (sr(S_T0), sr(S_T0)))
kt('s_mul_i32 %s, %s, 3' % (sr(S_T0), sr(S_T0)))
kt('s_sub_u32 %s, %s, %s' % (sr(S_T0), sr(S_RB), sr(S_T0)))
kt('s_lshl_b32 %s, 128, %s' % (sr(S_T0), sr(S_T0)))
for i in range(1, 9):
    kt('s_add_u32 %s, %s, %s' % (sr(S_KP + i), sr(S_KP + i - 1), sr(S_T0)),
       's_sub_u32 %s, %s, 1152' % (sr(S_T1), sr(S_KP + i)),
       's_cselect_b32 %s, %s, %s' % (sr(S_KP + i), sr(S_KP + i), sr(S_T1)))
a.weave(i0, kt)
a('s_lshl_b32 %s, %s, 5' % (sr(S_T1), sr(S_PT)))
a('v_lshl_add_u32 %s, %s, 1, %s' % (vr(lad), vr(V_N), sr(S_T1)))
btk[1] = b_dma(a, 1)
a('global_load_ushort %s, %s, %s' % (vr(LAMT), vr(lad), sr(P_LRE, 2)))
a('global_load_ushort %s, %s, %s' % (vr(LAMT + 1), vr(lad), sr(P_LIM, 2)))
a('global_load_ushort %s, %s, %s' % (vr(LAMT + 2), vr(lad), sr(P_LDT, 2)))
srd(a, R_WS, P_WS, WS_SIZE)
su = Stream()
V_FB = V.get(2)
su('v_lshrrev_b32 %s, 1, %s' % (vr(t), vr(V_N)))
su('v_xor_b32 %s, %s, %s' % (vr(t), vr(t), vr(V_Q)))
su('v_lshlrev_b32 %s, 4, %s' % (vr(t), vr(t)))
su('v_lshl_add_u32 %s, %s, 7, %s' % (vr(V_FA), vr(V_N), vr(t)))
su('v_xor_b32 %s, 64, %s' % (vr(V_FA + 1), vr(V_FA)))
su('v_add_u32 %s, %d, %s' % (vr(V_FA + 2), 4 * BLK, vr(V_FA)))
su('v_add_u32 %s, %d, %s' % (vr(V_FA + 3), 4 * BLK, vr(V_FA + 1)))
su('v_add_u32 %s, %s, %s' % (vr(V_FB), sr(S_RINGW), vr(V_FA)))
su('v_add_u32 %s, %s, %s' % (vr(V_FB + 1), sr(S_RINGW), vr(V_FA + 1)))
srd(su, R_OUT, P_OUT, 2048 * 2304)
su('s_mov_b32 %s, 0x02020202' % sr(S_MSEL), 's_mov_b32 %s, 0x02020202' % sr(S_MSEL + 1))
su('s_mov_b32 %s, 0x13131313' % sr(S_MACT), 's_mov_b32 %s, 0x13131313' % sr(S_MACT + 1))
su('s_getreg_b32 %s, hwreg(HW_REG_XCC_ID, 0, 4)' % sr(S_XCC))
su('v_and_b32 %s, 1, %s' % (vr(t), vr(V_Q)))
su('v_mul_u32_u24 %s, 12, %s' % (vr(V_TAU), vr(t)))
su('v_lshrrev_b32 %s, 1, %s' % (vr(t2), vr(V_Q)))
su('v_add_u32 %s, %s, %s' % (vr(V_TAU), vr(V_TAU), vr(t2)))
su('s_mul_i32 %s, %s, 96' % (sr(S_T0), sr(S_RB)),
   's_mul_i32 %s, %s, 24' % (sr(S_T1), sr(S_WAVE)),
   's_add_u32 %s, %s, %s' % (sr(S_T0), sr(S_T0), sr(S_T1)),
   'v_add_u32 %s, %s, %s' % (vr(t3), sr(S_T0), vr(V_TAU)))
su('v_mul_u32_u24 %s, 2304, %s' % (vr(V_OROW), vr(t3)))
su('s_lshl_b32 %s, %s, 8' % (sr(S_T0), sr(S_CG)),
   'v_lshl_add_u32 %s, %s, 4, %s' % (vr(t3), vr(V_N), sr(S_T0)))
su('v_add_u32 %s, %s, %s' % (vr(V_OROW), vr(V_OROW), vr(t3)))
TI = V.get()
su('v_lshrrev_b32 %s, 3, %s' % (vr(TI), vr(V_N)))
su('v_mul_u32_u24 %s, 3, %s' % (vr(TI), vr(TI)))
su('v_bfe_u32 %s, %s, 2, 1' % (vr(t3), vr(V_N)))
su('v_cndmask_b32 %s, %s, 2, %s' % (vr(t3), vr(t3), sr(S_MSEL, 2)))
su('v_add_u32 %s, %s, %s' % (vr(TI), vr(TI), vr(t3)))
su('v_lshl_add_u32 %s, %s, 1, %s' % (vr(t3), vr(TI), vr(t2)))
su('v_lshlrev_b32 %s, 4, %s' % (vr(t3), vr(t3)))
su('v_lshl_add_u32 %s, %s, 2, %s' % (vr(V_TABW), vr(t), vr(t3)))
su('s_mul_i32 %s, %s, 192' % (sr(S_T0), sr(S_WAVE)),
   's_add_u32 %s, %s, %d' % (sr(S_T0), sr(S_T0), L_TAB),
   'v_add_u32 %s, %s, %s' % (vr(V_TABW), sr(S_T0), vr(V_TABW)))
su('v_mul_u32_u24 %s, 192, %s' % (vr(V_TABR), vr(V_Q)))
su('v_add_u32 %s, %d, %s' % (vr(V_TABR), L_TAB, vr(V_TABR)))
su('s_mul_i32 %s, %s, 96' % (sr(S_T0), sr(S_RB)),
   's_lshl2_add_u32 %s, %s, %s' % (sr(S_T0), sr(S_WAVE), sr(S_T0)),
   'v_add_u32 %s, %s, %s' % (vr(t), sr(S_T0), vr(V_Q)))
su('v_lshlrev_b32 %s, 8, %s' % (vr(t), vr(t)))
su('v_lshl_add_u32 %s, %s, 4, %s' % (vr(V_STR), vr(V_N), vr(t)))
su('v_cmp_gt_u32 vcc, 9, %s' % vr(V_N),
   'v_cndmask_b32 %s, %s, %s, vcc' % (vr(V_STR), vr(V_OOB), vr(V_STR)))
su('v_lshl_add_u32 %s, %s, 12, %s' % (vr(V_STW), vr(TI), vr(t)))
su('s_lshl_b32 %s, %s, 4' % (sr(S_T0), sr(S_CG)),
   'v_add_u32 %s, %s, %s' % (vr(V_STW), sr(S_T0), vr(V_STW)))
su('v_cndmask_b32 %s, %s, %s, %s' % (vr(V_STW), vr(V_OOB), vr(V_STW), sr(S_MACT, 2)))
put(TI)
su('s_lshl_b32 %s, %s, 2' % (sr(S_T0), sr(S_WAVE)),
   'v_add_u32 %s, %s, %s' % (vr(V_WA), sr(S_T0), vr(V_Q)))
su('v_xor_b32 %s, %s, %s' % (vr(t), vr(V_WA), vr(V_N)))
su('v_lshrrev_b32 %s, 1, %s' % (vr(t), vr(t)))
su('v_lshlrev_b32 %s, 4, %s' % (vr(t), vr(t)))
su('v_lshl_add_u32 %s, %s, 7, %s' % (vr(V_WA), vr(V_WA), vr(t)))
su('v_and_b32 %s, 1, %s' % (vr(t), vr(V_N)))
su('v_lshl_add_u32 %s, %s, 3, %s' % (vr(V_WA), vr(t), vr(V_WA)))
su('s_lshl_b32 %s, %s, 8' % (sr(S_T0), sr(S_RB)),
   'v_lshl_add_u32 %s, %s, 4, %s' % (vr(V_EW), vr(V_N), sr(S_T0)))
su('v_lshlrev_b32 %s, 8, %s' % (vr(t), vr(V_Q)))
su('v_sub_u32 %s, %s, %s' % (vr(V_ER), vr(V_EW), vr(t)))
su('v_subrev_u32 %s, 256, %s' % (vr(V_ER), vr(V_ER)))
su('v_cmp_gt_u32 vcc, 16, %s' % vr(V_LANE),
   'v_cndmask_b32 %s, %s, %s, vcc' % (vr(V_EW), vr(V_OOB), vr(V_EW)))
su('v_lshl_add_u32 %s, %s, 2, %s' % (vr(t), vr(V_N), vr(t)))
su('s_mul_i32 %s, %s, 6144' % (sr(S_T0), sr(S_WAVE)), 's_add_u32 %s, %s, %d' % (sr(S_T0), sr(S_T0), 5 * BLK),
   'v_add_u32 %s, %s, %s' % (vr(V_HW), sr(S_T0), vr(t)))
su('v_lshlrev_b32 %s, 4, %s' % (vr(t), vr(V_Q)))
su('v_lshl_add_u32 %s, %s, 6, %s' % (vr(t), vr(V_N), vr(t)))
su('s_mul_i32 %s, %s, 6144' % (sr(S_T0), sr(S_WAVE)), 's_add_u32 %s, %s, %d' % (sr(S_T0), sr(S_T0), 5 * BLK),
   'v_add_u32 %s, %s, %s' % (vr(V_HR), sr(S_T0), vr(t)))
a.extend(su)
put(t, t2, t3)
a('s_lshl_b32 %s, %s, 7' % (sr(S_T1), sr(S_CG)))
a('v_lshl_add_u32 %s, %s, 3, %s' % (vr(dad), vr(V_N), sr(S_T1)))
stamp(a, 'setup')


def b_read(s, kp):
    s.wait(btk[kp])
    tk = None
    for h in range(2):
        for mat in range(2):
            tk = s.mem('ds_read_b128 %s, %s offset:%d' % (ar(WB(kp, h, mat), 4), vr(V_FB + h), (kp % 3) * 4096 + mat * 2048))
    return tk


class KVm:
    pass


def kv_dma(s, kv):
    kv.SHK = V.get(4, top=True)
    t, t2, kh = V.get(), V.get(), V.get()
    s('s_cmp_lt_u32 %s, 6' % sr(S_CG),
      's_cselect_b32 %s, %d, 0' % (sr(R_K + 2), 2048 * 1152),
      's_mov_b32 %s, %s' % (sr(R_V + 2), sr(R_K + 2)),
      's_mov_b32 %s, %s' % (sr(R_K), sr(P_K)), 's_and_b32 %s, %s, 0xffff' % (sr(R_K + 1), sr(P_K + 1)),
      's_mov_b32 %s, 0x20000' % sr(R_K + 3))
    s('s_mov_b32 %s, %s' % (sr(R_V), sr(P_V)), 's_and_b32 %s, %s, 0xffff' % (sr(R_V + 1), sr(P_V + 1)),
      's_mov_b32 %s, 0x20000' % sr(R_V + 3))
    s('v_lshrrev_b32 %s, 3, %s' % (vr(t), vr(V_LANE)))
    s('v_mul_u32_u24 %s, 1152, %s' % (vr(t2), vr(t)))
    s('v_and_b32 %s, 7, %s' % (vr(t), vr(V_LANE)))
    s('v_lshl_add_u32 %s, %s, 4, %s' % (vr(t2), vr(t), vr(t2)))
    s('s_lshl_b32 %s, %s, 7' % (sr(S_T1), sr(S_PT)),
      'v_lshl_add_u32 %s, %s, 4, %s' % (vr(t), vr(t), sr(S_T1)),
      'global_load_dwordx4 %s, %s, %s' % (vr(kv.SHK, 4), vr(t), sr(P_SHK, 2)))
    s('s_mul_i32 %s, %s, %d' % (sr(S_T0), sr(S_RB), 96 * 1152),
      's_lshl_b32 %s, %s, 7' % (sr(S_T1), sr(S_CG)),
      's_add_u32 %s, %s, %s' % (sr(S_T0), sr(S_T0), sr(S_T1)),
      's_sub_u32 %s, %s, %d' % (sr(S_T1), sr(S_T0), 8 * 1152),
      'v_add_u32 %s, %s, %s' % (vr(kh), sr(S_T1), vr(t2)),
      's_mul_i32 %s, %s, %d' % (sr(S_T1), sr(S_WAVE), 8 * 1152),
      's_add_u32 %s, %s, %s' % (sr(S_T0), sr(S_T0), sr(S_T1)),
      'v_add_u32 %s, %s, %s' % (vr(t2), sr(S_T0), vr(t2)))
    s('s_mov_b32 m0, %d' % L_HALO)
    s('buffer_load_dwordx4 %s, %s, 0 offen nt lds' % (vr(kh), sr(R_K, 4)))
    for u in range(3):
        for base, rr in ((L_KRAW, R_K), (L_VRAW, R_V)):
            s('s_add_u32 m0, %s, %d' % (sr(S_W1K), base + u * 4096))
            kv.tok = s.mem('s_mov_b32 %s, %d' % (sr(S_T2), u * 32 * 1152),
                           'buffer_load_dwordx4 %s, %s, %s offen nt lds' % (vr(t2), sr(rr, 4), sr(S_T2)))
    kv.rel = [t, t2, kh]


def kv_core(kc, ntp, krow, vrow, SHK, emit_unit, touch=None):
    W, KU, P = V.get(8), V.get(16), V.get(16)
    S4 = V.get(4, 1)
    OU = V.get(8)
    ONE2 = V.get()
    kc('v_mov_b32 %s, 0x3f803f80' % vr(ONE2))
    kc('v_mov_b32 %s, %s' % (vr(OU + 3), vr(V_TAG)))
    kc('v_mov_b32 %s, %s' % (vr(OU + 7), vr(V_TAG)))
    for j in range(4):
        for ch in range(2):
            src = SHK + 2 * ch + (j >> 1)
            kc(('v_and_b32 %s, 0xffff0000, %s' if j & 1 else 'v_lshlrev_b32 %s, 16, %s') % (vr(W + 2 * j + ch), vr(src)))
    ku = lambda r: KU + 2 * ((r + 3) % 8)

    def unpack_k(r):
        kc('v_lshlrev_b32 %s, 16, %s' % (vr(ku(r)), vr(krow(r))))
        kc('v_and_b32 %s, 0xffff0000, %s' % (vr(ku(r) + 1), vr(krow(r))))

    for r in (-3, -2, -1):
        unpack_k(r)
    for tp in range(ntp):
        if touch is not None:
            touch(tp)
        for tt in range(2):
            unpack_k(2 * tp + tt)
        for tt in range(2):
            for j in range(4):
                kc('v_pk_mul_f32 %s, %s, %s' % (vr(P + tt * 8 + 2 * j, 2), vr(ku(2 * tp + tt - j), 2), vr(W + 2 * j, 2)))
        idx = [(tt, ch) for tt in range(2) for ch in range(2)]
        for step in range(3):
            for u, (tt, ch) in enumerate(idx):
                first = vr(P + tt * 8 + 6 + ch) if step == 0 else vr(S4 + u)
                kc('v_cvt_pk_bf16_f32 %s, %s, %s' % (vr(S4 + u), first, vr(P + tt * 8 + 2 * (2 - step) + ch)))
            for u in range(4):
                kc('v_dot2_f32_bf16 %s, %s, %s, 0' % (vr(S4 + u), vr(S4 + u), vr(ONE2)))
        for u, (tt, ch) in enumerate(idx):
            kc('v_cvt_pk_bf16_f32 %s, %s, %s' % (vr(S4 + u), vr(S4 + u) if ch == 0 else '0', '0' if ch == 0 else vr(S4 + u)))
        for u, (tt, ch) in enumerate(idx):
            kc('v_dot2_f32_bf16 %s, %s, %s, 0' % (vr(S4 + u), vr(S4 + u), vr(vrow(2 * tp + tt))))
        pos = ntp - 1 - tp
        for ch in range(2):
            kc('v_cvt_pk_bf16_f32 %s, %s, %s' % (vr(OU + 4 * ch + pos % 3), vr(S4 + 2 + ch), vr(S4 + ch)))
        if pos % 3 == 0:
            for ch in range(2):
                emit_unit(ch, pos // 3, OU + 4 * ch)
    put((W, 8), (KU, 16), (P, 16), (S4, 4), (OU, 8), ONE2)


def kv_main(s, kv, ks):
    ka, kb, kh, t, t2 = [V.get() for _ in range(5)]
    s('v_lshrrev_b32 %s, 3, %s' % (vr(t), vr(V_LANE)))
    s('v_and_b32 %s, 7, %s' % (vr(t2), vr(V_LANE)))
    s('s_lshl_b32 %s, %s, 5' % (sr(S_T0), sr(S_WAVE)),
      'v_lshl_add_u32 %s, %s, 2, %s' % (vr(kh), vr(t2), sr(S_T0)))
    s('v_mul_u32_u24 %s, 1536, %s' % (vr(ka), vr(t)))
    s('v_add_u32 %s, %s, %s' % (vr(ka), vr(ka), vr(kh)))
    s('v_add_u32 %s, 128, %s' % (vr(kb), vr(ka)))
    s('v_add_u32 %s, %d, %s' % (vr(kh), L_HALO + 5 * 128, vr(kh)))
    s('v_subrev_u32 %s, 384, %s' % (vr(t2), vr(ka)))
    s('v_cmp_eq_u32 vcc, 0, %s' % vr(t), 'v_cndmask_b32 %s, %s, %s, vcc' % (vr(kh), vr(t2), vr(kh)))
    KR, VR = V.get(16, 2), V.get(12, 2)
    ridx = lambda r: (r >> 2) * 4 + (r & 1) * 2 + ((r >> 1) & 1)
    krow = lambda r: KR + 3 + r if r < 0 else KR + 4 + ridx(r)
    vrow = lambda r: VR + ridx(r)
    s.wait(kv.tok)
    s('s_barrier')
    s('ds_read2_b32 %s, %s offset0:0 offset1:32' % (vr(KR, 2), vr(kh)))
    s('ds_read_b32 %s, %s offset:256' % (vr(KR + 2), vr(kh)))
    for g in range(3):
        for par in range(2):
            s('ds_read2st64_b32 %s, %s offset0:%d offset1:%d' % (vr(KR + 4 + g * 4 + par * 2, 2), vr(kb if par else ka), 2 * g, 2 * g + 1))
        for par in range(2):
            s('ds_read2st64_b32 %s, %s offset0:%d offset1:%d' % (vr(VR + g * 4 + par * 2, 2), vr(kb if par else ka), 48 + 2 * g, 48 + 2 * g + 1))
    s('v_and_b32 %s, 7, %s' % (vr(t2), vr(V_LANE)))
    s('v_sub_u32 %s, 7, %s' % (vr(t), vr(t)))
    s('v_lshlrev_b32 %s, 5, %s' % (vr(t), vr(t)))
    s('v_mul_u32_u24 %s, 528, %s' % (vr(t2), vr(t2)))
    s('s_mul_i32 %s, %s, 4224' % (sr(S_T0), sr(S_WAVE)),
      'v_add3_u32 %s, %s, %s, %s' % (vr(t), vr(t), vr(t2), sr(S_T0)),
      'v_lshrrev_b32 %s, 5, %s' % (vr(t2), vr(V_LANE)),
      'v_lshlrev_b32 %s, 4, %s' % (vr(t2), vr(t2)),
      'v_add3_u32 %s, %s, %s, %s' % (vr(t2), vr(t2), vr(V_L16), sr(S_T0)))
    kv_core(s, 6, krow, vrow, kv.SHK,
            lambda ch, un, reg: s('ds_write_b128 %s, %s offset:%d' % (vr(t), vr(reg, 4), L_KVO + ch * 256 + un * 16)))
    put((KR, 16), (VR, 12), (kv.SHK, 4))
    D = V.get(16)
    for i in range(4):
        s('ds_read_b128 %s, %s offset:%d' % (vr(D + 4 * i, 4), vr(t2), L_KVO + i * 1056))
    s('v_mul_u32_u24 %s, %d, %s' % (vr(ka), KVT_STR, vr(V_Q)))
    s('v_lshl_add_u32 %s, %s, 4, %s' % (vr(ka), vr(V_N), vr(ka)))
    s('s_mul_i32 %s, %s, %d' % (sr(S_T0), sr(S_PT), 16 * KVT_STR),
      's_lshl_b32 %s, %s, 8' % (sr(S_T1), sr(S_RB)),
      's_sub_u32 %s, %s, %s' % (sr(S_T0), sr(S_T0), sr(S_T1)),
      's_add_u32 %s, %s, %d' % (sr(S_T0), sr(S_T0), WS_KVT + 21 * 256),
      's_cmp_lt_u32 %s, 6' % sr(S_CG),
      's_cselect_b32 %s, %s, 0x40000000' % (sr(S_T0), sr(S_T0)),
      'v_add_u32 %s, %s, %s' % (vr(ka), sr(S_T0), vr(ka)))
    for i in range(4):
        ks('s_mov_b32 %s, %d' % (sr(S_T1), 4 * i * KVT_STR),
           'buffer_store_dwordx4 %s, %s, %s, %s offen sc1' % (vr(D + 4 * i, 4), vr(ka), sr(R_WS, 4), sr(S_T1)))
    ks('s_nop 1')
    put((D, 16), ka, kb, kh, t, t2)


def stats_partial(s, X, S, Q, i, d, pk):
    x = X + 4 * i
    if pk:
        s('v_pk_add_f32 %s, %s, %s' % (vr(d, 2), vr(x, 2), vr(x + 2, 2)),
          'v_pk_mul_f32 %s, %s, %s' % (vr(d + 2, 2), vr(x, 2), vr(x, 2)),
          'v_add_f32 %s, %s, %s' % (vr(S + i), vr(d), vr(d + 1)),
          'v_pk_fma_f32 %s, %s, %s, %s' % (vr(d + 2, 2), vr(x + 2, 2), vr(x + 2, 2), vr(d + 2, 2)),
          'v_add_f32 %s, %s, %s' % (vr(Q + i), vr(d + 2), vr(d + 3)))
    else:
        s('v_add_f32 %s, %s, %s' % (vr(S + i), vr(x), vr(x + 1)))
        s('v_mul_f32 %s, %s, %s' % (vr(Q + i), vr(x), vr(x)))
        s('v_add_f32 %s, %s, %s' % (vr(S + i), vr(S + i), vr(x + 2)))
        s('v_fmac_f32 %s, %s, %s' % (vr(Q + i), vr(x + 1), vr(x + 1)))
        s('v_add_f32 %s, %s, %s' % (vr(S + i), vr(S + i), vr(x + 3)))
        s('v_fmac_f32 %s, %s, %s' % (vr(Q + i), vr(x + 2), vr(x + 2)))
        s('v_fmac_f32 %s, %s, %s' % (vr(Q + i), vr(x + 3), vr(x + 3)))


def stats_publish(s, X, which, fast, pk=True, SQ=None, tiles=range(MT)):
    if SQ is None:
        S, Q = V.get(6, 1), V.get(6, 1)
    else:
        S, Q = SQ
    d = V.get(4)
    for i in tiles:
        stats_partial(s, X, S, Q, i, d, pk)
    s('v_add_u32 %s, %d, %s' % (vr(d + 1), 16 * which, vr(V_TAG)))
    if which == 0:
        s('v_add_u32 %s, %s, %s' % (vr(d + 3), sr(S_XCC), vr(V_TAG)))
    else:
        s('v_add_u32 %s, %d, %s' % (vr(d + 3), 16 * which, vr(V_TAG)))
    rs12(s, [S + i for i in range(6)], [Q + i for i in range(6)])
    s('v_cndmask_b32 %s, %s, %s, %s' % (vr(d), vr(S), vr(S + 2), sr(S_MSEL, 2)))
    s('v_cndmask_b32 %s, %s, %s, %s' % (vr(d + 2), vr(Q), vr(Q + 2), sr(S_MSEL, 2)))
    txt = ['s_mov_b32 %s, %d' % (sr(S_T0), WS_ST + (which == 2) * ST_SZ),
           'buffer_store_dwordx4 %s, %s, %s, %s offen {P}' % (vr(d, 4), vr(V_STW), sr(R_WS, 4), sr(S_T0)), 's_nop 1']
    if fast:
        dual(s, txt)
    else:
        s(*[x.replace('{P}', 'sc1') for x in txt])
    put((S, 6), (Q, 6), (d, 4))


def stats_loads(which, G):
    L = []
    for i in range(MT):
        L.append('s_mov_b32 %s, %d' % (sr(S_T0), WS_ST + (which == 2) * ST_SZ + 4096 * i))
        L.append('buffer_load_dwordx4 %s, %s, %s, %s offen sc1' % (vr(G + 4 * i, 4), vr(V_STR), sr(R_WS, 4), sr(S_T0)))
    return L


def stats_exp(s, which):
    e = V.get()
    s('v_add_u32 %s, %d, %s' % (vr(e), 16 * which, vr(V_TAG)),
      'v_cmp_gt_u32 vcc, 9, %s' % vr(V_N),
      'v_cndmask_b32 %s, 0, %s, vcc' % (vr(e), vr(e)))
    return e


def stats_finish(s, G):
    rs12(s, [G + 4 * i for i in range(6)], [G + 4 * i + 2 for i in range(6)])
    P = V.get(4, top=True)
    for k, src in ((0, G), (1, G + 8)):
        s('v_mul_f32 %s, 0x3ae38e39, %s' % (vr(P + 2 * k), vr(src)))
        s('v_mul_f32 %s, 0x3ae38e39, %s' % (vr(P + 2 * k + 1), vr(src + 2)))
    for k in range(2):
        s('v_fma_f32 %s, -%s, %s, %s' % (vr(P + 2 * k + 1), vr(P + 2 * k), vr(P + 2 * k), vr(P + 2 * k + 1)))
    for k in range(2):
        s('v_max_f32 %s, 0, %s' % (vr(P + 2 * k + 1), vr(P + 2 * k + 1)))
    return P


def bcast(s, dst, P, i):
    k, lane = tile_src(i)
    s('v_mov_b64_dpp %s, %s row_newbcast:%d row_mask:0xf bank_mask:0xf' % (vr(dst, 2), vr(P + 2 * k, 2), lane))


def ln_table(s, layer, G, RBG):
    P = stats_finish(s, G)
    put((G, 24))
    mu = [P, P + 2]
    va = [P + 1, P + 3]
    if layer == 0:
        rbf(s, mu + va)
        for r in va:
            s('v_add_f32 %s, 0x3727c5ac, %s' % (vr(r), vr(r)))
        rbf(s, va)
        for r in va:
            s('v_sqrt_f32 %s, %s' % (vr(r), vr(r)))
        rbf(s, va)
        for r in va:
            s('v_rcp_f32 %s, %s' % (vr(r), vr(r)))
        s('v_mov_b32 %s, %s' % (vr(OFF), vr(mu[0])), 'v_mov_b32 %s, %s' % (vr(OFF + 1), vr(mu[1])))
    else:
        for r in va:
            s('v_add_f32 %s, 0x3727c5ac, %s' % (vr(r), vr(r)))
        for r in va:
            s('v_rsq_f32 %s, %s' % (vr(r), vr(r)))
        s('v_add_f32 %s, %s, %s' % (vr(OFF), vr(OFF), vr(mu[0])), 'v_add_f32 %s, %s, %s' % (vr(OFF + 1), vr(OFF + 1), vr(mu[1])))
    with V.borrow(*HOMES):
        d = V.get(2)
    s('v_cndmask_b32 %s, %s, %s, %s' % (vr(d), vr(va[0]), vr(va[1]), sr(S_MSEL, 2)))
    s('v_cndmask_b32 %s, %s, %s, %s' % (vr(d + 1), vr(mu[0]), vr(mu[1]), sr(S_MSEL, 2)))
    s('v_mul_f32 %s, %s, %s' % (vr(d + 1), vr(d + 1), vr(d)))
    tk = s.mem('s_mov_b64 exec, %s' % sr(S_MACT, 2),
               'ds_write2_b32 %s, %s, %s offset0:0 offset1:2' % (vr(V_TABW), vr(d), vr(d + 1)),
               's_mov_b64 exec, -1')
    put((d, 2))
    return tk, P


def ln_rest(r, layer, P):
    b = V.get(2)
    tmp = V.get(4)
    for i in range(MT):
        x = BASE + 4 * i
        bcast(r, b, P, i)
        for k in range(2):
            r('v_pk_add_f32 %s, %s, %s op_sel:[0,0] op_sel_hi:[1,0] neg_lo:[0,1] neg_hi:[0,1]' % (vr(x + 2 * k, 2), vr(x + 2 * k, 2), vr(b, 2)))
        if layer == 0:
            for k in range(2):
                r('v_cvt_pk_bf16_f32 %s, %s, %s' % (vr(tmp + 2 * k), vr(x + 2 * k), vr(x + 2 * k + 1)))
            for rep in range(3):
                for k in range(2):
                    r('v_and_b32 %s, 0xffff0000, %s' % (vr(tmp + 2 * k + 1), vr(tmp + 2 * k)),
                      'v_lshlrev_b32 %s, 16, %s' % (vr(tmp + 2 * k), vr(tmp + 2 * k)))
                for k in range(2):
                    if rep == 0:
                        r('v_pk_mul_f32 %s, %s, %s op_sel:[0,1] op_sel_hi:[1,1]' % (vr(tmp + 2 * k, 2), vr(tmp + 2 * k, 2), vr(b, 2)))
                    elif rep == 1:
                        r('v_pk_mul_f32 %s, %s, %s' % (vr(tmp + 2 * k, 2), vr(tmp + 2 * k, 2), vr(V_DSK + 2 * k, 2)))
                    else:
                        r('v_pk_add_f32 %s, %s, %s' % (vr(x + 2 * k, 2), vr(x + 2 * k, 2), vr(tmp + 2 * k, 2)))
                if rep < 2:
                    for k in range(2):
                        r('v_cvt_pk_bf16_f32 %s, %s, %s' % (vr(tmp + 2 * k), vr(tmp + 2 * k), vr(tmp + 2 * k + 1)))
        else:
            for k in range(2):
                r('v_pk_fma_f32 %s, %s, %s, 1.0 op_sel:[0,1,0] op_sel_hi:[1,1,0]' % (vr(tmp + 2 * k, 2), vr(V_DSK + 2 * k, 2), vr(b, 2)))
            for k in range(2):
                r('v_pk_mul_f32 %s, %s, %s' % (vr(x + 2 * k, 2), vr(x + 2 * k, 2), vr(tmp + 2 * k, 2)))
    put((P, 4), (b, 2), (tmp, 4))


def a_reads(k, AF):
    s = Stream()
    kp, h = k >> 1, k & 1
    base = V_FA + h + (2 if kp >= 4 else 0)
    off = (kp - (4 if kp >= 4 else 0)) * BLK
    for i in range(MT):
        s('ds_read_b128 %s, %s offset:%d' % (vr(AF + (k & 1) * 24 + i * 4, 4), vr(base), off + i * 2048))
    return s


def b_mfmas(k, ACC, AF, ones=None):
    s = Stream()
    kp, h = k >> 1, k & 1
    if ones is not None:
        for mat in range(2):
            s('v_mfma_f32_16x16x32_bf16 %s, %s, %s, %s' % (vr(ones[1] + mat * 4, 4), vr(ones[0], 4), ar(WB(kp, h, mat), 4),
                                                          '0' if k == 0 else vr(ones[1] + mat * 4, 4)))
    for i in range(MT):
        if i % 3 == 0:
            s.touch(vr(AF + (k & 1) * 24 + i * 4, 12))
        for mat in range(2):
            d = ACC + (mat * MT + i) * 4
            s('v_mfma_f32_16x16x32_bf16 %s, %s, %s, %s' % (vr(d, 4), vr(AF + (k & 1) * 24 + i * 4, 4), ar(WB(kp, h, mat), 4),
                                                          '0' if k == 0 else vr(d, 4)))
    return s


def split(stream, n):
    g = stream.groups
    parts = []
    for i in range(n):
        p = Stream()
        p.groups = g[len(g) * i // n: len(g) * (i + 1) // n]
        parts.append(p)
    return parts


def ensure(sc, tok):
    for q in sc.sides:
        idx = [i for i, g in enumerate(q) if any((not isinstance(it, tuple)) and it.tok is tok for it in g)]
        if idx:
            for _ in range(idx[0] + 1):
                sc._emit(q.pop(0))


def gemm_b(a, ACC, AF, xtok, pre, side, ones=None, vm=None, need=None):
    sc = Sched(a)
    qr, qv, qs = sc.add(Stream()), sc.add(Stream()), sc.add(Stream())
    b = Stream()
    b.wait(xtok(0))
    b('s_barrier')
    b.extend(a_reads(0, AF))
    sc.run(b)
    for k in range(18):
        sc.flush(qr)
        if k == 7:
            print('side leftover at k', k, len(qs))
            sc.flush(qs)
        if need is not None:
            for tk in need.get(k, []):
                ensure(sc, tk)
        if pre[k].groups:
            sc.flush()
            sc.run(pre[k])
        b = Stream()
        if k & 1 and k < 17:
            ensure(sc, xtok((k + 1) >> 1))
            b.wait(xtok((k + 1) >> 1))
            b('s_barrier')
            sides, sc.sides = sc.sides, []
            sc.run(b)
            sc.sides = sides
        if k < 17:
            qr.extend(a_reads(k + 1, AF).groups)
        if vm is not None:
            qv.extend(vm[k].groups)
        qs.extend(side[k].groups)
        sc.run(b_mfmas(k, ACC, AF, ones))
        if OPT['fine'] and k % 3 == 2:
            stamp(a, 'k%d' % k)
    print('gemm_b leftover', sc.pending(), 'model time', sc.t)
    sc.flush()


class Conv:
    pass


def conv_setup_k(s, cv, keep=False):
    s('s_lshl1_add_u32 %s, %s, %s' % (sr(S_T0), sr(S_PAIR), sr(S_B)),
      's_lshl_b32 %s, %s, 12' % (sr(S_T1), sr(S_T0)),
      's_add_u32 %s, %s, %s' % (sr(R_SK), sr(P_SSK), sr(S_T1)),
      's_addc_u32 %s, %s, 0' % (sr(R_SK + 1), sr(P_SSK + 1)),
      's_and_b32 %s, %s, 0xffff' % (sr(R_SK + 1), sr(R_SK + 1)),
      's_mov_b32 %s, 4096' % sr(R_SK + 2),
      's_mov_b32 %s, 0x20000' % sr(R_SK + 3))
    cv.SD = V.get(2, top=True)
    cv.HD = V.get(top=True)
    s('s_lshl_b32 %s, %s, 2' % (sr(S_T1), sr(S_PAIR)),
      'v_mov_b32 %s, %s' % (vr(cv.SD), sr(S_T1)),
      'global_load_dword %s, %s, %s' % (vr(cv.SD), vr(cv.SD), sr(P_SSD, 2)))
    s('v_add_u32 %s, %s, %s' % (vr(cv.HD), vr(V_N), vr(V_Q)),
      'v_subrev_u32 %s, 16, %s' % (vr(cv.HD), vr(cv.HD)),
      'v_lshlrev_b32 %s, 2, %s' % (vr(cv.HD), vr(cv.HD)),
      'buffer_load_dword %s, %s, %s, 0 offen' % (vr(cv.HD), vr(cv.HD), sr(R_SK, 4)))
    for c in range(2):
        g = ['s_mul_i32 %s, %s, %d' % (sr(S_T2), sr(S_B), KC_CH),
             's_mul_i32 %s, %s, %d' % (sr(S_T3), sr(S_A), (16 + 8320) if c == 0 else 8320),
             's_add_u32 %s, %s, %s' % (sr(S_T3), sr(S_T3), sr(S_T2)),
             's_add_u32 m0, %s, %d' % (sr(S_T3), L_KC + 64 + (0 if c == 0 else 16 + 4160)),
             's_lshl_b32 %s, %s, 3' % (sr(S_T1), sr(S_A)),
             's_add_u32 %s, %s, %d' % (sr(S_T1), sr(S_T1), 4 * c)]
        for part in range(4):
            g.append('buffer_load_dwordx4 %s, %s, %s offen offset:%d nt lds' % (vr(V_L16), sr(R_SK, 4), sr(S_T1), part * 1024))
        cv.ktk = s.mem(*g)


def conv_u_prep(s, cv):
    cv.UA = V.get(2, 1, top=True)
    cv.UE = V.get(top=True)
    cv.UN = V.get(top=True)
    cv.U = V.get(16, top=True)
    U, UA, UE = cv.U, cv.UA, cv.UE
    s('s_lshl1_add_u32 %s, %s, %s' % (sr(S_T0), sr(S_PAIR), sr(S_B)),
      's_mul_i32 %s, %s, %d' % (sr(S_T1), sr(S_T0), KVT_STR),
      's_mul_i32 %s, %s, %d' % (sr(S_T3), sr(S_A), 171 * 16),
      's_add_u32 %s, %s, %s' % (sr(S_T1), sr(S_T1), sr(S_T3)),
      's_add_u32 %s, %s, %d' % (sr(S_T1), sr(S_T1), WS_KVT + 10 * 16),
      'v_add_u32 %s, %s, %s' % (vr(UA), sr(S_T1), vr(V_L16)))
    s('s_sub_u32 %s, 44, %s' % (sr(S_T0), sr(S_A)),
      'v_cmp_gt_u32 vcc, %s, %s' % (sr(S_T0), vr(V_LANE)),
      'v_cndmask_b32 %s, %s, %s, vcc' % (vr(UA + 1), vr(V_OOB), vr(UA)),
      'v_cndmask_b32 %s, 0, %s, vcc' % (vr(UE), vr(V_TAG)))
    s('s_sub_u32 %s, 43, %s' % (sr(S_T0), sr(S_A)),
      'v_cmp_gt_u32 vcc, %s, %s' % (sr(S_T0), vr(V_LANE)),
      'v_cndmask_b32 %s, %s, %s, vcc' % (vr(cv.UN), vr(V_OOB), vr(UA)))
    cv.uloads = []
    for i in range(3):
        cv.uloads.append('buffer_load_dwordx4 %s, %s, %s, 0 offen offset:%d sc1' % (vr(U + 4 * i, 4), vr(UA + (i >> 1)), sr(R_WS, 4), 1024 * i))
    for i in range(3):
        cv.uloads.append('buffer_load_dword %s, %s, %s, 0 offen offset:%d sc1' % (vr(U + 12 + i), vr(UA if i < 2 else cv.UN), sr(R_WS, 4), 1024 * i + 16))
    cv.uchecks = [(U + 3, U + 7, V_TAG), (U + 11, None, UE)]


def conv_addr(s, cv):
    cv.ah, cv.az, cv.au, cv.vN, cv.vM = [V.get(top=True) for _ in range(5)]
    t, e = V.get(), V.get()
    ah, az, au, vN, vM = cv.ah, cv.az, cv.au, cv.vN, cv.vM
    s('v_mul_u32_u24 %s, 4160, %s' % (vr(ah), vr(V_Q)))
    s('v_min_u32 %s, 1, %s' % (vr(e), vr(V_Q)))
    s('v_lshl_add_u32 %s, %s, 4, %s' % (vr(ah), vr(e), vr(ah)))
    s('v_lshl_add_u32 %s, %s, 2, %s' % (vr(ah), vr(V_N), vr(ah)))
    s('s_mul_i32 %s, %s, %d' % (sr(S_T2), sr(S_B), KC_CH),
      's_add_u32 %s, %s, %d' % (sr(S_T3), sr(S_T2), L_KC),
      'v_add_u32 %s, %s, %s' % (vr(ah), sr(S_T3), vr(ah)))
    s('s_mul_i32 %s, %s, %d' % (sr(S_T2), sr(S_B), UC_CH),
      's_mul_i32 %s, %s, 4640' % (sr(S_T3), sr(S_A)),
      's_add_u32 %s, %s, %s' % (sr(S_T3), sr(S_T3), sr(S_T2)),
      'v_lshl_add_u32 %s, %s, 3, %s' % (vr(az), vr(V_LANE), sr(S_T3)))
    s('v_mul_u32_u24 %s, 12, %s' % (vr(au), vr(V_LANE)))
    s('s_mul_i32 %s, %s, %d' % (sr(S_T2), sr(S_B), UC_CH),
      's_mul_i32 %s, %s, %d' % (sr(S_T3), sr(S_A), 171 * 12),
      's_add_u32 %s, %s, %s' % (sr(S_T3), sr(S_T3), sr(S_T2)),
      'v_add_u32 %s, %s, %s' % (vr(au), sr(S_T3), vr(au)))
    s('v_add_u32 %s, 1, %s' % (vr(t), vr(V_N)))
    s('v_and_b32 %s, 3, %s' % (vr(e), vr(t)))
    s('v_mul_u32_u24 %s, 4160, %s' % (vr(vN), vr(e)))
    s('v_min_u32 %s, 1, %s' % (vr(e), vr(e)))
    s('v_lshrrev_b32 %s, 2, %s' % (vr(t), vr(t)))
    s('v_add3_u32 %s, %s, %s, %s' % (vr(t), vr(t), vr(e), vr(V_Q)))
    s('v_lshl_add_u32 %s, %s, 4, %s' % (vr(vN), vr(t), vr(vN)))
    s('s_mul_i32 %s, %s, %d' % (sr(S_T3), sr(S_B), KC_CH),
      's_lshl_b32 %s, %s, 8' % (sr(S_T1), sr(S_A)),
      's_add_u32 %s, %s, %s' % (sr(S_T3), sr(S_T3), sr(S_T1)),
      's_add_u32 %s, %s, %d' % (sr(S_T3), sr(S_T3), L_KC),
      'v_add_u32 %s, %s, %s' % (vr(vN), sr(S_T3), vr(vN)))
    s('v_and_b32 %s, 1, %s' % (vr(t), vr(V_N)))
    s('v_sub_u32 %s, 1, %s' % (vr(t), vr(t)))
    s('v_mul_u32_u24 %s, 4640, %s' % (vr(vM), vr(t)))
    s('v_lshrrev_b32 %s, 1, %s' % (vr(t), vr(V_N)))
    s('v_lshlrev_b32 %s, 6, %s' % (vr(t), vr(t)))
    s('v_sub_u32 %s, %s, %s' % (vr(vM), vr(vM), vr(t)))
    s('v_lshl_add_u32 %s, %s, 4, %s' % (vr(vM), vr(V_Q), vr(vM)))
    s('s_mul_i32 %s, %s, %d' % (sr(S_T2), sr(S_B), UC_CH),
      's_lshl_b32 %s, %s, 8' % (sr(S_T1), sr(S_A)),
      's_add_u32 %s, %s, %s' % (sr(S_T3), sr(S_T2), sr(S_T1)),
      's_add_u32 %s, %s, %d' % (sr(S_T3), sr(S_T3), L_UC + 448),
      'v_add_u32 %s, %s, %s' % (vr(vM), sr(S_T3), vr(vM)))
    return [t, e]


def conv_body(a, cv, side=None, pre_issued=True, early=None, release=True, last=None):
    U, HD = cv.U, cv.HD
    vN, vM = cv.vN, cv.vM
    a('ds_write_b32 %s, %s' % (vr(cv.ah), vr(HD)))
    a('ds_write_b64 %s, %s offset:%d' % (vr(cv.az), vr(V_ZERO, 2), L_UC + 4096))
    if early is not None:
        a.extend(early)
    poll(a, cv.uloads, cv.uchecks, pre_issued=pre_issued, sleep=OPT['slp2'] if pre_issued else OPT['slp'])
    a.touch(vr(U, 15))
    U1 = V.get(9, 1)
    for i in range(3):
        if i == 2:
            a('v_cmp_gt_u32 vcc, 43, %s' % vr(V_LANE), 's_mov_b64 exec, vcc')
        for k in range(3):
            a('ds_write_b32 %s, %s offset:%d' % (vr(cv.au), vr(U + 4 * i + k), L_UC - 8 + 768 * i + 4 * k))
            hi = U + 4 * i + k + 1 if k < 2 else U + 12 + i
            a('v_alignbit_b32 %s, %s, %s, 16' % (vr(U1 + 3 * i + k), vr(hi), vr(U + 4 * i + k)))
        for k in range(3):
            tk = a.mem('ds_write_b32 %s, %s offset:%d' % (vr(cv.au), vr(U1 + 3 * i + k), L_UC - 8 + 4640 + 768 * i + 4 * k))
    a('s_mov_b64 exec, -1')
    a.wait(tk, cv.ktk)
    a('s_barrier')
    put((U, 16), (U1, 9), HD, (cv.UA, 2), cv.UE, cv.UN)
    if release:
        put(cv.ah, cv.az, cv.au)
    stamp(a, 'conv_ld')
    if not pre_issued:
        astamp(a, 11)
    with V.borrow((GP, 12)):
        CA = [V.get(4) for _ in range(8)]
    FN, FM = [[V.get(4) for _ in range(8)] for _ in range(2)]
    AW = V.get(3, 1)
    t = V.get()
    rdN = lambda x, cc: 'ds_read_b128 %s, %s offset:%d' % (vr(FN[x], 4), vr(vN), 512 * x + 64 * cc)
    rdM = lambda x, cc: 'ds_read_b128 %s, %s offset:%d' % (vr(FM[x], 4), vr(vM), 512 * (7 - x) + 64 * cc)
    m = Stream()
    m(rdN(0, 0))
    for x in range(7, -1, -1):
        m(rdM(x, 0))
    m('v_lshlrev_b32 %s, 1, %s' % (vr(t), vr(V_N)))
    m('v_lshl_add_u32 %s, %s, 6, %s' % (vr(t), vr(V_Q), vr(t)))
    for j in range(3):
        m('v_add_u32 %s, %d, %s' % (vr(AW + j), j, vr(t)))
        m('v_mul_u32_u24 %s, 171, %s' % (vr(AW + j), vr(AW + j)))
        m('v_lshrrev_b32 %s, 9, %s' % (vr(AW + j), vr(AW + j)))
        m('v_add_u32 %s, %s, %s' % (vr(AW + j), vr(AW + j), vr(t)))
        m('s_mul_i32 %s, %s, %d' % (sr(S_T3), sr(S_WAVE), CO_W),
          'v_lshl_add_u32 %s, %s, 2, %s' % (vr(AW + j), vr(AW + j), sr(S_T3)))

    def stage(m, i):
        tk = None
        for r in range(4):
            c = 256 * i + 32 * (r >> 1) + (r & 1)
            tk = m.mem('ds_write_b32 %s, %s offset:%d' % (vr(AW + c % 3), vr(CA[i] + r), L_CO + 4 * (c + c // 3)))
        return tk

    for cc in range(4):
        if cc == 3:
            sc = Sched(a)
            sc.VM_GAP = 110
            if side is not None:
                qs_ = [sc.add(x) for x in side]
            sc.run(m)
            if side is not None:
                sc.flush(qs_[0])
            sc.VM_GAP = 30
            m = Stream()
            if last is not None:
                last(m, None)
        for aa in range(8):
            for dl in range(7 - aa, -1, -1):
                i = aa + dl
                z = cc == 0 and aa == 0
                m('v_mfma_f32_16x16x32_bf16 %s, %s, %s, %s' % (vr(CA[i], 4), vr(FM[dl], 4), vr(FN[aa], 4),
                                                              '0' if z else vr(CA[i], 4)))
                if cc == 0 and aa == 0 and dl > 0:
                    m(rdN(8 - dl, 0))
                if dl == 7 - aa:
                    if cc < 3:
                        m(rdM(dl, cc + 1))
                    elif last is not None:
                        last(m, FM[dl])
            if cc < 3:
                m(rdN(aa, cc + 1))
            else:
                if last is not None:
                    last(m, FN[aa])
                if 2 <= aa:
                    stage(m, aa - 2)
    stage(m, 6)
    cv.stk = stage(m, 7)
    sc.run(m)
    print('conv leftover', sc.pending(), 'model time', sc.t)
    sc.flush()
    put(*[(r, 4) for r in CA])
    if last is None:
        put(*[(r, 4) for r in FN + FM])
    put((AW, 3), t)
    if release:
        put(vN, vM)
    stamp(a, 'conv_mm')
    if not pre_issued:
        astamp(a, 12)


def conv_final(s, cv):
    SD = cv.SD
    ay, ak, ag = V.get(), V.get(), V.get()
    Y, KV, D = V.get(16), V.get(4), V.get(6, 1)
    GO = V.get(4)
    t = V.get()
    s('v_and_b32 %s, 0xffff0000, %s' % (vr(SD + 1), vr(SD)))
    s('v_lshlrev_b32 %s, 16, %s' % (vr(SD), vr(SD)))
    s('v_lshlrev_b32 %s, 4, v0' % vr(ay))
    s('v_mul_u32_u24 %s, 6, v0' % vr(ak))
    s('v_sub_u32 %s, %d, %s' % (vr(ak), 4090, vr(ak)))
    s('v_and_b32 %s, -4, %s' % (vr(ak), vr(ak)))
    s('v_and_b32 %s, 1, v0' % vr(t))
    s('v_sub_u32 %s, 1, %s' % (vr(t), vr(t)))
    s('v_mul_u32_u24 %s, 4640, %s' % (vr(t), vr(t)))
    s('v_add_u32 %s, %s, %s' % (vr(ak), vr(ak), vr(t)))
    s('s_mul_i32 %s, %s, %d' % (sr(S_T1), sr(S_PAIR), G_STR),
      's_add_u32 %s, %s, %d' % (sr(S_T1), sr(S_T1), WS_G),
      'v_add_u32 %s, %s, %s' % (vr(ag), sr(S_T1), vr(ay)))
    s('v_mov_b32 %s, %s' % (vr(GO + 3), vr(V_TAG)))
    for j in range(3):
        if j > 0:
            s('v_subrev_u32 %s, 1536, %s' % (vr(ak), vr(ak)))
            s('v_add_u32 %s, 4096, %s' % (vr(ag), vr(ag)))
        if j == 2:
            s('v_max_i32 %s, 0, %s' % (vr(ak), vr(ak)))
            s('v_cmp_gt_u32 vcc, 192, v0', 'v_cndmask_b32 %s, %s, %s, vcc' % (vr(ag), vr(V_OOB), vr(ag)))
        for ch in range(2):
            for k in range(2):
                s('ds_read_b32 %s, %s offset:%d' % (vr(KV + 2 * ch + k), vr(ak), L_UC + ch * UC_CH + 4 * k))
        for w in range(4):
            s('ds_read_b128 %s, %s offset:%d' % (vr(Y + 4 * w, 4), vr(ay), L_CO + w * CO_W + j * 4096))
        for ch in range(2):
            d = D + 3 * ch
            s('v_lshlrev_b32 %s, 16, %s' % (vr(d), vr(KV + 2 * ch + 1)))
            s('v_and_b32 %s, 0xffff0000, %s' % (vr(d + 1), vr(KV + 2 * ch)))
            s('v_lshlrev_b32 %s, 16, %s' % (vr(d + 2), vr(KV + 2 * ch)))
            for e in range(3):
                s('v_mul_f32 %s, %s, %s' % (vr(d + e), vr(d + e), vr(SD + ch)))
        for ch in range(2):
            d, y = D + 3 * ch, Y + 8 * ch
            for e in range(3):
                s('v_add_f32 %s, %s, %s' % (vr(y + e), vr(y + e), vr(y + 4 + e)))
            for e in range(3):
                s('v_cvt_pk_bf16_f32 %s, %s, %s' % (vr(d + e), vr(y + e), vr(d + e)))
            for e in range(3):
                s('v_lshlrev_b32 %s, 16, %s' % (vr(y + e), vr(d + e)))
                s('v_and_b32 %s, 0xffff0000, %s' % (vr(d + e), vr(d + e)))
                s('v_add_f32 %s, %s, %s' % (vr(d + e), vr(d + e), vr(y + e)))
        for e in range(3):
            s('v_cvt_pk_bf16_f32 %s, %s, %s' % (vr(GO + e), vr(D + e), vr(D + 3 + e)))
        s('buffer_store_dwordx4 %s, %s, %s, 0 offen sc1' % (vr(GO, 4), vr(ag), sr(R_WS, 4)))
    s('s_nop 1')
    return [ay, ak, ag, (Y, 16), (KV, 4), (D, 6), (GO, 4), t, (SD, 2)]


ACC = V.get(48, top=True)
AF = V.get(48, top=True)
with V.borrow((GP, 12)):
    ONES = V.get(4)
    RBA = V.get(8)
xtk[1] = x_dma(a, 1, 0)
a('global_load_dwordx2 %s, %s, %s' % (vr(V_DSK, 2), vr(dad), sr(P_DSK, 2)))
put(lad, dad)
tag_ready(a)
a('v_cmp_gt_u32 vcc, 9, %s' % vr(V_N), 'v_cndmask_b32 %s, 0, %s, vcc' % (vr(V_EXP9), vr(V_TAG)))
for i in range(4):
    a('v_mov_b32 %s, 0x3f803f80' % vr(ONES + i))
XS = V.get(12, 2, top=True)
lp = Stream()
lam_compute(lp, LAMT, False, LAM)
L2, L4, L8, L48, L72, L96, L192, L288 = [V.get(2) for _ in range(8)]
cmul(lp, L2, LAM, LAM)
cmul(lp, L4, L2, L2)
cmul(lp, L8, L4, L4)
cmul(lp, L12, L8, L4)
cmul(lp, L24, L12, L12)
cmul(lp, L48, L24, L24)
cmul(lp, L72, L48, L24)
cmul(lp, L96, L48, L48)
cmul(lp, L192, L96, L96)
cmul(lp, L288, L192, L96)
cmul(lp, L384, L192, L192)
for (dst, opts) in ((LQ96, (L96, L192, L288)), (LQ24, (L24, L48, L72))):
    lp('v_mov_b32 %s, 1.0' % vr(dst), 'v_mov_b32 %s, 0' % vr(dst + 1))
    for qi, o in enumerate(opts):
        lp('v_cmp_eq_u32 vcc, %d, %s' % (qi + 1, vr(V_Q)),
           'v_cndmask_b32 %s, %s, %s, vcc' % (vr(dst), vr(dst), vr(o)),
           'v_cndmask_b32 %s, %s, %s, vcc' % (vr(dst + 1), vr(dst + 1), vr(o + 1)))
for r in (L2, L4, L8, L48, L72, L96, L192, L288):
    put((r, 2))
V.free -= set(range(LAMT, LAMT + 4))
s0 = Stream()
s0.wait(xtk[0])
s0('s_barrier')
for i in range(MT):
    s0('ds_read_b64 %s, %s offset:%d' % (vr(XS + 2 * i, 2), vr(V_WA), 2048 * i))
for i in range(MT):
    for k in range(2):
        s0('v_lshlrev_b32 %s, 16, %s' % (vr(BASE + 4 * i + 2 * k), vr(XS + 2 * i + k)))
        s0('v_and_b32 %s, 0xffff0000, %s' % (vr(BASE + 4 * i + 2 * k + 1), vr(XS + 2 * i + k)))
with V.borrow(*HOMES):
    stats_publish(s0, BASE, 0, False)
s0.extend(lp)
s0('v_and_b32 %s, 0xffff0000, %s' % (vr(V_DSK + 3), vr(V_DSK + 1)))
s0('v_lshlrev_b32 %s, 16, %s' % (vr(V_DSK + 2), vr(V_DSK + 1)))
s0('v_and_b32 %s, 0xffff0000, %s' % (vr(V_DSK + 1), vr(V_DSK)))
s0('v_lshlrev_b32 %s, 16, %s' % (vr(V_DSK), vr(V_DSK)))
d1 = Stream()
xtk[2] = x_dma(d1, 2, 0)
btk[2] = b_dma(d1, 2)
xtk[3] = x_dma(d1, 3, 0)
rt = b_read(d1, 0)
xtk[4] = x_dma(d1, 4, 0)
d1.wait(rt)
btk[3] = b_dma(d1, 3)
rt = b_read(d1, 1)
xtk[5] = x_dma(d1, 5, 0)
d1.wait(rt)
btk[4] = b_dma(d1, 4)
a.weave(s0, d1)
stamp(a, 'lam')
put((V_DUMMY, 4), (LAMT, 4))
pre = {k: Stream() for k in range(18)}
side = {k: Stream() for k in range(18)}


class Pace:
    def __init__(self, per=3):
        self.vm = {k: Stream() for k in range(18)}
        self.k, self.n, self.per = 0, 0, per

    def add(self, st, earliest=0):
        if self.k < earliest:
            self.k, self.n = earliest, 0
        for g in st.groups:
            if self.n >= self.per:
                self.k, self.n = self.k + 1, 0
            self.vm[self.k].groups.append(g)
            self.n += sum(1 for it in g if not isinstance(it, tuple) and it.kind == 'vmem')
        return self.k


pc = Pace(OPT['per'])
need = {}
for blk in range(5, 9):
    st = Stream()
    rt = b_read(st, blk - 3)
    need[2 * (blk - 3)] = [rt]
    if blk < 8:
        xtk[blk + 1] = x_dma(st, blk + 1, 0)
    st.wait(rt)
    btk[blk] = b_dma(st, blk)
    kk = pc.add(st)
    print('block', blk, 'issued by k', kk)
cv = Conv()
cfa, cfe, cfv = V.get(top=True), V.get(top=True), V.get(top=True)
side[0]('s_mul_i32 %s, %s, 43' % (sr(S_T1), sr(S_CG)),
         's_lshr_b32 %s, %s, 5' % (sr(S_T1), sr(S_T1)),
         's_mul_i32 %s, %s, %d' % (sr(S_T1), sr(S_T1), 18 * 64),
         's_add_u32 %s, %s, %d' % (sr(S_T1), sr(S_T1), WS_CPF),
         'v_lshl_add_u32 %s, %s, 6, %s' % (vr(cfa), vr(V_LANE), sr(S_T1)))
side[0]('v_cmp_gt_u32 vcc, 36, %s' % vr(V_LANE),
         'v_cndmask_b32 %s, %s, %s, vcc' % (vr(cfa), vr(V_OOB), vr(cfa)),
         'v_cndmask_b32 %s, 0, %s, vcc' % (vr(cfe), vr(V_TAG)))
cfl = 'buffer_load_dword %s, %s, %s, 0 offen sc1' % (vr(cfv), vr(cfa), sr(R_WS, 4))
side[0]('s_mul_i32 %s, %s, %d' % (sr(S_T0), sr(S_PT), 37 * 1024),
        's_add_u32 %s, %s, %d' % (sr(S_CPB), sr(S_T0), WS_CP))
ca_ = Stream()
carel = conv_addr(ca_, cv)
side[0].extend(ca_)
stt = Stream()
stt(cfl)
ta = carel[0]
stt('v_lshrrev_b32 %s, 3, %s' % (vr(ta), vr(V_LANE)),
    'v_mul_u32_u24 %s, %d, %s' % (vr(ta), 36864 - 1024, vr(ta)),
    'v_lshl_add_u32 %s, %s, 7, %s' % (vr(ta), vr(V_LANE), vr(ta)),
    'v_cmp_gt_u32 vcc, 48, %s' % vr(V_LANE),
    'v_cndmask_b32 %s, %s, %s, vcc' % (vr(ta), vr(V_OOB), vr(ta)))
stt('s_mul_i32 %s, %s, 216' % (sr(S_T2), sr(S_RB)),
    's_add_u32 %s, %s, %s' % (sr(S_T2), sr(S_T2), sr(S_PT)),
    's_lshl_b32 %s, %s, 10' % (sr(S_T2), sr(S_T2)),
    's_add_u32 %s, %s, %d' % (sr(S_T2), sr(S_T2), WS_H),
    'buffer_load_dword %s, %s, %s, %s offen sc1 ;junk' % (vr(V_JUNK), vr(ta), sr(R_WS, 4), sr(S_T2)))
stt('s_mov_b32 %s, %d' % (sr(S_T2), WS_ST + ST_SZ),
    'buffer_load_dword %s, %s, %s, %s offen sc1 ;junk' % (vr(V_JUNK), vr(V_STW), sr(R_WS, 4), sr(S_T2)))
stt('v_lshrrev_b32 %s, 1, %s' % (vr(ta), vr(V_LANE)),
    'v_min_u32 %s, 2, %s' % (vr(ta), vr(ta)),
    'v_mul_u32_u24 %s, %d, %s' % (vr(ta), NRB * 256, vr(ta)),
    'v_and_b32 %s, 1, %s' % (vr(carel[1]), vr(V_LANE)),
    'v_lshl_add_u32 %s, %s, 7, %s' % (vr(ta), vr(carel[1]), vr(ta)),
    's_lshl_b32 %s, %s, 8' % (sr(S_T2), sr(S_RB)),
    's_add_u32 %s, %s, %d' % (sr(S_T2), sr(S_T2), WS_HF),
    'buffer_load_dword %s, %s, %s, %s offen sc1 ;junk' % (vr(V_JUNK), vr(ta), sr(R_WS, 4), sr(S_T2)))
with V.borrow(*HOMES):
    G0 = V.get(24)
xe = V.get()
side[0]('v_add_u32 %s, %s, %s' % (vr(xe), sr(S_XCC), vr(V_TAG)),
        'v_cmp_gt_u32 vcc, 9, %s' % vr(V_N),
        'v_cndmask_b32 %s, 0, %s, vcc' % (vr(xe), vr(xe)))
gl = stats_loads(0, G0)
st = Stream()
for i in range(0, 12, 2):
    st(gl[i], gl[i + 1])
print('gather by k', pc.add(st, 7))
kvm = KVm()
st = Stream()
with V.borrow(*HOMES):
    kv_dma(st, kvm)
print('kv dma by k', pc.add(st, 7))
print('touch by k', pc.add(stt))
for kp, k in ((6, 8), (7, 10), (8, 12)):
    need[2 * kp] = [b_read(side[k], kp)]
lastb = need[16][0]


def s0_poll(s):
    p = Stream()
    L, Lc, Lr = newlabel('poll'), newlabel('pollc'), newlabel('pollr')
    acc = V.get(2, 1)
    p.touch(vr(G0, 24))
    p('v_xor_b32 %s, %s, %s' % (vr(acc), vr(G0 + 1), vr(V_EXP9)))
    for i in range(MT):
        if i:
            p('v_bitop3_b32 %s, %s, %s, %s bitop3:0xf6' % (vr(acc), vr(acc), vr(G0 + 4 * i + 1), vr(V_EXP9)))
        p('v_bitop3_b32 %s, %s, %s, %s bitop3:0xf6' % (vr(acc), vr(acc), vr(G0 + 4 * i + 3), vr(xe)))
    p('v_cmp_ne_u32 vcc, 0, %s' % vr(acc))
    p('s_mov_b32 %s, %d' % (sr(S_FAST), 0 if OPT['slow'] else 1))
    p('s_cmp_lg_u64 vcc, 0')
    p('s_cbranch_scc1 %s' % L)
    p.label(Lc)
    s.join(p)
    tail.label(L)
    tail('s_mov_b32 %s, %d' % (sr(S_SPIN), SPIN))
    tail.label(Lr)
    for t in gl:
        tail(t)
    tail('s_waitcnt vmcnt(0)')
    tail('v_mov_b32 %s, 0' % vr(acc))
    for i in range(MT):
        tail('v_sub_u32 %s, %s, %s' % (vr(acc + 1), vr(G0 + 4 * i + 3), vr(V_EXP9)))
        tail('v_lshrrev_b32 %s, 4, %s' % (vr(acc + 1), vr(acc + 1)))
        tail('v_or_b32 %s, %s, %s' % (vr(acc), vr(acc), vr(acc + 1)))
        tail('v_bitop3_b32 %s, %s, %s, %s bitop3:0xf6' % (vr(acc), vr(acc), vr(G0 + 4 * i + 1), vr(V_EXP9)))
    tail('v_cmp_ne_u32 vcc, 0, %s' % vr(acc))
    tail('s_sub_u32 %s, %s, 1' % (sr(S_SPIN), sr(S_SPIN)))
    tail('s_cselect_b64 vcc, 0, vcc')
    tail('s_cmp_lg_u64 vcc, 0')
    tail('s_cbranch_scc1 %s' % Lr)
    tail('v_cmp_ne_u32 vcc, %s, %s' % (vr(G0 + 3), vr(xe)))
    tail('s_cmp_eq_u64 vcc, 0')
    tail('s_cselect_b32 %s, %d, 0' % (sr(S_FAST), 0 if OPT['slow'] else 1))
    tail('s_branch %s' % Lc)
    put((acc, 2))


s0_poll(side[12])
ttk, LNP0 = ln_table(side[12], 0, G0, None)
put(xe)
pre[15].wait(ttk, lastb)
NCP0 = OPT['ncp0']


def WC(s, j):
    idx = s * 4 + j
    if idx < 28:
        return ar(144 + idx * 4, 4)
    return vr(WCV + (idx - 28) * 4, 4)


def cp_load(s_, s, j):
    ld = 'buffer_load_dwordx4 %s, %s, %s, %s offen offset:%d sc1' % (WC(s, j), vr(V_L16), sr(R_WS, 4), sr(S_CPB), j * 1024)
    if j == 3:
        s_(ld, 's_add_u32 %s, %s, 4096' % (sr(S_CPB), sr(S_CPB)))
    else:
        s_(ld)


put((V_DB, 2), (V_DX, 3))
st = Stream()
conv_setup_k(st, cv)
print('K by k', pc.add(st, 15))
gemm_b(a, ACC, AF, lambda s: xtk[s], pre, side, ones=(ONES, RBA), vm=pc.vm, need=need)
poll(a, [cfl], [(cfv, None, cfe)], pre_issued=True, sleep=6)
put(cfa, cfe, cfv)
a('v_mov_b32 %s, %s' % (vr(RB), vr(RBA)))
a('v_mov_b32 %s, %s' % (vr(RB + 1), vr(RBA + 4)))
put((ONES, 4), (RBA, 8))
put(*kvm.rel)
put(*carel)
put((V_FB, 2))
stamp(a, 'gemmB1')


def scan_phase(a, layer, ACC, AF, mid=None, x1=None, x2=None):
    NJ = 2 * MT
    re = lambda j: ACC + (j >> 1) * 4 + (j & 1) * 2
    im = lambda j: ACC + 4 * MT + (j >> 1) * 4 + (j & 1) * 2
    TB = AF
    for j in range(NJ):
        a('ds_read_b128 %s, %s offset:%d' % (vr(TB + 4 * j, 4), vr(V_TABR), 16 * j))

    def prescale(j):
        a('v_pk_mul_f32 %s, %s, %s' % (vr(re(j), 2), vr(re(j), 2), vr(TB + 4 * j, 2)))
        a('v_pk_mul_f32 %s, %s, %s' % (vr(im(j), 2), vr(im(j), 2), vr(TB + 4 * j, 2)))
        a('v_pk_fma_f32 %s, %s, %s, %s op_sel:[0,0,0] op_sel_hi:[1,0,1] neg_lo:[1,0,0] neg_hi:[1,0,0]' %
          (vr(re(j), 2), vr(TB + 4 * j + 2, 2), vr(RB, 2), vr(re(j), 2)))
        a('v_pk_fma_f32 %s, %s, %s, %s op_sel:[0,1,0] op_sel_hi:[1,1,1] neg_lo:[1,0,0] neg_hi:[1,0,0]' %
          (vr(im(j), 2), vr(TB + 4 * j + 2, 2), vr(RB, 2), vr(im(j), 2)))

    def step(dr, di, pr, pi, br, bi):
        a('v_pk_fma_f32 %s, %s, %s, %s op_sel:[0,0,0] op_sel_hi:[1,0,1]' % (vr(dr, 2), vr(pr, 2), vr(LAM, 2), vr(br, 2)))
        a('v_pk_fma_f32 %s, %s, %s, %s op_sel:[0,0,0] op_sel_hi:[1,0,1]' % (vr(di, 2), vr(pi, 2), vr(LAM, 2), vr(bi, 2)))
        a('v_pk_fma_f32 %s, %s, %s, %s op_sel:[0,1,0] op_sel_hi:[1,1,1] neg_lo:[1,0,0] neg_hi:[1,0,0]' %
          (vr(dr, 2), vr(pi, 2), vr(LAM, 2), vr(dr, 2)))
        a('v_pk_fma_f32 %s, %s, %s, %s op_sel:[0,1,0] op_sel_hi:[1,1,1]' % (vr(di, 2), vr(pr, 2), vr(LAM, 2), vr(di, 2)))

    with V.borrow(*HOMES):
        E = V.get(8)
        pub = V.get(4)
    prescale(0)
    pr, pi = re(0), im(0)
    for j in range(1, NJ):
        prescale(j)
        dr, di = E + (j & 1) * 4, E + (j & 1) * 4 + 2
        step(dr, di, pr, pi, re(j), im(j))
        pr, pi = dr, di
        if x1 is not None and j % 3 == 1:
            x1(a)
    EA, F = V.get(2), V.get(2)
    a('v_mov_b32 %s, %s' % (vr(EA), vr(pr)))
    a('v_mov_b32 %s, %s' % (vr(EA + 1), vr(pi)))
    a('v_mov_b32 %s, %s' % (vr(F), vr(pr + 1)))
    a('v_mov_b32 %s, %s' % (vr(F + 1), vr(pi + 1)))
    FA = E
    cfma(a, FA, EA, L12, F)
    a('v_mov_b64 %s, %s' % (vr(FA + 2, 2), vr(FA, 2)))
    a('v_mov_b32 %s, %s' % (vr(pub + 1), vr(V_TAG)))
    a('v_mov_b32 %s, %s' % (vr(pub + 3), vr(V_TAG)))
    a('v_permlane16_swap_b32 %s, %s' % (vr(FA), vr(FA + 2)))
    a('v_permlane16_swap_b32 %s, %s' % (vr(FA + 1), vr(FA + 3)))
    a('s_lshl_b32 %s, %s, 13' % (sr(S_T0), sr(S_PT)))
    a('v_mov_b64 %s, %s' % (vr(FA + 4, 2), vr(FA, 2)))
    a('v_mov_b64 %s, %s' % (vr(FA + 6, 2), vr(FA + 2, 2)))
    a('s_add_u32 %s, %s, %d' % (sr(S_T0), sr(S_T0), WS_E + layer * 36 * 8192))
    for k in range(4):
        a('v_permlane32_swap_b32 %s, %s' % (vr(FA + k), vr(FA + 4 + k)))
    cfma(a, FA + 2, FA, L24, FA + 2)
    cfma(a, FA + 4, FA + 2, L24, FA + 4)
    cfma(a, FA + 6, FA + 4, L24, FA + 6)
    a('v_mov_b32 %s, %s' % (vr(pub), vr(FA + 6)))
    a('v_mov_b32 %s, %s' % (vr(pub + 2), vr(FA + 7)))
    a('buffer_store_dwordx4 %s, %s, %s, %s offen sc1' % (vr(pub, 4), vr(V_EW), sr(R_WS, 4), sr(S_T0)))
    stamp(a, 'e_pub%d' % layer)
    PQ = F
    a('v_mov_b32 %s, 0' % vr(PQ))
    a('v_mov_b32 %s, 0' % vr(PQ + 1))
    for qi in range(1, 4):
        a('v_cmp_eq_u32 vcc, %d, %s' % (qi, vr(V_Q)),
          'v_cndmask_b32 %s, %s, %s, vcc' % (vr(PQ), vr(PQ), vr(FA + 2 * qi - 2)),
          'v_cndmask_b32 %s, %s, %s, vcc' % (vr(PQ + 1), vr(PQ + 1), vr(FA + 2 * qi - 1)))
    put((pub, 4), (E, 8), (AF, 48))
    NL = 6
    loads, checks, box = [], [], []

    def mk(cs):
        CG_ = V.get(4 * NL)
        AD, EX = V.get(NL, 1), V.get(NL, 1)
        box.extend([CG_, AD, EX])
        cs('s_lshl_b32 %s, %s, 13' % (sr(S_T0), sr(S_PT)),
           's_add_u32 %s, %s, %d' % (sr(S_T0), sr(S_T0), WS_E + layer * 36 * 8192),
           'v_add_u32 %s, %s, %s' % (vr(EX), sr(S_T0), vr(V_ER)))
        for j in range(NL - 1, -1, -1):
            cs('v_subrev_u32 %s, %d, %s' % (vr(AD + j), 1024 * j, vr(EX)),
               'v_cmp_le_i32 vcc, %d, %s' % (1024 * j, vr(V_ER)),
               'v_cndmask_b32 %s, %s, %s, vcc' % (vr(AD + j), vr(V_OOB), vr(AD + j)),
               'v_cndmask_b32 %s, 0, %s, vcc' % (vr(EX + j), vr(V_TAG)))
        for j in range(NL):
            loads.append('buffer_load_dwordx4 %s, %s, %s, 0 offen sc1' % (vr(CG_ + 4 * j, 4), vr(AD + j), sr(R_WS, 4)))
            checks.append((CG_ + 4 * j + 1, CG_ + 4 * j + 3, EX + j))
        for l_ in loads:
            cs(l_)

    post = mid(a, mk)
    CG_, AD, EX = box
    poll(a, loads, checks, pre_issued=True)
    stamp(a, 'carry%d' % layer)
    if post is not None:
        a.extend(post)
    put((AD, NL), (EX, NL))
    for j in range(NL):
        a('v_mov_b32 %s, %s' % (vr(CG_ + 4 * j + 1), vr(CG_ + 4 * j + 2)))
    for j in range(NL - 2, -1, -1):
        cfma(a, CG_ + 4 * j, CG_ + 4 * j + 4, L384, CG_ + 4 * j)
    H, Y = V.get(2), V.get(2)
    cmul(a, H, CG_, LQ96)
    for sw in ('v_permlane32_swap_b32', 'v_permlane16_swap_b32'):
        a('v_mov_b64 %s, %s' % (vr(Y, 2), vr(H, 2)))
        a('%s %s, %s' % (sw, vr(H), vr(Y)))
        a('%s %s, %s' % (sw, vr(H + 1), vr(Y + 1)))
        a('v_pk_add_f32 %s, %s, %s' % (vr(H, 2), vr(H, 2), vr(Y, 2)))
    cfma(a, PQ, H, LQ24, PQ)
    cfma(a, EA, PQ, L12, EA)
    a('v_mov_b32 %s, %s' % (vr(H), vr(PQ)))
    a('v_mov_b32 %s, %s' % (vr(H + 1), vr(EA)))
    a('v_mov_b32 %s, %s' % (vr(Y), vr(PQ + 1)))
    a('v_mov_b32 %s, %s' % (vr(Y + 1), vr(EA + 1)))
    pr, pi = H, Y
    PK = V.get(4)
    HO = CG_
    tk = None
    for j in range(NJ):
        step(re(j), im(j), pr, pi, re(j), im(j))
        pr, pi = re(j), im(j)
        pk = PK + (j & 1) * 2
        for hf in range(2):
            a('v_cvt_pk_bf16_f32 %s, %s, %s' % (vr(pk + hf), vr(re(j) + hf), vr(im(j) + hf)))
        tk = a.mem('ds_write_b32 %s, %s offset:%d' % (vr(V_HW), vr(pk), (j >> 1) * 1024 + (j & 1) * 128),
                   'ds_write_b32 %s, %s offset:%d' % (vr(V_HW), vr(pk + 1), (j >> 1) * 1024 + (j & 1) * 128 + 64))
        if j & 1:
            a('ds_read_b128 %s, %s offset:%d' % (vr(HO + 4 * (j >> 1), 4), vr(V_HR), (j >> 1) * 1024))
        elif x2 is not None and j < 10:
            x2(a)
    a('s_mul_i32 %s, %s, 216' % (sr(S_T0), sr(S_RB)))
    a('s_add_u32 %s, %s, %s' % (sr(S_T0), sr(S_T0), sr(S_PT)))
    a('s_lshl_b32 %s, %s, 10' % (sr(S_T0), sr(S_T0)))
    txt = []
    for i in range(MT):
        txt.append('s_add_u32 %s, %s, %d' % (sr(S_T1), sr(S_T0), WS_H + layer * H_SZ + i * 36864))
        txt.append('buffer_store_dwordx4 %s, %s, %s, %s offen {P}' % (vr(HO + 4 * i, 4), vr(V_L16), sr(R_WS, 4), sr(S_T1)))
    if OPT['fine']:
        stamp(a, 'pass2')
    tk = dual(a, txt, touch=[vr(HO, 24)])
    a('s_lshl2_add_u32 %s, %s, %s' % (sr(S_T0), sr(S_RB), sr(S_WAVE)))
    a('s_lshl4_add_u32 %s, %s, %s' % (sr(S_T0), sr(S_T0), sr(S_CG)))
    a('s_lshl_b32 %s, %s, 2' % (sr(S_T0), sr(S_T0)))
    a('s_add_u32 %s, %s, %d' % (sr(S_T0), sr(S_T0), WS_HF + layer * NRB * 256))
    return tk, [(EA, 2), (F, 2), (H, 2), (Y, 2), (PK, 4), (CG_, 4 * NL), (ACC, 48)]


def mid0(a, mk):
    put((BASE, 24))
    sd, s2, lr, ks = Stream(), Stream(), Stream(), Stream()
    for idx in range(NCP0, OPT['ncp']):
        cp_load(sd, idx // 4, idx % 4)
    mk(s2)
    with V.borrow(*HOMES):
        kv_main(lr, kvm, ks)
    lr = weave(lr, sd, 0.0, 1.0)
    lr = weave(lr, s2, 0.55, 0.75)
    for i_, p_ in enumerate(split(lr, 8)):
        a.extend(p_)
        if OPT['fine'] > 1:
            stamp(a, 'kq%d' % i_)
    if OPT['fine']:
        stamp(a, 'kvcore')
    a.extend(ks)
    V.claim(WCV, 32)
    conv_u_prep(a, cv)
    stamp(a, 'kv')
    return None


def ln_rest0_plain(r, P):
    b, tmp = V.get(2), V.get(4)
    for i in range(MT):
        x = BASE + 4 * i
        k_, lane = tile_src(i)
        for e in range(2):
            r('v_mov_b32_dpp %s, %s row_newbcast:%d row_mask:0xf bank_mask:0xf' % (vr(b + e), vr(P + 2 * k_ + e), lane))
        for k in range(2):
            r('v_lshlrev_b32 %s, 16, %s' % (vr(x + 2 * k), vr(XS + 2 * i + k)))
            r('v_and_b32 %s, 0xffff0000, %s' % (vr(x + 2 * k + 1), vr(XS + 2 * i + k)))
        for k in range(4):
            r('v_sub_f32 %s, %s, %s' % (vr(x + k), vr(x + k), vr(b)))
        for k in range(2):
            r('v_cvt_pk_bf16_f32 %s, %s, %s' % (vr(tmp + 2 * k), vr(x + 2 * k), vr(x + 2 * k + 1)))
        for rep in range(3):
            for k in range(2):
                r('v_and_b32 %s, 0xffff0000, %s' % (vr(tmp + 2 * k + 1), vr(tmp + 2 * k)))
                r('v_lshlrev_b32 %s, 16, %s' % (vr(tmp + 2 * k), vr(tmp + 2 * k)))
            for k in range(4):
                if rep == 0:
                    r('v_mul_f32 %s, %s, %s' % (vr(tmp + k), vr(tmp + k), vr(b + 1)))
                elif rep == 1:
                    r('v_mul_f32 %s, %s, %s' % (vr(tmp + k), vr(tmp + k), vr(V_DSK + k)))
                else:
                    r('v_add_f32 %s, %s, %s' % (vr(x + k), vr(x + k), vr(tmp + k)))
            if rep < 2:
                for k in range(2):
                    r('v_cvt_pk_bf16_f32 %s, %s, %s' % (vr(tmp + 2 * k), vr(tmp + 2 * k), vr(tmp + 2 * k + 1)))
    return [(b, 2), (tmp, 4), (P, 4), (XS, 12)]


def hflag_prep(s, layer):
    fa, fv = V.get(), V.get()
    s('s_lshl2_add_u32 %s, %s, %s' % (sr(S_T1), sr(S_RB), sr(S_WAVE)),
      's_lshl_b32 %s, %s, 6' % (sr(S_T1), sr(S_T1)),
      's_add_u32 %s, %s, %d' % (sr(S_T1), sr(S_T1), WS_HF + layer * NRB * 256),
      'v_lshl_add_u32 %s, %s, 2, %s' % (vr(fa), vr(V_N), sr(S_T1)))
    s('v_cmp_gt_u32 vcc, 9, %s' % vr(V_N),
      'v_cndmask_b32 %s, %s, %s, vcc' % (vr(fa), vr(V_OOB), vr(fa)))
    s('s_mul_i32 %s, %s, 216' % (sr(S_T1), sr(S_RB)),
      's_add_u32 %s, %s, %s' % (sr(S_T1), sr(S_T1), sr(S_WAVE)),
      's_lshl_b32 %s, %s, 10' % (sr(S_T1), sr(S_T1)),
      's_add_u32 %s, %s, %d' % (sr(S_HB), sr(S_T1), WS_H + layer * H_SZ))
    fl = 'buffer_load_dword %s, %s, %s, 0 offen sc1' % (vr(fv), vr(fa), sr(R_WS, 4))
    return fa, fv, fl


def hload_next(st, reg):
    st('buffer_load_dwordx4 %s, %s, %s, %s offen sc1' % (vr(reg, 4), vr(V_L16), sr(R_WS, 4), sr(S_HB)),
       's_add_u32 %s, %s, 4096' % (sr(S_HB), sr(S_HB)))


cpn = [0, OPT['ncp']]


def cpx(which, lim):
    def f(st):
        if cpn[which] < lim:
            cp_load(st, cpn[which] // 4, cpn[which] % 4)
            cpn[which] += 1
    return f


htk, hrel = scan_phase(a, 0, ACC, AF, mid0, cpx(0, NCP0), cpx(1, OPT['ncp2']))
assert cpn == [NCP0, OPT['ncp2']]
put(*hrel)
a('s_mov_b32 %s, %s' % (sr(S_C), sr(S_T0)))
for l_ in cv.uloads:
    a(l_)
for r_ in range(BASE, BASE + 24):
    V.free.remove(r_)
V.claim(V_PW, 4)
t = V.get()
a('v_mul_u32_u24 %s, %d, %s' % (vr(V_PW), PART_ROW, vr(V_N)))
a('v_lshl_add_u32 %s, %s, 4, %s' % (vr(V_PW), vr(V_Q), vr(V_PW)))
a('s_mul_i32 %s, %s, %d' % (sr(S_T0), sr(S_WAVE), PART_W))
a('v_add_u32 %s, %s, %s' % (vr(V_PW), sr(S_T0), vr(V_PW)))
a('s_lshl_b32 %s, %s, 2' % (sr(S_T0), sr(S_WAVE)))
a('v_add_u32 %s, %s, %s' % (vr(t), sr(S_T0), vr(V_Q)))
a('v_mul_u32_u24 %s, %d, %s' % (vr(V_PR), PART_ROW, vr(t)))
a('v_lshl_add_u32 %s, %s, 4, %s' % (vr(V_PR), vr(V_N), vr(V_PR)))
PH = 12 * PART_W
a('v_add_u32 %s, %d, %s' % (vr(V_PW2), PH, vr(V_PW)))
a('v_add_u32 %s, %d, %s' % (vr(V_PR2), PH, vr(V_PR)))
put(t)
a('s_barrier')
if OPT['fine']:
    stamp(a, 'ubar')
hf = Stream()
hf.wait(htk)
dual(hf, flag_texts(sr(S_C), '{P}'))
stamp(hf, 'h_pub0')
sd, lr = Stream(), Stream()
for idx in range(OPT['ncp2'], 36):
    cp_load(sd, idx // 4, idx % 4)
hfa, hfv, hfl = hflag_prep(sd, 0)
sd(hfl)
lrel = ln_rest0_plain(lr, LNP0)
HB0 = []


def last0(m, reg):
    if reg is None:
        poll(m, [hfl], [(hfv, None, V_EXP9)], pre_issued=True)
    else:
        HB0.append(reg)
        hload_next(m, reg)


conv_body(a, cv, [sd, lr], True, hf, True, last0)
put(*lrel)
put(hfa, hfv)


def g_fetch_streams():
    s1, s2 = Stream(), Stream()
    fa, u, u2 = V.get(), V.get(), V.get()
    D = V.get(16)
    s1('v_lshrrev_b32 %s, 3, %s' % (vr(fa), vr(V_LANE)))
    s1('v_mul_u32_u24 %s, %d, %s' % (vr(fa), G_STR - 128, vr(fa)))
    s1('s_mul_i32 %s, %s, %d' % (sr(S_T1), sr(S_CG), 32 * G_STR),
       's_lshl2_add_u32 %s, %s, %s' % (sr(S_T2), sr(S_RB), sr(S_WAVE)),
       's_lshl_b32 %s, %s, 7' % (sr(S_T2), sr(S_T2)),
       's_add_u32 %s, %s, %s' % (sr(S_T1), sr(S_T1), sr(S_T2)),
       's_add_u32 %s, %s, %d' % (sr(S_T1), sr(S_T1), WS_G),
       'v_add3_u32 %s, %s, %s, %s' % (vr(fa), vr(fa), vr(V_L16), sr(S_T1)))
    loads = []
    for i in range(4):
        loads.append('s_mov_b32 %s, %d' % (sr(S_T1), 8 * i * G_STR))
        loads.append('buffer_load_dwordx4 %s, %s, %s, %s offen sc1' % (vr(D + 4 * i, 4), vr(fa), sr(R_WS, 4), sr(S_T1)))
    for i in range(4):
        s1(loads[2 * i], loads[2 * i + 1])
    s1('v_and_b32 %s, 1, %s' % (vr(u), vr(V_Q)))
    s1('v_lshlrev_b32 %s, 6, %s' % (vr(u), vr(u)))
    s1('v_mul_u32_u24 %s, 272, %s' % (vr(u2), vr(V_N)))
    s1('v_add3_u32 %s, %s, %s, %s' % (vr(u), vr(u), vr(u2), sr(S_RINGW)))
    s1('v_lshrrev_b32 %s, 1, %s' % (vr(u2), vr(V_Q)))
    s1('v_lshl_add_u32 %s, %s, 2, %s' % (vr(u), vr(u2), vr(u)))
    s1('v_lshl_add_u32 %s, %s, 2, %s' % (vr(u2), vr(u2), vr(u)))
    poll(s2, loads, [(D + 3, D + 7, V_TAG), (D + 11, D + 15, V_TAG)], pre_issued=True, sleep=4)
    s2('v_lshlrev_b32 %s, 4, %s' % (vr(fa), vr(V_Q)))
    s2('v_add3_u32 %s, %s, %s, %s' % (vr(fa), vr(fa), vr(V_L16), sr(S_RINGW)))
    for i in range(4):
        s2('ds_write_b128 %s, %s offset:%d' % (vr(fa), vr(D + 4 * i, 4), 1088 * i))
    for i, o in enumerate((0, 2, 5, 8, 10, 13)):
        s2('ds_read2_b32 %s, %s offset0:%d offset1:%d' % (vr(GP + 2 * i, 2), vr(u2 if i in (1, 4) else u), o, 32 + o))
    return s1, s2, [fa, u, u2, (D, 16)]


def gemm_c(a, layer, HB=None):
    NF = 16
    if HB is None:
        a.extend(hq)
        poll(a, [hfl], [(hfv, None, V_EXP9)], pre_issued=True)
        stamp(a, 'h_flag%d' % layer)
        put(hfa, hfv)
        HB = [V.get(4, top=True) for _ in range(NF)]
        for f in range(NF):
            hload_next(a, HB[f])
    CA = [V.get(4, top=True) for _ in range(8)]
    hb = lambda i, s: HB[(i * 9 + s) % NF]
    slot = lambda i: (i + 4) % 6

    def pwrite(st, i, js=range(4)):
        for j in js:
            tk = st.mem('ds_write_b128 %s, %s offset:%d' % (vr(V_PW if slot(i) < 3 else V_PW2), vr(CA[(i & 1) * 4 + j], 4),
                                                            L_IMG + (slot(i) % 3) * 4 * PART_W + j * 64))
        return tk

    def preduce(st, i, P):
        for w in range(4):
            st('ds_read_b128 %s, %s offset:%d' % (vr(P[w], 4), vr(V_PR if slot(i) < 3 else V_PR2), L_IMG + ((slot(i) % 3) * 4 + w) * PART_W))

    def padd(st, i, P, pk):
        x = BASE + 4 * i
        if pk:
            for k in range(2):
                st('v_pk_add_f32 %s, %s, %s' % (vr(P[0] + 2 * k, 2), vr(P[0] + 2 * k, 2), vr(P[1] + 2 * k, 2)))
                st('v_pk_add_f32 %s, %s, %s' % (vr(P[2] + 2 * k, 2), vr(P[2] + 2 * k, 2), vr(P[3] + 2 * k, 2)))
                st('v_pk_add_f32 %s, %s, %s' % (vr(x + 2 * k, 2), vr(x + 2 * k, 2), vr(P[0] + 2 * k, 2)))
                st('v_pk_add_f32 %s, %s, %s' % (vr(x + 2 * k, 2), vr(x + 2 * k, 2), vr(P[2] + 2 * k, 2)))
        else:
            for w in range(4):
                for k in range(4):
                    st('v_add_f32 %s, %s, %s' % (vr(x + k), vr(x + k), vr(P[w] + k)))

    sc = Sched(a)
    qp, qs = sc.add(Stream()), sc.add(Stream())
    if layer == 0:
        a.wait(cv.stk)
        cf_ = Stream()
        with V.borrow((GP, 12)):
            frel = conv_final(cf_, cv)
        qs.extend(cf_.groups)
        put(*frel)
    a('s_barrier')
    S, Q = V.get(6, 1), V.get(6, 1)
    PT = [V.get(4) for _ in range(4)]
    tk = None
    for i in range(MT):
        m = Stream()
        for s in range(9):
            for j in range(4):
                ca = CA[(i & 1) * 4 + j]
                m('v_mfma_f32_16x16x32_bf16 %s, %s, %s, %s' % (vr(ca, 4), WC(s, j), vr(hb(i, s), 4), '0' if s == 0 else vr(ca, 4)))
                if j == 0 and s < 8:
                    m.touch(vr(hb(i, s + 1), 4))
            if i * 9 + s + NF < 9 * MT:
                hload_next(m, hb(i, s))
        if i in (3, 5):
            print('gemm_c leftover before barrier', sc.pending())
            sc.flush()
            a.wait(tk)
            a('s_barrier')
            sd = Stream()
            for ti in (i - 3, i - 2):
                preduce(sd, ti, PT)
                padd(sd, ti, PT, False)
                stats_partial(sd, BASE, S, Q, ti, None, False)
            qs.extend(sd.groups)
        if i > 0:
            pw = Stream()
            tk = pwrite(pw, i - 1)
            qp.extend(pw.groups)
        sc.run(m)
        sc.flush(qp)
        if OPT['fine']:
            stamp(a, 'c%d_t%d' % (layer, i))
    print('gemm_c leftover', sc.pending(), 'model time', sc.t)
    sc.flush()
    put(*[(r, 4) for r in PT + HB[8:]])
    gs = None
    if layer == 0:
        V.claim(GP, 12)
        gs = g_fetch_streams()
        a.extend(gs[0])
    tk = pwrite(a, MT - 1)
    a.wait(tk)
    a('s_barrier')
    stamp(a, 'gemmC%d' % layer)
    for ti in (4, 5):
        preduce(a, ti, HB[(ti - 4) * 4:(ti - 4) * 4 + 4])
    for ti in (4, 5):
        padd(a, ti, HB[(ti - 4) * 4:(ti - 4) * 4 + 4], True)
    put(*[(r, 4) for r in CA + HB[:8]])
    return S, Q, gs


def gate(a, which, final, SQ):
    stats_publish(a, BASE, which, True, SQ=SQ[:2], tiles=(4, 5))
    stamp(a, 'st_pub%d' % which)
    if SQ[2] is not None:
        a.extend(SQ[2][1])
        put(*SQ[2][2])
    GU = V.get(24)
    for i in range(MT):
        for j in range(2):
            a('v_lshlrev_b32 %s, 16, %s' % (vr(GU + 4 * i + 2 * j), vr(GP + 2 * i + j)))
            a('v_and_b32 %s, 0xffff0000, %s' % (vr(GU + 4 * i + 2 * j + 1), vr(GP + 2 * i + j)))
    G = V.get(24)
    ex = stats_exp(a, which)
    poll(a, stats_loads(which, G), [(G + 4 * i + 1, G + 4 * i + 3, ex) for i in range(MT)])
    put(ex)
    stamp(a, 'st_got%d' % which)
    P = stats_finish(a, G)
    for k in range(2):
        a('v_add_f32 %s, 0x3727c5ac, %s' % (vr(P + 2 * k + 1), vr(P + 2 * k + 1)))
    for k in range(2):
        a('v_rsq_f32 %s, %s' % (vr(P + 2 * k + 1), vr(P + 2 * k + 1)))
    for k in range(2):
        a('v_add_f32 %s, %s, %s' % (vr(OFF + k), vr(OFF + k), vr(P + 2 * k)))
    B = G
    for i in range(MT):
        bcast(a, B + 4 * i, P, i)
        if final:
            k_, lane = tile_src(i)
            a('v_mov_b32_dpp %s, %s row_newbcast:%d row_mask:0xf bank_mask:0xf' % (vr(B + 4 * i + 2), vr(OFF + k_), lane))
    for i in range(MT):
        x, g, b = BASE + 4 * i, GU + 4 * i, B + 4 * i
        for k in range(2):
            a('v_pk_add_f32 %s, %s, %s op_sel:[0,0] op_sel_hi:[1,0] neg_lo:[0,1] neg_hi:[0,1]' % (vr(x + 2 * k, 2), vr(x + 2 * k, 2), vr(b, 2)))
            a('v_pk_fma_f32 %s, %s, %s, 1.0 op_sel:[0,1,0] op_sel_hi:[1,1,0]' % (vr(g + 2 * k, 2), vr(g + 2 * k, 2), vr(b, 2)))
        for k in range(2):
            if final:
                a('v_pk_fma_f32 %s, %s, %s, %s op_sel:[0,0,0] op_sel_hi:[1,1,0]' % (vr(x + 2 * k, 2), vr(x + 2 * k, 2), vr(g + 2 * k, 2), vr(b + 2, 2)))
            else:
                a('v_pk_mul_f32 %s, %s, %s' % (vr(x + 2 * k, 2), vr(x + 2 * k, 2), vr(g + 2 * k, 2)))
        if final:
            a('s_movk_i32 %s, %d' % (sr(S_T0), 4608 * i),
              'buffer_store_dwordx4 %s, %s, %s, %s offen' % (vr(x, 4), vr(V_OROW), sr(R_OUT, 4), sr(S_T0)))
    put((GU, 24), (G, 24), (P, 4))


SQ_ = gemm_c(a, 0, HB0)
gate(a, 1, False, SQ_)
WP = V.get(12, 2)
for i in range(MT):
    for k in range(2):
        a('v_cvt_pk_bf16_f32 %s, %s, %s' % (vr(WP + 2 * i + k), vr(BASE + 4 * i + 2 * k), vr(BASE + 4 * i + 2 * k + 1)))
a('s_mul_i32 %s, %s, 18' % (sr(S_T0), sr(S_RB)))
a('s_add_u32 %s, %s, %s' % (sr(S_T0), sr(S_T0), sr(S_CG)))
a('s_mul_i32 %s, %s, %d' % (sr(S_T0), sr(S_T0), BLK))
a('s_add_u32 %s, %s, %d' % (sr(S_T0), sr(S_T0), WS_H))
a('s_add_u32 %s, %s, 4096' % (sr(S_T1), sr(S_T0)))
a('s_add_u32 %s, %s, 8192' % (sr(S_T2), sr(S_T0)))
wtk_ = dual(a, ['buffer_store_dwordx2 %s, %s, %s, %s offen offset:%d {P}' %
                (vr(WP + 2 * i, 2), vr(V_WA), sr(R_WS, 4), sr((S_T0, S_T1, S_T2)[i >> 1]), (i & 1) * 2048) for i in range(MT)])
stats_publish(a, BASE, 2, True)
V_DX = V.get(3, 1)
a('s_mul_i32 %s, %s, %d' % (sr(S_T0), sr(S_RB), 18 * BLK))
a('s_add_u32 %s, %s, %d' % (sr(S_T0), sr(S_T0), WS_H))
a('s_add_u32 %s, %s, %s' % (sr(S_T0), sr(S_T0), sr(S_W1K)))
a('v_add_u32 %s, %s, %s' % (vr(V_DX), sr(S_T0), vr(V_L16)))
a('v_add_u32 %s, 4096, %s' % (vr(V_DX + 1), vr(V_DX)))
a('v_add_u32 %s, 8192, %s' % (vr(V_DX + 2), vr(V_DX)))
for s in range(9):
    a('s_mul_i32 %s, %s, 96' % (sr(S_TT + s), sr(S_KP + s)))
fa, fe, fv = V.get(), V.get(), V.get()
a('s_lshl_b32 %s, %s, 8' % (sr(S_T1), sr(S_RB)))
a('s_add_u32 %s, %s, %d' % (sr(S_T1), sr(S_T1), WS_WF))
a('v_lshl_add_u32 %s, %s, 2, %s' % (vr(fa), vr(V_LANE), sr(S_T1)))
a('v_cmp_gt_u32 vcc, 36, %s' % vr(V_LANE),
  'v_cndmask_b32 %s, %s, %s, vcc' % (vr(fa), vr(V_OOB), vr(fa)),
  'v_cndmask_b32 %s, 0, %s, vcc' % (vr(fe), vr(V_TAG)))
a('s_lshl2_add_u32 %s, %s, %s' % (sr(S_T0), sr(S_PT), sr(S_T1)))
a.wait(wtk_)
dual(a, flag_texts(sr(S_T0), '{P}'))
stamp(a, 'w_pub')
put((WP, 12))

ACC = V.get(48, top=True)
AF = V.get(48, top=True)
poll(a, ['buffer_load_dword %s, %s, %s, 0 offen sc1' % (vr(fv), vr(fa), sr(R_WS, 4))], [(fv, None, fe)])
stamp(a, 'w_flag')
put(fa, fe, fv)
pre = {k: Stream() for k in range(18)}
side = {k: Stream() for k in range(18)}
wtk = {}
for blk in range(4):
    wtk[blk] = x_dma(a, blk, 1)
vm2 = {k: Stream() for k in range(18)}
for blk in range(4, 9):
    wtk[blk] = x_dma(vm2[0], blk, 1)
G2 = V.get(24)
gl2 = stats_loads(2, G2)
for i in range(0, 12, 2):
    vm2[0](gl2[i], gl2[i + 1])
ex2 = stats_exp(side[0], 2)
poll(pre[10], gl2, [(G2 + 4 * i + 1, G2 + 4 * i + 3, ex2) for i in range(MT)], pre_issued=True)
put(ex2)
ttk2, LNP1 = ln_table(side[10], 1, G2, None)
pre[15].wait(ttk2)
dual(vm2[12], ['s_lshl_b32 %s, %s, 6' % (sr(S_T0), sr(S_RB)),
               's_add_u32 %s, %s, %s' % (sr(S_T0), sr(S_T0), sr(S_CG)),
               's_lshl_b32 %s, %s, 2' % (sr(S_T0), sr(S_T0)),
               's_add_u32 %s, %s, %d' % (sr(S_T0), sr(S_T0), WS_WF + 160)] + flag_texts(sr(S_T0), '{P}'))
gemm_b(a, ACC, AF, lambda s: wtk[s], pre, side, vm=vm2)
put((V_DX, 3))
stamp(a, 'gemmB2')


def mid1(a, mk):
    da, dv = V.get(), V.get()
    a('s_lshl_b32 %s, %s, 8' % (sr(S_T1), sr(S_RB)))
    a('s_add_u32 %s, %s, %d' % (sr(S_T1), sr(S_T1), WS_WF + 160))
    a('v_lshl_add_u32 %s, %s, 2, %s' % (vr(da), vr(V_N), sr(S_T1)))
    a('v_cmp_gt_u32 vcc, 9, %s' % vr(V_N), 'v_cndmask_b32 %s, %s, %s, vcc' % (vr(da), vr(V_OOB), vr(da)))
    dl = 'buffer_load_dword %s, %s, %s, 0 offen sc1' % (vr(dv), vr(da), sr(R_WS, 4))
    a(dl)
    ln_rest(a, 1, LNP1)
    mk(a)
    poll(a, [dl], [(dv, None, V_EXP9)], pre_issued=True)
    put(da, dv)
    return None


htk, hrel = scan_phase(a, 1, ACC, AF, mid1)
put(*hrel)
hfa, hfv, hfl = hflag_prep(a, 1)
hq = Stream()
hq(hfl)
a.wait(htk)
dual(a, flag_texts(sr(S_T0), '{P}'))
stamp(a, 'h_pub1')
a('s_lshl2_add_u32 %s, %s, %s' % (sr(S_T0), sr(S_L), sr(S_WAVE)))
a('s_cmp_lg_u32 %s, %d' % (sr(S_T0), (NRB - 1) * 9 * 4))
a('s_cselect_b64 exec, 0, 1',
  'buffer_store_dword %s, %s, %s, 0 offen sc1' % (vr(V_TAG), vr(V_ZERO), sr(R_WS, 4)),
  's_mov_b64 exec, -1')
SQ_ = gemm_c(a, 1)
gate(a, 3, True, SQ_)
stamp(a, 'out')
a('s_branch L_fin')

a.fence()
a.label('L_aux')
V.free = set(range(NCOMMON, 256))
V.locked = set()
a('s_waitcnt lgkmcnt(0)')
a('s_load_dword %s, %s, 0' % (sr(S_TAG), sr(P_WS, 2)))
srd(a, R_WS, P_WS, WS_SIZE)
a('s_sub_u32 %s, %s, %d' % (sr(S_RB), sr(S_L), NMAIN))
S_AW, S_KC_, S_CGK, S_KP2, S_DG, S_SCR, S_AW2 = [S_KP + i for i in range(7)]
a('s_mul_i32 %s, %s, 58' % (sr(S_AW2), sr(S_WAVE)))
a('s_add_u32 %s, %s, %s' % (sr(S_AW2), sr(S_AW2), sr(S_RB)))
a('s_lshl2_add_u32 %s, %s, %s' % (sr(S_AW), sr(S_RB), sr(S_WAVE)))
a('s_mul_i32 %s, %s, 57' % (sr(S_T0), sr(S_AW)))
a('s_lshr_b32 %s, %s, 10' % (sr(S_DG), sr(S_T0)))
a('s_mul_i32 %s, %s, 171' % (sr(S_KC_), sr(S_AW2)))
a('s_lshr_b32 %s, %s, 9' % (sr(S_KC_), sr(S_KC_)))
a('s_mul_i32 %s, %s, 18' % (sr(S_T1), sr(S_DG)))
a('s_sub_u32 %s, %s, %s' % (sr(S_KP2), sr(S_AW), sr(S_T1)))
a('s_mul_i32 %s, %s, 3' % (sr(S_T1), sr(S_KC_)))
a('s_sub_u32 %s, %s, %s' % (sr(S_CGK), sr(S_AW2), sr(S_T1)))
a('s_add_u32 %s, %s, 6' % (sr(S_CGK), sr(S_CGK)))
srd(a, R_BRE, P_CRE, 576 * 1152)
srd(a, R_BIM, P_CIM, 576 * 1152)
dp, gm, vc, t, t2 = [V.get() for _ in range(5)]
a('v_and_b32 %s, 31, %s' % (vr(dp), vr(V_LANE)))
a('s_lshl_b32 %s, %s, 6' % (sr(S_T0), sr(S_KP2)))
a('v_lshl_add_u32 %s, %s, 1, %s' % (vr(t2), vr(dp), sr(S_T0)))
LT = lam_loads(a, t2)
CL = V.get(24)
a('v_lshrrev_b32 %s, 2, %s' % (vr(vc), vr(V_LANE)))
a('v_mul_u32_u24 %s, 1152, %s' % (vr(vc), vr(vc)))
a('v_and_b32 %s, 3, %s' % (vr(gm), vr(V_LANE)))
a('v_lshl_add_u32 %s, %s, 4, %s' % (vr(vc), vr(gm), vr(vc)))
a('s_mul_i32 %s, %s, %d' % (sr(S_T1), sr(S_DG), 48 * 1152))
a('s_add_u32 %s, %s, %s' % (sr(S_T1), sr(S_T1), sr(S_T0)))
for u in range(3):
    a('s_add_u32 %s, %s, %d' % (sr(S_T2), sr(S_T1), u * 16 * 1152),
      'buffer_load_dwordx4 %s, %s, %s, %s offen nt' % (vr(CL + 8 * u, 4), vr(vc), sr(R_BRE, 4), sr(S_T2)),
      'buffer_load_dwordx4 %s, %s, %s, %s offen nt' % (vr(CL + 8 * u + 4, 4), vr(vc), sr(R_BIM, 4), sr(S_T2)))
a('s_lshl2_add_u32 %s, %s, %s' % (sr(S_T1), sr(S_RB), sr(S_WAVE)))
a('s_mul_i32 %s, %s, 2880' % (sr(S_T1), sr(S_T1)))
a('v_min_u32 %s, 22, %s' % (vr(V_TAG), vr(V_LANE)))
a('v_lshl_add_u32 %s, %s, 7, %s' % (vr(V_TAG), vr(V_TAG), sr(S_T1)))
a('v_min_u32 %s, %d, %s' % (vr(V_TAG), 576 * 1152 - 4, vr(V_TAG)))
a('global_load_dword %s, %s, %s ;junk' % (vr(V_JUNK), vr(V_TAG), sr(P_BRE, 2)))
a('global_load_dword %s, %s, %s ;junk' % (vr(V_JUNK), vr(V_TAG), sr(P_BIM, 2)))
srd(a, R_K, P_K, 2048 * 1152)
srd(a, R_V, P_V, 2048 * 1152)
sg, vk, vh, ka = [V.get() for _ in range(4)]
a('v_lshrrev_b32 %s, 5, %s' % (vr(sg), vr(V_LANE)))
a('s_mul_i32 %s, %s, %d' % (sr(S_T0), sr(S_KC_), 48 * 1152))
a('s_lshl_b32 %s, %s, 7' % (sr(S_T1), sr(S_CGK)))
a('s_add_u32 %s, %s, %s' % (sr(S_T0), sr(S_T0), sr(S_T1)))
a('v_mul_u32_u24 %s, %d, %s' % (vr(vk), 24 * 1152, vr(sg)))
a('v_lshl_add_u32 %s, %s, 2, %s' % (vr(vk), vr(dp), vr(vk)))
a('v_add_u32 %s, %s, %s' % (vr(vk), sr(S_T0), vr(vk)))
a('v_subrev_u32 %s, %d, %s' % (vr(vh), 3 * 1152, vr(vk)))
SHK = V.get(4)
a('s_lshl_b32 %s, %s, 9' % (sr(S_T1), sr(S_CGK)))
a('v_lshl_add_u32 %s, %s, 4, %s' % (vr(t), vr(dp), sr(S_T1)))
a('global_load_dwordx4 %s, %s, %s' % (vr(SHK, 4), vr(t), sr(P_SHK, 2)))
KR, VR = V.get(27, 1), V.get(24, 1)
ld = Stream()
for j in range(3):
    ld('buffer_load_dword %s, %s, %s, 0 offen offset:%d nt' % (vr(KR + j), vr(vh), sr(R_K, 4), 1152 * j))
for j3 in range(8):
    ld('s_mov_b32 %s, %d' % (sr(S_C), 3456 * j3),
       *['buffer_load_dword %s, %s, %s, %s offen offset:%d nt' % (vr(base + 3 * j3 + jj), vr(vk), sr(rr, 4), sr(S_C), 1152 * jj)
         for jj in range(3) for (base, rr) in ((KR + 3, R_K), (VR, R_V))])
ldp = split(ld, 2)
astamp(a, 4)
a('s_waitcnt lgkmcnt(0)')
astamp(a, 5)
tag_ready(a)
cs = Stream()
cs('s_mul_i32 %s, %s, 8192' % (sr(S_SCR), sr(S_WAVE)), 's_add_u32 %s, %s, %d' % (sr(S_SCR), sr(S_SCR), 65536))
_, COEF = lam_compute(cs, LT, True)
cs('v_add_f32 %s, %s, %s' % (vr(COEF), vr(COEF), vr(COEF)))
cs('v_add_f32 %s, %s, %s' % (vr(COEF + 1), vr(COEF + 1), vr(COEF + 1)))
cs('v_lshl_add_u32 %s, %s, 3, %s' % (vr(t), vr(dp), sr(S_SCR)))
cs('ds_write_b64 %s, %s offset:6144' % (vr(t), vr(COEF, 2)))
cs('v_lshl_add_u32 %s, %s, 6, %s' % (vr(t), vr(gm), sr(S_SCR)))
CF = V.get(16)
for k in range(4):
    cs('ds_read_b128 %s, %s offset:%d' % (vr(CF + 4 * k, 4), vr(t), 6144 + 16 * k))
wa, ra = V.get(), V.get()
cs('v_lshrrev_b32 %s, 2, %s' % (vr(t), vr(V_LANE)))
cs('v_lshlrev_b32 %s, 4, %s' % (vr(t), vr(t)))
cs('v_lshl_add_u32 %s, %s, 9, %s' % (vr(wa), vr(gm), vr(t)))
cs('v_add_u32 %s, %s, %s' % (vr(wa), sr(S_SCR), vr(wa)))
cs('v_add_u32 %s, %s, %s' % (vr(ra), sr(S_SCR), vr(V_L16)))
X = V.get(4)
O = V.get(8)
RD = V.get(24)
for u in range(3):
    for e in range(8):
        src = CL + 8 * u + (e >> 1)
        op = 'v_and_b32 %s, 0xffff0000, %s' if e & 1 else 'v_lshlrev_b32 %s, 16, %s'
        cs(op % (vr(X), vr(src)))
        cs(op % (vr(X + 1), vr(src + 4)))
        cmul(cs, X + 2, X, CF + 2 * e)
        cs('v_cvt_pk_bf16_f32 %s, %s, -%s' % (vr(O + e), vr(X + 2), vr(X + 3)))
    bo = u * 2048
    cs('ds_write_b128 %s, %s offset:%d' % (vr(wa), vr(O, 4), bo))
    cs('ds_write_b128 %s, %s offset:%d' % (vr(wa), vr(O + 4, 4), bo + 256))
    cs('ds_read_b128 %s, %s offset:%d' % (vr(RD + u * 8, 4), vr(ra), bo))
    cs('ds_read_b128 %s, %s offset:%d' % (vr(RD + u * 8 + 4, 4), vr(ra), bo + 1024))
a.weave(cs, ldp[0], 0.3, 0.95)
astamp(a, 6)
a('s_and_b32 %s, %s, 1' % (sr(S_T0), sr(S_KP2)))
a('s_mul_i32 %s, %s, %d' % (sr(S_T0), sr(S_T0), 2 * 37 * 1024))
a('s_lshr_b32 %s, %s, 1' % (sr(S_T1), sr(S_KP2)))
a('s_lshl_b32 %s, %s, 12' % (sr(S_T1), sr(S_T1)))
a('s_add_u32 %s, %s, %s' % (sr(S_T0), sr(S_T0), sr(S_T1)))
a('s_add_u32 %s, %s, %d' % (sr(S_T0), sr(S_T0), WS_CP))
a('s_cmp_lt_u32 %s, 216' % sr(S_AW))
a('s_cselect_b32 %s, %s, 0x%x' % (sr(S_T0), sr(S_T0), 0x40000000))
toks = []
for u in range(3):
    a('s_mul_i32 %s, %s, 3' % (sr(S_T1), sr(S_DG)))
    a('s_add_u32 %s, %s, %d' % (sr(S_T1), sr(S_T1), u))
    a('s_lshr_b32 %s, %s, 2' % (sr(S_T2), sr(S_T1)))
    a('s_mul_i32 %s, %s, %d' % (sr(S_T2), sr(S_T2), 4 * 37 * 1024))
    a('s_and_b32 %s, %s, 3' % (sr(S_T1), sr(S_T1)))
    a('s_lshl_b32 %s, %s, 10' % (sr(S_T1), sr(S_T1)))
    a('s_add_u32 %s, %s, %s' % (sr(S_T1), sr(S_T1), sr(S_T2)))
    a('s_add_u32 %s, %s, %s' % (sr(S_T1), sr(S_T1), sr(S_T0)))
    a('s_add_u32 %s, %s, %d' % (sr(S_T2), sr(S_T1), 37 * 1024))
    toks.append(a.mem('buffer_store_dwordx4 %s, %s, %s, %s offen sc1' % (vr(RD + u * 8, 4), vr(V_L16), sr(R_WS, 4), sr(S_T1))))
    toks.append(a.mem('buffer_store_dwordx4 %s, %s, %s, %s offen sc1' % (vr(RD + u * 8 + 4, 4), vr(V_L16), sr(R_WS, 4), sr(S_T2))))
a('s_nop 1')
put((CL, 24), (CF, 16), (X, 4), (O, 8), (RD, 24), wa, ra, (COEF, 2))
a.extend(ldp[1])
astamp(a, 7)
cf = Stream()
astamp(cf, 8)
cf.wait(*toks)
astamp(cf, 9)
cf('s_lshl_b32 %s, %s, 6' % (sr(S_T0), sr(S_AW)),
   's_add_u32 %s, %s, %d' % (sr(S_T0), sr(S_T0), WS_CPF), *flag_texts(sr(S_T0), 'sc1'))
a('v_sub_u32 %s, 1, %s' % (vr(sg), vr(sg)))
a('v_lshlrev_b32 %s, 6, %s' % (vr(sg), vr(sg)))
a('v_mul_u32_u24 %s, 272, %s' % (vr(ka), vr(dp)))
a('s_mul_i32 %s, %s, 8704' % (sr(S_SCR), sr(S_WAVE)))
a('v_add3_u32 %s, %s, %s, %s' % (vr(ka), vr(ka), vr(sg), sr(S_SCR)))
kc = Stream()
kv_core(kc, 12, lambda r: KR + 3 + r, lambda r: VR + r, SHK,
        lambda ch, un, reg: kc('ds_write_b128 %s, %s offset:%d' % (vr(ka), vr(reg, 4), ch * 128 + un * 16)),
        touch=lambda tp: kc.touch(vr(KR + 3 + 2 * tp, 6), vr(VR + 2 * tp, 6)) if tp % 3 == 0 else None)
cv = Conv()
conv_setup_k(cf, cv)
a.weave(kc, cf, 0.0, 0.5)
astamp(a, 10)
put((KR, 27), (VR, 24))
RD = V.get(32)
ra, ga = V.get(), V.get()
a('v_lshlrev_b32 %s, 4, %s' % (vr(ra), vr(V_Q)))
a('v_add3_u32 %s, %s, %s, %s' % (vr(ra), vr(ra), vr(V_L16), sr(S_SCR)))
for i in range(8):
    a('ds_read_b128 %s, %s offset:%d' % (vr(RD + 4 * i, 4), vr(ra), 1088 * i))
a('v_lshrrev_b32 %s, 3, %s' % (vr(ga), vr(V_LANE)))
a('v_mul_u32_u24 %s, %d, %s' % (vr(ga), KVT_STR - 128, vr(ga)))
a('v_add_u32 %s, %s, %s' % (vr(ga), vr(ga), vr(V_L16)))
a('s_mul_i32 %s, %s, %d' % (sr(S_T0), sr(S_CGK), 64 * KVT_STR))
a('s_sub_u32 %s, 43, %s' % (sr(S_T1), sr(S_KC_)))
a('s_lshl_b32 %s, %s, 7' % (sr(S_T1), sr(S_T1)))
a('s_add_u32 %s, %s, %s' % (sr(S_T0), sr(S_T0), sr(S_T1)))
a('s_cmp_lt_u32 %s, 132' % sr(S_AW2))
a('s_cselect_b32 %s, %s, 0x%x' % (sr(S_T2), sr(S_T0), 0x40000000))
for i in range(8):
    a('s_add_u32 %s, %s, %d' % (sr(S_T1), sr(S_T2), WS_KVT + 8 * i * KVT_STR),
      'buffer_store_dwordx4 %s, %s, %s, %s offen sc1' % (vr(RD + 4 * i, 4), vr(ga), sr(R_WS, 4), sr(S_T1)))
a('s_nop 1')
if OPT['stamps']:
    a('s_memtime %s' % sr(S_M2, 2), 's_waitcnt lgkmcnt(0)', 'v_writelane_b32 %s, %s, 1' % (vr(V_STAMP), sr(S_M2)))
keep_cv = cv
a('s_branch L_auxconv3')
a.fence()
a.label('L_auxconv2')
V.free = set(range(NCOMMON, 256))
V.locked = set()
sv = OPT['stamps']
OPT['stamps'] = 0
OPT['_sv'] = sv
cv = Conv()
a('s_barrier')
conv_setup_k(a, cv)
assert (cv.SD, cv.HD) == (keep_cv.SD, keep_cv.HD)
a.label('L_auxconv3')
a('s_barrier')
conv_u_prep(a, cv)
put(*conv_addr(a, cv))
conv_body(a, cv, pre_issued=False)
a.wait(cv.stk)
a('s_barrier')
conv_final(a, cv)
astamp(a, 13)
OPT['stamps'] = sv
if OPT['stamps']:
    a('s_memtime %s' % sr(S_M2, 2), 's_waitcnt lgkmcnt(0)', 's_cmp_eq_u32 %s, %s' % (sr(S_PAIR), sr(S_L)),
      's_cselect_b32 m0, 2, 3', 's_nop 3', 'v_writelane_b32 %s, %s, m0' % (vr(V_STAMP), sr(S_M2)))
a('s_add_u32 %s, %s, %d' % (sr(S_PAIR), sr(S_PAIR), NAUX))
a('s_cmp_lt_u32 %s, 288' % sr(S_PAIR))
a('s_cbranch_scc1 L_auxconv2')
a('s_branch L_fin')

a.fence()
a.extend(tail)

a.label('L_fin')
want = ['setup', 'lam', 'gemmB1', 'e_pub0', 'kv', 'carry0', 'h_pub0', 'conv_ld', 'conv_mm', 'gemmC0', 'st_got1', 'w_flag', 'gemmB2', 'carry1', 'gemmC1']
DBGSEL = [STAMPS.index(w_) for w_ in want if w_ in STAMPS] + [63]
if OPT['stamps']:
    a('s_waitcnt vmcnt(0) lgkmcnt(0)')
    a('%s %s' % ('s_memtime' if OPT['cyc'] else 's_memrealtime', sr(S_M2, 2)))
    a('s_waitcnt lgkmcnt(0)')
    a('v_writelane_b32 %s, %s, 63' % (vr(V_STAMP), sr(S_M2)))
    a('v_writelane_b32 %s, %s, 62' % (vr(V_STAMP), sr(S_FAST)))
    a('s_lshl_b32 %s, %s, 10' % (sr(S_T0), sr(S_L)))
    a('s_add_u32 %s, %s, %d' % (sr(S_T0), sr(S_T0), WS_DBG))
    a('v_lshlrev_b32 %s, 2, v0' % vr(V_DUMMY))
    a('buffer_store_dword %s, %s, %s, %s offen' % (vr(V_STAMP), vr(V_DUMMY), sr(R_WS, 4), sr(S_T0)))
if OPT['dbgout'] >= 0:
    a('s_load_dwordx2 s[8:9], s[0:1], 128')
    a('s_lshl2_add_u32 %s, %s, %s' % (sr(S_T0), sr(S_L), sr(S_WAVE)))
    a('s_cmp_lg_u32 %s, %d' % (sr(S_T0), OPT['dbgout'] * 4))
    a('s_cbranch_scc1 L_end')
    a('s_waitcnt lgkmcnt(0)')
    if OPT['holdto']:
        a('v_readlane_b32 s12, %s, 0' % vr(V_STAMP))
        a.label('L_hold')
        a('s_memrealtime s[14:15]')
        a('s_waitcnt lgkmcnt(0)')
        a('s_sub_u32 s14, s14, s12')
        a('s_cmp_lt_u32 s14, %d' % OPT['holdto'])
        a('s_cbranch_scc1 L_hold')
    a('s_mov_b32 s10, 256')
    a('s_mov_b32 s11, 0x20000')
    a('v_readlane_b32 s12, %s, 0' % vr(V_STAMP))
    a('s_nop 3')
    a('v_subrev_u32 %s, s12, %s' % (vr(V_STAMP), vr(V_STAMP)))
    sel = DBGSEL
    a('v_mov_b32 v20, 0')
    for i_, k_ in enumerate(sel):
        a('v_readlane_b32 s12, %s, %d' % (vr(V_STAMP), k_))
        a('s_nop 3')
        a('v_writelane_b32 v20, s12, %d' % i_)
    a('v_lshlrev_b32 v21, 2, %s' % vr(V_LANE))
    a('buffer_store_dword v20, v21, s[8:11], 0 offen')
a.label('L_end')
a('s_endpgm')

hdr = open(os.path.join(os.path.dirname(os.path.abspath(__file__)), '..', 'cdna_kernels', NAME + '.s.ref')).read().split('\n')
head = []
for ln in hdr:
    if ln.startswith('; @launch'):
        break
    head.append(ln)
lines = head + ['; @launch grid=(256,1,1) block=(256,1,1) lds=%d' % LDS_SIZE,
                '.amdgcn_target "amdgcn-amd-amdhsa--gfx950"', '.text', '.globl ' + KN, '.p2align 8',
                '.type %s,@function' % KN, KN + ':']
lines += finalize(top)
lines += ['.section .rodata,"a"', '.p2align 6', '.amdhsa_kernel ' + KN,
          '  .amdhsa_next_free_vgpr 512', '  .amdhsa_next_free_sgpr 102', '  .amdhsa_accum_offset 256',
          '  .amdhsa_group_segment_fixed_size 0', '  .amdhsa_kernarg_size 144', '  .amdhsa_user_sgpr_count 2',
          '  .amdhsa_user_sgpr_kernarg_segment_ptr 1', '  .amdhsa_system_sgpr_workgroup_id_x 1', '.end_amdhsa_kernel']
open(sys.argv[1], 'w').write('\n'.join(lines) + '\n')
if OPT['stamps']:
    open(sys.argv[1] + '.stamps', 'w').write('\n'.join(STAMPS) + '\n')
print('vgpr high water', V.hw, 'lines', len(lines))
```

```python
import sys, os
sys.path.insert(0, os.path.dirname(os.path.abspath(__file__)))
from asmlib import *

NAME = 'interleave_layers__ssm_conv_s5__ssm_conv_h3__prompt'
KN = NAME + '_kernel'

OPT = dict(wb=0, holdto=0, dbgout=-1, stamps=0, slow=0, hbuf2=0, crot=0, pf=3, slp=8, slp2=6, ncp0=4, ncp=16, ncp2=21, per=4, x_nod1=0, x_s0late=0, x_nomfma=0, x_noload=0, fine=0, cyc=0)
for a_ in sys.argv[2:]:
    k_, v_ = a_.split('=')
    OPT[k_] = int(v_)

MT = 6
NRB = 22
NMAIN = 198
NAUX = 58
WS_KVF = 0x1000
WS_CPF = 0xC000
WS_HF = 0x4000
WS_WF = 0x4000 + 2 * 22 * 256
WS_GF = 0xA000
WS_RBG = 0xC000
WS_E = 0x10000
WS_ST = 0xA0000
ST_SZ = 22 * 24576
WS_KVT = 0x1600000
KVT_STR = 5632
WS_CP = 0x540000
WS_H = 0x6C0000
H_SZ = 22 * 221184 * OPT['hbuf2']
WS_W = 0x1040000
WS_G = 0x12C0000
G_STR = 11264
WS_DBG = 0x2000000
WS_SIZE = 0x10000000
OOB = 0x7FFF0000

BLK = 12288
L_IMG = 0
L_RING = 9 * BLK
L_MISC = L_RING + 49152
LDS_SIZE = 163840
L_TAB = L_MISC
L_FX = L_MISC + 768
L_HALO = L_MISC + 3072
L_KRAW = 0
L_VRAW = BLK
L_KVO = 2 * BLK
L_KC = L_RING
KC_CH = 16656
L_UC = L_IMG + 16
UC_CH = 9280
L_CO = 20480
CO_W = 10944
PART_ROW = 272
PART_W = 16 * PART_ROW
SPIN = 20000

P_X, P_LRE, P_LIM, P_BRE, P_BIM, P_CRE, P_CIM, P_LDT = [8 + 2 * i for i in range(8)]
P_DSK, P_Q, P_K, P_V, P_SHK, P_SSK, P_SSD, P_OUT = [24 + 2 * i for i in range(8)]
P_DBG, P_WS = 40, 42
R_WS, R_X, R_BRE, R_BIM, R_K, R_V, R_OUT, R_SK = [44 + 4 * i for i in range(8)]
S_RB, S_CG, S_FAST, S_WAVE, S_TAG, S_L, S_PAIR, S_SPIN = range(76, 84)
S_KP = 84
S_T0, S_T1, S_T2, S_T3 = 93, 94, 95, 96
S_ROLE = 97
S_M1, S_M2 = 98, 100
S_A, S_B, S_C = 3, 4, 5
S_PC = 6
S_TT = 8
S_TU = 17
S_MSEL = 26
S_MACT = 40
S_W1K = 97
S_RINGW = 98
S_PT = 99
S_XCC = 20
S_CPB = 21
S_HB = 22

V = Alloc('v', 1, 256)
top = Stream()
tail = Stream()
lblc = [0]
STAMPS = []


def newlabel(p):
    lblc[0] += 1
    return 'L_%s_%d' % (p, lblc[0])


def put(*items):
    for it in items:
        if isinstance(it, tuple):
            V.put(*it)
        else:
            V.put(it)


def srd(a, r, p, size):
    a('s_mov_b64 %s, %s' % (sr(r, 2), sr(p, 2)))
    a('s_mov_b32 %s, 0x%x' % (sr(r + 2), size))
    a('s_mov_b32 %s, 0x20000' % sr(r + 3))


def cmul(a, d, x, y):
    a('v_pk_mul_f32 %s, %s, %s op_sel:[0,0] op_sel_hi:[1,0]' % (vr(d, 2), vr(x, 2), vr(y, 2)))
    a('v_pk_fma_f32 %s, %s, %s, %s op_sel:[1,1,0] op_sel_hi:[0,1,1] neg_lo:[1,0,0]' % (vr(d, 2), vr(x, 2), vr(y, 2), vr(d, 2)))


def cfma(a, d, x, y, c):
    a('v_pk_fma_f32 %s, %s, %s, %s op_sel:[0,0,0] op_sel_hi:[1,0,1]' % (vr(d, 2), vr(x, 2), vr(y, 2), vr(c, 2)))
    a('v_pk_fma_f32 %s, %s, %s, %s op_sel:[1,1,0] op_sel_hi:[0,1,1] neg_lo:[1,0,0]' % (vr(d, 2), vr(x, 2), vr(y, 2), vr(d, 2)))


def stamp(a, name):
    if not OPT['stamps']:
        return
    i = len(STAMPS)
    a('%s %s' % ('s_memtime' if OPT['cyc'] else 's_memrealtime', sr(S_M2, 2)), 's_waitcnt lgkmcnt(0)', 'v_writelane_b32 %s, %s, %d' % (vr(V_STAMP), sr(S_M2), i))
    STAMPS.append(name)


def astamp(a, i):
    if OPT['stamps'] or OPT.get('_sv'):
        a('s_memtime %s' % sr(S_M2, 2), 's_waitcnt lgkmcnt(0)', 'v_writelane_b32 %s, %s, %d' % (vr(V_STAMP), sr(S_M2), i))


def poll(a, loads, checks, pre_issued=False, sleep=0):
    p = Stream()
    L = newlabel('poll')
    Lc = newlabel('pollc')
    simple = len(checks) == 1 and checks[0][1] is None
    acc = None if simple else V.get(2, 1)
    p('s_mov_b32 %s, %d' % (sr(S_SPIN), SPIN))
    if pre_issued:
        regs = []
        for c in checks:
            regs += [vr(c[0])] + ([vr(c[1])] if c[1] is not None else [])
        p.touch(*regs)
        p.label(Lc)
    else:
        p.label(L)
        if sleep:
            p('s_sleep %d' % sleep)
        for t in loads:
            p(t)
        p('s_waitcnt vmcnt(0)')
    if len(checks) == 1 and checks[0][1] is None:
        p('v_cmp_ne_u32 vcc, %s, %s' % (vr(checks[0][0]), vr(checks[0][2])))
    else:
        first = True
        for (x, y, e) in checks:
            d = acc if first else acc + 1
            if y is None:
                p('v_xor_b32 %s, %s, %s' % (vr(d), vr(x), vr(e)))
            else:
                p('v_bitop3_b32 %s, %s, %s, %s bitop3:0x7e' % (vr(d), vr(x), vr(y), vr(e)))
            if not first:
                p('v_or_b32 %s, %s, %s' % (vr(acc), vr(acc), vr(acc + 1)))
            first = False
        p('v_cmp_ne_u32 vcc, 0, %s' % vr(acc))
    p('s_sub_u32 %s, %s, 1' % (sr(S_SPIN), sr(S_SPIN)))
    p('s_cselect_b64 vcc, 0, vcc')
    p('s_cmp_lg_u64 vcc, 0')
    p('s_cbranch_scc1 %s' % L)
    if pre_issued:
        tail.label(L)
        if sleep:
            tail('s_sleep %d' % sleep)
        for t in loads:
            tail(t)
        tail('s_waitcnt vmcnt(0)')
        tail('s_branch %s' % Lc)
    a.join(p)
    if acc is not None:
        V.put(acc, 2)


def dual(a, texts, touch=()):
    Ls, Lb = newlabel('slow'), newlabel('back')
    p = Stream()
    if touch:
        p.touch(*touch)
    p('s_cmp_eq_u32 %s, 0' % sr(S_FAST), 's_cbranch_scc1 %s' % Ls)
    tk = p.mem(*[t.replace(' {P}', '') for t in texts])
    p.label(Lb)
    a.join(p)
    tail.label(Ls)
    tail('s_nop 1')
    tail(*[t.replace('{P}', 'sc1') for t in texts])
    tail('s_branch %s' % Lb)
    return tk


def flag_texts(soff, pol):
    return ['s_mov_b64 exec, 1',
            'buffer_store_dword %s, %s, %s, %s offen %s' % (vr(V_TAG), vr(V_ZERO), sr(R_WS, 4), soff, pol),
            's_mov_b64 exec, -1']


def lam_loads(a, vp2):
    t = V.get(4)
    a('global_load_ushort %s, %s, %s' % (vr(t), vr(vp2), sr(P_LRE, 2)))
    a('global_load_ushort %s, %s, %s' % (vr(t + 1), vr(vp2), sr(P_LIM, 2)))
    a('global_load_ushort %s, %s, %s' % (vr(t + 2), vr(vp2), sr(P_LDT, 2)))
    return t


def lam_compute(a, t, want_coef, lam=None):
    if lam is None:
        lam = V.get(2)
    u = V.get(4)
    for i in range(3):
        a('v_lshlrev_b32 %s, 16, %s' % (vr(t + i), vr(t + i)))
    a('v_mul_f32 %s, 0x3fb8aa3b, %s' % (vr(t + 2), vr(t + 2)))
    a('v_exp_f32 %s, %s' % (vr(t + 2), vr(t + 2)))
    a('v_cvt_pk_bf16_f32 %s, %s, %s' % (vr(t + 2), vr(t + 2), vr(t + 2)))
    a('v_lshlrev_b32 %s, 16, %s' % (vr(t + 2), vr(t + 2)))
    a('v_mul_f32 %s, %s, %s' % (vr(u), vr(t + 2), vr(t)))
    a('v_mul_f32 %s, %s, %s' % (vr(u + 1), vr(t + 2), vr(t + 1)))
    a('v_mul_f32 %s, 0x3fb8aa3b, %s' % (vr(u), vr(u)))
    a('v_exp_f32 %s, %s' % (vr(u), vr(u)))
    a('v_mul_f32 %s, 0.15915494, %s' % (vr(u + 1), vr(u + 1)))
    a('v_rndne_f32 %s, %s' % (vr(u + 2), vr(u + 1)))
    a('v_sub_f32 %s, %s, %s' % (vr(u + 1), vr(u + 1), vr(u + 2)))
    a('v_cos_f32 %s, %s' % (vr(u + 2), vr(u + 1)))
    a('v_sin_f32 %s, %s' % (vr(u + 3), vr(u + 1)))
    a('v_mul_f32 %s, %s, %s' % (vr(lam), vr(u), vr(u + 2)))
    a('v_mul_f32 %s, %s, %s' % (vr(lam + 1), vr(u), vr(u + 3)))
    coef = None
    if want_coef:
        coef = V.get(2)
        a('v_add_f32 %s, -1.0, %s' % (vr(u), vr(lam)))
        a('v_mov_b32 %s, %s' % (vr(u + 1), vr(lam + 1)))
        a('v_mul_f32 %s, %s, %s' % (vr(u + 2), vr(t), vr(t)))
        a('v_fmac_f32 %s, %s, %s' % (vr(u + 2), vr(t + 1), vr(t + 1)))
        a('v_rcp_f32 %s, %s' % (vr(u + 2), vr(u + 2)))
        a('v_sub_f32 %s, 0, %s' % (vr(t + 1), vr(t + 1)))
        cmul(a, coef, u, t)
        a('v_mul_f32 %s, %s, %s' % (vr(coef), vr(coef), vr(u + 2)))
        a('v_mul_f32 %s, %s, %s' % (vr(coef + 1), vr(coef + 1), vr(u + 2)))
    put((u, 4), (t, 4))
    return lam, coef


def tag_ready(a):
    a('s_mul_i32 %s, %s, 0x9E3779B1' % (sr(S_TAG), sr(S_TAG)),
      's_add_u32 %s, %s, 0x7F4A7C15' % (sr(S_TAG), sr(S_TAG)),
      'v_mov_b32 %s, %s' % (vr(V_TAG), sr(S_TAG)))


def rbf(s, regs):
    for r in regs:
        s('v_cvt_pk_bf16_f32 %s, %s, %s' % (vr(r), vr(r), vr(r)))
    for r in regs:
        s('v_lshlrev_b32 %s, 16, %s' % (vr(r), vr(r)))


def rs12(s, S, Q):
    dp = 'v_add_f32_dpp %s, %s, %s %s row_mask:0xf bank_mask:0x%x'
    for X in (S, Q):
        for j in range(3):
            s(dp % (vr(X[j]), vr(X[j]), vr(X[j]), 'row_ror:8', 0x3))
    for X in (S, Q):
        for j in range(3):
            s(dp % (vr(X[j]), vr(X[j + 3]), vr(X[j + 3]), 'row_ror:8', 0xc))
    for X in (S, Q):
        s(dp % (vr(X[0]), vr(X[0]), vr(X[0]), 'row_half_mirror', 0x5))
        s(dp % (vr(X[2]), vr(X[2]), vr(X[2]), 'row_half_mirror', 0xf))
    for X in (S, Q):
        s(dp % (vr(X[0]), vr(X[1]), vr(X[1]), 'row_half_mirror', 0xa))
    for qp in ('quad_perm:[1,0,3,2]', 'quad_perm:[2,3,0,1]'):
        for r in (S[2], Q[2], S[0], Q[0]):
            s(dp % (vr(r), vr(r), vr(r), qp, 0xf))


def tile_src(i):
    hf, j = divmod(i, 3)
    if j == 2:
        return 1, 8 * hf
    return 0, 8 * hf + 4 * j


a = top
V_LANE, V_TAG, V_STAMP, V_L16, V_N, V_Q = [V.get() for _ in range(6)]
V_OOB = V.get()
V_JUNK = V.get()
V_ZERO = V.get(2)
V_DUMMY = V.get(4)
NCOMMON = V.hw
BASE = V.get(24)
V_DSK = V.get(4)
V_FA = V.get(4)
LAM, L12, L24, L384, LQ96, LQ24, RB, OFF = [V.get(2) for _ in range(8)]
(V_TAU, V_OROW, V_STW, V_STR, V_EXP9, V_TABW, V_EW, V_ER, V_HW, V_HR, V_TABR, V_WA) = [V.get() for _ in range(12)]
WCV = V.home(32)
GP = V.home(12)
V_PW = V.home(4)
V_PR, V_PW2, V_PR2 = V_PW + 1, V_PW + 2, V_PW + 3
HOMES = ((WCV, 32), (GP, 12), (V_PW, 4))
V_DX = V.get(3, 1)

a('s_cmp_ge_u32 s2, 256')
a('s_cbranch_scc1 L_end')
a('s_load_dwordx16 s[8:23], s[0:1], 0')
a('s_load_dwordx16 s[24:39], s[0:1], 64')
a('s_load_dwordx4 s[40:43], s[0:1], 128')
a('s_getpc_b64 %s' % sr(S_PC, 2))
a.label('L_pc')
a('s_lshr_b32 %s, s2, 3' % sr(S_T0))
a('s_lshl_b32 %s, %s, 12' % (sr(S_T1), sr(S_T0)))
a('v_lshl_add_u32 %s, v0, 4, %s' % (vr(V_TAG), sr(S_T1)))
a('s_mov_b32 %s, L_end-L_pc-16' % sr(S_T1))
a('v_min_u32 %s, %s, %s' % (vr(V_TAG), sr(S_T1), vr(V_TAG)))
a('global_load_dwordx4 %s, %s, %s ;junk' % (vr(V_DUMMY, 4), vr(V_TAG), sr(S_PC, 2)))
a('v_and_b32 %s, 63, v0' % vr(V_LANE))
a('v_lshrrev_b32 %s, 6, v0' % vr(V_Q))
a('v_lshlrev_b32 %s, 4, %s' % (vr(V_L16), vr(V_LANE)))
a('v_readfirstlane_b32 %s, %s' % (sr(S_WAVE), vr(V_Q)))
if OPT['stamps']:
    a('v_mov_b32 %s, 0' % vr(V_STAMP))
stamp(a, 'start')
a('v_and_b32 %s, 15, %s' % (vr(V_N), vr(V_LANE)))
a('v_lshrrev_b32 %s, 4, %s' % (vr(V_Q), vr(V_LANE)))
a('v_mov_b32 %s, 0' % vr(V_ZERO))
a('v_mov_b32 %s, 0' % vr(V_ZERO + 1))
a('v_mov_b32 %s, 0x%x' % (vr(V_OOB), OOB))
a('s_and_b32 %s, s2, 7' % sr(S_T1))
a('s_mul_i32 %s, %s, 27' % (sr(S_T2), sr(S_T1)))
a('s_add_u32 %s, %s, %s' % (sr(S_T2), sr(S_T2), sr(S_T0)))
a('s_mul_i32 %s, %s, 5' % (sr(S_T3), sr(S_T1)))
a('s_add_u32 %s, %s, %s' % (sr(S_T3), sr(S_T3), sr(S_T0)))
a('s_add_u32 %s, %s, %d' % (sr(S_T3), sr(S_T3), 216 - 27))
a('s_cmp_lt_u32 %s, 27' % sr(S_T0))
a('s_cselect_b32 %s, %s, %s' % (sr(S_L), sr(S_T2), sr(S_T3)))
a('s_mul_i32 %s, %s, 57' % (sr(S_RB), sr(S_L)))
a('s_lshr_b32 %s, %s, 9' % (sr(S_RB), sr(S_RB)))
a('s_mul_i32 %s, %s, 9' % (sr(S_T0), sr(S_RB)))
a('s_sub_u32 %s, %s, %s' % (sr(S_CG), sr(S_L), sr(S_T0)))
a('s_mov_b32 %s, %s' % (sr(S_PAIR), sr(S_L)))
a('s_and_b32 %s, %s, 1' % (sr(S_A), sr(S_WAVE)))
a('s_lshr_b32 %s, %s, 1' % (sr(S_B), sr(S_WAVE)))
a('s_cmp_ge_u32 %s, %d' % (sr(S_L), NMAIN))
a('s_cbranch_scc1 L_aux')

t, t2, t3 = V.get(), V.get(), V.get()
LAMT = V.get(4)
lad, dad = V.get(), V.get()
V_DB = V.get(2)
c0 = V.get()
a('v_lshrrev_b32 %s, 3, %s' % (vr(t), vr(V_LANE)))
a('v_and_b32 %s, 7, %s' % (vr(t3), vr(V_LANE)))
a('s_lshl2_add_u32 %s, %s, %s' % (sr(S_PT), sr(S_CG), sr(S_WAVE)))
a('s_lshl_b32 %s, %s, 10' % (sr(S_W1K), sr(S_WAVE)))
a('s_mul_i32 %s, %s, 12288' % (sr(S_RINGW), sr(S_WAVE)))
a('s_add_u32 %s, %s, %d' % (sr(S_RINGW), sr(S_RINGW), L_RING))
a('s_lshl_b32 %s, %s, 7' % (sr(S_KP), sr(S_CG)))
a('v_xor_b32 %s, %s, %s' % (vr(c0), vr(t3), vr(V_Q)))
a('v_lshlrev_b32 %s, 4, %s' % (vr(c0), vr(c0)))
a('v_lshrrev_b32 %s, 5, %s' % (vr(t2), vr(V_LANE)))
a('v_mul_u32_u24 %s, 24, %s' % (vr(t2), vr(t2)))
a('v_and_b32 %s, 1, %s' % (vr(t3), vr(t)))
a('v_mad_u32_u24 %s, %s, 12, %s' % (vr(t2), vr(t3), vr(t2)))
a('v_and_b32 %s, 1, %s' % (vr(t3), vr(V_Q)))
a('s_mul_i32 %s, %s, 48' % (sr(S_T0), sr(S_A)))
a('s_mul_i32 %s, %s, 96' % (sr(S_T1), sr(S_RB)))
a('s_add_u32 %s, %s, %s' % (sr(S_T0), sr(S_T0), sr(S_T1)))
a('s_lshl1_add_u32 %s, %s, %s' % (sr(S_T0), sr(S_B), sr(S_T0)))
a('v_add3_u32 %s, %s, %s, %s' % (vr(t2), vr(t2), vr(t3), sr(S_T0)))
a('v_mul_u32_u24 %s, 1152, %s' % (vr(t2), vr(t2)))
a('s_lshl_b32 %s, %s, 6' % (sr(S_T0), sr(S_A)))
a('v_xor_b32 %s, %s, %s' % (vr(V_DX), sr(S_T0), vr(c0)))
a('v_add_u32 %s, %s, %s' % (vr(V_DX), vr(V_DX), vr(t2)))
a('v_add_u32 %s, 4608, %s' % (vr(V_DX + 1), vr(V_DX)))
a('v_add_u32 %s, 9216, %s' % (vr(V_DX + 2), vr(V_DX)))
a('s_lshl_b32 %s, %s, 4' % (sr(S_T0), sr(S_PT)))
a('v_add_u32 %s, %s, %s' % (vr(t2), sr(S_T0), vr(t)))
a('v_mul_u32_u24 %s, 1152, %s' % (vr(t2), vr(t2)))
a('v_add_u32 %s, %s, %s' % (vr(V_DB), vr(t2), vr(c0)))
a('v_xor_b32 %s, 64, %s' % (vr(V_DB + 1), vr(c0)))
a('v_add_u32 %s, %s, %s' % (vr(V_DB + 1), vr(V_DB + 1), vr(t2)))
a('v_add_u32 %s, %d, %s' % (vr(V_DB + 1), 8 * 1152, vr(V_DB + 1)))
put(c0)
a('s_mov_b32 %s, 0x%x' % (sr(R_X + 2), 2048 * 1152))
a('s_mov_b32 %s, 0x20000' % sr(R_X + 3))
for r_ in (R_BRE, R_BIM):
    a('s_mov_b32 %s, 0x%x' % (sr(r_ + 2), 576 * 1152))
    a('s_mov_b32 %s, 0x20000' % sr(r_ + 3))
a('s_waitcnt lgkmcnt(0)')
a('s_mov_b64 %s, %s' % (sr(R_X, 2), sr(P_X, 2)))
a('s_mov_b64 %s, %s' % (sr(R_BRE, 2), sr(P_BRE, 2)))
a('s_mov_b64 %s, %s' % (sr(R_BIM, 2), sr(P_BIM, 2)))


def x_dma(s, blk, layer):
    tk = None
    for u in range(3):
        s('s_add_u32 m0, %s, %d' % (sr(S_W1K), L_IMG + blk * BLK + u * 4096))
        tk = s.mem('buffer_load_dwordx4 %s, %s, %s offen%s lds' % (vr(V_DX + u), sr(R_X if layer == 0 else R_WS, 4),
                                                                   sr((S_KP if layer == 0 else S_TT) + blk), ' nt' if layer == 0 else ' sc1'))
    return tk


WB = lambda kp, h, mat: ((kp * 2 + h) * 2 + mat) * 4


def b_dma(s, kp):
    tk = None
    for b in range(4):
        s('s_add_u32 m0, %s, %d' % (sr(S_RINGW), (kp % 3) * 4096 + b * 1024))
        tk = s.mem('buffer_load_dwordx4 %s, %s, %s offen lds' % (vr(V_DB + (b & 1)), sr(R_BRE if b < 2 else R_BIM, 4), sr(S_KP + kp)))
    return tk


xtk, btk = {}, {}
i0, kt = Stream(), Stream()
xtk[0] = x_dma(i0, 0, 0)
btk[0] = b_dma(i0, 0)
kt('s_load_dword %s, %s, 0' % (sr(S_TAG), sr(P_WS, 2)))
kt('s_mul_i32 %s, %s, 43' % (sr(S_T0), sr(S_RB)))
kt('s_lshr_b32 %s, %s, 7' % (sr(S_T0), sr(S_T0)))
kt('s_mul_i32 %s, %s, 3' % (sr(S_T0), sr(S_T0)))
kt('s_sub_u32 %s, %s, %s' % (sr(S_T0), sr(S_RB), sr(S_T0)))
kt('s_lshl_b32 %s, 128, %s' % (sr(S_T0), sr(S_T0)))
for i in range(1, 9):
    kt('s_add_u32 %s, %s, %s' % (sr(S_KP + i), sr(S_KP + i - 1), sr(S_T0)),
       's_sub_u32 %s, %s, 1152' % (sr(S_T1), sr(S_KP + i)),
       's_cselect_b32 %s, %s, %s' % (sr(S_KP + i), sr(S_KP + i), sr(S_T1)))
a.weave(i0, kt)
a('s_lshl_b32 %s, %s, 5' % (sr(S_T1), sr(S_PT)))
a('v_lshl_add_u32 %s, %s, 1, %s' % (vr(lad), vr(V_N), sr(S_T1)))
btk[1] = b_dma(a, 1)
a('global_load_ushort %s, %s, %s' % (vr(LAMT), vr(lad), sr(P_LRE, 2)))
a('global_load_ushort %s, %s, %s' % (vr(LAMT + 1), vr(lad), sr(P_LIM, 2)))
a('global_load_ushort %s, %s, %s' % (vr(LAMT + 2), vr(lad), sr(P_LDT, 2)))
srd(a, R_WS, P_WS, WS_SIZE)
su = Stream()
V_FB = V.get(2)
su('v_lshrrev_b32 %s, 1, %s' % (vr(t), vr(V_N)))
su('v_xor_b32 %s, %s, %s' % (vr(t), vr(t), vr(V_Q)))
su('v_lshlrev_b32 %s, 4, %s' % (vr(t), vr(t)))
su('v_lshl_add_u32 %s, %s, 7, %s' % (vr(V_FA), vr(V_N), vr(t)))
su('v_xor_b32 %s, 64, %s' % (vr(V_FA + 1), vr(V_FA)))
su('v_add_u32 %s, %d, %s' % (vr(V_FA + 2), 4 * BLK, vr(V_FA)))
su('v_add_u32 %s, %d, %s' % (vr(V_FA + 3), 4 * BLK, vr(V_FA + 1)))
su('v_add_u32 %s, %s, %s' % (vr(V_FB), sr(S_RINGW), vr(V_FA)))
su('v_add_u32 %s, %s, %s' % (vr(V_FB + 1), sr(S_RINGW), vr(V_FA + 1)))
srd(su, R_OUT, P_OUT, 2048 * 2304)
su('s_mov_b32 %s, 0x02020202' % sr(S_MSEL), 's_mov_b32 %s, 0x02020202' % sr(S_MSEL + 1))
su('s_mov_b32 %s, 0x13131313' % sr(S_MACT), 's_mov_b32 %s, 0x13131313' % sr(S_MACT + 1))
su('s_getreg_b32 %s, hwreg(HW_REG_XCC_ID, 0, 4)' % sr(S_XCC))
su('v_and_b32 %s, 1, %s' % (vr(t), vr(V_Q)))
su('v_mul_u32_u24 %s, 12, %s' % (vr(V_TAU), vr(t)))
su('v_lshrrev_b32 %s, 1, %s' % (vr(t2), vr(V_Q)))
su('v_add_u32 %s, %s, %s' % (vr(V_TAU), vr(V_TAU), vr(t2)))
su('s_mul_i32 %s, %s, 96' % (sr(S_T0), sr(S_RB)),
   's_mul_i32 %s, %s, 24' % (sr(S_T1), sr(S_WAVE)),
   's_add_u32 %s, %s, %s' % (sr(S_T0), sr(S_T0), sr(S_T1)),
   'v_add_u32 %s, %s, %s' % (vr(t3), sr(S_T0), vr(V_TAU)))
su('v_mul_u32_u24 %s, 2304, %s' % (vr(V_OROW), vr(t3)))
su('s_lshl_b32 %s, %s, 8' % (sr(S_T0), sr(S_CG)),
   'v_lshl_add_u32 %s, %s, 4, %s' % (vr(t3), vr(V_N), sr(S_T0)))
su('v_add_u32 %s, %s, %s' % (vr(V_OROW), vr(V_OROW), vr(t3)))
TI = V.get()
su('v_lshrrev_b32 %s, 3, %s' % (vr(TI), vr(V_N)))
su('v_mul_u32_u24 %s, 3, %s' % (vr(TI), vr(TI)))
su('v_bfe_u32 %s, %s, 2, 1' % (vr(t3), vr(V_N)))
su('v_cndmask_b32 %s, %s, 2, %s' % (vr(t3), vr(t3), sr(S_MSEL, 2)))
su('v_add_u32 %s, %s, %s' % (vr(TI), vr(TI), vr(t3)))
su('v_lshl_add_u32 %s, %s, 1, %s' % (vr(t3), vr(TI), vr(t2)))
su('v_lshlrev_b32 %s, 4, %s' % (vr(t3), vr(t3)))
su('v_lshl_add_u32 %s, %s, 2, %s' % (vr(V_TABW), vr(t), vr(t3)))
su('s_mul_i32 %s, %s, 192' % (sr(S_T0), sr(S_WAVE)),
   's_add_u32 %s, %s, %d' % (sr(S_T0), sr(S_T0), L_TAB),
   'v_add_u32 %s, %s, %s' % (vr(V_TABW), sr(S_T0), vr(V_TABW)))
su('v_mul_u32_u24 %s, 192, %s' % (vr(V_TABR), vr(V_Q)))
su('v_add_u32 %s, %d, %s' % (vr(V_TABR), L_TAB, vr(V_TABR)))
su('s_mul_i32 %s, %s, 96' % (sr(S_T0), sr(S_RB)),
   's_lshl2_add_u32 %s, %s, %s' % (sr(S_T0), sr(S_WAVE), sr(S_T0)),
   'v_add_u32 %s, %s, %s' % (vr(t), sr(S_T0), vr(V_Q)))
su('v_lshlrev_b32 %s, 8, %s' % (vr(t), vr(t)))
su('v_lshl_add_u32 %s, %s, 4, %s' % (vr(V_STR), vr(V_N), vr(t)))
su('v_cmp_gt_u32 vcc, 9, %s' % vr(V_N),
   'v_cndmask_b32 %s, %s, %s, vcc' % (vr(V_STR), vr(V_OOB), vr(V_STR)))
su('v_lshl_add_u32 %s, %s, 12, %s' % (vr(V_STW), vr(TI), vr(t)))
su('s_lshl_b32 %s, %s, 4' % (sr(S_T0), sr(S_CG)),
   'v_add_u32 %s, %s, %s' % (vr(V_STW), sr(S_T0), vr(V_STW)))
su('v_cndmask_b32 %s, %s, %s, %s' % (vr(V_STW), vr(V_OOB), vr(V_STW), sr(S_MACT, 2)))
put(TI)
su('s_lshl_b32 %s, %s, 2' % (sr(S_T0), sr(S_WAVE)),
   'v_add_u32 %s, %s, %s' % (vr(V_WA), sr(S_T0), vr(V_Q)))
su('v_xor_b32 %s, %s, %s' % (vr(t), vr(V_WA), vr(V_N)))
su('v_lshrrev_b32 %s, 1, %s' % (vr(t), vr(t)))
su('v_lshlrev_b32 %s, 4, %s' % (vr(t), vr(t)))
su('v_lshl_add_u32 %s, %s, 7, %s' % (vr(V_WA), vr(V_WA), vr(t)))
su('v_and_b32 %s, 1, %s' % (vr(t), vr(V_N)))
su('v_lshl_add_u32 %s, %s, 3, %s' % (vr(V_WA), vr(t), vr(V_WA)))
su('s_lshl_b32 %s, %s, 8' % (sr(S_T0), sr(S_RB)),
   'v_lshl_add_u32 %s, %s, 4, %s' % (vr(V_EW), vr(V_N), sr(S_T0)))
su('v_lshlrev_b32 %s, 8, %s' % (vr(t), vr(V_Q)))
su('v_sub_u32 %s, %s, %s' % (vr(V_ER), vr(V_EW), vr(t)))
su('v_subrev_u32 %s, 256, %s' % (vr(V_ER), vr(V_ER)))
su('v_cmp_gt_u32 vcc, 16, %s' % vr(V_LANE),
   'v_cndmask_b32 %s, %s, %s, vcc' % (vr(V_EW), vr(V_OOB), vr(V_EW)))
su('v_lshl_add_u32 %s, %s, 2, %s' % (vr(t), vr(V_N), vr(t)))
su('s_mul_i32 %s, %s, 6144' % (sr(S_T0), sr(S_WAVE)), 's_add_u32 %s, %s, %d' % (sr(S_T0), sr(S_T0), 5 * BLK),
   'v_add_u32 %s, %s, %s' % (vr(V_HW), sr(S_T0), vr(t)))
su('v_lshlrev_b32 %s, 4, %s' % (vr(t), vr(V_Q)))
su('v_lshl_add_u32 %s, %s, 6, %s' % (vr(t), vr(V_N), vr(t)))
su('s_mul_i32 %s, %s, 6144' % (sr(S_T0), sr(S_WAVE)), 's_add_u32 %s, %s, %d' % (sr(S_T0), sr(S_T0), 5 * BLK),
   'v_add_u32 %s, %s, %s' % (vr(V_HR), sr(S_T0), vr(t)))
a.extend(su)
put(t, t2, t3)
a('s_lshl_b32 %s, %s, 7' % (sr(S_T1), sr(S_CG)))
a('v_lshl_add_u32 %s, %s, 3, %s' % (vr(dad), vr(V_N), sr(S_T1)))
stamp(a, 'setup')


def b_read(s, kp):
    s.wait(btk[kp])
    tk = None
    for h in range(2):
        for mat in range(2):
            tk = s.mem('ds_read_b128 %s, %s offset:%d' % (ar(WB(kp, h, mat), 4), vr(V_FB + h), (kp % 3) * 4096 + mat * 2048))
    return tk


class KVm:
    pass


def kv_dma(s, kv):
    kv.SHK = V.get(4, top=True)
    t, t2, kh = V.get(), V.get(), V.get()
    s('s_cmp_lt_u32 %s, 6' % sr(S_CG),
      's_cselect_b32 %s, %d, 0' % (sr(R_K + 2), 2048 * 1152),
      's_mov_b32 %s, %s' % (sr(R_V + 2), sr(R_K + 2)),
      's_mov_b32 %s, %s' % (sr(R_K), sr(P_K)), 's_and_b32 %s, %s, 0xffff' % (sr(R_K + 1), sr(P_K + 1)),
      's_mov_b32 %s, 0x20000' % sr(R_K + 3))
    s('s_mov_b32 %s, %s' % (sr(R_V), sr(P_V)), 's_and_b32 %s, %s, 0xffff' % (sr(R_V + 1), sr(P_V + 1)),
      's_mov_b32 %s, 0x20000' % sr(R_V + 3))
    s('v_lshrrev_b32 %s, 3, %s' % (vr(t), vr(V_LANE)))
    s('v_mul_u32_u24 %s, 1152, %s' % (vr(t2), vr(t)))
    s('v_and_b32 %s, 7, %s' % (vr(t), vr(V_LANE)))
    s('v_lshl_add_u32 %s, %s, 4, %s' % (vr(t2), vr(t), vr(t2)))
    s('s_lshl_b32 %s, %s, 7' % (sr(S_T1), sr(S_PT)),
      'v_lshl_add_u32 %s, %s, 4, %s' % (vr(t), vr(t), sr(S_T1)),
      'global_load_dwordx4 %s, %s, %s' % (vr(kv.SHK, 4), vr(t), sr(P_SHK, 2)))
    s('s_mul_i32 %s, %s, %d' % (sr(S_T0), sr(S_RB), 96 * 1152),
      's_lshl_b32 %s, %s, 7' % (sr(S_T1), sr(S_CG)),
      's_add_u32 %s, %s, %s' % (sr(S_T0), sr(S_T0), sr(S_T1)),
      's_sub_u32 %s, %s, %d' % (sr(S_T1), sr(S_T0), 8 * 1152),
      'v_add_u32 %s, %s, %s' % (vr(kh), sr(S_T1), vr(t2)),
      's_mul_i32 %s, %s, %d' % (sr(S_T1), sr(S_WAVE), 8 * 1152),
      's_add_u32 %s, %s, %s' % (sr(S_T0), sr(S_T0), sr(S_T1)),
      'v_add_u32 %s, %s, %s' % (vr(t2), sr(S_T0), vr(t2)))
    s('s_mov_b32 m0, %d' % L_HALO)
    s('buffer_load_dwordx4 %s, %s, 0 offen nt lds' % (vr(kh), sr(R_K, 4)))
    for u in range(3):
        for base, rr in ((L_KRAW, R_K), (L_VRAW, R_V)):
            s('s_add_u32 m0, %s, %d' % (sr(S_W1K), base + u * 4096))
            kv.tok = s.mem('s_mov_b32 %s, %d' % (sr(S_T2), u * 32 * 1152),
                           'buffer_load_dwordx4 %s, %s, %s offen nt lds' % (vr(t2), sr(rr, 4), sr(S_T2)))
    kv.rel = [t, t2, kh]


def kv_core(kc, ntp, krow, vrow, SHK, emit_unit, touch=None):
    W, KU, P = V.get(8), V.get(16), V.get(16)
    S4 = V.get(4, 1)
    OU = V.get(8)
    ONE2 = V.get()
    kc('v_mov_b32 %s, 0x3f803f80' % vr(ONE2))
    kc('v_mov_b32 %s, %s' % (vr(OU + 3), vr(V_TAG)))
    kc('v_mov_b32 %s, %s' % (vr(OU + 7), vr(V_TAG)))
    for j in range(4):
        for ch in range(2):
            src = SHK + 2 * ch + (j >> 1)
            kc(('v_and_b32 %s, 0xffff0000, %s' if j & 1 else 'v_lshlrev_b32 %s, 16, %s') % (vr(W + 2 * j + ch), vr(src)))
    ku = lambda r: KU + 2 * ((r + 3) % 8)

    def unpack_k(r):
        kc('v_lshlrev_b32 %s, 16, %s' % (vr(ku(r)), vr(krow(r))))
        kc('v_and_b32 %s, 0xffff0000, %s' % (vr(ku(r) + 1), vr(krow(r))))

    for r in (-3, -2, -1):
        unpack_k(r)
    for tp in range(ntp):
        if touch is not None:
            touch(tp)
        for tt in range(2):
            unpack_k(2 * tp + tt)
        for tt in range(2):
            for j in range(4):
                kc('v_pk_mul_f32 %s, %s, %s' % (vr(P + tt * 8 + 2 * j, 2), vr(ku(2 * tp + tt - j), 2), vr(W + 2 * j, 2)))
        idx = [(tt, ch) for tt in range(2) for ch in range(2)]
        for step in range(3):
            for u, (tt, ch) in enumerate(idx):
                first = vr(P + tt * 8 + 6 + ch) if step == 0 else vr(S4 + u)
                kc('v_cvt_pk_bf16_f32 %s, %s, %s' % (vr(S4 + u), first, vr(P + tt * 8 + 2 * (2 - step) + ch)))
            for u in range(4):
                kc('v_dot2_f32_bf16 %s, %s, %s, 0' % (vr(S4 + u), vr(S4 + u), vr(ONE2)))
        for u, (tt, ch) in enumerate(idx):
            kc('v_cvt_pk_bf16_f32 %s, %s, %s' % (vr(S4 + u), vr(S4 + u) if ch == 0 else '0', '0' if ch == 0 else vr(S4 + u)))
        for u, (tt, ch) in enumerate(idx):
            kc('v_dot2_f32_bf16 %s, %s, %s, 0' % (vr(S4 + u), vr(S4 + u), vr(vrow(2 * tp + tt))))
        pos = ntp - 1 - tp
        for ch in range(2):
            kc('v_cvt_pk_bf16_f32 %s, %s, %s' % (vr(OU + 4 * ch + pos % 3), vr(S4 + 2 + ch), vr(S4 + ch)))
        if pos % 3 == 0:
            for ch in range(2):
                emit_unit(ch, pos // 3, OU + 4 * ch)
    put((W, 8), (KU, 16), (P, 16), (S4, 4), (OU, 8), ONE2)


def kv_main(s, kv, ks):
    ka, kb, kh, t, t2 = [V.get() for _ in range(5)]
    s('v_lshrrev_b32 %s, 3, %s' % (vr(t), vr(V_LANE)))
    s('v_and_b32 %s, 7, %s' % (vr(t2), vr(V_LANE)))
    s('s_lshl_b32 %s, %s, 5' % (sr(S_T0), sr(S_WAVE)),
      'v_lshl_add_u32 %s, %s, 2, %s' % (vr(kh), vr(t2), sr(S_T0)))
    s('v_mul_u32_u24 %s, 1536, %s' % (vr(ka), vr(t)))
    s('v_add_u32 %s, %s, %s' % (vr(ka), vr(ka), vr(kh)))
    s('v_add_u32 %s, 128, %s' % (vr(kb), vr(ka)))
    s('v_add_u32 %s, %d, %s' % (vr(kh), L_HALO + 5 * 128, vr(kh)))
    s('v_subrev_u32 %s, 384, %s' % (vr(t2), vr(ka)))
    s('v_cmp_eq_u32 vcc, 0, %s' % vr(t), 'v_cndmask_b32 %s, %s, %s, vcc' % (vr(kh), vr(t2), vr(kh)))
    KR, VR = V.get(16, 2), V.get(12, 2)
    ridx = lambda r: (r >> 2) * 4 + (r & 1) * 2 + ((r >> 1) & 1)
    krow = lambda r: KR + 3 + r if r < 0 else KR + 4 + ridx(r)
    vrow = lambda r: VR + ridx(r)
    s.wait(kv.tok)
    s('s_barrier')
    s('ds_read2_b32 %s, %s offset0:0 offset1:32' % (vr(KR, 2), vr(kh)))
    s('ds_read_b32 %s, %s offset:256' % (vr(KR + 2), vr(kh)))
    for g in range(3):
        for par in range(2):
            s('ds_read2st64_b32 %s, %s offset0:%d offset1:%d' % (vr(KR + 4 + g * 4 + par * 2, 2), vr(kb if par else ka), 2 * g, 2 * g + 1))
        for par in range(2):
            s('ds_read2st64_b32 %s, %s offset0:%d offset1:%d' % (vr(VR + g * 4 + par * 2, 2), vr(kb if par else ka), 48 + 2 * g, 48 + 2 * g + 1))
    s('v_and_b32 %s, 7, %s' % (vr(t2), vr(V_LANE)))
    s('v_sub_u32 %s, 7, %s' % (vr(t), vr(t)))
    s('v_lshlrev_b32 %s, 5, %s' % (vr(t), vr(t)))
    s('v_mul_u32_u24 %s, 528, %s' % (vr(t2), vr(t2)))
    s('s_mul_i32 %s, %s, 4224' % (sr(S_T0), sr(S_WAVE)),
      'v_add3_u32 %s, %s, %s, %s' % (vr(t), vr(t), vr(t2), sr(S_T0)),
      'v_lshrrev_b32 %s, 5, %s' % (vr(t2), vr(V_LANE)),
      'v_lshlrev_b32 %s, 4, %s' % (vr(t2), vr(t2)),
      'v_add3_u32 %s, %s, %s, %s' % (vr(t2), vr(t2), vr(V_L16), sr(S_T0)))
    kv_core(s, 6, krow, vrow, kv.SHK,
            lambda ch, un, reg: s('ds_write_b128 %s, %s offset:%d' % (vr(t), vr(reg, 4), L_KVO + ch * 256 + un * 16)))
    put((KR, 16), (VR, 12), (kv.SHK, 4))
    D = V.get(16)
    for i in range(4):
        s('ds_read_b128 %s, %s offset:%d' % (vr(D + 4 * i, 4), vr(t2), L_KVO + i * 1056))
    s('v_mul_u32_u24 %s, %d, %s' % (vr(ka), KVT_STR, vr(V_Q)))
    s('v_lshl_add_u32 %s, %s, 4, %s' % (vr(ka), vr(V_N), vr(ka)))
    s('s_mul_i32 %s, %s, %d' % (sr(S_T0), sr(S_PT), 16 * KVT_STR),
      's_lshl_b32 %s, %s, 8' % (sr(S_T1), sr(S_RB)),
      's_sub_u32 %s, %s, %s' % (sr(S_T0), sr(S_T0), sr(S_T1)),
      's_add_u32 %s, %s, %d' % (sr(S_T0), sr(S_T0), WS_KVT + 21 * 256),
      's_cmp_lt_u32 %s, 6' % sr(S_CG),
      's_cselect_b32 %s, %s, 0x40000000' % (sr(S_T0), sr(S_T0)),
      'v_add_u32 %s, %s, %s' % (vr(ka), sr(S_T0), vr(ka)))
    for i in range(4):
        ks('s_mov_b32 %s, %d' % (sr(S_T1), 4 * i * KVT_STR),
           'buffer_store_dwordx4 %s, %s, %s, %s offen sc1' % (vr(D + 4 * i, 4), vr(ka), sr(R_WS, 4), sr(S_T1)))
    ks('s_nop 1')
    put((D, 16), ka, kb, kh, t, t2)


def stats_partial(s, X, S, Q, i, d, pk):
    x = X + 4 * i
    if pk:
        s('v_pk_add_f32 %s, %s, %s' % (vr(d, 2), vr(x, 2), vr(x + 2, 2)),
          'v_pk_mul_f32 %s, %s, %s' % (vr(d + 2, 2), vr(x, 2), vr(x, 2)),
          'v_add_f32 %s, %s, %s' % (vr(S + i), vr(d), vr(d + 1)),
          'v_pk_fma_f32 %s, %s, %s, %s' % (vr(d + 2, 2), vr(x + 2, 2), vr(x + 2, 2), vr(d + 2, 2)),
          'v_add_f32 %s, %s, %s' % (vr(Q + i), vr(d + 2), vr(d + 3)))
    else:
        s('v_add_f32 %s, %s, %s' % (vr(S + i), vr(x), vr(x + 1)))
        s('v_mul_f32 %s, %s, %s' % (vr(Q + i), vr(x), vr(x)))
        s('v_add_f32 %s, %s, %s' % (vr(S + i), vr(S + i), vr(x + 2)))
        s('v_fmac_f32 %s, %s, %s' % (vr(Q + i), vr(x + 1), vr(x + 1)))
        s('v_add_f32 %s, %s, %s' % (vr(S + i), vr(S + i), vr(x + 3)))
        s('v_fmac_f32 %s, %s, %s' % (vr(Q + i), vr(x + 2), vr(x + 2)))
        s('v_fmac_f32 %s, %s, %s' % (vr(Q + i), vr(x + 3), vr(x + 3)))


def stats_publish(s, X, which, fast, pk=True, SQ=None, tiles=range(MT)):
    if SQ is None:
        S, Q = V.get(6, 1), V.get(6, 1)
    else:
        S, Q = SQ
    d = V.get(4)
    for i in tiles:
        stats_partial(s, X, S, Q, i, d, pk)
    s('v_add_u32 %s, %d, %s' % (vr(d + 1), 16 * which, vr(V_TAG)))
    if which == 0:
        s('v_add_u32 %s, %s, %s' % (vr(d + 3), sr(S_XCC), vr(V_TAG)))
    else:
        s('v_add_u32 %s, %d, %s' % (vr(d + 3), 16 * which, vr(V_TAG)))
    rs12(s, [S + i for i in range(6)], [Q + i for i in range(6)])
    s('v_cndmask_b32 %s, %s, %s, %s' % (vr(d), vr(S), vr(S + 2), sr(S_MSEL, 2)))
    s('v_cndmask_b32 %s, %s, %s, %s' % (vr(d + 2), vr(Q), vr(Q + 2), sr(S_MSEL, 2)))
    txt = ['s_mov_b32 %s, %d' % (sr(S_T0), WS_ST + (which == 2) * ST_SZ),
           'buffer_store_dwordx4 %s, %s, %s, %s offen {P}' % (vr(d, 4), vr(V_STW), sr(R_WS, 4), sr(S_T0)), 's_nop 1']
    if fast:
        dual(s, txt)
    else:
        s(*[x.replace('{P}', 'sc1') for x in txt])
    put((S, 6), (Q, 6), (d, 4))


def stats_loads(which, G):
    L = []
    for i in range(MT):
        L.append('s_mov_b32 %s, %d' % (sr(S_T0), WS_ST + (which == 2) * ST_SZ + 4096 * i))
        L.append('buffer_load_dwordx4 %s, %s, %s, %s offen sc1' % (vr(G + 4 * i, 4), vr(V_STR), sr(R_WS, 4), sr(S_T0)))
    return L


def stats_exp(s, which):
    e = V.get()
    s('v_add_u32 %s, %d, %s' % (vr(e), 16 * which, vr(V_TAG)),
      'v_cmp_gt_u32 vcc, 9, %s' % vr(V_N),
      'v_cndmask_b32 %s, 0, %s, vcc' % (vr(e), vr(e)))
    return e


def stats_finish(s, G):
    rs12(s, [G + 4 * i for i in range(6)], [G + 4 * i + 2 for i in range(6)])
    P = V.get(4, top=True)
    for k, src in ((0, G), (1, G + 8)):
        s('v_mul_f32 %s, 0x3ae38e39, %s' % (vr(P + 2 * k), vr(src)))
        s('v_mul_f32 %s, 0x3ae38e39, %s' % (vr(P + 2 * k + 1), vr(src + 2)))
    for k in range(2):
        s('v_fma_f32 %s, -%s, %s, %s' % (vr(P + 2 * k + 1), vr(P + 2 * k), vr(P + 2 * k), vr(P + 2 * k + 1)))
    for k in range(2):
        s('v_max_f32 %s, 0, %s' % (vr(P + 2 * k + 1), vr(P + 2 * k + 1)))
    return P


def bcast(s, dst, P, i):
    k, lane = tile_src(i)
    s('v_mov_b64_dpp %s, %s row_newbcast:%d row_mask:0xf bank_mask:0xf' % (vr(dst, 2), vr(P + 2 * k, 2), lane))


def ln_table(s, layer, G, RBG):
    P = stats_finish(s, G)
    put((G, 24))
    mu = [P, P + 2]
    va = [P + 1, P + 3]
    if layer == 0:
        rbf(s, mu + va)
        for r in va:
            s('v_add_f32 %s, 0x3727c5ac, %s' % (vr(r), vr(r)))
        rbf(s, va)
        for r in va:
            s('v_sqrt_f32 %s, %s' % (vr(r), vr(r)))
        rbf(s, va)
        for r in va:
            s('v_rcp_f32 %s, %s' % (vr(r), vr(r)))
        s('v_mov_b32 %s, %s' % (vr(OFF), vr(mu[0])), 'v_mov_b32 %s, %s' % (vr(OFF + 1), vr(mu[1])))
    else:
        for r in va:
            s('v_add_f32 %s, 0x3727c5ac, %s' % (vr(r), vr(r)))
        for r in va:
            s('v_rsq_f32 %s, %s' % (vr(r), vr(r)))
        s('v_add_f32 %s, %s, %s' % (vr(OFF), vr(OFF), vr(mu[0])), 'v_add_f32 %s, %s, %s' % (vr(OFF + 1), vr(OFF + 1), vr(mu[1])))
    with V.borrow(*HOMES):
        d = V.get(2)
    s('v_cndmask_b32 %s, %s, %s, %s' % (vr(d), vr(va[0]), vr(va[1]), sr(S_MSEL, 2)))
    s('v_cndmask_b32 %s, %s, %s, %s' % (vr(d + 1), vr(mu[0]), vr(mu[1]), sr(S_MSEL, 2)))
    s('v_mul_f32 %s, %s, %s' % (vr(d + 1), vr(d + 1), vr(d)))
    tk = s.mem('s_mov_b64 exec, %s' % sr(S_MACT, 2),
               'ds_write2_b32 %s, %s, %s offset0:0 offset1:2' % (vr(V_TABW), vr(d), vr(d + 1)),
               's_mov_b64 exec, -1')
    put((d, 2))
    return tk, P


def ln_rest(r, layer, P):
    b = V.get(2)
    tmp = V.get(4)
    for i in range(MT):
        x = BASE + 4 * i
        bcast(r, b, P, i)
        for k in range(2):
            r('v_pk_add_f32 %s, %s, %s op_sel:[0,0] op_sel_hi:[1,0] neg_lo:[0,1] neg_hi:[0,1]' % (vr(x + 2 * k, 2), vr(x + 2 * k, 2), vr(b, 2)))
        if layer == 0:
            for k in range(2):
                r('v_cvt_pk_bf16_f32 %s, %s, %s' % (vr(tmp + 2 * k), vr(x + 2 * k), vr(x + 2 * k + 1)))
            for rep in range(3):
                for k in range(2):
                    r('v_and_b32 %s, 0xffff0000, %s' % (vr(tmp + 2 * k + 1), vr(tmp + 2 * k)),
                      'v_lshlrev_b32 %s, 16, %s' % (vr(tmp + 2 * k), vr(tmp + 2 * k)))
                for k in range(2):
                    if rep == 0:
                        r('v_pk_mul_f32 %s, %s, %s op_sel:[0,1] op_sel_hi:[1,1]' % (vr(tmp + 2 * k, 2), vr(tmp + 2 * k, 2), vr(b, 2)))
                    elif rep == 1:
                        r('v_pk_mul_f32 %s, %s, %s' % (vr(tmp + 2 * k, 2), vr(tmp + 2 * k, 2), vr(V_DSK + 2 * k, 2)))
                    else:
                        r('v_pk_add_f32 %s, %s, %s' % (vr(x + 2 * k, 2), vr(x + 2 * k, 2), vr(tmp + 2 * k, 2)))
                if rep < 2:
                    for k in range(2):
                        r('v_cvt_pk_bf16_f32 %s, %s, %s' % (vr(tmp + 2 * k), vr(tmp + 2 * k), vr(tmp + 2 * k + 1)))
        else:
            for k in range(2):
                r('v_pk_fma_f32 %s, %s, %s, 1.0 op_sel:[0,1,0] op_sel_hi:[1,1,0]' % (vr(tmp + 2 * k, 2), vr(V_DSK + 2 * k, 2), vr(b, 2)))
            for k in range(2):
                r('v_pk_mul_f32 %s, %s, %s' % (vr(x + 2 * k, 2), vr(x + 2 * k, 2), vr(tmp + 2 * k, 2)))
    put((P, 4), (b, 2), (tmp, 4))


def a_reads(k, AF):
    s = Stream()
    kp, h = k >> 1, k & 1
    base = V_FA + h + (2 if kp >= 4 else 0)
    off = (kp - (4 if kp >= 4 else 0)) * BLK
    for i in range(MT):
        s('ds_read_b128 %s, %s offset:%d' % (vr(AF + (k & 1) * 24 + i * 4, 4), vr(base), off + i * 2048))
    return s


def b_mfmas(k, ACC, AF, ones=None):
    s = Stream()
    kp, h = k >> 1, k & 1
    if ones is not None:
        for mat in range(2):
            s('v_mfma_f32_16x16x32_bf16 %s, %s, %s, %s' % (vr(ones[1] + mat * 4, 4), vr(ones[0], 4), ar(WB(kp, h, mat), 4),
                                                          '0' if k == 0 else vr(ones[1] + mat * 4, 4)))
    for i in range(MT):
        if i % 3 == 0:
            s.touch(vr(AF + (k & 1) * 24 + i * 4, 12))
        for mat in range(2):
            d = ACC + (mat * MT + i) * 4
            s('v_mfma_f32_16x16x32_bf16 %s, %s, %s, %s' % (vr(d, 4), vr(AF + (k & 1) * 24 + i * 4, 4), ar(WB(kp, h, mat), 4),
                                                          '0' if k == 0 else vr(d, 4)))
    return s


def split(stream, n):
    g = stream.groups
    parts = []
    for i in range(n):
        p = Stream()
        p.groups = g[len(g) * i // n: len(g) * (i + 1) // n]
        parts.append(p)
    return parts


def ensure(sc, tok):
    for q in sc.sides:
        idx = [i for i, g in enumerate(q) if any((not isinstance(it, tuple)) and it.tok is tok for it in g)]
        if idx:
            for _ in range(idx[0] + 1):
                sc._emit(q.pop(0))


def gemm_b(a, ACC, AF, xtok, pre, side, ones=None, vm=None, need=None):
    sc = Sched(a)
    qr, qv, qs = sc.add(Stream()), sc.add(Stream()), sc.add(Stream())
    b = Stream()
    b.wait(xtok(0))
    b('s_barrier')
    b.extend(a_reads(0, AF))
    sc.run(b)
    for k in range(18):
        sc.flush(qr)
        if k == 7:
            print('side leftover at k', k, len(qs))
            sc.flush(qs)
        if need is not None:
            for tk in need.get(k, []):
                ensure(sc, tk)
        if pre[k].groups:
            sc.flush()
            sc.run(pre[k])
        b = Stream()
        if k & 1 and k < 17:
            ensure(sc, xtok((k + 1) >> 1))
            b.wait(xtok((k + 1) >> 1))
            b('s_barrier')
            sides, sc.sides = sc.sides, []
            sc.run(b)
            sc.sides = sides
        if k < 17:
            qr.extend(a_reads(k + 1, AF).groups)
        if vm is not None:
            qv.extend(vm[k].groups)
        qs.extend(side[k].groups)
        sc.run(b_mfmas(k, ACC, AF, ones))
        if OPT['fine'] and k % 3 == 2:
            stamp(a, 'k%d' % k)
    print('gemm_b leftover', sc.pending(), 'model time', sc.t)
    sc.flush()


class Conv:
    pass


def conv_setup_k(s, cv, keep=False):
    s('s_lshl1_add_u32 %s, %s, %s' % (sr(S_T0), sr(S_PAIR), sr(S_B)),
      's_lshl_b32 %s, %s, 12' % (sr(S_T1), sr(S_T0)),
      's_add_u32 %s, %s, %s' % (sr(R_SK), sr(P_SSK), sr(S_T1)),
      's_addc_u32 %s, %s, 0' % (sr(R_SK + 1), sr(P_SSK + 1)),
      's_and_b32 %s, %s, 0xffff' % (sr(R_SK + 1), sr(R_SK + 1)),
      's_mov_b32 %s, 4096' % sr(R_SK + 2),
      's_mov_b32 %s, 0x20000' % sr(R_SK + 3))
    cv.SD = V.get(2, top=True)
    cv.HD = V.get(top=True)
    s('s_lshl_b32 %s, %s, 2' % (sr(S_T1), sr(S_PAIR)),
      'v_mov_b32 %s, %s' % (vr(cv.SD), sr(S_T1)),
      'global_load_dword %s, %s, %s' % (vr(cv.SD), vr(cv.SD), sr(P_SSD, 2)))
    s('v_add_u32 %s, %s, %s' % (vr(cv.HD), vr(V_N), vr(V_Q)),
      'v_subrev_u32 %s, 16, %s' % (vr(cv.HD), vr(cv.HD)),
      'v_lshlrev_b32 %s, 2, %s' % (vr(cv.HD), vr(cv.HD)),
      'buffer_load_dword %s, %s, %s, 0 offen' % (vr(cv.HD), vr(cv.HD), sr(R_SK, 4)))
    for c in range(2):
        g = ['s_mul_i32 %s, %s, %d' % (sr(S_T2), sr(S_B), KC_CH),
             's_mul_i32 %s, %s, %d' % (sr(S_T3), sr(S_A), (16 + 8320) if c == 0 else 8320),
             's_add_u32 %s, %s, %s' % (sr(S_T3), sr(S_T3), sr(S_T2)),
             's_add_u32 m0, %s, %d' % (sr(S_T3), L_KC + 64 + (0 if c == 0 else 16 + 4160)),
             's_lshl_b32 %s, %s, 3' % (sr(S_T1), sr(S_A)),
             's_add_u32 %s, %s, %d' % (sr(S_T1), sr(S_T1), 4 * c)]
        for part in range(4):
            g.append('buffer_load_dwordx4 %s, %s, %s offen offset:%d nt lds' % (vr(V_L16), sr(R_SK, 4), sr(S_T1), part * 1024))
        cv.ktk = s.mem(*g)


def conv_u_prep(s, cv):
    cv.UA = V.get(2, 1, top=True)
    cv.UE = V.get(top=True)
    cv.UN = V.get(top=True)
    cv.U = V.get(16, top=True)
    U, UA, UE = cv.U, cv.UA, cv.UE
    s('s_lshl1_add_u32 %s, %s, %s' % (sr(S_T0), sr(S_PAIR), sr(S_B)),
      's_mul_i32 %s, %s, %d' % (sr(S_T1), sr(S_T0), KVT_STR),
      's_mul_i32 %s, %s, %d' % (sr(S_T3), sr(S_A), 171 * 16),
      's_add_u32 %s, %s, %s' % (sr(S_T1), sr(S_T1), sr(S_T3)),
      's_add_u32 %s, %s, %d' % (sr(S_T1), sr(S_T1), WS_KVT + 10 * 16),
      'v_add_u32 %s, %s, %s' % (vr(UA), sr(S_T1), vr(V_L16)))
    s('s_sub_u32 %s, 44, %s' % (sr(S_T0), sr(S_A)),
      'v_cmp_gt_u32 vcc, %s, %s' % (sr(S_T0), vr(V_LANE)),
      'v_cndmask_b32 %s, %s, %s, vcc' % (vr(UA + 1), vr(V_OOB), vr(UA)),
      'v_cndmask_b32 %s, 0, %s, vcc' % (vr(UE), vr(V_TAG)))
    s('s_sub_u32 %s, 43, %s' % (sr(S_T0), sr(S_A)),
      'v_cmp_gt_u32 vcc, %s, %s' % (sr(S_T0), vr(V_LANE)),
      'v_cndmask_b32 %s, %s, %s, vcc' % (vr(cv.UN), vr(V_OOB), vr(UA)))
    cv.uloads = []
    for i in range(3):
        cv.uloads.append('buffer_load_dwordx4 %s, %s, %s, 0 offen offset:%d sc1' % (vr(U + 4 * i, 4), vr(UA + (i >> 1)), sr(R_WS, 4), 1024 * i))
    for i in range(3):
        cv.uloads.append('buffer_load_dword %s, %s, %s, 0 offen offset:%d sc1' % (vr(U + 12 + i), vr(UA if i < 2 else cv.UN), sr(R_WS, 4), 1024 * i + 16))
    cv.uchecks = [(U + 3, U + 7, V_TAG), (U + 11, None, UE)]


def conv_addr(s, cv):
    cv.ah, cv.az, cv.au, cv.vN, cv.vM = [V.get(top=True) for _ in range(5)]
    t, e = V.get(), V.get()
    ah, az, au, vN, vM = cv.ah, cv.az, cv.au, cv.vN, cv.vM
    s('v_mul_u32_u24 %s, 4160, %s' % (vr(ah), vr(V_Q)))
    s('v_min_u32 %s, 1, %s' % (vr(e), vr(V_Q)))
    s('v_lshl_add_u32 %s, %s, 4, %s' % (vr(ah), vr(e), vr(ah)))
    s('v_lshl_add_u32 %s, %s, 2, %s' % (vr(ah), vr(V_N), vr(ah)))
    s('s_mul_i32 %s, %s, %d' % (sr(S_T2), sr(S_B), KC_CH),
      's_add_u32 %s, %s, %d' % (sr(S_T3), sr(S_T2), L_KC),
      'v_add_u32 %s, %s, %s' % (vr(ah), sr(S_T3), vr(ah)))
    s('s_mul_i32 %s, %s, %d' % (sr(S_T2), sr(S_B), UC_CH),
      's_mul_i32 %s, %s, 4640' % (sr(S_T3), sr(S_A)),
      's_add_u32 %s, %s, %s' % (sr(S_T3), sr(S_T3), sr(S_T2)),
      'v_lshl_add_u32 %s, %s, 3, %s' % (vr(az), vr(V_LANE), sr(S_T3)))
    s('v_mul_u32_u24 %s, 12, %s' % (vr(au), vr(V_LANE)))
    s('s_mul_i32 %s, %s, %d' % (sr(S_T2), sr(S_B), UC_CH),
      's_mul_i32 %s, %s, %d' % (sr(S_T3), sr(S_A), 171 * 12),
      's_add_u32 %s, %s, %s' % (sr(S_T3), sr(S_T3), sr(S_T2)),
      'v_add_u32 %s, %s, %s' % (vr(au), sr(S_T3), vr(au)))
    s('v_add_u32 %s, 1, %s' % (vr(t), vr(V_N)))
    s('v_and_b32 %s, 3, %s' % (vr(e), vr(t)))
    s('v_mul_u32_u24 %s, 4160, %s' % (vr(vN), vr(e)))
    s('v_min_u32 %s, 1, %s' % (vr(e), vr(e)))
    s('v_lshrrev_b32 %s, 2, %s' % (vr(t), vr(t)))
    s('v_add3_u32 %s, %s, %s, %s' % (vr(t), vr(t), vr(e), vr(V_Q)))
    s('v_lshl_add_u32 %s, %s, 4, %s' % (vr(vN), vr(t), vr(vN)))
    s('s_mul_i32 %s, %s, %d' % (sr(S_T3), sr(S_B), KC_CH),
      's_lshl_b32 %s, %s, 8' % (sr(S_T1), sr(S_A)),
      's_add_u32 %s, %s, %s' % (sr(S_T3), sr(S_T3), sr(S_T1)),
      's_add_u32 %s, %s, %d' % (sr(S_T3), sr(S_T3), L_KC),
      'v_add_u32 %s, %s, %s' % (vr(vN), sr(S_T3), vr(vN)))
    s('v_and_b32 %s, 1, %s' % (vr(t), vr(V_N)))
    s('v_sub_u32 %s, 1, %s' % (vr(t), vr(t)))
    s('v_mul_u32_u24 %s, 4640, %s' % (vr(vM), vr(t)))
    s('v_lshrrev_b32 %s, 1, %s' % (vr(t), vr(V_N)))
    s('v_lshlrev_b32 %s, 6, %s' % (vr(t), vr(t)))
    s('v_sub_u32 %s, %s, %s' % (vr(vM), vr(vM), vr(t)))
    s('v_lshl_add_u32 %s, %s, 4, %s' % (vr(vM), vr(V_Q), vr(vM)))
    s('s_mul_i32 %s, %s, %d' % (sr(S_T2), sr(S_B), UC_CH),
      's_lshl_b32 %s, %s, 8' % (sr(S_T1), sr(S_A)),
      's_add_u32 %s, %s, %s' % (sr(S_T3), sr(S_T2), sr(S_T1)),
      's_add_u32 %s, %s, %d' % (sr(S_T3), sr(S_T3), L_UC + 448),
      'v_add_u32 %s, %s, %s' % (vr(vM), sr(S_T3), vr(vM)))
    return [t, e]


def conv_body(a, cv, side=None, pre_issued=True, early=None, release=True, last=None):
    U, HD = cv.U, cv.HD
    vN, vM = cv.vN, cv.vM
    a('ds_write_b32 %s, %s' % (vr(cv.ah), vr(HD)))
    a('ds_write_b64 %s, %s offset:%d' % (vr(cv.az), vr(V_ZERO, 2), L_UC + 4096))
    if early is not None:
        a.extend(early)
    poll(a, cv.uloads, cv.uchecks, pre_issued=pre_issued, sleep=OPT['slp2'] if pre_issued else OPT['slp'])
    a.touch(vr(U, 15))
    U1 = V.get(9, 1)
    for i in range(3):
        if i == 2:
            a('v_cmp_gt_u32 vcc, 43, %s' % vr(V_LANE), 's_mov_b64 exec, vcc')
        for k in range(3):
            a('ds_write_b32 %s, %s offset:%d' % (vr(cv.au), vr(U + 4 * i + k), L_UC - 8 + 768 * i + 4 * k))
            hi = U + 4 * i + k + 1 if k < 2 else U + 12 + i
            a('v_alignbit_b32 %s, %s, %s, 16' % (vr(U1 + 3 * i + k), vr(hi), vr(U + 4 * i + k)))
        for k in range(3):
            tk = a.mem('ds_write_b32 %s, %s offset:%d' % (vr(cv.au), vr(U1 + 3 * i + k), L_UC - 8 + 4640 + 768 * i + 4 * k))
    a('s_mov_b64 exec, -1')
    a.wait(tk, cv.ktk)
    a('s_barrier')
    put((U, 16), (U1, 9), HD, (cv.UA, 2), cv.UE, cv.UN)
    if release:
        put(cv.ah, cv.az, cv.au)
    stamp(a, 'conv_ld')
    if not pre_issued:
        astamp(a, 11)
    with V.borrow((GP, 12)):
        CA = [V.get(4) for _ in range(8)]
    FN, FM = [[V.get(4) for _ in range(8)] for _ in range(2)]
    AW = V.get(3, 1)
    t = V.get()
    rdN = lambda x, cc: 'ds_read_b128 %s, %s offset:%d' % (vr(FN[x], 4), vr(vN), 512 * x + 64 * cc)
    rdM = lambda x, cc: 'ds_read_b128 %s, %s offset:%d' % (vr(FM[x], 4), vr(vM), 512 * (7 - x) + 64 * cc)
    m = Stream()
    m(rdN(0, 0))
    for x in range(7, -1, -1):
        m(rdM(x, 0))
    m('v_lshlrev_b32 %s, 1, %s' % (vr(t), vr(V_N)))
    m('v_lshl_add_u32 %s, %s, 6, %s' % (vr(t), vr(V_Q), vr(t)))
    for j in range(3):
        m('v_add_u32 %s, %d, %s' % (vr(AW + j), j, vr(t)))
        m('v_mul_u32_u24 %s, 171, %s' % (vr(AW + j), vr(AW + j)))
        m('v_lshrrev_b32 %s, 9, %s' % (vr(AW + j), vr(AW + j)))
        m('v_add_u32 %s, %s, %s' % (vr(AW + j), vr(AW + j), vr(t)))
        m('s_mul_i32 %s, %s, %d' % (sr(S_T3), sr(S_WAVE), CO_W),
          'v_lshl_add_u32 %s, %s, 2, %s' % (vr(AW + j), vr(AW + j), sr(S_T3)))

    def stage(m, i):
        tk = None
        for r in range(4):
            c = 256 * i + 32 * (r >> 1) + (r & 1)
            tk = m.mem('ds_write_b32 %s, %s offset:%d' % (vr(AW + c % 3), vr(CA[i] + r), L_CO + 4 * (c + c // 3)))
        return tk

    for cc in range(4):
        if cc == 3:
            sc = Sched(a)
            sc.VM_GAP = 110
            if side is not None:
                qs_ = [sc.add(x) for x in side]
            sc.run(m)
            if side is not None:
                sc.flush(qs_[0])
            sc.VM_GAP = 30
            m = Stream()
            if last is not None:
                last(m, None)
        for aa in range(8):
            for dl in range(7 - aa, -1, -1):
                i = aa + dl
                z = cc == 0 and aa == 0
                m('v_mfma_f32_16x16x32_bf16 %s, %s, %s, %s' % (vr(CA[i], 4), vr(FM[dl], 4), vr(FN[aa], 4),
                                                              '0' if z else vr(CA[i], 4)))
                if cc == 0 and aa == 0 and dl > 0:
                    m(rdN(8 - dl, 0))
                if dl == 7 - aa:
                    if cc < 3:
                        m(rdM(dl, cc + 1))
                    elif last is not None:
                        last(m, FM[dl])
            if cc < 3:
                m(rdN(aa, cc + 1))
            else:
                if last is not None:
                    last(m, FN[aa])
                if 2 <= aa:
                    stage(m, aa - 2)
    stage(m, 6)
    cv.stk = stage(m, 7)
    sc.run(m)
    print('conv leftover', sc.pending(), 'model time', sc.t)
    sc.flush()
    put(*[(r, 4) for r in CA])
    if last is None:
        put(*[(r, 4) for r in FN + FM])
    put((AW, 3), t)
    if release:
        put(vN, vM)
    stamp(a, 'conv_mm')
    if not pre_issued:
        astamp(a, 12)


def conv_final(s, cv):
    SD = cv.SD
    ay, ak, ag = V.get(), V.get(), V.get()
    Y, KV, D = V.get(16), V.get(4), V.get(6, 1)
    GO = V.get(4)
    t = V.get()
    s('v_and_b32 %s, 0xffff0000, %s' % (vr(SD + 1), vr(SD)))
    s('v_lshlrev_b32 %s, 16, %s' % (vr(SD), vr(SD)))
    s('v_lshlrev_b32 %s, 4, v0' % vr(ay))
    s('v_mul_u32_u24 %s, 6, v0' % vr(ak))
    s('v_sub_u32 %s, %d, %s' % (vr(ak), 4090, vr(ak)))
    s('v_and_b32 %s, -4, %s' % (vr(ak), vr(ak)))
    s('v_and_b32 %s, 1, v0' % vr(t))
    s('v_sub_u32 %s, 1, %s' % (vr(t), vr(t)))
    s('v_mul_u32_u24 %s, 4640, %s' % (vr(t), vr(t)))
    s('v_add_u32 %s, %s, %s' % (vr(ak), vr(ak), vr(t)))
    s('s_mul_i32 %s, %s, %d' % (sr(S_T1), sr(S_PAIR), G_STR),
      's_add_u32 %s, %s, %d' % (sr(S_T1), sr(S_T1), WS_G),
      'v_add_u32 %s, %s, %s' % (vr(ag), sr(S_T1), vr(ay)))
    s('v_mov_b32 %s, %s' % (vr(GO + 3), vr(V_TAG)))
    for j in range(3):
        if j > 0:
            s('v_subrev_u32 %s, 1536, %s' % (vr(ak), vr(ak)))
            s('v_add_u32 %s, 4096, %s' % (vr(ag), vr(ag)))
        if j == 2:
            s('v_max_i32 %s, 0, %s' % (vr(ak), vr(ak)))
            s('v_cmp_gt_u32 vcc, 192, v0', 'v_cndmask_b32 %s, %s, %s, vcc' % (vr(ag), vr(V_OOB), vr(ag)))
        for ch in range(2):
            for k in range(2):
                s('ds_read_b32 %s, %s offset:%d' % (vr(KV + 2 * ch + k), vr(ak), L_UC + ch * UC_CH + 4 * k))
        for w in range(4):
            s('ds_read_b128 %s, %s offset:%d' % (vr(Y + 4 * w, 4), vr(ay), L_CO + w * CO_W + j * 4096))
        for ch in range(2):
            d = D + 3 * ch
            s('v_lshlrev_b32 %s, 16, %s' % (vr(d), vr(KV + 2 * ch + 1)))
            s('v_and_b32 %s, 0xffff0000, %s' % (vr(d + 1), vr(KV + 2 * ch)))
            s('v_lshlrev_b32 %s, 16, %s' % (vr(d + 2), vr(KV + 2 * ch)))
            for e in range(3):
                s('v_mul_f32 %s, %s, %s' % (vr(d + e), vr(d + e), vr(SD + ch)))
        for ch in range(2):
            d, y = D + 3 * ch, Y + 8 * ch
            for e in range(3):
                s('v_add_f32 %s, %s, %s' % (vr(y + e), vr(y + e), vr(y + 4 + e)))
            for e in range(3):
                s('v_cvt_pk_bf16_f32 %s, %s, %s' % (vr(d + e), vr(y + e), vr(d + e)))
            for e in range(3):
                s('v_lshlrev_b32 %s, 16, %s' % (vr(y + e), vr(d + e)))
                s('v_and_b32 %s, 0xffff0000, %s' % (vr(d + e), vr(d + e)))
                s('v_add_f32 %s, %s, %s' % (vr(d + e), vr(d + e), vr(y + e)))
        for e in range(3):
            s('v_cvt_pk_bf16_f32 %s, %s, %s' % (vr(GO + e), vr(D + e), vr(D + 3 + e)))
        s('buffer_store_dwordx4 %s, %s, %s, 0 offen sc1' % (vr(GO, 4), vr(ag), sr(R_WS, 4)))
    s('s_nop 1')
    return [ay, ak, ag, (Y, 16), (KV, 4), (D, 6), (GO, 4), t, (SD, 2)]


ACC = V.get(48, top=True)
AF = V.get(48, top=True)
with V.borrow((GP, 12)):
    ONES = V.get(4)
    RBA = V.get(8)
xtk[1] = x_dma(a, 1, 0)
a('global_load_dwordx2 %s, %s, %s' % (vr(V_DSK, 2), vr(dad), sr(P_DSK, 2)))
put(lad, dad)
tag_ready(a)
a('v_cmp_gt_u32 vcc, 9, %s' % vr(V_N), 'v_cndmask_b32 %s, 0, %s, vcc' % (vr(V_EXP9), vr(V_TAG)))
for i in range(4):
    a('v_mov_b32 %s, 0x3f803f80' % vr(ONES + i))
XS = V.get(12, 2, top=True)
lp = Stream()
lam_compute(lp, LAMT, False, LAM)
L2, L4, L8, L48, L72, L96, L192, L288 = [V.get(2) for _ in range(8)]
cmul(lp, L2, LAM, LAM)
cmul(lp, L4, L2, L2)
cmul(lp, L8, L4, L4)
cmul(lp, L12, L8, L4)
cmul(lp, L24, L12, L12)
cmul(lp, L48, L24, L24)
cmul(lp, L72, L48, L24)
cmul(lp, L96, L48, L48)
cmul(lp, L192, L96, L96)
cmul(lp, L288, L192, L96)
cmul(lp, L384, L192, L192)
for (dst, opts) in ((LQ96, (L96, L192, L288)), (LQ24, (L24, L48, L72))):
    lp('v_mov_b32 %s, 1.0' % vr(dst), 'v_mov_b32 %s, 0' % vr(dst + 1))
    for qi, o in enumerate(opts):
        lp('v_cmp_eq_u32 vcc, %d, %s' % (qi + 1, vr(V_Q)),
           'v_cndmask_b32 %s, %s, %s, vcc' % (vr(dst), vr(dst), vr(o)),
           'v_cndmask_b32 %s, %s, %s, vcc' % (vr(dst + 1), vr(dst + 1), vr(o + 1)))
for r in (L2, L4, L8, L48, L72, L96, L192, L288):
    put((r, 2))
V.free -= set(range(LAMT, LAMT + 4))
s0 = Stream()
s0.wait(xtk[0])
s0('s_barrier')
for i in range(MT):
    s0('ds_read_b64 %s, %s offset:%d' % (vr(XS + 2 * i, 2), vr(V_WA), 2048 * i))
for i in range(MT):
    for k in range(2):
        s0('v_lshlrev_b32 %s, 16, %s' % (vr(BASE + 4 * i + 2 * k), vr(XS + 2 * i + k)))
        s0('v_and_b32 %s, 0xffff0000, %s' % (vr(BASE + 4 * i + 2 * k + 1), vr(XS + 2 * i + k)))
with V.borrow(*HOMES):
    stats_publish(s0, BASE, 0, False)
s0.extend(lp)
s0('v_and_b32 %s, 0xffff0000, %s' % (vr(V_DSK + 3), vr(V_DSK + 1)))
s0('v_lshlrev_b32 %s, 16, %s' % (vr(V_DSK + 2), vr(V_DSK + 1)))
s0('v_and_b32 %s, 0xffff0000, %s' % (vr(V_DSK + 1), vr(V_DSK)))
s0('v_lshlrev_b32 %s, 16, %s' % (vr(V_DSK), vr(V_DSK)))
d1 = Stream()
xtk[2] = x_dma(d1, 2, 0)
btk[2] = b_dma(d1, 2)
xtk[3] = x_dma(d1, 3, 0)
rt = b_read(d1, 0)
xtk[4] = x_dma(d1, 4, 0)
d1.wait(rt)
btk[3] = b_dma(d1, 3)
rt = b_read(d1, 1)
xtk[5] = x_dma(d1, 5, 0)
d1.wait(rt)
btk[4] = b_dma(d1, 4)
a.weave(s0, d1)
stamp(a, 'lam')
put((V_DUMMY, 4), (LAMT, 4))
pre = {k: Stream() for k in range(18)}
side = {k: Stream() for k in range(18)}


class Pace:
    def __init__(self, per=3):
        self.vm = {k: Stream() for k in range(18)}
        self.k, self.n, self.per = 0, 0, per

    def add(self, st, earliest=0):
        if self.k < earliest:
            self.k, self.n = earliest, 0
        for g in st.groups:
            if self.n >= self.per:
                self.k, self.n = self.k + 1, 0
            self.vm[self.k].groups.append(g)
            self.n += sum(1 for it in g if not isinstance(it, tuple) and it.kind == 'vmem')
        return self.k


pc = Pace(OPT['per'])
need = {}
for blk in range(5, 9):
    st = Stream()
    rt = b_read(st, blk - 3)
    need[2 * (blk - 3)] = [rt]
    if blk < 8:
        xtk[blk + 1] = x_dma(st, blk + 1, 0)
    st.wait(rt)
    btk[blk] = b_dma(st, blk)
    kk = pc.add(st)
    print('block', blk, 'issued by k', kk)
cv = Conv()
cfa, cfe, cfv = V.get(top=True), V.get(top=True), V.get(top=True)
side[0]('s_mul_i32 %s, %s, 43' % (sr(S_T1), sr(S_CG)),
         's_lshr_b32 %s, %s, 5' % (sr(S_T1), sr(S_T1)),
         's_mul_i32 %s, %s, %d' % (sr(S_T1), sr(S_T1), 18 * 64),
         's_add_u32 %s, %s, %d' % (sr(S_T1), sr(S_T1), WS_CPF),
         'v_lshl_add_u32 %s, %s, 6, %s' % (vr(cfa), vr(V_LANE), sr(S_T1)))
side[0]('v_cmp_gt_u32 vcc, 36, %s' % vr(V_LANE),
         'v_cndmask_b32 %s, %s, %s, vcc' % (vr(cfa), vr(V_OOB), vr(cfa)),
         'v_cndmask_b32 %s, 0, %s, vcc' % (vr(cfe), vr(V_TAG)))
cfl = 'buffer_load_dword %s, %s, %s, 0 offen sc1' % (vr(cfv), vr(cfa), sr(R_WS, 4))
side[0]('s_mul_i32 %s, %s, %d' % (sr(S_T0), sr(S_PT), 37 * 1024),
        's_add_u32 %s, %s, %d' % (sr(S_CPB), sr(S_T0), WS_CP))
ca_ = Stream()
carel = conv_addr(ca_, cv)
side[0].extend(ca_)
stt = Stream()
stt(cfl)
ta = carel[0]
stt('v_lshrrev_b32 %s, 3, %s' % (vr(ta), vr(V_LANE)),
    'v_mul_u32_u24 %s, %d, %s' % (vr(ta), 36864 - 1024, vr(ta)),
    'v_lshl_add_u32 %s, %s, 7, %s' % (vr(ta), vr(V_LANE), vr(ta)),
    'v_cmp_gt_u32 vcc, 48, %s' % vr(V_LANE),
    'v_cndmask_b32 %s, %s, %s, vcc' % (vr(ta), vr(V_OOB), vr(ta)))
stt('s_mul_i32 %s, %s, 216' % (sr(S_T2), sr(S_RB)),
    's_add_u32 %s, %s, %s' % (sr(S_T2), sr(S_T2), sr(S_PT)),
    's_lshl_b32 %s, %s, 10' % (sr(S_T2), sr(S_T2)),
    's_add_u32 %s, %s, %d' % (sr(S_T2), sr(S_T2), WS_H),
    'buffer_load_dword %s, %s, %s, %s offen sc1 ;junk' % (vr(V_JUNK), vr(ta), sr(R_WS, 4), sr(S_T2)))
stt('s_mov_b32 %s, %d' % (sr(S_T2), WS_ST + ST_SZ),
    'buffer_load_dword %s, %s, %s, %s offen sc1 ;junk' % (vr(V_JUNK), vr(V_STW), sr(R_WS, 4), sr(S_T2)))
stt('v_lshrrev_b32 %s, 1, %s' % (vr(ta), vr(V_LANE)),
    'v_min_u32 %s, 2, %s' % (vr(ta), vr(ta)),
    'v_mul_u32_u24 %s, %d, %s' % (vr(ta), NRB * 256, vr(ta)),
    'v_and_b32 %s, 1, %s' % (vr(carel[1]), vr(V_LANE)),
    'v_lshl_add_u32 %s, %s, 7, %s' % (vr(ta), vr(carel[1]), vr(ta)),
    's_lshl_b32 %s, %s, 8' % (sr(S_T2), sr(S_RB)),
    's_add_u32 %s, %s, %d' % (sr(S_T2), sr(S_T2), WS_HF),
    'buffer_load_dword %s, %s, %s, %s offen sc1 ;junk' % (vr(V_JUNK), vr(ta), sr(R_WS, 4), sr(S_T2)))
with V.borrow(*HOMES):
    G0 = V.get(24)
xe = V.get()
side[0]('v_add_u32 %s, %s, %s' % (vr(xe), sr(S_XCC), vr(V_TAG)),
        'v_cmp_gt_u32 vcc, 9, %s' % vr(V_N),
        'v_cndmask_b32 %s, 0, %s, vcc' % (vr(xe), vr(xe)))
gl = stats_loads(0, G0)
st = Stream()
for i in range(0, 12, 2):
    st(gl[i], gl[i + 1])
print('gather by k', pc.add(st, 7))
kvm = KVm()
st = Stream()
with V.borrow(*HOMES):
    kv_dma(st, kvm)
print('kv dma by k', pc.add(st, 7))
print('touch by k', pc.add(stt))
for kp, k in ((6, 8), (7, 10), (8, 12)):
    need[2 * kp] = [b_read(side[k], kp)]
lastb = need[16][0]


def s0_poll(s):
    p = Stream()
    L, Lc, Lr = newlabel('poll'), newlabel('pollc'), newlabel('pollr')
    acc = V.get(2, 1)
    p.touch(vr(G0, 24))
    p('v_xor_b32 %s, %s, %s' % (vr(acc), vr(G0 + 1), vr(V_EXP9)))
    for i in range(MT):
        if i:
            p('v_bitop3_b32 %s, %s, %s, %s bitop3:0xf6' % (vr(acc), vr(acc), vr(G0 + 4 * i + 1), vr(V_EXP9)))
        p('v_bitop3_b32 %s, %s, %s, %s bitop3:0xf6' % (vr(acc), vr(acc), vr(G0 + 4 * i + 3), vr(xe)))
    p('v_cmp_ne_u32 vcc, 0, %s' % vr(acc))
    p('s_mov_b32 %s, %d' % (sr(S_FAST), 0 if OPT['slow'] else 1))
    p('s_cmp_lg_u64 vcc, 0')
    p('s_cbranch_scc1 %s' % L)
    p.label(Lc)
    s.join(p)
    tail.label(L)
    tail('s_mov_b32 %s, %d' % (sr(S_SPIN), SPIN))
    tail.label(Lr)
    for t in gl:
        tail(t)
    tail('s_waitcnt vmcnt(0)')
    tail('v_mov_b32 %s, 0' % vr(acc))
    for i in range(MT):
        tail('v_sub_u32 %s, %s, %s' % (vr(acc + 1), vr(G0 + 4 * i + 3), vr(V_EXP9)))
        tail('v_lshrrev_b32 %s, 4, %s' % (vr(acc + 1), vr(acc + 1)))
        tail('v_or_b32 %s, %s, %s' % (vr(acc), vr(acc), vr(acc + 1)))
        tail('v_bitop3_b32 %s, %s, %s, %s bitop3:0xf6' % (vr(acc), vr(acc), vr(G0 + 4 * i + 1), vr(V_EXP9)))
    tail('v_cmp_ne_u32 vcc, 0, %s' % vr(acc))
    tail('s_sub_u32 %s, %s, 1' % (sr(S_SPIN), sr(S_SPIN)))
    tail('s_cselect_b64 vcc, 0, vcc')
    tail('s_cmp_lg_u64 vcc, 0')
    tail('s_cbranch_scc1 %s' % Lr)
    tail('v_cmp_ne_u32 vcc, %s, %s' % (vr(G0 + 3), vr(xe)))
    tail('s_cmp_eq_u64 vcc, 0')
    tail('s_cselect_b32 %s, %d, 0' % (sr(S_FAST), 0 if OPT['slow'] else 1))
    tail('s_branch %s' % Lc)
    put((acc, 2))


s0_poll(side[12])
ttk, LNP0 = ln_table(side[12], 0, G0, None)
put(xe)
pre[15].wait(ttk, lastb)
NCP0 = OPT['ncp0']


def WC(s, j):
    idx = s * 4 + j
    if idx < 28:
        return ar(144 + idx * 4, 4)
    return vr(WCV + (idx - 28) * 4, 4)


def cp_load(s_, s, j):
    ld = 'buffer_load_dwordx4 %s, %s, %s, %s offen offset:%d sc1' % (WC(s, j), vr(V_L16), sr(R_WS, 4), sr(S_CPB), j * 1024)
    if j == 3:
        s_(ld, 's_add_u32 %s, %s, 4096' % (sr(S_CPB), sr(S_CPB)))
    else:
        s_(ld)


put((V_DB, 2), (V_DX, 3))
st = Stream()
conv_setup_k(st, cv)
print('K by k', pc.add(st, 15))
gemm_b(a, ACC, AF, lambda s: xtk[s], pre, side, ones=(ONES, RBA), vm=pc.vm, need=need)
poll(a, [cfl], [(cfv, None, cfe)], pre_issued=True, sleep=6)
put(cfa, cfe, cfv)
a('v_mov_b32 %s, %s' % (vr(RB), vr(RBA)))
a('v_mov_b32 %s, %s' % (vr(RB + 1), vr(RBA + 4)))
put((ONES, 4), (RBA, 8))
put(*kvm.rel)
put(*carel)
put((V_FB, 2))
stamp(a, 'gemmB1')


def scan_phase(a, layer, ACC, AF, mid=None, x1=None, x2=None):
    NJ = 2 * MT
    re = lambda j: ACC + (j >> 1) * 4 + (j & 1) * 2
    im = lambda j: ACC + 4 * MT + (j >> 1) * 4 + (j & 1) * 2
    TB = AF
    for j in range(NJ):
        a('ds_read_b128 %s, %s offset:%d' % (vr(TB + 4 * j, 4), vr(V_TABR), 16 * j))

    def prescale(j):
        a('v_pk_mul_f32 %s, %s, %s' % (vr(re(j), 2), vr(re(j), 2), vr(TB + 4 * j, 2)))
        a('v_pk_mul_f32 %s, %s, %s' % (vr(im(j), 2), vr(im(j), 2), vr(TB + 4 * j, 2)))
        a('v_pk_fma_f32 %s, %s, %s, %s op_sel:[0,0,0] op_sel_hi:[1,0,1] neg_lo:[1,0,0] neg_hi:[1,0,0]' %
          (vr(re(j), 2), vr(TB + 4 * j + 2, 2), vr(RB, 2), vr(re(j), 2)))
        a('v_pk_fma_f32 %s, %s, %s, %s op_sel:[0,1,0] op_sel_hi:[1,1,1] neg_lo:[1,0,0] neg_hi:[1,0,0]' %
          (vr(im(j), 2), vr(TB + 4 * j + 2, 2), vr(RB, 2), vr(im(j), 2)))

    def step(dr, di, pr, pi, br, bi):
        a('v_pk_fma_f32 %s, %s, %s, %s op_sel:[0,0,0] op_sel_hi:[1,0,1]' % (vr(dr, 2), vr(pr, 2), vr(LAM, 2), vr(br, 2)))
        a('v_pk_fma_f32 %s, %s, %s, %s op_sel:[0,0,0] op_sel_hi:[1,0,1]' % (vr(di, 2), vr(pi, 2), vr(LAM, 2), vr(bi, 2)))
        a('v_pk_fma_f32 %s, %s, %s, %s op_sel:[0,1,0] op_sel_hi:[1,1,1] neg_lo:[1,0,0] neg_hi:[1,0,0]' %
          (vr(dr, 2), vr(pi, 2), vr(LAM, 2), vr(dr, 2)))
        a('v_pk_fma_f32 %s, %s, %s, %s op_sel:[0,1,0] op_sel_hi:[1,1,1]' % (vr(di, 2), vr(pr, 2), vr(LAM, 2), vr(di, 2)))

    with V.borrow(*HOMES):
        E = V.get(8)
        pub = V.get(4)
    prescale(0)
    pr, pi = re(0), im(0)
    for j in range(1, NJ):
        prescale(j)
        dr, di = E + (j & 1) * 4, E + (j & 1) * 4 + 2
        step(dr, di, pr, pi, re(j), im(j))
        pr, pi = dr, di
        if x1 is not None and j % 3 == 1:
            x1(a)
    EA, F = V.get(2), V.get(2)
    a('v_mov_b32 %s, %s' % (vr(EA), vr(pr)))
    a('v_mov_b32 %s, %s' % (vr(EA + 1), vr(pi)))
    a('v_mov_b32 %s, %s' % (vr(F), vr(pr + 1)))
    a('v_mov_b32 %s, %s' % (vr(F + 1), vr(pi + 1)))
    FA = E
    cfma(a, FA, EA, L12, F)
    a('v_mov_b64 %s, %s' % (vr(FA + 2, 2), vr(FA, 2)))
    a('v_mov_b32 %s, %s' % (vr(pub + 1), vr(V_TAG)))
    a('v_mov_b32 %s, %s' % (vr(pub + 3), vr(V_TAG)))
    a('v_permlane16_swap_b32 %s, %s' % (vr(FA), vr(FA + 2)))
    a('v_permlane16_swap_b32 %s, %s' % (vr(FA + 1), vr(FA + 3)))
    a('s_lshl_b32 %s, %s, 13' % (sr(S_T0), sr(S_PT)))
    a('v_mov_b64 %s, %s' % (vr(FA + 4, 2), vr(FA, 2)))
    a('v_mov_b64 %s, %s' % (vr(FA + 6, 2), vr(FA + 2, 2)))
    a('s_add_u32 %s, %s, %d' % (sr(S_T0), sr(S_T0), WS_E + layer * 36 * 8192))
    for k in range(4):
        a('v_permlane32_swap_b32 %s, %s' % (vr(FA + k), vr(FA + 4 + k)))
    cfma(a, FA + 2, FA, L24, FA + 2)
    cfma(a, FA + 4, FA + 2, L24, FA + 4)
    cfma(a, FA + 6, FA + 4, L24, FA + 6)
    a('v_mov_b32 %s, %s' % (vr(pub), vr(FA + 6)))
    a('v_mov_b32 %s, %s' % (vr(pub + 2), vr(FA + 7)))
    a('buffer_store_dwordx4 %s, %s, %s, %s offen sc1' % (vr(pub, 4), vr(V_EW), sr(R_WS, 4), sr(S_T0)))
    stamp(a, 'e_pub%d' % layer)
    PQ = F
    a('v_mov_b32 %s, 0' % vr(PQ))
    a('v_mov_b32 %s, 0' % vr(PQ + 1))
    for qi in range(1, 4):
        a('v_cmp_eq_u32 vcc, %d, %s' % (qi, vr(V_Q)),
          'v_cndmask_b32 %s, %s, %s, vcc' % (vr(PQ), vr(PQ), vr(FA + 2 * qi - 2)),
          'v_cndmask_b32 %s, %s, %s, vcc' % (vr(PQ + 1), vr(PQ + 1), vr(FA + 2 * qi - 1)))
    put((pub, 4), (E, 8), (AF, 48))
    NL = 6
    loads, checks, box = [], [], []

    def mk(cs):
        CG_ = V.get(4 * NL)
        AD, EX = V.get(NL, 1), V.get(NL, 1)
        box.extend([CG_, AD, EX])
        cs('s_lshl_b32 %s, %s, 13' % (sr(S_T0), sr(S_PT)),
           's_add_u32 %s, %s, %d' % (sr(S_T0), sr(S_T0), WS_E + layer * 36 * 8192),
           'v_add_u32 %s, %s, %s' % (vr(EX), sr(S_T0), vr(V_ER)))
        for j in range(NL - 1, -1, -1):
            cs('v_subrev_u32 %s, %d, %s' % (vr(AD + j), 1024 * j, vr(EX)),
               'v_cmp_le_i32 vcc, %d, %s' % (1024 * j, vr(V_ER)),
               'v_cndmask_b32 %s, %s, %s, vcc' % (vr(AD + j), vr(V_OOB), vr(AD + j)),
               'v_cndmask_b32 %s, 0, %s, vcc' % (vr(EX + j), vr(V_TAG)))
        for j in range(NL):
            loads.append('buffer_load_dwordx4 %s, %s, %s, 0 offen sc1' % (vr(CG_ + 4 * j, 4), vr(AD + j), sr(R_WS, 4)))
            checks.append((CG_ + 4 * j + 1, CG_ + 4 * j + 3, EX + j))
        for l_ in loads:
            cs(l_)

    post = mid(a, mk)
    CG_, AD, EX = box
    poll(a, loads, checks, pre_issued=True)
    stamp(a, 'carry%d' % layer)
    if post is not None:
        a.extend(post)
    put((AD, NL), (EX, NL))
    for j in range(NL):
        a('v_mov_b32 %s, %s' % (vr(CG_ + 4 * j + 1), vr(CG_ + 4 * j + 2)))
    for j in range(NL - 2, -1, -1):
        cfma(a, CG_ + 4 * j, CG_ + 4 * j + 4, L384, CG_ + 4 * j)
    H, Y = V.get(2), V.get(2)
    cmul(a, H, CG_, LQ96)
    for sw in ('v_permlane32_swap_b32', 'v_permlane16_swap_b32'):
        a('v_mov_b64 %s, %s' % (vr(Y, 2), vr(H, 2)))
        a('%s %s, %s' % (sw, vr(H), vr(Y)))
        a('%s %s, %s' % (sw, vr(H + 1), vr(Y + 1)))
        a('v_pk_add_f32 %s, %s, %s' % (vr(H, 2), vr(H, 2), vr(Y, 2)))
    cfma(a, PQ, H, LQ24, PQ)
    cfma(a, EA, PQ, L12, EA)
    a('v_mov_b32 %s, %s' % (vr(H), vr(PQ)))
    a('v_mov_b32 %s, %s' % (vr(H + 1), vr(EA)))
    a('v_mov_b32 %s, %s' % (vr(Y), vr(PQ + 1)))
    a('v_mov_b32 %s, %s' % (vr(Y + 1), vr(EA + 1)))
    pr, pi = H, Y
    PK = V.get(4)
    HO = CG_
    tk = None
    for j in range(NJ):
        step(re(j), im(j), pr, pi, re(j), im(j))
        pr, pi = re(j), im(j)
        pk = PK + (j & 1) * 2
        for hf in range(2):
            a('v_cvt_pk_bf16_f32 %s, %s, %s' % (vr(pk + hf), vr(re(j) + hf), vr(im(j) + hf)))
        tk = a.mem('ds_write_b32 %s, %s offset:%d' % (vr(V_HW), vr(pk), (j >> 1) * 1024 + (j & 1) * 128),
                   'ds_write_b32 %s, %s offset:%d' % (vr(V_HW), vr(pk + 1), (j >> 1) * 1024 + (j & 1) * 128 + 64))
        if j & 1:
            a('ds_read_b128 %s, %s offset:%d' % (vr(HO + 4 * (j >> 1), 4), vr(V_HR), (j >> 1) * 1024))
        elif x2 is not None and j < 10:
            x2(a)
    a('s_mul_i32 %s, %s, 216' % (sr(S_T0), sr(S_RB)))
    a('s_add_u32 %s, %s, %s' % (sr(S_T0), sr(S_T0), sr(S_PT)))
    a('s_lshl_b32 %s, %s, 10' % (sr(S_T0), sr(S_T0)))
    txt = []
    for i in range(MT):
        txt.append('s_add_u32 %s, %s, %d' % (sr(S_T1), sr(S_T0), WS_H + layer * H_SZ + i * 36864))
        txt.append('buffer_store_dwordx4 %s, %s, %s, %s offen {P}' % (vr(HO + 4 * i, 4), vr(V_L16), sr(R_WS, 4), sr(S_T1)))
    if OPT['fine']:
        stamp(a, 'pass2')
    tk = dual(a, txt, touch=[vr(HO, 24)])
    a('s_lshl2_add_u32 %s, %s, %s' % (sr(S_T0), sr(S_RB), sr(S_WAVE)))
    a('s_lshl4_add_u32 %s, %s, %s' % (sr(S_T0), sr(S_T0), sr(S_CG)))
    a('s_lshl_b32 %s, %s, 2' % (sr(S_T0), sr(S_T0)))
    a('s_add_u32 %s, %s, %d' % (sr(S_T0), sr(S_T0), WS_HF + layer * NRB * 256))
    return tk, [(EA, 2), (F, 2), (H, 2), (Y, 2), (PK, 4), (CG_, 4 * NL), (ACC, 48)]


def mid0(a, mk):
    put((BASE, 24))
    sd, s2, lr, ks = Stream(), Stream(), Stream(), Stream()
    for idx in range(NCP0, OPT['ncp']):
        cp_load(sd, idx // 4, idx % 4)
    mk(s2)
    with V.borrow(*HOMES):
        kv_main(lr, kvm, ks)
    lr = weave(lr, sd, 0.0, 1.0)
    lr = weave(lr, s2, 0.55, 0.75)
    for i_, p_ in enumerate(split(lr, 8)):
        a.extend(p_)
        if OPT['fine'] > 1:
            stamp(a, 'kq%d' % i_)
    if OPT['fine']:
        stamp(a, 'kvcore')
    a.extend(ks)
    V.claim(WCV, 32)
    conv_u_prep(a, cv)
    stamp(a, 'kv')
    return None


def ln_rest0_plain(r, P):
    b, tmp = V.get(2), V.get(4)
    for i in range(MT):
        x = BASE + 4 * i
        k_, lane = tile_src(i)
        for e in range(2):
            r('v_mov_b32_dpp %s, %s row_newbcast:%d row_mask:0xf bank_mask:0xf' % (vr(b + e), vr(P + 2 * k_ + e), lane))
        for k in range(2):
            r('v_lshlrev_b32 %s, 16, %s' % (vr(x + 2 * k), vr(XS + 2 * i + k)))
            r('v_and_b32 %s, 0xffff0000, %s' % (vr(x + 2 * k + 1), vr(XS + 2 * i + k)))
        for k in range(4):
            r('v_sub_f32 %s, %s, %s' % (vr(x + k), vr(x + k), vr(b)))
        for k in range(2):
            r('v_cvt_pk_bf16_f32 %s, %s, %s' % (vr(tmp + 2 * k), vr(x + 2 * k), vr(x + 2 * k + 1)))
        for rep in range(3):
            for k in range(2):
                r('v_and_b32 %s, 0xffff0000, %s' % (vr(tmp + 2 * k + 1), vr(tmp + 2 * k)))
                r('v_lshlrev_b32 %s, 16, %s' % (vr(tmp + 2 * k), vr(tmp + 2 * k)))
            for k in range(4):
                if rep == 0:
                    r('v_mul_f32 %s, %s, %s' % (vr(tmp + k), vr(tmp + k), vr(b + 1)))
                elif rep == 1:
                    r('v_mul_f32 %s, %s, %s' % (vr(tmp + k), vr(tmp + k), vr(V_DSK + k)))
                else:
                    r('v_add_f32 %s, %s, %s' % (vr(x + k), vr(x + k), vr(tmp + k)))
            if rep < 2:
                for k in range(2):
                    r('v_cvt_pk_bf16_f32 %s, %s, %s' % (vr(tmp + 2 * k), vr(tmp + 2 * k), vr(tmp + 2 * k + 1)))
    return [(b, 2), (tmp, 4), (P, 4), (XS, 12)]


def hflag_prep(s, layer):
    fa, fv = V.get(), V.get()
    s('s_lshl2_add_u32 %s, %s, %s' % (sr(S_T1), sr(S_RB), sr(S_WAVE)),
      's_lshl_b32 %s, %s, 6' % (sr(S_T1), sr(S_T1)),
      's_add_u32 %s, %s, %d' % (sr(S_T1), sr(S_T1), WS_HF + layer * NRB * 256),
      'v_lshl_add_u32 %s, %s, 2, %s' % (vr(fa), vr(V_N), sr(S_T1)))
    s('v_cmp_gt_u32 vcc, 9, %s' % vr(V_N),
      'v_cndmask_b32 %s, %s, %s, vcc' % (vr(fa), vr(V_OOB), vr(fa)))
    s('s_mul_i32 %s, %s, 216' % (sr(S_T1), sr(S_RB)),
      's_add_u32 %s, %s, %s' % (sr(S_T1), sr(S_T1), sr(S_WAVE)),
      's_lshl_b32 %s, %s, 10' % (sr(S_T1), sr(S_T1)),
      's_add_u32 %s, %s, %d' % (sr(S_HB), sr(S_T1), WS_H + layer * H_SZ))
    fl = 'buffer_load_dword %s, %s, %s, 0 offen sc1' % (vr(fv), vr(fa), sr(R_WS, 4))
    return fa, fv, fl


def hload_next(st, reg):
    st('buffer_load_dwordx4 %s, %s, %s, %s offen sc1' % (vr(reg, 4), vr(V_L16), sr(R_WS, 4), sr(S_HB)),
       's_add_u32 %s, %s, 4096' % (sr(S_HB), sr(S_HB)))


cpn = [0, OPT['ncp']]


def cpx(which, lim):
    def f(st):
        if cpn[which] < lim:
            cp_load(st, cpn[which] // 4, cpn[which] % 4)
            cpn[which] += 1
    return f


htk, hrel = scan_phase(a, 0, ACC, AF, mid0, cpx(0, NCP0), cpx(1, OPT['ncp2']))
assert cpn == [NCP0, OPT['ncp2']]
put(*hrel)
a('s_mov_b32 %s, %s' % (sr(S_C), sr(S_T0)))
for l_ in cv.uloads:
    a(l_)
for r_ in range(BASE, BASE + 24):
    V.free.remove(r_)
V.claim(V_PW, 4)
t = V.get()
a('v_mul_u32_u24 %s, %d, %s' % (vr(V_PW), PART_ROW, vr(V_N)))
a('v_lshl_add_u32 %s, %s, 4, %s' % (vr(V_PW), vr(V_Q), vr(V_PW)))
a('s_mul_i32 %s, %s, %d' % (sr(S_T0), sr(S_WAVE), PART_W))
a('v_add_u32 %s, %s, %s' % (vr(V_PW), sr(S_T0), vr(V_PW)))
a('s_lshl_b32 %s, %s, 2' % (sr(S_T0), sr(S_WAVE)))
a('v_add_u32 %s, %s, %s' % (vr(t), sr(S_T0), vr(V_Q)))
a('v_mul_u32_u24 %s, %d, %s' % (vr(V_PR), PART_ROW, vr(t)))
a('v_lshl_add_u32 %s, %s, 4, %s' % (vr(V_PR), vr(V_N), vr(V_PR)))
PH = 12 * PART_W
a('v_add_u32 %s, %d, %s' % (vr(V_PW2), PH, vr(V_PW)))
a('v_add_u32 %s, %d, %s' % (vr(V_PR2), PH, vr(V_PR)))
put(t)
a('s_barrier')
if OPT['fine']:
    stamp(a, 'ubar')
hf = Stream()
hf.wait(htk)
dual(hf, flag_texts(sr(S_C), '{P}'))
stamp(hf, 'h_pub0')
sd, lr = Stream(), Stream()
for idx in range(OPT['ncp2'], 36):
    cp_load(sd, idx // 4, idx % 4)
hfa, hfv, hfl = hflag_prep(sd, 0)
sd(hfl)
lrel = ln_rest0_plain(lr, LNP0)
HB0 = []


def last0(m, reg):
    if reg is None:
        poll(m, [hfl], [(hfv, None, V_EXP9)], pre_issued=True)
    else:
        HB0.append(reg)
        hload_next(m, reg)


conv_body(a, cv, [sd, lr], True, hf, True, last0)
put(*lrel)
put(hfa, hfv)


def g_fetch_streams():
    s1, s2 = Stream(), Stream()
    fa, u, u2 = V.get(), V.get(), V.get()
    D = V.get(16)
    s1('v_lshrrev_b32 %s, 3, %s' % (vr(fa), vr(V_LANE)))
    s1('v_mul_u32_u24 %s, %d, %s' % (vr(fa), G_STR - 128, vr(fa)))
    s1('s_mul_i32 %s, %s, %d' % (sr(S_T1), sr(S_CG), 32 * G_STR),
       's_lshl2_add_u32 %s, %s, %s' % (sr(S_T2), sr(S_RB), sr(S_WAVE)),
       's_lshl_b32 %s, %s, 7' % (sr(S_T2), sr(S_T2)),
       's_add_u32 %s, %s, %s' % (sr(S_T1), sr(S_T1), sr(S_T2)),
       's_add_u32 %s, %s, %d' % (sr(S_T1), sr(S_T1), WS_G),
       'v_add3_u32 %s, %s, %s, %s' % (vr(fa), vr(fa), vr(V_L16), sr(S_T1)))
    loads = []
    for i in range(4):
        loads.append('s_mov_b32 %s, %d' % (sr(S_T1), 8 * i * G_STR))
        loads.append('buffer_load_dwordx4 %s, %s, %s, %s offen sc1' % (vr(D + 4 * i, 4), vr(fa), sr(R_WS, 4), sr(S_T1)))
    for i in range(4):
        s1(loads[2 * i], loads[2 * i + 1])
    s1('v_and_b32 %s, 1, %s' % (vr(u), vr(V_Q)))
    s1('v_lshlrev_b32 %s, 6, %s' % (vr(u), vr(u)))
    s1('v_mul_u32_u24 %s, 272, %s' % (vr(u2), vr(V_N)))
    s1('v_add3_u32 %s, %s, %s, %s' % (vr(u), vr(u), vr(u2), sr(S_RINGW)))
    s1('v_lshrrev_b32 %s, 1, %s' % (vr(u2), vr(V_Q)))
    s1('v_lshl_add_u32 %s, %s, 2, %s' % (vr(u), vr(u2), vr(u)))
    s1('v_lshl_add_u32 %s, %s, 2, %s' % (vr(u2), vr(u2), vr(u)))
    poll(s2, loads, [(D + 3, D + 7, V_TAG), (D + 11, D + 15, V_TAG)], pre_issued=True, sleep=4)
    s2('v_lshlrev_b32 %s, 4, %s' % (vr(fa), vr(V_Q)))
    s2('v_add3_u32 %s, %s, %s, %s' % (vr(fa), vr(fa), vr(V_L16), sr(S_RINGW)))
    for i in range(4):
        s2('ds_write_b128 %s, %s offset:%d' % (vr(fa), vr(D + 4 * i, 4), 1088 * i))
    for i, o in enumerate((0, 2, 5, 8, 10, 13)):
        s2('ds_read2_b32 %s, %s offset0:%d offset1:%d' % (vr(GP + 2 * i, 2), vr(u2 if i in (1, 4) else u), o, 32 + o))
    return s1, s2, [fa, u, u2, (D, 16)]


def gemm_c(a, layer, HB=None):
    NF = 16
    if HB is None:
        a.extend(hq)
        poll(a, [hfl], [(hfv, None, V_EXP9)], pre_issued=True)
        stamp(a, 'h_flag%d' % layer)
        put(hfa, hfv)
        HB = [V.get(4, top=True) for _ in range(NF)]
        for f in range(NF):
            hload_next(a, HB[f])
    CA = [V.get(4, top=True) for _ in range(8)]
    hb = lambda i, s: HB[(i * 9 + s) % NF]
    slot = lambda i: (i + 4) % 6

    def pwrite(st, i, js=range(4)):
        for j in js:
            tk = st.mem('ds_write_b128 %s, %s offset:%d' % (vr(V_PW if slot(i) < 3 else V_PW2), vr(CA[(i & 1) * 4 + j], 4),
                                                            L_IMG + (slot(i) % 3) * 4 * PART_W + j * 64))
        return tk

    def preduce(st, i, P):
        for w in range(4):
            st('ds_read_b128 %s, %s offset:%d' % (vr(P[w], 4), vr(V_PR if slot(i) < 3 else V_PR2), L_IMG + ((slot(i) % 3) * 4 + w) * PART_W))

    def padd(st, i, P, pk):
        x = BASE + 4 * i
        if pk:
            for k in range(2):
                st('v_pk_add_f32 %s, %s, %s' % (vr(P[0] + 2 * k, 2), vr(P[0] + 2 * k, 2), vr(P[1] + 2 * k, 2)))
                st('v_pk_add_f32 %s, %s, %s' % (vr(P[2] + 2 * k, 2), vr(P[2] + 2 * k, 2), vr(P[3] + 2 * k, 2)))
                st('v_pk_add_f32 %s, %s, %s' % (vr(x + 2 * k, 2), vr(x + 2 * k, 2), vr(P[0] + 2 * k, 2)))
                st('v_pk_add_f32 %s, %s, %s' % (vr(x + 2 * k, 2), vr(x + 2 * k, 2), vr(P[2] + 2 * k, 2)))
        else:
            for w in range(4):
                for k in range(4):
                    st('v_add_f32 %s, %s, %s' % (vr(x + k), vr(x + k), vr(P[w] + k)))

    sc = Sched(a)
    qp, qs = sc.add(Stream()), sc.add(Stream())
    if layer == 0:
        a.wait(cv.stk)
        cf_ = Stream()
        with V.borrow((GP, 12)):
            frel = conv_final(cf_, cv)
        qs.extend(cf_.groups)
        put(*frel)
    a('s_barrier')
    S, Q = V.get(6, 1), V.get(6, 1)
    PT = [V.get(4) for _ in range(4)]
    tk = None
    for i in range(MT):
        m = Stream()
        for s in range(9):
            for j in range(4):
                ca = CA[(i & 1) * 4 + j]
                m('v_mfma_f32_16x16x32_bf16 %s, %s, %s, %s' % (vr(ca, 4), WC(s, j), vr(hb(i, s), 4), '0' if s == 0 else vr(ca, 4)))
                if j == 0 and s < 8:
                    m.touch(vr(hb(i, s + 1), 4))
            if i * 9 + s + NF < 9 * MT:
                hload_next(m, hb(i, s))
        if i in (3, 5):
            print('gemm_c leftover before barrier', sc.pending())
            sc.flush()
            a.wait(tk)
            a('s_barrier')
            sd = Stream()
            for ti in (i - 3, i - 2):
                preduce(sd, ti, PT)
                padd(sd, ti, PT, False)
                stats_partial(sd, BASE, S, Q, ti, None, False)
            qs.extend(sd.groups)
        if i > 0:
            pw = Stream()
            tk = pwrite(pw, i - 1)
            qp.extend(pw.groups)
        sc.run(m)
        sc.flush(qp)
        if OPT['fine']:
            stamp(a, 'c%d_t%d' % (layer, i))
    print('gemm_c leftover', sc.pending(), 'model time', sc.t)
    sc.flush()
    put(*[(r, 4) for r in PT + HB[8:]])
    gs = None
    if layer == 0:
        V.claim(GP, 12)
        gs = g_fetch_streams()
        a.extend(gs[0])
    tk = pwrite(a, MT - 1)
    a.wait(tk)
    a('s_barrier')
    stamp(a, 'gemmC%d' % layer)
    for ti in (4, 5):
        preduce(a, ti, HB[(ti - 4) * 4:(ti - 4) * 4 + 4])
    for ti in (4, 5):
        padd(a, ti, HB[(ti - 4) * 4:(ti - 4) * 4 + 4], True)
    put(*[(r, 4) for r in CA + HB[:8]])
    return S, Q, gs


def gate(a, which, final, SQ):
    stats_publish(a, BASE, which, True, SQ=SQ[:2], tiles=(4, 5))
    stamp(a, 'st_pub%d' % which)
    if SQ[2] is not None:
        a.extend(SQ[2][1])
        put(*SQ[2][2])
    GU = V.get(24)
    for i in range(MT):
        for j in range(2):
            a('v_lshlrev_b32 %s, 16, %s' % (vr(GU + 4 * i + 2 * j), vr(GP + 2 * i + j)))
            a('v_and_b32 %s, 0xffff0000, %s' % (vr(GU + 4 * i + 2 * j + 1), vr(GP + 2 * i + j)))
    G = V.get(24)
    ex = stats_exp(a, which)
    poll(a, stats_loads(which, G), [(G + 4 * i + 1, G + 4 * i + 3, ex) for i in range(MT)])
    put(ex)
    stamp(a, 'st_got%d' % which)
    P = stats_finish(a, G)
    for k in range(2):
        a('v_add_f32 %s, 0x3727c5ac, %s' % (vr(P + 2 * k + 1), vr(P + 2 * k + 1)))
    for k in range(2):
        a('v_rsq_f32 %s, %s' % (vr(P + 2 * k + 1), vr(P + 2 * k + 1)))
    for k in range(2):
        a('v_add_f32 %s, %s, %s' % (vr(OFF + k), vr(OFF + k), vr(P + 2 * k)))
    B = G
    for i in range(MT):
        bcast(a, B + 4 * i, P, i)
        if final:
            k_, lane = tile_src(i)
            a('v_mov_b32_dpp %s, %s row_newbcast:%d row_mask:0xf bank_mask:0xf' % (vr(B + 4 * i + 2), vr(OFF + k_), lane))
    for i in range(MT):
        x, g, b = BASE + 4 * i, GU + 4 * i, B + 4 * i
        for k in range(2):
            a('v_pk_add_f32 %s, %s, %s op_sel:[0,0] op_sel_hi:[1,0] neg_lo:[0,1] neg_hi:[0,1]' % (vr(x + 2 * k, 2), vr(x + 2 * k, 2), vr(b, 2)))
            a('v_pk_fma_f32 %s, %s, %s, 1.0 op_sel:[0,1,0] op_sel_hi:[1,1,0]' % (vr(g + 2 * k, 2), vr(g + 2 * k, 2), vr(b, 2)))
        for k in range(2):
            if final:
                a('v_pk_fma_f32 %s, %s, %s, %s op_sel:[0,0,0] op_sel_hi:[1,1,0]' % (vr(x + 2 * k, 2), vr(x + 2 * k, 2), vr(g + 2 * k, 2), vr(b + 2, 2)))
            else:
                a('v_pk_mul_f32 %s, %s, %s' % (vr(x + 2 * k, 2), vr(x + 2 * k, 2), vr(g + 2 * k, 2)))
        if final:
            a('s_movk_i32 %s, %d' % (sr(S_T0), 4608 * i),
              'buffer_store_dwordx4 %s, %s, %s, %s offen' % (vr(x, 4), vr(V_OROW), sr(R_OUT, 4), sr(S_T0)))
    put((GU, 24), (G, 24), (P, 4))


SQ_ = gemm_c(a, 0, HB0)
gate(a, 1, False, SQ_)
WP = V.get(12, 2)
for i in range(MT):
    for k in range(2):
        a('v_cvt_pk_bf16_f32 %s, %s, %s' % (vr(WP + 2 * i + k), vr(BASE + 4 * i + 2 * k), vr(BASE + 4 * i + 2 * k + 1)))
a('s_mul_i32 %s, %s, 18' % (sr(S_T0), sr(S_RB)))
a('s_add_u32 %s, %s, %s' % (sr(S_T0), sr(S_T0), sr(S_CG)))
a('s_mul_i32 %s, %s, %d' % (sr(S_T0), sr(S_T0), BLK))
a('s_add_u32 %s, %s, %d' % (sr(S_T0), sr(S_T0), WS_H))
a('s_add_u32 %s, %s, 4096' % (sr(S_T1), sr(S_T0)))
a('s_add_u32 %s, %s, 8192' % (sr(S_T2), sr(S_T0)))
wtk_ = dual(a, ['buffer_store_dwordx2 %s, %s, %s, %s offen offset:%d {P}' %
                (vr(WP + 2 * i, 2), vr(V_WA), sr(R_WS, 4), sr((S_T0, S_T1, S_T2)[i >> 1]), (i & 1) * 2048) for i in range(MT)])
stats_publish(a, BASE, 2, True)
V_DX = V.get(3, 1)
a('s_mul_i32 %s, %s, %d' % (sr(S_T0), sr(S_RB), 18 * BLK))
a('s_add_u32 %s, %s, %d' % (sr(S_T0), sr(S_T0), WS_H))
a('s_add_u32 %s, %s, %s' % (sr(S_T0), sr(S_T0), sr(S_W1K)))
a('v_add_u32 %s, %s, %s' % (vr(V_DX), sr(S_T0), vr(V_L16)))
a('v_add_u32 %s, 4096, %s' % (vr(V_DX + 1), vr(V_DX)))
a('v_add_u32 %s, 8192, %s' % (vr(V_DX + 2), vr(V_DX)))
for s in range(9):
    a('s_mul_i32 %s, %s, 96' % (sr(S_TT + s), sr(S_KP + s)))
fa, fe, fv = V.get(), V.get(), V.get()
a('s_lshl_b32 %s, %s, 8' % (sr(S_T1), sr(S_RB)))
a('s_add_u32 %s, %s, %d' % (sr(S_T1), sr(S_T1), WS_WF))
a('v_lshl_add_u32 %s, %s, 2, %s' % (vr(fa), vr(V_LANE), sr(S_T1)))
a('v_cmp_gt_u32 vcc, 36, %s' % vr(V_LANE),
  'v_cndmask_b32 %s, %s, %s, vcc' % (vr(fa), vr(V_OOB), vr(fa)),
  'v_cndmask_b32 %s, 0, %s, vcc' % (vr(fe), vr(V_TAG)))
a('s_lshl2_add_u32 %s, %s, %s' % (sr(S_T0), sr(S_PT), sr(S_T1)))
a.wait(wtk_)
dual(a, flag_texts(sr(S_T0), '{P}'))
stamp(a, 'w_pub')
put((WP, 12))

ACC = V.get(48, top=True)
AF = V.get(48, top=True)
poll(a, ['buffer_load_dword %s, %s, %s, 0 offen sc1' % (vr(fv), vr(fa), sr(R_WS, 4))], [(fv, None, fe)])
stamp(a, 'w_flag')
put(fa, fe, fv)
pre = {k: Stream() for k in range(18)}
side = {k: Stream() for k in range(18)}
wtk = {}
for blk in range(4):
    wtk[blk] = x_dma(a, blk, 1)
vm2 = {k: Stream() for k in range(18)}
for blk in range(4, 9):
    wtk[blk] = x_dma(vm2[0], blk, 1)
G2 = V.get(24)
gl2 = stats_loads(2, G2)
for i in range(0, 12, 2):
    vm2[0](gl2[i], gl2[i + 1])
ex2 = stats_exp(side[0], 2)
poll(pre[10], gl2, [(G2 + 4 * i + 1, G2 + 4 * i + 3, ex2) for i in range(MT)], pre_issued=True)
put(ex2)
ttk2, LNP1 = ln_table(side[10], 1, G2, None)
pre[15].wait(ttk2)
dual(vm2[12], ['s_lshl_b32 %s, %s, 6' % (sr(S_T0), sr(S_RB)),
               's_add_u32 %s, %s, %s' % (sr(S_T0), sr(S_T0), sr(S_CG)),
               's_lshl_b32 %s, %s, 2' % (sr(S_T0), sr(S_T0)),
               's_add_u32 %s, %s, %d' % (sr(S_T0), sr(S_T0), WS_WF + 160)] + flag_texts(sr(S_T0), '{P}'))
gemm_b(a, ACC, AF, lambda s: wtk[s], pre, side, vm=vm2)
put((V_DX, 3))
stamp(a, 'gemmB2')


def mid1(a, mk):
    da, dv = V.get(), V.get()
    a('s_lshl_b32 %s, %s, 8' % (sr(S_T1), sr(S_RB)))
    a('s_add_u32 %s, %s, %d' % (sr(S_T1), sr(S_T1), WS_WF + 160))
    a('v_lshl_add_u32 %s, %s, 2, %s' % (vr(da), vr(V_N), sr(S_T1)))
    a('v_cmp_gt_u32 vcc, 9, %s' % vr(V_N), 'v_cndmask_b32 %s, %s, %s, vcc' % (vr(da), vr(V_OOB), vr(da)))
    dl = 'buffer_load_dword %s, %s, %s, 0 offen sc1' % (vr(dv), vr(da), sr(R_WS, 4))
    a(dl)
    ln_rest(a, 1, LNP1)
    mk(a)
    poll(a, [dl], [(dv, None, V_EXP9)], pre_issued=True)
    put(da, dv)
    return None


htk, hrel = scan_phase(a, 1, ACC, AF, mid1)
put(*hrel)
hfa, hfv, hfl = hflag_prep(a, 1)
hq = Stream()
hq(hfl)
a.wait(htk)
dual(a, flag_texts(sr(S_T0), '{P}'))
stamp(a, 'h_pub1')
a('s_lshl2_add_u32 %s, %s, %s' % (sr(S_T0), sr(S_L), sr(S_WAVE)))
a('s_cmp_lg_u32 %s, %d' % (sr(S_T0), (NRB - 1) * 9 * 4))
a('s_cselect_b64 exec, 0, 1',
  'buffer_store_dword %s, %s, %s, 0 offen sc1' % (vr(V_TAG), vr(V_ZERO), sr(R_WS, 4)),
  's_mov_b64 exec, -1')
SQ_ = gemm_c(a, 1)
gate(a, 3, True, SQ_)
stamp(a, 'out')
a('s_branch L_fin')

a.fence()
a.label('L_aux')
V.free = set(range(NCOMMON, 256))
V.locked = set()
a('s_waitcnt lgkmcnt(0)')
a('s_load_dword %s, %s, 0' % (sr(S_TAG), sr(P_WS, 2)))
srd(a, R_WS, P_WS, WS_SIZE)
a('s_sub_u32 %s, %s, %d' % (sr(S_RB), sr(S_L), NMAIN))
S_AW, S_KC_, S_CGK, S_KP2, S_DG, S_SCR, S_AW2 = [S_KP + i for i in range(7)]
a('s_mul_i32 %s, %s, 58' % (sr(S_AW2), sr(S_WAVE)))
a('s_add_u32 %s, %s, %s' % (sr(S_AW2), sr(S_AW2), sr(S_RB)))
a('s_lshl2_add_u32 %s, %s, %s' % (sr(S_AW), sr(S_RB), sr(S_WAVE)))
a('s_mul_i32 %s, %s, 57' % (sr(S_T0), sr(S_AW)))
a('s_lshr_b32 %s, %s, 10' % (sr(S_DG), sr(S_T0)))
a('s_mul_i32 %s, %s, 171' % (sr(S_KC_), sr(S_AW2)))
a('s_lshr_b32 %s, %s, 9' % (sr(S_KC_), sr(S_KC_)))
a('s_mul_i32 %s, %s, 18' % (sr(S_T1), sr(S_DG)))
a('s_sub_u32 %s, %s, %s' % (sr(S_KP2), sr(S_AW), sr(S_T1)))
a('s_mul_i32 %s, %s, 3' % (sr(S_T1), sr(S_KC_)))
a('s_sub_u32 %s, %s, %s' % (sr(S_CGK), sr(S_AW2), sr(S_T1)))
a('s_add_u32 %s, %s, 6' % (sr(S_CGK), sr(S_CGK)))
srd(a, R_BRE, P_CRE, 576 * 1152)
srd(a, R_BIM, P_CIM, 576 * 1152)
dp, gm, vc, t, t2 = [V.get() for _ in range(5)]
a('v_and_b32 %s, 31, %s' % (vr(dp), vr(V_LANE)))
a('s_lshl_b32 %s, %s, 6' % (sr(S_T0), sr(S_KP2)))
a('v_lshl_add_u32 %s, %s, 1, %s' % (vr(t2), vr(dp), sr(S_T0)))
LT = lam_loads(a, t2)
CL = V.get(24)
a('v_lshrrev_b32 %s, 2, %s' % (vr(vc), vr(V_LANE)))
a('v_mul_u32_u24 %s, 1152, %s' % (vr(vc), vr(vc)))
a('v_and_b32 %s, 3, %s' % (vr(gm), vr(V_LANE)))
a('v_lshl_add_u32 %s, %s, 4, %s' % (vr(vc), vr(gm), vr(vc)))
a('s_mul_i32 %s, %s, %d' % (sr(S_T1), sr(S_DG), 48 * 1152))
a('s_add_u32 %s, %s, %s' % (sr(S_T1), sr(S_T1), sr(S_T0)))
for u in range(3):
    a('s_add_u32 %s, %s, %d' % (sr(S_T2), sr(S_T1), u * 16 * 1152),
      'buffer_load_dwordx4 %s, %s, %s, %s offen nt' % (vr(CL + 8 * u, 4), vr(vc), sr(R_BRE, 4), sr(S_T2)),
      'buffer_load_dwordx4 %s, %s, %s, %s offen nt' % (vr(CL + 8 * u + 4, 4), vr(vc), sr(R_BIM, 4), sr(S_T2)))
a('s_lshl2_add_u32 %s, %s, %s' % (sr(S_T1), sr(S_RB), sr(S_WAVE)))
a('s_mul_i32 %s, %s, 2880' % (sr(S_T1), sr(S_T1)))
a('v_min_u32 %s, 22, %s' % (vr(V_TAG), vr(V_LANE)))
a('v_lshl_add_u32 %s, %s, 7, %s' % (vr(V_TAG), vr(V_TAG), sr(S_T1)))
a('v_min_u32 %s, %d, %s' % (vr(V_TAG), 576 * 1152 - 4, vr(V_TAG)))
a('global_load_dword %s, %s, %s ;junk' % (vr(V_JUNK), vr(V_TAG), sr(P_BRE, 2)))
a('global_load_dword %s, %s, %s ;junk' % (vr(V_JUNK), vr(V_TAG), sr(P_BIM, 2)))
srd(a, R_K, P_K, 2048 * 1152)
srd(a, R_V, P_V, 2048 * 1152)
sg, vk, vh, ka = [V.get() for _ in range(4)]
a('v_lshrrev_b32 %s, 5, %s' % (vr(sg), vr(V_LANE)))
a('s_mul_i32 %s, %s, %d' % (sr(S_T0), sr(S_KC_), 48 * 1152))
a('s_lshl_b32 %s, %s, 7' % (sr(S_T1), sr(S_CGK)))
a('s_add_u32 %s, %s, %s' % (sr(S_T0), sr(S_T0), sr(S_T1)))
a('v_mul_u32_u24 %s, %d, %s' % (vr(vk), 24 * 1152, vr(sg)))
a('v_lshl_add_u32 %s, %s, 2, %s' % (vr(vk), vr(dp), vr(vk)))
a('v_add_u32 %s, %s, %s' % (vr(vk), sr(S_T0), vr(vk)))
a('v_subrev_u32 %s, %d, %s' % (vr(vh), 3 * 1152, vr(vk)))
SHK = V.get(4)
a('s_lshl_b32 %s, %s, 9' % (sr(S_T1), sr(S_CGK)))
a('v_lshl_add_u32 %s, %s, 4, %s' % (vr(t), vr(dp), sr(S_T1)))
a('global_load_dwordx4 %s, %s, %s' % (vr(SHK, 4), vr(t), sr(P_SHK, 2)))
KR, VR = V.get(27, 1), V.get(24, 1)
ld = Stream()
for j in range(3):
    ld('buffer_load_dword %s, %s, %s, 0 offen offset:%d nt' % (vr(KR + j), vr(vh), sr(R_K, 4), 1152 * j))
for j3 in range(8):
    ld('s_mov_b32 %s, %d' % (sr(S_C), 3456 * j3),
       *['buffer_load_dword %s, %s, %s, %s offen offset:%d nt' % (vr(base + 3 * j3 + jj), vr(vk), sr(rr, 4), sr(S_C), 1152 * jj)
         for jj in range(3) for (base, rr) in ((KR + 3, R_K), (VR, R_V))])
ldp = split(ld, 2)
astamp(a, 4)
a('s_waitcnt lgkmcnt(0)')
astamp(a, 5)
tag_ready(a)
cs = Stream()
cs('s_mul_i32 %s, %s, 8192' % (sr(S_SCR), sr(S_WAVE)), 's_add_u32 %s, %s, %d' % (sr(S_SCR), sr(S_SCR), 65536))
_, COEF = lam_compute(cs, LT, True)
cs('v_add_f32 %s, %s, %s' % (vr(COEF), vr(COEF), vr(COEF)))
cs('v_add_f32 %s, %s, %s' % (vr(COEF + 1), vr(COEF + 1), vr(COEF + 1)))
cs('v_lshl_add_u32 %s, %s, 3, %s' % (vr(t), vr(dp), sr(S_SCR)))
cs('ds_write_b64 %s, %s offset:6144' % (vr(t), vr(COEF, 2)))
cs('v_lshl_add_u32 %s, %s, 6, %s' % (vr(t), vr(gm), sr(S_SCR)))
CF = V.get(16)
for k in range(4):
    cs('ds_read_b128 %s, %s offset:%d' % (vr(CF + 4 * k, 4), vr(t), 6144 + 16 * k))
wa, ra = V.get(), V.get()
cs('v_lshrrev_b32 %s, 2, %s' % (vr(t), vr(V_LANE)))
cs('v_lshlrev_b32 %s, 4, %s' % (vr(t), vr(t)))
cs('v_lshl_add_u32 %s, %s, 9, %s' % (vr(wa), vr(gm), vr(t)))
cs('v_add_u32 %s, %s, %s' % (vr(wa), sr(S_SCR), vr(wa)))
cs('v_add_u32 %s, %s, %s' % (vr(ra), sr(S_SCR), vr(V_L16)))
X = V.get(4)
O = V.get(8)
RD = V.get(24)
for u in range(3):
    for e in range(8):
        src = CL + 8 * u + (e >> 1)
        op = 'v_and_b32 %s, 0xffff0000, %s' if e & 1 else 'v_lshlrev_b32 %s, 16, %s'
        cs(op % (vr(X), vr(src)))
        cs(op % (vr(X + 1), vr(src + 4)))
        cmul(cs, X + 2, X, CF + 2 * e)
        cs('v_cvt_pk_bf16_f32 %s, %s, -%s' % (vr(O + e), vr(X + 2), vr(X + 3)))
    bo = u * 2048
    cs('ds_write_b128 %s, %s offset:%d' % (vr(wa), vr(O, 4), bo))
    cs('ds_write_b128 %s, %s offset:%d' % (vr(wa), vr(O + 4, 4), bo + 256))
    cs('ds_read_b128 %s, %s offset:%d' % (vr(RD + u * 8, 4), vr(ra), bo))
    cs('ds_read_b128 %s, %s offset:%d' % (vr(RD + u * 8 + 4, 4), vr(ra), bo + 1024))
a.weave(cs, ldp[0], 0.3, 0.95)
astamp(a, 6)
a('s_and_b32 %s, %s, 1' % (sr(S_T0), sr(S_KP2)))
a('s_mul_i32 %s, %s, %d' % (sr(S_T0), sr(S_T0), 2 * 37 * 1024))
a('s_lshr_b32 %s, %s, 1' % (sr(S_T1), sr(S_KP2)))
a('s_lshl_b32 %s, %s, 12' % (sr(S_T1), sr(S_T1)))
a('s_add_u32 %s, %s, %s' % (sr(S_T0), sr(S_T0), sr(S_T1)))
a('s_add_u32 %s, %s, %d' % (sr(S_T0), sr(S_T0), WS_CP))
a('s_cmp_lt_u32 %s, 216' % sr(S_AW))
a('s_cselect_b32 %s, %s, 0x%x' % (sr(S_T0), sr(S_T0), 0x40000000))
toks = []
for u in range(3):
    a('s_mul_i32 %s, %s, 3' % (sr(S_T1), sr(S_DG)))
    a('s_add_u32 %s, %s, %d' % (sr(S_T1), sr(S_T1), u))
    a('s_lshr_b32 %s, %s, 2' % (sr(S_T2), sr(S_T1)))
    a('s_mul_i32 %s, %s, %d' % (sr(S_T2), sr(S_T2), 4 * 37 * 1024))
    a('s_and_b32 %s, %s, 3' % (sr(S_T1), sr(S_T1)))
    a('s_lshl_b32 %s, %s, 10' % (sr(S_T1), sr(S_T1)))
    a('s_add_u32 %s, %s, %s' % (sr(S_T1), sr(S_T1), sr(S_T2)))
    a('s_add_u32 %s, %s, %s' % (sr(S_T1), sr(S_T1), sr(S_T0)))
    a('s_add_u32 %s, %s, %d' % (sr(S_T2), sr(S_T1), 37 * 1024))
    toks.append(a.mem('buffer_store_dwordx4 %s, %s, %s, %s offen sc1' % (vr(RD + u * 8, 4), vr(V_L16), sr(R_WS, 4), sr(S_T1))))
    toks.append(a.mem('buffer_store_dwordx4 %s, %s, %s, %s offen sc1' % (vr(RD + u * 8 + 4, 4), vr(V_L16), sr(R_WS, 4), sr(S_T2))))
a('s_nop 1')
put((CL, 24), (CF, 16), (X, 4), (O, 8), (RD, 24), wa, ra, (COEF, 2))
a.extend(ldp[1])
astamp(a, 7)
cf = Stream()
astamp(cf, 8)
cf.wait(*toks)
astamp(cf, 9)
cf('s_lshl_b32 %s, %s, 6' % (sr(S_T0), sr(S_AW)),
   's_add_u32 %s, %s, %d' % (sr(S_T0), sr(S_T0), WS_CPF), *flag_texts(sr(S_T0), 'sc1'))
a('v_sub_u32 %s, 1, %s' % (vr(sg), vr(sg)))
a('v_lshlrev_b32 %s, 6, %s' % (vr(sg), vr(sg)))
a('v_mul_u32_u24 %s, 272, %s' % (vr(ka), vr(dp)))
a('s_mul_i32 %s, %s, 8704' % (sr(S_SCR), sr(S_WAVE)))
a('v_add3_u32 %s, %s, %s, %s' % (vr(ka), vr(ka), vr(sg), sr(S_SCR)))
kc = Stream()
kv_core(kc, 12, lambda r: KR + 3 + r, lambda r: VR + r, SHK,
        lambda ch, un, reg: kc('ds_write_b128 %s, %s offset:%d' % (vr(ka), vr(reg, 4), ch * 128 + un * 16)),
        touch=lambda tp: kc.touch(vr(KR + 3 + 2 * tp, 6), vr(VR + 2 * tp, 6)) if tp % 3 == 0 else None)
cv = Conv()
conv_setup_k(cf, cv)
a.weave(kc, cf, 0.0, 0.5)
astamp(a, 10)
put((KR, 27), (VR, 24))
RD = V.get(32)
ra, ga = V.get(), V.get()
a('v_lshlrev_b32 %s, 4, %s' % (vr(ra), vr(V_Q)))
a('v_add3_u32 %s, %s, %s, %s' % (vr(ra), vr(ra), vr(V_L16), sr(S_SCR)))
for i in range(8):
    a('ds_read_b128 %s, %s offset:%d' % (vr(RD + 4 * i, 4), vr(ra), 1088 * i))
a('v_lshrrev_b32 %s, 3, %s' % (vr(ga), vr(V_LANE)))
a('v_mul_u32_u24 %s, %d, %s' % (vr(ga), KVT_STR - 128, vr(ga)))
a('v_add_u32 %s, %s, %s' % (vr(ga), vr(ga), vr(V_L16)))
a('s_mul_i32 %s, %s, %d' % (sr(S_T0), sr(S_CGK), 64 * KVT_STR))
a('s_sub_u32 %s, 43, %s' % (sr(S_T1), sr(S_KC_)))
a('s_lshl_b32 %s, %s, 7' % (sr(S_T1), sr(S_T1)))
a('s_add_u32 %s, %s, %s' % (sr(S_T0), sr(S_T0), sr(S_T1)))
a('s_cmp_lt_u32 %s, 132' % sr(S_AW2))
a('s_cselect_b32 %s, %s, 0x%x' % (sr(S_T2), sr(S_T0), 0x40000000))
for i in range(8):
    a('s_add_u32 %s, %s, %d' % (sr(S_T1), sr(S_T2), WS_KVT + 8 * i * KVT_STR),
      'buffer_store_dwordx4 %s, %s, %s, %s offen sc1' % (vr(RD + 4 * i, 4), vr(ga), sr(R_WS, 4), sr(S_T1)))
a('s_nop 1')
if OPT['stamps']:
    a('s_memtime %s' % sr(S_M2, 2), 's_waitcnt lgkmcnt(0)', 'v_writelane_b32 %s, %s, 1' % (vr(V_STAMP), sr(S_M2)))
keep_cv = cv
a('s_branch L_auxconv3')
a.fence()
a.label('L_auxconv2')
V.free = set(range(NCOMMON, 256))
V.locked = set()
sv = OPT['stamps']
OPT['stamps'] = 0
OPT['_sv'] = sv
cv = Conv()
a('s_barrier')
conv_setup_k(a, cv)
assert (cv.SD, cv.HD) == (keep_cv.SD, keep_cv.HD)
a.label('L_auxconv3')
a('s_barrier')
conv_u_prep(a, cv)
put(*conv_addr(a, cv))
conv_body(a, cv, pre_issued=False)
a.wait(cv.stk)
a('s_barrier')
conv_final(a, cv)
astamp(a, 13)
OPT['stamps'] = sv
if OPT['stamps']:
    a('s_memtime %s' % sr(S_M2, 2), 's_waitcnt lgkmcnt(0)', 's_cmp_eq_u32 %s, %s' % (sr(S_PAIR), sr(S_L)),
      's_cselect_b32 m0, 2, 3', 's_nop 3', 'v_writelane_b32 %s, %s, m0' % (vr(V_STAMP), sr(S_M2)))
a('s_add_u32 %s, %s, %d' % (sr(S_PAIR), sr(S_PAIR), NAUX))
a('s_cmp_lt_u32 %s, 288' % sr(S_PAIR))
a('s_cbranch_scc1 L_auxconv2')
a('s_branch L_fin')

a.fence()
a.extend(tail)

a.label('L_fin')
want = ['setup', 'lam', 'gemmB1', 'e_pub0', 'kv', 'carry0', 'h_pub0', 'conv_ld', 'conv_mm', 'gemmC0', 'st_got1', 'w_flag', 'gemmB2', 'carry1', 'gemmC1']
DBGSEL = [STAMPS.index(w_) for w_ in want if w_ in STAMPS] + [63]
if OPT['stamps']:
    a('s_waitcnt vmcnt(0) lgkmcnt(0)')
    a('%s %s' % ('s_memtime' if OPT['cyc'] else 's_memrealtime', sr(S_M2, 2)))
    a('s_waitcnt lgkmcnt(0)')
    a('v_writelane_b32 %s, %s, 63' % (vr(V_STAMP), sr(S_M2)))
    a('v_writelane_b32 %s, %s, 62' % (vr(V_STAMP), sr(S_FAST)))
    a('s_lshl_b32 %s, %s, 10' % (sr(S_T0), sr(S_L)))
    a('s_add_u32 %s, %s, %d' % (sr(S_T0), sr(S_T0), WS_DBG))
    a('v_lshlrev_b32 %s, 2, v0' % vr(V_DUMMY))
    a('buffer_store_dword %s, %s, %s, %s offen' % (vr(V_STAMP), vr(V_DUMMY), sr(R_WS, 4), sr(S_T0)))
if OPT['wb']:
    a('s_waitcnt vmcnt(0)')
    a('buffer_wbl2 sc1')
    a('s_waitcnt vmcnt(0)')
if OPT['dbgout'] >= 0:
    a('s_load_dwordx2 s[8:9], s[0:1], 128')
    a('s_lshl2_add_u32 %s, %s, %s' % (sr(S_T0), sr(S_L), sr(S_WAVE)))
    a('s_cmp_lg_u32 %s, %d' % (sr(S_T0), OPT['dbgout'] * 4))
    a('s_cbranch_scc1 L_end')
    a('s_waitcnt lgkmcnt(0)')
    if OPT['holdto']:
        a('v_readlane_b32 s12, %s, 0' % vr(V_STAMP))
        a.label('L_hold')
        a('s_memrealtime s[14:15]')
        a('s_waitcnt lgkmcnt(0)')
        a('s_sub_u32 s14, s14, s12')
        a('s_cmp_lt_u32 s14, %d' % OPT['holdto'])
        a('s_cbranch_scc1 L_hold')
    a('s_mov_b32 s10, 256')
    a('s_mov_b32 s11, 0x20000')
    a('v_readlane_b32 s12, %s, 0' % vr(V_STAMP))
    a('s_nop 3')
    a('v_subrev_u32 %s, s12, %s' % (vr(V_STAMP), vr(V_STAMP)))
    sel = DBGSEL
    a('v_mov_b32 v20, 0')
    for i_, k_ in enumerate(sel):
        a('v_readlane_b32 s12, %s, %d' % (vr(V_STAMP), k_))
        a('s_nop 3')
        a('v_writelane_b32 v20, s12, %d' % i_)
    a('v_lshlrev_b32 v21, 2, %s' % vr(V_LANE))
    a('buffer_store_dword v20, v21, s[8:11], 0 offen')
a.label('L_end')
a('s_endpgm')

hdr = open(os.path.join(os.path.dirname(os.path.abspath(__file__)), '..', 'cdna_kernels', NAME + '.s.ref')).read().split('\n')
head = []
for ln in hdr:
    if ln.startswith('; @launch'):
        break
    head.append(ln)
lines = head + ['; @launch grid=(256,1,1) block=(256,1,1) lds=%d' % LDS_SIZE,
                '.amdgcn_target "amdgcn-amd-amdhsa--gfx950"', '.text', '.globl ' + KN, '.p2align 8',
                '.type %s,@function' % KN, KN + ':']
lines += finalize(top)
lines += ['.section .rodata,"a"', '.p2align 6', '.amdhsa_kernel ' + KN,
          '  .amdhsa_next_free_vgpr 512', '  .amdhsa_next_free_sgpr 102', '  .amdhsa_accum_offset 256',
          '  .amdhsa_group_segment_fixed_size 0', '  .amdhsa_kernarg_size 144', '  .amdhsa_user_sgpr_count 2',
          '  .amdhsa_user_sgpr_kernarg_segment_ptr 1', '  .amdhsa_system_sgpr_workgroup_id_x 1', '.end_amdhsa_kernel']
open(sys.argv[1], 'w').write('\n'.join(lines) + '\n')
if OPT['stamps']:
    open(sys.argv[1] + '.stamps', 'w').write('\n'.join(STAMPS) + '\n')
print('vgpr high water', V.hw, 'lines', len(lines))
```

```python
import sys, os
sys.path.insert(0, os.path.dirname(os.path.abspath(__file__)))
from asmlib import *

NAME = 'interleave_layers__ssm_conv_s5__ssm_conv_h3__prompt'
KN = NAME + '_kernel'

OPT = dict(opol=0, tpos=1, tpol=1, stamps=0, slow=0, hbuf2=0, crot=0, pf=3, slp=8, slp2=6, ncp0=0, ncp=11, ncp2=16, per=5, x_nod1=0, x_s0late=0, x_nomfma=0, x_noload=0, fine=0, cyc=0)
for a_ in sys.argv[2:]:
    k_, v_ = a_.split('=')
    OPT[k_] = int(v_)

MT = 6
TPOL = ('sc1', 'nt', 'sc1 nt')[OPT['tpol']]
NRB = 22
NMAIN = 198
NAUX = 58
WS_KVF = 0x1000
WS_CPF = 0xC000
WS_HF = 0x4000
WS_WF = 0x4000 + 2 * 22 * 256
WS_GF = 0xA000
WS_RBG = 0xC000
WS_E = 0x10000
WS_ST = 0xA0000
ST_SZ = 22 * 24576
WS_KVT = 0x1600000
KVT_STR = 5632
WS_CP = 0x540000
WS_H = 0x6C0000
H_SZ = 22 * 221184 * OPT['hbuf2']
WS_W = 0x1040000
WS_G = 0x12C0000
G_STR = 11264
WS_DBG = 0x2000000
WS_SIZE = 0x10000000
OOB = 0x7FFF0000

BLK = 12288
L_IMG = 0
L_RING = 9 * BLK
L_MISC = L_RING + 49152
LDS_SIZE = 163840
L_TAB = L_MISC
L_FX = L_MISC + 768
L_HALO = L_MISC + 3072
L_KRAW = 0
L_KVO = 28672
L_KC = L_RING
KC_CH = 16656
L_UC = L_IMG + 16
UC_CH = 9280
L_CO = 20480
CO_W = 10944
PART_ROW = 272
PART_W = 16 * PART_ROW
SPIN = 20000

P_X, P_LRE, P_LIM, P_BRE, P_BIM, P_CRE, P_CIM, P_LDT = [8 + 2 * i for i in range(8)]
P_DSK, P_Q, P_K, P_V, P_SHK, P_SSK, P_SSD, P_OUT = [24 + 2 * i for i in range(8)]
P_DBG, P_WS = 40, 42
R_WS, R_X, R_BRE, R_BIM, R_K, R_V, R_OUT, R_SK = [44 + 4 * i for i in range(8)]
S_RB, S_CG, S_FAST, S_WAVE, S_TAG, S_L, S_PAIR, S_SPIN = range(76, 84)
S_KP = 84
S_T0, S_T1, S_T2, S_T3 = 93, 94, 95, 96
S_ROLE = 97
S_M1, S_M2 = 98, 100
S_A, S_B, S_C = 3, 4, 5
S_PC = 6
S_TT = 8
S_TU = 17
S_MSEL = 26
S_MACT = 40
S_W1K = 97
S_RINGW = 98
S_PT = 99
S_XCC = 20
S_CPB = 21
S_HB = 22

V = Alloc('v', 1, 256)
top = Stream()
tail = Stream()
lblc = [0]
STAMPS = []


def newlabel(p):
    lblc[0] += 1
    return 'L_%s_%d' % (p, lblc[0])


def put(*items):
    for it in items:
        if isinstance(it, tuple):
            V.put(*it)
        else:
            V.put(it)


def srd(a, r, p, size):
    a('s_mov_b64 %s, %s' % (sr(r, 2), sr(p, 2)))
    a('s_mov_b32 %s, 0x%x' % (sr(r + 2), size))
    a('s_mov_b32 %s, 0x20000' % sr(r + 3))


def cmul(a, d, x, y):
    a('v_pk_mul_f32 %s, %s, %s op_sel:[0,0] op_sel_hi:[1,0]' % (vr(d, 2), vr(x, 2), vr(y, 2)))
    a('v_pk_fma_f32 %s, %s, %s, %s op_sel:[1,1,0] op_sel_hi:[0,1,1] neg_lo:[1,0,0]' % (vr(d, 2), vr(x, 2), vr(y, 2), vr(d, 2)))


def cmul_plain(a, d, x, y):
    a('v_mul_f32 %s, %s, %s' % (vr(d), vr(x), vr(y)))
    a('v_mul_f32 %s, %s, %s' % (vr(d + 1), vr(x + 1), vr(y)))
    a('v_fma_f32 %s, -%s, %s, %s' % (vr(d), vr(x + 1), vr(y + 1), vr(d)))
    a('v_fmac_f32 %s, %s, %s' % (vr(d + 1), vr(x), vr(y + 1)))


def cfma(a, d, x, y, c):
    a('v_pk_fma_f32 %s, %s, %s, %s op_sel:[0,0,0] op_sel_hi:[1,0,1]' % (vr(d, 2), vr(x, 2), vr(y, 2), vr(c, 2)))
    a('v_pk_fma_f32 %s, %s, %s, %s op_sel:[1,1,0] op_sel_hi:[0,1,1] neg_lo:[1,0,0]' % (vr(d, 2), vr(x, 2), vr(y, 2), vr(d, 2)))


def stamp(a, name):
    if not OPT['stamps']:
        return
    i = len(STAMPS)
    a('%s %s' % ('s_memtime' if OPT['cyc'] else 's_memrealtime', sr(S_M2, 2)), 's_waitcnt lgkmcnt(0)', 'v_writelane_b32 %s, %s, %d' % (vr(V_STAMP), sr(S_M2), i))
    STAMPS.append(name)


def astamp(a, i):
    if OPT['stamps'] or OPT.get('_sv'):
        a('s_memtime %s' % sr(S_M2, 2), 's_waitcnt lgkmcnt(0)', 'v_writelane_b32 %s, %s, %d' % (vr(V_STAMP), sr(S_M2), i))


def poll(a, loads, checks, pre_issued=False, sleep=0):
    p = Stream()
    L = newlabel('poll')
    Lc = newlabel('pollc')
    simple = len(checks) == 1 and checks[0][1] is None
    acc = None if simple else V.get(2, 1)
    p('s_mov_b32 %s, %d' % (sr(S_SPIN), SPIN))
    if pre_issued:
        regs = []
        for c in checks:
            regs += [vr(c[0])] + ([vr(c[1])] if c[1] is not None else [])
        p.touch(*regs)
        p.label(Lc)
    else:
        p.label(L)
        if sleep:
            p('s_sleep %d' % sleep)
        for t in loads:
            p(t)
        p('s_waitcnt vmcnt(0)')
    if len(checks) == 1 and checks[0][1] is None:
        p('v_cmp_ne_u32 vcc, %s, %s' % (vr(checks[0][0]), vr(checks[0][2])))
    else:
        first = True
        for (x, y, e) in checks:
            d = acc if first else acc + 1
            if y is None:
                p('v_xor_b32 %s, %s, %s' % (vr(d), vr(x), vr(e)))
            else:
                p('v_bitop3_b32 %s, %s, %s, %s bitop3:0x7e' % (vr(d), vr(x), vr(y), vr(e)))
            if not first:
                p('v_or_b32 %s, %s, %s' % (vr(acc), vr(acc), vr(acc + 1)))
            first = False
        p('v_cmp_ne_u32 vcc, 0, %s' % vr(acc))
    p('s_sub_u32 %s, %s, 1' % (sr(S_SPIN), sr(S_SPIN)))
    p('s_cselect_b64 vcc, 0, vcc')
    p('s_cmp_lg_u64 vcc, 0')
    p('s_cbranch_scc1 %s' % L)
    if pre_issued:
        tail.label(L)
        if sleep:
            tail('s_sleep %d' % sleep)
        for t in loads:
            tail(t)
        tail('s_waitcnt vmcnt(0)')
        tail('s_branch %s' % Lc)
    a.join(p)
    if acc is not None:
        V.put(acc, 2)


def dual(a, texts, touch=()):
    Ls, Lb = newlabel('slow'), newlabel('back')
    p = Stream()
    if touch:
        p.touch(*touch)
    p('s_cmp_eq_u32 %s, 0' % sr(S_FAST), 's_cbranch_scc1 %s' % Ls)
    tk = p.mem(*[t.replace(' {P}', '') for t in texts])
    p.label(Lb)
    a.join(p)
    tail.label(Ls)
    tail('s_nop 1')
    tail(*[t.replace('{P}', 'sc1') for t in texts])
    tail('s_branch %s' % Lb)
    return tk


def flag_texts(soff, pol):
    return ['s_mov_b64 exec, 1',
            'buffer_store_dword %s, %s, %s, %s offen %s' % (vr(V_TAG), vr(V_ZERO), sr(R_WS, 4), soff, pol),
            's_mov_b64 exec, -1']


def lam_loads(a, vp2):
    t = V.get(4)
    a('global_load_ushort %s, %s, %s' % (vr(t), vr(vp2), sr(P_LRE, 2)))
    a('global_load_ushort %s, %s, %s' % (vr(t + 1), vr(vp2), sr(P_LIM, 2)))
    a('global_load_ushort %s, %s, %s' % (vr(t + 2), vr(vp2), sr(P_LDT, 2)))
    return t


def lam_compute(a, t, want_coef, lam=None):
    if lam is None:
        lam = V.get(2)
    u = V.get(4)
    for i in range(3):
        a('v_lshlrev_b32 %s, 16, %s' % (vr(t + i), vr(t + i)))
    a('v_mul_f32 %s, 0x3fb8aa3b, %s' % (vr(t + 2), vr(t + 2)))
    a('v_exp_f32 %s, %s' % (vr(t + 2), vr(t + 2)))
    a('v_cvt_pk_bf16_f32 %s, %s, %s' % (vr(t + 2), vr(t + 2), vr(t + 2)))
    a('v_lshlrev_b32 %s, 16, %s' % (vr(t + 2), vr(t + 2)))
    a('v_mul_f32 %s, %s, %s' % (vr(u), vr(t + 2), vr(t)))
    a('v_mul_f32 %s, %s, %s' % (vr(u + 1), vr(t + 2), vr(t + 1)))
    a('v_mul_f32 %s, 0x3fb8aa3b, %s' % (vr(u), vr(u)))
    a('v_exp_f32 %s, %s' % (vr(u), vr(u)))
    a('v_mul_f32 %s, 0.15915494, %s' % (vr(u + 1), vr(u + 1)))
    a('v_rndne_f32 %s, %s' % (vr(u + 2), vr(u + 1)))
    a('v_sub_f32 %s, %s, %s' % (vr(u + 1), vr(u + 1), vr(u + 2)))
    a('v_cos_f32 %s, %s' % (vr(u + 2), vr(u + 1)))
    a('v_sin_f32 %s, %s' % (vr(u + 3), vr(u + 1)))
    a('v_mul_f32 %s, %s, %s' % (vr(lam), vr(u), vr(u + 2)))
    a('v_mul_f32 %s, %s, %s' % (vr(lam + 1), vr(u), vr(u + 3)))
    coef = None
    if want_coef:
        coef = V.get(2)
        a('v_add_f32 %s, -1.0, %s' % (vr(u), vr(lam)))
        a('v_mov_b32 %s, %s' % (vr(u + 1), vr(lam + 1)))
        a('v_mul_f32 %s, %s, %s' % (vr(u + 2), vr(t), vr(t)))
        a('v_fmac_f32 %s, %s, %s' % (vr(u + 2), vr(t + 1), vr(t + 1)))
        a('v_rcp_f32 %s, %s' % (vr(u + 2), vr(u + 2)))
        a('v_sub_f32 %s, 0, %s' % (vr(t + 1), vr(t + 1)))
        cmul(a, coef, u, t)
        a('v_mul_f32 %s, %s, %s' % (vr(coef), vr(coef), vr(u + 2)))
        a('v_mul_f32 %s, %s, %s' % (vr(coef + 1), vr(coef + 1), vr(u + 2)))
    put((u, 4), (t, 4))
    return lam, coef


def tag_ready(a):
    a('s_mul_i32 %s, %s, 0x9E3779B1' % (sr(S_TAG), sr(S_TAG)),
      's_add_u32 %s, %s, 0x7F4A7C15' % (sr(S_TAG), sr(S_TAG)),
      'v_mov_b32 %s, %s' % (vr(V_TAG), sr(S_TAG)))


def rbf(s, regs):
    for r in regs:
        s('v_cvt_pk_bf16_f32 %s, %s, %s' % (vr(r), vr(r), vr(r)))
    for r in regs:
        s('v_lshlrev_b32 %s, 16, %s' % (vr(r), vr(r)))


def rs12(s, S, Q):
    dp = 'v_add_f32_dpp %s, %s, %s %s row_mask:0xf bank_mask:0x%x'
    for X in (S, Q):
        for j in range(3):
            s(dp % (vr(X[j]), vr(X[j]), vr(X[j]), 'row_ror:8', 0x3))
    for X in (S, Q):
        for j in range(3):
            s(dp % (vr(X[j]), vr(X[j + 3]), vr(X[j + 3]), 'row_ror:8', 0xc))
    for X in (S, Q):
        s(dp % (vr(X[0]), vr(X[0]), vr(X[0]), 'row_half_mirror', 0x5))
        s(dp % (vr(X[2]), vr(X[2]), vr(X[2]), 'row_half_mirror', 0xf))
    for X in (S, Q):
        s(dp % (vr(X[0]), vr(X[1]), vr(X[1]), 'row_half_mirror', 0xa))
    for qp in ('quad_perm:[1,0,3,2]', 'quad_perm:[2,3,0,1]'):
        for r in (S[2], Q[2], S[0], Q[0]):
            s(dp % (vr(r), vr(r), vr(r), qp, 0xf))


def tile_src(i):
    hf, j = divmod(i, 3)
    if j == 2:
        return 1, 8 * hf
    return 0, 8 * hf + 4 * j


a = top
V_LANE, V_TAG, V_STAMP, V_L16, V_N, V_Q = [V.get() for _ in range(6)]
V_OOB = V.get()
V_JUNK = V.get()
V_ZERO = V.get(2)
V_DUMMY = V.get(4)
NCOMMON = V.hw
BASE = V.get(24)
V_DSK = V.get(4)
V_FA = V.get(4)
LAM, L12, L24, L384, LQ96, LQ24, RB, OFF = [V.get(2) for _ in range(8)]
(V_TAU, V_OROW, V_STW, V_STR, V_EXP9, V_TABW, V_EW, V_ER, V_HW, V_HR, V_TABR, V_WA) = [V.get() for _ in range(12)]
WCV = V.home(32)
GP = V.home(12)
V_PW = V.home(4)
V_PR, V_PW2, V_PR2 = V_PW + 1, V_PW + 2, V_PW + 3
HOMES = ((WCV, 32), (GP, 12), (V_PW, 4))
V_DX = V.get(3, 1)

a('s_cmp_ge_u32 s2, 256')
a('s_cbranch_scc1 L_end')
a('s_load_dwordx16 s[8:23], s[0:1], 0')
a('s_load_dwordx16 s[24:39], s[0:1], 64')
a('s_load_dwordx4 s[40:43], s[0:1], 128')
a('s_getpc_b64 %s' % sr(S_PC, 2))
a.label('L_pc')
a('s_lshr_b32 %s, s2, 3' % sr(S_T0))
a('s_lshl_b32 %s, %s, 12' % (sr(S_T1), sr(S_T0)))
a('v_lshl_add_u32 %s, v0, 4, %s' % (vr(V_TAG), sr(S_T1)))
a('s_mov_b32 %s, L_end-L_pc-16' % sr(S_T1))
a('v_min_u32 %s, %s, %s' % (vr(V_TAG), sr(S_T1), vr(V_TAG)))
a('global_load_dwordx4 %s, %s, %s ;junk' % (vr(V_DUMMY, 4), vr(V_TAG), sr(S_PC, 2)))
a('v_and_b32 %s, 63, v0' % vr(V_LANE))
a('v_lshrrev_b32 %s, 6, v0' % vr(V_Q))
a('v_lshlrev_b32 %s, 4, %s' % (vr(V_L16), vr(V_LANE)))
a('v_readfirstlane_b32 %s, %s' % (sr(S_WAVE), vr(V_Q)))
if OPT['stamps']:
    a('v_mov_b32 %s, 0' % vr(V_STAMP))
stamp(a, 'start')
a('v_and_b32 %s, 15, %s' % (vr(V_N), vr(V_LANE)))
a('v_lshrrev_b32 %s, 4, %s' % (vr(V_Q), vr(V_LANE)))
a('v_mov_b32 %s, 0' % vr(V_ZERO))
a('v_mov_b32 %s, 0' % vr(V_ZERO + 1))
a('v_mov_b32 %s, 0x%x' % (vr(V_OOB), OOB))
a('s_and_b32 %s, s2, 7' % sr(S_T1))
a('s_mul_i32 %s, %s, 27' % (sr(S_T2), sr(S_T1)))
a('s_add_u32 %s, %s, %s' % (sr(S_T2), sr(S_T2), sr(S_T0)))
a('s_mul_i32 %s, %s, 5' % (sr(S_T3), sr(S_T1)))
a('s_add_u32 %s, %s, %s' % (sr(S_T3), sr(S_T3), sr(S_T0)))
a('s_add_u32 %s, %s, %d' % (sr(S_T3), sr(S_T3), 216 - 27))
a('s_cmp_lt_u32 %s, 27' % sr(S_T0))
a('s_cselect_b32 %s, %s, %s' % (sr(S_L), sr(S_T2), sr(S_T3)))
a('s_mul_i32 %s, %s, 57' % (sr(S_RB), sr(S_L)))
a('s_lshr_b32 %s, %s, 9' % (sr(S_RB), sr(S_RB)))
a('s_mul_i32 %s, %s, 9' % (sr(S_T0), sr(S_RB)))
a('s_sub_u32 %s, %s, %s' % (sr(S_CG), sr(S_L), sr(S_T0)))
a('s_mov_b32 %s, %s' % (sr(S_PAIR), sr(S_L)))
a('s_and_b32 %s, %s, 1' % (sr(S_A), sr(S_WAVE)))
a('s_lshr_b32 %s, %s, 1' % (sr(S_B), sr(S_WAVE)))
a('s_cmp_ge_u32 %s, %d' % (sr(S_L), NMAIN))
a('s_cbranch_scc1 L_aux')

t, t2, t3 = V.get(), V.get(), V.get()
LAMT = V.get(4)
lad, dad = V.get(), V.get()
V_DB = V.get(2)
c0 = V.get()
a('v_lshrrev_b32 %s, 3, %s' % (vr(t), vr(V_LANE)))
a('v_and_b32 %s, 7, %s' % (vr(t3), vr(V_LANE)))
a('s_lshl2_add_u32 %s, %s, %s' % (sr(S_PT), sr(S_CG), sr(S_WAVE)))
a('s_lshl_b32 %s, %s, 10' % (sr(S_W1K), sr(S_WAVE)))
a('s_mul_i32 %s, %s, 12288' % (sr(S_RINGW), sr(S_WAVE)))
a('s_add_u32 %s, %s, %d' % (sr(S_RINGW), sr(S_RINGW), L_RING))
a('s_lshl_b32 %s, %s, 7' % (sr(S_KP), sr(S_CG)))
a('v_xor_b32 %s, %s, %s' % (vr(c0), vr(t3), vr(V_Q)))
a('v_lshlrev_b32 %s, 4, %s' % (vr(c0), vr(c0)))
a('v_lshrrev_b32 %s, 5, %s' % (vr(t2), vr(V_LANE)))
a('v_mul_u32_u24 %s, 24, %s' % (vr(t2), vr(t2)))
a('v_and_b32 %s, 1, %s' % (vr(t3), vr(t)))
a('v_mad_u32_u24 %s, %s, 12, %s' % (vr(t2), vr(t3), vr(t2)))
a('v_and_b32 %s, 1, %s' % (vr(t3), vr(V_Q)))
a('s_mul_i32 %s, %s, 48' % (sr(S_T0), sr(S_A)))
a('s_mul_i32 %s, %s, 96' % (sr(S_T1), sr(S_RB)))
a('s_add_u32 %s, %s, %s' % (sr(S_T0), sr(S_T0), sr(S_T1)))
a('s_lshl1_add_u32 %s, %s, %s' % (sr(S_T0), sr(S_B), sr(S_T0)))
a('v_add3_u32 %s, %s, %s, %s' % (vr(t2), vr(t2), vr(t3), sr(S_T0)))
a('v_mul_u32_u24 %s, 1152, %s' % (vr(t2), vr(t2)))
a('s_lshl_b32 %s, %s, 6' % (sr(S_T0), sr(S_A)))
a('v_xor_b32 %s, %s, %s' % (vr(V_DX), sr(S_T0), vr(c0)))
a('v_add_u32 %s, %s, %s' % (vr(V_DX), vr(V_DX), vr(t2)))
a('v_add_u32 %s, 4608, %s' % (vr(V_DX + 1), vr(V_DX)))
a('v_add_u32 %s, 9216, %s' % (vr(V_DX + 2), vr(V_DX)))
a('s_lshl_b32 %s, %s, 4' % (sr(S_T0), sr(S_PT)))
a('v_add_u32 %s, %s, %s' % (vr(t2), sr(S_T0), vr(t)))
a('v_mul_u32_u24 %s, 1152, %s' % (vr(t2), vr(t2)))
a('v_add_u32 %s, %s, %s' % (vr(V_DB), vr(t2), vr(c0)))
a('v_xor_b32 %s, 64, %s' % (vr(V_DB + 1), vr(c0)))
a('v_add_u32 %s, %s, %s' % (vr(V_DB + 1), vr(V_DB + 1), vr(t2)))
a('v_add_u32 %s, %d, %s' % (vr(V_DB + 1), 8 * 1152, vr(V_DB + 1)))
put(c0)
a('s_mov_b32 %s, 0x%x' % (sr(R_X + 2), 2048 * 1152))
a('s_mov_b32 %s, 0x20000' % sr(R_X + 3))
for r_ in (R_BRE, R_BIM):
    a('s_mov_b32 %s, 0x%x' % (sr(r_ + 2), 576 * 1152))
    a('s_mov_b32 %s, 0x20000' % sr(r_ + 3))
a('s_waitcnt lgkmcnt(0)')
a('s_mov_b64 %s, %s' % (sr(R_X, 2), sr(P_X, 2)))
a('s_mov_b64 %s, %s' % (sr(R_BRE, 2), sr(P_BRE, 2)))
a('s_mov_b64 %s, %s' % (sr(R_BIM, 2), sr(P_BIM, 2)))


def x_dma(s, blk, layer):
    tk = None
    for u in range(3):
        s('s_add_u32 m0, %s, %d' % (sr(S_W1K), L_IMG + blk * BLK + u * 4096))
        tk = s.mem('buffer_load_dwordx4 %s, %s, %s offen%s lds' % (vr(V_DX + u), sr(R_X if layer == 0 else R_WS, 4),
                                                                   sr((S_KP if layer == 0 else S_TT) + blk), ' nt' if layer == 0 else ' sc1'))
    return tk


WB = lambda kp, h, mat: ((kp * 2 + h) * 2 + mat) * 4


def b_dma(s, kp):
    tk = None
    for b in range(4):
        s('s_add_u32 m0, %s, %d' % (sr(S_RINGW), (kp % 3) * 4096 + b * 1024))
        tk = s.mem('buffer_load_dwordx4 %s, %s, %s offen lds' % (vr(V_DB + (b & 1)), sr(R_BRE if b < 2 else R_BIM, 4), sr(S_KP + kp)))
    return tk


xtk, btk = {}, {}
i0, kt = Stream(), Stream()
xtk[0] = x_dma(i0, 0, 0)
btk[0] = b_dma(i0, 0)
kt('s_load_dword %s, %s, 0' % (sr(S_TAG), sr(P_WS, 2)))
kt('s_mul_i32 %s, %s, 43' % (sr(S_T0), sr(S_RB)))
kt('s_lshr_b32 %s, %s, 7' % (sr(S_T0), sr(S_T0)))
kt('s_mul_i32 %s, %s, 3' % (sr(S_T0), sr(S_T0)))
kt('s_sub_u32 %s, %s, %s' % (sr(S_T0), sr(S_RB), sr(S_T0)))
kt('s_lshl_b32 %s, 128, %s' % (sr(S_T0), sr(S_T0)))
for i in range(1, 9):
    kt('s_add_u32 %s, %s, %s' % (sr(S_KP + i), sr(S_KP + i - 1), sr(S_T0)),
       's_sub_u32 %s, %s, 1152' % (sr(S_T1), sr(S_KP + i)),
       's_cselect_b32 %s, %s, %s' % (sr(S_KP + i), sr(S_KP + i), sr(S_T1)))
a.weave(i0, kt)
a('s_lshl_b32 %s, %s, 5' % (sr(S_T1), sr(S_PT)))
a('v_lshl_add_u32 %s, %s, 1, %s' % (vr(lad), vr(V_N), sr(S_T1)))
btk[1] = b_dma(a, 1)
a('global_load_ushort %s, %s, %s' % (vr(LAMT), vr(lad), sr(P_LRE, 2)))
a('global_load_ushort %s, %s, %s' % (vr(LAMT + 1), vr(lad), sr(P_LIM, 2)))
a('global_load_ushort %s, %s, %s' % (vr(LAMT + 2), vr(lad), sr(P_LDT, 2)))
srd(a, R_WS, P_WS, WS_SIZE)
su = Stream()
V_FB = V.get(2)
su('v_lshrrev_b32 %s, 1, %s' % (vr(t), vr(V_N)))
su('v_xor_b32 %s, %s, %s' % (vr(t), vr(t), vr(V_Q)))
su('v_lshlrev_b32 %s, 4, %s' % (vr(t), vr(t)))
su('v_lshl_add_u32 %s, %s, 7, %s' % (vr(V_FA), vr(V_N), vr(t)))
su('v_xor_b32 %s, 64, %s' % (vr(V_FA + 1), vr(V_FA)))
su('v_add_u32 %s, %d, %s' % (vr(V_FA + 2), 4 * BLK, vr(V_FA)))
su('v_add_u32 %s, %d, %s' % (vr(V_FA + 3), 4 * BLK, vr(V_FA + 1)))
su('v_add_u32 %s, %s, %s' % (vr(V_FB), sr(S_RINGW), vr(V_FA)))
su('v_add_u32 %s, %s, %s' % (vr(V_FB + 1), sr(S_RINGW), vr(V_FA + 1)))
srd(su, R_OUT, P_OUT, 2048 * 2304)
su('s_mov_b32 %s, 0x02020202' % sr(S_MSEL), 's_mov_b32 %s, 0x02020202' % sr(S_MSEL + 1))
su('s_mov_b32 %s, 0x13131313' % sr(S_MACT), 's_mov_b32 %s, 0x13131313' % sr(S_MACT + 1))
su('s_getreg_b32 %s, hwreg(HW_REG_XCC_ID, 0, 4)' % sr(S_XCC))
su('v_and_b32 %s, 1, %s' % (vr(t), vr(V_Q)))
su('v_mul_u32_u24 %s, 12, %s' % (vr(V_TAU), vr(t)))
su('v_lshrrev_b32 %s, 1, %s' % (vr(t2), vr(V_Q)))
su('v_add_u32 %s, %s, %s' % (vr(V_TAU), vr(V_TAU), vr(t2)))
su('s_mul_i32 %s, %s, 96' % (sr(S_T0), sr(S_RB)),
   's_mul_i32 %s, %s, 24' % (sr(S_T1), sr(S_WAVE)),
   's_add_u32 %s, %s, %s' % (sr(S_T0), sr(S_T0), sr(S_T1)),
   'v_add_u32 %s, %s, %s' % (vr(t3), sr(S_T0), vr(V_TAU)))
su('v_mul_u32_u24 %s, 2304, %s' % (vr(V_OROW), vr(t3)))
su('s_lshl_b32 %s, %s, 8' % (sr(S_T0), sr(S_CG)),
   'v_lshl_add_u32 %s, %s, 4, %s' % (vr(t3), vr(V_N), sr(S_T0)))
su('v_add_u32 %s, %s, %s' % (vr(V_OROW), vr(V_OROW), vr(t3)))
TI = V.get()
su('v_lshrrev_b32 %s, 3, %s' % (vr(TI), vr(V_N)))
su('v_mul_u32_u24 %s, 3, %s' % (vr(TI), vr(TI)))
su('v_bfe_u32 %s, %s, 2, 1' % (vr(t3), vr(V_N)))
su('v_cndmask_b32 %s, %s, 2, %s' % (vr(t3), vr(t3), sr(S_MSEL, 2)))
su('v_add_u32 %s, %s, %s' % (vr(TI), vr(TI), vr(t3)))
su('v_lshl_add_u32 %s, %s, 1, %s' % (vr(t3), vr(TI), vr(t2)))
su('v_lshlrev_b32 %s, 4, %s' % (vr(t3), vr(t3)))
su('v_lshl_add_u32 %s, %s, 2, %s' % (vr(V_TABW), vr(t), vr(t3)))
su('s_mul_i32 %s, %s, 192' % (sr(S_T0), sr(S_WAVE)),
   's_add_u32 %s, %s, %d' % (sr(S_T0), sr(S_T0), L_TAB),
   'v_add_u32 %s, %s, %s' % (vr(V_TABW), sr(S_T0), vr(V_TABW)))
su('v_mul_u32_u24 %s, 192, %s' % (vr(V_TABR), vr(V_Q)))
su('v_add_u32 %s, %d, %s' % (vr(V_TABR), L_TAB, vr(V_TABR)))
su('s_mul_i32 %s, %s, 96' % (sr(S_T0), sr(S_RB)),
   's_lshl2_add_u32 %s, %s, %s' % (sr(S_T0), sr(S_WAVE), sr(S_T0)),
   'v_add_u32 %s, %s, %s' % (vr(t), sr(S_T0), vr(V_Q)))
su('v_lshlrev_b32 %s, 8, %s' % (vr(t), vr(t)))
su('v_lshl_add_u32 %s, %s, 4, %s' % (vr(V_STR), vr(V_N), vr(t)))
su('v_cmp_gt_u32 vcc, 9, %s' % vr(V_N),
   'v_cndmask_b32 %s, %s, %s, vcc' % (vr(V_STR), vr(V_OOB), vr(V_STR)))
su('v_lshl_add_u32 %s, %s, 12, %s' % (vr(V_STW), vr(TI), vr(t)))
su('s_lshl_b32 %s, %s, 4' % (sr(S_T0), sr(S_CG)),
   'v_add_u32 %s, %s, %s' % (vr(V_STW), sr(S_T0), vr(V_STW)))
su('v_cndmask_b32 %s, %s, %s, %s' % (vr(V_STW), vr(V_OOB), vr(V_STW), sr(S_MACT, 2)))
put(TI)
su('s_lshl_b32 %s, %s, 2' % (sr(S_T0), sr(S_WAVE)),
   'v_add_u32 %s, %s, %s' % (vr(V_WA), sr(S_T0), vr(V_Q)))
su('v_xor_b32 %s, %s, %s' % (vr(t), vr(V_WA), vr(V_N)))
su('v_lshrrev_b32 %s, 1, %s' % (vr(t), vr(t)))
su('v_lshlrev_b32 %s, 4, %s' % (vr(t), vr(t)))
su('v_lshl_add_u32 %s, %s, 7, %s' % (vr(V_WA), vr(V_WA), vr(t)))
su('v_and_b32 %s, 1, %s' % (vr(t), vr(V_N)))
su('v_lshl_add_u32 %s, %s, 3, %s' % (vr(V_WA), vr(t), vr(V_WA)))
su('s_lshl_b32 %s, %s, 8' % (sr(S_T0), sr(S_RB)),
   'v_lshl_add_u32 %s, %s, 4, %s' % (vr(V_EW), vr(V_N), sr(S_T0)))
su('v_lshlrev_b32 %s, 8, %s' % (vr(t), vr(V_Q)))
su('v_sub_u32 %s, %s, %s' % (vr(V_ER), vr(V_EW), vr(t)))
su('v_subrev_u32 %s, 256, %s' % (vr(V_ER), vr(V_ER)))
su('v_cmp_gt_u32 vcc, 16, %s' % vr(V_LANE),
   'v_cndmask_b32 %s, %s, %s, vcc' % (vr(V_EW), vr(V_OOB), vr(V_EW)))
su('v_lshl_add_u32 %s, %s, 2, %s' % (vr(t), vr(V_N), vr(t)))
su('s_mul_i32 %s, %s, 6144' % (sr(S_T0), sr(S_WAVE)), 's_add_u32 %s, %s, %d' % (sr(S_T0), sr(S_T0), 5 * BLK),
   'v_add_u32 %s, %s, %s' % (vr(V_HW), sr(S_T0), vr(t)))
su('v_lshlrev_b32 %s, 4, %s' % (vr(t), vr(V_Q)))
su('v_lshl_add_u32 %s, %s, 6, %s' % (vr(t), vr(V_N), vr(t)))
su('s_mul_i32 %s, %s, 6144' % (sr(S_T0), sr(S_WAVE)), 's_add_u32 %s, %s, %d' % (sr(S_T0), sr(S_T0), 5 * BLK),
   'v_add_u32 %s, %s, %s' % (vr(V_HR), sr(S_T0), vr(t)))
a.extend(su)
put(t, t2, t3)
a('s_lshl_b32 %s, %s, 7' % (sr(S_T1), sr(S_CG)))
a('v_lshl_add_u32 %s, %s, 3, %s' % (vr(dad), vr(V_N), sr(S_T1)))
stamp(a, 'setup')


def b_read(s, kp):
    s.wait(btk[kp])
    tk = None
    for h in range(2):
        for mat in range(2):
            tk = s.mem('ds_read_b128 %s, %s offset:%d' % (ar(WB(kp, h, mat), 4), vr(V_FB + h), (kp % 3) * 4096 + mat * 2048))
    return tk


class KVm:
    pass


def kv_dma(s, kv):
    kv.SHK = V.get(4, top=True)
    t, t2, kh = V.get(), V.get(), V.get()
    s('s_cmp_lt_u32 %s, 6' % sr(S_CG),
      's_cselect_b32 %s, %d, 0' % (sr(R_K + 2), 2048 * 1152),
      's_mov_b32 %s, %s' % (sr(R_V + 2), sr(R_K + 2)),
      's_mov_b32 %s, %s' % (sr(R_K), sr(P_K)), 's_and_b32 %s, %s, 0xffff' % (sr(R_K + 1), sr(P_K + 1)),
      's_mov_b32 %s, 0x20000' % sr(R_K + 3))
    s('s_mov_b32 %s, %s' % (sr(R_V), sr(P_V)), 's_and_b32 %s, %s, 0xffff' % (sr(R_V + 1), sr(P_V + 1)),
      's_mov_b32 %s, 0x20000' % sr(R_V + 3))
    s('v_lshrrev_b32 %s, 3, %s' % (vr(t), vr(V_LANE)))
    s('v_mul_u32_u24 %s, 1152, %s' % (vr(t2), vr(t)))
    s('v_and_b32 %s, 7, %s' % (vr(t), vr(V_LANE)))
    s('v_lshl_add_u32 %s, %s, 4, %s' % (vr(t2), vr(t), vr(t2)))
    s('v_and_b32 %s, 31, %s' % (vr(t), vr(V_LANE)))
    s('s_lshl_b32 %s, %s, 9' % (sr(S_T1), sr(S_CG)),
      'v_lshl_add_u32 %s, %s, 4, %s' % (vr(t), vr(t), sr(S_T1)),
      'global_load_dwordx4 %s, %s, %s' % (vr(kv.SHK, 4), vr(t), sr(P_SHK, 2)))
    s('s_lshl2_add_u32 %s, %s, %s' % (sr(S_T0), sr(S_RB), sr(S_WAVE)),
      's_mul_i32 %s, %s, %d' % (sr(S_T0), sr(S_T0), 24 * 1152),
      's_lshl_b32 %s, %s, 7' % (sr(S_T1), sr(S_CG)),
      's_add_u32 %s, %s, %s' % (sr(S_T0), sr(S_T0), sr(S_T1)),
      'v_add_u32 %s, %s, %s' % (vr(t2), sr(S_T0), vr(t2)),
      'v_subrev_u32 %s, %d, %s' % (vr(kh), 8 * 1152, vr(t2)))
    s('s_mul_i32 %s, %s, 7168' % (sr(S_C), sr(S_WAVE)), 's_mov_b32 m0, %s' % sr(S_C))
    s('buffer_load_dwordx4 %s, %s, 0 offen nt lds' % (vr(kh), sr(R_K, 4)))
    for u in range(3):
        for base, rr in ((1024, R_K), (4096, R_V)):
            s('s_add_u32 m0, %s, %d' % (sr(S_C), base + u * 1024))
            kv.tok = s.mem('s_mov_b32 %s, %d' % (sr(S_T2), u * 8 * 1152),
                           'buffer_load_dwordx4 %s, %s, %s offen nt lds' % (vr(t2), sr(rr, 4), sr(S_T2)))
    kv.rel = [t, t2, kh]


def kv_core(kc, ntp, krow, vrow, SHK, emit_unit, touch=None):
    W, KU, P = V.get(8), V.get(16), V.get(16)
    S4 = V.get(4, 1)
    OU = V.get(8)
    ONE2 = V.get()
    kc('v_mov_b32 %s, 0x3f803f80' % vr(ONE2))
    kc('v_mov_b32 %s, %s' % (vr(OU + 3), vr(V_TAG)))
    kc('v_mov_b32 %s, %s' % (vr(OU + 7), vr(V_TAG)))
    for j in range(4):
        for ch in range(2):
            src = SHK + 2 * ch + (j >> 1)
            kc(('v_and_b32 %s, 0xffff0000, %s' if j & 1 else 'v_lshlrev_b32 %s, 16, %s') % (vr(W + 2 * j + ch), vr(src)))
    ku = lambda r: KU + 2 * ((r + 3) % 8)

    def unpack_k(r):
        kc('v_lshlrev_b32 %s, 16, %s' % (vr(ku(r)), vr(krow(r))))
        kc('v_and_b32 %s, 0xffff0000, %s' % (vr(ku(r) + 1), vr(krow(r))))

    for r in (-3, -2, -1):
        unpack_k(r)
    for tp in range(ntp):
        if touch is not None:
            touch(tp)
        for tt in range(2):
            unpack_k(2 * tp + tt)
        for tt in range(2):
            for j in range(4):
                kc('v_pk_mul_f32 %s, %s, %s' % (vr(P + tt * 8 + 2 * j, 2), vr(ku(2 * tp + tt - j), 2), vr(W + 2 * j, 2)))
        idx = [(tt, ch) for tt in range(2) for ch in range(2)]
        for step in range(3):
            for u, (tt, ch) in enumerate(idx):
                first = vr(P + tt * 8 + 6 + ch) if step == 0 else vr(S4 + u)
                kc('v_cvt_pk_bf16_f32 %s, %s, %s' % (vr(S4 + u), first, vr(P + tt * 8 + 2 * (2 - step) + ch)))
            for u in range(4):
                kc('v_dot2_f32_bf16 %s, %s, %s, 0' % (vr(S4 + u), vr(S4 + u), vr(ONE2)))
        for u, (tt, ch) in enumerate(idx):
            kc('v_cvt_pk_bf16_f32 %s, %s, %s' % (vr(S4 + u), vr(S4 + u) if ch == 0 else '0', '0' if ch == 0 else vr(S4 + u)))
        for u, (tt, ch) in enumerate(idx):
            kc('v_dot2_f32_bf16 %s, %s, %s, 0' % (vr(S4 + u), vr(S4 + u), vr(vrow(2 * tp + tt))))
        pos = ntp - 1 - tp
        for ch in range(2):
            kc('v_cvt_pk_bf16_f32 %s, %s, %s' % (vr(OU + 4 * ch + pos % 3), vr(S4 + 2 + ch), vr(S4 + ch)))
        if pos % 3 == 0:
            for ch in range(2):
                emit_unit(ch, pos // 3, OU + 4 * ch)
    put((W, 8), (KU, 16), (P, 16), (S4, 4), (OU, 8), ONE2)


def kv_main(s, kv, ks):
    ka, kb, t, t2 = [V.get() for _ in range(4)]
    s('v_lshrrev_b32 %s, 5, %s' % (vr(t), vr(V_LANE)))
    s('v_and_b32 %s, 31, %s' % (vr(t2), vr(V_LANE)))
    s('v_mul_u32_u24 %s, 1536, %s' % (vr(ka), vr(t)))
    s('v_lshl_add_u32 %s, %s, 2, %s' % (vr(ka), vr(t2), vr(ka)))
    s('s_mul_i32 %s, %s, 7168' % (sr(S_T0), sr(S_WAVE)),
      's_add_u32 %s, %s, 512' % (sr(S_T0), sr(S_T0)),
      'v_add_u32 %s, %s, %s' % (vr(ka), sr(S_T0), vr(ka)))
    s('v_add_u32 %s, 128, %s' % (vr(kb), vr(ka)))
    KR, VR = V.get(16, 2), V.get(12, 2)
    ridx = lambda r: (r >> 2) * 4 + (r & 1) * 2 + ((r >> 1) & 1)
    krow = lambda r: KR + ridx(r + 4)
    vrow = lambda r: VR + ridx(r)
    s.wait(kv.tok)
    for g in range(4):
        for par in range(2):
            s('ds_read2st64_b32 %s, %s offset0:%d offset1:%d' % (vr(KR + g * 4 + par * 2, 2), vr(kb if par else ka), 2 * g, 2 * g + 1))
        if g > 0:
            for par in range(2):
                s('ds_read2st64_b32 %s, %s offset0:%d offset1:%d' % (vr(VR + (g - 1) * 4 + par * 2, 2), vr(kb if par else ka),
                                                                     14 + 2 * (g - 1), 14 + 2 * (g - 1) + 1))
    s('v_sub_u32 %s, 1, %s' % (vr(t), vr(t)))
    s('v_lshlrev_b32 %s, 5, %s' % (vr(t), vr(t)))
    s('v_mul_u32_u24 %s, 528, %s' % (vr(t2), vr(t2)))
    s('s_lshl_b32 %s, %s, 6' % (sr(S_T0), sr(S_WAVE)),
      's_sub_u32 %s, 192, %s' % (sr(S_T0), sr(S_T0)),
      'v_add3_u32 %s, %s, %s, %s' % (vr(t), vr(t), vr(t2), sr(S_T0)),
      's_mul_i32 %s, %s, 4224' % (sr(S_T0), sr(S_WAVE)),
      'v_lshrrev_b32 %s, 5, %s' % (vr(t2), vr(V_LANE)),
      'v_lshlrev_b32 %s, 4, %s' % (vr(t2), vr(t2)),
      'v_add3_u32 %s, %s, %s, %s' % (vr(t2), vr(t2), vr(V_L16), sr(S_T0)))
    tks = []
    kv_core(s, 6, krow, vrow, kv.SHK,
            lambda ch, un, reg: tks.append(s.mem('ds_write_b128 %s, %s offset:%d' % (vr(t), vr(reg, 4), L_KVO + ch * 256 + un * 16))))
    put((KR, 16), (VR, 12), (kv.SHK, 4))
    D = V.get(16)
    s('v_mul_u32_u24 %s, %d, %s' % (vr(ka), KVT_STR, vr(V_Q)))
    s('v_lshl_add_u32 %s, %s, 4, %s' % (vr(ka), vr(V_N), vr(ka)))
    s('s_mul_i32 %s, %s, %d' % (sr(S_T0), sr(S_PT), 16 * KVT_STR),
      's_lshl_b32 %s, %s, 8' % (sr(S_T1), sr(S_RB)),
      's_sub_u32 %s, %s, %s' % (sr(S_T0), sr(S_T0), sr(S_T1)),
      's_add_u32 %s, %s, %d' % (sr(S_T0), sr(S_T0), WS_KVT + 21 * 256),
      's_cmp_lt_u32 %s, 6' % sr(S_CG),
      's_cselect_b32 %s, %s, 0x40000000' % (sr(S_T0), sr(S_T0)),
      'v_add_u32 %s, %s, %s' % (vr(ka), sr(S_T0), vr(ka)))
    ks.wait(tks[-1])
    ks('s_barrier')
    for i in range(4):
        ks('ds_read_b128 %s, %s offset:%d' % (vr(D + 4 * i, 4), vr(t2), L_KVO + i * 1056))
    for i in range(4):
        ks('s_mov_b32 %s, %d' % (sr(S_T1), 4 * i * KVT_STR),
           'buffer_store_dwordx4 %s, %s, %s, %s offen sc1' % (vr(D + 4 * i, 4), vr(ka), sr(R_WS, 4), sr(S_T1)))
    ks('s_nop 1')
    put((D, 16), ka, kb, t, t2)


def stats_partial(s, X, S, Q, i, d, pk):
    x = X + 4 * i
    if pk:
        s('v_pk_add_f32 %s, %s, %s' % (vr(d, 2), vr(x, 2), vr(x + 2, 2)),
          'v_pk_mul_f32 %s, %s, %s' % (vr(d + 2, 2), vr(x, 2), vr(x, 2)),
          'v_add_f32 %s, %s, %s' % (vr(S + i), vr(d), vr(d + 1)),
          'v_pk_fma_f32 %s, %s, %s, %s' % (vr(d + 2, 2), vr(x + 2, 2), vr(x + 2, 2), vr(d + 2, 2)),
          'v_add_f32 %s, %s, %s' % (vr(Q + i), vr(d + 2), vr(d + 3)))
    else:
        s('v_add_f32 %s, %s, %s' % (vr(S + i), vr(x), vr(x + 1)))
        s('v_mul_f32 %s, %s, %s' % (vr(Q + i), vr(x), vr(x)))
        s('v_add_f32 %s, %s, %s' % (vr(S + i), vr(S + i), vr(x + 2)))
        s('v_fmac_f32 %s, %s, %s' % (vr(Q + i), vr(x + 1), vr(x + 1)))
        s('v_add_f32 %s, %s, %s' % (vr(S + i), vr(S + i), vr(x + 3)))
        s('v_fmac_f32 %s, %s, %s' % (vr(Q + i), vr(x + 2), vr(x + 2)))
        s('v_fmac_f32 %s, %s, %s' % (vr(Q + i), vr(x + 3), vr(x + 3)))


def stats_publish(s, X, which, fast, pk=True, SQ=None, tiles=range(MT)):
    if SQ is None:
        S, Q = V.get(6, 1), V.get(6, 1)
    else:
        S, Q = SQ
    d = V.get(4)
    for i in tiles:
        stats_partial(s, X, S, Q, i, d, pk)
    s('v_add_u32 %s, %d, %s' % (vr(d + 1), 16 * which, vr(V_TAG)))
    if which == 0:
        s('v_add_u32 %s, %s, %s' % (vr(d + 3), sr(S_XCC), vr(V_TAG)))
    else:
        s('v_add_u32 %s, %d, %s' % (vr(d + 3), 16 * which, vr(V_TAG)))
    rs12(s, [S + i for i in range(6)], [Q + i for i in range(6)])
    s('v_cndmask_b32 %s, %s, %s, %s' % (vr(d), vr(S), vr(S + 2), sr(S_MSEL, 2)))
    s('v_cndmask_b32 %s, %s, %s, %s' % (vr(d + 2), vr(Q), vr(Q + 2), sr(S_MSEL, 2)))
    txt = ['s_mov_b32 %s, %d' % (sr(S_T0), WS_ST + (which == 2) * ST_SZ),
           'buffer_store_dwordx4 %s, %s, %s, %s offen {P}' % (vr(d, 4), vr(V_STW), sr(R_WS, 4), sr(S_T0)), 's_nop 1']
    if fast:
        dual(s, txt)
    else:
        s(*[x.replace('{P}', 'sc1') for x in txt])
    put((S, 6), (Q, 6), (d, 4))


def stats_loads(which, G):
    L = []
    for i in range(MT):
        L.append('s_mov_b32 %s, %d' % (sr(S_T0), WS_ST + (which == 2) * ST_SZ + 4096 * i))
        L.append('buffer_load_dwordx4 %s, %s, %s, %s offen sc1' % (vr(G + 4 * i, 4), vr(V_STR), sr(R_WS, 4), sr(S_T0)))
    return L


def stats_exp(s, which):
    e = V.get()
    s('v_add_u32 %s, %d, %s' % (vr(e), 16 * which, vr(V_TAG)),
      'v_cmp_gt_u32 vcc, 9, %s' % vr(V_N),
      'v_cndmask_b32 %s, 0, %s, vcc' % (vr(e), vr(e)))
    return e


def stats_finish(s, G):
    rs12(s, [G + 4 * i for i in range(6)], [G + 4 * i + 2 for i in range(6)])
    P = V.get(4, top=True)
    for k, src in ((0, G), (1, G + 8)):
        s('v_mul_f32 %s, 0x3ae38e39, %s' % (vr(P + 2 * k), vr(src)))
        s('v_mul_f32 %s, 0x3ae38e39, %s' % (vr(P + 2 * k + 1), vr(src + 2)))
    for k in range(2):
        s('v_fma_f32 %s, -%s, %s, %s' % (vr(P + 2 * k + 1), vr(P + 2 * k), vr(P + 2 * k), vr(P + 2 * k + 1)))
    for k in range(2):
        s('v_max_f32 %s, 0, %s' % (vr(P + 2 * k + 1), vr(P + 2 * k + 1)))
    return P


def bcast(s, dst, P, i):
    k, lane = tile_src(i)
    s('v_mov_b64_dpp %s, %s row_newbcast:%d row_mask:0xf bank_mask:0xf' % (vr(dst, 2), vr(P + 2 * k, 2), lane))


def ln_table(s, layer, G, RBG):
    P = stats_finish(s, G)
    put((G, 24))
    mu = [P, P + 2]
    va = [P + 1, P + 3]
    if layer == 0:
        rbf(s, mu + va)
        for r in va:
            s('v_add_f32 %s, 0x3727c5ac, %s' % (vr(r), vr(r)))
        rbf(s, va)
        for r in va:
            s('v_sqrt_f32 %s, %s' % (vr(r), vr(r)))
        rbf(s, va)
        for r in va:
            s('v_rcp_f32 %s, %s' % (vr(r), vr(r)))
        s('v_mov_b32 %s, %s' % (vr(OFF), vr(mu[0])), 'v_mov_b32 %s, %s' % (vr(OFF + 1), vr(mu[1])))
    else:
        for r in va:
            s('v_add_f32 %s, 0x3727c5ac, %s' % (vr(r), vr(r)))
        for r in va:
            s('v_rsq_f32 %s, %s' % (vr(r), vr(r)))
        s('v_add_f32 %s, %s, %s' % (vr(OFF), vr(OFF), vr(mu[0])), 'v_add_f32 %s, %s, %s' % (vr(OFF + 1), vr(OFF + 1), vr(mu[1])))
    with V.borrow(*HOMES):
        d = V.get(2)
    s('v_cndmask_b32 %s, %s, %s, %s' % (vr(d), vr(va[0]), vr(va[1]), sr(S_MSEL, 2)))
    s('v_cndmask_b32 %s, %s, %s, %s' % (vr(d + 1), vr(mu[0]), vr(mu[1]), sr(S_MSEL, 2)))
    s('v_mul_f32 %s, %s, %s' % (vr(d + 1), vr(d + 1), vr(d)))
    tk = s.mem('s_mov_b64 exec, %s' % sr(S_MACT, 2),
               'ds_write2_b32 %s, %s, %s offset0:0 offset1:2' % (vr(V_TABW), vr(d), vr(d + 1)),
               's_mov_b64 exec, -1')
    put((d, 2))
    return tk, P


def ln_rest(r, layer, P):
    b = V.get(2)
    tmp = V.get(4)
    for i in range(MT):
        x = BASE + 4 * i
        bcast(r, b, P, i)
        for k in range(2):
            r('v_pk_add_f32 %s, %s, %s op_sel:[0,0] op_sel_hi:[1,0] neg_lo:[0,1] neg_hi:[0,1]' % (vr(x + 2 * k, 2), vr(x + 2 * k, 2), vr(b, 2)))
        if layer == 0:
            for k in range(2):
                r('v_cvt_pk_bf16_f32 %s, %s, %s' % (vr(tmp + 2 * k), vr(x + 2 * k), vr(x + 2 * k + 1)))
            for rep in range(3):
                for k in range(2):
                    r('v_and_b32 %s, 0xffff0000, %s' % (vr(tmp + 2 * k + 1), vr(tmp + 2 * k)),
                      'v_lshlrev_b32 %s, 16, %s' % (vr(tmp + 2 * k), vr(tmp + 2 * k)))
                for k in range(2):
                    if rep == 0:
                        r('v_pk_mul_f32 %s, %s, %s op_sel:[0,1] op_sel_hi:[1,1]' % (vr(tmp + 2 * k, 2), vr(tmp + 2 * k, 2), vr(b, 2)))
                    elif rep == 1:
                        r('v_pk_mul_f32 %s, %s, %s' % (vr(tmp + 2 * k, 2), vr(tmp + 2 * k, 2), vr(V_DSK + 2 * k, 2)))
                    else:
                        r('v_pk_add_f32 %s, %s, %s' % (vr(x + 2 * k, 2), vr(x + 2 * k, 2), vr(tmp + 2 * k, 2)))
                if rep < 2:
                    for k in range(2):
                        r('v_cvt_pk_bf16_f32 %s, %s, %s' % (vr(tmp + 2 * k), vr(tmp + 2 * k), vr(tmp + 2 * k + 1)))
        else:
            for k in range(2):
                r('v_pk_fma_f32 %s, %s, %s, 1.0 op_sel:[0,1,0] op_sel_hi:[1,1,0]' % (vr(tmp + 2 * k, 2), vr(V_DSK + 2 * k, 2), vr(b, 2)))
            for k in range(2):
                r('v_pk_mul_f32 %s, %s, %s' % (vr(x + 2 * k, 2), vr(x + 2 * k, 2), vr(tmp + 2 * k, 2)))
    put((P, 4), (b, 2), (tmp, 4))


def a_reads(k, AF):
    s = Stream()
    kp, h = k >> 1, k & 1
    base = V_FA + h + (2 if kp >= 4 else 0)
    off = (kp - (4 if kp >= 4 else 0)) * BLK
    for i in range(MT):
        s('ds_read_b128 %s, %s offset:%d' % (vr(AF + (k & 1) * 24 + i * 4, 4), vr(base), off + i * 2048))
    return s


def b_mfmas(k, ACC, AF, ones=None):
    s = Stream()
    kp, h = k >> 1, k & 1
    if ones is not None:
        for mat in range(2):
            s('v_mfma_f32_16x16x32_bf16 %s, %s, %s, %s' % (vr(ones[1] + mat * 4, 4), vr(ones[0], 4), ar(WB(kp, h, mat), 4),
                                                          '0' if k == 0 else vr(ones[1] + mat * 4, 4)))
    for i in range(MT):
        if i % 3 == 0:
            s.touch(vr(AF + (k & 1) * 24 + i * 4, 12))
        for mat in range(2):
            d = ACC + (mat * MT + i) * 4
            s('v_mfma_f32_16x16x32_bf16 %s, %s, %s, %s' % (vr(d, 4), vr(AF + (k & 1) * 24 + i * 4, 4), ar(WB(kp, h, mat), 4),
                                                          '0' if k == 0 else vr(d, 4)))
    return s


def split(stream, n):
    g = stream.groups
    parts = []
    for i in range(n):
        p = Stream()
        p.groups = g[len(g) * i // n: len(g) * (i + 1) // n]
        parts.append(p)
    return parts


def ensure(sc, tok):
    for q in sc.sides:
        idx = [i for i, g in enumerate(q) if any((not isinstance(it, tuple)) and it.tok is tok for it in g)]
        if idx:
            for _ in range(idx[0] + 1):
                sc._emit(q.pop(0))


def gemm_b(a, ACC, AF, xtok, pre, side, ones=None, vm=None, need=None):
    sc = Sched(a)
    qr, qv, qs = sc.add(Stream()), sc.add(Stream()), sc.add(Stream())
    b = Stream()
    b.wait(xtok(0))
    b('s_barrier')
    b.extend(a_reads(0, AF))
    sc.run(b)
    for k in range(18):
        sc.flush(qr)
        if k == 9:
            print('side leftover at k', k, len(qs))
            sc.flush(qs)
        if need is not None:
            for tk in need.get(k, []):
                ensure(sc, tk)
        if pre[k].groups:
            for g in pre[k].groups:
                for it in g:
                    if isinstance(it, tuple) and it[0] == 'wait':
                        for tk in it[1]:
                            ensure(sc, tk)
            if any(not isinstance(it, tuple) for g in pre[k].groups for it in g):
                sc.flush()
            sc.run(pre[k])
        b = Stream()
        if k & 1 and k < 17:
            ensure(sc, xtok((k + 1) >> 1))
            b.wait(xtok((k + 1) >> 1))
            b('s_barrier')
            sides, sc.sides = sc.sides, []
            sc.run(b)
            sc.sides = sides
        if k < 17:
            qr.extend(a_reads(k + 1, AF).groups)
        if vm is not None:
            qv.extend(vm[k].groups)
        qs.extend(side[k].groups)
        sc.run(b_mfmas(k, ACC, AF, ones))
        if OPT['fine'] and k % 3 == 2:
            stamp(a, 'k%d' % k)
    print('gemm_b leftover', sc.pending(), 'model time', sc.t)
    sc.flush()


class Conv:
    pass


def conv_setup_k(s, cv, keep=False):
    s('s_lshl1_add_u32 %s, %s, %s' % (sr(S_T0), sr(S_PAIR), sr(S_B)),
      's_lshl_b32 %s, %s, 12' % (sr(S_T1), sr(S_T0)),
      's_add_u32 %s, %s, %s' % (sr(R_SK), sr(P_SSK), sr(S_T1)),
      's_addc_u32 %s, %s, 0' % (sr(R_SK + 1), sr(P_SSK + 1)),
      's_and_b32 %s, %s, 0xffff' % (sr(R_SK + 1), sr(R_SK + 1)),
      's_mov_b32 %s, 4096' % sr(R_SK + 2),
      's_mov_b32 %s, 0x20000' % sr(R_SK + 3))
    cv.SD = V.get(2, top=True)
    cv.HD = V.get(top=True)
    s('s_lshl_b32 %s, %s, 2' % (sr(S_T1), sr(S_PAIR)),
      'v_mov_b32 %s, %s' % (vr(cv.SD), sr(S_T1)),
      'global_load_dword %s, %s, %s' % (vr(cv.SD), vr(cv.SD), sr(P_SSD, 2)))
    s('v_add_u32 %s, %s, %s' % (vr(cv.HD), vr(V_N), vr(V_Q)),
      'v_subrev_u32 %s, 16, %s' % (vr(cv.HD), vr(cv.HD)),
      'v_lshlrev_b32 %s, 2, %s' % (vr(cv.HD), vr(cv.HD)),
      'buffer_load_dword %s, %s, %s, 0 offen' % (vr(cv.HD), vr(cv.HD), sr(R_SK, 4)))
    for c in range(2):
        s('s_mul_i32 %s, %s, %d' % (sr(S_T2), sr(S_B), KC_CH),
          's_mul_i32 %s, %s, %d' % (sr(S_T3), sr(S_A), (16 + 8320) if c == 0 else 8320),
          's_add_u32 %s, %s, %s' % (sr(S_T3), sr(S_T3), sr(S_T2)),
          's_add_u32 m0, %s, %d' % (sr(S_T3), L_KC + 64 + (0 if c == 0 else 16 + 4160)),
          's_lshl_b32 %s, %s, 3' % (sr(S_C), sr(S_A)),
          's_add_u32 %s, %s, %d' % (sr(S_C), sr(S_C), 4 * c))
        for part in range(4):
            cv.ktk = s.mem('buffer_load_dwordx4 %s, %s, %s offen offset:%d nt lds' % (vr(V_L16), sr(R_SK, 4), sr(S_C), part * 1024))


def conv_u_prep(s, cv):
    cv.UA = V.get(2, 1, top=True)
    cv.UE = V.get(top=True)
    cv.UN = V.get(top=True)
    cv.U = V.get(16, top=True)
    U, UA, UE = cv.U, cv.UA, cv.UE
    s('s_lshl1_add_u32 %s, %s, %s' % (sr(S_T0), sr(S_PAIR), sr(S_B)),
      's_mul_i32 %s, %s, %d' % (sr(S_T1), sr(S_T0), KVT_STR),
      's_mul_i32 %s, %s, %d' % (sr(S_T3), sr(S_A), 171 * 16),
      's_add_u32 %s, %s, %s' % (sr(S_T1), sr(S_T1), sr(S_T3)),
      's_add_u32 %s, %s, %d' % (sr(S_T1), sr(S_T1), WS_KVT + 10 * 16),
      'v_add_u32 %s, %s, %s' % (vr(UA), sr(S_T1), vr(V_L16)))
    s('s_sub_u32 %s, 44, %s' % (sr(S_T0), sr(S_A)),
      'v_cmp_gt_u32 vcc, %s, %s' % (sr(S_T0), vr(V_LANE)),
      'v_cndmask_b32 %s, %s, %s, vcc' % (vr(UA + 1), vr(V_OOB), vr(UA)),
      'v_cndmask_b32 %s, 0, %s, vcc' % (vr(UE), vr(V_TAG)))
    s('s_sub_u32 %s, 43, %s' % (sr(S_T0), sr(S_A)),
      'v_cmp_gt_u32 vcc, %s, %s' % (sr(S_T0), vr(V_LANE)),
      'v_cndmask_b32 %s, %s, %s, vcc' % (vr(cv.UN), vr(V_OOB), vr(UA)))
    cv.uloads = []
    for i in range(3):
        cv.uloads.append('buffer_load_dwordx4 %s, %s, %s, 0 offen offset:%d sc1' % (vr(U + 4 * i, 4), vr(UA + (i >> 1)), sr(R_WS, 4), 1024 * i))
    for i in range(3):
        cv.uloads.append('buffer_load_dword %s, %s, %s, 0 offen offset:%d sc1' % (vr(U + 12 + i), vr(UA if i < 2 else cv.UN), sr(R_WS, 4), 1024 * i + 16))
    cv.uchecks = [(U + 3, U + 7, V_TAG), (U + 11, None, UE)]


def conv_addr(s, cv):
    cv.ah, cv.az, cv.au, cv.vN, cv.vM = [V.get(top=True) for _ in range(5)]
    t, e = V.get(), V.get()
    ah, az, au, vN, vM = cv.ah, cv.az, cv.au, cv.vN, cv.vM
    s('v_mul_u32_u24 %s, 4160, %s' % (vr(ah), vr(V_Q)))
    s('v_min_u32 %s, 1, %s' % (vr(e), vr(V_Q)))
    s('v_lshl_add_u32 %s, %s, 4, %s' % (vr(ah), vr(e), vr(ah)))
    s('v_lshl_add_u32 %s, %s, 2, %s' % (vr(ah), vr(V_N), vr(ah)))
    s('s_mul_i32 %s, %s, %d' % (sr(S_T2), sr(S_B), KC_CH),
      's_add_u32 %s, %s, %d' % (sr(S_T3), sr(S_T2), L_KC),
      'v_add_u32 %s, %s, %s' % (vr(ah), sr(S_T3), vr(ah)))
    s('s_mul_i32 %s, %s, %d' % (sr(S_T2), sr(S_B), UC_CH),
      's_mul_i32 %s, %s, 4640' % (sr(S_T3), sr(S_A)),
      's_add_u32 %s, %s, %s' % (sr(S_T3), sr(S_T3), sr(S_T2)),
      'v_lshl_add_u32 %s, %s, 3, %s' % (vr(az), vr(V_LANE), sr(S_T3)))
    s('v_mul_u32_u24 %s, 12, %s' % (vr(au), vr(V_LANE)))
    s('s_mul_i32 %s, %s, %d' % (sr(S_T2), sr(S_B), UC_CH),
      's_mul_i32 %s, %s, %d' % (sr(S_T3), sr(S_A), 171 * 12),
      's_add_u32 %s, %s, %s' % (sr(S_T3), sr(S_T3), sr(S_T2)),
      'v_add_u32 %s, %s, %s' % (vr(au), sr(S_T3), vr(au)))
    s('v_add_u32 %s, 1, %s' % (vr(t), vr(V_N)))
    s('v_and_b32 %s, 3, %s' % (vr(e), vr(t)))
    s('v_mul_u32_u24 %s, 4160, %s' % (vr(vN), vr(e)))
    s('v_min_u32 %s, 1, %s' % (vr(e), vr(e)))
    s('v_lshrrev_b32 %s, 2, %s' % (vr(t), vr(t)))
    s('v_add3_u32 %s, %s, %s, %s' % (vr(t), vr(t), vr(e), vr(V_Q)))
    s('v_lshl_add_u32 %s, %s, 4, %s' % (vr(vN), vr(t), vr(vN)))
    s('s_mul_i32 %s, %s, %d' % (sr(S_T3), sr(S_B), KC_CH),
      's_lshl_b32 %s, %s, 8' % (sr(S_T1), sr(S_A)),
      's_add_u32 %s, %s, %s' % (sr(S_T3), sr(S_T3), sr(S_T1)),
      's_add_u32 %s, %s, %d' % (sr(S_T3), sr(S_T3), L_KC),
      'v_add_u32 %s, %s, %s' % (vr(vN), sr(S_T3), vr(vN)))
    s('v_and_b32 %s, 1, %s' % (vr(t), vr(V_N)))
    s('v_sub_u32 %s, 1, %s' % (vr(t), vr(t)))
    s('v_mul_u32_u24 %s, 4640, %s' % (vr(vM), vr(t)))
    s('v_lshrrev_b32 %s, 1, %s' % (vr(t), vr(V_N)))
    s('v_lshlrev_b32 %s, 6, %s' % (vr(t), vr(t)))
    s('v_sub_u32 %s, %s, %s' % (vr(vM), vr(vM), vr(t)))
    s('v_lshl_add_u32 %s, %s, 4, %s' % (vr(vM), vr(V_Q), vr(vM)))
    s('s_mul_i32 %s, %s, %d' % (sr(S_T2), sr(S_B), UC_CH),
      's_lshl_b32 %s, %s, 8' % (sr(S_T1), sr(S_A)),
      's_add_u32 %s, %s, %s' % (sr(S_T3), sr(S_T2), sr(S_T1)),
      's_add_u32 %s, %s, %d' % (sr(S_T3), sr(S_T3), L_UC + 448),
      'v_add_u32 %s, %s, %s' % (vr(vM), sr(S_T3), vr(vM)))
    return [t, e]


def conv_body(a, cv, side=None, pre_issued=True, early=None, release=True, last=None):
    U, HD = cv.U, cv.HD
    vN, vM = cv.vN, cv.vM
    a('ds_write_b32 %s, %s' % (vr(cv.ah), vr(HD)))
    a('ds_write_b64 %s, %s offset:%d' % (vr(cv.az), vr(V_ZERO, 2), L_UC + 4096))
    if early is not None:
        a.extend(early)
    poll(a, cv.uloads, cv.uchecks, pre_issued=pre_issued, sleep=OPT['slp2'] if pre_issued else OPT['slp'])
    a.touch(vr(U, 15))
    U1 = V.get(9, 1)
    for i in range(3):
        if i == 2:
            a('v_cmp_gt_u32 vcc, 43, %s' % vr(V_LANE), 's_mov_b64 exec, vcc')
        for k in range(3):
            a('ds_write_b32 %s, %s offset:%d' % (vr(cv.au), vr(U + 4 * i + k), L_UC - 8 + 768 * i + 4 * k))
            hi = U + 4 * i + k + 1 if k < 2 else U + 12 + i
            a('v_alignbit_b32 %s, %s, %s, 16' % (vr(U1 + 3 * i + k), vr(hi), vr(U + 4 * i + k)))
        for k in range(3):
            tk = a.mem('ds_write_b32 %s, %s offset:%d' % (vr(cv.au), vr(U1 + 3 * i + k), L_UC - 8 + 4640 + 768 * i + 4 * k))
    a('s_mov_b64 exec, -1')
    a.wait(tk, cv.ktk)
    a('s_barrier')
    put((U, 16), (U1, 9), HD, (cv.UA, 2), cv.UE, cv.UN)
    if release:
        put(cv.ah, cv.az, cv.au)
    stamp(a, 'conv_ld')
    if not pre_issued:
        astamp(a, 11)
    with V.borrow((GP, 12)):
        CA = [V.get(4) for _ in range(8)]
    FN, FM = [[V.get(4) for _ in range(8)] for _ in range(2)]
    AW = V.get(3, 1)
    t = V.get()
    rdN = lambda x, cc: 'ds_read_b128 %s, %s offset:%d' % (vr(FN[x], 4), vr(vN), 512 * x + 64 * cc)
    rdM = lambda x, cc: 'ds_read_b128 %s, %s offset:%d' % (vr(FM[x], 4), vr(vM), 512 * (7 - x) + 64 * cc)
    m = Stream()
    m(rdN(0, 0))
    for x in range(7, -1, -1):
        m(rdM(x, 0))
    m('v_lshlrev_b32 %s, 1, %s' % (vr(t), vr(V_N)))
    m('v_lshl_add_u32 %s, %s, 6, %s' % (vr(t), vr(V_Q), vr(t)))
    for j in range(3):
        m('v_add_u32 %s, %d, %s' % (vr(AW + j), j, vr(t)))
        m('v_mul_u32_u24 %s, 171, %s' % (vr(AW + j), vr(AW + j)))
        m('v_lshrrev_b32 %s, 9, %s' % (vr(AW + j), vr(AW + j)))
        m('v_add_u32 %s, %s, %s' % (vr(AW + j), vr(AW + j), vr(t)))
        m('s_mul_i32 %s, %s, %d' % (sr(S_T3), sr(S_WAVE), CO_W),
          'v_lshl_add_u32 %s, %s, 2, %s' % (vr(AW + j), vr(AW + j), sr(S_T3)))

    def stage(m, i):
        tk = None
        for r in range(4):
            c = 256 * i + 32 * (r >> 1) + (r & 1)
            tk = m.mem('ds_write_b32 %s, %s offset:%d' % (vr(AW + c % 3), vr(CA[i] + r), L_CO + 4 * (c + c // 3)))
        return tk

    for cc in range(4):
        if cc == 3:
            sc = Sched(a)
            sc.VM_GAP = 85
            if side is not None:
                qs_ = [sc.add(x) for x in side]
            sc.run(m)
            if side is not None:
                sc.flush(qs_[0])
            sc.VM_GAP = 30
            m = Stream()
            if last is not None:
                last(m, None)
        for aa in range(8):
            for dl in range(7 - aa, -1, -1):
                i = aa + dl
                z = cc == 0 and aa == 0
                m('v_mfma_f32_16x16x32_bf16 %s, %s, %s, %s' % (vr(CA[i], 4), vr(FM[dl], 4), vr(FN[aa], 4),
                                                              '0' if z else vr(CA[i], 4)))
                if cc == 0 and aa == 0 and dl > 0:
                    m(rdN(8 - dl, 0))
                if dl == 7 - aa:
                    if cc < 3:
                        m(rdM(dl, cc + 1))
                    elif last is not None:
                        last(m, FM[dl])
            if cc < 3:
                m(rdN(aa, cc + 1))
            else:
                if last is not None:
                    last(m, FN[aa])
                if 2 <= aa:
                    stage(m, aa - 2)
    stage(m, 6)
    cv.stk = stage(m, 7)
    sc.run(m)
    print('conv leftover', sc.pending(), 'model time', sc.t)
    sc.flush()
    put(*[(r, 4) for r in CA])
    if last is None:
        put(*[(r, 4) for r in FN + FM])
    put((AW, 3), t)
    if release:
        put(vN, vM)
    stamp(a, 'conv_mm')
    if not pre_issued:
        astamp(a, 12)


def conv_final(s, cv, Y0=None):
    SD = cv.SD
    ay, ak, ag = V.get(), V.get(), V.get()
    Y1 = [V.get(4) for _ in range(4)]
    own0 = Y0 is None
    if own0:
        Y0 = [V.get(4) for _ in range(4)]
    Ys = [Y0, Y1, Y1]
    KVs = [V.get(4), V.get(4)]
    D = V.get(6, 1)
    GO = V.get(4)
    t = V.get()
    s('v_lshlrev_b32 %s, 4, v0' % vr(ay))
    s('v_mul_u32_u24 %s, 6, v0' % vr(ak))
    s('v_sub_u32 %s, %d, %s' % (vr(ak), 4090, vr(ak)))
    s('v_and_b32 %s, -4, %s' % (vr(ak), vr(ak)))
    s('v_and_b32 %s, 1, v0' % vr(t))
    s('v_sub_u32 %s, 1, %s' % (vr(t), vr(t)))
    s('v_mul_u32_u24 %s, 4640, %s' % (vr(t), vr(t)))
    s('v_add_u32 %s, %s, %s' % (vr(ak), vr(ak), vr(t)))

    def reads(j):
        if j > 0:
            s('v_subrev_u32 %s, 1536, %s' % (vr(ak), vr(ak)))
        if j == 2:
            s('v_max_i32 %s, 0, %s' % (vr(ak), vr(ak)))
        for ch in range(2):
            for k in range(2):
                s('ds_read_b32 %s, %s offset:%d' % (vr(KVs[j & 1] + 2 * ch + k), vr(ak), L_UC + ch * UC_CH + 4 * k))
        for w in range(4):
            s('ds_read_b128 %s, %s offset:%d' % (vr(Ys[j][w], 4), vr(ay), L_CO + w * CO_W + j * 4096))

    reads(0)
    s('v_and_b32 %s, 0xffff0000, %s' % (vr(SD + 1), vr(SD)))
    s('v_lshlrev_b32 %s, 16, %s' % (vr(SD), vr(SD)))
    s('s_mul_i32 %s, %s, %d' % (sr(S_T1), sr(S_PAIR), G_STR),
      's_add_u32 %s, %s, %d' % (sr(S_T1), sr(S_T1), WS_G),
      'v_add_u32 %s, %s, %s' % (vr(ag), sr(S_T1), vr(ay)))
    s('v_mov_b32 %s, %s' % (vr(GO + 3), vr(V_TAG)))
    reads(1)
    for j in range(3):
        KV, Y = KVs[j & 1], Ys[j]
        if j > 0:
            s('v_add_u32 %s, 4096, %s' % (vr(ag), vr(ag)))
        if j == 2:
            s('v_cmp_gt_u32 vcc, 192, v0', 'v_cndmask_b32 %s, %s, %s, vcc' % (vr(ag), vr(V_OOB), vr(ag)))
        for ch in range(2):
            d = D + 3 * ch
            s('v_lshlrev_b32 %s, 16, %s' % (vr(d), vr(KV + 2 * ch + 1)))
            s('v_and_b32 %s, 0xffff0000, %s' % (vr(d + 1), vr(KV + 2 * ch)))
            s('v_lshlrev_b32 %s, 16, %s' % (vr(d + 2), vr(KV + 2 * ch)))
            for e in range(3):
                s('v_mul_f32 %s, %s, %s' % (vr(d + e), vr(d + e), vr(SD + ch)))
        for ch in range(2):
            d, y, y2 = D + 3 * ch, Y[2 * ch], Y[2 * ch + 1]
            for e in range(3):
                s('v_add_f32 %s, %s, %s' % (vr(y + e), vr(y + e), vr(y2 + e)))
            for e in range(3):
                s('v_cvt_pk_bf16_f32 %s, %s, %s' % (vr(d + e), vr(y + e), vr(d + e)))
        if j == 0:
            cv.mark = len(s.groups)
        if j == 1:
            reads(2)
        for ch in range(2):
            d = D + 3 * ch
            for e in range(3):
                s('v_lshlrev_b32 %s, 16, %s' % (vr(t), vr(d + e)))
                s('v_and_b32 %s, 0xffff0000, %s' % (vr(d + e), vr(d + e)))
                s('v_add_f32 %s, %s, %s' % (vr(d + e), vr(d + e), vr(t)))
        for e in range(3):
            s('v_cvt_pk_bf16_f32 %s, %s, %s' % (vr(GO + e), vr(D + e), vr(D + 3 + e)))
        s('buffer_store_dwordx4 %s, %s, %s, 0 offen sc1' % (vr(GO, 4), vr(ag), sr(R_WS, 4)))
    s('s_nop 1')
    return [ay, ak, ag, (D, 6), (GO, 4), t, (SD, 2)] + [(r, 4) for r in (Y0 if own0 else []) + Y1 + KVs]


ACC = V.get(48, top=True)
AF = V.get(48, top=True)
with V.borrow((GP, 12)):
    ONES = V.get(4)
    RBA = V.get(8)
xtk[1] = x_dma(a, 1, 0)
a('global_load_dwordx2 %s, %s, %s' % (vr(V_DSK, 2), vr(dad), sr(P_DSK, 2)))
def h_touch(st, ta):
    st('v_lshrrev_b32 %s, 3, %s' % (vr(ta), vr(V_LANE)),
       'v_mul_u32_u24 %s, %d, %s' % (vr(ta), 36864 - 1024, vr(ta)),
       'v_lshl_add_u32 %s, %s, 7, %s' % (vr(ta), vr(V_LANE), vr(ta)),
       'v_cmp_gt_u32 vcc, 48, %s' % vr(V_LANE),
       'v_cndmask_b32 %s, %s, %s, vcc' % (vr(ta), vr(V_OOB), vr(ta)))
    st('s_mul_i32 %s, %s, 216' % (sr(S_T2), sr(S_RB)),
       's_add_u32 %s, %s, %s' % (sr(S_T2), sr(S_T2), sr(S_PT)),
       's_lshl_b32 %s, %s, 10' % (sr(S_T2), sr(S_T2)),
       's_add_u32 %s, %s, %d' % (sr(S_T2), sr(S_T2), WS_H),
       'buffer_load_dword %s, %s, %s, %s offen %s ;junk' % (vr(V_JUNK), vr(ta), sr(R_WS, 4), sr(S_T2), TPOL))


if OPT['tpos'] == 0:
    h_touch(a, lad)
put(lad, dad)
tag_ready(a)
a('v_cmp_gt_u32 vcc, 9, %s' % vr(V_N), 'v_cndmask_b32 %s, 0, %s, vcc' % (vr(V_EXP9), vr(V_TAG)))
for i in range(4):
    a('v_mov_b32 %s, 0x3f803f80' % vr(ONES + i))
XS = V.get(12, 2, top=True)
s0 = Stream()
s0.wait(xtk[0])
s0('s_barrier')
for i in range(MT):
    s0('ds_read_b64 %s, %s offset:%d' % (vr(XS + 2 * i, 2), vr(V_WA), 2048 * i))
for i in range(MT):
    for k in range(2):
        s0('v_lshlrev_b32 %s, 16, %s' % (vr(BASE + 4 * i + 2 * k), vr(XS + 2 * i + k)))
        s0('v_and_b32 %s, 0xffff0000, %s' % (vr(BASE + 4 * i + 2 * k + 1), vr(XS + 2 * i + k)))
with V.borrow(*HOMES):
    stats_publish(s0, BASE, 0, False)
d1 = Stream()
xtk[2] = x_dma(d1, 2, 0)
rt0 = b_read(d1, 0)
btk[2] = b_dma(d1, 2)
a.weave(s0, d1)
stamp(a, 's0')
put((V_DUMMY, 4))
lp = Stream()
with V.borrow((WCV, 32)):
    lam_compute(lp, LAMT, False, LAM)
    L2, L4, L8, L48, L72, L96, L192, L288 = [V.get(2) for _ in range(8)]
for d_, x_, y_ in ((L2, LAM, LAM), (L4, L2, L2), (L8, L4, L4), (L12, L8, L4), (L24, L12, L12), (L48, L24, L24), (L72, L48, L24),
                   (L96, L48, L48), (L192, L96, L96), (L288, L192, L96), (L384, L192, L192)):
    cmul_plain(lp, d_, x_, y_)
for (dst, opts) in ((LQ96, (L96, L192, L288)), (LQ24, (L24, L48, L72))):
    lp('v_mov_b32 %s, 1.0' % vr(dst), 'v_mov_b32 %s, 0' % vr(dst + 1))
    for qi, o in enumerate(opts):
        lp('v_cmp_eq_u32 vcc, %d, %s' % (qi + 1, vr(V_Q)),
           'v_cndmask_b32 %s, %s, %s, vcc' % (vr(dst), vr(dst), vr(o)),
           'v_cndmask_b32 %s, %s, %s, vcc' % (vr(dst + 1), vr(dst + 1), vr(o + 1)))
for r in (L2, L4, L8, L48, L72, L96, L192, L288):
    put((r, 2))
lp('v_and_b32 %s, 0xffff0000, %s' % (vr(V_DSK + 3), vr(V_DSK + 1)))
lp('v_lshlrev_b32 %s, 16, %s' % (vr(V_DSK + 2), vr(V_DSK + 1)))
lp('v_and_b32 %s, 0xffff0000, %s' % (vr(V_DSK + 1), vr(V_DSK)))
lp('v_lshlrev_b32 %s, 16, %s' % (vr(V_DSK), vr(V_DSK)))
pre = {k: Stream() for k in range(18)}
side = {k: Stream() for k in range(18)}


class Pace:
    def __init__(self, per=3):
        self.vm = {k: Stream() for k in range(18)}
        self.k, self.n, self.per = 0, 0, per

    def add(self, st, earliest=0):
        if self.k < earliest:
            self.k, self.n = earliest, 0
        for g in st.groups:
            if self.n >= self.per:
                self.k, self.n = self.k + 1, 0
            self.vm[self.k].groups.append(g)
            self.n += sum(1 for it in g if not isinstance(it, tuple) and it.kind == 'vmem')
        return self.k


pc = Pace(OPT['per'])
need = {}
side[0].extend(lp)
for blk in range(3, 9):
    st = Stream()
    if blk > 3:
        rt = b_read(st, blk - 3)
        need[2 * (blk - 3)] = [rt]
    else:
        rt = rt0
    xtk[blk] = x_dma(st, blk, 0)
    st.wait(rt)
    btk[blk] = b_dma(st, blk)
    kk = pc.add(st)
    print('block', blk, 'issued by k', kk)
cv = Conv()
cfa, cfe, cfv = V.get(top=True), V.get(top=True), V.get(top=True)
side[0]('s_mul_i32 %s, %s, 43' % (sr(S_T1), sr(S_CG)),
         's_lshr_b32 %s, %s, 5' % (sr(S_T1), sr(S_T1)),
         's_mul_i32 %s, %s, %d' % (sr(S_T1), sr(S_T1), 18 * 64),
         's_add_u32 %s, %s, %d' % (sr(S_T1), sr(S_T1), WS_CPF),
         'v_lshl_add_u32 %s, %s, 6, %s' % (vr(cfa), vr(V_LANE), sr(S_T1)))
side[0]('v_cmp_gt_u32 vcc, 36, %s' % vr(V_LANE),
         'v_cndmask_b32 %s, %s, %s, vcc' % (vr(cfa), vr(V_OOB), vr(cfa)),
         'v_cndmask_b32 %s, 0, %s, vcc' % (vr(cfe), vr(V_TAG)))
cfl = 'buffer_load_dword %s, %s, %s, 0 offen sc1' % (vr(cfv), vr(cfa), sr(R_WS, 4))
side[0]('s_mul_i32 %s, %s, %d' % (sr(S_T0), sr(S_PT), 37 * 1024),
        's_add_u32 %s, %s, %d' % (sr(S_CPB), sr(S_T0), WS_CP))
ca_ = Stream()
carel = conv_addr(ca_, cv)
side[0].extend(ca_)
stt = Stream()
stt(cfl)
ta = carel[0]
if OPT['tpos'] == 1:
    h_touch(stt, ta)
stt('s_mov_b32 %s, %d' % (sr(S_T2), WS_ST + ST_SZ),
    'buffer_load_dword %s, %s, %s, %s offen sc1 ;junk' % (vr(V_JUNK), vr(V_STW), sr(R_WS, 4), sr(S_T2)))
stt('v_lshrrev_b32 %s, 1, %s' % (vr(ta), vr(V_LANE)),
    'v_min_u32 %s, 2, %s' % (vr(ta), vr(ta)),
    'v_mul_u32_u24 %s, %d, %s' % (vr(ta), NRB * 256, vr(ta)),
    'v_and_b32 %s, 1, %s' % (vr(carel[1]), vr(V_LANE)),
    'v_lshl_add_u32 %s, %s, 7, %s' % (vr(ta), vr(carel[1]), vr(ta)),
    's_lshl_b32 %s, %s, 8' % (sr(S_T2), sr(S_RB)),
    's_add_u32 %s, %s, %d' % (sr(S_T2), sr(S_T2), WS_HF),
    'buffer_load_dword %s, %s, %s, %s offen sc1 ;junk' % (vr(V_JUNK), vr(ta), sr(R_WS, 4), sr(S_T2)))
with V.borrow(*HOMES):
    G0 = V.get(24)
xe = V.get()
side[0]('v_add_u32 %s, %s, %s' % (vr(xe), sr(S_XCC), vr(V_TAG)),
        'v_cmp_gt_u32 vcc, 9, %s' % vr(V_N),
        'v_cndmask_b32 %s, 0, %s, vcc' % (vr(xe), vr(xe)))
gl = stats_loads(0, G0)
st = Stream()
for i in range(0, 12, 2):
    st(gl[i], gl[i + 1])
print('gather by k', pc.add(st, 9))
kvm = KVm()
st = Stream()
with V.borrow(*HOMES):
    kv_dma(st, kvm)
print('kv dma by k', pc.add(st, 9))
print('touch by k', pc.add(stt))
for kp, k in ((6, 10), (7, 12), (8, 13)):
    need[2 * kp] = [b_read(side[k], kp)]
lastb = need[16][0]


def s0_poll(s):
    p = Stream()
    L, Lc, Lr = newlabel('poll'), newlabel('pollc'), newlabel('pollr')
    acc = V.get(2, 1)
    p.touch(vr(G0, 24))
    p('v_xor_b32 %s, %s, %s' % (vr(acc), vr(G0 + 1), vr(V_EXP9)))
    for i in range(MT):
        if i:
            p('v_bitop3_b32 %s, %s, %s, %s bitop3:0xf6' % (vr(acc), vr(acc), vr(G0 + 4 * i + 1), vr(V_EXP9)))
        p('v_bitop3_b32 %s, %s, %s, %s bitop3:0xf6' % (vr(acc), vr(acc), vr(G0 + 4 * i + 3), vr(xe)))
    p('v_cmp_ne_u32 vcc, 0, %s' % vr(acc))
    p('s_mov_b32 %s, %d' % (sr(S_FAST), 0 if OPT['slow'] else 1))
    p('s_cmp_lg_u64 vcc, 0')
    p('s_cbranch_scc1 %s' % L)
    p.label(Lc)
    s.join(p)
    tail.label(L)
    tail('s_mov_b32 %s, %d' % (sr(S_SPIN), SPIN))
    tail.label(Lr)
    for t in gl:
        tail(t)
    tail('s_waitcnt vmcnt(0)')
    tail('v_mov_b32 %s, 0' % vr(acc))
    for i in range(MT):
        tail('v_sub_u32 %s, %s, %s' % (vr(acc + 1), vr(G0 + 4 * i + 3), vr(V_EXP9)))
        tail('v_lshrrev_b32 %s, 4, %s' % (vr(acc + 1), vr(acc + 1)))
        tail('v_or_b32 %s, %s, %s' % (vr(acc), vr(acc), vr(acc + 1)))
        tail('v_bitop3_b32 %s, %s, %s, %s bitop3:0xf6' % (vr(acc), vr(acc), vr(G0 + 4 * i + 1), vr(V_EXP9)))
    tail('v_cmp_ne_u32 vcc, 0, %s' % vr(acc))
    tail('s_sub_u32 %s, %s, 1' % (sr(S_SPIN), sr(S_SPIN)))
    tail('s_cselect_b64 vcc, 0, vcc')
    tail('s_cmp_lg_u64 vcc, 0')
    tail('s_cbranch_scc1 %s' % Lr)
    tail('v_cmp_ne_u32 vcc, %s, %s' % (vr(G0 + 3), vr(xe)))
    tail('s_cmp_eq_u64 vcc, 0')
    tail('s_cselect_b32 %s, %d, 0' % (sr(S_FAST), 0 if OPT['slow'] else 1))
    tail('s_branch %s' % Lc)
    put((acc, 2))


s0_poll(side[14])
ttk, LNP0 = ln_table(side[14], 0, G0, None)
put(xe)
pre[15].wait(lastb)
NCP0 = OPT['ncp0']


def WC(s, j):
    idx = s * 4 + j
    if idx < 28:
        return ar(144 + idx * 4, 4)
    return vr(WCV + (idx - 28) * 4, 4)


def cp_load(s_, s, j):
    ld = 'buffer_load_dwordx4 %s, %s, %s, %s offen offset:%d sc1' % (WC(s, j), vr(V_L16), sr(R_WS, 4), sr(S_CPB), j * 1024)
    if j == 3:
        s_(ld, 's_add_u32 %s, %s, 4096' % (sr(S_CPB), sr(S_CPB)))
    else:
        s_(ld)


put((V_DB, 2), (V_DX, 3))
st = Stream()
conv_setup_k(st, cv)
kst = st
gemm_b(a, ACC, AF, lambda s: xtk[s], pre, side, ones=(ONES, RBA), vm=pc.vm, need=need)
a.wait(ttk)
a('s_barrier')
a('v_mov_b32 %s, %s' % (vr(RB), vr(RBA)))
a('v_mov_b32 %s, %s' % (vr(RB + 1), vr(RBA + 4)))
put((ONES, 4), (RBA, 8))
put(*kvm.rel)
put(*carel)
put((V_FB, 2))
stamp(a, 'gemmB1')


def scan_phase(a, layer, ACC, AF, mid=None, x1=None, x2=None):
    NJ = 2 * MT
    re = lambda j: ACC + (j >> 1) * 4 + (j & 1) * 2
    im = lambda j: ACC + 4 * MT + (j >> 1) * 4 + (j & 1) * 2
    TB = AF
    for j in range(NJ):
        a('ds_read_b128 %s, %s offset:%d' % (vr(TB + 4 * j, 4), vr(V_TABR), 16 * j))

    def prescale(j):
        a('v_pk_mul_f32 %s, %s, %s' % (vr(re(j), 2), vr(re(j), 2), vr(TB + 4 * j, 2)))
        a('v_pk_mul_f32 %s, %s, %s' % (vr(im(j), 2), vr(im(j), 2), vr(TB + 4 * j, 2)))
        a('v_pk_fma_f32 %s, %s, %s, %s op_sel:[0,0,0] op_sel_hi:[1,0,1] neg_lo:[1,0,0] neg_hi:[1,0,0]' %
          (vr(re(j), 2), vr(TB + 4 * j + 2, 2), vr(RB, 2), vr(re(j), 2)))
        a('v_pk_fma_f32 %s, %s, %s, %s op_sel:[0,1,0] op_sel_hi:[1,1,1] neg_lo:[1,0,0] neg_hi:[1,0,0]' %
          (vr(im(j), 2), vr(TB + 4 * j + 2, 2), vr(RB, 2), vr(im(j), 2)))

    def step(dr, di, pr, pi, br, bi):
        a('v_pk_fma_f32 %s, %s, %s, %s op_sel:[0,0,0] op_sel_hi:[1,0,1]' % (vr(dr, 2), vr(pr, 2), vr(LAM, 2), vr(br, 2)))
        a('v_pk_fma_f32 %s, %s, %s, %s op_sel:[0,0,0] op_sel_hi:[1,0,1]' % (vr(di, 2), vr(pi, 2), vr(LAM, 2), vr(bi, 2)))
        a('v_pk_fma_f32 %s, %s, %s, %s op_sel:[0,1,0] op_sel_hi:[1,1,1] neg_lo:[1,0,0] neg_hi:[1,0,0]' %
          (vr(dr, 2), vr(pi, 2), vr(LAM, 2), vr(dr, 2)))
        a('v_pk_fma_f32 %s, %s, %s, %s op_sel:[0,1,0] op_sel_hi:[1,1,1]' % (vr(di, 2), vr(pr, 2), vr(LAM, 2), vr(di, 2)))

    with V.borrow(*HOMES):
        E = V.get(8)
        pub = V.get(4)
    prescale(0)
    pr, pi = re(0), im(0)
    for j in range(1, NJ):
        prescale(j)
        dr, di = E + (j & 1) * 4, E + (j & 1) * 4 + 2
        step(dr, di, pr, pi, re(j), im(j))
        pr, pi = dr, di
        if x1 is not None and j % 3 == 1:
            x1(a)
    EA, F = V.get(2), V.get(2)
    a('v_mov_b32 %s, %s' % (vr(EA), vr(pr)))
    a('v_mov_b32 %s, %s' % (vr(EA + 1), vr(pi)))
    a('v_mov_b32 %s, %s' % (vr(F), vr(pr + 1)))
    a('v_mov_b32 %s, %s' % (vr(F + 1), vr(pi + 1)))
    FA = E
    cfma(a, FA, EA, L12, F)
    a('v_mov_b64 %s, %s' % (vr(FA + 2, 2), vr(FA, 2)))
    a('v_mov_b32 %s, %s' % (vr(pub + 1), vr(V_TAG)))
    a('v_mov_b32 %s, %s' % (vr(pub + 3), vr(V_TAG)))
    a('v_permlane16_swap_b32 %s, %s' % (vr(FA), vr(FA + 2)))
    a('v_permlane16_swap_b32 %s, %s' % (vr(FA + 1), vr(FA + 3)))
    a('s_lshl_b32 %s, %s, 13' % (sr(S_T0), sr(S_PT)))
    a('v_mov_b64 %s, %s' % (vr(FA + 4, 2), vr(FA, 2)))
    a('v_mov_b64 %s, %s' % (vr(FA + 6, 2), vr(FA + 2, 2)))
    a('s_add_u32 %s, %s, %d' % (sr(S_T0), sr(S_T0), WS_E + layer * 36 * 8192))
    for k in range(4):
        a('v_permlane32_swap_b32 %s, %s' % (vr(FA + k), vr(FA + 4 + k)))
    cfma(a, FA + 2, FA, L24, FA + 2)
    cfma(a, FA + 4, FA + 2, L24, FA + 4)
    cfma(a, FA + 6, FA + 4, L24, FA + 6)
    a('v_mov_b32 %s, %s' % (vr(pub), vr(FA + 6)))
    a('v_mov_b32 %s, %s' % (vr(pub + 2), vr(FA + 7)))
    a('buffer_store_dwordx4 %s, %s, %s, %s offen sc1' % (vr(pub, 4), vr(V_EW), sr(R_WS, 4), sr(S_T0)))
    stamp(a, 'e_pub%d' % layer)
    PQ = F
    a('v_mov_b32 %s, 0' % vr(PQ))
    a('v_mov_b32 %s, 0' % vr(PQ + 1))
    for qi in range(1, 4):
        a('v_cmp_eq_u32 vcc, %d, %s' % (qi, vr(V_Q)),
          'v_cndmask_b32 %s, %s, %s, vcc' % (vr(PQ), vr(PQ), vr(FA + 2 * qi - 2)),
          'v_cndmask_b32 %s, %s, %s, vcc' % (vr(PQ + 1), vr(PQ + 1), vr(FA + 2 * qi - 1)))
    put((pub, 4), (E, 8), (AF, 48))
    NL = 6
    loads, checks, box = [], [], []

    def mk(cs):
        CG_ = V.get(4 * NL)
        AD, EX = V.get(NL, 1), V.get(NL, 1)
        box.extend([CG_, AD, EX])
        cs('s_lshl_b32 %s, %s, 13' % (sr(S_T0), sr(S_PT)),
           's_add_u32 %s, %s, %d' % (sr(S_T0), sr(S_T0), WS_E + layer * 36 * 8192),
           'v_add_u32 %s, %s, %s' % (vr(EX), sr(S_T0), vr(V_ER)))
        for j in range(NL - 1, -1, -1):
            cs('v_subrev_u32 %s, %d, %s' % (vr(AD + j), 1024 * j, vr(EX)),
               'v_cmp_le_i32 vcc, %d, %s' % (1024 * j, vr(V_ER)),
               'v_cndmask_b32 %s, %s, %s, vcc' % (vr(AD + j), vr(V_OOB), vr(AD + j)),
               'v_cndmask_b32 %s, 0, %s, vcc' % (vr(EX + j), vr(V_TAG)))
        for j in range(NL):
            loads.append('buffer_load_dwordx4 %s, %s, %s, 0 offen sc1' % (vr(CG_ + 4 * j, 4), vr(AD + j), sr(R_WS, 4)))
            checks.append((CG_ + 4 * j + 1, CG_ + 4 * j + 3, EX + j))
        for l_ in loads:
            cs(l_)

    post = mid(a, mk)
    CG_, AD, EX = box
    poll(a, loads, checks, pre_issued=True)
    stamp(a, 'carry%d' % layer)
    if post is not None:
        a.extend(post)
    put((AD, NL), (EX, NL))
    for j in range(NL):
        a('v_mov_b32 %s, %s' % (vr(CG_ + 4 * j + 1), vr(CG_ + 4 * j + 2)))
    for j in range(NL - 2, -1, -1):
        cfma(a, CG_ + 4 * j, CG_ + 4 * j + 4, L384, CG_ + 4 * j)
    H, Y = V.get(2), V.get(2)
    cmul(a, H, CG_, LQ96)
    for sw in ('v_permlane32_swap_b32', 'v_permlane16_swap_b32'):
        a('v_mov_b64 %s, %s' % (vr(Y, 2), vr(H, 2)))
        a('%s %s, %s' % (sw, vr(H), vr(Y)))
        a('%s %s, %s' % (sw, vr(H + 1), vr(Y + 1)))
        a('v_pk_add_f32 %s, %s, %s' % (vr(H, 2), vr(H, 2), vr(Y, 2)))
    cfma(a, PQ, H, LQ24, PQ)
    cfma(a, EA, PQ, L12, EA)
    a('v_mov_b32 %s, %s' % (vr(H), vr(PQ)))
    a('v_mov_b32 %s, %s' % (vr(H + 1), vr(EA)))
    a('v_mov_b32 %s, %s' % (vr(Y), vr(PQ + 1)))
    a('v_mov_b32 %s, %s' % (vr(Y + 1), vr(EA + 1)))
    pr, pi = H, Y
    PK = V.get(4)
    HO = CG_
    tk = None
    for j in range(NJ):
        step(re(j), im(j), pr, pi, re(j), im(j))
        pr, pi = re(j), im(j)
        pk = PK + (j & 1) * 2
        for hf in range(2):
            a('v_cvt_pk_bf16_f32 %s, %s, %s' % (vr(pk + hf), vr(re(j) + hf), vr(im(j) + hf)))
        tk = a.mem('ds_write_b32 %s, %s offset:%d' % (vr(V_HW), vr(pk), (j >> 1) * 1024 + (j & 1) * 128),
                   'ds_write_b32 %s, %s offset:%d' % (vr(V_HW), vr(pk + 1), (j >> 1) * 1024 + (j & 1) * 128 + 64))
        if j & 1:
            a('ds_read_b128 %s, %s offset:%d' % (vr(HO + 4 * (j >> 1), 4), vr(V_HR), (j >> 1) * 1024))
        elif x2 is not None and j < 10:
            x2(a)
    a('s_mul_i32 %s, %s, 216' % (sr(S_T0), sr(S_RB)))
    a('s_add_u32 %s, %s, %s' % (sr(S_T0), sr(S_T0), sr(S_PT)))
    a('s_lshl_b32 %s, %s, 10' % (sr(S_T0), sr(S_T0)))
    txt = []
    for i in range(MT):
        txt.append('s_add_u32 %s, %s, %d' % (sr(S_T1), sr(S_T0), WS_H + layer * H_SZ + i * 36864))
        txt.append('buffer_store_dwordx4 %s, %s, %s, %s offen {P}' % (vr(HO + 4 * i, 4), vr(V_L16), sr(R_WS, 4), sr(S_T1)))
    if OPT['fine']:
        stamp(a, 'pass2')
    tk = dual(a, txt, touch=[vr(HO, 24)])
    a('s_lshl2_add_u32 %s, %s, %s' % (sr(S_T0), sr(S_RB), sr(S_WAVE)))
    a('s_lshl4_add_u32 %s, %s, %s' % (sr(S_T0), sr(S_T0), sr(S_CG)))
    a('s_lshl_b32 %s, %s, 2' % (sr(S_T0), sr(S_T0)))
    a('s_add_u32 %s, %s, %d' % (sr(S_T0), sr(S_T0), WS_HF + layer * NRB * 256))
    return tk, [(EA, 2), (F, 2), (H, 2), (Y, 2), (PK, 4), (CG_, 4 * NL), (ACC, 48)]


def mid0(a, mk):
    put((BASE, 24))
    sd, s2, lr, ks = Stream(), Stream(), Stream(), Stream()
    poll(sd, [cfl], [(cfv, None, cfe)], pre_issued=True, sleep=6)
    if OPT['tpos'] == 2:
        h_touch(a, cfe_ := V.get())
        put(cfe_)
    for idx in range(OPT['ncp']):
        cp_load(sd, idx // 4, idx % 4)
    mk(s2)
    with V.borrow(*HOMES):
        kv_main(lr, kvm, ks)
    lr = weave(lr, sd, 0.15, 1.0)
    lr = weave(lr, s2, 0.55, 0.75)
    for i_, p_ in enumerate(split(lr, 8)):
        a.extend(p_)
        if OPT['fine'] > 1:
            stamp(a, 'kq%d' % i_)
    if OPT['fine']:
        stamp(a, 'kvcore')
    a.extend(ks)
    put(cfa, cfe, cfv)
    V.claim(WCV, 32)
    conv_u_prep(a, cv)
    stamp(a, 'kv')
    return None


def ln_rest0_plain(r, P):
    b, tmp = V.get(2), V.get(4)
    for i in range(MT):
        x = BASE + 4 * i
        k_, lane = tile_src(i)
        for e in range(2):
            r('v_mov_b32_dpp %s, %s row_newbcast:%d row_mask:0xf bank_mask:0xf' % (vr(b + e), vr(P + 2 * k_ + e), lane))
        for k in range(2):
            r('v_lshlrev_b32 %s, 16, %s' % (vr(x + 2 * k), vr(XS + 2 * i + k)))
            r('v_and_b32 %s, 0xffff0000, %s' % (vr(x + 2 * k + 1), vr(XS + 2 * i + k)))
        for k in range(4):
            r('v_sub_f32 %s, %s, %s' % (vr(x + k), vr(x + k), vr(b)))
        for k in range(2):
            r('v_cvt_pk_bf16_f32 %s, %s, %s' % (vr(tmp + 2 * k), vr(x + 2 * k), vr(x + 2 * k + 1)))
        for rep in range(3):
            for k in range(2):
                r('v_and_b32 %s, 0xffff0000, %s' % (vr(tmp + 2 * k + 1), vr(tmp + 2 * k)))
                r('v_lshlrev_b32 %s, 16, %s' % (vr(tmp + 2 * k), vr(tmp + 2 * k)))
            for k in range(4):
                if rep == 0:
                    r('v_mul_f32 %s, %s, %s' % (vr(tmp + k), vr(tmp + k), vr(b + 1)))
                elif rep == 1:
                    r('v_mul_f32 %s, %s, %s' % (vr(tmp + k), vr(tmp + k), vr(V_DSK + k)))
                else:
                    r('v_add_f32 %s, %s, %s' % (vr(x + k), vr(x + k), vr(tmp + k)))
            if rep < 2:
                for k in range(2):
                    r('v_cvt_pk_bf16_f32 %s, %s, %s' % (vr(tmp + 2 * k), vr(tmp + 2 * k), vr(tmp + 2 * k + 1)))
    return [(b, 2), (tmp, 4), (P, 4), (XS, 12)]


def hflag_prep(s, layer):
    fa, fv = V.get(), V.get()
    s('s_lshl2_add_u32 %s, %s, %s' % (sr(S_T1), sr(S_RB), sr(S_WAVE)),
      's_lshl_b32 %s, %s, 6' % (sr(S_T1), sr(S_T1)),
      's_add_u32 %s, %s, %d' % (sr(S_T1), sr(S_T1), WS_HF + layer * NRB * 256),
      'v_lshl_add_u32 %s, %s, 2, %s' % (vr(fa), vr(V_N), sr(S_T1)))
    s('v_cmp_gt_u32 vcc, 9, %s' % vr(V_N),
      'v_cndmask_b32 %s, %s, %s, vcc' % (vr(fa), vr(V_OOB), vr(fa)))
    s('s_mul_i32 %s, %s, 216' % (sr(S_T1), sr(S_RB)),
      's_add_u32 %s, %s, %s' % (sr(S_T1), sr(S_T1), sr(S_WAVE)),
      's_lshl_b32 %s, %s, 10' % (sr(S_T1), sr(S_T1)),
      's_add_u32 %s, %s, %d' % (sr(S_HB), sr(S_T1), WS_H + layer * H_SZ))
    fl = 'buffer_load_dword %s, %s, %s, 0 offen sc1' % (vr(fv), vr(fa), sr(R_WS, 4))
    return fa, fv, fl


def hload_next(st, reg):
    st('buffer_load_dwordx4 %s, %s, %s, %s offen sc1' % (vr(reg, 4), vr(V_L16), sr(R_WS, 4), sr(S_HB)),
       's_add_u32 %s, %s, 4096' % (sr(S_HB), sr(S_HB)))


cpn = [0, OPT['ncp']]
kparts = split(kst, 4)
kx = lambda st: st.extend(kparts.pop(0))


def cpx(which, lim):
    def f(st):
        if cpn[which] < lim:
            cp_load(st, cpn[which] // 4, cpn[which] % 4)
            cpn[which] += 1
    return f


htk, hrel = scan_phase(a, 0, ACC, AF, mid0, kx, cpx(1, OPT['ncp2']))
assert cpn[1] == OPT['ncp2'] and not kparts
put(*hrel)
a('s_mov_b32 %s, %s' % (sr(S_C), sr(S_T0)))
for l_ in cv.uloads:
    a(l_)
for r_ in range(BASE, BASE + 24):
    V.free.remove(r_)
V.claim(V_PW, 4)
t = V.get()
a('v_mul_u32_u24 %s, %d, %s' % (vr(V_PW), PART_ROW, vr(V_N)))
a('v_lshl_add_u32 %s, %s, 4, %s' % (vr(V_PW), vr(V_Q), vr(V_PW)))
a('s_mul_i32 %s, %s, %d' % (sr(S_T0), sr(S_WAVE), PART_W))
a('v_add_u32 %s, %s, %s' % (vr(V_PW), sr(S_T0), vr(V_PW)))
a('s_lshl_b32 %s, %s, 2' % (sr(S_T0), sr(S_WAVE)))
a('v_add_u32 %s, %s, %s' % (vr(t), sr(S_T0), vr(V_Q)))
a('v_mul_u32_u24 %s, %d, %s' % (vr(V_PR), PART_ROW, vr(t)))
a('v_lshl_add_u32 %s, %s, 4, %s' % (vr(V_PR), vr(V_N), vr(V_PR)))
PH = 12 * PART_W
a('v_add_u32 %s, %d, %s' % (vr(V_PW2), PH, vr(V_PW)))
a('v_add_u32 %s, %d, %s' % (vr(V_PR2), PH, vr(V_PR)))
put(t)
a('s_barrier')
if OPT['fine']:
    stamp(a, 'ubar')
hf = Stream()
hf.wait(htk)
dual(hf, flag_texts(sr(S_C), '{P}'))
stamp(hf, 'h_pub0')
sd, lr = Stream(), Stream()
for idx in range(OPT['ncp2'], 36):
    cp_load(sd, idx // 4, idx % 4)
hfa, hfv, hfl = hflag_prep(sd, 0)
sd(hfl)
for i in range(MT):
    for k in range(2):
        hf('v_lshlrev_b32 %s, 16, %s' % (vr(BASE + 4 * i + 2 * k), vr(XS + 2 * i + k)))
        hf('v_and_b32 %s, 0xffff0000, %s' % (vr(BASE + 4 * i + 2 * k + 1), vr(XS + 2 * i + k)))
put((XS, 12))
ln_rest(hf, 0, LNP0)
HB0 = []


def last0(m, reg):
    if reg is None:
        poll(m, [hfl], [(hfv, None, V_EXP9)], pre_issued=True)
    else:
        HB0.append(reg)
        hload_next(m, reg)


conv_body(a, cv, [sd], True, hf, True, last0)
put(hfa, hfv)


def g_fetch_streams():
    s1, s2 = Stream(), Stream()
    fa, u, u2 = V.get(), V.get(), V.get()
    D = V.get(16)
    s1('v_lshrrev_b32 %s, 3, %s' % (vr(fa), vr(V_LANE)))
    s1('v_mul_u32_u24 %s, %d, %s' % (vr(fa), G_STR - 128, vr(fa)))
    s1('s_mul_i32 %s, %s, %d' % (sr(S_T1), sr(S_CG), 32 * G_STR),
       's_lshl2_add_u32 %s, %s, %s' % (sr(S_T2), sr(S_RB), sr(S_WAVE)),
       's_lshl_b32 %s, %s, 7' % (sr(S_T2), sr(S_T2)),
       's_add_u32 %s, %s, %s' % (sr(S_T1), sr(S_T1), sr(S_T2)),
       's_add_u32 %s, %s, %d' % (sr(S_T1), sr(S_T1), WS_G),
       'v_add3_u32 %s, %s, %s, %s' % (vr(fa), vr(fa), vr(V_L16), sr(S_T1)))
    loads = []
    for i in range(4):
        loads.append('s_mov_b32 %s, %d' % (sr(S_T1), 8 * i * G_STR))
        loads.append('buffer_load_dwordx4 %s, %s, %s, %s offen sc1' % (vr(D + 4 * i, 4), vr(fa), sr(R_WS, 4), sr(S_T1)))
    for i in range(4):
        s1(loads[2 * i], loads[2 * i + 1])
    s1('v_and_b32 %s, 1, %s' % (vr(u), vr(V_Q)))
    s1('v_lshlrev_b32 %s, 6, %s' % (vr(u), vr(u)))
    s1('v_mul_u32_u24 %s, 272, %s' % (vr(u2), vr(V_N)))
    s1('v_add3_u32 %s, %s, %s, %s' % (vr(u), vr(u), vr(u2), sr(S_RINGW)))
    s1('v_lshrrev_b32 %s, 1, %s' % (vr(u2), vr(V_Q)))
    s1('v_lshl_add_u32 %s, %s, 2, %s' % (vr(u), vr(u2), vr(u)))
    s1('v_lshl_add_u32 %s, %s, 2, %s' % (vr(u2), vr(u2), vr(u)))
    poll(s2, loads, [(D + 3, D + 7, V_TAG), (D + 11, D + 15, V_TAG)], pre_issued=True, sleep=4)
    s2('v_lshlrev_b32 %s, 4, %s' % (vr(fa), vr(V_Q)))
    s2('v_add3_u32 %s, %s, %s, %s' % (vr(fa), vr(fa), vr(V_L16), sr(S_RINGW)))
    for i in range(4):
        s2('ds_write_b128 %s, %s offset:%d' % (vr(fa), vr(D + 4 * i, 4), 1088 * i))
    for i, o in enumerate((0, 2, 5, 8, 10, 13)):
        s2('ds_read2_b32 %s, %s offset0:%d offset1:%d' % (vr(GP + 2 * i, 2), vr(u2 if i in (1, 4) else u), o, 32 + o))
    return s1, s2, [fa, u, u2, (D, 16)]


def gemm_c(a, layer, HB=None):
    NF = 16
    if HB is None:
        a.extend(hq)
        poll(a, [hfl], [(hfv, None, V_EXP9)], pre_issued=True)
        stamp(a, 'h_flag%d' % layer)
        put(hfa, hfv)
        HB = [V.get(4, top=True) for _ in range(NF)]
        for f in range(NF):
            hload_next(a, HB[f])
    CA = [V.get(4, top=True) for _ in range(8)]
    hb = lambda i, s: HB[(i * 9 + s) % NF]
    slot = lambda i: (i + 4) % 6

    def pwrite(st, i, js=range(4)):
        for j in js:
            tk = st.mem('ds_write_b128 %s, %s offset:%d' % (vr(V_PW if slot(i) < 3 else V_PW2), vr(CA[(i & 1) * 4 + j], 4),
                                                            L_IMG + (slot(i) % 3) * 4 * PART_W + j * 64))
        return tk

    def preduce(st, i, P):
        for w in range(4):
            st('ds_read_b128 %s, %s offset:%d' % (vr(P[w], 4), vr(V_PR if slot(i) < 3 else V_PR2), L_IMG + ((slot(i) % 3) * 4 + w) * PART_W))

    def padd(st, i, P, pk):
        x = BASE + 4 * i
        if pk:
            for k in range(2):
                st('v_pk_add_f32 %s, %s, %s' % (vr(P[0] + 2 * k, 2), vr(P[0] + 2 * k, 2), vr(P[1] + 2 * k, 2)))
                st('v_pk_add_f32 %s, %s, %s' % (vr(P[2] + 2 * k, 2), vr(P[2] + 2 * k, 2), vr(P[3] + 2 * k, 2)))
                st('v_pk_add_f32 %s, %s, %s' % (vr(x + 2 * k, 2), vr(x + 2 * k, 2), vr(P[0] + 2 * k, 2)))
                st('v_pk_add_f32 %s, %s, %s' % (vr(x + 2 * k, 2), vr(x + 2 * k, 2), vr(P[2] + 2 * k, 2)))
        else:
            for w in range(4):
                for k in range(4):
                    st('v_add_f32 %s, %s, %s' % (vr(x + k), vr(x + k), vr(P[w] + k)))

    sc = Sched(a)
    sc.VM_GAP = 20
    qp, qs = sc.add(Stream()), sc.add(Stream())
    if layer == 0:
        a.wait(cv.stk)
        cf_ = Stream()
        with V.borrow((GP, 12)):
            frel = conv_final(cf_, cv, CA[4:8])
        qs.extend(cf_.groups)
        nrest = len(cf_.groups) - cv.mark
        put(*frel)
    a('s_barrier')
    S, Q = V.get(6, 1), V.get(6, 1)
    PT = [V.get(4) for _ in range(4)]
    tk = None
    for i in range(MT):
        m = Stream()
        for s in range(9):
            for j in range(4):
                ca = CA[(i & 1) * 4 + j]
                m('v_mfma_f32_16x16x32_bf16 %s, %s, %s, %s' % (vr(ca, 4), WC(s, j), vr(hb(i, s), 4), '0' if s == 0 else vr(ca, 4)))
                if j == 0 and s < 8:
                    m.touch(vr(hb(i, s + 1), 4))
            if i * 9 + s + NF < 9 * MT:
                hload_next(m, hb(i, s))
        if i in (3, 5):
            print('gemm_c leftover before barrier', sc.pending())
            sc.flush()
            a.wait(tk)
            a('s_barrier')
            sd = Stream()
            for ti in (i - 3, i - 2):
                preduce(sd, ti, PT)
                padd(sd, ti, PT, False)
                stats_partial(sd, BASE, S, Q, ti, None, False)
            qs.extend(sd.groups)
        if i > 0:
            pw = Stream()
            tk = pwrite(pw, i - 1)
            qp.extend(pw.groups)
        sc.run(m)
        sc.flush(qp)
        if layer == 0 and i == 0:
            print('final part A leftover', len(qs) - nrest)
            while len(qs) > nrest:
                sc._emit(qs.pop(0))
        if OPT['fine']:
            stamp(a, 'c%d_t%d' % (layer, i))
    print('gemm_c leftover', sc.pending(), 'model time', sc.t)
    sc.flush()
    put(*[(r, 4) for r in PT + HB[8:]])
    gs = None
    if layer == 0:
        V.claim(GP, 12)
        gs = g_fetch_streams()
        a.extend(gs[0])
    tk = pwrite(a, MT - 1)
    a.wait(tk)
    a('s_barrier')
    stamp(a, 'gemmC%d' % layer)
    for ti in (4, 5):
        preduce(a, ti, HB[(ti - 4) * 4:(ti - 4) * 4 + 4])
    for ti in (4, 5):
        padd(a, ti, HB[(ti - 4) * 4:(ti - 4) * 4 + 4], True)
    put(*[(r, 4) for r in CA + HB[:8]])
    return S, Q, gs


def gate(a, which, final, SQ):
    stats_publish(a, BASE, which, True, SQ=SQ[:2], tiles=(4, 5))
    stamp(a, 'st_pub%d' % which)
    if SQ[2] is not None:
        a.extend(SQ[2][1])
        put(*SQ[2][2])
    GU = V.get(24)
    for i in range(MT):
        for j in range(2):
            a('v_lshlrev_b32 %s, 16, %s' % (vr(GU + 4 * i + 2 * j), vr(GP + 2 * i + j)))
            a('v_and_b32 %s, 0xffff0000, %s' % (vr(GU + 4 * i + 2 * j + 1), vr(GP + 2 * i + j)))
    G = V.get(24)
    ex = stats_exp(a, which)
    poll(a, stats_loads(which, G), [(G + 4 * i + 1, G + 4 * i + 3, ex) for i in range(MT)])
    put(ex)
    stamp(a, 'st_got%d' % which)
    P = stats_finish(a, G)
    for k in range(2):
        a('v_add_f32 %s, 0x3727c5ac, %s' % (vr(P + 2 * k + 1), vr(P + 2 * k + 1)))
    for k in range(2):
        a('v_rsq_f32 %s, %s' % (vr(P + 2 * k + 1), vr(P + 2 * k + 1)))
    for k in range(2):
        a('v_add_f32 %s, %s, %s' % (vr(OFF + k), vr(OFF + k), vr(P + 2 * k)))
    B = G
    for i in range(MT):
        bcast(a, B + 4 * i, P, i)
        if final:
            k_, lane = tile_src(i)
            a('v_mov_b32_dpp %s, %s row_newbcast:%d row_mask:0xf bank_mask:0xf' % (vr(B + 4 * i + 2), vr(OFF + k_), lane))
    for i in range(MT):
        x, g, b = BASE + 4 * i, GU + 4 * i, B + 4 * i
        for k in range(2):
            a('v_pk_add_f32 %s, %s, %s op_sel:[0,0] op_sel_hi:[1,0] neg_lo:[0,1] neg_hi:[0,1]' % (vr(x + 2 * k, 2), vr(x + 2 * k, 2), vr(b, 2)))
            a('v_pk_fma_f32 %s, %s, %s, 1.0 op_sel:[0,1,0] op_sel_hi:[1,1,0]' % (vr(g + 2 * k, 2), vr(g + 2 * k, 2), vr(b, 2)))
        for k in range(2):
            if final:
                a('v_pk_fma_f32 %s, %s, %s, %s op_sel:[0,0,0] op_sel_hi:[1,1,0]' % (vr(x + 2 * k, 2), vr(x + 2 * k, 2), vr(g + 2 * k, 2), vr(b + 2, 2)))
            else:
                a('v_pk_mul_f32 %s, %s, %s' % (vr(x + 2 * k, 2), vr(x + 2 * k, 2), vr(g + 2 * k, 2)))
        if final:
            a('s_movk_i32 %s, %d' % (sr(S_T0), 4608 * i),
              'buffer_store_dwordx4 %s, %s, %s, %s offen%s' % (vr(x, 4), vr(V_OROW), sr(R_OUT, 4), sr(S_T0), ('', ' nt', ' sc1', ' sc1 nt')[OPT['opol']]))
    put((GU, 24), (G, 24), (P, 4))


SQ_ = gemm_c(a, 0, HB0)
gate(a, 1, False, SQ_)
WP = V.get(12, 2)
for i in range(MT):
    for k in range(2):
        a('v_cvt_pk_bf16_f32 %s, %s, %s' % (vr(WP + 2 * i + k), vr(BASE + 4 * i + 2 * k), vr(BASE + 4 * i + 2 * k + 1)))
a('s_mul_i32 %s, %s, 18' % (sr(S_T0), sr(S_RB)))
a('s_add_u32 %s, %s, %s' % (sr(S_T0), sr(S_T0), sr(S_CG)))
a('s_mul_i32 %s, %s, %d' % (sr(S_T0), sr(S_T0), BLK))
a('s_add_u32 %s, %s, %d' % (sr(S_T0), sr(S_T0), WS_H))
a('s_add_u32 %s, %s, 4096' % (sr(S_T1), sr(S_T0)))
a('s_add_u32 %s, %s, 8192' % (sr(S_T2), sr(S_T0)))
wtk_ = dual(a, ['buffer_store_dwordx2 %s, %s, %s, %s offen offset:%d {P}' %
                (vr(WP + 2 * i, 2), vr(V_WA), sr(R_WS, 4), sr((S_T0, S_T1, S_T2)[i >> 1]), (i & 1) * 2048) for i in range(MT)])
stats_publish(a, BASE, 2, True)
V_DX = V.get(3, 1)
a('s_mul_i32 %s, %s, %d' % (sr(S_T0), sr(S_RB), 18 * BLK))
a('s_add_u32 %s, %s, %d' % (sr(S_T0), sr(S_T0), WS_H))
a('s_add_u32 %s, %s, %s' % (sr(S_T0), sr(S_T0), sr(S_W1K)))
a('v_add_u32 %s, %s, %s' % (vr(V_DX), sr(S_T0), vr(V_L16)))
a('v_add_u32 %s, 4096, %s' % (vr(V_DX + 1), vr(V_DX)))
a('v_add_u32 %s, 8192, %s' % (vr(V_DX + 2), vr(V_DX)))
for s in range(9):
    a('s_mul_i32 %s, %s, 96' % (sr(S_TT + s), sr(S_KP + s)))
fa, fe, fv = V.get(), V.get(), V.get()
a('s_lshl_b32 %s, %s, 8' % (sr(S_T1), sr(S_RB)))
a('s_add_u32 %s, %s, %d' % (sr(S_T1), sr(S_T1), WS_WF))
a('v_lshl_add_u32 %s, %s, 2, %s' % (vr(fa), vr(V_LANE), sr(S_T1)))
a('v_cmp_gt_u32 vcc, 36, %s' % vr(V_LANE),
  'v_cndmask_b32 %s, %s, %s, vcc' % (vr(fa), vr(V_OOB), vr(fa)),
  'v_cndmask_b32 %s, 0, %s, vcc' % (vr(fe), vr(V_TAG)))
a('s_lshl2_add_u32 %s, %s, %s' % (sr(S_T0), sr(S_PT), sr(S_T1)))
a.wait(wtk_)
dual(a, flag_texts(sr(S_T0), '{P}'))
stamp(a, 'w_pub')
put((WP, 12))

ACC = V.get(48, top=True)
AF = V.get(48, top=True)
poll(a, ['buffer_load_dword %s, %s, %s, 0 offen sc1' % (vr(fv), vr(fa), sr(R_WS, 4))], [(fv, None, fe)])
stamp(a, 'w_flag')
put(fa, fe, fv)
pre = {k: Stream() for k in range(18)}
side = {k: Stream() for k in range(18)}
wtk = {}
for blk in range(4):
    wtk[blk] = x_dma(a, blk, 1)
vm2 = {k: Stream() for k in range(18)}
for blk in range(4, 9):
    wtk[blk] = x_dma(vm2[0], blk, 1)
G2 = V.get(24)
gl2 = stats_loads(2, G2)
for i in range(0, 12, 2):
    vm2[0](gl2[i], gl2[i + 1])
ex2 = stats_exp(side[0], 2)
poll(pre[10], gl2, [(G2 + 4 * i + 1, G2 + 4 * i + 3, ex2) for i in range(MT)], pre_issued=True)
put(ex2)
ttk2, LNP1 = ln_table(side[10], 1, G2, None)
pre[15].wait(ttk2)
dual(vm2[12], ['s_lshl_b32 %s, %s, 6' % (sr(S_T0), sr(S_RB)),
               's_add_u32 %s, %s, %s' % (sr(S_T0), sr(S_T0), sr(S_CG)),
               's_lshl_b32 %s, %s, 2' % (sr(S_T0), sr(S_T0)),
               's_add_u32 %s, %s, %d' % (sr(S_T0), sr(S_T0), WS_WF + 160)] + flag_texts(sr(S_T0), '{P}'))
gemm_b(a, ACC, AF, lambda s: wtk[s], pre, side, vm=vm2)
put((V_DX, 3))
stamp(a, 'gemmB2')


def mid1(a, mk):
    da, dv = V.get(), V.get()
    a('s_lshl_b32 %s, %s, 8' % (sr(S_T1), sr(S_RB)))
    a('s_add_u32 %s, %s, %d' % (sr(S_T1), sr(S_T1), WS_WF + 160))
    a('v_lshl_add_u32 %s, %s, 2, %s' % (vr(da), vr(V_N), sr(S_T1)))
    a('v_cmp_gt_u32 vcc, 9, %s' % vr(V_N), 'v_cndmask_b32 %s, %s, %s, vcc' % (vr(da), vr(V_OOB), vr(da)))
    dl = 'buffer_load_dword %s, %s, %s, 0 offen sc1' % (vr(dv), vr(da), sr(R_WS, 4))
    a(dl)
    ln_rest(a, 1, LNP1)
    mk(a)
    poll(a, [dl], [(dv, None, V_EXP9)], pre_issued=True)
    put(da, dv)
    return None


htk, hrel = scan_phase(a, 1, ACC, AF, mid1)
put(*hrel)
hfa, hfv, hfl = hflag_prep(a, 1)
hq = Stream()
hq(hfl)
a.wait(htk)
dual(a, flag_texts(sr(S_T0), '{P}'))
stamp(a, 'h_pub1')
a('s_lshl2_add_u32 %s, %s, %s' % (sr(S_T0), sr(S_L), sr(S_WAVE)))
a('s_cmp_lg_u32 %s, %d' % (sr(S_T0), (NRB - 1) * 9 * 4))
a('s_cselect_b64 exec, 0, 1',
  'buffer_store_dword %s, %s, %s, 0 offen sc1' % (vr(V_TAG), vr(V_ZERO), sr(R_WS, 4)),
  's_mov_b64 exec, -1')
SQ_ = gemm_c(a, 1)
gate(a, 3, True, SQ_)
stamp(a, 'out')
a('s_branch L_fin')

a.fence()
a.label('L_aux')
V.free = set(range(NCOMMON, 256))
V.locked = set()
a('s_waitcnt lgkmcnt(0)')
a('s_load_dword %s, %s, 0' % (sr(S_TAG), sr(P_WS, 2)))
srd(a, R_WS, P_WS, WS_SIZE)
a('s_sub_u32 %s, %s, %d' % (sr(S_RB), sr(S_L), NMAIN))
S_AW, S_KC_, S_CGK, S_KP2, S_DG, S_SCR, S_AW2 = [S_KP + i for i in range(7)]
a('s_mul_i32 %s, %s, 58' % (sr(S_AW2), sr(S_WAVE)))
a('s_add_u32 %s, %s, %s' % (sr(S_AW2), sr(S_AW2), sr(S_RB)))
a('s_lshl2_add_u32 %s, %s, %s' % (sr(S_AW), sr(S_RB), sr(S_WAVE)))
a('s_mul_i32 %s, %s, 57' % (sr(S_T0), sr(S_AW)))
a('s_lshr_b32 %s, %s, 10' % (sr(S_DG), sr(S_T0)))
a('s_mul_i32 %s, %s, 171' % (sr(S_KC_), sr(S_AW2)))
a('s_lshr_b32 %s, %s, 9' % (sr(S_KC_), sr(S_KC_)))
a('s_mul_i32 %s, %s, 18' % (sr(S_T1), sr(S_DG)))
a('s_sub_u32 %s, %s, %s' % (sr(S_KP2), sr(S_AW), sr(S_T1)))
a('s_mul_i32 %s, %s, 3' % (sr(S_T1), sr(S_KC_)))
a('s_sub_u32 %s, %s, %s' % (sr(S_CGK), sr(S_AW2), sr(S_T1)))
a('s_add_u32 %s, %s, 6' % (sr(S_CGK), sr(S_CGK)))
srd(a, R_BRE, P_CRE, 576 * 1152)
srd(a, R_BIM, P_CIM, 576 * 1152)
dp, gm, vc, t, t2 = [V.get() for _ in range(5)]
a('v_and_b32 %s, 31, %s' % (vr(dp), vr(V_LANE)))
a('s_lshl_b32 %s, %s, 6' % (sr(S_T0), sr(S_KP2)))
a('v_lshl_add_u32 %s, %s, 1, %s' % (vr(t2), vr(dp), sr(S_T0)))
LT = lam_loads(a, t2)
CL = V.get(24)
a('v_lshrrev_b32 %s, 2, %s' % (vr(vc), vr(V_LANE)))
a('v_mul_u32_u24 %s, 1152, %s' % (vr(vc), vr(vc)))
a('v_and_b32 %s, 3, %s' % (vr(gm), vr(V_LANE)))
a('v_lshl_add_u32 %s, %s, 4, %s' % (vr(vc), vr(gm), vr(vc)))
a('s_mul_i32 %s, %s, %d' % (sr(S_T1), sr(S_DG), 48 * 1152))
a('s_add_u32 %s, %s, %s' % (sr(S_T1), sr(S_T1), sr(S_T0)))
for u in range(3):
    a('s_add_u32 %s, %s, %d' % (sr(S_T2), sr(S_T1), u * 16 * 1152),
      'buffer_load_dwordx4 %s, %s, %s, %s offen nt' % (vr(CL + 8 * u, 4), vr(vc), sr(R_BRE, 4), sr(S_T2)),
      'buffer_load_dwordx4 %s, %s, %s, %s offen nt' % (vr(CL + 8 * u + 4, 4), vr(vc), sr(R_BIM, 4), sr(S_T2)))
a('s_lshl2_add_u32 %s, %s, %s' % (sr(S_T1), sr(S_RB), sr(S_WAVE)))
a('s_mul_i32 %s, %s, 2880' % (sr(S_T1), sr(S_T1)))
a('v_min_u32 %s, 22, %s' % (vr(V_TAG), vr(V_LANE)))
a('v_lshl_add_u32 %s, %s, 7, %s' % (vr(V_TAG), vr(V_TAG), sr(S_T1)))
a('v_min_u32 %s, %d, %s' % (vr(V_TAG), 576 * 1152 - 4, vr(V_TAG)))
a('global_load_dword %s, %s, %s ;junk' % (vr(V_JUNK), vr(V_TAG), sr(P_BRE, 2)))
a('global_load_dword %s, %s, %s ;junk' % (vr(V_JUNK), vr(V_TAG), sr(P_BIM, 2)))
srd(a, R_K, P_K, 2048 * 1152)
srd(a, R_V, P_V, 2048 * 1152)
sg, vk, vh, ka = [V.get() for _ in range(4)]
a('v_lshrrev_b32 %s, 5, %s' % (vr(sg), vr(V_LANE)))
a('s_mul_i32 %s, %s, %d' % (sr(S_T0), sr(S_KC_), 48 * 1152))
a('s_lshl_b32 %s, %s, 7' % (sr(S_T1), sr(S_CGK)))
a('s_add_u32 %s, %s, %s' % (sr(S_T0), sr(S_T0), sr(S_T1)))
a('v_mul_u32_u24 %s, %d, %s' % (vr(vk), 24 * 1152, vr(sg)))
a('v_lshl_add_u32 %s, %s, 2, %s' % (vr(vk), vr(dp), vr(vk)))
a('v_add_u32 %s, %s, %s' % (vr(vk), sr(S_T0), vr(vk)))
a('v_subrev_u32 %s, %d, %s' % (vr(vh), 3 * 1152, vr(vk)))
SHK = V.get(4)
a('s_lshl_b32 %s, %s, 9' % (sr(S_T1), sr(S_CGK)))
a('v_lshl_add_u32 %s, %s, 4, %s' % (vr(t), vr(dp), sr(S_T1)))
a('global_load_dwordx4 %s, %s, %s' % (vr(SHK, 4), vr(t), sr(P_SHK, 2)))
KR, VR = V.get(27, 1), V.get(24, 1)
ld = Stream()
for j in range(3):
    ld('buffer_load_dword %s, %s, %s, 0 offen offset:%d nt' % (vr(KR + j), vr(vh), sr(R_K, 4), 1152 * j))
for j3 in range(8):
    ld('s_mov_b32 %s, %d' % (sr(S_C), 3456 * j3),
       *['buffer_load_dword %s, %s, %s, %s offen offset:%d nt' % (vr(base + 3 * j3 + jj), vr(vk), sr(rr, 4), sr(S_C), 1152 * jj)
         for jj in range(3) for (base, rr) in ((KR + 3, R_K), (VR, R_V))])
ldp = split(ld, 2)
astamp(a, 4)
a('s_waitcnt lgkmcnt(0)')
astamp(a, 5)
tag_ready(a)
cs = Stream()
cs('s_mul_i32 %s, %s, 8192' % (sr(S_SCR), sr(S_WAVE)), 's_add_u32 %s, %s, %d' % (sr(S_SCR), sr(S_SCR), 65536))
_, COEF = lam_compute(cs, LT, True)
cs('v_add_f32 %s, %s, %s' % (vr(COEF), vr(COEF), vr(COEF)))
cs('v_add_f32 %s, %s, %s' % (vr(COEF + 1), vr(COEF + 1), vr(COEF + 1)))
cs('v_lshl_add_u32 %s, %s, 3, %s' % (vr(t), vr(dp), sr(S_SCR)))
cs('ds_write_b64 %s, %s offset:6144' % (vr(t), vr(COEF, 2)))
cs('v_lshl_add_u32 %s, %s, 6, %s' % (vr(t), vr(gm), sr(S_SCR)))
CF = V.get(16)
for k in range(4):
    cs('ds_read_b128 %s, %s offset:%d' % (vr(CF + 4 * k, 4), vr(t), 6144 + 16 * k))
wa, ra = V.get(), V.get()
cs('v_lshrrev_b32 %s, 2, %s' % (vr(t), vr(V_LANE)))
cs('v_lshlrev_b32 %s, 4, %s' % (vr(t), vr(t)))
cs('v_lshl_add_u32 %s, %s, 9, %s' % (vr(wa), vr(gm), vr(t)))
cs('v_add_u32 %s, %s, %s' % (vr(wa), sr(S_SCR), vr(wa)))
cs('v_add_u32 %s, %s, %s' % (vr(ra), sr(S_SCR), vr(V_L16)))
X = V.get(4)
O = V.get(8)
RD = V.get(24)
for u in range(3):
    for e in range(8):
        src = CL + 8 * u + (e >> 1)
        op = 'v_and_b32 %s, 0xffff0000, %s' if e & 1 else 'v_lshlrev_b32 %s, 16, %s'
        cs(op % (vr(X), vr(src)))
        cs(op % (vr(X + 1), vr(src + 4)))
        cmul(cs, X + 2, X, CF + 2 * e)
        cs('v_cvt_pk_bf16_f32 %s, %s, -%s' % (vr(O + e), vr(X + 2), vr(X + 3)))
    bo = u * 2048
    cs('ds_write_b128 %s, %s offset:%d' % (vr(wa), vr(O, 4), bo))
    cs('ds_write_b128 %s, %s offset:%d' % (vr(wa), vr(O + 4, 4), bo + 256))
    cs('ds_read_b128 %s, %s offset:%d' % (vr(RD + u * 8, 4), vr(ra), bo))
    cs('ds_read_b128 %s, %s offset:%d' % (vr(RD + u * 8 + 4, 4), vr(ra), bo + 1024))
a.weave(cs, ldp[0], 0.3, 0.95)
astamp(a, 6)
a('s_and_b32 %s, %s, 1' % (sr(S_T0), sr(S_KP2)))
a('s_mul_i32 %s, %s, %d' % (sr(S_T0), sr(S_T0), 2 * 37 * 1024))
a('s_lshr_b32 %s, %s, 1' % (sr(S_T1), sr(S_KP2)))
a('s_lshl_b32 %s, %s, 12' % (sr(S_T1), sr(S_T1)))
a('s_add_u32 %s, %s, %s' % (sr(S_T0), sr(S_T0), sr(S_T1)))
a('s_add_u32 %s, %s, %d' % (sr(S_T0), sr(S_T0), WS_CP))
a('s_cmp_lt_u32 %s, 216' % sr(S_AW))
a('s_cselect_b32 %s, %s, 0x%x' % (sr(S_T0), sr(S_T0), 0x40000000))
toks = []
for u in range(3):
    a('s_mul_i32 %s, %s, 3' % (sr(S_T1), sr(S_DG)))
    a('s_add_u32 %s, %s, %d' % (sr(S_T1), sr(S_T1), u))
    a('s_lshr_b32 %s, %s, 2' % (sr(S_T2), sr(S_T1)))
    a('s_mul_i32 %s, %s, %d' % (sr(S_T2), sr(S_T2), 4 * 37 * 1024))
    a('s_and_b32 %s, %s, 3' % (sr(S_T1), sr(S_T1)))
    a('s_lshl_b32 %s, %s, 10' % (sr(S_T1), sr(S_T1)))
    a('s_add_u32 %s, %s, %s' % (sr(S_T1), sr(S_T1), sr(S_T2)))
    a('s_add_u32 %s, %s, %s' % (sr(S_T1), sr(S_T1), sr(S_T0)))
    a('s_add_u32 %s, %s, %d' % (sr(S_T2), sr(S_T1), 37 * 1024))
    toks.append(a.mem('buffer_store_dwordx4 %s, %s, %s, %s offen sc1' % (vr(RD + u * 8, 4), vr(V_L16), sr(R_WS, 4), sr(S_T1))))
    toks.append(a.mem('buffer_store_dwordx4 %s, %s, %s, %s offen sc1' % (vr(RD + u * 8 + 4, 4), vr(V_L16), sr(R_WS, 4), sr(S_T2))))
a('s_nop 1')
put((CL, 24), (CF, 16), (X, 4), (O, 8), (RD, 24), wa, ra, (COEF, 2))
a.extend(ldp[1])
astamp(a, 7)
cf = Stream()
astamp(cf, 8)
cf.wait(*toks)
astamp(cf, 9)
cf('s_lshl_b32 %s, %s, 6' % (sr(S_T0), sr(S_AW)),
   's_add_u32 %s, %s, %d' % (sr(S_T0), sr(S_T0), WS_CPF), *flag_texts(sr(S_T0), 'sc1'))
a('v_sub_u32 %s, 1, %s' % (vr(sg), vr(sg)))
a('v_lshlrev_b32 %s, 6, %s' % (vr(sg), vr(sg)))
a('v_mul_u32_u24 %s, 272, %s' % (vr(ka), vr(dp)))
a('s_mul_i32 %s, %s, 8704' % (sr(S_SCR), sr(S_WAVE)))
a('v_add3_u32 %s, %s, %s, %s' % (vr(ka), vr(ka), vr(sg), sr(S_SCR)))
kc = Stream()
kv_core(kc, 12, lambda r: KR + 3 + r, lambda r: VR + r, SHK,
        lambda ch, un, reg: kc('ds_write_b128 %s, %s offset:%d' % (vr(ka), vr(reg, 4), ch * 128 + un * 16)),
        touch=lambda tp: kc.touch(vr(KR + 3 + 2 * tp, 6), vr(VR + 2 * tp, 6)) if tp % 3 == 0 else None)
cv = Conv()
conv_setup_k(cf, cv)
a.weave(kc, cf, 0.0, 0.5)
astamp(a, 10)
put((KR, 27), (VR, 24))
RD = V.get(32)
ra, ga = V.get(), V.get()
a('v_lshlrev_b32 %s, 4, %s' % (vr(ra), vr(V_Q)))
a('v_add3_u32 %s, %s, %s, %s' % (vr(ra), vr(ra), vr(V_L16), sr(S_SCR)))
for i in range(8):
    a('ds_read_b128 %s, %s offset:%d' % (vr(RD + 4 * i, 4), vr(ra), 1088 * i))
a('v_lshrrev_b32 %s, 3, %s' % (vr(ga), vr(V_LANE)))
a('v_mul_u32_u24 %s, %d, %s' % (vr(ga), KVT_STR - 128, vr(ga)))
a('v_add_u32 %s, %s, %s' % (vr(ga), vr(ga), vr(V_L16)))
a('s_mul_i32 %s, %s, %d' % (sr(S_T0), sr(S_CGK), 64 * KVT_STR))
a('s_sub_u32 %s, 43, %s' % (sr(S_T1), sr(S_KC_)))
a('s_lshl_b32 %s, %s, 7' % (sr(S_T1), sr(S_T1)))
a('s_add_u32 %s, %s, %s' % (sr(S_T0), sr(S_T0), sr(S_T1)))
a('s_cmp_lt_u32 %s, 132' % sr(S_AW2))
a('s_cselect_b32 %s, %s, 0x%x' % (sr(S_T2), sr(S_T0), 0x40000000))
for i in range(8):
    a('s_add_u32 %s, %s, %d' % (sr(S_T1), sr(S_T2), WS_KVT + 8 * i * KVT_STR),
      'buffer_store_dwordx4 %s, %s, %s, %s offen sc1' % (vr(RD + 4 * i, 4), vr(ga), sr(R_WS, 4), sr(S_T1)))
a('s_nop 1')
if OPT['stamps']:
    a('s_memtime %s' % sr(S_M2, 2), 's_waitcnt lgkmcnt(0)', 'v_writelane_b32 %s, %s, 1' % (vr(V_STAMP), sr(S_M2)))
keep_cv = cv
a('s_branch L_auxconv3')
a.fence()
a.label('L_auxconv2')
V.free = set(range(NCOMMON, 256))
V.locked = set()
sv = OPT['stamps']
OPT['stamps'] = 0
OPT['_sv'] = sv
cv = Conv()
a('s_barrier')
conv_setup_k(a, cv)
assert (cv.SD, cv.HD) == (keep_cv.SD, keep_cv.HD)
a.label('L_auxconv3')
a('s_barrier')
conv_u_prep(a, cv)
put(*conv_addr(a, cv))
conv_body(a, cv, pre_issued=False)
a.wait(cv.stk)
a('s_barrier')
conv_final(a, cv)
astamp(a, 13)
OPT['stamps'] = sv
if OPT['stamps']:
    a('s_memtime %s' % sr(S_M2, 2), 's_waitcnt lgkmcnt(0)', 's_cmp_eq_u32 %s, %s' % (sr(S_PAIR), sr(S_L)),
      's_cselect_b32 m0, 2, 3', 's_nop 3', 'v_writelane_b32 %s, %s, m0' % (vr(V_STAMP), sr(S_M2)))
a('s_add_u32 %s, %s, %d' % (sr(S_PAIR), sr(S_PAIR), NAUX))
a('s_cmp_lt_u32 %s, 288' % sr(S_PAIR))
a('s_cbranch_scc1 L_auxconv2')
a('s_branch L_fin')

a.fence()
a.extend(tail)

a.label('L_fin')
if OPT['stamps']:
    a('s_waitcnt vmcnt(0) lgkmcnt(0)')
    a('%s %s' % ('s_memtime' if OPT['cyc'] else 's_memrealtime', sr(S_M2, 2)))
    a('s_waitcnt lgkmcnt(0)')
    a('v_writelane_b32 %s, %s, 63' % (vr(V_STAMP), sr(S_M2)))
    a('v_writelane_b32 %s, %s, 62' % (vr(V_STAMP), sr(S_FAST)))
    a('s_lshl_b32 %s, %s, 10' % (sr(S_T0), sr(S_L)))
    a('s_add_u32 %s, %s, %d' % (sr(S_T0), sr(S_T0), WS_DBG))
    a('v_lshlrev_b32 %s, 2, v0' % vr(V_DUMMY))
    a('buffer_store_dword %s, %s, %s, %s offen' % (vr(V_STAMP), vr(V_DUMMY), sr(R_WS, 4), sr(S_T0)))
a.label('L_end')
a('s_endpgm')

hdr = open(os.path.join(os.path.dirname(os.path.abspath(__file__)), '..', 'cdna_kernels', NAME + '.s.ref')).read().split('\n')
head = []
for ln in hdr:
    if ln.startswith('; @launch'):
        break
    head.append(ln)
lines = head + ['; @launch grid=(256,1,1) block=(256,1,1) lds=%d' % LDS_SIZE,
                '.amdgcn_target "amdgcn-amd-amdhsa--gfx950"', '.text', '.globl ' + KN, '.p2align 8',
                '.type %s,@function' % KN, KN + ':']
lines += finalize(top)
lines += ['.section .rodata,"a"', '.p2align 6', '.amdhsa_kernel ' + KN,
          '  .amdhsa_next_free_vgpr 512', '  .amdhsa_next_free_sgpr 102', '  .amdhsa_accum_offset 256',
          '  .amdhsa_group_segment_fixed_size 0', '  .amdhsa_kernarg_size 144', '  .amdhsa_user_sgpr_count 2',
          '  .amdhsa_user_sgpr_kernarg_segment_ptr 1', '  .amdhsa_system_sgpr_workgroup_id_x 1', '.end_amdhsa_kernel']
open(sys.argv[1], 'w').write('\n'.join(lines) + '\n')
if OPT['stamps']:
    open(sys.argv[1] + '.stamps', 'w').write('\n'.join(STAMPS) + '\n')
print('vgpr high water', V.hw, 'lines', len(lines))
```

```python
import sys, os
sys.path.insert(0, os.path.dirname(os.path.abspath(__file__)))
from asmlib import *

NAME = 'interleave_layers__ssm_conv_s5__ssm_conv_h3__prompt'
KN = NAME + '_kernel'

OPT = dict(enc='', encwg=100, opol=0, tpos=1, tpol=1, stamps=0, slow=0, hbuf2=0, crot=0, pf=3, slp=8, slp2=6, ncp0=0, ncp=11, ncp2=16, per=5, x_nod1=0, x_s0late=0, x_nomfma=0, x_noload=0, fine=0, cyc=0)
for a_ in sys.argv[2:]:
    k_, v_ = a_.split('=')
    OPT[k_] = int(v_) if v_.lstrip('-').isdigit() else v_

MT = 6
TPOL = ('sc1', 'nt', 'sc1 nt')[OPT['tpol']]
NRB = 22
NMAIN = 198
NAUX = 58
WS_KVF = 0x1000
WS_CPF = 0xC000
WS_HF = 0x4000
WS_WF = 0x4000 + 2 * 22 * 256
WS_GF = 0xA000
WS_RBG = 0xC000
WS_E = 0x10000
WS_ST = 0xA0000
ST_SZ = 22 * 24576
WS_KVT = 0x1600000
KVT_STR = 5632
WS_CP = 0x540000
WS_H = 0x6C0000
H_SZ = 22 * 221184 * OPT['hbuf2']
WS_W = 0x1040000
WS_G = 0x12C0000
G_STR = 11264
WS_DBG = 0x2000000
WS_SIZE = 0x10000000
OOB = 0x7FFF0000

BLK = 12288
L_IMG = 0
L_RING = 9 * BLK
L_MISC = L_RING + 49152
LDS_SIZE = 163840
L_TAB = L_MISC
L_FX = L_MISC + 768
L_HALO = L_MISC + 3072
L_KRAW = 0
L_KVO = 28672
L_KC = L_RING
KC_CH = 16656
L_UC = L_IMG + 16
UC_CH = 9280
L_CO = 20480
CO_W = 10944
PART_ROW = 272
PART_W = 16 * PART_ROW
SPIN = 20000

P_X, P_LRE, P_LIM, P_BRE, P_BIM, P_CRE, P_CIM, P_LDT = [8 + 2 * i for i in range(8)]
P_DSK, P_Q, P_K, P_V, P_SHK, P_SSK, P_SSD, P_OUT = [24 + 2 * i for i in range(8)]
P_DBG, P_WS = 40, 42
R_WS, R_X, R_BRE, R_BIM, R_K, R_V, R_OUT, R_SK = [44 + 4 * i for i in range(8)]
S_RB, S_CG, S_FAST, S_WAVE, S_TAG, S_L, S_PAIR, S_SPIN = range(76, 84)
S_KP = 84
S_T0, S_T1, S_T2, S_T3 = 93, 94, 95, 96
S_ROLE = 97
S_M1, S_M2 = 98, 100
S_A, S_B, S_C = 3, 4, 5
S_PC = 6
S_TT = 8
S_TU = 17
S_MSEL = 26
S_MACT = 40
S_W1K = 97
S_RINGW = 98
S_PT = 99
S_XCC = 20
S_CPB = 21
S_HB = 22

V = Alloc('v', 1, 256)
top = Stream()
tail = Stream()
lblc = [0]
STAMPS = []


def newlabel(p):
    lblc[0] += 1
    return 'L_%s_%d' % (p, lblc[0])


def put(*items):
    for it in items:
        if isinstance(it, tuple):
            V.put(*it)
        else:
            V.put(it)


def srd(a, r, p, size):
    a('s_mov_b64 %s, %s' % (sr(r, 2), sr(p, 2)))
    a('s_mov_b32 %s, 0x%x' % (sr(r + 2), size))
    a('s_mov_b32 %s, 0x20000' % sr(r + 3))


def cmul(a, d, x, y):
    a('v_pk_mul_f32 %s, %s, %s op_sel:[0,0] op_sel_hi:[1,0]' % (vr(d, 2), vr(x, 2), vr(y, 2)))
    a('v_pk_fma_f32 %s, %s, %s, %s op_sel:[1,1,0] op_sel_hi:[0,1,1] neg_lo:[1,0,0]' % (vr(d, 2), vr(x, 2), vr(y, 2), vr(d, 2)))


def cmul_plain(a, d, x, y):
    a('v_mul_f32 %s, %s, %s' % (vr(d), vr(x), vr(y)))
    a('v_mul_f32 %s, %s, %s' % (vr(d + 1), vr(x + 1), vr(y)))
    a('v_fma_f32 %s, -%s, %s, %s' % (vr(d), vr(x + 1), vr(y + 1), vr(d)))
    a('v_fmac_f32 %s, %s, %s' % (vr(d + 1), vr(x), vr(y + 1)))


def cfma(a, d, x, y, c):
    a('v_pk_fma_f32 %s, %s, %s, %s op_sel:[0,0,0] op_sel_hi:[1,0,1]' % (vr(d, 2), vr(x, 2), vr(y, 2), vr(c, 2)))
    a('v_pk_fma_f32 %s, %s, %s, %s op_sel:[1,1,0] op_sel_hi:[0,1,1] neg_lo:[1,0,0]' % (vr(d, 2), vr(x, 2), vr(y, 2), vr(d, 2)))


def stamp(a, name):
    if not OPT['stamps']:
        return
    i = len(STAMPS)
    a('%s %s' % ('s_memtime' if OPT['cyc'] else 's_memrealtime', sr(S_M2, 2)), 's_waitcnt lgkmcnt(0)', 'v_writelane_b32 %s, %s, %d' % (vr(V_STAMP), sr(S_M2), i))
    STAMPS.append(name)


def astamp(a, i):
    if OPT['stamps'] or OPT.get('_sv'):
        a('s_memtime %s' % sr(S_M2, 2), 's_waitcnt lgkmcnt(0)', 'v_writelane_b32 %s, %s, %d' % (vr(V_STAMP), sr(S_M2), i))


def poll(a, loads, checks, pre_issued=False, sleep=0):
    p = Stream()
    L = newlabel('poll')
    Lc = newlabel('pollc')
    simple = len(checks) == 1 and checks[0][1] is None
    acc = None if simple else V.get(2, 1)
    p('s_mov_b32 %s, %d' % (sr(S_SPIN), SPIN))
    if pre_issued:
        regs = []
        for c in checks:
            regs += [vr(c[0])] + ([vr(c[1])] if c[1] is not None else [])
        p.touch(*regs)
        p.label(Lc)
    else:
        p.label(L)
        if sleep:
            p('s_sleep %d' % sleep)
        for t in loads:
            p(t)
        p('s_waitcnt vmcnt(0)')
    if len(checks) == 1 and checks[0][1] is None:
        p('v_cmp_ne_u32 vcc, %s, %s' % (vr(checks[0][0]), vr(checks[0][2])))
    else:
        first = True
        for (x, y, e) in checks:
            d = acc if first else acc + 1
            if y is None:
                p('v_xor_b32 %s, %s, %s' % (vr(d), vr(x), vr(e)))
            else:
                p('v_bitop3_b32 %s, %s, %s, %s bitop3:0x7e' % (vr(d), vr(x), vr(y), vr(e)))
            if not first:
                p('v_or_b32 %s, %s, %s' % (vr(acc), vr(acc), vr(acc + 1)))
            first = False
        p('v_cmp_ne_u32 vcc, 0, %s' % vr(acc))
    p('s_sub_u32 %s, %s, 1' % (sr(S_SPIN), sr(S_SPIN)))
    p('s_cselect_b64 vcc, 0, vcc')
    p('s_cmp_lg_u64 vcc, 0')
    p('s_cbranch_scc1 %s' % L)
    if pre_issued:
        tail.label(L)
        if sleep:
            tail('s_sleep %d' % sleep)
        for t in loads:
            tail(t)
        tail('s_waitcnt vmcnt(0)')
        tail('s_branch %s' % Lc)
    a.join(p)
    if acc is not None:
        V.put(acc, 2)


def dual(a, texts, touch=()):
    Ls, Lb = newlabel('slow'), newlabel('back')
    p = Stream()
    if touch:
        p.touch(*touch)
    p('s_cmp_eq_u32 %s, 0' % sr(S_FAST), 's_cbranch_scc1 %s' % Ls)
    tk = p.mem(*[t.replace(' {P}', '') for t in texts])
    p.label(Lb)
    a.join(p)
    tail.label(Ls)
    tail('s_nop 1')
    tail(*[t.replace('{P}', 'sc1') for t in texts])
    tail('s_branch %s' % Lb)
    return tk


def flag_texts(soff, pol):
    return ['s_mov_b64 exec, 1',
            'buffer_store_dword %s, %s, %s, %s offen %s' % (vr(V_TAG), vr(V_ZERO), sr(R_WS, 4), soff, pol),
            's_mov_b64 exec, -1']


def lam_loads(a, vp2):
    t = V.get(4)
    a('global_load_ushort %s, %s, %s' % (vr(t), vr(vp2), sr(P_LRE, 2)))
    a('global_load_ushort %s, %s, %s' % (vr(t + 1), vr(vp2), sr(P_LIM, 2)))
    a('global_load_ushort %s, %s, %s' % (vr(t + 2), vr(vp2), sr(P_LDT, 2)))
    return t


def lam_compute(a, t, want_coef, lam=None):
    if lam is None:
        lam = V.get(2)
    u = V.get(4)
    for i in range(3):
        a('v_lshlrev_b32 %s, 16, %s' % (vr(t + i), vr(t + i)))
    a('v_mul_f32 %s, 0x3fb8aa3b, %s' % (vr(t + 2), vr(t + 2)))
    a('v_exp_f32 %s, %s' % (vr(t + 2), vr(t + 2)))
    a('v_cvt_pk_bf16_f32 %s, %s, %s' % (vr(t + 2), vr(t + 2), vr(t + 2)))
    a('v_lshlrev_b32 %s, 16, %s' % (vr(t + 2), vr(t + 2)))
    a('v_mul_f32 %s, %s, %s' % (vr(u), vr(t + 2), vr(t)))
    a('v_mul_f32 %s, %s, %s' % (vr(u + 1), vr(t + 2), vr(t + 1)))
    a('v_mul_f32 %s, 0x3fb8aa3b, %s' % (vr(u), vr(u)))
    a('v_exp_f32 %s, %s' % (vr(u), vr(u)))
    a('v_mul_f32 %s, 0.15915494, %s' % (vr(u + 1), vr(u + 1)))
    a('v_rndne_f32 %s, %s' % (vr(u + 2), vr(u + 1)))
    a('v_sub_f32 %s, %s, %s' % (vr(u + 1), vr(u + 1), vr(u + 2)))
    a('v_cos_f32 %s, %s' % (vr(u + 2), vr(u + 1)))
    a('v_sin_f32 %s, %s' % (vr(u + 3), vr(u + 1)))
    a('v_mul_f32 %s, %s, %s' % (vr(lam), vr(u), vr(u + 2)))
    a('v_mul_f32 %s, %s, %s' % (vr(lam + 1), vr(u), vr(u + 3)))
    coef = None
    if want_coef:
        coef = V.get(2)
        a('v_add_f32 %s, -1.0, %s' % (vr(u), vr(lam)))
        a('v_mov_b32 %s, %s' % (vr(u + 1), vr(lam + 1)))
        a('v_mul_f32 %s, %s, %s' % (vr(u + 2), vr(t), vr(t)))
        a('v_fmac_f32 %s, %s, %s' % (vr(u + 2), vr(t + 1), vr(t + 1)))
        a('v_rcp_f32 %s, %s' % (vr(u + 2), vr(u + 2)))
        a('v_sub_f32 %s, 0, %s' % (vr(t + 1), vr(t + 1)))
        cmul(a, coef, u, t)
        a('v_mul_f32 %s, %s, %s' % (vr(coef), vr(coef), vr(u + 2)))
        a('v_mul_f32 %s, %s, %s' % (vr(coef + 1), vr(coef + 1), vr(u + 2)))
    put((u, 4), (t, 4))
    return lam, coef


def tag_ready(a):
    a('s_mul_i32 %s, %s, 0x9E3779B1' % (sr(S_TAG), sr(S_TAG)),
      's_add_u32 %s, %s, 0x7F4A7C15' % (sr(S_TAG), sr(S_TAG)),
      'v_mov_b32 %s, %s' % (vr(V_TAG), sr(S_TAG)))


def rbf(s, regs):
    for r in regs:
        s('v_cvt_pk_bf16_f32 %s, %s, %s' % (vr(r), vr(r), vr(r)))
    for r in regs:
        s('v_lshlrev_b32 %s, 16, %s' % (vr(r), vr(r)))


def rs12(s, S, Q):
    dp = 'v_add_f32_dpp %s, %s, %s %s row_mask:0xf bank_mask:0x%x'
    for X in (S, Q):
        for j in range(3):
            s(dp % (vr(X[j]), vr(X[j]), vr(X[j]), 'row_ror:8', 0x3))
    for X in (S, Q):
        for j in range(3):
            s(dp % (vr(X[j]), vr(X[j + 3]), vr(X[j + 3]), 'row_ror:8', 0xc))
    for X in (S, Q):
        s(dp % (vr(X[0]), vr(X[0]), vr(X[0]), 'row_half_mirror', 0x5))
        s(dp % (vr(X[2]), vr(X[2]), vr(X[2]), 'row_half_mirror', 0xf))
    for X in (S, Q):
        s(dp % (vr(X[0]), vr(X[1]), vr(X[1]), 'row_half_mirror', 0xa))
    for qp in ('quad_perm:[1,0,3,2]', 'quad_perm:[2,3,0,1]'):
        for r in (S[2], Q[2], S[0], Q[0]):
            s(dp % (vr(r), vr(r), vr(r), qp, 0xf))


def tile_src(i):
    hf, j = divmod(i, 3)
    if j == 2:
        return 1, 8 * hf
    return 0, 8 * hf + 4 * j


a = top
V_LANE, V_TAG, V_STAMP, V_L16, V_N, V_Q = [V.get() for _ in range(6)]
V_OOB = V.get()
V_JUNK = V.get()
V_ZERO = V.get(2)
V_DUMMY = V.get(4)
NCOMMON = V.hw
BASE = V.get(24)
V_DSK = V.get(4)
V_FA = V.get(4)
LAM, L12, L24, L384, LQ96, LQ24, RB, OFF = [V.get(2) for _ in range(8)]
(V_TAU, V_OROW, V_STW, V_STR, V_EXP9, V_TABW, V_EW, V_ER, V_HW, V_HR, V_TABR, V_WA) = [V.get() for _ in range(12)]
WCV = V.home(32)
GP = V.home(12)
V_PW = V.home(4)
V_PR, V_PW2, V_PR2 = V_PW + 1, V_PW + 2, V_PW + 3
HOMES = ((WCV, 32), (GP, 12), (V_PW, 4))
V_DX = V.get(3, 1)

a('s_cmp_ge_u32 s2, 256')
a('s_cbranch_scc1 L_end')
a('s_load_dwordx16 s[8:23], s[0:1], 0')
a('s_load_dwordx16 s[24:39], s[0:1], 64')
a('s_load_dwordx4 s[40:43], s[0:1], 128')
a('s_getpc_b64 %s' % sr(S_PC, 2))
a.label('L_pc')
a('s_lshr_b32 %s, s2, 3' % sr(S_T0))
a('s_lshl_b32 %s, %s, 12' % (sr(S_T1), sr(S_T0)))
a('v_lshl_add_u32 %s, v0, 4, %s' % (vr(V_TAG), sr(S_T1)))
a('s_mov_b32 %s, L_end-L_pc-16' % sr(S_T1))
a('v_min_u32 %s, %s, %s' % (vr(V_TAG), sr(S_T1), vr(V_TAG)))
a('global_load_dwordx4 %s, %s, %s ;junk' % (vr(V_DUMMY, 4), vr(V_TAG), sr(S_PC, 2)))
a('v_and_b32 %s, 63, v0' % vr(V_LANE))
a('v_lshrrev_b32 %s, 6, v0' % vr(V_Q))
a('v_lshlrev_b32 %s, 4, %s' % (vr(V_L16), vr(V_LANE)))
a('v_readfirstlane_b32 %s, %s' % (sr(S_WAVE), vr(V_Q)))
if OPT['stamps']:
    a('v_mov_b32 %s, 0' % vr(V_STAMP))
stamp(a, 'start')
a('v_and_b32 %s, 15, %s' % (vr(V_N), vr(V_LANE)))
a('v_lshrrev_b32 %s, 4, %s' % (vr(V_Q), vr(V_LANE)))
a('v_mov_b32 %s, 0' % vr(V_ZERO))
a('v_mov_b32 %s, 0' % vr(V_ZERO + 1))
a('v_mov_b32 %s, 0x%x' % (vr(V_OOB), OOB))
a('s_and_b32 %s, s2, 7' % sr(S_T1))
a('s_mul_i32 %s, %s, 27' % (sr(S_T2), sr(S_T1)))
a('s_add_u32 %s, %s, %s' % (sr(S_T2), sr(S_T2), sr(S_T0)))
a('s_mul_i32 %s, %s, 5' % (sr(S_T3), sr(S_T1)))
a('s_add_u32 %s, %s, %s' % (sr(S_T3), sr(S_T3), sr(S_T0)))
a('s_add_u32 %s, %s, %d' % (sr(S_T3), sr(S_T3), 216 - 27))
a('s_cmp_lt_u32 %s, 27' % sr(S_T0))
a('s_cselect_b32 %s, %s, %s' % (sr(S_L), sr(S_T2), sr(S_T3)))
a('s_mul_i32 %s, %s, 57' % (sr(S_RB), sr(S_L)))
a('s_lshr_b32 %s, %s, 9' % (sr(S_RB), sr(S_RB)))
a('s_mul_i32 %s, %s, 9' % (sr(S_T0), sr(S_RB)))
a('s_sub_u32 %s, %s, %s' % (sr(S_CG), sr(S_L), sr(S_T0)))
a('s_mov_b32 %s, %s' % (sr(S_PAIR), sr(S_L)))
a('s_and_b32 %s, %s, 1' % (sr(S_A), sr(S_WAVE)))
a('s_lshr_b32 %s, %s, 1' % (sr(S_B), sr(S_WAVE)))
a('s_cmp_ge_u32 %s, %d' % (sr(S_L), NMAIN))
a('s_cbranch_scc1 L_aux')

t, t2, t3 = V.get(), V.get(), V.get()
LAMT = V.get(4)
lad, dad = V.get(), V.get()
V_DB = V.get(2)
c0 = V.get()
a('v_lshrrev_b32 %s, 3, %s' % (vr(t), vr(V_LANE)))
a('v_and_b32 %s, 7, %s' % (vr(t3), vr(V_LANE)))
a('s_lshl2_add_u32 %s, %s, %s' % (sr(S_PT), sr(S_CG), sr(S_WAVE)))
a('s_lshl_b32 %s, %s, 10' % (sr(S_W1K), sr(S_WAVE)))
a('s_mul_i32 %s, %s, 12288' % (sr(S_RINGW), sr(S_WAVE)))
a('s_add_u32 %s, %s, %d' % (sr(S_RINGW), sr(S_RINGW), L_RING))
a('s_lshl_b32 %s, %s, 7' % (sr(S_KP), sr(S_CG)))
a('v_xor_b32 %s, %s, %s' % (vr(c0), vr(t3), vr(V_Q)))
a('v_lshlrev_b32 %s, 4, %s' % (vr(c0), vr(c0)))
a('v_lshrrev_b32 %s, 5, %s' % (vr(t2), vr(V_LANE)))
a('v_mul_u32_u24 %s, 24, %s' % (vr(t2), vr(t2)))
a('v_and_b32 %s, 1, %s' % (vr(t3), vr(t)))
a('v_mad_u32_u24 %s, %s, 12, %s' % (vr(t2), vr(t3), vr(t2)))
a('v_and_b32 %s, 1, %s' % (vr(t3), vr(V_Q)))
a('s_mul_i32 %s, %s, 48' % (sr(S_T0), sr(S_A)))
a('s_mul_i32 %s, %s, 96' % (sr(S_T1), sr(S_RB)))
a('s_add_u32 %s, %s, %s' % (sr(S_T0), sr(S_T0), sr(S_T1)))
a('s_lshl1_add_u32 %s, %s, %s' % (sr(S_T0), sr(S_B), sr(S_T0)))
a('v_add3_u32 %s, %s, %s, %s' % (vr(t2), vr(t2), vr(t3), sr(S_T0)))
a('v_mul_u32_u24 %s, 1152, %s' % (vr(t2), vr(t2)))
a('s_lshl_b32 %s, %s, 6' % (sr(S_T0), sr(S_A)))
a('v_xor_b32 %s, %s, %s' % (vr(V_DX), sr(S_T0), vr(c0)))
a('v_add_u32 %s, %s, %s' % (vr(V_DX), vr(V_DX), vr(t2)))
a('v_add_u32 %s, 4608, %s' % (vr(V_DX + 1), vr(V_DX)))
a('v_add_u32 %s, 9216, %s' % (vr(V_DX + 2), vr(V_DX)))
a('s_lshl_b32 %s, %s, 4' % (sr(S_T0), sr(S_PT)))
a('v_add_u32 %s, %s, %s' % (vr(t2), sr(S_T0), vr(t)))
a('v_mul_u32_u24 %s, 1152, %s' % (vr(t2), vr(t2)))
a('v_add_u32 %s, %s, %s' % (vr(V_DB), vr(t2), vr(c0)))
a('v_xor_b32 %s, 64, %s' % (vr(V_DB + 1), vr(c0)))
a('v_add_u32 %s, %s, %s' % (vr(V_DB + 1), vr(V_DB + 1), vr(t2)))
a('v_add_u32 %s, %d, %s' % (vr(V_DB + 1), 8 * 1152, vr(V_DB + 1)))
put(c0)
a('s_mov_b32 %s, 0x%x' % (sr(R_X + 2), 2048 * 1152))
a('s_mov_b32 %s, 0x20000' % sr(R_X + 3))
for r_ in (R_BRE, R_BIM):
    a('s_mov_b32 %s, 0x%x' % (sr(r_ + 2), 576 * 1152))
    a('s_mov_b32 %s, 0x20000' % sr(r_ + 3))
a('s_waitcnt lgkmcnt(0)')
a('s_mov_b64 %s, %s' % (sr(R_X, 2), sr(P_X, 2)))
a('s_mov_b64 %s, %s' % (sr(R_BRE, 2), sr(P_BRE, 2)))
a('s_mov_b64 %s, %s' % (sr(R_BIM, 2), sr(P_BIM, 2)))


def x_dma(s, blk, layer):
    tk = None
    for u in range(3):
        s('s_add_u32 m0, %s, %d' % (sr(S_W1K), L_IMG + blk * BLK + u * 4096))
        tk = s.mem('buffer_load_dwordx4 %s, %s, %s offen%s lds' % (vr(V_DX + u), sr(R_X if layer == 0 else R_WS, 4),
                                                                   sr((S_KP if layer == 0 else S_TT) + blk), ' nt' if layer == 0 else ' sc1'))
    return tk


WB = lambda kp, h, mat: ((kp * 2 + h) * 2 + mat) * 4


def b_dma(s, kp):
    tk = None
    for b in range(4):
        s('s_add_u32 m0, %s, %d' % (sr(S_RINGW), (kp % 3) * 4096 + b * 1024))
        tk = s.mem('buffer_load_dwordx4 %s, %s, %s offen lds' % (vr(V_DB + (b & 1)), sr(R_BRE if b < 2 else R_BIM, 4), sr(S_KP + kp)))
    return tk


xtk, btk = {}, {}
i0, kt = Stream(), Stream()
xtk[0] = x_dma(i0, 0, 0)
btk[0] = b_dma(i0, 0)
kt('s_load_dword %s, %s, 0' % (sr(S_TAG), sr(P_WS, 2)))
kt('s_mul_i32 %s, %s, 43' % (sr(S_T0), sr(S_RB)))
kt('s_lshr_b32 %s, %s, 7' % (sr(S_T0), sr(S_T0)))
kt('s_mul_i32 %s, %s, 3' % (sr(S_T0), sr(S_T0)))
kt('s_sub_u32 %s, %s, %s' % (sr(S_T0), sr(S_RB), sr(S_T0)))
kt('s_lshl_b32 %s, 128, %s' % (sr(S_T0), sr(S_T0)))
for i in range(1, 9):
    kt('s_add_u32 %s, %s, %s' % (sr(S_KP + i), sr(S_KP + i - 1), sr(S_T0)),
       's_sub_u32 %s, %s, 1152' % (sr(S_T1), sr(S_KP + i)),
       's_cselect_b32 %s, %s, %s' % (sr(S_KP + i), sr(S_KP + i), sr(S_T1)))
a.weave(i0, kt)
a('s_lshl_b32 %s, %s, 5' % (sr(S_T1), sr(S_PT)))
a('v_lshl_add_u32 %s, %s, 1, %s' % (vr(lad), vr(V_N), sr(S_T1)))
btk[1] = b_dma(a, 1)
a('global_load_ushort %s, %s, %s' % (vr(LAMT), vr(lad), sr(P_LRE, 2)))
a('global_load_ushort %s, %s, %s' % (vr(LAMT + 1), vr(lad), sr(P_LIM, 2)))
a('global_load_ushort %s, %s, %s' % (vr(LAMT + 2), vr(lad), sr(P_LDT, 2)))
srd(a, R_WS, P_WS, WS_SIZE)
su = Stream()
V_FB = V.get(2)
su('v_lshrrev_b32 %s, 1, %s' % (vr(t), vr(V_N)))
su('v_xor_b32 %s, %s, %s' % (vr(t), vr(t), vr(V_Q)))
su('v_lshlrev_b32 %s, 4, %s' % (vr(t), vr(t)))
su('v_lshl_add_u32 %s, %s, 7, %s' % (vr(V_FA), vr(V_N), vr(t)))
su('v_xor_b32 %s, 64, %s' % (vr(V_FA + 1), vr(V_FA)))
su('v_add_u32 %s, %d, %s' % (vr(V_FA + 2), 4 * BLK, vr(V_FA)))
su('v_add_u32 %s, %d, %s' % (vr(V_FA + 3), 4 * BLK, vr(V_FA + 1)))
su('v_add_u32 %s, %s, %s' % (vr(V_FB), sr(S_RINGW), vr(V_FA)))
su('v_add_u32 %s, %s, %s' % (vr(V_FB + 1), sr(S_RINGW), vr(V_FA + 1)))
srd(su, R_OUT, P_OUT, 2048 * 2304)
su('s_mov_b32 %s, 0x02020202' % sr(S_MSEL), 's_mov_b32 %s, 0x02020202' % sr(S_MSEL + 1))
su('s_mov_b32 %s, 0x13131313' % sr(S_MACT), 's_mov_b32 %s, 0x13131313' % sr(S_MACT + 1))
su('s_getreg_b32 %s, hwreg(HW_REG_XCC_ID, 0, 4)' % sr(S_XCC))
su('v_and_b32 %s, 1, %s' % (vr(t), vr(V_Q)))
su('v_mul_u32_u24 %s, 12, %s' % (vr(V_TAU), vr(t)))
su('v_lshrrev_b32 %s, 1, %s' % (vr(t2), vr(V_Q)))
su('v_add_u32 %s, %s, %s' % (vr(V_TAU), vr(V_TAU), vr(t2)))
su('s_mul_i32 %s, %s, 96' % (sr(S_T0), sr(S_RB)),
   's_mul_i32 %s, %s, 24' % (sr(S_T1), sr(S_WAVE)),
   's_add_u32 %s, %s, %s' % (sr(S_T0), sr(S_T0), sr(S_T1)),
   'v_add_u32 %s, %s, %s' % (vr(t3), sr(S_T0), vr(V_TAU)))
su('v_mul_u32_u24 %s, 2304, %s' % (vr(V_OROW), vr(t3)))
su('s_lshl_b32 %s, %s, 8' % (sr(S_T0), sr(S_CG)),
   'v_lshl_add_u32 %s, %s, 4, %s' % (vr(t3), vr(V_N), sr(S_T0)))
su('v_add_u32 %s, %s, %s' % (vr(V_OROW), vr(V_OROW), vr(t3)))
TI = V.get()
su('v_lshrrev_b32 %s, 3, %s' % (vr(TI), vr(V_N)))
su('v_mul_u32_u24 %s, 3, %s' % (vr(TI), vr(TI)))
su('v_bfe_u32 %s, %s, 2, 1' % (vr(t3), vr(V_N)))
su('v_cndmask_b32 %s, %s, 2, %s' % (vr(t3), vr(t3), sr(S_MSEL, 2)))
su('v_add_u32 %s, %s, %s' % (vr(TI), vr(TI), vr(t3)))
su('v_lshl_add_u32 %s, %s, 1, %s' % (vr(t3), vr(TI), vr(t2)))
su('v_lshlrev_b32 %s, 4, %s' % (vr(t3), vr(t3)))
su('v_lshl_add_u32 %s, %s, 2, %s' % (vr(V_TABW), vr(t), vr(t3)))
su('s_mul_i32 %s, %s, 192' % (sr(S_T0), sr(S_WAVE)),
   's_add_u32 %s, %s, %d' % (sr(S_T0), sr(S_T0), L_TAB),
   'v_add_u32 %s, %s, %s' % (vr(V_TABW), sr(S_T0), vr(V_TABW)))
su('v_mul_u32_u24 %s, 192, %s' % (vr(V_TABR), vr(V_Q)))
su('v_add_u32 %s, %d, %s' % (vr(V_TABR), L_TAB, vr(V_TABR)))
su('s_mul_i32 %s, %s, 96' % (sr(S_T0), sr(S_RB)),
   's_lshl2_add_u32 %s, %s, %s' % (sr(S_T0), sr(S_WAVE), sr(S_T0)),
   'v_add_u32 %s, %s, %s' % (vr(t), sr(S_T0), vr(V_Q)))
su('v_lshlrev_b32 %s, 8, %s' % (vr(t), vr(t)))
su('v_lshl_add_u32 %s, %s, 4, %s' % (vr(V_STR), vr(V_N), vr(t)))
su('v_cmp_gt_u32 vcc, 9, %s' % vr(V_N),
   'v_cndmask_b32 %s, %s, %s, vcc' % (vr(V_STR), vr(V_OOB), vr(V_STR)))
su('v_lshl_add_u32 %s, %s, 12, %s' % (vr(V_STW), vr(TI), vr(t)))
su('s_lshl_b32 %s, %s, 4' % (sr(S_T0), sr(S_CG)),
   'v_add_u32 %s, %s, %s' % (vr(V_STW), sr(S_T0), vr(V_STW)))
su('v_cndmask_b32 %s, %s, %s, %s' % (vr(V_STW), vr(V_OOB), vr(V_STW), sr(S_MACT, 2)))
put(TI)
su('s_lshl_b32 %s, %s, 2' % (sr(S_T0), sr(S_WAVE)),
   'v_add_u32 %s, %s, %s' % (vr(V_WA), sr(S_T0), vr(V_Q)))
su('v_xor_b32 %s, %s, %s' % (vr(t), vr(V_WA), vr(V_N)))
su('v_lshrrev_b32 %s, 1, %s' % (vr(t), vr(t)))
su('v_lshlrev_b32 %s, 4, %s' % (vr(t), vr(t)))
su('v_lshl_add_u32 %s, %s, 7, %s' % (vr(V_WA), vr(V_WA), vr(t)))
su('v_and_b32 %s, 1, %s' % (vr(t), vr(V_N)))
su('v_lshl_add_u32 %s, %s, 3, %s' % (vr(V_WA), vr(t), vr(V_WA)))
su('s_lshl_b32 %s, %s, 8' % (sr(S_T0), sr(S_RB)),
   'v_lshl_add_u32 %s, %s, 4, %s' % (vr(V_EW), vr(V_N), sr(S_T0)))
su('v_lshlrev_b32 %s, 8, %s' % (vr(t), vr(V_Q)))
su('v_sub_u32 %s, %s, %s' % (vr(V_ER), vr(V_EW), vr(t)))
su('v_subrev_u32 %s, 256, %s' % (vr(V_ER), vr(V_ER)))
su('v_cmp_gt_u32 vcc, 16, %s' % vr(V_LANE),
   'v_cndmask_b32 %s, %s, %s, vcc' % (vr(V_EW), vr(V_OOB), vr(V_EW)))
su('v_lshl_add_u32 %s, %s, 2, %s' % (vr(t), vr(V_N), vr(t)))
su('s_mul_i32 %s, %s, 6144' % (sr(S_T0), sr(S_WAVE)), 's_add_u32 %s, %s, %d' % (sr(S_T0), sr(S_T0), 5 * BLK),
   'v_add_u32 %s, %s, %s' % (vr(V_HW), sr(S_T0), vr(t)))
su('v_lshlrev_b32 %s, 4, %s' % (vr(t), vr(V_Q)))
su('v_lshl_add_u32 %s, %s, 6, %s' % (vr(t), vr(V_N), vr(t)))
su('s_mul_i32 %s, %s, 6144' % (sr(S_T0), sr(S_WAVE)), 's_add_u32 %s, %s, %d' % (sr(S_T0), sr(S_T0), 5 * BLK),
   'v_add_u32 %s, %s, %s' % (vr(V_HR), sr(S_T0), vr(t)))
a.extend(su)
put(t, t2, t3)
a('s_lshl_b32 %s, %s, 7' % (sr(S_T1), sr(S_CG)))
a('v_lshl_add_u32 %s, %s, 3, %s' % (vr(dad), vr(V_N), sr(S_T1)))
stamp(a, 'setup')


def b_read(s, kp):
    s.wait(btk[kp])
    tk = None
    for h in range(2):
        for mat in range(2):
            tk = s.mem('ds_read_b128 %s, %s offset:%d' % (ar(WB(kp, h, mat), 4), vr(V_FB + h), (kp % 3) * 4096 + mat * 2048))
    return tk


class KVm:
    pass


def kv_dma(s, kv):
    kv.SHK = V.get(4, top=True)
    t, t2, kh = V.get(), V.get(), V.get()
    s('s_cmp_lt_u32 %s, 6' % sr(S_CG),
      's_cselect_b32 %s, %d, 0' % (sr(R_K + 2), 2048 * 1152),
      's_mov_b32 %s, %s' % (sr(R_V + 2), sr(R_K + 2)),
      's_mov_b32 %s, %s' % (sr(R_K), sr(P_K)), 's_and_b32 %s, %s, 0xffff' % (sr(R_K + 1), sr(P_K + 1)),
      's_mov_b32 %s, 0x20000' % sr(R_K + 3))
    s('s_mov_b32 %s, %s' % (sr(R_V), sr(P_V)), 's_and_b32 %s, %s, 0xffff' % (sr(R_V + 1), sr(P_V + 1)),
      's_mov_b32 %s, 0x20000' % sr(R_V + 3))
    s('v_lshrrev_b32 %s, 3, %s' % (vr(t), vr(V_LANE)))
    s('v_mul_u32_u24 %s, 1152, %s' % (vr(t2), vr(t)))
    s('v_and_b32 %s, 7, %s' % (vr(t), vr(V_LANE)))
    s('v_lshl_add_u32 %s, %s, 4, %s' % (vr(t2), vr(t), vr(t2)))
    s('v_and_b32 %s, 31, %s' % (vr(t), vr(V_LANE)))
    s('s_lshl_b32 %s, %s, 9' % (sr(S_T1), sr(S_CG)),
      'v_lshl_add_u32 %s, %s, 4, %s' % (vr(t), vr(t), sr(S_T1)),
      'global_load_dwordx4 %s, %s, %s' % (vr(kv.SHK, 4), vr(t), sr(P_SHK, 2)))
    s('s_lshl2_add_u32 %s, %s, %s' % (sr(S_T0), sr(S_RB), sr(S_WAVE)),
      's_mul_i32 %s, %s, %d' % (sr(S_T0), sr(S_T0), 24 * 1152),
      's_lshl_b32 %s, %s, 7' % (sr(S_T1), sr(S_CG)),
      's_add_u32 %s, %s, %s' % (sr(S_T0), sr(S_T0), sr(S_T1)),
      'v_add_u32 %s, %s, %s' % (vr(t2), sr(S_T0), vr(t2)),
      'v_subrev_u32 %s, %d, %s' % (vr(kh), 8 * 1152, vr(t2)))
    s('s_mul_i32 %s, %s, 7168' % (sr(S_C), sr(S_WAVE)), 's_mov_b32 m0, %s' % sr(S_C))
    s('buffer_load_dwordx4 %s, %s, 0 offen nt lds' % (vr(kh), sr(R_K, 4)))
    for u in range(3):
        for base, rr in ((1024, R_K), (4096, R_V)):
            s('s_add_u32 m0, %s, %d' % (sr(S_C), base + u * 1024))
            kv.tok = s.mem('s_mov_b32 %s, %d' % (sr(S_T2), u * 8 * 1152),
                           'buffer_load_dwordx4 %s, %s, %s offen nt lds' % (vr(t2), sr(rr, 4), sr(S_T2)))
    kv.rel = [t, t2, kh]


def kv_core(kc, ntp, krow, vrow, SHK, emit_unit, touch=None):
    W, KU, P = V.get(8), V.get(16), V.get(16)
    S4 = V.get(4, 1)
    OU = V.get(8)
    ONE2 = V.get()
    kc('v_mov_b32 %s, 0x3f803f80' % vr(ONE2))
    kc('v_mov_b32 %s, %s' % (vr(OU + 3), vr(V_TAG)))
    kc('v_mov_b32 %s, %s' % (vr(OU + 7), vr(V_TAG)))
    for j in range(4):
        for ch in range(2):
            src = SHK + 2 * ch + (j >> 1)
            kc(('v_and_b32 %s, 0xffff0000, %s' if j & 1 else 'v_lshlrev_b32 %s, 16, %s') % (vr(W + 2 * j + ch), vr(src)))
    ku = lambda r: KU + 2 * ((r + 3) % 8)

    def unpack_k(r):
        kc('v_lshlrev_b32 %s, 16, %s' % (vr(ku(r)), vr(krow(r))))
        kc('v_and_b32 %s, 0xffff0000, %s' % (vr(ku(r) + 1), vr(krow(r))))

    for r in (-3, -2, -1):
        unpack_k(r)
    for tp in range(ntp):
        if touch is not None:
            touch(tp)
        for tt in range(2):
            unpack_k(2 * tp + tt)
        for tt in range(2):
            for j in range(4):
                kc('v_pk_mul_f32 %s, %s, %s' % (vr(P + tt * 8 + 2 * j, 2), vr(ku(2 * tp + tt - j), 2), vr(W + 2 * j, 2)))
        idx = [(tt, ch) for tt in range(2) for ch in range(2)]
        for step in range(3):
            for u, (tt, ch) in enumerate(idx):
                first = vr(P + tt * 8 + 6 + ch) if step == 0 else vr(S4 + u)
                kc('v_cvt_pk_bf16_f32 %s, %s, %s' % (vr(S4 + u), first, vr(P + tt * 8 + 2 * (2 - step) + ch)))
            for u in range(4):
                kc('v_dot2_f32_bf16 %s, %s, %s, 0' % (vr(S4 + u), vr(S4 + u), vr(ONE2)))
        for u, (tt, ch) in enumerate(idx):
            kc('v_cvt_pk_bf16_f32 %s, %s, %s' % (vr(S4 + u), vr(S4 + u) if ch == 0 else '0', '0' if ch == 0 else vr(S4 + u)))
        for u, (tt, ch) in enumerate(idx):
            kc('v_dot2_f32_bf16 %s, %s, %s, 0' % (vr(S4 + u), vr(S4 + u), vr(vrow(2 * tp + tt))))
        pos = ntp - 1 - tp
        for ch in range(2):
            kc('v_cvt_pk_bf16_f32 %s, %s, %s' % (vr(OU + 4 * ch + pos % 3), vr(S4 + 2 + ch), vr(S4 + ch)))
        if pos % 3 == 0:
            for ch in range(2):
                emit_unit(ch, pos // 3, OU + 4 * ch)
    put((W, 8), (KU, 16), (P, 16), (S4, 4), (OU, 8), ONE2)


def kv_main(s, kv, ks):
    ka, kb, t, t2 = [V.get() for _ in range(4)]
    s('v_lshrrev_b32 %s, 5, %s' % (vr(t), vr(V_LANE)))
    s('v_and_b32 %s, 31, %s' % (vr(t2), vr(V_LANE)))
    s('v_mul_u32_u24 %s, 1536, %s' % (vr(ka), vr(t)))
    s('v_lshl_add_u32 %s, %s, 2, %s' % (vr(ka), vr(t2), vr(ka)))
    s('s_mul_i32 %s, %s, 7168' % (sr(S_T0), sr(S_WAVE)),
      's_add_u32 %s, %s, 512' % (sr(S_T0), sr(S_T0)),
      'v_add_u32 %s, %s, %s' % (vr(ka), sr(S_T0), vr(ka)))
    s('v_add_u32 %s, 128, %s' % (vr(kb), vr(ka)))
    KR, VR = V.get(16, 2), V.get(12, 2)
    ridx = lambda r: (r >> 2) * 4 + (r & 1) * 2 + ((r >> 1) & 1)
    krow = lambda r: KR + ridx(r + 4)
    vrow = lambda r: VR + ridx(r)
    s.wait(kv.tok)
    for g in range(4):
        for par in range(2):
            s('ds_read2st64_b32 %s, %s offset0:%d offset1:%d' % (vr(KR + g * 4 + par * 2, 2), vr(kb if par else ka), 2 * g, 2 * g + 1))
        if g > 0:
            for par in range(2):
                s('ds_read2st64_b32 %s, %s offset0:%d offset1:%d' % (vr(VR + (g - 1) * 4 + par * 2, 2), vr(kb if par else ka),
                                                                     14 + 2 * (g - 1), 14 + 2 * (g - 1) + 1))
    s('v_sub_u32 %s, 1, %s' % (vr(t), vr(t)))
    s('v_lshlrev_b32 %s, 5, %s' % (vr(t), vr(t)))
    s('v_mul_u32_u24 %s, 528, %s' % (vr(t2), vr(t2)))
    s('s_lshl_b32 %s, %s, 6' % (sr(S_T0), sr(S_WAVE)),
      's_sub_u32 %s, 192, %s' % (sr(S_T0), sr(S_T0)),
      'v_add3_u32 %s, %s, %s, %s' % (vr(t), vr(t), vr(t2), sr(S_T0)),
      's_mul_i32 %s, %s, 4224' % (sr(S_T0), sr(S_WAVE)),
      'v_lshrrev_b32 %s, 5, %s' % (vr(t2), vr(V_LANE)),
      'v_lshlrev_b32 %s, 4, %s' % (vr(t2), vr(t2)),
      'v_add3_u32 %s, %s, %s, %s' % (vr(t2), vr(t2), vr(V_L16), sr(S_T0)))
    tks = []
    kv_core(s, 6, krow, vrow, kv.SHK,
            lambda ch, un, reg: tks.append(s.mem('ds_write_b128 %s, %s offset:%d' % (vr(t), vr(reg, 4), L_KVO + ch * 256 + un * 16))))
    put((KR, 16), (VR, 12), (kv.SHK, 4))
    D = V.get(16)
    s('v_mul_u32_u24 %s, %d, %s' % (vr(ka), KVT_STR, vr(V_Q)))
    s('v_lshl_add_u32 %s, %s, 4, %s' % (vr(ka), vr(V_N), vr(ka)))
    s('s_mul_i32 %s, %s, %d' % (sr(S_T0), sr(S_PT), 16 * KVT_STR),
      's_lshl_b32 %s, %s, 8' % (sr(S_T1), sr(S_RB)),
      's_sub_u32 %s, %s, %s' % (sr(S_T0), sr(S_T0), sr(S_T1)),
      's_add_u32 %s, %s, %d' % (sr(S_T0), sr(S_T0), WS_KVT + 21 * 256),
      's_cmp_lt_u32 %s, 6' % sr(S_CG),
      's_cselect_b32 %s, %s, 0x40000000' % (sr(S_T0), sr(S_T0)),
      'v_add_u32 %s, %s, %s' % (vr(ka), sr(S_T0), vr(ka)))
    ks.wait(tks[-1])
    ks('s_barrier')
    for i in range(4):
        ks('ds_read_b128 %s, %s offset:%d' % (vr(D + 4 * i, 4), vr(t2), L_KVO + i * 1056))
    for i in range(4):
        ks('s_mov_b32 %s, %d' % (sr(S_T1), 4 * i * KVT_STR),
           'buffer_store_dwordx4 %s, %s, %s, %s offen sc1' % (vr(D + 4 * i, 4), vr(ka), sr(R_WS, 4), sr(S_T1)))
    ks('s_nop 1')
    put((D, 16), ka, kb, t, t2)


def stats_partial(s, X, S, Q, i, d, pk):
    x = X + 4 * i
    if pk:
        s('v_pk_add_f32 %s, %s, %s' % (vr(d, 2), vr(x, 2), vr(x + 2, 2)),
          'v_pk_mul_f32 %s, %s, %s' % (vr(d + 2, 2), vr(x, 2), vr(x, 2)),
          'v_add_f32 %s, %s, %s' % (vr(S + i), vr(d), vr(d + 1)),
          'v_pk_fma_f32 %s, %s, %s, %s' % (vr(d + 2, 2), vr(x + 2, 2), vr(x + 2, 2), vr(d + 2, 2)),
          'v_add_f32 %s, %s, %s' % (vr(Q + i), vr(d + 2), vr(d + 3)))
    else:
        s('v_add_f32 %s, %s, %s' % (vr(S + i), vr(x), vr(x + 1)))
        s('v_mul_f32 %s, %s, %s' % (vr(Q + i), vr(x), vr(x)))
        s('v_add_f32 %s, %s, %s' % (vr(S + i), vr(S + i), vr(x + 2)))
        s('v_fmac_f32 %s, %s, %s' % (vr(Q + i), vr(x + 1), vr(x + 1)))
        s('v_add_f32 %s, %s, %s' % (vr(S + i), vr(S + i), vr(x + 3)))
        s('v_fmac_f32 %s, %s, %s' % (vr(Q + i), vr(x + 2), vr(x + 2)))
        s('v_fmac_f32 %s, %s, %s' % (vr(Q + i), vr(x + 3), vr(x + 3)))


def stats_publish(s, X, which, fast, pk=True, SQ=None, tiles=range(MT)):
    if SQ is None:
        S, Q = V.get(6, 1), V.get(6, 1)
    else:
        S, Q = SQ
    d = V.get(4)
    for i in tiles:
        stats_partial(s, X, S, Q, i, d, pk)
    s('v_add_u32 %s, %d, %s' % (vr(d + 1), 16 * which, vr(V_TAG)))
    if which == 0:
        s('v_add_u32 %s, %s, %s' % (vr(d + 3), sr(S_XCC), vr(V_TAG)))
    else:
        s('v_add_u32 %s, %d, %s' % (vr(d + 3), 16 * which, vr(V_TAG)))
    rs12(s, [S + i for i in range(6)], [Q + i for i in range(6)])
    s('v_cndmask_b32 %s, %s, %s, %s' % (vr(d), vr(S), vr(S + 2), sr(S_MSEL, 2)))
    s('v_cndmask_b32 %s, %s, %s, %s' % (vr(d + 2), vr(Q), vr(Q + 2), sr(S_MSEL, 2)))
    txt = ['s_mov_b32 %s, %d' % (sr(S_T0), WS_ST + (which == 2) * ST_SZ),
           'buffer_store_dwordx4 %s, %s, %s, %s offen {P}' % (vr(d, 4), vr(V_STW), sr(R_WS, 4), sr(S_T0)), 's_nop 1']
    if fast:
        dual(s, txt)
    else:
        s(*[x.replace('{P}', 'sc1') for x in txt])
    put((S, 6), (Q, 6), (d, 4))


def stats_loads(which, G):
    L = []
    for i in range(MT):
        L.append('s_mov_b32 %s, %d' % (sr(S_T0), WS_ST + (which == 2) * ST_SZ + 4096 * i))
        L.append('buffer_load_dwordx4 %s, %s, %s, %s offen sc1' % (vr(G + 4 * i, 4), vr(V_STR), sr(R_WS, 4), sr(S_T0)))
    return L


def stats_exp(s, which):
    e = V.get()
    s('v_add_u32 %s, %d, %s' % (vr(e), 16 * which, vr(V_TAG)),
      'v_cmp_gt_u32 vcc, 9, %s' % vr(V_N),
      'v_cndmask_b32 %s, 0, %s, vcc' % (vr(e), vr(e)))
    return e


def stats_finish(s, G):
    rs12(s, [G + 4 * i for i in range(6)], [G + 4 * i + 2 for i in range(6)])
    P = V.get(4, top=True)
    for k, src in ((0, G), (1, G + 8)):
        s('v_mul_f32 %s, 0x3ae38e39, %s' % (vr(P + 2 * k), vr(src)))
        s('v_mul_f32 %s, 0x3ae38e39, %s' % (vr(P + 2 * k + 1), vr(src + 2)))
    for k in range(2):
        s('v_fma_f32 %s, -%s, %s, %s' % (vr(P + 2 * k + 1), vr(P + 2 * k), vr(P + 2 * k), vr(P + 2 * k + 1)))
    for k in range(2):
        s('v_max_f32 %s, 0, %s' % (vr(P + 2 * k + 1), vr(P + 2 * k + 1)))
    return P


def bcast(s, dst, P, i):
    k, lane = tile_src(i)
    s('v_mov_b64_dpp %s, %s row_newbcast:%d row_mask:0xf bank_mask:0xf' % (vr(dst, 2), vr(P + 2 * k, 2), lane))


def ln_table(s, layer, G, RBG):
    P = stats_finish(s, G)
    put((G, 24))
    mu = [P, P + 2]
    va = [P + 1, P + 3]
    if layer == 0:
        rbf(s, mu + va)
        for r in va:
            s('v_add_f32 %s, 0x3727c5ac, %s' % (vr(r), vr(r)))
        rbf(s, va)
        for r in va:
            s('v_sqrt_f32 %s, %s' % (vr(r), vr(r)))
        rbf(s, va)
        for r in va:
            s('v_rcp_f32 %s, %s' % (vr(r), vr(r)))
        s('v_mov_b32 %s, %s' % (vr(OFF), vr(mu[0])), 'v_mov_b32 %s, %s' % (vr(OFF + 1), vr(mu[1])))
    else:
        for r in va:
            s('v_add_f32 %s, 0x3727c5ac, %s' % (vr(r), vr(r)))
        for r in va:
            s('v_rsq_f32 %s, %s' % (vr(r), vr(r)))
        s('v_add_f32 %s, %s, %s' % (vr(OFF), vr(OFF), vr(mu[0])), 'v_add_f32 %s, %s, %s' % (vr(OFF + 1), vr(OFF + 1), vr(mu[1])))
    with V.borrow(*HOMES):
        d = V.get(2)
    s('v_cndmask_b32 %s, %s, %s, %s' % (vr(d), vr(va[0]), vr(va[1]), sr(S_MSEL, 2)))
    s('v_cndmask_b32 %s, %s, %s, %s' % (vr(d + 1), vr(mu[0]), vr(mu[1]), sr(S_MSEL, 2)))
    s('v_mul_f32 %s, %s, %s' % (vr(d + 1), vr(d + 1), vr(d)))
    tk = s.mem('s_mov_b64 exec, %s' % sr(S_MACT, 2),
               'ds_write2_b32 %s, %s, %s offset0:0 offset1:2' % (vr(V_TABW), vr(d), vr(d + 1)),
               's_mov_b64 exec, -1')
    put((d, 2))
    return tk, P


def ln_rest(r, layer, P):
    b = V.get(2)
    tmp = V.get(4)
    for i in range(MT):
        x = BASE + 4 * i
        bcast(r, b, P, i)
        for k in range(2):
            r('v_pk_add_f32 %s, %s, %s op_sel:[0,0] op_sel_hi:[1,0] neg_lo:[0,1] neg_hi:[0,1]' % (vr(x + 2 * k, 2), vr(x + 2 * k, 2), vr(b, 2)))
        if layer == 0:
            for k in range(2):
                r('v_cvt_pk_bf16_f32 %s, %s, %s' % (vr(tmp + 2 * k), vr(x + 2 * k), vr(x + 2 * k + 1)))
            for rep in range(3):
                for k in range(2):
                    r('v_and_b32 %s, 0xffff0000, %s' % (vr(tmp + 2 * k + 1), vr(tmp + 2 * k)),
                      'v_lshlrev_b32 %s, 16, %s' % (vr(tmp + 2 * k), vr(tmp + 2 * k)))
                for k in range(2):
                    if rep == 0:
                        r('v_pk_mul_f32 %s, %s, %s op_sel:[0,1] op_sel_hi:[1,1]' % (vr(tmp + 2 * k, 2), vr(tmp + 2 * k, 2), vr(b, 2)))
                    elif rep == 1:
                        r('v_pk_mul_f32 %s, %s, %s' % (vr(tmp + 2 * k, 2), vr(tmp + 2 * k, 2), vr(V_DSK + 2 * k, 2)))
                    else:
                        r('v_pk_add_f32 %s, %s, %s' % (vr(x + 2 * k, 2), vr(x + 2 * k, 2), vr(tmp + 2 * k, 2)))
                if rep < 2:
                    for k in range(2):
                        r('v_cvt_pk_bf16_f32 %s, %s, %s' % (vr(tmp + 2 * k), vr(tmp + 2 * k), vr(tmp + 2 * k + 1)))
        else:
            for k in range(2):
                r('v_pk_fma_f32 %s, %s, %s, 1.0 op_sel:[0,1,0] op_sel_hi:[1,1,0]' % (vr(tmp + 2 * k, 2), vr(V_DSK + 2 * k, 2), vr(b, 2)))
            for k in range(2):
                r('v_pk_mul_f32 %s, %s, %s' % (vr(x + 2 * k, 2), vr(x + 2 * k, 2), vr(tmp + 2 * k, 2)))
    put((P, 4), (b, 2), (tmp, 4))


def a_reads(k, AF):
    s = Stream()
    kp, h = k >> 1, k & 1
    base = V_FA + h + (2 if kp >= 4 else 0)
    off = (kp - (4 if kp >= 4 else 0)) * BLK
    for i in range(MT):
        s('ds_read_b128 %s, %s offset:%d' % (vr(AF + (k & 1) * 24 + i * 4, 4), vr(base), off + i * 2048))
    return s


def b_mfmas(k, ACC, AF, ones=None):
    s = Stream()
    kp, h = k >> 1, k & 1
    if ones is not None:
        for mat in range(2):
            s('v_mfma_f32_16x16x32_bf16 %s, %s, %s, %s' % (vr(ones[1] + mat * 4, 4), vr(ones[0], 4), ar(WB(kp, h, mat), 4),
                                                          '0' if k == 0 else vr(ones[1] + mat * 4, 4)))
    for i in range(MT):
        if i % 3 == 0:
            s.touch(vr(AF + (k & 1) * 24 + i * 4, 12))
        for mat in range(2):
            d = ACC + (mat * MT + i) * 4
            s('v_mfma_f32_16x16x32_bf16 %s, %s, %s, %s' % (vr(d, 4), vr(AF + (k & 1) * 24 + i * 4, 4), ar(WB(kp, h, mat), 4),
                                                          '0' if k == 0 else vr(d, 4)))
    return s


def split(stream, n):
    g = stream.groups
    parts = []
    for i in range(n):
        p = Stream()
        p.groups = g[len(g) * i // n: len(g) * (i + 1) // n]
        parts.append(p)
    return parts


def ensure(sc, tok):
    for q in sc.sides:
        idx = [i for i, g in enumerate(q) if any((not isinstance(it, tuple)) and it.tok is tok for it in g)]
        if idx:
            for _ in range(idx[0] + 1):
                sc._emit(q.pop(0))


def gemm_b(a, ACC, AF, xtok, pre, side, ones=None, vm=None, need=None):
    sc = Sched(a)
    qr, qv, qs = sc.add(Stream()), sc.add(Stream()), sc.add(Stream())
    b = Stream()
    b.wait(xtok(0))
    b('s_barrier')
    b.extend(a_reads(0, AF))
    sc.run(b)
    for k in range(18):
        sc.flush(qr)
        if k == 9:
            print('side leftover at k', k, len(qs))
            sc.flush(qs)
        if need is not None:
            for tk in need.get(k, []):
                ensure(sc, tk)
        if pre[k].groups:
            for g in pre[k].groups:
                for it in g:
                    if isinstance(it, tuple) and it[0] == 'wait':
                        for tk in it[1]:
                            ensure(sc, tk)
            if any(not isinstance(it, tuple) for g in pre[k].groups for it in g):
                sc.flush()
            sc.run(pre[k])
        b = Stream()
        if k & 1 and k < 17:
            ensure(sc, xtok((k + 1) >> 1))
            b.wait(xtok((k + 1) >> 1))
            b('s_barrier')
            sides, sc.sides = sc.sides, []
            sc.run(b)
            sc.sides = sides
        if k < 17:
            qr.extend(a_reads(k + 1, AF).groups)
        if vm is not None:
            qv.extend(vm[k].groups)
        qs.extend(side[k].groups)
        sc.run(b_mfmas(k, ACC, AF, ones))
        if OPT['fine'] and k % 3 == 2:
            stamp(a, 'k%d' % k)
    print('gemm_b leftover', sc.pending(), 'model time', sc.t)
    sc.flush()


class Conv:
    pass


def conv_setup_k(s, cv, keep=False):
    s('s_lshl1_add_u32 %s, %s, %s' % (sr(S_T0), sr(S_PAIR), sr(S_B)),
      's_lshl_b32 %s, %s, 12' % (sr(S_T1), sr(S_T0)),
      's_add_u32 %s, %s, %s' % (sr(R_SK), sr(P_SSK), sr(S_T1)),
      's_addc_u32 %s, %s, 0' % (sr(R_SK + 1), sr(P_SSK + 1)),
      's_and_b32 %s, %s, 0xffff' % (sr(R_SK + 1), sr(R_SK + 1)),
      's_mov_b32 %s, 4096' % sr(R_SK + 2),
      's_mov_b32 %s, 0x20000' % sr(R_SK + 3))
    cv.SD = V.get(2, top=True)
    cv.HD = V.get(top=True)
    s('s_lshl_b32 %s, %s, 2' % (sr(S_T1), sr(S_PAIR)),
      'v_mov_b32 %s, %s' % (vr(cv.SD), sr(S_T1)),
      'global_load_dword %s, %s, %s' % (vr(cv.SD), vr(cv.SD), sr(P_SSD, 2)))
    s('v_add_u32 %s, %s, %s' % (vr(cv.HD), vr(V_N), vr(V_Q)),
      'v_subrev_u32 %s, 16, %s' % (vr(cv.HD), vr(cv.HD)),
      'v_lshlrev_b32 %s, 2, %s' % (vr(cv.HD), vr(cv.HD)),
      'buffer_load_dword %s, %s, %s, 0 offen' % (vr(cv.HD), vr(cv.HD), sr(R_SK, 4)))
    for c in range(2):
        s('s_mul_i32 %s, %s, %d' % (sr(S_T2), sr(S_B), KC_CH),
          's_mul_i32 %s, %s, %d' % (sr(S_T3), sr(S_A), (16 + 8320) if c == 0 else 8320),
          's_add_u32 %s, %s, %s' % (sr(S_T3), sr(S_T3), sr(S_T2)),
          's_add_u32 m0, %s, %d' % (sr(S_T3), L_KC + 64 + (0 if c == 0 else 16 + 4160)),
          's_lshl_b32 %s, %s, 3' % (sr(S_C), sr(S_A)),
          's_add_u32 %s, %s, %d' % (sr(S_C), sr(S_C), 4 * c))
        for part in range(4):
            cv.ktk = s.mem('buffer_load_dwordx4 %s, %s, %s offen offset:%d nt lds' % (vr(V_L16), sr(R_SK, 4), sr(S_C), part * 1024))


def conv_u_prep(s, cv):
    cv.UA = V.get(2, 1, top=True)
    cv.UE = V.get(top=True)
    cv.UN = V.get(top=True)
    cv.U = V.get(16, top=True)
    U, UA, UE = cv.U, cv.UA, cv.UE
    s('s_lshl1_add_u32 %s, %s, %s' % (sr(S_T0), sr(S_PAIR), sr(S_B)),
      's_mul_i32 %s, %s, %d' % (sr(S_T1), sr(S_T0), KVT_STR),
      's_mul_i32 %s, %s, %d' % (sr(S_T3), sr(S_A), 171 * 16),
      's_add_u32 %s, %s, %s' % (sr(S_T1), sr(S_T1), sr(S_T3)),
      's_add_u32 %s, %s, %d' % (sr(S_T1), sr(S_T1), WS_KVT + 10 * 16),
      'v_add_u32 %s, %s, %s' % (vr(UA), sr(S_T1), vr(V_L16)))
    s('s_sub_u32 %s, 44, %s' % (sr(S_T0), sr(S_A)),
      'v_cmp_gt_u32 vcc, %s, %s' % (sr(S_T0), vr(V_LANE)),
      'v_cndmask_b32 %s, %s, %s, vcc' % (vr(UA + 1), vr(V_OOB), vr(UA)),
      'v_cndmask_b32 %s, 0, %s, vcc' % (vr(UE), vr(V_TAG)))
    s('s_sub_u32 %s, 43, %s' % (sr(S_T0), sr(S_A)),
      'v_cmp_gt_u32 vcc, %s, %s' % (sr(S_T0), vr(V_LANE)),
      'v_cndmask_b32 %s, %s, %s, vcc' % (vr(cv.UN), vr(V_OOB), vr(UA)))
    cv.uloads = []
    for i in range(3):
        cv.uloads.append('buffer_load_dwordx4 %s, %s, %s, 0 offen offset:%d sc1' % (vr(U + 4 * i, 4), vr(UA + (i >> 1)), sr(R_WS, 4), 1024 * i))
    for i in range(3):
        cv.uloads.append('buffer_load_dword %s, %s, %s, 0 offen offset:%d sc1' % (vr(U + 12 + i), vr(UA if i < 2 else cv.UN), sr(R_WS, 4), 1024 * i + 16))
    cv.uchecks = [(U + 3, U + 7, V_TAG), (U + 11, None, UE)]


def conv_addr(s, cv):
    cv.ah, cv.az, cv.au, cv.vN, cv.vM = [V.get(top=True) for _ in range(5)]
    t, e = V.get(), V.get()
    ah, az, au, vN, vM = cv.ah, cv.az, cv.au, cv.vN, cv.vM
    s('v_mul_u32_u24 %s, 4160, %s' % (vr(ah), vr(V_Q)))
    s('v_min_u32 %s, 1, %s' % (vr(e), vr(V_Q)))
    s('v_lshl_add_u32 %s, %s, 4, %s' % (vr(ah), vr(e), vr(ah)))
    s('v_lshl_add_u32 %s, %s, 2, %s' % (vr(ah), vr(V_N), vr(ah)))
    s('s_mul_i32 %s, %s, %d' % (sr(S_T2), sr(S_B), KC_CH),
      's_add_u32 %s, %s, %d' % (sr(S_T3), sr(S_T2), L_KC),
      'v_add_u32 %s, %s, %s' % (vr(ah), sr(S_T3), vr(ah)))
    s('s_mul_i32 %s, %s, %d' % (sr(S_T2), sr(S_B), UC_CH),
      's_mul_i32 %s, %s, 4640' % (sr(S_T3), sr(S_A)),
      's_add_u32 %s, %s, %s' % (sr(S_T3), sr(S_T3), sr(S_T2)),
      'v_lshl_add_u32 %s, %s, 3, %s' % (vr(az), vr(V_LANE), sr(S_T3)))
    s('v_mul_u32_u24 %s, 12, %s' % (vr(au), vr(V_LANE)))
    s('s_mul_i32 %s, %s, %d' % (sr(S_T2), sr(S_B), UC_CH),
      's_mul_i32 %s, %s, %d' % (sr(S_T3), sr(S_A), 171 * 12),
      's_add_u32 %s, %s, %s' % (sr(S_T3), sr(S_T3), sr(S_T2)),
      'v_add_u32 %s, %s, %s' % (vr(au), sr(S_T3), vr(au)))
    s('v_add_u32 %s, 1, %s' % (vr(t), vr(V_N)))
    s('v_and_b32 %s, 3, %s' % (vr(e), vr(t)))
    s('v_mul_u32_u24 %s, 4160, %s' % (vr(vN), vr(e)))
    s('v_min_u32 %s, 1, %s' % (vr(e), vr(e)))
    s('v_lshrrev_b32 %s, 2, %s' % (vr(t), vr(t)))
    s('v_add3_u32 %s, %s, %s, %s' % (vr(t), vr(t), vr(e), vr(V_Q)))
    s('v_lshl_add_u32 %s, %s, 4, %s' % (vr(vN), vr(t), vr(vN)))
    s('s_mul_i32 %s, %s, %d' % (sr(S_T3), sr(S_B), KC_CH),
      's_lshl_b32 %s, %s, 8' % (sr(S_T1), sr(S_A)),
      's_add_u32 %s, %s, %s' % (sr(S_T3), sr(S_T3), sr(S_T1)),
      's_add_u32 %s, %s, %d' % (sr(S_T3), sr(S_T3), L_KC),
      'v_add_u32 %s, %s, %s' % (vr(vN), sr(S_T3), vr(vN)))
    s('v_and_b32 %s, 1, %s' % (vr(t), vr(V_N)))
    s('v_sub_u32 %s, 1, %s' % (vr(t), vr(t)))
    s('v_mul_u32_u24 %s, 4640, %s' % (vr(vM), vr(t)))
    s('v_lshrrev_b32 %s, 1, %s' % (vr(t), vr(V_N)))
    s('v_lshlrev_b32 %s, 6, %s' % (vr(t), vr(t)))
    s('v_sub_u32 %s, %s, %s' % (vr(vM), vr(vM), vr(t)))
    s('v_lshl_add_u32 %s, %s, 4, %s' % (vr(vM), vr(V_Q), vr(vM)))
    s('s_mul_i32 %s, %s, %d' % (sr(S_T2), sr(S_B), UC_CH),
      's_lshl_b32 %s, %s, 8' % (sr(S_T1), sr(S_A)),
      's_add_u32 %s, %s, %s' % (sr(S_T3), sr(S_T2), sr(S_T1)),
      's_add_u32 %s, %s, %d' % (sr(S_T3), sr(S_T3), L_UC + 448),
      'v_add_u32 %s, %s, %s' % (vr(vM), sr(S_T3), vr(vM)))
    return [t, e]


def conv_body(a, cv, side=None, pre_issued=True, early=None, release=True, last=None):
    U, HD = cv.U, cv.HD
    vN, vM = cv.vN, cv.vM
    a('ds_write_b32 %s, %s' % (vr(cv.ah), vr(HD)))
    a('ds_write_b64 %s, %s offset:%d' % (vr(cv.az), vr(V_ZERO, 2), L_UC + 4096))
    if early is not None:
        a.extend(early)
    poll(a, cv.uloads, cv.uchecks, pre_issued=pre_issued, sleep=OPT['slp2'] if pre_issued else OPT['slp'])
    a.touch(vr(U, 15))
    U1 = V.get(9, 1)
    for i in range(3):
        if i == 2:
            a('v_cmp_gt_u32 vcc, 43, %s' % vr(V_LANE), 's_mov_b64 exec, vcc')
        for k in range(3):
            a('ds_write_b32 %s, %s offset:%d' % (vr(cv.au), vr(U + 4 * i + k), L_UC - 8 + 768 * i + 4 * k))
            hi = U + 4 * i + k + 1 if k < 2 else U + 12 + i
            a('v_alignbit_b32 %s, %s, %s, 16' % (vr(U1 + 3 * i + k), vr(hi), vr(U + 4 * i + k)))
        for k in range(3):
            tk = a.mem('ds_write_b32 %s, %s offset:%d' % (vr(cv.au), vr(U1 + 3 * i + k), L_UC - 8 + 4640 + 768 * i + 4 * k))
    a('s_mov_b64 exec, -1')
    a.wait(tk, cv.ktk)
    a('s_barrier')
    put((U, 16), (U1, 9), HD, (cv.UA, 2), cv.UE, cv.UN)
    if release:
        put(cv.ah, cv.az, cv.au)
    stamp(a, 'conv_ld')
    if not pre_issued:
        astamp(a, 11)
    with V.borrow((GP, 12)):
        CA = [V.get(4) for _ in range(8)]
    FN, FM = [[V.get(4) for _ in range(8)] for _ in range(2)]
    AW = V.get(3, 1)
    t = V.get()
    rdN = lambda x, cc: 'ds_read_b128 %s, %s offset:%d' % (vr(FN[x], 4), vr(vN), 512 * x + 64 * cc)
    rdM = lambda x, cc: 'ds_read_b128 %s, %s offset:%d' % (vr(FM[x], 4), vr(vM), 512 * (7 - x) + 64 * cc)
    m = Stream()
    m(rdN(0, 0))
    for x in range(7, -1, -1):
        m(rdM(x, 0))
    m('v_lshlrev_b32 %s, 1, %s' % (vr(t), vr(V_N)))
    m('v_lshl_add_u32 %s, %s, 6, %s' % (vr(t), vr(V_Q), vr(t)))
    for j in range(3):
        m('v_add_u32 %s, %d, %s' % (vr(AW + j), j, vr(t)))
        m('v_mul_u32_u24 %s, 171, %s' % (vr(AW + j), vr(AW + j)))
        m('v_lshrrev_b32 %s, 9, %s' % (vr(AW + j), vr(AW + j)))
        m('v_add_u32 %s, %s, %s' % (vr(AW + j), vr(AW + j), vr(t)))
        m('s_mul_i32 %s, %s, %d' % (sr(S_T3), sr(S_WAVE), CO_W),
          'v_lshl_add_u32 %s, %s, 2, %s' % (vr(AW + j), vr(AW + j), sr(S_T3)))

    def stage(m, i):
        tk = None
        for r in range(4):
            c = 256 * i + 32 * (r >> 1) + (r & 1)
            tk = m.mem('ds_write_b32 %s, %s offset:%d' % (vr(AW + c % 3), vr(CA[i] + r), L_CO + 4 * (c + c // 3)))
        return tk

    for cc in range(4):
        if cc == 3:
            sc = Sched(a)
            sc.VM_GAP = 85
            if side is not None:
                qs_ = [sc.add(x) for x in side]
            sc.run(m)
            if side is not None:
                sc.flush(qs_[0])
            sc.VM_GAP = 30
            m = Stream()
            if last is not None:
                last(m, None)
        for aa in range(8):
            for dl in range(7 - aa, -1, -1):
                i = aa + dl
                z = cc == 0 and aa == 0
                m('v_mfma_f32_16x16x32_bf16 %s, %s, %s, %s' % (vr(CA[i], 4), vr(FM[dl], 4), vr(FN[aa], 4),
                                                              '0' if z else vr(CA[i], 4)))
                if cc == 0 and aa == 0 and dl > 0:
                    m(rdN(8 - dl, 0))
                if dl == 7 - aa:
                    if cc < 3:
                        m(rdM(dl, cc + 1))
                    elif last is not None:
                        last(m, FM[dl])
            if cc < 3:
                m(rdN(aa, cc + 1))
            else:
                if last is not None:
                    last(m, FN[aa])
                if 2 <= aa:
                    stage(m, aa - 2)
    stage(m, 6)
    cv.stk = stage(m, 7)
    sc.run(m)
    print('conv leftover', sc.pending(), 'model time', sc.t)
    sc.flush()
    put(*[(r, 4) for r in CA])
    if last is None:
        put(*[(r, 4) for r in FN + FM])
    put((AW, 3), t)
    if release:
        put(vN, vM)
    stamp(a, 'conv_mm')
    if not pre_issued:
        astamp(a, 12)


def conv_final(s, cv, Y0=None):
    SD = cv.SD
    ay, ak, ag = V.get(), V.get(), V.get()
    Y1 = [V.get(4) for _ in range(4)]
    own0 = Y0 is None
    if own0:
        Y0 = [V.get(4) for _ in range(4)]
    Ys = [Y0, Y1, Y1]
    KVs = [V.get(4), V.get(4)]
    D = V.get(6, 1)
    GO = V.get(4)
    t = V.get()
    s('v_lshlrev_b32 %s, 4, v0' % vr(ay))
    s('v_mul_u32_u24 %s, 6, v0' % vr(ak))
    s('v_sub_u32 %s, %d, %s' % (vr(ak), 4090, vr(ak)))
    s('v_and_b32 %s, -4, %s' % (vr(ak), vr(ak)))
    s('v_and_b32 %s, 1, v0' % vr(t))
    s('v_sub_u32 %s, 1, %s' % (vr(t), vr(t)))
    s('v_mul_u32_u24 %s, 4640, %s' % (vr(t), vr(t)))
    s('v_add_u32 %s, %s, %s' % (vr(ak), vr(ak), vr(t)))

    def reads(j):
        if j > 0:
            s('v_subrev_u32 %s, 1536, %s' % (vr(ak), vr(ak)))
        if j == 2:
            s('v_max_i32 %s, 0, %s' % (vr(ak), vr(ak)))
        for ch in range(2):
            for k in range(2):
                s('ds_read_b32 %s, %s offset:%d' % (vr(KVs[j & 1] + 2 * ch + k), vr(ak), L_UC + ch * UC_CH + 4 * k))
        for w in range(4):
            s('ds_read_b128 %s, %s offset:%d' % (vr(Ys[j][w], 4), vr(ay), L_CO + w * CO_W + j * 4096))

    reads(0)
    s('v_and_b32 %s, 0xffff0000, %s' % (vr(SD + 1), vr(SD)))
    s('v_lshlrev_b32 %s, 16, %s' % (vr(SD), vr(SD)))
    s('s_mul_i32 %s, %s, %d' % (sr(S_T1), sr(S_PAIR), G_STR),
      's_add_u32 %s, %s, %d' % (sr(S_T1), sr(S_T1), WS_G),
      'v_add_u32 %s, %s, %s' % (vr(ag), sr(S_T1), vr(ay)))
    s('v_mov_b32 %s, %s' % (vr(GO + 3), vr(V_TAG)))
    reads(1)
    for j in range(3):
        KV, Y = KVs[j & 1], Ys[j]
        if j > 0:
            s('v_add_u32 %s, 4096, %s' % (vr(ag), vr(ag)))
        if j == 2:
            s('v_cmp_gt_u32 vcc, 192, v0', 'v_cndmask_b32 %s, %s, %s, vcc' % (vr(ag), vr(V_OOB), vr(ag)))
        for ch in range(2):
            d = D + 3 * ch
            s('v_lshlrev_b32 %s, 16, %s' % (vr(d), vr(KV + 2 * ch + 1)))
            s('v_and_b32 %s, 0xffff0000, %s' % (vr(d + 1), vr(KV + 2 * ch)))
            s('v_lshlrev_b32 %s, 16, %s' % (vr(d + 2), vr(KV + 2 * ch)))
            for e in range(3):
                s('v_mul_f32 %s, %s, %s' % (vr(d + e), vr(d + e), vr(SD + ch)))
        for ch in range(2):
            d, y, y2 = D + 3 * ch, Y[2 * ch], Y[2 * ch + 1]
            for e in range(3):
                s('v_add_f32 %s, %s, %s' % (vr(y + e), vr(y + e), vr(y2 + e)))
            for e in range(3):
                s('v_cvt_pk_bf16_f32 %s, %s, %s' % (vr(d + e), vr(y + e), vr(d + e)))
        if j == 0:
            cv.mark = len(s.groups)
        if j == 1:
            reads(2)
        for ch in range(2):
            d = D + 3 * ch
            for e in range(3):
                s('v_lshlrev_b32 %s, 16, %s' % (vr(t), vr(d + e)))
                s('v_and_b32 %s, 0xffff0000, %s' % (vr(d + e), vr(d + e)))
                s('v_add_f32 %s, %s, %s' % (vr(d + e), vr(d + e), vr(t)))
        for e in range(3):
            s('v_cvt_pk_bf16_f32 %s, %s, %s' % (vr(GO + e), vr(D + e), vr(D + 3 + e)))
        s('buffer_store_dwordx4 %s, %s, %s, 0 offen sc1' % (vr(GO, 4), vr(ag), sr(R_WS, 4)))
    s('s_nop 1')
    return [ay, ak, ag, (D, 6), (GO, 4), t, (SD, 2)] + [(r, 4) for r in (Y0 if own0 else []) + Y1 + KVs]


ACC = V.get(48, top=True)
AF = V.get(48, top=True)
with V.borrow((GP, 12)):
    ONES = V.get(4)
    RBA = V.get(8)
xtk[1] = x_dma(a, 1, 0)
a('global_load_dwordx2 %s, %s, %s' % (vr(V_DSK, 2), vr(dad), sr(P_DSK, 2)))
def h_touch(st, ta):
    st('v_lshrrev_b32 %s, 3, %s' % (vr(ta), vr(V_LANE)),
       'v_mul_u32_u24 %s, %d, %s' % (vr(ta), 36864 - 1024, vr(ta)),
       'v_lshl_add_u32 %s, %s, 7, %s' % (vr(ta), vr(V_LANE), vr(ta)),
       'v_cmp_gt_u32 vcc, 48, %s' % vr(V_LANE),
       'v_cndmask_b32 %s, %s, %s, vcc' % (vr(ta), vr(V_OOB), vr(ta)))
    st('s_mul_i32 %s, %s, 216' % (sr(S_T2), sr(S_RB)),
       's_add_u32 %s, %s, %s' % (sr(S_T2), sr(S_T2), sr(S_PT)),
       's_lshl_b32 %s, %s, 10' % (sr(S_T2), sr(S_T2)),
       's_add_u32 %s, %s, %d' % (sr(S_T2), sr(S_T2), WS_H),
       'buffer_load_dword %s, %s, %s, %s offen %s ;junk' % (vr(V_JUNK), vr(ta), sr(R_WS, 4), sr(S_T2), TPOL))


if OPT['tpos'] == 0:
    h_touch(a, lad)
put(lad, dad)
tag_ready(a)
a('v_cmp_gt_u32 vcc, 9, %s' % vr(V_N), 'v_cndmask_b32 %s, 0, %s, vcc' % (vr(V_EXP9), vr(V_TAG)))
for i in range(4):
    a('v_mov_b32 %s, 0x3f803f80' % vr(ONES + i))
XS = V.get(12, 2, top=True)
s0 = Stream()
s0.wait(xtk[0])
s0('s_barrier')
for i in range(MT):
    s0('ds_read_b64 %s, %s offset:%d' % (vr(XS + 2 * i, 2), vr(V_WA), 2048 * i))
for i in range(MT):
    for k in range(2):
        s0('v_lshlrev_b32 %s, 16, %s' % (vr(BASE + 4 * i + 2 * k), vr(XS + 2 * i + k)))
        s0('v_and_b32 %s, 0xffff0000, %s' % (vr(BASE + 4 * i + 2 * k + 1), vr(XS + 2 * i + k)))
with V.borrow(*HOMES):
    stats_publish(s0, BASE, 0, False)
d1 = Stream()
xtk[2] = x_dma(d1, 2, 0)
rt0 = b_read(d1, 0)
btk[2] = b_dma(d1, 2)
a.weave(s0, d1)
stamp(a, 's0')
put((V_DUMMY, 4))
lp = Stream()
with V.borrow((WCV, 32)):
    lam_compute(lp, LAMT, False, LAM)
    L2, L4, L8, L48, L72, L96, L192, L288 = [V.get(2) for _ in range(8)]
for d_, x_, y_ in ((L2, LAM, LAM), (L4, L2, L2), (L8, L4, L4), (L12, L8, L4), (L24, L12, L12), (L48, L24, L24), (L72, L48, L24),
                   (L96, L48, L48), (L192, L96, L96), (L288, L192, L96), (L384, L192, L192)):
    cmul_plain(lp, d_, x_, y_)
for (dst, opts) in ((LQ96, (L96, L192, L288)), (LQ24, (L24, L48, L72))):
    lp('v_mov_b32 %s, 1.0' % vr(dst), 'v_mov_b32 %s, 0' % vr(dst + 1))
    for qi, o in enumerate(opts):
        lp('v_cmp_eq_u32 vcc, %d, %s' % (qi + 1, vr(V_Q)),
           'v_cndmask_b32 %s, %s, %s, vcc' % (vr(dst), vr(dst), vr(o)),
           'v_cndmask_b32 %s, %s, %s, vcc' % (vr(dst + 1), vr(dst + 1), vr(o + 1)))
for r in (L2, L4, L8, L48, L72, L96, L192, L288):
    put((r, 2))
lp('v_and_b32 %s, 0xffff0000, %s' % (vr(V_DSK + 3), vr(V_DSK + 1)))
lp('v_lshlrev_b32 %s, 16, %s' % (vr(V_DSK + 2), vr(V_DSK + 1)))
lp('v_and_b32 %s, 0xffff0000, %s' % (vr(V_DSK + 1), vr(V_DSK)))
lp('v_lshlrev_b32 %s, 16, %s' % (vr(V_DSK), vr(V_DSK)))
pre = {k: Stream() for k in range(18)}
side = {k: Stream() for k in range(18)}


class Pace:
    def __init__(self, per=3):
        self.vm = {k: Stream() for k in range(18)}
        self.k, self.n, self.per = 0, 0, per

    def add(self, st, earliest=0):
        if self.k < earliest:
            self.k, self.n = earliest, 0
        for g in st.groups:
            if self.n >= self.per:
                self.k, self.n = self.k + 1, 0
            self.vm[self.k].groups.append(g)
            self.n += sum(1 for it in g if not isinstance(it, tuple) and it.kind == 'vmem')
        return self.k


pc = Pace(OPT['per'])
need = {}
side[0].extend(lp)
for blk in range(3, 9):
    st = Stream()
    if blk > 3:
        rt = b_read(st, blk - 3)
        need[2 * (blk - 3)] = [rt]
    else:
        rt = rt0
    xtk[blk] = x_dma(st, blk, 0)
    st.wait(rt)
    btk[blk] = b_dma(st, blk)
    kk = pc.add(st)
    print('block', blk, 'issued by k', kk)
cv = Conv()
cfa, cfe, cfv = V.get(top=True), V.get(top=True), V.get(top=True)
side[0]('s_mul_i32 %s, %s, 43' % (sr(S_T1), sr(S_CG)),
         's_lshr_b32 %s, %s, 5' % (sr(S_T1), sr(S_T1)),
         's_mul_i32 %s, %s, %d' % (sr(S_T1), sr(S_T1), 18 * 64),
         's_add_u32 %s, %s, %d' % (sr(S_T1), sr(S_T1), WS_CPF),
         'v_lshl_add_u32 %s, %s, 6, %s' % (vr(cfa), vr(V_LANE), sr(S_T1)))
side[0]('v_cmp_gt_u32 vcc, 36, %s' % vr(V_LANE),
         'v_cndmask_b32 %s, %s, %s, vcc' % (vr(cfa), vr(V_OOB), vr(cfa)),
         'v_cndmask_b32 %s, 0, %s, vcc' % (vr(cfe), vr(V_TAG)))
cfl = 'buffer_load_dword %s, %s, %s, 0 offen sc1' % (vr(cfv), vr(cfa), sr(R_WS, 4))
side[0]('s_mul_i32 %s, %s, %d' % (sr(S_T0), sr(S_PT), 37 * 1024),
        's_add_u32 %s, %s, %d' % (sr(S_CPB), sr(S_T0), WS_CP))
ca_ = Stream()
carel = conv_addr(ca_, cv)
side[0].extend(ca_)
stt = Stream()
stt(cfl)
ta = carel[0]
if OPT['tpos'] == 1:
    h_touch(stt, ta)
stt('s_mov_b32 %s, %d' % (sr(S_T2), WS_ST + ST_SZ),
    'buffer_load_dword %s, %s, %s, %s offen sc1 ;junk' % (vr(V_JUNK), vr(V_STW), sr(R_WS, 4), sr(S_T2)))
stt('v_lshrrev_b32 %s, 1, %s' % (vr(ta), vr(V_LANE)),
    'v_min_u32 %s, 2, %s' % (vr(ta), vr(ta)),
    'v_mul_u32_u24 %s, %d, %s' % (vr(ta), NRB * 256, vr(ta)),
    'v_and_b32 %s, 1, %s' % (vr(carel[1]), vr(V_LANE)),
    'v_lshl_add_u32 %s, %s, 7, %s' % (vr(ta), vr(carel[1]), vr(ta)),
    's_lshl_b32 %s, %s, 8' % (sr(S_T2), sr(S_RB)),
    's_add_u32 %s, %s, %d' % (sr(S_T2), sr(S_T2), WS_HF),
    'buffer_load_dword %s, %s, %s, %s offen sc1 ;junk' % (vr(V_JUNK), vr(ta), sr(R_WS, 4), sr(S_T2)))
with V.borrow(*HOMES):
    G0 = V.get(24)
xe = V.get()
side[0]('v_add_u32 %s, %s, %s' % (vr(xe), sr(S_XCC), vr(V_TAG)),
        'v_cmp_gt_u32 vcc, 9, %s' % vr(V_N),
        'v_cndmask_b32 %s, 0, %s, vcc' % (vr(xe), vr(xe)))
gl = stats_loads(0, G0)
st = Stream()
for i in range(0, 12, 2):
    st(gl[i], gl[i + 1])
print('gather by k', pc.add(st, 9))
kvm = KVm()
st = Stream()
with V.borrow(*HOMES):
    kv_dma(st, kvm)
print('kv dma by k', pc.add(st, 9))
print('touch by k', pc.add(stt))
for kp, k in ((6, 10), (7, 12), (8, 13)):
    need[2 * kp] = [b_read(side[k], kp)]
lastb = need[16][0]


def s0_poll(s):
    p = Stream()
    L, Lc, Lr = newlabel('poll'), newlabel('pollc'), newlabel('pollr')
    acc = V.get(2, 1)
    p.touch(vr(G0, 24))
    p('v_xor_b32 %s, %s, %s' % (vr(acc), vr(G0 + 1), vr(V_EXP9)))
    for i in range(MT):
        if i:
            p('v_bitop3_b32 %s, %s, %s, %s bitop3:0xf6' % (vr(acc), vr(acc), vr(G0 + 4 * i + 1), vr(V_EXP9)))
        p('v_bitop3_b32 %s, %s, %s, %s bitop3:0xf6' % (vr(acc), vr(acc), vr(G0 + 4 * i + 3), vr(xe)))
    p('v_cmp_ne_u32 vcc, 0, %s' % vr(acc))
    p('s_mov_b32 %s, %d' % (sr(S_FAST), 0 if OPT['slow'] else 1))
    p('s_cmp_lg_u64 vcc, 0')
    p('s_cbranch_scc1 %s' % L)
    p.label(Lc)
    s.join(p)
    tail.label(L)
    tail('s_mov_b32 %s, %d' % (sr(S_SPIN), SPIN))
    tail.label(Lr)
    for t in gl:
        tail(t)
    tail('s_waitcnt vmcnt(0)')
    tail('v_mov_b32 %s, 0' % vr(acc))
    for i in range(MT):
        tail('v_sub_u32 %s, %s, %s' % (vr(acc + 1), vr(G0 + 4 * i + 3), vr(V_EXP9)))
        tail('v_lshrrev_b32 %s, 4, %s' % (vr(acc + 1), vr(acc + 1)))
        tail('v_or_b32 %s, %s, %s' % (vr(acc), vr(acc), vr(acc + 1)))
        tail('v_bitop3_b32 %s, %s, %s, %s bitop3:0xf6' % (vr(acc), vr(acc), vr(G0 + 4 * i + 1), vr(V_EXP9)))
    tail('v_cmp_ne_u32 vcc, 0, %s' % vr(acc))
    tail('s_sub_u32 %s, %s, 1' % (sr(S_SPIN), sr(S_SPIN)))
    tail('s_cselect_b64 vcc, 0, vcc')
    tail('s_cmp_lg_u64 vcc, 0')
    tail('s_cbranch_scc1 %s' % Lr)
    tail('v_cmp_ne_u32 vcc, %s, %s' % (vr(G0 + 3), vr(xe)))
    tail('s_cmp_eq_u64 vcc, 0')
    tail('s_cselect_b32 %s, %d, 0' % (sr(S_FAST), 0 if OPT['slow'] else 1))
    tail('s_branch %s' % Lc)
    put((acc, 2))


s0_poll(side[14])
ttk, LNP0 = ln_table(side[14], 0, G0, None)
put(xe)
pre[15].wait(lastb)
NCP0 = OPT['ncp0']


def WC(s, j):
    idx = s * 4 + j
    if idx < 28:
        return ar(144 + idx * 4, 4)
    return vr(WCV + (idx - 28) * 4, 4)


def cp_load(s_, s, j):
    ld = 'buffer_load_dwordx4 %s, %s, %s, %s offen offset:%d sc1' % (WC(s, j), vr(V_L16), sr(R_WS, 4), sr(S_CPB), j * 1024)
    if j == 3:
        s_(ld, 's_add_u32 %s, %s, 4096' % (sr(S_CPB), sr(S_CPB)))
    else:
        s_(ld)


put((V_DB, 2), (V_DX, 3))
st = Stream()
conv_setup_k(st, cv)
kst = st
gemm_b(a, ACC, AF, lambda s: xtk[s], pre, side, ones=(ONES, RBA), vm=pc.vm, need=need)
a.wait(ttk)
a('s_barrier')
a('v_mov_b32 %s, %s' % (vr(RB), vr(RBA)))
a('v_mov_b32 %s, %s' % (vr(RB + 1), vr(RBA + 4)))
put((ONES, 4), (RBA, 8))
put(*kvm.rel)
put(*carel)
put((V_FB, 2))
stamp(a, 'gemmB1')


def scan_phase(a, layer, ACC, AF, mid=None, x1=None, x2=None):
    NJ = 2 * MT
    re = lambda j: ACC + (j >> 1) * 4 + (j & 1) * 2
    im = lambda j: ACC + 4 * MT + (j >> 1) * 4 + (j & 1) * 2
    TB = AF
    for j in range(NJ):
        a('ds_read_b128 %s, %s offset:%d' % (vr(TB + 4 * j, 4), vr(V_TABR), 16 * j))

    def prescale(j):
        a('v_pk_mul_f32 %s, %s, %s' % (vr(re(j), 2), vr(re(j), 2), vr(TB + 4 * j, 2)))
        a('v_pk_mul_f32 %s, %s, %s' % (vr(im(j), 2), vr(im(j), 2), vr(TB + 4 * j, 2)))
        a('v_pk_fma_f32 %s, %s, %s, %s op_sel:[0,0,0] op_sel_hi:[1,0,1] neg_lo:[1,0,0] neg_hi:[1,0,0]' %
          (vr(re(j), 2), vr(TB + 4 * j + 2, 2), vr(RB, 2), vr(re(j), 2)))
        a('v_pk_fma_f32 %s, %s, %s, %s op_sel:[0,1,0] op_sel_hi:[1,1,1] neg_lo:[1,0,0] neg_hi:[1,0,0]' %
          (vr(im(j), 2), vr(TB + 4 * j + 2, 2), vr(RB, 2), vr(im(j), 2)))

    def step(dr, di, pr, pi, br, bi):
        a('v_pk_fma_f32 %s, %s, %s, %s op_sel:[0,0,0] op_sel_hi:[1,0,1]' % (vr(dr, 2), vr(pr, 2), vr(LAM, 2), vr(br, 2)))
        a('v_pk_fma_f32 %s, %s, %s, %s op_sel:[0,0,0] op_sel_hi:[1,0,1]' % (vr(di, 2), vr(pi, 2), vr(LAM, 2), vr(bi, 2)))
        a('v_pk_fma_f32 %s, %s, %s, %s op_sel:[0,1,0] op_sel_hi:[1,1,1] neg_lo:[1,0,0] neg_hi:[1,0,0]' %
          (vr(dr, 2), vr(pi, 2), vr(LAM, 2), vr(dr, 2)))
        a('v_pk_fma_f32 %s, %s, %s, %s op_sel:[0,1,0] op_sel_hi:[1,1,1]' % (vr(di, 2), vr(pr, 2), vr(LAM, 2), vr(di, 2)))

    with V.borrow(*HOMES):
        E = V.get(8)
        pub = V.get(4)
    prescale(0)
    pr, pi = re(0), im(0)
    for j in range(1, NJ):
        prescale(j)
        dr, di = E + (j & 1) * 4, E + (j & 1) * 4 + 2
        step(dr, di, pr, pi, re(j), im(j))
        pr, pi = dr, di
        if x1 is not None and j % 3 == 1:
            x1(a)
    EA, F = V.get(2), V.get(2)
    a('v_mov_b32 %s, %s' % (vr(EA), vr(pr)))
    a('v_mov_b32 %s, %s' % (vr(EA + 1), vr(pi)))
    a('v_mov_b32 %s, %s' % (vr(F), vr(pr + 1)))
    a('v_mov_b32 %s, %s' % (vr(F + 1), vr(pi + 1)))
    FA = E
    cfma(a, FA, EA, L12, F)
    a('v_mov_b64 %s, %s' % (vr(FA + 2, 2), vr(FA, 2)))
    a('v_mov_b32 %s, %s' % (vr(pub + 1), vr(V_TAG)))
    a('v_mov_b32 %s, %s' % (vr(pub + 3), vr(V_TAG)))
    a('v_permlane16_swap_b32 %s, %s' % (vr(FA), vr(FA + 2)))
    a('v_permlane16_swap_b32 %s, %s' % (vr(FA + 1), vr(FA + 3)))
    a('s_lshl_b32 %s, %s, 13' % (sr(S_T0), sr(S_PT)))
    a('v_mov_b64 %s, %s' % (vr(FA + 4, 2), vr(FA, 2)))
    a('v_mov_b64 %s, %s' % (vr(FA + 6, 2), vr(FA + 2, 2)))
    a('s_add_u32 %s, %s, %d' % (sr(S_T0), sr(S_T0), WS_E + layer * 36 * 8192))
    for k in range(4):
        a('v_permlane32_swap_b32 %s, %s' % (vr(FA + k), vr(FA + 4 + k)))
    cfma(a, FA + 2, FA, L24, FA + 2)
    cfma(a, FA + 4, FA + 2, L24, FA + 4)
    cfma(a, FA + 6, FA + 4, L24, FA + 6)
    a('v_mov_b32 %s, %s' % (vr(pub), vr(FA + 6)))
    a('v_mov_b32 %s, %s' % (vr(pub + 2), vr(FA + 7)))
    a('buffer_store_dwordx4 %s, %s, %s, %s offen sc1' % (vr(pub, 4), vr(V_EW), sr(R_WS, 4), sr(S_T0)))
    stamp(a, 'e_pub%d' % layer)
    PQ = F
    a('v_mov_b32 %s, 0' % vr(PQ))
    a('v_mov_b32 %s, 0' % vr(PQ + 1))
    for qi in range(1, 4):
        a('v_cmp_eq_u32 vcc, %d, %s' % (qi, vr(V_Q)),
          'v_cndmask_b32 %s, %s, %s, vcc' % (vr(PQ), vr(PQ), vr(FA + 2 * qi - 2)),
          'v_cndmask_b32 %s, %s, %s, vcc' % (vr(PQ + 1), vr(PQ + 1), vr(FA + 2 * qi - 1)))
    put((pub, 4), (E, 8), (AF, 48))
    NL = 6
    loads, checks, box = [], [], []

    def mk(cs):
        CG_ = V.get(4 * NL)
        AD, EX = V.get(NL, 1), V.get(NL, 1)
        box.extend([CG_, AD, EX])
        cs('s_lshl_b32 %s, %s, 13' % (sr(S_T0), sr(S_PT)),
           's_add_u32 %s, %s, %d' % (sr(S_T0), sr(S_T0), WS_E + layer * 36 * 8192),
           'v_add_u32 %s, %s, %s' % (vr(EX), sr(S_T0), vr(V_ER)))
        for j in range(NL - 1, -1, -1):
            cs('v_subrev_u32 %s, %d, %s' % (vr(AD + j), 1024 * j, vr(EX)),
               'v_cmp_le_i32 vcc, %d, %s' % (1024 * j, vr(V_ER)),
               'v_cndmask_b32 %s, %s, %s, vcc' % (vr(AD + j), vr(V_OOB), vr(AD + j)),
               'v_cndmask_b32 %s, 0, %s, vcc' % (vr(EX + j), vr(V_TAG)))
        for j in range(NL):
            loads.append('buffer_load_dwordx4 %s, %s, %s, 0 offen sc1' % (vr(CG_ + 4 * j, 4), vr(AD + j), sr(R_WS, 4)))
            checks.append((CG_ + 4 * j + 1, CG_ + 4 * j + 3, EX + j))
        for l_ in loads:
            cs(l_)

    post = mid(a, mk)
    CG_, AD, EX = box
    poll(a, loads, checks, pre_issued=True)
    stamp(a, 'carry%d' % layer)
    if post is not None:
        a.extend(post)
    put((AD, NL), (EX, NL))
    for j in range(NL):
        a('v_mov_b32 %s, %s' % (vr(CG_ + 4 * j + 1), vr(CG_ + 4 * j + 2)))
    for j in range(NL - 2, -1, -1):
        cfma(a, CG_ + 4 * j, CG_ + 4 * j + 4, L384, CG_ + 4 * j)
    H, Y = V.get(2), V.get(2)
    cmul(a, H, CG_, LQ96)
    for sw in ('v_permlane32_swap_b32', 'v_permlane16_swap_b32'):
        a('v_mov_b64 %s, %s' % (vr(Y, 2), vr(H, 2)))
        a('%s %s, %s' % (sw, vr(H), vr(Y)))
        a('%s %s, %s' % (sw, vr(H + 1), vr(Y + 1)))
        a('v_pk_add_f32 %s, %s, %s' % (vr(H, 2), vr(H, 2), vr(Y, 2)))
    cfma(a, PQ, H, LQ24, PQ)
    cfma(a, EA, PQ, L12, EA)
    a('v_mov_b32 %s, %s' % (vr(H), vr(PQ)))
    a('v_mov_b32 %s, %s' % (vr(H + 1), vr(EA)))
    a('v_mov_b32 %s, %s' % (vr(Y), vr(PQ + 1)))
    a('v_mov_b32 %s, %s' % (vr(Y + 1), vr(EA + 1)))
    pr, pi = H, Y
    PK = V.get(4)
    HO = CG_
    tk = None
    for j in range(NJ):
        step(re(j), im(j), pr, pi, re(j), im(j))
        pr, pi = re(j), im(j)
        pk = PK + (j & 1) * 2
        for hf in range(2):
            a('v_cvt_pk_bf16_f32 %s, %s, %s' % (vr(pk + hf), vr(re(j) + hf), vr(im(j) + hf)))
        tk = a.mem('ds_write_b32 %s, %s offset:%d' % (vr(V_HW), vr(pk), (j >> 1) * 1024 + (j & 1) * 128),
                   'ds_write_b32 %s, %s offset:%d' % (vr(V_HW), vr(pk + 1), (j >> 1) * 1024 + (j & 1) * 128 + 64))
        if j & 1:
            a('ds_read_b128 %s, %s offset:%d' % (vr(HO + 4 * (j >> 1), 4), vr(V_HR), (j >> 1) * 1024))
        elif x2 is not None and j < 10:
            x2(a)
    a('s_mul_i32 %s, %s, 216' % (sr(S_T0), sr(S_RB)))
    a('s_add_u32 %s, %s, %s' % (sr(S_T0), sr(S_T0), sr(S_PT)))
    a('s_lshl_b32 %s, %s, 10' % (sr(S_T0), sr(S_T0)))
    txt = []
    for i in range(MT):
        txt.append('s_add_u32 %s, %s, %d' % (sr(S_T1), sr(S_T0), WS_H + layer * H_SZ + i * 36864))
        txt.append('buffer_store_dwordx4 %s, %s, %s, %s offen {P}' % (vr(HO + 4 * i, 4), vr(V_L16), sr(R_WS, 4), sr(S_T1)))
    if OPT['fine']:
        stamp(a, 'pass2')
    tk = dual(a, txt, touch=[vr(HO, 24)])
    a('s_lshl2_add_u32 %s, %s, %s' % (sr(S_T0), sr(S_RB), sr(S_WAVE)))
    a('s_lshl4_add_u32 %s, %s, %s' % (sr(S_T0), sr(S_T0), sr(S_CG)))
    a('s_lshl_b32 %s, %s, 2' % (sr(S_T0), sr(S_T0)))
    a('s_add_u32 %s, %s, %d' % (sr(S_T0), sr(S_T0), WS_HF + layer * NRB * 256))
    return tk, [(EA, 2), (F, 2), (H, 2), (Y, 2), (PK, 4), (CG_, 4 * NL), (ACC, 48)]


def mid0(a, mk):
    put((BASE, 24))
    sd, s2, lr, ks = Stream(), Stream(), Stream(), Stream()
    poll(sd, [cfl], [(cfv, None, cfe)], pre_issued=True, sleep=6)
    if OPT['tpos'] == 2:
        h_touch(a, cfe_ := V.get())
        put(cfe_)
    for idx in range(OPT['ncp']):
        cp_load(sd, idx // 4, idx % 4)
    mk(s2)
    with V.borrow(*HOMES):
        kv_main(lr, kvm, ks)
    lr = weave(lr, sd, 0.15, 1.0)
    lr = weave(lr, s2, 0.55, 0.75)
    for i_, p_ in enumerate(split(lr, 8)):
        a.extend(p_)
        if OPT['fine'] > 1:
            stamp(a, 'kq%d' % i_)
    if OPT['fine']:
        stamp(a, 'kvcore')
    a.extend(ks)
    put(cfa, cfe, cfv)
    V.claim(WCV, 32)
    conv_u_prep(a, cv)
    stamp(a, 'kv')
    return None


def ln_rest0_plain(r, P):
    b, tmp = V.get(2), V.get(4)
    for i in range(MT):
        x = BASE + 4 * i
        k_, lane = tile_src(i)
        for e in range(2):
            r('v_mov_b32_dpp %s, %s row_newbcast:%d row_mask:0xf bank_mask:0xf' % (vr(b + e), vr(P + 2 * k_ + e), lane))
        for k in range(2):
            r('v_lshlrev_b32 %s, 16, %s' % (vr(x + 2 * k), vr(XS + 2 * i + k)))
            r('v_and_b32 %s, 0xffff0000, %s' % (vr(x + 2 * k + 1), vr(XS + 2 * i + k)))
        for k in range(4):
            r('v_sub_f32 %s, %s, %s' % (vr(x + k), vr(x + k), vr(b)))
        for k in range(2):
            r('v_cvt_pk_bf16_f32 %s, %s, %s' % (vr(tmp + 2 * k), vr(x + 2 * k), vr(x + 2 * k + 1)))
        for rep in range(3):
            for k in range(2):
                r('v_and_b32 %s, 0xffff0000, %s' % (vr(tmp + 2 * k + 1), vr(tmp + 2 * k)))
                r('v_lshlrev_b32 %s, 16, %s' % (vr(tmp + 2 * k), vr(tmp + 2 * k)))
            for k in range(4):
                if rep == 0:
                    r('v_mul_f32 %s, %s, %s' % (vr(tmp + k), vr(tmp + k), vr(b + 1)))
                elif rep == 1:
                    r('v_mul_f32 %s, %s, %s' % (vr(tmp + k), vr(tmp + k), vr(V_DSK + k)))
                else:
                    r('v_add_f32 %s, %s, %s' % (vr(x + k), vr(x + k), vr(tmp + k)))
            if rep < 2:
                for k in range(2):
                    r('v_cvt_pk_bf16_f32 %s, %s, %s' % (vr(tmp + 2 * k), vr(tmp + 2 * k), vr(tmp + 2 * k + 1)))
    return [(b, 2), (tmp, 4), (P, 4), (XS, 12)]


def hflag_prep(s, layer):
    fa, fv = V.get(), V.get()
    s('s_lshl2_add_u32 %s, %s, %s' % (sr(S_T1), sr(S_RB), sr(S_WAVE)),
      's_lshl_b32 %s, %s, 6' % (sr(S_T1), sr(S_T1)),
      's_add_u32 %s, %s, %d' % (sr(S_T1), sr(S_T1), WS_HF + layer * NRB * 256),
      'v_lshl_add_u32 %s, %s, 2, %s' % (vr(fa), vr(V_N), sr(S_T1)))
    s('v_cmp_gt_u32 vcc, 9, %s' % vr(V_N),
      'v_cndmask_b32 %s, %s, %s, vcc' % (vr(fa), vr(V_OOB), vr(fa)))
    s('s_mul_i32 %s, %s, 216' % (sr(S_T1), sr(S_RB)),
      's_add_u32 %s, %s, %s' % (sr(S_T1), sr(S_T1), sr(S_WAVE)),
      's_lshl_b32 %s, %s, 10' % (sr(S_T1), sr(S_T1)),
      's_add_u32 %s, %s, %d' % (sr(S_HB), sr(S_T1), WS_H + layer * H_SZ))
    fl = 'buffer_load_dword %s, %s, %s, 0 offen sc1' % (vr(fv), vr(fa), sr(R_WS, 4))
    return fa, fv, fl


def hload_next(st, reg):
    st('buffer_load_dwordx4 %s, %s, %s, %s offen sc1' % (vr(reg, 4), vr(V_L16), sr(R_WS, 4), sr(S_HB)),
       's_add_u32 %s, %s, 4096' % (sr(S_HB), sr(S_HB)))


cpn = [0, OPT['ncp']]
kparts = split(kst, 4)
kx = lambda st: st.extend(kparts.pop(0))


def cpx(which, lim):
    def f(st):
        if cpn[which] < lim:
            cp_load(st, cpn[which] // 4, cpn[which] % 4)
            cpn[which] += 1
    return f


htk, hrel = scan_phase(a, 0, ACC, AF, mid0, kx, cpx(1, OPT['ncp2']))
assert cpn[1] == OPT['ncp2'] and not kparts
put(*hrel)
a('s_mov_b32 %s, %s' % (sr(S_C), sr(S_T0)))
for l_ in cv.uloads:
    a(l_)
for r_ in range(BASE, BASE + 24):
    V.free.remove(r_)
V.claim(V_PW, 4)
t = V.get()
a('v_mul_u32_u24 %s, %d, %s' % (vr(V_PW), PART_ROW, vr(V_N)))
a('v_lshl_add_u32 %s, %s, 4, %s' % (vr(V_PW), vr(V_Q), vr(V_PW)))
a('s_mul_i32 %s, %s, %d' % (sr(S_T0), sr(S_WAVE), PART_W))
a('v_add_u32 %s, %s, %s' % (vr(V_PW), sr(S_T0), vr(V_PW)))
a('s_lshl_b32 %s, %s, 2' % (sr(S_T0), sr(S_WAVE)))
a('v_add_u32 %s, %s, %s' % (vr(t), sr(S_T0), vr(V_Q)))
a('v_mul_u32_u24 %s, %d, %s' % (vr(V_PR), PART_ROW, vr(t)))
a('v_lshl_add_u32 %s, %s, 4, %s' % (vr(V_PR), vr(V_N), vr(V_PR)))
PH = 12 * PART_W
a('v_add_u32 %s, %d, %s' % (vr(V_PW2), PH, vr(V_PW)))
a('v_add_u32 %s, %d, %s' % (vr(V_PR2), PH, vr(V_PR)))
put(t)
a('s_barrier')
if OPT['fine']:
    stamp(a, 'ubar')
hf = Stream()
hf.wait(htk)
dual(hf, flag_texts(sr(S_C), '{P}'))
stamp(hf, 'h_pub0')
sd, lr = Stream(), Stream()
for idx in range(OPT['ncp2'], 36):
    cp_load(sd, idx // 4, idx % 4)
hfa, hfv, hfl = hflag_prep(sd, 0)
sd(hfl)
for i in range(MT):
    for k in range(2):
        hf('v_lshlrev_b32 %s, 16, %s' % (vr(BASE + 4 * i + 2 * k), vr(XS + 2 * i + k)))
        hf('v_and_b32 %s, 0xffff0000, %s' % (vr(BASE + 4 * i + 2 * k + 1), vr(XS + 2 * i + k)))
put((XS, 12))
ln_rest(hf, 0, LNP0)
HB0 = []


def last0(m, reg):
    if reg is None:
        poll(m, [hfl], [(hfv, None, V_EXP9)], pre_issued=True)
    else:
        HB0.append(reg)
        hload_next(m, reg)


conv_body(a, cv, [sd], True, hf, True, last0)
put(hfa, hfv)


def g_fetch_streams():
    s1, s2 = Stream(), Stream()
    fa, u, u2 = V.get(), V.get(), V.get()
    D = V.get(16)
    s1('v_lshrrev_b32 %s, 3, %s' % (vr(fa), vr(V_LANE)))
    s1('v_mul_u32_u24 %s, %d, %s' % (vr(fa), G_STR - 128, vr(fa)))
    s1('s_mul_i32 %s, %s, %d' % (sr(S_T1), sr(S_CG), 32 * G_STR),
       's_lshl2_add_u32 %s, %s, %s' % (sr(S_T2), sr(S_RB), sr(S_WAVE)),
       's_lshl_b32 %s, %s, 7' % (sr(S_T2), sr(S_T2)),
       's_add_u32 %s, %s, %s' % (sr(S_T1), sr(S_T1), sr(S_T2)),
       's_add_u32 %s, %s, %d' % (sr(S_T1), sr(S_T1), WS_G),
       'v_add3_u32 %s, %s, %s, %s' % (vr(fa), vr(fa), vr(V_L16), sr(S_T1)))
    loads = []
    for i in range(4):
        loads.append('s_mov_b32 %s, %d' % (sr(S_T1), 8 * i * G_STR))
        loads.append('buffer_load_dwordx4 %s, %s, %s, %s offen sc1' % (vr(D + 4 * i, 4), vr(fa), sr(R_WS, 4), sr(S_T1)))
    for i in range(4):
        s1(loads[2 * i], loads[2 * i + 1])
    s1('v_and_b32 %s, 1, %s' % (vr(u), vr(V_Q)))
    s1('v_lshlrev_b32 %s, 6, %s' % (vr(u), vr(u)))
    s1('v_mul_u32_u24 %s, 272, %s' % (vr(u2), vr(V_N)))
    s1('v_add3_u32 %s, %s, %s, %s' % (vr(u), vr(u), vr(u2), sr(S_RINGW)))
    s1('v_lshrrev_b32 %s, 1, %s' % (vr(u2), vr(V_Q)))
    s1('v_lshl_add_u32 %s, %s, 2, %s' % (vr(u), vr(u2), vr(u)))
    s1('v_lshl_add_u32 %s, %s, 2, %s' % (vr(u2), vr(u2), vr(u)))
    poll(s2, loads, [(D + 3, D + 7, V_TAG), (D + 11, D + 15, V_TAG)], pre_issued=True, sleep=4)
    s2('v_lshlrev_b32 %s, 4, %s' % (vr(fa), vr(V_Q)))
    s2('v_add3_u32 %s, %s, %s, %s' % (vr(fa), vr(fa), vr(V_L16), sr(S_RINGW)))
    for i in range(4):
        s2('ds_write_b128 %s, %s offset:%d' % (vr(fa), vr(D + 4 * i, 4), 1088 * i))
    for i, o in enumerate((0, 2, 5, 8, 10, 13)):
        s2('ds_read2_b32 %s, %s offset0:%d offset1:%d' % (vr(GP + 2 * i, 2), vr(u2 if i in (1, 4) else u), o, 32 + o))
    return s1, s2, [fa, u, u2, (D, 16)]


def gemm_c(a, layer, HB=None):
    NF = 16
    if HB is None:
        a.extend(hq)
        poll(a, [hfl], [(hfv, None, V_EXP9)], pre_issued=True)
        stamp(a, 'h_flag%d' % layer)
        put(hfa, hfv)
        HB = [V.get(4, top=True) for _ in range(NF)]
        for f in range(NF):
            hload_next(a, HB[f])
    CA = [V.get(4, top=True) for _ in range(8)]
    hb = lambda i, s: HB[(i * 9 + s) % NF]
    slot = lambda i: (i + 4) % 6

    def pwrite(st, i, js=range(4)):
        for j in js:
            tk = st.mem('ds_write_b128 %s, %s offset:%d' % (vr(V_PW if slot(i) < 3 else V_PW2), vr(CA[(i & 1) * 4 + j], 4),
                                                            L_IMG + (slot(i) % 3) * 4 * PART_W + j * 64))
        return tk

    def preduce(st, i, P):
        for w in range(4):
            st('ds_read_b128 %s, %s offset:%d' % (vr(P[w], 4), vr(V_PR if slot(i) < 3 else V_PR2), L_IMG + ((slot(i) % 3) * 4 + w) * PART_W))

    def padd(st, i, P, pk):
        x = BASE + 4 * i
        if pk:
            for k in range(2):
                st('v_pk_add_f32 %s, %s, %s' % (vr(P[0] + 2 * k, 2), vr(P[0] + 2 * k, 2), vr(P[1] + 2 * k, 2)))
                st('v_pk_add_f32 %s, %s, %s' % (vr(P[2] + 2 * k, 2), vr(P[2] + 2 * k, 2), vr(P[3] + 2 * k, 2)))
                st('v_pk_add_f32 %s, %s, %s' % (vr(x + 2 * k, 2), vr(x + 2 * k, 2), vr(P[0] + 2 * k, 2)))
                st('v_pk_add_f32 %s, %s, %s' % (vr(x + 2 * k, 2), vr(x + 2 * k, 2), vr(P[2] + 2 * k, 2)))
        else:
            for w in range(4):
                for k in range(4):
                    st('v_add_f32 %s, %s, %s' % (vr(x + k), vr(x + k), vr(P[w] + k)))

    sc = Sched(a)
    sc.VM_GAP = 20
    qp, qs = sc.add(Stream()), sc.add(Stream())
    if layer == 0:
        a.wait(cv.stk)
        cf_ = Stream()
        with V.borrow((GP, 12)):
            frel = conv_final(cf_, cv, CA[4:8])
        qs.extend(cf_.groups)
        nrest = len(cf_.groups) - cv.mark
        put(*frel)
    a('s_barrier')
    S, Q = V.get(6, 1), V.get(6, 1)
    PT = [V.get(4) for _ in range(4)]
    tk = None
    for i in range(MT):
        m = Stream()
        for s in range(9):
            for j in range(4):
                ca = CA[(i & 1) * 4 + j]
                m('v_mfma_f32_16x16x32_bf16 %s, %s, %s, %s' % (vr(ca, 4), WC(s, j), vr(hb(i, s), 4), '0' if s == 0 else vr(ca, 4)))
                if j == 0 and s < 8:
                    m.touch(vr(hb(i, s + 1), 4))
            if i * 9 + s + NF < 9 * MT:
                hload_next(m, hb(i, s))
        if i in (3, 5):
            print('gemm_c leftover before barrier', sc.pending())
            sc.flush()
            a.wait(tk)
            a('s_barrier')
            sd = Stream()
            for ti in (i - 3, i - 2):
                preduce(sd, ti, PT)
                padd(sd, ti, PT, False)
                stats_partial(sd, BASE, S, Q, ti, None, False)
            qs.extend(sd.groups)
        if i > 0:
            pw = Stream()
            tk = pwrite(pw, i - 1)
            qp.extend(pw.groups)
        sc.run(m)
        sc.flush(qp)
        if layer == 0 and i == 0:
            print('final part A leftover', len(qs) - nrest)
            while len(qs) > nrest:
                sc._emit(qs.pop(0))
        if OPT['fine']:
            stamp(a, 'c%d_t%d' % (layer, i))
    print('gemm_c leftover', sc.pending(), 'model time', sc.t)
    sc.flush()
    put(*[(r, 4) for r in PT + HB[8:]])
    gs = None
    if layer == 0:
        V.claim(GP, 12)
        gs = g_fetch_streams()
        a.extend(gs[0])
    tk = pwrite(a, MT - 1)
    a.wait(tk)
    a('s_barrier')
    stamp(a, 'gemmC%d' % layer)
    for ti in (4, 5):
        preduce(a, ti, HB[(ti - 4) * 4:(ti - 4) * 4 + 4])
    for ti in (4, 5):
        padd(a, ti, HB[(ti - 4) * 4:(ti - 4) * 4 + 4], True)
    put(*[(r, 4) for r in CA + HB[:8]])
    return S, Q, gs


def gate(a, which, final, SQ):
    stats_publish(a, BASE, which, True, SQ=SQ[:2], tiles=(4, 5))
    stamp(a, 'st_pub%d' % which)
    if SQ[2] is not None:
        a.extend(SQ[2][1])
        put(*SQ[2][2])
    GU = V.get(24)
    for i in range(MT):
        for j in range(2):
            a('v_lshlrev_b32 %s, 16, %s' % (vr(GU + 4 * i + 2 * j), vr(GP + 2 * i + j)))
            a('v_and_b32 %s, 0xffff0000, %s' % (vr(GU + 4 * i + 2 * j + 1), vr(GP + 2 * i + j)))
    G = V.get(24)
    ex = stats_exp(a, which)
    poll(a, stats_loads(which, G), [(G + 4 * i + 1, G + 4 * i + 3, ex) for i in range(MT)])
    put(ex)
    stamp(a, 'st_got%d' % which)
    P = stats_finish(a, G)
    for k in range(2):
        a('v_add_f32 %s, 0x3727c5ac, %s' % (vr(P + 2 * k + 1), vr(P + 2 * k + 1)))
    for k in range(2):
        a('v_rsq_f32 %s, %s' % (vr(P + 2 * k + 1), vr(P + 2 * k + 1)))
    for k in range(2):
        a('v_add_f32 %s, %s, %s' % (vr(OFF + k), vr(OFF + k), vr(P + 2 * k)))
    B = G
    for i in range(MT):
        bcast(a, B + 4 * i, P, i)
        if final:
            k_, lane = tile_src(i)
            a('v_mov_b32_dpp %s, %s row_newbcast:%d row_mask:0xf bank_mask:0xf' % (vr(B + 4 * i + 2), vr(OFF + k_), lane))
    for i in range(MT):
        x, g, b = BASE + 4 * i, GU + 4 * i, B + 4 * i
        for k in range(2):
            a('v_pk_add_f32 %s, %s, %s op_sel:[0,0] op_sel_hi:[1,0] neg_lo:[0,1] neg_hi:[0,1]' % (vr(x + 2 * k, 2), vr(x + 2 * k, 2), vr(b, 2)))
            a('v_pk_fma_f32 %s, %s, %s, 1.0 op_sel:[0,1,0] op_sel_hi:[1,1,0]' % (vr(g + 2 * k, 2), vr(g + 2 * k, 2), vr(b, 2)))
        for k in range(2):
            if final:
                a('v_pk_fma_f32 %s, %s, %s, %s op_sel:[0,0,0] op_sel_hi:[1,1,0]' % (vr(x + 2 * k, 2), vr(x + 2 * k, 2), vr(g + 2 * k, 2), vr(b + 2, 2)))
            else:
                a('v_pk_mul_f32 %s, %s, %s' % (vr(x + 2 * k, 2), vr(x + 2 * k, 2), vr(g + 2 * k, 2)))
        if final:
            a('s_movk_i32 %s, %d' % (sr(S_T0), 4608 * i),
              'buffer_store_dwordx4 %s, %s, %s, %s offen%s' % (vr(x, 4), vr(V_OROW), sr(R_OUT, 4), sr(S_T0), ('', ' nt', ' sc1', ' sc1 nt')[OPT['opol']]))
    put((GU, 24), (G, 24), (P, 4))


SQ_ = gemm_c(a, 0, HB0)
gate(a, 1, False, SQ_)
WP = V.get(12, 2)
for i in range(MT):
    for k in range(2):
        a('v_cvt_pk_bf16_f32 %s, %s, %s' % (vr(WP + 2 * i + k), vr(BASE + 4 * i + 2 * k), vr(BASE + 4 * i + 2 * k + 1)))
a('s_mul_i32 %s, %s, 18' % (sr(S_T0), sr(S_RB)))
a('s_add_u32 %s, %s, %s' % (sr(S_T0), sr(S_T0), sr(S_CG)))
a('s_mul_i32 %s, %s, %d' % (sr(S_T0), sr(S_T0), BLK))
a('s_add_u32 %s, %s, %d' % (sr(S_T0), sr(S_T0), WS_H))
a('s_add_u32 %s, %s, 4096' % (sr(S_T1), sr(S_T0)))
a('s_add_u32 %s, %s, 8192' % (sr(S_T2), sr(S_T0)))
wtk_ = dual(a, ['buffer_store_dwordx2 %s, %s, %s, %s offen offset:%d {P}' %
                (vr(WP + 2 * i, 2), vr(V_WA), sr(R_WS, 4), sr((S_T0, S_T1, S_T2)[i >> 1]), (i & 1) * 2048) for i in range(MT)])
stats_publish(a, BASE, 2, True)
V_DX = V.get(3, 1)
a('s_mul_i32 %s, %s, %d' % (sr(S_T0), sr(S_RB), 18 * BLK))
a('s_add_u32 %s, %s, %d' % (sr(S_T0), sr(S_T0), WS_H))
a('s_add_u32 %s, %s, %s' % (sr(S_T0), sr(S_T0), sr(S_W1K)))
a('v_add_u32 %s, %s, %s' % (vr(V_DX), sr(S_T0), vr(V_L16)))
a('v_add_u32 %s, 4096, %s' % (vr(V_DX + 1), vr(V_DX)))
a('v_add_u32 %s, 8192, %s' % (vr(V_DX + 2), vr(V_DX)))
for s in range(9):
    a('s_mul_i32 %s, %s, 96' % (sr(S_TT + s), sr(S_KP + s)))
fa, fe, fv = V.get(), V.get(), V.get()
a('s_lshl_b32 %s, %s, 8' % (sr(S_T1), sr(S_RB)))
a('s_add_u32 %s, %s, %d' % (sr(S_T1), sr(S_T1), WS_WF))
a('v_lshl_add_u32 %s, %s, 2, %s' % (vr(fa), vr(V_LANE), sr(S_T1)))
a('v_cmp_gt_u32 vcc, 36, %s' % vr(V_LANE),
  'v_cndmask_b32 %s, %s, %s, vcc' % (vr(fa), vr(V_OOB), vr(fa)),
  'v_cndmask_b32 %s, 0, %s, vcc' % (vr(fe), vr(V_TAG)))
a('s_lshl2_add_u32 %s, %s, %s' % (sr(S_T0), sr(S_PT), sr(S_T1)))
a.wait(wtk_)
dual(a, flag_texts(sr(S_T0), '{P}'))
stamp(a, 'w_pub')
put((WP, 12))

ACC = V.get(48, top=True)
AF = V.get(48, top=True)
poll(a, ['buffer_load_dword %s, %s, %s, 0 offen sc1' % (vr(fv), vr(fa), sr(R_WS, 4))], [(fv, None, fe)])
stamp(a, 'w_flag')
put(fa, fe, fv)
pre = {k: Stream() for k in range(18)}
side = {k: Stream() for k in range(18)}
wtk = {}
for blk in range(4):
    wtk[blk] = x_dma(a, blk, 1)
vm2 = {k: Stream() for k in range(18)}
for blk in range(4, 9):
    wtk[blk] = x_dma(vm2[0], blk, 1)
G2 = V.get(24)
gl2 = stats_loads(2, G2)
for i in range(0, 12, 2):
    vm2[0](gl2[i], gl2[i + 1])
ex2 = stats_exp(side[0], 2)
poll(pre[10], gl2, [(G2 + 4 * i + 1, G2 + 4 * i + 3, ex2) for i in range(MT)], pre_issued=True)
put(ex2)
ttk2, LNP1 = ln_table(side[10], 1, G2, None)
pre[15].wait(ttk2)
dual(vm2[12], ['s_lshl_b32 %s, %s, 6' % (sr(S_T0), sr(S_RB)),
               's_add_u32 %s, %s, %s' % (sr(S_T0), sr(S_T0), sr(S_CG)),
               's_lshl_b32 %s, %s, 2' % (sr(S_T0), sr(S_T0)),
               's_add_u32 %s, %s, %d' % (sr(S_T0), sr(S_T0), WS_WF + 160)] + flag_texts(sr(S_T0), '{P}'))
gemm_b(a, ACC, AF, lambda s: wtk[s], pre, side, vm=vm2)
put((V_DX, 3))
stamp(a, 'gemmB2')


def mid1(a, mk):
    da, dv = V.get(), V.get()
    a('s_lshl_b32 %s, %s, 8' % (sr(S_T1), sr(S_RB)))
    a('s_add_u32 %s, %s, %d' % (sr(S_T1), sr(S_T1), WS_WF + 160))
    a('v_lshl_add_u32 %s, %s, 2, %s' % (vr(da), vr(V_N), sr(S_T1)))
    a('v_cmp_gt_u32 vcc, 9, %s' % vr(V_N), 'v_cndmask_b32 %s, %s, %s, vcc' % (vr(da), vr(V_OOB), vr(da)))
    dl = 'buffer_load_dword %s, %s, %s, 0 offen sc1' % (vr(dv), vr(da), sr(R_WS, 4))
    a(dl)
    ln_rest(a, 1, LNP1)
    mk(a)
    poll(a, [dl], [(dv, None, V_EXP9)], pre_issued=True)
    put(da, dv)
    return None


htk, hrel = scan_phase(a, 1, ACC, AF, mid1)
put(*hrel)
hfa, hfv, hfl = hflag_prep(a, 1)
hq = Stream()
hq(hfl)
a.wait(htk)
dual(a, flag_texts(sr(S_T0), '{P}'))
stamp(a, 'h_pub1')
a('s_lshl2_add_u32 %s, %s, %s' % (sr(S_T0), sr(S_L), sr(S_WAVE)))
a('s_cmp_lg_u32 %s, %d' % (sr(S_T0), (NRB - 1) * 9 * 4))
a('s_cselect_b64 exec, 0, 1',
  'buffer_store_dword %s, %s, %s, 0 offen sc1' % (vr(V_TAG), vr(V_ZERO), sr(R_WS, 4)),
  's_mov_b64 exec, -1')
SQ_ = gemm_c(a, 1)
gate(a, 3, True, SQ_)
stamp(a, 'out')
a('s_branch L_fin')

a.fence()
a.label('L_aux')
V.free = set(range(NCOMMON, 256))
V.locked = set()
a('s_waitcnt lgkmcnt(0)')
a('s_load_dword %s, %s, 0' % (sr(S_TAG), sr(P_WS, 2)))
srd(a, R_WS, P_WS, WS_SIZE)
a('s_sub_u32 %s, %s, %d' % (sr(S_RB), sr(S_L), NMAIN))
S_AW, S_KC_, S_CGK, S_KP2, S_DG, S_SCR, S_AW2 = [S_KP + i for i in range(7)]
a('s_mul_i32 %s, %s, 58' % (sr(S_AW2), sr(S_WAVE)))
a('s_add_u32 %s, %s, %s' % (sr(S_AW2), sr(S_AW2), sr(S_RB)))
a('s_lshl2_add_u32 %s, %s, %s' % (sr(S_AW), sr(S_RB), sr(S_WAVE)))
a('s_mul_i32 %s, %s, 57' % (sr(S_T0), sr(S_AW)))
a('s_lshr_b32 %s, %s, 10' % (sr(S_DG), sr(S_T0)))
a('s_mul_i32 %s, %s, 171' % (sr(S_KC_), sr(S_AW2)))
a('s_lshr_b32 %s, %s, 9' % (sr(S_KC_), sr(S_KC_)))
a('s_mul_i32 %s, %s, 18' % (sr(S_T1), sr(S_DG)))
a('s_sub_u32 %s, %s, %s' % (sr(S_KP2), sr(S_AW), sr(S_T1)))
a('s_mul_i32 %s, %s, 3' % (sr(S_T1), sr(S_KC_)))
a('s_sub_u32 %s, %s, %s' % (sr(S_CGK), sr(S_AW2), sr(S_T1)))
a('s_add_u32 %s, %s, 6' % (sr(S_CGK), sr(S_CGK)))
srd(a, R_BRE, P_CRE, 576 * 1152)
srd(a, R_BIM, P_CIM, 576 * 1152)
dp, gm, vc, t, t2 = [V.get() for _ in range(5)]
a('v_and_b32 %s, 31, %s' % (vr(dp), vr(V_LANE)))
a('s_lshl_b32 %s, %s, 6' % (sr(S_T0), sr(S_KP2)))
a('v_lshl_add_u32 %s, %s, 1, %s' % (vr(t2), vr(dp), sr(S_T0)))
LT = lam_loads(a, t2)
CL = V.get(24)
a('v_lshrrev_b32 %s, 2, %s' % (vr(vc), vr(V_LANE)))
a('v_mul_u32_u24 %s, 1152, %s' % (vr(vc), vr(vc)))
a('v_and_b32 %s, 3, %s' % (vr(gm), vr(V_LANE)))
a('v_lshl_add_u32 %s, %s, 4, %s' % (vr(vc), vr(gm), vr(vc)))
a('s_mul_i32 %s, %s, %d' % (sr(S_T1), sr(S_DG), 48 * 1152))
a('s_add_u32 %s, %s, %s' % (sr(S_T1), sr(S_T1), sr(S_T0)))
for u in range(3):
    a('s_add_u32 %s, %s, %d' % (sr(S_T2), sr(S_T1), u * 16 * 1152),
      'buffer_load_dwordx4 %s, %s, %s, %s offen nt' % (vr(CL + 8 * u, 4), vr(vc), sr(R_BRE, 4), sr(S_T2)),
      'buffer_load_dwordx4 %s, %s, %s, %s offen nt' % (vr(CL + 8 * u + 4, 4), vr(vc), sr(R_BIM, 4), sr(S_T2)))
a('s_lshl2_add_u32 %s, %s, %s' % (sr(S_T1), sr(S_RB), sr(S_WAVE)))
a('s_mul_i32 %s, %s, 2880' % (sr(S_T1), sr(S_T1)))
a('v_min_u32 %s, 22, %s' % (vr(V_TAG), vr(V_LANE)))
a('v_lshl_add_u32 %s, %s, 7, %s' % (vr(V_TAG), vr(V_TAG), sr(S_T1)))
a('v_min_u32 %s, %d, %s' % (vr(V_TAG), 576 * 1152 - 4, vr(V_TAG)))
a('global_load_dword %s, %s, %s ;junk' % (vr(V_JUNK), vr(V_TAG), sr(P_BRE, 2)))
a('global_load_dword %s, %s, %s ;junk' % (vr(V_JUNK), vr(V_TAG), sr(P_BIM, 2)))
srd(a, R_K, P_K, 2048 * 1152)
srd(a, R_V, P_V, 2048 * 1152)
sg, vk, vh, ka = [V.get() for _ in range(4)]
a('v_lshrrev_b32 %s, 5, %s' % (vr(sg), vr(V_LANE)))
a('s_mul_i32 %s, %s, %d' % (sr(S_T0), sr(S_KC_), 48 * 1152))
a('s_lshl_b32 %s, %s, 7' % (sr(S_T1), sr(S_CGK)))
a('s_add_u32 %s, %s, %s' % (sr(S_T0), sr(S_T0), sr(S_T1)))
a('v_mul_u32_u24 %s, %d, %s' % (vr(vk), 24 * 1152, vr(sg)))
a('v_lshl_add_u32 %s, %s, 2, %s' % (vr(vk), vr(dp), vr(vk)))
a('v_add_u32 %s, %s, %s' % (vr(vk), sr(S_T0), vr(vk)))
a('v_subrev_u32 %s, %d, %s' % (vr(vh), 3 * 1152, vr(vk)))
SHK = V.get(4)
a('s_lshl_b32 %s, %s, 9' % (sr(S_T1), sr(S_CGK)))
a('v_lshl_add_u32 %s, %s, 4, %s' % (vr(t), vr(dp), sr(S_T1)))
a('global_load_dwordx4 %s, %s, %s' % (vr(SHK, 4), vr(t), sr(P_SHK, 2)))
KR, VR = V.get(27, 1), V.get(24, 1)
ld = Stream()
for j in range(3):
    ld('buffer_load_dword %s, %s, %s, 0 offen offset:%d nt' % (vr(KR + j), vr(vh), sr(R_K, 4), 1152 * j))
for j3 in range(8):
    ld('s_mov_b32 %s, %d' % (sr(S_C), 3456 * j3),
       *['buffer_load_dword %s, %s, %s, %s offen offset:%d nt' % (vr(base + 3 * j3 + jj), vr(vk), sr(rr, 4), sr(S_C), 1152 * jj)
         for jj in range(3) for (base, rr) in ((KR + 3, R_K), (VR, R_V))])
ldp = split(ld, 2)
astamp(a, 4)
a('s_waitcnt lgkmcnt(0)')
astamp(a, 5)
tag_ready(a)
cs = Stream()
cs('s_mul_i32 %s, %s, 8192' % (sr(S_SCR), sr(S_WAVE)), 's_add_u32 %s, %s, %d' % (sr(S_SCR), sr(S_SCR), 65536))
_, COEF = lam_compute(cs, LT, True)
cs('v_add_f32 %s, %s, %s' % (vr(COEF), vr(COEF), vr(COEF)))
cs('v_add_f32 %s, %s, %s' % (vr(COEF + 1), vr(COEF + 1), vr(COEF + 1)))
cs('v_lshl_add_u32 %s, %s, 3, %s' % (vr(t), vr(dp), sr(S_SCR)))
cs('ds_write_b64 %s, %s offset:6144' % (vr(t), vr(COEF, 2)))
cs('v_lshl_add_u32 %s, %s, 6, %s' % (vr(t), vr(gm), sr(S_SCR)))
CF = V.get(16)
for k in range(4):
    cs('ds_read_b128 %s, %s offset:%d' % (vr(CF + 4 * k, 4), vr(t), 6144 + 16 * k))
wa, ra = V.get(), V.get()
cs('v_lshrrev_b32 %s, 2, %s' % (vr(t), vr(V_LANE)))
cs('v_lshlrev_b32 %s, 4, %s' % (vr(t), vr(t)))
cs('v_lshl_add_u32 %s, %s, 9, %s' % (vr(wa), vr(gm), vr(t)))
cs('v_add_u32 %s, %s, %s' % (vr(wa), sr(S_SCR), vr(wa)))
cs('v_add_u32 %s, %s, %s' % (vr(ra), sr(S_SCR), vr(V_L16)))
X = V.get(4)
O = V.get(8)
RD = V.get(24)
for u in range(3):
    for e in range(8):
        src = CL + 8 * u + (e >> 1)
        op = 'v_and_b32 %s, 0xffff0000, %s' if e & 1 else 'v_lshlrev_b32 %s, 16, %s'
        cs(op % (vr(X), vr(src)))
        cs(op % (vr(X + 1), vr(src + 4)))
        cmul(cs, X + 2, X, CF + 2 * e)
        cs('v_cvt_pk_bf16_f32 %s, %s, -%s' % (vr(O + e), vr(X + 2), vr(X + 3)))
    bo = u * 2048
    cs('ds_write_b128 %s, %s offset:%d' % (vr(wa), vr(O, 4), bo))
    cs('ds_write_b128 %s, %s offset:%d' % (vr(wa), vr(O + 4, 4), bo + 256))
    cs('ds_read_b128 %s, %s offset:%d' % (vr(RD + u * 8, 4), vr(ra), bo))
    cs('ds_read_b128 %s, %s offset:%d' % (vr(RD + u * 8 + 4, 4), vr(ra), bo + 1024))
a.weave(cs, ldp[0], 0.3, 0.95)
astamp(a, 6)
a('s_and_b32 %s, %s, 1' % (sr(S_T0), sr(S_KP2)))
a('s_mul_i32 %s, %s, %d' % (sr(S_T0), sr(S_T0), 2 * 37 * 1024))
a('s_lshr_b32 %s, %s, 1' % (sr(S_T1), sr(S_KP2)))
a('s_lshl_b32 %s, %s, 12' % (sr(S_T1), sr(S_T1)))
a('s_add_u32 %s, %s, %s' % (sr(S_T0), sr(S_T0), sr(S_T1)))
a('s_add_u32 %s, %s, %d' % (sr(S_T0), sr(S_T0), WS_CP))
a('s_cmp_lt_u32 %s, 216' % sr(S_AW))
a('s_cselect_b32 %s, %s, 0x%x' % (sr(S_T0), sr(S_T0), 0x40000000))
toks = []
for u in range(3):
    a('s_mul_i32 %s, %s, 3' % (sr(S_T1), sr(S_DG)))
    a('s_add_u32 %s, %s, %d' % (sr(S_T1), sr(S_T1), u))
    a('s_lshr_b32 %s, %s, 2' % (sr(S_T2), sr(S_T1)))
    a('s_mul_i32 %s, %s, %d' % (sr(S_T2), sr(S_T2), 4 * 37 * 1024))
    a('s_and_b32 %s, %s, 3' % (sr(S_T1), sr(S_T1)))
    a('s_lshl_b32 %s, %s, 10' % (sr(S_T1), sr(S_T1)))
    a('s_add_u32 %s, %s, %s' % (sr(S_T1), sr(S_T1), sr(S_T2)))
    a('s_add_u32 %s, %s, %s' % (sr(S_T1), sr(S_T1), sr(S_T0)))
    a('s_add_u32 %s, %s, %d' % (sr(S_T2), sr(S_T1), 37 * 1024))
    toks.append(a.mem('buffer_store_dwordx4 %s, %s, %s, %s offen sc1' % (vr(RD + u * 8, 4), vr(V_L16), sr(R_WS, 4), sr(S_T1))))
    toks.append(a.mem('buffer_store_dwordx4 %s, %s, %s, %s offen sc1' % (vr(RD + u * 8 + 4, 4), vr(V_L16), sr(R_WS, 4), sr(S_T2))))
a('s_nop 1')
put((CL, 24), (CF, 16), (X, 4), (O, 8), (RD, 24), wa, ra, (COEF, 2))
a.extend(ldp[1])
astamp(a, 7)
cf = Stream()
astamp(cf, 8)
cf.wait(*toks)
astamp(cf, 9)
cf('s_lshl_b32 %s, %s, 6' % (sr(S_T0), sr(S_AW)),
   's_add_u32 %s, %s, %d' % (sr(S_T0), sr(S_T0), WS_CPF), *flag_texts(sr(S_T0), 'sc1'))
a('v_sub_u32 %s, 1, %s' % (vr(sg), vr(sg)))
a('v_lshlrev_b32 %s, 6, %s' % (vr(sg), vr(sg)))
a('v_mul_u32_u24 %s, 272, %s' % (vr(ka), vr(dp)))
a('s_mul_i32 %s, %s, 8704' % (sr(S_SCR), sr(S_WAVE)))
a('v_add3_u32 %s, %s, %s, %s' % (vr(ka), vr(ka), vr(sg), sr(S_SCR)))
kc = Stream()
kv_core(kc, 12, lambda r: KR + 3 + r, lambda r: VR + r, SHK,
        lambda ch, un, reg: kc('ds_write_b128 %s, %s offset:%d' % (vr(ka), vr(reg, 4), ch * 128 + un * 16)),
        touch=lambda tp: kc.touch(vr(KR + 3 + 2 * tp, 6), vr(VR + 2 * tp, 6)) if tp % 3 == 0 else None)
cv = Conv()
conv_setup_k(cf, cv)
a.weave(kc, cf, 0.0, 0.5)
astamp(a, 10)
put((KR, 27), (VR, 24))
RD = V.get(32)
ra, ga = V.get(), V.get()
a('v_lshlrev_b32 %s, 4, %s' % (vr(ra), vr(V_Q)))
a('v_add3_u32 %s, %s, %s, %s' % (vr(ra), vr(ra), vr(V_L16), sr(S_SCR)))
for i in range(8):
    a('ds_read_b128 %s, %s offset:%d' % (vr(RD + 4 * i, 4), vr(ra), 1088 * i))
a('v_lshrrev_b32 %s, 3, %s' % (vr(ga), vr(V_LANE)))
a('v_mul_u32_u24 %s, %d, %s' % (vr(ga), KVT_STR - 128, vr(ga)))
a('v_add_u32 %s, %s, %s' % (vr(ga), vr(ga), vr(V_L16)))
a('s_mul_i32 %s, %s, %d' % (sr(S_T0), sr(S_CGK), 64 * KVT_STR))
a('s_sub_u32 %s, 43, %s' % (sr(S_T1), sr(S_KC_)))
a('s_lshl_b32 %s, %s, 7' % (sr(S_T1), sr(S_T1)))
a('s_add_u32 %s, %s, %s' % (sr(S_T0), sr(S_T0), sr(S_T1)))
a('s_cmp_lt_u32 %s, 132' % sr(S_AW2))
a('s_cselect_b32 %s, %s, 0x%x' % (sr(S_T2), sr(S_T0), 0x40000000))
for i in range(8):
    a('s_add_u32 %s, %s, %d' % (sr(S_T1), sr(S_T2), WS_KVT + 8 * i * KVT_STR),
      'buffer_store_dwordx4 %s, %s, %s, %s offen sc1' % (vr(RD + 4 * i, 4), vr(ga), sr(R_WS, 4), sr(S_T1)))
a('s_nop 1')
if OPT['stamps']:
    a('s_memtime %s' % sr(S_M2, 2), 's_waitcnt lgkmcnt(0)', 'v_writelane_b32 %s, %s, 1' % (vr(V_STAMP), sr(S_M2)))
keep_cv = cv
a('s_branch L_auxconv3')
a.fence()
a.label('L_auxconv2')
V.free = set(range(NCOMMON, 256))
V.locked = set()
sv = OPT['stamps']
OPT['stamps'] = 0
OPT['_sv'] = sv
cv = Conv()
a('s_barrier')
conv_setup_k(a, cv)
assert (cv.SD, cv.HD) == (keep_cv.SD, keep_cv.HD)
a.label('L_auxconv3')
a('s_barrier')
conv_u_prep(a, cv)
put(*conv_addr(a, cv))
conv_body(a, cv, pre_issued=False)
a.wait(cv.stk)
a('s_barrier')
conv_final(a, cv)
astamp(a, 13)
OPT['stamps'] = sv
if OPT['stamps']:
    a('s_memtime %s' % sr(S_M2, 2), 's_waitcnt lgkmcnt(0)', 's_cmp_eq_u32 %s, %s' % (sr(S_PAIR), sr(S_L)),
      's_cselect_b32 m0, 2, 3', 's_nop 3', 'v_writelane_b32 %s, %s, m0' % (vr(V_STAMP), sr(S_M2)))
a('s_add_u32 %s, %s, %d' % (sr(S_PAIR), sr(S_PAIR), NAUX))
a('s_cmp_lt_u32 %s, 288' % sr(S_PAIR))
a('s_cbranch_scc1 L_auxconv2')
a('s_branch L_fin')

a.fence()
a.extend(tail)

a.label('L_fin')
if OPT['stamps']:
    a('s_waitcnt vmcnt(0) lgkmcnt(0)')
    a('%s %s' % ('s_memtime' if OPT['cyc'] else 's_memrealtime', sr(S_M2, 2)))
    a('s_waitcnt lgkmcnt(0)')
    a('v_writelane_b32 %s, %s, 63' % (vr(V_STAMP), sr(S_M2)))
    a('v_writelane_b32 %s, %s, 62' % (vr(V_STAMP), sr(S_FAST)))
    a('s_lshl_b32 %s, %s, 10' % (sr(S_T0), sr(S_L)))
    a('s_add_u32 %s, %s, %d' % (sr(S_T0), sr(S_T0), WS_DBG))
    a('v_lshlrev_b32 %s, 2, v0' % vr(V_DUMMY))
    a('buffer_store_dword %s, %s, %s, %s offen' % (vr(V_STAMP), vr(V_DUMMY), sr(R_WS, 4), sr(S_T0)))
if OPT['enc']:
    idx_ = 63 if OPT['enc'] == 'end' else STAMPS.index(OPT['enc'])
    a('s_lshl2_add_u32 %s, %s, %s' % (sr(S_T0), sr(S_L), sr(S_WAVE)))
    a('s_cmp_lg_u32 %s, %d' % (sr(S_T0), OPT['encwg'] * 4))
    a('s_cbranch_scc1 L_end')
    a('v_readlane_b32 s12, %s, %d' % (vr(V_STAMP), idx_))
    a.label('L_hold')
    a('s_memrealtime s[14:15]')
    a('s_waitcnt lgkmcnt(0)')
    a('s_sub_u32 s14, s14, s12')
    a('s_cmp_lt_u32 s14, 5000')
    a('s_cbranch_scc1 L_hold')
a.label('L_end')
a('s_endpgm')

hdr = open(os.path.join(os.path.dirname(os.path.abspath(__file__)), '..', 'cdna_kernels', NAME + '.s.ref')).read().split('\n')
head = []
for ln in hdr:
    if ln.startswith('; @launch'):
        break
    head.append(ln)
lines = head + ['; @launch grid=(256,1,1) block=(256,1,1) lds=%d' % LDS_SIZE,
                '.amdgcn_target "amdgcn-amd-amdhsa--gfx950"', '.text', '.globl ' + KN, '.p2align 8',
                '.type %s,@function' % KN, KN + ':']
lines += finalize(top)
lines += ['.section .rodata,"a"', '.p2align 6', '.amdhsa_kernel ' + KN,
          '  .amdhsa_next_free_vgpr 512', '  .amdhsa_next_free_sgpr 102', '  .amdhsa_accum_offset 256',
          '  .amdhsa_group_segment_fixed_size 0', '  .amdhsa_kernarg_size 144', '  .amdhsa_user_sgpr_count 2',
          '  .amdhsa_user_sgpr_kernarg_segment_ptr 1', '  .amdhsa_system_sgpr_workgroup_id_x 1', '.end_amdhsa_kernel']
open(sys.argv[1], 'w').write('\n'.join(lines) + '\n')
if OPT['stamps']:
    open(sys.argv[1] + '.stamps', 'w').write('\n'.join(STAMPS) + '\n')
print('vgpr high water', V.hw, 'lines', len(lines))
```

```python
import sys, os
sys.path.insert(0, os.path.dirname(os.path.abspath(__file__)))
from asmlib import *

NAME = 'interleave_layers__ssm_conv_s5__ssm_conv_h3__prompt'
KN = NAME + '_kernel'

OPT = dict(enc2='', enc='', encwg=100, opol=0, tpos=1, tpol=1, stamps=0, slow=0, hbuf2=0, crot=0, pf=3, slp=8, slp2=6, ncp0=0, ncp=11, ncp2=16, per=5, x_nod1=0, x_s0late=0, x_nomfma=0, x_noload=0, fine=0, cyc=0)
for a_ in sys.argv[2:]:
    k_, v_ = a_.split('=')
    OPT[k_] = int(v_) if v_.lstrip('-').isdigit() else v_

MT = 6
TPOL = ('sc1', 'nt', 'sc1 nt')[OPT['tpol']]
NRB = 22
NMAIN = 198
NAUX = 58
WS_KVF = 0x1000
WS_CPF = 0xC000
WS_HF = 0x4000
WS_WF = 0x4000 + 2 * 22 * 256
WS_GF = 0xA000
WS_RBG = 0xC000
WS_E = 0x10000
WS_ST = 0xA0000
ST_SZ = 22 * 24576
WS_KVT = 0x1600000
KVT_STR = 5632
WS_CP = 0x540000
WS_H = 0x6C0000
H_SZ = 22 * 221184 * OPT['hbuf2']
WS_W = 0x1040000
WS_G = 0x12C0000
G_STR = 11264
WS_DBG = 0x2000000
WS_SIZE = 0x10000000
OOB = 0x7FFF0000

BLK = 12288
L_IMG = 0
L_RING = 9 * BLK
L_MISC = L_RING + 49152
LDS_SIZE = 163840
L_TAB = L_MISC
L_FX = L_MISC + 768
L_HALO = L_MISC + 3072
L_KRAW = 0
L_KVO = 28672
L_KC = L_RING
KC_CH = 16656
L_UC = L_IMG + 16
UC_CH = 9280
L_CO = 20480
CO_W = 10944
PART_ROW = 272
PART_W = 16 * PART_ROW
SPIN = 20000

P_X, P_LRE, P_LIM, P_BRE, P_BIM, P_CRE, P_CIM, P_LDT = [8 + 2 * i for i in range(8)]
P_DSK, P_Q, P_K, P_V, P_SHK, P_SSK, P_SSD, P_OUT = [24 + 2 * i for i in range(8)]
P_DBG, P_WS = 40, 42
R_WS, R_X, R_BRE, R_BIM, R_K, R_V, R_OUT, R_SK = [44 + 4 * i for i in range(8)]
S_RB, S_CG, S_FAST, S_WAVE, S_TAG, S_L, S_PAIR, S_SPIN = range(76, 84)
S_KP = 84
S_T0, S_T1, S_T2, S_T3 = 93, 94, 95, 96
S_ROLE = 97
S_M1, S_M2 = 98, 100
S_A, S_B, S_C = 3, 4, 5
S_PC = 6
S_TT = 8
S_TU = 17
S_MSEL = 26
S_MACT = 40
S_W1K = 97
S_RINGW = 98
S_PT = 99
S_XCC = 20
S_CPB = 21
S_HB = 22

V = Alloc('v', 1, 256)
top = Stream()
tail = Stream()
lblc = [0]
STAMPS = []


def newlabel(p):
    lblc[0] += 1
    return 'L_%s_%d' % (p, lblc[0])


def put(*items):
    for it in items:
        if isinstance(it, tuple):
            V.put(*it)
        else:
            V.put(it)


def srd(a, r, p, size):
    a('s_mov_b64 %s, %s' % (sr(r, 2), sr(p, 2)))
    a('s_mov_b32 %s, 0x%x' % (sr(r + 2), size))
    a('s_mov_b32 %s, 0x20000' % sr(r + 3))


def cmul(a, d, x, y):
    a('v_pk_mul_f32 %s, %s, %s op_sel:[0,0] op_sel_hi:[1,0]' % (vr(d, 2), vr(x, 2), vr(y, 2)))
    a('v_pk_fma_f32 %s, %s, %s, %s op_sel:[1,1,0] op_sel_hi:[0,1,1] neg_lo:[1,0,0]' % (vr(d, 2), vr(x, 2), vr(y, 2), vr(d, 2)))


def cmul_plain(a, d, x, y):
    a('v_mul_f32 %s, %s, %s' % (vr(d), vr(x), vr(y)))
    a('v_mul_f32 %s, %s, %s' % (vr(d + 1), vr(x + 1), vr(y)))
    a('v_fma_f32 %s, -%s, %s, %s' % (vr(d), vr(x + 1), vr(y + 1), vr(d)))
    a('v_fmac_f32 %s, %s, %s' % (vr(d + 1), vr(x), vr(y + 1)))


def cfma(a, d, x, y, c):
    a('v_pk_fma_f32 %s, %s, %s, %s op_sel:[0,0,0] op_sel_hi:[1,0,1]' % (vr(d, 2), vr(x, 2), vr(y, 2), vr(c, 2)))
    a('v_pk_fma_f32 %s, %s, %s, %s op_sel:[1,1,0] op_sel_hi:[0,1,1] neg_lo:[1,0,0]' % (vr(d, 2), vr(x, 2), vr(y, 2), vr(d, 2)))


def stamp(a, name):
    if not OPT['stamps']:
        return
    i = len(STAMPS)
    a('%s %s' % ('s_memtime' if OPT['cyc'] else 's_memrealtime', sr(S_M2, 2)), 's_waitcnt lgkmcnt(0)', 'v_writelane_b32 %s, %s, %d' % (vr(V_STAMP), sr(S_M2), i))
    STAMPS.append(name)


def astamp(a, i):
    if OPT['stamps'] or OPT.get('_sv'):
        a('s_memtime %s' % sr(S_M2, 2), 's_waitcnt lgkmcnt(0)', 'v_writelane_b32 %s, %s, %d' % (vr(V_STAMP), sr(S_M2), i))


def poll(a, loads, checks, pre_issued=False, sleep=0):
    p = Stream()
    L = newlabel('poll')
    Lc = newlabel('pollc')
    simple = len(checks) == 1 and checks[0][1] is None
    acc = None if simple else V.get(2, 1)
    p('s_mov_b32 %s, %d' % (sr(S_SPIN), SPIN))
    if pre_issued:
        regs = []
        for c in checks:
            regs += [vr(c[0])] + ([vr(c[1])] if c[1] is not None else [])
        p.touch(*regs)
        p.label(Lc)
    else:
        p.label(L)
        if sleep:
            p('s_sleep %d' % sleep)
        for t in loads:
            p(t)
        p('s_waitcnt vmcnt(0)')
    if len(checks) == 1 and checks[0][1] is None:
        p('v_cmp_ne_u32 vcc, %s, %s' % (vr(checks[0][0]), vr(checks[0][2])))
    else:
        first = True
        for (x, y, e) in checks:
            d = acc if first else acc + 1
            if y is None:
                p('v_xor_b32 %s, %s, %s' % (vr(d), vr(x), vr(e)))
            else:
                p('v_bitop3_b32 %s, %s, %s, %s bitop3:0x7e' % (vr(d), vr(x), vr(y), vr(e)))
            if not first:
                p('v_or_b32 %s, %s, %s' % (vr(acc), vr(acc), vr(acc + 1)))
            first = False
        p('v_cmp_ne_u32 vcc, 0, %s' % vr(acc))
    p('s_sub_u32 %s, %s, 1' % (sr(S_SPIN), sr(S_SPIN)))
    p('s_cselect_b64 vcc, 0, vcc')
    p('s_cmp_lg_u64 vcc, 0')
    p('s_cbranch_scc1 %s' % L)
    if pre_issued:
        tail.label(L)
        if sleep:
            tail('s_sleep %d' % sleep)
        for t in loads:
            tail(t)
        tail('s_waitcnt vmcnt(0)')
        tail('s_branch %s' % Lc)
    a.join(p)
    if acc is not None:
        V.put(acc, 2)


def dual(a, texts, touch=()):
    Ls, Lb = newlabel('slow'), newlabel('back')
    p = Stream()
    if touch:
        p.touch(*touch)
    p('s_cmp_eq_u32 %s, 0' % sr(S_FAST), 's_cbranch_scc1 %s' % Ls)
    tk = p.mem(*[t.replace(' {P}', '') for t in texts])
    p.label(Lb)
    a.join(p)
    tail.label(Ls)
    tail('s_nop 1')
    tail(*[t.replace('{P}', 'sc1') for t in texts])
    tail('s_branch %s' % Lb)
    return tk


def flag_texts(soff, pol):
    return ['s_mov_b64 exec, 1',
            'buffer_store_dword %s, %s, %s, %s offen %s' % (vr(V_TAG), vr(V_ZERO), sr(R_WS, 4), soff, pol),
            's_mov_b64 exec, -1']


def lam_loads(a, vp2):
    t = V.get(4)
    a('global_load_ushort %s, %s, %s' % (vr(t), vr(vp2), sr(P_LRE, 2)))
    a('global_load_ushort %s, %s, %s' % (vr(t + 1), vr(vp2), sr(P_LIM, 2)))
    a('global_load_ushort %s, %s, %s' % (vr(t + 2), vr(vp2), sr(P_LDT, 2)))
    return t


def lam_compute(a, t, want_coef, lam=None):
    if lam is None:
        lam = V.get(2)
    u = V.get(4)
    for i in range(3):
        a('v_lshlrev_b32 %s, 16, %s' % (vr(t + i), vr(t + i)))
    a('v_mul_f32 %s, 0x3fb8aa3b, %s' % (vr(t + 2), vr(t + 2)))
    a('v_exp_f32 %s, %s' % (vr(t + 2), vr(t + 2)))
    a('v_cvt_pk_bf16_f32 %s, %s, %s' % (vr(t + 2), vr(t + 2), vr(t + 2)))
    a('v_lshlrev_b32 %s, 16, %s' % (vr(t + 2), vr(t + 2)))
    a('v_mul_f32 %s, %s, %s' % (vr(u), vr(t + 2), vr(t)))
    a('v_mul_f32 %s, %s, %s' % (vr(u + 1), vr(t + 2), vr(t + 1)))
    a('v_mul_f32 %s, 0x3fb8aa3b, %s' % (vr(u), vr(u)))
    a('v_exp_f32 %s, %s' % (vr(u), vr(u)))
    a('v_mul_f32 %s, 0.15915494, %s' % (vr(u + 1), vr(u + 1)))
    a('v_rndne_f32 %s, %s' % (vr(u + 2), vr(u + 1)))
    a('v_sub_f32 %s, %s, %s' % (vr(u + 1), vr(u + 1), vr(u + 2)))
    a('v_cos_f32 %s, %s' % (vr(u + 2), vr(u + 1)))
    a('v_sin_f32 %s, %s' % (vr(u + 3), vr(u + 1)))
    a('v_mul_f32 %s, %s, %s' % (vr(lam), vr(u), vr(u + 2)))
    a('v_mul_f32 %s, %s, %s' % (vr(lam + 1), vr(u), vr(u + 3)))
    coef = None
    if want_coef:
        coef = V.get(2)
        a('v_add_f32 %s, -1.0, %s' % (vr(u), vr(lam)))
        a('v_mov_b32 %s, %s' % (vr(u + 1), vr(lam + 1)))
        a('v_mul_f32 %s, %s, %s' % (vr(u + 2), vr(t), vr(t)))
        a('v_fmac_f32 %s, %s, %s' % (vr(u + 2), vr(t + 1), vr(t + 1)))
        a('v_rcp_f32 %s, %s' % (vr(u + 2), vr(u + 2)))
        a('v_sub_f32 %s, 0, %s' % (vr(t + 1), vr(t + 1)))
        cmul(a, coef, u, t)
        a('v_mul_f32 %s, %s, %s' % (vr(coef), vr(coef), vr(u + 2)))
        a('v_mul_f32 %s, %s, %s' % (vr(coef + 1), vr(coef + 1), vr(u + 2)))
    put((u, 4), (t, 4))
    return lam, coef


def tag_ready(a):
    a('s_mul_i32 %s, %s, 0x9E3779B1' % (sr(S_TAG), sr(S_TAG)),
      's_add_u32 %s, %s, 0x7F4A7C15' % (sr(S_TAG), sr(S_TAG)),
      'v_mov_b32 %s, %s' % (vr(V_TAG), sr(S_TAG)))


def rbf(s, regs):
    for r in regs:
        s('v_cvt_pk_bf16_f32 %s, %s, %s' % (vr(r), vr(r), vr(r)))
    for r in regs:
        s('v_lshlrev_b32 %s, 16, %s' % (vr(r), vr(r)))


def rs12(s, S, Q):
    dp = 'v_add_f32_dpp %s, %s, %s %s row_mask:0xf bank_mask:0x%x'
    for X in (S, Q):
        for j in range(3):
            s(dp % (vr(X[j]), vr(X[j]), vr(X[j]), 'row_ror:8', 0x3))
    for X in (S, Q):
        for j in range(3):
            s(dp % (vr(X[j]), vr(X[j + 3]), vr(X[j + 3]), 'row_ror:8', 0xc))
    for X in (S, Q):
        s(dp % (vr(X[0]), vr(X[0]), vr(X[0]), 'row_half_mirror', 0x5))
        s(dp % (vr(X[2]), vr(X[2]), vr(X[2]), 'row_half_mirror', 0xf))
    for X in (S, Q):
        s(dp % (vr(X[0]), vr(X[1]), vr(X[1]), 'row_half_mirror', 0xa))
    for qp in ('quad_perm:[1,0,3,2]', 'quad_perm:[2,3,0,1]'):
        for r in (S[2], Q[2], S[0], Q[0]):
            s(dp % (vr(r), vr(r), vr(r), qp, 0xf))


def tile_src(i):
    hf, j = divmod(i, 3)
    if j == 2:
        return 1, 8 * hf
    return 0, 8 * hf + 4 * j


a = top
V_LANE, V_TAG, V_STAMP, V_L16, V_N, V_Q = [V.get() for _ in range(6)]
V_OOB = V.get()
V_JUNK = V.get()
V_ZERO = V.get(2)
V_DUMMY = V.get(4)
NCOMMON = V.hw
BASE = V.get(24)
V_DSK = V.get(4)
V_FA = V.get(4)
LAM, L12, L24, L384, LQ96, LQ24, RB, OFF = [V.get(2) for _ in range(8)]
(V_TAU, V_OROW, V_STW, V_STR, V_EXP9, V_TABW, V_EW, V_ER, V_HW, V_HR, V_TABR, V_WA) = [V.get() for _ in range(12)]
WCV = V.home(32)
GP = V.home(12)
V_PW = V.home(4)
V_PR, V_PW2, V_PR2 = V_PW + 1, V_PW + 2, V_PW + 3
HOMES = ((WCV, 32), (GP, 12), (V_PW, 4))
V_DX = V.get(3, 1)

a('s_cmp_ge_u32 s2, 256')
a('s_cbranch_scc1 L_end')
a('s_load_dwordx16 s[8:23], s[0:1], 0')
a('s_load_dwordx16 s[24:39], s[0:1], 64')
a('s_load_dwordx4 s[40:43], s[0:1], 128')
a('s_getpc_b64 %s' % sr(S_PC, 2))
a.label('L_pc')
a('s_lshr_b32 %s, s2, 3' % sr(S_T0))
a('s_lshl_b32 %s, %s, 12' % (sr(S_T1), sr(S_T0)))
a('v_lshl_add_u32 %s, v0, 4, %s' % (vr(V_TAG), sr(S_T1)))
a('s_mov_b32 %s, L_end-L_pc-16' % sr(S_T1))
a('v_min_u32 %s, %s, %s' % (vr(V_TAG), sr(S_T1), vr(V_TAG)))
a('global_load_dwordx4 %s, %s, %s ;junk' % (vr(V_DUMMY, 4), vr(V_TAG), sr(S_PC, 2)))
a('v_and_b32 %s, 63, v0' % vr(V_LANE))
a('v_lshrrev_b32 %s, 6, v0' % vr(V_Q))
a('v_lshlrev_b32 %s, 4, %s' % (vr(V_L16), vr(V_LANE)))
a('v_readfirstlane_b32 %s, %s' % (sr(S_WAVE), vr(V_Q)))
if OPT['stamps']:
    a('v_mov_b32 %s, 0' % vr(V_STAMP))
stamp(a, 'start')
a('v_and_b32 %s, 15, %s' % (vr(V_N), vr(V_LANE)))
a('v_lshrrev_b32 %s, 4, %s' % (vr(V_Q), vr(V_LANE)))
a('v_mov_b32 %s, 0' % vr(V_ZERO))
a('v_mov_b32 %s, 0' % vr(V_ZERO + 1))
a('v_mov_b32 %s, 0x%x' % (vr(V_OOB), OOB))
a('s_and_b32 %s, s2, 7' % sr(S_T1))
a('s_mul_i32 %s, %s, 27' % (sr(S_T2), sr(S_T1)))
a('s_add_u32 %s, %s, %s' % (sr(S_T2), sr(S_T2), sr(S_T0)))
a('s_mul_i32 %s, %s, 5' % (sr(S_T3), sr(S_T1)))
a('s_add_u32 %s, %s, %s' % (sr(S_T3), sr(S_T3), sr(S_T0)))
a('s_add_u32 %s, %s, %d' % (sr(S_T3), sr(S_T3), 216 - 27))
a('s_cmp_lt_u32 %s, 27' % sr(S_T0))
a('s_cselect_b32 %s, %s, %s' % (sr(S_L), sr(S_T2), sr(S_T3)))
a('s_mul_i32 %s, %s, 57' % (sr(S_RB), sr(S_L)))
a('s_lshr_b32 %s, %s, 9' % (sr(S_RB), sr(S_RB)))
a('s_mul_i32 %s, %s, 9' % (sr(S_T0), sr(S_RB)))
a('s_sub_u32 %s, %s, %s' % (sr(S_CG), sr(S_L), sr(S_T0)))
a('s_mov_b32 %s, %s' % (sr(S_PAIR), sr(S_L)))
a('s_and_b32 %s, %s, 1' % (sr(S_A), sr(S_WAVE)))
a('s_lshr_b32 %s, %s, 1' % (sr(S_B), sr(S_WAVE)))
a('s_cmp_ge_u32 %s, %d' % (sr(S_L), NMAIN))
a('s_cbranch_scc1 L_aux')

t, t2, t3 = V.get(), V.get(), V.get()
LAMT = V.get(4)
lad, dad = V.get(), V.get()
V_DB = V.get(2)
c0 = V.get()
a('v_lshrrev_b32 %s, 3, %s' % (vr(t), vr(V_LANE)))
a('v_and_b32 %s, 7, %s' % (vr(t3), vr(V_LANE)))
a('s_lshl2_add_u32 %s, %s, %s' % (sr(S_PT), sr(S_CG), sr(S_WAVE)))
a('s_lshl_b32 %s, %s, 10' % (sr(S_W1K), sr(S_WAVE)))
a('s_mul_i32 %s, %s, 12288' % (sr(S_RINGW), sr(S_WAVE)))
a('s_add_u32 %s, %s, %d' % (sr(S_RINGW), sr(S_RINGW), L_RING))
a('s_lshl_b32 %s, %s, 7' % (sr(S_KP), sr(S_CG)))
a('v_xor_b32 %s, %s, %s' % (vr(c0), vr(t3), vr(V_Q)))
a('v_lshlrev_b32 %s, 4, %s' % (vr(c0), vr(c0)))
a('v_lshrrev_b32 %s, 5, %s' % (vr(t2), vr(V_LANE)))
a('v_mul_u32_u24 %s, 24, %s' % (vr(t2), vr(t2)))
a('v_and_b32 %s, 1, %s' % (vr(t3), vr(t)))
a('v_mad_u32_u24 %s, %s, 12, %s' % (vr(t2), vr(t3), vr(t2)))
a('v_and_b32 %s, 1, %s' % (vr(t3), vr(V_Q)))
a('s_mul_i32 %s, %s, 48' % (sr(S_T0), sr(S_A)))
a('s_mul_i32 %s, %s, 96' % (sr(S_T1), sr(S_RB)))
a('s_add_u32 %s, %s, %s' % (sr(S_T0), sr(S_T0), sr(S_T1)))
a('s_lshl1_add_u32 %s, %s, %s' % (sr(S_T0), sr(S_B), sr(S_T0)))
a('v_add3_u32 %s, %s, %s, %s' % (vr(t2), vr(t2), vr(t3), sr(S_T0)))
a('v_mul_u32_u24 %s, 1152, %s' % (vr(t2), vr(t2)))
a('s_lshl_b32 %s, %s, 6' % (sr(S_T0), sr(S_A)))
a('v_xor_b32 %s, %s, %s' % (vr(V_DX), sr(S_T0), vr(c0)))
a('v_add_u32 %s, %s, %s' % (vr(V_DX), vr(V_DX), vr(t2)))
a('v_add_u32 %s, 4608, %s' % (vr(V_DX + 1), vr(V_DX)))
a('v_add_u32 %s, 9216, %s' % (vr(V_DX + 2), vr(V_DX)))
a('s_lshl_b32 %s, %s, 4' % (sr(S_T0), sr(S_PT)))
a('v_add_u32 %s, %s, %s' % (vr(t2), sr(S_T0), vr(t)))
a('v_mul_u32_u24 %s, 1152, %s' % (vr(t2), vr(t2)))
a('v_add_u32 %s, %s, %s' % (vr(V_DB), vr(t2), vr(c0)))
a('v_xor_b32 %s, 64, %s' % (vr(V_DB + 1), vr(c0)))
a('v_add_u32 %s, %s, %s' % (vr(V_DB + 1), vr(V_DB + 1), vr(t2)))
a('v_add_u32 %s, %d, %s' % (vr(V_DB + 1), 8 * 1152, vr(V_DB + 1)))
put(c0)
a('s_mov_b32 %s, 0x%x' % (sr(R_X + 2), 2048 * 1152))
a('s_mov_b32 %s, 0x20000' % sr(R_X + 3))
for r_ in (R_BRE, R_BIM):
    a('s_mov_b32 %s, 0x%x' % (sr(r_ + 2), 576 * 1152))
    a('s_mov_b32 %s, 0x20000' % sr(r_ + 3))
a('s_waitcnt lgkmcnt(0)')
a('s_mov_b64 %s, %s' % (sr(R_X, 2), sr(P_X, 2)))
a('s_mov_b64 %s, %s' % (sr(R_BRE, 2), sr(P_BRE, 2)))
a('s_mov_b64 %s, %s' % (sr(R_BIM, 2), sr(P_BIM, 2)))


def x_dma(s, blk, layer):
    tk = None
    for u in range(3):
        s('s_add_u32 m0, %s, %d' % (sr(S_W1K), L_IMG + blk * BLK + u * 4096))
        tk = s.mem('buffer_load_dwordx4 %s, %s, %s offen%s lds' % (vr(V_DX + u), sr(R_X if layer == 0 else R_WS, 4),
                                                                   sr((S_KP if layer == 0 else S_TT) + blk), ' nt' if layer == 0 else ' sc1'))
    return tk


WB = lambda kp, h, mat: ((kp * 2 + h) * 2 + mat) * 4


def b_dma(s, kp):
    tk = None
    for b in range(4):
        s('s_add_u32 m0, %s, %d' % (sr(S_RINGW), (kp % 3) * 4096 + b * 1024))
        tk = s.mem('buffer_load_dwordx4 %s, %s, %s offen lds' % (vr(V_DB + (b & 1)), sr(R_BRE if b < 2 else R_BIM, 4), sr(S_KP + kp)))
    return tk


xtk, btk = {}, {}
i0, kt = Stream(), Stream()
xtk[0] = x_dma(i0, 0, 0)
btk[0] = b_dma(i0, 0)
kt('s_load_dword %s, %s, 0' % (sr(S_TAG), sr(P_WS, 2)))
kt('s_mul_i32 %s, %s, 43' % (sr(S_T0), sr(S_RB)))
kt('s_lshr_b32 %s, %s, 7' % (sr(S_T0), sr(S_T0)))
kt('s_mul_i32 %s, %s, 3' % (sr(S_T0), sr(S_T0)))
kt('s_sub_u32 %s, %s, %s' % (sr(S_T0), sr(S_RB), sr(S_T0)))
kt('s_lshl_b32 %s, 128, %s' % (sr(S_T0), sr(S_T0)))
for i in range(1, 9):
    kt('s_add_u32 %s, %s, %s' % (sr(S_KP + i), sr(S_KP + i - 1), sr(S_T0)),
       's_sub_u32 %s, %s, 1152' % (sr(S_T1), sr(S_KP + i)),
       's_cselect_b32 %s, %s, %s' % (sr(S_KP + i), sr(S_KP + i), sr(S_T1)))
a.weave(i0, kt)
a('s_lshl_b32 %s, %s, 5' % (sr(S_T1), sr(S_PT)))
a('v_lshl_add_u32 %s, %s, 1, %s' % (vr(lad), vr(V_N), sr(S_T1)))
btk[1] = b_dma(a, 1)
a('global_load_ushort %s, %s, %s' % (vr(LAMT), vr(lad), sr(P_LRE, 2)))
a('global_load_ushort %s, %s, %s' % (vr(LAMT + 1), vr(lad), sr(P_LIM, 2)))
a('global_load_ushort %s, %s, %s' % (vr(LAMT + 2), vr(lad), sr(P_LDT, 2)))
srd(a, R_WS, P_WS, WS_SIZE)
su = Stream()
V_FB = V.get(2)
su('v_lshrrev_b32 %s, 1, %s' % (vr(t), vr(V_N)))
su('v_xor_b32 %s, %s, %s' % (vr(t), vr(t), vr(V_Q)))
su('v_lshlrev_b32 %s, 4, %s' % (vr(t), vr(t)))
su('v_lshl_add_u32 %s, %s, 7, %s' % (vr(V_FA), vr(V_N), vr(t)))
su('v_xor_b32 %s, 64, %s' % (vr(V_FA + 1), vr(V_FA)))
su('v_add_u32 %s, %d, %s' % (vr(V_FA + 2), 4 * BLK, vr(V_FA)))
su('v_add_u32 %s, %d, %s' % (vr(V_FA + 3), 4 * BLK, vr(V_FA + 1)))
su('v_add_u32 %s, %s, %s' % (vr(V_FB), sr(S_RINGW), vr(V_FA)))
su('v_add_u32 %s, %s, %s' % (vr(V_FB + 1), sr(S_RINGW), vr(V_FA + 1)))
srd(su, R_OUT, P_OUT, 2048 * 2304)
su('s_mov_b32 %s, 0x02020202' % sr(S_MSEL), 's_mov_b32 %s, 0x02020202' % sr(S_MSEL + 1))
su('s_mov_b32 %s, 0x13131313' % sr(S_MACT), 's_mov_b32 %s, 0x13131313' % sr(S_MACT + 1))
su('s_getreg_b32 %s, hwreg(HW_REG_XCC_ID, 0, 4)' % sr(S_XCC))
su('v_and_b32 %s, 1, %s' % (vr(t), vr(V_Q)))
su('v_mul_u32_u24 %s, 12, %s' % (vr(V_TAU), vr(t)))
su('v_lshrrev_b32 %s, 1, %s' % (vr(t2), vr(V_Q)))
su('v_add_u32 %s, %s, %s' % (vr(V_TAU), vr(V_TAU), vr(t2)))
su('s_mul_i32 %s, %s, 96' % (sr(S_T0), sr(S_RB)),
   's_mul_i32 %s, %s, 24' % (sr(S_T1), sr(S_WAVE)),
   's_add_u32 %s, %s, %s' % (sr(S_T0), sr(S_T0), sr(S_T1)),
   'v_add_u32 %s, %s, %s' % (vr(t3), sr(S_T0), vr(V_TAU)))
su('v_mul_u32_u24 %s, 2304, %s' % (vr(V_OROW), vr(t3)))
su('s_lshl_b32 %s, %s, 8' % (sr(S_T0), sr(S_CG)),
   'v_lshl_add_u32 %s, %s, 4, %s' % (vr(t3), vr(V_N), sr(S_T0)))
su('v_add_u32 %s, %s, %s' % (vr(V_OROW), vr(V_OROW), vr(t3)))
TI = V.get()
su('v_lshrrev_b32 %s, 3, %s' % (vr(TI), vr(V_N)))
su('v_mul_u32_u24 %s, 3, %s' % (vr(TI), vr(TI)))
su('v_bfe_u32 %s, %s, 2, 1' % (vr(t3), vr(V_N)))
su('v_cndmask_b32 %s, %s, 2, %s' % (vr(t3), vr(t3), sr(S_MSEL, 2)))
su('v_add_u32 %s, %s, %s' % (vr(TI), vr(TI), vr(t3)))
su('v_lshl_add_u32 %s, %s, 1, %s' % (vr(t3), vr(TI), vr(t2)))
su('v_lshlrev_b32 %s, 4, %s' % (vr(t3), vr(t3)))
su('v_lshl_add_u32 %s, %s, 2, %s' % (vr(V_TABW), vr(t), vr(t3)))
su('s_mul_i32 %s, %s, 192' % (sr(S_T0), sr(S_WAVE)),
   's_add_u32 %s, %s, %d' % (sr(S_T0), sr(S_T0), L_TAB),
   'v_add_u32 %s, %s, %s' % (vr(V_TABW), sr(S_T0), vr(V_TABW)))
su('v_mul_u32_u24 %s, 192, %s' % (vr(V_TABR), vr(V_Q)))
su('v_add_u32 %s, %d, %s' % (vr(V_TABR), L_TAB, vr(V_TABR)))
su('s_mul_i32 %s, %s, 96' % (sr(S_T0), sr(S_RB)),
   's_lshl2_add_u32 %s, %s, %s' % (sr(S_T0), sr(S_WAVE), sr(S_T0)),
   'v_add_u32 %s, %s, %s' % (vr(t), sr(S_T0), vr(V_Q)))
su('v_lshlrev_b32 %s, 8, %s' % (vr(t), vr(t)))
su('v_lshl_add_u32 %s, %s, 4, %s' % (vr(V_STR), vr(V_N), vr(t)))
su('v_cmp_gt_u32 vcc, 9, %s' % vr(V_N),
   'v_cndmask_b32 %s, %s, %s, vcc' % (vr(V_STR), vr(V_OOB), vr(V_STR)))
su('v_lshl_add_u32 %s, %s, 12, %s' % (vr(V_STW), vr(TI), vr(t)))
su('s_lshl_b32 %s, %s, 4' % (sr(S_T0), sr(S_CG)),
   'v_add_u32 %s, %s, %s' % (vr(V_STW), sr(S_T0), vr(V_STW)))
su('v_cndmask_b32 %s, %s, %s, %s' % (vr(V_STW), vr(V_OOB), vr(V_STW), sr(S_MACT, 2)))
put(TI)
su('s_lshl_b32 %s, %s, 2' % (sr(S_T0), sr(S_WAVE)),
   'v_add_u32 %s, %s, %s' % (vr(V_WA), sr(S_T0), vr(V_Q)))
su('v_xor_b32 %s, %s, %s' % (vr(t), vr(V_WA), vr(V_N)))
su('v_lshrrev_b32 %s, 1, %s' % (vr(t), vr(t)))
su('v_lshlrev_b32 %s, 4, %s' % (vr(t), vr(t)))
su('v_lshl_add_u32 %s, %s, 7, %s' % (vr(V_WA), vr(V_WA), vr(t)))
su('v_and_b32 %s, 1, %s' % (vr(t), vr(V_N)))
su('v_lshl_add_u32 %s, %s, 3, %s' % (vr(V_WA), vr(t), vr(V_WA)))
su('s_lshl_b32 %s, %s, 8' % (sr(S_T0), sr(S_RB)),
   'v_lshl_add_u32 %s, %s, 4, %s' % (vr(V_EW), vr(V_N), sr(S_T0)))
su('v_lshlrev_b32 %s, 8, %s' % (vr(t), vr(V_Q)))
su('v_sub_u32 %s, %s, %s' % (vr(V_ER), vr(V_EW), vr(t)))
su('v_subrev_u32 %s, 256, %s' % (vr(V_ER), vr(V_ER)))
su('v_cmp_gt_u32 vcc, 16, %s' % vr(V_LANE),
   'v_cndmask_b32 %s, %s, %s, vcc' % (vr(V_EW), vr(V_OOB), vr(V_EW)))
su('v_lshl_add_u32 %s, %s, 2, %s' % (vr(t), vr(V_N), vr(t)))
su('s_mul_i32 %s, %s, 6144' % (sr(S_T0), sr(S_WAVE)), 's_add_u32 %s, %s, %d' % (sr(S_T0), sr(S_T0), 5 * BLK),
   'v_add_u32 %s, %s, %s' % (vr(V_HW), sr(S_T0), vr(t)))
su('v_lshlrev_b32 %s, 4, %s' % (vr(t), vr(V_Q)))
su('v_lshl_add_u32 %s, %s, 6, %s' % (vr(t), vr(V_N), vr(t)))
su('s_mul_i32 %s, %s, 6144' % (sr(S_T0), sr(S_WAVE)), 's_add_u32 %s, %s, %d' % (sr(S_T0), sr(S_T0), 5 * BLK),
   'v_add_u32 %s, %s, %s' % (vr(V_HR), sr(S_T0), vr(t)))
a.extend(su)
put(t, t2, t3)
a('s_lshl_b32 %s, %s, 7' % (sr(S_T1), sr(S_CG)))
a('v_lshl_add_u32 %s, %s, 3, %s' % (vr(dad), vr(V_N), sr(S_T1)))
stamp(a, 'setup')


def b_read(s, kp):
    s.wait(btk[kp])
    tk = None
    for h in range(2):
        for mat in range(2):
            tk = s.mem('ds_read_b128 %s, %s offset:%d' % (ar(WB(kp, h, mat), 4), vr(V_FB + h), (kp % 3) * 4096 + mat * 2048))
    return tk


class KVm:
    pass


def kv_dma(s, kv):
    kv.SHK = V.get(4, top=True)
    t, t2, kh = V.get(), V.get(), V.get()
    s('s_cmp_lt_u32 %s, 6' % sr(S_CG),
      's_cselect_b32 %s, %d, 0' % (sr(R_K + 2), 2048 * 1152),
      's_mov_b32 %s, %s' % (sr(R_V + 2), sr(R_K + 2)),
      's_mov_b32 %s, %s' % (sr(R_K), sr(P_K)), 's_and_b32 %s, %s, 0xffff' % (sr(R_K + 1), sr(P_K + 1)),
      's_mov_b32 %s, 0x20000' % sr(R_K + 3))
    s('s_mov_b32 %s, %s' % (sr(R_V), sr(P_V)), 's_and_b32 %s, %s, 0xffff' % (sr(R_V + 1), sr(P_V + 1)),
      's_mov_b32 %s, 0x20000' % sr(R_V + 3))
    s('v_lshrrev_b32 %s, 3, %s' % (vr(t), vr(V_LANE)))
    s('v_mul_u32_u24 %s, 1152, %s' % (vr(t2), vr(t)))
    s('v_and_b32 %s, 7, %s' % (vr(t), vr(V_LANE)))
    s('v_lshl_add_u32 %s, %s, 4, %s' % (vr(t2), vr(t), vr(t2)))
    s('v_and_b32 %s, 31, %s' % (vr(t), vr(V_LANE)))
    s('s_lshl_b32 %s, %s, 9' % (sr(S_T1), sr(S_CG)),
      'v_lshl_add_u32 %s, %s, 4, %s' % (vr(t), vr(t), sr(S_T1)),
      'global_load_dwordx4 %s, %s, %s' % (vr(kv.SHK, 4), vr(t), sr(P_SHK, 2)))
    s('s_lshl2_add_u32 %s, %s, %s' % (sr(S_T0), sr(S_RB), sr(S_WAVE)),
      's_mul_i32 %s, %s, %d' % (sr(S_T0), sr(S_T0), 24 * 1152),
      's_lshl_b32 %s, %s, 7' % (sr(S_T1), sr(S_CG)),
      's_add_u32 %s, %s, %s' % (sr(S_T0), sr(S_T0), sr(S_T1)),
      'v_add_u32 %s, %s, %s' % (vr(t2), sr(S_T0), vr(t2)),
      'v_subrev_u32 %s, %d, %s' % (vr(kh), 8 * 1152, vr(t2)))
    s('s_mul_i32 %s, %s, 7168' % (sr(S_C), sr(S_WAVE)), 's_mov_b32 m0, %s' % sr(S_C))
    s('buffer_load_dwordx4 %s, %s, 0 offen nt lds' % (vr(kh), sr(R_K, 4)))
    for u in range(3):
        for base, rr in ((1024, R_K), (4096, R_V)):
            s('s_add_u32 m0, %s, %d' % (sr(S_C), base + u * 1024))
            kv.tok = s.mem('s_mov_b32 %s, %d' % (sr(S_T2), u * 8 * 1152),
                           'buffer_load_dwordx4 %s, %s, %s offen nt lds' % (vr(t2), sr(rr, 4), sr(S_T2)))
    kv.rel = [t, t2, kh]


def kv_core(kc, ntp, krow, vrow, SHK, emit_unit, touch=None):
    W, KU, P = V.get(8), V.get(16), V.get(16)
    S4 = V.get(4, 1)
    OU = V.get(8)
    ONE2 = V.get()
    kc('v_mov_b32 %s, 0x3f803f80' % vr(ONE2))
    kc('v_mov_b32 %s, %s' % (vr(OU + 3), vr(V_TAG)))
    kc('v_mov_b32 %s, %s' % (vr(OU + 7), vr(V_TAG)))
    for j in range(4):
        for ch in range(2):
            src = SHK + 2 * ch + (j >> 1)
            kc(('v_and_b32 %s, 0xffff0000, %s' if j & 1 else 'v_lshlrev_b32 %s, 16, %s') % (vr(W + 2 * j + ch), vr(src)))
    ku = lambda r: KU + 2 * ((r + 3) % 8)

    def unpack_k(r):
        kc('v_lshlrev_b32 %s, 16, %s' % (vr(ku(r)), vr(krow(r))))
        kc('v_and_b32 %s, 0xffff0000, %s' % (vr(ku(r) + 1), vr(krow(r))))

    for r in (-3, -2, -1):
        unpack_k(r)
    for tp in range(ntp):
        if touch is not None:
            touch(tp)
        for tt in range(2):
            unpack_k(2 * tp + tt)
        for tt in range(2):
            for j in range(4):
                kc('v_pk_mul_f32 %s, %s, %s' % (vr(P + tt * 8 + 2 * j, 2), vr(ku(2 * tp + tt - j), 2), vr(W + 2 * j, 2)))
        idx = [(tt, ch) for tt in range(2) for ch in range(2)]
        for step in range(3):
            for u, (tt, ch) in enumerate(idx):
                first = vr(P + tt * 8 + 6 + ch) if step == 0 else vr(S4 + u)
                kc('v_cvt_pk_bf16_f32 %s, %s, %s' % (vr(S4 + u), first, vr(P + tt * 8 + 2 * (2 - step) + ch)))
            for u in range(4):
                kc('v_dot2_f32_bf16 %s, %s, %s, 0' % (vr(S4 + u), vr(S4 + u), vr(ONE2)))
        for u, (tt, ch) in enumerate(idx):
            kc('v_cvt_pk_bf16_f32 %s, %s, %s' % (vr(S4 + u), vr(S4 + u) if ch == 0 else '0', '0' if ch == 0 else vr(S4 + u)))
        for u, (tt, ch) in enumerate(idx):
            kc('v_dot2_f32_bf16 %s, %s, %s, 0' % (vr(S4 + u), vr(S4 + u), vr(vrow(2 * tp + tt))))
        pos = ntp - 1 - tp
        for ch in range(2):
            kc('v_cvt_pk_bf16_f32 %s, %s, %s' % (vr(OU + 4 * ch + pos % 3), vr(S4 + 2 + ch), vr(S4 + ch)))
        if pos % 3 == 0:
            for ch in range(2):
                emit_unit(ch, pos // 3, OU + 4 * ch)
    put((W, 8), (KU, 16), (P, 16), (S4, 4), (OU, 8), ONE2)


def kv_main(s, kv, ks):
    ka, kb, t, t2 = [V.get() for _ in range(4)]
    s('v_lshrrev_b32 %s, 5, %s' % (vr(t), vr(V_LANE)))
    s('v_and_b32 %s, 31, %s' % (vr(t2), vr(V_LANE)))
    s('v_mul_u32_u24 %s, 1536, %s' % (vr(ka), vr(t)))
    s('v_lshl_add_u32 %s, %s, 2, %s' % (vr(ka), vr(t2), vr(ka)))
    s('s_mul_i32 %s, %s, 7168' % (sr(S_T0), sr(S_WAVE)),
      's_add_u32 %s, %s, 512' % (sr(S_T0), sr(S_T0)),
      'v_add_u32 %s, %s, %s' % (vr(ka), sr(S_T0), vr(ka)))
    s('v_add_u32 %s, 128, %s' % (vr(kb), vr(ka)))
    KR, VR = V.get(16, 2), V.get(12, 2)
    ridx = lambda r: (r >> 2) * 4 + (r & 1) * 2 + ((r >> 1) & 1)
    krow = lambda r: KR + ridx(r + 4)
    vrow = lambda r: VR + ridx(r)
    s.wait(kv.tok)
    for g in range(4):
        for par in range(2):
            s('ds_read2st64_b32 %s, %s offset0:%d offset1:%d' % (vr(KR + g * 4 + par * 2, 2), vr(kb if par else ka), 2 * g, 2 * g + 1))
        if g > 0:
            for par in range(2):
                s('ds_read2st64_b32 %s, %s offset0:%d offset1:%d' % (vr(VR + (g - 1) * 4 + par * 2, 2), vr(kb if par else ka),
                                                                     14 + 2 * (g - 1), 14 + 2 * (g - 1) + 1))
    s('v_sub_u32 %s, 1, %s' % (vr(t), vr(t)))
    s('v_lshlrev_b32 %s, 5, %s' % (vr(t), vr(t)))
    s('v_mul_u32_u24 %s, 528, %s' % (vr(t2), vr(t2)))
    s('s_lshl_b32 %s, %s, 6' % (sr(S_T0), sr(S_WAVE)),
      's_sub_u32 %s, 192, %s' % (sr(S_T0), sr(S_T0)),
      'v_add3_u32 %s, %s, %s, %s' % (vr(t), vr(t), vr(t2), sr(S_T0)),
      's_mul_i32 %s, %s, 4224' % (sr(S_T0), sr(S_WAVE)),
      'v_lshrrev_b32 %s, 5, %s' % (vr(t2), vr(V_LANE)),
      'v_lshlrev_b32 %s, 4, %s' % (vr(t2), vr(t2)),
      'v_add3_u32 %s, %s, %s, %s' % (vr(t2), vr(t2), vr(V_L16), sr(S_T0)))
    tks = []
    kv_core(s, 6, krow, vrow, kv.SHK,
            lambda ch, un, reg: tks.append(s.mem('ds_write_b128 %s, %s offset:%d' % (vr(t), vr(reg, 4), L_KVO + ch * 256 + un * 16))))
    put((KR, 16), (VR, 12), (kv.SHK, 4))
    D = V.get(16)
    s('v_mul_u32_u24 %s, %d, %s' % (vr(ka), KVT_STR, vr(V_Q)))
    s('v_lshl_add_u32 %s, %s, 4, %s' % (vr(ka), vr(V_N), vr(ka)))
    s('s_mul_i32 %s, %s, %d' % (sr(S_T0), sr(S_PT), 16 * KVT_STR),
      's_lshl_b32 %s, %s, 8' % (sr(S_T1), sr(S_RB)),
      's_sub_u32 %s, %s, %s' % (sr(S_T0), sr(S_T0), sr(S_T1)),
      's_add_u32 %s, %s, %d' % (sr(S_T0), sr(S_T0), WS_KVT + 21 * 256),
      's_cmp_lt_u32 %s, 6' % sr(S_CG),
      's_cselect_b32 %s, %s, 0x40000000' % (sr(S_T0), sr(S_T0)),
      'v_add_u32 %s, %s, %s' % (vr(ka), sr(S_T0), vr(ka)))
    ks.wait(tks[-1])
    ks('s_barrier')
    for i in range(4):
        ks('ds_read_b128 %s, %s offset:%d' % (vr(D + 4 * i, 4), vr(t2), L_KVO + i * 1056))
    for i in range(4):
        ks('s_mov_b32 %s, %d' % (sr(S_T1), 4 * i * KVT_STR),
           'buffer_store_dwordx4 %s, %s, %s, %s offen sc1' % (vr(D + 4 * i, 4), vr(ka), sr(R_WS, 4), sr(S_T1)))
    ks('s_nop 1')
    put((D, 16), ka, kb, t, t2)


def stats_partial(s, X, S, Q, i, d, pk):
    x = X + 4 * i
    if pk:
        s('v_pk_add_f32 %s, %s, %s' % (vr(d, 2), vr(x, 2), vr(x + 2, 2)),
          'v_pk_mul_f32 %s, %s, %s' % (vr(d + 2, 2), vr(x, 2), vr(x, 2)),
          'v_add_f32 %s, %s, %s' % (vr(S + i), vr(d), vr(d + 1)),
          'v_pk_fma_f32 %s, %s, %s, %s' % (vr(d + 2, 2), vr(x + 2, 2), vr(x + 2, 2), vr(d + 2, 2)),
          'v_add_f32 %s, %s, %s' % (vr(Q + i), vr(d + 2), vr(d + 3)))
    else:
        s('v_add_f32 %s, %s, %s' % (vr(S + i), vr(x), vr(x + 1)))
        s('v_mul_f32 %s, %s, %s' % (vr(Q + i), vr(x), vr(x)))
        s('v_add_f32 %s, %s, %s' % (vr(S + i), vr(S + i), vr(x + 2)))
        s('v_fmac_f32 %s, %s, %s' % (vr(Q + i), vr(x + 1), vr(x + 1)))
        s('v_add_f32 %s, %s, %s' % (vr(S + i), vr(S + i), vr(x + 3)))
        s('v_fmac_f32 %s, %s, %s' % (vr(Q + i), vr(x + 2), vr(x + 2)))
        s('v_fmac_f32 %s, %s, %s' % (vr(Q + i), vr(x + 3), vr(x + 3)))


def stats_publish(s, X, which, fast, pk=True, SQ=None, tiles=range(MT)):
    if SQ is None:
        S, Q = V.get(6, 1), V.get(6, 1)
    else:
        S, Q = SQ
    d = V.get(4)
    for i in tiles:
        stats_partial(s, X, S, Q, i, d, pk)
    s('v_add_u32 %s, %d, %s' % (vr(d + 1), 16 * which, vr(V_TAG)))
    if which == 0:
        s('v_add_u32 %s, %s, %s' % (vr(d + 3), sr(S_XCC), vr(V_TAG)))
    else:
        s('v_add_u32 %s, %d, %s' % (vr(d + 3), 16 * which, vr(V_TAG)))
    rs12(s, [S + i for i in range(6)], [Q + i for i in range(6)])
    s('v_cndmask_b32 %s, %s, %s, %s' % (vr(d), vr(S), vr(S + 2), sr(S_MSEL, 2)))
    s('v_cndmask_b32 %s, %s, %s, %s' % (vr(d + 2), vr(Q), vr(Q + 2), sr(S_MSEL, 2)))
    txt = ['s_mov_b32 %s, %d' % (sr(S_T0), WS_ST + (which == 2) * ST_SZ),
           'buffer_store_dwordx4 %s, %s, %s, %s offen {P}' % (vr(d, 4), vr(V_STW), sr(R_WS, 4), sr(S_T0)), 's_nop 1']
    if fast:
        dual(s, txt)
    else:
        s(*[x.replace('{P}', 'sc1') for x in txt])
    put((S, 6), (Q, 6), (d, 4))


def stats_loads(which, G):
    L = []
    for i in range(MT):
        L.append('s_mov_b32 %s, %d' % (sr(S_T0), WS_ST + (which == 2) * ST_SZ + 4096 * i))
        L.append('buffer_load_dwordx4 %s, %s, %s, %s offen sc1' % (vr(G + 4 * i, 4), vr(V_STR), sr(R_WS, 4), sr(S_T0)))
    return L


def stats_exp(s, which):
    e = V.get()
    s('v_add_u32 %s, %d, %s' % (vr(e), 16 * which, vr(V_TAG)),
      'v_cmp_gt_u32 vcc, 9, %s' % vr(V_N),
      'v_cndmask_b32 %s, 0, %s, vcc' % (vr(e), vr(e)))
    return e


def stats_finish(s, G):
    rs12(s, [G + 4 * i for i in range(6)], [G + 4 * i + 2 for i in range(6)])
    P = V.get(4, top=True)
    for k, src in ((0, G), (1, G + 8)):
        s('v_mul_f32 %s, 0x3ae38e39, %s' % (vr(P + 2 * k), vr(src)))
        s('v_mul_f32 %s, 0x3ae38e39, %s' % (vr(P + 2 * k + 1), vr(src + 2)))
    for k in range(2):
        s('v_fma_f32 %s, -%s, %s, %s' % (vr(P + 2 * k + 1), vr(P + 2 * k), vr(P + 2 * k), vr(P + 2 * k + 1)))
    for k in range(2):
        s('v_max_f32 %s, 0, %s' % (vr(P + 2 * k + 1), vr(P + 2 * k + 1)))
    return P


def bcast(s, dst, P, i):
    k, lane = tile_src(i)
    s('v_mov_b64_dpp %s, %s row_newbcast:%d row_mask:0xf bank_mask:0xf' % (vr(dst, 2), vr(P + 2 * k, 2), lane))


def ln_table(s, layer, G, RBG):
    P = stats_finish(s, G)
    put((G, 24))
    mu = [P, P + 2]
    va = [P + 1, P + 3]
    if layer == 0:
        rbf(s, mu + va)
        for r in va:
            s('v_add_f32 %s, 0x3727c5ac, %s' % (vr(r), vr(r)))
        rbf(s, va)
        for r in va:
            s('v_sqrt_f32 %s, %s' % (vr(r), vr(r)))
        rbf(s, va)
        for r in va:
            s('v_rcp_f32 %s, %s' % (vr(r), vr(r)))
        s('v_mov_b32 %s, %s' % (vr(OFF), vr(mu[0])), 'v_mov_b32 %s, %s' % (vr(OFF + 1), vr(mu[1])))
    else:
        for r in va:
            s('v_add_f32 %s, 0x3727c5ac, %s' % (vr(r), vr(r)))
        for r in va:
            s('v_rsq_f32 %s, %s' % (vr(r), vr(r)))
        s('v_add_f32 %s, %s, %s' % (vr(OFF), vr(OFF), vr(mu[0])), 'v_add_f32 %s, %s, %s' % (vr(OFF + 1), vr(OFF + 1), vr(mu[1])))
    with V.borrow(*HOMES):
        d = V.get(2)
    s('v_cndmask_b32 %s, %s, %s, %s' % (vr(d), vr(va[0]), vr(va[1]), sr(S_MSEL, 2)))
    s('v_cndmask_b32 %s, %s, %s, %s' % (vr(d + 1), vr(mu[0]), vr(mu[1]), sr(S_MSEL, 2)))
    s('v_mul_f32 %s, %s, %s' % (vr(d + 1), vr(d + 1), vr(d)))
    tk = s.mem('s_mov_b64 exec, %s' % sr(S_MACT, 2),
               'ds_write2_b32 %s, %s, %s offset0:0 offset1:2' % (vr(V_TABW), vr(d), vr(d + 1)),
               's_mov_b64 exec, -1')
    put((d, 2))
    return tk, P


def ln_rest(r, layer, P):
    b = V.get(2)
    tmp = V.get(4)
    for i in range(MT):
        x = BASE + 4 * i
        bcast(r, b, P, i)
        for k in range(2):
            r('v_pk_add_f32 %s, %s, %s op_sel:[0,0] op_sel_hi:[1,0] neg_lo:[0,1] neg_hi:[0,1]' % (vr(x + 2 * k, 2), vr(x + 2 * k, 2), vr(b, 2)))
        if layer == 0:
            for k in range(2):
                r('v_cvt_pk_bf16_f32 %s, %s, %s' % (vr(tmp + 2 * k), vr(x + 2 * k), vr(x + 2 * k + 1)))
            for rep in range(3):
                for k in range(2):
                    r('v_and_b32 %s, 0xffff0000, %s' % (vr(tmp + 2 * k + 1), vr(tmp + 2 * k)),
                      'v_lshlrev_b32 %s, 16, %s' % (vr(tmp + 2 * k), vr(tmp + 2 * k)))
                for k in range(2):
                    if rep == 0:
                        r('v_pk_mul_f32 %s, %s, %s op_sel:[0,1] op_sel_hi:[1,1]' % (vr(tmp + 2 * k, 2), vr(tmp + 2 * k, 2), vr(b, 2)))
                    elif rep == 1:
                        r('v_pk_mul_f32 %s, %s, %s' % (vr(tmp + 2 * k, 2), vr(tmp + 2 * k, 2), vr(V_DSK + 2 * k, 2)))
                    else:
                        r('v_pk_add_f32 %s, %s, %s' % (vr(x + 2 * k, 2), vr(x + 2 * k, 2), vr(tmp + 2 * k, 2)))
                if rep < 2:
                    for k in range(2):
                        r('v_cvt_pk_bf16_f32 %s, %s, %s' % (vr(tmp + 2 * k), vr(tmp + 2 * k), vr(tmp + 2 * k + 1)))
        else:
            for k in range(2):
                r('v_pk_fma_f32 %s, %s, %s, 1.0 op_sel:[0,1,0] op_sel_hi:[1,1,0]' % (vr(tmp + 2 * k, 2), vr(V_DSK + 2 * k, 2), vr(b, 2)))
            for k in range(2):
                r('v_pk_mul_f32 %s, %s, %s' % (vr(x + 2 * k, 2), vr(x + 2 * k, 2), vr(tmp + 2 * k, 2)))
    put((P, 4), (b, 2), (tmp, 4))


def a_reads(k, AF):
    s = Stream()
    kp, h = k >> 1, k & 1
    base = V_FA + h + (2 if kp >= 4 else 0)
    off = (kp - (4 if kp >= 4 else 0)) * BLK
    for i in range(MT):
        s('ds_read_b128 %s, %s offset:%d' % (vr(AF + (k & 1) * 24 + i * 4, 4), vr(base), off + i * 2048))
    return s


def b_mfmas(k, ACC, AF, ones=None):
    s = Stream()
    kp, h = k >> 1, k & 1
    if ones is not None:
        for mat in range(2):
            s('v_mfma_f32_16x16x32_bf16 %s, %s, %s, %s' % (vr(ones[1] + mat * 4, 4), vr(ones[0], 4), ar(WB(kp, h, mat), 4),
                                                          '0' if k == 0 else vr(ones[1] + mat * 4, 4)))
    for i in range(MT):
        if i % 3 == 0:
            s.touch(vr(AF + (k & 1) * 24 + i * 4, 12))
        for mat in range(2):
            d = ACC + (mat * MT + i) * 4
            s('v_mfma_f32_16x16x32_bf16 %s, %s, %s, %s' % (vr(d, 4), vr(AF + (k & 1) * 24 + i * 4, 4), ar(WB(kp, h, mat), 4),
                                                          '0' if k == 0 else vr(d, 4)))
    return s


def split(stream, n):
    g = stream.groups
    parts = []
    for i in range(n):
        p = Stream()
        p.groups = g[len(g) * i // n: len(g) * (i + 1) // n]
        parts.append(p)
    return parts


def ensure(sc, tok):
    for q in sc.sides:
        idx = [i for i, g in enumerate(q) if any((not isinstance(it, tuple)) and it.tok is tok for it in g)]
        if idx:
            for _ in range(idx[0] + 1):
                sc._emit(q.pop(0))


def gemm_b(a, ACC, AF, xtok, pre, side, ones=None, vm=None, need=None):
    sc = Sched(a)
    qr, qv, qs = sc.add(Stream()), sc.add(Stream()), sc.add(Stream())
    b = Stream()
    b.wait(xtok(0))
    b('s_barrier')
    b.extend(a_reads(0, AF))
    sc.run(b)
    for k in range(18):
        sc.flush(qr)
        if k == 9:
            print('side leftover at k', k, len(qs))
            sc.flush(qs)
        if need is not None:
            for tk in need.get(k, []):
                ensure(sc, tk)
        if pre[k].groups:
            for g in pre[k].groups:
                for it in g:
                    if isinstance(it, tuple) and it[0] == 'wait':
                        for tk in it[1]:
                            ensure(sc, tk)
            if any(not isinstance(it, tuple) for g in pre[k].groups for it in g):
                sc.flush()
            sc.run(pre[k])
        b = Stream()
        if k & 1 and k < 17:
            ensure(sc, xtok((k + 1) >> 1))
            b.wait(xtok((k + 1) >> 1))
            b('s_barrier')
            sides, sc.sides = sc.sides, []
            sc.run(b)
            sc.sides = sides
        if k < 17:
            qr.extend(a_reads(k + 1, AF).groups)
        if vm is not None:
            qv.extend(vm[k].groups)
        qs.extend(side[k].groups)
        sc.run(b_mfmas(k, ACC, AF, ones))
        if OPT['fine'] and k % 3 == 2:
            stamp(a, 'k%d' % k)
    print('gemm_b leftover', sc.pending(), 'model time', sc.t)
    sc.flush()


class Conv:
    pass


def conv_setup_k(s, cv, keep=False):
    s('s_lshl1_add_u32 %s, %s, %s' % (sr(S_T0), sr(S_PAIR), sr(S_B)),
      's_lshl_b32 %s, %s, 12' % (sr(S_T1), sr(S_T0)),
      's_add_u32 %s, %s, %s' % (sr(R_SK), sr(P_SSK), sr(S_T1)),
      's_addc_u32 %s, %s, 0' % (sr(R_SK + 1), sr(P_SSK + 1)),
      's_and_b32 %s, %s, 0xffff' % (sr(R_SK + 1), sr(R_SK + 1)),
      's_mov_b32 %s, 4096' % sr(R_SK + 2),
      's_mov_b32 %s, 0x20000' % sr(R_SK + 3))
    cv.SD = V.get(2, top=True)
    cv.HD = V.get(top=True)
    s('s_lshl_b32 %s, %s, 2' % (sr(S_T1), sr(S_PAIR)),
      'v_mov_b32 %s, %s' % (vr(cv.SD), sr(S_T1)),
      'global_load_dword %s, %s, %s' % (vr(cv.SD), vr(cv.SD), sr(P_SSD, 2)))
    s('v_add_u32 %s, %s, %s' % (vr(cv.HD), vr(V_N), vr(V_Q)),
      'v_subrev_u32 %s, 16, %s' % (vr(cv.HD), vr(cv.HD)),
      'v_lshlrev_b32 %s, 2, %s' % (vr(cv.HD), vr(cv.HD)),
      'buffer_load_dword %s, %s, %s, 0 offen' % (vr(cv.HD), vr(cv.HD), sr(R_SK, 4)))
    for c in range(2):
        s('s_mul_i32 %s, %s, %d' % (sr(S_T2), sr(S_B), KC_CH),
          's_mul_i32 %s, %s, %d' % (sr(S_T3), sr(S_A), (16 + 8320) if c == 0 else 8320),
          's_add_u32 %s, %s, %s' % (sr(S_T3), sr(S_T3), sr(S_T2)),
          's_add_u32 m0, %s, %d' % (sr(S_T3), L_KC + 64 + (0 if c == 0 else 16 + 4160)),
          's_lshl_b32 %s, %s, 3' % (sr(S_C), sr(S_A)),
          's_add_u32 %s, %s, %d' % (sr(S_C), sr(S_C), 4 * c))
        for part in range(4):
            cv.ktk = s.mem('buffer_load_dwordx4 %s, %s, %s offen offset:%d nt lds' % (vr(V_L16), sr(R_SK, 4), sr(S_C), part * 1024))


def conv_u_prep(s, cv):
    cv.UA = V.get(2, 1, top=True)
    cv.UE = V.get(top=True)
    cv.UN = V.get(top=True)
    cv.U = V.get(16, top=True)
    U, UA, UE = cv.U, cv.UA, cv.UE
    s('s_lshl1_add_u32 %s, %s, %s' % (sr(S_T0), sr(S_PAIR), sr(S_B)),
      's_mul_i32 %s, %s, %d' % (sr(S_T1), sr(S_T0), KVT_STR),
      's_mul_i32 %s, %s, %d' % (sr(S_T3), sr(S_A), 171 * 16),
      's_add_u32 %s, %s, %s' % (sr(S_T1), sr(S_T1), sr(S_T3)),
      's_add_u32 %s, %s, %d' % (sr(S_T1), sr(S_T1), WS_KVT + 10 * 16),
      'v_add_u32 %s, %s, %s' % (vr(UA), sr(S_T1), vr(V_L16)))
    s('s_sub_u32 %s, 44, %s' % (sr(S_T0), sr(S_A)),
      'v_cmp_gt_u32 vcc, %s, %s' % (sr(S_T0), vr(V_LANE)),
      'v_cndmask_b32 %s, %s, %s, vcc' % (vr(UA + 1), vr(V_OOB), vr(UA)),
      'v_cndmask_b32 %s, 0, %s, vcc' % (vr(UE), vr(V_TAG)))
    s('s_sub_u32 %s, 43, %s' % (sr(S_T0), sr(S_A)),
      'v_cmp_gt_u32 vcc, %s, %s' % (sr(S_T0), vr(V_LANE)),
      'v_cndmask_b32 %s, %s, %s, vcc' % (vr(cv.UN), vr(V_OOB), vr(UA)))
    cv.uloads = []
    for i in range(3):
        cv.uloads.append('buffer_load_dwordx4 %s, %s, %s, 0 offen offset:%d sc1' % (vr(U + 4 * i, 4), vr(UA + (i >> 1)), sr(R_WS, 4), 1024 * i))
    for i in range(3):
        cv.uloads.append('buffer_load_dword %s, %s, %s, 0 offen offset:%d sc1' % (vr(U + 12 + i), vr(UA if i < 2 else cv.UN), sr(R_WS, 4), 1024 * i + 16))
    cv.uchecks = [(U + 3, U + 7, V_TAG), (U + 11, None, UE)]


def conv_addr(s, cv):
    cv.ah, cv.az, cv.au, cv.vN, cv.vM = [V.get(top=True) for _ in range(5)]
    t, e = V.get(), V.get()
    ah, az, au, vN, vM = cv.ah, cv.az, cv.au, cv.vN, cv.vM
    s('v_mul_u32_u24 %s, 4160, %s' % (vr(ah), vr(V_Q)))
    s('v_min_u32 %s, 1, %s' % (vr(e), vr(V_Q)))
    s('v_lshl_add_u32 %s, %s, 4, %s' % (vr(ah), vr(e), vr(ah)))
    s('v_lshl_add_u32 %s, %s, 2, %s' % (vr(ah), vr(V_N), vr(ah)))
    s('s_mul_i32 %s, %s, %d' % (sr(S_T2), sr(S_B), KC_CH),
      's_add_u32 %s, %s, %d' % (sr(S_T3), sr(S_T2), L_KC),
      'v_add_u32 %s, %s, %s' % (vr(ah), sr(S_T3), vr(ah)))
    s('s_mul_i32 %s, %s, %d' % (sr(S_T2), sr(S_B), UC_CH),
      's_mul_i32 %s, %s, 4640' % (sr(S_T3), sr(S_A)),
      's_add_u32 %s, %s, %s' % (sr(S_T3), sr(S_T3), sr(S_T2)),
      'v_lshl_add_u32 %s, %s, 3, %s' % (vr(az), vr(V_LANE), sr(S_T3)))
    s('v_mul_u32_u24 %s, 12, %s' % (vr(au), vr(V_LANE)))
    s('s_mul_i32 %s, %s, %d' % (sr(S_T2), sr(S_B), UC_CH),
      's_mul_i32 %s, %s, %d' % (sr(S_T3), sr(S_A), 171 * 12),
      's_add_u32 %s, %s, %s' % (sr(S_T3), sr(S_T3), sr(S_T2)),
      'v_add_u32 %s, %s, %s' % (vr(au), sr(S_T3), vr(au)))
    s('v_add_u32 %s, 1, %s' % (vr(t), vr(V_N)))
    s('v_and_b32 %s, 3, %s' % (vr(e), vr(t)))
    s('v_mul_u32_u24 %s, 4160, %s' % (vr(vN), vr(e)))
    s('v_min_u32 %s, 1, %s' % (vr(e), vr(e)))
    s('v_lshrrev_b32 %s, 2, %s' % (vr(t), vr(t)))
    s('v_add3_u32 %s, %s, %s, %s' % (vr(t), vr(t), vr(e), vr(V_Q)))
    s('v_lshl_add_u32 %s, %s, 4, %s' % (vr(vN), vr(t), vr(vN)))
    s('s_mul_i32 %s, %s, %d' % (sr(S_T3), sr(S_B), KC_CH),
      's_lshl_b32 %s, %s, 8' % (sr(S_T1), sr(S_A)),
      's_add_u32 %s, %s, %s' % (sr(S_T3), sr(S_T3), sr(S_T1)),
      's_add_u32 %s, %s, %d' % (sr(S_T3), sr(S_T3), L_KC),
      'v_add_u32 %s, %s, %s' % (vr(vN), sr(S_T3), vr(vN)))
    s('v_and_b32 %s, 1, %s' % (vr(t), vr(V_N)))
    s('v_sub_u32 %s, 1, %s' % (vr(t), vr(t)))
    s('v_mul_u32_u24 %s, 4640, %s' % (vr(vM), vr(t)))
    s('v_lshrrev_b32 %s, 1, %s' % (vr(t), vr(V_N)))
    s('v_lshlrev_b32 %s, 6, %s' % (vr(t), vr(t)))
    s('v_sub_u32 %s, %s, %s' % (vr(vM), vr(vM), vr(t)))
    s('v_lshl_add_u32 %s, %s, 4, %s' % (vr(vM), vr(V_Q), vr(vM)))
    s('s_mul_i32 %s, %s, %d' % (sr(S_T2), sr(S_B), UC_CH),
      's_lshl_b32 %s, %s, 8' % (sr(S_T1), sr(S_A)),
      's_add_u32 %s, %s, %s' % (sr(S_T3), sr(S_T2), sr(S_T1)),
      's_add_u32 %s, %s, %d' % (sr(S_T3), sr(S_T3), L_UC + 448),
      'v_add_u32 %s, %s, %s' % (vr(vM), sr(S_T3), vr(vM)))
    return [t, e]


def conv_body(a, cv, side=None, pre_issued=True, early=None, release=True, last=None):
    U, HD = cv.U, cv.HD
    vN, vM = cv.vN, cv.vM
    a('ds_write_b32 %s, %s' % (vr(cv.ah), vr(HD)))
    a('ds_write_b64 %s, %s offset:%d' % (vr(cv.az), vr(V_ZERO, 2), L_UC + 4096))
    if early is not None:
        a.extend(early)
    poll(a, cv.uloads, cv.uchecks, pre_issued=pre_issued, sleep=OPT['slp2'] if pre_issued else OPT['slp'])
    a.touch(vr(U, 15))
    U1 = V.get(9, 1)
    for i in range(3):
        if i == 2:
            a('v_cmp_gt_u32 vcc, 43, %s' % vr(V_LANE), 's_mov_b64 exec, vcc')
        for k in range(3):
            a('ds_write_b32 %s, %s offset:%d' % (vr(cv.au), vr(U + 4 * i + k), L_UC - 8 + 768 * i + 4 * k))
            hi = U + 4 * i + k + 1 if k < 2 else U + 12 + i
            a('v_alignbit_b32 %s, %s, %s, 16' % (vr(U1 + 3 * i + k), vr(hi), vr(U + 4 * i + k)))
        for k in range(3):
            tk = a.mem('ds_write_b32 %s, %s offset:%d' % (vr(cv.au), vr(U1 + 3 * i + k), L_UC - 8 + 4640 + 768 * i + 4 * k))
    a('s_mov_b64 exec, -1')
    a.wait(tk, cv.ktk)
    a('s_barrier')
    put((U, 16), (U1, 9), HD, (cv.UA, 2), cv.UE, cv.UN)
    if release:
        put(cv.ah, cv.az, cv.au)
    stamp(a, 'conv_ld')
    if not pre_issued:
        astamp(a, 11)
    with V.borrow((GP, 12)):
        CA = [V.get(4) for _ in range(8)]
    FN, FM = [[V.get(4) for _ in range(8)] for _ in range(2)]
    AW = V.get(3, 1)
    t = V.get()
    rdN = lambda x, cc: 'ds_read_b128 %s, %s offset:%d' % (vr(FN[x], 4), vr(vN), 512 * x + 64 * cc)
    rdM = lambda x, cc: 'ds_read_b128 %s, %s offset:%d' % (vr(FM[x], 4), vr(vM), 512 * (7 - x) + 64 * cc)
    m = Stream()
    m(rdN(0, 0))
    for x in range(7, -1, -1):
        m(rdM(x, 0))
    m('v_lshlrev_b32 %s, 1, %s' % (vr(t), vr(V_N)))
    m('v_lshl_add_u32 %s, %s, 6, %s' % (vr(t), vr(V_Q), vr(t)))
    for j in range(3):
        m('v_add_u32 %s, %d, %s' % (vr(AW + j), j, vr(t)))
        m('v_mul_u32_u24 %s, 171, %s' % (vr(AW + j), vr(AW + j)))
        m('v_lshrrev_b32 %s, 9, %s' % (vr(AW + j), vr(AW + j)))
        m('v_add_u32 %s, %s, %s' % (vr(AW + j), vr(AW + j), vr(t)))
        m('s_mul_i32 %s, %s, %d' % (sr(S_T3), sr(S_WAVE), CO_W),
          'v_lshl_add_u32 %s, %s, 2, %s' % (vr(AW + j), vr(AW + j), sr(S_T3)))

    def stage(m, i):
        tk = None
        for r in range(4):
            c = 256 * i + 32 * (r >> 1) + (r & 1)
            tk = m.mem('ds_write_b32 %s, %s offset:%d' % (vr(AW + c % 3), vr(CA[i] + r), L_CO + 4 * (c + c // 3)))
        return tk

    for cc in range(4):
        if cc == 3:
            sc = Sched(a)
            sc.VM_GAP = 85
            if side is not None:
                qs_ = [sc.add(x) for x in side]
            sc.run(m)
            if side is not None:
                sc.flush(qs_[0])
            sc.VM_GAP = 30
            m = Stream()
            if last is not None:
                last(m, None)
        for aa in range(8):
            for dl in range(7 - aa, -1, -1):
                i = aa + dl
                z = cc == 0 and aa == 0
                m('v_mfma_f32_16x16x32_bf16 %s, %s, %s, %s' % (vr(CA[i], 4), vr(FM[dl], 4), vr(FN[aa], 4),
                                                              '0' if z else vr(CA[i], 4)))
                if cc == 0 and aa == 0 and dl > 0:
                    m(rdN(8 - dl, 0))
                if dl == 7 - aa:
                    if cc < 3:
                        m(rdM(dl, cc + 1))
                    elif last is not None:
                        last(m, FM[dl])
            if cc < 3:
                m(rdN(aa, cc + 1))
            else:
                if last is not None:
                    last(m, FN[aa])
                if 2 <= aa:
                    stage(m, aa - 2)
    stage(m, 6)
    cv.stk = stage(m, 7)
    sc.run(m)
    print('conv leftover', sc.pending(), 'model time', sc.t)
    sc.flush()
    put(*[(r, 4) for r in CA])
    if last is None:
        put(*[(r, 4) for r in FN + FM])
    put((AW, 3), t)
    if release:
        put(vN, vM)
    stamp(a, 'conv_mm')
    if not pre_issued:
        astamp(a, 12)


def conv_final(s, cv, Y0=None):
    SD = cv.SD
    ay, ak, ag = V.get(), V.get(), V.get()
    Y1 = [V.get(4) for _ in range(4)]
    own0 = Y0 is None
    if own0:
        Y0 = [V.get(4) for _ in range(4)]
    Ys = [Y0, Y1, Y1]
    KVs = [V.get(4), V.get(4)]
    D = V.get(6, 1)
    GO = V.get(4)
    t = V.get()
    s('v_lshlrev_b32 %s, 4, v0' % vr(ay))
    s('v_mul_u32_u24 %s, 6, v0' % vr(ak))
    s('v_sub_u32 %s, %d, %s' % (vr(ak), 4090, vr(ak)))
    s('v_and_b32 %s, -4, %s' % (vr(ak), vr(ak)))
    s('v_and_b32 %s, 1, v0' % vr(t))
    s('v_sub_u32 %s, 1, %s' % (vr(t), vr(t)))
    s('v_mul_u32_u24 %s, 4640, %s' % (vr(t), vr(t)))
    s('v_add_u32 %s, %s, %s' % (vr(ak), vr(ak), vr(t)))

    def reads(j):
        if j > 0:
            s('v_subrev_u32 %s, 1536, %s' % (vr(ak), vr(ak)))
        if j == 2:
            s('v_max_i32 %s, 0, %s' % (vr(ak), vr(ak)))
        for ch in range(2):
            for k in range(2):
                s('ds_read_b32 %s, %s offset:%d' % (vr(KVs[j & 1] + 2 * ch + k), vr(ak), L_UC + ch * UC_CH + 4 * k))
        for w in range(4):
            s('ds_read_b128 %s, %s offset:%d' % (vr(Ys[j][w], 4), vr(ay), L_CO + w * CO_W + j * 4096))

    reads(0)
    s('v_and_b32 %s, 0xffff0000, %s' % (vr(SD + 1), vr(SD)))
    s('v_lshlrev_b32 %s, 16, %s' % (vr(SD), vr(SD)))
    s('s_mul_i32 %s, %s, %d' % (sr(S_T1), sr(S_PAIR), G_STR),
      's_add_u32 %s, %s, %d' % (sr(S_T1), sr(S_T1), WS_G),
      'v_add_u32 %s, %s, %s' % (vr(ag), sr(S_T1), vr(ay)))
    s('v_mov_b32 %s, %s' % (vr(GO + 3), vr(V_TAG)))
    reads(1)
    for j in range(3):
        KV, Y = KVs[j & 1], Ys[j]
        if j > 0:
            s('v_add_u32 %s, 4096, %s' % (vr(ag), vr(ag)))
        if j == 2:
            s('v_cmp_gt_u32 vcc, 192, v0', 'v_cndmask_b32 %s, %s, %s, vcc' % (vr(ag), vr(V_OOB), vr(ag)))
        for ch in range(2):
            d = D + 3 * ch
            s('v_lshlrev_b32 %s, 16, %s' % (vr(d), vr(KV + 2 * ch + 1)))
            s('v_and_b32 %s, 0xffff0000, %s' % (vr(d + 1), vr(KV + 2 * ch)))
            s('v_lshlrev_b32 %s, 16, %s' % (vr(d + 2), vr(KV + 2 * ch)))
            for e in range(3):
                s('v_mul_f32 %s, %s, %s' % (vr(d + e), vr(d + e), vr(SD + ch)))
        for ch in range(2):
            d, y, y2 = D + 3 * ch, Y[2 * ch], Y[2 * ch + 1]
            for e in range(3):
                s('v_add_f32 %s, %s, %s' % (vr(y + e), vr(y + e), vr(y2 + e)))
            for e in range(3):
                s('v_cvt_pk_bf16_f32 %s, %s, %s' % (vr(d + e), vr(y + e), vr(d + e)))
        if j == 0:
            cv.mark = len(s.groups)
        if j == 1:
            reads(2)
        for ch in range(2):
            d = D + 3 * ch
            for e in range(3):
                s('v_lshlrev_b32 %s, 16, %s' % (vr(t), vr(d + e)))
                s('v_and_b32 %s, 0xffff0000, %s' % (vr(d + e), vr(d + e)))
                s('v_add_f32 %s, %s, %s' % (vr(d + e), vr(d + e), vr(t)))
        for e in range(3):
            s('v_cvt_pk_bf16_f32 %s, %s, %s' % (vr(GO + e), vr(D + e), vr(D + 3 + e)))
        s('buffer_store_dwordx4 %s, %s, %s, 0 offen sc1' % (vr(GO, 4), vr(ag), sr(R_WS, 4)))
    s('s_nop 1')
    return [ay, ak, ag, (D, 6), (GO, 4), t, (SD, 2)] + [(r, 4) for r in (Y0 if own0 else []) + Y1 + KVs]


ACC = V.get(48, top=True)
AF = V.get(48, top=True)
with V.borrow((GP, 12)):
    ONES = V.get(4)
    RBA = V.get(8)
xtk[1] = x_dma(a, 1, 0)
a('global_load_dwordx2 %s, %s, %s' % (vr(V_DSK, 2), vr(dad), sr(P_DSK, 2)))
def h_touch(st, ta):
    st('v_lshrrev_b32 %s, 3, %s' % (vr(ta), vr(V_LANE)),
       'v_mul_u32_u24 %s, %d, %s' % (vr(ta), 36864 - 1024, vr(ta)),
       'v_lshl_add_u32 %s, %s, 7, %s' % (vr(ta), vr(V_LANE), vr(ta)),
       'v_cmp_gt_u32 vcc, 48, %s' % vr(V_LANE),
       'v_cndmask_b32 %s, %s, %s, vcc' % (vr(ta), vr(V_OOB), vr(ta)))
    st('s_mul_i32 %s, %s, 216' % (sr(S_T2), sr(S_RB)),
       's_add_u32 %s, %s, %s' % (sr(S_T2), sr(S_T2), sr(S_PT)),
       's_lshl_b32 %s, %s, 10' % (sr(S_T2), sr(S_T2)),
       's_add_u32 %s, %s, %d' % (sr(S_T2), sr(S_T2), WS_H),
       'buffer_load_dword %s, %s, %s, %s offen %s ;junk' % (vr(V_JUNK), vr(ta), sr(R_WS, 4), sr(S_T2), TPOL))


if OPT['tpos'] == 0:
    h_touch(a, lad)
put(lad, dad)
tag_ready(a)
a('v_cmp_gt_u32 vcc, 9, %s' % vr(V_N), 'v_cndmask_b32 %s, 0, %s, vcc' % (vr(V_EXP9), vr(V_TAG)))
for i in range(4):
    a('v_mov_b32 %s, 0x3f803f80' % vr(ONES + i))
XS = V.get(12, 2, top=True)
s0 = Stream()
s0.wait(xtk[0])
s0('s_barrier')
for i in range(MT):
    s0('ds_read_b64 %s, %s offset:%d' % (vr(XS + 2 * i, 2), vr(V_WA), 2048 * i))
for i in range(MT):
    for k in range(2):
        s0('v_lshlrev_b32 %s, 16, %s' % (vr(BASE + 4 * i + 2 * k), vr(XS + 2 * i + k)))
        s0('v_and_b32 %s, 0xffff0000, %s' % (vr(BASE + 4 * i + 2 * k + 1), vr(XS + 2 * i + k)))
with V.borrow(*HOMES):
    stats_publish(s0, BASE, 0, False)
d1 = Stream()
xtk[2] = x_dma(d1, 2, 0)
rt0 = b_read(d1, 0)
btk[2] = b_dma(d1, 2)
a.weave(s0, d1)
stamp(a, 's0')
put((V_DUMMY, 4))
lp = Stream()
with V.borrow((WCV, 32)):
    lam_compute(lp, LAMT, False, LAM)
    L2, L4, L8, L48, L72, L96, L192, L288 = [V.get(2) for _ in range(8)]
for d_, x_, y_ in ((L2, LAM, LAM), (L4, L2, L2), (L8, L4, L4), (L12, L8, L4), (L24, L12, L12), (L48, L24, L24), (L72, L48, L24),
                   (L96, L48, L48), (L192, L96, L96), (L288, L192, L96), (L384, L192, L192)):
    cmul_plain(lp, d_, x_, y_)
for (dst, opts) in ((LQ96, (L96, L192, L288)), (LQ24, (L24, L48, L72))):
    lp('v_mov_b32 %s, 1.0' % vr(dst), 'v_mov_b32 %s, 0' % vr(dst + 1))
    for qi, o in enumerate(opts):
        lp('v_cmp_eq_u32 vcc, %d, %s' % (qi + 1, vr(V_Q)),
           'v_cndmask_b32 %s, %s, %s, vcc' % (vr(dst), vr(dst), vr(o)),
           'v_cndmask_b32 %s, %s, %s, vcc' % (vr(dst + 1), vr(dst + 1), vr(o + 1)))
for r in (L2, L4, L8, L48, L72, L96, L192, L288):
    put((r, 2))
lp('v_and_b32 %s, 0xffff0000, %s' % (vr(V_DSK + 3), vr(V_DSK + 1)))
lp('v_lshlrev_b32 %s, 16, %s' % (vr(V_DSK + 2), vr(V_DSK + 1)))
lp('v_and_b32 %s, 0xffff0000, %s' % (vr(V_DSK + 1), vr(V_DSK)))
lp('v_lshlrev_b32 %s, 16, %s' % (vr(V_DSK), vr(V_DSK)))
pre = {k: Stream() for k in range(18)}
side = {k: Stream() for k in range(18)}


class Pace:
    def __init__(self, per=3):
        self.vm = {k: Stream() for k in range(18)}
        self.k, self.n, self.per = 0, 0, per

    def add(self, st, earliest=0):
        if self.k < earliest:
            self.k, self.n = earliest, 0
        for g in st.groups:
            if self.n >= self.per:
                self.k, self.n = self.k + 1, 0
            self.vm[self.k].groups.append(g)
            self.n += sum(1 for it in g if not isinstance(it, tuple) and it.kind == 'vmem')
        return self.k


pc = Pace(OPT['per'])
need = {}
side[0].extend(lp)
for blk in range(3, 9):
    st = Stream()
    if blk > 3:
        rt = b_read(st, blk - 3)
        need[2 * (blk - 3)] = [rt]
    else:
        rt = rt0
    xtk[blk] = x_dma(st, blk, 0)
    st.wait(rt)
    btk[blk] = b_dma(st, blk)
    kk = pc.add(st)
    print('block', blk, 'issued by k', kk)
cv = Conv()
cfa, cfe, cfv = V.get(top=True), V.get(top=True), V.get(top=True)
side[0]('s_mul_i32 %s, %s, 43' % (sr(S_T1), sr(S_CG)),
         's_lshr_b32 %s, %s, 5' % (sr(S_T1), sr(S_T1)),
         's_mul_i32 %s, %s, %d' % (sr(S_T1), sr(S_T1), 18 * 64),
         's_add_u32 %s, %s, %d' % (sr(S_T1), sr(S_T1), WS_CPF),
         'v_lshl_add_u32 %s, %s, 6, %s' % (vr(cfa), vr(V_LANE), sr(S_T1)))
side[0]('v_cmp_gt_u32 vcc, 36, %s' % vr(V_LANE),
         'v_cndmask_b32 %s, %s, %s, vcc' % (vr(cfa), vr(V_OOB), vr(cfa)),
         'v_cndmask_b32 %s, 0, %s, vcc' % (vr(cfe), vr(V_TAG)))
cfl = 'buffer_load_dword %s, %s, %s, 0 offen sc1' % (vr(cfv), vr(cfa), sr(R_WS, 4))
side[0]('s_mul_i32 %s, %s, %d' % (sr(S_T0), sr(S_PT), 37 * 1024),
        's_add_u32 %s, %s, %d' % (sr(S_CPB), sr(S_T0), WS_CP))
ca_ = Stream()
carel = conv_addr(ca_, cv)
side[0].extend(ca_)
stt = Stream()
stt(cfl)
ta = carel[0]
if OPT['tpos'] == 1:
    h_touch(stt, ta)
stt('s_mov_b32 %s, %d' % (sr(S_T2), WS_ST + ST_SZ),
    'buffer_load_dword %s, %s, %s, %s offen sc1 ;junk' % (vr(V_JUNK), vr(V_STW), sr(R_WS, 4), sr(S_T2)))
stt('v_lshrrev_b32 %s, 1, %s' % (vr(ta), vr(V_LANE)),
    'v_min_u32 %s, 2, %s' % (vr(ta), vr(ta)),
    'v_mul_u32_u24 %s, %d, %s' % (vr(ta), NRB * 256, vr(ta)),
    'v_and_b32 %s, 1, %s' % (vr(carel[1]), vr(V_LANE)),
    'v_lshl_add_u32 %s, %s, 7, %s' % (vr(ta), vr(carel[1]), vr(ta)),
    's_lshl_b32 %s, %s, 8' % (sr(S_T2), sr(S_RB)),
    's_add_u32 %s, %s, %d' % (sr(S_T2), sr(S_T2), WS_HF),
    'buffer_load_dword %s, %s, %s, %s offen sc1 ;junk' % (vr(V_JUNK), vr(ta), sr(R_WS, 4), sr(S_T2)))
with V.borrow(*HOMES):
    G0 = V.get(24)
xe = V.get()
side[0]('v_add_u32 %s, %s, %s' % (vr(xe), sr(S_XCC), vr(V_TAG)),
        'v_cmp_gt_u32 vcc, 9, %s' % vr(V_N),
        'v_cndmask_b32 %s, 0, %s, vcc' % (vr(xe), vr(xe)))
gl = stats_loads(0, G0)
st = Stream()
for i in range(0, 12, 2):
    st(gl[i], gl[i + 1])
print('gather by k', pc.add(st, 9))
kvm = KVm()
st = Stream()
with V.borrow(*HOMES):
    kv_dma(st, kvm)
print('kv dma by k', pc.add(st, 9))
print('touch by k', pc.add(stt))
for kp, k in ((6, 10), (7, 12), (8, 13)):
    need[2 * kp] = [b_read(side[k], kp)]
lastb = need[16][0]


def s0_poll(s):
    p = Stream()
    L, Lc, Lr = newlabel('poll'), newlabel('pollc'), newlabel('pollr')
    acc = V.get(2, 1)
    p.touch(vr(G0, 24))
    p('v_xor_b32 %s, %s, %s' % (vr(acc), vr(G0 + 1), vr(V_EXP9)))
    for i in range(MT):
        if i:
            p('v_bitop3_b32 %s, %s, %s, %s bitop3:0xf6' % (vr(acc), vr(acc), vr(G0 + 4 * i + 1), vr(V_EXP9)))
        p('v_bitop3_b32 %s, %s, %s, %s bitop3:0xf6' % (vr(acc), vr(acc), vr(G0 + 4 * i + 3), vr(xe)))
    p('v_cmp_ne_u32 vcc, 0, %s' % vr(acc))
    p('s_mov_b32 %s, %d' % (sr(S_FAST), 0 if OPT['slow'] else 1))
    p('s_cmp_lg_u64 vcc, 0')
    p('s_cbranch_scc1 %s' % L)
    p.label(Lc)
    s.join(p)
    tail.label(L)
    tail('s_mov_b32 %s, %d' % (sr(S_SPIN), SPIN))
    tail.label(Lr)
    for t in gl:
        tail(t)
    tail('s_waitcnt vmcnt(0)')
    tail('v_mov_b32 %s, 0' % vr(acc))
    for i in range(MT):
        tail('v_sub_u32 %s, %s, %s' % (vr(acc + 1), vr(G0 + 4 * i + 3), vr(V_EXP9)))
        tail('v_lshrrev_b32 %s, 4, %s' % (vr(acc + 1), vr(acc + 1)))
        tail('v_or_b32 %s, %s, %s' % (vr(acc), vr(acc), vr(acc + 1)))
        tail('v_bitop3_b32 %s, %s, %s, %s bitop3:0xf6' % (vr(acc), vr(acc), vr(G0 + 4 * i + 1), vr(V_EXP9)))
    tail('v_cmp_ne_u32 vcc, 0, %s' % vr(acc))
    tail('s_sub_u32 %s, %s, 1' % (sr(S_SPIN), sr(S_SPIN)))
    tail('s_cselect_b64 vcc, 0, vcc')
    tail('s_cmp_lg_u64 vcc, 0')
    tail('s_cbranch_scc1 %s' % Lr)
    tail('v_cmp_ne_u32 vcc, %s, %s' % (vr(G0 + 3), vr(xe)))
    tail('s_cmp_eq_u64 vcc, 0')
    tail('s_cselect_b32 %s, %d, 0' % (sr(S_FAST), 0 if OPT['slow'] else 1))
    tail('s_branch %s' % Lc)
    put((acc, 2))


s0_poll(side[14])
ttk, LNP0 = ln_table(side[14], 0, G0, None)
put(xe)
pre[15].wait(lastb)
NCP0 = OPT['ncp0']


def WC(s, j):
    idx = s * 4 + j
    if idx < 28:
        return ar(144 + idx * 4, 4)
    return vr(WCV + (idx - 28) * 4, 4)


def cp_load(s_, s, j):
    ld = 'buffer_load_dwordx4 %s, %s, %s, %s offen offset:%d sc1' % (WC(s, j), vr(V_L16), sr(R_WS, 4), sr(S_CPB), j * 1024)
    if j == 3:
        s_(ld, 's_add_u32 %s, %s, 4096' % (sr(S_CPB), sr(S_CPB)))
    else:
        s_(ld)


put((V_DB, 2), (V_DX, 3))
st = Stream()
conv_setup_k(st, cv)
kst = st
gemm_b(a, ACC, AF, lambda s: xtk[s], pre, side, ones=(ONES, RBA), vm=pc.vm, need=need)
a.wait(ttk)
a('s_barrier')
a('v_mov_b32 %s, %s' % (vr(RB), vr(RBA)))
a('v_mov_b32 %s, %s' % (vr(RB + 1), vr(RBA + 4)))
put((ONES, 4), (RBA, 8))
put(*kvm.rel)
put(*carel)
put((V_FB, 2))
stamp(a, 'gemmB1')


def scan_phase(a, layer, ACC, AF, mid=None, x1=None, x2=None):
    NJ = 2 * MT
    re = lambda j: ACC + (j >> 1) * 4 + (j & 1) * 2
    im = lambda j: ACC + 4 * MT + (j >> 1) * 4 + (j & 1) * 2
    TB = AF
    for j in range(NJ):
        a('ds_read_b128 %s, %s offset:%d' % (vr(TB + 4 * j, 4), vr(V_TABR), 16 * j))

    def prescale(j):
        a('v_pk_mul_f32 %s, %s, %s' % (vr(re(j), 2), vr(re(j), 2), vr(TB + 4 * j, 2)))
        a('v_pk_mul_f32 %s, %s, %s' % (vr(im(j), 2), vr(im(j), 2), vr(TB + 4 * j, 2)))
        a('v_pk_fma_f32 %s, %s, %s, %s op_sel:[0,0,0] op_sel_hi:[1,0,1] neg_lo:[1,0,0] neg_hi:[1,0,0]' %
          (vr(re(j), 2), vr(TB + 4 * j + 2, 2), vr(RB, 2), vr(re(j), 2)))
        a('v_pk_fma_f32 %s, %s, %s, %s op_sel:[0,1,0] op_sel_hi:[1,1,1] neg_lo:[1,0,0] neg_hi:[1,0,0]' %
          (vr(im(j), 2), vr(TB + 4 * j + 2, 2), vr(RB, 2), vr(im(j), 2)))

    def step(dr, di, pr, pi, br, bi):
        a('v_pk_fma_f32 %s, %s, %s, %s op_sel:[0,0,0] op_sel_hi:[1,0,1]' % (vr(dr, 2), vr(pr, 2), vr(LAM, 2), vr(br, 2)))
        a('v_pk_fma_f32 %s, %s, %s, %s op_sel:[0,0,0] op_sel_hi:[1,0,1]' % (vr(di, 2), vr(pi, 2), vr(LAM, 2), vr(bi, 2)))
        a('v_pk_fma_f32 %s, %s, %s, %s op_sel:[0,1,0] op_sel_hi:[1,1,1] neg_lo:[1,0,0] neg_hi:[1,0,0]' %
          (vr(dr, 2), vr(pi, 2), vr(LAM, 2), vr(dr, 2)))
        a('v_pk_fma_f32 %s, %s, %s, %s op_sel:[0,1,0] op_sel_hi:[1,1,1]' % (vr(di, 2), vr(pr, 2), vr(LAM, 2), vr(di, 2)))

    with V.borrow(*HOMES):
        E = V.get(8)
        pub = V.get(4)
    prescale(0)
    pr, pi = re(0), im(0)
    for j in range(1, NJ):
        prescale(j)
        dr, di = E + (j & 1) * 4, E + (j & 1) * 4 + 2
        step(dr, di, pr, pi, re(j), im(j))
        pr, pi = dr, di
        if x1 is not None and j % 3 == 1:
            x1(a)
    EA, F = V.get(2), V.get(2)
    a('v_mov_b32 %s, %s' % (vr(EA), vr(pr)))
    a('v_mov_b32 %s, %s' % (vr(EA + 1), vr(pi)))
    a('v_mov_b32 %s, %s' % (vr(F), vr(pr + 1)))
    a('v_mov_b32 %s, %s' % (vr(F + 1), vr(pi + 1)))
    FA = E
    cfma(a, FA, EA, L12, F)
    a('v_mov_b64 %s, %s' % (vr(FA + 2, 2), vr(FA, 2)))
    a('v_mov_b32 %s, %s' % (vr(pub + 1), vr(V_TAG)))
    a('v_mov_b32 %s, %s' % (vr(pub + 3), vr(V_TAG)))
    a('v_permlane16_swap_b32 %s, %s' % (vr(FA), vr(FA + 2)))
    a('v_permlane16_swap_b32 %s, %s' % (vr(FA + 1), vr(FA + 3)))
    a('s_lshl_b32 %s, %s, 13' % (sr(S_T0), sr(S_PT)))
    a('v_mov_b64 %s, %s' % (vr(FA + 4, 2), vr(FA, 2)))
    a('v_mov_b64 %s, %s' % (vr(FA + 6, 2), vr(FA + 2, 2)))
    a('s_add_u32 %s, %s, %d' % (sr(S_T0), sr(S_T0), WS_E + layer * 36 * 8192))
    for k in range(4):
        a('v_permlane32_swap_b32 %s, %s' % (vr(FA + k), vr(FA + 4 + k)))
    cfma(a, FA + 2, FA, L24, FA + 2)
    cfma(a, FA + 4, FA + 2, L24, FA + 4)
    cfma(a, FA + 6, FA + 4, L24, FA + 6)
    a('v_mov_b32 %s, %s' % (vr(pub), vr(FA + 6)))
    a('v_mov_b32 %s, %s' % (vr(pub + 2), vr(FA + 7)))
    a('buffer_store_dwordx4 %s, %s, %s, %s offen sc1' % (vr(pub, 4), vr(V_EW), sr(R_WS, 4), sr(S_T0)))
    stamp(a, 'e_pub%d' % layer)
    PQ = F
    a('v_mov_b32 %s, 0' % vr(PQ))
    a('v_mov_b32 %s, 0' % vr(PQ + 1))
    for qi in range(1, 4):
        a('v_cmp_eq_u32 vcc, %d, %s' % (qi, vr(V_Q)),
          'v_cndmask_b32 %s, %s, %s, vcc' % (vr(PQ), vr(PQ), vr(FA + 2 * qi - 2)),
          'v_cndmask_b32 %s, %s, %s, vcc' % (vr(PQ + 1), vr(PQ + 1), vr(FA + 2 * qi - 1)))
    put((pub, 4), (E, 8), (AF, 48))
    NL = 6
    loads, checks, box = [], [], []

    def mk(cs):
        CG_ = V.get(4 * NL)
        AD, EX = V.get(NL, 1), V.get(NL, 1)
        box.extend([CG_, AD, EX])
        cs('s_lshl_b32 %s, %s, 13' % (sr(S_T0), sr(S_PT)),
           's_add_u32 %s, %s, %d' % (sr(S_T0), sr(S_T0), WS_E + layer * 36 * 8192),
           'v_add_u32 %s, %s, %s' % (vr(EX), sr(S_T0), vr(V_ER)))
        for j in range(NL - 1, -1, -1):
            cs('v_subrev_u32 %s, %d, %s' % (vr(AD + j), 1024 * j, vr(EX)),
               'v_cmp_le_i32 vcc, %d, %s' % (1024 * j, vr(V_ER)),
               'v_cndmask_b32 %s, %s, %s, vcc' % (vr(AD + j), vr(V_OOB), vr(AD + j)),
               'v_cndmask_b32 %s, 0, %s, vcc' % (vr(EX + j), vr(V_TAG)))
        for j in range(NL):
            loads.append('buffer_load_dwordx4 %s, %s, %s, 0 offen sc1' % (vr(CG_ + 4 * j, 4), vr(AD + j), sr(R_WS, 4)))
            checks.append((CG_ + 4 * j + 1, CG_ + 4 * j + 3, EX + j))
        for l_ in loads:
            cs(l_)

    post = mid(a, mk)
    CG_, AD, EX = box
    poll(a, loads, checks, pre_issued=True)
    stamp(a, 'carry%d' % layer)
    if post is not None:
        a.extend(post)
    put((AD, NL), (EX, NL))
    for j in range(NL):
        a('v_mov_b32 %s, %s' % (vr(CG_ + 4 * j + 1), vr(CG_ + 4 * j + 2)))
    for j in range(NL - 2, -1, -1):
        cfma(a, CG_ + 4 * j, CG_ + 4 * j + 4, L384, CG_ + 4 * j)
    H, Y = V.get(2), V.get(2)
    cmul(a, H, CG_, LQ96)
    for sw in ('v_permlane32_swap_b32', 'v_permlane16_swap_b32'):
        a('v_mov_b64 %s, %s' % (vr(Y, 2), vr(H, 2)))
        a('%s %s, %s' % (sw, vr(H), vr(Y)))
        a('%s %s, %s' % (sw, vr(H + 1), vr(Y + 1)))
        a('v_pk_add_f32 %s, %s, %s' % (vr(H, 2), vr(H, 2), vr(Y, 2)))
    cfma(a, PQ, H, LQ24, PQ)
    cfma(a, EA, PQ, L12, EA)
    a('v_mov_b32 %s, %s' % (vr(H), vr(PQ)))
    a('v_mov_b32 %s, %s' % (vr(H + 1), vr(EA)))
    a('v_mov_b32 %s, %s' % (vr(Y), vr(PQ + 1)))
    a('v_mov_b32 %s, %s' % (vr(Y + 1), vr(EA + 1)))
    pr, pi = H, Y
    PK = V.get(4)
    HO = CG_
    tk = None
    for j in range(NJ):
        step(re(j), im(j), pr, pi, re(j), im(j))
        pr, pi = re(j), im(j)
        pk = PK + (j & 1) * 2
        for hf in range(2):
            a('v_cvt_pk_bf16_f32 %s, %s, %s' % (vr(pk + hf), vr(re(j) + hf), vr(im(j) + hf)))
        tk = a.mem('ds_write_b32 %s, %s offset:%d' % (vr(V_HW), vr(pk), (j >> 1) * 1024 + (j & 1) * 128),
                   'ds_write_b32 %s, %s offset:%d' % (vr(V_HW), vr(pk + 1), (j >> 1) * 1024 + (j & 1) * 128 + 64))
        if j & 1:
            a('ds_read_b128 %s, %s offset:%d' % (vr(HO + 4 * (j >> 1), 4), vr(V_HR), (j >> 1) * 1024))
        elif x2 is not None and j < 10:
            x2(a)
    a('s_mul_i32 %s, %s, 216' % (sr(S_T0), sr(S_RB)))
    a('s_add_u32 %s, %s, %s' % (sr(S_T0), sr(S_T0), sr(S_PT)))
    a('s_lshl_b32 %s, %s, 10' % (sr(S_T0), sr(S_T0)))
    txt = []
    for i in range(MT):
        txt.append('s_add_u32 %s, %s, %d' % (sr(S_T1), sr(S_T0), WS_H + layer * H_SZ + i * 36864))
        txt.append('buffer_store_dwordx4 %s, %s, %s, %s offen {P}' % (vr(HO + 4 * i, 4), vr(V_L16), sr(R_WS, 4), sr(S_T1)))
    if OPT['fine']:
        stamp(a, 'pass2')
    tk = dual(a, txt, touch=[vr(HO, 24)])
    a('s_lshl2_add_u32 %s, %s, %s' % (sr(S_T0), sr(S_RB), sr(S_WAVE)))
    a('s_lshl4_add_u32 %s, %s, %s' % (sr(S_T0), sr(S_T0), sr(S_CG)))
    a('s_lshl_b32 %s, %s, 2' % (sr(S_T0), sr(S_T0)))
    a('s_add_u32 %s, %s, %d' % (sr(S_T0), sr(S_T0), WS_HF + layer * NRB * 256))
    return tk, [(EA, 2), (F, 2), (H, 2), (Y, 2), (PK, 4), (CG_, 4 * NL), (ACC, 48)]


def mid0(a, mk):
    put((BASE, 24))
    sd, s2, lr, ks = Stream(), Stream(), Stream(), Stream()
    poll(sd, [cfl], [(cfv, None, cfe)], pre_issued=True, sleep=6)
    if OPT['tpos'] == 2:
        h_touch(a, cfe_ := V.get())
        put(cfe_)
    for idx in range(OPT['ncp']):
        cp_load(sd, idx // 4, idx % 4)
    mk(s2)
    with V.borrow(*HOMES):
        kv_main(lr, kvm, ks)
    lr = weave(lr, sd, 0.15, 1.0)
    lr = weave(lr, s2, 0.55, 0.75)
    for i_, p_ in enumerate(split(lr, 8)):
        a.extend(p_)
        if OPT['fine'] > 1:
            stamp(a, 'kq%d' % i_)
    if OPT['fine']:
        stamp(a, 'kvcore')
    a.extend(ks)
    put(cfa, cfe, cfv)
    V.claim(WCV, 32)
    conv_u_prep(a, cv)
    stamp(a, 'kv')
    return None


def ln_rest0_plain(r, P):
    b, tmp = V.get(2), V.get(4)
    for i in range(MT):
        x = BASE + 4 * i
        k_, lane = tile_src(i)
        for e in range(2):
            r('v_mov_b32_dpp %s, %s row_newbcast:%d row_mask:0xf bank_mask:0xf' % (vr(b + e), vr(P + 2 * k_ + e), lane))
        for k in range(2):
            r('v_lshlrev_b32 %s, 16, %s' % (vr(x + 2 * k), vr(XS + 2 * i + k)))
            r('v_and_b32 %s, 0xffff0000, %s' % (vr(x + 2 * k + 1), vr(XS + 2 * i + k)))
        for k in range(4):
            r('v_sub_f32 %s, %s, %s' % (vr(x + k), vr(x + k), vr(b)))
        for k in range(2):
            r('v_cvt_pk_bf16_f32 %s, %s, %s' % (vr(tmp + 2 * k), vr(x + 2 * k), vr(x + 2 * k + 1)))
        for rep in range(3):
            for k in range(2):
                r('v_and_b32 %s, 0xffff0000, %s' % (vr(tmp + 2 * k + 1), vr(tmp + 2 * k)))
                r('v_lshlrev_b32 %s, 16, %s' % (vr(tmp + 2 * k), vr(tmp + 2 * k)))
            for k in range(4):
                if rep == 0:
                    r('v_mul_f32 %s, %s, %s' % (vr(tmp + k), vr(tmp + k), vr(b + 1)))
                elif rep == 1:
                    r('v_mul_f32 %s, %s, %s' % (vr(tmp + k), vr(tmp + k), vr(V_DSK + k)))
                else:
                    r('v_add_f32 %s, %s, %s' % (vr(x + k), vr(x + k), vr(tmp + k)))
            if rep < 2:
                for k in range(2):
                    r('v_cvt_pk_bf16_f32 %s, %s, %s' % (vr(tmp + 2 * k), vr(tmp + 2 * k), vr(tmp + 2 * k + 1)))
    return [(b, 2), (tmp, 4), (P, 4), (XS, 12)]


def hflag_prep(s, layer):
    fa, fv = V.get(), V.get()
    s('s_lshl2_add_u32 %s, %s, %s' % (sr(S_T1), sr(S_RB), sr(S_WAVE)),
      's_lshl_b32 %s, %s, 6' % (sr(S_T1), sr(S_T1)),
      's_add_u32 %s, %s, %d' % (sr(S_T1), sr(S_T1), WS_HF + layer * NRB * 256),
      'v_lshl_add_u32 %s, %s, 2, %s' % (vr(fa), vr(V_N), sr(S_T1)))
    s('v_cmp_gt_u32 vcc, 9, %s' % vr(V_N),
      'v_cndmask_b32 %s, %s, %s, vcc' % (vr(fa), vr(V_OOB), vr(fa)))
    s('s_mul_i32 %s, %s, 216' % (sr(S_T1), sr(S_RB)),
      's_add_u32 %s, %s, %s' % (sr(S_T1), sr(S_T1), sr(S_WAVE)),
      's_lshl_b32 %s, %s, 10' % (sr(S_T1), sr(S_T1)),
      's_add_u32 %s, %s, %d' % (sr(S_HB), sr(S_T1), WS_H + layer * H_SZ))
    fl = 'buffer_load_dword %s, %s, %s, 0 offen sc1' % (vr(fv), vr(fa), sr(R_WS, 4))
    return fa, fv, fl


def hload_next(st, reg):
    st('buffer_load_dwordx4 %s, %s, %s, %s offen sc1' % (vr(reg, 4), vr(V_L16), sr(R_WS, 4), sr(S_HB)),
       's_add_u32 %s, %s, 4096' % (sr(S_HB), sr(S_HB)))


cpn = [0, OPT['ncp']]
kparts = split(kst, 4)
kx = lambda st: st.extend(kparts.pop(0))


def cpx(which, lim):
    def f(st):
        if cpn[which] < lim:
            cp_load(st, cpn[which] // 4, cpn[which] % 4)
            cpn[which] += 1
    return f


htk, hrel = scan_phase(a, 0, ACC, AF, mid0, kx, cpx(1, OPT['ncp2']))
assert cpn[1] == OPT['ncp2'] and not kparts
put(*hrel)
a('s_mov_b32 %s, %s' % (sr(S_C), sr(S_T0)))
for l_ in cv.uloads:
    a(l_)
for r_ in range(BASE, BASE + 24):
    V.free.remove(r_)
V.claim(V_PW, 4)
t = V.get()
a('v_mul_u32_u24 %s, %d, %s' % (vr(V_PW), PART_ROW, vr(V_N)))
a('v_lshl_add_u32 %s, %s, 4, %s' % (vr(V_PW), vr(V_Q), vr(V_PW)))
a('s_mul_i32 %s, %s, %d' % (sr(S_T0), sr(S_WAVE), PART_W))
a('v_add_u32 %s, %s, %s' % (vr(V_PW), sr(S_T0), vr(V_PW)))
a('s_lshl_b32 %s, %s, 2' % (sr(S_T0), sr(S_WAVE)))
a('v_add_u32 %s, %s, %s' % (vr(t), sr(S_T0), vr(V_Q)))
a('v_mul_u32_u24 %s, %d, %s' % (vr(V_PR), PART_ROW, vr(t)))
a('v_lshl_add_u32 %s, %s, 4, %s' % (vr(V_PR), vr(V_N), vr(V_PR)))
PH = 12 * PART_W
a('v_add_u32 %s, %d, %s' % (vr(V_PW2), PH, vr(V_PW)))
a('v_add_u32 %s, %d, %s' % (vr(V_PR2), PH, vr(V_PR)))
put(t)
a('s_barrier')
if OPT['fine']:
    stamp(a, 'ubar')
hf = Stream()
hf.wait(htk)
dual(hf, flag_texts(sr(S_C), '{P}'))
stamp(hf, 'h_pub0')
sd, lr = Stream(), Stream()
for idx in range(OPT['ncp2'], 36):
    cp_load(sd, idx // 4, idx % 4)
hfa, hfv, hfl = hflag_prep(sd, 0)
sd(hfl)
for i in range(MT):
    for k in range(2):
        hf('v_lshlrev_b32 %s, 16, %s' % (vr(BASE + 4 * i + 2 * k), vr(XS + 2 * i + k)))
        hf('v_and_b32 %s, 0xffff0000, %s' % (vr(BASE + 4 * i + 2 * k + 1), vr(XS + 2 * i + k)))
put((XS, 12))
ln_rest(hf, 0, LNP0)
HB0 = []


def last0(m, reg):
    if reg is None:
        poll(m, [hfl], [(hfv, None, V_EXP9)], pre_issued=True)
    else:
        HB0.append(reg)
        hload_next(m, reg)


conv_body(a, cv, [sd], True, hf, True, last0)
put(hfa, hfv)


def g_fetch_streams():
    s1, s2 = Stream(), Stream()
    fa, u, u2 = V.get(), V.get(), V.get()
    D = V.get(16)
    s1('v_lshrrev_b32 %s, 3, %s' % (vr(fa), vr(V_LANE)))
    s1('v_mul_u32_u24 %s, %d, %s' % (vr(fa), G_STR - 128, vr(fa)))
    s1('s_mul_i32 %s, %s, %d' % (sr(S_T1), sr(S_CG), 32 * G_STR),
       's_lshl2_add_u32 %s, %s, %s' % (sr(S_T2), sr(S_RB), sr(S_WAVE)),
       's_lshl_b32 %s, %s, 7' % (sr(S_T2), sr(S_T2)),
       's_add_u32 %s, %s, %s' % (sr(S_T1), sr(S_T1), sr(S_T2)),
       's_add_u32 %s, %s, %d' % (sr(S_T1), sr(S_T1), WS_G),
       'v_add3_u32 %s, %s, %s, %s' % (vr(fa), vr(fa), vr(V_L16), sr(S_T1)))
    loads = []
    for i in range(4):
        loads.append('s_mov_b32 %s, %d' % (sr(S_T1), 8 * i * G_STR))
        loads.append('buffer_load_dwordx4 %s, %s, %s, %s offen sc1' % (vr(D + 4 * i, 4), vr(fa), sr(R_WS, 4), sr(S_T1)))
    for i in range(4):
        s1(loads[2 * i], loads[2 * i + 1])
    s1('v_and_b32 %s, 1, %s' % (vr(u), vr(V_Q)))
    s1('v_lshlrev_b32 %s, 6, %s' % (vr(u), vr(u)))
    s1('v_mul_u32_u24 %s, 272, %s' % (vr(u2), vr(V_N)))
    s1('v_add3_u32 %s, %s, %s, %s' % (vr(u), vr(u), vr(u2), sr(S_RINGW)))
    s1('v_lshrrev_b32 %s, 1, %s' % (vr(u2), vr(V_Q)))
    s1('v_lshl_add_u32 %s, %s, 2, %s' % (vr(u), vr(u2), vr(u)))
    s1('v_lshl_add_u32 %s, %s, 2, %s' % (vr(u2), vr(u2), vr(u)))
    poll(s2, loads, [(D + 3, D + 7, V_TAG), (D + 11, D + 15, V_TAG)], pre_issued=True, sleep=4)
    s2('v_lshlrev_b32 %s, 4, %s' % (vr(fa), vr(V_Q)))
    s2('v_add3_u32 %s, %s, %s, %s' % (vr(fa), vr(fa), vr(V_L16), sr(S_RINGW)))
    for i in range(4):
        s2('ds_write_b128 %s, %s offset:%d' % (vr(fa), vr(D + 4 * i, 4), 1088 * i))
    for i, o in enumerate((0, 2, 5, 8, 10, 13)):
        s2('ds_read2_b32 %s, %s offset0:%d offset1:%d' % (vr(GP + 2 * i, 2), vr(u2 if i in (1, 4) else u), o, 32 + o))
    return s1, s2, [fa, u, u2, (D, 16)]


def gemm_c(a, layer, HB=None):
    NF = 16
    if HB is None:
        a.extend(hq)
        poll(a, [hfl], [(hfv, None, V_EXP9)], pre_issued=True)
        stamp(a, 'h_flag%d' % layer)
        put(hfa, hfv)
        HB = [V.get(4, top=True) for _ in range(NF)]
        for f in range(NF):
            hload_next(a, HB[f])
    CA = [V.get(4, top=True) for _ in range(8)]
    hb = lambda i, s: HB[(i * 9 + s) % NF]
    slot = lambda i: (i + 4) % 6

    def pwrite(st, i, js=range(4)):
        for j in js:
            tk = st.mem('ds_write_b128 %s, %s offset:%d' % (vr(V_PW if slot(i) < 3 else V_PW2), vr(CA[(i & 1) * 4 + j], 4),
                                                            L_IMG + (slot(i) % 3) * 4 * PART_W + j * 64))
        return tk

    def preduce(st, i, P):
        for w in range(4):
            st('ds_read_b128 %s, %s offset:%d' % (vr(P[w], 4), vr(V_PR if slot(i) < 3 else V_PR2), L_IMG + ((slot(i) % 3) * 4 + w) * PART_W))

    def padd(st, i, P, pk):
        x = BASE + 4 * i
        if pk:
            for k in range(2):
                st('v_pk_add_f32 %s, %s, %s' % (vr(P[0] + 2 * k, 2), vr(P[0] + 2 * k, 2), vr(P[1] + 2 * k, 2)))
                st('v_pk_add_f32 %s, %s, %s' % (vr(P[2] + 2 * k, 2), vr(P[2] + 2 * k, 2), vr(P[3] + 2 * k, 2)))
                st('v_pk_add_f32 %s, %s, %s' % (vr(x + 2 * k, 2), vr(x + 2 * k, 2), vr(P[0] + 2 * k, 2)))
                st('v_pk_add_f32 %s, %s, %s' % (vr(x + 2 * k, 2), vr(x + 2 * k, 2), vr(P[2] + 2 * k, 2)))
        else:
            for w in range(4):
                for k in range(4):
                    st('v_add_f32 %s, %s, %s' % (vr(x + k), vr(x + k), vr(P[w] + k)))

    sc = Sched(a)
    sc.VM_GAP = 20
    qp, qs = sc.add(Stream()), sc.add(Stream())
    if layer == 0:
        a.wait(cv.stk)
        cf_ = Stream()
        with V.borrow((GP, 12)):
            frel = conv_final(cf_, cv, CA[4:8])
        qs.extend(cf_.groups)
        nrest = len(cf_.groups) - cv.mark
        put(*frel)
    a('s_barrier')
    S, Q = V.get(6, 1), V.get(6, 1)
    PT = [V.get(4) for _ in range(4)]
    tk = None
    for i in range(MT):
        m = Stream()
        for s in range(9):
            for j in range(4):
                ca = CA[(i & 1) * 4 + j]
                m('v_mfma_f32_16x16x32_bf16 %s, %s, %s, %s' % (vr(ca, 4), WC(s, j), vr(hb(i, s), 4), '0' if s == 0 else vr(ca, 4)))
                if j == 0 and s < 8:
                    m.touch(vr(hb(i, s + 1), 4))
            if i * 9 + s + NF < 9 * MT:
                hload_next(m, hb(i, s))
        if i in (3, 5):
            print('gemm_c leftover before barrier', sc.pending())
            sc.flush()
            a.wait(tk)
            a('s_barrier')
            sd = Stream()
            for ti in (i - 3, i - 2):
                preduce(sd, ti, PT)
                padd(sd, ti, PT, False)
                stats_partial(sd, BASE, S, Q, ti, None, False)
            qs.extend(sd.groups)
        if i > 0:
            pw = Stream()
            tk = pwrite(pw, i - 1)
            qp.extend(pw.groups)
        sc.run(m)
        sc.flush(qp)
        if layer == 0 and i == 0:
            print('final part A leftover', len(qs) - nrest)
            while len(qs) > nrest:
                sc._emit(qs.pop(0))
        if OPT['fine']:
            stamp(a, 'c%d_t%d' % (layer, i))
    print('gemm_c leftover', sc.pending(), 'model time', sc.t)
    sc.flush()
    put(*[(r, 4) for r in PT + HB[8:]])
    gs = None
    if layer == 0:
        V.claim(GP, 12)
        gs = g_fetch_streams()
        a.extend(gs[0])
    tk = pwrite(a, MT - 1)
    a.wait(tk)
    a('s_barrier')
    stamp(a, 'gemmC%d' % layer)
    for ti in (4, 5):
        preduce(a, ti, HB[(ti - 4) * 4:(ti - 4) * 4 + 4])
    for ti in (4, 5):
        padd(a, ti, HB[(ti - 4) * 4:(ti - 4) * 4 + 4], True)
    put(*[(r, 4) for r in CA + HB[:8]])
    return S, Q, gs


def gate(a, which, final, SQ):
    stats_publish(a, BASE, which, True, SQ=SQ[:2], tiles=(4, 5))
    stamp(a, 'st_pub%d' % which)
    if SQ[2] is not None:
        a.extend(SQ[2][1])
        put(*SQ[2][2])
    GU = V.get(24)
    for i in range(MT):
        for j in range(2):
            a('v_lshlrev_b32 %s, 16, %s' % (vr(GU + 4 * i + 2 * j), vr(GP + 2 * i + j)))
            a('v_and_b32 %s, 0xffff0000, %s' % (vr(GU + 4 * i + 2 * j + 1), vr(GP + 2 * i + j)))
    G = V.get(24)
    ex = stats_exp(a, which)
    poll(a, stats_loads(which, G), [(G + 4 * i + 1, G + 4 * i + 3, ex) for i in range(MT)])
    put(ex)
    stamp(a, 'st_got%d' % which)
    P = stats_finish(a, G)
    for k in range(2):
        a('v_add_f32 %s, 0x3727c5ac, %s' % (vr(P + 2 * k + 1), vr(P + 2 * k + 1)))
    for k in range(2):
        a('v_rsq_f32 %s, %s' % (vr(P + 2 * k + 1), vr(P + 2 * k + 1)))
    for k in range(2):
        a('v_add_f32 %s, %s, %s' % (vr(OFF + k), vr(OFF + k), vr(P + 2 * k)))
    B = G
    for i in range(MT):
        bcast(a, B + 4 * i, P, i)
        if final:
            k_, lane = tile_src(i)
            a('v_mov_b32_dpp %s, %s row_newbcast:%d row_mask:0xf bank_mask:0xf' % (vr(B + 4 * i + 2), vr(OFF + k_), lane))
    for i in range(MT):
        x, g, b = BASE + 4 * i, GU + 4 * i, B + 4 * i
        for k in range(2):
            a('v_pk_add_f32 %s, %s, %s op_sel:[0,0] op_sel_hi:[1,0] neg_lo:[0,1] neg_hi:[0,1]' % (vr(x + 2 * k, 2), vr(x + 2 * k, 2), vr(b, 2)))
            a('v_pk_fma_f32 %s, %s, %s, 1.0 op_sel:[0,1,0] op_sel_hi:[1,1,0]' % (vr(g + 2 * k, 2), vr(g + 2 * k, 2), vr(b, 2)))
        for k in range(2):
            if final:
                a('v_pk_fma_f32 %s, %s, %s, %s op_sel:[0,0,0] op_sel_hi:[1,1,0]' % (vr(x + 2 * k, 2), vr(x + 2 * k, 2), vr(g + 2 * k, 2), vr(b + 2, 2)))
            else:
                a('v_pk_mul_f32 %s, %s, %s' % (vr(x + 2 * k, 2), vr(x + 2 * k, 2), vr(g + 2 * k, 2)))
        if final:
            a('s_movk_i32 %s, %d' % (sr(S_T0), 4608 * i),
              'buffer_store_dwordx4 %s, %s, %s, %s offen%s' % (vr(x, 4), vr(V_OROW), sr(R_OUT, 4), sr(S_T0), ('', ' nt', ' sc1', ' sc1 nt')[OPT['opol']]))
    put((GU, 24), (G, 24), (P, 4))


SQ_ = gemm_c(a, 0, HB0)
gate(a, 1, False, SQ_)
WP = V.get(12, 2)
for i in range(MT):
    for k in range(2):
        a('v_cvt_pk_bf16_f32 %s, %s, %s' % (vr(WP + 2 * i + k), vr(BASE + 4 * i + 2 * k), vr(BASE + 4 * i + 2 * k + 1)))
a('s_mul_i32 %s, %s, 18' % (sr(S_T0), sr(S_RB)))
a('s_add_u32 %s, %s, %s' % (sr(S_T0), sr(S_T0), sr(S_CG)))
a('s_mul_i32 %s, %s, %d' % (sr(S_T0), sr(S_T0), BLK))
a('s_add_u32 %s, %s, %d' % (sr(S_T0), sr(S_T0), WS_H))
a('s_add_u32 %s, %s, 4096' % (sr(S_T1), sr(S_T0)))
a('s_add_u32 %s, %s, 8192' % (sr(S_T2), sr(S_T0)))
wtk_ = dual(a, ['buffer_store_dwordx2 %s, %s, %s, %s offen offset:%d {P}' %
                (vr(WP + 2 * i, 2), vr(V_WA), sr(R_WS, 4), sr((S_T0, S_T1, S_T2)[i >> 1]), (i & 1) * 2048) for i in range(MT)])
stats_publish(a, BASE, 2, True)
V_DX = V.get(3, 1)
a('s_mul_i32 %s, %s, %d' % (sr(S_T0), sr(S_RB), 18 * BLK))
a('s_add_u32 %s, %s, %d' % (sr(S_T0), sr(S_T0), WS_H))
a('s_add_u32 %s, %s, %s' % (sr(S_T0), sr(S_T0), sr(S_W1K)))
a('v_add_u32 %s, %s, %s' % (vr(V_DX), sr(S_T0), vr(V_L16)))
a('v_add_u32 %s, 4096, %s' % (vr(V_DX + 1), vr(V_DX)))
a('v_add_u32 %s, 8192, %s' % (vr(V_DX + 2), vr(V_DX)))
for s in range(9):
    a('s_mul_i32 %s, %s, 96' % (sr(S_TT + s), sr(S_KP + s)))
fa, fe, fv = V.get(), V.get(), V.get()
a('s_lshl_b32 %s, %s, 8' % (sr(S_T1), sr(S_RB)))
a('s_add_u32 %s, %s, %d' % (sr(S_T1), sr(S_T1), WS_WF))
a('v_lshl_add_u32 %s, %s, 2, %s' % (vr(fa), vr(V_LANE), sr(S_T1)))
a('v_cmp_gt_u32 vcc, 36, %s' % vr(V_LANE),
  'v_cndmask_b32 %s, %s, %s, vcc' % (vr(fa), vr(V_OOB), vr(fa)),
  'v_cndmask_b32 %s, 0, %s, vcc' % (vr(fe), vr(V_TAG)))
a('s_lshl2_add_u32 %s, %s, %s' % (sr(S_T0), sr(S_PT), sr(S_T1)))
a.wait(wtk_)
dual(a, flag_texts(sr(S_T0), '{P}'))
stamp(a, 'w_pub')
put((WP, 12))

ACC = V.get(48, top=True)
AF = V.get(48, top=True)
poll(a, ['buffer_load_dword %s, %s, %s, 0 offen sc1' % (vr(fv), vr(fa), sr(R_WS, 4))], [(fv, None, fe)])
stamp(a, 'w_flag')
put(fa, fe, fv)
pre = {k: Stream() for k in range(18)}
side = {k: Stream() for k in range(18)}
wtk = {}
for blk in range(4):
    wtk[blk] = x_dma(a, blk, 1)
vm2 = {k: Stream() for k in range(18)}
for blk in range(4, 9):
    wtk[blk] = x_dma(vm2[0], blk, 1)
G2 = V.get(24)
gl2 = stats_loads(2, G2)
for i in range(0, 12, 2):
    vm2[0](gl2[i], gl2[i + 1])
ex2 = stats_exp(side[0], 2)
poll(pre[10], gl2, [(G2 + 4 * i + 1, G2 + 4 * i + 3, ex2) for i in range(MT)], pre_issued=True)
put(ex2)
ttk2, LNP1 = ln_table(side[10], 1, G2, None)
pre[15].wait(ttk2)
dual(vm2[12], ['s_lshl_b32 %s, %s, 6' % (sr(S_T0), sr(S_RB)),
               's_add_u32 %s, %s, %s' % (sr(S_T0), sr(S_T0), sr(S_CG)),
               's_lshl_b32 %s, %s, 2' % (sr(S_T0), sr(S_T0)),
               's_add_u32 %s, %s, %d' % (sr(S_T0), sr(S_T0), WS_WF + 160)] + flag_texts(sr(S_T0), '{P}'))
gemm_b(a, ACC, AF, lambda s: wtk[s], pre, side, vm=vm2)
put((V_DX, 3))
stamp(a, 'gemmB2')


def mid1(a, mk):
    da, dv = V.get(), V.get()
    a('s_lshl_b32 %s, %s, 8' % (sr(S_T1), sr(S_RB)))
    a('s_add_u32 %s, %s, %d' % (sr(S_T1), sr(S_T1), WS_WF + 160))
    a('v_lshl_add_u32 %s, %s, 2, %s' % (vr(da), vr(V_N), sr(S_T1)))
    a('v_cmp_gt_u32 vcc, 9, %s' % vr(V_N), 'v_cndmask_b32 %s, %s, %s, vcc' % (vr(da), vr(V_OOB), vr(da)))
    dl = 'buffer_load_dword %s, %s, %s, 0 offen sc1' % (vr(dv), vr(da), sr(R_WS, 4))
    a(dl)
    ln_rest(a, 1, LNP1)
    mk(a)
    poll(a, [dl], [(dv, None, V_EXP9)], pre_issued=True)
    put(da, dv)
    return None


htk, hrel = scan_phase(a, 1, ACC, AF, mid1)
put(*hrel)
hfa, hfv, hfl = hflag_prep(a, 1)
hq = Stream()
hq(hfl)
a.wait(htk)
dual(a, flag_texts(sr(S_T0), '{P}'))
stamp(a, 'h_pub1')
a('s_lshl2_add_u32 %s, %s, %s' % (sr(S_T0), sr(S_L), sr(S_WAVE)))
a('s_cmp_lg_u32 %s, %d' % (sr(S_T0), (NRB - 1) * 9 * 4))
a('s_cselect_b64 exec, 0, 1',
  'buffer_store_dword %s, %s, %s, 0 offen sc1' % (vr(V_TAG), vr(V_ZERO), sr(R_WS, 4)),
  's_mov_b64 exec, -1')
SQ_ = gemm_c(a, 1)
gate(a, 3, True, SQ_)
stamp(a, 'out')
a('s_branch L_fin')

a.fence()
a.label('L_aux')
V.free = set(range(NCOMMON, 256))
V.locked = set()
a('s_waitcnt lgkmcnt(0)')
a('s_load_dword %s, %s, 0' % (sr(S_TAG), sr(P_WS, 2)))
srd(a, R_WS, P_WS, WS_SIZE)
a('s_sub_u32 %s, %s, %d' % (sr(S_RB), sr(S_L), NMAIN))
S_AW, S_KC_, S_CGK, S_KP2, S_DG, S_SCR, S_AW2 = [S_KP + i for i in range(7)]
a('s_mul_i32 %s, %s, 58' % (sr(S_AW2), sr(S_WAVE)))
a('s_add_u32 %s, %s, %s' % (sr(S_AW2), sr(S_AW2), sr(S_RB)))
a('s_lshl2_add_u32 %s, %s, %s' % (sr(S_AW), sr(S_RB), sr(S_WAVE)))
a('s_mul_i32 %s, %s, 57' % (sr(S_T0), sr(S_AW)))
a('s_lshr_b32 %s, %s, 10' % (sr(S_DG), sr(S_T0)))
a('s_mul_i32 %s, %s, 171' % (sr(S_KC_), sr(S_AW2)))
a('s_lshr_b32 %s, %s, 9' % (sr(S_KC_), sr(S_KC_)))
a('s_mul_i32 %s, %s, 18' % (sr(S_T1), sr(S_DG)))
a('s_sub_u32 %s, %s, %s' % (sr(S_KP2), sr(S_AW), sr(S_T1)))
a('s_mul_i32 %s, %s, 3' % (sr(S_T1), sr(S_KC_)))
a('s_sub_u32 %s, %s, %s' % (sr(S_CGK), sr(S_AW2), sr(S_T1)))
a('s_add_u32 %s, %s, 6' % (sr(S_CGK), sr(S_CGK)))
srd(a, R_BRE, P_CRE, 576 * 1152)
srd(a, R_BIM, P_CIM, 576 * 1152)
dp, gm, vc, t, t2 = [V.get() for _ in range(5)]
a('v_and_b32 %s, 31, %s' % (vr(dp), vr(V_LANE)))
a('s_lshl_b32 %s, %s, 6' % (sr(S_T0), sr(S_KP2)))
a('v_lshl_add_u32 %s, %s, 1, %s' % (vr(t2), vr(dp), sr(S_T0)))
LT = lam_loads(a, t2)
CL = V.get(24)
a('v_lshrrev_b32 %s, 2, %s' % (vr(vc), vr(V_LANE)))
a('v_mul_u32_u24 %s, 1152, %s' % (vr(vc), vr(vc)))
a('v_and_b32 %s, 3, %s' % (vr(gm), vr(V_LANE)))
a('v_lshl_add_u32 %s, %s, 4, %s' % (vr(vc), vr(gm), vr(vc)))
a('s_mul_i32 %s, %s, %d' % (sr(S_T1), sr(S_DG), 48 * 1152))
a('s_add_u32 %s, %s, %s' % (sr(S_T1), sr(S_T1), sr(S_T0)))
for u in range(3):
    a('s_add_u32 %s, %s, %d' % (sr(S_T2), sr(S_T1), u * 16 * 1152),
      'buffer_load_dwordx4 %s, %s, %s, %s offen nt' % (vr(CL + 8 * u, 4), vr(vc), sr(R_BRE, 4), sr(S_T2)),
      'buffer_load_dwordx4 %s, %s, %s, %s offen nt' % (vr(CL + 8 * u + 4, 4), vr(vc), sr(R_BIM, 4), sr(S_T2)))
a('s_lshl2_add_u32 %s, %s, %s' % (sr(S_T1), sr(S_RB), sr(S_WAVE)))
a('s_mul_i32 %s, %s, 2880' % (sr(S_T1), sr(S_T1)))
a('v_min_u32 %s, 22, %s' % (vr(V_TAG), vr(V_LANE)))
a('v_lshl_add_u32 %s, %s, 7, %s' % (vr(V_TAG), vr(V_TAG), sr(S_T1)))
a('v_min_u32 %s, %d, %s' % (vr(V_TAG), 576 * 1152 - 4, vr(V_TAG)))
a('global_load_dword %s, %s, %s ;junk' % (vr(V_JUNK), vr(V_TAG), sr(P_BRE, 2)))
a('global_load_dword %s, %s, %s ;junk' % (vr(V_JUNK), vr(V_TAG), sr(P_BIM, 2)))
srd(a, R_K, P_K, 2048 * 1152)
srd(a, R_V, P_V, 2048 * 1152)
sg, vk, vh, ka = [V.get() for _ in range(4)]
a('v_lshrrev_b32 %s, 5, %s' % (vr(sg), vr(V_LANE)))
a('s_mul_i32 %s, %s, %d' % (sr(S_T0), sr(S_KC_), 48 * 1152))
a('s_lshl_b32 %s, %s, 7' % (sr(S_T1), sr(S_CGK)))
a('s_add_u32 %s, %s, %s' % (sr(S_T0), sr(S_T0), sr(S_T1)))
a('v_mul_u32_u24 %s, %d, %s' % (vr(vk), 24 * 1152, vr(sg)))
a('v_lshl_add_u32 %s, %s, 2, %s' % (vr(vk), vr(dp), vr(vk)))
a('v_add_u32 %s, %s, %s' % (vr(vk), sr(S_T0), vr(vk)))
a('v_subrev_u32 %s, %d, %s' % (vr(vh), 3 * 1152, vr(vk)))
SHK = V.get(4)
a('s_lshl_b32 %s, %s, 9' % (sr(S_T1), sr(S_CGK)))
a('v_lshl_add_u32 %s, %s, 4, %s' % (vr(t), vr(dp), sr(S_T1)))
a('global_load_dwordx4 %s, %s, %s' % (vr(SHK, 4), vr(t), sr(P_SHK, 2)))
KR, VR = V.get(27, 1), V.get(24, 1)
ld = Stream()
for j in range(3):
    ld('buffer_load_dword %s, %s, %s, 0 offen offset:%d nt' % (vr(KR + j), vr(vh), sr(R_K, 4), 1152 * j))
for j3 in range(8):
    ld('s_mov_b32 %s, %d' % (sr(S_C), 3456 * j3),
       *['buffer_load_dword %s, %s, %s, %s offen offset:%d nt' % (vr(base + 3 * j3 + jj), vr(vk), sr(rr, 4), sr(S_C), 1152 * jj)
         for jj in range(3) for (base, rr) in ((KR + 3, R_K), (VR, R_V))])
ldp = split(ld, 2)
astamp(a, 4)
a('s_waitcnt lgkmcnt(0)')
astamp(a, 5)
tag_ready(a)
cs = Stream()
cs('s_mul_i32 %s, %s, 8192' % (sr(S_SCR), sr(S_WAVE)), 's_add_u32 %s, %s, %d' % (sr(S_SCR), sr(S_SCR), 65536))
_, COEF = lam_compute(cs, LT, True)
cs('v_add_f32 %s, %s, %s' % (vr(COEF), vr(COEF), vr(COEF)))
cs('v_add_f32 %s, %s, %s' % (vr(COEF + 1), vr(COEF + 1), vr(COEF + 1)))
cs('v_lshl_add_u32 %s, %s, 3, %s' % (vr(t), vr(dp), sr(S_SCR)))
cs('ds_write_b64 %s, %s offset:6144' % (vr(t), vr(COEF, 2)))
cs('v_lshl_add_u32 %s, %s, 6, %s' % (vr(t), vr(gm), sr(S_SCR)))
CF = V.get(16)
for k in range(4):
    cs('ds_read_b128 %s, %s offset:%d' % (vr(CF + 4 * k, 4), vr(t), 6144 + 16 * k))
wa, ra = V.get(), V.get()
cs('v_lshrrev_b32 %s, 2, %s' % (vr(t), vr(V_LANE)))
cs('v_lshlrev_b32 %s, 4, %s' % (vr(t), vr(t)))
cs('v_lshl_add_u32 %s, %s, 9, %s' % (vr(wa), vr(gm), vr(t)))
cs('v_add_u32 %s, %s, %s' % (vr(wa), sr(S_SCR), vr(wa)))
cs('v_add_u32 %s, %s, %s' % (vr(ra), sr(S_SCR), vr(V_L16)))
X = V.get(4)
O = V.get(8)
RD = V.get(24)
for u in range(3):
    for e in range(8):
        src = CL + 8 * u + (e >> 1)
        op = 'v_and_b32 %s, 0xffff0000, %s' if e & 1 else 'v_lshlrev_b32 %s, 16, %s'
        cs(op % (vr(X), vr(src)))
        cs(op % (vr(X + 1), vr(src + 4)))
        cmul(cs, X + 2, X, CF + 2 * e)
        cs('v_cvt_pk_bf16_f32 %s, %s, -%s' % (vr(O + e), vr(X + 2), vr(X + 3)))
    bo = u * 2048
    cs('ds_write_b128 %s, %s offset:%d' % (vr(wa), vr(O, 4), bo))
    cs('ds_write_b128 %s, %s offset:%d' % (vr(wa), vr(O + 4, 4), bo + 256))
    cs('ds_read_b128 %s, %s offset:%d' % (vr(RD + u * 8, 4), vr(ra), bo))
    cs('ds_read_b128 %s, %s offset:%d' % (vr(RD + u * 8 + 4, 4), vr(ra), bo + 1024))
a.weave(cs, ldp[0], 0.3, 0.95)
astamp(a, 6)
a('s_and_b32 %s, %s, 1' % (sr(S_T0), sr(S_KP2)))
a('s_mul_i32 %s, %s, %d' % (sr(S_T0), sr(S_T0), 2 * 37 * 1024))
a('s_lshr_b32 %s, %s, 1' % (sr(S_T1), sr(S_KP2)))
a('s_lshl_b32 %s, %s, 12' % (sr(S_T1), sr(S_T1)))
a('s_add_u32 %s, %s, %s' % (sr(S_T0), sr(S_T0), sr(S_T1)))
a('s_add_u32 %s, %s, %d' % (sr(S_T0), sr(S_T0), WS_CP))
a('s_cmp_lt_u32 %s, 216' % sr(S_AW))
a('s_cselect_b32 %s, %s, 0x%x' % (sr(S_T0), sr(S_T0), 0x40000000))
toks = []
for u in range(3):
    a('s_mul_i32 %s, %s, 3' % (sr(S_T1), sr(S_DG)))
    a('s_add_u32 %s, %s, %d' % (sr(S_T1), sr(S_T1), u))
    a('s_lshr_b32 %s, %s, 2' % (sr(S_T2), sr(S_T1)))
    a('s_mul_i32 %s, %s, %d' % (sr(S_T2), sr(S_T2), 4 * 37 * 1024))
    a('s_and_b32 %s, %s, 3' % (sr(S_T1), sr(S_T1)))
    a('s_lshl_b32 %s, %s, 10' % (sr(S_T1), sr(S_T1)))
    a('s_add_u32 %s, %s, %s' % (sr(S_T1), sr(S_T1), sr(S_T2)))
    a('s_add_u32 %s, %s, %s' % (sr(S_T1), sr(S_T1), sr(S_T0)))
    a('s_add_u32 %s, %s, %d' % (sr(S_T2), sr(S_T1), 37 * 1024))
    toks.append(a.mem('buffer_store_dwordx4 %s, %s, %s, %s offen sc1' % (vr(RD + u * 8, 4), vr(V_L16), sr(R_WS, 4), sr(S_T1))))
    toks.append(a.mem('buffer_store_dwordx4 %s, %s, %s, %s offen sc1' % (vr(RD + u * 8 + 4, 4), vr(V_L16), sr(R_WS, 4), sr(S_T2))))
a('s_nop 1')
put((CL, 24), (CF, 16), (X, 4), (O, 8), (RD, 24), wa, ra, (COEF, 2))
a.extend(ldp[1])
astamp(a, 7)
cf = Stream()
astamp(cf, 8)
cf.wait(*toks)
astamp(cf, 9)
cf('s_lshl_b32 %s, %s, 6' % (sr(S_T0), sr(S_AW)),
   's_add_u32 %s, %s, %d' % (sr(S_T0), sr(S_T0), WS_CPF), *flag_texts(sr(S_T0), 'sc1'))
a('v_sub_u32 %s, 1, %s' % (vr(sg), vr(sg)))
a('v_lshlrev_b32 %s, 6, %s' % (vr(sg), vr(sg)))
a('v_mul_u32_u24 %s, 272, %s' % (vr(ka), vr(dp)))
a('s_mul_i32 %s, %s, 8704' % (sr(S_SCR), sr(S_WAVE)))
a('v_add3_u32 %s, %s, %s, %s' % (vr(ka), vr(ka), vr(sg), sr(S_SCR)))
kc = Stream()
kv_core(kc, 12, lambda r: KR + 3 + r, lambda r: VR + r, SHK,
        lambda ch, un, reg: kc('ds_write_b128 %s, %s offset:%d' % (vr(ka), vr(reg, 4), ch * 128 + un * 16)),
        touch=lambda tp: kc.touch(vr(KR + 3 + 2 * tp, 6), vr(VR + 2 * tp, 6)) if tp % 3 == 0 else None)
cv = Conv()
conv_setup_k(cf, cv)
a.weave(kc, cf, 0.0, 0.5)
astamp(a, 10)
put((KR, 27), (VR, 24))
RD = V.get(32)
ra, ga = V.get(), V.get()
a('v_lshlrev_b32 %s, 4, %s' % (vr(ra), vr(V_Q)))
a('v_add3_u32 %s, %s, %s, %s' % (vr(ra), vr(ra), vr(V_L16), sr(S_SCR)))
for i in range(8):
    a('ds_read_b128 %s, %s offset:%d' % (vr(RD + 4 * i, 4), vr(ra), 1088 * i))
a('v_lshrrev_b32 %s, 3, %s' % (vr(ga), vr(V_LANE)))
a('v_mul_u32_u24 %s, %d, %s' % (vr(ga), KVT_STR - 128, vr(ga)))
a('v_add_u32 %s, %s, %s' % (vr(ga), vr(ga), vr(V_L16)))
a('s_mul_i32 %s, %s, %d' % (sr(S_T0), sr(S_CGK), 64 * KVT_STR))
a('s_sub_u32 %s, 43, %s' % (sr(S_T1), sr(S_KC_)))
a('s_lshl_b32 %s, %s, 7' % (sr(S_T1), sr(S_T1)))
a('s_add_u32 %s, %s, %s' % (sr(S_T0), sr(S_T0), sr(S_T1)))
a('s_cmp_lt_u32 %s, 132' % sr(S_AW2))
a('s_cselect_b32 %s, %s, 0x%x' % (sr(S_T2), sr(S_T0), 0x40000000))
for i in range(8):
    a('s_add_u32 %s, %s, %d' % (sr(S_T1), sr(S_T2), WS_KVT + 8 * i * KVT_STR),
      'buffer_store_dwordx4 %s, %s, %s, %s offen sc1' % (vr(RD + 4 * i, 4), vr(ga), sr(R_WS, 4), sr(S_T1)))
a('s_nop 1')
if OPT['stamps']:
    a('s_memtime %s' % sr(S_M2, 2), 's_waitcnt lgkmcnt(0)', 'v_writelane_b32 %s, %s, 1' % (vr(V_STAMP), sr(S_M2)))
keep_cv = cv
a('s_branch L_auxconv3')
a.fence()
a.label('L_auxconv2')
V.free = set(range(NCOMMON, 256))
V.locked = set()
sv = OPT['stamps']
OPT['stamps'] = 0
OPT['_sv'] = sv
cv = Conv()
a('s_barrier')
conv_setup_k(a, cv)
assert (cv.SD, cv.HD) == (keep_cv.SD, keep_cv.HD)
a.label('L_auxconv3')
a('s_barrier')
conv_u_prep(a, cv)
put(*conv_addr(a, cv))
conv_body(a, cv, pre_issued=False)
a.wait(cv.stk)
a('s_barrier')
conv_final(a, cv)
astamp(a, 13)
OPT['stamps'] = sv
if OPT['stamps']:
    a('s_memtime %s' % sr(S_M2, 2), 's_waitcnt lgkmcnt(0)', 's_cmp_eq_u32 %s, %s' % (sr(S_PAIR), sr(S_L)),
      's_cselect_b32 m0, 2, 3', 's_nop 3', 'v_writelane_b32 %s, %s, m0' % (vr(V_STAMP), sr(S_M2)))
a('s_add_u32 %s, %s, %d' % (sr(S_PAIR), sr(S_PAIR), NAUX))
a('s_cmp_lt_u32 %s, 288' % sr(S_PAIR))
a('s_cbranch_scc1 L_auxconv2')
a('s_branch L_fin')

a.fence()
a.extend(tail)

a.label('L_fin')
if OPT['stamps']:
    a('s_waitcnt vmcnt(0) lgkmcnt(0)')
    a('%s %s' % ('s_memtime' if OPT['cyc'] else 's_memrealtime', sr(S_M2, 2)))
    a('s_waitcnt lgkmcnt(0)')
    a('v_writelane_b32 %s, %s, 63' % (vr(V_STAMP), sr(S_M2)))
    a('v_writelane_b32 %s, %s, 62' % (vr(V_STAMP), sr(S_FAST)))
    a('s_lshl_b32 %s, %s, 10' % (sr(S_T0), sr(S_L)))
    a('s_add_u32 %s, %s, %d' % (sr(S_T0), sr(S_T0), WS_DBG))
    a('v_lshlrev_b32 %s, 2, v0' % vr(V_DUMMY))
    a('buffer_store_dword %s, %s, %s, %s offen' % (vr(V_STAMP), vr(V_DUMMY), sr(R_WS, 4), sr(S_T0)))
if OPT['enc2']:
    n1_, n2_ = OPT['enc2'].split(':')
    a('s_lshl2_add_u32 %s, %s, %s' % (sr(S_T0), sr(S_L), sr(S_WAVE)))
    a('s_cmp_lg_u32 %s, %d' % (sr(S_T0), OPT['encwg'] * 4))
    a('s_cbranch_scc1 L_end')
    a('v_readlane_b32 s12, %s, %d' % (vr(V_STAMP), STAMPS.index(n1_)))
    a('v_readlane_b32 s13, %s, %d' % (vr(V_STAMP), 63 if n2_ == 'end' else STAMPS.index(n2_)))
    a('s_memrealtime s[16:17]')
    a('s_sub_u32 s13, s13, s12')
    a('s_lshr_b32 s13, s13, 2')
    a('s_waitcnt lgkmcnt(0)')
    a.label('L_hold')
    a('s_memrealtime s[14:15]')
    a('s_waitcnt lgkmcnt(0)')
    a('s_sub_u32 s14, s14, s16')
    a('s_cmp_lt_u32 s14, s13')
    a('s_cbranch_scc1 L_hold')
if OPT['enc']:
    idx_ = 63 if OPT['enc'] == 'end' else STAMPS.index(OPT['enc'])
    a('s_lshl2_add_u32 %s, %s, %s' % (sr(S_T0), sr(S_L), sr(S_WAVE)))
    a('s_cmp_lg_u32 %s, %d' % (sr(S_T0), OPT['encwg'] * 4))
    a('s_cbranch_scc1 L_end')
    a('v_readlane_b32 s12, %s, %d' % (vr(V_STAMP), idx_))
    a.label('L_hold')
    a('s_memrealtime s[14:15]')
    a('s_waitcnt lgkmcnt(0)')
    a('s_sub_u32 s14, s14, s12')
    a('s_cmp_lt_u32 s14, 5000')
    a('s_cbranch_scc1 L_hold')
a.label('L_end')
a('s_endpgm')

hdr = open(os.path.join(os.path.dirname(os.path.abspath(__file__)), '..', 'cdna_kernels', NAME + '.s.ref')).read().split('\n')
head = []
for ln in hdr:
    if ln.startswith('; @launch'):
        break
    head.append(ln)
lines = head + ['; @launch grid=(256,1,1) block=(256,1,1) lds=%d' % LDS_SIZE,
                '.amdgcn_target "amdgcn-amd-amdhsa--gfx950"', '.text', '.globl ' + KN, '.p2align 8',
                '.type %s,@function' % KN, KN + ':']
lines += finalize(top)
lines += ['.section .rodata,"a"', '.p2align 6', '.amdhsa_kernel ' + KN,
          '  .amdhsa_next_free_vgpr 512', '  .amdhsa_next_free_sgpr 102', '  .amdhsa_accum_offset 256',
          '  .amdhsa_group_segment_fixed_size 0', '  .amdhsa_kernarg_size 144', '  .amdhsa_user_sgpr_count 2',
          '  .amdhsa_user_sgpr_kernarg_segment_ptr 1', '  .amdhsa_system_sgpr_workgroup_id_x 1', '.end_amdhsa_kernel']
open(sys.argv[1], 'w').write('\n'.join(lines) + '\n')
if OPT['stamps']:
    open(sys.argv[1] + '.stamps', 'w').write('\n'.join(STAMPS) + '\n')
print('vgpr high water', V.hw, 'lines', len(lines))
```

```python
import sys, os
sys.path.insert(0, os.path.dirname(os.path.abspath(__file__)))
from asmlib import *

NAME = 'interleave_layers__ssm_conv_s5__ssm_conv_h3__prompt'
KN = NAME + '_kernel'

OPT = dict(ntx=0, nto=0, enc2='', enc='', encwg=100, opol=0, tpos=1, tpol=0, stamps=0, slow=0, hbuf2=0, crot=0, pf=3, slp=16, slp2=6, ncp0=0, ncp=11, ncp2=16, per=5, x_nod1=0, x_s0late=0, x_nomfma=0, x_noload=0, fine=0, cyc=0)
for a_ in sys.argv[2:]:
    k_, v_ = a_.split('=')
    OPT[k_] = int(v_) if v_.lstrip('-').isdigit() else v_

MT = 6
TPOL = ('sc1', 'nt', 'sc1 nt')[OPT['tpol']]
NRB = 22
NMAIN = 198
NAUX = 58
WS_KVF = 0x1000
WS_CPF = 0xC000
WS_HF = 0x4000
WS_WF = 0x4000 + 2 * 22 * 256
WS_GF = 0xA000
WS_RBG = 0xC000
WS_E = 0x10000
WS_ST = 0xA0000
ST_SZ = 22 * 24576
WS_KVT = 0x1600000
KVT_STR = 5632
WS_CP = 0x540000
WS_H = 0x6C0000
H_SZ = 22 * 221184 * OPT['hbuf2']
WS_W = 0x1040000
WS_G = 0x12C0000
G_STR = 11264
WS_DBG = 0x2000000
WS_SIZE = 0x10000000
OOB = 0x7FFF0000

BLK = 12288
L_IMG = 0
L_RING = 9 * BLK
L_MISC = L_RING + 49152
LDS_SIZE = 163840
L_TAB = L_MISC
L_FX = L_MISC + 768
L_HALO = L_MISC + 3072
L_KRAW = 0
L_KVO = 28672
L_KC = L_RING
KC_CH = 16656
L_UC = L_IMG + 16
UC_CH = 9280
L_CO = 20480
CO_W = 10944
PART_ROW = 272
PART_W = 16 * PART_ROW
SPIN = 20000

P_X, P_LRE, P_LIM, P_BRE, P_BIM, P_CRE, P_CIM, P_LDT = [8 + 2 * i for i in range(8)]
P_DSK, P_Q, P_K, P_V, P_SHK, P_SSK, P_SSD, P_OUT = [24 + 2 * i for i in range(8)]
P_DBG, P_WS = 40, 42
R_WS, R_X, R_BRE, R_BIM, R_K, R_V, R_OUT, R_SK = [44 + 4 * i for i in range(8)]
S_RB, S_CG, S_FAST, S_WAVE, S_TAG, S_L, S_PAIR, S_SPIN = range(76, 84)
S_KP = 84
S_T0, S_T1, S_T2, S_T3 = 93, 94, 95, 96
S_ROLE = 97
S_M1, S_M2 = 98, 100
S_A, S_B, S_C = 3, 4, 5
S_PC = 6
S_TT = 8
S_TU = 17
S_MSEL = 26
S_MACT = 40
S_W1K = 97
S_RINGW = 98
S_PT = 99
S_XCC = 20
S_CPB = 21
S_HB = 22

V = Alloc('v', 1, 256)
top = Stream()
tail = Stream()
lblc = [0]
STAMPS = []


def newlabel(p):
    lblc[0] += 1
    return 'L_%s_%d' % (p, lblc[0])


def put(*items):
    for it in items:
        if isinstance(it, tuple):
            V.put(*it)
        else:
            V.put(it)


def srd(a, r, p, size):
    a('s_mov_b64 %s, %s' % (sr(r, 2), sr(p, 2)))
    a('s_mov_b32 %s, 0x%x' % (sr(r + 2), size))
    a('s_mov_b32 %s, 0x20000' % sr(r + 3))


def cmul(a, d, x, y):
    a('v_pk_mul_f32 %s, %s, %s op_sel:[0,0] op_sel_hi:[1,0]' % (vr(d, 2), vr(x, 2), vr(y, 2)))
    a('v_pk_fma_f32 %s, %s, %s, %s op_sel:[1,1,0] op_sel_hi:[0,1,1] neg_lo:[1,0,0]' % (vr(d, 2), vr(x, 2), vr(y, 2), vr(d, 2)))


def cmul_plain(a, d, x, y):
    a('v_mul_f32 %s, %s, %s' % (vr(d), vr(x), vr(y)))
    a('v_mul_f32 %s, %s, %s' % (vr(d + 1), vr(x + 1), vr(y)))
    a('v_fma_f32 %s, -%s, %s, %s' % (vr(d), vr(x + 1), vr(y + 1), vr(d)))
    a('v_fmac_f32 %s, %s, %s' % (vr(d + 1), vr(x), vr(y + 1)))


def cfma(a, d, x, y, c):
    a('v_pk_fma_f32 %s, %s, %s, %s op_sel:[0,0,0] op_sel_hi:[1,0,1]' % (vr(d, 2), vr(x, 2), vr(y, 2), vr(c, 2)))
    a('v_pk_fma_f32 %s, %s, %s, %s op_sel:[1,1,0] op_sel_hi:[0,1,1] neg_lo:[1,0,0]' % (vr(d, 2), vr(x, 2), vr(y, 2), vr(d, 2)))


def stamp(a, name):
    if not OPT['stamps']:
        return
    i = len(STAMPS)
    a('%s %s' % ('s_memtime' if OPT['cyc'] else 's_memrealtime', sr(S_M2, 2)), 's_waitcnt lgkmcnt(0)', 'v_writelane_b32 %s, %s, %d' % (vr(V_STAMP), sr(S_M2), i))
    STAMPS.append(name)


def astamp(a, i):
    if OPT['stamps'] or OPT.get('_sv'):
        a('s_memtime %s' % sr(S_M2, 2), 's_waitcnt lgkmcnt(0)', 'v_writelane_b32 %s, %s, %d' % (vr(V_STAMP), sr(S_M2), i))


def poll(a, loads, checks, pre_issued=False, sleep=0):
    p = Stream()
    L = newlabel('poll')
    Lc = newlabel('pollc')
    simple = len(checks) == 1 and checks[0][1] is None
    acc = None if simple else V.get(2, 1)
    p('s_mov_b32 %s, %d' % (sr(S_SPIN), SPIN))
    if pre_issued:
        regs = []
        for c in checks:
            regs += [vr(c[0])] + ([vr(c[1])] if c[1] is not None else [])
        p.touch(*regs)
        p.label(Lc)
    else:
        p.label(L)
        if sleep:
            p('s_sleep %d' % sleep)
        for t in loads:
            p(t)
        p('s_waitcnt vmcnt(0)')
    if len(checks) == 1 and checks[0][1] is None:
        p('v_cmp_ne_u32 vcc, %s, %s' % (vr(checks[0][0]), vr(checks[0][2])))
    else:
        first = True
        for (x, y, e) in checks:
            d = acc if first else acc + 1
            if y is None:
                p('v_xor_b32 %s, %s, %s' % (vr(d), vr(x), vr(e)))
            else:
                p('v_bitop3_b32 %s, %s, %s, %s bitop3:0x7e' % (vr(d), vr(x), vr(y), vr(e)))
            if not first:
                p('v_or_b32 %s, %s, %s' % (vr(acc), vr(acc), vr(acc + 1)))
            first = False
        p('v_cmp_ne_u32 vcc, 0, %s' % vr(acc))
    p('s_sub_u32 %s, %s, 1' % (sr(S_SPIN), sr(S_SPIN)))
    p('s_cselect_b64 vcc, 0, vcc')
    p('s_cmp_lg_u64 vcc, 0')
    p('s_cbranch_scc1 %s' % L)
    if pre_issued:
        tail.label(L)
        if sleep:
            tail('s_sleep %d' % sleep)
        for t in loads:
            tail(t)
        tail('s_waitcnt vmcnt(0)')
        tail('s_branch %s' % Lc)
    a.join(p)
    if acc is not None:
        V.put(acc, 2)


def dual(a, texts, touch=()):
    Ls, Lb = newlabel('slow'), newlabel('back')
    p = Stream()
    if touch:
        p.touch(*touch)
    p('s_cmp_eq_u32 %s, 0' % sr(S_FAST), 's_cbranch_scc1 %s' % Ls)
    tk = p.mem(*[t.replace(' {P}', '') for t in texts])
    p.label(Lb)
    a.join(p)
    tail.label(Ls)
    tail('s_nop 1')
    tail(*[t.replace('{P}', 'sc1') for t in texts])
    tail('s_branch %s' % Lb)
    return tk


def flag_texts(soff, pol):
    return ['s_mov_b64 exec, 1',
            'buffer_store_dword %s, %s, %s, %s offen %s' % (vr(V_TAG), vr(V_ZERO), sr(R_WS, 4), soff, pol),
            's_mov_b64 exec, -1']


def lam_loads(a, vp2):
    t = V.get(4)
    a('global_load_ushort %s, %s, %s' % (vr(t), vr(vp2), sr(P_LRE, 2)))
    a('global_load_ushort %s, %s, %s' % (vr(t + 1), vr(vp2), sr(P_LIM, 2)))
    a('global_load_ushort %s, %s, %s' % (vr(t + 2), vr(vp2), sr(P_LDT, 2)))
    return t


def lam_compute(a, t, want_coef, lam=None):
    if lam is None:
        lam = V.get(2)
    u = V.get(4)
    for i in range(3):
        a('v_lshlrev_b32 %s, 16, %s' % (vr(t + i), vr(t + i)))
    a('v_mul_f32 %s, 0x3fb8aa3b, %s' % (vr(t + 2), vr(t + 2)))
    a('v_exp_f32 %s, %s' % (vr(t + 2), vr(t + 2)))
    a('v_cvt_pk_bf16_f32 %s, %s, %s' % (vr(t + 2), vr(t + 2), vr(t + 2)))
    a('v_lshlrev_b32 %s, 16, %s' % (vr(t + 2), vr(t + 2)))
    a('v_mul_f32 %s, %s, %s' % (vr(u), vr(t + 2), vr(t)))
    a('v_mul_f32 %s, %s, %s' % (vr(u + 1), vr(t + 2), vr(t + 1)))
    a('v_mul_f32 %s, 0x3fb8aa3b, %s' % (vr(u), vr(u)))
    a('v_exp_f32 %s, %s' % (vr(u), vr(u)))
    a('v_mul_f32 %s, 0.15915494, %s' % (vr(u + 1), vr(u + 1)))
    a('v_rndne_f32 %s, %s' % (vr(u + 2), vr(u + 1)))
    a('v_sub_f32 %s, %s, %s' % (vr(u + 1), vr(u + 1), vr(u + 2)))
    a('v_cos_f32 %s, %s' % (vr(u + 2), vr(u + 1)))
    a('v_sin_f32 %s, %s' % (vr(u + 3), vr(u + 1)))
    a('v_mul_f32 %s, %s, %s' % (vr(lam), vr(u), vr(u + 2)))
    a('v_mul_f32 %s, %s, %s' % (vr(lam + 1), vr(u), vr(u + 3)))
    coef = None
    if want_coef:
        coef = V.get(2)
        a('v_add_f32 %s, -1.0, %s' % (vr(u), vr(lam)))
        a('v_mov_b32 %s, %s' % (vr(u + 1), vr(lam + 1)))
        a('v_mul_f32 %s, %s, %s' % (vr(u + 2), vr(t), vr(t)))
        a('v_fmac_f32 %s, %s, %s' % (vr(u + 2), vr(t + 1), vr(t + 1)))
        a('v_rcp_f32 %s, %s' % (vr(u + 2), vr(u + 2)))
        a('v_sub_f32 %s, 0, %s' % (vr(t + 1), vr(t + 1)))
        cmul(a, coef, u, t)
        a('v_mul_f32 %s, %s, %s' % (vr(coef), vr(coef), vr(u + 2)))
        a('v_mul_f32 %s, %s, %s' % (vr(coef + 1), vr(coef + 1), vr(u + 2)))
    put((u, 4), (t, 4))
    return lam, coef


def tag_ready(a):
    a('s_mul_i32 %s, %s, 0x9E3779B1' % (sr(S_TAG), sr(S_TAG)),
      's_add_u32 %s, %s, 0x7F4A7C15' % (sr(S_TAG), sr(S_TAG)),
      'v_mov_b32 %s, %s' % (vr(V_TAG), sr(S_TAG)))


def rbf(s, regs):
    for r in regs:
        s('v_cvt_pk_bf16_f32 %s, %s, %s' % (vr(r), vr(r), vr(r)))
    for r in regs:
        s('v_lshlrev_b32 %s, 16, %s' % (vr(r), vr(r)))


def rs12(s, S, Q):
    dp = 'v_add_f32_dpp %s, %s, %s %s row_mask:0xf bank_mask:0x%x'
    for X in (S, Q):
        for j in range(3):
            s(dp % (vr(X[j]), vr(X[j]), vr(X[j]), 'row_ror:8', 0x3))
    for X in (S, Q):
        for j in range(3):
            s(dp % (vr(X[j]), vr(X[j + 3]), vr(X[j + 3]), 'row_ror:8', 0xc))
    for X in (S, Q):
        s(dp % (vr(X[0]), vr(X[0]), vr(X[0]), 'row_half_mirror', 0x5))
        s(dp % (vr(X[2]), vr(X[2]), vr(X[2]), 'row_half_mirror', 0xf))
    for X in (S, Q):
        s(dp % (vr(X[0]), vr(X[1]), vr(X[1]), 'row_half_mirror', 0xa))
    for qp in ('quad_perm:[1,0,3,2]', 'quad_perm:[2,3,0,1]'):
        for r in (S[2], Q[2], S[0], Q[0]):
            s(dp % (vr(r), vr(r), vr(r), qp, 0xf))


def tile_src(i):
    hf, j = divmod(i, 3)
    if j == 2:
        return 1, 8 * hf
    return 0, 8 * hf + 4 * j


a = top
V_LANE, V_TAG, V_STAMP, V_L16, V_N, V_Q = [V.get() for _ in range(6)]
V_OOB = V.get()
V_JUNK = V.get()
V_ZERO = V.get(2)
V_DUMMY = V.get(4)
NCOMMON = V.hw
BASE = V.get(24)
V_DSK = V.get(4)
V_FA = V.get(4)
LAM, L12, L24, L384, LQ96, LQ24, RB, OFF = [V.get(2) for _ in range(8)]
(V_TAU, V_OROW, V_STW, V_STR, V_EXP9, V_TABW, V_EW, V_ER, V_HW, V_HR, V_TABR, V_WA) = [V.get() for _ in range(12)]
WCV = V.home(32)
GP = V.home(12)
V_PW = V.home(4)
V_PR, V_PW2, V_PR2 = V_PW + 1, V_PW + 2, V_PW + 3
HOMES = ((WCV, 32), (GP, 12), (V_PW, 4))
V_DX = V.get(3, 1)

a('s_cmp_ge_u32 s2, 256')
a('s_cbranch_scc1 L_end')
a('s_load_dwordx16 s[8:23], s[0:1], 0')
a('s_load_dwordx16 s[24:39], s[0:1], 64')
a('s_load_dwordx4 s[40:43], s[0:1], 128')
a('s_getpc_b64 %s' % sr(S_PC, 2))
a.label('L_pc')
a('s_lshr_b32 %s, s2, 3' % sr(S_T0))
a('s_lshl_b32 %s, %s, 12' % (sr(S_T1), sr(S_T0)))
a('v_lshl_add_u32 %s, v0, 4, %s' % (vr(V_TAG), sr(S_T1)))
a('s_mov_b32 %s, L_end-L_pc-16' % sr(S_T1))
a('v_min_u32 %s, %s, %s' % (vr(V_TAG), sr(S_T1), vr(V_TAG)))
a('global_load_dwordx4 %s, %s, %s ;junk' % (vr(V_DUMMY, 4), vr(V_TAG), sr(S_PC, 2)))
a('v_and_b32 %s, 63, v0' % vr(V_LANE))
a('v_lshrrev_b32 %s, 6, v0' % vr(V_Q))
a('v_lshlrev_b32 %s, 4, %s' % (vr(V_L16), vr(V_LANE)))
a('v_readfirstlane_b32 %s, %s' % (sr(S_WAVE), vr(V_Q)))
if OPT['stamps']:
    a('v_mov_b32 %s, 0' % vr(V_STAMP))
stamp(a, 'start')
a('v_and_b32 %s, 15, %s' % (vr(V_N), vr(V_LANE)))
a('v_lshrrev_b32 %s, 4, %s' % (vr(V_Q), vr(V_LANE)))
a('v_mov_b32 %s, 0' % vr(V_ZERO))
a('v_mov_b32 %s, 0' % vr(V_ZERO + 1))
a('v_mov_b32 %s, 0x%x' % (vr(V_OOB), OOB))
a('s_and_b32 %s, s2, 7' % sr(S_T1))
a('s_mul_i32 %s, %s, 27' % (sr(S_T2), sr(S_T1)))
a('s_add_u32 %s, %s, %s' % (sr(S_T2), sr(S_T2), sr(S_T0)))
a('s_mul_i32 %s, %s, 5' % (sr(S_T3), sr(S_T1)))
a('s_add_u32 %s, %s, %s' % (sr(S_T3), sr(S_T3), sr(S_T0)))
a('s_add_u32 %s, %s, %d' % (sr(S_T3), sr(S_T3), 216 - 27))
a('s_cmp_lt_u32 %s, 27' % sr(S_T0))
a('s_cselect_b32 %s, %s, %s' % (sr(S_L), sr(S_T2), sr(S_T3)))
a('s_mul_i32 %s, %s, 57' % (sr(S_RB), sr(S_L)))
a('s_lshr_b32 %s, %s, 9' % (sr(S_RB), sr(S_RB)))
a('s_mul_i32 %s, %s, 9' % (sr(S_T0), sr(S_RB)))
a('s_sub_u32 %s, %s, %s' % (sr(S_CG), sr(S_L), sr(S_T0)))
a('s_mov_b32 %s, %s' % (sr(S_PAIR), sr(S_L)))
a('s_and_b32 %s, %s, 1' % (sr(S_A), sr(S_WAVE)))
a('s_lshr_b32 %s, %s, 1' % (sr(S_B), sr(S_WAVE)))
a('s_cmp_ge_u32 %s, %d' % (sr(S_L), NMAIN))
a('s_cbranch_scc1 L_aux')

t, t2, t3 = V.get(), V.get(), V.get()
LAMT = V.get(4)
lad, dad = V.get(), V.get()
V_DB = V.get(2)
c0 = V.get()
a('v_lshrrev_b32 %s, 3, %s' % (vr(t), vr(V_LANE)))
a('v_and_b32 %s, 7, %s' % (vr(t3), vr(V_LANE)))
a('s_lshl2_add_u32 %s, %s, %s' % (sr(S_PT), sr(S_CG), sr(S_WAVE)))
a('s_lshl_b32 %s, %s, 10' % (sr(S_W1K), sr(S_WAVE)))
a('s_mul_i32 %s, %s, 12288' % (sr(S_RINGW), sr(S_WAVE)))
a('s_add_u32 %s, %s, %d' % (sr(S_RINGW), sr(S_RINGW), L_RING))
a('s_lshl_b32 %s, %s, 7' % (sr(S_KP), sr(S_CG)))
a('v_xor_b32 %s, %s, %s' % (vr(c0), vr(t3), vr(V_Q)))
a('v_lshlrev_b32 %s, 4, %s' % (vr(c0), vr(c0)))
a('v_lshrrev_b32 %s, 5, %s' % (vr(t2), vr(V_LANE)))
a('v_mul_u32_u24 %s, 24, %s' % (vr(t2), vr(t2)))
a('v_and_b32 %s, 1, %s' % (vr(t3), vr(t)))
a('v_mad_u32_u24 %s, %s, 12, %s' % (vr(t2), vr(t3), vr(t2)))
a('v_and_b32 %s, 1, %s' % (vr(t3), vr(V_Q)))
a('s_mul_i32 %s, %s, 48' % (sr(S_T0), sr(S_A)))
a('s_mul_i32 %s, %s, 96' % (sr(S_T1), sr(S_RB)))
a('s_add_u32 %s, %s, %s' % (sr(S_T0), sr(S_T0), sr(S_T1)))
a('s_lshl1_add_u32 %s, %s, %s' % (sr(S_T0), sr(S_B), sr(S_T0)))
a('v_add3_u32 %s, %s, %s, %s' % (vr(t2), vr(t2), vr(t3), sr(S_T0)))
a('v_mul_u32_u24 %s, 1152, %s' % (vr(t2), vr(t2)))
a('s_lshl_b32 %s, %s, 6' % (sr(S_T0), sr(S_A)))
a('v_xor_b32 %s, %s, %s' % (vr(V_DX), sr(S_T0), vr(c0)))
a('v_add_u32 %s, %s, %s' % (vr(V_DX), vr(V_DX), vr(t2)))
a('v_add_u32 %s, 4608, %s' % (vr(V_DX + 1), vr(V_DX)))
a('v_add_u32 %s, 9216, %s' % (vr(V_DX + 2), vr(V_DX)))
a('s_lshl_b32 %s, %s, 4' % (sr(S_T0), sr(S_PT)))
a('v_add_u32 %s, %s, %s' % (vr(t2), sr(S_T0), vr(t)))
a('v_mul_u32_u24 %s, 1152, %s' % (vr(t2), vr(t2)))
a('v_add_u32 %s, %s, %s' % (vr(V_DB), vr(t2), vr(c0)))
a('v_xor_b32 %s, 64, %s' % (vr(V_DB + 1), vr(c0)))
a('v_add_u32 %s, %s, %s' % (vr(V_DB + 1), vr(V_DB + 1), vr(t2)))
a('v_add_u32 %s, %d, %s' % (vr(V_DB + 1), 8 * 1152, vr(V_DB + 1)))
put(c0)
a('s_mov_b32 %s, 0x%x' % (sr(R_X + 2), 2048 * 1152))
a('s_mov_b32 %s, 0x20000' % sr(R_X + 3))
for r_ in (R_BRE, R_BIM):
    a('s_mov_b32 %s, 0x%x' % (sr(r_ + 2), 576 * 1152))
    a('s_mov_b32 %s, 0x20000' % sr(r_ + 3))
a('s_waitcnt lgkmcnt(0)')
a('s_mov_b64 %s, %s' % (sr(R_X, 2), sr(P_X, 2)))
a('s_mov_b64 %s, %s' % (sr(R_BRE, 2), sr(P_BRE, 2)))
a('s_mov_b64 %s, %s' % (sr(R_BIM, 2), sr(P_BIM, 2)))


def x_dma(s, blk, layer):
    tk = None
    for u in range(3):
        s('s_add_u32 m0, %s, %d' % (sr(S_W1K), L_IMG + blk * BLK + u * 4096))
        tk = s.mem('buffer_load_dwordx4 %s, %s, %s offen%s lds' % (vr(V_DX + u), sr(R_X if layer == 0 else R_WS, 4),
                                                                   sr((S_KP if layer == 0 else S_TT) + blk), (' nt' if OPT['ntx'] else '') if layer == 0 else ' sc1'))
    return tk


WB = lambda kp, h, mat: ((kp * 2 + h) * 2 + mat) * 4


def b_dma(s, kp):
    tk = None
    for b in range(4):
        s('s_add_u32 m0, %s, %d' % (sr(S_RINGW), (kp % 3) * 4096 + b * 1024))
        tk = s.mem('buffer_load_dwordx4 %s, %s, %s offen lds' % (vr(V_DB + (b & 1)), sr(R_BRE if b < 2 else R_BIM, 4), sr(S_KP + kp)))
    return tk


xtk, btk = {}, {}
i0, kt = Stream(), Stream()
xtk[0] = x_dma(i0, 0, 0)
btk[0] = b_dma(i0, 0)
kt('s_load_dword %s, %s, 0' % (sr(S_TAG), sr(P_WS, 2)))
kt('s_mul_i32 %s, %s, 43' % (sr(S_T0), sr(S_RB)))
kt('s_lshr_b32 %s, %s, 7' % (sr(S_T0), sr(S_T0)))
kt('s_mul_i32 %s, %s, 3' % (sr(S_T0), sr(S_T0)))
kt('s_sub_u32 %s, %s, %s' % (sr(S_T0), sr(S_RB), sr(S_T0)))
kt('s_lshl_b32 %s, 128, %s' % (sr(S_T0), sr(S_T0)))
for i in range(1, 9):
    kt('s_add_u32 %s, %s, %s' % (sr(S_KP + i), sr(S_KP + i - 1), sr(S_T0)),
       's_sub_u32 %s, %s, 1152' % (sr(S_T1), sr(S_KP + i)),
       's_cselect_b32 %s, %s, %s' % (sr(S_KP + i), sr(S_KP + i), sr(S_T1)))
a.weave(i0, kt)
a('s_lshl_b32 %s, %s, 5' % (sr(S_T1), sr(S_PT)))
a('v_lshl_add_u32 %s, %s, 1, %s' % (vr(lad), vr(V_N), sr(S_T1)))
btk[1] = b_dma(a, 1)
a('global_load_ushort %s, %s, %s' % (vr(LAMT), vr(lad), sr(P_LRE, 2)))
a('global_load_ushort %s, %s, %s' % (vr(LAMT + 1), vr(lad), sr(P_LIM, 2)))
a('global_load_ushort %s, %s, %s' % (vr(LAMT + 2), vr(lad), sr(P_LDT, 2)))
srd(a, R_WS, P_WS, WS_SIZE)
su = Stream()
V_FB = V.get(2)
su('v_lshrrev_b32 %s, 1, %s' % (vr(t), vr(V_N)))
su('v_xor_b32 %s, %s, %s' % (vr(t), vr(t), vr(V_Q)))
su('v_lshlrev_b32 %s, 4, %s' % (vr(t), vr(t)))
su('v_lshl_add_u32 %s, %s, 7, %s' % (vr(V_FA), vr(V_N), vr(t)))
su('v_xor_b32 %s, 64, %s' % (vr(V_FA + 1), vr(V_FA)))
su('v_add_u32 %s, %d, %s' % (vr(V_FA + 2), 4 * BLK, vr(V_FA)))
su('v_add_u32 %s, %d, %s' % (vr(V_FA + 3), 4 * BLK, vr(V_FA + 1)))
su('v_add_u32 %s, %s, %s' % (vr(V_FB), sr(S_RINGW), vr(V_FA)))
su('v_add_u32 %s, %s, %s' % (vr(V_FB + 1), sr(S_RINGW), vr(V_FA + 1)))
srd(su, R_OUT, P_OUT, 2048 * 2304)
su('s_mov_b32 %s, 0x02020202' % sr(S_MSEL), 's_mov_b32 %s, 0x02020202' % sr(S_MSEL + 1))
su('s_mov_b32 %s, 0x13131313' % sr(S_MACT), 's_mov_b32 %s, 0x13131313' % sr(S_MACT + 1))
su('s_getreg_b32 %s, hwreg(HW_REG_XCC_ID, 0, 4)' % sr(S_XCC))
su('v_and_b32 %s, 1, %s' % (vr(t), vr(V_Q)))
su('v_mul_u32_u24 %s, 12, %s' % (vr(V_TAU), vr(t)))
su('v_lshrrev_b32 %s, 1, %s' % (vr(t2), vr(V_Q)))
su('v_add_u32 %s, %s, %s' % (vr(V_TAU), vr(V_TAU), vr(t2)))
su('s_mul_i32 %s, %s, 96' % (sr(S_T0), sr(S_RB)),
   's_mul_i32 %s, %s, 24' % (sr(S_T1), sr(S_WAVE)),
   's_add_u32 %s, %s, %s' % (sr(S_T0), sr(S_T0), sr(S_T1)),
   'v_add_u32 %s, %s, %s' % (vr(t3), sr(S_T0), vr(V_TAU)))
su('v_mul_u32_u24 %s, 2304, %s' % (vr(V_OROW), vr(t3)))
su('s_lshl_b32 %s, %s, 8' % (sr(S_T0), sr(S_CG)),
   'v_lshl_add_u32 %s, %s, 4, %s' % (vr(t3), vr(V_N), sr(S_T0)))
su('v_add_u32 %s, %s, %s' % (vr(V_OROW), vr(V_OROW), vr(t3)))
TI = V.get()
su('v_lshrrev_b32 %s, 3, %s' % (vr(TI), vr(V_N)))
su('v_mul_u32_u24 %s, 3, %s' % (vr(TI), vr(TI)))
su('v_bfe_u32 %s, %s, 2, 1' % (vr(t3), vr(V_N)))
su('v_cndmask_b32 %s, %s, 2, %s' % (vr(t3), vr(t3), sr(S_MSEL, 2)))
su('v_add_u32 %s, %s, %s' % (vr(TI), vr(TI), vr(t3)))
su('v_lshl_add_u32 %s, %s, 1, %s' % (vr(t3), vr(TI), vr(t2)))
su('v_lshlrev_b32 %s, 4, %s' % (vr(t3), vr(t3)))
su('v_lshl_add_u32 %s, %s, 2, %s' % (vr(V_TABW), vr(t), vr(t3)))
su('s_mul_i32 %s, %s, 192' % (sr(S_T0), sr(S_WAVE)),
   's_add_u32 %s, %s, %d' % (sr(S_T0), sr(S_T0), L_TAB),
   'v_add_u32 %s, %s, %s' % (vr(V_TABW), sr(S_T0), vr(V_TABW)))
su('v_mul_u32_u24 %s, 192, %s' % (vr(V_TABR), vr(V_Q)))
su('v_add_u32 %s, %d, %s' % (vr(V_TABR), L_TAB, vr(V_TABR)))
su('s_mul_i32 %s, %s, 96' % (sr(S_T0), sr(S_RB)),
   's_lshl2_add_u32 %s, %s, %s' % (sr(S_T0), sr(S_WAVE), sr(S_T0)),
   'v_add_u32 %s, %s, %s' % (vr(t), sr(S_T0), vr(V_Q)))
su('v_lshlrev_b32 %s, 8, %s' % (vr(t), vr(t)))
su('v_lshl_add_u32 %s, %s, 4, %s' % (vr(V_STR), vr(V_N), vr(t)))
su('v_cmp_gt_u32 vcc, 9, %s' % vr(V_N),
   'v_cndmask_b32 %s, %s, %s, vcc' % (vr(V_STR), vr(V_OOB), vr(V_STR)))
su('v_lshl_add_u32 %s, %s, 12, %s' % (vr(V_STW), vr(TI), vr(t)))
su('s_lshl_b32 %s, %s, 4' % (sr(S_T0), sr(S_CG)),
   'v_add_u32 %s, %s, %s' % (vr(V_STW), sr(S_T0), vr(V_STW)))
su('v_cndmask_b32 %s, %s, %s, %s' % (vr(V_STW), vr(V_OOB), vr(V_STW), sr(S_MACT, 2)))
put(TI)
su('s_lshl_b32 %s, %s, 2' % (sr(S_T0), sr(S_WAVE)),
   'v_add_u32 %s, %s, %s' % (vr(V_WA), sr(S_T0), vr(V_Q)))
su('v_xor_b32 %s, %s, %s' % (vr(t), vr(V_WA), vr(V_N)))
su('v_lshrrev_b32 %s, 1, %s' % (vr(t), vr(t)))
su('v_lshlrev_b32 %s, 4, %s' % (vr(t), vr(t)))
su('v_lshl_add_u32 %s, %s, 7, %s' % (vr(V_WA), vr(V_WA), vr(t)))
su('v_and_b32 %s, 1, %s' % (vr(t), vr(V_N)))
su('v_lshl_add_u32 %s, %s, 3, %s' % (vr(V_WA), vr(t), vr(V_WA)))
su('s_lshl_b32 %s, %s, 8' % (sr(S_T0), sr(S_RB)),
   'v_lshl_add_u32 %s, %s, 4, %s' % (vr(V_EW), vr(V_N), sr(S_T0)))
su('v_lshlrev_b32 %s, 8, %s' % (vr(t), vr(V_Q)))
su('v_sub_u32 %s, %s, %s' % (vr(V_ER), vr(V_EW), vr(t)))
su('v_subrev_u32 %s, 256, %s' % (vr(V_ER), vr(V_ER)))
su('v_cmp_gt_u32 vcc, 16, %s' % vr(V_LANE),
   'v_cndmask_b32 %s, %s, %s, vcc' % (vr(V_EW), vr(V_OOB), vr(V_EW)))
su('v_lshl_add_u32 %s, %s, 2, %s' % (vr(t), vr(V_N), vr(t)))
su('s_mul_i32 %s, %s, 6144' % (sr(S_T0), sr(S_WAVE)), 's_add_u32 %s, %s, %d' % (sr(S_T0), sr(S_T0), 5 * BLK),
   'v_add_u32 %s, %s, %s' % (vr(V_HW), sr(S_T0), vr(t)))
su('v_lshlrev_b32 %s, 4, %s' % (vr(t), vr(V_Q)))
su('v_lshl_add_u32 %s, %s, 6, %s' % (vr(t), vr(V_N), vr(t)))
su('s_mul_i32 %s, %s, 6144' % (sr(S_T0), sr(S_WAVE)), 's_add_u32 %s, %s, %d' % (sr(S_T0), sr(S_T0), 5 * BLK),
   'v_add_u32 %s, %s, %s' % (vr(V_HR), sr(S_T0), vr(t)))
a.extend(su)
put(t, t2, t3)
a('s_lshl_b32 %s, %s, 7' % (sr(S_T1), sr(S_CG)))
a('v_lshl_add_u32 %s, %s, 3, %s' % (vr(dad), vr(V_N), sr(S_T1)))
stamp(a, 'setup')


def b_read(s, kp):
    s.wait(btk[kp])
    tk = None
    for h in range(2):
        for mat in range(2):
            tk = s.mem('ds_read_b128 %s, %s offset:%d' % (ar(WB(kp, h, mat), 4), vr(V_FB + h), (kp % 3) * 4096 + mat * 2048))
    return tk


class KVm:
    pass


def kv_dma(s, kv):
    kv.SHK = V.get(4, top=True)
    t, t2, kh = V.get(), V.get(), V.get()
    s('s_cmp_lt_u32 %s, 6' % sr(S_CG),
      's_cselect_b32 %s, %d, 0' % (sr(R_K + 2), 2048 * 1152),
      's_mov_b32 %s, %s' % (sr(R_V + 2), sr(R_K + 2)),
      's_mov_b32 %s, %s' % (sr(R_K), sr(P_K)), 's_and_b32 %s, %s, 0xffff' % (sr(R_K + 1), sr(P_K + 1)),
      's_mov_b32 %s, 0x20000' % sr(R_K + 3))
    s('s_mov_b32 %s, %s' % (sr(R_V), sr(P_V)), 's_and_b32 %s, %s, 0xffff' % (sr(R_V + 1), sr(P_V + 1)),
      's_mov_b32 %s, 0x20000' % sr(R_V + 3))
    s('v_lshrrev_b32 %s, 3, %s' % (vr(t), vr(V_LANE)))
    s('v_mul_u32_u24 %s, 1152, %s' % (vr(t2), vr(t)))
    s('v_and_b32 %s, 7, %s' % (vr(t), vr(V_LANE)))
    s('v_lshl_add_u32 %s, %s, 4, %s' % (vr(t2), vr(t), vr(t2)))
    s('v_and_b32 %s, 31, %s' % (vr(t), vr(V_LANE)))
    s('s_lshl_b32 %s, %s, 9' % (sr(S_T1), sr(S_CG)),
      'v_lshl_add_u32 %s, %s, 4, %s' % (vr(t), vr(t), sr(S_T1)),
      'global_load_dwordx4 %s, %s, %s' % (vr(kv.SHK, 4), vr(t), sr(P_SHK, 2)))
    s('s_lshl2_add_u32 %s, %s, %s' % (sr(S_T0), sr(S_RB), sr(S_WAVE)),
      's_mul_i32 %s, %s, %d' % (sr(S_T0), sr(S_T0), 24 * 1152),
      's_lshl_b32 %s, %s, 7' % (sr(S_T1), sr(S_CG)),
      's_add_u32 %s, %s, %s' % (sr(S_T0), sr(S_T0), sr(S_T1)),
      'v_add_u32 %s, %s, %s' % (vr(t2), sr(S_T0), vr(t2)),
      'v_subrev_u32 %s, %d, %s' % (vr(kh), 8 * 1152, vr(t2)))
    s('s_mul_i32 %s, %s, 7168' % (sr(S_C), sr(S_WAVE)), 's_mov_b32 m0, %s' % sr(S_C))
    s('buffer_load_dwordx4 %s, %s, 0 offen nt lds' % (vr(kh), sr(R_K, 4)))
    for u in range(3):
        for base, rr in ((1024, R_K), (4096, R_V)):
            s('s_add_u32 m0, %s, %d' % (sr(S_C), base + u * 1024))
            kv.tok = s.mem('s_mov_b32 %s, %d' % (sr(S_T2), u * 8 * 1152),
                           'buffer_load_dwordx4 %s, %s, %s offen nt lds' % (vr(t2), sr(rr, 4), sr(S_T2)))
    kv.rel = [t, t2, kh]


def kv_core(kc, ntp, krow, vrow, SHK, emit_unit, touch=None):
    W, KU, P = V.get(8), V.get(16), V.get(16)
    S4 = V.get(4, 1)
    OU = V.get(8)
    ONE2 = V.get()
    kc('v_mov_b32 %s, 0x3f803f80' % vr(ONE2))
    kc('v_mov_b32 %s, %s' % (vr(OU + 3), vr(V_TAG)))
    kc('v_mov_b32 %s, %s' % (vr(OU + 7), vr(V_TAG)))
    for j in range(4):
        for ch in range(2):
            src = SHK + 2 * ch + (j >> 1)
            kc(('v_and_b32 %s, 0xffff0000, %s' if j & 1 else 'v_lshlrev_b32 %s, 16, %s') % (vr(W + 2 * j + ch), vr(src)))
    ku = lambda r: KU + 2 * ((r + 3) % 8)

    def unpack_k(r):
        kc('v_lshlrev_b32 %s, 16, %s' % (vr(ku(r)), vr(krow(r))))
        kc('v_and_b32 %s, 0xffff0000, %s' % (vr(ku(r) + 1), vr(krow(r))))

    for r in (-3, -2, -1):
        unpack_k(r)
    for tp in range(ntp):
        if touch is not None:
            touch(tp)
        for tt in range(2):
            unpack_k(2 * tp + tt)
        for tt in range(2):
            for j in range(4):
                kc('v_pk_mul_f32 %s, %s, %s' % (vr(P + tt * 8 + 2 * j, 2), vr(ku(2 * tp + tt - j), 2), vr(W + 2 * j, 2)))
        idx = [(tt, ch) for tt in range(2) for ch in range(2)]
        for step in range(3):
            for u, (tt, ch) in enumerate(idx):
                first = vr(P + tt * 8 + 6 + ch) if step == 0 else vr(S4 + u)
                kc('v_cvt_pk_bf16_f32 %s, %s, %s' % (vr(S4 + u), first, vr(P + tt * 8 + 2 * (2 - step) + ch)))
            for u in range(4):
                kc('v_dot2_f32_bf16 %s, %s, %s, 0' % (vr(S4 + u), vr(S4 + u), vr(ONE2)))
        for u, (tt, ch) in enumerate(idx):
            kc('v_cvt_pk_bf16_f32 %s, %s, %s' % (vr(S4 + u), vr(S4 + u) if ch == 0 else '0', '0' if ch == 0 else vr(S4 + u)))
        for u, (tt, ch) in enumerate(idx):
            kc('v_dot2_f32_bf16 %s, %s, %s, 0' % (vr(S4 + u), vr(S4 + u), vr(vrow(2 * tp + tt))))
        pos = ntp - 1 - tp
        for ch in range(2):
            kc('v_cvt_pk_bf16_f32 %s, %s, %s' % (vr(OU + 4 * ch + pos % 3), vr(S4 + 2 + ch), vr(S4 + ch)))
        if pos % 3 == 0:
            for ch in range(2):
                emit_unit(ch, pos // 3, OU + 4 * ch)
    put((W, 8), (KU, 16), (P, 16), (S4, 4), (OU, 8), ONE2)


def kv_main(s, kv, ks):
    ka, kb, t, t2 = [V.get() for _ in range(4)]
    s('v_lshrrev_b32 %s, 5, %s' % (vr(t), vr(V_LANE)))
    s('v_and_b32 %s, 31, %s' % (vr(t2), vr(V_LANE)))
    s('v_mul_u32_u24 %s, 1536, %s' % (vr(ka), vr(t)))
    s('v_lshl_add_u32 %s, %s, 2, %s' % (vr(ka), vr(t2), vr(ka)))
    s('s_mul_i32 %s, %s, 7168' % (sr(S_T0), sr(S_WAVE)),
      's_add_u32 %s, %s, 512' % (sr(S_T0), sr(S_T0)),
      'v_add_u32 %s, %s, %s' % (vr(ka), sr(S_T0), vr(ka)))
    s('v_add_u32 %s, 128, %s' % (vr(kb), vr(ka)))
    KR, VR = V.get(16, 2), V.get(12, 2)
    ridx = lambda r: (r >> 2) * 4 + (r & 1) * 2 + ((r >> 1) & 1)
    krow = lambda r: KR + ridx(r + 4)
    vrow = lambda r: VR + ridx(r)
    s.wait(kv.tok)
    for g in range(4):
        for par in range(2):
            s('ds_read2st64_b32 %s, %s offset0:%d offset1:%d' % (vr(KR + g * 4 + par * 2, 2), vr(kb if par else ka), 2 * g, 2 * g + 1))
        if g > 0:
            for par in range(2):
                s('ds_read2st64_b32 %s, %s offset0:%d offset1:%d' % (vr(VR + (g - 1) * 4 + par * 2, 2), vr(kb if par else ka),
                                                                     14 + 2 * (g - 1), 14 + 2 * (g - 1) + 1))
    s('v_sub_u32 %s, 1, %s' % (vr(t), vr(t)))
    s('v_lshlrev_b32 %s, 5, %s' % (vr(t), vr(t)))
    s('v_mul_u32_u24 %s, 528, %s' % (vr(t2), vr(t2)))
    s('s_lshl_b32 %s, %s, 6' % (sr(S_T0), sr(S_WAVE)),
      's_sub_u32 %s, 192, %s' % (sr(S_T0), sr(S_T0)),
      'v_add3_u32 %s, %s, %s, %s' % (vr(t), vr(t), vr(t2), sr(S_T0)),
      's_mul_i32 %s, %s, 4224' % (sr(S_T0), sr(S_WAVE)),
      'v_lshrrev_b32 %s, 5, %s' % (vr(t2), vr(V_LANE)),
      'v_lshlrev_b32 %s, 4, %s' % (vr(t2), vr(t2)),
      'v_add3_u32 %s, %s, %s, %s' % (vr(t2), vr(t2), vr(V_L16), sr(S_T0)))
    tks = []
    kv_core(s, 6, krow, vrow, kv.SHK,
            lambda ch, un, reg: tks.append(s.mem('ds_write_b128 %s, %s offset:%d' % (vr(t), vr(reg, 4), L_KVO + ch * 256 + un * 16))))
    put((KR, 16), (VR, 12), (kv.SHK, 4))
    D = V.get(16)
    s('v_mul_u32_u24 %s, %d, %s' % (vr(ka), KVT_STR, vr(V_Q)))
    s('v_lshl_add_u32 %s, %s, 4, %s' % (vr(ka), vr(V_N), vr(ka)))
    s('s_mul_i32 %s, %s, %d' % (sr(S_T0), sr(S_PT), 16 * KVT_STR),
      's_lshl_b32 %s, %s, 8' % (sr(S_T1), sr(S_RB)),
      's_sub_u32 %s, %s, %s' % (sr(S_T0), sr(S_T0), sr(S_T1)),
      's_add_u32 %s, %s, %d' % (sr(S_T0), sr(S_T0), WS_KVT + 21 * 256),
      's_cmp_lt_u32 %s, 6' % sr(S_CG),
      's_cselect_b32 %s, %s, 0x40000000' % (sr(S_T0), sr(S_T0)),
      'v_add_u32 %s, %s, %s' % (vr(ka), sr(S_T0), vr(ka)))
    ks.wait(tks[-1])
    ks('s_barrier')
    for i in range(4):
        ks('ds_read_b128 %s, %s offset:%d' % (vr(D + 4 * i, 4), vr(t2), L_KVO + i * 1056))
    for i in range(4):
        ks('s_mov_b32 %s, %d' % (sr(S_T1), 4 * i * KVT_STR),
           'buffer_store_dwordx4 %s, %s, %s, %s offen sc1' % (vr(D + 4 * i, 4), vr(ka), sr(R_WS, 4), sr(S_T1)))
    ks('s_nop 1')
    put((D, 16), ka, kb, t, t2)


def stats_partial(s, X, S, Q, i, d, pk):
    x = X + 4 * i
    if pk:
        s('v_pk_add_f32 %s, %s, %s' % (vr(d, 2), vr(x, 2), vr(x + 2, 2)),
          'v_pk_mul_f32 %s, %s, %s' % (vr(d + 2, 2), vr(x, 2), vr(x, 2)),
          'v_add_f32 %s, %s, %s' % (vr(S + i), vr(d), vr(d + 1)),
          'v_pk_fma_f32 %s, %s, %s, %s' % (vr(d + 2, 2), vr(x + 2, 2), vr(x + 2, 2), vr(d + 2, 2)),
          'v_add_f32 %s, %s, %s' % (vr(Q + i), vr(d + 2), vr(d + 3)))
    else:
        s('v_add_f32 %s, %s, %s' % (vr(S + i), vr(x), vr(x + 1)))
        s('v_mul_f32 %s, %s, %s' % (vr(Q + i), vr(x), vr(x)))
        s('v_add_f32 %s, %s, %s' % (vr(S + i), vr(S + i), vr(x + 2)))
        s('v_fmac_f32 %s, %s, %s' % (vr(Q + i), vr(x + 1), vr(x + 1)))
        s('v_add_f32 %s, %s, %s' % (vr(S + i), vr(S + i), vr(x + 3)))
        s('v_fmac_f32 %s, %s, %s' % (vr(Q + i), vr(x + 2), vr(x + 2)))
        s('v_fmac_f32 %s, %s, %s' % (vr(Q + i), vr(x + 3), vr(x + 3)))


def stats_publish(s, X, which, fast, pk=True, SQ=None, tiles=range(MT)):
    if SQ is None:
        S, Q = V.get(6, 1), V.get(6, 1)
    else:
        S, Q = SQ
    d = V.get(4)
    for i in tiles:
        stats_partial(s, X, S, Q, i, d, pk)
    s('v_add_u32 %s, %d, %s' % (vr(d + 1), 16 * which, vr(V_TAG)))
    if which == 0:
        s('v_add_u32 %s, %s, %s' % (vr(d + 3), sr(S_XCC), vr(V_TAG)))
    else:
        s('v_add_u32 %s, %d, %s' % (vr(d + 3), 16 * which, vr(V_TAG)))
    rs12(s, [S + i for i in range(6)], [Q + i for i in range(6)])
    s('v_cndmask_b32 %s, %s, %s, %s' % (vr(d), vr(S), vr(S + 2), sr(S_MSEL, 2)))
    s('v_cndmask_b32 %s, %s, %s, %s' % (vr(d + 2), vr(Q), vr(Q + 2), sr(S_MSEL, 2)))
    txt = ['s_mov_b32 %s, %d' % (sr(S_T0), WS_ST + (which == 2) * ST_SZ),
           'buffer_store_dwordx4 %s, %s, %s, %s offen {P}' % (vr(d, 4), vr(V_STW), sr(R_WS, 4), sr(S_T0)), 's_nop 1']
    if fast:
        dual(s, txt)
    else:
        s(*[x.replace('{P}', 'sc1') for x in txt])
    put((S, 6), (Q, 6), (d, 4))


def stats_loads(which, G):
    L = []
    for i in range(MT):
        L.append('s_mov_b32 %s, %d' % (sr(S_T0), WS_ST + (which == 2) * ST_SZ + 4096 * i))
        L.append('buffer_load_dwordx4 %s, %s, %s, %s offen sc1' % (vr(G + 4 * i, 4), vr(V_STR), sr(R_WS, 4), sr(S_T0)))
    return L


def stats_exp(s, which):
    e = V.get()
    s('v_add_u32 %s, %d, %s' % (vr(e), 16 * which, vr(V_TAG)),
      'v_cmp_gt_u32 vcc, 9, %s' % vr(V_N),
      'v_cndmask_b32 %s, 0, %s, vcc' % (vr(e), vr(e)))
    return e


def stats_finish(s, G):
    rs12(s, [G + 4 * i for i in range(6)], [G + 4 * i + 2 for i in range(6)])
    P = V.get(4, top=True)
    for k, src in ((0, G), (1, G + 8)):
        s('v_mul_f32 %s, 0x3ae38e39, %s' % (vr(P + 2 * k), vr(src)))
        s('v_mul_f32 %s, 0x3ae38e39, %s' % (vr(P + 2 * k + 1), vr(src + 2)))
    for k in range(2):
        s('v_fma_f32 %s, -%s, %s, %s' % (vr(P + 2 * k + 1), vr(P + 2 * k), vr(P + 2 * k), vr(P + 2 * k + 1)))
    for k in range(2):
        s('v_max_f32 %s, 0, %s' % (vr(P + 2 * k + 1), vr(P + 2 * k + 1)))
    return P


def bcast(s, dst, P, i):
    k, lane = tile_src(i)
    s('v_mov_b64_dpp %s, %s row_newbcast:%d row_mask:0xf bank_mask:0xf' % (vr(dst, 2), vr(P + 2 * k, 2), lane))


def ln_table(s, layer, G, RBG):
    P = stats_finish(s, G)
    put((G, 24))
    mu = [P, P + 2]
    va = [P + 1, P + 3]
    if layer == 0:
        rbf(s, mu + va)
        for r in va:
            s('v_add_f32 %s, 0x3727c5ac, %s' % (vr(r), vr(r)))
        rbf(s, va)
        for r in va:
            s('v_sqrt_f32 %s, %s' % (vr(r), vr(r)))
        rbf(s, va)
        for r in va:
            s('v_rcp_f32 %s, %s' % (vr(r), vr(r)))
        s('v_mov_b32 %s, %s' % (vr(OFF), vr(mu[0])), 'v_mov_b32 %s, %s' % (vr(OFF + 1), vr(mu[1])))
    else:
        for r in va:
            s('v_add_f32 %s, 0x3727c5ac, %s' % (vr(r), vr(r)))
        for r in va:
            s('v_rsq_f32 %s, %s' % (vr(r), vr(r)))
        s('v_add_f32 %s, %s, %s' % (vr(OFF), vr(OFF), vr(mu[0])), 'v_add_f32 %s, %s, %s' % (vr(OFF + 1), vr(OFF + 1), vr(mu[1])))
    with V.borrow(*HOMES):
        d = V.get(2)
    s('v_cndmask_b32 %s, %s, %s, %s' % (vr(d), vr(va[0]), vr(va[1]), sr(S_MSEL, 2)))
    s('v_cndmask_b32 %s, %s, %s, %s' % (vr(d + 1), vr(mu[0]), vr(mu[1]), sr(S_MSEL, 2)))
    s('v_mul_f32 %s, %s, %s' % (vr(d + 1), vr(d + 1), vr(d)))
    tk = s.mem('s_mov_b64 exec, %s' % sr(S_MACT, 2),
               'ds_write2_b32 %s, %s, %s offset0:0 offset1:2' % (vr(V_TABW), vr(d), vr(d + 1)),
               's_mov_b64 exec, -1')
    put((d, 2))
    return tk, P


def ln_rest(r, layer, P):
    b = V.get(2)
    tmp = V.get(4)
    for i in range(MT):
        x = BASE + 4 * i
        bcast(r, b, P, i)
        for k in range(2):
            r('v_pk_add_f32 %s, %s, %s op_sel:[0,0] op_sel_hi:[1,0] neg_lo:[0,1] neg_hi:[0,1]' % (vr(x + 2 * k, 2), vr(x + 2 * k, 2), vr(b, 2)))
        if layer == 0:
            for k in range(2):
                r('v_cvt_pk_bf16_f32 %s, %s, %s' % (vr(tmp + 2 * k), vr(x + 2 * k), vr(x + 2 * k + 1)))
            for rep in range(3):
                for k in range(2):
                    r('v_and_b32 %s, 0xffff0000, %s' % (vr(tmp + 2 * k + 1), vr(tmp + 2 * k)),
                      'v_lshlrev_b32 %s, 16, %s' % (vr(tmp + 2 * k), vr(tmp + 2 * k)))
                for k in range(2):
                    if rep == 0:
                        r('v_pk_mul_f32 %s, %s, %s op_sel:[0,1] op_sel_hi:[1,1]' % (vr(tmp + 2 * k, 2), vr(tmp + 2 * k, 2), vr(b, 2)))
                    elif rep == 1:
                        r('v_pk_mul_f32 %s, %s, %s' % (vr(tmp + 2 * k, 2), vr(tmp + 2 * k, 2), vr(V_DSK + 2 * k, 2)))
                    else:
                        r('v_pk_add_f32 %s, %s, %s' % (vr(x + 2 * k, 2), vr(x + 2 * k, 2), vr(tmp + 2 * k, 2)))
                if rep < 2:
                    for k in range(2):
                        r('v_cvt_pk_bf16_f32 %s, %s, %s' % (vr(tmp + 2 * k), vr(tmp + 2 * k), vr(tmp + 2 * k + 1)))
        else:
            for k in range(2):
                r('v_pk_fma_f32 %s, %s, %s, 1.0 op_sel:[0,1,0] op_sel_hi:[1,1,0]' % (vr(tmp + 2 * k, 2), vr(V_DSK + 2 * k, 2), vr(b, 2)))
            for k in range(2):
                r('v_pk_mul_f32 %s, %s, %s' % (vr(x + 2 * k, 2), vr(x + 2 * k, 2), vr(tmp + 2 * k, 2)))
    put((P, 4), (b, 2), (tmp, 4))


def a_reads(k, AF):
    s = Stream()
    kp, h = k >> 1, k & 1
    base = V_FA + h + (2 if kp >= 4 else 0)
    off = (kp - (4 if kp >= 4 else 0)) * BLK
    for i in range(MT):
        s('ds_read_b128 %s, %s offset:%d' % (vr(AF + (k & 1) * 24 + i * 4, 4), vr(base), off + i * 2048))
    return s


def b_mfmas(k, ACC, AF, ones=None):
    s = Stream()
    kp, h = k >> 1, k & 1
    if ones is not None:
        for mat in range(2):
            s('v_mfma_f32_16x16x32_bf16 %s, %s, %s, %s' % (vr(ones[1] + mat * 4, 4), vr(ones[0], 4), ar(WB(kp, h, mat), 4),
                                                          '0' if k == 0 else vr(ones[1] + mat * 4, 4)))
    for i in range(MT):
        if i % 3 == 0:
            s.touch(vr(AF + (k & 1) * 24 + i * 4, 12))
        for mat in range(2):
            d = ACC + (mat * MT + i) * 4
            s('v_mfma_f32_16x16x32_bf16 %s, %s, %s, %s' % (vr(d, 4), vr(AF + (k & 1) * 24 + i * 4, 4), ar(WB(kp, h, mat), 4),
                                                          '0' if k == 0 else vr(d, 4)))
    return s


def split(stream, n):
    g = stream.groups
    parts = []
    for i in range(n):
        p = Stream()
        p.groups = g[len(g) * i // n: len(g) * (i + 1) // n]
        parts.append(p)
    return parts


def ensure(sc, tok):
    for q in sc.sides:
        idx = [i for i, g in enumerate(q) if any((not isinstance(it, tuple)) and it.tok is tok for it in g)]
        if idx:
            for _ in range(idx[0] + 1):
                sc._emit(q.pop(0))


def gemm_b(a, ACC, AF, xtok, pre, side, ones=None, vm=None, need=None):
    sc = Sched(a)
    qr, qv, qs = sc.add(Stream()), sc.add(Stream()), sc.add(Stream())
    b = Stream()
    b.wait(xtok(0))
    b('s_barrier')
    b.extend(a_reads(0, AF))
    sc.run(b)
    for k in range(18):
        sc.flush(qr)
        if k == 9:
            print('side leftover at k', k, len(qs))
            sc.flush(qs)
        if need is not None:
            for tk in need.get(k, []):
                ensure(sc, tk)
        if pre[k].groups:
            for g in pre[k].groups:
                for it in g:
                    if isinstance(it, tuple) and it[0] == 'wait':
                        for tk in it[1]:
                            ensure(sc, tk)
            if any(not isinstance(it, tuple) for g in pre[k].groups for it in g):
                sc.flush()
            sc.run(pre[k])
        b = Stream()
        if k & 1 and k < 17:
            ensure(sc, xtok((k + 1) >> 1))
            b.wait(xtok((k + 1) >> 1))
            b('s_barrier')
            sides, sc.sides = sc.sides, []
            sc.run(b)
            sc.sides = sides
        if k < 17:
            qr.extend(a_reads(k + 1, AF).groups)
        if vm is not None:
            qv.extend(vm[k].groups)
        qs.extend(side[k].groups)
        sc.run(b_mfmas(k, ACC, AF, ones))
        if OPT['fine'] and k % 3 == 2:
            stamp(a, 'k%d' % k)
    print('gemm_b leftover', sc.pending(), 'model time', sc.t)
    sc.flush()


class Conv:
    pass


def conv_setup_k(s, cv, keep=False):
    s('s_lshl1_add_u32 %s, %s, %s' % (sr(S_T0), sr(S_PAIR), sr(S_B)),
      's_lshl_b32 %s, %s, 12' % (sr(S_T1), sr(S_T0)),
      's_add_u32 %s, %s, %s' % (sr(R_SK), sr(P_SSK), sr(S_T1)),
      's_addc_u32 %s, %s, 0' % (sr(R_SK + 1), sr(P_SSK + 1)),
      's_and_b32 %s, %s, 0xffff' % (sr(R_SK + 1), sr(R_SK + 1)),
      's_mov_b32 %s, 4096' % sr(R_SK + 2),
      's_mov_b32 %s, 0x20000' % sr(R_SK + 3))
    cv.SD = V.get(2, top=True)
    cv.HD = V.get(top=True)
    s('s_lshl_b32 %s, %s, 2' % (sr(S_T1), sr(S_PAIR)),
      'v_mov_b32 %s, %s' % (vr(cv.SD), sr(S_T1)),
      'global_load_dword %s, %s, %s' % (vr(cv.SD), vr(cv.SD), sr(P_SSD, 2)))
    s('v_add_u32 %s, %s, %s' % (vr(cv.HD), vr(V_N), vr(V_Q)),
      'v_subrev_u32 %s, 16, %s' % (vr(cv.HD), vr(cv.HD)),
      'v_lshlrev_b32 %s, 2, %s' % (vr(cv.HD), vr(cv.HD)),
      'buffer_load_dword %s, %s, %s, 0 offen' % (vr(cv.HD), vr(cv.HD), sr(R_SK, 4)))
    for c in range(2):
        s('s_mul_i32 %s, %s, %d' % (sr(S_T2), sr(S_B), KC_CH),
          's_mul_i32 %s, %s, %d' % (sr(S_T3), sr(S_A), (16 + 8320) if c == 0 else 8320),
          's_add_u32 %s, %s, %s' % (sr(S_T3), sr(S_T3), sr(S_T2)),
          's_add_u32 m0, %s, %d' % (sr(S_T3), L_KC + 64 + (0 if c == 0 else 16 + 4160)),
          's_lshl_b32 %s, %s, 3' % (sr(S_C), sr(S_A)),
          's_add_u32 %s, %s, %d' % (sr(S_C), sr(S_C), 4 * c))
        for part in range(4):
            cv.ktk = s.mem('buffer_load_dwordx4 %s, %s, %s offen offset:%d nt lds' % (vr(V_L16), sr(R_SK, 4), sr(S_C), part * 1024))


def conv_u_prep(s, cv):
    cv.UA = V.get(2, 1, top=True)
    cv.UE = V.get(top=True)
    cv.UN = V.get(top=True)
    cv.U = V.get(16, top=True)
    U, UA, UE = cv.U, cv.UA, cv.UE
    s('s_lshl1_add_u32 %s, %s, %s' % (sr(S_T0), sr(S_PAIR), sr(S_B)),
      's_mul_i32 %s, %s, %d' % (sr(S_T1), sr(S_T0), KVT_STR),
      's_mul_i32 %s, %s, %d' % (sr(S_T3), sr(S_A), 171 * 16),
      's_add_u32 %s, %s, %s' % (sr(S_T1), sr(S_T1), sr(S_T3)),
      's_add_u32 %s, %s, %d' % (sr(S_T1), sr(S_T1), WS_KVT + 10 * 16),
      'v_add_u32 %s, %s, %s' % (vr(UA), sr(S_T1), vr(V_L16)))
    s('s_sub_u32 %s, 44, %s' % (sr(S_T0), sr(S_A)),
      'v_cmp_gt_u32 vcc, %s, %s' % (sr(S_T0), vr(V_LANE)),
      'v_cndmask_b32 %s, %s, %s, vcc' % (vr(UA + 1), vr(V_OOB), vr(UA)),
      'v_cndmask_b32 %s, 0, %s, vcc' % (vr(UE), vr(V_TAG)))
    s('s_sub_u32 %s, 43, %s' % (sr(S_T0), sr(S_A)),
      'v_cmp_gt_u32 vcc, %s, %s' % (sr(S_T0), vr(V_LANE)),
      'v_cndmask_b32 %s, %s, %s, vcc' % (vr(cv.UN), vr(V_OOB), vr(UA)))
    cv.uloads = []
    for i in range(3):
        cv.uloads.append('buffer_load_dwordx4 %s, %s, %s, 0 offen offset:%d sc1' % (vr(U + 4 * i, 4), vr(UA + (i >> 1)), sr(R_WS, 4), 1024 * i))
    for i in range(3):
        cv.uloads.append('buffer_load_dword %s, %s, %s, 0 offen offset:%d sc1' % (vr(U + 12 + i), vr(UA if i < 2 else cv.UN), sr(R_WS, 4), 1024 * i + 16))
    cv.uchecks = [(U + 3, U + 7, V_TAG), (U + 11, None, UE)]


def conv_addr(s, cv):
    cv.ah, cv.az, cv.au, cv.vN, cv.vM = [V.get(top=True) for _ in range(5)]
    t, e = V.get(), V.get()
    ah, az, au, vN, vM = cv.ah, cv.az, cv.au, cv.vN, cv.vM
    s('v_mul_u32_u24 %s, 4160, %s' % (vr(ah), vr(V_Q)))
    s('v_min_u32 %s, 1, %s' % (vr(e), vr(V_Q)))
    s('v_lshl_add_u32 %s, %s, 4, %s' % (vr(ah), vr(e), vr(ah)))
    s('v_lshl_add_u32 %s, %s, 2, %s' % (vr(ah), vr(V_N), vr(ah)))
    s('s_mul_i32 %s, %s, %d' % (sr(S_T2), sr(S_B), KC_CH),
      's_add_u32 %s, %s, %d' % (sr(S_T3), sr(S_T2), L_KC),
      'v_add_u32 %s, %s, %s' % (vr(ah), sr(S_T3), vr(ah)))
    s('s_mul_i32 %s, %s, %d' % (sr(S_T2), sr(S_B), UC_CH),
      's_mul_i32 %s, %s, 4640' % (sr(S_T3), sr(S_A)),
      's_add_u32 %s, %s, %s' % (sr(S_T3), sr(S_T3), sr(S_T2)),
      'v_lshl_add_u32 %s, %s, 3, %s' % (vr(az), vr(V_LANE), sr(S_T3)))
    s('v_mul_u32_u24 %s, 12, %s' % (vr(au), vr(V_LANE)))
    s('s_mul_i32 %s, %s, %d' % (sr(S_T2), sr(S_B), UC_CH),
      's_mul_i32 %s, %s, %d' % (sr(S_T3), sr(S_A), 171 * 12),
      's_add_u32 %s, %s, %s' % (sr(S_T3), sr(S_T3), sr(S_T2)),
      'v_add_u32 %s, %s, %s' % (vr(au), sr(S_T3), vr(au)))
    s('v_add_u32 %s, 1, %s' % (vr(t), vr(V_N)))
    s('v_and_b32 %s, 3, %s' % (vr(e), vr(t)))
    s('v_mul_u32_u24 %s, 4160, %s' % (vr(vN), vr(e)))
    s('v_min_u32 %s, 1, %s' % (vr(e), vr(e)))
    s('v_lshrrev_b32 %s, 2, %s' % (vr(t), vr(t)))
    s('v_add3_u32 %s, %s, %s, %s' % (vr(t), vr(t), vr(e), vr(V_Q)))
    s('v_lshl_add_u32 %s, %s, 4, %s' % (vr(vN), vr(t), vr(vN)))
    s('s_mul_i32 %s, %s, %d' % (sr(S_T3), sr(S_B), KC_CH),
      's_lshl_b32 %s, %s, 8' % (sr(S_T1), sr(S_A)),
      's_add_u32 %s, %s, %s' % (sr(S_T3), sr(S_T3), sr(S_T1)),
      's_add_u32 %s, %s, %d' % (sr(S_T3), sr(S_T3), L_KC),
      'v_add_u32 %s, %s, %s' % (vr(vN), sr(S_T3), vr(vN)))
    s('v_and_b32 %s, 1, %s' % (vr(t), vr(V_N)))
    s('v_sub_u32 %s, 1, %s' % (vr(t), vr(t)))
    s('v_mul_u32_u24 %s, 4640, %s' % (vr(vM), vr(t)))
    s('v_lshrrev_b32 %s, 1, %s' % (vr(t), vr(V_N)))
    s('v_lshlrev_b32 %s, 6, %s' % (vr(t), vr(t)))
    s('v_sub_u32 %s, %s, %s' % (vr(vM), vr(vM), vr(t)))
    s('v_lshl_add_u32 %s, %s, 4, %s' % (vr(vM), vr(V_Q), vr(vM)))
    s('s_mul_i32 %s, %s, %d' % (sr(S_T2), sr(S_B), UC_CH),
      's_lshl_b32 %s, %s, 8' % (sr(S_T1), sr(S_A)),
      's_add_u32 %s, %s, %s' % (sr(S_T3), sr(S_T2), sr(S_T1)),
      's_add_u32 %s, %s, %d' % (sr(S_T3), sr(S_T3), L_UC + 448),
      'v_add_u32 %s, %s, %s' % (vr(vM), sr(S_T3), vr(vM)))
    return [t, e]


def conv_body(a, cv, side=None, pre_issued=True, early=None, release=True, last=None):
    U, HD = cv.U, cv.HD
    vN, vM = cv.vN, cv.vM
    a('ds_write_b32 %s, %s' % (vr(cv.ah), vr(HD)))
    a('ds_write_b64 %s, %s offset:%d' % (vr(cv.az), vr(V_ZERO, 2), L_UC + 4096))
    if early is not None:
        a.extend(early)
    poll(a, cv.uloads, cv.uchecks, pre_issued=pre_issued, sleep=OPT['slp2'] if pre_issued else OPT['slp'])
    a.touch(vr(U, 15))
    U1 = V.get(9, 1)
    for i in range(3):
        if i == 2:
            a('v_cmp_gt_u32 vcc, 43, %s' % vr(V_LANE), 's_mov_b64 exec, vcc')
        for k in range(3):
            a('ds_write_b32 %s, %s offset:%d' % (vr(cv.au), vr(U + 4 * i + k), L_UC - 8 + 768 * i + 4 * k))
            hi = U + 4 * i + k + 1 if k < 2 else U + 12 + i
            a('v_alignbit_b32 %s, %s, %s, 16' % (vr(U1 + 3 * i + k), vr(hi), vr(U + 4 * i + k)))
        for k in range(3):
            tk = a.mem('ds_write_b32 %s, %s offset:%d' % (vr(cv.au), vr(U1 + 3 * i + k), L_UC - 8 + 4640 + 768 * i + 4 * k))
    a('s_mov_b64 exec, -1')
    a.wait(tk, cv.ktk)
    a('s_barrier')
    put((U, 16), (U1, 9), HD, (cv.UA, 2), cv.UE, cv.UN)
    if release:
        put(cv.ah, cv.az, cv.au)
    stamp(a, 'conv_ld')
    if not pre_issued:
        astamp(a, 11)
    with V.borrow((GP, 12)):
        CA = [V.get(4) for _ in range(8)]
    FN, FM = [[V.get(4) for _ in range(8)] for _ in range(2)]
    AW = V.get(3, 1)
    t = V.get()
    rdN = lambda x, cc: 'ds_read_b128 %s, %s offset:%d' % (vr(FN[x], 4), vr(vN), 512 * x + 64 * cc)
    rdM = lambda x, cc: 'ds_read_b128 %s, %s offset:%d' % (vr(FM[x], 4), vr(vM), 512 * (7 - x) + 64 * cc)
    m = Stream()
    m(rdN(0, 0))
    for x in range(7, -1, -1):
        m(rdM(x, 0))
    m('v_lshlrev_b32 %s, 1, %s' % (vr(t), vr(V_N)))
    m('v_lshl_add_u32 %s, %s, 6, %s' % (vr(t), vr(V_Q), vr(t)))
    for j in range(3):
        m('v_add_u32 %s, %d, %s' % (vr(AW + j), j, vr(t)))
        m('v_mul_u32_u24 %s, 171, %s' % (vr(AW + j), vr(AW + j)))
        m('v_lshrrev_b32 %s, 9, %s' % (vr(AW + j), vr(AW + j)))
        m('v_add_u32 %s, %s, %s' % (vr(AW + j), vr(AW + j), vr(t)))
        m('s_mul_i32 %s, %s, %d' % (sr(S_T3), sr(S_WAVE), CO_W),
          'v_lshl_add_u32 %s, %s, 2, %s' % (vr(AW + j), vr(AW + j), sr(S_T3)))

    def stage(m, i):
        tk = None
        for r in range(4):
            c = 256 * i + 32 * (r >> 1) + (r & 1)
            tk = m.mem('ds_write_b32 %s, %s offset:%d' % (vr(AW + c % 3), vr(CA[i] + r), L_CO + 4 * (c + c // 3)))
        return tk

    for cc in range(4):
        if cc == 3:
            sc = Sched(a)
            sc.VM_GAP = 85
            if side is not None:
                qs_ = [sc.add(x) for x in side]
            sc.run(m)
            if side is not None:
                sc.flush(qs_[0])
            sc.VM_GAP = 30
            m = Stream()
            if last is not None:
                last(m, None)
        for aa in range(8):
            for dl in range(7 - aa, -1, -1):
                i = aa + dl
                z = cc == 0 and aa == 0
                m('v_mfma_f32_16x16x32_bf16 %s, %s, %s, %s' % (vr(CA[i], 4), vr(FM[dl], 4), vr(FN[aa], 4),
                                                              '0' if z else vr(CA[i], 4)))
                if cc == 0 and aa == 0 and dl > 0:
                    m(rdN(8 - dl, 0))
                if dl == 7 - aa:
                    if cc < 3:
                        m(rdM(dl, cc + 1))
                    elif last is not None:
                        last(m, FM[dl])
            if cc < 3:
                m(rdN(aa, cc + 1))
            else:
                if last is not None:
                    last(m, FN[aa])
                if 2 <= aa:
                    stage(m, aa - 2)
    stage(m, 6)
    cv.stk = stage(m, 7)
    sc.run(m)
    print('conv leftover', sc.pending(), 'model time', sc.t)
    sc.flush()
    put(*[(r, 4) for r in CA])
    if last is None:
        put(*[(r, 4) for r in FN + FM])
    put((AW, 3), t)
    if release:
        put(vN, vM)
    stamp(a, 'conv_mm')
    if not pre_issued:
        astamp(a, 12)


def conv_final(s, cv, Y0=None):
    SD = cv.SD
    ay, ak, ag = V.get(), V.get(), V.get()
    Y1 = [V.get(4) for _ in range(4)]
    own0 = Y0 is None
    if own0:
        Y0 = [V.get(4) for _ in range(4)]
    Ys = [Y0, Y1, Y1]
    KVs = [V.get(4), V.get(4)]
    D = V.get(6, 1)
    GO = V.get(4)
    t = V.get()
    s('v_lshlrev_b32 %s, 4, v0' % vr(ay))
    s('v_mul_u32_u24 %s, 6, v0' % vr(ak))
    s('v_sub_u32 %s, %d, %s' % (vr(ak), 4090, vr(ak)))
    s('v_and_b32 %s, -4, %s' % (vr(ak), vr(ak)))
    s('v_and_b32 %s, 1, v0' % vr(t))
    s('v_sub_u32 %s, 1, %s' % (vr(t), vr(t)))
    s('v_mul_u32_u24 %s, 4640, %s' % (vr(t), vr(t)))
    s('v_add_u32 %s, %s, %s' % (vr(ak), vr(ak), vr(t)))

    def reads(j):
        if j > 0:
            s('v_subrev_u32 %s, 1536, %s' % (vr(ak), vr(ak)))
        if j == 2:
            s('v_max_i32 %s, 0, %s' % (vr(ak), vr(ak)))
        for ch in range(2):
            for k in range(2):
                s('ds_read_b32 %s, %s offset:%d' % (vr(KVs[j & 1] + 2 * ch + k), vr(ak), L_UC + ch * UC_CH + 4 * k))
        for w in range(4):
            s('ds_read_b128 %s, %s offset:%d' % (vr(Ys[j][w], 4), vr(ay), L_CO + w * CO_W + j * 4096))

    reads(0)
    s('v_and_b32 %s, 0xffff0000, %s' % (vr(SD + 1), vr(SD)))
    s('v_lshlrev_b32 %s, 16, %s' % (vr(SD), vr(SD)))
    s('s_mul_i32 %s, %s, %d' % (sr(S_T1), sr(S_PAIR), G_STR),
      's_add_u32 %s, %s, %d' % (sr(S_T1), sr(S_T1), WS_G),
      'v_add_u32 %s, %s, %s' % (vr(ag), sr(S_T1), vr(ay)))
    s('v_mov_b32 %s, %s' % (vr(GO + 3), vr(V_TAG)))
    reads(1)
    for j in range(3):
        KV, Y = KVs[j & 1], Ys[j]
        if j > 0:
            s('v_add_u32 %s, 4096, %s' % (vr(ag), vr(ag)))
        if j == 2:
            s('v_cmp_gt_u32 vcc, 192, v0', 'v_cndmask_b32 %s, %s, %s, vcc' % (vr(ag), vr(V_OOB), vr(ag)))
        for ch in range(2):
            d = D + 3 * ch
            s('v_lshlrev_b32 %s, 16, %s' % (vr(d), vr(KV + 2 * ch + 1)))
            s('v_and_b32 %s, 0xffff0000, %s' % (vr(d + 1), vr(KV + 2 * ch)))
            s('v_lshlrev_b32 %s, 16, %s' % (vr(d + 2), vr(KV + 2 * ch)))
            for e in range(3):
                s('v_mul_f32 %s, %s, %s' % (vr(d + e), vr(d + e), vr(SD + ch)))
        for ch in range(2):
            d, y, y2 = D + 3 * ch, Y[2 * ch], Y[2 * ch + 1]
            for e in range(3):
                s('v_add_f32 %s, %s, %s' % (vr(y + e), vr(y + e), vr(y2 + e)))
            for e in range(3):
                s('v_cvt_pk_bf16_f32 %s, %s, %s' % (vr(d + e), vr(y + e), vr(d + e)))
        if j == 0:
            cv.mark = len(s.groups)
        if j == 1:
            reads(2)
        for ch in range(2):
            d = D + 3 * ch
            for e in range(3):
                s('v_lshlrev_b32 %s, 16, %s' % (vr(t), vr(d + e)))
                s('v_and_b32 %s, 0xffff0000, %s' % (vr(d + e), vr(d + e)))
                s('v_add_f32 %s, %s, %s' % (vr(d + e), vr(d + e), vr(t)))
        for e in range(3):
            s('v_cvt_pk_bf16_f32 %s, %s, %s' % (vr(GO + e), vr(D + e), vr(D + 3 + e)))
        s('buffer_store_dwordx4 %s, %s, %s, 0 offen sc1' % (vr(GO, 4), vr(ag), sr(R_WS, 4)))
    s('s_nop 1')
    return [ay, ak, ag, (D, 6), (GO, 4), t, (SD, 2)] + [(r, 4) for r in (Y0 if own0 else []) + Y1 + KVs]


ACC = V.get(48, top=True)
AF = V.get(48, top=True)
with V.borrow((GP, 12)):
    ONES = V.get(4)
    RBA = V.get(8)
xtk[1] = x_dma(a, 1, 0)
a('global_load_dwordx2 %s, %s, %s' % (vr(V_DSK, 2), vr(dad), sr(P_DSK, 2)))
def h_touch(st, ta):
    st('v_lshrrev_b32 %s, 3, %s' % (vr(ta), vr(V_LANE)),
       'v_mul_u32_u24 %s, %d, %s' % (vr(ta), 36864 - 1024, vr(ta)),
       'v_lshl_add_u32 %s, %s, 7, %s' % (vr(ta), vr(V_LANE), vr(ta)),
       'v_cmp_gt_u32 vcc, 48, %s' % vr(V_LANE),
       'v_cndmask_b32 %s, %s, %s, vcc' % (vr(ta), vr(V_OOB), vr(ta)))
    st('s_mul_i32 %s, %s, 216' % (sr(S_T2), sr(S_RB)),
       's_add_u32 %s, %s, %s' % (sr(S_T2), sr(S_T2), sr(S_PT)),
       's_lshl_b32 %s, %s, 10' % (sr(S_T2), sr(S_T2)),
       's_add_u32 %s, %s, %d' % (sr(S_T2), sr(S_T2), WS_H),
       'buffer_load_dword %s, %s, %s, %s offen %s ;junk' % (vr(V_JUNK), vr(ta), sr(R_WS, 4), sr(S_T2), TPOL))


if OPT['tpos'] == 0:
    h_touch(a, lad)
put(lad, dad)
tag_ready(a)
a('v_cmp_gt_u32 vcc, 9, %s' % vr(V_N), 'v_cndmask_b32 %s, 0, %s, vcc' % (vr(V_EXP9), vr(V_TAG)))
for i in range(4):
    a('v_mov_b32 %s, 0x3f803f80' % vr(ONES + i))
XS = V.get(12, 2, top=True)
s0 = Stream()
s0.wait(xtk[0])
s0('s_barrier')
for i in range(MT):
    s0('ds_read_b64 %s, %s offset:%d' % (vr(XS + 2 * i, 2), vr(V_WA), 2048 * i))
for i in range(MT):
    for k in range(2):
        s0('v_lshlrev_b32 %s, 16, %s' % (vr(BASE + 4 * i + 2 * k), vr(XS + 2 * i + k)))
        s0('v_and_b32 %s, 0xffff0000, %s' % (vr(BASE + 4 * i + 2 * k + 1), vr(XS + 2 * i + k)))
with V.borrow(*HOMES):
    stats_publish(s0, BASE, 0, False)
d1 = Stream()
xtk[2] = x_dma(d1, 2, 0)
rt0 = b_read(d1, 0)
btk[2] = b_dma(d1, 2)
a.weave(s0, d1)
stamp(a, 's0')
put((V_DUMMY, 4))
lp = Stream()
with V.borrow((WCV, 32)):
    lam_compute(lp, LAMT, False, LAM)
    L2, L4, L8, L48, L72, L96, L192, L288 = [V.get(2) for _ in range(8)]
for d_, x_, y_ in ((L2, LAM, LAM), (L4, L2, L2), (L8, L4, L4), (L12, L8, L4), (L24, L12, L12), (L48, L24, L24), (L72, L48, L24),
                   (L96, L48, L48), (L192, L96, L96), (L288, L192, L96), (L384, L192, L192)):
    cmul_plain(lp, d_, x_, y_)
for (dst, opts) in ((LQ96, (L96, L192, L288)), (LQ24, (L24, L48, L72))):
    lp('v_mov_b32 %s, 1.0' % vr(dst), 'v_mov_b32 %s, 0' % vr(dst + 1))
    for qi, o in enumerate(opts):
        lp('v_cmp_eq_u32 vcc, %d, %s' % (qi + 1, vr(V_Q)),
           'v_cndmask_b32 %s, %s, %s, vcc' % (vr(dst), vr(dst), vr(o)),
           'v_cndmask_b32 %s, %s, %s, vcc' % (vr(dst + 1), vr(dst + 1), vr(o + 1)))
for r in (L2, L4, L8, L48, L72, L96, L192, L288):
    put((r, 2))
lp('v_and_b32 %s, 0xffff0000, %s' % (vr(V_DSK + 3), vr(V_DSK + 1)))
lp('v_lshlrev_b32 %s, 16, %s' % (vr(V_DSK + 2), vr(V_DSK + 1)))
lp('v_and_b32 %s, 0xffff0000, %s' % (vr(V_DSK + 1), vr(V_DSK)))
lp('v_lshlrev_b32 %s, 16, %s' % (vr(V_DSK), vr(V_DSK)))
pre = {k: Stream() for k in range(18)}
side = {k: Stream() for k in range(18)}


class Pace:
    def __init__(self, per=3):
        self.vm = {k: Stream() for k in range(18)}
        self.k, self.n, self.per = 0, 0, per

    def add(self, st, earliest=0):
        if self.k < earliest:
            self.k, self.n = earliest, 0
        for g in st.groups:
            if self.n >= self.per:
                self.k, self.n = self.k + 1, 0
            self.vm[self.k].groups.append(g)
            self.n += sum(1 for it in g if not isinstance(it, tuple) and it.kind == 'vmem')
        return self.k


pc = Pace(OPT['per'])
need = {}
side[0].extend(lp)
for blk in range(3, 9):
    st = Stream()
    if blk > 3:
        rt = b_read(st, blk - 3)
        need[2 * (blk - 3)] = [rt]
    else:
        rt = rt0
    xtk[blk] = x_dma(st, blk, 0)
    st.wait(rt)
    btk[blk] = b_dma(st, blk)
    kk = pc.add(st)
    print('block', blk, 'issued by k', kk)
cv = Conv()
cfa, cfe, cfv = V.get(top=True), V.get(top=True), V.get(top=True)
side[0]('s_mul_i32 %s, %s, 43' % (sr(S_T1), sr(S_CG)),
         's_lshr_b32 %s, %s, 5' % (sr(S_T1), sr(S_T1)),
         's_mul_i32 %s, %s, %d' % (sr(S_T1), sr(S_T1), 18 * 64),
         's_add_u32 %s, %s, %d' % (sr(S_T1), sr(S_T1), WS_CPF),
         'v_lshl_add_u32 %s, %s, 6, %s' % (vr(cfa), vr(V_LANE), sr(S_T1)))
side[0]('v_cmp_gt_u32 vcc, 36, %s' % vr(V_LANE),
         'v_cndmask_b32 %s, %s, %s, vcc' % (vr(cfa), vr(V_OOB), vr(cfa)),
         'v_cndmask_b32 %s, 0, %s, vcc' % (vr(cfe), vr(V_TAG)))
cfl = 'buffer_load_dword %s, %s, %s, 0 offen sc1' % (vr(cfv), vr(cfa), sr(R_WS, 4))
side[0]('s_mul_i32 %s, %s, %d' % (sr(S_T0), sr(S_PT), 37 * 1024),
        's_add_u32 %s, %s, %d' % (sr(S_CPB), sr(S_T0), WS_CP))
ca_ = Stream()
carel = conv_addr(ca_, cv)
side[0].extend(ca_)
stt = Stream()
stt(cfl)
ta = carel[0]
if OPT['tpos'] == 1:
    h_touch(stt, ta)
stt('s_mov_b32 %s, %d' % (sr(S_T2), WS_ST + ST_SZ),
    'buffer_load_dword %s, %s, %s, %s offen sc1 ;junk' % (vr(V_JUNK), vr(V_STW), sr(R_WS, 4), sr(S_T2)))
stt('v_lshrrev_b32 %s, 1, %s' % (vr(ta), vr(V_LANE)),
    'v_min_u32 %s, 2, %s' % (vr(ta), vr(ta)),
    'v_mul_u32_u24 %s, %d, %s' % (vr(ta), NRB * 256, vr(ta)),
    'v_and_b32 %s, 1, %s' % (vr(carel[1]), vr(V_LANE)),
    'v_lshl_add_u32 %s, %s, 7, %s' % (vr(ta), vr(carel[1]), vr(ta)),
    's_lshl_b32 %s, %s, 8' % (sr(S_T2), sr(S_RB)),
    's_add_u32 %s, %s, %d' % (sr(S_T2), sr(S_T2), WS_HF),
    'buffer_load_dword %s, %s, %s, %s offen sc1 ;junk' % (vr(V_JUNK), vr(ta), sr(R_WS, 4), sr(S_T2)))
with V.borrow(*HOMES):
    G0 = V.get(24)
xe = V.get()
side[0]('v_add_u32 %s, %s, %s' % (vr(xe), sr(S_XCC), vr(V_TAG)),
        'v_cmp_gt_u32 vcc, 9, %s' % vr(V_N),
        'v_cndmask_b32 %s, 0, %s, vcc' % (vr(xe), vr(xe)))
gl = stats_loads(0, G0)
st = Stream()
for i in range(0, 12, 2):
    st(gl[i], gl[i + 1])
print('gather by k', pc.add(st, 9))
kvm = KVm()
st = Stream()
with V.borrow(*HOMES):
    kv_dma(st, kvm)
print('kv dma by k', pc.add(st, 9))
print('touch by k', pc.add(stt))
for kp, k in ((6, 10), (7, 12), (8, 13)):
    need[2 * kp] = [b_read(side[k], kp)]
lastb = need[16][0]


def s0_poll(s):
    p = Stream()
    L, Lc, Lr = newlabel('poll'), newlabel('pollc'), newlabel('pollr')
    acc = V.get(2, 1)
    p.touch(vr(G0, 24))
    p('v_xor_b32 %s, %s, %s' % (vr(acc), vr(G0 + 1), vr(V_EXP9)))
    for i in range(MT):
        if i:
            p('v_bitop3_b32 %s, %s, %s, %s bitop3:0xf6' % (vr(acc), vr(acc), vr(G0 + 4 * i + 1), vr(V_EXP9)))
        p('v_bitop3_b32 %s, %s, %s, %s bitop3:0xf6' % (vr(acc), vr(acc), vr(G0 + 4 * i + 3), vr(xe)))
    p('v_cmp_ne_u32 vcc, 0, %s' % vr(acc))
    p('s_mov_b32 %s, %d' % (sr(S_FAST), 0 if OPT['slow'] else 1))
    p('s_cmp_lg_u64 vcc, 0')
    p('s_cbranch_scc1 %s' % L)
    p.label(Lc)
    s.join(p)
    tail.label(L)
    tail('s_mov_b32 %s, %d' % (sr(S_SPIN), SPIN))
    tail.label(Lr)
    for t in gl:
        tail(t)
    tail('s_waitcnt vmcnt(0)')
    tail('v_mov_b32 %s, 0' % vr(acc))
    for i in range(MT):
        tail('v_sub_u32 %s, %s, %s' % (vr(acc + 1), vr(G0 + 4 * i + 3), vr(V_EXP9)))
        tail('v_lshrrev_b32 %s, 4, %s' % (vr(acc + 1), vr(acc + 1)))
        tail('v_or_b32 %s, %s, %s' % (vr(acc), vr(acc), vr(acc + 1)))
        tail('v_bitop3_b32 %s, %s, %s, %s bitop3:0xf6' % (vr(acc), vr(acc), vr(G0 + 4 * i + 1), vr(V_EXP9)))
    tail('v_cmp_ne_u32 vcc, 0, %s' % vr(acc))
    tail('s_sub_u32 %s, %s, 1' % (sr(S_SPIN), sr(S_SPIN)))
    tail('s_cselect_b64 vcc, 0, vcc')
    tail('s_cmp_lg_u64 vcc, 0')
    tail('s_cbranch_scc1 %s' % Lr)
    tail('v_cmp_ne_u32 vcc, %s, %s' % (vr(G0 + 3), vr(xe)))
    tail('s_cmp_eq_u64 vcc, 0')
    tail('s_cselect_b32 %s, %d, 0' % (sr(S_FAST), 0 if OPT['slow'] else 1))
    tail('s_branch %s' % Lc)
    put((acc, 2))


s0_poll(side[14])
ttk, LNP0 = ln_table(side[14], 0, G0, None)
put(xe)
pre[15].wait(lastb)
NCP0 = OPT['ncp0']


def WC(s, j):
    idx = s * 4 + j
    if idx < 28:
        return ar(144 + idx * 4, 4)
    return vr(WCV + (idx - 28) * 4, 4)


def cp_load(s_, s, j):
    ld = 'buffer_load_dwordx4 %s, %s, %s, %s offen offset:%d sc1' % (WC(s, j), vr(V_L16), sr(R_WS, 4), sr(S_CPB), j * 1024)
    if j == 3:
        s_(ld, 's_add_u32 %s, %s, 4096' % (sr(S_CPB), sr(S_CPB)))
    else:
        s_(ld)


put((V_DB, 2), (V_DX, 3))
st = Stream()
conv_setup_k(st, cv)
kst = st
gemm_b(a, ACC, AF, lambda s: xtk[s], pre, side, ones=(ONES, RBA), vm=pc.vm, need=need)
a.wait(ttk)
a('s_barrier')
a('v_mov_b32 %s, %s' % (vr(RB), vr(RBA)))
a('v_mov_b32 %s, %s' % (vr(RB + 1), vr(RBA + 4)))
put((ONES, 4), (RBA, 8))
put(*kvm.rel)
put(*carel)
put((V_FB, 2))
stamp(a, 'gemmB1')


def scan_phase(a, layer, ACC, AF, mid=None, x1=None, x2=None):
    NJ = 2 * MT
    re = lambda j: ACC + (j >> 1) * 4 + (j & 1) * 2
    im = lambda j: ACC + 4 * MT + (j >> 1) * 4 + (j & 1) * 2
    TB = AF
    for j in range(NJ):
        a('ds_read_b128 %s, %s offset:%d' % (vr(TB + 4 * j, 4), vr(V_TABR), 16 * j))

    def prescale(j):
        a('v_pk_mul_f32 %s, %s, %s' % (vr(re(j), 2), vr(re(j), 2), vr(TB + 4 * j, 2)))
        a('v_pk_mul_f32 %s, %s, %s' % (vr(im(j), 2), vr(im(j), 2), vr(TB + 4 * j, 2)))
        a('v_pk_fma_f32 %s, %s, %s, %s op_sel:[0,0,0] op_sel_hi:[1,0,1] neg_lo:[1,0,0] neg_hi:[1,0,0]' %
          (vr(re(j), 2), vr(TB + 4 * j + 2, 2), vr(RB, 2), vr(re(j), 2)))
        a('v_pk_fma_f32 %s, %s, %s, %s op_sel:[0,1,0] op_sel_hi:[1,1,1] neg_lo:[1,0,0] neg_hi:[1,0,0]' %
          (vr(im(j), 2), vr(TB + 4 * j + 2, 2), vr(RB, 2), vr(im(j), 2)))

    def step(dr, di, pr, pi, br, bi):
        a('v_pk_fma_f32 %s, %s, %s, %s op_sel:[0,0,0] op_sel_hi:[1,0,1]' % (vr(dr, 2), vr(pr, 2), vr(LAM, 2), vr(br, 2)))
        a('v_pk_fma_f32 %s, %s, %s, %s op_sel:[0,0,0] op_sel_hi:[1,0,1]' % (vr(di, 2), vr(pi, 2), vr(LAM, 2), vr(bi, 2)))
        a('v_pk_fma_f32 %s, %s, %s, %s op_sel:[0,1,0] op_sel_hi:[1,1,1] neg_lo:[1,0,0] neg_hi:[1,0,0]' %
          (vr(dr, 2), vr(pi, 2), vr(LAM, 2), vr(dr, 2)))
        a('v_pk_fma_f32 %s, %s, %s, %s op_sel:[0,1,0] op_sel_hi:[1,1,1]' % (vr(di, 2), vr(pr, 2), vr(LAM, 2), vr(di, 2)))

    with V.borrow(*HOMES):
        E = V.get(8)
        pub = V.get(4)
    prescale(0)
    pr, pi = re(0), im(0)
    for j in range(1, NJ):
        prescale(j)
        dr, di = E + (j & 1) * 4, E + (j & 1) * 4 + 2
        step(dr, di, pr, pi, re(j), im(j))
        pr, pi = dr, di
        if x1 is not None and j % 3 == 1:
            x1(a)
    EA, F = V.get(2), V.get(2)
    a('v_mov_b32 %s, %s' % (vr(EA), vr(pr)))
    a('v_mov_b32 %s, %s' % (vr(EA + 1), vr(pi)))
    a('v_mov_b32 %s, %s' % (vr(F), vr(pr + 1)))
    a('v_mov_b32 %s, %s' % (vr(F + 1), vr(pi + 1)))
    FA = E
    cfma(a, FA, EA, L12, F)
    a('v_mov_b64 %s, %s' % (vr(FA + 2, 2), vr(FA, 2)))
    a('v_mov_b32 %s, %s' % (vr(pub + 1), vr(V_TAG)))
    a('v_mov_b32 %s, %s' % (vr(pub + 3), vr(V_TAG)))
    a('v_permlane16_swap_b32 %s, %s' % (vr(FA), vr(FA + 2)))
    a('v_permlane16_swap_b32 %s, %s' % (vr(FA + 1), vr(FA + 3)))
    a('s_lshl_b32 %s, %s, 13' % (sr(S_T0), sr(S_PT)))
    a('v_mov_b64 %s, %s' % (vr(FA + 4, 2), vr(FA, 2)))
    a('v_mov_b64 %s, %s' % (vr(FA + 6, 2), vr(FA + 2, 2)))
    a('s_add_u32 %s, %s, %d' % (sr(S_T0), sr(S_T0), WS_E + layer * 36 * 8192))
    for k in range(4):
        a('v_permlane32_swap_b32 %s, %s' % (vr(FA + k), vr(FA + 4 + k)))
    cfma(a, FA + 2, FA, L24, FA + 2)
    cfma(a, FA + 4, FA + 2, L24, FA + 4)
    cfma(a, FA + 6, FA + 4, L24, FA + 6)
    a('v_mov_b32 %s, %s' % (vr(pub), vr(FA + 6)))
    a('v_mov_b32 %s, %s' % (vr(pub + 2), vr(FA + 7)))
    a('buffer_store_dwordx4 %s, %s, %s, %s offen sc1' % (vr(pub, 4), vr(V_EW), sr(R_WS, 4), sr(S_T0)))
    stamp(a, 'e_pub%d' % layer)
    PQ = F
    a('v_mov_b32 %s, 0' % vr(PQ))
    a('v_mov_b32 %s, 0' % vr(PQ + 1))
    for qi in range(1, 4):
        a('v_cmp_eq_u32 vcc, %d, %s' % (qi, vr(V_Q)),
          'v_cndmask_b32 %s, %s, %s, vcc' % (vr(PQ), vr(PQ), vr(FA + 2 * qi - 2)),
          'v_cndmask_b32 %s, %s, %s, vcc' % (vr(PQ + 1), vr(PQ + 1), vr(FA + 2 * qi - 1)))
    put((pub, 4), (E, 8), (AF, 48))
    NL = 6
    loads, checks, box = [], [], []

    def mk(cs):
        CG_ = V.get(4 * NL)
        AD, EX = V.get(NL, 1), V.get(NL, 1)
        box.extend([CG_, AD, EX])
        cs('s_lshl_b32 %s, %s, 13' % (sr(S_T0), sr(S_PT)),
           's_add_u32 %s, %s, %d' % (sr(S_T0), sr(S_T0), WS_E + layer * 36 * 8192),
           'v_add_u32 %s, %s, %s' % (vr(EX), sr(S_T0), vr(V_ER)))
        for j in range(NL - 1, -1, -1):
            cs('v_subrev_u32 %s, %d, %s' % (vr(AD + j), 1024 * j, vr(EX)),
               'v_cmp_le_i32 vcc, %d, %s' % (1024 * j, vr(V_ER)),
               'v_cndmask_b32 %s, %s, %s, vcc' % (vr(AD + j), vr(V_OOB), vr(AD + j)),
               'v_cndmask_b32 %s, 0, %s, vcc' % (vr(EX + j), vr(V_TAG)))
        for j in range(NL):
            loads.append('buffer_load_dwordx4 %s, %s, %s, 0 offen sc1' % (vr(CG_ + 4 * j, 4), vr(AD + j), sr(R_WS, 4)))
            checks.append((CG_ + 4 * j + 1, CG_ + 4 * j + 3, EX + j))
        for l_ in loads:
            cs(l_)

    post = mid(a, mk)
    CG_, AD, EX = box
    poll(a, loads, checks, pre_issued=True)
    stamp(a, 'carry%d' % layer)
    if post is not None:
        a.extend(post)
    put((AD, NL), (EX, NL))
    for j in range(NL):
        a('v_mov_b32 %s, %s' % (vr(CG_ + 4 * j + 1), vr(CG_ + 4 * j + 2)))
    for j in range(NL - 2, -1, -1):
        cfma(a, CG_ + 4 * j, CG_ + 4 * j + 4, L384, CG_ + 4 * j)
    H, Y = V.get(2), V.get(2)
    cmul(a, H, CG_, LQ96)
    for sw in ('v_permlane32_swap_b32', 'v_permlane16_swap_b32'):
        a('v_mov_b64 %s, %s' % (vr(Y, 2), vr(H, 2)))
        a('%s %s, %s' % (sw, vr(H), vr(Y)))
        a('%s %s, %s' % (sw, vr(H + 1), vr(Y + 1)))
        a('v_pk_add_f32 %s, %s, %s' % (vr(H, 2), vr(H, 2), vr(Y, 2)))
    cfma(a, PQ, H, LQ24, PQ)
    cfma(a, EA, PQ, L12, EA)
    a('v_mov_b32 %s, %s' % (vr(H), vr(PQ)))
    a('v_mov_b32 %s, %s' % (vr(H + 1), vr(EA)))
    a('v_mov_b32 %s, %s' % (vr(Y), vr(PQ + 1)))
    a('v_mov_b32 %s, %s' % (vr(Y + 1), vr(EA + 1)))
    pr, pi = H, Y
    PK = V.get(4)
    HO = CG_
    tk = None
    for j in range(NJ):
        step(re(j), im(j), pr, pi, re(j), im(j))
        pr, pi = re(j), im(j)
        pk = PK + (j & 1) * 2
        for hf in range(2):
            a('v_cvt_pk_bf16_f32 %s, %s, %s' % (vr(pk + hf), vr(re(j) + hf), vr(im(j) + hf)))
        tk = a.mem('ds_write_b32 %s, %s offset:%d' % (vr(V_HW), vr(pk), (j >> 1) * 1024 + (j & 1) * 128),
                   'ds_write_b32 %s, %s offset:%d' % (vr(V_HW), vr(pk + 1), (j >> 1) * 1024 + (j & 1) * 128 + 64))
        if j & 1:
            a('ds_read_b128 %s, %s offset:%d' % (vr(HO + 4 * (j >> 1), 4), vr(V_HR), (j >> 1) * 1024))
        elif x2 is not None and j < 10:
            x2(a)
    a('s_mul_i32 %s, %s, 216' % (sr(S_T0), sr(S_RB)))
    a('s_add_u32 %s, %s, %s' % (sr(S_T0), sr(S_T0), sr(S_PT)))
    a('s_lshl_b32 %s, %s, 10' % (sr(S_T0), sr(S_T0)))
    txt = []
    for i in range(MT):
        txt.append('s_add_u32 %s, %s, %d' % (sr(S_T1), sr(S_T0), WS_H + layer * H_SZ + i * 36864))
        txt.append('buffer_store_dwordx4 %s, %s, %s, %s offen {P}' % (vr(HO + 4 * i, 4), vr(V_L16), sr(R_WS, 4), sr(S_T1)))
    if OPT['fine']:
        stamp(a, 'pass2')
    tk = dual(a, txt, touch=[vr(HO, 24)])
    a('s_lshl2_add_u32 %s, %s, %s' % (sr(S_T0), sr(S_RB), sr(S_WAVE)))
    a('s_lshl4_add_u32 %s, %s, %s' % (sr(S_T0), sr(S_T0), sr(S_CG)))
    a('s_lshl_b32 %s, %s, 2' % (sr(S_T0), sr(S_T0)))
    a('s_add_u32 %s, %s, %d' % (sr(S_T0), sr(S_T0), WS_HF + layer * NRB * 256))
    return tk, [(EA, 2), (F, 2), (H, 2), (Y, 2), (PK, 4), (CG_, 4 * NL), (ACC, 48)]


def mid0(a, mk):
    put((BASE, 24))
    sd, s2, lr, ks = Stream(), Stream(), Stream(), Stream()
    poll(sd, [cfl], [(cfv, None, cfe)], pre_issued=True, sleep=6)
    if OPT['tpos'] == 2:
        h_touch(a, cfe_ := V.get())
        put(cfe_)
    for idx in range(OPT['ncp']):
        cp_load(sd, idx // 4, idx % 4)
    mk(s2)
    with V.borrow(*HOMES):
        kv_main(lr, kvm, ks)
    lr = weave(lr, sd, 0.15, 1.0)
    lr = weave(lr, s2, 0.55, 0.75)
    for i_, p_ in enumerate(split(lr, 8)):
        a.extend(p_)
        if OPT['fine'] > 1:
            stamp(a, 'kq%d' % i_)
    if OPT['fine']:
        stamp(a, 'kvcore')
    a.extend(ks)
    put(cfa, cfe, cfv)
    V.claim(WCV, 32)
    conv_u_prep(a, cv)
    stamp(a, 'kv')
    return None


def ln_rest0_plain(r, P):
    b, tmp = V.get(2), V.get(4)
    for i in range(MT):
        x = BASE + 4 * i
        k_, lane = tile_src(i)
        for e in range(2):
            r('v_mov_b32_dpp %s, %s row_newbcast:%d row_mask:0xf bank_mask:0xf' % (vr(b + e), vr(P + 2 * k_ + e), lane))
        for k in range(2):
            r('v_lshlrev_b32 %s, 16, %s' % (vr(x + 2 * k), vr(XS + 2 * i + k)))
            r('v_and_b32 %s, 0xffff0000, %s' % (vr(x + 2 * k + 1), vr(XS + 2 * i + k)))
        for k in range(4):
            r('v_sub_f32 %s, %s, %s' % (vr(x + k), vr(x + k), vr(b)))
        for k in range(2):
            r('v_cvt_pk_bf16_f32 %s, %s, %s' % (vr(tmp + 2 * k), vr(x + 2 * k), vr(x + 2 * k + 1)))
        for rep in range(3):
            for k in range(2):
                r('v_and_b32 %s, 0xffff0000, %s' % (vr(tmp + 2 * k + 1), vr(tmp + 2 * k)))
                r('v_lshlrev_b32 %s, 16, %s' % (vr(tmp + 2 * k), vr(tmp + 2 * k)))
            for k in range(4):
                if rep == 0:
                    r('v_mul_f32 %s, %s, %s' % (vr(tmp + k), vr(tmp + k), vr(b + 1)))
                elif rep == 1:
                    r('v_mul_f32 %s, %s, %s' % (vr(tmp + k), vr(tmp + k), vr(V_DSK + k)))
                else:
                    r('v_add_f32 %s, %s, %s' % (vr(x + k), vr(x + k), vr(tmp + k)))
            if rep < 2:
                for k in range(2):
                    r('v_cvt_pk_bf16_f32 %s, %s, %s' % (vr(tmp + 2 * k), vr(tmp + 2 * k), vr(tmp + 2 * k + 1)))
    return [(b, 2), (tmp, 4), (P, 4), (XS, 12)]


def hflag_prep(s, layer):
    fa, fv = V.get(), V.get()
    s('s_lshl2_add_u32 %s, %s, %s' % (sr(S_T1), sr(S_RB), sr(S_WAVE)),
      's_lshl_b32 %s, %s, 6' % (sr(S_T1), sr(S_T1)),
      's_add_u32 %s, %s, %d' % (sr(S_T1), sr(S_T1), WS_HF + layer * NRB * 256),
      'v_lshl_add_u32 %s, %s, 2, %s' % (vr(fa), vr(V_N), sr(S_T1)))
    s('v_cmp_gt_u32 vcc, 9, %s' % vr(V_N),
      'v_cndmask_b32 %s, %s, %s, vcc' % (vr(fa), vr(V_OOB), vr(fa)))
    s('s_mul_i32 %s, %s, 216' % (sr(S_T1), sr(S_RB)),
      's_add_u32 %s, %s, %s' % (sr(S_T1), sr(S_T1), sr(S_WAVE)),
      's_lshl_b32 %s, %s, 10' % (sr(S_T1), sr(S_T1)),
      's_add_u32 %s, %s, %d' % (sr(S_HB), sr(S_T1), WS_H + layer * H_SZ))
    fl = 'buffer_load_dword %s, %s, %s, 0 offen sc1' % (vr(fv), vr(fa), sr(R_WS, 4))
    return fa, fv, fl


def hload_next(st, reg):
    st('buffer_load_dwordx4 %s, %s, %s, %s offen sc1' % (vr(reg, 4), vr(V_L16), sr(R_WS, 4), sr(S_HB)),
       's_add_u32 %s, %s, 4096' % (sr(S_HB), sr(S_HB)))


cpn = [0, OPT['ncp']]
kparts = split(kst, 4)
kx = lambda st: st.extend(kparts.pop(0))


def cpx(which, lim):
    def f(st):
        if cpn[which] < lim:
            cp_load(st, cpn[which] // 4, cpn[which] % 4)
            cpn[which] += 1
    return f


htk, hrel = scan_phase(a, 0, ACC, AF, mid0, kx, cpx(1, OPT['ncp2']))
assert cpn[1] == OPT['ncp2'] and not kparts
put(*hrel)
a('s_mov_b32 %s, %s' % (sr(S_C), sr(S_T0)))
for l_ in cv.uloads:
    a(l_)
for r_ in range(BASE, BASE + 24):
    V.free.remove(r_)
V.claim(V_PW, 4)
t = V.get()
a('v_mul_u32_u24 %s, %d, %s' % (vr(V_PW), PART_ROW, vr(V_N)))
a('v_lshl_add_u32 %s, %s, 4, %s' % (vr(V_PW), vr(V_Q), vr(V_PW)))
a('s_mul_i32 %s, %s, %d' % (sr(S_T0), sr(S_WAVE), PART_W))
a('v_add_u32 %s, %s, %s' % (vr(V_PW), sr(S_T0), vr(V_PW)))
a('s_lshl_b32 %s, %s, 2' % (sr(S_T0), sr(S_WAVE)))
a('v_add_u32 %s, %s, %s' % (vr(t), sr(S_T0), vr(V_Q)))
a('v_mul_u32_u24 %s, %d, %s' % (vr(V_PR), PART_ROW, vr(t)))
a('v_lshl_add_u32 %s, %s, 4, %s' % (vr(V_PR), vr(V_N), vr(V_PR)))
PH = 12 * PART_W
a('v_add_u32 %s, %d, %s' % (vr(V_PW2), PH, vr(V_PW)))
a('v_add_u32 %s, %d, %s' % (vr(V_PR2), PH, vr(V_PR)))
put(t)
a('s_barrier')
if OPT['fine']:
    stamp(a, 'ubar')
hf = Stream()
hf.wait(htk)
dual(hf, flag_texts(sr(S_C), '{P}'))
stamp(hf, 'h_pub0')
sd, lr = Stream(), Stream()
for idx in range(OPT['ncp2'], 36):
    cp_load(sd, idx // 4, idx % 4)
hfa, hfv, hfl = hflag_prep(sd, 0)
sd(hfl)
for i in range(MT):
    for k in range(2):
        hf('v_lshlrev_b32 %s, 16, %s' % (vr(BASE + 4 * i + 2 * k), vr(XS + 2 * i + k)))
        hf('v_and_b32 %s, 0xffff0000, %s' % (vr(BASE + 4 * i + 2 * k + 1), vr(XS + 2 * i + k)))
put((XS, 12))
ln_rest(hf, 0, LNP0)
HB0 = []


def last0(m, reg):
    if reg is None:
        poll(m, [hfl], [(hfv, None, V_EXP9)], pre_issued=True)
    else:
        HB0.append(reg)
        hload_next(m, reg)


conv_body(a, cv, [sd], True, hf, True, last0)
put(hfa, hfv)


def g_fetch_streams():
    s1, s2 = Stream(), Stream()
    fa, u, u2 = V.get(), V.get(), V.get()
    D = V.get(16)
    s1('v_lshrrev_b32 %s, 3, %s' % (vr(fa), vr(V_LANE)))
    s1('v_mul_u32_u24 %s, %d, %s' % (vr(fa), G_STR - 128, vr(fa)))
    s1('s_mul_i32 %s, %s, %d' % (sr(S_T1), sr(S_CG), 32 * G_STR),
       's_lshl2_add_u32 %s, %s, %s' % (sr(S_T2), sr(S_RB), sr(S_WAVE)),
       's_lshl_b32 %s, %s, 7' % (sr(S_T2), sr(S_T2)),
       's_add_u32 %s, %s, %s' % (sr(S_T1), sr(S_T1), sr(S_T2)),
       's_add_u32 %s, %s, %d' % (sr(S_T1), sr(S_T1), WS_G),
       'v_add3_u32 %s, %s, %s, %s' % (vr(fa), vr(fa), vr(V_L16), sr(S_T1)))
    loads = []
    for i in range(4):
        loads.append('s_mov_b32 %s, %d' % (sr(S_T1), 8 * i * G_STR))
        loads.append('buffer_load_dwordx4 %s, %s, %s, %s offen sc1' % (vr(D + 4 * i, 4), vr(fa), sr(R_WS, 4), sr(S_T1)))
    for i in range(4):
        s1(loads[2 * i], loads[2 * i + 1])
    s1('v_and_b32 %s, 1, %s' % (vr(u), vr(V_Q)))
    s1('v_lshlrev_b32 %s, 6, %s' % (vr(u), vr(u)))
    s1('v_mul_u32_u24 %s, 272, %s' % (vr(u2), vr(V_N)))
    s1('v_add3_u32 %s, %s, %s, %s' % (vr(u), vr(u), vr(u2), sr(S_RINGW)))
    s1('v_lshrrev_b32 %s, 1, %s' % (vr(u2), vr(V_Q)))
    s1('v_lshl_add_u32 %s, %s, 2, %s' % (vr(u), vr(u2), vr(u)))
    s1('v_lshl_add_u32 %s, %s, 2, %s' % (vr(u2), vr(u2), vr(u)))
    poll(s2, loads, [(D + 3, D + 7, V_TAG), (D + 11, D + 15, V_TAG)], pre_issued=True, sleep=4)
    s2('v_lshlrev_b32 %s, 4, %s' % (vr(fa), vr(V_Q)))
    s2('v_add3_u32 %s, %s, %s, %s' % (vr(fa), vr(fa), vr(V_L16), sr(S_RINGW)))
    for i in range(4):
        s2('ds_write_b128 %s, %s offset:%d' % (vr(fa), vr(D + 4 * i, 4), 1088 * i))
    for i, o in enumerate((0, 2, 5, 8, 10, 13)):
        s2('ds_read2_b32 %s, %s offset0:%d offset1:%d' % (vr(GP + 2 * i, 2), vr(u2 if i in (1, 4) else u), o, 32 + o))
    return s1, s2, [fa, u, u2, (D, 16)]


def gemm_c(a, layer, HB=None):
    NF = 16
    if HB is None:
        a.extend(hq)
        poll(a, [hfl], [(hfv, None, V_EXP9)], pre_issued=True)
        stamp(a, 'h_flag%d' % layer)
        put(hfa, hfv)
        HB = [V.get(4, top=True) for _ in range(NF)]
        for f in range(NF):
            hload_next(a, HB[f])
    CA = [V.get(4, top=True) for _ in range(8)]
    hb = lambda i, s: HB[(i * 9 + s) % NF]
    slot = lambda i: (i + 4) % 6

    def pwrite(st, i, js=range(4)):
        for j in js:
            tk = st.mem('ds_write_b128 %s, %s offset:%d' % (vr(V_PW if slot(i) < 3 else V_PW2), vr(CA[(i & 1) * 4 + j], 4),
                                                            L_IMG + (slot(i) % 3) * 4 * PART_W + j * 64))
        return tk

    def preduce(st, i, P):
        for w in range(4):
            st('ds_read_b128 %s, %s offset:%d' % (vr(P[w], 4), vr(V_PR if slot(i) < 3 else V_PR2), L_IMG + ((slot(i) % 3) * 4 + w) * PART_W))

    def padd(st, i, P, pk):
        x = BASE + 4 * i
        if pk:
            for k in range(2):
                st('v_pk_add_f32 %s, %s, %s' % (vr(P[0] + 2 * k, 2), vr(P[0] + 2 * k, 2), vr(P[1] + 2 * k, 2)))
                st('v_pk_add_f32 %s, %s, %s' % (vr(P[2] + 2 * k, 2), vr(P[2] + 2 * k, 2), vr(P[3] + 2 * k, 2)))
                st('v_pk_add_f32 %s, %s, %s' % (vr(x + 2 * k, 2), vr(x + 2 * k, 2), vr(P[0] + 2 * k, 2)))
                st('v_pk_add_f32 %s, %s, %s' % (vr(x + 2 * k, 2), vr(x + 2 * k, 2), vr(P[2] + 2 * k, 2)))
        else:
            for w in range(4):
                for k in range(4):
                    st('v_add_f32 %s, %s, %s' % (vr(x + k), vr(x + k), vr(P[w] + k)))

    sc = Sched(a)
    sc.VM_GAP = 20
    qp, qs = sc.add(Stream()), sc.add(Stream())
    if layer == 0:
        a.wait(cv.stk)
        cf_ = Stream()
        with V.borrow((GP, 12)):
            frel = conv_final(cf_, cv, CA[4:8])
        qs.extend(cf_.groups)
        nrest = len(cf_.groups) - cv.mark
        put(*frel)
    a('s_barrier')
    S, Q = V.get(6, 1), V.get(6, 1)
    PT = [V.get(4) for _ in range(4)]
    tk = None
    for i in range(MT):
        m = Stream()
        for s in range(9):
            for j in range(4):
                ca = CA[(i & 1) * 4 + j]
                m('v_mfma_f32_16x16x32_bf16 %s, %s, %s, %s' % (vr(ca, 4), WC(s, j), vr(hb(i, s), 4), '0' if s == 0 else vr(ca, 4)))
                if j == 0 and s < 8:
                    m.touch(vr(hb(i, s + 1), 4))
            if i * 9 + s + NF < 9 * MT:
                hload_next(m, hb(i, s))
        if i in (3, 5):
            print('gemm_c leftover before barrier', sc.pending())
            sc.flush()
            a.wait(tk)
            a('s_barrier')
            sd = Stream()
            for ti in (i - 3, i - 2):
                preduce(sd, ti, PT)
                padd(sd, ti, PT, False)
                stats_partial(sd, BASE, S, Q, ti, None, False)
            qs.extend(sd.groups)
        if i > 0:
            pw = Stream()
            tk = pwrite(pw, i - 1)
            qp.extend(pw.groups)
        sc.run(m)
        sc.flush(qp)
        if layer == 0 and i == 0:
            print('final part A leftover', len(qs) - nrest)
            while len(qs) > nrest:
                sc._emit(qs.pop(0))
        if OPT['fine']:
            stamp(a, 'c%d_t%d' % (layer, i))
    print('gemm_c leftover', sc.pending(), 'model time', sc.t)
    sc.flush()
    put(*[(r, 4) for r in PT + HB[8:]])
    gs = None
    if layer == 0:
        V.claim(GP, 12)
        gs = g_fetch_streams()
        a.extend(gs[0])
    tk = pwrite(a, MT - 1)
    a.wait(tk)
    a('s_barrier')
    stamp(a, 'gemmC%d' % layer)
    for ti in (4, 5):
        preduce(a, ti, HB[(ti - 4) * 4:(ti - 4) * 4 + 4])
    for ti in (4, 5):
        padd(a, ti, HB[(ti - 4) * 4:(ti - 4) * 4 + 4], True)
    put(*[(r, 4) for r in CA + HB[:8]])
    return S, Q, gs


def gate(a, which, final, SQ):
    stats_publish(a, BASE, which, True, SQ=SQ[:2], tiles=(4, 5))
    stamp(a, 'st_pub%d' % which)
    if SQ[2] is not None:
        a.extend(SQ[2][1])
        put(*SQ[2][2])
    GU = V.get(24)
    for i in range(MT):
        for j in range(2):
            a('v_lshlrev_b32 %s, 16, %s' % (vr(GU + 4 * i + 2 * j), vr(GP + 2 * i + j)))
            a('v_and_b32 %s, 0xffff0000, %s' % (vr(GU + 4 * i + 2 * j + 1), vr(GP + 2 * i + j)))
    G = V.get(24)
    ex = stats_exp(a, which)
    poll(a, stats_loads(which, G), [(G + 4 * i + 1, G + 4 * i + 3, ex) for i in range(MT)])
    put(ex)
    stamp(a, 'st_got%d' % which)
    P = stats_finish(a, G)
    for k in range(2):
        a('v_add_f32 %s, 0x3727c5ac, %s' % (vr(P + 2 * k + 1), vr(P + 2 * k + 1)))
    for k in range(2):
        a('v_rsq_f32 %s, %s' % (vr(P + 2 * k + 1), vr(P + 2 * k + 1)))
    for k in range(2):
        a('v_add_f32 %s, %s, %s' % (vr(OFF + k), vr(OFF + k), vr(P + 2 * k)))
    B = G
    for i in range(MT):
        bcast(a, B + 4 * i, P, i)
        if final:
            k_, lane = tile_src(i)
            a('v_mov_b32_dpp %s, %s row_newbcast:%d row_mask:0xf bank_mask:0xf' % (vr(B + 4 * i + 2), vr(OFF + k_), lane))
    for i in range(MT):
        x, g, b = BASE + 4 * i, GU + 4 * i, B + 4 * i
        for k in range(2):
            a('v_pk_add_f32 %s, %s, %s op_sel:[0,0] op_sel_hi:[1,0] neg_lo:[0,1] neg_hi:[0,1]' % (vr(x + 2 * k, 2), vr(x + 2 * k, 2), vr(b, 2)))
            a('v_pk_fma_f32 %s, %s, %s, 1.0 op_sel:[0,1,0] op_sel_hi:[1,1,0]' % (vr(g + 2 * k, 2), vr(g + 2 * k, 2), vr(b, 2)))
        for k in range(2):
            if final:
                a('v_pk_fma_f32 %s, %s, %s, %s op_sel:[0,0,0] op_sel_hi:[1,1,0]' % (vr(x + 2 * k, 2), vr(x + 2 * k, 2), vr(g + 2 * k, 2), vr(b + 2, 2)))
            else:
                a('v_pk_mul_f32 %s, %s, %s' % (vr(x + 2 * k, 2), vr(x + 2 * k, 2), vr(g + 2 * k, 2)))
        if final:
            a('s_movk_i32 %s, %d' % (sr(S_T0), 4608 * i),
              'buffer_store_dwordx4 %s, %s, %s, %s offen%s' % (vr(x, 4), vr(V_OROW), sr(R_OUT, 4), sr(S_T0), ('', ' nt', ' sc1', ' sc1 nt')[OPT['opol']]))
    put((GU, 24), (G, 24), (P, 4))


SQ_ = gemm_c(a, 0, HB0)
gate(a, 1, False, SQ_)
WP = V.get(12, 2)
for i in range(MT):
    for k in range(2):
        a('v_cvt_pk_bf16_f32 %s, %s, %s' % (vr(WP + 2 * i + k), vr(BASE + 4 * i + 2 * k), vr(BASE + 4 * i + 2 * k + 1)))
a('s_mul_i32 %s, %s, 18' % (sr(S_T0), sr(S_RB)))
a('s_add_u32 %s, %s, %s' % (sr(S_T0), sr(S_T0), sr(S_CG)))
a('s_mul_i32 %s, %s, %d' % (sr(S_T0), sr(S_T0), BLK))
a('s_add_u32 %s, %s, %d' % (sr(S_T0), sr(S_T0), WS_H))
a('s_add_u32 %s, %s, 4096' % (sr(S_T1), sr(S_T0)))
a('s_add_u32 %s, %s, 8192' % (sr(S_T2), sr(S_T0)))
wtk_ = dual(a, ['buffer_store_dwordx2 %s, %s, %s, %s offen offset:%d {P}' %
                (vr(WP + 2 * i, 2), vr(V_WA), sr(R_WS, 4), sr((S_T0, S_T1, S_T2)[i >> 1]), (i & 1) * 2048) for i in range(MT)])
stats_publish(a, BASE, 2, True)
V_DX = V.get(3, 1)
a('s_mul_i32 %s, %s, %d' % (sr(S_T0), sr(S_RB), 18 * BLK))
a('s_add_u32 %s, %s, %d' % (sr(S_T0), sr(S_T0), WS_H))
a('s_add_u32 %s, %s, %s' % (sr(S_T0), sr(S_T0), sr(S_W1K)))
a('v_add_u32 %s, %s, %s' % (vr(V_DX), sr(S_T0), vr(V_L16)))
a('v_add_u32 %s, 4096, %s' % (vr(V_DX + 1), vr(V_DX)))
a('v_add_u32 %s, 8192, %s' % (vr(V_DX + 2), vr(V_DX)))
for s in range(9):
    a('s_mul_i32 %s, %s, 96' % (sr(S_TT + s), sr(S_KP + s)))
fa, fe, fv = V.get(), V.get(), V.get()
a('s_lshl_b32 %s, %s, 8' % (sr(S_T1), sr(S_RB)))
a('s_add_u32 %s, %s, %d' % (sr(S_T1), sr(S_T1), WS_WF))
a('v_lshl_add_u32 %s, %s, 2, %s' % (vr(fa), vr(V_LANE), sr(S_T1)))
a('v_cmp_gt_u32 vcc, 36, %s' % vr(V_LANE),
  'v_cndmask_b32 %s, %s, %s, vcc' % (vr(fa), vr(V_OOB), vr(fa)),
  'v_cndmask_b32 %s, 0, %s, vcc' % (vr(fe), vr(V_TAG)))
a('s_lshl2_add_u32 %s, %s, %s' % (sr(S_T0), sr(S_PT), sr(S_T1)))
a.wait(wtk_)
dual(a, flag_texts(sr(S_T0), '{P}'))
stamp(a, 'w_pub')
put((WP, 12))

ACC = V.get(48, top=True)
AF = V.get(48, top=True)
poll(a, ['buffer_load_dword %s, %s, %s, 0 offen sc1' % (vr(fv), vr(fa), sr(R_WS, 4))], [(fv, None, fe)])
stamp(a, 'w_flag')
put(fa, fe, fv)
pre = {k: Stream() for k in range(18)}
side = {k: Stream() for k in range(18)}
wtk = {}
for blk in range(4):
    wtk[blk] = x_dma(a, blk, 1)
vm2 = {k: Stream() for k in range(18)}
for blk in range(4, 9):
    wtk[blk] = x_dma(vm2[0], blk, 1)
G2 = V.get(24)
gl2 = stats_loads(2, G2)
for i in range(0, 12, 2):
    vm2[0](gl2[i], gl2[i + 1])
ex2 = stats_exp(side[0], 2)
poll(pre[10], gl2, [(G2 + 4 * i + 1, G2 + 4 * i + 3, ex2) for i in range(MT)], pre_issued=True)
put(ex2)
ttk2, LNP1 = ln_table(side[10], 1, G2, None)
pre[15].wait(ttk2)
dual(vm2[12], ['s_lshl_b32 %s, %s, 6' % (sr(S_T0), sr(S_RB)),
               's_add_u32 %s, %s, %s' % (sr(S_T0), sr(S_T0), sr(S_CG)),
               's_lshl_b32 %s, %s, 2' % (sr(S_T0), sr(S_T0)),
               's_add_u32 %s, %s, %d' % (sr(S_T0), sr(S_T0), WS_WF + 160)] + flag_texts(sr(S_T0), '{P}'))
gemm_b(a, ACC, AF, lambda s: wtk[s], pre, side, vm=vm2)
put((V_DX, 3))
stamp(a, 'gemmB2')


def mid1(a, mk):
    da, dv = V.get(), V.get()
    a('s_lshl_b32 %s, %s, 8' % (sr(S_T1), sr(S_RB)))
    a('s_add_u32 %s, %s, %d' % (sr(S_T1), sr(S_T1), WS_WF + 160))
    a('v_lshl_add_u32 %s, %s, 2, %s' % (vr(da), vr(V_N), sr(S_T1)))
    a('v_cmp_gt_u32 vcc, 9, %s' % vr(V_N), 'v_cndmask_b32 %s, %s, %s, vcc' % (vr(da), vr(V_OOB), vr(da)))
    dl = 'buffer_load_dword %s, %s, %s, 0 offen sc1' % (vr(dv), vr(da), sr(R_WS, 4))
    a(dl)
    ln_rest(a, 1, LNP1)
    mk(a)
    poll(a, [dl], [(dv, None, V_EXP9)], pre_issued=True)
    put(da, dv)
    return None


htk, hrel = scan_phase(a, 1, ACC, AF, mid1)
put(*hrel)
hfa, hfv, hfl = hflag_prep(a, 1)
hq = Stream()
hq(hfl)
a.wait(htk)
dual(a, flag_texts(sr(S_T0), '{P}'))
stamp(a, 'h_pub1')
a('s_lshl2_add_u32 %s, %s, %s' % (sr(S_T0), sr(S_L), sr(S_WAVE)))
a('s_cmp_lg_u32 %s, %d' % (sr(S_T0), (NRB - 1) * 9 * 4))
a('s_cselect_b64 exec, 0, 1',
  'buffer_store_dword %s, %s, %s, 0 offen sc1' % (vr(V_TAG), vr(V_ZERO), sr(R_WS, 4)),
  's_mov_b64 exec, -1')
SQ_ = gemm_c(a, 1)
gate(a, 3, True, SQ_)
stamp(a, 'out')
a('s_branch L_fin')

a.fence()
a.label('L_aux')
V.free = set(range(NCOMMON, 256))
V.locked = set()
a('s_waitcnt lgkmcnt(0)')
a('s_load_dword %s, %s, 0' % (sr(S_TAG), sr(P_WS, 2)))
srd(a, R_WS, P_WS, WS_SIZE)
a('s_sub_u32 %s, %s, %d' % (sr(S_RB), sr(S_L), NMAIN))
S_AW, S_KC_, S_CGK, S_KP2, S_DG, S_SCR, S_AW2 = [S_KP + i for i in range(7)]
a('s_mul_i32 %s, %s, 58' % (sr(S_AW2), sr(S_WAVE)))
a('s_add_u32 %s, %s, %s' % (sr(S_AW2), sr(S_AW2), sr(S_RB)))
a('s_lshl2_add_u32 %s, %s, %s' % (sr(S_AW), sr(S_RB), sr(S_WAVE)))
a('s_mul_i32 %s, %s, 57' % (sr(S_T0), sr(S_AW)))
a('s_lshr_b32 %s, %s, 10' % (sr(S_DG), sr(S_T0)))
a('s_mul_i32 %s, %s, 171' % (sr(S_KC_), sr(S_AW2)))
a('s_lshr_b32 %s, %s, 9' % (sr(S_KC_), sr(S_KC_)))
a('s_mul_i32 %s, %s, 18' % (sr(S_T1), sr(S_DG)))
a('s_sub_u32 %s, %s, %s' % (sr(S_KP2), sr(S_AW), sr(S_T1)))
a('s_mul_i32 %s, %s, 3' % (sr(S_T1), sr(S_KC_)))
a('s_sub_u32 %s, %s, %s' % (sr(S_CGK), sr(S_AW2), sr(S_T1)))
a('s_add_u32 %s, %s, 6' % (sr(S_CGK), sr(S_CGK)))
srd(a, R_BRE, P_CRE, 576 * 1152)
srd(a, R_BIM, P_CIM, 576 * 1152)
dp, gm, vc, t, t2 = [V.get() for _ in range(5)]
a('v_and_b32 %s, 31, %s' % (vr(dp), vr(V_LANE)))
a('s_lshl_b32 %s, %s, 6' % (sr(S_T0), sr(S_KP2)))
a('v_lshl_add_u32 %s, %s, 1, %s' % (vr(t2), vr(dp), sr(S_T0)))
LT = lam_loads(a, t2)
CL = V.get(24)
a('v_lshrrev_b32 %s, 2, %s' % (vr(vc), vr(V_LANE)))
a('v_mul_u32_u24 %s, 1152, %s' % (vr(vc), vr(vc)))
a('v_and_b32 %s, 3, %s' % (vr(gm), vr(V_LANE)))
a('v_lshl_add_u32 %s, %s, 4, %s' % (vr(vc), vr(gm), vr(vc)))
a('s_mul_i32 %s, %s, %d' % (sr(S_T1), sr(S_DG), 48 * 1152))
a('s_add_u32 %s, %s, %s' % (sr(S_T1), sr(S_T1), sr(S_T0)))
for u in range(3):
    a('s_add_u32 %s, %s, %d' % (sr(S_T2), sr(S_T1), u * 16 * 1152),
      'buffer_load_dwordx4 %s, %s, %s, %s offen nt' % (vr(CL + 8 * u, 4), vr(vc), sr(R_BRE, 4), sr(S_T2)),
      'buffer_load_dwordx4 %s, %s, %s, %s offen nt' % (vr(CL + 8 * u + 4, 4), vr(vc), sr(R_BIM, 4), sr(S_T2)))
a('s_lshl2_add_u32 %s, %s, %s' % (sr(S_T1), sr(S_RB), sr(S_WAVE)))
a('s_mul_i32 %s, %s, 2880' % (sr(S_T1), sr(S_T1)))
a('v_min_u32 %s, 22, %s' % (vr(V_TAG), vr(V_LANE)))
a('v_lshl_add_u32 %s, %s, 7, %s' % (vr(V_TAG), vr(V_TAG), sr(S_T1)))
a('v_min_u32 %s, %d, %s' % (vr(V_TAG), 576 * 1152 - 4, vr(V_TAG)))
a('global_load_dword %s, %s, %s ;junk' % (vr(V_JUNK), vr(V_TAG), sr(P_BRE, 2)))
a('global_load_dword %s, %s, %s ;junk' % (vr(V_JUNK), vr(V_TAG), sr(P_BIM, 2)))
srd(a, R_K, P_K, 2048 * 1152)
srd(a, R_V, P_V, 2048 * 1152)
sg, vk, vh, ka = [V.get() for _ in range(4)]
a('v_lshrrev_b32 %s, 5, %s' % (vr(sg), vr(V_LANE)))
a('s_mul_i32 %s, %s, %d' % (sr(S_T0), sr(S_KC_), 48 * 1152))
a('s_lshl_b32 %s, %s, 7' % (sr(S_T1), sr(S_CGK)))
a('s_add_u32 %s, %s, %s' % (sr(S_T0), sr(S_T0), sr(S_T1)))
a('v_mul_u32_u24 %s, %d, %s' % (vr(vk), 24 * 1152, vr(sg)))
a('v_lshl_add_u32 %s, %s, 2, %s' % (vr(vk), vr(dp), vr(vk)))
a('v_add_u32 %s, %s, %s' % (vr(vk), sr(S_T0), vr(vk)))
a('v_subrev_u32 %s, %d, %s' % (vr(vh), 3 * 1152, vr(vk)))
SHK = V.get(4)
a('s_lshl_b32 %s, %s, 9' % (sr(S_T1), sr(S_CGK)))
a('v_lshl_add_u32 %s, %s, 4, %s' % (vr(t), vr(dp), sr(S_T1)))
a('global_load_dwordx4 %s, %s, %s' % (vr(SHK, 4), vr(t), sr(P_SHK, 2)))
KR, VR = V.get(27, 1), V.get(24, 1)
ld = Stream()
for j in range(3):
    ld('buffer_load_dword %s, %s, %s, 0 offen offset:%d nt' % (vr(KR + j), vr(vh), sr(R_K, 4), 1152 * j))
for j3 in range(8):
    ld('s_mov_b32 %s, %d' % (sr(S_C), 3456 * j3),
       *['buffer_load_dword %s, %s, %s, %s offen offset:%d nt' % (vr(base + 3 * j3 + jj), vr(vk), sr(rr, 4), sr(S_C), 1152 * jj)
         for jj in range(3) for (base, rr) in ((KR + 3, R_K), (VR, R_V))])
ldp = split(ld, 2)
astamp(a, 4)
a('s_waitcnt lgkmcnt(0)')
astamp(a, 5)
tag_ready(a)
cs = Stream()
cs('s_mul_i32 %s, %s, 8192' % (sr(S_SCR), sr(S_WAVE)), 's_add_u32 %s, %s, %d' % (sr(S_SCR), sr(S_SCR), 65536))
_, COEF = lam_compute(cs, LT, True)
cs('v_add_f32 %s, %s, %s' % (vr(COEF), vr(COEF), vr(COEF)))
cs('v_add_f32 %s, %s, %s' % (vr(COEF + 1), vr(COEF + 1), vr(COEF + 1)))
cs('v_lshl_add_u32 %s, %s, 3, %s' % (vr(t), vr(dp), sr(S_SCR)))
cs('ds_write_b64 %s, %s offset:6144' % (vr(t), vr(COEF, 2)))
cs('v_lshl_add_u32 %s, %s, 6, %s' % (vr(t), vr(gm), sr(S_SCR)))
CF = V.get(16)
for k in range(4):
    cs('ds_read_b128 %s, %s offset:%d' % (vr(CF + 4 * k, 4), vr(t), 6144 + 16 * k))
wa, ra = V.get(), V.get()
cs('v_lshrrev_b32 %s, 2, %s' % (vr(t), vr(V_LANE)))
cs('v_lshlrev_b32 %s, 4, %s' % (vr(t), vr(t)))
cs('v_lshl_add_u32 %s, %s, 9, %s' % (vr(wa), vr(gm), vr(t)))
cs('v_add_u32 %s, %s, %s' % (vr(wa), sr(S_SCR), vr(wa)))
cs('v_add_u32 %s, %s, %s' % (vr(ra), sr(S_SCR), vr(V_L16)))
X = V.get(4)
O = V.get(8)
RD = V.get(24)
for u in range(3):
    for e in range(8):
        src = CL + 8 * u + (e >> 1)
        op = 'v_and_b32 %s, 0xffff0000, %s' if e & 1 else 'v_lshlrev_b32 %s, 16, %s'
        cs(op % (vr(X), vr(src)))
        cs(op % (vr(X + 1), vr(src + 4)))
        cmul(cs, X + 2, X, CF + 2 * e)
        cs('v_cvt_pk_bf16_f32 %s, %s, -%s' % (vr(O + e), vr(X + 2), vr(X + 3)))
    bo = u * 2048
    cs('ds_write_b128 %s, %s offset:%d' % (vr(wa), vr(O, 4), bo))
    cs('ds_write_b128 %s, %s offset:%d' % (vr(wa), vr(O + 4, 4), bo + 256))
    cs('ds_read_b128 %s, %s offset:%d' % (vr(RD + u * 8, 4), vr(ra), bo))
    cs('ds_read_b128 %s, %s offset:%d' % (vr(RD + u * 8 + 4, 4), vr(ra), bo + 1024))
a.weave(cs, ldp[0], 0.3, 0.95)
astamp(a, 6)
a('s_and_b32 %s, %s, 1' % (sr(S_T0), sr(S_KP2)))
a('s_mul_i32 %s, %s, %d' % (sr(S_T0), sr(S_T0), 2 * 37 * 1024))
a('s_lshr_b32 %s, %s, 1' % (sr(S_T1), sr(S_KP2)))
a('s_lshl_b32 %s, %s, 12' % (sr(S_T1), sr(S_T1)))
a('s_add_u32 %s, %s, %s' % (sr(S_T0), sr(S_T0), sr(S_T1)))
a('s_add_u32 %s, %s, %d' % (sr(S_T0), sr(S_T0), WS_CP))
a('s_cmp_lt_u32 %s, 216' % sr(S_AW))
a('s_cselect_b32 %s, %s, 0x%x' % (sr(S_T0), sr(S_T0), 0x40000000))
toks = []
for u in range(3):
    a('s_mul_i32 %s, %s, 3' % (sr(S_T1), sr(S_DG)))
    a('s_add_u32 %s, %s, %d' % (sr(S_T1), sr(S_T1), u))
    a('s_lshr_b32 %s, %s, 2' % (sr(S_T2), sr(S_T1)))
    a('s_mul_i32 %s, %s, %d' % (sr(S_T2), sr(S_T2), 4 * 37 * 1024))
    a('s_and_b32 %s, %s, 3' % (sr(S_T1), sr(S_T1)))
    a('s_lshl_b32 %s, %s, 10' % (sr(S_T1), sr(S_T1)))
    a('s_add_u32 %s, %s, %s' % (sr(S_T1), sr(S_T1), sr(S_T2)))
    a('s_add_u32 %s, %s, %s' % (sr(S_T1), sr(S_T1), sr(S_T0)))
    a('s_add_u32 %s, %s, %d' % (sr(S_T2), sr(S_T1), 37 * 1024))
    toks.append(a.mem('buffer_store_dwordx4 %s, %s, %s, %s offen sc1' % (vr(RD + u * 8, 4), vr(V_L16), sr(R_WS, 4), sr(S_T1))))
    toks.append(a.mem('buffer_store_dwordx4 %s, %s, %s, %s offen sc1' % (vr(RD + u * 8 + 4, 4), vr(V_L16), sr(R_WS, 4), sr(S_T2))))
a('s_nop 1')
put((CL, 24), (CF, 16), (X, 4), (O, 8), (RD, 24), wa, ra, (COEF, 2))
a.extend(ldp[1])
astamp(a, 7)
cf = Stream()
astamp(cf, 8)
cf.wait(*toks)
astamp(cf, 9)
cf('s_lshl_b32 %s, %s, 6' % (sr(S_T0), sr(S_AW)),
   's_add_u32 %s, %s, %d' % (sr(S_T0), sr(S_T0), WS_CPF), *flag_texts(sr(S_T0), 'sc1'))
a('v_sub_u32 %s, 1, %s' % (vr(sg), vr(sg)))
a('v_lshlrev_b32 %s, 6, %s' % (vr(sg), vr(sg)))
a('v_mul_u32_u24 %s, 272, %s' % (vr(ka), vr(dp)))
a('s_mul_i32 %s, %s, 8704' % (sr(S_SCR), sr(S_WAVE)))
a('v_add3_u32 %s, %s, %s, %s' % (vr(ka), vr(ka), vr(sg), sr(S_SCR)))
kc = Stream()
kv_core(kc, 12, lambda r: KR + 3 + r, lambda r: VR + r, SHK,
        lambda ch, un, reg: kc('ds_write_b128 %s, %s offset:%d' % (vr(ka), vr(reg, 4), ch * 128 + un * 16)),
        touch=lambda tp: kc.touch(vr(KR + 3 + 2 * tp, 6), vr(VR + 2 * tp, 6)) if tp % 3 == 0 else None)
cv = Conv()
conv_setup_k(cf, cv)
a.weave(kc, cf, 0.0, 0.5)
astamp(a, 10)
put((KR, 27), (VR, 24))
RD = V.get(32)
ra, ga = V.get(), V.get()
a('v_lshlrev_b32 %s, 4, %s' % (vr(ra), vr(V_Q)))
a('v_add3_u32 %s, %s, %s, %s' % (vr(ra), vr(ra), vr(V_L16), sr(S_SCR)))
for i in range(8):
    a('ds_read_b128 %s, %s offset:%d' % (vr(RD + 4 * i, 4), vr(ra), 1088 * i))
a('v_lshrrev_b32 %s, 3, %s' % (vr(ga), vr(V_LANE)))
a('v_mul_u32_u24 %s, %d, %s' % (vr(ga), KVT_STR - 128, vr(ga)))
a('v_add_u32 %s, %s, %s' % (vr(ga), vr(ga), vr(V_L16)))
a('s_mul_i32 %s, %s, %d' % (sr(S_T0), sr(S_CGK), 64 * KVT_STR))
a('s_sub_u32 %s, 43, %s' % (sr(S_T1), sr(S_KC_)))
a('s_lshl_b32 %s, %s, 7' % (sr(S_T1), sr(S_T1)))
a('s_add_u32 %s, %s, %s' % (sr(S_T0), sr(S_T0), sr(S_T1)))
a('s_cmp_lt_u32 %s, 132' % sr(S_AW2))
a('s_cselect_b32 %s, %s, 0x%x' % (sr(S_T2), sr(S_T0), 0x40000000))
for i in range(8):
    a('s_add_u32 %s, %s, %d' % (sr(S_T1), sr(S_T2), WS_KVT + 8 * i * KVT_STR),
      'buffer_store_dwordx4 %s, %s, %s, %s offen sc1' % (vr(RD + 4 * i, 4), vr(ga), sr(R_WS, 4), sr(S_T1)))
a('s_nop 1')
if OPT['stamps']:
    a('s_memtime %s' % sr(S_M2, 2), 's_waitcnt lgkmcnt(0)', 'v_writelane_b32 %s, %s, 1' % (vr(V_STAMP), sr(S_M2)))
keep_cv = cv
a('s_branch L_auxconv3')
a.fence()
a.label('L_auxconv2')
V.free = set(range(NCOMMON, 256))
V.locked = set()
sv = OPT['stamps']
OPT['stamps'] = 0
OPT['_sv'] = sv
cv = Conv()
a('s_barrier')
conv_setup_k(a, cv)
assert (cv.SD, cv.HD) == (keep_cv.SD, keep_cv.HD)
a.label('L_auxconv3')
a('s_barrier')
conv_u_prep(a, cv)
put(*conv_addr(a, cv))
conv_body(a, cv, pre_issued=False)
a.wait(cv.stk)
a('s_barrier')
conv_final(a, cv)
astamp(a, 13)
OPT['stamps'] = sv
if OPT['stamps']:
    a('s_memtime %s' % sr(S_M2, 2), 's_waitcnt lgkmcnt(0)', 's_cmp_eq_u32 %s, %s' % (sr(S_PAIR), sr(S_L)),
      's_cselect_b32 m0, 2, 3', 's_nop 3', 'v_writelane_b32 %s, %s, m0' % (vr(V_STAMP), sr(S_M2)))
a('s_add_u32 %s, %s, %d' % (sr(S_PAIR), sr(S_PAIR), NAUX))
a('s_cmp_lt_u32 %s, 288' % sr(S_PAIR))
a('s_cbranch_scc1 L_auxconv2')
a('s_branch L_fin')

a.fence()
a.extend(tail)

a.label('L_fin')
if OPT['stamps']:
    a('s_waitcnt vmcnt(0) lgkmcnt(0)')
    a('%s %s' % ('s_memtime' if OPT['cyc'] else 's_memrealtime', sr(S_M2, 2)))
    a('s_waitcnt lgkmcnt(0)')
    a('v_writelane_b32 %s, %s, 63' % (vr(V_STAMP), sr(S_M2)))
    a('v_writelane_b32 %s, %s, 62' % (vr(V_STAMP), sr(S_FAST)))
    a('s_lshl_b32 %s, %s, 10' % (sr(S_T0), sr(S_L)))
    a('s_add_u32 %s, %s, %d' % (sr(S_T0), sr(S_T0), WS_DBG))
    a('v_lshlrev_b32 %s, 2, v0' % vr(V_DUMMY))
    a('buffer_store_dword %s, %s, %s, %s offen' % (vr(V_STAMP), vr(V_DUMMY), sr(R_WS, 4), sr(S_T0)))
if OPT['enc2']:
    n1_, n2_ = OPT['enc2'].split(':')
    a('s_lshl2_add_u32 %s, %s, %s' % (sr(S_T0), sr(S_L), sr(S_WAVE)))
    a('s_cmp_lg_u32 %s, %d' % (sr(S_T0), OPT['encwg'] * 4))
    a('s_cbranch_scc1 L_end')
    a('v_readlane_b32 s12, %s, %d' % (vr(V_STAMP), STAMPS.index(n1_)))
    a('v_readlane_b32 s13, %s, %d' % (vr(V_STAMP), 63 if n2_ == 'end' else STAMPS.index(n2_)))
    a('s_memrealtime s[16:17]')
    a('s_sub_u32 s13, s13, s12')
    a('s_lshr_b32 s13, s13, 2')
    a('s_waitcnt lgkmcnt(0)')
    a.label('L_hold')
    a('s_memrealtime s[14:15]')
    a('s_waitcnt lgkmcnt(0)')
    a('s_sub_u32 s14, s14, s16')
    a('s_cmp_lt_u32 s14, s13')
    a('s_cbranch_scc1 L_hold')
if OPT['enc']:
    idx_ = 63 if OPT['enc'] == 'end' else STAMPS.index(OPT['enc'])
    a('s_lshl2_add_u32 %s, %s, %s' % (sr(S_T0), sr(S_L), sr(S_WAVE)))
    a('s_cmp_lg_u32 %s, %d' % (sr(S_T0), OPT['encwg'] * 4))
    a('s_cbranch_scc1 L_end')
    a('v_readlane_b32 s12, %s, %d' % (vr(V_STAMP), idx_))
    a.label('L_hold')
    a('s_memrealtime s[14:15]')
    a('s_waitcnt lgkmcnt(0)')
    a('s_sub_u32 s14, s14, s12')
    a('s_cmp_lt_u32 s14, 5000')
    a('s_cbranch_scc1 L_hold')
a.label('L_end')
a('s_endpgm')

hdr = open(os.path.join(os.path.dirname(os.path.abspath(__file__)), '..', 'cdna_kernels', NAME + '.s.ref')).read().split('\n')
head = []
for ln in hdr:
    if ln.startswith('; @launch'):
        break
    head.append(ln)
lines = head + ['; @launch grid=(256,1,1) block=(256,1,1) lds=%d' % LDS_SIZE,
                '.amdgcn_target "amdgcn-amd-amdhsa--gfx950"', '.text', '.globl ' + KN, '.p2align 8',
                '.type %s,@function' % KN, KN + ':']
body_ = finalize(top)
if not OPT['nto']:
    body_ = [l_.replace(' nt', '') if 's[48:51]' not in l_ else l_ for l_ in body_]
lines += body_
lines += ['.section .rodata,"a"', '.p2align 6', '.amdhsa_kernel ' + KN,
          '  .amdhsa_next_free_vgpr 512', '  .amdhsa_next_free_sgpr 102', '  .amdhsa_accum_offset 256',
          '  .amdhsa_group_segment_fixed_size 0', '  .amdhsa_kernarg_size 144', '  .amdhsa_user_sgpr_count 2',
          '  .amdhsa_user_sgpr_kernarg_segment_ptr 1', '  .amdhsa_system_sgpr_workgroup_id_x 1', '.end_amdhsa_kernel']
open(sys.argv[1], 'w').write('\n'.join(lines) + '\n')
if OPT['stamps']:
    open(sys.argv[1] + '.stamps', 'w').write('\n'.join(STAMPS) + '\n')
print('vgpr high water', V.hw, 'lines', len(lines))
```

```python
import re

TRANS = ('v_exp_f32', 'v_log_f32', 'v_rcp_f32', 'v_rsq_f32', 'v_sqrt_f32', 'v_sin_f32', 'v_cos_f32')


def regs_of(op):
    op = op.strip()
    op = op.lstrip('-')
    if op.startswith('abs(') or op.startswith('|'):
        op = op.replace('abs(', '').replace(')', '').replace('|', '')
    m = re.fullmatch(r'([vas])(\d+)', op)
    if m:
        return [(m.group(1), int(m.group(2)))]
    m = re.fullmatch(r'([vas])\[(\d+):(\d+)\]', op)
    if m:
        return [(m.group(1), i) for i in range(int(m.group(2)), int(m.group(3)) + 1)]
    if op == 'vcc':
        return [('s', 106), ('s', 107)]
    if op == 'vcc_lo':
        return [('s', 106)]
    if op == 'vcc_hi':
        return [('s', 107)]
    if op == 'exec':
        return [('s', 126), ('s', 127)]
    if op == 'm0':
        return [('s', 124)]
    return []


class Ins:
    __slots__ = ('text', 'mn', 'ops', 'mods', 'dst', 'src', 'kind', 'tok', 'srcc', 'srcab', 'cmt')

    def __init__(self, text, tok=None):
        self.text = text
        self.tok = tok
        t = text.split(';')[0].strip()
        parts = t.split(None, 1)
        self.mn = parts[0]
        rest = parts[1] if len(parts) > 1 else ''
        ops, cur, depth = [], '', 0
        for ch in rest:
            if ch in '[(':
                depth += 1
            if ch in '])':
                depth -= 1
            if ch == ',' and depth == 0:
                ops.append(cur.strip())
                cur = ''
            else:
                cur += ch
        if cur.strip():
            ops.append(cur.strip())
        mods = ''
        if ops:
            last = ops[-1].split(None, 1)
            ops[-1] = last[0]
            if len(last) > 1:
                mods = last[1]
        self.ops = ops
        self.mods = mods
        self.srcc = []
        self.srcab = []
        self.classify()

    def classify(self):
        mn, ops = self.mn, self.ops
        R = regs_of
        dst, src = [], []
        if mn.endswith(':') or mn.startswith('.'):
            kind = 'label'
        elif mn.startswith('v_mfma'):
            kind = 'mfma'
            dst = R(ops[0])
            self.srcab = R(ops[1]) + R(ops[2])
            self.srcc = R(ops[3])
            src = self.srcab + self.srcc
        elif mn.startswith('v_'):
            kind = 'valu'
            base = mn.replace('_e32', '').replace('_e64', '').replace('_dpp', '').replace('_sdwa', '')
            if base.startswith('v_permlane') and 'swap' in base:
                dst = R(ops[0]) + R(ops[1])
                src = R(ops[0]) + R(ops[1])
            elif base in ('v_add_co_u32', 'v_sub_co_u32', 'v_addc_co_u32', 'v_subb_co_u32', 'v_subrev_co_u32',
                          'v_mad_u64_u32', 'v_div_scale_f32'):
                dst = R(ops[0]) + R(ops[1])
                for o in ops[2:]:
                    src += R(o)
            elif base == 'v_nop':
                pass
            else:
                dst = R(ops[0])
                for o in ops[1:]:
                    src += R(o)
                if base in ('v_fmac_f32', 'v_dot2c_f32_bf16', 'v_pk_fmac_f16', 'v_writelane_b32') or \
                        ('_dpp' in mn) or ('_sdwa' in mn):
                    src += R(ops[0])
                if base in ('v_div_fmas_f32',):
                    src += R('vcc')
        elif mn.startswith('ds_'):
            kind = 'ds'
            if mn.startswith('ds_read') or mn.startswith('ds_bpermute') or mn.startswith('ds_permute') or \
                    mn.startswith('ds_swizzle'):
                dst = R(ops[0])
                for o in ops[1:]:
                    src += R(o)
                if 'd16' in mn:
                    src += R(ops[0])
            else:
                for o in ops:
                    src += R(o)
        elif mn.startswith('buffer_') or mn.startswith('global_'):
            kind = 'vmem'
            lds = re.search(r'\blds\b', self.mods) is not None or '_lds_' in mn
            if mn in ('buffer_inv', 'buffer_wbl2'):
                pass
            elif lds:
                for o in ops:
                    src += R(o)
                src += R('m0')
            elif '_load' in mn:
                dst = R(ops[0]) if ';junk' not in self.text else []
                for o in ops[1:]:
                    src += R(o)
                if 'd16' in mn:
                    src += R(ops[0])
            elif '_atomic' in mn:
                for o in ops:
                    src += R(o)
                if 'sc0' in self.mods:
                    dst = R(ops[0])
            else:
                for o in ops:
                    src += R(o)
        elif mn.startswith('s_load') or mn.startswith('s_memtime') or mn.startswith('s_memrealtime') or \
                mn.startswith('s_buffer_load'):
            kind = 'smem'
            dst = R(ops[0])
            for o in ops[1:]:
                src += R(o)
        elif mn.startswith('s_'):
            kind = 'salu'
            if mn in ('s_waitcnt', 's_nop', 's_barrier', 's_endpgm', 's_sleep', 's_setprio', 's_branch') or \
                    mn.startswith('s_cbranch'):
                if mn.startswith('s_cbranch_vcc'):
                    src = R('vcc')
            elif mn.startswith('s_cmp') or mn.startswith('s_bitcmp'):
                for o in ops:
                    src += R(o)
            else:
                dst = R(ops[0])
                for o in ops[1:]:
                    src += R(o)
                if 'saveexec' in mn:
                    dst += R('exec')
                    src += R('exec')
                if mn in ('s_addk_i32', 's_mulk_i32'):
                    src += R(ops[0])
        else:
            raise ValueError('unknown instruction: ' + self.text)
        self.kind, self.dst, self.src = kind, dst, src


class Tok:
    __slots__ = ('seq', 'cls')

    def __init__(self):
        self.seq = None
        self.cls = None


class Stream:
    def __init__(self):
        self.groups = []

    def __call__(self, *texts, tok=None):
        g = []
        for i, t in enumerate(texts):
            g.append(Ins(t, tok if i == len(texts) - 1 else None))
        self.groups.append(g)
        return self

    def mem(self, *texts):
        t = Tok()
        g = [Ins(x) for x in texts]
        for i in reversed(g):
            if i.kind in ('vmem', 'ds'):
                i.tok = t
                break
        else:
            raise ValueError('no memory op in group')
        self.groups.append(g)
        return t

    def touch(self, *ops):
        regs = []
        for o in ops:
            regs += regs_of(o)
        self.groups.append([('touch', regs)])

    def join(self, other):
        g = []
        for x in other.groups:
            g += x
        self.groups.append(g)

    def wait(self, *toks):
        self.groups.append([('wait', toks)])

    def label(self, name):
        self.groups.append([Ins(name + ':')])

    def fence(self):
        self.groups.append([('fence',)])

    def comment(self, s):
        self.groups.append([('cmt', s)])

    def extend(self, other):
        self.groups.extend(other.groups)

    def weave(self, main, side, start=0.0, end=1.0):
        n, m = len(main.groups), len(side.groups)
        if m == 0:
            self.extend(main)
            return
        lo, hi = int(n * start), int(n * end)
        span = max(hi - lo, 1)
        k = 0
        for i, g in enumerate(main.groups):
            while k < m and i >= lo and (i - lo) * m >= k * span:
                self.groups.append(side.groups[k])
                k += 1
            self.groups.append(g)
        while k < m:
            self.groups.append(side.groups[k])
            k += 1


def weave(main, side, start=0.0, end=1.0):
    o = Stream()
    o.weave(main, side, start, end)
    return o


def mfma_passes(mn):
    if '32x32' in mn:
        return 8
    return 4


def finalize(stream):
    out = []
    hist = []
    pos = 0
    vm_seq = 0
    lg_seq = 0
    vm_done = 0
    lg_done = 0
    smem_pending = False
    pend_vm = {}
    pend_lg = {}

    def emit(ins):
        nonlocal pos
        out.append(ins)
        if ins.kind == 'label':
            return
        if ins.mn == 's_nop':
            pos += int(ins.ops[0], 0) + 1
        else:
            hist.append((ins, pos))
            pos += 1
        while hist and pos - hist[0][1] > 24:
            hist.pop(0)

    def do_wait(vm=None, lg=None):
        nonlocal vm_done, lg_done, smem_pending
        parts = []
        if vm is not None and vm > vm_done:
            n = min(vm_seq - vm, 63)
            parts.append('vmcnt(%d)' % n)
            vm_done = vm_seq - n
        if lg is not None:
            if lg == 'smem' or smem_pending:
                if smem_pending or lg_done < lg_seq:
                    parts.append('lgkmcnt(0)')
                    lg_done = lg_seq
                    smem_pending = False
                    for r in [r for r, s in pend_lg.items() if s == 'smem']:
                        del pend_lg[r]
            elif lg > lg_done:
                n = min(lg_seq - lg, 15)
                parts.append('lgkmcnt(%d)' % n)
                lg_done = lg_seq - n
        if parts:
            emit(Ins('s_waitcnt ' + ' '.join(parts)))

    def need_nops(ins):
        need = 0
        srcs = set(ins.src)
        dsts = set(ins.dst)
        is_dpp = '_dpp' in ins.mn
        is_perm = ins.mn.startswith('v_permlane')
        is_rl = ins.mn.startswith('v_readlane') or ins.mn.startswith('v_readfirstlane')
        is_lds_dma = ins.kind == 'vmem' and ('s', 124) in srcs
        for p, ppos in hist:
            dist = pos - ppos - 1
            req = 0
            pd = set(p.dst)
            if p.kind == 'valu':
                vd = {r for r in pd if r[0] in 'va'}
                sd = {r for r in pd if r[0] == 's'}
                isdot = p.mn.startswith('v_dot')
                if isdot:
                    if vd & (srcs | dsts):
                        same = ins.mn.startswith(p.mn.replace('_e32', ''))
                        if same and p.mn.startswith('v_dot2c') and not (vd & set(sum([regs_of(o) for o in ins.ops[1:]], []))):
                            req = max(req, 0)
                        elif same and not p.mn.startswith('v_dot2c') and \
                                not (vd & set(regs_of(ins.ops[1]) + regs_of(ins.ops[2]))):
                            req = max(req, 0)
                        else:
                            req = max(req, 3)
                if ins.kind == 'mfma' and vd & srcs:
                    req = max(req, 2)
                if ins.kind == 'mfma' and p.mn.startswith('v_pk_') and re.search(r'op_sel:\[[01,]*1', p.mods):
                    req = max(req, 1)
                if ins.kind == 'valu':
                    if is_dpp and vd & srcs:
                        req = max(req, 2)
                    if is_perm and vd & srcs:
                        req = max(req, 2)
                    if is_rl and vd & srcs:
                        req = max(req, 1)
                    if sd & srcs:
                        req = max(req, 4 if (ins.mn.startswith('v_readlane') or ins.mn.startswith('v_writelane') or
                                             ins.mn.startswith('v_div_fmas')) else 2)
                    if p.mn.replace('_e32', '').replace('_e64', '') in TRANS and vd & srcs:
                        req = max(req, 1)
                    if '_sdwa' in p.mn and vd & (srcs | dsts):
                        req = max(req, 1)
                    if ('s', 126) in sd and is_dpp:
                        req = max(req, 5)
                if ins.kind == 'vmem' and sd & srcs:
                    req = max(req, 5)
                if ins.kind == 'mfma' and ('s', 126) in sd:
                    req = max(req, 4)
            elif p.kind == 'mfma':
                ps = mfma_passes(p.mn)
                big = {4: 8, 8: 12}[ps]
                if ins.kind == 'mfma':
                    if pd & set(ins.srcab):
                        req = max(req, big)
                    if pd & set(ins.srcc):
                        if p.dst == ins.srcc and mfma_passes(ins.mn) == ps:
                            req = max(req, 0)
                        else:
                            req = max(req, big - 2)
                    if pd & dsts and not (p.dst == ins.srcc):
                        req = max(req, big)
                else:
                    if pd & (srcs | dsts):
                        req = max(req, big)
                    if ins.kind == 'valu' and set(p.srcc) & dsts:
                        req = max(req, {4: 3, 8: 7}[ps])
                    if ins.kind in ('ds', 'vmem') and set(p.srcc) & dsts:
                        req = max(req, {4: 3, 8: 7}[ps])
            elif p.kind == 'salu':
                if ('s', 124) in pd and is_lds_dma:
                    req = max(req, 1)
            elif p.kind in ('vmem', 'ds'):
                wide = ('store_dwordx4' in p.mn or 'store_dwordx3' in p.mn or 'write_b128' in p.mn or 'write_b96' in p.mn)
                if wide:
                    data = set(regs_of(p.ops[0])) if p.kind == 'vmem' and p.mn.startswith('buffer') else set(regs_of(p.ops[1]))
                    if data & dsts:
                        req = max(req, 2 if ins.kind in ('valu', 'mfma') else 1)
            need = max(need, req - dist)
        return need

    written = {('v', 0)}
    for g in stream.groups:
        for it in g:
            if not isinstance(it, tuple) and it.kind != 'label':
                for r in it.src:
                    if r[0] in 'va' and r not in written and r not in it.dst:
                        print('WARNING use before def:', r, it.text)
                        written.add(r)
                written.update(it.dst)
            if isinstance(it, tuple):
                if it[0] == 'cmt':
                    out.append('; ' + it[1])
                elif it[0] == 'wait':
                    vm = max([t.seq for t in it[1] if t.cls == 'vm'], default=None)
                    lg = max([t.seq for t in it[1] if t.cls == 'lg'], default=None)
                    for t in it[1]:
                        assert t.seq is not None, 'wait on token not yet emitted'
                    do_wait(vm, lg)
                elif it[0] == 'touch':
                    vm = max([pend_vm[r] for r in it[1] if r in pend_vm], default=None)
                    lgs = [pend_lg[r] for r in it[1] if r in pend_lg]
                    lg = None
                    if lgs:
                        lg = 'smem' if 'smem' in lgs else max(lgs)
                    do_wait(vm, lg)
                elif it[0] == 'fence':
                    emit(Ins('s_waitcnt vmcnt(0) lgkmcnt(0)'))
                    vm_done, lg_done, smem_pending = vm_seq, lg_seq, False
                    pend_vm.clear()
                    pend_lg.clear()
                    emit(Ins('s_nop 7'))
                    emit(Ins('s_nop 3'))
                continue
            ins = it
            if ins.kind == 'label':
                out.append(ins)
                continue
            if ins.mn == 's_waitcnt':
                m = re.search(r'vmcnt\((\d+)\)', ins.text)
                if m:
                    vm_done = max(vm_done, vm_seq - int(m.group(1)))
                m = re.search(r'lgkmcnt\((\d+)\)', ins.text)
                if m:
                    if int(m.group(1)) == 0:
                        smem_pending = False
                        lg_done = lg_seq
                        for r in [r for r, s in pend_lg.items() if s == 'smem']:
                            del pend_lg[r]
                    elif not smem_pending:
                        lg_done = max(lg_done, lg_seq - int(m.group(1)))
                emit(ins)
                continue
            touched = set(ins.src) | set(ins.dst)
            vm = max([pend_vm[r] for r in touched if r in pend_vm], default=None)
            lgs = [pend_lg[r] for r in touched if r in pend_lg]
            lg = None
            if lgs:
                lg = 'smem' if 'smem' in lgs else max(lgs)
            do_wait(vm, lg)
            n = need_nops(ins)
            while n > 0:
                k = min(n, 16)
                emit(Ins('s_nop %d' % (k - 1)))
                n -= k
            emit(ins)
            for r in touched:
                if r in pend_vm and pend_vm[r] <= vm_done:
                    del pend_vm[r]
                if r in pend_lg and pend_lg[r] != 'smem' and pend_lg[r] <= lg_done:
                    del pend_lg[r]
            if ins.kind == 'vmem':
                vm_seq += 1
                for r in ins.dst:
                    pend_vm[r] = vm_seq
                if ins.tok is not None:
                    ins.tok.seq, ins.tok.cls = vm_seq, 'vm'
            elif ins.kind == 'ds':
                lg_seq += 1
                for r in ins.dst:
                    pend_lg[r] = lg_seq
                if ins.tok is not None:
                    ins.tok.seq, ins.tok.cls = lg_seq, 'lg'
            elif ins.kind == 'smem':
                smem_pending = True
                for r in ins.dst:
                    pend_lg[r] = 'smem'
    lines = []
    for o in out:
        if isinstance(o, str):
            lines.append('  ' + o)
        elif o.kind == 'label':
            lines.append(o.text)
        else:
            lines.append('  ' + o.text)
    return lines


class Alloc:
    def __init__(self, kind, lo, hi):
        self.kind = kind
        self.free = set(range(lo, hi))
        self.hw = lo
        self.locked = set()

    def home(self, n, align=None):
        b = self.get(n, align)
        self.put(b, n)
        self.locked |= set(range(b, b + n))
        return b

    def claim(self, b, n):
        for r in range(b, b + n):
            assert r in self.free, 'home register %d still in use' % r
            self.free.discard(r)
            self.locked.discard(r)

    def borrow(self, *homes):
        al = self

        class C:
            def __enter__(s_):
                s_.r = set()
                for b, n in homes:
                    s_.r |= set(range(b, b + n)) & al.locked
                al.locked -= s_.r

            def __exit__(s_, *a):
                al.locked |= s_.r
        return C()

    def get(self, n=1, align=None, top=False):
        if align is None:
            align = 1 if n == 1 else (2 if n in (2, 3) else 4)
        cands = sorted(self.free, reverse=top)
        for c in cands:
            if c % align:
                continue
            if all((c + i) in self.free and (c + i) not in self.locked for i in range(n)):
                for i in range(n):
                    self.free.discard(c + i)
                self.hw = max(self.hw, c + n)
                return c
        raise RuntimeError('out of %s registers (need %d)' % (self.kind, n))

    def put(self, base, n=1):
        for i in range(n):
            assert (base + i) not in self.free
            self.free.add(base + i)


def vr(b, n=1):
    return 'v%d' % b if n == 1 else 'v[%d:%d]' % (b, b + n - 1)


def ar(b, n=1):
    return 'a%d' % b if n == 1 else 'a[%d:%d]' % (b, b + n - 1)


def sr(b, n=1):
    return 's%d' % b if n == 1 else 's[%d:%d]' % (b, b + n - 1)


class Sched:
    LAT_DS = 140
    LAT_VM = 900
    VM_GAP = 60

    def __init__(self, out):
        self.out = out
        self.t = 0
        self.pipe = 0
        self.valu = 0
        self.lastvm = -1000
        self.dsfree = 0
        self.ready = {}
        self.tokready = {}
        self.sides = []
        self.future = set()

    def add(self, stream):
        q = list(stream.groups)
        self.sides.append(q)
        return q

    def _start(self, g, t):
        st = t
        for it in g:
            if isinstance(it, tuple):
                if it[0] == 'touch':
                    for r in it[1]:
                        st = max(st, self.ready.get(r, 0))
                elif it[0] == 'wait':
                    for tk in it[1]:
                        st = max(st, self.tokready.get(id(tk), 0))
                        if id(tk) in self.future:
                            st += 10 ** 6
                continue
            if it.kind == 'label':
                continue
            for r in list(it.src) + list(it.dst):
                if it.kind == 'mfma' and r in it.srcc and it.dst == it.srcc:
                    continue
                st = max(st, self.ready.get(r, 0))
            if it.kind == 'vmem':
                st = max(st, self.lastvm + self.VM_GAP)
            if it.kind == 'ds':
                st = max(st, self.dsfree)
        first = next((it for it in g if not isinstance(it, tuple) and it.kind != 'label'), None)
        if first is not None:
            if first.kind == 'mfma':
                st = max(st, self.pipe)
            elif first.kind == 'valu':
                st = max(st, self.valu)
        return st

    @staticmethod
    def _len(g):
        return 4 * sum(1 for it in g if isinstance(it, tuple) or it.kind != 'label')

    def _emit(self, g):
        t = self.t
        for it in g:
            if isinstance(it, tuple):
                if it[0] in ('touch', 'wait'):
                    t = max(t, self._start([it], t)) + 4
                continue
            if it.kind == 'label':
                continue
            t = self._start([it], t)
            if it.tok is not None:
                self.future.discard(id(it.tok))
            if it.kind == 'mfma':
                self.pipe = t + 16
                self.valu = t + 8
                for r in it.dst:
                    self.ready[r] = t + 40
            elif it.kind == 'valu':
                if it.mn.startswith('v_pk') or it.mn.startswith('v_dot'):
                    t = max(t, self.pipe + 12)
                self.valu = t + 4
                for r in it.dst:
                    self.ready[r] = t + 4
            elif it.kind == 'ds':
                for r in it.dst:
                    self.ready[r] = t + self.LAT_DS
                if it.tok is not None:
                    self.tokready[id(it.tok)] = t + self.LAT_DS
                self.dsfree = t + (56 if 'write_b128' in it.mn else 16)
            elif it.kind == 'vmem':
                self.lastvm = t
                for r in it.dst:
                    self.ready[r] = t + self.LAT_VM
                if it.tok is not None:
                    self.tokready[id(it.tok)] = t + self.LAT_VM
                t += 8
            elif it.mn == 's_nop':
                t += 4 * int(it.ops[0], 0)
            else:
                for r in it.dst:
                    self.ready[r] = t + 4
            t += 4
        self.t = t
        self.out.groups.append(g)

    def _try_side(self, limit):
        hasvm = lambda q: any((not isinstance(it, tuple)) and it.kind == 'vmem' for it in q[0])
        live = [q for q in self.sides if q]
        order = [q for q in reversed(live) if hasvm(q)][:1] + live
        for q in order:
            g = q[0]
            st = self._start(g, self.t)
            ln = self._len(g)
            if st + 4 <= limit and st <= self.t + 4:
                q.pop(0)
                self._emit(g)
                return True
        return False

    def run(self, backbone, trust_vm=True):
        for g in backbone.groups:
            if trust_vm:
                for it in g:
                    if not isinstance(it, tuple) and it.kind == 'mfma':
                        for r in it.srcab:
                            if self.ready.get(r, 0) > self.t + self.LAT_DS:
                                self.ready[r] = self.t
                    if isinstance(it, tuple) and it[0] == 'touch':
                        for r in it[1]:
                            if self.ready.get(r, 0) > self.t + self.LAT_DS:
                                self.ready[r] = self.t
                    if isinstance(it, tuple) and it[0] == 'wait':
                        for tk in it[1]:
                            if self.tokready.get(id(tk), 0) > self.t + self.LAT_DS:
                                self.tokready[id(tk)] = self.t
            while True:
                st = self._start(g, self.t)
                if st <= self.t or not self._try_side(st):
                    break
            self._emit(g)

    def flush(self, q=None):
        qs = [q] if q is not None else self.sides
        while any(qs):
            best = min((x for x in qs if x), key=lambda x: self._start(x[0], self.t))
            self._emit(best.pop(0))

    def expect(self, *streams):
        for st in streams:
            for g in st.groups:
                for it in g:
                    if not isinstance(it, tuple) and it.tok is not None:
                        self.future.add(id(it.tok))

    def pending(self):
        return sum(len(q) for q in self.sides)
```

```python
import sys, os
sys.path.insert(0, os.path.dirname(os.path.abspath(__file__)))
from asmlib import *

NAME = 'interleave_layers__ssm_conv_s5__ssm_conv_h3__prompt'
KN = NAME + '_kernel'

OPT = dict(ntx=0, nto=0, enc2='', enc='', encwg=100, opol=0, tpos=1, tpol=0, stamps=0, slow=0, hbuf2=0, crot=0, pf=3, slp=16, slp2=6, ncp0=0, ncp=2, ncp2=7, per=50, x_nod1=0, x_s0late=0, x_nomfma=0, x_noload=0, fine=0, cyc=0)
for a_ in sys.argv[2:]:
    k_, v_ = a_.split('=')
    OPT[k_] = int(v_) if v_.lstrip('-').isdigit() else v_

MT = 6
TPOL = ('sc1', 'nt', 'sc1 nt')[OPT['tpol']]
NRB = 22
NMAIN = 198
NAUX = 58
WS_KVF = 0x1000
WS_CPF = 0xC000
WS_HF = 0x4000
WS_WF = 0x4000 + 2 * 22 * 256
WS_HFB = 0x4000 + 3 * 22 * 256
WS_WFB = 0x4000 + 4 * 22 * 256
WS_RBG = 0xC000
WS_E = 0x10000
WS_ST = 0xA0000
ST_SZ = 22 * 24576
WS_KVT = 0x1600000
KVT_STR = 5632
WS_CP = 0x540000
WS_H = 0x6C0000
H_SZ = 22 * 221184 * OPT['hbuf2']
WS_W = 0x1040000
WS_G = 0x12C0000
G_STR = 11264
WS_DBG = 0x2000000
WS_SIZE = 0x10000000
OOB = 0x7FFF0000

BLK = 12288
L_IMG = 0
L_RING = 9 * BLK
L_MISC = L_RING + 49152
LDS_SIZE = 163840
L_TAB = L_MISC
L_FX = L_MISC + 768
L_HALO = L_MISC + 3072
L_KRAW = 0
L_KVO = 28672
L_KC = L_RING
KC_CH = 16656
L_UC = L_IMG + 16
UC_CH = 9280
L_CO = 20480
CO_W = 10944
PART_ROW = 272
PART_W = 16 * PART_ROW
SPIN = 300000

P_X, P_LRE, P_LIM, P_BRE, P_BIM, P_CRE, P_CIM, P_LDT = [8 + 2 * i for i in range(8)]
P_DSK, P_Q, P_K, P_V, P_SHK, P_SSK, P_SSD, P_OUT = [24 + 2 * i for i in range(8)]
P_DBG, P_WS = 40, 42
R_WS, R_X, R_BRE, R_BIM, R_K, R_V, R_OUT, R_SK = [44 + 4 * i for i in range(8)]
S_RB, S_CG, S_FAST, S_WAVE, S_TAG, S_L, S_PAIR, S_SPIN = range(76, 84)
S_KP = 84
S_T0, S_T1, S_T2, S_T3 = 93, 94, 95, 96
S_ROLE = 97
S_M1, S_M2 = 98, 100
S_A, S_B, S_C = 3, 4, 5
S_PC = 6
S_TT = 8
S_TU = 17
S_MSEL = 26
S_MACT = 40
S_W1K = 97
S_RINGW = 98
S_PT = 99
S_XCC = 20
S_CPB = 21
S_HB = 22

V = Alloc('v', 1, 256)
top = Stream()
tail = Stream()
lblc = [0]
STAMPS = []


def newlabel(p):
    lblc[0] += 1
    return 'L_%s_%d' % (p, lblc[0])


def put(*items):
    for it in items:
        if isinstance(it, tuple):
            V.put(*it)
        else:
            V.put(it)


def srd(a, r, p, size):
    a('s_mov_b64 %s, %s' % (sr(r, 2), sr(p, 2)))
    a('s_mov_b32 %s, 0x%x' % (sr(r + 2), size))
    a('s_mov_b32 %s, 0x20000' % sr(r + 3))


def cmul(a, d, x, y):
    a('v_pk_mul_f32 %s, %s, %s op_sel:[0,0] op_sel_hi:[1,0]' % (vr(d, 2), vr(x, 2), vr(y, 2)))
    a('v_pk_fma_f32 %s, %s, %s, %s op_sel:[1,1,0] op_sel_hi:[0,1,1] neg_lo:[1,0,0]' % (vr(d, 2), vr(x, 2), vr(y, 2), vr(d, 2)))


def cmul_plain(a, d, x, y):
    a('v_mul_f32 %s, %s, %s' % (vr(d), vr(x), vr(y)))
    a('v_mul_f32 %s, %s, %s' % (vr(d + 1), vr(x + 1), vr(y)))
    a('v_fma_f32 %s, -%s, %s, %s' % (vr(d), vr(x + 1), vr(y + 1), vr(d)))
    a('v_fmac_f32 %s, %s, %s' % (vr(d + 1), vr(x), vr(y + 1)))


def cfma(a, d, x, y, c):
    a('v_pk_fma_f32 %s, %s, %s, %s op_sel:[0,0,0] op_sel_hi:[1,0,1]' % (vr(d, 2), vr(x, 2), vr(y, 2), vr(c, 2)))
    a('v_pk_fma_f32 %s, %s, %s, %s op_sel:[1,1,0] op_sel_hi:[0,1,1] neg_lo:[1,0,0]' % (vr(d, 2), vr(x, 2), vr(y, 2), vr(d, 2)))


def stamp(a, name):
    if not OPT['stamps']:
        return
    i = len(STAMPS)
    a('%s %s' % ('s_memtime' if OPT['cyc'] else 's_memrealtime', sr(S_M2, 2)), 's_waitcnt lgkmcnt(0)', 'v_writelane_b32 %s, %s, %d' % (vr(V_STAMP), sr(S_M2), i))
    STAMPS.append(name)


def astamp(a, i):
    if OPT['stamps'] or OPT.get('_sv'):
        a('s_memtime %s' % sr(S_M2, 2), 's_waitcnt lgkmcnt(0)', 'v_writelane_b32 %s, %s, %d' % (vr(V_STAMP), sr(S_M2), i))


def poll(a, loads, checks, pre_issued=False, sleep=0):
    p = Stream()
    L = newlabel('poll')
    Lc = newlabel('pollc')
    simple = len(checks) == 1 and checks[0][1] is None
    acc = None if simple else V.get(2, 1)
    p('s_mov_b32 %s, %d' % (sr(S_SPIN), SPIN))
    if pre_issued:
        regs = []
        for c in checks:
            regs += [vr(c[0])] + ([vr(c[1])] if c[1] is not None else [])
        p.touch(*regs)
        p.label(Lc)
    else:
        p.label(L)
        if sleep:
            p('s_sleep %d' % sleep)
        for t in loads:
            p(t)
        p('s_waitcnt vmcnt(0)')
    if len(checks) == 1 and checks[0][1] is None:
        p('v_cmp_ne_u32 vcc, %s, %s' % (vr(checks[0][0]), vr(checks[0][2])))
    else:
        first = True
        for (x, y, e) in checks:
            d = acc if first else acc + 1
            if y is None:
                p('v_xor_b32 %s, %s, %s' % (vr(d), vr(x), vr(e)))
            else:
                p('v_bitop3_b32 %s, %s, %s, %s bitop3:0x7e' % (vr(d), vr(x), vr(y), vr(e)))
            if not first:
                p('v_or_b32 %s, %s, %s' % (vr(acc), vr(acc), vr(acc + 1)))
            first = False
        p('v_cmp_ne_u32 vcc, 0, %s' % vr(acc))
    p('s_sub_u32 %s, %s, 1' % (sr(S_SPIN), sr(S_SPIN)))
    p('s_cselect_b64 vcc, 0, vcc')
    p('s_cmp_lg_u64 vcc, 0')
    p('s_cbranch_scc1 %s' % L)
    if pre_issued:
        tail.label(L)
        if sleep:
            tail('s_sleep %d' % sleep)
        for t in loads:
            tail(t)
        tail('s_waitcnt vmcnt(0)')
        tail('s_branch %s' % Lc)
    a.join(p)
    if acc is not None:
        V.put(acc, 2)


def dual(a, texts, touch=()):
    Ls, Lb = newlabel('slow'), newlabel('back')
    p = Stream()
    if touch:
        p.touch(*touch)
    p('s_cmp_eq_u32 %s, 0' % sr(S_FAST), 's_cbranch_scc1 %s' % Ls)
    tk = p.mem(*[t.replace(' {P}', '') for t in texts])
    p.label(Lb)
    a.join(p)
    tail.label(Ls)
    tail('s_nop 1')
    tail(*[t.replace('{P}', 'sc1') for t in texts])
    tail('s_branch %s' % Lb)
    return tk


def flag_texts(soff, pol):
    return ['s_mov_b64 exec, 1',
            'buffer_store_dword %s, %s, %s, %s offen %s' % (vr(V_TAG), vr(V_ZERO), sr(R_WS, 4), soff, pol),
            's_mov_b64 exec, -1']


def lam_loads(a, vp2):
    t = V.get(4)
    a('global_load_ushort %s, %s, %s' % (vr(t), vr(vp2), sr(P_LRE, 2)))
    a('global_load_ushort %s, %s, %s' % (vr(t + 1), vr(vp2), sr(P_LIM, 2)))
    a('global_load_ushort %s, %s, %s' % (vr(t + 2), vr(vp2), sr(P_LDT, 2)))
    return t


def lam_compute(a, t, want_coef, lam=None):
    if lam is None:
        lam = V.get(2)
    u = V.get(4)
    for i in range(3):
        a('v_lshlrev_b32 %s, 16, %s' % (vr(t + i), vr(t + i)))
    a('v_mul_f32 %s, 0x3fb8aa3b, %s' % (vr(t + 2), vr(t + 2)))
    a('v_exp_f32 %s, %s' % (vr(t + 2), vr(t + 2)))
    a('v_cvt_pk_bf16_f32 %s, %s, %s' % (vr(t + 2), vr(t + 2), vr(t + 2)))
    a('v_lshlrev_b32 %s, 16, %s' % (vr(t + 2), vr(t + 2)))
    a('v_mul_f32 %s, %s, %s' % (vr(u), vr(t + 2), vr(t)))
    a('v_mul_f32 %s, %s, %s' % (vr(u + 1), vr(t + 2), vr(t + 1)))
    a('v_mul_f32 %s, 0x3fb8aa3b, %s' % (vr(u), vr(u)))
    a('v_exp_f32 %s, %s' % (vr(u), vr(u)))
    a('v_mul_f32 %s, 0.15915494, %s' % (vr(u + 1), vr(u + 1)))
    a('v_rndne_f32 %s, %s' % (vr(u + 2), vr(u + 1)))
    a('v_sub_f32 %s, %s, %s' % (vr(u + 1), vr(u + 1), vr(u + 2)))
    a('v_cos_f32 %s, %s' % (vr(u + 2), vr(u + 1)))
    a('v_sin_f32 %s, %s' % (vr(u + 3), vr(u + 1)))
    a('v_mul_f32 %s, %s, %s' % (vr(lam), vr(u), vr(u + 2)))
    a('v_mul_f32 %s, %s, %s' % (vr(lam + 1), vr(u), vr(u + 3)))
    coef = None
    if want_coef:
        coef = V.get(2)
        a('v_add_f32 %s, -1.0, %s' % (vr(u), vr(lam)))
        a('v_mov_b32 %s, %s' % (vr(u + 1), vr(lam + 1)))
        a('v_mul_f32 %s, %s, %s' % (vr(u + 2), vr(t), vr(t)))
        a('v_fmac_f32 %s, %s, %s' % (vr(u + 2), vr(t + 1), vr(t + 1)))
        a('v_rcp_f32 %s, %s' % (vr(u + 2), vr(u + 2)))
        a('v_sub_f32 %s, 0, %s' % (vr(t + 1), vr(t + 1)))
        cmul(a, coef, u, t)
        a('v_mul_f32 %s, %s, %s' % (vr(coef), vr(coef), vr(u + 2)))
        a('v_mul_f32 %s, %s, %s' % (vr(coef + 1), vr(coef + 1), vr(u + 2)))
    put((u, 4), (t, 4))
    return lam, coef


def tag_ready(a):
    a('s_mul_i32 %s, %s, 0x9E3779B1' % (sr(S_TAG), sr(S_TAG)),
      's_add_u32 %s, %s, 0x7F4A7C15' % (sr(S_TAG), sr(S_TAG)),
      'v_mov_b32 %s, %s' % (vr(V_TAG), sr(S_TAG)))


def rbf(s, regs):
    for r in regs:
        s('v_cvt_pk_bf16_f32 %s, %s, %s' % (vr(r), vr(r), vr(r)))
    for r in regs:
        s('v_lshlrev_b32 %s, 16, %s' % (vr(r), vr(r)))


def rs12(s, S, Q):
    dp = 'v_add_f32_dpp %s, %s, %s %s row_mask:0xf bank_mask:0x%x'
    for X in (S, Q):
        for j in range(3):
            s(dp % (vr(X[j]), vr(X[j]), vr(X[j]), 'row_ror:8', 0x3))
    for X in (S, Q):
        for j in range(3):
            s(dp % (vr(X[j]), vr(X[j + 3]), vr(X[j + 3]), 'row_ror:8', 0xc))
    for X in (S, Q):
        s(dp % (vr(X[0]), vr(X[0]), vr(X[0]), 'row_half_mirror', 0x5))
        s(dp % (vr(X[2]), vr(X[2]), vr(X[2]), 'row_half_mirror', 0xf))
    for X in (S, Q):
        s(dp % (vr(X[0]), vr(X[1]), vr(X[1]), 'row_half_mirror', 0xa))
    for qp in ('quad_perm:[1,0,3,2]', 'quad_perm:[2,3,0,1]'):
        for r in (S[2], Q[2], S[0], Q[0]):
            s(dp % (vr(r), vr(r), vr(r), qp, 0xf))


def rs6(s, S, Q):
    dp = 'v_add_f32_dpp %s, %s, %s %s row_mask:0xf bank_mask:0x%x'
    for X in (S, Q):
        for j in range(3):
            s(dp % (vr(X[j]), vr(X[j]), vr(X[j]), 'row_ror:8', 0xf))
    for X in (S, Q):
        s(dp % (vr(X[0]), vr(X[0]), vr(X[0]), 'row_half_mirror', 0x5))
        s(dp % (vr(X[2]), vr(X[2]), vr(X[2]), 'row_half_mirror', 0xf))
    for X in (S, Q):
        s(dp % (vr(X[0]), vr(X[1]), vr(X[1]), 'row_half_mirror', 0xa))
    for qp in ('quad_perm:[1,0,3,2]', 'quad_perm:[2,3,0,1]'):
        for r in (S[2], Q[2], S[0], Q[0]):
            s(dp % (vr(r), vr(r), vr(r), qp, 0xf))


def tile_src(i):
    hf, j = divmod(i, 3)
    if j == 2:
        return 1, 8 * hf
    return 0, 8 * hf + 4 * j


a = top
V_LANE, V_TAG, V_STAMP, V_L16, V_N, V_Q = [V.get() for _ in range(6)]
V_OOB = V.get()
V_JUNK = V.get()
V_ZERO = V.get(2)
V_DUMMY = V.get(4)
NCOMMON = V.hw
BASE = V.get(24)
V_DSK = V.get(4)
V_FA = V.get(4)
LAM, L12, L24, L384, LQ96, LQ24, RB, OFF = [V.get(2) for _ in range(8)]
(V_TAU, V_OROW, V_STW, V_STR, V_EXP9, V_TABW, V_EW, V_ER, V_HW, V_HR, V_TABR, V_WA) = [V.get() for _ in range(12)]
WCV = V.home(32)
GP = V.home(12)
V_PW = V.home(4)
V_PR, V_PW2, V_PR2 = V_PW + 1, V_PW + 2, V_PW + 3
HOMES = ((WCV, 32), (GP, 12), (V_PW, 4))
V_DX = V.get(3, 1)

a('s_cmp_ge_u32 s2, 256')
a('s_cbranch_scc1 L_end')
a('s_load_dwordx16 s[8:23], s[0:1], 0')
a('s_load_dwordx16 s[24:39], s[0:1], 64')
a('s_load_dwordx4 s[40:43], s[0:1], 128')
a('s_getpc_b64 %s' % sr(S_PC, 2))
a.label('L_pc')
a('s_lshr_b32 %s, s2, 3' % sr(S_T0))
a('s_lshl_b32 %s, %s, 12' % (sr(S_T1), sr(S_T0)))
a('v_lshl_add_u32 %s, v0, 4, %s' % (vr(V_TAG), sr(S_T1)))
a('s_mov_b32 %s, L_end-L_pc-16' % sr(S_T1))
a('v_min_u32 %s, %s, %s' % (vr(V_TAG), sr(S_T1), vr(V_TAG)))
a('global_load_dwordx4 %s, %s, %s ;junk' % (vr(V_DUMMY, 4), vr(V_TAG), sr(S_PC, 2)))
a('v_and_b32 %s, 63, v0' % vr(V_LANE))
a('v_lshrrev_b32 %s, 6, v0' % vr(V_Q))
a('v_lshlrev_b32 %s, 4, %s' % (vr(V_L16), vr(V_LANE)))
a('v_readfirstlane_b32 %s, %s' % (sr(S_WAVE), vr(V_Q)))
if OPT['stamps']:
    a('v_mov_b32 %s, 0' % vr(V_STAMP))
stamp(a, 'start')
a('v_and_b32 %s, 15, %s' % (vr(V_N), vr(V_LANE)))
a('v_lshrrev_b32 %s, 4, %s' % (vr(V_Q), vr(V_LANE)))
a('v_mov_b32 %s, 0' % vr(V_ZERO))
a('v_mov_b32 %s, 0' % vr(V_ZERO + 1))
a('v_mov_b32 %s, 0x%x' % (vr(V_OOB), OOB))
a('s_and_b32 %s, s2, 7' % sr(S_T1))
a('s_mul_i32 %s, %s, 27' % (sr(S_T2), sr(S_T1)))
a('s_add_u32 %s, %s, %s' % (sr(S_T2), sr(S_T2), sr(S_T0)))
a('s_mul_i32 %s, %s, 5' % (sr(S_T3), sr(S_T1)))
a('s_add_u32 %s, %s, %s' % (sr(S_T3), sr(S_T3), sr(S_T0)))
a('s_add_u32 %s, %s, %d' % (sr(S_T3), sr(S_T3), 216 - 27))
a('s_cmp_lt_u32 %s, 27' % sr(S_T0))
a('s_cselect_b32 %s, %s, %s' % (sr(S_L), sr(S_T2), sr(S_T3)))
a('s_mul_i32 %s, %s, 57' % (sr(S_RB), sr(S_L)))
a('s_lshr_b32 %s, %s, 9' % (sr(S_RB), sr(S_RB)))
a('s_mul_i32 %s, %s, 9' % (sr(S_T0), sr(S_RB)))
a('s_sub_u32 %s, %s, %s' % (sr(S_CG), sr(S_L), sr(S_T0)))
a('s_mov_b32 %s, %s' % (sr(S_PAIR), sr(S_L)))
a('s_and_b32 %s, %s, 1' % (sr(S_A), sr(S_WAVE)))
a('s_lshr_b32 %s, %s, 1' % (sr(S_B), sr(S_WAVE)))
a('s_cmp_ge_u32 %s, %d' % (sr(S_L), NMAIN))
a('s_cbranch_scc1 L_aux')

t, t2, t3 = V.get(), V.get(), V.get()
LAMT = V.get(4)
lad, dad = V.get(), V.get()
V_DB = V.get(2)
c0 = V.get()
a('v_lshrrev_b32 %s, 3, %s' % (vr(t), vr(V_LANE)))
a('v_and_b32 %s, 7, %s' % (vr(t3), vr(V_LANE)))
a('s_lshl2_add_u32 %s, %s, %s' % (sr(S_PT), sr(S_CG), sr(S_WAVE)))
a('s_lshl_b32 %s, %s, 10' % (sr(S_W1K), sr(S_WAVE)))
a('s_mul_i32 %s, %s, 12288' % (sr(S_RINGW), sr(S_WAVE)))
a('s_add_u32 %s, %s, %d' % (sr(S_RINGW), sr(S_RINGW), L_RING))
a('v_xor_b32 %s, %s, %s' % (vr(c0), vr(t3), vr(V_Q)))
a('v_lshlrev_b32 %s, 4, %s' % (vr(c0), vr(c0)))
a('v_lshrrev_b32 %s, 5, %s' % (vr(t2), vr(V_LANE)))
a('v_mul_u32_u24 %s, 24, %s' % (vr(t2), vr(t2)))
a('v_and_b32 %s, 1, %s' % (vr(t3), vr(t)))
a('v_mad_u32_u24 %s, %s, 12, %s' % (vr(t2), vr(t3), vr(t2)))
a('v_and_b32 %s, 1, %s' % (vr(t3), vr(V_Q)))
a('s_mul_i32 %s, %s, 48' % (sr(S_T0), sr(S_A)))
a('s_mul_i32 %s, %s, 96' % (sr(S_T1), sr(S_RB)))
a('s_add_u32 %s, %s, %s' % (sr(S_T0), sr(S_T0), sr(S_T1)))
a('s_lshl1_add_u32 %s, %s, %s' % (sr(S_T0), sr(S_B), sr(S_T0)))
a('v_add3_u32 %s, %s, %s, %s' % (vr(t2), vr(t2), vr(t3), sr(S_T0)))
a('v_mul_u32_u24 %s, 1152, %s' % (vr(t2), vr(t2)))
a('s_lshl_b32 %s, %s, 6' % (sr(S_T0), sr(S_A)))
a('v_xor_b32 %s, %s, %s' % (vr(V_DX), sr(S_T0), vr(c0)))
a('v_add_u32 %s, %s, %s' % (vr(V_DX), vr(V_DX), vr(t2)))
a('v_add_u32 %s, 4608, %s' % (vr(V_DX + 1), vr(V_DX)))
a('v_add_u32 %s, 9216, %s' % (vr(V_DX + 2), vr(V_DX)))
a('s_lshl_b32 %s, %s, 4' % (sr(S_T0), sr(S_PT)))
a('v_add_u32 %s, %s, %s' % (vr(t2), sr(S_T0), vr(t)))
a('v_mul_u32_u24 %s, 1152, %s' % (vr(t2), vr(t2)))
a('v_add_u32 %s, %s, %s' % (vr(V_DB), vr(t2), vr(c0)))
a('v_xor_b32 %s, 64, %s' % (vr(V_DB + 1), vr(c0)))
a('v_add_u32 %s, %s, %s' % (vr(V_DB + 1), vr(V_DB + 1), vr(t2)))
a('v_add_u32 %s, %d, %s' % (vr(V_DB + 1), 8 * 1152, vr(V_DB + 1)))
put(c0)
XS = V.get(12, 2)
xsa = V.get()
a('v_and_b32 %s, 1, %s' % (vr(t), vr(V_Q)))
a('v_mul_u32_u24 %s, 12, %s' % (vr(V_TAU), vr(t)))
a('v_lshrrev_b32 %s, 1, %s' % (vr(t2), vr(V_Q)))
a('v_add_u32 %s, %s, %s' % (vr(V_TAU), vr(V_TAU), vr(t2)))
a('s_lshl2_add_u32 %s, %s, %s' % (sr(S_T0), sr(S_RB), sr(S_WAVE)))
a('s_mul_i32 %s, %s, 24' % (sr(S_T0), sr(S_T0)))
a('v_add_u32 %s, %s, %s' % (vr(t3), sr(S_T0), vr(V_TAU)))
a('v_mul_u32_u24 %s, 1152, %s' % (vr(xsa), vr(t3)))
a('s_lshl_b32 %s, %s, 7' % (sr(S_T0), sr(S_CG)))
a('v_lshl_add_u32 %s, %s, 3, %s' % (vr(dad), vr(V_N), sr(S_T0)))
a('v_add_u32 %s, %s, %s' % (vr(xsa), vr(xsa), vr(dad)))
a('s_mov_b32 %s, 0x%x' % (sr(R_X + 2), 2048 * 1152))
a('s_mov_b32 %s, 0x20000' % sr(R_X + 3))
for r_ in (R_BRE, R_BIM):
    a('s_mov_b32 %s, 0x%x' % (sr(r_ + 2), 576 * 1152))
    a('s_mov_b32 %s, 0x20000' % sr(r_ + 3))
a('s_waitcnt lgkmcnt(0)')
a('s_mov_b64 %s, %s' % (sr(R_X, 2), sr(P_X, 2)))
a('s_mov_b64 %s, %s' % (sr(R_BRE, 2), sr(P_BRE, 2)))
a('s_mov_b64 %s, %s' % (sr(R_BIM, 2), sr(P_BIM, 2)))


def x_dma(s, blk, layer):
    tk = None
    for u in range(3):
        if layer == 0:
            s('s_add_u32 m0, %s, %d' % (sr(S_W1K), L_IMG + blk * BLK + u * 4096 - blk * 128))
            tk = s.mem('buffer_load_dwordx4 %s, %s, 0 offen offset:%d lds' % (vr(V_DX + u), sr(R_X, 4), blk * 128))
        else:
            s('s_add_u32 m0, %s, %d' % (sr(S_W1K), L_IMG + blk * BLK + u * 4096))
            tk = s.mem('buffer_load_dwordx4 %s, %s, %s offen sc1 lds' % (vr(V_DX + u), sr(R_WS, 4), sr(S_TT + blk)))
    return tk


WB = lambda kp, h, mat: ((kp * 2 + h) * 2 + mat) * 4


def b_dma(s, kp):
    tk = None
    for b in range(4):
        s('s_add_u32 m0, %s, %d' % (sr(S_RINGW), (kp % 3) * 4096 + b * 1024 - kp * 128))
        tk = s.mem('buffer_load_dwordx4 %s, %s, 0 offen offset:%d lds' % (vr(V_DB + (b & 1)), sr(R_BRE if b < 2 else R_BIM, 4), kp * 128))
    return tk


xtk, btk = {}, {}
xtk[0] = x_dma(a, 0, 0)
btk[0] = b_dma(a, 0)
a('s_load_dword %s, %s, 0' % (sr(S_TAG), sr(P_WS, 2)))
for i in range(MT):
    a('s_movk_i32 %s, %d' % (sr(S_T0), 2304 * i),
      'buffer_load_dwordx2 %s, %s, %s, %s offen' % (vr(XS + 2 * i, 2), vr(xsa), sr(R_X, 4), sr(S_T0)))
srd(a, R_WS, P_WS, WS_SIZE)
iss = Stream()
xtk[1] = x_dma(iss, 1, 0)
btk[1] = b_dma(iss, 1)
xtk[2] = x_dma(iss, 2, 0)
su = Stream()
V_FB = V.get(2)
su('v_lshrrev_b32 %s, 1, %s' % (vr(t), vr(V_N)))
su('v_xor_b32 %s, %s, %s' % (vr(t), vr(t), vr(V_Q)))
su('v_lshlrev_b32 %s, 4, %s' % (vr(t), vr(t)))
su('v_lshl_add_u32 %s, %s, 7, %s' % (vr(V_FA), vr(V_N), vr(t)))
su('v_xor_b32 %s, 64, %s' % (vr(V_FA + 1), vr(V_FA)))
su('v_add_u32 %s, %d, %s' % (vr(V_FA + 2), 4 * BLK, vr(V_FA)))
su('v_add_u32 %s, %d, %s' % (vr(V_FA + 3), 4 * BLK, vr(V_FA + 1)))
su('v_add_u32 %s, %s, %s' % (vr(V_FB), sr(S_RINGW), vr(V_FA)))
su('v_add_u32 %s, %s, %s' % (vr(V_FB + 1), sr(S_RINGW), vr(V_FA + 1)))
srd(su, R_OUT, P_OUT, 2048 * 2304)
su('s_mov_b32 %s, 0x02020202' % sr(S_MSEL), 's_mov_b32 %s, 0x02020202' % sr(S_MSEL + 1))
su('s_mov_b32 %s, 0x13131313' % sr(S_MACT), 's_mov_b32 %s, 0x13131313' % sr(S_MACT + 1))
su('s_getreg_b32 %s, hwreg(HW_REG_XCC_ID, 0, 4)' % sr(S_XCC))
su('v_and_b32 %s, 1, %s' % (vr(t), vr(V_Q)))
su('v_lshrrev_b32 %s, 1, %s' % (vr(t2), vr(V_Q)))
su('v_lshlrev_b32 %s, 1, %s' % (vr(V_OROW), vr(xsa)))
TI = V.get()
su('v_lshrrev_b32 %s, 3, %s' % (vr(TI), vr(V_N)))
su('v_mul_u32_u24 %s, 3, %s' % (vr(TI), vr(TI)))
su('v_bfe_u32 %s, %s, 2, 1' % (vr(t3), vr(V_N)))
su('v_cndmask_b32 %s, %s, 2, %s' % (vr(t3), vr(t3), sr(S_MSEL, 2)))
su('v_add_u32 %s, %s, %s' % (vr(TI), vr(TI), vr(t3)))
su('v_lshl_add_u32 %s, %s, 1, %s' % (vr(t3), vr(TI), vr(t2)))
su('v_lshlrev_b32 %s, 4, %s' % (vr(t3), vr(t3)))
su('v_lshl_add_u32 %s, %s, 2, %s' % (vr(V_TABW), vr(t), vr(t3)))
su('s_mul_i32 %s, %s, 192' % (sr(S_T0), sr(S_WAVE)),
   's_add_u32 %s, %s, %d' % (sr(S_T0), sr(S_T0), L_TAB),
   'v_add_u32 %s, %s, %s' % (vr(V_TABW), sr(S_T0), vr(V_TABW)))
su('v_mul_u32_u24 %s, 192, %s' % (vr(V_TABR), vr(V_Q)))
su('v_add_u32 %s, %d, %s' % (vr(V_TABR), L_TAB, vr(V_TABR)))
su('s_mul_i32 %s, %s, 96' % (sr(S_T0), sr(S_RB)),
   's_lshl2_add_u32 %s, %s, %s' % (sr(S_T0), sr(S_WAVE), sr(S_T0)),
   'v_add_u32 %s, %s, %s' % (vr(t), sr(S_T0), vr(V_Q)))
su('v_lshlrev_b32 %s, 8, %s' % (vr(t), vr(t)))
su('v_lshl_add_u32 %s, %s, 4, %s' % (vr(V_STR), vr(V_N), vr(t)))
su('v_cmp_gt_u32 vcc, 9, %s' % vr(V_N),
   'v_cndmask_b32 %s, %s, %s, vcc' % (vr(V_STR), vr(V_OOB), vr(V_STR)))
su('v_lshl_add_u32 %s, %s, 12, %s' % (vr(V_STW), vr(TI), vr(t)))
su('s_lshl_b32 %s, %s, 4' % (sr(S_T0), sr(S_CG)),
   'v_add_u32 %s, %s, %s' % (vr(V_STW), sr(S_T0), vr(V_STW)))
su('v_cndmask_b32 %s, %s, %s, %s' % (vr(V_STW), vr(V_OOB), vr(V_STW), sr(S_MACT, 2)))
put(TI)
su('s_lshl_b32 %s, %s, 2' % (sr(S_T0), sr(S_WAVE)),
   'v_add_u32 %s, %s, %s' % (vr(V_WA), sr(S_T0), vr(V_Q)))
su('v_xor_b32 %s, %s, %s' % (vr(t), vr(V_WA), vr(V_N)))
su('v_lshrrev_b32 %s, 1, %s' % (vr(t), vr(t)))
su('v_lshlrev_b32 %s, 4, %s' % (vr(t), vr(t)))
su('v_lshl_add_u32 %s, %s, 7, %s' % (vr(V_WA), vr(V_WA), vr(t)))
su('v_and_b32 %s, 1, %s' % (vr(t), vr(V_N)))
su('v_lshl_add_u32 %s, %s, 3, %s' % (vr(V_WA), vr(t), vr(V_WA)))
su('s_lshl_b32 %s, %s, 8' % (sr(S_T0), sr(S_RB)),
   'v_lshl_add_u32 %s, %s, 4, %s' % (vr(V_EW), vr(V_N), sr(S_T0)))
su('v_lshlrev_b32 %s, 8, %s' % (vr(t), vr(V_Q)))
su('v_sub_u32 %s, %s, %s' % (vr(V_ER), vr(V_EW), vr(t)))
su('v_subrev_u32 %s, 256, %s' % (vr(V_ER), vr(V_ER)))
su('v_cmp_gt_u32 vcc, 16, %s' % vr(V_LANE),
   'v_cndmask_b32 %s, %s, %s, vcc' % (vr(V_EW), vr(V_OOB), vr(V_EW)))
su('v_lshl_add_u32 %s, %s, 2, %s' % (vr(t), vr(V_N), vr(t)))
su('s_mul_i32 %s, %s, 6144' % (sr(S_T0), sr(S_WAVE)), 's_add_u32 %s, %s, %d' % (sr(S_T0), sr(S_T0), 5 * BLK),
   'v_add_u32 %s, %s, %s' % (vr(V_HW), sr(S_T0), vr(t)))
su('v_lshlrev_b32 %s, 4, %s' % (vr(t), vr(V_Q)))
su('v_lshl_add_u32 %s, %s, 6, %s' % (vr(t), vr(V_N), vr(t)))
su('s_mul_i32 %s, %s, 6144' % (sr(S_T0), sr(S_WAVE)), 's_add_u32 %s, %s, %d' % (sr(S_T0), sr(S_T0), 5 * BLK),
   'v_add_u32 %s, %s, %s' % (vr(V_HR), sr(S_T0), vr(t)))
a.weave(su, iss)
put(t, t2, t3, xsa)
a('s_lshl_b32 %s, %s, 5' % (sr(S_T1), sr(S_PT)))
a('v_lshl_add_u32 %s, %s, 1, %s' % (vr(lad), vr(V_N), sr(S_T1)))
a('s_mov_b32 %s, %d' % (sr(S_T2), WS_ST),
  'buffer_load_dword %s, %s, %s, %s offen sc1 ;junk' % (vr(V_JUNK), vr(V_STW), sr(R_WS, 4), sr(S_T2)))
stamp(a, 'setup')


def b_read(s, kp):
    s.wait(btk[kp])
    tk = None
    for h in range(2):
        for mat in range(2):
            tk = s.mem('ds_read_b128 %s, %s offset:%d' % (ar(WB(kp, h, mat), 4), vr(V_FB + h), (kp % 3) * 4096 + mat * 2048))
    return tk


class KVm:
    pass


def kv_dma(s, kv):
    kv.SHK = V.get(4, top=True)
    t, t2, kh = V.get(), V.get(), V.get()
    s('s_cmp_lt_u32 %s, 6' % sr(S_CG),
      's_cselect_b32 %s, %d, 0' % (sr(R_K + 2), 2048 * 1152),
      's_mov_b32 %s, %s' % (sr(R_V + 2), sr(R_K + 2)),
      's_mov_b32 %s, %s' % (sr(R_K), sr(P_K)), 's_and_b32 %s, %s, 0xffff' % (sr(R_K + 1), sr(P_K + 1)),
      's_mov_b32 %s, 0x20000' % sr(R_K + 3))
    s('s_mov_b32 %s, %s' % (sr(R_V), sr(P_V)), 's_and_b32 %s, %s, 0xffff' % (sr(R_V + 1), sr(P_V + 1)),
      's_mov_b32 %s, 0x20000' % sr(R_V + 3))
    s('v_lshrrev_b32 %s, 3, %s' % (vr(t), vr(V_LANE)))
    s('v_mul_u32_u24 %s, 1152, %s' % (vr(t2), vr(t)))
    s('v_and_b32 %s, 7, %s' % (vr(t), vr(V_LANE)))
    s('v_lshl_add_u32 %s, %s, 4, %s' % (vr(t2), vr(t), vr(t2)))
    s('v_and_b32 %s, 31, %s' % (vr(t), vr(V_LANE)))
    s('s_lshl_b32 %s, %s, 9' % (sr(S_T1), sr(S_CG)),
      'v_lshl_add_u32 %s, %s, 4, %s' % (vr(t), vr(t), sr(S_T1)),
      'global_load_dwordx4 %s, %s, %s' % (vr(kv.SHK, 4), vr(t), sr(P_SHK, 2)))
    s('s_lshl2_add_u32 %s, %s, %s' % (sr(S_T0), sr(S_RB), sr(S_WAVE)),
      's_mul_i32 %s, %s, %d' % (sr(S_T0), sr(S_T0), 24 * 1152),
      's_lshl_b32 %s, %s, 7' % (sr(S_T1), sr(S_CG)),
      's_add_u32 %s, %s, %s' % (sr(S_T0), sr(S_T0), sr(S_T1)),
      'v_add_u32 %s, %s, %s' % (vr(t2), sr(S_T0), vr(t2)),
      'v_subrev_u32 %s, %d, %s' % (vr(kh), 8 * 1152, vr(t2)))
    s('s_mul_i32 %s, %s, 7168' % (sr(S_C), sr(S_WAVE)), 's_mov_b32 m0, %s' % sr(S_C))
    s('buffer_load_dwordx4 %s, %s, 0 offen nt lds' % (vr(kh), sr(R_K, 4)))
    for u in range(3):
        for base, rr in ((1024, R_K), (4096, R_V)):
            s('s_add_u32 m0, %s, %d' % (sr(S_C), base + u * 1024))
            kv.tok = s.mem('s_mov_b32 %s, %d' % (sr(S_T2), u * 8 * 1152),
                           'buffer_load_dwordx4 %s, %s, %s offen nt lds' % (vr(t2), sr(rr, 4), sr(S_T2)))
    kv.rel = [t, t2, kh]


def kv_core(kc, ntp, krow, vrow, SHK, emit_unit, touch=None):
    W, KU, P = V.get(8, 2), V.get(12, 2), V.get(16, 2)
    S4 = V.get(4, 1)
    OU = [V.get(4), V.get(4)]
    ONE2 = V.get()
    kc('v_mov_b32 %s, 0x3f803f80' % vr(ONE2))
    kc('v_mov_b32 %s, %s' % (vr(OU[0] + 3), vr(V_TAG)))
    kc('v_mov_b32 %s, %s' % (vr(OU[1] + 3), vr(V_TAG)))
    for j in range(4):
        for ch in range(2):
            src = SHK + 2 * ch + (j >> 1)
            kc(('v_and_b32 %s, 0xffff0000, %s' if j & 1 else 'v_lshlrev_b32 %s, 16, %s') % (vr(W + 2 * j + ch), vr(src)))
    ku = lambda r: KU + 2 * ((r + 3) % 6)

    def unpack_k(r):
        kc('v_lshlrev_b32 %s, 16, %s' % (vr(ku(r)), vr(krow(r))))
        kc('v_and_b32 %s, 0xffff0000, %s' % (vr(ku(r) + 1), vr(krow(r))))

    for r in (-3, -2, -1):
        unpack_k(r)
    for tp in range(ntp):
        if touch is not None:
            touch(tp)
        for tt in range(2):
            unpack_k(2 * tp + tt)
        for tt in range(2):
            for j in range(4):
                kc('v_pk_mul_f32 %s, %s, %s' % (vr(P + tt * 8 + 2 * j, 2), vr(ku(2 * tp + tt - j), 2), vr(W + 2 * j, 2)))
        idx = [(tt, ch) for tt in range(2) for ch in range(2)]
        for step in range(3):
            for u, (tt, ch) in enumerate(idx):
                first = vr(P + tt * 8 + 6 + ch) if step == 0 else vr(S4 + u)
                kc('v_cvt_pk_bf16_f32 %s, %s, %s' % (vr(S4 + u), first, vr(P + tt * 8 + 2 * (2 - step) + ch)))
            for u in range(4):
                kc('v_dot2_f32_bf16 %s, %s, %s, 0' % (vr(S4 + u), vr(S4 + u), vr(ONE2)))
        for u, (tt, ch) in enumerate(idx):
            kc('v_cvt_pk_bf16_f32 %s, %s, %s' % (vr(S4 + u), vr(S4 + u) if ch == 0 else '0', '0' if ch == 0 else vr(S4 + u)))
        for u, (tt, ch) in enumerate(idx):
            kc('v_dot2_f32_bf16 %s, %s, %s, 0' % (vr(S4 + u), vr(S4 + u), vr(vrow(2 * tp + tt))))
        pos = ntp - 1 - tp
        for ch in range(2):
            kc('v_cvt_pk_bf16_f32 %s, %s, %s' % (vr(OU[ch] + pos % 3), vr(S4 + 2 + ch), vr(S4 + ch)))
        if pos % 3 == 0:
            for ch in range(2):
                emit_unit(ch, pos // 3, OU[ch])
    put((W, 8), (KU, 12), (P, 16), (S4, 4), (OU[0], 4), (OU[1], 4), ONE2)


def kv_main(s, kv, ks):
    ka, kb, t, t2 = [V.get() for _ in range(4)]
    s('v_lshrrev_b32 %s, 5, %s' % (vr(t), vr(V_LANE)))
    s('v_and_b32 %s, 31, %s' % (vr(t2), vr(V_LANE)))
    s('v_mul_u32_u24 %s, 1536, %s' % (vr(ka), vr(t)))
    s('v_lshl_add_u32 %s, %s, 2, %s' % (vr(ka), vr(t2), vr(ka)))
    s('s_mul_i32 %s, %s, 7168' % (sr(S_T0), sr(S_WAVE)),
      's_add_u32 %s, %s, 512' % (sr(S_T0), sr(S_T0)),
      'v_add_u32 %s, %s, %s' % (vr(ka), sr(S_T0), vr(ka)))
    s('v_add_u32 %s, 128, %s' % (vr(kb), vr(ka)))
    KR, VR = V.get(16, 2), V.get(12, 2)
    ridx = lambda r: (r >> 2) * 4 + (r & 1) * 2 + ((r >> 1) & 1)
    krow = lambda r: KR + ridx(r + 4)
    vrow = lambda r: VR + ridx(r)
    s.wait(kv.tok)
    for g in range(4):
        for par in range(2):
            s('ds_read2st64_b32 %s, %s offset0:%d offset1:%d' % (vr(KR + g * 4 + par * 2, 2), vr(kb if par else ka), 2 * g, 2 * g + 1))
        if g > 0:
            for par in range(2):
                s('ds_read2st64_b32 %s, %s offset0:%d offset1:%d' % (vr(VR + (g - 1) * 4 + par * 2, 2), vr(kb if par else ka),
                                                                     14 + 2 * (g - 1), 14 + 2 * (g - 1) + 1))
    s('v_sub_u32 %s, 1, %s' % (vr(t), vr(t)))
    s('v_lshlrev_b32 %s, 5, %s' % (vr(t), vr(t)))
    s('v_mul_u32_u24 %s, 528, %s' % (vr(t2), vr(t2)))
    s('s_lshl_b32 %s, %s, 6' % (sr(S_T0), sr(S_WAVE)),
      's_sub_u32 %s, 192, %s' % (sr(S_T0), sr(S_T0)),
      'v_add3_u32 %s, %s, %s, %s' % (vr(t), vr(t), vr(t2), sr(S_T0)),
      's_mul_i32 %s, %s, 4224' % (sr(S_T0), sr(S_WAVE)),
      'v_lshrrev_b32 %s, 5, %s' % (vr(t2), vr(V_LANE)),
      'v_lshlrev_b32 %s, 4, %s' % (vr(t2), vr(t2)),
      'v_add3_u32 %s, %s, %s, %s' % (vr(t2), vr(t2), vr(V_L16), sr(S_T0)))
    tks = []
    kv_core(s, 6, krow, vrow, kv.SHK,
            lambda ch, un, reg: tks.append(s.mem('ds_write_b128 %s, %s offset:%d' % (vr(t), vr(reg, 4), L_KVO + ch * 256 + un * 16))))
    put((KR, 16), (VR, 12), (kv.SHK, 4))
    D = V.get(16)
    s('v_mul_u32_u24 %s, %d, %s' % (vr(ka), KVT_STR, vr(V_Q)))
    s('v_lshl_add_u32 %s, %s, 4, %s' % (vr(ka), vr(V_N), vr(ka)))
    s('s_mul_i32 %s, %s, %d' % (sr(S_T0), sr(S_PT), 16 * KVT_STR),
      's_lshl_b32 %s, %s, 8' % (sr(S_T1), sr(S_RB)),
      's_sub_u32 %s, %s, %s' % (sr(S_T0), sr(S_T0), sr(S_T1)),
      's_add_u32 %s, %s, %d' % (sr(S_T0), sr(S_T0), WS_KVT + 21 * 256),
      's_cmp_lt_u32 %s, 6' % sr(S_CG),
      's_cselect_b32 %s, %s, 0x40000000' % (sr(S_T0), sr(S_T0)),
      'v_add_u32 %s, %s, %s' % (vr(ka), sr(S_T0), vr(ka)))
    ks.wait(tks[-1])
    ks('s_barrier')
    for i in range(4):
        ks('ds_read_b128 %s, %s offset:%d' % (vr(D + 4 * i, 4), vr(t2), L_KVO + i * 1056))
    for i in range(4):
        ks('s_mov_b32 %s, %d' % (sr(S_T1), 4 * i * KVT_STR),
           'buffer_store_dwordx4 %s, %s, %s, %s offen sc1' % (vr(D + 4 * i, 4), vr(ka), sr(R_WS, 4), sr(S_T1)))
    ks('s_nop 1')
    put((D, 16), ka, kb, t, t2)


def stats_partial(s, X, S, Q, i, d, pk):
    x = X + 4 * i
    if pk:
        s('v_pk_add_f32 %s, %s, %s' % (vr(d, 2), vr(x, 2), vr(x + 2, 2)),
          'v_pk_mul_f32 %s, %s, %s' % (vr(d + 2, 2), vr(x, 2), vr(x, 2)),
          'v_add_f32 %s, %s, %s' % (vr(S + i), vr(d), vr(d + 1)),
          'v_pk_fma_f32 %s, %s, %s, %s' % (vr(d + 2, 2), vr(x + 2, 2), vr(x + 2, 2), vr(d + 2, 2)),
          'v_add_f32 %s, %s, %s' % (vr(Q + i), vr(d + 2), vr(d + 3)))
    else:
        s('v_add_f32 %s, %s, %s' % (vr(S + i), vr(x), vr(x + 1)))
        s('v_mul_f32 %s, %s, %s' % (vr(Q + i), vr(x), vr(x)))
        s('v_add_f32 %s, %s, %s' % (vr(S + i), vr(S + i), vr(x + 2)))
        s('v_fmac_f32 %s, %s, %s' % (vr(Q + i), vr(x + 1), vr(x + 1)))
        s('v_add_f32 %s, %s, %s' % (vr(S + i), vr(S + i), vr(x + 3)))
        s('v_fmac_f32 %s, %s, %s' % (vr(Q + i), vr(x + 2), vr(x + 2)))
        s('v_fmac_f32 %s, %s, %s' % (vr(Q + i), vr(x + 3), vr(x + 3)))


def stats_publish(s, X, which, fast, pk=True, SQ=None, tiles=range(MT), dreg=None):
    if SQ is None:
        S, Q = V.get(6, 1), V.get(6, 1)
    else:
        S, Q = SQ
    d = V.get(4) if dreg is None else dreg
    for i in tiles:
        stats_partial(s, X, S, Q, i, d, pk)
    s('v_add_u32 %s, %d, %s' % (vr(d + 1), 16 * which, vr(V_TAG)))
    if which == 0:
        s('v_add_u32 %s, %s, %s' % (vr(d + 3), sr(S_XCC), vr(V_TAG)))
    else:
        s('v_add_u32 %s, %d, %s' % (vr(d + 3), 16 * which, vr(V_TAG)))
    rs12(s, [S + i for i in range(6)], [Q + i for i in range(6)])
    s('v_cndmask_b32 %s, %s, %s, %s' % (vr(d), vr(S), vr(S + 2), sr(S_MSEL, 2)))
    s('v_cndmask_b32 %s, %s, %s, %s' % (vr(d + 2), vr(Q), vr(Q + 2), sr(S_MSEL, 2)))
    txt = ['s_mov_b32 %s, %d' % (sr(S_T0), WS_ST + (which == 2) * ST_SZ),
           'buffer_store_dwordx4 %s, %s, %s, %s offen {P}' % (vr(d, 4), vr(V_STW), sr(R_WS, 4), sr(S_T0)), 's_nop 1']
    if fast:
        dual(s, txt)
        put((S, 6), (Q, 6), (d, 4))
        return None
    s(*[x.replace(' {P}', '') for x in txt])
    put((S, 6), (Q, 6))
    late = Stream()
    late('s_mov_b32 %s, %d' % (sr(S_T0), WS_ST + 2 * ST_SZ),
         'buffer_store_dwordx4 %s, %s, %s, %s offen sc1' % (vr(d, 4), vr(V_STW), sr(R_WS, 4), sr(S_T0)), 's_nop 1')
    return late, d


def stats_loads(which, G, region=None):
    L = []
    if region is None:
        region = int(which == 2)
    for i in range(MT):
        L.append('s_mov_b32 %s, %d' % (sr(S_T0), WS_ST + region * ST_SZ + 4096 * i))
        L.append('buffer_load_dwordx4 %s, %s, %s, %s offen sc1' % (vr(G + 4 * i, 4), vr(V_STR), sr(R_WS, 4), sr(S_T0)))
    return L


def stats_pub_g(s, S, Q, d, which, g):
    s('v_add_u32 %s, %d, %s' % (vr(d + 1), 16 * which, vr(V_TAG)))
    s('v_add_u32 %s, %d, %s' % (vr(d + 3), 16 * which, vr(V_TAG)))
    rs6(s, [S + 3 * g + i for i in range(3)], [Q + 3 * g + i for i in range(3)])
    s('v_cndmask_b32 %s, %s, %s, %s' % (vr(d), vr(S + 3 * g), vr(S + 3 * g + 2), sr(S_MSEL, 2)))
    s('v_cndmask_b32 %s, %s, %s, %s' % (vr(d + 2), vr(Q + 3 * g), vr(Q + 3 * g + 2), sr(S_MSEL, 2)))
    m = (0x00ff00ff, 0xff00ff00)[g]
    dual(s, ['s_mov_b32 %s, %d' % (sr(S_T0), WS_ST), 's_mov_b32 exec_lo, 0x%x' % m, 's_mov_b32 exec_hi, 0x%x' % m,
             'buffer_store_dwordx4 %s, %s, %s, %s offen {P}' % (vr(d, 4), vr(V_STW), sr(R_WS, 4), sr(S_T0)),
             's_mov_b64 exec, -1', 's_nop 0'])


def stats_exp(s, which):
    e = V.get()
    s('v_add_u32 %s, %d, %s' % (vr(e), 16 * which, vr(V_TAG)),
      'v_cmp_gt_u32 vcc, 9, %s' % vr(V_N),
      'v_cndmask_b32 %s, 0, %s, vcc' % (vr(e), vr(e)))
    return e


def stats_finish(s, G):
    rs12(s, [G + 4 * i for i in range(6)], [G + 4 * i + 2 for i in range(6)])
    P = V.get(4, top=True)
    for k, src in ((0, G), (1, G + 8)):
        s('v_mul_f32 %s, 0x3ae38e39, %s' % (vr(P + 2 * k), vr(src)))
        s('v_mul_f32 %s, 0x3ae38e39, %s' % (vr(P + 2 * k + 1), vr(src + 2)))
    for k in range(2):
        s('v_fma_f32 %s, -%s, %s, %s' % (vr(P + 2 * k + 1), vr(P + 2 * k), vr(P + 2 * k), vr(P + 2 * k + 1)))
    for k in range(2):
        s('v_max_f32 %s, 0, %s' % (vr(P + 2 * k + 1), vr(P + 2 * k + 1)))
    return P


def bcast(s, dst, P, i):
    k, lane = tile_src(i)
    s('v_mov_b64_dpp %s, %s row_newbcast:%d row_mask:0xf bank_mask:0xf' % (vr(dst, 2), vr(P + 2 * k, 2), lane))


def ln_table(s, layer, G, RBG):
    P = stats_finish(s, G)
    put((G, 24))
    mu = [P, P + 2]
    va = [P + 1, P + 3]
    if layer == 0:
        rbf(s, mu + va)
        for r in va:
            s('v_add_f32 %s, 0x3727c5ac, %s' % (vr(r), vr(r)))
        rbf(s, va)
        for r in va:
            s('v_sqrt_f32 %s, %s' % (vr(r), vr(r)))
        rbf(s, va)
        for r in va:
            s('v_rcp_f32 %s, %s' % (vr(r), vr(r)))
        s('v_mov_b32 %s, %s' % (vr(OFF), vr(mu[0])), 'v_mov_b32 %s, %s' % (vr(OFF + 1), vr(mu[1])))
    else:
        for r in va:
            s('v_add_f32 %s, 0x3727c5ac, %s' % (vr(r), vr(r)))
        for r in va:
            s('v_rsq_f32 %s, %s' % (vr(r), vr(r)))
        s('v_add_f32 %s, %s, %s' % (vr(OFF), vr(OFF), vr(mu[0])), 'v_add_f32 %s, %s, %s' % (vr(OFF + 1), vr(OFF + 1), vr(mu[1])))
    with V.borrow(*HOMES):
        d = V.get(2)
    s('v_cndmask_b32 %s, %s, %s, %s' % (vr(d), vr(va[0]), vr(va[1]), sr(S_MSEL, 2)))
    s('v_cndmask_b32 %s, %s, %s, %s' % (vr(d + 1), vr(mu[0]), vr(mu[1]), sr(S_MSEL, 2)))
    s('v_mul_f32 %s, %s, %s' % (vr(d + 1), vr(d + 1), vr(d)))
    tk = s.mem('s_mov_b64 exec, %s' % sr(S_MACT, 2),
               'ds_write2_b32 %s, %s, %s offset0:0 offset1:2' % (vr(V_TABW), vr(d), vr(d + 1)),
               's_mov_b64 exec, -1')
    put((d, 2))
    return tk, P


def ln_rest(r, layer, P):
    b = V.get(2)
    tmp = V.get(4)
    for i in range(MT):
        x = BASE + 4 * i
        bcast(r, b, P, i)
        for k in range(2):
            r('v_pk_add_f32 %s, %s, %s op_sel:[0,0] op_sel_hi:[1,0] neg_lo:[0,1] neg_hi:[0,1]' % (vr(x + 2 * k, 2), vr(x + 2 * k, 2), vr(b, 2)))
        if layer == 0:
            for k in range(2):
                r('v_cvt_pk_bf16_f32 %s, %s, %s' % (vr(tmp + 2 * k), vr(x + 2 * k), vr(x + 2 * k + 1)))
            for rep in range(3):
                for k in range(2):
                    r('v_and_b32 %s, 0xffff0000, %s' % (vr(tmp + 2 * k + 1), vr(tmp + 2 * k)),
                      'v_lshlrev_b32 %s, 16, %s' % (vr(tmp + 2 * k), vr(tmp + 2 * k)))
                for k in range(2):
                    if rep == 0:
                        r('v_pk_mul_f32 %s, %s, %s op_sel:[0,1] op_sel_hi:[1,1]' % (vr(tmp + 2 * k, 2), vr(tmp + 2 * k, 2), vr(b, 2)))
                    elif rep == 1:
                        r('v_pk_mul_f32 %s, %s, %s' % (vr(tmp + 2 * k, 2), vr(tmp + 2 * k, 2), vr(V_DSK + 2 * k, 2)))
                    else:
                        r('v_pk_add_f32 %s, %s, %s' % (vr(x + 2 * k, 2), vr(x + 2 * k, 2), vr(tmp + 2 * k, 2)))
                if rep < 2:
                    for k in range(2):
                        r('v_cvt_pk_bf16_f32 %s, %s, %s' % (vr(tmp + 2 * k), vr(tmp + 2 * k), vr(tmp + 2 * k + 1)))
        else:
            for k in range(2):
                r('v_pk_fma_f32 %s, %s, %s, 1.0 op_sel:[0,1,0] op_sel_hi:[1,1,0]' % (vr(tmp + 2 * k, 2), vr(V_DSK + 2 * k, 2), vr(b, 2)))
            for k in range(2):
                r('v_pk_mul_f32 %s, %s, %s' % (vr(x + 2 * k, 2), vr(x + 2 * k, 2), vr(tmp + 2 * k, 2)))
    put((P, 4), (b, 2), (tmp, 4))


def a_reads(k, AF):
    s = Stream()
    kp, h = k >> 1, k & 1
    base = V_FA + h + (2 if kp >= 4 else 0)
    off = (kp - (4 if kp >= 4 else 0)) * BLK
    for i in range(MT):
        s('ds_read_b128 %s, %s offset:%d' % (vr(AF + (k & 1) * 24 + i * 4, 4), vr(base), off + i * 2048))
    return s


def b_mfmas(k, ACC, AF, ones=None):
    s = Stream()
    kp, h = k >> 1, k & 1
    if ones is not None:
        for mat in range(2):
            s('v_mfma_f32_16x16x32_bf16 %s, %s, %s, %s' % (vr(ones[1] + mat * 4, 4), vr(ones[0], 4), ar(WB(kp, h, mat), 4),
                                                          '0' if k == 0 else vr(ones[1] + mat * 4, 4)))
    for i in range(MT):
        if i % 3 == 0:
            s.touch(vr(AF + (k & 1) * 24 + i * 4, 12))
        for mat in range(2):
            d = ACC + (mat * MT + i) * 4
            s('v_mfma_f32_16x16x32_bf16 %s, %s, %s, %s' % (vr(d, 4), vr(AF + (k & 1) * 24 + i * 4, 4), ar(WB(kp, h, mat), 4),
                                                          '0' if k == 0 else vr(d, 4)))
    return s


def split(stream, n):
    g = stream.groups
    parts = []
    for i in range(n):
        p = Stream()
        p.groups = g[len(g) * i // n: len(g) * (i + 1) // n]
        parts.append(p)
    return parts


def ensure(sc, tok):
    for q in sc.sides:
        idx = [i for i, g in enumerate(q) if any((not isinstance(it, tuple)) and it.tok is tok for it in g)]
        if idx:
            for _ in range(idx[0] + 1):
                g = q[0]
                for it in g:
                    if isinstance(it, tuple) and it[0] == 'wait':
                        for tk in it[1]:
                            if id(tk) in sc.future:
                                ensure(sc, tk)
                            sc.tokready[id(tk)] = min(sc.tokready.get(id(tk), 0), sc.t + sc.LAT_DS)
                b = Stream()
                b.groups = [q.pop(0)]
                keep = sc.sides
                sc.sides = [x for x in keep if x is not q]
                sc.run(b)
                sc.sides = keep


def gemm_b(a, ACC, AF, xtok, pre, side, ones=None, vm=None, need=None, bq=None):
    sc = Sched(a)
    qr, qb, qv, qs = sc.add(Stream()), sc.add(bq if bq is not None else Stream()), sc.add(Stream()), sc.add(Stream())
    sc.expect(*(list(side.values()) + (list(vm.values()) if vm else []) + ([bq] if bq is not None else [])))
    b = Stream()
    b.wait(xtok(0))
    b('s_barrier')
    b.extend(a_reads(0, AF))
    sc.run(b)
    for k in range(18):
        sc.flush(qr)
        if k == 11 and bq is not None:
            print('side leftover at k', k, len(qs), 'vm', len(qv))
            sc.flush(qs)
        if need is not None:
            for tk in need.get(k, []):
                ensure(sc, tk)
        if pre[k].groups:
            for g in pre[k].groups:
                for it in g:
                    if isinstance(it, tuple) and it[0] == 'wait':
                        for tk in it[1]:
                            ensure(sc, tk)
            if any(not isinstance(it, tuple) for g in pre[k].groups for it in g):
                sc.flush()
            sc.run(pre[k])
        b = Stream()
        if k & 1 and k < 17:
            ensure(sc, xtok((k + 1) >> 1))
            b.wait(xtok((k + 1) >> 1))
            b('s_barrier')
            sides, sc.sides = sc.sides, []
            sc.run(b)
            sc.sides = sides
        if k < 17:
            qr.extend(a_reads(k + 1, AF).groups)
        if vm is not None:
            qv.extend(vm[k].groups)
        qs.extend(side[k].groups)
        sc.run(b_mfmas(k, ACC, AF, ones))
        if OPT['fine'] and k % 3 == 2:
            stamp(a, 'k%d' % k)
    print('gemm_b leftover', sc.pending(), 'model time', sc.t)
    sc.flush()


class Conv:
    pass


def conv_setup_k(s, cv, keep=False):
    s('s_lshl1_add_u32 %s, %s, %s' % (sr(S_T0), sr(S_PAIR), sr(S_B)),
      's_lshl_b32 %s, %s, 12' % (sr(S_T1), sr(S_T0)),
      's_add_u32 %s, %s, %s' % (sr(R_SK), sr(P_SSK), sr(S_T1)),
      's_addc_u32 %s, %s, 0' % (sr(R_SK + 1), sr(P_SSK + 1)),
      's_and_b32 %s, %s, 0xffff' % (sr(R_SK + 1), sr(R_SK + 1)),
      's_mov_b32 %s, 4096' % sr(R_SK + 2),
      's_mov_b32 %s, 0x20000' % sr(R_SK + 3))
    cv.SD = V.get(2, top=True)
    cv.HD = V.get(top=True)
    s('s_lshl_b32 %s, %s, 2' % (sr(S_T1), sr(S_PAIR)),
      'v_mov_b32 %s, %s' % (vr(cv.SD), sr(S_T1)),
      'global_load_dword %s, %s, %s' % (vr(cv.SD), vr(cv.SD), sr(P_SSD, 2)))
    s('v_add_u32 %s, %s, %s' % (vr(cv.HD), vr(V_N), vr(V_Q)),
      'v_subrev_u32 %s, 16, %s' % (vr(cv.HD), vr(cv.HD)),
      'v_lshlrev_b32 %s, 2, %s' % (vr(cv.HD), vr(cv.HD)),
      'buffer_load_dword %s, %s, %s, 0 offen' % (vr(cv.HD), vr(cv.HD), sr(R_SK, 4)))
    for c in range(2):
        s('s_mul_i32 %s, %s, %d' % (sr(S_T2), sr(S_B), KC_CH),
          's_mul_i32 %s, %s, %d' % (sr(S_T3), sr(S_A), (16 + 8320) if c == 0 else 8320),
          's_add_u32 %s, %s, %s' % (sr(S_T3), sr(S_T3), sr(S_T2)),
          's_add_u32 m0, %s, %d' % (sr(S_T3), L_KC + 64 + (0 if c == 0 else 16 + 4160)),
          's_lshl_b32 %s, %s, 3' % (sr(S_C), sr(S_A)),
          's_add_u32 %s, %s, %d' % (sr(S_C), sr(S_C), 4 * c))
        for part in range(4):
            cv.ktk = s.mem('buffer_load_dwordx4 %s, %s, %s offen offset:%d nt lds' % (vr(V_L16), sr(R_SK, 4), sr(S_C), part * 1024))


def conv_u_prep(s, cv):
    cv.UA = V.get(2, 1, top=True)
    cv.UE = V.get(top=True)
    cv.UN = V.get(top=True)
    cv.U = V.get(16, top=True)
    U, UA, UE = cv.U, cv.UA, cv.UE
    s('s_lshl1_add_u32 %s, %s, %s' % (sr(S_T0), sr(S_PAIR), sr(S_B)),
      's_mul_i32 %s, %s, %d' % (sr(S_T1), sr(S_T0), KVT_STR),
      's_mul_i32 %s, %s, %d' % (sr(S_T3), sr(S_A), 171 * 16),
      's_add_u32 %s, %s, %s' % (sr(S_T1), sr(S_T1), sr(S_T3)),
      's_add_u32 %s, %s, %d' % (sr(S_T1), sr(S_T1), WS_KVT + 10 * 16),
      'v_add_u32 %s, %s, %s' % (vr(UA), sr(S_T1), vr(V_L16)))
    s('s_sub_u32 %s, 44, %s' % (sr(S_T0), sr(S_A)),
      'v_cmp_gt_u32 vcc, %s, %s' % (sr(S_T0), vr(V_LANE)),
      'v_cndmask_b32 %s, %s, %s, vcc' % (vr(UA + 1), vr(V_OOB), vr(UA)),
      'v_cndmask_b32 %s, 0, %s, vcc' % (vr(UE), vr(V_TAG)))
    s('s_sub_u32 %s, 43, %s' % (sr(S_T0), sr(S_A)),
      'v_cmp_gt_u32 vcc, %s, %s' % (sr(S_T0), vr(V_LANE)),
      'v_cndmask_b32 %s, %s, %s, vcc' % (vr(cv.UN), vr(V_OOB), vr(UA)))
    cv.uloads = []
    for i in range(3):
        cv.uloads.append('buffer_load_dwordx4 %s, %s, %s, 0 offen offset:%d sc1' % (vr(U + 4 * i, 4), vr(UA + (i >> 1)), sr(R_WS, 4), 1024 * i))
    for i in range(3):
        cv.uloads.append('buffer_load_dword %s, %s, %s, 0 offen offset:%d sc1' % (vr(U + 12 + i), vr(UA if i < 2 else cv.UN), sr(R_WS, 4), 1024 * i + 16))
    cv.uchecks = [(U + 3, U + 7, V_TAG), (U + 11, None, UE)]


def conv_addr(s, cv):
    cv.ah, cv.az, cv.au, cv.vN, cv.vM = [V.get(top=True) for _ in range(5)]
    t, e = V.get(), V.get()
    ah, az, au, vN, vM = cv.ah, cv.az, cv.au, cv.vN, cv.vM
    s('v_mul_u32_u24 %s, 4160, %s' % (vr(ah), vr(V_Q)))
    s('v_min_u32 %s, 1, %s' % (vr(e), vr(V_Q)))
    s('v_lshl_add_u32 %s, %s, 4, %s' % (vr(ah), vr(e), vr(ah)))
    s('v_lshl_add_u32 %s, %s, 2, %s' % (vr(ah), vr(V_N), vr(ah)))
    s('s_mul_i32 %s, %s, %d' % (sr(S_T2), sr(S_B), KC_CH),
      's_add_u32 %s, %s, %d' % (sr(S_T3), sr(S_T2), L_KC),
      'v_add_u32 %s, %s, %s' % (vr(ah), sr(S_T3), vr(ah)))
    s('s_mul_i32 %s, %s, %d' % (sr(S_T2), sr(S_B), UC_CH),
      's_mul_i32 %s, %s, 4640' % (sr(S_T3), sr(S_A)),
      's_add_u32 %s, %s, %s' % (sr(S_T3), sr(S_T3), sr(S_T2)),
      'v_lshl_add_u32 %s, %s, 3, %s' % (vr(az), vr(V_LANE), sr(S_T3)))
    s('v_mul_u32_u24 %s, 12, %s' % (vr(au), vr(V_LANE)))
    s('s_mul_i32 %s, %s, %d' % (sr(S_T2), sr(S_B), UC_CH),
      's_mul_i32 %s, %s, %d' % (sr(S_T3), sr(S_A), 171 * 12),
      's_add_u32 %s, %s, %s' % (sr(S_T3), sr(S_T3), sr(S_T2)),
      'v_add_u32 %s, %s, %s' % (vr(au), sr(S_T3), vr(au)))
    s('v_add_u32 %s, 1, %s' % (vr(t), vr(V_N)))
    s('v_and_b32 %s, 3, %s' % (vr(e), vr(t)))
    s('v_mul_u32_u24 %s, 4160, %s' % (vr(vN), vr(e)))
    s('v_min_u32 %s, 1, %s' % (vr(e), vr(e)))
    s('v_lshrrev_b32 %s, 2, %s' % (vr(t), vr(t)))
    s('v_add3_u32 %s, %s, %s, %s' % (vr(t), vr(t), vr(e), vr(V_Q)))
    s('v_lshl_add_u32 %s, %s, 4, %s' % (vr(vN), vr(t), vr(vN)))
    s('s_mul_i32 %s, %s, %d' % (sr(S_T3), sr(S_B), KC_CH),
      's_lshl_b32 %s, %s, 8' % (sr(S_T1), sr(S_A)),
      's_add_u32 %s, %s, %s' % (sr(S_T3), sr(S_T3), sr(S_T1)),
      's_add_u32 %s, %s, %d' % (sr(S_T3), sr(S_T3), L_KC),
      'v_add_u32 %s, %s, %s' % (vr(vN), sr(S_T3), vr(vN)))
    s('v_and_b32 %s, 1, %s' % (vr(t), vr(V_N)))
    s('v_sub_u32 %s, 1, %s' % (vr(t), vr(t)))
    s('v_mul_u32_u24 %s, 4640, %s' % (vr(vM), vr(t)))
    s('v_lshrrev_b32 %s, 1, %s' % (vr(t), vr(V_N)))
    s('v_lshlrev_b32 %s, 6, %s' % (vr(t), vr(t)))
    s('v_sub_u32 %s, %s, %s' % (vr(vM), vr(vM), vr(t)))
    s('v_lshl_add_u32 %s, %s, 4, %s' % (vr(vM), vr(V_Q), vr(vM)))
    s('s_mul_i32 %s, %s, %d' % (sr(S_T2), sr(S_B), UC_CH),
      's_lshl_b32 %s, %s, 8' % (sr(S_T1), sr(S_A)),
      's_add_u32 %s, %s, %s' % (sr(S_T3), sr(S_T2), sr(S_T1)),
      's_add_u32 %s, %s, %d' % (sr(S_T3), sr(S_T3), L_UC + 448),
      'v_add_u32 %s, %s, %s' % (vr(vM), sr(S_T3), vr(vM)))
    return [t, e]


def conv_body(a, cv, side=None, pre_issued=True, early=None, release=True, last=None):
    U, HD = cv.U, cv.HD
    vN, vM = cv.vN, cv.vM
    a('ds_write_b32 %s, %s' % (vr(cv.ah), vr(HD)))
    a('ds_write_b64 %s, %s offset:%d' % (vr(cv.az), vr(V_ZERO, 2), L_UC + 4096))
    if early is not None:
        a.extend(early)
    poll(a, cv.uloads, cv.uchecks, pre_issued=pre_issued, sleep=OPT['slp2'] if pre_issued else OPT['slp'])
    a.touch(vr(U, 15))
    U1 = V.get(9, 1)
    for i in range(3):
        if i == 2:
            a('v_cmp_gt_u32 vcc, 43, %s' % vr(V_LANE), 's_mov_b64 exec, vcc')
        for k in range(3):
            a('ds_write_b32 %s, %s offset:%d' % (vr(cv.au), vr(U + 4 * i + k), L_UC - 8 + 768 * i + 4 * k))
            hi = U + 4 * i + k + 1 if k < 2 else U + 12 + i
            a('v_alignbit_b32 %s, %s, %s, 16' % (vr(U1 + 3 * i + k), vr(hi), vr(U + 4 * i + k)))
        for k in range(3):
            tk = a.mem('ds_write_b32 %s, %s offset:%d' % (vr(cv.au), vr(U1 + 3 * i + k), L_UC - 8 + 4640 + 768 * i + 4 * k))
    a('s_mov_b64 exec, -1')
    a.wait(tk, cv.ktk)
    a('s_barrier')
    put((U, 16), (U1, 9), HD, (cv.UA, 2), cv.UE, cv.UN)
    if release:
        put(cv.ah, cv.az, cv.au)
    stamp(a, 'conv_ld')
    if not pre_issued:
        astamp(a, 11)
    with V.borrow((GP, 12)):
        CA = [V.get(4) for _ in range(8)]
    FN, FM = [[V.get(4) for _ in range(8)] for _ in range(2)]
    AW = V.get(3, 1)
    t = V.get()
    rdN = lambda x, cc: 'ds_read_b128 %s, %s offset:%d' % (vr(FN[x], 4), vr(vN), 512 * x + 64 * cc)
    rdM = lambda x, cc: 'ds_read_b128 %s, %s offset:%d' % (vr(FM[x], 4), vr(vM), 512 * (7 - x) + 64 * cc)
    m = Stream()
    m(rdN(0, 0))
    for x in range(7, -1, -1):
        m(rdM(x, 0))
    m('v_lshlrev_b32 %s, 1, %s' % (vr(t), vr(V_N)))
    m('v_lshl_add_u32 %s, %s, 6, %s' % (vr(t), vr(V_Q), vr(t)))
    for j in range(3):
        m('v_add_u32 %s, %d, %s' % (vr(AW + j), j, vr(t)))
        m('v_mul_u32_u24 %s, 171, %s' % (vr(AW + j), vr(AW + j)))
        m('v_lshrrev_b32 %s, 9, %s' % (vr(AW + j), vr(AW + j)))
        m('v_add_u32 %s, %s, %s' % (vr(AW + j), vr(AW + j), vr(t)))
        m('s_mul_i32 %s, %s, %d' % (sr(S_T3), sr(S_WAVE), CO_W),
          'v_lshl_add_u32 %s, %s, 2, %s' % (vr(AW + j), vr(AW + j), sr(S_T3)))

    def stage(m, i):
        tk = None
        for r in range(4):
            c = 256 * i + 32 * (r >> 1) + (r & 1)
            tk = m.mem('ds_write_b32 %s, %s offset:%d' % (vr(AW + c % 3), vr(CA[i] + r), L_CO + 4 * (c + c // 3)))
        return tk

    for cc in range(4):
        if cc == 3:
            sc = Sched(a)
            sc.VM_GAP = 60
            if side is not None:
                qs_ = [sc.add(x) for x in side]
            sc.run(m)
            if side is not None:
                sc.flush(qs_[0])
            sc.VM_GAP = 30
            m = Stream()
            if last is not None:
                last(m, None)
        for aa in range(8):
            for dl in range(7 - aa, -1, -1):
                i = aa + dl
                z = cc == 0 and aa == 0
                m('v_mfma_f32_16x16x32_bf16 %s, %s, %s, %s' % (vr(CA[i], 4), vr(FM[dl], 4), vr(FN[aa], 4),
                                                              '0' if z else vr(CA[i], 4)))
                if cc == 0 and aa == 0 and dl > 0:
                    m(rdN(8 - dl, 0))
                if dl == 7 - aa:
                    if cc < 3:
                        m(rdM(dl, cc + 1))
                    elif last is not None:
                        last(m, FM[dl])
            if cc < 3:
                m(rdN(aa, cc + 1))
            else:
                if last is not None:
                    last(m, FN[aa])
                if 2 <= aa:
                    stage(m, aa - 2)
    stage(m, 6)
    cv.stk = stage(m, 7)
    sc.run(m)
    print('conv leftover', sc.pending(), 'model time', sc.t)
    sc.flush()
    put(*[(r, 4) for r in CA])
    if last is None:
        put(*[(r, 4) for r in FN + FM])
    put((AW, 3), t)
    if release:
        put(vN, vM)
    stamp(a, 'conv_mm')
    if not pre_issued:
        astamp(a, 12)


def conv_final(s, cv, Y0=None):
    SD = cv.SD
    ay, ak, ag = V.get(), V.get(), V.get()
    Y1 = [V.get(4) for _ in range(4)]
    own0 = Y0 is None
    if own0:
        Y0 = [V.get(4) for _ in range(4)]
    Ys = [Y0, Y1, Y1]
    KVs = [V.get(4), V.get(4)]
    D = V.get(6, 1)
    GO = V.get(4)
    t = V.get()
    s('v_lshlrev_b32 %s, 4, v0' % vr(ay))
    s('v_mul_u32_u24 %s, 6, v0' % vr(ak))
    s('v_sub_u32 %s, %d, %s' % (vr(ak), 4090, vr(ak)))
    s('v_and_b32 %s, -4, %s' % (vr(ak), vr(ak)))
    s('v_and_b32 %s, 1, v0' % vr(t))
    s('v_sub_u32 %s, 1, %s' % (vr(t), vr(t)))
    s('v_mul_u32_u24 %s, 4640, %s' % (vr(t), vr(t)))
    s('v_add_u32 %s, %s, %s' % (vr(ak), vr(ak), vr(t)))

    def reads(j):
        if j > 0:
            s('v_subrev_u32 %s, 1536, %s' % (vr(ak), vr(ak)))
        if j == 2:
            s('v_max_i32 %s, 0, %s' % (vr(ak), vr(ak)))
        for ch in range(2):
            for k in range(2):
                s('ds_read_b32 %s, %s offset:%d' % (vr(KVs[j & 1] + 2 * ch + k), vr(ak), L_UC + ch * UC_CH + 4 * k))
        for w in range(4):
            s('ds_read_b128 %s, %s offset:%d' % (vr(Ys[j][w], 4), vr(ay), L_CO + w * CO_W + j * 4096))

    reads(0)
    s('v_and_b32 %s, 0xffff0000, %s' % (vr(SD + 1), vr(SD)))
    s('v_lshlrev_b32 %s, 16, %s' % (vr(SD), vr(SD)))
    s('s_mul_i32 %s, %s, %d' % (sr(S_T1), sr(S_PAIR), G_STR),
      's_add_u32 %s, %s, %d' % (sr(S_T1), sr(S_T1), WS_G),
      'v_add_u32 %s, %s, %s' % (vr(ag), sr(S_T1), vr(ay)))
    s('v_mov_b32 %s, %s' % (vr(GO + 3), vr(V_TAG)))
    reads(1)
    for j in range(3):
        KV, Y = KVs[j & 1], Ys[j]
        if j > 0:
            s('v_add_u32 %s, 4096, %s' % (vr(ag), vr(ag)))
        if j == 2:
            s('v_cmp_gt_u32 vcc, 192, v0', 'v_cndmask_b32 %s, %s, %s, vcc' % (vr(ag), vr(V_OOB), vr(ag)))
        for ch in range(2):
            d = D + 3 * ch
            s('v_lshlrev_b32 %s, 16, %s' % (vr(d), vr(KV + 2 * ch + 1)))
            s('v_and_b32 %s, 0xffff0000, %s' % (vr(d + 1), vr(KV + 2 * ch)))
            s('v_lshlrev_b32 %s, 16, %s' % (vr(d + 2), vr(KV + 2 * ch)))
            for e in range(3):
                s('v_mul_f32 %s, %s, %s' % (vr(d + e), vr(d + e), vr(SD + ch)))
        for ch in range(2):
            d, y, y2 = D + 3 * ch, Y[2 * ch], Y[2 * ch + 1]
            for e in range(3):
                s('v_add_f32 %s, %s, %s' % (vr(y + e), vr(y + e), vr(y2 + e)))
            for e in range(3):
                s('v_cvt_pk_bf16_f32 %s, %s, %s' % (vr(d + e), vr(y + e), vr(d + e)))
        if j == 0:
            cv.mark = len(s.groups)
        if j == 1:
            reads(2)
        for ch in range(2):
            d = D + 3 * ch
            for e in range(3):
                s('v_lshlrev_b32 %s, 16, %s' % (vr(t), vr(d + e)))
                s('v_and_b32 %s, 0xffff0000, %s' % (vr(d + e), vr(d + e)))
                s('v_add_f32 %s, %s, %s' % (vr(d + e), vr(d + e), vr(t)))
        for e in range(3):
            s('v_cvt_pk_bf16_f32 %s, %s, %s' % (vr(GO + e), vr(D + e), vr(D + 3 + e)))
        s('buffer_store_dwordx4 %s, %s, %s, 0 offen sc1' % (vr(GO, 4), vr(ag), sr(R_WS, 4)))
    s('s_nop 1')
    return [ay, ak, ag, (D, 6), (GO, 4), t, (SD, 2)] + [(r, 4) for r in (Y0 if own0 else []) + Y1 + KVs]


ACC = V.get(48, top=True)
AF = V.get(48, top=True)
with V.borrow((GP, 12)):
    ONES = V.get(4)
    RBA = V.get(8)
def h_touch(st, ta):
    st('v_lshrrev_b32 %s, 3, %s' % (vr(ta), vr(V_LANE)),
       'v_mul_u32_u24 %s, %d, %s' % (vr(ta), 36864 - 1024, vr(ta)),
       'v_lshl_add_u32 %s, %s, 7, %s' % (vr(ta), vr(V_LANE), vr(ta)),
       'v_cmp_gt_u32 vcc, 48, %s' % vr(V_LANE),
       'v_cndmask_b32 %s, %s, %s, vcc' % (vr(ta), vr(V_OOB), vr(ta)))
    st('s_mul_i32 %s, %s, 216' % (sr(S_T2), sr(S_RB)),
       's_add_u32 %s, %s, %s' % (sr(S_T2), sr(S_T2), sr(S_PT)),
       's_lshl_b32 %s, %s, 10' % (sr(S_T2), sr(S_T2)),
       's_add_u32 %s, %s, %d' % (sr(S_T2), sr(S_T2), WS_H),
       'buffer_load_dword %s, %s, %s, %s offen %s ;junk' % (vr(V_JUNK), vr(ta), sr(R_WS, 4), sr(S_T2), TPOL))


tag_ready(a)
a('v_cmp_gt_u32 vcc, 9, %s' % vr(V_N), 'v_cndmask_b32 %s, 0, %s, vcc' % (vr(V_EXP9), vr(V_TAG)))
for i in range(4):
    a('v_mov_b32 %s, 0x3f803f80' % vr(ONES + i))
s0 = Stream()
for i in range(MT):
    for k in range(2):
        s0('v_lshlrev_b32 %s, 16, %s' % (vr(BASE + 4 * i + 2 * k), vr(XS + 2 * i + k)))
        s0('v_and_b32 %s, 0xffff0000, %s' % (vr(BASE + 4 * i + 2 * k + 1), vr(XS + 2 * i + k)))
V.free -= set(range(V_PW, V_PW + 4))
with V.borrow(*HOMES):
    s0late, s0d = stats_publish(s0, BASE, 0, False, pk=False, dreg=V_PW)
d1 = Stream()
btk[2] = b_dma(d1, 2)
xtk[3] = x_dma(d1, 3, 0)
RT0 = Stream()
rt0 = b_read(RT0, 0)
d1.wait(rt0)
btk[3] = b_dma(d1, 3)
d2 = a
d2('global_load_ushort %s, %s, %s' % (vr(LAMT), vr(lad), sr(P_LRE, 2)))
d2('global_load_ushort %s, %s, %s' % (vr(LAMT + 1), vr(lad), sr(P_LIM, 2)))
d2('global_load_ushort %s, %s, %s' % (vr(LAMT + 2), vr(lad), sr(P_LDT, 2)))
d2('global_load_dwordx2 %s, %s, %s' % (vr(V_DSK, 2), vr(dad), sr(P_DSK, 2)))
a.extend(RT0)
stamp(a, 's0')
put((V_DUMMY, 4))
pre = {k: Stream() for k in range(18)}
side = {k: Stream() for k in range(18)}


class Pace:
    def __init__(self, per=3):
        self.vm = {k: Stream() for k in range(18)}
        self.k, self.n, self.per = 0, 0, per

    def add(self, st, earliest=0):
        if self.k < earliest:
            self.k, self.n = earliest, 0
        for g in st.groups:
            if self.n >= self.per:
                self.k, self.n = self.k + 1, 0
            self.vm[self.k].groups.append(g)
            self.n += sum(1 for it in g if not isinstance(it, tuple) and it.kind == 'vmem')
        return self.k


pc = Pace(OPT['per'])
need = {}
side[0].extend(s0)
put(lad, dad)
pc.add(d1)
bq = Stream()
rts = {0: rt0}
for blk in range(4, 9):
    rts[blk - 3] = b_read(bq, blk - 3)
    st = Stream()
    xtk[blk] = x_dma(st, blk, 0)
    st.wait(rts[blk - 3])
    btk[blk] = b_dma(st, blk)
    pc.add(st)
for kp in range(6, 9):
    rts[kp] = b_read(bq, kp)
for kp in range(1, 9):
    need[2 * kp] = [rts[kp]]
cv = Conv()
cfa, cfe, cfv = V.get(top=True), V.get(top=True), V.get(top=True)
side[0]('s_mul_i32 %s, %s, 43' % (sr(S_T1), sr(S_CG)),
         's_lshr_b32 %s, %s, 5' % (sr(S_T1), sr(S_T1)),
         's_mul_i32 %s, %s, %d' % (sr(S_T1), sr(S_T1), 18 * 16),
         's_add_u32 %s, %s, %d' % (sr(S_T1), sr(S_T1), WS_CPF),
         'v_lshl_add_u32 %s, %s, 4, %s' % (vr(cfa), vr(V_LANE), sr(S_T1)))
side[0]('v_cmp_gt_u32 vcc, 36, %s' % vr(V_LANE),
         'v_cndmask_b32 %s, %s, %s, vcc' % (vr(cfa), vr(V_OOB), vr(cfa)),
         'v_cndmask_b32 %s, 0, %s, vcc' % (vr(cfe), vr(V_TAG)))
cfl = 'buffer_load_dword %s, %s, %s, 0 offen sc1' % (vr(cfv), vr(cfa), sr(R_WS, 4))
side[0]('s_mul_i32 %s, %s, %d' % (sr(S_T0), sr(S_PT), 37 * 1024),
        's_add_u32 %s, %s, %d' % (sr(S_CPB), sr(S_T0), WS_CP))
ca_ = Stream()
carel = conv_addr(ca_, cv)
side[0].extend(ca_)
stt = Stream()
ta = carel[0]
if OPT['tpos'] == 1:
    h_touch(stt, ta)
stt('s_mov_b32 %s, %d' % (sr(S_T2), WS_ST + ST_SZ),
    'buffer_load_dword %s, %s, %s, %s offen sc1 ;junk' % (vr(V_JUNK), vr(V_STW), sr(R_WS, 4), sr(S_T2)))
stt('v_lshrrev_b32 %s, 1, %s' % (vr(ta), vr(V_LANE)),
    'v_min_u32 %s, 4, %s' % (vr(ta), vr(ta)),
    'v_mul_u32_u24 %s, %d, %s' % (vr(ta), NRB * 256, vr(ta)),
    'v_and_b32 %s, 1, %s' % (vr(carel[1]), vr(V_LANE)),
    'v_lshl_add_u32 %s, %s, 7, %s' % (vr(ta), vr(carel[1]), vr(ta)),
    's_lshl_b32 %s, %s, 8' % (sr(S_T2), sr(S_RB)),
    's_add_u32 %s, %s, %d' % (sr(S_T2), sr(S_T2), WS_HF),
    'buffer_load_dword %s, %s, %s, %s offen sc1 ;junk' % (vr(V_JUNK), vr(ta), sr(R_WS, 4), sr(S_T2)))
xe = V.get()
lp = Stream()
with V.borrow((WCV, 32)):
    lam_compute(lp, LAMT, False, LAM)
    L2, L4, L8, L48, L72, L96, L192, L288 = [V.get(2) for _ in range(8)]
for d_, x_, y_ in ((L2, LAM, LAM), (L4, L2, L2), (L8, L4, L4), (L12, L8, L4), (L24, L12, L12), (L48, L24, L24), (L72, L48, L24),
                   (L96, L48, L48), (L192, L96, L96), (L288, L192, L96), (L384, L192, L192)):
    cmul_plain(lp, d_, x_, y_)
for (dst, opts) in ((LQ96, (L96, L192, L288)), (LQ24, (L24, L48, L72))):
    lp('v_mov_b32 %s, 1.0' % vr(dst), 'v_mov_b32 %s, 0' % vr(dst + 1))
    for qi, o in enumerate(opts):
        lp('v_cmp_eq_u32 vcc, %d, %s' % (qi + 1, vr(V_Q)),
           'v_cndmask_b32 %s, %s, %s, vcc' % (vr(dst), vr(dst), vr(o)),
           'v_cndmask_b32 %s, %s, %s, vcc' % (vr(dst + 1), vr(dst + 1), vr(o + 1)))
for r in (L2, L4, L8, L48, L72, L96, L192, L288):
    put((r, 2))
lp('v_and_b32 %s, 0xffff0000, %s' % (vr(V_DSK + 3), vr(V_DSK + 1)))
lp('v_lshlrev_b32 %s, 16, %s' % (vr(V_DSK + 2), vr(V_DSK + 1)))
lp('v_and_b32 %s, 0xffff0000, %s' % (vr(V_DSK + 1), vr(V_DSK)))
lp('v_lshlrev_b32 %s, 16, %s' % (vr(V_DSK), vr(V_DSK)))
side[3].extend(lp)
with V.borrow(*HOMES):
    G0 = V.get(24)
side[0]('v_add_u32 %s, %s, %s' % (vr(xe), sr(S_XCC), vr(V_TAG)),
        'v_cmp_gt_u32 vcc, 9, %s' % vr(V_N),
        'v_cndmask_b32 %s, 0, %s, vcc' % (vr(xe), vr(xe)))
gl = stats_loads(0, G0)
st = Stream()
if OPT['ncp0']:
    st(cfl)
for i in range(0, 12, 2):
    st(gl[i], gl[i + 1])
print('gather by k', pc.add(st, 11))
kvm = KVm()
st = Stream()
with V.borrow(*HOMES):
    kv_dma(st, kvm)
print('kv dma by k', pc.add(st, 11))
if OPT['ncp0'] == 0:
    st = Stream()
    st(cfl)
    pc.add(st)
pc.add(stt)
lastb = rts[8]


def s0_poll(s):
    p = Stream()
    L, Lc, Lr = newlabel('poll'), newlabel('pollc'), newlabel('pollr')
    acc = V.get(2, 1)
    p.touch(vr(G0, 24))
    p('v_xor_b32 %s, %s, %s' % (vr(acc), vr(G0 + 1), vr(V_EXP9)))
    for i in range(MT):
        if i:
            p('v_bitop3_b32 %s, %s, %s, %s bitop3:0xf6' % (vr(acc), vr(acc), vr(G0 + 4 * i + 1), vr(V_EXP9)))
        p('v_bitop3_b32 %s, %s, %s, %s bitop3:0xf6' % (vr(acc), vr(acc), vr(G0 + 4 * i + 3), vr(xe)))
    p('v_cmp_ne_u32 vcc, 0, %s' % vr(acc))
    p('s_mov_b32 %s, %d' % (sr(S_FAST), 0 if OPT['slow'] else 1))
    p('s_cmp_lg_u64 vcc, 0')
    p('s_cbranch_scc1 %s' % L)
    p.label(Lc)
    s.join(p)
    Ld = newlabel('polld')
    tail.label(L)
    tail.extend(s0late)
    tail('s_mov_b32 %s, %d' % (sr(S_SPIN), SPIN))
    tail.label(Lr)
    for region in (0, 2):
        for t in stats_loads(0, G0, region):
            tail(t)
        tail('s_waitcnt vmcnt(0)')
        tail('v_mov_b32 %s, 0' % vr(acc))
        for i in range(MT):
            tail('v_sub_u32 %s, %s, %s' % (vr(acc + 1), vr(G0 + 4 * i + 3), vr(V_EXP9)))
            tail('v_lshrrev_b32 %s, 4, %s' % (vr(acc + 1), vr(acc + 1)))
            tail('v_or_b32 %s, %s, %s' % (vr(acc), vr(acc), vr(acc + 1)))
            tail('v_bitop3_b32 %s, %s, %s, %s bitop3:0xf6' % (vr(acc), vr(acc), vr(G0 + 4 * i + 1), vr(V_EXP9)))
        tail('v_cmp_ne_u32 vcc, 0, %s' % vr(acc))
        if region == 0:
            tail('s_cmp_eq_u64 vcc, 0')
            tail('s_cbranch_scc1 %s' % Ld)
    tail('s_sub_u32 %s, %s, 1' % (sr(S_SPIN), sr(S_SPIN)))
    tail('s_cselect_b64 vcc, 0, vcc')
    tail('s_cmp_lg_u64 vcc, 0')
    tail('s_cbranch_scc1 %s' % Lr)
    tail.label(Ld)
    tail('v_cmp_ne_u32 vcc, %s, %s' % (vr(G0 + 3), vr(xe)))
    tail('s_cmp_eq_u64 vcc, 0')
    tail('s_cselect_b32 %s, %d, 0' % (sr(S_FAST), 0 if OPT['slow'] else 1))
    tail('s_branch %s' % Lc)
    put((acc, 2))


s0_poll(side[14])
ttk, LNP0 = ln_table(side[14], 0, G0, None)
put(xe)
pre[15].wait(lastb)
NCP0 = OPT['ncp0']


def WC(s, j):
    idx = s * 4 + j
    if idx < 28:
        return ar(144 + idx * 4, 4)
    return vr(WCV + (idx - 28) * 4, 4)


def cp_load(s_, s, j):
    ld = 'buffer_load_dwordx4 %s, %s, %s, %s offen offset:%d sc1' % (WC(s, j), vr(V_L16), sr(R_WS, 4), sr(S_CPB), j * 1024)
    if j == 3:
        s_(ld, 's_add_u32 %s, %s, 4096' % (sr(S_CPB), sr(S_CPB)))
    else:
        s_(ld)


if NCP0:
    st = Stream()
    poll(st, [cfl], [(cfv, None, cfe)], pre_issued=True, sleep=6)
    for idx in range(NCP0):
        cp_load(st, idx // 4, idx % 4)
    pc.add(st, 14)
put((V_DB, 2), (V_DX, 3))
st = Stream()
conv_setup_k(st, cv)
kst = st
gemm_b(a, ACC, AF, lambda s: xtk[s], pre, side, ones=(ONES, RBA), vm=pc.vm, need=need, bq=bq)
a.wait(ttk)
a('s_barrier')
a('v_mov_b32 %s, %s' % (vr(RB), vr(RBA)))
a('v_mov_b32 %s, %s' % (vr(RB + 1), vr(RBA + 4)))
put((ONES, 4), (RBA, 8), (V_PW, 4))
put(*kvm.rel)
put(*carel)
put((V_FB, 2))
stamp(a, 'gemmB1')


def scan_phase(a, layer, ACC, AF, mid=None, x1=None, x2=None, half=None, split_h=None):
    NJ = 2 * MT
    re = lambda j: ACC + (j >> 1) * 4 + (j & 1) * 2
    im = lambda j: ACC + 4 * MT + (j >> 1) * 4 + (j & 1) * 2
    if half is None:
        TB = AF
        for j in range(NJ):
            a('ds_read_b128 %s, %s offset:%d' % (vr(TB + 4 * j, 4), vr(V_TABR), 16 * j))
    else:
        TB = half[1] - 24
        put((AF, 48))

    def prescale(j):
        a('v_pk_mul_f32 %s, %s, %s' % (vr(re(j), 2), vr(re(j), 2), vr(TB + 4 * j, 2)))
        a('v_pk_mul_f32 %s, %s, %s' % (vr(im(j), 2), vr(im(j), 2), vr(TB + 4 * j, 2)))
        a('v_pk_fma_f32 %s, %s, %s, %s op_sel:[0,0,0] op_sel_hi:[1,0,1] neg_lo:[1,0,0] neg_hi:[1,0,0]' %
          (vr(re(j), 2), vr(TB + 4 * j + 2, 2), vr(RB, 2), vr(re(j), 2)))
        a('v_pk_fma_f32 %s, %s, %s, %s op_sel:[0,1,0] op_sel_hi:[1,1,1] neg_lo:[1,0,0] neg_hi:[1,0,0]' %
          (vr(im(j), 2), vr(TB + 4 * j + 2, 2), vr(RB, 2), vr(im(j), 2)))

    def step(dr, di, pr, pi, br, bi):
        a('v_pk_fma_f32 %s, %s, %s, %s op_sel:[0,0,0] op_sel_hi:[1,0,1]' % (vr(dr, 2), vr(pr, 2), vr(LAM, 2), vr(br, 2)))
        a('v_pk_fma_f32 %s, %s, %s, %s op_sel:[0,0,0] op_sel_hi:[1,0,1]' % (vr(di, 2), vr(pi, 2), vr(LAM, 2), vr(bi, 2)))
        a('v_pk_fma_f32 %s, %s, %s, %s op_sel:[0,1,0] op_sel_hi:[1,1,1] neg_lo:[1,0,0] neg_hi:[1,0,0]' %
          (vr(dr, 2), vr(pi, 2), vr(LAM, 2), vr(dr, 2)))
        a('v_pk_fma_f32 %s, %s, %s, %s op_sel:[0,1,0] op_sel_hi:[1,1,1]' % (vr(di, 2), vr(pr, 2), vr(LAM, 2), vr(di, 2)))

    with V.borrow(*HOMES):
        E = V.get(8) if half is None else half[0]
        pub = V.get(4)
    if half is None:
        prescale(0)
        pr, pi = re(0), im(0)
    else:
        pr, pi = E + 4, E + 6
    for j in range(1 if half is None else 6, NJ):
        prescale(j)
        dr, di = E + (j & 1) * 4, E + (j & 1) * 4 + 2
        step(dr, di, pr, pi, re(j), im(j))
        pr, pi = dr, di
        if x1 is not None and j % 3 == 1:
            x1(a)
    EA, F = V.get(2), V.get(2)
    a('v_mov_b32 %s, %s' % (vr(EA), vr(pr)))
    a('v_mov_b32 %s, %s' % (vr(EA + 1), vr(pi)))
    a('v_mov_b32 %s, %s' % (vr(F), vr(pr + 1)))
    a('v_mov_b32 %s, %s' % (vr(F + 1), vr(pi + 1)))
    FA = E
    cfma(a, FA, EA, L12, F)
    a('v_mov_b64 %s, %s' % (vr(FA + 2, 2), vr(FA, 2)))
    a('v_mov_b32 %s, %s' % (vr(pub + 1), vr(V_TAG)))
    a('v_mov_b32 %s, %s' % (vr(pub + 3), vr(V_TAG)))
    a('v_permlane16_swap_b32 %s, %s' % (vr(FA), vr(FA + 2)))
    a('v_permlane16_swap_b32 %s, %s' % (vr(FA + 1), vr(FA + 3)))
    a('s_lshl_b32 %s, %s, 13' % (sr(S_T0), sr(S_PT)))
    a('v_mov_b64 %s, %s' % (vr(FA + 4, 2), vr(FA, 2)))
    a('v_mov_b64 %s, %s' % (vr(FA + 6, 2), vr(FA + 2, 2)))
    a('s_add_u32 %s, %s, %d' % (sr(S_T0), sr(S_T0), WS_E + layer * 36 * 8192))
    for k in range(4):
        a('v_permlane32_swap_b32 %s, %s' % (vr(FA + k), vr(FA + 4 + k)))
    cfma(a, FA + 2, FA, L24, FA + 2)
    cfma(a, FA + 4, FA + 2, L24, FA + 4)
    cfma(a, FA + 6, FA + 4, L24, FA + 6)
    a('v_mov_b32 %s, %s' % (vr(pub), vr(FA + 6)))
    a('v_mov_b32 %s, %s' % (vr(pub + 2), vr(FA + 7)))
    a('buffer_store_dwordx4 %s, %s, %s, %s offen sc1' % (vr(pub, 4), vr(V_EW), sr(R_WS, 4), sr(S_T0)))
    stamp(a, 'e_pub%d' % layer)
    PQ = F
    a('v_mov_b32 %s, 0' % vr(PQ))
    a('v_mov_b32 %s, 0' % vr(PQ + 1))
    for qi in range(1, 4):
        a('v_cmp_eq_u32 vcc, %d, %s' % (qi, vr(V_Q)),
          'v_cndmask_b32 %s, %s, %s, vcc' % (vr(PQ), vr(PQ), vr(FA + 2 * qi - 2)),
          'v_cndmask_b32 %s, %s, %s, vcc' % (vr(PQ + 1), vr(PQ + 1), vr(FA + 2 * qi - 1)))
    put((pub, 4), (E, 8))
    put((AF, 48) if half is None else (half[1], 24))
    NL = 6
    loads, checks, box = [], [], []

    def mk(cs):
        CG_ = V.get(4 * NL)
        AD, EX = V.get(NL, 1), V.get(NL, 1)
        box.extend([CG_, AD, EX])
        cs('s_lshl_b32 %s, %s, 13' % (sr(S_T0), sr(S_PT)),
           's_add_u32 %s, %s, %d' % (sr(S_T0), sr(S_T0), WS_E + layer * 36 * 8192),
           'v_add_u32 %s, %s, %s' % (vr(EX), sr(S_T0), vr(V_ER)))
        for j in range(NL - 1, -1, -1):
            cs('v_subrev_u32 %s, %d, %s' % (vr(AD + j), 1024 * j, vr(EX)),
               'v_cmp_le_i32 vcc, %d, %s' % (1024 * j, vr(V_ER)),
               'v_cndmask_b32 %s, %s, %s, vcc' % (vr(AD + j), vr(V_OOB), vr(AD + j)),
               'v_cndmask_b32 %s, 0, %s, vcc' % (vr(EX + j), vr(V_TAG)))
        for j in range(NL):
            loads.append('buffer_load_dwordx4 %s, %s, %s, 0 offen sc1' % (vr(CG_ + 4 * j, 4), vr(AD + j), sr(R_WS, 4)))
            checks.append((CG_ + 4 * j + 1, CG_ + 4 * j + 3, EX + j))
        for l_ in loads:
            cs(l_)

    post = mid(a, mk)
    CG_, AD, EX = box
    poll(a, loads, checks, pre_issued=True)
    stamp(a, 'carry%d' % layer)
    if post is not None:
        a.extend(post)
    put((AD, NL), (EX, NL))
    for j in range(NL):
        a('v_mov_b32 %s, %s' % (vr(CG_ + 4 * j + 1), vr(CG_ + 4 * j + 2)))
    for j in range(NL - 2, -1, -1):
        cfma(a, CG_ + 4 * j, CG_ + 4 * j + 4, L384, CG_ + 4 * j)
    H, Y = V.get(2), V.get(2)
    cmul(a, H, CG_, LQ96)
    for sw in ('v_permlane32_swap_b32', 'v_permlane16_swap_b32'):
        a('v_mov_b64 %s, %s' % (vr(Y, 2), vr(H, 2)))
        a('%s %s, %s' % (sw, vr(H), vr(Y)))
        a('%s %s, %s' % (sw, vr(H + 1), vr(Y + 1)))
        a('v_pk_add_f32 %s, %s, %s' % (vr(H, 2), vr(H, 2), vr(Y, 2)))
    cfma(a, PQ, H, LQ24, PQ)
    cfma(a, EA, PQ, L12, EA)
    a('v_mov_b32 %s, %s' % (vr(H), vr(PQ)))
    a('v_mov_b32 %s, %s' % (vr(H + 1), vr(EA)))
    a('v_mov_b32 %s, %s' % (vr(Y), vr(PQ + 1)))
    a('v_mov_b32 %s, %s' % (vr(Y + 1), vr(EA + 1)))
    pr, pi = H, Y
    PK = V.get(4)
    HO = CG_
    a('s_mul_i32 %s, %s, 216' % (sr(S_T2), sr(S_RB)))
    a('s_add_u32 %s, %s, %s' % (sr(S_T2), sr(S_T2), sr(S_PT)))
    a('s_lshl_b32 %s, %s, 10' % (sr(S_T2), sr(S_T2)))

    def hstores(tiles):
        txt = []
        for i in tiles:
            txt.append('s_add_u32 %s, %s, %d' % (sr(S_T1), sr(S_T2), WS_H + layer * H_SZ + i * 36864))
            txt.append('buffer_store_dwordx4 %s, %s, %s, %s offen {P}' % (vr(HO + 4 * i, 4), vr(V_L16), sr(R_WS, 4), sr(S_T1)))
        return dual(a, txt, touch=[vr(HO + 4 * tiles[0], 4 * len(tiles))])

    for j in range(NJ):
        step(re(j), im(j), pr, pi, re(j), im(j))
        pr, pi = re(j), im(j)
        pk = PK + (j & 1) * 2
        for hf in range(2):
            a('v_cvt_pk_bf16_f32 %s, %s, %s' % (vr(pk + hf), vr(re(j) + hf), vr(im(j) + hf)))
        if split_h and j == 7:
            tka = hstores([0, 1, 2])
        a('ds_write_b32 %s, %s offset:%d' % (vr(V_HW), vr(pk), (j >> 1) * 1024 + (j & 1) * 128),
          'ds_write_b32 %s, %s offset:%d' % (vr(V_HW), vr(pk + 1), (j >> 1) * 1024 + (j & 1) * 128 + 64))
        if j & 1:
            a('ds_read_b128 %s, %s offset:%d' % (vr(HO + 4 * (j >> 1), 4), vr(V_HR), (j >> 1) * 1024))
        elif x2 is not None and j < 10:
            x2(a)
    a('s_lshl2_add_u32 %s, %s, %s' % (sr(S_T0), sr(S_RB), sr(S_WAVE)))
    a('s_lshl4_add_u32 %s, %s, %s' % (sr(S_T0), sr(S_T0), sr(S_CG)))
    a('s_lshl_b32 %s, %s, 2' % (sr(S_T0), sr(S_T0)))
    a('s_add_u32 %s, %s, %d' % (sr(S_T0), sr(S_T0), WS_HF + layer * NRB * 256))
    if OPT['fine']:
        stamp(a, 'pass2')
    if split_h:
        tk = (tka, hstores([3, 4, 5]))
    else:
        tk = hstores(list(range(MT)))
    return tk, [(EA, 2), (F, 2), (H, 2), (Y, 2), (PK, 4), (CG_, 4 * NL), (ACC, 48)]


def mid0(a, mk):
    put((BASE, 24))
    sd, s2, lr, ks = Stream(), Stream(), Stream(), Stream()
    sd.extend(kst)
    if not NCP0:
        poll(sd, [cfl], [(cfv, None, cfe)], pre_issued=True, sleep=6)
    for idx in range(NCP0, OPT['ncp']):
        cp_load(sd, idx // 4, idx % 4)
    mk(s2)
    with V.borrow(*HOMES):
        kv_main(lr, kvm, ks)
    lr = weave(lr, s2, 0.45, 0.6)
    lr = weave(lr, sd, 0.62, 1.0)
    for i_, p_ in enumerate(split(lr, 8)):
        a.extend(p_)
        if OPT['fine'] > 1:
            stamp(a, 'kq%d' % i_)
    if OPT['fine']:
        stamp(a, 'kvcore')
    a.extend(ks)
    put(cfa, cfe, cfv)
    V.claim(WCV, 32)
    conv_u_prep(a, cv)
    stamp(a, 'kv')
    return None


def ln_rest0_plain(r, P):
    b, tmp = V.get(2), V.get(4)
    for i in range(MT):
        x = BASE + 4 * i
        k_, lane = tile_src(i)
        for e in range(2):
            r('v_mov_b32_dpp %s, %s row_newbcast:%d row_mask:0xf bank_mask:0xf' % (vr(b + e), vr(P + 2 * k_ + e), lane))
        for k in range(2):
            r('v_lshlrev_b32 %s, 16, %s' % (vr(x + 2 * k), vr(XS + 2 * i + k)))
            r('v_and_b32 %s, 0xffff0000, %s' % (vr(x + 2 * k + 1), vr(XS + 2 * i + k)))
        for k in range(4):
            r('v_sub_f32 %s, %s, %s' % (vr(x + k), vr(x + k), vr(b)))
        for k in range(2):
            r('v_cvt_pk_bf16_f32 %s, %s, %s' % (vr(tmp + 2 * k), vr(x + 2 * k), vr(x + 2 * k + 1)))
        for rep in range(3):
            for k in range(2):
                r('v_and_b32 %s, 0xffff0000, %s' % (vr(tmp + 2 * k + 1), vr(tmp + 2 * k)))
                r('v_lshlrev_b32 %s, 16, %s' % (vr(tmp + 2 * k), vr(tmp + 2 * k)))
            for k in range(4):
                if rep == 0:
                    r('v_mul_f32 %s, %s, %s' % (vr(tmp + k), vr(tmp + k), vr(b + 1)))
                elif rep == 1:
                    r('v_mul_f32 %s, %s, %s' % (vr(tmp + k), vr(tmp + k), vr(V_DSK + k)))
                else:
                    r('v_add_f32 %s, %s, %s' % (vr(x + k), vr(x + k), vr(tmp + k)))
            if rep < 2:
                for k in range(2):
                    r('v_cvt_pk_bf16_f32 %s, %s, %s' % (vr(tmp + 2 * k), vr(tmp + 2 * k), vr(tmp + 2 * k + 1)))
    return [(b, 2), (tmp, 4), (P, 4), (XS, 12)]


def hflag_prep(s, layer):
    fa, fv = V.get(), V.get()
    s('s_lshl2_add_u32 %s, %s, %s' % (sr(S_T1), sr(S_RB), sr(S_WAVE)),
      's_lshl_b32 %s, %s, 6' % (sr(S_T1), sr(S_T1)),
      's_add_u32 %s, %s, %d' % (sr(S_T1), sr(S_T1), WS_HF + layer * NRB * 256),
      'v_lshl_add_u32 %s, %s, 2, %s' % (vr(fa), vr(V_N), sr(S_T1)))
    s('v_cmp_gt_u32 vcc, 9, %s' % vr(V_N),
      'v_cndmask_b32 %s, %s, %s, vcc' % (vr(fa), vr(V_OOB), vr(fa)))
    s('s_mul_i32 %s, %s, 216' % (sr(S_T1), sr(S_RB)),
      's_add_u32 %s, %s, %s' % (sr(S_T1), sr(S_T1), sr(S_WAVE)),
      's_lshl_b32 %s, %s, 10' % (sr(S_T1), sr(S_T1)),
      's_add_u32 %s, %s, %d' % (sr(S_HB), sr(S_T1), WS_H + layer * H_SZ))
    fl = 'buffer_load_dword %s, %s, %s, 0 offen sc1' % (vr(fv), vr(fa), sr(R_WS, 4))
    return fa, fv, fl


def hload_next(st, reg):
    st('buffer_load_dwordx4 %s, %s, %s, %s offen sc1' % (vr(reg, 4), vr(V_L16), sr(R_WS, 4), sr(S_HB)),
       's_add_u32 %s, %s, 4096' % (sr(S_HB), sr(S_HB)))


cpn = [0, OPT['ncp']]


def cpx(which, lim):
    def f(st):
        if cpn[which] < lim:
            cp_load(st, cpn[which] // 4, cpn[which] % 4)
            cpn[which] += 1
    return f


htk, hrel = scan_phase(a, 0, ACC, AF, mid0, None, cpx(1, OPT['ncp2']))
assert cpn[1] == OPT['ncp2']
put(*hrel)
a('s_mov_b32 %s, %s' % (sr(S_C), sr(S_T0)))
for l_ in cv.uloads:
    a(l_)
for r_ in range(BASE, BASE + 24):
    V.free.remove(r_)
V.claim(V_PW, 4)
t = V.get()
a('v_mul_u32_u24 %s, %d, %s' % (vr(V_PW), PART_ROW, vr(V_N)))
a('v_lshl_add_u32 %s, %s, 4, %s' % (vr(V_PW), vr(V_Q), vr(V_PW)))
a('s_mul_i32 %s, %s, %d' % (sr(S_T0), sr(S_WAVE), PART_W))
a('v_add_u32 %s, %s, %s' % (vr(V_PW), sr(S_T0), vr(V_PW)))
a('s_lshl_b32 %s, %s, 2' % (sr(S_T0), sr(S_WAVE)))
a('v_add_u32 %s, %s, %s' % (vr(t), sr(S_T0), vr(V_Q)))
a('v_mul_u32_u24 %s, %d, %s' % (vr(V_PR), PART_ROW, vr(t)))
a('v_lshl_add_u32 %s, %s, 4, %s' % (vr(V_PR), vr(V_N), vr(V_PR)))
PH = 12 * PART_W
a('v_add_u32 %s, %d, %s' % (vr(V_PW2), PH, vr(V_PW)))
a('v_add_u32 %s, %d, %s' % (vr(V_PR2), PH, vr(V_PR)))
put(t)
a('s_barrier')
if OPT['fine']:
    stamp(a, 'ubar')
hf = Stream()
hf.wait(htk)
dual(hf, flag_texts(sr(S_C), '{P}'))
stamp(hf, 'h_pub0')
sd, lr = Stream(), Stream()
for idx in range(OPT['ncp2'], 36):
    cp_load(sd, idx // 4, idx % 4)
hfa, hfv, hfl = hflag_prep(sd, 0)
sd(hfl)
for i in range(MT):
    for k in range(2):
        hf('v_lshlrev_b32 %s, 16, %s' % (vr(BASE + 4 * i + 2 * k), vr(XS + 2 * i + k)))
        hf('v_and_b32 %s, 0xffff0000, %s' % (vr(BASE + 4 * i + 2 * k + 1), vr(XS + 2 * i + k)))
put((XS, 12))
ln_rest(hf, 0, LNP0)
HB0 = []


def last0(m, reg):
    if reg is None:
        poll(m, [hfl], [(hfv, None, V_EXP9)], pre_issued=True)
    else:
        HB0.append(reg)
        hload_next(m, reg)


conv_body(a, cv, [sd], True, hf, True, last0)
put(hfa, hfv)


def g_fetch_streams(D):
    s1, s2 = Stream(), Stream()
    fa, u, u2 = V.get(), V.get(), V.get()
    s1('v_lshrrev_b32 %s, 3, %s' % (vr(fa), vr(V_LANE)))
    s1('v_mul_u32_u24 %s, %d, %s' % (vr(fa), G_STR - 128, vr(fa)))
    s1('s_mul_i32 %s, %s, %d' % (sr(S_T1), sr(S_CG), 32 * G_STR),
       's_lshl2_add_u32 %s, %s, %s' % (sr(S_T2), sr(S_RB), sr(S_WAVE)),
       's_lshl_b32 %s, %s, 7' % (sr(S_T2), sr(S_T2)),
       's_add_u32 %s, %s, %s' % (sr(S_T1), sr(S_T1), sr(S_T2)),
       's_add_u32 %s, %s, %d' % (sr(S_T1), sr(S_T1), WS_G),
       'v_add3_u32 %s, %s, %s, %s' % (vr(fa), vr(fa), vr(V_L16), sr(S_T1)))
    loads = []
    for i in range(4):
        loads.append('s_mov_b32 %s, %d' % (sr(S_T1), 8 * i * G_STR))
        loads.append('buffer_load_dwordx4 %s, %s, %s, %s offen sc1' % (vr(D[i], 4), vr(fa), sr(R_WS, 4), sr(S_T1)))
    for i in range(4):
        s1(loads[2 * i], loads[2 * i + 1])
    s1('v_and_b32 %s, 1, %s' % (vr(u), vr(V_Q)))
    s1('v_lshlrev_b32 %s, 6, %s' % (vr(u), vr(u)))
    s1('v_mul_u32_u24 %s, 272, %s' % (vr(u2), vr(V_N)))
    s1('v_add3_u32 %s, %s, %s, %s' % (vr(u), vr(u), vr(u2), sr(S_RINGW)))
    s1('v_lshrrev_b32 %s, 1, %s' % (vr(u2), vr(V_Q)))
    s1('v_lshl_add_u32 %s, %s, 2, %s' % (vr(u), vr(u2), vr(u)))
    s1('v_lshl_add_u32 %s, %s, 2, %s' % (vr(u2), vr(u2), vr(u)))
    keep = V.get(2, 1)
    put((keep, 2))
    poll(s2, loads, [(D[0] + 3, D[1] + 3, V_TAG), (D[2] + 3, D[3] + 3, V_TAG)], pre_issued=True, sleep=4)
    V.free -= {keep, keep + 1}
    s2('v_lshlrev_b32 %s, 4, %s' % (vr(fa), vr(V_Q)))
    s2('v_add3_u32 %s, %s, %s, %s' % (vr(fa), vr(fa), vr(V_L16), sr(S_RINGW)))
    for i in range(4):
        s2('ds_write_b128 %s, %s offset:%d' % (vr(fa), vr(D[i], 4), 1088 * i))
    for i, o in enumerate((0, 2, 5, 8, 10, 13)):
        s2('ds_read2_b32 %s, %s offset0:%d offset1:%d' % (vr(GP + 2 * i, 2), vr(u2 if i in (1, 4) else u), o, 32 + o))
    return s1, s2, [fa, u, u2, (keep, 2)] + [(r, 4) for r in D]


def gemm_c(a, layer, HB=None, flagb=None, afterld=None):
    NF = 16
    which = 1 + 2 * layer
    if HB is None:
        a.extend(hq)
        poll(a, [hfl], [(hfv, None, V_EXP9)], pre_issued=True)
        stamp(a, 'h_flag%d' % layer)
        HB = [V.get(4, top=True) for _ in range(NF)]
        for f in range(NF):
            hload_next(a, HB[f])
        if afterld is not None:
            a.extend(afterld)
    CA = [V.get(4, top=True) for _ in range(8)]
    hb = lambda i, s: HB[(i * 9 + s) % NF]
    slot = lambda i: (i + 4) % 6

    def pwrite(st, i, js=range(4)):
        for j in js:
            tk = st.mem('ds_write_b128 %s, %s offset:%d' % (vr(V_PW if slot(i) < 3 else V_PW2), vr(CA[(i & 1) * 4 + j], 4),
                                                            L_IMG + (slot(i) % 3) * 4 * PART_W + j * 64))
        return tk

    def preduce(st, i, P):
        for w in range(4):
            st('ds_read_b128 %s, %s offset:%d' % (vr(P[w], 4), vr(V_PR if slot(i) < 3 else V_PR2), L_IMG + ((slot(i) % 3) * 4 + w) * PART_W))

    def padd(st, i, P, pk):
        x = BASE + 4 * i
        if pk:
            for k in range(2):
                st('v_pk_add_f32 %s, %s, %s' % (vr(P[0] + 2 * k, 2), vr(P[0] + 2 * k, 2), vr(P[1] + 2 * k, 2)))
                st('v_pk_add_f32 %s, %s, %s' % (vr(P[2] + 2 * k, 2), vr(P[2] + 2 * k, 2), vr(P[3] + 2 * k, 2)))
                st('v_pk_add_f32 %s, %s, %s' % (vr(x + 2 * k, 2), vr(x + 2 * k, 2), vr(P[0] + 2 * k, 2)))
                st('v_pk_add_f32 %s, %s, %s' % (vr(x + 2 * k, 2), vr(x + 2 * k, 2), vr(P[2] + 2 * k, 2)))
        else:
            for w in range(4):
                for k in range(4):
                    st('v_add_f32 %s, %s, %s' % (vr(x + k), vr(x + k), vr(P[w] + k)))

    sc = Sched(a)
    sc.VM_GAP = 20
    qs, qp = sc.add(Stream()), sc.add(Stream())
    if layer == 0:
        a.wait(cv.stk)
        cf_ = Stream()
        with V.borrow((GP, 12)):
            frel = conv_final(cf_, cv, CA[4:8])
        qs.extend(cf_.groups)
        nrest = len(cf_.groups) - cv.mark
        put(*frel)
    a('s_barrier')
    S, Q = V.get(6, 1), V.get(6, 1)
    PT = [V.get(4) for _ in range(4)]
    DP = V.get(4)
    tk = None
    gs = None
    for i in range(MT):
        m = Stream()
        for s in range(9):
            for j in range(4):
                ca = CA[(i & 1) * 4 + j]
                m('v_mfma_f32_16x16x32_bf16 %s, %s, %s, %s' % (vr(ca, 4), WC(s, j), vr(hb(i, s), 4), '0' if s == 0 else vr(ca, 4)))
                if j == 0 and s < 8:
                    m.touch(vr(hb(i, s + 1), 4))
            if i * 9 + s + NF < 9 * MT:
                hload_next(m, hb(i, s))
        if i >= 3:
            if i == 3:
                print('gemm_c leftover before barrier', sc.pending())
                sc.flush()
            a.wait(tk)
            a('s_barrier')
            sd = Stream()
            tl = ((0, 1), (2,), (3,))[i - 3]
            preduce(sd, tl[0], PT)
            for n_, ti in enumerate(tl):
                nx_ = Stream()
                if n_ + 1 < len(tl):
                    preduce(nx_, tl[n_ + 1], PT)
                for w in range(4):
                    for k in range(4):
                        sd('v_add_f32 %s, %s, %s' % (vr(BASE + 4 * ti + k), vr(BASE + 4 * ti + k), vr(PT[w] + k)))
                    if nx_.groups:
                        sd.groups.append(nx_.groups[w])
                stats_partial(sd, BASE, S, Q, ti, None, False)
            if i == 4:
                stats_pub_g(sd, S, Q, DP, which, 0)
            qs.extend(sd.groups)
        if layer == 0 and i == 5:
            gs = g_fetch_streams(HB[8:12])
            qg = sc.add(gs[0])
        if flagb is not None and i == 1:
            a.extend(flagb)
        if i > 0:
            pw = Stream()
            tk = pwrite(pw, i - 1)
            qp.extend(pw.groups)
        sc.run(m)
        sc.flush(qp)
        if layer == 0 and i == 0:
            print('final part A leftover', len(qs) - nrest)
            while len(qs) > nrest:
                sc._emit(qs.pop(0))
        if OPT['fine']:
            stamp(a, 'c%d_t%d' % (layer, i))
    print('gemm_c leftover', sc.pending(), 'model time', sc.t)
    sc.flush()
    put(*[(r, 4) for r in PT + (HB[12:] if layer == 0 else HB[8:])])
    GA = V.get(12)
    gla = stats_loads(which, GA)[:6]
    for i in range(3):
        a(gla[2 * i], gla[2 * i + 1])
    if layer == 0:
        V.claim(GP, 12)
    tk = pwrite(a, MT - 1)
    a.wait(tk)
    a('s_barrier')
    stamp(a, 'gemmC%d' % layer)
    for ti in (4, 5):
        preduce(a, ti, HB[(ti - 4) * 4:(ti - 4) * 4 + 4])
    for ti in (4, 5):
        padd(a, ti, HB[(ti - 4) * 4:(ti - 4) * 4 + 4], True)
        stats_partial(a, BASE, S, Q, ti, CA[0], True)
    stats_pub_g(a, S, Q, DP, which, 1)
    stamp(a, 'st_pub%d' % which)
    put(*[(r, 4) for r in CA + HB[:8]])
    put((S, 6), (Q, 6), (DP, 4))
    return GA, gla, gs


def gate_g(a, which, final, g, G, gl, ex, before_poll=None, mid=None):
    GU = V.get(12)
    for i in range(3):
        for j in range(2):
            a('v_lshlrev_b32 %s, 16, %s' % (vr(GU + 4 * i + 2 * j), vr(GP + 2 * (3 * g + i) + j)))
            a('v_and_b32 %s, 0xffff0000, %s' % (vr(GU + 4 * i + 2 * j + 1), vr(GP + 2 * (3 * g + i) + j)))
    if before_poll is not None:
        before_poll(a)
    poll(a, gl, [(G + 4 * i + 1, G + 4 * i + 3, ex) for i in range(3)], pre_issued=True)
    stamp(a, 'st_got%d%s' % (which, 'ab'[g]))
    rs6(a, [G + 4 * i for i in range(3)], [G + 4 * i + 2 for i in range(3)])
    P = V.get(4)
    for k, src in ((0, G), (1, G + 8)):
        a('v_mul_f32 %s, 0x3ae38e39, %s' % (vr(P + 2 * k), vr(src)))
        a('v_mul_f32 %s, 0x3ae38e39, %s' % (vr(P + 2 * k + 1), vr(src + 2)))
    for k in range(2):
        a('v_fma_f32 %s, -%s, %s, %s' % (vr(P + 2 * k + 1), vr(P + 2 * k), vr(P + 2 * k), vr(P + 2 * k + 1)))
    for k in range(2):
        a('v_max_f32 %s, 0, %s' % (vr(P + 2 * k + 1), vr(P + 2 * k + 1)))
    for k in range(2):
        a('v_add_f32 %s, 0x3727c5ac, %s' % (vr(P + 2 * k + 1), vr(P + 2 * k + 1)))
    for k in range(2):
        a('v_rsq_f32 %s, %s' % (vr(P + 2 * k + 1), vr(P + 2 * k + 1)))
    for k in range(2):
        a('v_add_f32_dpp %s, %s, %s quad_perm:[0,1,2,3] row_mask:0xf bank_mask:0x%x' % (vr(OFF + k), vr(P + 2 * k), vr(OFF + k), (0x3, 0xc)[g]))
    if mid is not None:
        mid(a)
    B = G
    for i in range(3):
        bcast(a, B + 4 * i, P, 3 * g + i)
        if final:
            k_, lane = tile_src(3 * g + i)
            a('v_mov_b32_dpp %s, %s row_newbcast:%d row_mask:0xf bank_mask:0xf' % (vr(B + 4 * i + 2), vr(OFF + k_), lane))
    for i in range(3):
        x, gg, b = BASE + 4 * (3 * g + i), GU + 4 * i, B + 4 * i
        for k in range(2):
            a('v_pk_add_f32 %s, %s, %s op_sel:[0,0] op_sel_hi:[1,0] neg_lo:[0,1] neg_hi:[0,1]' % (vr(x + 2 * k, 2), vr(x + 2 * k, 2), vr(b, 2)))
            a('v_pk_fma_f32 %s, %s, %s, 1.0 op_sel:[0,1,0] op_sel_hi:[1,1,0]' % (vr(gg + 2 * k, 2), vr(gg + 2 * k, 2), vr(b, 2)))
        for k in range(2):
            if final:
                a('v_pk_fma_f32 %s, %s, %s, %s op_sel:[0,0,0] op_sel_hi:[1,1,0]' % (vr(x + 2 * k, 2), vr(x + 2 * k, 2), vr(gg + 2 * k, 2), vr(b + 2, 2)))
            else:
                a('v_pk_mul_f32 %s, %s, %s' % (vr(x + 2 * k, 2), vr(x + 2 * k, 2), vr(gg + 2 * k, 2)))
        if final:
            a('s_movk_i32 %s, %d' % (sr(S_T0), 4608 * (3 * g + i)),
              'buffer_store_dwordx4 %s, %s, %s, %s offen' % (vr(x, 4), vr(V_OROW), sr(R_OUT, 4), sr(S_T0)))
    tk = None
    if not final:
        WP = GU
        for i in range(3):
            for k in range(2):
                a('v_cvt_pk_bf16_f32 %s, %s, %s' % (vr(WP + 2 * i + k), vr(BASE + 4 * (3 * g + i) + 2 * k), vr(BASE + 4 * (3 * g + i) + 2 * k + 1)))
        tk = dual(a, ['s_add_u32 %s, %s, %d' % (sr(S_T0), sr(S_TT), g * 55296), 's_add_u32 %s, %s, 4096' % (sr(S_T1), sr(S_T0))] +
                  ['buffer_store_dwordx2 %s, %s, %s, %s offen offset:%d {P}' %
                   (vr(WP + 2 * i, 2), vr(V_WA), sr(R_WS, 4), sr((S_T0, S_T1)[i >> 1]), (i & 1) * 2048) for i in range(3)])
    put((GU, 12), (G, 12), (P, 4))
    return tk


def gate(a, which, final, R, extra=None):
    GA, gla, gs = R
    ex = stats_exp(a, which)
    if gs is not None:
        a.extend(gs[1])
        put(*gs[2])
    GB = V.get(12)
    glb = [x.replace(vr(GB + 12 + 4 * i, 4), vr(GB + 4 * i, 4)) for i in range(3) for x in stats_loads(which, GB)[6 + 2 * i:8 + 2 * i]]
    def issue_b(st):
        for i in range(3):
            st(glb[2 * i], glb[2 * i + 1])

    if final:
        gate_g(a, which, final, 0, GA, gla, ex, mid=issue_b)
        gate_g(a, which, final, 1, GB, glb, ex)
        put(ex)
        return None
    ta_ = gate_g(a, which, final, 0, GA, gla, ex, mid=issue_b)

    def flag_a(st):
        extra(st)
        st.wait(ta_)
        dual(st, flag_texts(sr(S_TT + 1), '{P}'))
        stamp(st, 'w_pub')

    tb_ = gate_g(a, which, final, 1, GB, glb, ex, before_poll=flag_a)
    put(ex)
    return ta_, tb_


R_ = gemm_c(a, 0, HB0)
a('s_mul_i32 %s, %s, 36' % (sr(S_TT), sr(S_RB)))
a('s_add_u32 %s, %s, %s' % (sr(S_TT), sr(S_TT), sr(S_CG)))
a('s_mul_i32 %s, %s, 6144' % (sr(S_TT), sr(S_TT)))
a('s_add_u32 %s, %s, %d' % (sr(S_TT), sr(S_TT), WS_H))
a('s_lshl_b32 %s, %s, 8' % (sr(S_TT + 2), sr(S_RB)))
a('s_add_u32 %s, %s, %d' % (sr(S_TT + 2), sr(S_TT + 2), WS_WF))
a('s_lshl2_add_u32 %s, %s, %s' % (sr(S_TT + 1), sr(S_PT), sr(S_TT + 2)))
a('s_add_u32 %s, %s, %d' % (sr(S_TT + 3), sr(S_TT + 1), WS_WFB - WS_WF))
fa, fe, fv, fv2 = [V.get() for _ in range(4)]
S2, Q2, D2 = V.get(6, 1), V.get(6, 1), V.get(4)


def extra1(a):
    a('v_lshl_add_u32 %s, %s, 2, %s' % (vr(fa), vr(V_LANE), sr(S_TT + 2)))
    a('v_cmp_gt_u32 vcc, 36, %s' % vr(V_LANE),
      'v_cndmask_b32 %s, %s, %s, vcc' % (vr(fa), vr(V_OOB), vr(fa)),
      'v_cndmask_b32 %s, 0, %s, vcc' % (vr(fe), vr(V_TAG)))
    a('s_mov_b32 %s, %d' % (sr(S_TT + 4), WS_WFB - WS_WF))
    for i in range(3):
        stats_partial(a, BASE, S2, Q2, i, D2, True)


wta, wtb = gate(a, 1, False, R_, extra1)
put((D2, 4))
fla = 'buffer_load_dword %s, %s, %s, 0 offen sc1' % (vr(fv), vr(fa), sr(R_WS, 4))
flb = 'buffer_load_dword %s, %s, %s, %s offen sc1' % (vr(fv2), vr(fa), sr(R_WS, 4), sr(S_TT + 4))
a(fla)
stats_publish(a, BASE, 2, True, SQ=(S2, Q2), tiles=(3, 4, 5))
V_DW = V.get()
a('s_mul_i32 %s, %s, %d' % (sr(S_T0), sr(S_RB), 18 * BLK))
a('s_add_u32 %s, %s, %d' % (sr(S_T0), sr(S_T0), WS_H))
a('s_add_u32 %s, %s, %s' % (sr(S_T0), sr(S_T0), sr(S_W1K)))
a('v_add_u32 %s, %s, %s' % (vr(V_DW), sr(S_T0), vr(V_L16)))
a.wait(wtb)
dual(a, flag_texts(sr(S_TT + 3), '{P}'))

ACC = V.get(48, top=True)
AF = V.get(48, top=True)
poll(a, [fla], [(fv, None, fe)], pre_issued=True)
stamp(a, 'w_flag')


def w_dma(s, g, u):
    s('s_add_u32 m0, %s, %d' % (sr(S_W1K), g * 55296 + u * 4096))
    return s.mem('s_mov_b32 %s, %d' % (sr(S_TT + 5), g * 55296 + u * 4096),
                 'buffer_load_dwordx4 %s, %s, %s offen sc1 lds' % (vr(V_DW), sr(R_WS, 4), sr(S_TT + 5)))


def a2_reads(g, k):
    s = Stream()
    for i in range(3):
        s('ds_read_b128 %s, %s offset:%d' % (vr(AF + ((18 * g + k) & 3) * 12 + i * 4, 4), vr(V_FA + (k & 1) + 2 * g),
                                             g * (55296 - 4 * BLK) + (k >> 1) * 6144 + i * 2048))
    return s


G2 = V.get(24)
gl2 = stats_loads(2, G2)
wt = {}
for u in range(6):
    wt[0, u] = w_dma(a, 0, u)
sc = Sched(a)
qr, qv, qs = sc.add(Stream()), sc.add(Stream()), sc.add(Stream())
vq, sq = Stream(), Stream()
vq(flb)
for u in range(6, 14):
    wt[0, u] = w_dma(vq, 0, u)
poll(vq, [flb], [(fv2, None, fe)], pre_issued=True)
for u in range(3):
    wt[1, u] = w_dma(vq, 1, u)
g2tok = None
for i in range(0, 12, 2):
    g2tok = vq.mem(gl2[i], gl2[i + 1])
for u in range(3, 14):
    wt[1, u] = w_dma(vq, 1, u)
ex2 = stats_exp(sq, 2)
sq.wait(g2tok)
poll(sq, gl2, [(G2 + 4 * i + 1, G2 + 4 * i + 3, ex2) for i in range(MT)], pre_issued=True)
put(ex2)
ttk2, LNP1 = ln_table(sq, 1, G2, None)
put(fa, fe, fv, fv2)
sc.expect(vq, sq)
sc.LAT_VM = 600
qv.extend(vq.groups)
qs.extend(sq.groups)
TB1 = V.get(24)
E1 = V.get(8, 2)
re1 = lambda j: ACC + (j >> 1) * 4 + (j & 1) * 2
im1 = lambda j: ACC + 4 * MT + (j >> 1) * 4 + (j & 1) * 2
p1 = Stream()
for j in range(6):
    p1('ds_read_b128 %s, %s offset:%d' % (vr(TB1 + 4 * j, 4), vr(V_TABR), 16 * j))
for j in range(6):
    for hf in range(2):
        r_, i_ = re1(j) + hf, im1(j) + hf
        p1('v_mul_f32 %s, %s, %s' % (vr(r_), vr(r_), vr(TB1 + 4 * j + hf)))
        p1('v_mul_f32 %s, %s, %s' % (vr(i_), vr(i_), vr(TB1 + 4 * j + hf)))
        p1('v_fma_f32 %s, -%s, %s, %s' % (vr(r_), vr(TB1 + 4 * j + 2 + hf), vr(RB), vr(r_)))
        p1('v_fma_f32 %s, -%s, %s, %s' % (vr(i_), vr(TB1 + 4 * j + 2 + hf), vr(RB + 1), vr(i_)))
    p1('ds_read_b128 %s, %s offset:%d' % (vr(TB1 + 4 * j, 4), vr(V_TABR), 16 * (j + 6)))
    if j > 0:
        pr_, pi_ = (re1(0), im1(0)) if j == 1 else (E1 + ((j - 1) & 1) * 4, E1 + ((j - 1) & 1) * 4 + 2)
        dr_, di_ = E1 + (j & 1) * 4, E1 + (j & 1) * 4 + 2
        for hf in range(2):
            p1('v_fma_f32 %s, %s, %s, %s' % (vr(dr_ + hf), vr(pr_ + hf), vr(LAM), vr(re1(j) + hf)))
            p1('v_fma_f32 %s, %s, %s, %s' % (vr(di_ + hf), vr(pi_ + hf), vr(LAM), vr(im1(j) + hf)))
            p1('v_fma_f32 %s, -%s, %s, %s' % (vr(dr_ + hf), vr(pi_ + hf), vr(LAM + 1), vr(dr_ + hf)))
            p1('v_fmac_f32 %s, %s, %s' % (vr(di_ + hf), vr(pr_ + hf), vr(LAM + 1)))
dn = Stream()
dual(dn, ['s_lshl2_add_u32 %s, %s, %s' % (sr(S_T0), sr(S_CG), sr(S_TT + 2)),
          's_add_u32 %s, %s, 160' % (sr(S_T0), sr(S_T0))] + flag_texts(sr(S_T0), '{P}'))


def b2_bar(kk):
    g, k = divmod(kk, 18)
    tok = wt[g, min(3 * (k // 4) + 2, 13)]
    ensure(sc, tok)
    b = Stream()
    b.wait(tok)
    if kk == 22:
        ensure(sc, ttk2)
        b.wait(ttk2)
    b('s_barrier')
    keep, sc.sides = sc.sides, []
    sc.run(b)
    sc.sides = keep


b2_bar(0)
sc.run(a2_reads(0, 0))
sc.run(a2_reads(0, 1))
for kk in range(36):
    g, k = divmod(kk, 18)
    nx = kk + 2
    if nx < 36:
        if (nx % 18) % 4 == 0:
            b2_bar(nx)
            if nx == 22:
                qs.extend(p1.groups)
            if nx == 34:
                qv.extend(dn.groups)
        rs_ = a2_reads(nx // 18, nx % 18)
        for gr in rs_.groups:
            pass
        qr.extend(rs_.groups)
    m = Stream()
    m.touch(vr(AF + (kk & 3) * 12, 12))
    for i in range(3):
        for mat in range(2):
            d = ACC + (mat * MT + 3 * g + i) * 4
            m('v_mfma_f32_16x16x32_bf16 %s, %s, %s, %s' % (vr(d, 4), vr(AF + (kk & 3) * 12 + i * 4, 4), ar(WB(k >> 1, k & 1, mat), 4),
                                                          '0' if k == 0 else vr(d, 4)))
    sc.run(m)
    sc.flush(qr)
    if OPT['fine'] and kk % 6 == 5:
        stamp(a, 'k%d' % kk)
print('gemm_b2 leftover', sc.pending(), 'model time', sc.t)
sc.flush()
put(V_DW)
stamp(a, 'gemmB2')


def mid1(a, mk):
    da, dv = V.get(), V.get()
    a('s_lshl_b32 %s, %s, 8' % (sr(S_T1), sr(S_RB)))
    a('s_add_u32 %s, %s, %d' % (sr(S_T1), sr(S_T1), WS_WF + 160))
    a('v_lshl_add_u32 %s, %s, 2, %s' % (vr(da), vr(V_N), sr(S_T1)))
    a('v_cmp_gt_u32 vcc, 9, %s' % vr(V_N), 'v_cndmask_b32 %s, %s, %s, vcc' % (vr(da), vr(V_OOB), vr(da)))
    dl = 'buffer_load_dword %s, %s, %s, 0 offen sc1' % (vr(dv), vr(da), sr(R_WS, 4))
    a(dl)
    ln_rest(a, 1, LNP1)
    mk(a)
    poll(a, [dl], [(dv, None, V_EXP9)], pre_issued=True)
    put(da, dv)
    return None


htk, hrel = scan_phase(a, 1, ACC, AF, mid1, half=(E1, TB1), split_h=True)
put(*hrel)
a('s_add_u32 %s, %s, %d' % (sr(S_C), sr(S_T0), WS_HFB - WS_HF - NRB * 256))
a.wait(htk[0])
dual(a, flag_texts(sr(S_T0), '{P}'))
stamp(a, 'h_pub1')
hfa, hfv, hfl = hflag_prep(a, 1)
hfv2 = V.get()
a('s_mov_b32 %s, %d' % (sr(S_TT + 4), WS_HFB - WS_HF - NRB * 256))
hq = Stream()
hq(hfl)
hq.wait(htk[1])
dual(hq, flag_texts(sr(S_C), '{P}'))
hflb = 'buffer_load_dword %s, %s, %s, %s offen sc1' % (vr(hfv2), vr(hfa), sr(R_WS, 4), sr(S_TT + 4))
al = Stream()
al(hflb)
al('s_lshl2_add_u32 %s, %s, %s' % (sr(S_T0), sr(S_L), sr(S_WAVE)),
   's_cmp_lg_u32 %s, %d' % (sr(S_T0), (NRB - 1) * 9 * 4),
   's_cselect_b64 exec, 0, 1',
   'buffer_store_dword %s, %s, %s, 0 offen sc1' % (vr(V_TAG), vr(V_ZERO), sr(R_WS, 4)),
   's_mov_b64 exec, -1')
fb = Stream()
poll(fb, [hflb], [(hfv2, None, V_EXP9)], pre_issued=True)
R_ = gemm_c(a, 1, None, fb, al)
put(hfa, hfv, hfv2)
gate(a, 3, True, R_)
stamp(a, 'out')
a('s_branch L_fin')

a.fence()
a.label('L_aux')
V.free = set(range(NCOMMON, 256))
V.locked = set()
a('s_waitcnt lgkmcnt(0)')
a('s_load_dword %s, %s, 0' % (sr(S_TAG), sr(P_WS, 2)))
srd(a, R_WS, P_WS, WS_SIZE)
a('s_sub_u32 %s, %s, %d' % (sr(S_RB), sr(S_L), NMAIN))
S_AW, S_KC_, S_CGK, S_KP2, S_DG, S_SCR, S_AW2 = [S_KP + i for i in range(7)]
a('s_mul_i32 %s, %s, 58' % (sr(S_AW2), sr(S_WAVE)))
a('s_add_u32 %s, %s, %s' % (sr(S_AW2), sr(S_AW2), sr(S_RB)))
a('s_lshl2_add_u32 %s, %s, %s' % (sr(S_AW), sr(S_RB), sr(S_WAVE)))
a('s_mul_i32 %s, %s, 57' % (sr(S_T0), sr(S_AW)))
a('s_lshr_b32 %s, %s, 10' % (sr(S_DG), sr(S_T0)))
a('s_mul_i32 %s, %s, 171' % (sr(S_KC_), sr(S_AW2)))
a('s_lshr_b32 %s, %s, 9' % (sr(S_KC_), sr(S_KC_)))
a('s_mul_i32 %s, %s, 18' % (sr(S_T1), sr(S_DG)))
a('s_sub_u32 %s, %s, %s' % (sr(S_KP2), sr(S_AW), sr(S_T1)))
a('s_mul_i32 %s, %s, 3' % (sr(S_T1), sr(S_KC_)))
a('s_sub_u32 %s, %s, %s' % (sr(S_CGK), sr(S_AW2), sr(S_T1)))
a('s_add_u32 %s, %s, 6' % (sr(S_CGK), sr(S_CGK)))
srd(a, R_BRE, P_CRE, 576 * 1152)
srd(a, R_BIM, P_CIM, 576 * 1152)
dp, gm, vc, t, t2 = [V.get() for _ in range(5)]
a('v_and_b32 %s, 31, %s' % (vr(dp), vr(V_LANE)))
a('s_lshl_b32 %s, %s, 6' % (sr(S_T0), sr(S_KP2)))
a('v_lshl_add_u32 %s, %s, 1, %s' % (vr(t2), vr(dp), sr(S_T0)))
LT = lam_loads(a, t2)
CL = V.get(24)
a('v_lshrrev_b32 %s, 2, %s' % (vr(vc), vr(V_LANE)))
a('v_mul_u32_u24 %s, 1152, %s' % (vr(vc), vr(vc)))
a('v_and_b32 %s, 3, %s' % (vr(gm), vr(V_LANE)))
a('v_lshl_add_u32 %s, %s, 4, %s' % (vr(vc), vr(gm), vr(vc)))
a('s_mul_i32 %s, %s, %d' % (sr(S_T1), sr(S_DG), 48 * 1152))
a('s_add_u32 %s, %s, %s' % (sr(S_T1), sr(S_T1), sr(S_T0)))
for u in range(3):
    a('s_add_u32 %s, %s, %d' % (sr(S_T2), sr(S_T1), u * 16 * 1152),
      'buffer_load_dwordx4 %s, %s, %s, %s offen nt' % (vr(CL + 8 * u, 4), vr(vc), sr(R_BRE, 4), sr(S_T2)),
      'buffer_load_dwordx4 %s, %s, %s, %s offen nt' % (vr(CL + 8 * u + 4, 4), vr(vc), sr(R_BIM, 4), sr(S_T2)))
srd(a, R_K, P_K, 2048 * 1152)
srd(a, R_V, P_V, 2048 * 1152)
sg, vk, vh, ka = [V.get() for _ in range(4)]
a('v_lshrrev_b32 %s, 5, %s' % (vr(sg), vr(V_LANE)))
a('s_mul_i32 %s, %s, %d' % (sr(S_T0), sr(S_KC_), 48 * 1152))
a('s_lshl_b32 %s, %s, 7' % (sr(S_T1), sr(S_CGK)))
a('s_add_u32 %s, %s, %s' % (sr(S_T0), sr(S_T0), sr(S_T1)))
a('v_mul_u32_u24 %s, %d, %s' % (vr(vk), 24 * 1152, vr(sg)))
a('v_lshl_add_u32 %s, %s, 2, %s' % (vr(vk), vr(dp), vr(vk)))
a('v_add_u32 %s, %s, %s' % (vr(vk), sr(S_T0), vr(vk)))
a('v_subrev_u32 %s, %d, %s' % (vr(vh), 3 * 1152, vr(vk)))
SHK = V.get(4)
a('s_lshl_b32 %s, %s, 9' % (sr(S_T1), sr(S_CGK)))
a('v_lshl_add_u32 %s, %s, 4, %s' % (vr(t), vr(dp), sr(S_T1)))
a('global_load_dwordx4 %s, %s, %s' % (vr(SHK, 4), vr(t), sr(P_SHK, 2)))
KR, VR = V.get(27, 1), V.get(24, 1)
ld = Stream()
for j in range(3):
    ld('buffer_load_dword %s, %s, %s, 0 offen offset:%d nt' % (vr(KR + j), vr(vh), sr(R_K, 4), 1152 * j))
for j3 in range(8):
    ld('s_mov_b32 %s, %d' % (sr(S_C), 3456 * j3),
       *['buffer_load_dword %s, %s, %s, %s offen offset:%d nt' % (vr(base + 3 * j3 + jj), vr(vk), sr(rr, 4), sr(S_C), 1152 * jj)
         for jj in range(3) for (base, rr) in ((KR + 3, R_K), (VR, R_V))])
ldp = split(ld, 2)
astamp(a, 4)
a('s_waitcnt lgkmcnt(0)')
astamp(a, 5)
tag_ready(a)
cs = Stream()
cs('s_mul_i32 %s, %s, 8192' % (sr(S_SCR), sr(S_WAVE)), 's_add_u32 %s, %s, %d' % (sr(S_SCR), sr(S_SCR), 65536))
_, COEF = lam_compute(cs, LT, True)
cs('v_add_f32 %s, %s, %s' % (vr(COEF), vr(COEF), vr(COEF)))
cs('v_add_f32 %s, %s, %s' % (vr(COEF + 1), vr(COEF + 1), vr(COEF + 1)))
cs('v_lshl_add_u32 %s, %s, 3, %s' % (vr(t), vr(dp), sr(S_SCR)))
cs('ds_write_b64 %s, %s offset:6144' % (vr(t), vr(COEF, 2)))
cs('v_lshl_add_u32 %s, %s, 6, %s' % (vr(t), vr(gm), sr(S_SCR)))
CF = V.get(16)
for k in range(4):
    cs('ds_read_b128 %s, %s offset:%d' % (vr(CF + 4 * k, 4), vr(t), 6144 + 16 * k))
wa, ra = V.get(), V.get()
cs('v_lshrrev_b32 %s, 2, %s' % (vr(t), vr(V_LANE)))
cs('v_lshlrev_b32 %s, 4, %s' % (vr(t), vr(t)))
cs('v_lshl_add_u32 %s, %s, 9, %s' % (vr(wa), vr(gm), vr(t)))
cs('v_add_u32 %s, %s, %s' % (vr(wa), sr(S_SCR), vr(wa)))
cs('v_add_u32 %s, %s, %s' % (vr(ra), sr(S_SCR), vr(V_L16)))
X = V.get(4)
O = V.get(8)
RD = V.get(24)
for u in range(3):
    for e in range(8):
        src = CL + 8 * u + (e >> 1)
        op = 'v_and_b32 %s, 0xffff0000, %s' if e & 1 else 'v_lshlrev_b32 %s, 16, %s'
        cs(op % (vr(X), vr(src)))
        cs(op % (vr(X + 1), vr(src + 4)))
        cmul(cs, X + 2, X, CF + 2 * e)
        cs('v_cvt_pk_bf16_f32 %s, %s, -%s' % (vr(O + e), vr(X + 2), vr(X + 3)))
    bo = u * 2048
    cs('ds_write_b128 %s, %s offset:%d' % (vr(wa), vr(O, 4), bo))
    cs('ds_write_b128 %s, %s offset:%d' % (vr(wa), vr(O + 4, 4), bo + 256))
    cs('ds_read_b128 %s, %s offset:%d' % (vr(RD + u * 8, 4), vr(ra), bo))
    cs('ds_read_b128 %s, %s offset:%d' % (vr(RD + u * 8 + 4, 4), vr(ra), bo + 1024))
a.weave(cs, ldp[0], 0.3, 0.95)
astamp(a, 6)
a('s_and_b32 %s, %s, 1' % (sr(S_T0), sr(S_KP2)))
a('s_mul_i32 %s, %s, %d' % (sr(S_T0), sr(S_T0), 2 * 37 * 1024))
a('s_lshr_b32 %s, %s, 1' % (sr(S_T1), sr(S_KP2)))
a('s_lshl_b32 %s, %s, 12' % (sr(S_T1), sr(S_T1)))
a('s_add_u32 %s, %s, %s' % (sr(S_T0), sr(S_T0), sr(S_T1)))
a('s_add_u32 %s, %s, %d' % (sr(S_T0), sr(S_T0), WS_CP))
a('s_cmp_lt_u32 %s, 216' % sr(S_AW))
a('s_cselect_b32 %s, %s, 0x%x' % (sr(S_T0), sr(S_T0), 0x40000000))
toks = []
for u in range(3):
    a('s_mul_i32 %s, %s, 3' % (sr(S_T1), sr(S_DG)))
    a('s_add_u32 %s, %s, %d' % (sr(S_T1), sr(S_T1), u))
    a('s_lshr_b32 %s, %s, 2' % (sr(S_T2), sr(S_T1)))
    a('s_mul_i32 %s, %s, %d' % (sr(S_T2), sr(S_T2), 4 * 37 * 1024))
    a('s_and_b32 %s, %s, 3' % (sr(S_T1), sr(S_T1)))
    a('s_lshl_b32 %s, %s, 10' % (sr(S_T1), sr(S_T1)))
    a('s_add_u32 %s, %s, %s' % (sr(S_T1), sr(S_T1), sr(S_T2)))
    a('s_add_u32 %s, %s, %s' % (sr(S_T1), sr(S_T1), sr(S_T0)))
    a('s_add_u32 %s, %s, %d' % (sr(S_T2), sr(S_T1), 37 * 1024))
    toks.append(a.mem('buffer_store_dwordx4 %s, %s, %s, %s offen sc1' % (vr(RD + u * 8, 4), vr(V_L16), sr(R_WS, 4), sr(S_T1))))
    toks.append(a.mem('buffer_store_dwordx4 %s, %s, %s, %s offen sc1' % (vr(RD + u * 8 + 4, 4), vr(V_L16), sr(R_WS, 4), sr(S_T2))))
a('s_nop 1')
put((CL, 24), (CF, 16), (X, 4), (O, 8), (RD, 24), wa, ra, (COEF, 2))
a.extend(ldp[1])
astamp(a, 7)
cf = Stream()
astamp(cf, 8)
cf.wait(*toks)
astamp(cf, 9)
cf('s_lshl_b32 %s, %s, 4' % (sr(S_T0), sr(S_AW)),
   's_add_u32 %s, %s, %d' % (sr(S_T0), sr(S_T0), WS_CPF), *flag_texts(sr(S_T0), 'sc1'))
a('v_sub_u32 %s, 1, %s' % (vr(sg), vr(sg)))
a('v_lshlrev_b32 %s, 6, %s' % (vr(sg), vr(sg)))
a('v_mul_u32_u24 %s, 272, %s' % (vr(ka), vr(dp)))
a('s_mul_i32 %s, %s, 8704' % (sr(S_SCR), sr(S_WAVE)))
a('v_add3_u32 %s, %s, %s, %s' % (vr(ka), vr(ka), vr(sg), sr(S_SCR)))
kc = Stream()
kv_core(kc, 12, lambda r: KR + 3 + r, lambda r: VR + r, SHK,
        lambda ch, un, reg: kc('ds_write_b128 %s, %s offset:%d' % (vr(ka), vr(reg, 4), ch * 128 + un * 16)),
        touch=lambda tp: kc.touch(vr(KR + 3 + 2 * tp, 6), vr(VR + 2 * tp, 6)) if tp % 3 == 0 else None)
cv = Conv()
conv_setup_k(cf, cv)
a.weave(kc, cf, 0.0, 0.5)
astamp(a, 10)
put((KR, 27), (VR, 24))
RD = V.get(32)
ra, ga = V.get(), V.get()
a('v_lshlrev_b32 %s, 4, %s' % (vr(ra), vr(V_Q)))
a('v_add3_u32 %s, %s, %s, %s' % (vr(ra), vr(ra), vr(V_L16), sr(S_SCR)))
for i in range(8):
    a('ds_read_b128 %s, %s offset:%d' % (vr(RD + 4 * i, 4), vr(ra), 1088 * i))
a('v_lshrrev_b32 %s, 3, %s' % (vr(ga), vr(V_LANE)))
a('v_mul_u32_u24 %s, %d, %s' % (vr(ga), KVT_STR - 128, vr(ga)))
a('v_add_u32 %s, %s, %s' % (vr(ga), vr(ga), vr(V_L16)))
a('s_mul_i32 %s, %s, %d' % (sr(S_T0), sr(S_CGK), 64 * KVT_STR))
a('s_sub_u32 %s, 43, %s' % (sr(S_T1), sr(S_KC_)))
a('s_lshl_b32 %s, %s, 7' % (sr(S_T1), sr(S_T1)))
a('s_add_u32 %s, %s, %s' % (sr(S_T0), sr(S_T0), sr(S_T1)))
a('s_cmp_lt_u32 %s, 132' % sr(S_AW2))
a('s_cselect_b32 %s, %s, 0x%x' % (sr(S_T2), sr(S_T0), 0x40000000))
for i in range(8):
    a('s_add_u32 %s, %s, %d' % (sr(S_T1), sr(S_T2), WS_KVT + 8 * i * KVT_STR),
      'buffer_store_dwordx4 %s, %s, %s, %s offen sc1' % (vr(RD + 4 * i, 4), vr(ga), sr(R_WS, 4), sr(S_T1)))
a('s_nop 1')
if OPT['stamps']:
    a('s_memtime %s' % sr(S_M2, 2), 's_waitcnt lgkmcnt(0)', 'v_writelane_b32 %s, %s, 1' % (vr(V_STAMP), sr(S_M2)))
keep_cv = cv
a('s_branch L_auxconv3')
a.fence()
a.label('L_auxconv2')
V.free = set(range(NCOMMON, 256))
V.locked = set()
sv = OPT['stamps']
OPT['stamps'] = 0
OPT['_sv'] = sv
cv = Conv()
a('s_barrier')
conv_setup_k(a, cv)
assert (cv.SD, cv.HD) == (keep_cv.SD, keep_cv.HD)
a.label('L_auxconv3')
a('s_barrier')
conv_u_prep(a, cv)
put(*conv_addr(a, cv))
conv_body(a, cv, pre_issued=False)
a.wait(cv.stk)
a('s_barrier')
conv_final(a, cv)
astamp(a, 13)
OPT['stamps'] = sv
if OPT['stamps']:
    a('s_memtime %s' % sr(S_M2, 2), 's_waitcnt lgkmcnt(0)', 's_cmp_eq_u32 %s, %s' % (sr(S_PAIR), sr(S_L)),
      's_cselect_b32 m0, 2, 3', 's_nop 3', 'v_writelane_b32 %s, %s, m0' % (vr(V_STAMP), sr(S_M2)))
a('s_add_u32 %s, %s, %d' % (sr(S_PAIR), sr(S_PAIR), NAUX))
a('s_cmp_lt_u32 %s, 288' % sr(S_PAIR))
a('s_cbranch_scc1 L_auxconv2')
a('s_branch L_fin')

a.fence()
a.extend(tail)

a.label('L_fin')
if OPT['stamps']:
    a('s_waitcnt vmcnt(0) lgkmcnt(0)')
    a('%s %s' % ('s_memtime' if OPT['cyc'] else 's_memrealtime', sr(S_M2, 2)))
    a('s_waitcnt lgkmcnt(0)')
    a('v_writelane_b32 %s, %s, 63' % (vr(V_STAMP), sr(S_M2)))
    a('v_writelane_b32 %s, %s, 62' % (vr(V_STAMP), sr(S_FAST)))
    a('s_lshl_b32 %s, %s, 10' % (sr(S_T0), sr(S_L)))
    a('s_add_u32 %s, %s, %d' % (sr(S_T0), sr(S_T0), WS_DBG))
    a('v_lshlrev_b32 %s, 2, v0' % vr(V_DUMMY))
    a('buffer_store_dword %s, %s, %s, %s offen' % (vr(V_STAMP), vr(V_DUMMY), sr(R_WS, 4), sr(S_T0)))
if OPT['enc2']:
    n1_, n2_ = OPT['enc2'].split(':')
    a('s_lshl2_add_u32 %s, %s, %s' % (sr(S_T0), sr(S_L), sr(S_WAVE)))
    a('s_cmp_lg_u32 %s, %d' % (sr(S_T0), OPT['encwg'] * 4))
    a('s_cbranch_scc1 L_end')
    a('v_readlane_b32 s12, %s, %d' % (vr(V_STAMP), STAMPS.index(n1_)))
    a('v_readlane_b32 s13, %s, %d' % (vr(V_STAMP), 63 if n2_ == 'end' else STAMPS.index(n2_)))
    a('s_memrealtime s[16:17]')
    a('s_sub_u32 s13, s13, s12')
    a('s_lshr_b32 s13, s13, 2')
    a('s_waitcnt lgkmcnt(0)')
    a.label('L_hold')
    a('s_memrealtime s[14:15]')
    a('s_waitcnt lgkmcnt(0)')
    a('s_sub_u32 s14, s14, s16')
    a('s_cmp_lt_u32 s14, s13')
    a('s_cbranch_scc1 L_hold')
if OPT['enc']:
    idx_ = 63 if OPT['enc'] == 'end' else STAMPS.index(OPT['enc'])
    a('s_lshl2_add_u32 %s, %s, %s' % (sr(S_T0), sr(S_L), sr(S_WAVE)))
    a('s_cmp_lg_u32 %s, %d' % (sr(S_T0), OPT['encwg'] * 4))
    a('s_cbranch_scc1 L_end')
    a('v_readlane_b32 s12, %s, %d' % (vr(V_STAMP), idx_))
    a.label('L_hold')
    a('s_memrealtime s[14:15]')
    a('s_waitcnt lgkmcnt(0)')
    a('s_sub_u32 s14, s14, s12')
    a('s_cmp_lt_u32 s14, 5000')
    a('s_cbranch_scc1 L_hold')
a.label('L_end')
a('s_endpgm')

hdr = open(os.path.join(os.path.dirname(os.path.abspath(__file__)), '..', 'cdna_kernels', NAME + '.s.ref')).read().split('\n')
head = []
for ln in hdr:
    if ln.startswith('; @launch'):
        break
    head.append(ln)
lines = head + ['; @launch grid=(256,1,1) block=(256,1,1) lds=%d' % LDS_SIZE,
                '.amdgcn_target "amdgcn-amd-amdhsa--gfx950"', '.text', '.globl ' + KN, '.p2align 8',
                '.type %s,@function' % KN, KN + ':']
body_ = finalize(top)
if not OPT['nto']:
    body_ = [l_.replace(' nt', '') if 's[48:51]' not in l_ else l_ for l_ in body_]
lines += body_
lines += ['.section .rodata,"a"', '.p2align 6', '.amdhsa_kernel ' + KN,
          '  .amdhsa_next_free_vgpr 512', '  .amdhsa_next_free_sgpr 102', '  .amdhsa_accum_offset 256',
          '  .amdhsa_group_segment_fixed_size 0', '  .amdhsa_kernarg_size 144', '  .amdhsa_user_sgpr_count 2',
          '  .amdhsa_user_sgpr_kernarg_segment_ptr 1', '  .amdhsa_system_sgpr_workgroup_id_x 1', '.end_amdhsa_kernel']
open(sys.argv[1], 'w').write('\n'.join(lines) + '\n')
if OPT['stamps']:
    open(sys.argv[1] + '.stamps', 'w').write('\n'.join(STAMPS) + '\n')
print('vgpr high water', V.hw, 'lines', len(lines))
```

```python
import sys, os
sys.path.insert(0, os.path.dirname(os.path.abspath(__file__)))
from asmlib import *

NAME = 'interleave_layers__ssm_conv_s5__ssm_conv_h3__prompt'
KN = NAME + '_kernel'

OPT = dict(n00=16, ramp=0, n0=6, repf=1, ntx=0, nto=0, enc2='', enc='', encwg=100, opol=0, tpos=1, tpol=0, stamps=0, slow=0, hbuf2=0, crot=0, pf=3, slp=16, slp2=6, ncp0=0, ncp=2, ncp2=7, per=50, x_nod1=0, x_s0late=0, x_nomfma=0, x_noload=0, fine=0, cyc=0)
for a_ in sys.argv[2:]:
    k_, v_ = a_.split('=')
    OPT[k_] = int(v_) if v_.lstrip('-').isdigit() else v_

MT = 6
TPOL = ('sc1', 'nt', 'sc1 nt')[OPT['tpol']]
NRB = 22
NMAIN = 198
NAUX = 58
WS_KVF = 0x1000
WS_CPF = 0xC000
WS_HF = 0x4000
WS_WF = 0x4000 + 2 * 22 * 256
WS_HFB = 0x4000 + 3 * 22 * 256
WS_WFB = 0x4000 + 4 * 22 * 256
WS_RBG = 0xC000
WS_E = 0x10000
WS_ST = 0xA0000
ST_SZ = 22 * 24576
WS_KVT = 0x1600000
KVT_STR = 5632
WS_CP = 0x540000
WS_H = 0x6C0000
H_SZ = 22 * 221184 * OPT['hbuf2']
WS_W = 0x1040000
WS_G = 0x12C0000
G_STR = 11264
WS_DBG = 0x2000000
WS_SIZE = 0x10000000
OOB = 0x7FFF0000

BLK = 12288
L_IMG = 0
L_RING = 9 * BLK
L_MISC = L_RING + 49152
LDS_SIZE = 163840
L_TAB = L_MISC
L_FX = L_MISC + 768
L_HALO = L_MISC + 3072
L_KRAW = 0
L_KVO = 28672
L_KC = L_RING
KC_CH = 16656
L_UC = L_IMG + 16
UC_CH = 9280
L_CO = 20480
CO_W = 10944
PART_ROW = 272
PART_W = 16 * PART_ROW
SPIN = 300000

P_X, P_LRE, P_LIM, P_BRE, P_BIM, P_CRE, P_CIM, P_LDT = [8 + 2 * i for i in range(8)]
P_DSK, P_Q, P_K, P_V, P_SHK, P_SSK, P_SSD, P_OUT = [24 + 2 * i for i in range(8)]
P_DBG, P_WS = 40, 42
R_WS, R_X, R_BRE, R_BIM, R_K, R_V, R_OUT, R_SK = [44 + 4 * i for i in range(8)]
S_RB, S_CG, S_FAST, S_WAVE, S_TAG, S_L, S_PAIR, S_SPIN = range(76, 84)
S_KP = 84
S_T0, S_T1, S_T2, S_T3 = 93, 94, 95, 96
S_ROLE = 97
S_M1, S_M2 = 98, 100
S_A, S_B, S_C = 3, 4, 5
S_PC = 6
S_TT = 8
S_TU = 17
S_MSEL = 26
S_MACT = 40
S_W1K = 97
S_RINGW = 98
S_PT = 99
S_XCC = 20
S_CPB = 21
S_HB = 22

V = Alloc('v', 1, 256)
top = Stream()
tail = Stream()
lblc = [0]
STAMPS = []


def newlabel(p):
    lblc[0] += 1
    return 'L_%s_%d' % (p, lblc[0])


def put(*items):
    for it in items:
        if isinstance(it, tuple):
            V.put(*it)
        else:
            V.put(it)


def srd(a, r, p, size):
    a('s_mov_b64 %s, %s' % (sr(r, 2), sr(p, 2)))
    a('s_mov_b32 %s, 0x%x' % (sr(r + 2), size))
    a('s_mov_b32 %s, 0x20000' % sr(r + 3))


def cmul(a, d, x, y):
    a('v_pk_mul_f32 %s, %s, %s op_sel:[0,0] op_sel_hi:[1,0]' % (vr(d, 2), vr(x, 2), vr(y, 2)))
    a('v_pk_fma_f32 %s, %s, %s, %s op_sel:[1,1,0] op_sel_hi:[0,1,1] neg_lo:[1,0,0]' % (vr(d, 2), vr(x, 2), vr(y, 2), vr(d, 2)))


def cmul_plain(a, d, x, y):
    a('v_mul_f32 %s, %s, %s' % (vr(d), vr(x), vr(y)))
    a('v_mul_f32 %s, %s, %s' % (vr(d + 1), vr(x + 1), vr(y)))
    a('v_fma_f32 %s, -%s, %s, %s' % (vr(d), vr(x + 1), vr(y + 1), vr(d)))
    a('v_fmac_f32 %s, %s, %s' % (vr(d + 1), vr(x), vr(y + 1)))


def cfma(a, d, x, y, c):
    a('v_pk_fma_f32 %s, %s, %s, %s op_sel:[0,0,0] op_sel_hi:[1,0,1]' % (vr(d, 2), vr(x, 2), vr(y, 2), vr(c, 2)))
    a('v_pk_fma_f32 %s, %s, %s, %s op_sel:[1,1,0] op_sel_hi:[0,1,1] neg_lo:[1,0,0]' % (vr(d, 2), vr(x, 2), vr(y, 2), vr(d, 2)))


def stamp(a, name):
    if not OPT['stamps']:
        return
    i = len(STAMPS)
    a('%s %s' % ('s_memtime' if OPT['cyc'] else 's_memrealtime', sr(S_M2, 2)), 's_waitcnt lgkmcnt(0)', 'v_writelane_b32 %s, %s, %d' % (vr(V_STAMP), sr(S_M2), i))
    STAMPS.append(name)


def astamp(a, i):
    if OPT['stamps'] or OPT.get('_sv'):
        a('s_memtime %s' % sr(S_M2, 2), 's_waitcnt lgkmcnt(0)', 'v_writelane_b32 %s, %s, %d' % (vr(V_STAMP), sr(S_M2), i))


def poll(a, loads, checks, pre_issued=False, sleep=0):
    p = Stream()
    L = newlabel('poll')
    Lc = newlabel('pollc')
    simple = len(checks) == 1 and checks[0][1] is None
    acc = None if simple else V.get(2, 1)
    p('s_mov_b32 %s, %d' % (sr(S_SPIN), SPIN))
    if pre_issued:
        regs = []
        for c in checks:
            regs += [vr(c[0])] + ([vr(c[1])] if c[1] is not None else [])
        p.touch(*regs)
        p.label(Lc)
    else:
        p.label(L)
        if sleep:
            p('s_sleep %d' % sleep)
        for t in loads:
            p(t)
        p('s_waitcnt vmcnt(0)')
    if len(checks) == 1 and checks[0][1] is None:
        p('v_cmp_ne_u32 vcc, %s, %s' % (vr(checks[0][0]), vr(checks[0][2])))
    else:
        first = True
        for (x, y, e) in checks:
            d = acc if first else acc + 1
            if y is None:
                p('v_xor_b32 %s, %s, %s' % (vr(d), vr(x), vr(e)))
            else:
                p('v_bitop3_b32 %s, %s, %s, %s bitop3:0x7e' % (vr(d), vr(x), vr(y), vr(e)))
            if not first:
                p('v_or_b32 %s, %s, %s' % (vr(acc), vr(acc), vr(acc + 1)))
            first = False
        p('v_cmp_ne_u32 vcc, 0, %s' % vr(acc))
    p('s_sub_u32 %s, %s, 1' % (sr(S_SPIN), sr(S_SPIN)))
    p('s_cselect_b64 vcc, 0, vcc')
    p('s_cmp_lg_u64 vcc, 0')
    p('s_cbranch_scc1 %s' % L)
    if pre_issued:
        tail.label(L)
        if sleep:
            tail('s_sleep %d' % sleep)
        for t in loads:
            tail(t)
        tail('s_waitcnt vmcnt(0)')
        tail('s_branch %s' % Lc)
    a.join(p)
    if acc is not None:
        V.put(acc, 2)


def dual(a, texts, touch=()):
    Ls, Lb = newlabel('slow'), newlabel('back')
    p = Stream()
    if touch:
        p.touch(*touch)
    p('s_cmp_eq_u32 %s, 0' % sr(S_FAST), 's_cbranch_scc1 %s' % Ls)
    tk = p.mem(*[t.replace(' {P}', '') for t in texts])
    p.label(Lb)
    a.join(p)
    tail.label(Ls)
    tail('s_nop 1')
    tail(*[t.replace('{P}', 'sc1') for t in texts])
    tail('s_branch %s' % Lb)
    return tk


def flag_texts(soff, pol):
    return ['s_mov_b64 exec, 1',
            'buffer_store_dword %s, %s, %s, %s offen %s' % (vr(V_TAG), vr(V_ZERO), sr(R_WS, 4), soff, pol),
            's_mov_b64 exec, -1']


def lam_loads(a, vp2):
    t = V.get(4)
    a('global_load_ushort %s, %s, %s' % (vr(t), vr(vp2), sr(P_LRE, 2)))
    a('global_load_ushort %s, %s, %s' % (vr(t + 1), vr(vp2), sr(P_LIM, 2)))
    a('global_load_ushort %s, %s, %s' % (vr(t + 2), vr(vp2), sr(P_LDT, 2)))
    return t


def lam_compute(a, t, want_coef, lam=None):
    if lam is None:
        lam = V.get(2)
    u = V.get(4)
    for i in range(3):
        a('v_lshlrev_b32 %s, 16, %s' % (vr(t + i), vr(t + i)))
    a('v_mul_f32 %s, 0x3fb8aa3b, %s' % (vr(t + 2), vr(t + 2)))
    a('v_exp_f32 %s, %s' % (vr(t + 2), vr(t + 2)))
    a('v_cvt_pk_bf16_f32 %s, %s, %s' % (vr(t + 2), vr(t + 2), vr(t + 2)))
    a('v_lshlrev_b32 %s, 16, %s' % (vr(t + 2), vr(t + 2)))
    a('v_mul_f32 %s, %s, %s' % (vr(u), vr(t + 2), vr(t)))
    a('v_mul_f32 %s, %s, %s' % (vr(u + 1), vr(t + 2), vr(t + 1)))
    a('v_mul_f32 %s, 0x3fb8aa3b, %s' % (vr(u), vr(u)))
    a('v_exp_f32 %s, %s' % (vr(u), vr(u)))
    a('v_mul_f32 %s, 0.15915494, %s' % (vr(u + 1), vr(u + 1)))
    a('v_rndne_f32 %s, %s' % (vr(u + 2), vr(u + 1)))
    a('v_sub_f32 %s, %s, %s' % (vr(u + 1), vr(u + 1), vr(u + 2)))
    a('v_cos_f32 %s, %s' % (vr(u + 2), vr(u + 1)))
    a('v_sin_f32 %s, %s' % (vr(u + 3), vr(u + 1)))
    a('v_mul_f32 %s, %s, %s' % (vr(lam), vr(u), vr(u + 2)))
    a('v_mul_f32 %s, %s, %s' % (vr(lam + 1), vr(u), vr(u + 3)))
    coef = None
    if want_coef:
        coef = V.get(2)
        a('v_add_f32 %s, -1.0, %s' % (vr(u), vr(lam)))
        a('v_mov_b32 %s, %s' % (vr(u + 1), vr(lam + 1)))
        a('v_mul_f32 %s, %s, %s' % (vr(u + 2), vr(t), vr(t)))
        a('v_fmac_f32 %s, %s, %s' % (vr(u + 2), vr(t + 1), vr(t + 1)))
        a('v_rcp_f32 %s, %s' % (vr(u + 2), vr(u + 2)))
        a('v_sub_f32 %s, 0, %s' % (vr(t + 1), vr(t + 1)))
        cmul(a, coef, u, t)
        a('v_mul_f32 %s, %s, %s' % (vr(coef), vr(coef), vr(u + 2)))
        a('v_mul_f32 %s, %s, %s' % (vr(coef + 1), vr(coef + 1), vr(u + 2)))
    put((u, 4), (t, 4))
    return lam, coef


def tag_ready(a):
    a('s_mul_i32 %s, %s, 0x9E3779B1' % (sr(S_TAG), sr(S_TAG)),
      's_add_u32 %s, %s, 0x7F4A7C15' % (sr(S_TAG), sr(S_TAG)),
      'v_mov_b32 %s, %s' % (vr(V_TAG), sr(S_TAG)))


def rbf(s, regs):
    for r in regs:
        s('v_cvt_pk_bf16_f32 %s, %s, %s' % (vr(r), vr(r), vr(r)))
    for r in regs:
        s('v_lshlrev_b32 %s, 16, %s' % (vr(r), vr(r)))


def rs12(s, S, Q):
    dp = 'v_add_f32_dpp %s, %s, %s %s row_mask:0xf bank_mask:0x%x'
    for X in (S, Q):
        for j in range(3):
            s(dp % (vr(X[j]), vr(X[j]), vr(X[j]), 'row_ror:8', 0x3))
    for X in (S, Q):
        for j in range(3):
            s(dp % (vr(X[j]), vr(X[j + 3]), vr(X[j + 3]), 'row_ror:8', 0xc))
    for X in (S, Q):
        s(dp % (vr(X[0]), vr(X[0]), vr(X[0]), 'row_half_mirror', 0x5))
        s(dp % (vr(X[2]), vr(X[2]), vr(X[2]), 'row_half_mirror', 0xf))
    for X in (S, Q):
        s(dp % (vr(X[0]), vr(X[1]), vr(X[1]), 'row_half_mirror', 0xa))
    for qp in ('quad_perm:[1,0,3,2]', 'quad_perm:[2,3,0,1]'):
        for r in (S[2], Q[2], S[0], Q[0]):
            s(dp % (vr(r), vr(r), vr(r), qp, 0xf))


def rs6(s, S, Q):
    dp = 'v_add_f32_dpp %s, %s, %s %s row_mask:0xf bank_mask:0x%x'
    for X in (S, Q):
        for j in range(3):
            s(dp % (vr(X[j]), vr(X[j]), vr(X[j]), 'row_ror:8', 0xf))
    for X in (S, Q):
        s(dp % (vr(X[0]), vr(X[0]), vr(X[0]), 'row_half_mirror', 0x5))
        s(dp % (vr(X[2]), vr(X[2]), vr(X[2]), 'row_half_mirror', 0xf))
    for X in (S, Q):
        s(dp % (vr(X[0]), vr(X[1]), vr(X[1]), 'row_half_mirror', 0xa))
    for qp in ('quad_perm:[1,0,3,2]', 'quad_perm:[2,3,0,1]'):
        for r in (S[2], Q[2], S[0], Q[0]):
            s(dp % (vr(r), vr(r), vr(r), qp, 0xf))


def tile_src(i):
    hf, j = divmod(i, 3)
    if j == 2:
        return 1, 8 * hf
    return 0, 8 * hf + 4 * j


a = top
V_LANE, V_TAG, V_STAMP, V_L16, V_N, V_Q = [V.get() for _ in range(6)]
V_OOB = V.get()
V_JUNK = V.get()
V_ZERO = V.get(2)
V_DUMMY = V.get(4)
NCOMMON = V.hw
BASE = V.get(24)
V_DSK = V.get(4)
V_FA = V.get(4)
LAM, L12, L24, L384, LQ96, LQ24, RB, OFF = [V.get(2) for _ in range(8)]
(V_TAU, V_OROW, V_STW, V_STR, V_EXP9, V_TABW, V_EW, V_ER, V_HW, V_HR, V_TABR, V_WA) = [V.get() for _ in range(12)]
WCV = V.home(32)
GP = V.home(12)
V_PW = V.home(4)
V_PR, V_PW2, V_PR2 = V_PW + 1, V_PW + 2, V_PW + 3
HOMES = ((WCV, 32), (GP, 12), (V_PW, 4))
V_DX = V.get(3, 1)

a('s_cmp_ge_u32 s2, 256')
a('s_cbranch_scc1 L_end')
a('s_load_dwordx16 s[8:23], s[0:1], 0')
a('s_load_dwordx16 s[24:39], s[0:1], 64')
a('s_load_dwordx4 s[40:43], s[0:1], 128')
a('s_getpc_b64 %s' % sr(S_PC, 2))
a.label('L_pc')
a('s_lshr_b32 %s, s2, 3' % sr(S_T0))
a('s_lshl_b32 %s, %s, 12' % (sr(S_T1), sr(S_T0)))
a('v_lshl_add_u32 %s, v0, 4, %s' % (vr(V_TAG), sr(S_T1)))
a('s_mov_b32 %s, L_end-L_pc-16' % sr(S_T1))
a('v_min_u32 %s, %s, %s' % (vr(V_TAG), sr(S_T1), vr(V_TAG)))
a('global_load_dwordx4 %s, %s, %s ;junk' % (vr(V_DUMMY, 4), vr(V_TAG), sr(S_PC, 2)))
a('v_and_b32 %s, 63, v0' % vr(V_LANE))
a('v_lshrrev_b32 %s, 6, v0' % vr(V_Q))
a('v_lshlrev_b32 %s, 4, %s' % (vr(V_L16), vr(V_LANE)))
a('v_readfirstlane_b32 %s, %s' % (sr(S_WAVE), vr(V_Q)))
if OPT['stamps']:
    a('v_mov_b32 %s, 0' % vr(V_STAMP))
stamp(a, 'start')
a('v_and_b32 %s, 15, %s' % (vr(V_N), vr(V_LANE)))
a('v_lshrrev_b32 %s, 4, %s' % (vr(V_Q), vr(V_LANE)))
a('v_mov_b32 %s, 0' % vr(V_ZERO))
a('v_mov_b32 %s, 0' % vr(V_ZERO + 1))
a('v_mov_b32 %s, 0x%x' % (vr(V_OOB), OOB))
a('s_and_b32 %s, s2, 7' % sr(S_T1))
a('s_mul_i32 %s, %s, 27' % (sr(S_T2), sr(S_T1)))
a('s_add_u32 %s, %s, %s' % (sr(S_T2), sr(S_T2), sr(S_T0)))
a('s_mul_i32 %s, %s, 5' % (sr(S_T3), sr(S_T1)))
a('s_add_u32 %s, %s, %s' % (sr(S_T3), sr(S_T3), sr(S_T0)))
a('s_add_u32 %s, %s, %d' % (sr(S_T3), sr(S_T3), 216 - 27))
a('s_cmp_lt_u32 %s, 27' % sr(S_T0))
a('s_cselect_b32 %s, %s, %s' % (sr(S_L), sr(S_T2), sr(S_T3)))
a('s_mul_i32 %s, %s, 57' % (sr(S_RB), sr(S_L)))
a('s_lshr_b32 %s, %s, 9' % (sr(S_RB), sr(S_RB)))
a('s_mul_i32 %s, %s, 9' % (sr(S_T0), sr(S_RB)))
a('s_sub_u32 %s, %s, %s' % (sr(S_CG), sr(S_L), sr(S_T0)))
a('s_mov_b32 %s, %s' % (sr(S_PAIR), sr(S_L)))
a('s_and_b32 %s, %s, 1' % (sr(S_A), sr(S_WAVE)))
a('s_lshr_b32 %s, %s, 1' % (sr(S_B), sr(S_WAVE)))
a('s_cmp_ge_u32 %s, %d' % (sr(S_L), NMAIN))
a('s_cbranch_scc1 L_aux')

t, t2, t3 = V.get(), V.get(), V.get()
LAMT = V.get(4)
lad, dad = V.get(), V.get()
V_DB = V.get(2)
c0 = V.get()
a('v_lshrrev_b32 %s, 3, %s' % (vr(t), vr(V_LANE)))
a('v_and_b32 %s, 7, %s' % (vr(t3), vr(V_LANE)))
a('s_lshl2_add_u32 %s, %s, %s' % (sr(S_PT), sr(S_CG), sr(S_WAVE)))
a('s_lshl_b32 %s, %s, 10' % (sr(S_W1K), sr(S_WAVE)))
a('s_mul_i32 %s, %s, 12288' % (sr(S_RINGW), sr(S_WAVE)))
a('s_add_u32 %s, %s, %d' % (sr(S_RINGW), sr(S_RINGW), L_RING))
a('v_xor_b32 %s, %s, %s' % (vr(c0), vr(t3), vr(V_Q)))
a('v_lshlrev_b32 %s, 4, %s' % (vr(c0), vr(c0)))
a('v_lshrrev_b32 %s, 5, %s' % (vr(t2), vr(V_LANE)))
a('v_mul_u32_u24 %s, 24, %s' % (vr(t2), vr(t2)))
a('v_and_b32 %s, 1, %s' % (vr(t3), vr(t)))
a('v_mad_u32_u24 %s, %s, 12, %s' % (vr(t2), vr(t3), vr(t2)))
a('v_and_b32 %s, 1, %s' % (vr(t3), vr(V_Q)))
a('s_mul_i32 %s, %s, 48' % (sr(S_T0), sr(S_A)))
a('s_mul_i32 %s, %s, 96' % (sr(S_T1), sr(S_RB)))
a('s_add_u32 %s, %s, %s' % (sr(S_T0), sr(S_T0), sr(S_T1)))
a('s_lshl1_add_u32 %s, %s, %s' % (sr(S_T0), sr(S_B), sr(S_T0)))
a('v_add3_u32 %s, %s, %s, %s' % (vr(t2), vr(t2), vr(t3), sr(S_T0)))
a('v_mul_u32_u24 %s, 1152, %s' % (vr(t2), vr(t2)))
a('s_lshl_b32 %s, %s, 6' % (sr(S_T0), sr(S_A)))
a('v_xor_b32 %s, %s, %s' % (vr(V_DX), sr(S_T0), vr(c0)))
a('v_add_u32 %s, %s, %s' % (vr(V_DX), vr(V_DX), vr(t2)))
a('v_add_u32 %s, 4608, %s' % (vr(V_DX + 1), vr(V_DX)))
a('v_add_u32 %s, 9216, %s' % (vr(V_DX + 2), vr(V_DX)))
a('s_lshl_b32 %s, %s, 4' % (sr(S_T0), sr(S_PT)))
a('v_add_u32 %s, %s, %s' % (vr(t2), sr(S_T0), vr(t)))
a('v_mul_u32_u24 %s, 1152, %s' % (vr(t2), vr(t2)))
a('v_add_u32 %s, %s, %s' % (vr(V_DB), vr(t2), vr(c0)))
a('v_xor_b32 %s, 64, %s' % (vr(V_DB + 1), vr(c0)))
a('v_add_u32 %s, %s, %s' % (vr(V_DB + 1), vr(V_DB + 1), vr(t2)))
a('v_add_u32 %s, %d, %s' % (vr(V_DB + 1), 8 * 1152, vr(V_DB + 1)))
put(c0)
XS = V.get(12, 2)
xsa = V.get()
a('v_and_b32 %s, 1, %s' % (vr(t), vr(V_Q)))
a('v_mul_u32_u24 %s, 12, %s' % (vr(V_TAU), vr(t)))
a('v_lshrrev_b32 %s, 1, %s' % (vr(t2), vr(V_Q)))
a('v_add_u32 %s, %s, %s' % (vr(V_TAU), vr(V_TAU), vr(t2)))
a('s_lshl2_add_u32 %s, %s, %s' % (sr(S_T0), sr(S_RB), sr(S_WAVE)))
a('s_mul_i32 %s, %s, 24' % (sr(S_T0), sr(S_T0)))
a('v_add_u32 %s, %s, %s' % (vr(t3), sr(S_T0), vr(V_TAU)))
a('v_mul_u32_u24 %s, 1152, %s' % (vr(xsa), vr(t3)))
a('s_lshl_b32 %s, %s, 7' % (sr(S_T0), sr(S_CG)))
a('v_lshl_add_u32 %s, %s, 3, %s' % (vr(dad), vr(V_N), sr(S_T0)))
a('v_add_u32 %s, %s, %s' % (vr(xsa), vr(xsa), vr(dad)))
a('s_mov_b32 %s, 0x%x' % (sr(R_X + 2), 2048 * 1152))
a('s_mov_b32 %s, 0x20000' % sr(R_X + 3))
for r_ in (R_BRE, R_BIM):
    a('s_mov_b32 %s, 0x%x' % (sr(r_ + 2), 576 * 1152))
    a('s_mov_b32 %s, 0x20000' % sr(r_ + 3))
a('s_waitcnt lgkmcnt(0)')
a('s_mov_b64 %s, %s' % (sr(R_X, 2), sr(P_X, 2)))
a('s_mov_b64 %s, %s' % (sr(R_BRE, 2), sr(P_BRE, 2)))
a('s_mov_b64 %s, %s' % (sr(R_BIM, 2), sr(P_BIM, 2)))


def x_dma(s, blk, layer):
    tk = None
    for u in range(3):
        if layer == 0:
            s('s_add_u32 m0, %s, %d' % (sr(S_W1K), L_IMG + blk * BLK + u * 4096 - blk * 128))
            tk = s.mem('buffer_load_dwordx4 %s, %s, 0 offen offset:%d lds' % (vr(V_DX + u), sr(R_X, 4), blk * 128))
        else:
            s('s_add_u32 m0, %s, %d' % (sr(S_W1K), L_IMG + blk * BLK + u * 4096))
            tk = s.mem('buffer_load_dwordx4 %s, %s, %s offen sc1 lds' % (vr(V_DX + u), sr(R_WS, 4), sr(S_TT + blk)))
    return tk


WB = lambda kp, h, mat: ((kp * 2 + h) * 2 + mat) * 4


def b_dma(s, kp):
    tk = None
    for b in range(4):
        s('s_add_u32 m0, %s, %d' % (sr(S_RINGW), (kp % 3) * 4096 + b * 1024 - kp * 128))
        tk = s.mem('buffer_load_dwordx4 %s, %s, 0 offen offset:%d lds' % (vr(V_DB + (b & 1)), sr(R_BRE if b < 2 else R_BIM, 4), kp * 128))
    return tk


xtk, btk = {}, {}
xtk[0] = x_dma(a, 0, 0)
btk[0] = b_dma(a, 0)
a('s_load_dword %s, %s, 0' % (sr(S_TAG), sr(P_WS, 2)))
for i in range(MT):
    a('s_movk_i32 %s, %d' % (sr(S_T0), 2304 * i),
      'buffer_load_dwordx2 %s, %s, %s, %s offen' % (vr(XS + 2 * i, 2), vr(xsa), sr(R_X, 4), sr(S_T0)))
srd(a, R_WS, P_WS, WS_SIZE)
iss = Stream()
xtk[1] = x_dma(iss, 1, 0)
btk[1] = b_dma(iss, 1)
xtk[2] = x_dma(iss, 2, 0)
su = Stream()
V_FB = V.get(2)
su('v_lshrrev_b32 %s, 1, %s' % (vr(t), vr(V_N)))
su('v_xor_b32 %s, %s, %s' % (vr(t), vr(t), vr(V_Q)))
su('v_lshlrev_b32 %s, 4, %s' % (vr(t), vr(t)))
su('v_lshl_add_u32 %s, %s, 7, %s' % (vr(V_FA), vr(V_N), vr(t)))
su('v_xor_b32 %s, 64, %s' % (vr(V_FA + 1), vr(V_FA)))
su('v_add_u32 %s, %d, %s' % (vr(V_FA + 2), 4 * BLK, vr(V_FA)))
su('v_add_u32 %s, %d, %s' % (vr(V_FA + 3), 4 * BLK, vr(V_FA + 1)))
su('v_add_u32 %s, %s, %s' % (vr(V_FB), sr(S_RINGW), vr(V_FA)))
su('v_add_u32 %s, %s, %s' % (vr(V_FB + 1), sr(S_RINGW), vr(V_FA + 1)))
srd(su, R_OUT, P_OUT, 2048 * 2304)
su('s_mov_b32 %s, 0x02020202' % sr(S_MSEL), 's_mov_b32 %s, 0x02020202' % sr(S_MSEL + 1))
su('s_mov_b32 %s, 0x13131313' % sr(S_MACT), 's_mov_b32 %s, 0x13131313' % sr(S_MACT + 1))
su('s_getreg_b32 %s, hwreg(HW_REG_XCC_ID, 0, 4)' % sr(S_XCC))
su('v_and_b32 %s, 1, %s' % (vr(t), vr(V_Q)))
su('v_lshrrev_b32 %s, 1, %s' % (vr(t2), vr(V_Q)))
su('v_lshlrev_b32 %s, 1, %s' % (vr(V_OROW), vr(xsa)))
TI = V.get()
su('v_lshrrev_b32 %s, 3, %s' % (vr(TI), vr(V_N)))
su('v_mul_u32_u24 %s, 3, %s' % (vr(TI), vr(TI)))
su('v_bfe_u32 %s, %s, 2, 1' % (vr(t3), vr(V_N)))
su('v_cndmask_b32 %s, %s, 2, %s' % (vr(t3), vr(t3), sr(S_MSEL, 2)))
su('v_add_u32 %s, %s, %s' % (vr(TI), vr(TI), vr(t3)))
su('v_lshl_add_u32 %s, %s, 1, %s' % (vr(t3), vr(TI), vr(t2)))
su('v_lshlrev_b32 %s, 4, %s' % (vr(t3), vr(t3)))
su('v_lshl_add_u32 %s, %s, 2, %s' % (vr(V_TABW), vr(t), vr(t3)))
su('s_mul_i32 %s, %s, 192' % (sr(S_T0), sr(S_WAVE)),
   's_add_u32 %s, %s, %d' % (sr(S_T0), sr(S_T0), L_TAB),
   'v_add_u32 %s, %s, %s' % (vr(V_TABW), sr(S_T0), vr(V_TABW)))
su('v_mul_u32_u24 %s, 192, %s' % (vr(V_TABR), vr(V_Q)))
su('v_add_u32 %s, %d, %s' % (vr(V_TABR), L_TAB, vr(V_TABR)))
su('s_mul_i32 %s, %s, 96' % (sr(S_T0), sr(S_RB)),
   's_lshl2_add_u32 %s, %s, %s' % (sr(S_T0), sr(S_WAVE), sr(S_T0)),
   'v_add_u32 %s, %s, %s' % (vr(t), sr(S_T0), vr(V_Q)))
su('v_lshlrev_b32 %s, 8, %s' % (vr(t), vr(t)))
su('v_lshl_add_u32 %s, %s, 4, %s' % (vr(V_STR), vr(V_N), vr(t)))
su('v_cmp_gt_u32 vcc, 9, %s' % vr(V_N),
   'v_cndmask_b32 %s, %s, %s, vcc' % (vr(V_STR), vr(V_OOB), vr(V_STR)))
su('v_lshl_add_u32 %s, %s, 12, %s' % (vr(V_STW), vr(TI), vr(t)))
su('s_lshl_b32 %s, %s, 4' % (sr(S_T0), sr(S_CG)),
   'v_add_u32 %s, %s, %s' % (vr(V_STW), sr(S_T0), vr(V_STW)))
su('v_cndmask_b32 %s, %s, %s, %s' % (vr(V_STW), vr(V_OOB), vr(V_STW), sr(S_MACT, 2)))
put(TI)
su('s_lshl_b32 %s, %s, 2' % (sr(S_T0), sr(S_WAVE)),
   'v_add_u32 %s, %s, %s' % (vr(V_WA), sr(S_T0), vr(V_Q)))
su('v_xor_b32 %s, %s, %s' % (vr(t), vr(V_WA), vr(V_N)))
su('v_lshrrev_b32 %s, 1, %s' % (vr(t), vr(t)))
su('v_lshlrev_b32 %s, 4, %s' % (vr(t), vr(t)))
su('v_lshl_add_u32 %s, %s, 7, %s' % (vr(V_WA), vr(V_WA), vr(t)))
su('v_and_b32 %s, 1, %s' % (vr(t), vr(V_N)))
su('v_lshl_add_u32 %s, %s, 3, %s' % (vr(V_WA), vr(t), vr(V_WA)))
su('s_lshl_b32 %s, %s, 8' % (sr(S_T0), sr(S_RB)),
   'v_lshl_add_u32 %s, %s, 4, %s' % (vr(V_EW), vr(V_N), sr(S_T0)))
su('v_lshlrev_b32 %s, 8, %s' % (vr(t), vr(V_Q)))
su('v_sub_u32 %s, %s, %s' % (vr(V_ER), vr(V_EW), vr(t)))
su('v_subrev_u32 %s, 256, %s' % (vr(V_ER), vr(V_ER)))
su('v_cmp_gt_u32 vcc, 16, %s' % vr(V_LANE),
   'v_cndmask_b32 %s, %s, %s, vcc' % (vr(V_EW), vr(V_OOB), vr(V_EW)))
su('v_lshl_add_u32 %s, %s, 2, %s' % (vr(t), vr(V_N), vr(t)))
su('s_mul_i32 %s, %s, 6144' % (sr(S_T0), sr(S_WAVE)), 's_add_u32 %s, %s, %d' % (sr(S_T0), sr(S_T0), 0),
   'v_add_u32 %s, %s, %s' % (vr(V_HW), sr(S_T0), vr(t)))
su('v_lshlrev_b32 %s, 4, %s' % (vr(t), vr(V_Q)))
su('v_lshl_add_u32 %s, %s, 6, %s' % (vr(t), vr(V_N), vr(t)))
su('s_mul_i32 %s, %s, 6144' % (sr(S_T0), sr(S_WAVE)), 's_add_u32 %s, %s, %d' % (sr(S_T0), sr(S_T0), 0),
   'v_add_u32 %s, %s, %s' % (vr(V_HR), sr(S_T0), vr(t)))
a.weave(su, iss)
put(t, t2, t3, xsa)
a('s_lshl_b32 %s, %s, 5' % (sr(S_T1), sr(S_PT)))
a('v_lshl_add_u32 %s, %s, 1, %s' % (vr(lad), vr(V_N), sr(S_T1)))
a('s_mov_b32 %s, %d' % (sr(S_T2), WS_ST),
  'buffer_load_dword %s, %s, %s, %s offen sc1 ;junk' % (vr(V_JUNK), vr(V_STW), sr(R_WS, 4), sr(S_T2)))
stamp(a, 'setup')


def b_read(s, kp):
    s.wait(btk[kp])
    tk = None
    for h in range(2):
        for mat in range(2):
            tk = s.mem('ds_read_b128 %s, %s offset:%d' % (ar(WB(kp, h, mat), 4), vr(V_FB + h), (kp % 3) * 4096 + mat * 2048))
    return tk


class KVm:
    pass


def kv_dma(s, kv):
    kv.SHK = V.get(4, top=True)
    t, t2, kh = V.get(), V.get(), V.get()
    s('s_cmp_lt_u32 %s, 6' % sr(S_CG),
      's_cselect_b32 %s, %d, 0' % (sr(R_K + 2), 2048 * 1152),
      's_mov_b32 %s, %s' % (sr(R_V + 2), sr(R_K + 2)),
      's_mov_b32 %s, %s' % (sr(R_K), sr(P_K)), 's_and_b32 %s, %s, 0xffff' % (sr(R_K + 1), sr(P_K + 1)),
      's_mov_b32 %s, 0x20000' % sr(R_K + 3))
    s('s_mov_b32 %s, %s' % (sr(R_V), sr(P_V)), 's_and_b32 %s, %s, 0xffff' % (sr(R_V + 1), sr(P_V + 1)),
      's_mov_b32 %s, 0x20000' % sr(R_V + 3))
    s('v_lshrrev_b32 %s, 3, %s' % (vr(t), vr(V_LANE)))
    s('v_mul_u32_u24 %s, 1152, %s' % (vr(t2), vr(t)))
    s('v_and_b32 %s, 7, %s' % (vr(t), vr(V_LANE)))
    s('v_lshl_add_u32 %s, %s, 4, %s' % (vr(t2), vr(t), vr(t2)))
    s('v_and_b32 %s, 31, %s' % (vr(t), vr(V_LANE)))
    s('s_lshl_b32 %s, %s, 9' % (sr(S_T1), sr(S_CG)),
      'v_lshl_add_u32 %s, %s, 4, %s' % (vr(t), vr(t), sr(S_T1)),
      'global_load_dwordx4 %s, %s, %s' % (vr(kv.SHK, 4), vr(t), sr(P_SHK, 2)))
    s('s_lshl2_add_u32 %s, %s, %s' % (sr(S_T0), sr(S_RB), sr(S_WAVE)),
      's_mul_i32 %s, %s, %d' % (sr(S_T0), sr(S_T0), 24 * 1152),
      's_lshl_b32 %s, %s, 7' % (sr(S_T1), sr(S_CG)),
      's_add_u32 %s, %s, %s' % (sr(S_T0), sr(S_T0), sr(S_T1)),
      'v_add_u32 %s, %s, %s' % (vr(t2), sr(S_T0), vr(t2)),
      'v_subrev_u32 %s, %d, %s' % (vr(kh), 8 * 1152, vr(t2)))
    s('s_mul_i32 %s, %s, 7168' % (sr(S_C), sr(S_WAVE)), 's_mov_b32 m0, %s' % sr(S_C))
    s('buffer_load_dwordx4 %s, %s, 0 offen nt lds' % (vr(kh), sr(R_K, 4)))
    for u in range(3):
        for base, rr in ((1024, R_K), (4096, R_V)):
            s('s_add_u32 m0, %s, %d' % (sr(S_C), base + u * 1024))
            kv.tok = s.mem('s_mov_b32 %s, %d' % (sr(S_T2), u * 8 * 1152),
                           'buffer_load_dwordx4 %s, %s, %s offen nt lds' % (vr(t2), sr(rr, 4), sr(S_T2)))
    kv.rel = [t, t2, kh]


def kv_core(kc, ntp, krow, vrow, SHK, emit_unit, touch=None):
    W, KU, P = V.get(8, 2), V.get(12, 2), V.get(16, 2)
    S4 = V.get(4, 1)
    OU = [V.get(4), V.get(4)]
    ONE2 = V.get()
    kc('v_mov_b32 %s, 0x3f803f80' % vr(ONE2))
    kc('v_mov_b32 %s, %s' % (vr(OU[0] + 3), vr(V_TAG)))
    kc('v_mov_b32 %s, %s' % (vr(OU[1] + 3), vr(V_TAG)))
    for j in range(4):
        for ch in range(2):
            src = SHK + 2 * ch + (j >> 1)
            kc(('v_and_b32 %s, 0xffff0000, %s' if j & 1 else 'v_lshlrev_b32 %s, 16, %s') % (vr(W + 2 * j + ch), vr(src)))
    ku = lambda r: KU + 2 * ((r + 3) % 6)

    def unpack_k(r):
        kc('v_lshlrev_b32 %s, 16, %s' % (vr(ku(r)), vr(krow(r))))
        kc('v_and_b32 %s, 0xffff0000, %s' % (vr(ku(r) + 1), vr(krow(r))))

    for r in (-3, -2, -1):
        unpack_k(r)
    for tp in range(ntp):
        if touch is not None:
            touch(tp)
        for tt in range(2):
            unpack_k(2 * tp + tt)
        for tt in range(2):
            for j in range(4):
                kc('v_pk_mul_f32 %s, %s, %s' % (vr(P + tt * 8 + 2 * j, 2), vr(ku(2 * tp + tt - j), 2), vr(W + 2 * j, 2)))
        idx = [(tt, ch) for tt in range(2) for ch in range(2)]
        for step in range(3):
            for u, (tt, ch) in enumerate(idx):
                first = vr(P + tt * 8 + 6 + ch) if step == 0 else vr(S4 + u)
                kc('v_cvt_pk_bf16_f32 %s, %s, %s' % (vr(S4 + u), first, vr(P + tt * 8 + 2 * (2 - step) + ch)))
            for u in range(4):
                kc('v_dot2_f32_bf16 %s, %s, %s, 0' % (vr(S4 + u), vr(S4 + u), vr(ONE2)))
        for u, (tt, ch) in enumerate(idx):
            kc('v_cvt_pk_bf16_f32 %s, %s, %s' % (vr(S4 + u), vr(S4 + u) if ch == 0 else '0', '0' if ch == 0 else vr(S4 + u)))
        for u, (tt, ch) in enumerate(idx):
            kc('v_dot2_f32_bf16 %s, %s, %s, 0' % (vr(S4 + u), vr(S4 + u), vr(vrow(2 * tp + tt))))
        pos = ntp - 1 - tp
        for ch in range(2):
            kc('v_cvt_pk_bf16_f32 %s, %s, %s' % (vr(OU[ch] + pos % 3), vr(S4 + 2 + ch), vr(S4 + ch)))
        if pos % 3 == 0:
            for ch in range(2):
                emit_unit(ch, pos // 3, OU[ch])
    put((W, 8), (KU, 12), (P, 16), (S4, 4), (OU[0], 4), (OU[1], 4), ONE2)


def kv_main(s, kv, ks):
    ka, kb, t, t2 = [V.get() for _ in range(4)]
    s('v_lshrrev_b32 %s, 5, %s' % (vr(t), vr(V_LANE)))
    s('v_and_b32 %s, 31, %s' % (vr(t2), vr(V_LANE)))
    s('v_mul_u32_u24 %s, 1536, %s' % (vr(ka), vr(t)))
    s('v_lshl_add_u32 %s, %s, 2, %s' % (vr(ka), vr(t2), vr(ka)))
    s('s_mul_i32 %s, %s, 7168' % (sr(S_T0), sr(S_WAVE)),
      's_add_u32 %s, %s, 512' % (sr(S_T0), sr(S_T0)),
      'v_add_u32 %s, %s, %s' % (vr(ka), sr(S_T0), vr(ka)))
    s('v_add_u32 %s, 128, %s' % (vr(kb), vr(ka)))
    KR, VR = V.get(16, 2), V.get(12, 2)
    ridx = lambda r: (r >> 2) * 4 + (r & 1) * 2 + ((r >> 1) & 1)
    krow = lambda r: KR + ridx(r + 4)
    vrow = lambda r: VR + ridx(r)
    s.wait(kv.tok)
    for g in range(4):
        for par in range(2):
            s('ds_read2st64_b32 %s, %s offset0:%d offset1:%d' % (vr(KR + g * 4 + par * 2, 2), vr(kb if par else ka), 2 * g, 2 * g + 1))
        if g > 0:
            for par in range(2):
                s('ds_read2st64_b32 %s, %s offset0:%d offset1:%d' % (vr(VR + (g - 1) * 4 + par * 2, 2), vr(kb if par else ka),
                                                                     14 + 2 * (g - 1), 14 + 2 * (g - 1) + 1))
    s('v_sub_u32 %s, 1, %s' % (vr(t), vr(t)))
    s('v_lshlrev_b32 %s, 5, %s' % (vr(t), vr(t)))
    s('v_mul_u32_u24 %s, 528, %s' % (vr(t2), vr(t2)))
    s('s_lshl_b32 %s, %s, 6' % (sr(S_T0), sr(S_WAVE)),
      's_sub_u32 %s, 192, %s' % (sr(S_T0), sr(S_T0)),
      'v_add3_u32 %s, %s, %s, %s' % (vr(t), vr(t), vr(t2), sr(S_T0)),
      's_mul_i32 %s, %s, 4224' % (sr(S_T0), sr(S_WAVE)),
      'v_lshrrev_b32 %s, 5, %s' % (vr(t2), vr(V_LANE)),
      'v_lshlrev_b32 %s, 4, %s' % (vr(t2), vr(t2)),
      'v_add3_u32 %s, %s, %s, %s' % (vr(t2), vr(t2), vr(V_L16), sr(S_T0)))
    tks = []
    kv_core(s, 6, krow, vrow, kv.SHK,
            lambda ch, un, reg: tks.append(s.mem('ds_write_b128 %s, %s offset:%d' % (vr(t), vr(reg, 4), L_KVO + ch * 256 + un * 16))))
    put((KR, 16), (VR, 12), (kv.SHK, 4))
    D = V.get(16)
    s('v_mul_u32_u24 %s, %d, %s' % (vr(ka), KVT_STR, vr(V_Q)))
    s('v_lshl_add_u32 %s, %s, 4, %s' % (vr(ka), vr(V_N), vr(ka)))
    s('s_mul_i32 %s, %s, %d' % (sr(S_T0), sr(S_PT), 16 * KVT_STR),
      's_lshl_b32 %s, %s, 8' % (sr(S_T1), sr(S_RB)),
      's_sub_u32 %s, %s, %s' % (sr(S_T0), sr(S_T0), sr(S_T1)),
      's_add_u32 %s, %s, %d' % (sr(S_T0), sr(S_T0), WS_KVT + 21 * 256),
      's_cmp_lt_u32 %s, 6' % sr(S_CG),
      's_cselect_b32 %s, %s, 0x40000000' % (sr(S_T0), sr(S_T0)),
      'v_add_u32 %s, %s, %s' % (vr(ka), sr(S_T0), vr(ka)))
    ks.wait(tks[-1])
    ks('s_barrier')
    for i in range(4):
        ks('ds_read_b128 %s, %s offset:%d' % (vr(D + 4 * i, 4), vr(t2), L_KVO + i * 1056))
    for i in range(4):
        ks('s_mov_b32 %s, %d' % (sr(S_T1), 4 * i * KVT_STR),
           'buffer_store_dwordx4 %s, %s, %s, %s offen sc1' % (vr(D + 4 * i, 4), vr(ka), sr(R_WS, 4), sr(S_T1)))
    ks('s_nop 1')
    put((D, 16), ka, kb, t, t2)


def stats_partial(s, X, S, Q, i, d, pk):
    x = X + 4 * i
    if pk:
        s('v_pk_add_f32 %s, %s, %s' % (vr(d, 2), vr(x, 2), vr(x + 2, 2)),
          'v_pk_mul_f32 %s, %s, %s' % (vr(d + 2, 2), vr(x, 2), vr(x, 2)),
          'v_add_f32 %s, %s, %s' % (vr(S + i), vr(d), vr(d + 1)),
          'v_pk_fma_f32 %s, %s, %s, %s' % (vr(d + 2, 2), vr(x + 2, 2), vr(x + 2, 2), vr(d + 2, 2)),
          'v_add_f32 %s, %s, %s' % (vr(Q + i), vr(d + 2), vr(d + 3)))
    else:
        s('v_add_f32 %s, %s, %s' % (vr(S + i), vr(x), vr(x + 1)))
        s('v_mul_f32 %s, %s, %s' % (vr(Q + i), vr(x), vr(x)))
        s('v_add_f32 %s, %s, %s' % (vr(S + i), vr(S + i), vr(x + 2)))
        s('v_fmac_f32 %s, %s, %s' % (vr(Q + i), vr(x + 1), vr(x + 1)))
        s('v_add_f32 %s, %s, %s' % (vr(S + i), vr(S + i), vr(x + 3)))
        s('v_fmac_f32 %s, %s, %s' % (vr(Q + i), vr(x + 2), vr(x + 2)))
        s('v_fmac_f32 %s, %s, %s' % (vr(Q + i), vr(x + 3), vr(x + 3)))


def stats_publish(s, X, which, fast, pk=True, SQ=None, tiles=range(MT), dreg=None):
    if SQ is None:
        S, Q = V.get(6, 1), V.get(6, 1)
    else:
        S, Q = SQ
    d = V.get(4) if dreg is None else dreg
    for i in tiles:
        stats_partial(s, X, S, Q, i, d, pk)
    s('v_add_u32 %s, %d, %s' % (vr(d + 1), 16 * which, vr(V_TAG)))
    if which == 0:
        s('v_add_u32 %s, %s, %s' % (vr(d + 3), sr(S_XCC), vr(V_TAG)))
    else:
        s('v_add_u32 %s, %d, %s' % (vr(d + 3), 16 * which, vr(V_TAG)))
    rs12(s, [S + i for i in range(6)], [Q + i for i in range(6)])
    s('v_cndmask_b32 %s, %s, %s, %s' % (vr(d), vr(S), vr(S + 2), sr(S_MSEL, 2)))
    s('v_cndmask_b32 %s, %s, %s, %s' % (vr(d + 2), vr(Q), vr(Q + 2), sr(S_MSEL, 2)))
    txt = ['s_mov_b32 %s, %d' % (sr(S_T0), WS_ST + (which == 2) * ST_SZ),
           'buffer_store_dwordx4 %s, %s, %s, %s offen {P}' % (vr(d, 4), vr(V_STW), sr(R_WS, 4), sr(S_T0)), 's_nop 1']
    if fast:
        dual(s, txt)
        put((S, 6), (Q, 6), (d, 4))
        return None
    s(*[x.replace(' {P}', '') for x in txt])
    put((S, 6), (Q, 6))
    late = Stream()
    late('s_mov_b32 %s, %d' % (sr(S_T0), WS_ST + 2 * ST_SZ),
         'buffer_store_dwordx4 %s, %s, %s, %s offen sc1' % (vr(d, 4), vr(V_STW), sr(R_WS, 4), sr(S_T0)), 's_nop 1')
    return late, d


def stats_loads(which, G, region=None):
    L = []
    if region is None:
        region = int(which == 2)
    for i in range(MT):
        L.append('s_mov_b32 %s, %d' % (sr(S_T0), WS_ST + region * ST_SZ + 4096 * i))
        L.append('buffer_load_dwordx4 %s, %s, %s, %s offen sc1' % (vr(G + 4 * i, 4), vr(V_STR), sr(R_WS, 4), sr(S_T0)))
    return L


def stats_pub_g(s, S, Q, d, which, g):
    s('v_add_u32 %s, %d, %s' % (vr(d + 1), 16 * which, vr(V_TAG)))
    s('v_add_u32 %s, %d, %s' % (vr(d + 3), 16 * which, vr(V_TAG)))
    rs6(s, [S + 3 * g + i for i in range(3)], [Q + 3 * g + i for i in range(3)])
    s('v_cndmask_b32 %s, %s, %s, %s' % (vr(d), vr(S + 3 * g), vr(S + 3 * g + 2), sr(S_MSEL, 2)))
    s('v_cndmask_b32 %s, %s, %s, %s' % (vr(d + 2), vr(Q + 3 * g), vr(Q + 3 * g + 2), sr(S_MSEL, 2)))
    m = (0x00ff00ff, 0xff00ff00)[g]
    dual(s, ['s_mov_b32 %s, %d' % (sr(S_T0), WS_ST), 's_mov_b32 exec_lo, 0x%x' % m, 's_mov_b32 exec_hi, 0x%x' % m,
             'buffer_store_dwordx4 %s, %s, %s, %s offen {P}' % (vr(d, 4), vr(V_STW), sr(R_WS, 4), sr(S_T0)),
             's_mov_b64 exec, -1', 's_nop 0'])


def stats_exp(s, which):
    e = V.get()
    s('v_add_u32 %s, %d, %s' % (vr(e), 16 * which, vr(V_TAG)),
      'v_cmp_gt_u32 vcc, 9, %s' % vr(V_N),
      'v_cndmask_b32 %s, 0, %s, vcc' % (vr(e), vr(e)))
    return e


def stats_finish(s, G):
    rs12(s, [G + 4 * i for i in range(6)], [G + 4 * i + 2 for i in range(6)])
    P = V.get(4, top=True)
    for k, src in ((0, G), (1, G + 8)):
        s('v_mul_f32 %s, 0x3ae38e39, %s' % (vr(P + 2 * k), vr(src)))
        s('v_mul_f32 %s, 0x3ae38e39, %s' % (vr(P + 2 * k + 1), vr(src + 2)))
    for k in range(2):
        s('v_fma_f32 %s, -%s, %s, %s' % (vr(P + 2 * k + 1), vr(P + 2 * k), vr(P + 2 * k), vr(P + 2 * k + 1)))
    for k in range(2):
        s('v_max_f32 %s, 0, %s' % (vr(P + 2 * k + 1), vr(P + 2 * k + 1)))
    return P


def bcast(s, dst, P, i):
    k, lane = tile_src(i)
    s('v_mov_b64_dpp %s, %s row_newbcast:%d row_mask:0xf bank_mask:0xf' % (vr(dst, 2), vr(P + 2 * k, 2), lane))


def ln_table(s, layer, G, RBG):
    P = stats_finish(s, G)
    put((G, 24))
    mu = [P, P + 2]
    va = [P + 1, P + 3]
    if layer == 0:
        rbf(s, mu + va)
        for r in va:
            s('v_add_f32 %s, 0x3727c5ac, %s' % (vr(r), vr(r)))
        rbf(s, va)
        for r in va:
            s('v_sqrt_f32 %s, %s' % (vr(r), vr(r)))
        rbf(s, va)
        for r in va:
            s('v_rcp_f32 %s, %s' % (vr(r), vr(r)))
        s('v_mov_b32 %s, %s' % (vr(OFF), vr(mu[0])), 'v_mov_b32 %s, %s' % (vr(OFF + 1), vr(mu[1])))
    else:
        for r in va:
            s('v_add_f32 %s, 0x3727c5ac, %s' % (vr(r), vr(r)))
        for r in va:
            s('v_rsq_f32 %s, %s' % (vr(r), vr(r)))
        s('v_add_f32 %s, %s, %s' % (vr(OFF), vr(OFF), vr(mu[0])), 'v_add_f32 %s, %s, %s' % (vr(OFF + 1), vr(OFF + 1), vr(mu[1])))
    with V.borrow(*HOMES):
        d = V.get(2)
    s('v_cndmask_b32 %s, %s, %s, %s' % (vr(d), vr(va[0]), vr(va[1]), sr(S_MSEL, 2)))
    s('v_cndmask_b32 %s, %s, %s, %s' % (vr(d + 1), vr(mu[0]), vr(mu[1]), sr(S_MSEL, 2)))
    s('v_mul_f32 %s, %s, %s' % (vr(d + 1), vr(d + 1), vr(d)))
    tk = s.mem('s_mov_b64 exec, %s' % sr(S_MACT, 2),
               'ds_write2_b32 %s, %s, %s offset0:0 offset1:2' % (vr(V_TABW), vr(d), vr(d + 1)),
               's_mov_b64 exec, -1')
    put((d, 2))
    return tk, P


def ln_rest(r, layer, P):
    b = V.get(2)
    tmp = V.get(4)
    for i in range(MT):
        x = BASE + 4 * i
        bcast(r, b, P, i)
        for k in range(2):
            r('v_pk_add_f32 %s, %s, %s op_sel:[0,0] op_sel_hi:[1,0] neg_lo:[0,1] neg_hi:[0,1]' % (vr(x + 2 * k, 2), vr(x + 2 * k, 2), vr(b, 2)))
        if layer == 0:
            for k in range(2):
                r('v_cvt_pk_bf16_f32 %s, %s, %s' % (vr(tmp + 2 * k), vr(x + 2 * k), vr(x + 2 * k + 1)))
            for rep in range(3):
                for k in range(2):
                    r('v_and_b32 %s, 0xffff0000, %s' % (vr(tmp + 2 * k + 1), vr(tmp + 2 * k)),
                      'v_lshlrev_b32 %s, 16, %s' % (vr(tmp + 2 * k), vr(tmp + 2 * k)))
                for k in range(2):
                    if rep == 0:
                        r('v_pk_mul_f32 %s, %s, %s op_sel:[0,1] op_sel_hi:[1,1]' % (vr(tmp + 2 * k, 2), vr(tmp + 2 * k, 2), vr(b, 2)))
                    elif rep == 1:
                        r('v_pk_mul_f32 %s, %s, %s' % (vr(tmp + 2 * k, 2), vr(tmp + 2 * k, 2), vr(V_DSK + 2 * k, 2)))
                    else:
                        r('v_pk_add_f32 %s, %s, %s' % (vr(x + 2 * k, 2), vr(x + 2 * k, 2), vr(tmp + 2 * k, 2)))
                if rep < 2:
                    for k in range(2):
                        r('v_cvt_pk_bf16_f32 %s, %s, %s' % (vr(tmp + 2 * k), vr(tmp + 2 * k), vr(tmp + 2 * k + 1)))
        else:
            for k in range(2):
                r('v_pk_fma_f32 %s, %s, %s, 1.0 op_sel:[0,1,0] op_sel_hi:[1,1,0]' % (vr(tmp + 2 * k, 2), vr(V_DSK + 2 * k, 2), vr(b, 2)))
            for k in range(2):
                r('v_pk_mul_f32 %s, %s, %s' % (vr(x + 2 * k, 2), vr(x + 2 * k, 2), vr(tmp + 2 * k, 2)))
    put((P, 4), (b, 2), (tmp, 4))


def a_reads(k, AF):
    s = Stream()
    kp, h = k >> 1, k & 1
    base = V_FA + h + (2 if kp >= 4 else 0)
    off = (kp - (4 if kp >= 4 else 0)) * BLK
    for i in range(MT):
        s('ds_read_b128 %s, %s offset:%d' % (vr(AF + (k & 1) * 24 + i * 4, 4), vr(base), off + i * 2048))
    return s


def b_mfmas(k, ACC, AF, ones=None):
    s = Stream()
    kp, h = k >> 1, k & 1
    if ones is not None:
        for mat in range(2):
            s('v_mfma_f32_16x16x32_bf16 %s, %s, %s, %s' % (vr(ones[1] + mat * 4, 4), vr(ones[0], 4), ar(WB(kp, h, mat), 4),
                                                          '0' if k == 0 else vr(ones[1] + mat * 4, 4)))
    for i in range(MT):
        if i % 3 == 0:
            s.touch(vr(AF + (k & 1) * 24 + i * 4, 12))
        for mat in range(2):
            d = ACC + (mat * MT + i) * 4
            s('v_mfma_f32_16x16x32_bf16 %s, %s, %s, %s' % (vr(d, 4), vr(AF + (k & 1) * 24 + i * 4, 4), ar(WB(kp, h, mat), 4),
                                                          '0' if k == 0 else vr(d, 4)))
    return s


def split(stream, n):
    g = stream.groups
    parts = []
    for i in range(n):
        p = Stream()
        p.groups = g[len(g) * i // n: len(g) * (i + 1) // n]
        parts.append(p)
    return parts


def ensure(sc, tok):
    for q in sc.sides:
        idx = [i for i, g in enumerate(q) if any((not isinstance(it, tuple)) and it.tok is tok for it in g)]
        if idx:
            for _ in range(idx[0] + 1):
                g = q[0]
                for it in g:
                    if isinstance(it, tuple) and it[0] == 'wait':
                        for tk in it[1]:
                            if id(tk) in sc.future:
                                ensure(sc, tk)
                            sc.tokready[id(tk)] = min(sc.tokready.get(id(tk), 0), sc.t + sc.LAT_DS)
                b = Stream()
                b.groups = [q.pop(0)]
                keep = sc.sides
                sc.sides = [x for x in keep if x is not q]
                sc.run(b)
                sc.sides = keep


def gemm_b(a, ACC, AF, xtok, pre, side, ones=None, vm=None, need=None, bq=None):
    sc = Sched(a)
    qr, qb, qv, qs = sc.add(Stream()), sc.add(bq if bq is not None else Stream()), sc.add(Stream()), sc.add(Stream())
    sc.expect(*(list(side.values()) + (list(vm.values()) if vm else []) + ([bq] if bq is not None else [])))
    b = Stream()
    b.wait(xtok(0))
    b('s_barrier')
    b.extend(a_reads(0, AF))
    sc.run(b)
    for k in range(18):
        sc.flush(qr)
        if k == 11 and bq is not None:
            print('side leftover at k', k, len(qs), 'vm', len(qv))
            sc.flush(qs)
        if need is not None:
            for tk in need.get(k, []):
                ensure(sc, tk)
        if pre[k].groups:
            for g in pre[k].groups:
                for it in g:
                    if isinstance(it, tuple) and it[0] == 'wait':
                        for tk in it[1]:
                            ensure(sc, tk)
            if any(not isinstance(it, tuple) for g in pre[k].groups for it in g):
                sc.flush()
            sc.run(pre[k])
        b = Stream()
        if k & 1 and k < 17:
            ensure(sc, xtok((k + 1) >> 1))
            b.wait(xtok((k + 1) >> 1))
            b('s_barrier')
            sides, sc.sides = sc.sides, []
            sc.run(b)
            sc.sides = sides
        if k < 17:
            qr.extend(a_reads(k + 1, AF).groups)
        if vm is not None:
            qv.extend(vm[k].groups)
        qs.extend(side[k].groups)
        sc.run(b_mfmas(k, ACC, AF, ones))
        if OPT['fine'] and k % 3 == 2:
            stamp(a, 'k%d' % k)
    print('gemm_b leftover', sc.pending(), 'model time', sc.t)
    sc.flush()


class Conv:
    pass


def conv_setup_k(s, cv, keep=False):
    s('s_lshl1_add_u32 %s, %s, %s' % (sr(S_T0), sr(S_PAIR), sr(S_B)),
      's_lshl_b32 %s, %s, 12' % (sr(S_T1), sr(S_T0)),
      's_add_u32 %s, %s, %s' % (sr(R_SK), sr(P_SSK), sr(S_T1)),
      's_addc_u32 %s, %s, 0' % (sr(R_SK + 1), sr(P_SSK + 1)),
      's_and_b32 %s, %s, 0xffff' % (sr(R_SK + 1), sr(R_SK + 1)),
      's_mov_b32 %s, 4096' % sr(R_SK + 2),
      's_mov_b32 %s, 0x20000' % sr(R_SK + 3))
    cv.SD = V.get(2, top=True)
    cv.HD = V.get(top=True)
    s('s_lshl_b32 %s, %s, 2' % (sr(S_T1), sr(S_PAIR)),
      'v_mov_b32 %s, %s' % (vr(cv.SD), sr(S_T1)),
      'global_load_dword %s, %s, %s' % (vr(cv.SD), vr(cv.SD), sr(P_SSD, 2)))
    s('v_add_u32 %s, %s, %s' % (vr(cv.HD), vr(V_N), vr(V_Q)),
      'v_subrev_u32 %s, 16, %s' % (vr(cv.HD), vr(cv.HD)),
      'v_lshlrev_b32 %s, 2, %s' % (vr(cv.HD), vr(cv.HD)),
      'buffer_load_dword %s, %s, %s, 0 offen' % (vr(cv.HD), vr(cv.HD), sr(R_SK, 4)))
    for c in range(2):
        s('s_mul_i32 %s, %s, %d' % (sr(S_T2), sr(S_B), KC_CH),
          's_mul_i32 %s, %s, %d' % (sr(S_T3), sr(S_A), (16 + 8320) if c == 0 else 8320),
          's_add_u32 %s, %s, %s' % (sr(S_T3), sr(S_T3), sr(S_T2)),
          's_add_u32 m0, %s, %d' % (sr(S_T3), L_KC + 64 + (0 if c == 0 else 16 + 4160)),
          's_lshl_b32 %s, %s, 3' % (sr(S_C), sr(S_A)),
          's_add_u32 %s, %s, %d' % (sr(S_C), sr(S_C), 4 * c))
        for part in range(4):
            cv.ktk = s.mem('buffer_load_dwordx4 %s, %s, %s offen offset:%d nt lds' % (vr(V_L16), sr(R_SK, 4), sr(S_C), part * 1024))


def conv_u_prep(s, cv):
    cv.UA = V.get(2, 1, top=True)
    cv.UE = V.get(top=True)
    cv.UN = V.get(top=True)
    cv.U = V.get(16, top=True)
    U, UA, UE = cv.U, cv.UA, cv.UE
    s('s_lshl1_add_u32 %s, %s, %s' % (sr(S_T0), sr(S_PAIR), sr(S_B)),
      's_mul_i32 %s, %s, %d' % (sr(S_T1), sr(S_T0), KVT_STR),
      's_mul_i32 %s, %s, %d' % (sr(S_T3), sr(S_A), 171 * 16),
      's_add_u32 %s, %s, %s' % (sr(S_T1), sr(S_T1), sr(S_T3)),
      's_add_u32 %s, %s, %d' % (sr(S_T1), sr(S_T1), WS_KVT + 10 * 16),
      'v_add_u32 %s, %s, %s' % (vr(UA), sr(S_T1), vr(V_L16)))
    s('s_sub_u32 %s, 44, %s' % (sr(S_T0), sr(S_A)),
      'v_cmp_gt_u32 vcc, %s, %s' % (sr(S_T0), vr(V_LANE)),
      'v_cndmask_b32 %s, %s, %s, vcc' % (vr(UA + 1), vr(V_OOB), vr(UA)),
      'v_cndmask_b32 %s, 0, %s, vcc' % (vr(UE), vr(V_TAG)))
    s('s_sub_u32 %s, 43, %s' % (sr(S_T0), sr(S_A)),
      'v_cmp_gt_u32 vcc, %s, %s' % (sr(S_T0), vr(V_LANE)),
      'v_cndmask_b32 %s, %s, %s, vcc' % (vr(cv.UN), vr(V_OOB), vr(UA)))
    cv.uloads = []
    for i in range(3):
        cv.uloads.append('buffer_load_dwordx4 %s, %s, %s, 0 offen offset:%d sc1' % (vr(U + 4 * i, 4), vr(UA + (i >> 1)), sr(R_WS, 4), 1024 * i))
    for i in range(3):
        cv.uloads.append('buffer_load_dword %s, %s, %s, 0 offen offset:%d sc1' % (vr(U + 12 + i), vr(UA if i < 2 else cv.UN), sr(R_WS, 4), 1024 * i + 16))
    cv.uchecks = [(U + 3, U + 7, V_TAG), (U + 11, None, UE)]


def conv_addr(s, cv):
    cv.ah, cv.az, cv.au, cv.vN, cv.vM = [V.get(top=True) for _ in range(5)]
    t, e = V.get(), V.get()
    ah, az, au, vN, vM = cv.ah, cv.az, cv.au, cv.vN, cv.vM
    s('v_mul_u32_u24 %s, 4160, %s' % (vr(ah), vr(V_Q)))
    s('v_min_u32 %s, 1, %s' % (vr(e), vr(V_Q)))
    s('v_lshl_add_u32 %s, %s, 4, %s' % (vr(ah), vr(e), vr(ah)))
    s('v_lshl_add_u32 %s, %s, 2, %s' % (vr(ah), vr(V_N), vr(ah)))
    s('s_mul_i32 %s, %s, %d' % (sr(S_T2), sr(S_B), KC_CH),
      's_add_u32 %s, %s, %d' % (sr(S_T3), sr(S_T2), L_KC),
      'v_add_u32 %s, %s, %s' % (vr(ah), sr(S_T3), vr(ah)))
    s('s_mul_i32 %s, %s, %d' % (sr(S_T2), sr(S_B), UC_CH),
      's_mul_i32 %s, %s, 4640' % (sr(S_T3), sr(S_A)),
      's_add_u32 %s, %s, %s' % (sr(S_T3), sr(S_T3), sr(S_T2)),
      'v_lshl_add_u32 %s, %s, 3, %s' % (vr(az), vr(V_LANE), sr(S_T3)))
    s('v_mul_u32_u24 %s, 12, %s' % (vr(au), vr(V_LANE)))
    s('s_mul_i32 %s, %s, %d' % (sr(S_T2), sr(S_B), UC_CH),
      's_mul_i32 %s, %s, %d' % (sr(S_T3), sr(S_A), 171 * 12),
      's_add_u32 %s, %s, %s' % (sr(S_T3), sr(S_T3), sr(S_T2)),
      'v_add_u32 %s, %s, %s' % (vr(au), sr(S_T3), vr(au)))
    s('v_add_u32 %s, 1, %s' % (vr(t), vr(V_N)))
    s('v_and_b32 %s, 3, %s' % (vr(e), vr(t)))
    s('v_mul_u32_u24 %s, 4160, %s' % (vr(vN), vr(e)))
    s('v_min_u32 %s, 1, %s' % (vr(e), vr(e)))
    s('v_lshrrev_b32 %s, 2, %s' % (vr(t), vr(t)))
    s('v_add3_u32 %s, %s, %s, %s' % (vr(t), vr(t), vr(e), vr(V_Q)))
    s('v_lshl_add_u32 %s, %s, 4, %s' % (vr(vN), vr(t), vr(vN)))
    s('s_mul_i32 %s, %s, %d' % (sr(S_T3), sr(S_B), KC_CH),
      's_lshl_b32 %s, %s, 8' % (sr(S_T1), sr(S_A)),
      's_add_u32 %s, %s, %s' % (sr(S_T3), sr(S_T3), sr(S_T1)),
      's_add_u32 %s, %s, %d' % (sr(S_T3), sr(S_T3), L_KC),
      'v_add_u32 %s, %s, %s' % (vr(vN), sr(S_T3), vr(vN)))
    s('v_and_b32 %s, 1, %s' % (vr(t), vr(V_N)))
    s('v_sub_u32 %s, 1, %s' % (vr(t), vr(t)))
    s('v_mul_u32_u24 %s, 4640, %s' % (vr(vM), vr(t)))
    s('v_lshrrev_b32 %s, 1, %s' % (vr(t), vr(V_N)))
    s('v_lshlrev_b32 %s, 6, %s' % (vr(t), vr(t)))
    s('v_sub_u32 %s, %s, %s' % (vr(vM), vr(vM), vr(t)))
    s('v_lshl_add_u32 %s, %s, 4, %s' % (vr(vM), vr(V_Q), vr(vM)))
    s('s_mul_i32 %s, %s, %d' % (sr(S_T2), sr(S_B), UC_CH),
      's_lshl_b32 %s, %s, 8' % (sr(S_T1), sr(S_A)),
      's_add_u32 %s, %s, %s' % (sr(S_T3), sr(S_T2), sr(S_T1)),
      's_add_u32 %s, %s, %d' % (sr(S_T3), sr(S_T3), L_UC + 448),
      'v_add_u32 %s, %s, %s' % (vr(vM), sr(S_T3), vr(vM)))
    return [t, e]


def conv_body(a, cv, side=None, pre_issued=True, early=None, release=True, last=None):
    U, HD = cv.U, cv.HD
    vN, vM = cv.vN, cv.vM
    a('ds_write_b32 %s, %s' % (vr(cv.ah), vr(HD)))
    a('ds_write_b64 %s, %s offset:%d' % (vr(cv.az), vr(V_ZERO, 2), L_UC + 4096))
    if early is not None:
        a.extend(early)
    poll(a, cv.uloads, cv.uchecks, pre_issued=pre_issued, sleep=OPT['slp2'] if pre_issued else OPT['slp'])
    a.touch(vr(U, 15))
    U1 = V.get(9, 1)
    for i in range(3):
        if i == 2:
            a('v_cmp_gt_u32 vcc, 43, %s' % vr(V_LANE), 's_mov_b64 exec, vcc')
        for k in range(3):
            a('ds_write_b32 %s, %s offset:%d' % (vr(cv.au), vr(U + 4 * i + k), L_UC - 8 + 768 * i + 4 * k))
            hi = U + 4 * i + k + 1 if k < 2 else U + 12 + i
            a('v_alignbit_b32 %s, %s, %s, 16' % (vr(U1 + 3 * i + k), vr(hi), vr(U + 4 * i + k)))
        for k in range(3):
            tk = a.mem('ds_write_b32 %s, %s offset:%d' % (vr(cv.au), vr(U1 + 3 * i + k), L_UC - 8 + 4640 + 768 * i + 4 * k))
    a('s_mov_b64 exec, -1')
    a.wait(tk, cv.ktk)
    a('s_barrier')
    put((U, 16), (U1, 9), HD, (cv.UA, 2), cv.UE, cv.UN)
    if release:
        put(cv.ah, cv.az, cv.au)
    stamp(a, 'conv_ld')
    if not pre_issued:
        astamp(a, 11)
    with V.borrow((GP, 12)):
        CA = [V.get(4) for _ in range(8)]
    FN, FM = [[V.get(4) for _ in range(8)] for _ in range(2)]
    AW = V.get(3, 1)
    t = V.get()
    rdN = lambda x, cc: 'ds_read_b128 %s, %s offset:%d' % (vr(FN[x], 4), vr(vN), 512 * x + 64 * cc)
    rdM = lambda x, cc: 'ds_read_b128 %s, %s offset:%d' % (vr(FM[x], 4), vr(vM), 512 * (7 - x) + 64 * cc)
    m = Stream()
    m(rdN(0, 0))
    for x in range(7, -1, -1):
        m(rdM(x, 0))
    m('v_lshlrev_b32 %s, 1, %s' % (vr(t), vr(V_N)))
    m('v_lshl_add_u32 %s, %s, 6, %s' % (vr(t), vr(V_Q), vr(t)))
    for j in range(3):
        m('v_add_u32 %s, %d, %s' % (vr(AW + j), j, vr(t)))
        m('v_mul_u32_u24 %s, 171, %s' % (vr(AW + j), vr(AW + j)))
        m('v_lshrrev_b32 %s, 9, %s' % (vr(AW + j), vr(AW + j)))
        m('v_add_u32 %s, %s, %s' % (vr(AW + j), vr(AW + j), vr(t)))
        m('s_mul_i32 %s, %s, %d' % (sr(S_T3), sr(S_WAVE), CO_W),
          'v_lshl_add_u32 %s, %s, 2, %s' % (vr(AW + j), vr(AW + j), sr(S_T3)))

    def stage(m, i):
        tk = None
        for r in range(4):
            c = 256 * i + 32 * (r >> 1) + (r & 1)
            tk = m.mem('ds_write_b32 %s, %s offset:%d' % (vr(AW + c % 3), vr(CA[i] + r), L_CO + 4 * (c + c // 3)))
        return tk

    for cc in range(4):
        if cc == 3:
            sc = Sched(a)
            sc.VM_GAP = 60
            if side is not None:
                qs_ = [sc.add(x) for x in side]
            sc.run(m)
            if side is not None:
                sc.flush(qs_[0])
            sc.VM_GAP = 30
            m = Stream()
            if last is not None:
                last(m, None)
        for aa in range(8):
            for dl in range(7 - aa, -1, -1):
                i = aa + dl
                z = cc == 0 and aa == 0
                m('v_mfma_f32_16x16x32_bf16 %s, %s, %s, %s' % (vr(CA[i], 4), vr(FM[dl], 4), vr(FN[aa], 4),
                                                              '0' if z else vr(CA[i], 4)))
                if cc == 0 and aa == 0 and dl > 0:
                    m(rdN(8 - dl, 0))
                if dl == 7 - aa:
                    if cc < 3:
                        m(rdM(dl, cc + 1))
                    elif last is not None:
                        last(m, FM[dl])
            if cc < 3:
                m(rdN(aa, cc + 1))
            else:
                if last is not None:
                    last(m, FN[aa])
                if 2 <= aa:
                    stage(m, aa - 2)
    stage(m, 6)
    cv.stk = stage(m, 7)
    sc.run(m)
    print('conv leftover', sc.pending(), 'model time', sc.t)
    sc.flush()
    put(*[(r, 4) for r in CA])
    if last is None:
        put(*[(r, 4) for r in FN + FM])
    put((AW, 3), t)
    if release:
        put(vN, vM)
    stamp(a, 'conv_mm')
    if not pre_issued:
        astamp(a, 12)


def conv_final(s, cv, Y0=None):
    SD = cv.SD
    ay, ak, ag = V.get(), V.get(), V.get()
    Y1 = [V.get(4) for _ in range(4)]
    own0 = Y0 is None
    if own0:
        Y0 = [V.get(4) for _ in range(4)]
    Ys = [Y0, Y1, Y1]
    KVs = [V.get(4), V.get(4)]
    D = V.get(6, 1)
    GO = V.get(4)
    t = V.get()
    s('v_lshlrev_b32 %s, 4, v0' % vr(ay))
    s('v_mul_u32_u24 %s, 6, v0' % vr(ak))
    s('v_sub_u32 %s, %d, %s' % (vr(ak), 4090, vr(ak)))
    s('v_and_b32 %s, -4, %s' % (vr(ak), vr(ak)))
    s('v_and_b32 %s, 1, v0' % vr(t))
    s('v_sub_u32 %s, 1, %s' % (vr(t), vr(t)))
    s('v_mul_u32_u24 %s, 4640, %s' % (vr(t), vr(t)))
    s('v_add_u32 %s, %s, %s' % (vr(ak), vr(ak), vr(t)))

    def reads(j):
        if j > 0:
            s('v_subrev_u32 %s, 1536, %s' % (vr(ak), vr(ak)))
        if j == 2:
            s('v_max_i32 %s, 0, %s' % (vr(ak), vr(ak)))
        for ch in range(2):
            for k in range(2):
                s('ds_read_b32 %s, %s offset:%d' % (vr(KVs[j & 1] + 2 * ch + k), vr(ak), L_UC + ch * UC_CH + 4 * k))
        for w in range(4):
            s('ds_read_b128 %s, %s offset:%d' % (vr(Ys[j][w], 4), vr(ay), L_CO + w * CO_W + j * 4096))

    reads(0)
    s('v_and_b32 %s, 0xffff0000, %s' % (vr(SD + 1), vr(SD)))
    s('v_lshlrev_b32 %s, 16, %s' % (vr(SD), vr(SD)))
    s('s_mul_i32 %s, %s, %d' % (sr(S_T1), sr(S_PAIR), G_STR),
      's_add_u32 %s, %s, %d' % (sr(S_T1), sr(S_T1), WS_G),
      'v_add_u32 %s, %s, %s' % (vr(ag), sr(S_T1), vr(ay)))
    s('v_mov_b32 %s, %s' % (vr(GO + 3), vr(V_TAG)))
    reads(1)
    for j in range(3):
        KV, Y = KVs[j & 1], Ys[j]
        if j > 0:
            s('v_add_u32 %s, 4096, %s' % (vr(ag), vr(ag)))
        if j == 2:
            s('v_cmp_gt_u32 vcc, 192, v0', 'v_cndmask_b32 %s, %s, %s, vcc' % (vr(ag), vr(V_OOB), vr(ag)))
        for ch in range(2):
            d = D + 3 * ch
            s('v_lshlrev_b32 %s, 16, %s' % (vr(d), vr(KV + 2 * ch + 1)))
            s('v_and_b32 %s, 0xffff0000, %s' % (vr(d + 1), vr(KV + 2 * ch)))
            s('v_lshlrev_b32 %s, 16, %s' % (vr(d + 2), vr(KV + 2 * ch)))
            for e in range(3):
                s('v_mul_f32 %s, %s, %s' % (vr(d + e), vr(d + e), vr(SD + ch)))
        for ch in range(2):
            d, y, y2 = D + 3 * ch, Y[2 * ch], Y[2 * ch + 1]
            for e in range(3):
                s('v_add_f32 %s, %s, %s' % (vr(y + e), vr(y + e), vr(y2 + e)))
            for e in range(3):
                s('v_cvt_pk_bf16_f32 %s, %s, %s' % (vr(d + e), vr(y + e), vr(d + e)))
        if j == 0:
            cv.mark = len(s.groups)
        if j == 1:
            reads(2)
        for ch in range(2):
            d = D + 3 * ch
            for e in range(3):
                s('v_lshlrev_b32 %s, 16, %s' % (vr(t), vr(d + e)))
                s('v_and_b32 %s, 0xffff0000, %s' % (vr(d + e), vr(d + e)))
                s('v_add_f32 %s, %s, %s' % (vr(d + e), vr(d + e), vr(t)))
        for e in range(3):
            s('v_cvt_pk_bf16_f32 %s, %s, %s' % (vr(GO + e), vr(D + e), vr(D + 3 + e)))
        s('buffer_store_dwordx4 %s, %s, %s, 0 offen sc1' % (vr(GO, 4), vr(ag), sr(R_WS, 4)))
    s('s_nop 1')
    return [ay, ak, ag, (D, 6), (GO, 4), t, (SD, 2)] + [(r, 4) for r in (Y0 if own0 else []) + Y1 + KVs]


ACC = V.get(48, top=True)
AF = V.get(48, top=True)
with V.borrow((GP, 12)):
    ONES = V.get(4)
    RBA = V.get(8)
def h_touch(st, ta):
    st('v_lshrrev_b32 %s, 3, %s' % (vr(ta), vr(V_LANE)),
       'v_mul_u32_u24 %s, %d, %s' % (vr(ta), 36864 - 1024, vr(ta)),
       'v_lshl_add_u32 %s, %s, 7, %s' % (vr(ta), vr(V_LANE), vr(ta)),
       'v_cmp_gt_u32 vcc, 48, %s' % vr(V_LANE),
       'v_cndmask_b32 %s, %s, %s, vcc' % (vr(ta), vr(V_OOB), vr(ta)))
    st('s_mul_i32 %s, %s, 216' % (sr(S_T2), sr(S_RB)),
       's_add_u32 %s, %s, %s' % (sr(S_T2), sr(S_T2), sr(S_PT)),
       's_lshl_b32 %s, %s, 10' % (sr(S_T2), sr(S_T2)),
       's_add_u32 %s, %s, %d' % (sr(S_T2), sr(S_T2), WS_H),
       'buffer_load_dword %s, %s, %s, %s offen %s ;junk' % (vr(V_JUNK), vr(ta), sr(R_WS, 4), sr(S_T2), TPOL))


tag_ready(a)
a('v_cmp_gt_u32 vcc, 9, %s' % vr(V_N), 'v_cndmask_b32 %s, 0, %s, vcc' % (vr(V_EXP9), vr(V_TAG)))
for i in range(4):
    a('v_mov_b32 %s, 0x3f803f80' % vr(ONES + i))
s0 = Stream()
for i in range(MT):
    for k in range(2):
        s0('v_lshlrev_b32 %s, 16, %s' % (vr(BASE + 4 * i + 2 * k), vr(XS + 2 * i + k)))
        s0('v_and_b32 %s, 0xffff0000, %s' % (vr(BASE + 4 * i + 2 * k + 1), vr(XS + 2 * i + k)))
V.free -= set(range(V_PW, V_PW + 4))
with V.borrow(*HOMES):
    s0late, s0d = stats_publish(s0, BASE, 0, False, pk=False, dreg=V_PW)
d1 = Stream()
btk[2] = b_dma(d1, 2)
xtk[3] = x_dma(d1, 3, 0)
RT0 = Stream()
rt0 = b_read(RT0, 0)
d1.wait(rt0)
btk[3] = b_dma(d1, 3)
d2 = a
d2('global_load_ushort %s, %s, %s' % (vr(LAMT), vr(lad), sr(P_LRE, 2)))
d2('global_load_ushort %s, %s, %s' % (vr(LAMT + 1), vr(lad), sr(P_LIM, 2)))
d2('global_load_ushort %s, %s, %s' % (vr(LAMT + 2), vr(lad), sr(P_LDT, 2)))
d2('global_load_dwordx2 %s, %s, %s' % (vr(V_DSK, 2), vr(dad), sr(P_DSK, 2)))
a.extend(RT0)
stamp(a, 's0')
put((V_DUMMY, 4))
pre = {k: Stream() for k in range(18)}
side = {k: Stream() for k in range(18)}


class Pace:
    def __init__(self, per=3):
        self.vm = {k: Stream() for k in range(18)}
        self.k, self.n, self.per = 0, 0, per

    def add(self, st, earliest=0):
        if self.k < earliest:
            self.k, self.n = earliest, 0
        for g in st.groups:
            if self.n >= self.per:
                self.k, self.n = self.k + 1, 0
            self.vm[self.k].groups.append(g)
            self.n += sum(1 for it in g if not isinstance(it, tuple) and it.kind == 'vmem')
        return self.k


pc = Pace(OPT['per'])
need = {}
side[0].extend(s0)
put(lad, dad)
pc.add(d1)
bq = Stream()
rts = {0: rt0}
for blk in range(4, 9):
    rts[blk - 3] = b_read(bq, blk - 3)
    st = Stream()
    xtk[blk] = x_dma(st, blk, 0)
    st.wait(rts[blk - 3])
    btk[blk] = b_dma(st, blk)
    pc.add(st)
for kp in range(6, 9):
    rts[kp] = b_read(bq, kp)
for kp in range(1, 9):
    need[2 * kp] = [rts[kp]]
cv = Conv()
cfa, cfe, cfv = V.get(top=True), V.get(top=True), V.get(top=True)
side[0]('s_mul_i32 %s, %s, 43' % (sr(S_T1), sr(S_CG)),
         's_lshr_b32 %s, %s, 5' % (sr(S_T1), sr(S_T1)),
         's_mul_i32 %s, %s, %d' % (sr(S_T1), sr(S_T1), 18 * 16),
         's_add_u32 %s, %s, %d' % (sr(S_T1), sr(S_T1), WS_CPF),
         'v_lshl_add_u32 %s, %s, 4, %s' % (vr(cfa), vr(V_LANE), sr(S_T1)))
side[0]('v_cmp_gt_u32 vcc, 36, %s' % vr(V_LANE),
         'v_cndmask_b32 %s, %s, %s, vcc' % (vr(cfa), vr(V_OOB), vr(cfa)),
         'v_cndmask_b32 %s, 0, %s, vcc' % (vr(cfe), vr(V_TAG)))
cfl = 'buffer_load_dword %s, %s, %s, 0 offen sc1' % (vr(cfv), vr(cfa), sr(R_WS, 4))
side[0]('s_mul_i32 %s, %s, %d' % (sr(S_T0), sr(S_PT), 37 * 1024),
        's_add_u32 %s, %s, %d' % (sr(S_CPB), sr(S_T0), WS_CP))
ca_ = Stream()
carel = conv_addr(ca_, cv)
side[0].extend(ca_)
stt = Stream()
ta = carel[0]
if OPT['tpos'] == 1:
    h_touch(stt, ta)
stt('s_mov_b32 %s, %d' % (sr(S_T2), WS_ST + ST_SZ),
    'buffer_load_dword %s, %s, %s, %s offen sc1 ;junk' % (vr(V_JUNK), vr(V_STW), sr(R_WS, 4), sr(S_T2)))
stt('v_lshrrev_b32 %s, 1, %s' % (vr(ta), vr(V_LANE)),
    'v_min_u32 %s, 4, %s' % (vr(ta), vr(ta)),
    'v_mul_u32_u24 %s, %d, %s' % (vr(ta), NRB * 256, vr(ta)),
    'v_and_b32 %s, 1, %s' % (vr(carel[1]), vr(V_LANE)),
    'v_lshl_add_u32 %s, %s, 7, %s' % (vr(ta), vr(carel[1]), vr(ta)),
    's_lshl_b32 %s, %s, 8' % (sr(S_T2), sr(S_RB)),
    's_add_u32 %s, %s, %d' % (sr(S_T2), sr(S_T2), WS_HF),
    'buffer_load_dword %s, %s, %s, %s offen sc1 ;junk' % (vr(V_JUNK), vr(ta), sr(R_WS, 4), sr(S_T2)))
xe = V.get()
lp = Stream()
with V.borrow((WCV, 32)):
    lam_compute(lp, LAMT, False, LAM)
    L2, L4, L8, L48, L72, L96, L192, L288 = [V.get(2) for _ in range(8)]
for d_, x_, y_ in ((L2, LAM, LAM), (L4, L2, L2), (L8, L4, L4), (L12, L8, L4), (L24, L12, L12), (L48, L24, L24), (L72, L48, L24),
                   (L96, L48, L48), (L192, L96, L96), (L288, L192, L96), (L384, L192, L192)):
    cmul_plain(lp, d_, x_, y_)
for (dst, opts) in ((LQ96, (L96, L192, L288)), (LQ24, (L24, L48, L72))):
    lp('v_mov_b32 %s, 1.0' % vr(dst), 'v_mov_b32 %s, 0' % vr(dst + 1))
    for qi, o in enumerate(opts):
        lp('v_cmp_eq_u32 vcc, %d, %s' % (qi + 1, vr(V_Q)),
           'v_cndmask_b32 %s, %s, %s, vcc' % (vr(dst), vr(dst), vr(o)),
           'v_cndmask_b32 %s, %s, %s, vcc' % (vr(dst + 1), vr(dst + 1), vr(o + 1)))
for r in (L2, L4, L8, L48, L72, L96, L192, L288):
    put((r, 2))
lp('v_and_b32 %s, 0xffff0000, %s' % (vr(V_DSK + 3), vr(V_DSK + 1)))
lp('v_lshlrev_b32 %s, 16, %s' % (vr(V_DSK + 2), vr(V_DSK + 1)))
lp('v_and_b32 %s, 0xffff0000, %s' % (vr(V_DSK + 1), vr(V_DSK)))
lp('v_lshlrev_b32 %s, 16, %s' % (vr(V_DSK), vr(V_DSK)))
side[3].extend(lp)
with V.borrow(*HOMES):
    G0 = V.get(24)
side[0]('v_add_u32 %s, %s, %s' % (vr(xe), sr(S_XCC), vr(V_TAG)),
        'v_cmp_gt_u32 vcc, 9, %s' % vr(V_N),
        'v_cndmask_b32 %s, 0, %s, vcc' % (vr(xe), vr(xe)))
gl = stats_loads(0, G0)
st = Stream()
if OPT['ncp0']:
    st(cfl)
for i in range(0, 12, 2):
    st(gl[i], gl[i + 1])
print('gather by k', pc.add(st, 11))
kvm = KVm()
st = Stream()
with V.borrow(*HOMES):
    kv_dma(st, kvm)
print('kv dma by k', pc.add(st, 11))
if OPT['ncp0'] == 0:
    st = Stream()
    st(cfl)
    pc.add(st)
pc.add(stt)
lastb = rts[8]


def s0_poll(s):
    p = Stream()
    L, Lc, Lr = newlabel('poll'), newlabel('pollc'), newlabel('pollr')
    acc = V.get(2, 1)
    p.touch(vr(G0, 24))
    p('v_xor_b32 %s, %s, %s' % (vr(acc), vr(G0 + 1), vr(V_EXP9)))
    for i in range(MT):
        if i:
            p('v_bitop3_b32 %s, %s, %s, %s bitop3:0xf6' % (vr(acc), vr(acc), vr(G0 + 4 * i + 1), vr(V_EXP9)))
        p('v_bitop3_b32 %s, %s, %s, %s bitop3:0xf6' % (vr(acc), vr(acc), vr(G0 + 4 * i + 3), vr(xe)))
    p('v_cmp_ne_u32 vcc, 0, %s' % vr(acc))
    p('s_mov_b32 %s, %d' % (sr(S_FAST), 0 if OPT['slow'] else 1))
    p('s_cmp_lg_u64 vcc, 0')
    p('s_cbranch_scc1 %s' % L)
    p.label(Lc)
    s.join(p)
    Ld = newlabel('polld')
    tail.label(L)
    tail.extend(s0late)
    tail('s_mov_b32 %s, %d' % (sr(S_SPIN), SPIN))
    tail.label(Lr)
    for region in (0, 2):
        for t in stats_loads(0, G0, region):
            tail(t)
        tail('s_waitcnt vmcnt(0)')
        tail('v_mov_b32 %s, 0' % vr(acc))
        for i in range(MT):
            tail('v_sub_u32 %s, %s, %s' % (vr(acc + 1), vr(G0 + 4 * i + 3), vr(V_EXP9)))
            tail('v_lshrrev_b32 %s, 4, %s' % (vr(acc + 1), vr(acc + 1)))
            tail('v_or_b32 %s, %s, %s' % (vr(acc), vr(acc), vr(acc + 1)))
            tail('v_bitop3_b32 %s, %s, %s, %s bitop3:0xf6' % (vr(acc), vr(acc), vr(G0 + 4 * i + 1), vr(V_EXP9)))
        tail('v_cmp_ne_u32 vcc, 0, %s' % vr(acc))
        if region == 0:
            tail('s_cmp_eq_u64 vcc, 0')
            tail('s_cbranch_scc1 %s' % Ld)
    tail('s_sub_u32 %s, %s, 1' % (sr(S_SPIN), sr(S_SPIN)))
    tail('s_cselect_b64 vcc, 0, vcc')
    tail('s_cmp_lg_u64 vcc, 0')
    tail('s_cbranch_scc1 %s' % Lr)
    tail.label(Ld)
    tail('v_cmp_ne_u32 vcc, %s, %s' % (vr(G0 + 3), vr(xe)))
    tail('s_cmp_eq_u64 vcc, 0')
    tail('s_cselect_b32 %s, %d, 0' % (sr(S_FAST), 0 if OPT['slow'] else 1))
    tail('s_branch %s' % Lc)
    put((acc, 2))


s0_poll(side[14])
ttk, LNP0 = ln_table(side[14], 0, G0, None)
put(xe)
pre[15].wait(lastb)
NCP0 = OPT['ncp0']


def WC(s, j):
    idx = s * 4 + j
    if idx < 28:
        return ar(144 + idx * 4, 4)
    return vr(WCV + (idx - 28) * 4, 4)


def cp_load(s_, s, j):
    ld = 'buffer_load_dwordx4 %s, %s, %s, %s offen offset:%d sc1' % (WC(s, j), vr(V_L16), sr(R_WS, 4), sr(S_CPB), j * 1024)
    if j == 3:
        s_(ld, 's_add_u32 %s, %s, 4096' % (sr(S_CPB), sr(S_CPB)))
    else:
        s_(ld)


if NCP0:
    st = Stream()
    poll(st, [cfl], [(cfv, None, cfe)], pre_issued=True, sleep=6)
    for idx in range(NCP0):
        cp_load(st, idx // 4, idx % 4)
    pc.add(st, 14)
put((V_DB, 2), (V_DX, 3))
st = Stream()
conv_setup_k(st, cv)
kst = st
gemm_b(a, ACC, AF, lambda s: xtk[s], pre, side, ones=(ONES, RBA), vm=pc.vm, need=need, bq=bq)
a.wait(ttk)
a('s_barrier')
a('v_mov_b32 %s, %s' % (vr(RB), vr(RBA)))
a('v_mov_b32 %s, %s' % (vr(RB + 1), vr(RBA + 4)))
put((ONES, 4), (RBA, 8), (V_PW, 4))
put(*kvm.rel)
put(*carel)
put((V_FB, 2))
stamp(a, 'gemmB1')


def scan_phase(a, layer, ACC, AF, mid=None, x1=None, x2=None, half=None, split_h=None):
    NJ = 2 * MT
    re = lambda j: ACC + (j >> 1) * 4 + (j & 1) * 2
    im = lambda j: ACC + 4 * MT + (j >> 1) * 4 + (j & 1) * 2
    if half is None:
        TB = AF
        for j in range(NJ):
            a('ds_read_b128 %s, %s offset:%d' % (vr(TB + 4 * j, 4), vr(V_TABR), 16 * j))
    else:
        TB = half[1] - 24
        put((AF, 48))

    def prescale(j):
        a('v_pk_mul_f32 %s, %s, %s' % (vr(re(j), 2), vr(re(j), 2), vr(TB + 4 * j, 2)))
        a('v_pk_mul_f32 %s, %s, %s' % (vr(im(j), 2), vr(im(j), 2), vr(TB + 4 * j, 2)))
        a('v_pk_fma_f32 %s, %s, %s, %s op_sel:[0,0,0] op_sel_hi:[1,0,1] neg_lo:[1,0,0] neg_hi:[1,0,0]' %
          (vr(re(j), 2), vr(TB + 4 * j + 2, 2), vr(RB, 2), vr(re(j), 2)))
        a('v_pk_fma_f32 %s, %s, %s, %s op_sel:[0,1,0] op_sel_hi:[1,1,1] neg_lo:[1,0,0] neg_hi:[1,0,0]' %
          (vr(im(j), 2), vr(TB + 4 * j + 2, 2), vr(RB, 2), vr(im(j), 2)))

    def step(dr, di, pr, pi, br, bi):
        a('v_pk_fma_f32 %s, %s, %s, %s op_sel:[0,0,0] op_sel_hi:[1,0,1]' % (vr(dr, 2), vr(pr, 2), vr(LAM, 2), vr(br, 2)))
        a('v_pk_fma_f32 %s, %s, %s, %s op_sel:[0,0,0] op_sel_hi:[1,0,1]' % (vr(di, 2), vr(pi, 2), vr(LAM, 2), vr(bi, 2)))
        a('v_pk_fma_f32 %s, %s, %s, %s op_sel:[0,1,0] op_sel_hi:[1,1,1] neg_lo:[1,0,0] neg_hi:[1,0,0]' %
          (vr(dr, 2), vr(pi, 2), vr(LAM, 2), vr(dr, 2)))
        a('v_pk_fma_f32 %s, %s, %s, %s op_sel:[0,1,0] op_sel_hi:[1,1,1]' % (vr(di, 2), vr(pr, 2), vr(LAM, 2), vr(di, 2)))

    with V.borrow(*HOMES):
        E = V.get(8) if half is None else half[0]
        pub = V.get(4)
    if half is None:
        prescale(0)
        pr, pi = re(0), im(0)
    else:
        pr, pi = E + 4, E + 6
    for j in range(1 if half is None else 6, NJ):
        prescale(j)
        dr, di = E + (j & 1) * 4, E + (j & 1) * 4 + 2
        step(dr, di, pr, pi, re(j), im(j))
        pr, pi = dr, di
        if x1 is not None and j % 3 == 1:
            x1(a)
    EA, F = V.get(2), V.get(2)
    a('v_mov_b32 %s, %s' % (vr(EA), vr(pr)))
    a('v_mov_b32 %s, %s' % (vr(EA + 1), vr(pi)))
    a('v_mov_b32 %s, %s' % (vr(F), vr(pr + 1)))
    a('v_mov_b32 %s, %s' % (vr(F + 1), vr(pi + 1)))
    FA = E
    cfma(a, FA, EA, L12, F)
    a('v_mov_b64 %s, %s' % (vr(FA + 2, 2), vr(FA, 2)))
    a('v_mov_b32 %s, %s' % (vr(pub + 1), vr(V_TAG)))
    a('v_mov_b32 %s, %s' % (vr(pub + 3), vr(V_TAG)))
    a('v_permlane16_swap_b32 %s, %s' % (vr(FA), vr(FA + 2)))
    a('v_permlane16_swap_b32 %s, %s' % (vr(FA + 1), vr(FA + 3)))
    a('s_lshl_b32 %s, %s, 13' % (sr(S_T0), sr(S_PT)))
    a('v_mov_b64 %s, %s' % (vr(FA + 4, 2), vr(FA, 2)))
    a('v_mov_b64 %s, %s' % (vr(FA + 6, 2), vr(FA + 2, 2)))
    a('s_add_u32 %s, %s, %d' % (sr(S_T0), sr(S_T0), WS_E + layer * 36 * 8192))
    for k in range(4):
        a('v_permlane32_swap_b32 %s, %s' % (vr(FA + k), vr(FA + 4 + k)))
    cfma(a, FA + 2, FA, L24, FA + 2)
    cfma(a, FA + 4, FA + 2, L24, FA + 4)
    cfma(a, FA + 6, FA + 4, L24, FA + 6)
    a('v_mov_b32 %s, %s' % (vr(pub), vr(FA + 6)))
    a('v_mov_b32 %s, %s' % (vr(pub + 2), vr(FA + 7)))
    a('buffer_store_dwordx4 %s, %s, %s, %s offen sc1' % (vr(pub, 4), vr(V_EW), sr(R_WS, 4), sr(S_T0)))
    stamp(a, 'e_pub%d' % layer)
    PQ = F
    a('v_mov_b32 %s, 0' % vr(PQ))
    a('v_mov_b32 %s, 0' % vr(PQ + 1))
    for qi in range(1, 4):
        a('v_cmp_eq_u32 vcc, %d, %s' % (qi, vr(V_Q)),
          'v_cndmask_b32 %s, %s, %s, vcc' % (vr(PQ), vr(PQ), vr(FA + 2 * qi - 2)),
          'v_cndmask_b32 %s, %s, %s, vcc' % (vr(PQ + 1), vr(PQ + 1), vr(FA + 2 * qi - 1)))
    put((pub, 4), (E, 8))
    put((AF, 48) if half is None else (half[1], 24))
    NL = 6
    loads, checks, box = [], [], []

    def mk(cs):
        CG_ = V.get(4 * NL)
        AD, EX = V.get(NL, 1), V.get(NL, 1)
        box.extend([CG_, AD, EX])
        cs('s_lshl_b32 %s, %s, 13' % (sr(S_T0), sr(S_PT)),
           's_add_u32 %s, %s, %d' % (sr(S_T0), sr(S_T0), WS_E + layer * 36 * 8192),
           'v_add_u32 %s, %s, %s' % (vr(EX), sr(S_T0), vr(V_ER)))
        for j in range(NL - 1, -1, -1):
            cs('v_subrev_u32 %s, %d, %s' % (vr(AD + j), 1024 * j, vr(EX)),
               'v_cmp_le_i32 vcc, %d, %s' % (1024 * j, vr(V_ER)),
               'v_cndmask_b32 %s, %s, %s, vcc' % (vr(AD + j), vr(V_OOB), vr(AD + j)),
               'v_cndmask_b32 %s, 0, %s, vcc' % (vr(EX + j), vr(V_TAG)))
        for j in range(NL):
            loads.append('buffer_load_dwordx4 %s, %s, %s, 0 offen sc1' % (vr(CG_ + 4 * j, 4), vr(AD + j), sr(R_WS, 4)))
            checks.append((CG_ + 4 * j + 1, CG_ + 4 * j + 3, EX + j))
        for l_ in loads:
            cs(l_)

    post = mid(a, mk)
    CG_, AD, EX = box
    poll(a, loads, checks, pre_issued=True)
    stamp(a, 'carry%d' % layer)
    if post is not None:
        a.extend(post)
    put((AD, NL), (EX, NL))
    for j in range(NL):
        a('v_mov_b32 %s, %s' % (vr(CG_ + 4 * j + 1), vr(CG_ + 4 * j + 2)))
    for j in range(NL - 2, -1, -1):
        cfma(a, CG_ + 4 * j, CG_ + 4 * j + 4, L384, CG_ + 4 * j)
    H, Y = V.get(2), V.get(2)
    cmul(a, H, CG_, LQ96)
    for sw in ('v_permlane32_swap_b32', 'v_permlane16_swap_b32'):
        a('v_mov_b64 %s, %s' % (vr(Y, 2), vr(H, 2)))
        a('%s %s, %s' % (sw, vr(H), vr(Y)))
        a('%s %s, %s' % (sw, vr(H + 1), vr(Y + 1)))
        a('v_pk_add_f32 %s, %s, %s' % (vr(H, 2), vr(H, 2), vr(Y, 2)))
    cfma(a, PQ, H, LQ24, PQ)
    cfma(a, EA, PQ, L12, EA)
    a('v_mov_b32 %s, %s' % (vr(H), vr(PQ)))
    a('v_mov_b32 %s, %s' % (vr(H + 1), vr(EA)))
    a('v_mov_b32 %s, %s' % (vr(Y), vr(PQ + 1)))
    a('v_mov_b32 %s, %s' % (vr(Y + 1), vr(EA + 1)))
    pr, pi = H, Y
    PK = V.get(4)
    HO = CG_
    a('s_mul_i32 %s, %s, 216' % (sr(S_T2), sr(S_RB)))
    a('s_add_u32 %s, %s, %s' % (sr(S_T2), sr(S_T2), sr(S_PT)))
    a('s_lshl_b32 %s, %s, 10' % (sr(S_T2), sr(S_T2)))

    def hstores(tiles):
        txt = []
        for i in tiles:
            txt.append('s_add_u32 %s, %s, %d' % (sr(S_T1), sr(S_T2), WS_H + layer * H_SZ + i * 36864))
            txt.append('buffer_store_dwordx4 %s, %s, %s, %s offen {P}' % (vr(HO + 4 * i, 4), vr(V_L16), sr(R_WS, 4), sr(S_T1)))
        return dual(a, txt, touch=[vr(HO + 4 * tiles[0], 4 * len(tiles))])

    for j in range(NJ):
        step(re(j), im(j), pr, pi, re(j), im(j))
        pr, pi = re(j), im(j)
        pk = PK + (j & 1) * 2
        for hf in range(2):
            a('v_cvt_pk_bf16_f32 %s, %s, %s' % (vr(pk + hf), vr(re(j) + hf), vr(im(j) + hf)))
        if split_h and j == 7:
            tka = hstores([0, 1, 2])
        a('ds_write_b32 %s, %s offset:%d' % (vr(V_HW), vr(pk), (j >> 1) * 1024 + (j & 1) * 128),
          'ds_write_b32 %s, %s offset:%d' % (vr(V_HW), vr(pk + 1), (j >> 1) * 1024 + (j & 1) * 128 + 64))
        if j & 1:
            a('ds_read_b128 %s, %s offset:%d' % (vr(HO + 4 * (j >> 1), 4), vr(V_HR), (j >> 1) * 1024))
        elif x2 is not None and j < 10:
            x2(a)
    a('s_lshl2_add_u32 %s, %s, %s' % (sr(S_T0), sr(S_RB), sr(S_WAVE)))
    a('s_lshl4_add_u32 %s, %s, %s' % (sr(S_T0), sr(S_T0), sr(S_CG)))
    a('s_lshl_b32 %s, %s, 2' % (sr(S_T0), sr(S_T0)))
    a('s_add_u32 %s, %s, %d' % (sr(S_T0), sr(S_T0), WS_HF + layer * NRB * 256))
    if OPT['fine']:
        stamp(a, 'pass2')
    if split_h:
        tk = (tka, hstores([3, 4, 5]))
    else:
        tk = hstores(list(range(MT)))
    return tk, [(EA, 2), (F, 2), (H, 2), (Y, 2), (PK, 4), (CG_, 4 * NL), (ACC, 48)]


def mid0(a, mk):
    put((BASE, 24))
    sd, s2, lr, ks = Stream(), Stream(), Stream(), Stream()
    sd.extend(kst)
    if not NCP0:
        poll(sd, [cfl], [(cfv, None, cfe)], pre_issued=True, sleep=6)
    for idx in range(NCP0, OPT['ncp']):
        cp_load(sd, idx // 4, idx % 4)
    mk(s2)
    with V.borrow(*HOMES):
        kv_main(lr, kvm, ks)
    lr = weave(lr, s2, 0.45, 0.6)
    lr = weave(lr, sd, 0.62, 1.0)
    for i_, p_ in enumerate(split(lr, 8)):
        a.extend(p_)
        if OPT['fine'] > 1:
            stamp(a, 'kq%d' % i_)
    if OPT['fine']:
        stamp(a, 'kvcore')
    a.extend(ks)
    put(cfa, cfe, cfv)
    V.claim(WCV, 32)
    conv_u_prep(a, cv)
    stamp(a, 'kv')
    return None


def ln_rest0_plain(r, P):
    b, tmp = V.get(2), V.get(4)
    for i in range(MT):
        x = BASE + 4 * i
        k_, lane = tile_src(i)
        for e in range(2):
            r('v_mov_b32_dpp %s, %s row_newbcast:%d row_mask:0xf bank_mask:0xf' % (vr(b + e), vr(P + 2 * k_ + e), lane))
        for k in range(2):
            r('v_lshlrev_b32 %s, 16, %s' % (vr(x + 2 * k), vr(XS + 2 * i + k)))
            r('v_and_b32 %s, 0xffff0000, %s' % (vr(x + 2 * k + 1), vr(XS + 2 * i + k)))
        for k in range(4):
            r('v_sub_f32 %s, %s, %s' % (vr(x + k), vr(x + k), vr(b)))
        for k in range(2):
            r('v_cvt_pk_bf16_f32 %s, %s, %s' % (vr(tmp + 2 * k), vr(x + 2 * k), vr(x + 2 * k + 1)))
        for rep in range(3):
            for k in range(2):
                r('v_and_b32 %s, 0xffff0000, %s' % (vr(tmp + 2 * k + 1), vr(tmp + 2 * k)))
                r('v_lshlrev_b32 %s, 16, %s' % (vr(tmp + 2 * k), vr(tmp + 2 * k)))
            for k in range(4):
                if rep == 0:
                    r('v_mul_f32 %s, %s, %s' % (vr(tmp + k), vr(tmp + k), vr(b + 1)))
                elif rep == 1:
                    r('v_mul_f32 %s, %s, %s' % (vr(tmp + k), vr(tmp + k), vr(V_DSK + k)))
                else:
                    r('v_add_f32 %s, %s, %s' % (vr(x + k), vr(x + k), vr(tmp + k)))
            if rep < 2:
                for k in range(2):
                    r('v_cvt_pk_bf16_f32 %s, %s, %s' % (vr(tmp + 2 * k), vr(tmp + 2 * k), vr(tmp + 2 * k + 1)))
    return [(b, 2), (tmp, 4), (P, 4), (XS, 12)]


def hflag_prep(s, layer):
    fa, fv = V.get(), V.get()
    s('s_lshl2_add_u32 %s, %s, %s' % (sr(S_T1), sr(S_RB), sr(S_WAVE)),
      's_lshl_b32 %s, %s, 6' % (sr(S_T1), sr(S_T1)),
      's_add_u32 %s, %s, %d' % (sr(S_T1), sr(S_T1), WS_HF + layer * NRB * 256),
      'v_lshl_add_u32 %s, %s, 2, %s' % (vr(fa), vr(V_N), sr(S_T1)))
    s('v_cmp_gt_u32 vcc, 9, %s' % vr(V_N),
      'v_cndmask_b32 %s, %s, %s, vcc' % (vr(fa), vr(V_OOB), vr(fa)))
    s('s_mul_i32 %s, %s, 216' % (sr(S_T1), sr(S_RB)),
      's_add_u32 %s, %s, %s' % (sr(S_T1), sr(S_T1), sr(S_WAVE)),
      's_lshl_b32 %s, %s, 10' % (sr(S_T1), sr(S_T1)),
      's_add_u32 %s, %s, %d' % (sr(S_HB), sr(S_T1), WS_H + layer * H_SZ))
    fl = 'buffer_load_dword %s, %s, %s, 0 offen sc1' % (vr(fv), vr(fa), sr(R_WS, 4))
    return fa, fv, fl


def hload_next(st, reg):
    st('buffer_load_dwordx4 %s, %s, %s, %s offen sc1' % (vr(reg, 4), vr(V_L16), sr(R_WS, 4), sr(S_HB)),
       's_add_u32 %s, %s, 4096' % (sr(S_HB), sr(S_HB)))


cpn = [0, OPT['ncp']]


def cpx(which, lim):
    def f(st):
        if cpn[which] < lim:
            cp_load(st, cpn[which] // 4, cpn[which] % 4)
            cpn[which] += 1
    return f


htk, hrel = scan_phase(a, 0, ACC, AF, mid0, None, cpx(1, OPT['ncp2']))
assert cpn[1] == OPT['ncp2']
put(*hrel)
a('s_mov_b32 %s, %s' % (sr(S_C), sr(S_T0)))
for l_ in cv.uloads:
    a(l_)
for r_ in range(BASE, BASE + 24):
    V.free.remove(r_)
V.claim(V_PW, 4)
t = V.get()
a('v_mul_u32_u24 %s, %d, %s' % (vr(V_PW), PART_ROW, vr(V_N)))
a('v_lshl_add_u32 %s, %s, 4, %s' % (vr(V_PW), vr(V_Q), vr(V_PW)))
a('s_mul_i32 %s, %s, %d' % (sr(S_T0), sr(S_WAVE), PART_W))
a('v_add_u32 %s, %s, %s' % (vr(V_PW), sr(S_T0), vr(V_PW)))
a('s_lshl_b32 %s, %s, 2' % (sr(S_T0), sr(S_WAVE)))
a('v_add_u32 %s, %s, %s' % (vr(t), sr(S_T0), vr(V_Q)))
a('v_mul_u32_u24 %s, %d, %s' % (vr(V_PR), PART_ROW, vr(t)))
a('v_lshl_add_u32 %s, %s, 4, %s' % (vr(V_PR), vr(V_N), vr(V_PR)))
PH = 12 * PART_W
a('v_add_u32 %s, %d, %s' % (vr(V_PW2), PH, vr(V_PW)))
a('v_add_u32 %s, %d, %s' % (vr(V_PR2), PH, vr(V_PR)))
put(t)
a('s_barrier')
if OPT['fine']:
    stamp(a, 'ubar')
hf = Stream()
hf.wait(htk)
dual(hf, flag_texts(sr(S_C), '{P}'))
stamp(hf, 'h_pub0')
sd, lr = Stream(), Stream()
for idx in range(OPT['ncp2'], 36):
    cp_load(sd, idx // 4, idx % 4)
if OPT['repf']:
    rp = V.get()
    sd('s_lshr_b32 %s, s2, 3' % sr(S_T0),
       's_lshl_b32 %s, %s, 11' % (sr(S_T0), sr(S_T0)),
       's_add_u32 %s, %s, L_mid-L_pc' % (sr(S_T0), sr(S_T0)),
       'v_lshl_add_u32 %s, v0, 3, %s' % (vr(rp), sr(S_T0)),
       's_mov_b32 %s, L_end-L_pc-16' % sr(S_T1),
       'v_min_u32 %s, %s, %s' % (vr(rp), sr(S_T1), vr(rp)),
       'global_load_dword %s, %s, %s ;junk' % (vr(V_JUNK), vr(rp), sr(S_PC, 2)))
hfa, hfv, hfl = hflag_prep(sd, 0)
sd(hfl)
for i in range(MT):
    for k in range(2):
        hf('v_lshlrev_b32 %s, 16, %s' % (vr(BASE + 4 * i + 2 * k), vr(XS + 2 * i + k)))
        hf('v_and_b32 %s, 0xffff0000, %s' % (vr(BASE + 4 * i + 2 * k + 1), vr(XS + 2 * i + k)))
put((XS, 12))
ln_rest(hf, 0, LNP0)
HB0 = []


def last0(m, reg):
    if reg is None:
        poll(m, [hfl], [(hfv, None, V_EXP9)], pre_issued=True)
    else:
        HB0.append(reg)
        if len(HB0) <= OPT['n00']:
            hload_next(m, reg)


conv_body(a, cv, [sd], True, hf, True, last0)
put(hfa, hfv)
if OPT['repf']:
    put(rp)
a.label('L_mid')


def g_fetch_streams(D):
    s1, s2 = Stream(), Stream()
    fa, u, u2 = V.get(), V.get(), V.get()
    s1('v_lshrrev_b32 %s, 3, %s' % (vr(fa), vr(V_LANE)))
    s1('v_mul_u32_u24 %s, %d, %s' % (vr(fa), G_STR - 128, vr(fa)))
    s1('s_mul_i32 %s, %s, %d' % (sr(S_T1), sr(S_CG), 32 * G_STR),
       's_lshl2_add_u32 %s, %s, %s' % (sr(S_T2), sr(S_RB), sr(S_WAVE)),
       's_lshl_b32 %s, %s, 7' % (sr(S_T2), sr(S_T2)),
       's_add_u32 %s, %s, %s' % (sr(S_T1), sr(S_T1), sr(S_T2)),
       's_add_u32 %s, %s, %d' % (sr(S_T1), sr(S_T1), WS_G),
       'v_add3_u32 %s, %s, %s, %s' % (vr(fa), vr(fa), vr(V_L16), sr(S_T1)))
    loads = []
    for i in range(4):
        loads.append('s_mov_b32 %s, %d' % (sr(S_T1), 8 * i * G_STR))
        loads.append('buffer_load_dwordx4 %s, %s, %s, %s offen sc1' % (vr(D[i], 4), vr(fa), sr(R_WS, 4), sr(S_T1)))
    for i in range(4):
        s1(loads[2 * i], loads[2 * i + 1])
    s1('v_and_b32 %s, 1, %s' % (vr(u), vr(V_Q)))
    s1('v_lshlrev_b32 %s, 6, %s' % (vr(u), vr(u)))
    s1('v_mul_u32_u24 %s, 272, %s' % (vr(u2), vr(V_N)))
    s1('v_add3_u32 %s, %s, %s, %s' % (vr(u), vr(u), vr(u2), sr(S_RINGW)))
    s1('v_lshrrev_b32 %s, 1, %s' % (vr(u2), vr(V_Q)))
    s1('v_lshl_add_u32 %s, %s, 2, %s' % (vr(u), vr(u2), vr(u)))
    s1('v_lshl_add_u32 %s, %s, 2, %s' % (vr(u2), vr(u2), vr(u)))
    keep = V.get(2, 1)
    put((keep, 2))
    poll(s2, loads, [(D[0] + 3, D[1] + 3, V_TAG), (D[2] + 3, D[3] + 3, V_TAG)], pre_issued=True, sleep=4)
    V.free -= {keep, keep + 1}
    s2('v_lshlrev_b32 %s, 4, %s' % (vr(fa), vr(V_Q)))
    s2('v_add3_u32 %s, %s, %s, %s' % (vr(fa), vr(fa), vr(V_L16), sr(S_RINGW)))
    for i in range(4):
        s2('ds_write_b128 %s, %s offset:%d' % (vr(fa), vr(D[i], 4), 1088 * i))
    for i, o in enumerate((0, 2, 5, 8, 10, 13)):
        s2('ds_read2_b32 %s, %s offset0:%d offset1:%d' % (vr(GP + 2 * i, 2), vr(u2 if i in (1, 4) else u), o, 32 + o))
    return s1, s2, [fa, u, u2, (keep, 2)] + [(r, 4) for r in D]


def gemm_c(a, layer, HB=None, flagb=None, afterld=None):
    NF = 16
    which = 1 + 2 * layer
    if HB is None:
        a.extend(hq)
        poll(a, [hfl], [(hfv, None, V_EXP9)], pre_issued=True)
        stamp(a, 'h_flag%d' % layer)
        HB = [V.get(4, top=True) for _ in range(NF)]
        nld = OPT['n0']
        for f in range(nld):
            hload_next(a, HB[f])
    else:
        nld = OPT['n00']
    CA = [V.get(4, top=True) for _ in range(8)]
    hb = lambda i, s: HB[(i * 9 + s) % NF]
    slot = lambda i: (i + 4) % 6

    def pwrite(st, i, js=range(4)):
        for j in js:
            tk = st.mem('ds_write_b128 %s, %s offset:%d' % (vr(V_PW if slot(i) < 3 else V_PW2), vr(CA[(i & 1) * 4 + j], 4),
                                                            L_IMG + (slot(i) % 3) * 4 * PART_W + j * 64))
        return tk

    def preduce(st, i, P):
        for w in range(4):
            st('ds_read_b128 %s, %s offset:%d' % (vr(P[w], 4), vr(V_PR if slot(i) < 3 else V_PR2), L_IMG + ((slot(i) % 3) * 4 + w) * PART_W))

    def padd(st, i, P, pk):
        x = BASE + 4 * i
        if pk:
            for k in range(2):
                st('v_pk_add_f32 %s, %s, %s' % (vr(P[0] + 2 * k, 2), vr(P[0] + 2 * k, 2), vr(P[1] + 2 * k, 2)))
                st('v_pk_add_f32 %s, %s, %s' % (vr(P[2] + 2 * k, 2), vr(P[2] + 2 * k, 2), vr(P[3] + 2 * k, 2)))
                st('v_pk_add_f32 %s, %s, %s' % (vr(x + 2 * k, 2), vr(x + 2 * k, 2), vr(P[0] + 2 * k, 2)))
                st('v_pk_add_f32 %s, %s, %s' % (vr(x + 2 * k, 2), vr(x + 2 * k, 2), vr(P[2] + 2 * k, 2)))
        else:
            for w in range(4):
                for k in range(4):
                    st('v_add_f32 %s, %s, %s' % (vr(x + k), vr(x + k), vr(P[w] + k)))

    sc = Sched(a)
    sc.VM_GAP = 20
    qs, qp = sc.add(Stream()), sc.add(Stream())
    if layer == 0:
        a.wait(cv.stk)
        cf_ = Stream()
        with V.borrow((GP, 12)):
            frel = conv_final(cf_, cv, CA[4:8])
        qs.extend(cf_.groups)
        nrest = len(cf_.groups) - cv.mark
        put(*frel)
    if layer == 0:
        a('s_barrier')
    S, Q = V.get(6, 1), V.get(6, 1)
    PT = [V.get(4) for _ in range(4)]
    DP = V.get(4)
    tk = None
    gs = None
    for i in range(MT):
        m = Stream()
        for s in range(9):
            for j in range(4):
                ca = CA[(i & 1) * 4 + j]
                m('v_mfma_f32_16x16x32_bf16 %s, %s, %s, %s' % (vr(ca, 4), WC(s, j), vr(hb(i, s), 4), '0' if s == 0 else vr(ca, 4)))
                if j == 0 and s < 8:
                    m.touch(vr(hb(i, s + 1), 4))
                if OPT['ramp'] and j == 1 and nld < min(i * 9 + s + NF, 9 * MT, 27 if (flagb is not None and i == 0) else 99):
                    hload_next(m, HB[nld % NF])
                    nld += 1
                if afterld is not None and i == 0 and s == 3 and j == 2:
                    m.extend(afterld)
            f_ = i * 9 + s
            lim = min(f_ + 1 + NF, 9 * MT)
            if flagb is not None and i == 0:
                lim = min(lim, 27)
            if nld < lim:
                hload_next(m, HB[nld % NF])
                nld += 1
        if i >= 3:
            if i == 3:
                print('gemm_c leftover before barrier', sc.pending())
                sc.flush()
            a.wait(tk)
            a('s_barrier')
            sd = Stream()
            tl = ((0, 1), (2,), (3,))[i - 3]
            preduce(sd, tl[0], PT)
            for n_, ti in enumerate(tl):
                nx_ = Stream()
                if n_ + 1 < len(tl):
                    preduce(nx_, tl[n_ + 1], PT)
                for w in range(4):
                    for k in range(4):
                        sd('v_add_f32 %s, %s, %s' % (vr(BASE + 4 * ti + k), vr(BASE + 4 * ti + k), vr(PT[w] + k)))
                    if nx_.groups:
                        sd.groups.append(nx_.groups[w])
                stats_partial(sd, BASE, S, Q, ti, None, False)
            if i == 4:
                stats_pub_g(sd, S, Q, DP, which, 0)
            qs.extend(sd.groups)
        if layer == 0 and i == 5:
            gs = g_fetch_streams(HB[8:12])
            qg = sc.add(gs[0])
        if flagb is not None and i == 1:
            a.extend(flagb)
            a('s_barrier')
        if i > 0:
            pw = Stream()
            tk = pwrite(pw, i - 1)
            qp.extend(pw.groups)
        sc.run(m)
        sc.flush(qp)
        if layer == 0 and i == 0:
            print('final part A leftover', len(qs) - nrest)
            while len(qs) > nrest:
                sc._emit(qs.pop(0))
        if OPT['fine']:
            stamp(a, 'c%d_t%d' % (layer, i))
    print('gemm_c leftover', sc.pending(), 'model time', sc.t)
    sc.flush()
    put(*[(r, 4) for r in PT + (HB[12:] if layer == 0 else HB[8:])])
    GA = V.get(12)
    gla = stats_loads(which, GA)[:6]
    for i in range(3):
        a(gla[2 * i], gla[2 * i + 1])
    if layer == 0:
        V.claim(GP, 12)
    tk = pwrite(a, MT - 1)
    a.wait(tk)
    a('s_barrier')
    stamp(a, 'gemmC%d' % layer)
    for ti in (4, 5):
        preduce(a, ti, HB[(ti - 4) * 4:(ti - 4) * 4 + 4])
    for ti in (4, 5):
        padd(a, ti, HB[(ti - 4) * 4:(ti - 4) * 4 + 4], True)
        stats_partial(a, BASE, S, Q, ti, CA[0], True)
    stats_pub_g(a, S, Q, DP, which, 1)
    stamp(a, 'st_pub%d' % which)
    put(*[(r, 4) for r in CA + HB[:8]])
    put((S, 6), (Q, 6), (DP, 4))
    return GA, gla, gs


def gate_g(a, which, final, g, G, gl, ex, before_poll=None, mid=None):
    GU = V.get(12)
    for i in range(3):
        for j in range(2):
            a('v_lshlrev_b32 %s, 16, %s' % (vr(GU + 4 * i + 2 * j), vr(GP + 2 * (3 * g + i) + j)))
            a('v_and_b32 %s, 0xffff0000, %s' % (vr(GU + 4 * i + 2 * j + 1), vr(GP + 2 * (3 * g + i) + j)))
    if before_poll is not None:
        before_poll(a)
    poll(a, gl, [(G + 4 * i + 1, G + 4 * i + 3, ex) for i in range(3)], pre_issued=True)
    stamp(a, 'st_got%d%s' % (which, 'ab'[g]))
    rs6(a, [G + 4 * i for i in range(3)], [G + 4 * i + 2 for i in range(3)])
    P = V.get(4)
    for k, src in ((0, G), (1, G + 8)):
        a('v_mul_f32 %s, 0x3ae38e39, %s' % (vr(P + 2 * k), vr(src)))
        a('v_mul_f32 %s, 0x3ae38e39, %s' % (vr(P + 2 * k + 1), vr(src + 2)))
    for k in range(2):
        a('v_fma_f32 %s, -%s, %s, %s' % (vr(P + 2 * k + 1), vr(P + 2 * k), vr(P + 2 * k), vr(P + 2 * k + 1)))
    for k in range(2):
        a('v_max_f32 %s, 0, %s' % (vr(P + 2 * k + 1), vr(P + 2 * k + 1)))
    for k in range(2):
        a('v_add_f32 %s, 0x3727c5ac, %s' % (vr(P + 2 * k + 1), vr(P + 2 * k + 1)))
    for k in range(2):
        a('v_rsq_f32 %s, %s' % (vr(P + 2 * k + 1), vr(P + 2 * k + 1)))
    for k in range(2):
        a('v_add_f32_dpp %s, %s, %s quad_perm:[0,1,2,3] row_mask:0xf bank_mask:0x%x' % (vr(OFF + k), vr(P + 2 * k), vr(OFF + k), (0x3, 0xc)[g]))
    if mid is not None:
        mid(a)
    B = G
    for i in range(3):
        bcast(a, B + 4 * i, P, 3 * g + i)
        if final:
            k_, lane = tile_src(3 * g + i)
            a('v_mov_b32_dpp %s, %s row_newbcast:%d row_mask:0xf bank_mask:0xf' % (vr(B + 4 * i + 2), vr(OFF + k_), lane))
    for i in range(3):
        x, gg, b = BASE + 4 * (3 * g + i), GU + 4 * i, B + 4 * i
        for k in range(2):
            a('v_pk_add_f32 %s, %s, %s op_sel:[0,0] op_sel_hi:[1,0] neg_lo:[0,1] neg_hi:[0,1]' % (vr(x + 2 * k, 2), vr(x + 2 * k, 2), vr(b, 2)))
            a('v_pk_fma_f32 %s, %s, %s, 1.0 op_sel:[0,1,0] op_sel_hi:[1,1,0]' % (vr(gg + 2 * k, 2), vr(gg + 2 * k, 2), vr(b, 2)))
        for k in range(2):
            if final:
                a('v_pk_fma_f32 %s, %s, %s, %s op_sel:[0,0,0] op_sel_hi:[1,1,0]' % (vr(x + 2 * k, 2), vr(x + 2 * k, 2), vr(gg + 2 * k, 2), vr(b + 2, 2)))
            else:
                a('v_pk_mul_f32 %s, %s, %s' % (vr(x + 2 * k, 2), vr(x + 2 * k, 2), vr(gg + 2 * k, 2)))
        if final:
            a('s_movk_i32 %s, %d' % (sr(S_T0), 4608 * (3 * g + i)),
              'buffer_store_dwordx4 %s, %s, %s, %s offen' % (vr(x, 4), vr(V_OROW), sr(R_OUT, 4), sr(S_T0)))
    tk = None
    if not final:
        WP = GU
        for i in range(3):
            for k in range(2):
                a('v_cvt_pk_bf16_f32 %s, %s, %s' % (vr(WP + 2 * i + k), vr(BASE + 4 * (3 * g + i) + 2 * k), vr(BASE + 4 * (3 * g + i) + 2 * k + 1)))
        tk = dual(a, ['s_add_u32 %s, %s, %d' % (sr(S_T0), sr(S_TT), g * 55296), 's_add_u32 %s, %s, 4096' % (sr(S_T1), sr(S_T0))] +
                  ['buffer_store_dwordx2 %s, %s, %s, %s offen offset:%d {P}' %
                   (vr(WP + 2 * i, 2), vr(V_WA), sr(R_WS, 4), sr((S_T0, S_T1)[i >> 1]), (i & 1) * 2048) for i in range(3)])
    put((GU, 12), (G, 12), (P, 4))
    return tk


def gate(a, which, final, R, extra=None):
    GA, gla, gs = R
    ex = stats_exp(a, which)
    if gs is not None:
        a.extend(gs[1])
        put(*gs[2])
    GB = V.get(12)
    glb = [x.replace(vr(GB + 12 + 4 * i, 4), vr(GB + 4 * i, 4)) for i in range(3) for x in stats_loads(which, GB)[6 + 2 * i:8 + 2 * i]]
    def issue_b(st):
        for i in range(3):
            st(glb[2 * i], glb[2 * i + 1])

    if final:
        gate_g(a, which, final, 0, GA, gla, ex, mid=issue_b)
        gate_g(a, which, final, 1, GB, glb, ex)
        put(ex)
        return None
    ta_ = gate_g(a, which, final, 0, GA, gla, ex, mid=issue_b)

    def flag_a(st):
        extra(st)
        st.wait(ta_)
        dual(st, flag_texts(sr(S_TT + 1), '{P}'))
        stamp(st, 'w_pub')

    tb_ = gate_g(a, which, final, 1, GB, glb, ex, before_poll=flag_a)
    put(ex)
    return ta_, tb_


R_ = gemm_c(a, 0, HB0)
a('s_mul_i32 %s, %s, 36' % (sr(S_TT), sr(S_RB)))
a('s_add_u32 %s, %s, %s' % (sr(S_TT), sr(S_TT), sr(S_CG)))
a('s_mul_i32 %s, %s, 6144' % (sr(S_TT), sr(S_TT)))
a('s_add_u32 %s, %s, %d' % (sr(S_TT), sr(S_TT), WS_H))
a('s_lshl_b32 %s, %s, 8' % (sr(S_TT + 2), sr(S_RB)))
a('s_add_u32 %s, %s, %d' % (sr(S_TT + 2), sr(S_TT + 2), WS_WF))
a('s_lshl2_add_u32 %s, %s, %s' % (sr(S_TT + 1), sr(S_PT), sr(S_TT + 2)))
a('s_add_u32 %s, %s, %d' % (sr(S_TT + 3), sr(S_TT + 1), WS_WFB - WS_WF))
fa, fe, fv, fv2 = [V.get() for _ in range(4)]
S2, Q2, D2 = V.get(6, 1), V.get(6, 1), V.get(4)


def extra1(a):
    a('v_lshl_add_u32 %s, %s, 2, %s' % (vr(fa), vr(V_LANE), sr(S_TT + 2)))
    a('v_cmp_gt_u32 vcc, 36, %s' % vr(V_LANE),
      'v_cndmask_b32 %s, %s, %s, vcc' % (vr(fa), vr(V_OOB), vr(fa)),
      'v_cndmask_b32 %s, 0, %s, vcc' % (vr(fe), vr(V_TAG)))
    a('s_mov_b32 %s, %d' % (sr(S_TT + 4), WS_WFB - WS_WF))
    for i in range(3):
        stats_partial(a, BASE, S2, Q2, i, D2, True)


wta, wtb = gate(a, 1, False, R_, extra1)
put((D2, 4))
fla = 'buffer_load_dword %s, %s, %s, 0 offen sc1' % (vr(fv), vr(fa), sr(R_WS, 4))
flb = 'buffer_load_dword %s, %s, %s, %s offen sc1' % (vr(fv2), vr(fa), sr(R_WS, 4), sr(S_TT + 4))
a(fla)
stats_publish(a, BASE, 2, True, SQ=(S2, Q2), tiles=(3, 4, 5))
V_DW = V.get()
a('s_mul_i32 %s, %s, %d' % (sr(S_T0), sr(S_RB), 18 * BLK))
a('s_add_u32 %s, %s, %d' % (sr(S_T0), sr(S_T0), WS_H))
a('s_add_u32 %s, %s, %s' % (sr(S_T0), sr(S_T0), sr(S_W1K)))
a('v_add_u32 %s, %s, %s' % (vr(V_DW), sr(S_T0), vr(V_L16)))
a.wait(wtb)
dual(a, flag_texts(sr(S_TT + 3), '{P}'))

ACC = V.get(48, top=True)
AF = V.get(48, top=True)
poll(a, [fla], [(fv, None, fe)], pre_issued=True)
stamp(a, 'w_flag')


def w_dma(s, g, u):
    s('s_add_u32 m0, %s, %d' % (sr(S_W1K), g * 55296 + u * 4096))
    return s.mem('s_mov_b32 %s, %d' % (sr(S_TT + 5), g * 55296 + u * 4096),
                 'buffer_load_dwordx4 %s, %s, %s offen sc1 lds' % (vr(V_DW), sr(R_WS, 4), sr(S_TT + 5)))


def a2_reads(g, k):
    s = Stream()
    for i in range(3):
        s('ds_read_b128 %s, %s offset:%d' % (vr(AF + ((18 * g + k) & 3) * 12 + i * 4, 4), vr(V_FA + (k & 1) + 2 * g),
                                             g * (55296 - 4 * BLK) + (k >> 1) * 6144 + i * 2048))
    return s


G2 = V.get(24)
gl2 = stats_loads(2, G2)
wt = {}
for u in range(6):
    wt[0, u] = w_dma(a, 0, u)
sc = Sched(a)
qr, qv, qs = sc.add(Stream()), sc.add(Stream()), sc.add(Stream())
vq, sq = Stream(), Stream()
for u in range(6, 14):
    wt[0, u] = w_dma(vq, 0, u)
    if u == 8:
        vq(flb)
g2tok = None
for i in range(0, 12, 2):
    g2tok = vq.mem(gl2[i], gl2[i + 1])
poll(vq, [flb], [(fv2, None, fe)], pre_issued=True)
for u in range(14):
    wt[1, u] = w_dma(vq, 1, u)
ex2 = stats_exp(sq, 2)
sq.wait(g2tok)
poll(sq, gl2, [(G2 + 4 * i + 1, G2 + 4 * i + 3, ex2) for i in range(MT)], pre_issued=True)
put(ex2)
ttk2, LNP1 = ln_table(sq, 1, G2, None)
put(fa, fe, fv, fv2)
sc.expect(vq, sq)
sc.LAT_VM = 600
sc.VM_GAP = 48
qv.extend(vq.groups)
qs.extend(sq.groups)
TB1 = V.get(24)
E1 = V.get(8, 2)
re1 = lambda j: ACC + (j >> 1) * 4 + (j & 1) * 2
im1 = lambda j: ACC + 4 * MT + (j >> 1) * 4 + (j & 1) * 2
p1 = Stream()
for j in range(6):
    p1('ds_read_b128 %s, %s offset:%d' % (vr(TB1 + 4 * j, 4), vr(V_TABR), 16 * j))
for j in range(6):
    for hf in range(2):
        r_, i_ = re1(j) + hf, im1(j) + hf
        p1('v_mul_f32 %s, %s, %s' % (vr(r_), vr(r_), vr(TB1 + 4 * j + hf)))
        p1('v_mul_f32 %s, %s, %s' % (vr(i_), vr(i_), vr(TB1 + 4 * j + hf)))
        p1('v_fma_f32 %s, -%s, %s, %s' % (vr(r_), vr(TB1 + 4 * j + 2 + hf), vr(RB), vr(r_)))
        p1('v_fma_f32 %s, -%s, %s, %s' % (vr(i_), vr(TB1 + 4 * j + 2 + hf), vr(RB + 1), vr(i_)))
    p1('ds_read_b128 %s, %s offset:%d' % (vr(TB1 + 4 * j, 4), vr(V_TABR), 16 * (j + 6)))
    if j > 0:
        pr_, pi_ = (re1(0), im1(0)) if j == 1 else (E1 + ((j - 1) & 1) * 4, E1 + ((j - 1) & 1) * 4 + 2)
        dr_, di_ = E1 + (j & 1) * 4, E1 + (j & 1) * 4 + 2
        for hf in range(2):
            p1('v_fma_f32 %s, %s, %s, %s' % (vr(dr_ + hf), vr(pr_ + hf), vr(LAM), vr(re1(j) + hf)))
            p1('v_fma_f32 %s, %s, %s, %s' % (vr(di_ + hf), vr(pi_ + hf), vr(LAM), vr(im1(j) + hf)))
            p1('v_fma_f32 %s, -%s, %s, %s' % (vr(dr_ + hf), vr(pi_ + hf), vr(LAM + 1), vr(dr_ + hf)))
            p1('v_fmac_f32 %s, %s, %s' % (vr(di_ + hf), vr(pr_ + hf), vr(LAM + 1)))
dn = Stream()
dual(dn, ['s_lshl2_add_u32 %s, %s, %s' % (sr(S_T0), sr(S_CG), sr(S_TT + 2)),
          's_add_u32 %s, %s, 160' % (sr(S_T0), sr(S_T0))] + flag_texts(sr(S_T0), '{P}'))


BARS = {0: (0, 2), 4: (0, 5), 8: (0, 13), 18: (1, 5), 26: (1, 13)}


def b2_bar(kk):
    tok = wt[BARS[kk]]
    ensure(sc, tok)
    b = Stream()
    b.wait(tok)
    if kk == 18:
        ensure(sc, ttk2)
        b.wait(ttk2)
    b('s_barrier')
    keep, sc.sides = sc.sides, []
    sc.run(b)
    sc.sides = keep


b2_bar(0)
sc.run(a2_reads(0, 0))
sc.run(a2_reads(0, 1))
for kk in range(36):
    g, k = divmod(kk, 18)
    nx = kk + 2
    if kk == 18:
        qs.extend(p1.groups)
    if nx < 36:
        if nx in BARS:
            b2_bar(nx)
            if nx == 26:
                qv.extend(dn.groups)
        qr.extend(a2_reads(nx // 18, nx % 18).groups)
    m = Stream()
    m.touch(vr(AF + (kk & 3) * 12, 12))
    for i in range(3):
        for mat in range(2):
            d = ACC + (mat * MT + 3 * g + i) * 4
            m('v_mfma_f32_16x16x32_bf16 %s, %s, %s, %s' % (vr(d, 4), vr(AF + (kk & 3) * 12 + i * 4, 4), ar(WB(k >> 1, k & 1, mat), 4),
                                                          '0' if k == 0 else vr(d, 4)))
    sc.run(m)
    sc.flush(qr)
    if OPT['fine'] and kk % 6 == 5:
        stamp(a, 'k%d' % kk)
print('gemm_b2 leftover', sc.pending(), 'model time', sc.t)
sc.flush()
put(V_DW)
stamp(a, 'gemmB2')


def mid1(a, mk):
    da, dv = V.get(), V.get()
    a('s_lshl_b32 %s, %s, 8' % (sr(S_T1), sr(S_RB)))
    a('s_add_u32 %s, %s, %d' % (sr(S_T1), sr(S_T1), WS_WF + 160))
    a('v_lshl_add_u32 %s, %s, 2, %s' % (vr(da), vr(V_N), sr(S_T1)))
    a('v_cmp_gt_u32 vcc, 9, %s' % vr(V_N), 'v_cndmask_b32 %s, %s, %s, vcc' % (vr(da), vr(V_OOB), vr(da)))
    dl = 'buffer_load_dword %s, %s, %s, 0 offen sc1' % (vr(dv), vr(da), sr(R_WS, 4))
    a(dl)
    ln_rest(a, 1, LNP1)
    mk(a)
    poll(a, [dl], [(dv, None, V_EXP9)], pre_issued=True)
    put(da, dv)
    return None


htk, hrel = scan_phase(a, 1, ACC, AF, mid1, half=(E1, TB1), split_h=True)
put(*hrel)
a('s_add_u32 %s, %s, %d' % (sr(S_C), sr(S_T0), WS_HFB - WS_HF - NRB * 256))
a.wait(htk[0])
dual(a, flag_texts(sr(S_T0), '{P}'))
stamp(a, 'h_pub1')
hfa, hfv, hfl = hflag_prep(a, 1)
hfv2 = V.get()
a('s_mov_b32 %s, %d' % (sr(S_TT + 4), WS_HFB - WS_HF - NRB * 256))
hq = Stream()
hq(hfl)
hq.wait(htk[1])
dual(hq, flag_texts(sr(S_C), '{P}'))
hflb = 'buffer_load_dword %s, %s, %s, %s offen sc1' % (vr(hfv2), vr(hfa), sr(R_WS, 4), sr(S_TT + 4))
al = Stream()
al(hflb)
al('s_lshl2_add_u32 %s, %s, %s' % (sr(S_T0), sr(S_L), sr(S_WAVE)),
   's_cmp_lg_u32 %s, %d' % (sr(S_T0), (NRB - 1) * 9 * 4),
   's_cselect_b64 exec, 0, 1',
   'buffer_store_dword %s, %s, %s, 0 offen sc1' % (vr(V_TAG), vr(V_ZERO), sr(R_WS, 4)),
   's_mov_b64 exec, -1')
fb = Stream()
poll(fb, [hflb], [(hfv2, None, V_EXP9)], pre_issued=True)
R_ = gemm_c(a, 1, None, fb, al)
put(hfa, hfv, hfv2)
gate(a, 3, True, R_)
stamp(a, 'out')
a('s_branch L_fin')

a.fence()
a.label('L_aux')
V.free = set(range(NCOMMON, 256))
V.locked = set()
a('s_waitcnt lgkmcnt(0)')
a('s_load_dword %s, %s, 0' % (sr(S_TAG), sr(P_WS, 2)))
srd(a, R_WS, P_WS, WS_SIZE)
a('s_sub_u32 %s, %s, %d' % (sr(S_RB), sr(S_L), NMAIN))
S_AW, S_KC_, S_CGK, S_KP2, S_DG, S_SCR, S_AW2 = [S_KP + i for i in range(7)]
a('s_mul_i32 %s, %s, 58' % (sr(S_AW2), sr(S_WAVE)))
a('s_add_u32 %s, %s, %s' % (sr(S_AW2), sr(S_AW2), sr(S_RB)))
a('s_lshl2_add_u32 %s, %s, %s' % (sr(S_AW), sr(S_RB), sr(S_WAVE)))
a('s_mul_i32 %s, %s, 57' % (sr(S_T0), sr(S_AW)))
a('s_lshr_b32 %s, %s, 10' % (sr(S_DG), sr(S_T0)))
a('s_mul_i32 %s, %s, 171' % (sr(S_KC_), sr(S_AW2)))
a('s_lshr_b32 %s, %s, 9' % (sr(S_KC_), sr(S_KC_)))
a('s_mul_i32 %s, %s, 18' % (sr(S_T1), sr(S_DG)))
a('s_sub_u32 %s, %s, %s' % (sr(S_KP2), sr(S_AW), sr(S_T1)))
a('s_mul_i32 %s, %s, 3' % (sr(S_T1), sr(S_KC_)))
a('s_sub_u32 %s, %s, %s' % (sr(S_CGK), sr(S_AW2), sr(S_T1)))
a('s_add_u32 %s, %s, 6' % (sr(S_CGK), sr(S_CGK)))
srd(a, R_BRE, P_CRE, 576 * 1152)
srd(a, R_BIM, P_CIM, 576 * 1152)
dp, gm, vc, t, t2 = [V.get() for _ in range(5)]
a('v_and_b32 %s, 31, %s' % (vr(dp), vr(V_LANE)))
a('s_lshl_b32 %s, %s, 6' % (sr(S_T0), sr(S_KP2)))
a('v_lshl_add_u32 %s, %s, 1, %s' % (vr(t2), vr(dp), sr(S_T0)))
LT = lam_loads(a, t2)
CL = V.get(24)
a('v_lshrrev_b32 %s, 2, %s' % (vr(vc), vr(V_LANE)))
a('v_mul_u32_u24 %s, 1152, %s' % (vr(vc), vr(vc)))
a('v_and_b32 %s, 3, %s' % (vr(gm), vr(V_LANE)))
a('v_lshl_add_u32 %s, %s, 4, %s' % (vr(vc), vr(gm), vr(vc)))
a('s_mul_i32 %s, %s, %d' % (sr(S_T1), sr(S_DG), 48 * 1152))
a('s_add_u32 %s, %s, %s' % (sr(S_T1), sr(S_T1), sr(S_T0)))
for u in range(3):
    a('s_add_u32 %s, %s, %d' % (sr(S_T2), sr(S_T1), u * 16 * 1152),
      'buffer_load_dwordx4 %s, %s, %s, %s offen nt' % (vr(CL + 8 * u, 4), vr(vc), sr(R_BRE, 4), sr(S_T2)),
      'buffer_load_dwordx4 %s, %s, %s, %s offen nt' % (vr(CL + 8 * u + 4, 4), vr(vc), sr(R_BIM, 4), sr(S_T2)))
srd(a, R_K, P_K, 2048 * 1152)
srd(a, R_V, P_V, 2048 * 1152)
sg, vk, vh, ka = [V.get() for _ in range(4)]
a('v_lshrrev_b32 %s, 5, %s' % (vr(sg), vr(V_LANE)))
a('s_mul_i32 %s, %s, %d' % (sr(S_T0), sr(S_KC_), 48 * 1152))
a('s_lshl_b32 %s, %s, 7' % (sr(S_T1), sr(S_CGK)))
a('s_add_u32 %s, %s, %s' % (sr(S_T0), sr(S_T0), sr(S_T1)))
a('v_mul_u32_u24 %s, %d, %s' % (vr(vk), 24 * 1152, vr(sg)))
a('v_lshl_add_u32 %s, %s, 2, %s' % (vr(vk), vr(dp), vr(vk)))
a('v_add_u32 %s, %s, %s' % (vr(vk), sr(S_T0), vr(vk)))
a('v_subrev_u32 %s, %d, %s' % (vr(vh), 3 * 1152, vr(vk)))
SHK = V.get(4)
a('s_lshl_b32 %s, %s, 9' % (sr(S_T1), sr(S_CGK)))
a('v_lshl_add_u32 %s, %s, 4, %s' % (vr(t), vr(dp), sr(S_T1)))
a('global_load_dwordx4 %s, %s, %s' % (vr(SHK, 4), vr(t), sr(P_SHK, 2)))
KR, VR = V.get(27, 1), V.get(24, 1)
ld = Stream()
for j in range(3):
    ld('buffer_load_dword %s, %s, %s, 0 offen offset:%d nt' % (vr(KR + j), vr(vh), sr(R_K, 4), 1152 * j))
for j3 in range(8):
    ld('s_mov_b32 %s, %d' % (sr(S_C), 3456 * j3),
       *['buffer_load_dword %s, %s, %s, %s offen offset:%d nt' % (vr(base + 3 * j3 + jj), vr(vk), sr(rr, 4), sr(S_C), 1152 * jj)
         for jj in range(3) for (base, rr) in ((KR + 3, R_K), (VR, R_V))])
ldp = split(ld, 2)
astamp(a, 4)
a('s_waitcnt lgkmcnt(0)')
astamp(a, 5)
tag_ready(a)
cs = Stream()
cs('s_mul_i32 %s, %s, 8192' % (sr(S_SCR), sr(S_WAVE)), 's_add_u32 %s, %s, %d' % (sr(S_SCR), sr(S_SCR), 65536))
_, COEF = lam_compute(cs, LT, True)
cs('v_add_f32 %s, %s, %s' % (vr(COEF), vr(COEF), vr(COEF)))
cs('v_add_f32 %s, %s, %s' % (vr(COEF + 1), vr(COEF + 1), vr(COEF + 1)))
cs('v_lshl_add_u32 %s, %s, 3, %s' % (vr(t), vr(dp), sr(S_SCR)))
cs('ds_write_b64 %s, %s offset:6144' % (vr(t), vr(COEF, 2)))
cs('v_lshl_add_u32 %s, %s, 6, %s' % (vr(t), vr(gm), sr(S_SCR)))
CF = V.get(16)
for k in range(4):
    cs('ds_read_b128 %s, %s offset:%d' % (vr(CF + 4 * k, 4), vr(t), 6144 + 16 * k))
wa, ra = V.get(), V.get()
cs('v_lshrrev_b32 %s, 2, %s' % (vr(t), vr(V_LANE)))
cs('v_lshlrev_b32 %s, 4, %s' % (vr(t), vr(t)))
cs('v_lshl_add_u32 %s, %s, 9, %s' % (vr(wa), vr(gm), vr(t)))
cs('v_add_u32 %s, %s, %s' % (vr(wa), sr(S_SCR), vr(wa)))
cs('v_add_u32 %s, %s, %s' % (vr(ra), sr(S_SCR), vr(V_L16)))
X = V.get(4)
O = V.get(8)
RD = V.get(24)
for u in range(3):
    for e in range(8):
        src = CL + 8 * u + (e >> 1)
        op = 'v_and_b32 %s, 0xffff0000, %s' if e & 1 else 'v_lshlrev_b32 %s, 16, %s'
        cs(op % (vr(X), vr(src)))
        cs(op % (vr(X + 1), vr(src + 4)))
        cmul(cs, X + 2, X, CF + 2 * e)
        cs('v_cvt_pk_bf16_f32 %s, %s, -%s' % (vr(O + e), vr(X + 2), vr(X + 3)))
    bo = u * 2048
    cs('ds_write_b128 %s, %s offset:%d' % (vr(wa), vr(O, 4), bo))
    cs('ds_write_b128 %s, %s offset:%d' % (vr(wa), vr(O + 4, 4), bo + 256))
    cs('ds_read_b128 %s, %s offset:%d' % (vr(RD + u * 8, 4), vr(ra), bo))
    cs('ds_read_b128 %s, %s offset:%d' % (vr(RD + u * 8 + 4, 4), vr(ra), bo + 1024))
a.weave(cs, ldp[0], 0.3, 0.95)
astamp(a, 6)
a('s_and_b32 %s, %s, 1' % (sr(S_T0), sr(S_KP2)))
a('s_mul_i32 %s, %s, %d' % (sr(S_T0), sr(S_T0), 2 * 37 * 1024))
a('s_lshr_b32 %s, %s, 1' % (sr(S_T1), sr(S_KP2)))
a('s_lshl_b32 %s, %s, 12' % (sr(S_T1), sr(S_T1)))
a('s_add_u32 %s, %s, %s' % (sr(S_T0), sr(S_T0), sr(S_T1)))
a('s_add_u32 %s, %s, %d' % (sr(S_T0), sr(S_T0), WS_CP))
a('s_cmp_lt_u32 %s, 216' % sr(S_AW))
a('s_cselect_b32 %s, %s, 0x%x' % (sr(S_T0), sr(S_T0), 0x40000000))
toks = []
for u in range(3):
    a('s_mul_i32 %s, %s, 3' % (sr(S_T1), sr(S_DG)))
    a('s_add_u32 %s, %s, %d' % (sr(S_T1), sr(S_T1), u))
    a('s_lshr_b32 %s, %s, 2' % (sr(S_T2), sr(S_T1)))
    a('s_mul_i32 %s, %s, %d' % (sr(S_T2), sr(S_T2), 4 * 37 * 1024))
    a('s_and_b32 %s, %s, 3' % (sr(S_T1), sr(S_T1)))
    a('s_lshl_b32 %s, %s, 10' % (sr(S_T1), sr(S_T1)))
    a('s_add_u32 %s, %s, %s' % (sr(S_T1), sr(S_T1), sr(S_T2)))
    a('s_add_u32 %s, %s, %s' % (sr(S_T1), sr(S_T1), sr(S_T0)))
    a('s_add_u32 %s, %s, %d' % (sr(S_T2), sr(S_T1), 37 * 1024))
    toks.append(a.mem('buffer_store_dwordx4 %s, %s, %s, %s offen sc1' % (vr(RD + u * 8, 4), vr(V_L16), sr(R_WS, 4), sr(S_T1))))
    toks.append(a.mem('buffer_store_dwordx4 %s, %s, %s, %s offen sc1' % (vr(RD + u * 8 + 4, 4), vr(V_L16), sr(R_WS, 4), sr(S_T2))))
a('s_nop 1')
put((CL, 24), (CF, 16), (X, 4), (O, 8), (RD, 24), wa, ra, (COEF, 2))
a.extend(ldp[1])
astamp(a, 7)
cf = Stream()
astamp(cf, 8)
cf.wait(*toks)
astamp(cf, 9)
cf('s_lshl_b32 %s, %s, 4' % (sr(S_T0), sr(S_AW)),
   's_add_u32 %s, %s, %d' % (sr(S_T0), sr(S_T0), WS_CPF), *flag_texts(sr(S_T0), 'sc1'))
a('v_sub_u32 %s, 1, %s' % (vr(sg), vr(sg)))
a('v_lshlrev_b32 %s, 6, %s' % (vr(sg), vr(sg)))
a('v_mul_u32_u24 %s, 272, %s' % (vr(ka), vr(dp)))
a('s_mul_i32 %s, %s, 8704' % (sr(S_SCR), sr(S_WAVE)))
a('v_add3_u32 %s, %s, %s, %s' % (vr(ka), vr(ka), vr(sg), sr(S_SCR)))
kc = Stream()
kv_core(kc, 12, lambda r: KR + 3 + r, lambda r: VR + r, SHK,
        lambda ch, un, reg: kc('ds_write_b128 %s, %s offset:%d' % (vr(ka), vr(reg, 4), ch * 128 + un * 16)),
        touch=lambda tp: kc.touch(vr(KR + 3 + 2 * tp, 6), vr(VR + 2 * tp, 6)) if tp % 3 == 0 else None)
cv = Conv()
conv_setup_k(cf, cv)
a.weave(kc, cf, 0.0, 0.5)
astamp(a, 10)
put((KR, 27), (VR, 24))
RD = V.get(32)
ra, ga = V.get(), V.get()
a('v_lshlrev_b32 %s, 4, %s' % (vr(ra), vr(V_Q)))
a('v_add3_u32 %s, %s, %s, %s' % (vr(ra), vr(ra), vr(V_L16), sr(S_SCR)))
for i in range(8):
    a('ds_read_b128 %s, %s offset:%d' % (vr(RD + 4 * i, 4), vr(ra), 1088 * i))
a('v_lshrrev_b32 %s, 3, %s' % (vr(ga), vr(V_LANE)))
a('v_mul_u32_u24 %s, %d, %s' % (vr(ga), KVT_STR - 128, vr(ga)))
a('v_add_u32 %s, %s, %s' % (vr(ga), vr(ga), vr(V_L16)))
a('s_mul_i32 %s, %s, %d' % (sr(S_T0), sr(S_CGK), 64 * KVT_STR))
a('s_sub_u32 %s, 43, %s' % (sr(S_T1), sr(S_KC_)))
a('s_lshl_b32 %s, %s, 7' % (sr(S_T1), sr(S_T1)))
a('s_add_u32 %s, %s, %s' % (sr(S_T0), sr(S_T0), sr(S_T1)))
a('s_cmp_lt_u32 %s, 132' % sr(S_AW2))
a('s_cselect_b32 %s, %s, 0x%x' % (sr(S_T2), sr(S_T0), 0x40000000))
for i in range(8):
    a('s_add_u32 %s, %s, %d' % (sr(S_T1), sr(S_T2), WS_KVT + 8 * i * KVT_STR),
      'buffer_store_dwordx4 %s, %s, %s, %s offen sc1' % (vr(RD + 4 * i, 4), vr(ga), sr(R_WS, 4), sr(S_T1)))
a('s_nop 1')
if OPT['stamps']:
    a('s_memtime %s' % sr(S_M2, 2), 's_waitcnt lgkmcnt(0)', 'v_writelane_b32 %s, %s, 1' % (vr(V_STAMP), sr(S_M2)))
keep_cv = cv
a('s_branch L_auxconv3')
a.fence()
a.label('L_auxconv2')
V.free = set(range(NCOMMON, 256))
V.locked = set()
sv = OPT['stamps']
OPT['stamps'] = 0
OPT['_sv'] = sv
cv = Conv()
a('s_barrier')
conv_setup_k(a, cv)
assert (cv.SD, cv.HD) == (keep_cv.SD, keep_cv.HD)
a.label('L_auxconv3')
a('s_barrier')
conv_u_prep(a, cv)
put(*conv_addr(a, cv))
conv_body(a, cv, pre_issued=False)
a.wait(cv.stk)
a('s_barrier')
conv_final(a, cv)
astamp(a, 13)
OPT['stamps'] = sv
if OPT['stamps']:
    a('s_memtime %s' % sr(S_M2, 2), 's_waitcnt lgkmcnt(0)', 's_cmp_eq_u32 %s, %s' % (sr(S_PAIR), sr(S_L)),
      's_cselect_b32 m0, 2, 3', 's_nop 3', 'v_writelane_b32 %s, %s, m0' % (vr(V_STAMP), sr(S_M2)))
a('s_add_u32 %s, %s, %d' % (sr(S_PAIR), sr(S_PAIR), NAUX))
a('s_cmp_lt_u32 %s, 288' % sr(S_PAIR))
a('s_cbranch_scc1 L_auxconv2')
a('s_branch L_fin')

a.fence()
a.extend(tail)

a.label('L_fin')
if OPT['stamps']:
    a('s_waitcnt vmcnt(0) lgkmcnt(0)')
    a('%s %s' % ('s_memtime' if OPT['cyc'] else 's_memrealtime', sr(S_M2, 2)))
    a('s_waitcnt lgkmcnt(0)')
    a('v_writelane_b32 %s, %s, 63' % (vr(V_STAMP), sr(S_M2)))
    a('v_writelane_b32 %s, %s, 62' % (vr(V_STAMP), sr(S_FAST)))
    a('s_lshl_b32 %s, %s, 10' % (sr(S_T0), sr(S_L)))
    a('s_add_u32 %s, %s, %d' % (sr(S_T0), sr(S_T0), WS_DBG))
    a('v_lshlrev_b32 %s, 2, v0' % vr(V_DUMMY))
    a('buffer_store_dword %s, %s, %s, %s offen' % (vr(V_STAMP), vr(V_DUMMY), sr(R_WS, 4), sr(S_T0)))
if OPT['enc2']:
    n1_, n2_ = OPT['enc2'].split(':')
    a('s_lshl2_add_u32 %s, %s, %s' % (sr(S_T0), sr(S_L), sr(S_WAVE)))
    a('s_cmp_lg_u32 %s, %d' % (sr(S_T0), OPT['encwg'] * 4))
    a('s_cbranch_scc1 L_end')
    a('v_readlane_b32 s12, %s, %d' % (vr(V_STAMP), STAMPS.index(n1_)))
    a('v_readlane_b32 s13, %s, %d' % (vr(V_STAMP), 63 if n2_ == 'end' else STAMPS.index(n2_)))
    a('s_memrealtime s[16:17]')
    a('s_sub_u32 s13, s13, s12')
    a('s_lshr_b32 s13, s13, 2')
    a('s_waitcnt lgkmcnt(0)')
    a.label('L_hold')
    a('s_memrealtime s[14:15]')
    a('s_waitcnt lgkmcnt(0)')
    a('s_sub_u32 s14, s14, s16')
    a('s_cmp_lt_u32 s14, s13')
    a('s_cbranch_scc1 L_hold')
if OPT['enc']:
    idx_ = 63 if OPT['enc'] == 'end' else STAMPS.index(OPT['enc'])
    a('s_lshl2_add_u32 %s, %s, %s' % (sr(S_T0), sr(S_L), sr(S_WAVE)))
    a('s_cmp_lg_u32 %s, %d' % (sr(S_T0), OPT['encwg'] * 4))
    a('s_cbranch_scc1 L_end')
    a('v_readlane_b32 s12, %s, %d' % (vr(V_STAMP), idx_))
    a.label('L_hold')
    a('s_memrealtime s[14:15]')
    a('s_waitcnt lgkmcnt(0)')
    a('s_sub_u32 s14, s14, s12')
    a('s_cmp_lt_u32 s14, 5000')
    a('s_cbranch_scc1 L_hold')
a.label('L_end')
a('s_endpgm')

hdr = open(os.path.join(os.path.dirname(os.path.abspath(__file__)), '..', 'cdna_kernels', NAME + '.s.ref')).read().split('\n')
head = []
for ln in hdr:
    if ln.startswith('; @launch'):
        break
    head.append(ln)
lines = head + ['; @launch grid=(256,1,1) block=(256,1,1) lds=%d' % LDS_SIZE,
                '.amdgcn_target "amdgcn-amd-amdhsa--gfx950"', '.text', '.globl ' + KN, '.p2align 8',
                '.type %s,@function' % KN, KN + ':']
body_ = finalize(top)
if not OPT['nto']:
    body_ = [l_.replace(' nt', '') if 's[48:51]' not in l_ else l_ for l_ in body_]
lines += body_
lines += ['.section .rodata,"a"', '.p2align 6', '.amdhsa_kernel ' + KN,
          '  .amdhsa_next_free_vgpr 512', '  .amdhsa_next_free_sgpr 102', '  .amdhsa_accum_offset 256',
          '  .amdhsa_group_segment_fixed_size 0', '  .amdhsa_kernarg_size 144', '  .amdhsa_user_sgpr_count 2',
          '  .amdhsa_user_sgpr_kernarg_segment_ptr 1', '  .amdhsa_system_sgpr_workgroup_id_x 1', '.end_amdhsa_kernel']
open(sys.argv[1], 'w').write('\n'.join(lines) + '\n')
if OPT['stamps']:
    open(sys.argv[1] + '.stamps', 'w').write('\n'.join(STAMPS) + '\n')
print('vgpr high water', V.hw, 'lines', len(lines))
```
